```python
import torch

def _softmax(x, axis=-1):
    return torch.softmax(x, dim=axis)
def _gelu(x):
    return torch.nn.functional.gelu(x, approximate="tanh")
def _silu(x):
    return torch.nn.functional.silu(x)
def _sigmoid(x):
    return torch.sigmoid(x)
def _layernorm(x, axis=-1, eps=1e-5):
    m = x.mean(dim=axis, keepdim=True)
    v = x.var(dim=axis, keepdim=True, unbiased=False)
    return (x - m) / torch.sqrt(v + eps)
def _scatter_add(tgt, idx, src, axis=0):
    return tgt.clone().index_add_(axis, idx, src)
def _segment_sum(src, seg, n):
    out = torch.zeros((n,) + src.shape[1:], dtype=src.dtype)
    return out.index_add_(0, seg, src)
def _pad(x, pw):
    flat = tuple(v for pair in reversed(pw) for v in pair)
    return torch.nn.functional.pad(x, flat)

kernel_name = 'standalone__edge_featured_mpnn_gatedgcn__graph'

def setup_inputs():

    _w = (lambda a: (lambda t: t.to(torch.bfloat16) if t.is_floating_point() else t)(torch.as_tensor(a)))
    N, deg, D, De = 10000, 32, 128, max(16, 1)
    E = N * deg
    return {
        "x": _w((lambda *s: torch.randn(*s, dtype=torch.bfloat16) * 0.4)(N, D)),
        "e_attr": _w((lambda *s: torch.randn(*s, dtype=torch.bfloat16) * 0.8)(E, De)),
        "src": _w((lambda lo, hi, *s: torch.randint(lo, hi, s))(0, N, E).to(torch.int64)),
        "dst": _w((lambda lo, hi, *s: torch.randint(lo, hi, s))(0, N, E).to(torch.int64)),
        "w_a": _w((lambda *s: torch.randn(*s, dtype=torch.bfloat16) * 0.4)(D, D)),
        "w_b": _w((lambda *s: torch.randn(*s, dtype=torch.bfloat16) * 0.4)(D, D)),
        "w_c": _w((lambda *s: torch.randn(*s, dtype=torch.bfloat16) * 0.8)(De, D)),
        "w_u": _w((lambda *s: torch.randn(*s, dtype=torch.bfloat16) * 0.05)(D, D)),
        "w_v": _w((lambda *s: torch.randn(*s, dtype=torch.bfloat16) * 0.05)(D, D)),
    }

def reference(x, e_attr, src, dst, w_a, w_b, w_c, w_u, w_v):
    N, D = x.shape
    hv = x @ w_v
    g = x[dst] @ w_a + x[src] @ w_b + e_attr @ w_c
    eta = _sigmoid(g)
    denom = _segment_sum(eta, dst, N) + 1e-6
    eta_n = eta / denom[dst]
    agg = _segment_sum(eta_n * hv[src], dst, N)
    z = x @ w_u + agg
    relu_z = torch.where(z > 0, z, 0 * z)
    return x + relu_z
```

```python
import struct, sys

N = 10000; E = 320000
NCH = 256; CS = 1250
NBIN = 125; BN = 80
CAP = 32
SEGE = 1152
BINE = NCH * SEGE
T_OFF = 0x100000; TH = 0x280000
REC_OFF = 0x700000
WT_OFF = 0xB00000
ES_OFF = 0xC00000
NL2E = struct.unpack("<I", struct.pack("<f", -1.4426950408889634))[0]

def bf(x): return struct.unpack("<I", struct.pack("<f", x))[0] >> 16

OPT = dict(st_e="", st_r="", st_t="")
for a in sys.argv[2:]:
    k, v = a.split("=", 1); OPT[k] = v

class Asm:
    def __init__(self): self.l = []
    def __call__(self, s):
        for x in s.strip("\n").split("\n"):
            x = x.strip()
            if not x: continue
            self.l.append(x if x.endswith(":") else "    " + x)
    def ext(self, lst):
        for x in lst: self(x)
    def text(self): return "\n".join(self.l) + "\n"

def vr(b, n): return f"v[{b}:{b+n-1}]"
def sr(b, n): return f"s[{b}:{b+n-1}]"

def srd(a, d, base, add=None, size=None, w3="0x20000", hi_or=None):
    if add is None:
        a(f"s_mov_b32 s{d}, s{base}\ns_mov_b32 s{d+1}, s{base+1}")
    else:
        a(f"s_add_u32 s{d}, s{base}, {add}\ns_addc_u32 s{d+1}, s{base+1}, 0")
    if hi_or: a(f"s_or_b32 s{d+1}, s{d+1}, {hi_or}")
    a(f"s_mov_b32 s{d+2}, {size}\ns_mov_b32 s{d+3}, {w3}")

def kd(name, vgpr, sgpr):
    return f"""
.amdhsa_kernel {name}
  .amdhsa_next_free_vgpr {vgpr}
  .amdhsa_next_free_sgpr {sgpr}
  .amdhsa_accum_offset {(vgpr+3)//4*4}
  .amdhsa_group_segment_fixed_size 0
  .amdhsa_kernarg_size 96
  .amdhsa_user_sgpr_count 2
  .amdhsa_user_sgpr_kernarg_segment_ptr 1
  .amdhsa_system_sgpr_workgroup_id_x 1
.end_amdhsa_kernel
"""

K1_CNT = 0; K1_STG = 512; K1_W = 17408; K1_LDS = K1_W + 65536
def gen_k1():
    a = Asm()
    sE, sS, sD, sW1, sW2, sX, sES, sR, sT = 24, 28, 32, 36, 40, 44, 48, 52, 56
    sw, st0, st1, st2, sng, sfb = 60, 61, 62, 63, 64, 65
    c2048, c4096, c16k, c32k, cm80, cnl2e, ctsoff = 66, 67, 68, 69, 70, 71, 72
    csign, cmag = 73, 74
    vD, vS, vE = 2, 5, 8
    vX, vW, vA = 20, 52, 84
    vBIN, vSLOT, vREC = 100, 103, 106
    vT = 110
    a("k1_kernel:")
    a(f"""
    s_cmp_ge_u32 s2, {NCH}
    s_cbranch_scc1 K1_END
    s_load_dwordx16 s[4:19], s[0:1], 0
    s_load_dwordx2 s[20:21], s[0:1], 64
    s_load_dwordx2 s[22:23], s[0:1], 88
    v_lshrrev_b32 v{vT}, 6, v0
    v_lshrrev_b32 v1, 1, v0
    v_readfirstlane_b32 s{sw}, v{vT}
    v_lshlrev_b32 v1, 2, v1
    v_lshlrev_b32 v124, 4, v0
    s_mov_b32 s{c2048}, 2048
    s_mov_b32 s{c4096}, 4096
    s_mov_b32 s{c16k}, 16384
    s_mov_b32 s{c32k}, 32768
    s_mul_i32 s{st0}, s2, {CS*32}
    s_mul_i32 s{st1}, s2, {CS*4}
    s_waitcnt lgkmcnt(0)
    """)
    srd(a, sD, 10, f"s{st1}", CS*4)
    srd(a, sS, 8, f"s{st1}", CS*4)
    srd(a, sE, 6, f"s{st0}", CS*32)
    a(f"""
    buffer_load_dword v{vD}, v1, {sr(sD,4)}, 0 offen
    buffer_load_dword v{vS}, v1, {sr(sS,4)}, 0 offen
    buffer_load_dword v{vD+1}, v1, {sr(sD,4)}, s{c2048} offen
    buffer_load_dword v{vS+1}, v1, {sr(sS,4)}, s{c2048} offen
    buffer_load_dword v{vD+2}, v1, {sr(sD,4)}, s{c4096} offen
    buffer_load_dword v{vS+2}, v1, {sr(sS,4)}, s{c4096} offen
    buffer_load_dwordx4 {vr(vE,4)}, v124, {sr(sE,4)}, 0 offen
    buffer_load_dwordx4 {vr(vE+4,4)}, v124, {sr(sE,4)}, s{c16k} offen
    buffer_load_dwordx4 {vr(vE+8,4)}, v124, {sr(sE,4)}, s{c32k} offen
    """)
    a(f"""
    s_cmp_eq_u32 s2, 250
    s_cselect_b64 {sr(sW1,2)}, s[12:13], s[14:15]
    s_cselect_b64 {sr(sW2,2)}, s[18:19], s[20:21]
    s_mov_b32 s{sW1+2}, 32768
    s_mov_b32 s{sW1+3}, 0x20000
    s_mov_b32 s{sW2+2}, 32768
    s_mov_b32 s{sW2+3}, 0x20000
    s_mul_i32 s{st0}, s2, 10240
    s_cmp_lt_u32 s2, 250
    s_cselect_b32 s{st0}, s{st0}, 0
    s_cselect_b32 s{st2}, 10240, 0
    s_add_u32 s{sX}, s4, s{st0}
    s_addc_u32 s{sX+1}, s5, 0
    s_mov_b32 s{sX+2}, s{st2}
    s_mov_b32 s{sX+3}, 0x20000
    s_add_u32 s{st0}, s{st0}, {T_OFF}
    """)
    srd(a, sT, 22, f"s{st0}", TH + 10240)
    a(f"""
    v_and_b32 v{vT}, 63, v0
    v_lshrrev_b32 v{vT+1}, 4, v{vT}
    v_and_b32 v{vT+2}, 15, v0
    v_lshlrev_b32 v{vT+3}, 1, v{vT+1}
    v_xor_b32 v{vT+3}, v{vT+3}, v{vT+2}
    v_lshlrev_b32 v{vT+3}, 4, v{vT+3}
    v_lshl_add_u32 v{vT+3}, v{vT+1}, 8, v{vT+3}
    v_xor_b32 v{vT+4}, 0x80, v{vT+3}
    s_lshl_b32 s{st0}, s{sw}, 11
    s_add_u32 m0, s{st0}, {K1_W}
    s_and_b32 s{sfb}, s{sw}, 7
    s_lshr_b32 s{sng}, s{sw}, 3
    buffer_load_dwordx4 v{vT+3}, {sr(sW1,4)}, s{st0} offen lds
    buffer_load_dwordx4 v{vT+4}, {sr(sW1,4)}, s{st0} offen offset:1024 lds
    s_add_u32 m0, s{st0}, {K1_W+32768}
    s_lshl_b32 s{st1}, s{sng}, 13
    v_lshlrev_b32 v{vT+5}, 8, v{vT+2}
    buffer_load_dwordx4 v{vT+3}, {sr(sW2,4)}, s{st0} offen lds
    buffer_load_dwordx4 v{vT+4}, {sr(sW2,4)}, s{st0} offen offset:1024 lds
    v_lshl_add_u32 v{vT+5}, v{vT+1}, 4, v{vT+5}
    v_add_u32 v125, s{st1}, v{vT+5}
    """)
    for nbi in range(2):
        for s in range(4):
            so = "0" if nbi == 0 else f"s{c4096}"
            a(f"buffer_load_dwordx4 {vr(vX+16*nbi+4*s,4)}, v125, {sr(sX,4)}, {so} offen offset:{64*s}")
    a(f"""
    v_mov_b32 v{vA}, 0
    v_mov_b32 v{vA+1}, 0
    v_mov_b32 v{vA+2}, 0
    v_mov_b32 v{vA+3}, 0
    ds_write_b128 v124, {vr(vA,4)}
    v_cmp_gt_u32 vcc, 64, v0
    s_and_saveexec_b64 s[76:77], vcc
    ds_write_b128 v124, {vr(vA,4)} offset:16384
    s_mov_b64 exec, s[76:77]
    """)
    a(f"""
    v_bfe_u32 v{vT+6}, v0, 2, 2
    v_bfe_u32 v{vT+7}, v0, 1, 1
    s_lshl_b32 s{st0}, s{sfb}, 1
    v_add_u32 v{vT+7}, s{st0}, v{vT+7}
    v_lshlrev_b32 v{vT+8}, 1, v{vT+6}
    v_xor_b32 v{vT+7}, v{vT+7}, v{vT+8}
    v_lshlrev_b32 v{vT+7}, 4, v{vT+7}
    v_and_b32 v{vT+8}, 1, v0
    v_lshl_add_u32 v{vT+7}, v{vT+8}, 3, v{vT+7}
    v_lshl_add_u32 v{vT+6}, v{vT+1}, 3, v{vT+6}
    v_lshl_add_u32 v{vT+7}, v{vT+6}, 8, v{vT+7}
    v_add_u32 v126, {K1_W}, v{vT+7}
    v_xor_b32 v{vT+7}, 0x80, v{vT+7}
    v_add_u32 v127, {K1_W+1024}, v{vT+7}
    v_lshlrev_b32 v{vT+9}, 4, v{vT+8}
    s_mul_i32 s{st0}, s2, {SEGE}
    s_add_u32 s{st0}, s{st0}, {ES_OFF}
    """)
    srd(a, sES, 22, f"s{st0}", NBIN*BINE)
    a(f"""
    s_lshl_b32 s{st0}, s2, 7
    s_add_u32 s{st0}, s{st0}, {REC_OFF}
    """)
    srd(a, sR, 22, f"s{st0}", NBIN*32768)
    a(f"""
    s_mov_b32 s{cm80}, {-BN}
    s_mov_b32 s{cnl2e}, {NL2E:#x}
    s_lshr_b32 s{st0}, s{sfb}, 2
    s_mul_i32 s{st0}, s{st0}, {TH}
    s_and_b32 s{st1}, s{sfb}, 3
    s_lshl_b32 s{st1}, s{st1}, 6
    s_add_u32 s{ctsoff}, s{st0}, s{st1}
    s_mov_b32 s{csign}, 0x80000000
    s_mov_b32 s{cmag}, 0x7fff0000
    s_mov_b32 s78, 0x55555555
    s_mov_b32 s79, 0x55555555
    v_mov_b32 v{vT+10}, 1
    v_cmp_gt_u32 vcc, {(CS-1024)*2}, v0
    s_mov_b64 s[80:81], vcc
    s_and_b64 s[82:83], s[80:81], s[78:79]
    s_waitcnt lgkmcnt(0)
    s_barrier
    s_waitcnt vmcnt(15)
    """)
    for r in range(3):
        a(f"""
        v_mul_u32_u24 v{vBIN+r}, 52429, v{vD+r}
        v_lshrrev_b32 v{vBIN+r}, 22, v{vBIN+r}
        v_mad_i32_i24 v{vD+r}, v{vBIN+r}, s{cm80}, v{vD+r}
        v_lshlrev_b32 v{vT+r}, 2, v{vBIN+r}
        """)
    a("s_mov_b64 exec, s[78:79]")
    a(f"ds_add_rtn_u32 v{vSLOT}, v{vT}, v{vT+10} offset:{K1_CNT}")
    a(f"ds_add_rtn_u32 v{vSLOT+1}, v{vT+1}, v{vT+10} offset:{K1_CNT}")
    a("s_mov_b64 exec, s[82:83]")
    a(f"ds_add_rtn_u32 v{vSLOT+2}, v{vT+2}, v{vT+10} offset:{K1_CNT}")
    a("s_mov_b64 exec, -1")
    for r in range(3):
        a(f"""
        v_lshl_or_b32 v{vREC+r}, v{vS+r}, 8, v{vD+r}
        v_or_b32 v{vREC+r}, 0x80000000, v{vREC+r}
        v_mul_u32_u24 v{vD+r}, {BINE}, v{vBIN+r}
        v_add_u32 v{vD+r}, v{vD+r}, v{vT+9}
        """)
    a(f"v_mov_b32 v{vT+11}, 0x40000000")
    a(f"v_mov_b32 v{vT+12}, 0x80000000")
    a("s_waitcnt lgkmcnt(0)")
    for r in range(3):
        a(f"v_mov_b32_dpp v{vSLOT+r}, v{vSLOT+r} quad_perm:[0,0,2,2] row_mask:0xf bank_mask:0xf")
    for r in range(3):
        a(f"""
        v_cmp_gt_u32 vcc, {CAP}, v{vSLOT+r}
        v_lshl_add_u32 v{vD+r}, v{vSLOT+r}, 5, v{vD+r}
        v_min_u32 v{vSLOT+r}, {CAP-1}, v{vSLOT+r}
        v_cndmask_b32 v{vREC+r}, v{vT+11}, v{vREC+r}, vcc
        v_cndmask_b32 v{vD+r}, v{vT+12}, v{vD+r}, vcc
        v_lshlrev_b32 v{vSLOT+r}, 2, v{vSLOT+r}
        v_lshl_add_u32 v{vSLOT+r}, v{vBIN+r}, 7, v{vSLOT+r}
        """)
    a(f"""
    s_mov_b64 exec, s[78:79]
    ds_or_b32 v{vSLOT}, v{vREC} offset:{K1_STG}
    ds_or_b32 v{vSLOT+1}, v{vREC+1} offset:{K1_STG}
    s_mov_b64 exec, s[82:83]
    ds_or_b32 v{vSLOT+2}, v{vREC+2} offset:{K1_STG}
    s_mov_b64 exec, -1
    v_cndmask_b32 v{vD+2}, v{vT+12}, v{vD+2}, s[80:81]
    s_waitcnt vmcnt(14)
    buffer_store_dwordx4 {vr(vE,4)}, v{vD}, {sr(sES,4)}, 0 offen {OPT['st_e']}
    s_waitcnt vmcnt(14)
    buffer_store_dwordx4 {vr(vE+4,4)}, v{vD+1}, {sr(sES,4)}, 0 offen {OPT['st_e']}
    s_waitcnt vmcnt(14)
    buffer_store_dwordx4 {vr(vE+8,4)}, v{vD+2}, {sr(sES,4)}, 0 offen {OPT['st_e']}
    v_lshrrev_b32 v{vT}, 3, v0
    v_and_b32 v{vT+1}, 7, v0
    v_lshlrev_b32 v{vT}, 15, v{vT}
    v_lshl_add_u32 v{vT}, v{vT+1}, 4, v{vT}
    s_waitcnt vmcnt(3) lgkmcnt(0)
    s_barrier
    ds_read_b128 {vr(vE,4)}, v124 offset:{K1_STG}
    """)
    for m in range(2):
        for s in range(4):
            a(f"ds_read_b64_tr_b16 {vr(vW+16*m+4*s,2)}, v126 offset:{m*32768+s*8192}")
            a(f"ds_read_b64_tr_b16 {vr(vW+16*m+4*s+2,2)}, v127 offset:{m*32768+s*8192}")
        if m == 0:
            a(f"s_waitcnt lgkmcnt(7)\nbuffer_store_dwordx4 {vr(vE,4)}, v{vT}, {sr(sR,4)}, 0 offen {OPT['st_r']}")
    a(f"""
    s_cmp_ge_u32 s2, 250
    s_cbranch_scc1 K1_SPECIAL
    """)
    for s in range(4):
        a(f"s_waitcnt lgkmcnt({14-2*s if s<3 else 8})")
        for nbi in range(2):
            c = "0" if s == 0 else vr(vA+8*nbi, 4)
            a(f"v_mfma_f32_16x16x32_bf16 {vr(vA+8*nbi,4)}, {vr(vW+4*s,4)}, {vr(vX+16*nbi+4*s,4)}, {c}")
    for s in range(4):
        a(f"s_waitcnt lgkmcnt({6-2*s})")
        for nbi in range(2):
            c = "0" if s == 0 else vr(vA+8*nbi+4, 4)
            a(f"v_mfma_f32_16x16x32_bf16 {vr(vA+8*nbi+4,4)}, {vr(vW+16+4*s,4)}, {vr(vX+16*nbi+4*s,4)}, {c}")
    a(f"""
    v_mov_b32 v{vT+12}, 0x80000000
    v_cmp_gt_u32 vcc, 10240, v125
    v_add_u32 v{vT+1}, 4096, v125
    s_nop 0
    v_cndmask_b32 v{vT}, v{vT+12}, v125, vcc
    v_cmp_gt_u32 vcc, 10240, v{vT+1}
    s_nop 1
    v_cndmask_b32 v{vT+1}, v{vT+12}, v{vT+1}, vcc
    s_nop 4
    """)
    for nbi in range(2):
        for i in range(4):
            b = vA+8*nbi+i; h = vA+8*nbi+4+i; t = vT+2; o = vX+4*nbi+i
            a(f"""
            v_mul_f32 v{b}, s{cnl2e}, v{b}
            v_and_b32 v{t}, 0x7fffffff, v{h}
            v_cvt_pk_bf16_f32 v{b}, v{b}, v{b}
            v_max_u32 v{t}, 0x10000, v{t}
            v_and_b32 v{b}, 0xffff, v{b}
            v_add_u32 v{t}, 0x8000, v{t}
            v_and_or_b32 v{h}, v{h}, s{csign}, v{b}
            v_sub_u32 v{t}, v{t}, v{b}
            v_bfi_b32 v{o}, s{cmag}, v{t}, v{h}
            """)
        a(f"buffer_store_dwordx4 {vr(vX+4*nbi,4)}, v{vT+nbi}, {sr(sT,4)}, s{ctsoff} offen {OPT['st_t']}")
    a("s_endpgm")
    a("K1_SPECIAL:")
    srd(a, sT, 22, WT_OFF, 65536+4096)
    a(f"""
    v_and_b32 v{vT}, 63, v0
    v_lshlrev_b32 v{vT+1}, 4, v{vT}
    s_lshl_b32 s{st0}, s{sw}, 12
    s_waitcnt lgkmcnt(0)
    s_cmp_eq_u32 s2, 251
    s_cbranch_scc1 K1_WC
    s_cmp_eq_u32 s2, 250
    s_cbranch_scc0 K1_END
    s_cmp_eq_u32 s{sng}, 0
    s_cbranch_scc0 K1_WU
    """)
    for s in range(4):
        a(f"buffer_store_dwordx4 {vr(vW+4*s,4)}, v{vT+1}, {sr(sT,4)}, s{st0} offen offset:{1024*s}")
    a("s_endpgm\nK1_WU:")
    for s in range(4):
        a(f"buffer_store_dwordx4 {vr(vW+16+4*s,4)}, v{vT+1}, {sr(sT,4)}, s{st0} offen offset:{1024*s}")
    a("s_endpgm\nK1_WC:")
    srd(a, sW1, 16, None, 4096)
    a(f"""
    s_cmp_ge_u32 s{sw}, 4
    s_cbranch_scc1 K1_END
    v_lshrrev_b32 v{vT+2}, 5, v{vT}
    v_and_b32 v{vT+3}, 31, v0
    v_lshlrev_b32 v{vT+3}, 1, v{vT+3}
    v_lshl_add_u32 v{vT+3}, v{vT+2}, 11, v{vT+3}
    s_lshl_b32 s{st1}, s{sw}, 6
    s_lshl_b32 s{st0}, s{sw}, 10
    s_add_u32 s{st0}, s{st0}, 65536
    """)
    for j in range(8):
        a(f"buffer_load_ushort v{vX+j}, v{vT+3}, {sr(sW1,4)}, s{st1} offen offset:{256*j}")
    a("s_waitcnt vmcnt(0)")
    for j in range(8):
        a(f"v_lshlrev_b32 v{vX+j}, 16, v{vX+j}\nv_mul_f32 v{vX+j}, s{cnl2e}, v{vX+j}")
    for j in range(4):
        a(f"v_cvt_pk_bf16_f32 v{vX+8+j}, v{vX+2*j}, v{vX+2*j+1}")
    a(f"buffer_store_dwordx4 {vr(vX+8,4)}, v{vT+1}, {sr(sT,4)}, s{st0} offen")
    a("K1_END:\ns_endpgm")
    return a.text(), kd("k1_kernel", 128, 96)

CNT = 0; START = 512; OHL = 1024; L1 = 2048; L2 = L1 + 16384; APL = L2 + 16384
ROWP = 144
UL = APL + 96*ROWP; XL = UL + 80*ROWP; ACCL = XL + 24576; K2_LDS = ACCL + 96*512
LISTMAX = 4064
NWIN = 15

def gen_k2():
    a = Asm()
    sREC, sX, sWT, sT, sE, sO = 24, 28, 32, 36, 40, 44
    sw, sbin, shalf, st0, st1, st2 = 48, 49, 50, 51, 52, 53
    st_, stend, sbase, sold, sflush, sslow, sround = 54, 55, 56, 57, 58, 59, 60
    cm24, c128, cnl2e, sM, stot, scount = 61, 62, 63, 64, 65, 66
    sD, sS = 68, 72
    vH16, vA1, vA2, vM15, vAPa, vFl = 1, 2, 3, 4, 5, 6
    vt = 7
    WC = 12; AP = 20; PA = 28; SC = 32; OH = 36; EA = 40; L2E = 48; vEa = 50; vOa = 51
    ADDR = 52; ACC = 68; G = 100; SP = 132; RAW = 148; WT = 212; REC = 228
    raw = lambda p, b: RAW + 32*p + 16*b
    EOFF = RAW; CADDR = G; RANK = G+16; STV = SP

    a("k2_kernel:")
    a(f"""
    s_cmp_ge_u32 s2, {2*NBIN}
    s_cbranch_scc1 K2_END
    s_load_dwordx8 s[4:11], s[0:1], 0
    s_load_dwordx2 s[12:13], s[0:1], 72
    s_load_dwordx2 s[14:15], s[0:1], 88
    v_lshrrev_b32 v{vt}, 6, v0
    s_lshr_b32 s{sbin}, s2, 1
    v_readfirstlane_b32 s{sw}, v{vt}
    s_and_b32 s{shalf}, s2, 1
    v_lshrrev_b32 v{vt+1}, 1, v0
    v_and_b32 v{vt+2}, 1, v0
    v_lshlrev_b32 v{vt+3}, 7, v{vt+1}
    v_lshl_add_u32 v{vt+3}, v{vt+2}, 4, v{vt+3}
    s_lshl_b32 s{st0}, s{sbin}, 15
    s_add_u32 s{st0}, s{st0}, {REC_OFF}
    s_waitcnt lgkmcnt(0)
    """)
    srd(a, sREC, 14, f"s{st0}", 32768)
    for r in range(4):
        a(f"buffer_load_dwordx4 {vr(REC+4*r,4)}, v{vt+3}, {sr(sREC,4)}, 0 offen offset:{32*r}")
    a(f"s_mul_i32 s{st0}, s{sbin}, {BN*256}")
    srd(a, sX, 4, f"s{st0}", BN*256)
    srd(a, sWT, 14, WT_OFF, 65536+4096)
    a(f"""
    v_and_b32 v{vt}, 63, v0
    v_lshrrev_b32 v{vt+4}, 4, v{vt}
    s_and_b32 s{st1}, s{sw}, 3
    s_lshl_b32 s{st1}, s{st1}, 2
    v_add_u32 v{vA1}, s{st1}, v{vt+4}
    v_and_b32 v{vA2}, 15, v0
    v_xor_b32 v{vA1}, v{vA1}, v{vA2}
    v_lshlrev_b32 v{vA1}, 4, v{vA1}
    v_lshl_add_u32 v{vA1}, v{vt+4}, 8, v{vA1}
    s_lshl_b32 s{st1}, s{sw}, 10
    s_add_u32 m0, s{st1}, {XL}
    s_add_u32 s{st2}, s{st1}, 8192
    buffer_load_dwordx4 v{vA1}, {sr(sX,4)}, s{st1} offen lds
    s_add_u32 m0, s{st1}, {XL+8192}
    v_lshlrev_b32 v{vH16}, 4, v{vt}
    buffer_load_dwordx4 v{vA1}, {sr(sX,4)}, s{st2} offen lds
    s_add_u32 m0, s{st1}, {XL+16384}
    s_add_u32 s{st2}, s{st1}, 16384
    buffer_load_dwordx4 v{vA1}, {sr(sX,4)}, s{st2} offen lds
    s_lshr_b32 s{st1}, s{sw}, 2
    s_lshl_b32 s{st1}, s{st1}, 3
    s_lshl_b32 s{st2}, s{shalf}, 2
    s_add_u32 s{st1}, s{st1}, s{st2}
    s_and_b32 s{st2}, s{sw}, 3
    s_add_u32 s{st1}, s{st1}, s{st2}
    s_lshl_b32 s{st1}, s{st1}, 12
    """)
    for s in range(4):
        a(f"buffer_load_dwordx4 {vr(WT+4*s,4)}, v{vH16}, {sr(sWT,4)}, s{st1} offen offset:{1024*s}")
    a(f"""
    s_lshl_b32 s{st1}, s{shalf}, 11
    s_add_u32 s{st1}, s{st1}, 65536
    buffer_load_dwordx4 {vr(WC,4)}, v{vH16}, {sr(sWT,4)}, s{st1} offen
    buffer_load_dwordx4 {vr(WC+4,4)}, v{vH16}, {sr(sWT,4)}, s{st1} offen offset:1024
    """)
    Z = SP
    a(f"""
    v_mov_b32 v{Z}, 0
    v_mov_b32 v{Z+1}, 0
    v_mov_b32 v{Z+2}, 0
    v_mov_b32 v{Z+3}, 0
    v_lshlrev_b32 v{vt+3}, 4, v0
    v_add_u32 v{vt+4}, {ACCL}, v{vt+3}
    """)
    for k in range(6):
        a(f"ds_write_b128 v{vt+4}, {vr(Z,4)} offset:{8192*k}")
    a(f"""
    v_cmp_gt_u32 vcc, 144, v0
    s_and_saveexec_b64 s[76:77], vcc
    ds_write_b128 v{vt+3}, {vr(Z,4)} offset:{APL+80*ROWP}
    v_cmp_gt_u32 vcc, 128, v0
    s_and_b64 exec, exec, vcc
    v_lshlrev_b32 v{vt+3}, 2, v0
    ds_write_b32 v{vt+3}, v{Z} offset:{CNT}
    v_lshrrev_b32 v{vt+4}, 3, v0
    v_and_b32 v{Z+4}, 7, v0
    v_lshlrev_b32 v{Z+5}, 1, v{Z+4}
    v_mov_b32 v{Z+6}, 0x3f80
    v_mov_b32 v{Z+7}, 0x3f800000
    v_cmp_eq_u32 vcc, v{Z+5}, v{vt+4}
    v_add_u32 v{Z+5}, 1, v{Z+5}
    s_nop 0
    v_cndmask_b32 v{Z+8}, 0, v{Z+6}, vcc
    v_cmp_eq_u32 vcc, v{Z+5}, v{vt+4}
    v_cmp_eq_u32 s[78:79], 7, v{Z+4}
    s_or_b64 vcc, vcc, s[78:79]
    s_nop 1
    v_cndmask_b32 v{Z+9}, 0, v{Z+7}, vcc
    v_or_b32 v{Z+8}, v{Z+8}, v{Z+9}
    v_cmp_gt_u32 vcc, {NWIN}, v{vt+4}
    s_nop 1
    v_cndmask_b32 v{Z+8}, 0, v{Z+8}, vcc
    ds_write_b32 v{vt+3}, v{Z+8} offset:{OHL}
    s_mov_b64 exec, s[76:77]
    """)
    a(f"""
    s_mul_i32 s{st0}, s{shalf}, {TH}
    s_add_u32 s{st0}, s{st0}, {T_OFF-128}
    """)
    srd(a, sT, 14, f"s{st0}", 64, w3="0x800000", hi_or="0x40000")
    a(f"s_mul_i32 s{st0}, s{sbin}, {BINE}\ns_add_u32 s{st0}, s{st0}, {ES_OFF}")
    srd(a, sE, 14, f"s{st0}", BINE)
    a(f"""
    s_mul_i32 s{st0}, s{sbin}, {BN*256}
    s_lshl_b32 s{st1}, s{shalf}, 7
    s_add_u32 s{st0}, s{st0}, s{st1}
    """)
    srd(a, sO, 12, f"s{st0}", BN*256-128)
    a(f"""
    s_mov_b32 s{cm24}, 0xffffff
    s_mov_b32 s{c128}, 128
    s_mov_b32 s{cnl2e}, {NL2E:#x}
    s_mov_b32 s{sM}, 0
    s_mov_b32 s{sslow}, 0
    s_mov_b32 s{sround}, 0
    """)
    a(f"""
    v_lshrrev_b32 v{vt+3}, 5, v{vt}
    v_and_b32 v{vt+4}, 31, v0
    v_lshlrev_b32 v{vH16}, 4, v{vt+3}
    v_lshlrev_b32 v{vFl}, 2, v{vt+4}
    v_lshl_add_u32 v{vFl}, v{vt+3}, 11, v{vFl}
    v_add_u32 v{vFl}, {ACCL}, v{vFl}
    v_cmp_eq_u32 vcc, 0, v{vt+3}
    v_mov_b32 v{vM15}, 0xffff
    v_mov_b32 v{Z+4}, -1
    v_cndmask_b32 v{vM15}, v{vM15}, v{Z+4}, vcc
    v_bfe_u32 v{Z+4}, v0, 2, 2
    v_lshl_add_u32 v{Z+4}, v{vt+3}, 3, v{Z+4}
    v_mul_u32_u24 v{vAPa}, {ROWP}, v{Z+4}
    v_bfe_u32 v{Z+4}, v0, 4, 1
    v_lshl_add_u32 v{vAPa}, v{Z+4}, 5, v{vAPa}
    v_and_b32 v{Z+4}, 3, v0
    v_lshl_add_u32 v{vAPa}, v{Z+4}, 3, v{vAPa}
    v_add_u32 v{vAPa}, {APL}, v{vAPa}
    v_mov_b32 v{Z+6}, 0x3f80
    """)
    for i in range(4):
        a(f"v_cmp_eq_u32 vcc, {i}, v{Z+4}\ns_nop 1\nv_cndmask_b32 v{PA+i}, 0, v{Z+6}, vcc")
    den = bf(127*2.0**-116); tiny = bf(2.0**-100)
    a(f"""
    v_cmp_gt_u32 s[78:79], 16, v{vt+4}
    v_mov_b32 v{Z+5}, {den:#x}
    v_mov_b32 v{Z+7}, {tiny<<16:#x}
    v_cndmask_b32 v{Z+5}, v{Z+6}, v{Z+5}, s[78:79]
    v_cndmask_b32 v{Z+7}, 0, v{Z+7}, s[78:79]
    v_and_b32 v{Z+4}, 15, v0
    v_lshlrev_b32 v{Z+8}, 3, v{vt+3}
    v_sub_u32 v{Z+4}, v{Z+4}, v{Z+8}
    v_lshlrev_b32 v{Z+6}, 16, v{Z+5}
    """)
    for d in range(4):
        a(f"""
        v_cmp_eq_u32 vcc, {2*d}, v{Z+4}
        v_cmp_eq_u32 s[78:79], {2*d+1}, v{Z+4}
        s_nop 0
        v_cndmask_b32 v{SC+d}, 0, v{Z+5}, vcc
        v_cndmask_b32 v{Z+8}, 0, v{Z+6}, s[78:79]
        v_or_b32 v{SC+d}, v{SC+d}, v{Z+8}
        """)
    a(f"""
    v_and_b32 v{SC+3}, v{SC+3}, v{vM15}
    v_not_b32 v{Z+8}, v{vM15}
    v_and_b32 v{Z+8}, v{Z+8}, v{Z+7}
    v_or_b32 v{SC+3}, v{SC+3}, v{Z+8}
    v_mul_u32_u24 v{EOFF}, {SEGE}, v{vt+1}
    v_lshl_add_u32 v{EOFF}, v{vt+2}, 7, v{EOFF}
    """)
    for k in range(1, 16):
        a(f"v_add_u32 v{EOFF+k}, {256*(k>>2)+32*(k&3)}, v{EOFF}")
    for r in range(16): a(f"v_mov_b32 v{ADDR+r}, 128")
    a(f"""
    v_mov_b32 v{vt+3}, 4
    s_waitcnt lgkmcnt(0)
    s_barrier
    """)
    for k in range(16):
        if k % 4 == 0: a(f"s_waitcnt vmcnt({12 - k//4})" + (" lgkmcnt(4)" if k == 12 else ""))
        a(f"""
        v_cmpx_gt_i32 vcc, 0, v{REC+k}
        s_cbranch_execz K2_CNT_DONE
        v_lshlrev_b32_sdwa v{CADDR+k}, 2, v{REC+k} dst_sel:DWORD dst_unused:UNUSED_PAD src0_sel:DWORD src1_sel:BYTE_0
        ds_add_rtn_u32 v{RANK+k}, v{CADDR+k}, v{vt+3} offset:{CNT}
        """)
    a(f"""
    v_lshlrev_b32 v{vt+4}, 1, v{REC+15}
    v_cmpx_gt_i32 vcc, 0, v{vt+4}
    s_cbranch_execz K2_CNT_DONE
    v_mov_b32 v{vt+4}, 0x100000
    v_mov_b32 v{vt}, 400
    ds_add_u32 v{vt}, v{vt+4} offset:{CNT}
    K2_CNT_DONE:
    s_mov_b64 exec, -1
    s_waitcnt vmcnt(9) lgkmcnt(0)
    s_barrier
    """)
    def scan():
        x = STV
        a(f"""
        v_and_b32 v{vt}, 63, v0
        v_lshlrev_b32 v{vt}, 3, v{vt}
        ds_read_b64 {vr(x,2)}, v{vt} offset:{CNT}
        s_not_b32 s{st0}, s{sM}
        s_waitcnt lgkmcnt(0)
        v_add_u32 v{x}, s{sM}, v{x}
        v_add_u32 v{x+1}, s{sM}, v{x+1}
        v_and_b32 v{x}, s{st0}, v{x}
        v_and_b32 v{x+1}, s{st0}, v{x+1}
        v_add_u32 v{x+2}, v{x}, v{x+1}
        v_mov_b32 v{x+3}, v{x+2}
        """)
        for d in ("row_shr:1", "row_shr:2", "row_shr:4", "row_shr:8"):
            a(f"s_nop 1\nv_add_u32_dpp v{x+3}, v{x+3}, v{x+3} {d} row_mask:0xf bank_mask:0xf bound_ctrl:0")
        a(f"""
        s_nop 1
        v_add_u32_dpp v{x+3}, v{x+3}, v{x+3} row_bcast:15 row_mask:0xa bank_mask:0xf
        s_nop 1
        v_add_u32_dpp v{x+3}, v{x+3}, v{x+3} row_bcast:31 row_mask:0xc bank_mask:0xf
        v_sub_u32 v{x+4}, v{x+3}, v{x+2}
        v_add_u32 v{x+5}, v{x+4}, v{x}
        v_readlane_b32 s{stot}, v{x+3}, 63
        ds_write_b64 v{vt}, {vr(x+4,2)} offset:{START}
        """)
    def ranges():
        a(f"""
        s_add_u32 s{st0}, s{stot}, 127
        s_lshr_b32 s{st0}, s{st0}, 7
        s_mul_i32 s{st_}, s{st0}, s{sw}
        s_add_u32 s{stend}, s{st_}, s{st0}
        s_lshr_b32 s{st_}, s{st_}, 3
        s_lshr_b32 s{stend}, s{stend}, 3
        """)
    def place(k):
        a(f"""
        v_add_u32 v{STV+(k&7)}, v{STV+(k&7)}, v{RANK+k}
        v_and_b32 v{vt}, 0x3fff00, v{REC+k}
        v_lshlrev_b32 v{vt+1}, 3, v{STV+(k&7)}
        v_lshl_add_u32 v{vt+2}, v{REC+k}, 24, v{EOFF+k}
        v_and_or_b32 v{vt}, v{vt+1}, s{c128}, v{vt}
        ds_write2st64_b32 v{STV+(k&7)}, v{vt}, v{vt+2} offset0:{L1//256} offset1:{L2//256}
        """)
    scan()
    a(f"""
    v_lshrrev_b32 v{vt}, 1, v{vt}
    s_waitcnt lgkmcnt(0)
    ds_read2_b32 {vr(STV+8,2)}, v{vt} offset0:{START//4+2} offset1:{START//4+15}
    """)
    for k in range(8):
        a(f"ds_read_b32 v{STV+k}, v{CADDR+k} offset:{START}")
    ranges()
    a(f"""
    s_waitcnt lgkmcnt(8)
    v_sub_u32 v{STV+8}, v{STV+9}, v{STV+8}
    s_cmp_gt_u32 s{stot}, {LISTMAX*4}
    s_cbranch_scc1 K2_SLOW
    v_cmp_ge_u32 vcc, 120, v{STV+8}
    s_cbranch_vccnz K2_SLOW
    s_waitcnt lgkmcnt(0)
    """)
    for k in range(16):
        a(f"v_cmpx_gt_i32 vcc, 0, v{REC+k}\ns_cbranch_execz K2_PLACED")
        if k == 8:
            for kk in range(8, 16):
                a(f"ds_read_b32 v{STV+(kk&7)}, v{CADDR+kk} offset:{START}")
            a("s_waitcnt lgkmcnt(0)")
        place(k)
    a(f"""
    K2_PLACED:
    s_mov_b64 exec, -1
    s_waitcnt vmcnt(0) lgkmcnt(0)
    s_barrier
    K2_FILL:
    v_and_b32 v{vt}, 31, v0
    s_cmp_eq_u32 s{sw}, 7
    s_cbranch_scc0 K2_NOTAIL
    v_mov_b32 v{vt+1}, s{stot}
    ds_read_b32 v{vt+2}, v{vt+1} offset:{L2-4}
    v_lshl_add_u32 v{vt+1}, v{vt}, 2, v{vt+1}
    v_lshlrev_b32 v{vt+3}, 3, v{vt+1}
    v_and_b32 v{vt+3}, 128, v{vt+3}
    s_waitcnt lgkmcnt(0)
    v_or_b32 v{vt+2}, 0x80ffffe0, v{vt+2}
    ds_write2st64_b32 v{vt+1}, v{vt+3}, v{vt+2} offset0:{L1//256} offset1:{L2//256}
    K2_NOTAIL:
    s_lshl_b32 s{st0}, s{st_}, 7
    v_xor_b32 v{vA1}, 16, v{vH16}
    v_xor_b32 v{vA2}, 4, v{vt}
    v_lshlrev_b32 v{vA2}, 2, v{vA2}
    v_add_u32 v{vA1}, s{st0}, v{vA1}
    v_add_u32 v{vA2}, s{st0}, v{vA2}
    """)
    def rd_addr(off):
        return [f"ds_read_b128 {vr(ADDR+4*j,4)}, v{vA1} offset:{L1+off+32*j}" for j in range(4)]
    def rd_l2e(p, off): return f"ds_read_b32 v{L2E+p}, v{vA2} offset:{L2+off}"
    def ld_raw(p, b):
        pre = [f"v_and_b32 v{ADDR+r}, 0x3fff80, v{ADDR+r}" for r in range(16)] if OPT.get("safe") and b == 0 else []
        return pre + [f"buffer_load_dword v{raw(p,b)+r}, v{ADDR+r}, {sr(sT,4)}, 0 offen" + (" offset:128" if b else "") for r in range(16)]
    def ea_addr(p): return f"v_and_or_b32 v{vEa}, v{L2E+p}, s{cm24}, v{vH16}"
    def ld_ea(p): return f"buffer_load_dwordx4 {vr(EA+4*p,4)}, v{vEa}, {sr(sE,4)}, 0 offen"
    def oh_idx(p):
        return [f"v_subrev_u32_sdwa v{vOa}, s{sbase}, v{L2E+p} dst_sel:DWORD dst_unused:UNUSED_PAD src0_sel:DWORD src1_sel:BYTE_3",
                f"v_min_u32 v{vOa}, {NWIN}, v{vOa}",
                f"v_lshl_add_u32 v{vOa}, v{vOa}, 5, v{vH16}",
                f"ds_read_b128 {vr(OH,4)}, v{vOa} offset:{OHL}"]
    def load_ap():
        return [f"s_mul_i32 s{st1}, s{sbase}, {ROWP}",
                f"v_add_u32 v{vt}, s{st1}, v{vAPa}",
                f"ds_read_b64_tr_b16 {vr(AP,2)}, v{vt}",
                f"ds_read_b64_tr_b16 {vr(AP+2,2)}, v{vt} offset:{4*ROWP}",
                f"ds_read_b64_tr_b16 {vr(AP+4,2)}, v{vt} offset:64",
                f"ds_read_b64_tr_b16 {vr(AP+6,2)}, v{vt} offset:{4*ROWP+64}",
                "s_waitcnt lgkmcnt(0)",
                f"v_and_b32 v{AP+3}, v{AP+3}, v{vM15}",
                f"v_and_b32 v{AP+7}, v{AP+7}, v{vM15}"]
    def flush(sb):
        o = [f"s_lshl_b32 s{st1}, s{sb}, 9", f"v_add_u32 v{vt}, s{st1}, v{vFl}"]
        for b in range(2):
            for r in range(16):
                j, i = r >> 2, r & 3
                o.append(f"ds_add_f32 v{vt}, v{ACC+16*b+r} offset:{(8*(j&1)+i)*512+(j>>1)*256+b*128}")
        return o
    big = "v_mfma_f32_32x32x16_bf16"
    def mE(p, b): return f"{big} {vr(G+16*b,16)}, {vr(EA+4*p,4)}, {vr(WC+4*b,4)}, 0"
    def mA(b): return f"{big} {vr(G+16*b,16)}, {vr(OH,4)}, {vr(AP+4*b,4)}, {vr(G+16*b,16)}"
    def mS(): return f"{big} {vr(SP,16)}, {vr(OH,4)}, {vr(SC,4)}, 0"
    def mG(b, j): return f"{big} {vr(ACC+16*b,16)}, {vr(SP+4*j,4)}, {vr(G+16*b+4*j,4)}, {vr(ACC+16*b,16)}"
    def mP(p, b):
        o = []
        for u in range(2):
            for j in range(4):
                g = vr(G+16*b+4*j, 4)
                o.append(f"v_mfma_f32_4x4x4_16b_bf16 {g}, {vr(PA+2*u,2)}, {vr(raw(p,b)+4*j+2*u,2)}, {g}")
        return o
    def exps(b): return [f"v_exp_f32 v{G+16*b+i}, v{G+16*b+i}" for i in range(16)]
    def adds(b): return [f"v_pk_add_f32 {vr(G+16*b+2*i,2)}, {vr(G+16*b+2*i,2)}, 1.0 op_sel_hi:[1,0]" for i in range(8)]
    def rcps(b): return [f"v_rcp_f32 v{G+16*b+i}, v{G+16*b+i}" for i in range(16)]
    def muls(p, b): return [f"v_pk_mul_f32 {vr(raw(p,b)+2*i,2)}, {vr(G+16*b+2*i,2)}, {vr(raw(p,b)+2*i,2)}" for i in range(8)]
    def cvts(p, b): return [f"v_cvt_pk_bf16_f32 v{G+16*b+i}, v{G+16*b+i}, v{raw(p,b)+i}" for i in range(16)]
    def weave(base, ins):
        out = []
        d = {}
        for i, x in ins: d.setdefault(i, []).extend(x if isinstance(x, list) else [x])
        for i, x in enumerate(base):
            out += d.get(i, []); out.append(x)
        out += d.get(len(base), [])
        return out
    def spread(lst, lo, hi):
        n = len(lst)
        return [(lo + (hi-lo)*k//n, x) for k, x in enumerate(lst)]

    a(f"s_sub_u32 s{scount}, s{stend}, s{st_}\ns_cmp_eq_u32 s{scount}, 0\ns_cbranch_scc1 K2_FILLED")
    a.ext(rd_addr(0)); a(rd_l2e(0, 0)); a(rd_l2e(1, 128))
    a("s_waitcnt lgkmcnt(0)")
    a(ea_addr(0)); a.ext(ld_raw(0, 0)); a(ld_ea(0)); a.ext(ld_raw(0, 1))
    a(f"s_cmp_eq_u32 s{scount}, 1\ns_cbranch_scc1 K2_FILLED")
    a.ext(rd_addr(128)); a(ea_addr(1))
    a("s_waitcnt lgkmcnt(0)")
    a.ext(ld_raw(1, 0)); a(ld_ea(1))
    a("K2_FILLED:")
    a(f"s_cmp_lg_u32 s{sslow}, 0\ns_cbranch_scc1 K2_NOGEMM")
    def gemm():
        XF = ACC
        GA = raw(1, 1)
        accs = [GA, GA+4, GA+8, GA+12, REC]
        a(f"""
        v_and_b32 v{vt}, 15, v0
        v_bfe_u32 v{vt+1}, v0, 4, 2
        v_xor_b32 v{vt+2}, v{vt}, v{vt+1}
        v_lshlrev_b32 v{vt+2}, 4, v{vt+2}
        v_lshl_add_u32 v{vt+2}, v{vt}, 8, v{vt+2}
        v_add_u32 v{vt+2}, {XL}, v{vt+2}
        """)
        def xrd(s):
            if s: a(f"v_xor_b32 v{vt+3}, {64*s}, v{vt+2}")
            for nb in range(5):
                a(f"ds_read_b128 {vr(XF+16*nb+4*s,4)}, v{vt+3 if s else vt+2} offset:{4096*nb}")
        for s in range(3): xrd(s)
        a(f"""
        v_mul_u32_u24 v{vt}, {ROWP}, v{vt}
        v_lshl_add_u32 v{vt}, v{vt+1}, 3, v{vt}
        s_and_b32 s{st0}, s{sw}, 3
        s_lshl_b32 s{st0}, s{st0}, 5
        s_cmp_lt_u32 s{sw}, 4
        s_cselect_b32 s{st1}, 0, {UL-APL}
        s_cselect_b32 s{st2}, s{cnl2e}, 1.0
        s_add_u32 s{st0}, s{st0}, s{st1}
        s_add_u32 s{st0}, s{st0}, {APL}
        v_add_u32 v{vt}, s{st0}, v{vt}
        """)
        for s in range(4):
            a(f"s_waitcnt lgkmcnt({[10,10,5,0][s]})")
            if s == 0: xrd(3)
            for nb in range(5):
                c = "0" if s == 0 else vr(accs[nb], 4)
                a(f"v_mfma_f32_16x16x32_bf16 {vr(accs[nb],4)}, {vr(WT+4*s,4)}, {vr(XF+16*nb+4*s,4)}, {c}")
        a("s_nop 3")
        for nb in range(5):
            for i in range(4): a(f"v_mul_f32 v{accs[nb]+i}, s{st2}, v{accs[nb]+i}")
            a(f"v_cvt_pk_bf16_f32 v{accs[nb]}, v{accs[nb]}, v{accs[nb]+1}")
            a(f"v_cvt_pk_bf16_f32 v{accs[nb]+1}, v{accs[nb]+2}, v{accs[nb]+3}")
            a(f"ds_write_b64 v{vt}, {vr(accs[nb],2)} offset:{16*ROWP*nb}")
    assert XL % 256 == 0
    gemm()
    a(f"""
    s_waitcnt lgkmcnt(0)
    s_barrier
    K2_NOGEMM:
    s_cmp_eq_u32 s{scount}, 0
    s_cbranch_scc1 K2_DONE
    v_readlane_b32 s{sbase}, v{L2E}, 4
    s_mov_b32 s{sflush}, 0
    """)
    for r in range(32): a(f"v_mov_b32 v{ACC+r}, 0")
    a(f"s_bfe_u32 s{sbase}, s{sbase}, 0x70018")
    a.ext(load_ap()); a.ext(oh_idx(0))
    def first(nv):
        a(f"s_waitcnt vmcnt({nv}) lgkmcnt(0)")
        a(mE(0, 0)); a(mA(0)); a("s_nop 9"); a.ext(mP(0, 0)); a("s_nop 3")
    def segA(p, loads, first=False):
        q = 1-p
        ex = exps(0)
        if first:
            base = ex; o = 0; ins = []
        else:
            base = cvts(q, 1) + ex; o = 16
            ins = [(6, mG(1, 0)), (12, mG(1, 1)), (17, mG(1, 2)), (20, mG(1, 3))]
        ins += [(o+7, mE(p, 1)), (o+10, mA(1))]
        if loads: ins += spread(ld_raw(q, 1), o, o+16)
        return weave(base, ins)
    def body(p, kind):
        q = 1-p; n = f"{kind}{p}"
        a(f"K2_BODY{n}:")
        a.ext(segA(p, kind != "L"))
        a(f"s_cmp_lg_u32 s{sflush}, 0\ns_cbranch_scc1 K2_FLUSH{n}\nK2_MID{n}:")
        a.ext(adds(0))
        off = 256 if p == 0 else 384
        P = mP(p, 1)
        ins = [(0, [mS(), f"s_waitcnt vmcnt({0 if kind == 'L' else 33})"])]
        if kind == "F": ins += [(1, rd_addr(off) + [rd_l2e(p, off)])]
        ins += [(4+i + (i>>1), P[i]) for i in range(8)]
        a.ext(weave(rcps(0), ins))
        a.ext(muls(p, 0))
        base = cvts(p, 0) + exps(1)
        ins = [(6, mG(0, 0)), (12, mG(0, 1)), (17, mG(0, 2)), (20, mG(0, 3))]
        if kind != "L":
            a(f"""
            v_readlane_b32 s{st1}, v{L2E+q}, 27
            s_nop 0
            s_bfe_u32 s{st1}, s{st1}, 0x70018
            s_sub_u32 s{st1}, s{st1}, s{sbase}
            s_cmp_ge_u32 s{st1}, {NWIN}
            s_cbranch_scc1 K2_REBASE{n}
            K2_RB{n}:
            """)
            ins += [(0, oh_idx(q)), (14, "s_waitcnt lgkmcnt(0)")]
            if kind == "F":
                ins += [(15, ea_addr(p))] + spread(ld_raw(p, 0), 16, 22) + [(22, ld_ea(p))]
            ins += [(23, [f"s_waitcnt vmcnt({33 if kind == 'F' else 16})", mE(q, 0)]), (26, mA(0))]
        a.ext(weave(base, ins))
        a.ext(adds(1))
        ins = []
        if kind != "L":
            P = mP(q, 0)
            ins = [(2+i + (i>>1), P[i]) for i in range(8)]
        a.ext(weave(rcps(1), ins))
        if p == 1 and kind == "F":
            a(f"v_add_u32 v{vA1}, 256, v{vA1}\nv_add_u32 v{vA2}, 256, v{vA2}")
        a.ext(muls(p, 1))
        if kind == "F":
            a(f"s_sub_u32 s{scount}, s{scount}, 1\ns_cmp_eq_u32 s{scount}, 2\ns_cbranch_scc1 K2_BODYP{q}")
    a(f"s_cmp_eq_u32 s{scount}, 1\ns_cbranch_scc0 K2_FIRST2")
    first(16); a.ext(segA(0, False, first=True)); a("s_branch K2_MIDL0")
    a("K2_FIRST2:")
    first(33); a.ext(segA(0, True, first=True))
    a(f"s_cmp_eq_u32 s{scount}, 2\ns_cbranch_scc1 K2_MIDP0\ns_branch K2_MIDF0")
    a(".p2align 6")
    body(0, "F"); body(1, "F")
    a("s_branch K2_BODYF0")
    def drain(p):
        a.ext(weave(cvts(p, 1), [(6, mG(1, 0)), (12, mG(1, 1))]))
        a("s_nop 1"); a(mG(1, 2)); a(mG(1, 3))
    for p in range(2):
        for kind in "FPL":
            n = f"{kind}{p}"
            if kind != "L":
                a(f"K2_REBASE{n}:")
                a(f"""
                v_readlane_b32 s{st2}, v{L2E+1-p}, 4
                s_mov_b32 s{sold}, s{sbase}
                s_mov_b32 s{sflush}, 1
                s_bfe_u32 s{sbase}, s{st2}, 0x70018
                """)
                a.ext(load_ap())
                a(f"s_branch K2_RB{n}")
            a(f"K2_FLUSH{n}:")
            a("s_nop 11")
            a.ext(flush(sold))
            a("s_waitcnt lgkmcnt(0)")
            for r in range(32): a(f"v_mov_b32 v{ACC+r}, 0")
            a(f"s_mov_b32 s{sflush}, 0\ns_branch K2_MID{n}")
    body(0, "P"); body(1, "L"); drain(1); a("s_branch K2_DRAINED")
    body(1, "P"); body(0, "L"); drain(0)
    a("K2_DRAINED:\ns_nop 11")
    a.ext(flush(sbase))
    a(f"""
    K2_DONE:
    s_waitcnt vmcnt(0) lgkmcnt(0)
    s_barrier
    s_cmp_lg_u32 s{sslow}, 0
    s_cbranch_scc1 K2_ROUND
    K2_EPI:
    """)
    def epi_read(b, rnd):
        a(f"""
        v_lshrrev_b32 v{b}, 3, v0
        v_and_b32 v{b+1}, 7, v0
        """)
        if rnd: a(f"v_add_u32 v{b}, 64, v{b}")
        a(f"""
        v_lshlrev_b32 v{b+2}, 9, v{b}
        v_lshl_add_u32 v{b+2}, v{b+1}, 5, v{b+2}
        v_add_u32 v{b+2}, {ACCL}, v{b+2}
        ds_read_b128 {vr(b+8,4)}, v{b+2}
        ds_read_b128 {vr(b+12,4)}, v{b+2} offset:16
        ds_read_b128 {vr(b+16,4)}, v{b+2} offset:256
        ds_read_b128 {vr(b+20,4)}, v{b+2} offset:272
        v_mul_u32_u24 v{b+3}, {ROWP}, v{b}
        v_lshl_add_u32 v{b+3}, v{b+1}, 4, v{b+3}
        ds_read_b128 {vr(b+24,4)}, v{b+3} offset:{UL}
        s_lshl_b32 s{st0}, s{shalf}, 3
        v_add_u32 v{b+4}, s{st0}, v{b+1}
        v_and_b32 v{b+5}, 15, v{b}
        v_xor_b32 v{b+4}, v{b+4}, v{b+5}
        v_lshlrev_b32 v{b+4}, 4, v{b+4}
        v_lshl_add_u32 v{b+4}, v{b}, 8, v{b+4}
        ds_read_b128 {vr(b+28,4)}, v{b+4} offset:{XL}
        v_lshlrev_b32 v{b+6}, 4, v{b+1}
        v_lshl_add_u32 v{b+6}, v{b}, 8, v{b+6}
        """)
    def epi_math(b):
        for i in range(8): a(f"v_add_f32 v{b+8+i}, 0x358637bd, v{b+8+i}")
        for i in range(8): a(f"v_rcp_f32 v{b+8+i}, v{b+8+i}")
        for d in range(4):
            a(f"""
            v_lshlrev_b32 v{b}, 16, v{b+24+d}
            v_and_b32 v{b+1}, 0xffff0000, v{b+24+d}
            v_lshlrev_b32 v{b+2}, 16, v{b+28+d}
            v_and_b32 v{b+3}, 0xffff0000, v{b+28+d}
            v_fmac_f32 v{b}, v{b+16+2*d}, v{b+8+2*d}
            v_fmac_f32 v{b+1}, v{b+17+2*d}, v{b+9+2*d}
            v_max_f32 v{b}, 0, v{b}
            v_max_f32 v{b+1}, 0, v{b+1}
            v_add_f32 v{b}, v{b}, v{b+2}
            v_add_f32 v{b+1}, v{b+1}, v{b+3}
            v_cvt_pk_bf16_f32 v{b+32+d}, v{b}, v{b+1}
            """)
        a(f"buffer_store_dwordx4 {vr(b+32,4)}, v{b+6}, {sr(sO,4)}, 0 offen")
    assert UL <= 65535 and XL <= 65535
    epi_read(ACC, 0)
    a(f"s_cmp_lt_u32 s{sw}, 2\ns_cbranch_scc0 K2_EPI1")
    epi_read(RAW, 1)
    a("s_waitcnt lgkmcnt(0)")
    epi_math(RAW)
    a("K2_EPI1:\ns_waitcnt lgkmcnt(0)")
    epi_math(ACC)
    a("K2_END:\ns_endpgm")

    a("K2_SLOW:")
    srd(a, sE, 6, None, E*32)
    srd(a, sS, 8, None, E*4)
    srd(a, sD, 10, None, E*4)
    a(f"""
    s_mov_b32 s{sslow}, 1
    s_mov_b32 s{sM}, 127
    s_waitcnt vmcnt(0) lgkmcnt(0)
    s_barrier
    """)
    gemm()
    a(f"""
    K2_ROUND:
    s_cmp_ge_u32 s{sround}, {E//512}
    s_cbranch_scc1 K2_EPI
    s_lshl_b32 s{st0}, s{sround}, 9
    s_add_u32 s{sround}, s{sround}, 1
    v_add_u32 v{EOFF}, s{st0}, v0
    v_lshlrev_b32 v{vt}, 2, v{EOFF}
    buffer_load_dword v{REC}, v{vt}, {sr(sD,4)}, 0 offen
    buffer_load_dword v{REC+1}, v{vt}, {sr(sS,4)}, 0 offen
    v_lshlrev_b32 v{EOFF}, 5, v{EOFF}
    v_and_b32 v{SP}, 1, v0
    v_lshlrev_b32 v{SP}, 7, v{SP}
    v_mov_b32 v{SP+1}, v{SP}
    v_mov_b32 v{SP+2}, v{SP}
    v_mov_b32 v{SP+3}, v{SP}
    v_mov_b32 v{SP+4}, 0x80ffffe0
    v_mov_b32 v{SP+5}, 0x80ffffe0
    v_mov_b32 v{SP+6}, 0x80ffffe0
    v_mov_b32 v{SP+7}, 0x80ffffe0
    v_lshlrev_b32 v{vt}, 4, v0
    ds_write_b128 v{vt}, {vr(SP,4)} offset:{L1}
    ds_write_b128 v{vt}, {vr(SP,4)} offset:{L1+8192}
    ds_write_b128 v{vt}, {vr(SP+4,4)} offset:{L2}
    ds_write_b128 v{vt}, {vr(SP+4,4)} offset:{L2+8192}
    v_and_b32 v{vt}, 127, v0
    v_lshlrev_b32 v{vt}, 2, v{vt}
    v_mov_b32 v{vt+1}, 0
    ds_write_b32 v{vt}, v{vt+1} offset:{CNT}
    s_mul_i32 s{st0}, s{sbin}, {BN}
    v_mov_b32 v{vt+3}, 4
    s_waitcnt vmcnt(0) lgkmcnt(0)
    s_barrier
    v_subrev_u32 v{REC}, s{st0}, v{REC}
    v_cmp_gt_u32 vcc, {BN}, v{REC}
    v_lshlrev_b32 v{CADDR}, 2, v{REC}
    v_lshl_or_b32 v{REC}, v{REC+1}, 8, v{REC}
    s_mov_b64 s[78:79], vcc
    s_mov_b64 exec, vcc
    ds_add_rtn_u32 v{RANK}, v{CADDR}, v{vt+3} offset:{CNT}
    s_mov_b64 exec, -1
    s_waitcnt lgkmcnt(0)
    s_barrier
    """)
    scan()
    ranges()
    a(f"""
    s_waitcnt lgkmcnt(0)
    s_mov_b64 exec, s[78:79]
    ds_read_b32 v{STV}, v{CADDR} offset:{START}
    s_waitcnt lgkmcnt(0)
    """)
    place(0)
    a(f"""
    s_mov_b64 exec, -1
    s_waitcnt lgkmcnt(0)
    s_barrier
    s_branch K2_FILL
    """)
    return a.text(), kd("k2_kernel", 244, 96)

def main():
    k1, d1 = gen_k1(); k2, d2 = gen_k2()
    ref = open("standalone__edge_featured_mpnn_gatedgcn__graph.s.ref").read().split("\n")
    hdr = [l for l in ref[:13]]
    out = "\n".join(hdr) + "\n"
    out += f"; @launch kernel=k1_kernel grid=({NCH},1,1) block=(1024,1,1) lds={K1_LDS}\n"
    out += f"; @launch kernel=k2_kernel grid=({2*NBIN},1,1) block=(512,1,1) lds={K2_LDS}\n"
    out += '.amdgcn_target "amdgcn-amd-amdhsa--gfx950"\n.text\n'
    for n, k in (("k1_kernel", k1), ("k2_kernel", k2)):
        out += f".globl {n}\n.p2align 8\n.type {n},@function\n" + k
    out += '.section .rodata,"a"\n.p2align 6\n' + d1.lstrip("\n") + '.p2align 6\n' + d2.lstrip("\n")
    open(sys.argv[1], "w").write(out)

if __name__ == "__main__":
    main()
```

```python
import struct, sys

N = 10000; E = 320000
NCH = 128; CS = 2500
NBIN = 250; BN = 40; GN = 10
CAP = 32
T_OFF = 0x100000
REC_OFF = 0x700000
WT_OFF = 0xB00000
PROF_OFF = 0xF000000
NL2E = struct.unpack("<I", struct.pack("<f", -1.4426950408889634))[0]

def bf(x): return struct.unpack("<I", struct.pack("<f", x))[0] >> 16

OPT = dict(st_r="sc1", st_t="sc1")
for a in sys.argv[2:]:
    k, v = a.split("=", 1); OPT[k] = v

class Asm:
    def __init__(self): self.l = []
    def __call__(self, s):
        for x in s.strip("\n").split("\n"):
            x = x.strip()
            if not x: continue
            self.l.append(x if x.endswith(":") else "    " + x)
    def ext(self, lst):
        for x in lst: self(x)
    def text(self): return "\n".join(self.l) + "\n"

def stamp(a, i, lvl="1"):
    if OPT.get("prof") and (i in (0, 8) or OPT["prof"] == lvl): a(f"s_memrealtime s[{84+2*i}:{85+2*i}]")
def stamp_out(a, kern, wsreg, sw, vtmp):
    if not OPT.get("prof"): return
    a("s_waitcnt vmcnt(0)")
    stamp(a, 8)
    a(f"""
    s_lshl_b32 s4, s2, 4
    s_add_u32 s4, s4, s{sw}
    s_lshl_b32 s4, s4, 6
    s_add_u32 s4, s4, {PROF_OFF + kern*0x100000}
    s_add_u32 s4, s{wsreg}, s4
    s_addc_u32 s5, s{wsreg+1}, 0
    s_mov_b32 s6, 64
    s_mov_b32 s7, 0x20000
    s_waitcnt lgkmcnt(0)
    """)
    for i in range(9): a(f"v_writelane_b32 v{vtmp}, s{84+2*i}, {i}")
    a(f"""
    v_mbcnt_lo_u32_b32 v{vtmp+1}, -1, 0
    v_mbcnt_hi_u32_b32 v{vtmp+1}, -1, v{vtmp+1}
    v_lshlrev_b32 v{vtmp+1}, 2, v{vtmp+1}
    buffer_store_dword v{vtmp}, v{vtmp+1}, s[4:7], 0 offen
    """)

def vr(b, n): return f"v[{b}:{b+n-1}]"
def sr(b, n): return f"s[{b}:{b+n-1}]"

def srd(a, d, base, add=None, size=None, w3="0x20000", hi_or=None):
    if add is None:
        a(f"s_mov_b32 s{d}, s{base}\ns_mov_b32 s{d+1}, s{base+1}")
    else:
        a(f"s_add_u32 s{d}, s{base}, {add}\ns_addc_u32 s{d+1}, s{base+1}, 0")
    if hi_or: a(f"s_or_b32 s{d+1}, s{d+1}, {hi_or}")
    a(f"s_mov_b32 s{d+2}, {size}\ns_mov_b32 s{d+3}, {w3}")

def kd(name, vgpr, sgpr):
    return f"""
.amdhsa_kernel {name}
  .amdhsa_next_free_vgpr {vgpr}
  .amdhsa_next_free_sgpr {sgpr}
  .amdhsa_accum_offset {(vgpr+3)//4*4}
  .amdhsa_group_segment_fixed_size 0
  .amdhsa_kernarg_size 96
  .amdhsa_user_sgpr_count 2
  .amdhsa_user_sgpr_kernarg_segment_ptr 1
  .amdhsa_system_sgpr_workgroup_id_x 1
.end_amdhsa_kernel
"""

def rec_fields(a, vd, vbin, vtmp, sm40, sm10):
    a(f"""
    v_mul_u32_u24 v{vbin}, 52429, v{vd}
    v_lshrrev_b32 v{vbin}, 21, v{vbin}
    v_mad_i32_i24 v{vd}, v{vbin}, s{sm40}, v{vd}
    v_mul_u32_u24 v{vtmp}, 26, v{vd}
    v_lshrrev_b32 v{vtmp}, 8, v{vtmp}
    v_mad_i32_i24 v{vd}, v{vtmp}, s{sm10}, v{vd}
    v_lshl_or_b32 v{vd}, v{vtmp}, 30, v{vd}
    """)

K1_CNT = 0; K1_STG = 1024; K1_X = 65536; K1_LDS = K1_X + 20480
def gen_k1():
    a = Asm()
    sS, sD, sW1, sW2, sX, sR, sT = 24, 28, 32, 36, 40, 44, 48
    sw, st0, st1, st2, sng, sfb, stask = 52, 53, 54, 55, 56, 57, 58
    c4096, c8192, cm40, cm10, cnl2e, csign, cmag, ctso = 59, 60, 61, 62, 63, 64, 65, 66
    a("k1_kernel:")
    a(f"s_cmp_ge_u32 s2, {2*NCH}\ns_cbranch_scc1 K1_END")
    stamp(a, 0)
    a(f"""
    s_load_dwordx16 s[4:19], s[0:1], 0
    s_load_dwordx2 s[20:21], s[0:1], 64
    s_load_dwordx2 s[22:23], s[0:1], 88
    v_lshrrev_b32 v2, 6, v0
    v_lshlrev_b32 v1, 2, v0
    v_readfirstlane_b32 s{sw}, v2
    s_mov_b32 s{c4096}, 4096
    s_mov_b32 s{c8192}, 8192
    s_cmp_ge_u32 s2, {NCH}
    s_cbranch_scc1 K1_GEMM
    """)
    vD, vS, vB, vSL, vt = 2, 5, 8, 11, 16
    a(f"s_mul_i32 s{st1}, s2, {CS*4}\ns_waitcnt lgkmcnt(0)")
    srd(a, sD, 10, f"s{st1}", CS*4)
    srd(a, sS, 8, f"s{st1}", CS*4)
    for r, so in enumerate(("0", f"s{c4096}", f"s{c8192}")):
        a(f"buffer_load_dword v{vD+r}, v1, {sr(sD,4)}, {so} offen")
        a(f"buffer_load_dword v{vS+r}, v1, {sr(sS,4)}, {so} offen")
    a(f"""
    v_mov_b32 v{vt}, -1
    v_mov_b32 v{vt+1}, -1
    v_mov_b32 v{vt+2}, -1
    v_mov_b32 v{vt+3}, -1
    v_lshlrev_b32 v{vt+4}, 4, v0
    v_mov_b32 v{vt+5}, 0
    v_and_b32 v{vt+6}, 0x3fc, v1
    ds_write_b128 v{vt+4}, {vr(vt,4)} offset:{K1_STG}
    ds_write_b128 v{vt+4}, {vr(vt,4)} offset:{K1_STG+16384}
    ds_write_b32 v{vt+6}, v{vt+5} offset:{K1_CNT}
    s_lshl_b32 s{st0}, s2, 7
    s_add_u32 s{st0}, s{st0}, {REC_OFF}
    """)
    srd(a, sR, 22, f"s{st0}", NBIN*NCH*128)
    a(f"""
    s_mov_b32 s{cm40}, {-BN}
    s_mov_b32 s{cm10}, {-GN}
    v_mov_b32 v{vt+5}, 1
    v_cmp_gt_u32 vcc, {CS-2048}, v0
    s_mov_b64 s[80:81], vcc
    v_lshrrev_b32 v{vt+7}, 3, v0
    v_and_b32 v{vt+8}, 7, v0
    v_lshlrev_b32 v{vt+9}, 14, v{vt+7}
    v_lshl_add_u32 v{vt+9}, v{vt+8}, 4, v{vt+9}
    v_lshlrev_b32 v{vt+7}, 2, v{vt+7}
    v_cmp_eq_u32 s[82:83], 7, v{vt+8}
    s_mov_b32 s{st2}, {128*16384}
    s_waitcnt lgkmcnt(0)
    s_barrier
    """)
    stamp(a, 1)
    for r in range(3):
        a(f"s_waitcnt vmcnt({4-2*r})")
        if r == 0: stamp(a, 2)
        rec_fields(a, vD+r, vB+r, vt, cm40, cm10)
        a(f"v_lshlrev_b32 v{vt}, 2, v{vB+r}")
        if r == 2: a("s_mov_b64 exec, s[80:81]")
        a(f"ds_add_rtn_u32 v{vSL+r}, v{vt}, v{vt+5} offset:{K1_CNT}")
        if r == 2: a("s_mov_b64 exec, -1")
        a(f"""
        v_lshl_or_b32 v{vD+r}, v{vS+r}, 16, v{vD+r}
        v_add_u32 v{vS+r}, {1024*r}, v0
        v_lshl_or_b32 v{vD+r}, v{vS+r}, 4, v{vD+r}
        v_lshlrev_b32 v{vB+r}, 7, v{vB+r}
        """)
    for r in range(3):
        a(f"s_waitcnt lgkmcnt({2-r})" if r == 0 else f"s_waitcnt lgkmcnt({2})" if r == 1 else "s_waitcnt lgkmcnt(2)")
        if r == 2: a("s_mov_b64 exec, s[80:81]")
        a(f"""
        v_lshl_add_u32 v{vB+r}, v{vSL+r}, 2, v{vB+r}
        v_cmpx_gt_u32 vcc, {CAP}, v{vSL+r}
        ds_write_b32 v{vB+r}, v{vD+r} offset:{K1_STG}
        s_mov_b64 exec, -1
        """)
    a("s_waitcnt lgkmcnt(0)")
    stamp(a, 3)
    a("s_barrier")
    stamp(a, 4)
    a(f"""
    ds_read_b128 {vr(vt+12,4)}, v{vt+4} offset:{K1_STG}
    ds_read_b32 v{vt}, v{vt+7} offset:{K1_CNT}
    ds_read_b128 {vr(vt+16,4)}, v{vt+4} offset:{K1_STG+16384}
    ds_read_b32 v{vt+1}, v{vt+7} offset:{K1_CNT+512}
    v_mov_b32 v{vt+2}, -2
    """)
    for k in range(2):
        a(f"""
        s_waitcnt lgkmcnt({2-2*k})
        v_cmp_lt_u32 vcc, {CAP}, v{vt+k}
        s_and_b64 vcc, vcc, s[82:83]
        s_nop 1
        v_cndmask_b32 v{vt+15+4*k}, v{vt+15+4*k}, v{vt+2}, vcc
        buffer_store_dwordx4 {vr(vt+12+4*k,4)}, v{vt+9}, {sr(sR,4)}, {'0' if k == 0 else f's{st2}'} offen {OPT['st_r']}
        """)
    stamp(a, 5); stamp(a, 6); stamp(a, 7)
    stamp_out(a, 0, 22, sw, 2)
    a("s_endpgm")
    vW, vX, vA, vt = 32, 96, 112, 2
    def W(m, ab, s): return vW + 32*m + 16*ab + 4*s
    a(f"""
    K1_GEMM:
    s_sub_u32 s{stask}, s2, {NCH}
    s_and_b32 s{sfb}, s{sw}, 3
    s_lshr_b32 s{sng}, s{sw}, 2
    v_and_b32 v{vt}, 63, v0
    v_lshrrev_b32 v{vt+1}, 4, v{vt}
    v_and_b32 v{vt+2}, 15, v0
    s_lshl_b32 s{st0}, s{sfb}, 2
    v_add_u32 v{vt+3}, s{st0}, v{vt+1}
    v_xor_b32 v{vt+3}, v{vt+3}, v{vt+2}
    v_lshlrev_b32 v{vt+3}, 4, v{vt+3}
    v_lshl_add_u32 v{vt+3}, v{vt+1}, 8, v{vt+3}
    v_lshlrev_b32 v{vt+4}, 2, v{vt+1}
    v_xor_b32 v{vt+4}, v{vt+4}, v{vt+2}
    v_lshlrev_b32 v{vt+4}, 4, v{vt+4}
    v_lshl_add_u32 v{vt+4}, v{vt+1}, 8, v{vt+4}
    s_mul_i32 s{st0}, s{stask}, 20480
    s_cmp_lt_u32 s{stask}, 125
    s_cselect_b32 s{st0}, s{st0}, 0
    s_cselect_b32 s{st2}, 20480, 0
    s_waitcnt lgkmcnt(0)
    s_cmp_ge_u32 s{stask}, 126
    s_cbranch_scc1 K1_WC
    s_add_u32 s{sX}, s4, s{st0}
    s_addc_u32 s{sX+1}, s5, 0
    s_mov_b32 s{sX+2}, s{st2}
    s_mov_b32 s{sX+3}, 0x20000
    s_lshl_b32 s{st1}, s{sw}, 10
    s_add_u32 m0, s{st1}, {K1_X}
    s_cmp_eq_u32 s{stask}, 125
    s_cselect_b64 {sr(sW1,2)}, s[12:13], s[14:15]
    s_cselect_b64 {sr(sW2,2)}, s[18:19], s[20:21]
    buffer_load_dwordx4 v{vt+3}, {sr(sX,4)}, s{st1} offen lds
    s_cmp_lt_u32 s{sw}, 4
    s_cbranch_scc0 K1_X1
    s_add_u32 m0, s{st1}, {K1_X+16384}
    s_add_u32 s{st1}, s{st1}, 16384
    buffer_load_dwordx4 v{vt+3}, {sr(sX,4)}, s{st1} offen lds
    K1_X1:
    s_mov_b32 s{sW1+2}, 32768
    s_mov_b32 s{sW1+3}, 0x20000
    s_mov_b32 s{sW2+2}, 32768
    s_mov_b32 s{sW2+3}, 0x20000
    s_lshl_b32 s{st1}, s{sw}, 11
    s_mov_b32 m0, s{st1}
    s_lshl_b32 s{st0}, s{st0}, 1
    buffer_load_dwordx4 v{vt+4}, {sr(sW1,4)}, s{st1} offen lds
    buffer_load_dwordx4 v{vt+4}, {sr(sW1,4)}, s{st1} offen offset:1024 lds
    s_add_u32 m0, s{st1}, 32768
    s_add_u32 s{st0}, s{st0}, {T_OFF}
    buffer_load_dwordx4 v{vt+4}, {sr(sW2,4)}, s{st1} offen lds
    buffer_load_dwordx4 v{vt+4}, {sr(sW2,4)}, s{st1} offen offset:1024 lds
    """)
    srd(a, sT, 22, f"s{st0}", 40960)
    a(f"""
    v_bfe_u32 v{vt+5}, v0, 2, 2
    v_and_b32 v{vt+6}, 3, v0
    s_lshl_b32 s{st0}, s{sfb}, 2
    v_add_u32 v{vt+6}, s{st0}, v{vt+6}
    v_lshlrev_b32 v{vt+7}, 2, v{vt+5}
    v_xor_b32 v{vt+6}, v{vt+6}, v{vt+7}
    v_lshl_add_u32 v{vt+5}, v{vt+1}, 3, v{vt+5}
    v_lshlrev_b32 v{vt+5}, 8, v{vt+5}
    v_lshl_add_u32 v10, v{vt+6}, 4, v{vt+5}
    v_xor_b32 v11, v{vt+1}, v{vt+2}
    v_lshlrev_b32 v11, 4, v11
    v_lshl_add_u32 v11, v{vt+2}, 8, v11
    s_lshl_b32 s{st0}, s{sng}, 12
    s_add_u32 s{st0}, s{st0}, {K1_X}
    v_add_u32 v11, s{st0}, v11
    v_lshlrev_b32 v12, 9, v{vt+2}
    v_lshl_add_u32 v12, v{vt+1}, 4, v12
    s_lshl_b32 s{st0}, s{sng}, 13
    s_lshr_b32 s{st1}, s{sfb}, 1
    s_lshl_b32 s{st1}, s{st1}, 8
    s_add_u32 s{st0}, s{st0}, s{st1}
    s_and_b32 s{st1}, s{sfb}, 1
    s_lshl_b32 s{st1}, s{st1}, 6
    s_add_u32 s{ctso}, s{st0}, s{st1}
    s_mov_b32 s{cnl2e}, {NL2E:#x}
    s_mov_b32 s{csign}, 0x80000000
    s_mov_b32 s{cmag}, 0x7fff0000
    v_xor_b32 v13, 64, v11
    v_xor_b32 v14, 0x80, v11
    v_xor_b32 v15, 0xc0, v11
    """)
    stamp(a, 1)
    a("s_waitcnt vmcnt(0)")
    stamp(a, 2)
    a("s_barrier")
    stamp(a, 3)
    def xrd(off):
        for s in range(4): a(f"ds_read_b128 {vr(vX+4*s,4)}, v{[11,13,14,15][s]} offset:{off}")
    xrd(0)
    n = 4
    for s in range(4):
        for m in range(2):
            for ab in range(2):
                for u in range(2):
                    a(f"ds_read_b64_tr_b16 {vr(W(m,ab,s)+2*u,2)}, v10 offset:{m*32768+s*8192+u*1024+ab*8}")
        if s < 3: a("s_waitcnt lgkmcnt(6)")
    a(f"s_cmp_eq_u32 s{stask}, 125\ns_cbranch_scc1 K1_WT")
    def mm():
        for s in range(4):
            for m in range(2):
                for ab in range(2):
                    d = vr(vA+8*m+4*ab, 4)
                    a(f"v_mfma_f32_16x16x32_bf16 {d}, {vr(W(m,ab,s),4)}, {vr(vX+4*s,4)}, {'0' if s == 0 else d}")
    def pack(so):
        a("s_nop 7")
        for b in range(2):
            for n_, (ab, i) in enumerate(((0, b), (0, 2+b), (1, b), (1, 2+b))):
                bb = vA+4*ab+i; h = vA+8+4*ab+i; t = 16; o = 20+4*b+n_
                a(f"""
                v_mul_f32 v{bb}, s{cnl2e}, v{bb}
                v_and_b32 v{t}, 0x7fffffff, v{h}
                v_cvt_pk_bf16_f32 v{bb}, v{bb}, v{bb}
                v_max_u32 v{t}, 0x10000, v{t}
                v_and_b32 v{bb}, 0xffff, v{bb}
                v_add_u32 v{t}, 0x8000, v{t}
                v_and_or_b32 v{h}, v{h}, s{csign}, v{bb}
                v_sub_u32 v{t}, v{t}, v{bb}
                v_bfi_b32 v{o}, s{cmag}, v{t}, v{h}
                """)
            a(f"buffer_store_dwordx4 {vr(20+4*b,4)}, v12, {sr(sT,4)}, s{so} offen offset:{128*b} {OPT['st_t']}")
    a("s_waitcnt lgkmcnt(0)")
    mm()
    stamp(a, 4)
    a(f"s_cmp_eq_u32 s{sng}, 0\ns_cbranch_scc0 K1_ONE")
    xrd(16384)
    pack(ctso)
    a(f"s_add_u32 s{ctso}, s{ctso}, 32768\ns_waitcnt lgkmcnt(0)")
    mm()
    a("K1_ONE:")
    pack(ctso)
    stamp(a, 5); stamp(a, 6); stamp(a, 7)
    stamp_out(a, 0, 22, sw, 2)
    a("s_endpgm")
    a("K1_WT:")
    srd(a, sT, 22, WT_OFF, 65536)
    a(f"""
    s_cmp_ge_u32 s{sw}, 8
    s_cbranch_scc1 K1_END
    v_lshlrev_b32 v{vt+1}, 4, v{vt}
    s_lshl_b32 s{st0}, s{sw}, 13
    s_add_u32 s{st1}, s{st0}, 4096
    s_waitcnt lgkmcnt(0)
    s_cmp_eq_u32 s{sng}, 0
    s_cbranch_scc0 K1_WU
    """)
    for m in range(2):
        for ab in range(2):
            for s in range(4):
                a(f"buffer_store_dwordx4 {vr(W(m,ab,s),4)}, v{vt+1}, {sr(sT,4)}, s{st1 if ab else st0} offen offset:{1024*s}")
        a("s_endpgm")
        if m == 0: a("K1_WU:")
    a("K1_WC:")
    srd(a, sT, 22, WT_OFF+65536, 4096)
    srd(a, sW1, 16, None, 4096)
    a(f"""
    s_cmp_eq_u32 s{stask}, 126
    s_cbranch_scc0 K1_END
    s_cmp_ge_u32 s{sw}, 4
    s_cbranch_scc1 K1_END
    v_lshrrev_b32 v{vt+2}, 5, v{vt}
    v_and_b32 v{vt+3}, 31, v0
    v_lshlrev_b32 v{vt+3}, 2, v{vt+3}
    v_lshl_add_u32 v{vt+3}, v{vt+2}, 11, v{vt+3}
    v_lshlrev_b32 v{vt+1}, 4, v{vt}
    s_lshr_b32 s{st1}, s{sw}, 1
    s_lshl_b32 s{st1}, s{st1}, 7
    s_and_b32 s{st0}, s{sw}, 1
    s_lshl_b32 s{st0}, s{st0}, 1
    s_add_u32 s{st1}, s{st1}, s{st0}
    s_lshl_b32 s{st0}, s{sw}, 10
    s_mov_b32 s{cnl2e}, {NL2E:#x}
    """)
    for j in range(8):
        a(f"buffer_load_ushort v{20+j}, v{vt+3}, {sr(sW1,4)}, s{st1} offen offset:{256*j}")
    a("s_waitcnt vmcnt(0)")
    for j in range(8):
        a(f"v_lshlrev_b32 v{20+j}, 16, v{20+j}\nv_mul_f32 v{20+j}, s{cnl2e}, v{20+j}")
    for j in range(4):
        a(f"v_cvt_pk_bf16_f32 v{28+j}, v{20+2*j}, v{21+2*j}")
    a(f"buffer_store_dwordx4 v[28:31], v{vt+1}, {sr(sT,4)}, s{st0} offen")
    a("K1_END:\ns_endpgm")
    return a.text(), kd("k1_kernel", 128, 102)

CAPG = 640
CNT = 0; START = 256; OHL = 512; L1 = 1024; L2 = L1 + 4*CAPG*4; APL = L2 + 4*CAPG*4
ROWP = 272
UL = APL + 48*ROWP; XL = UL + 48*ROWP; K2_LDS = XL + 12288

def gen_k2():
    a = Asm()
    sREC, sX, sWT, sT, sE, sO, sD, sS = 24, 28, 32, 36, 40, 44, 68, 72
    sw, sg, sfh, st0, st1, st2 = 48, 49, 50, 51, 52, 53
    scount, sslow, sround, sinit, sgb, slane = 54, 55, 56, 57, 58, 59
    cm32, c128, cnl2e, cfc, csrc, cm40, cm10 = 60, 61, 62, 63, 64, 65, 66
    vH16, vA1, vA2, vM15 = 1, 2, 3, 4
    vt = 5
    WC = 12; AP = 20; PA = 28; SC = 32; OH = 36; EA = 40; L2E = 48; vEa = 50; vOa = 51
    ADDR = 52; ACC = 68; G = 100; SP = 132; RAW = 148
    XR = 212; UR = 218; vO = 224; vO2 = 225; GA2 = 226; REC = 234; EOFF = 242
    raw = lambda p, b: RAW + 32*p + 16*b
    WT = ACC; CADDR = G; RANK = G+8; STV = G+16; Z = SP

    a("k2_kernel:")
    a(f"s_cmp_ge_u32 s2, {NBIN}\ns_cbranch_scc1 K2_END")
    stamp(a, 0)
    a(f"""
    s_load_dwordx8 s[4:11], s[0:1], 0
    s_load_dwordx2 s[12:13], s[0:1], 72
    s_load_dwordx2 s[14:15], s[0:1], 88
    v_lshrrev_b32 v{vt}, 6, v0
    v_lshrrev_b32 v{vt+1}, 2, v0
    v_readfirstlane_b32 s{sw}, v{vt}
    v_and_b32 v{vt+2}, 3, v0
    v_lshlrev_b32 v{vt+3}, 7, v{vt+1}
    v_lshl_add_u32 v{vt+3}, v{vt+2}, 4, v{vt+3}
    s_lshl_b32 s{st0}, s2, 14
    s_add_u32 s{st0}, s{st0}, {REC_OFF}
    v_mul_u32_u24 v{EOFF}, {CS*32}, v{vt+1}
    s_waitcnt lgkmcnt(0)
    """)
    srd(a, sREC, 14, f"s{st0}", 16384)
    for r in range(2):
        a(f"buffer_load_dwordx4 {vr(REC+4*r,4)}, v{vt+3}, {sr(sREC,4)}, 0 offen offset:{64*r}")
    a(f"""
    v_cmp_gt_u32 vcc, 128, v0
    s_and_saveexec_b64 s[76:77], vcc
    v_lshlrev_b32 v{vt+3}, 2, v0
    v_mov_b32 v{Z}, 0
    ds_write_b32 v{vt+3}, v{Z} offset:{CNT}
    v_lshrrev_b32 v{vt+4}, 3, v0
    v_and_b32 v{Z+4}, 7, v0
    v_lshlrev_b32 v{Z+5}, 1, v{Z+4}
    v_mov_b32 v{Z+6}, 0x3f80
    v_mov_b32 v{Z+7}, 0x3f800000
    v_cmp_eq_u32 vcc, v{Z+5}, v{vt+4}
    v_add_u32 v{Z+5}, 1, v{Z+5}
    s_nop 0
    v_cndmask_b32 v{Z+8}, 0, v{Z+6}, vcc
    v_cmp_eq_u32 vcc, v{Z+5}, v{vt+4}
    v_cmp_eq_u32 s[78:79], 7, v{Z+4}
    s_or_b64 vcc, vcc, s[78:79]
    s_nop 1
    v_cndmask_b32 v{Z+9}, 0, v{Z+7}, vcc
    v_or_b32 v{Z+8}, v{Z+8}, v{Z+9}
    v_cmp_gt_u32 vcc, 15, v{vt+4}
    s_nop 1
    v_cndmask_b32 v{Z+8}, 0, v{Z+8}, vcc
    ds_write_b32 v{vt+3}, v{Z+8} offset:{OHL}
    s_mov_b64 exec, s[76:77]
    s_mul_i32 s{st0}, s2, {BN*256}
    s_and_b32 s{sg}, s{sw}, 3
    s_lshr_b32 s{sfh}, s{sw}, 2
    """)
    srd(a, sX, 4, f"s{st0}", BN*256)
    srd(a, sO, 12, f"s{st0}", BN*256)
    srd(a, sWT, 14, WT_OFF, 65536+4096)
    a(f"""
    v_and_b32 v{vt}, 63, v0
    v_lshrrev_b32 v{vt+4}, 4, v{vt}
    s_lshl_b32 s{st1}, s{sg}, 2
    v_add_u32 v{vA1}, s{st1}, v{vt+4}
    v_and_b32 v{vA2}, 15, v0
    v_xor_b32 v{vA1}, v{vA1}, v{vA2}
    v_lshlrev_b32 v{vA1}, 4, v{vA1}
    v_lshl_add_u32 v{vA1}, v{vt+4}, 8, v{vA1}
    v_lshlrev_b32 v{vA2}, 4, v{vt}
    v_lshrrev_b32 v{vt+3}, 5, v{vt}
    v_and_b32 v{vt+4}, 31, v0
    s_mul_i32 s{st0}, s{sg}, {GN*256}
    s_lshl_b32 s{st1}, s{sfh}, 7
    s_add_u32 s{st0}, s{st0}, s{st1}
    v_lshlrev_b32 v{vO}, 2, v{vt+4}
    v_lshl_add_u32 v{vO}, v{vt+3}, 10, v{vO}
    v_add_u32 v{vO}, s{st0}, v{vO}
    s_lshl_b32 s{st1}, s{sw}, 10
    s_add_u32 m0, s{st1}, {XL}
    s_waitcnt lgkmcnt(0)
    s_barrier
    """)
    stamp(a, 1)
    a(f"""
    buffer_load_dwordx4 v{vA1}, {sr(sX,4)}, s{st1} offen lds
    s_add_u32 m0, s{st1}, {XL+8192}
    s_add_u32 s{st2}, s{st1}, 8192
    s_cmp_lt_u32 s{sw}, 4
    s_cselect_b32 s{sX+2}, {BN*256}, 0
    buffer_load_dwordx4 v{vA1}, {sr(sX,4)}, s{st2} offen lds
    s_mov_b32 s{sX+2}, {BN*256}
    s_lshl_b32 s{st1}, s{sw}, 13
    s_add_u32 s{st2}, s{st1}, 4096
    """)
    for k in range(8):
        a(f"buffer_load_dwordx4 {vr(WT+4*k,4)}, v{vA2}, {sr(sWT,4)}, s{st2 if k >= 4 else st1} offen offset:{1024*(k&3)}")
    a(f"""
    s_lshl_b32 s{st1}, s{sfh}, 11
    s_add_u32 s{st1}, s{st1}, 65536
    buffer_load_dwordx4 {vr(WC,4)}, v{vA2}, {sr(sWT,4)}, s{st1} offen
    buffer_load_dwordx4 {vr(WC+4,4)}, v{vA2}, {sr(sWT,4)}, s{st1} offen offset:1024
    """)
    rowoff = lambda r: 8*(r >> 2) + (r & 3)
    for r in range(6):
        a(f"buffer_load_dword v{XR+r}, v{vO}, {sr(sX,4)}, 0 offen offset:{256*rowoff(r)}")
    NPRE = 18
    a(f"s_lshl_b32 s{st0}, s{sfh}, 8\ns_add_u32 s{st0}, s{st0}, {T_OFF-128}")
    srd(a, sT, 14, f"s{st0}", 64, w3="0x800000", hi_or="0x40000")
    srd(a, sE, 6, None, E*32)
    a(f"""
    s_mov_b32 s{cm32}, 0xffffffe0
    s_mov_b32 s{c128}, 128
    s_mov_b32 s{cnl2e}, {NL2E:#x}
    s_mov_b32 s{cfc}, 0xfc
    s_mov_b32 s{csrc}, 0x7ffe00
    s_mov_b32 s{sslow}, 0
    s_mov_b32 s{sround}, 0
    s_mov_b32 s{sinit}, 0
    s_mul_i32 s{sgb}, s{sg}, {CAPG*4}
    s_lshl_b32 s{slane}, s{sg}, 4
    s_add_u32 s{slane}, s{slane}, 15
    v_lshlrev_b32 v{vH16}, 4, v{vt+3}
    v_cmp_eq_u32 vcc, 0, v{vt+3}
    v_mov_b32 v{vM15}, 0xffff
    v_mov_b32 v{Z+4}, -1
    v_mov_b32 v{Z+5}, 0x80000000
    v_cndmask_b32 v{vM15}, v{vM15}, v{Z+4}, vcc
    v_cndmask_b32 v{vO2}, v{Z+5}, v{vO}, vcc
    v_and_b32 v{Z+4}, 3, v0
    v_mov_b32 v{Z+6}, 0x3f80
    """)
    for i in range(4):
        a(f"v_cmp_eq_u32 vcc, {i}, v{Z+4}\ns_nop 1\nv_cndmask_b32 v{PA+i}, 0, v{Z+6}, vcc")
    den = bf(127*2.0**-116); tiny = bf(2.0**-100)
    a(f"""
    v_cmp_gt_u32 s[78:79], 16, v{vt+4}
    v_mov_b32 v{Z+5}, {den:#x}
    v_mov_b32 v{Z+7}, {tiny<<16:#x}
    v_cndmask_b32 v{Z+5}, v{Z+6}, v{Z+5}, s[78:79]
    v_cndmask_b32 v{Z+7}, 0, v{Z+7}, s[78:79]
    v_and_b32 v{Z+4}, 15, v0
    v_lshlrev_b32 v{Z+8}, 3, v{vt+3}
    v_sub_u32 v{Z+4}, v{Z+4}, v{Z+8}
    v_lshlrev_b32 v{Z+6}, 16, v{Z+5}
    """)
    for d in range(4):
        a(f"""
        v_cmp_eq_u32 vcc, {2*d}, v{Z+4}
        v_cmp_eq_u32 s[78:79], {2*d+1}, v{Z+4}
        s_nop 0
        v_cndmask_b32 v{SC+d}, 0, v{Z+5}, vcc
        v_cndmask_b32 v{Z+8}, 0, v{Z+6}, s[78:79]
        v_or_b32 v{SC+d}, v{SC+d}, v{Z+8}
        """)
    a(f"""
    v_and_b32 v{SC+3}, v{SC+3}, v{vM15}
    v_not_b32 v{Z+8}, v{vM15}
    v_and_b32 v{Z+8}, v{Z+8}, v{Z+7}
    v_or_b32 v{SC+3}, v{SC+3}, v{Z+8}
    """)
    for r in range(16): a(f"v_mov_b32 v{ADDR+r}, 128")
    a(f"""
    v_mov_b32 v{vt+3}, 4
    s_waitcnt vmcnt({NPRE})
    """)
    stamp(a, 2)
    a(f"""
    v_cmp_eq_u32 vcc, -2, v{REC+7}
    s_cbranch_vccz K2_NOOVF
    v_mov_b32 v{vt+4}, 0x10000
    v_mov_b32 v{vt}, 60
    ds_add_u32 v{vt}, v{vt+4} offset:{CNT}
    K2_NOOVF:
    """)
    def caddr(k): return f"v_and_b32_sdwa v{CADDR+k}, s{cfc}, v{REC+k} dst_sel:DWORD dst_unused:UNUSED_PAD src0_sel:DWORD src1_sel:BYTE_3"
    for k in range(8):
        a(f"""
        v_cmpx_gt_u32 vcc, -2, v{REC+k}
        s_cbranch_execz K2_CNT_DONE
        {caddr(k)}
        ds_add_rtn_u32 v{RANK+k}, v{CADDR+k}, v{vt+3} offset:{CNT}
        """)
    a(f"""
    K2_CNT_DONE:
    s_mov_b64 exec, -1
    s_waitcnt lgkmcnt(0)
    s_barrier
    """)
    def scan():
        x = STV + 8
        a(f"""
        v_and_b32 v{vt}, 63, v0
        v_lshlrev_b32 v{vt+1}, 2, v{vt}
        ds_read_b32 v{x}, v{vt+1} offset:{CNT}
        v_lshrrev_b32 v{vt}, 4, v{vt}
        v_mul_u32_u24 v{vt}, {CAPG*4}, v{vt}
        v_and_b32 v{vt+2}, 31, v0
        v_lshlrev_b32 v{vt+2}, 2, v{vt+2}
        v_add_u32 v{vt+2}, s{sgb}, v{vt+2}
        v_mov_b32 v{vt+4}, 0xfffffe
        s_waitcnt lgkmcnt(0)
        v_sub_u32 v{vt}, v{vt}, v{x}
        """)
        for d in ("row_shr:1", "row_shr:2", "row_shr:4", "row_shr:8"):
            a(f"v_add_u32_dpp v{x}, v{x}, v{x} {d} row_mask:0xf bank_mask:0xf bound_ctrl:0\ns_nop 1")
        a(f"""
        v_readlane_b32 s{st0}, v{x}, s{slane}
        v_add_u32 v{vt}, v{vt}, v{x}
        v_cmp_lt_u32 vcc, {(CAPG-32)*4}, v{x}
        ds_write_b32 v{vt+1}, v{vt} offset:{START}
        v_add_u32 v{vt+2}, s{st0}, v{vt+2}
        s_add_u32 s{scount}, s{st0}, 127
        s_lshr_b32 s{scount}, s{scount}, 7
        """)
    def tail():
        a(f"""
        v_lshlrev_b32 v{vt+3}, 3, v{vt+2}
        v_and_b32 v{vt+3}, 128, v{vt+3}
        ds_write2st64_b32 v{vt+2}, v{vt+3}, v{vt+4} offset0:{L1//256} offset1:{L2//256}
        """)
    def place(k):
        a(f"""
        v_add_u32 v{STV+k}, v{STV+k}, v{RANK+k}
        v_lshrrev_b32 v{vt}, 7, v{REC+k}
        v_lshlrev_b32 v{vt+1}, 3, v{STV+k}
        v_mad_u32_u16 v{vt+2}, v{REC+k}, 2, v{EOFF}
        v_and_b32 v{vt+1}, 128, v{vt+1}
        v_and_or_b32 v{vt}, v{vt}, s{csrc}, v{vt+1}
        ds_write2st64_b32 v{STV+k}, v{vt}, v{vt+2} offset0:{L1//256} offset1:{L2//256}
        """)
    scan()
    a("s_cbranch_vccnz K2_SLOW")
    tail()
    for k in range(4):
        a(f"ds_read_b32 v{STV+k}, v{CADDR+k} offset:{START}")
    a("s_waitcnt lgkmcnt(0)")
    for k in range(8):
        a(f"v_cmpx_gt_u32 vcc, -2, v{REC+k}\ns_cbranch_execz K2_PLACED")
        if k == 4:
            for kk in range(4, 8):
                a(f"ds_read_b32 v{STV+kk}, v{CADDR+kk} offset:{START}")
            a("s_waitcnt lgkmcnt(0)")
        place(k)
    a(f"""
    K2_PLACED:
    s_mov_b64 exec, -1
    s_waitcnt vmcnt(0) lgkmcnt(0)
    s_barrier
    """)
    stamp(a, 3)
    a(f"""
    K2_FILL:
    v_and_b32 v{vt}, 31, v0
    v_xor_b32 v{vA1}, 16, v{vH16}
    v_xor_b32 v{vA2}, 4, v{vt}
    v_lshlrev_b32 v{vA2}, 2, v{vA2}
    v_add_u32 v{vA1}, s{sgb}, v{vA1}
    v_add_u32 v{vA2}, s{sgb}, v{vA2}
    """)
    def rd_addr(off):
        return [f"ds_read_b128 {vr(ADDR+4*j,4)}, v{vA1} offset:{L1+off+32*j}" for j in range(4)]
    def rd_l2e(p, off): return f"ds_read_b32 v{L2E+p}, v{vA2} offset:{L2+off}"
    def ld_raw(p, b):
        pre = [f"v_and_b32 v{ADDR+r}, 0x7fff80, v{ADDR+r}" for r in range(16)] if OPT.get("safe") and b == 0 else []
        return pre + [f"buffer_load_dword v{raw(p,b)+r}, v{ADDR+r}, {sr(sT,4)}, 0 offen" + (" offset:128" if b else "") for r in range(16)]
    def ea_addr(p): return f"v_and_or_b32 v{vEa}, v{L2E+p}, s{cm32}, v{vH16}"
    def ld_ea(p): return f"buffer_load_dwordx4 {vr(EA+4*p,4)}, v{vEa}, {sr(sE,4)}, 0 offen"
    def oh_idx(p):
        return [f"v_and_b32 v{vOa}, 30, v{L2E+p}",
                f"v_lshl_add_u32 v{vOa}, v{vOa}, 4, v{vH16}",
                f"ds_read_b128 {vr(OH,4)}, v{vOa} offset:{OHL}"]
    big = "v_mfma_f32_32x32x16_bf16"
    def mE(p, b): return f"{big} {vr(G+16*b,16)}, {vr(EA+4*p,4)}, {vr(WC+4*b,4)}, 0"
    def mA(b): return f"{big} {vr(G+16*b,16)}, {vr(OH,4)}, {vr(AP+4*b,4)}, {vr(G+16*b,16)}"
    def mS(): return f"{big} {vr(SP,16)}, {vr(OH,4)}, {vr(SC,4)}, 0"
    def mG(b, j): return f"{big} {vr(ACC+16*b,16)}, {vr(SP+4*j,4)}, {vr(G+16*b+4*j,4)}, {vr(ACC+16*b,16)}"
    def mP(p, b):
        o = []
        for u in range(2):
            for j in range(4):
                g = vr(G+16*b+4*j, 4)
                o.append(f"v_mfma_f32_4x4x4_16b_bf16 {g}, {vr(PA+2*u,2)}, {vr(raw(p,b)+4*j+2*u,2)}, {g}")
        return o
    def exps(b): return [f"v_exp_f32 v{G+16*b+i}, v{G+16*b+i}" for i in range(16)]
    def adds(b): return [f"v_pk_add_f32 {vr(G+16*b+2*i,2)}, {vr(G+16*b+2*i,2)}, 1.0 op_sel_hi:[1,0]" for i in range(8)]
    def rcps(b): return [f"v_rcp_f32 v{G+16*b+i}, v{G+16*b+i}" for i in range(16)]
    def muls(p, b): return [f"v_pk_mul_f32 {vr(raw(p,b)+2*i,2)}, {vr(G+16*b+2*i,2)}, {vr(raw(p,b)+2*i,2)}" for i in range(8)]
    def cvts(p, b): return [f"v_cvt_pk_bf16_f32 v{G+16*b+i}, v{G+16*b+i}, v{raw(p,b)+i}" for i in range(16)]
    def weave(base, ins):
        out = []; d = {}
        for i, x in ins: d.setdefault(i, []).extend(x if isinstance(x, list) else [x])
        for i, x in enumerate(base):
            out += d.get(i, []); out.append(x)
        out += d.get(len(base), [])
        return out
    def spread(lst, lo, hi):
        n = len(lst)
        return [(lo + (hi-lo)*k//n, x) for k, x in enumerate(lst)]

    a(f"s_cmp_eq_u32 s{scount}, 0\ns_cbranch_scc1 K2_FILLED")
    a.ext(rd_addr(0)); a(rd_l2e(0, 0)); a(rd_l2e(1, 128))
    a("s_waitcnt lgkmcnt(0)")
    a(ea_addr(0)); a.ext(ld_raw(0, 0)); a(ld_ea(0)); a.ext(ld_raw(0, 1))
    a(f"s_cmp_eq_u32 s{scount}, 1\ns_cbranch_scc1 K2_FILLED")
    a.ext(rd_addr(128)); a(ea_addr(1))
    a("s_waitcnt lgkmcnt(0)")
    a.ext(ld_raw(1, 0)); a(ld_ea(1))
    a("K2_FILLED:")
    stamp(a, 4)
    a(f"s_cmp_lg_u32 s{sinit}, 0\ns_cbranch_scc1 K2_NOGEMM")
    XF = G
    accs = [[raw(1,1), raw(1,1)+4], [raw(1,1)+8, raw(1,1)+12], [GA2, GA2+4]]
    assert XL % 256 == 0
    a(f"""
    v_and_b32 v{vt}, 15, v0
    v_bfe_u32 v{vt+1}, v0, 4, 2
    v_xor_b32 v{vt+2}, v{vt}, v{vt+1}
    v_lshlrev_b32 v{vt+2}, 4, v{vt+2}
    v_lshl_add_u32 v{vt+2}, v{vt}, 8, v{vt+2}
    """)
    for s in range(4):
        if s: a(f"v_xor_b32 v{vt+3}, {64*s}, v{vt+2}")
        for nb in range(3):
            a(f"ds_read_b128 {vr(XF+16*nb+4*s,4)}, v{vt+3 if s else vt+2} offset:{XL+4096*nb}")
    a(f"v_mul_u32_u24 v{vt}, {ROWP}, v{vt}")
    for s in range(4):
        a(f"s_waitcnt lgkmcnt({9-3*s})")
        for nb in range(3):
            for ab in range(2):
                d = vr(accs[nb][ab], 4)
                a(f"v_mfma_f32_16x16x32_bf16 {d}, {vr(WT+16*ab+4*s,4)}, {vr(XF+16*nb+4*s,4)}, {'0' if s == 0 else d}")
    a(f"""
    s_cmp_eq_u32 s{sfh}, 0
    s_cbranch_scc0 K2_GU
    s_lshr_b32 s{st0}, s{sg}, 1
    s_lshl_b32 s{st0}, s{st0}, 7
    s_and_b32 s{st1}, s{sg}, 1
    s_lshl_b32 s{st1}, s{st1}, 5
    s_add_u32 s{st0}, s{st0}, s{st1}
    v_lshl_add_u32 v{vt}, v{vt+1}, 3, v{vt}
    v_add_u32 v{vt}, s{st0}, v{vt}
    """)
    for nb in range(3):
        al, be = accs[nb]
        for i in range(4): a(f"v_mul_f32 v{al+i}, s{cnl2e}, v{al+i}\nv_mul_f32 v{be+i}, s{cnl2e}, v{be+i}")
        a(f"""
        v_cvt_pk_bf16_f32 v{XF+4*nb}, v{al}, v{al+2}
        v_cvt_pk_bf16_f32 v{XF+4*nb+1}, v{be}, v{be+2}
        v_cvt_pk_bf16_f32 v{XF+4*nb+2}, v{al+1}, v{al+3}
        v_cvt_pk_bf16_f32 v{XF+4*nb+3}, v{be+1}, v{be+3}
        ds_write_b64 v{vt}, {vr(XF+4*nb,2)} offset:{APL+16*ROWP*nb}
        ds_write_b64 v{vt}, {vr(XF+4*nb+2,2)} offset:{APL+16*ROWP*nb+64}
        """)
    a(f"""
    s_branch K2_GD
    K2_GU:
    s_lshl_b32 s{st0}, s{sg}, 6
    v_lshl_add_u32 v{vt}, v{vt+1}, 4, v{vt}
    v_add_u32 v{vt}, s{st0}, v{vt}
    s_nop 2
    """)
    for nb in range(3):
        al, be = accs[nb]
        a(f"""
        v_cvt_pk_bf16_f32 v{XF+4*nb}, v{al}, v{al+1}
        v_cvt_pk_bf16_f32 v{XF+4*nb+1}, v{al+2}, v{al+3}
        v_cvt_pk_bf16_f32 v{XF+4*nb+2}, v{be}, v{be+1}
        v_cvt_pk_bf16_f32 v{XF+4*nb+3}, v{be+2}, v{be+3}
        ds_write_b128 v{vt}, {vr(XF+4*nb,4)} offset:{UL+16*ROWP*nb}
        """)
    a(f"""
    K2_GD:
    v_bfe_u32 v{vt}, v0, 2, 2
    v_lshrrev_b32 v{vt+1}, 1, v{vH16}
    v_add_u32 v{vt}, v{vt}, v{vt+1}
    v_mul_u32_u24 v{vt}, {ROWP}, v{vt}
    v_bfe_u32 v{vt+2}, v0, 4, 1
    v_lshl_add_u32 v{vt}, v{vt+2}, 5, v{vt}
    v_and_b32 v{vt+2}, 3, v0
    v_lshl_add_u32 v{vt}, v{vt+2}, 3, v{vt}
    s_mul_i32 s{st0}, s{sg}, {GN*ROWP}
    s_lshl_b32 s{st1}, s{sfh}, 7
    s_add_u32 s{st0}, s{st0}, s{st1}
    v_add_u32 v{vt}, s{st0}, v{vt}
    v_mul_u32_u24 v{vt+1}, {ROWP//2}, v{vt+1}
    v_and_b32 v{vt+2}, 31, v0
    v_lshl_add_u32 v{vt+1}, v{vt+2}, 2, v{vt+1}
    v_add_u32 v{vt+1}, s{st0}, v{vt+1}
    s_mov_b32 s{sinit}, 1
    """)
    for r in range(32): a(f"v_mov_b32 v{ACC+r}, 0")
    a(f"""
    s_waitcnt lgkmcnt(0)
    s_barrier
    ds_read_b64_tr_b16 {vr(AP,2)}, v{vt} offset:{APL}
    ds_read_b64_tr_b16 {vr(AP+2,2)}, v{vt} offset:{APL+4*ROWP}
    ds_read_b64_tr_b16 {vr(AP+4,2)}, v{vt} offset:{APL+64}
    ds_read_b64_tr_b16 {vr(AP+6,2)}, v{vt} offset:{APL+4*ROWP+64}
    """)
    for r in range(6): a(f"ds_read_b32 v{UR+r}, v{vt+1} offset:{UL+ROWP*rowoff(r)}")
    a(f"""
    s_waitcnt lgkmcnt(6)
    v_and_b32 v{AP+3}, v{AP+3}, v{vM15}
    v_and_b32 v{AP+7}, v{AP+7}, v{vM15}
    K2_NOGEMM:
    s_cmp_eq_u32 s{scount}, 0
    s_cbranch_scc1 K2_DONE
    """)
    a.ext(oh_idx(0))
    def first(nv):
        a(f"s_waitcnt vmcnt({nv}) lgkmcnt(0)")
        stamp(a, 5)
        a(mE(0, 0)); a(mA(0)); a("s_nop 9"); a.ext(mP(0, 0)); a("s_nop 3")
    def segA(p, loads, first=False):
        q = 1-p
        ex = exps(0)
        if first:
            base = ex; o = 0; ins = []
        else:
            base = cvts(q, 1) + ex; o = 16
            ins = [(6, mG(1, 0)), (12, mG(1, 1)), (17, mG(1, 2)), (20, mG(1, 3))]
        ins += [(o+7, mE(p, 1)), (o+10, mA(1))]
        if loads: ins += spread(ld_raw(q, 1), o, o+16)
        return weave(base, ins)
    def body(p, kind):
        q = 1-p; n = f"{kind}{p}"
        a(f"K2_BODY{n}:")
        a.ext(segA(p, kind != "L"))
        a(f"K2_MID{n}:")
        a.ext(adds(0))
        off = 256 if p == 0 else 384
        P = mP(p, 1)
        ins = [(0, [mS(), f"s_waitcnt vmcnt({0 if kind == 'L' else 33})"])]
        if kind == "F": ins += [(1, rd_addr(off) + [rd_l2e(p, off)])]
        ins += [(4+i + (i>>1), P[i]) for i in range(8)]
        a.ext(weave(rcps(0), ins))
        a.ext(muls(p, 0))
        base = cvts(p, 0) + exps(1)
        ins = [(6, mG(0, 0)), (12, mG(0, 1)), (17, mG(0, 2)), (20, mG(0, 3))]
        if kind != "L":
            ins += [(0, oh_idx(q)), (14, "s_waitcnt lgkmcnt(0)")]
            if kind == "F":
                ins += [(15, ea_addr(p))] + spread(ld_raw(p, 0), 16, 22) + [(22, ld_ea(p))]
            ins += [(23, [f"s_waitcnt vmcnt({33 if kind == 'F' else 16})", mE(q, 0)]), (26, mA(0))]
        a.ext(weave(base, ins))
        a.ext(adds(1))
        ins = []
        if kind != "L":
            P = mP(q, 0)
            ins = [(2+i + (i>>1), P[i]) for i in range(8)]
        a.ext(weave(rcps(1), ins))
        if p == 1 and kind == "F":
            a(f"v_add_u32 v{vA1}, 256, v{vA1}\nv_add_u32 v{vA2}, 256, v{vA2}")
        a.ext(muls(p, 1))
        if kind == "F":
            a(f"s_sub_u32 s{scount}, s{scount}, 1\ns_cmp_eq_u32 s{scount}, 2\ns_cbranch_scc1 K2_BODYP{q}")
    a(f"s_cmp_eq_u32 s{scount}, 1\ns_cbranch_scc0 K2_FIRST2")
    first(16); a.ext(segA(0, False, first=True)); a("s_branch K2_MIDL0")
    a("K2_FIRST2:")
    first(33); a.ext(segA(0, True, first=True))
    a(f"s_cmp_eq_u32 s{scount}, 2\ns_cbranch_scc1 K2_MIDP0\ns_branch K2_MIDF0")
    a(".p2align 6")
    body(0, "F"); body(1, "F")
    a("s_branch K2_BODYF0")
    def drain(p):
        a.ext(weave(cvts(p, 1), [(6, mG(1, 0)), (12, mG(1, 1))]))
        a("s_nop 1"); a(mG(1, 2)); a(mG(1, 3))
    body(0, "P"); body(1, "L"); drain(1); a("s_branch K2_DONE")
    body(1, "P"); body(0, "L"); drain(0)
    a(f"""
    K2_DONE:
    s_cmp_lg_u32 s{sslow}, 0
    s_cbranch_scc1 K2_ROUND
    K2_EPI:
    s_waitcnt lgkmcnt(0)
    """)
    stamp(a, 6)
    T0 = G
    for b in range(2):
        for r in range(6):
            a(f"v_add_f32 v{ACC+16*b+r}, 0x358637bd, v{ACC+16*b+r}")
        for r in range(6):
            a(f"v_rcp_f32 v{ACC+16*b+r}, v{ACC+16*b+r}")
        for r in range(6):
            u, x = T0+12*b+r, T0+12*b+6+r
            if b == 0: a(f"v_lshlrev_b32 v{u}, 16, v{UR+r}\nv_lshlrev_b32 v{x}, 16, v{XR+r}")
            else: a(f"v_and_b32 v{u}, 0xffff0000, v{UR+r}\nv_and_b32 v{x}, 0xffff0000, v{XR+r}")
        for r in range(6):
            u, x = T0+12*b+r, T0+12*b+6+r
            a(f"v_fmac_f32 v{u}, v{ACC+16*b+8+r}, v{ACC+16*b+r}\nv_max_f32 v{u}, 0, v{u}\nv_add_f32 v{u}, v{u}, v{x}")
    for r in range(6):
        a(f"v_cvt_pk_bf16_f32 v{SP+r}, v{T0+r}, v{T0+12+r}")
        a(f"buffer_store_dword v{SP+r}, v{vO if r < 4 else vO2}, {sr(sO,4)}, 0 offen offset:{256*rowoff(r)}")
    stamp(a, 7)
    stamp_out(a, 1, 14, sw, 2)
    a("K2_END:\ns_endpgm")

    a("K2_SLOW:")
    srd(a, sS, 8, None, E*4)
    srd(a, sD, 10, None, E*4)
    a(f"""
    s_mov_b32 s{sslow}, 1
    s_mov_b32 s{cm40}, {-BN}
    s_mov_b32 s{cm10}, {-GN}
    K2_ROUND:
    s_cmp_ge_u32 s{sround}, {E//512}
    s_cbranch_scc1 K2_EPI
    s_lshl_b32 s{st0}, s{sround}, 9
    s_add_u32 s{sround}, s{sround}, 1
    v_add_u32 v{EOFF}, s{st0}, v0
    v_lshlrev_b32 v{vt}, 2, v{EOFF}
    buffer_load_dword v{REC}, v{vt}, {sr(sD,4)}, 0 offen
    buffer_load_dword v{REC+1}, v{vt}, {sr(sS,4)}, 0 offen
    v_lshlrev_b32 v{EOFF}, 5, v{EOFF}
    v_and_b32 v{vt}, 63, v0
    v_lshlrev_b32 v{vt}, 2, v{vt}
    v_mov_b32 v{vt+1}, 0
    s_waitcnt lgkmcnt(0)
    s_barrier
    ds_write_b32 v{vt}, v{vt+1} offset:{CNT}
    v_mov_b32 v{vt+3}, 4
    s_waitcnt vmcnt(0) lgkmcnt(0)
    s_barrier
    """)
    rec_fields(a, REC, REC+2, vt, cm40, cm10)
    a(f"""
    v_cmp_eq_u32 vcc, s2, v{REC+2}
    v_lshl_or_b32 v{REC}, v{REC+1}, 16, v{REC}
    {caddr(0)}
    s_mov_b64 s[78:79], vcc
    s_mov_b64 exec, vcc
    ds_add_rtn_u32 v{RANK}, v{CADDR}, v{vt+3} offset:{CNT}
    s_mov_b64 exec, -1
    s_waitcnt lgkmcnt(0)
    s_barrier
    """)
    scan(); tail()
    a(f"""
    s_mov_b64 exec, s[78:79]
    ds_read_b32 v{STV}, v{CADDR} offset:{START}
    s_waitcnt lgkmcnt(0)
    """)
    place(0)
    a(f"""
    s_mov_b64 exec, -1
    s_waitcnt lgkmcnt(0)
    s_barrier
    s_branch K2_FILL
    """)
    return a.text(), kd("k2_kernel", 244, 102)

def main():
    k1, d1 = gen_k1(); k2, d2 = gen_k2()
    ref = open("standalone__edge_featured_mpnn_gatedgcn__graph.s.ref").read().split("\n")
    out = "\n".join(ref[:13]) + "\n"
    out += f"; @launch kernel=k1_kernel grid=({2*NCH},1,1) block=(1024,1,1) lds={K1_LDS}\n"
    out += f"; @launch kernel=k2_kernel grid=({NBIN},1,1) block=(512,1,1) lds={K2_LDS}\n"
    out += '.amdgcn_target "amdgcn-amd-amdhsa--gfx950"\n.text\n'
    for n, k in (("k1_kernel", k1), ("k2_kernel", k2)):
        out += f".globl {n}\n.p2align 8\n.type {n},@function\n" + k
    out += '.section .rodata,"a"\n.p2align 6\n' + d1.lstrip("\n") + '.p2align 6\n' + d2.lstrip("\n")
    open(sys.argv[1], "w").write(out)

if __name__ == "__main__":
    main()
```

```python
import struct, sys

N = 10000; E = 320000
NCH = 128; CS = 2500
NBIN = 250; BN = 40; GN = 10
CAP = 32
T_OFF = 0x100000
REC_OFF = 0x700000
WT_OFF = 0xB00000
PROF_OFF = 0xF000000
NL2E = struct.unpack("<I", struct.pack("<f", -1.4426950408889634))[0]

def bf(x): return struct.unpack("<I", struct.pack("<f", x))[0] >> 16

OPT = dict(st_r="sc1", st_t="sc1")
for a in sys.argv[2:]:
    k, v = a.split("=", 1); OPT[k] = v

class Asm:
    def __init__(self): self.l = []
    def __call__(self, s):
        for x in s.strip("\n").split("\n"):
            x = x.strip()
            if not x: continue
            if x.startswith(";"): x = "s_nop 0"
            self.l.append(x if x.endswith(":") else "    " + x)
    def ext(self, lst):
        for x in lst: self(x)
    def text(self): return "\n".join(self.l) + "\n"

def stamp(a, i, lvl="1"):
    if OPT.get("prof") and (i in (0, 8) or OPT["prof"] == lvl): a(f"s_memrealtime s[{84+2*i}:{85+2*i}]")
def stamp_out(a, kern, wsreg, sw, vtmp):
    if not OPT.get("prof"): return
    a("s_waitcnt vmcnt(0)")
    stamp(a, 8)
    a(f"""
    s_lshl_b32 s4, s2, 4
    s_add_u32 s4, s4, s{sw}
    s_lshl_b32 s4, s4, 6
    s_add_u32 s4, s4, {PROF_OFF + kern*0x100000}
    s_add_u32 s4, s{wsreg}, s4
    s_addc_u32 s5, s{wsreg+1}, 0
    s_mov_b32 s6, 64
    s_mov_b32 s7, 0x20000
    s_waitcnt lgkmcnt(0)
    """)
    for i in range(9): a(f"v_writelane_b32 v{vtmp}, s{84+2*i}, {i}")
    a(f"""
    v_mbcnt_lo_u32_b32 v{vtmp+1}, -1, 0
    v_mbcnt_hi_u32_b32 v{vtmp+1}, -1, v{vtmp+1}
    v_lshlrev_b32 v{vtmp+1}, 2, v{vtmp+1}
    buffer_store_dword v{vtmp}, v{vtmp+1}, s[4:7], 0 offen
    """)

def vr(b, n): return f"v[{b}:{b+n-1}]"
def sr(b, n): return f"s[{b}:{b+n-1}]"

def srd(a, d, base, add=None, size=None, w3="0x20000", hi_or=None):
    if add is None:
        a(f"s_mov_b32 s{d}, s{base}\ns_mov_b32 s{d+1}, s{base+1}")
    else:
        a(f"s_add_u32 s{d}, s{base}, {add}\ns_addc_u32 s{d+1}, s{base+1}, 0")
    if hi_or: a(f"s_or_b32 s{d+1}, s{d+1}, {hi_or}")
    a(f"s_mov_b32 s{d+2}, {size}\ns_mov_b32 s{d+3}, {w3}")

def kd(name, vgpr, sgpr):
    return f"""
.amdhsa_kernel {name}
  .amdhsa_next_free_vgpr {vgpr}
  .amdhsa_next_free_sgpr {sgpr}
  .amdhsa_accum_offset {(vgpr+3)//4*4}
  .amdhsa_group_segment_fixed_size 0
  .amdhsa_kernarg_size 96
  .amdhsa_user_sgpr_count 2
  .amdhsa_user_sgpr_kernarg_segment_ptr 1
  .amdhsa_system_sgpr_workgroup_id_x 1
.end_amdhsa_kernel
"""

def rec_fields(a, vd, vbin, vtmp, sm40, sm10):
    a(f"""
    v_mul_u32_u24 v{vbin}, 52429, v{vd}
    v_lshrrev_b32 v{vbin}, 21, v{vbin}
    v_mad_i32_i24 v{vd}, v{vbin}, s{sm40}, v{vd}
    v_mul_u32_u24 v{vtmp}, 26, v{vd}
    v_lshrrev_b32 v{vtmp}, 8, v{vtmp}
    v_mad_i32_i24 v{vd}, v{vtmp}, s{sm10}, v{vd}
    v_lshl_or_b32 v{vd}, v{vtmp}, 30, v{vd}
    """)

K1_CNT = 0; K1_STG = 1024; K1_X = 65536; K1_LDS = K1_X + 20480
def gen_k1():
    a = Asm()
    sS, sD, sW1, sW2, sX, sR, sT = 24, 28, 32, 36, 40, 44, 48
    sw, st0, st1, st2, sng, sfb, stask = 52, 53, 54, 55, 56, 57, 58
    c4096, c8192, cm40, cm10, cnl2e, csign, cmag, ctso = 59, 60, 61, 62, 63, 64, 65, 66
    a("k1_kernel:")
    a(f"s_cmp_ge_u32 s2, {2*NCH}\ns_cbranch_scc1 K1_END")
    stamp(a, 0)
    a(f"""
    s_load_dwordx16 s[4:19], s[0:1], 0
    s_load_dwordx2 s[20:21], s[0:1], 64
    s_load_dwordx2 s[22:23], s[0:1], 88
    v_lshrrev_b32 v2, 6, v0
    v_lshlrev_b32 v1, 2, v0
    v_readfirstlane_b32 s{sw}, v2
    s_mov_b32 s{c4096}, 4096
    s_mov_b32 s{c8192}, 8192
    s_cmp_ge_u32 s2, {NCH}
    s_cbranch_scc1 K1_GEMM
    """)
    vD, vS, vB, vSL, vt = 2, 5, 8, 11, 16
    a(f"s_mul_i32 s{st1}, s2, {CS*4}\ns_waitcnt lgkmcnt(0)")
    srd(a, sD, 10, f"s{st1}", CS*4)
    srd(a, sS, 8, f"s{st1}", CS*4)
    for r, so in enumerate(("0", f"s{c4096}", f"s{c8192}")):
        a(f"buffer_load_dword v{vD+r}, v1, {sr(sD,4)}, {so} offen")
        a(f"buffer_load_dword v{vS+r}, v1, {sr(sS,4)}, {so} offen")
    a(f"""
    v_mov_b32 v{vt}, -1
    v_mov_b32 v{vt+1}, -1
    v_mov_b32 v{vt+2}, -1
    v_mov_b32 v{vt+3}, -1
    v_lshlrev_b32 v{vt+4}, 4, v0
    v_mov_b32 v{vt+5}, 0
    v_and_b32 v{vt+6}, 0x3fc, v1
    ds_write_b128 v{vt+4}, {vr(vt,4)} offset:{K1_STG}
    ds_write_b128 v{vt+4}, {vr(vt,4)} offset:{K1_STG+16384}
    ds_write_b32 v{vt+6}, v{vt+5} offset:{K1_CNT}
    s_lshl_b32 s{st0}, s2, 7
    s_add_u32 s{st0}, s{st0}, {REC_OFF}
    """)
    srd(a, sR, 22, f"s{st0}", NBIN*NCH*128)
    a(f"""
    s_mov_b32 s{cm40}, {-BN}
    s_mov_b32 s{cm10}, {-GN}
    v_mov_b32 v{vt+5}, 1
    v_cmp_gt_u32 vcc, {CS-2048}, v0
    s_mov_b64 s[80:81], vcc
    v_lshrrev_b32 v{vt+7}, 3, v0
    v_and_b32 v{vt+8}, 7, v0
    v_lshlrev_b32 v{vt+9}, 14, v{vt+7}
    v_lshl_add_u32 v{vt+9}, v{vt+8}, 4, v{vt+9}
    v_lshlrev_b32 v{vt+7}, 2, v{vt+7}
    v_cmp_eq_u32 s[82:83], 7, v{vt+8}
    s_mov_b32 s{st2}, {128*16384}
    s_waitcnt lgkmcnt(0)
    s_barrier
    """)
    stamp(a, 1)
    for r in range(3):
        a(f"s_waitcnt vmcnt({4-2*r})")
        if r == 0: stamp(a, 2)
        rec_fields(a, vD+r, vB+r, vt, cm40, cm10)
        a(f"v_lshlrev_b32 v{vt}, 2, v{vB+r}")
        if r == 2: a("s_mov_b64 exec, s[80:81]")
        a(f"ds_add_rtn_u32 v{vSL+r}, v{vt}, v{vt+5} offset:{K1_CNT}")
        if r == 2: a("s_mov_b64 exec, -1")
        a(f"""
        v_lshl_or_b32 v{vD+r}, v{vS+r}, 16, v{vD+r}
        v_add_u32 v{vS+r}, {1024*r}, v0
        v_lshl_or_b32 v{vD+r}, v{vS+r}, 4, v{vD+r}
        v_lshlrev_b32 v{vB+r}, 7, v{vB+r}
        """)
    for r in range(3):
        a(f"s_waitcnt lgkmcnt({2-r})" if r == 0 else f"s_waitcnt lgkmcnt({2})" if r == 1 else "s_waitcnt lgkmcnt(2)")
        if r == 2: a("s_mov_b64 exec, s[80:81]")
        a(f"""
        v_lshl_add_u32 v{vB+r}, v{vSL+r}, 2, v{vB+r}
        v_cmpx_gt_u32 vcc, {CAP}, v{vSL+r}
        ds_write_b32 v{vB+r}, v{vD+r} offset:{K1_STG}
        s_mov_b64 exec, -1
        """)
    a("s_waitcnt lgkmcnt(0)")
    stamp(a, 3)
    a("s_barrier")
    stamp(a, 4)
    a(f"""
    ds_read_b128 {vr(vt+12,4)}, v{vt+4} offset:{K1_STG}
    ds_read_b32 v{vt}, v{vt+7} offset:{K1_CNT}
    ds_read_b128 {vr(vt+16,4)}, v{vt+4} offset:{K1_STG+16384}
    ds_read_b32 v{vt+1}, v{vt+7} offset:{K1_CNT+512}
    v_mov_b32 v{vt+2}, -2
    """)
    for k in range(2):
        a(f"""
        s_waitcnt lgkmcnt({2-2*k})
        v_cmp_lt_u32 vcc, {CAP}, v{vt+k}
        s_and_b64 vcc, vcc, s[82:83]
        s_nop 1
        v_cndmask_b32 v{vt+15+4*k}, v{vt+15+4*k}, v{vt+2}, vcc
        buffer_store_dwordx4 {vr(vt+12+4*k,4)}, v{vt+9}, {sr(sR,4)}, {'0' if k == 0 else f's{st2}'} offen {OPT['st_r']}
        """)
    stamp(a, 5); stamp(a, 6); stamp(a, 7)
    stamp_out(a, 0, 22, sw, 2)
    a("s_endpgm")
    vW, vX, vA, vt = 32, 96, 112, 2
    def W(m, ab, s): return vW + 32*m + 16*ab + 4*s
    a(f"""
    K1_GEMM:
    s_sub_u32 s{stask}, s2, {NCH}
    s_and_b32 s{sfb}, s{sw}, 3
    s_lshr_b32 s{sng}, s{sw}, 2
    v_and_b32 v{vt}, 63, v0
    v_lshrrev_b32 v{vt+1}, 4, v{vt}
    v_and_b32 v{vt+2}, 15, v0
    s_lshl_b32 s{st0}, s{sfb}, 2
    v_add_u32 v{vt+3}, s{st0}, v{vt+1}
    v_xor_b32 v{vt+3}, v{vt+3}, v{vt+2}
    v_lshlrev_b32 v{vt+3}, 4, v{vt+3}
    v_lshl_add_u32 v{vt+3}, v{vt+1}, 8, v{vt+3}
    v_lshlrev_b32 v{vt+4}, 2, v{vt+1}
    v_xor_b32 v{vt+4}, v{vt+4}, v{vt+2}
    v_lshlrev_b32 v{vt+4}, 4, v{vt+4}
    v_lshl_add_u32 v{vt+4}, v{vt+1}, 8, v{vt+4}
    s_mul_i32 s{st0}, s{stask}, 20480
    s_cmp_lt_u32 s{stask}, 125
    s_cselect_b32 s{st0}, s{st0}, 0
    s_cselect_b32 s{st2}, 20480, 0
    s_waitcnt lgkmcnt(0)
    s_cmp_ge_u32 s{stask}, 126
    s_cbranch_scc1 K1_WC
    s_add_u32 s{sX}, s4, s{st0}
    s_addc_u32 s{sX+1}, s5, 0
    s_mov_b32 s{sX+2}, s{st2}
    s_mov_b32 s{sX+3}, 0x20000
    s_lshl_b32 s{st1}, s{sw}, 10
    s_add_u32 m0, s{st1}, {K1_X}
    s_cmp_eq_u32 s{stask}, 125
    s_cselect_b64 {sr(sW1,2)}, s[12:13], s[14:15]
    s_cselect_b64 {sr(sW2,2)}, s[18:19], s[20:21]
    buffer_load_dwordx4 v{vt+3}, {sr(sX,4)}, s{st1} offen lds
    s_cmp_lt_u32 s{sw}, 4
    s_cbranch_scc0 K1_X1
    s_add_u32 m0, s{st1}, {K1_X+16384}
    s_add_u32 s{st1}, s{st1}, 16384
    buffer_load_dwordx4 v{vt+3}, {sr(sX,4)}, s{st1} offen lds
    K1_X1:
    s_mov_b32 s{sW1+2}, 32768
    s_mov_b32 s{sW1+3}, 0x20000
    s_mov_b32 s{sW2+2}, 32768
    s_mov_b32 s{sW2+3}, 0x20000
    s_lshl_b32 s{st1}, s{sw}, 11
    s_mov_b32 m0, s{st1}
    s_lshl_b32 s{st0}, s{st0}, 1
    buffer_load_dwordx4 v{vt+4}, {sr(sW1,4)}, s{st1} offen lds
    buffer_load_dwordx4 v{vt+4}, {sr(sW1,4)}, s{st1} offen offset:1024 lds
    s_add_u32 m0, s{st1}, 32768
    s_add_u32 s{st0}, s{st0}, {T_OFF}
    buffer_load_dwordx4 v{vt+4}, {sr(sW2,4)}, s{st1} offen lds
    buffer_load_dwordx4 v{vt+4}, {sr(sW2,4)}, s{st1} offen offset:1024 lds
    """)
    srd(a, sT, 22, f"s{st0}", 40960)
    a(f"""
    v_bfe_u32 v{vt+5}, v0, 2, 2
    v_and_b32 v{vt+6}, 3, v0
    s_lshl_b32 s{st0}, s{sfb}, 2
    v_add_u32 v{vt+6}, s{st0}, v{vt+6}
    v_lshlrev_b32 v{vt+7}, 2, v{vt+5}
    v_xor_b32 v{vt+6}, v{vt+6}, v{vt+7}
    v_lshl_add_u32 v{vt+5}, v{vt+1}, 3, v{vt+5}
    v_lshlrev_b32 v{vt+5}, 8, v{vt+5}
    v_lshl_add_u32 v10, v{vt+6}, 4, v{vt+5}
    v_xor_b32 v11, v{vt+1}, v{vt+2}
    v_lshlrev_b32 v11, 4, v11
    v_lshl_add_u32 v11, v{vt+2}, 8, v11
    s_lshl_b32 s{st0}, s{sng}, 12
    s_add_u32 s{st0}, s{st0}, {K1_X}
    v_add_u32 v11, s{st0}, v11
    v_lshlrev_b32 v12, 9, v{vt+2}
    v_lshl_add_u32 v12, v{vt+1}, 4, v12
    s_lshl_b32 s{st0}, s{sng}, 13
    s_lshr_b32 s{st1}, s{sfb}, 1
    s_lshl_b32 s{st1}, s{st1}, 8
    s_add_u32 s{st0}, s{st0}, s{st1}
    s_and_b32 s{st1}, s{sfb}, 1
    s_lshl_b32 s{st1}, s{st1}, 6
    s_add_u32 s{ctso}, s{st0}, s{st1}
    s_mov_b32 s{cnl2e}, {NL2E:#x}
    s_mov_b32 s{csign}, 0x80000000
    s_mov_b32 s{cmag}, 0x7fff0000
    v_xor_b32 v13, 64, v11
    v_xor_b32 v14, 0x80, v11
    v_xor_b32 v15, 0xc0, v11
    """)
    stamp(a, 1)
    a("s_waitcnt vmcnt(0)")
    stamp(a, 2)
    a("s_barrier")
    stamp(a, 3)
    def xrd(off):
        for s in range(4): a(f"ds_read_b128 {vr(vX+4*s,4)}, v{[11,13,14,15][s]} offset:{off}")
    xrd(0)
    n = 4
    for s in range(4):
        for m in range(2):
            for ab in range(2):
                for u in range(2):
                    a(f"ds_read_b64_tr_b16 {vr(W(m,ab,s)+2*u,2)}, v10 offset:{m*32768+s*8192+u*1024+ab*8}")
        if s < 3: a("s_waitcnt lgkmcnt(6)")
    a(f"s_cmp_eq_u32 s{stask}, 125\ns_cbranch_scc1 K1_WT")
    def mm():
        for s in range(4):
            for m in range(2):
                for ab in range(2):
                    d = vr(vA+8*m+4*ab, 4)
                    a(f"v_mfma_f32_16x16x32_bf16 {d}, {vr(W(m,ab,s),4)}, {vr(vX+4*s,4)}, {'0' if s == 0 else d}")
    def pack(so):
        a("s_nop 7")
        for b in range(2):
            for n_, (ab, i) in enumerate(((0, b), (0, 2+b), (1, b), (1, 2+b))):
                bb = vA+4*ab+i; h = vA+8+4*ab+i; t = 16; o = 20+4*b+n_
                a(f"""
                v_mul_f32 v{bb}, s{cnl2e}, v{bb}
                v_and_b32 v{t}, 0x7fffffff, v{h}
                v_cvt_pk_bf16_f32 v{bb}, v{bb}, v{bb}
                v_max_u32 v{t}, 0x10000, v{t}
                v_and_b32 v{bb}, 0xffff, v{bb}
                v_add_u32 v{t}, 0x8000, v{t}
                v_and_or_b32 v{h}, v{h}, s{csign}, v{bb}
                v_sub_u32 v{t}, v{t}, v{bb}
                v_bfi_b32 v{o}, s{cmag}, v{t}, v{h}
                """)
            a(f"buffer_store_dwordx4 {vr(20+4*b,4)}, v12, {sr(sT,4)}, s{so} offen offset:{128*b} {OPT['st_t']}")
    a("s_waitcnt lgkmcnt(0)")
    mm()
    stamp(a, 4)
    a(f"s_cmp_eq_u32 s{sng}, 0\ns_cbranch_scc0 K1_ONE")
    xrd(16384)
    pack(ctso)
    a(f"s_add_u32 s{ctso}, s{ctso}, 32768\ns_waitcnt lgkmcnt(0)")
    mm()
    a("K1_ONE:")
    pack(ctso)
    stamp(a, 5); stamp(a, 6); stamp(a, 7)
    stamp_out(a, 0, 22, sw, 2)
    a("s_endpgm")
    a("K1_WT:")
    srd(a, sT, 22, WT_OFF, 65536)
    a(f"""
    s_cmp_ge_u32 s{sw}, 8
    s_cbranch_scc1 K1_END
    v_lshlrev_b32 v{vt+1}, 4, v{vt}
    s_lshl_b32 s{st0}, s{sw}, 13
    s_add_u32 s{st1}, s{st0}, 4096
    s_waitcnt lgkmcnt(0)
    s_cmp_eq_u32 s{sng}, 0
    s_cbranch_scc0 K1_WU
    """)
    for m in range(2):
        for ab in range(2):
            for s in range(4):
                a(f"buffer_store_dwordx4 {vr(W(m,ab,s),4)}, v{vt+1}, {sr(sT,4)}, s{st1 if ab else st0} offen offset:{1024*s}")
        a("s_endpgm")
        if m == 0: a("K1_WU:")
    a("K1_WC:")
    srd(a, sT, 22, WT_OFF+65536, 4096)
    srd(a, sW1, 16, None, 4096)
    a(f"""
    s_cmp_eq_u32 s{stask}, 126
    s_cbranch_scc0 K1_END
    s_cmp_ge_u32 s{sw}, 4
    s_cbranch_scc1 K1_END
    v_lshrrev_b32 v{vt+2}, 5, v{vt}
    v_and_b32 v{vt+3}, 31, v0
    v_lshlrev_b32 v{vt+3}, 2, v{vt+3}
    v_lshl_add_u32 v{vt+3}, v{vt+2}, 11, v{vt+3}
    v_lshlrev_b32 v{vt+1}, 4, v{vt}
    s_lshr_b32 s{st1}, s{sw}, 1
    s_lshl_b32 s{st1}, s{st1}, 7
    s_and_b32 s{st0}, s{sw}, 1
    s_lshl_b32 s{st0}, s{st0}, 1
    s_add_u32 s{st1}, s{st1}, s{st0}
    s_lshl_b32 s{st0}, s{sw}, 10
    s_mov_b32 s{cnl2e}, {NL2E:#x}
    """)
    for j in range(8):
        a(f"buffer_load_ushort v{20+j}, v{vt+3}, {sr(sW1,4)}, s{st1} offen offset:{256*j}")
    a("s_waitcnt vmcnt(0)")
    for j in range(8):
        a(f"v_lshlrev_b32 v{20+j}, 16, v{20+j}\nv_mul_f32 v{20+j}, s{cnl2e}, v{20+j}")
    for j in range(4):
        a(f"v_cvt_pk_bf16_f32 v{28+j}, v{20+2*j}, v{21+2*j}")
    a(f"buffer_store_dwordx4 v[28:31], v{vt+1}, {sr(sT,4)}, s{st0} offen")
    a("K1_END:\ns_endpgm")
    return a.text(), kd("k1_kernel", 128, 102)

CAPG = 640
CNT = 0; START = 256; OHL = 512; L1 = 1024; L2 = L1 + 4*CAPG*4; APL = L2 + 4*CAPG*4
ROWP = 272
UL = APL + 48*ROWP; XL = UL + 48*ROWP; K2_LDS = XL + 12288

def gen_k2():
    a = Asm()
    sREC, sX, sWT, sT, sE, sO, sD, sS = 24, 28, 32, 36, 40, 44, 68, 72
    sw, sg, sfh, st0, st1, st2 = 48, 49, 50, 51, 52, 53
    scount, sslow, sround, sinit, sgb, slane = 54, 55, 56, 57, 58, 59
    cm32, c128, cnl2e, cfc, csrc, cm40, cm10 = 60, 61, 62, 63, 64, 65, 66
    vH16, vA1, vA2, vM15 = 1, 2, 3, 4
    vt = 5
    WC = 12; AP = 20; PA = 28; SC = 32; OH = 36; EA = 40; L2E = 48; vEa = 50; vOa = 51
    ADDR = 52; ACC = 68; G = 100; SP = 132; RAW = 148
    XR = 212; UR = 218; vO = 224; vO2 = 225; GA2 = 226; REC = 234; EOFF = 242
    raw = lambda p, b: RAW + 32*p + 16*b
    WT = ACC; CADDR = G; RANK = G+8; STV = G+16; Z = SP

    a("k2_kernel:")
    a(f"s_cmp_ge_u32 s2, {NBIN}\ns_cbranch_scc1 K2_END")
    stamp(a, 0)
    a(f"""
    s_load_dwordx8 s[4:11], s[0:1], 0
    s_load_dwordx2 s[12:13], s[0:1], 72
    s_load_dwordx2 s[14:15], s[0:1], 88
    v_lshrrev_b32 v{vt}, 6, v0
    v_lshrrev_b32 v{vt+1}, 2, v0
    v_readfirstlane_b32 s{sw}, v{vt}
    v_and_b32 v{vt+2}, 3, v0
    v_lshlrev_b32 v{vt+3}, 7, v{vt+1}
    v_lshl_add_u32 v{vt+3}, v{vt+2}, 4, v{vt+3}
    s_lshl_b32 s{st0}, s2, 14
    s_add_u32 s{st0}, s{st0}, {REC_OFF}
    v_mul_u32_u24 v{EOFF}, {CS*32}, v{vt+1}
    s_waitcnt lgkmcnt(0)
    """)
    srd(a, sREC, 14, f"s{st0}", 16384)
    for r in range(2):
        a(f"buffer_load_dwordx4 {vr(REC+4*r,4)}, v{vt+3}, {sr(sREC,4)}, 0 offen offset:{64*r}")
    a(f"""
    v_cmp_gt_u32 vcc, 128, v0
    s_and_saveexec_b64 s[76:77], vcc
    v_lshlrev_b32 v{vt+3}, 2, v0
    v_mov_b32 v{Z}, 0
    ds_write_b32 v{vt+3}, v{Z} offset:{CNT}
    v_lshrrev_b32 v{vt+4}, 3, v0
    v_and_b32 v{Z+4}, 7, v0
    v_lshlrev_b32 v{Z+5}, 1, v{Z+4}
    v_mov_b32 v{Z+6}, 0x3f80
    v_mov_b32 v{Z+7}, 0x3f800000
    v_cmp_eq_u32 vcc, v{Z+5}, v{vt+4}
    v_add_u32 v{Z+5}, 1, v{Z+5}
    s_nop 0
    v_cndmask_b32 v{Z+8}, 0, v{Z+6}, vcc
    v_cmp_eq_u32 vcc, v{Z+5}, v{vt+4}
    v_cmp_eq_u32 s[78:79], 7, v{Z+4}
    s_or_b64 vcc, vcc, s[78:79]
    s_nop 1
    v_cndmask_b32 v{Z+9}, 0, v{Z+7}, vcc
    v_or_b32 v{Z+8}, v{Z+8}, v{Z+9}
    v_cmp_gt_u32 vcc, 15, v{vt+4}
    s_nop 1
    v_cndmask_b32 v{Z+8}, 0, v{Z+8}, vcc
    ds_write_b32 v{vt+3}, v{Z+8} offset:{OHL}
    s_mov_b64 exec, s[76:77]
    s_mul_i32 s{st0}, s2, {BN*256}
    s_and_b32 s{sg}, s{sw}, 3
    s_lshr_b32 s{sfh}, s{sw}, 2
    """)
    srd(a, sX, 4, f"s{st0}", BN*256)
    srd(a, sO, 12, f"s{st0}", BN*256)
    srd(a, sWT, 14, WT_OFF, 65536+4096)
    a(f"""
    v_and_b32 v{vt}, 63, v0
    v_lshrrev_b32 v{vt+4}, 4, v{vt}
    s_lshl_b32 s{st1}, s{sg}, 2
    v_add_u32 v{vA1}, s{st1}, v{vt+4}
    v_and_b32 v{vA2}, 15, v0
    v_xor_b32 v{vA1}, v{vA1}, v{vA2}
    v_lshlrev_b32 v{vA1}, 4, v{vA1}
    v_lshl_add_u32 v{vA1}, v{vt+4}, 8, v{vA1}
    v_lshlrev_b32 v{vA2}, 4, v{vt}
    v_lshrrev_b32 v{vt+3}, 5, v{vt}
    v_and_b32 v{vt+4}, 31, v0
    s_mul_i32 s{st0}, s{sg}, {GN*256}
    s_lshl_b32 s{st1}, s{sfh}, 7
    s_add_u32 s{st0}, s{st0}, s{st1}
    v_lshlrev_b32 v{vO}, 2, v{vt+4}
    v_lshl_add_u32 v{vO}, v{vt+3}, 10, v{vO}
    v_add_u32 v{vO}, s{st0}, v{vO}
    s_lshl_b32 s{st1}, s{sw}, 10
    s_add_u32 m0, s{st1}, {XL}
    s_waitcnt lgkmcnt(0)
    s_barrier
    """)
    stamp(a, 1)
    a(f"""
    buffer_load_dwordx4 v{vA1}, {sr(sX,4)}, s{st1} offen lds
    s_add_u32 m0, s{st1}, {XL+8192}
    s_add_u32 s{st2}, s{st1}, 8192
    s_cmp_lt_u32 s{sw}, 4
    s_cselect_b32 s{sX+2}, {BN*256}, 0
    buffer_load_dwordx4 v{vA1}, {sr(sX,4)}, s{st2} offen lds
    s_mov_b32 s{sX+2}, {BN*256}
    s_lshl_b32 s{st1}, s{sw}, 13
    s_add_u32 s{st2}, s{st1}, 4096
    """)
    for k in range(8):
        a(f"buffer_load_dwordx4 {vr(WT+4*k,4)}, v{vA2}, {sr(sWT,4)}, s{st2 if k >= 4 else st1} offen offset:{1024*(k&3)}")
    a(f"""
    s_lshl_b32 s{st1}, s{sfh}, 11
    s_add_u32 s{st1}, s{st1}, 65536
    buffer_load_dwordx4 {vr(WC,4)}, v{vA2}, {sr(sWT,4)}, s{st1} offen
    buffer_load_dwordx4 {vr(WC+4,4)}, v{vA2}, {sr(sWT,4)}, s{st1} offen offset:1024
    """)
    rowoff = lambda r: 8*(r >> 2) + (r & 3)
    for r in range(6):
        a(f"buffer_load_dword v{XR+r}, v{vO}, {sr(sX,4)}, 0 offen offset:{256*rowoff(r)}")
    NPRE = 18
    a(f"s_lshl_b32 s{st0}, s{sfh}, 8\ns_add_u32 s{st0}, s{st0}, {T_OFF-128}")
    if OPT.get("notid"): srd(a, sT, 14, f"s{st0}", 0x800000)
    else: srd(a, sT, 14, f"s{st0}", 64, w3="0x800000", hi_or="0x40000")
    srd(a, sE, 6, None, E*32)
    a(f"""
    s_mov_b32 s{cm32}, {'0x7e0' if 'e' in OPT.get('nomem','') else '0xffffffe0'}
    s_mov_b32 s{c128}, 128
    s_mov_b32 s{cnl2e}, {NL2E:#x}
    s_mov_b32 s{cfc}, 0xfc
    s_mov_b32 s{csrc}, {'0x3e00' if 't' in OPT.get('nomem','') else '0x7ffe00'}
    s_mov_b32 s{sslow}, 0
    s_mov_b32 s{sround}, 0
    s_mov_b32 s{sinit}, 0
    s_mul_i32 s{sgb}, s{sg}, {CAPG*4}
    s_lshl_b32 s{slane}, s{sg}, 4
    s_add_u32 s{slane}, s{slane}, 15
    v_lshlrev_b32 v{vH16}, 4, v{vt+3}
    v_cmp_eq_u32 vcc, 0, v{vt+3}
    v_mov_b32 v{vM15}, 0xffff
    v_mov_b32 v{Z+4}, -1
    v_mov_b32 v{Z+5}, 0x80000000
    v_cndmask_b32 v{vM15}, v{vM15}, v{Z+4}, vcc
    v_cndmask_b32 v{vO2}, v{Z+5}, v{vO}, vcc
    v_and_b32 v{Z+4}, 3, v0
    v_mov_b32 v{Z+6}, 0x3f80
    """)
    for i in range(4):
        a(f"v_cmp_eq_u32 vcc, {i}, v{Z+4}\ns_nop 1\nv_cndmask_b32 v{PA+i}, 0, v{Z+6}, vcc")
    den = bf(127*2.0**-116); tiny = bf(2.0**-100)
    a(f"""
    v_cmp_gt_u32 s[78:79], 16, v{vt+4}
    v_mov_b32 v{Z+5}, {den:#x}
    v_mov_b32 v{Z+7}, {tiny<<16:#x}
    v_cndmask_b32 v{Z+5}, v{Z+6}, v{Z+5}, s[78:79]
    v_cndmask_b32 v{Z+7}, 0, v{Z+7}, s[78:79]
    v_and_b32 v{Z+4}, 15, v0
    v_lshlrev_b32 v{Z+8}, 3, v{vt+3}
    v_sub_u32 v{Z+4}, v{Z+4}, v{Z+8}
    v_lshlrev_b32 v{Z+6}, 16, v{Z+5}
    """)
    for d in range(4):
        a(f"""
        v_cmp_eq_u32 vcc, {2*d}, v{Z+4}
        v_cmp_eq_u32 s[78:79], {2*d+1}, v{Z+4}
        s_nop 0
        v_cndmask_b32 v{SC+d}, 0, v{Z+5}, vcc
        v_cndmask_b32 v{Z+8}, 0, v{Z+6}, s[78:79]
        v_or_b32 v{SC+d}, v{SC+d}, v{Z+8}
        """)
    a(f"""
    v_and_b32 v{SC+3}, v{SC+3}, v{vM15}
    v_not_b32 v{Z+8}, v{vM15}
    v_and_b32 v{Z+8}, v{Z+8}, v{Z+7}
    v_or_b32 v{SC+3}, v{SC+3}, v{Z+8}
    """)
    for r in range(16): a(f"v_mov_b32 v{ADDR+r}, 128")
    a(f"""
    v_mov_b32 v{vt+3}, 4
    s_waitcnt vmcnt({NPRE})
    """)
    stamp(a, 2)
    a(f"""
    v_cmp_eq_u32 vcc, -2, v{REC+7}
    s_cbranch_vccz K2_NOOVF
    v_mov_b32 v{vt+4}, 0x10000
    v_mov_b32 v{vt}, 60
    ds_add_u32 v{vt}, v{vt+4} offset:{CNT}
    K2_NOOVF:
    """)
    def caddr(k): return f"v_and_b32_sdwa v{CADDR+k}, s{cfc}, v{REC+k} dst_sel:DWORD dst_unused:UNUSED_PAD src0_sel:DWORD src1_sel:BYTE_3"
    for k in range(8):
        a(f"""
        v_cmpx_gt_u32 vcc, -2, v{REC+k}
        s_cbranch_execz K2_CNT_DONE
        {caddr(k)}
        ds_add_rtn_u32 v{RANK+k}, v{CADDR+k}, v{vt+3} offset:{CNT}
        """)
    a(f"""
    K2_CNT_DONE:
    s_mov_b64 exec, -1
    s_waitcnt lgkmcnt(0)
    s_barrier
    """)
    def scan():
        x = STV + 8
        a(f"""
        v_and_b32 v{vt}, 63, v0
        v_lshlrev_b32 v{vt+1}, 2, v{vt}
        ds_read_b32 v{x}, v{vt+1} offset:{CNT}
        v_lshrrev_b32 v{vt}, 4, v{vt}
        v_mul_u32_u24 v{vt}, {CAPG*4}, v{vt}
        v_and_b32 v{vt+2}, 31, v0
        v_lshlrev_b32 v{vt+2}, 2, v{vt+2}
        v_add_u32 v{vt+2}, s{sgb}, v{vt+2}
        v_mov_b32 v{vt+4}, 0xfffffe
        s_waitcnt lgkmcnt(0)
        v_sub_u32 v{vt}, v{vt}, v{x}
        """)
        for d in ("row_shr:1", "row_shr:2", "row_shr:4", "row_shr:8"):
            a(f"v_add_u32_dpp v{x}, v{x}, v{x} {d} row_mask:0xf bank_mask:0xf bound_ctrl:0\ns_nop 1")
        a(f"""
        v_readlane_b32 s{st0}, v{x}, s{slane}
        v_add_u32 v{vt}, v{vt}, v{x}
        v_cmp_lt_u32 vcc, {(CAPG-32)*4}, v{x}
        ds_write_b32 v{vt+1}, v{vt} offset:{START}
        v_add_u32 v{vt+2}, s{st0}, v{vt+2}
        s_add_u32 s{scount}, s{st0}, 127
        s_lshr_b32 s{scount}, s{scount}, 7
        """)
    def tail():
        a(f"""
        v_lshlrev_b32 v{vt+3}, 3, v{vt+2}
        v_and_b32 v{vt+3}, 128, v{vt+3}
        ds_write2st64_b32 v{vt+2}, v{vt+3}, v{vt+4} offset0:{L1//256} offset1:{L2//256}
        """)
    def place(k):
        a(f"""
        v_add_u32 v{STV+k}, v{STV+k}, v{RANK+k}
        v_lshrrev_b32 v{vt}, 7, v{REC+k}
        v_lshlrev_b32 v{vt+1}, 3, v{STV+k}
        v_mad_u32_u16 v{vt+2}, v{REC+k}, 2, v{EOFF}
        v_and_b32 v{vt+1}, 128, v{vt+1}
        v_and_or_b32 v{vt}, v{vt}, s{csrc}, v{vt+1}
        ds_write2st64_b32 v{STV+k}, v{vt}, v{vt+2} offset0:{L1//256} offset1:{L2//256}
        """)
    scan()
    a("s_cbranch_vccnz K2_SLOW")
    tail()
    for k in range(4):
        a(f"ds_read_b32 v{STV+k}, v{CADDR+k} offset:{START}")
    a("s_waitcnt lgkmcnt(0)")
    for k in range(8):
        a(f"v_cmpx_gt_u32 vcc, -2, v{REC+k}\ns_cbranch_execz K2_PLACED")
        if k == 4:
            for kk in range(4, 8):
                a(f"ds_read_b32 v{STV+kk}, v{CADDR+kk} offset:{START}")
            a("s_waitcnt lgkmcnt(0)")
        place(k)
    a(f"""
    K2_PLACED:
    s_mov_b64 exec, -1
    s_waitcnt vmcnt(0) lgkmcnt(0)
    s_barrier
    """)
    stamp(a, 3)
    a(f"""
    K2_FILL:
    v_and_b32 v{vt}, 31, v0
    v_xor_b32 v{vA1}, 16, v{vH16}
    v_xor_b32 v{vA2}, 4, v{vt}
    v_lshlrev_b32 v{vA2}, 2, v{vA2}
    v_add_u32 v{vA1}, s{sgb}, v{vA1}
    v_add_u32 v{vA2}, s{sgb}, v{vA2}
    """)
    def rd_addr(off):
        return [f"ds_read_b128 {vr(ADDR+4*j,4)}, v{vA1} offset:{L1+off+32*j}" for j in range(4)]
    def rd_l2e(p, off): return f"ds_read_b32 v{L2E+p}, v{vA2} offset:{L2+off}"
    def ld_raw(p, b):
        pre = [f"v_and_b32 v{ADDR+r}, 0x7fff80, v{ADDR+r}" for r in range(16)] if OPT.get("safe") and b == 0 else []
        if OPT.get("noload"): return ["s_nop 0"]
        return pre + [f"buffer_load_dword v{raw(p,b)+r}, v{ADDR+r}, {sr(sT,4)}, 0 offen" + (" offset:128" if b else "") for r in range(16)]
    def ea_addr(p): return f"v_and_or_b32 v{vEa}, v{L2E+p}, s{cm32}, v{vH16}"
    def ld_ea(p): return f"buffer_load_dwordx4 {vr(EA+4*p,4)}, v{vEa}, {sr(sE,4)}, 0 offen"
    def oh_idx(p):
        return [f"v_and_b32 v{vOa}, 30, v{L2E+p}",
                f"v_lshl_add_u32 v{vOa}, v{vOa}, 4, v{vH16}",
                f"ds_read_b128 {vr(OH,4)}, v{vOa} offset:{OHL}"]
    big = "v_mfma_f32_32x32x16_bf16" if not OPT.get("nobig") else "; "
    def mE(p, b): return f"{big} {vr(G+16*b,16)}, {vr(EA+4*p,4)}, {vr(WC+4*b,4)}, 0"
    def mA(b): return f"{big} {vr(G+16*b,16)}, {vr(OH,4)}, {vr(AP+4*b,4)}, {vr(G+16*b,16)}"
    def mS(): return f"{big} {vr(SP,16)}, {vr(OH,4)}, {vr(SC,4)}, 0"
    def mG(b, j): return f"{big} {vr(ACC+16*b,16)}, {vr(SP+4*j,4)}, {vr(G+16*b+4*j,4)}, {vr(ACC+16*b,16)}"
    def mP(p, b):
        o = []
        if OPT.get("nop"): return ["s_nop 0"]*8
        for u in range(2):
            for j in range(4):
                g = vr(G+16*b+4*j, 4)
                o.append(f"v_mfma_f32_4x4x4_16b_bf16 {g}, {vr(PA+2*u,2)}, {vr(raw(p,b)+4*j+2*u,2)}, {g}")
        return o
    tr_e = "v_mov_b32" if OPT.get("notrans") else "v_exp_f32"
    tr_r = "v_mov_b32" if OPT.get("notrans") else "v_rcp_f32"
    def exps(b): return [f"{tr_e} v{G+16*b+i}, v{G+16*b+i}" for i in range(16)]
    def adds(b): return [f"v_pk_add_f32 {vr(G+16*b+2*i,2)}, {vr(G+16*b+2*i,2)}, 1.0 op_sel_hi:[1,0]" for i in range(8)]
    def rcps(b): return [f"{tr_r} v{G+16*b+i}, v{G+16*b+i}" for i in range(16)]
    def muls(p, b): return [f"v_pk_mul_f32 {vr(raw(p,b)+2*i,2)}, {vr(G+16*b+2*i,2)}, {vr(raw(p,b)+2*i,2)}" for i in range(8)]
    def cvts(p, b): return [f"v_cvt_pk_bf16_f32 v{G+16*b+i}, v{G+16*b+i}, v{raw(p,b)+i}" for i in range(16)]
    def weave(base, ins):
        out = []; d = {}
        for i, x in ins: d.setdefault(i, []).extend(x if isinstance(x, list) else [x])
        for i, x in enumerate(base):
            out += d.get(i, []); out.append(x)
        out += d.get(len(base), [])
        return out
    def spread(lst, lo, hi):
        n = len(lst)
        return [(lo + (hi-lo)*k//n, x) for k, x in enumerate(lst)]

    a(f"s_cmp_eq_u32 s{scount}, 0\ns_cbranch_scc1 K2_FILLED")
    a.ext(rd_addr(0)); a(rd_l2e(0, 0)); a(rd_l2e(1, 128))
    a("s_waitcnt lgkmcnt(0)")
    a(ea_addr(0)); a.ext(ld_raw(0, 0)); a(ld_ea(0)); a.ext(ld_raw(0, 1))
    a(f"s_cmp_eq_u32 s{scount}, 1\ns_cbranch_scc1 K2_FILLED")
    a.ext(rd_addr(128)); a(ea_addr(1))
    a("s_waitcnt lgkmcnt(0)")
    a.ext(ld_raw(1, 0)); a(ld_ea(1))
    a("K2_FILLED:")
    stamp(a, 4)
    a(f"s_cmp_lg_u32 s{sinit}, 0\ns_cbranch_scc1 K2_NOGEMM")
    XF = G
    accs = [[raw(1,1), raw(1,1)+4], [raw(1,1)+8, raw(1,1)+12], [GA2, GA2+4]]
    assert XL % 256 == 0
    a(f"""
    v_and_b32 v{vt}, 15, v0
    v_bfe_u32 v{vt+1}, v0, 4, 2
    v_xor_b32 v{vt+2}, v{vt}, v{vt+1}
    v_lshlrev_b32 v{vt+2}, 4, v{vt+2}
    v_lshl_add_u32 v{vt+2}, v{vt}, 8, v{vt+2}
    """)
    for s in range(4):
        if s: a(f"v_xor_b32 v{vt+3}, {64*s}, v{vt+2}")
        for nb in range(3):
            a(f"ds_read_b128 {vr(XF+16*nb+4*s,4)}, v{vt+3 if s else vt+2} offset:{XL+4096*nb}")
    a(f"v_mul_u32_u24 v{vt}, {ROWP}, v{vt}")
    for s in range(4):
        a(f"s_waitcnt lgkmcnt({9-3*s})")
        for nb in range(3):
            for ab in range(2):
                d = vr(accs[nb][ab], 4)
                a(f"v_mfma_f32_16x16x32_bf16 {d}, {vr(WT+16*ab+4*s,4)}, {vr(XF+16*nb+4*s,4)}, {'0' if s == 0 else d}")
    a(f"""
    s_cmp_eq_u32 s{sfh}, 0
    s_cbranch_scc0 K2_GU
    s_lshr_b32 s{st0}, s{sg}, 1
    s_lshl_b32 s{st0}, s{st0}, 7
    s_and_b32 s{st1}, s{sg}, 1
    s_lshl_b32 s{st1}, s{st1}, 5
    s_add_u32 s{st0}, s{st0}, s{st1}
    v_lshl_add_u32 v{vt}, v{vt+1}, 3, v{vt}
    v_add_u32 v{vt}, s{st0}, v{vt}
    """)
    for nb in range(3):
        al, be = accs[nb]
        for i in range(4): a(f"v_mul_f32 v{al+i}, s{cnl2e}, v{al+i}\nv_mul_f32 v{be+i}, s{cnl2e}, v{be+i}")
        a(f"""
        v_cvt_pk_bf16_f32 v{XF+4*nb}, v{al}, v{al+2}
        v_cvt_pk_bf16_f32 v{XF+4*nb+1}, v{be}, v{be+2}
        v_cvt_pk_bf16_f32 v{XF+4*nb+2}, v{al+1}, v{al+3}
        v_cvt_pk_bf16_f32 v{XF+4*nb+3}, v{be+1}, v{be+3}
        ds_write_b64 v{vt}, {vr(XF+4*nb,2)} offset:{APL+16*ROWP*nb}
        ds_write_b64 v{vt}, {vr(XF+4*nb+2,2)} offset:{APL+16*ROWP*nb+64}
        """)
    a(f"""
    s_branch K2_GD
    K2_GU:
    s_lshl_b32 s{st0}, s{sg}, 6
    v_lshl_add_u32 v{vt}, v{vt+1}, 4, v{vt}
    v_add_u32 v{vt}, s{st0}, v{vt}
    s_nop 2
    """)
    for nb in range(3):
        al, be = accs[nb]
        a(f"""
        v_cvt_pk_bf16_f32 v{XF+4*nb}, v{al}, v{al+1}
        v_cvt_pk_bf16_f32 v{XF+4*nb+1}, v{al+2}, v{al+3}
        v_cvt_pk_bf16_f32 v{XF+4*nb+2}, v{be}, v{be+1}
        v_cvt_pk_bf16_f32 v{XF+4*nb+3}, v{be+2}, v{be+3}
        ds_write_b128 v{vt}, {vr(XF+4*nb,4)} offset:{UL+16*ROWP*nb}
        """)
    a(f"""
    K2_GD:
    v_bfe_u32 v{vt}, v0, 2, 2
    v_lshrrev_b32 v{vt+1}, 1, v{vH16}
    v_add_u32 v{vt}, v{vt}, v{vt+1}
    v_mul_u32_u24 v{vt}, {ROWP}, v{vt}
    v_bfe_u32 v{vt+2}, v0, 4, 1
    v_lshl_add_u32 v{vt}, v{vt+2}, 5, v{vt}
    v_and_b32 v{vt+2}, 3, v0
    v_lshl_add_u32 v{vt}, v{vt+2}, 3, v{vt}
    s_mul_i32 s{st0}, s{sg}, {GN*ROWP}
    s_lshl_b32 s{st1}, s{sfh}, 7
    s_add_u32 s{st0}, s{st0}, s{st1}
    v_add_u32 v{vt}, s{st0}, v{vt}
    v_mul_u32_u24 v{vt+1}, {ROWP//2}, v{vt+1}
    v_and_b32 v{vt+2}, 31, v0
    v_lshl_add_u32 v{vt+1}, v{vt+2}, 2, v{vt+1}
    v_add_u32 v{vt+1}, s{st0}, v{vt+1}
    s_mov_b32 s{sinit}, 1
    """)
    for r in range(32): a(f"v_mov_b32 v{ACC+r}, 0")
    a(f"""
    s_waitcnt lgkmcnt(0)
    s_barrier
    ds_read_b64_tr_b16 {vr(AP,2)}, v{vt} offset:{APL}
    ds_read_b64_tr_b16 {vr(AP+2,2)}, v{vt} offset:{APL+4*ROWP}
    ds_read_b64_tr_b16 {vr(AP+4,2)}, v{vt} offset:{APL+64}
    ds_read_b64_tr_b16 {vr(AP+6,2)}, v{vt} offset:{APL+4*ROWP+64}
    """)
    for r in range(6): a(f"ds_read_b32 v{UR+r}, v{vt+1} offset:{UL+ROWP*rowoff(r)}")
    a(f"""
    s_waitcnt lgkmcnt(6)
    v_and_b32 v{AP+3}, v{AP+3}, v{vM15}
    v_and_b32 v{AP+7}, v{AP+7}, v{vM15}
    K2_NOGEMM:
    s_cmp_eq_u32 s{scount}, 0
    s_cbranch_scc1 K2_DONE
    """)
    a.ext(oh_idx(0))
    def first(nv):
        a(f"s_waitcnt vmcnt({nv}) lgkmcnt(0)")
        stamp(a, 5); stamp(a, 5, "3")
        if OPT.get("prof") == "3": a(f"s_memtime s[86:87]\ns_mov_b32 s90, s{scount}\ns_getreg_b32 s92, hwreg(HW_REG_HW_ID)")
        a(mE(0, 0)); a(mA(0)); a("s_nop 9"); a.ext(mP(0, 0)); a("s_nop 3")
    def segA(p, loads, first=False):
        q = 1-p
        ex = exps(0)
        if first:
            base = ex; o = 0; ins = []
        else:
            base = cvts(q, 1) + ex; o = 16
            ins = [(6, mG(1, 0)), (12, mG(1, 1)), (17, mG(1, 2)), (20, mG(1, 3))]
        ins += [(o+7, mE(p, 1)), (o+10, mA(1))]
        if loads: ins += spread(ld_raw(q, 1), o, o+16)
        return weave(base, ins)
    def body(p, kind):
        q = 1-p; n = f"{kind}{p}"
        a(f"K2_BODY{n}:")
        a.ext(segA(p, kind != "L"))
        a(f"K2_MID{n}:")
        a.ext(adds(0))
        off = 256 if p == 0 else 384
        P = mP(p, 1)
        ins = [(0, [mS(), f"s_waitcnt vmcnt({0 if kind == 'L' else 33})"])]
        if kind == "F": ins += [(1, rd_addr(off) + [rd_l2e(p, off)])]
        ins += [(4+i + (i>>1), P[i]) for i in range(8)]
        a.ext(weave(rcps(0), ins))
        a.ext(muls(p, 0))
        base = cvts(p, 0) + exps(1)
        ins = [(6, mG(0, 0)), (12, mG(0, 1)), (17, mG(0, 2)), (20, mG(0, 3))]
        if kind != "L":
            ins += [(0, oh_idx(q)), (14, "s_waitcnt lgkmcnt(0)")]
            if kind == "F":
                ins += [(15, ea_addr(p))] + spread(ld_raw(p, 0), 16, 22) + [(22, ld_ea(p))]
            ins += [(23, [f"s_waitcnt vmcnt({33 if kind == 'F' else 16})", mE(q, 0)]), (26, mA(0))]
        a.ext(weave(base, ins))
        a.ext(adds(1))
        ins = []
        if kind != "L":
            P = mP(q, 0)
            ins = [(2+i + (i>>1), P[i]) for i in range(8)]
        a.ext(weave(rcps(1), ins))
        if p == 1 and kind == "F":
            a(f"v_add_u32 v{vA1}, 256, v{vA1}\nv_add_u32 v{vA2}, 256, v{vA2}")
        a.ext(muls(p, 1))
        if kind == "F":
            a(f"s_sub_u32 s{scount}, s{scount}, 1\ns_cmp_eq_u32 s{scount}, 2\ns_cbranch_scc1 K2_BODYP{q}")
    a(f"s_cmp_eq_u32 s{scount}, 1\ns_cbranch_scc0 K2_FIRST2")
    first(16); a.ext(segA(0, False, first=True)); a("s_branch K2_MIDL0")
    a("K2_FIRST2:")
    first(33); a.ext(segA(0, True, first=True))
    a(f"s_cmp_eq_u32 s{scount}, 2\ns_cbranch_scc1 K2_MIDP0\ns_branch K2_MIDF0")
    a(".p2align 6")
    body(0, "F"); body(1, "F")
    a("s_branch K2_BODYF0")
    def drain(p):
        a.ext(weave(cvts(p, 1), [(6, mG(1, 0)), (12, mG(1, 1))]))
        a("s_nop 1"); a(mG(1, 2)); a(mG(1, 3))
    body(0, "P"); body(1, "L"); drain(1); a("s_branch K2_DONE")
    body(1, "P"); body(0, "L"); drain(0)
    a(f"""
    K2_DONE:
    s_cmp_lg_u32 s{sslow}, 0
    s_cbranch_scc1 K2_ROUND
    K2_EPI:
    s_waitcnt lgkmcnt(0)
    """)
    stamp(a, 6); stamp(a, 6, "3")
    if OPT.get("prof") == "3": a("s_memtime s[88:89]")
    T0 = G
    for b in range(2):
        for r in range(6):
            a(f"v_add_f32 v{ACC+16*b+r}, 0x358637bd, v{ACC+16*b+r}")
        for r in range(6):
            a(f"v_rcp_f32 v{ACC+16*b+r}, v{ACC+16*b+r}")
        for r in range(6):
            u, x = T0+12*b+r, T0+12*b+6+r
            if b == 0: a(f"v_lshlrev_b32 v{u}, 16, v{UR+r}\nv_lshlrev_b32 v{x}, 16, v{XR+r}")
            else: a(f"v_and_b32 v{u}, 0xffff0000, v{UR+r}\nv_and_b32 v{x}, 0xffff0000, v{XR+r}")
        for r in range(6):
            u, x = T0+12*b+r, T0+12*b+6+r
            a(f"v_fmac_f32 v{u}, v{ACC+16*b+8+r}, v{ACC+16*b+r}\nv_max_f32 v{u}, 0, v{u}\nv_add_f32 v{u}, v{u}, v{x}")
    for r in range(6):
        a(f"v_cvt_pk_bf16_f32 v{SP+r}, v{T0+r}, v{T0+12+r}")
        a(f"buffer_store_dword v{SP+r}, v{vO if r < 4 else vO2}, {sr(sO,4)}, 0 offen offset:{256*rowoff(r)}")
    stamp(a, 7)
    stamp_out(a, 1, 14, sw, 2)
    a("K2_END:\ns_endpgm")

    a("K2_SLOW:")
    srd(a, sS, 8, None, E*4)
    srd(a, sD, 10, None, E*4)
    a(f"""
    s_mov_b32 s{sslow}, 1
    s_mov_b32 s{cm40}, {-BN}
    s_mov_b32 s{cm10}, {-GN}
    K2_ROUND:
    s_cmp_ge_u32 s{sround}, {E//512}
    s_cbranch_scc1 K2_EPI
    s_lshl_b32 s{st0}, s{sround}, 9
    s_add_u32 s{sround}, s{sround}, 1
    v_add_u32 v{EOFF}, s{st0}, v0
    v_lshlrev_b32 v{vt}, 2, v{EOFF}
    buffer_load_dword v{REC}, v{vt}, {sr(sD,4)}, 0 offen
    buffer_load_dword v{REC+1}, v{vt}, {sr(sS,4)}, 0 offen
    v_lshlrev_b32 v{EOFF}, 5, v{EOFF}
    v_and_b32 v{vt}, 63, v0
    v_lshlrev_b32 v{vt}, 2, v{vt}
    v_mov_b32 v{vt+1}, 0
    s_waitcnt lgkmcnt(0)
    s_barrier
    ds_write_b32 v{vt}, v{vt+1} offset:{CNT}
    v_mov_b32 v{vt+3}, 4
    s_waitcnt vmcnt(0) lgkmcnt(0)
    s_barrier
    """)
    rec_fields(a, REC, REC+2, vt, cm40, cm10)
    a(f"""
    v_cmp_eq_u32 vcc, s2, v{REC+2}
    v_lshl_or_b32 v{REC}, v{REC+1}, 16, v{REC}
    {caddr(0)}
    s_mov_b64 s[78:79], vcc
    s_mov_b64 exec, vcc
    ds_add_rtn_u32 v{RANK}, v{CADDR}, v{vt+3} offset:{CNT}
    s_mov_b64 exec, -1
    s_waitcnt lgkmcnt(0)
    s_barrier
    """)
    scan(); tail()
    a(f"""
    s_mov_b64 exec, s[78:79]
    ds_read_b32 v{STV}, v{CADDR} offset:{START}
    s_waitcnt lgkmcnt(0)
    """)
    place(0)
    a(f"""
    s_mov_b64 exec, -1
    s_waitcnt lgkmcnt(0)
    s_barrier
    s_branch K2_FILL
    """)
    return a.text(), kd("k2_kernel", 244, 102)

def main():
    k1, d1 = gen_k1(); k2, d2 = gen_k2()
    ref = open("standalone__edge_featured_mpnn_gatedgcn__graph.s.ref").read().split("\n")
    out = "\n".join(ref[:13]) + "\n"
    for ch in OPT.get("list", "12"):
        if ch == "1": out += f"; @launch kernel=k1_kernel grid=({2*NCH},1,1) block=(1024,1,1) lds={K1_LDS}\n"
        if ch == "2": out += f"; @launch kernel=k2_kernel grid=({NBIN},1,1) block=(512,1,1) lds={K2_LDS}\n"
        if ch == "e": out += "; @launch kernel=ke_kernel grid=(1,1,1) block=(64,1,1) lds=0\n"
    out += '.amdgcn_target "amdgcn-amd-amdhsa--gfx950"\n.text\n'
    for n, k in (("k1_kernel", k1), ("k2_kernel", k2)):
        out += f".globl {n}\n.p2align 8\n.type {n},@function\n" + k
    if "e" in OPT.get("list", ""): out += ".globl ke_kernel\n.p2align 8\n.type ke_kernel,@function\nke_kernel:\n    s_endpgm\n"
    out += '.section .rodata,"a"\n.p2align 6\n' + d1.lstrip("\n") + '.p2align 6\n' + d2.lstrip("\n")
    if "e" in OPT.get("list", ""): out += '.p2align 6\n' + kd("ke_kernel", 8, 16).lstrip("\n")
    open(sys.argv[1], "w").write(out)

if __name__ == "__main__":
    main()
```

```python
import re
_RANGE = re.compile(r"^v\[(\d+):(\d+)\]$"); _ONE = re.compile(r"^-?v(\d+)$")
def regs(tok):
    tok = tok.strip()
    m = _RANGE.match(tok)
    if m: return list(range(int(m.group(1)), int(m.group(2))+1))
    m = _ONE.match(tok)
    if m: return [int(m.group(1))]
    return []
TRANS = ("v_exp_f32", "v_rcp_f32", "v_log_f32", "v_rsq_f32", "v_sqrt_f32")
def parse(s):
    s = s.strip()
    xw = [int(x) for x in re.findall(r";wr=(\d+)", s)]; xr = [int(x) for x in re.findall(r";rd=(\d+)", s)]
    s = s.split(";")[0].strip()
    op, _, rest = s.partition(" ")
    ops = [x.strip() for x in re.split(r",\s*(?![^\[]*\])", rest)] if rest else []
    ops = [o.split(" ")[0] if not o.startswith("v[") else o.split(" ")[0] for o in ops]
    d = dict(op=op, cls="other", wr=[], rd=[], text=s)
    if op.startswith("v_mfma"):
        d.update(cls="mfma", wr=regs(ops[0]), a=regs(ops[1]), b=regs(ops[2]), c=regs(ops[3]))
        d["rd"] = d["a"]+d["b"]+d["c"]
        d["passes"] = 8 if "32x32" in op else 4 if "16x16" in op else 2
    elif op.startswith("v_cmp") or op.startswith("v_readlane") or op.startswith("v_readfirstlane"):
        d.update(cls="valu", rd=sum((regs(o) for o in ops[1:]), []))
    elif op.startswith("v_"):
        d.update(cls="valu", wr=regs(ops[0]), rd=sum((regs(o) for o in ops[1:]), []))
        if op.startswith("v_fmac") or op.startswith("v_writelane"): d["rd"] += d["wr"]
    elif op.startswith("ds_read") or "_rtn" in op:
        d.update(cls="ds", wr=regs(ops[0]), rd=sum((regs(o) for o in ops[1:]), []))
    elif op.startswith("ds_"):
        d.update(cls="ds", rd=sum((regs(o) for o in ops), []))
    elif op.startswith("buffer_load"):
        if s.endswith("lds"): d.update(cls="vm", rd=regs(ops[0]))
        else: d.update(cls="vm", wr=regs(ops[0]), rd=regs(ops[1]))
    elif op.startswith("buffer_store"):
        d.update(cls="vm", rd=regs(ops[0])+regs(ops[1]))
    elif op == "s_nop": d.update(cls="nop", n=int(ops[0])+1)
    elif op == "s_waitcnt":
        d["cls"] = "wait"
        m = re.search(r"vmcnt\((\d+)\)", s); d["vm"] = int(m.group(1)) if m else None
        m = re.search(r"lgkmcnt\((\d+)\)", s); d["lg"] = int(m.group(1)) if m else None
    elif op.startswith("@W"): d.update(cls="ph", kind=op[2], id=rest.strip())
    if op in TRANS: d["trans"] = True
    d["wr"] = d["wr"] + xw; d["rd"] = d["rd"] + xr
    return d

def solve_waits(traces):
    need = {}
    for tr in traces:
        P = [parse(x) for x in tr if not x.endswith(":")]
        for kind, cls, mx in (("v", "vm", 63), ("l", "ds", 15)):
            issued = 0; pend = {}
            done = 0
            cur = None; cur_issued = 0
            for d in P:
                if d["cls"] == "ph" and d["kind"] == kind:
                    cur = d["id"]; cur_issued = issued; need.setdefault(cur, mx); continue
                if d["cls"] == "wait":
                    n = d["vm"] if kind == "v" else d["lg"]
                    if n is not None: done = max(done, issued-n)
                    continue
                touched = set(d["rd"]) | (set(d["wr"]) if d["cls"] != cls else set())
                for r in touched:
                    if r in pend and pend[r] >= done:
                        q = pend[r]
                        if cur is None or q >= cur_issued:
                            raise Exception(f"unprotected use of v{r} in '{d['text']}' ({kind})")
                        need[cur] = min(need[cur], cur_issued-q-1)
                if d["cls"] == cls:
                    for r in d["wr"]: pend[r] = issued
                    issued += 1
                    if cur is not None and issued - done > mx: need[cur] = min(need[cur], mx - (issued - cur_issued))
    assert all(v >= 0 for v in need.values()), need
    return need

def apply_waits(lst, need, drop=True):
    out = []
    for x in lst:
        if x.startswith("@W"):
            kind = x[2]; n = need[x.split()[1]]
            if drop and n >= (63 if kind == "v" else 15): continue
            out.append(f"s_waitcnt {'vmcnt' if kind == 'v' else 'lgkmcnt'}({n})")
        else: out.append(x)
    return out

def check_hazards(tr, name=""):
    P = [parse(x) for x in tr if not x.endswith(":")]
    pos = 0; hist = []
    for d in P:
        w = d.get("n", 1)
        for (p0, e) in reversed(hist):
            dist = pos - p0 - 1
            if dist > 20: break
            need = 0
            ew = set(e["wr"])
            if e["cls"] == "valu":
                if d["cls"] == "mfma" and ew & set(d["rd"]): need = 2
                if e.get("trans") and d["cls"] == "valu" and not d.get("trans") and ew & set(d["rd"]): need = max(need, 1)
                if "dpp" in d["op"] and ew & set(d["rd"]): need = max(need, 2)
                if d["op"].startswith("v_readlane") or d["op"].startswith("v_readfirstlane"):
                    if ew & set(d["rd"]): need = max(need, 1)
            if e["cls"] == "mfma":
                k = {2: 0, 4: 1, 8: 2}[e["passes"]]
                if d["cls"] == "mfma":
                    if ew & set(d["a"]+d["b"]): need = max(need, (5, 8, 12)[k])
                    if ew & set(d["c"]):
                        same = d["c"] == e["wr"] and d["passes"] == e["passes"]
                        need = max(need, ((2, 0, 0) if same else (4, 6, 10))[k])
                    elif ew & set(d["wr"]) and not (d["wr"] == e["wr"] and d["passes"] == e["passes"]):
                        need = max(need, (4, 6, 10)[k])
                elif d["cls"] in ("valu", "ds", "vm"):
                    if ew & (set(d["rd"]) | set(d["wr"])): need = max(need, (5, 8, 12)[k])
                    if d["cls"] == "valu" and set(e["c"]) & set(d["wr"]): need = max(need, (1, 3, 7)[k])
            if e["cls"] == "vm" and e["op"].startswith("buffer_store_dwordx4") and d["cls"] in ("valu", "ds", "vm", "mfma"):
                if set(e["rd"][:4]) & set(d["wr"]): need = max(need, 2)
            if dist < need:
                raise Exception(f"hazard {name}: '{e['text']}' -> '{d['text']}' distance {dist} < {need}")
        hist.append((pos + w - 1, d)); pos += w
        if len(hist) > 64: hist = hist[-40:]
```

```python
import struct, sys
import asmsim

N = 10000; E = 320000
NCH = 128; CS = 2500
NBIN = 250; BN = 40; GN = 10
CAP = 32
T_OFF = 0x100000
REC_OFF = 0x700000
WT_OFF = 0xB00000
LUT_OFF = 0xB20000
PROF_OFF = 0xF000000
NL2E = struct.unpack("<I", struct.pack("<f", -1.4426950408889634))[0]

def bf(x): return struct.unpack("<I", struct.pack("<f", x))[0] >> 16

OPT = dict(st_r="sc1", st_t="sc1")
for a in sys.argv[2:]:
    k, v = a.split("=", 1); OPT[k] = v

class Asm:
    def __init__(self): self.l = []
    def __call__(self, s):
        for x in s.strip("\n").split("\n"):
            x = x.strip()
            if not x: continue
            if x.startswith(";"): x = "s_nop 0"
            self.l.append(x if x.endswith(":") else "    " + x)
    def ext(self, lst):
        for x in lst: self(x)
    def text(self): return "\n".join(self.l) + "\n"

def stamp(a, i, lvl="1"):
    if OPT.get("prof") and (i in (0, 8) or OPT["prof"] == lvl): a(f"s_memrealtime s[{84+2*i}:{85+2*i}]")
def stamp_out(a, kern, wsreg, sw, vtmp):
    if not OPT.get("prof"): return
    a("s_waitcnt vmcnt(0)")
    stamp(a, 8)
    a(f"""
    s_lshl_b32 s4, s2, 4
    s_add_u32 s4, s4, s{sw}
    s_lshl_b32 s4, s4, 6
    s_add_u32 s4, s4, {PROF_OFF + kern*0x100000}
    s_add_u32 s4, s{wsreg}, s4
    s_addc_u32 s5, s{wsreg+1}, 0
    s_mov_b32 s6, 64
    s_mov_b32 s7, 0x20000
    s_waitcnt lgkmcnt(0)
    """)
    for i in range(9): a(f"v_writelane_b32 v{vtmp}, s{84+2*i}, {i}")
    a(f"""
    v_mbcnt_lo_u32_b32 v{vtmp+1}, -1, 0
    v_mbcnt_hi_u32_b32 v{vtmp+1}, -1, v{vtmp+1}
    v_lshlrev_b32 v{vtmp+1}, 2, v{vtmp+1}
    buffer_store_dword v{vtmp}, v{vtmp+1}, s[4:7], 0 offen
    """)

def vr(b, n): return f"v[{b}:{b+n-1}]"
def sr(b, n): return f"s[{b}:{b+n-1}]"

def srd(a, d, base, add=None, size=None, w3="0x20000", hi_or=None):
    if add is None:
        a(f"s_mov_b32 s{d}, s{base}\ns_mov_b32 s{d+1}, s{base+1}")
    else:
        a(f"s_add_u32 s{d}, s{base}, {add}\ns_addc_u32 s{d+1}, s{base+1}, 0")
    if hi_or: a(f"s_or_b32 s{d+1}, s{d+1}, {hi_or}")
    a(f"s_mov_b32 s{d+2}, {size}\ns_mov_b32 s{d+3}, {w3}")

def kd(name, vgpr, sgpr):
    return f"""
.amdhsa_kernel {name}
  .amdhsa_next_free_vgpr {vgpr}
  .amdhsa_next_free_sgpr {sgpr}
  .amdhsa_accum_offset {(vgpr+3)//4*4}
  .amdhsa_group_segment_fixed_size 0
  .amdhsa_kernarg_size 96
  .amdhsa_user_sgpr_count 2
  .amdhsa_user_sgpr_kernarg_segment_ptr 1
  .amdhsa_system_sgpr_workgroup_id_x 1
.end_amdhsa_kernel
"""

def rec_fields(a, vd, vbin, vtmp, sm40, sm10):
    a(f"""
    v_mul_u32_u24 v{vbin}, 52429, v{vd}
    v_lshrrev_b32 v{vbin}, 21, v{vbin}
    v_mad_i32_i24 v{vd}, v{vbin}, s{sm40}, v{vd}
    v_mul_u32_u24 v{vtmp}, 26, v{vd}
    v_lshrrev_b32 v{vtmp}, 8, v{vtmp}
    v_mad_i32_i24 v{vd}, v{vtmp}, s{sm10}, v{vd}
    v_lshl_or_b32 v{vd}, v{vtmp}, 30, v{vd}
    """)

K1_CNT = 0; K1_STG = 1024; K1_X = 65536; K1_LDS = K1_X + 20480
def gen_k1():
    a = Asm()
    sS, sD, sW1, sW2, sX, sR, sT = 24, 28, 32, 36, 40, 44, 48
    sw, st0, st1, st2, sng, sfb, stask = 52, 53, 54, 55, 56, 57, 58
    c4096, c8192, cm40, cm10, cnl2e, csign, cmag, ctso = 59, 60, 61, 62, 63, 64, 65, 66
    a("k1_kernel:")
    a(f"s_cmp_ge_u32 s2, {2*NCH}\ns_cbranch_scc1 K1_END")
    stamp(a, 0)
    a(f"""
    s_load_dwordx16 s[4:19], s[0:1], 0
    s_load_dwordx2 s[20:21], s[0:1], 64
    s_load_dwordx2 s[22:23], s[0:1], 88
    v_lshrrev_b32 v2, 6, v0
    v_lshlrev_b32 v1, 2, v0
    v_readfirstlane_b32 s{sw}, v2
    s_mov_b32 s{c4096}, 4096
    s_mov_b32 s{c8192}, 8192
    s_cmp_ge_u32 s2, {NCH}
    s_cbranch_scc1 K1_GEMM
    """)
    vD, vS, vB, vSL, vt = 2, 5, 8, 11, 16
    a(f"s_mul_i32 s{st1}, s2, {CS*4}\ns_waitcnt lgkmcnt(0)")
    srd(a, sD, 10, f"s{st1}", CS*4)
    srd(a, sS, 8, f"s{st1}", CS*4)
    for r, so in enumerate(("0", f"s{c4096}", f"s{c8192}")):
        a(f"buffer_load_dword v{vD+r}, v1, {sr(sD,4)}, {so} offen")
        a(f"buffer_load_dword v{vS+r}, v1, {sr(sS,4)}, {so} offen")
    a(f"""
    v_mov_b32 v{vt}, -1
    v_mov_b32 v{vt+1}, -1
    v_mov_b32 v{vt+2}, -1
    v_mov_b32 v{vt+3}, -1
    v_lshlrev_b32 v{vt+4}, 4, v0
    v_mov_b32 v{vt+5}, 0
    v_and_b32 v{vt+6}, 0x3fc, v1
    ds_write_b128 v{vt+4}, {vr(vt,4)} offset:{K1_STG}
    ds_write_b128 v{vt+4}, {vr(vt,4)} offset:{K1_STG+16384}
    ds_write_b32 v{vt+6}, v{vt+5} offset:{K1_CNT}
    s_lshl_b32 s{st0}, s2, 7
    s_add_u32 s{st0}, s{st0}, {REC_OFF}
    """)
    srd(a, sR, 22, f"s{st0}", NBIN*NCH*128)
    a(f"s_lshl_b32 s{st0}, s2, 9\ns_add_u32 s{st1}, s{st0}, {LUT_OFF}")
    srd(a, sT, 22, f"s{st1}", 512)
    a(f"""
    v_add_u32 v40, s{st0}, v1
    v_and_b32 v41, 0x7fff, v40
    v_cmp_ne_u32 vcc, 0x7c00, v41
    v_or_b32 v41, 3, v40
    s_nop 0
    v_addc_co_u32 v40, vcc, 0, v40, vcc
    v_cvt_f32_f16 v41, v41
    v_cvt_f32_f16 v40, v40
    v_exp_f32 v41, v41
    v_exp_f32 v40, v40
    v_add_f32 v41, 1.0, v41
    v_add_f32 v40, 1.0, v40
    v_rcp_f32 v41, v41
    v_rcp_f32 v40, v40
    s_nop 0
    v_cvt_pk_bf16_f32 v40, v40, v41
    buffer_store_dword v40, v1, {sr(sT,4)}, 0 offen
    """)
    if OPT.get("pf", "1") == "1":
        a(f"""
        s_getpc_b64 {sr(sW1,2)}
        K1_PC:
        s_add_u32 s{sW1}, s{sW1}, k2_kernel-K1_PC
        s_addc_u32 s{sW1+1}, s{sW1+1}, 0
        s_mov_b32 s{sW1+2}, K2_CODE_END-k2_kernel
        s_mov_b32 s{sW1+3}, 0x20000
        v_lshlrev_b32 v44, 5, v0
        buffer_load_dword v45, v44, {sr(sW1,4)}, 0 offen
        """)
    a(f"""
    s_mov_b32 s{cm40}, {-BN}
    s_mov_b32 s{cm10}, {-GN}
    v_mov_b32 v{vt+5}, 1
    v_cmp_gt_u32 vcc, {CS-2048}, v0
    s_mov_b64 s[80:81], vcc
    v_lshrrev_b32 v{vt+7}, 3, v0
    v_and_b32 v{vt+8}, 7, v0
    v_lshlrev_b32 v{vt+9}, 14, v{vt+7}
    v_lshl_add_u32 v{vt+9}, v{vt+8}, 4, v{vt+9}
    v_lshlrev_b32 v{vt+7}, 2, v{vt+7}
    v_cmp_eq_u32 s[82:83], 7, v{vt+8}
    s_mov_b32 s{st2}, {128*16384}
    s_waitcnt lgkmcnt(0)
    s_barrier
    """)
    stamp(a, 1)
    for r in range(3):
        a(f"s_waitcnt vmcnt({4-2*r + 1 + (OPT.get('pf', '1') == '1')})")
        if r == 0: stamp(a, 2)
        rec_fields(a, vD+r, vB+r, vt, cm40, cm10)
        a(f"v_lshlrev_b32 v{vt}, 2, v{vB+r}")
        if r == 2: a("s_mov_b64 exec, s[80:81]")
        a(f"ds_add_rtn_u32 v{vSL+r}, v{vt}, v{vt+5} offset:{K1_CNT}")
        if r == 2: a("s_mov_b64 exec, -1")
        a(f"""
        v_lshl_or_b32 v{vD+r}, v{vS+r}, 16, v{vD+r}
        v_add_u32 v{vS+r}, {1024*r}, v0
        v_lshl_or_b32 v{vD+r}, v{vS+r}, 4, v{vD+r}
        v_lshlrev_b32 v{vB+r}, 7, v{vB+r}
        """)
    for r in range(3):
        a(f"s_waitcnt lgkmcnt({2-r})" if r == 0 else f"s_waitcnt lgkmcnt({2})" if r == 1 else "s_waitcnt lgkmcnt(2)")
        if r == 2: a("s_mov_b64 exec, s[80:81]")
        a(f"""
        v_lshl_add_u32 v{vB+r}, v{vSL+r}, 2, v{vB+r}
        v_cmpx_gt_u32 vcc, {CAP}, v{vSL+r}
        ds_write_b32 v{vB+r}, v{vD+r} offset:{K1_STG}
        s_mov_b64 exec, -1
        """)
    a("s_waitcnt lgkmcnt(0)")
    stamp(a, 3)
    a("s_barrier")
    stamp(a, 4)
    a(f"""
    ds_read_b128 {vr(vt+12,4)}, v{vt+4} offset:{K1_STG}
    ds_read_b32 v{vt}, v{vt+7} offset:{K1_CNT}
    ds_read_b128 {vr(vt+16,4)}, v{vt+4} offset:{K1_STG+16384}
    ds_read_b32 v{vt+1}, v{vt+7} offset:{K1_CNT+512}
    v_mov_b32 v{vt+2}, -2
    """)
    for k in range(2):
        a(f"""
        s_waitcnt lgkmcnt({2-2*k})
        v_cmp_lt_u32 vcc, {CAP}, v{vt+k}
        s_and_b64 vcc, vcc, s[82:83]
        s_nop 1
        v_cndmask_b32 v{vt+15+4*k}, v{vt+15+4*k}, v{vt+2}, vcc
        buffer_store_dwordx4 {vr(vt+12+4*k,4)}, v{vt+9}, {sr(sR,4)}, {'0' if k == 0 else f's{st2}'} offen {OPT['st_r']}
        """)
    stamp(a, 5); stamp(a, 6); stamp(a, 7)
    stamp_out(a, 0, 22, sw, 2)
    a("s_endpgm")
    vW, vX, vA, vt = 32, 96, 112, 2
    def W(m, ab, s): return vW + 32*m + 16*ab + 4*s
    a(f"""
    K1_GEMM:
    s_sub_u32 s{stask}, s2, {NCH}
    s_and_b32 s{sfb}, s{sw}, 3
    s_lshr_b32 s{sng}, s{sw}, 2
    v_and_b32 v{vt}, 63, v0
    v_lshrrev_b32 v{vt+1}, 4, v{vt}
    v_and_b32 v{vt+2}, 15, v0
    s_lshl_b32 s{st0}, s{sfb}, 2
    v_add_u32 v{vt+3}, s{st0}, v{vt+1}
    v_xor_b32 v{vt+3}, v{vt+3}, v{vt+2}
    v_lshlrev_b32 v{vt+3}, 4, v{vt+3}
    v_lshl_add_u32 v{vt+3}, v{vt+1}, 8, v{vt+3}
    v_lshlrev_b32 v{vt+4}, 2, v{vt+1}
    v_xor_b32 v{vt+4}, v{vt+4}, v{vt+2}
    v_lshlrev_b32 v{vt+4}, 4, v{vt+4}
    v_lshl_add_u32 v{vt+4}, v{vt+1}, 8, v{vt+4}
    s_mul_i32 s{st0}, s{stask}, 20480
    s_cmp_lt_u32 s{stask}, 125
    s_cselect_b32 s{st0}, s{st0}, 0
    s_cselect_b32 s{st2}, 20480, 0
    s_waitcnt lgkmcnt(0)
    s_cmp_ge_u32 s{stask}, 126
    s_cbranch_scc1 K1_WC
    s_add_u32 s{sX}, s4, s{st0}
    s_addc_u32 s{sX+1}, s5, 0
    s_mov_b32 s{sX+2}, s{st2}
    s_mov_b32 s{sX+3}, 0x20000
    s_lshl_b32 s{st1}, s{sw}, 10
    s_add_u32 m0, s{st1}, {K1_X}
    s_cmp_eq_u32 s{stask}, 125
    s_cselect_b64 {sr(sW1,2)}, s[12:13], s[14:15]
    s_cselect_b64 {sr(sW2,2)}, s[18:19], s[20:21]
    buffer_load_dwordx4 v{vt+3}, {sr(sX,4)}, s{st1} offen lds
    s_cmp_lt_u32 s{sw}, 4
    s_cbranch_scc0 K1_X1
    s_add_u32 m0, s{st1}, {K1_X+16384}
    s_add_u32 s{st1}, s{st1}, 16384
    buffer_load_dwordx4 v{vt+3}, {sr(sX,4)}, s{st1} offen lds
    K1_X1:
    s_mov_b32 s{sW1+2}, 32768
    s_mov_b32 s{sW1+3}, 0x20000
    s_mov_b32 s{sW2+2}, 32768
    s_mov_b32 s{sW2+3}, 0x20000
    s_lshl_b32 s{st1}, s{sw}, 11
    s_mov_b32 m0, s{st1}
    s_lshl_b32 s{st0}, s{st0}, 1
    buffer_load_dwordx4 v{vt+4}, {sr(sW1,4)}, s{st1} offen lds
    buffer_load_dwordx4 v{vt+4}, {sr(sW1,4)}, s{st1} offen offset:1024 lds
    s_add_u32 m0, s{st1}, 32768
    s_add_u32 s{st0}, s{st0}, {T_OFF}
    buffer_load_dwordx4 v{vt+4}, {sr(sW2,4)}, s{st1} offen lds
    buffer_load_dwordx4 v{vt+4}, {sr(sW2,4)}, s{st1} offen offset:1024 lds
    """)
    srd(a, sT, 22, f"s{st0}", 40960)
    a(f"""
    v_bfe_u32 v{vt+5}, v0, 2, 2
    v_and_b32 v{vt+6}, 3, v0
    s_lshl_b32 s{st0}, s{sfb}, 2
    v_add_u32 v{vt+6}, s{st0}, v{vt+6}
    v_lshlrev_b32 v{vt+7}, 2, v{vt+5}
    v_xor_b32 v{vt+6}, v{vt+6}, v{vt+7}
    v_lshl_add_u32 v{vt+5}, v{vt+1}, 3, v{vt+5}
    v_lshlrev_b32 v{vt+5}, 8, v{vt+5}
    v_lshl_add_u32 v10, v{vt+6}, 4, v{vt+5}
    v_xor_b32 v11, v{vt+1}, v{vt+2}
    v_lshlrev_b32 v11, 4, v11
    v_lshl_add_u32 v11, v{vt+2}, 8, v11
    s_lshl_b32 s{st0}, s{sng}, 12
    s_add_u32 s{st0}, s{st0}, {K1_X}
    v_add_u32 v11, s{st0}, v11
    v_lshlrev_b32 v12, 9, v{vt+2}
    v_lshl_add_u32 v12, v{vt+1}, 4, v12
    s_lshl_b32 s{st0}, s{sng}, 13
    s_lshr_b32 s{st1}, s{sfb}, 1
    s_lshl_b32 s{st1}, s{st1}, 8
    s_add_u32 s{st0}, s{st0}, s{st1}
    s_and_b32 s{st1}, s{sfb}, 1
    s_lshl_b32 s{st1}, s{st1}, 6
    s_add_u32 s{ctso}, s{st0}, s{st1}
    s_mov_b32 s{cnl2e}, {NL2E:#x}
    s_mov_b32 s{csign}, 0x80000000
    s_mov_b32 s{cmag}, 0x7fff0000
    v_xor_b32 v13, 64, v11
    v_xor_b32 v14, 0x80, v11
    v_xor_b32 v15, 0xc0, v11
    """)
    stamp(a, 1)
    a("s_waitcnt vmcnt(0)")
    stamp(a, 2)
    a("s_barrier")
    stamp(a, 3)
    def xrd(off):
        for s in range(4): a(f"ds_read_b128 {vr(vX+4*s,4)}, v{[11,13,14,15][s]} offset:{off}")
    xrd(0)
    n = 4
    for s in range(4):
        for m in range(2):
            for ab in range(2):
                for u in range(2):
                    a(f"ds_read_b64_tr_b16 {vr(W(m,ab,s)+2*u,2)}, v10 offset:{m*32768+s*8192+u*1024+ab*8}")
        if s < 3: a("s_waitcnt lgkmcnt(6)")
    a(f"s_cmp_eq_u32 s{stask}, 125\ns_cbranch_scc1 K1_WT")
    def mm():
        for s in range(4):
            for m in range(2):
                for ab in range(2):
                    d = vr(vA+8*m+4*ab, 4)
                    a(f"v_mfma_f32_16x16x32_bf16 {d}, {vr(W(m,ab,s),4)}, {vr(vX+4*s,4)}, {'0' if s == 0 else d}")
    def pack(so):
        a("s_nop 7")
        for b in range(2):
            for n_, (ab, i) in enumerate(((0, b), (0, 2+b), (1, b), (1, 2+b))):
                bb = vA+4*ab+i; h = vA+8+4*ab+i; t = 16; o = 20+4*b+n_
                a(f"""
                v_mul_f32 v{bb}, s{cnl2e}, v{bb}
                v_and_b32 v{t}, 0x7fffffff, v{h}
                v_cvt_pk_bf16_f32 v{bb}, v{bb}, v{bb}
                v_max_u32 v{t}, 0x10000, v{t}
                v_and_b32 v{bb}, 0xffff, v{bb}
                v_add_u32 v{t}, 0x8000, v{t}
                v_and_or_b32 v{h}, v{h}, s{csign}, v{bb}
                v_sub_u32 v{t}, v{t}, v{bb}
                v_bfi_b32 v{o}, s{cmag}, v{t}, v{h}
                """)
            a(f"buffer_store_dwordx4 {vr(20+4*b,4)}, v12, {sr(sT,4)}, s{so} offen offset:{128*b} {OPT['st_t']}")
    a("s_waitcnt lgkmcnt(0)")
    mm()
    stamp(a, 4)
    a(f"s_cmp_eq_u32 s{sng}, 0\ns_cbranch_scc0 K1_ONE")
    xrd(16384)
    pack(ctso)
    a(f"s_add_u32 s{ctso}, s{ctso}, 32768\ns_waitcnt lgkmcnt(0)")
    mm()
    a("K1_ONE:")
    pack(ctso)
    stamp(a, 5); stamp(a, 6); stamp(a, 7)
    stamp_out(a, 0, 22, sw, 2)
    a("s_endpgm")
    a("K1_WT:")
    srd(a, sT, 22, WT_OFF, 65536)
    a(f"""
    s_cmp_ge_u32 s{sw}, 8
    s_cbranch_scc1 K1_END
    v_lshlrev_b32 v{vt+1}, 4, v{vt}
    s_lshl_b32 s{st0}, s{sw}, 13
    s_add_u32 s{st1}, s{st0}, 4096
    s_waitcnt lgkmcnt(0)
    s_cmp_eq_u32 s{sng}, 0
    s_cbranch_scc0 K1_WU
    """)
    for m in range(2):
        for ab in range(2):
            for s in range(4):
                a(f"buffer_store_dwordx4 {vr(W(m,ab,s),4)}, v{vt+1}, {sr(sT,4)}, s{st1 if ab else st0} offen offset:{1024*s}")
        a("s_endpgm")
        if m == 0: a("K1_WU:")
    a("K1_WC:")
    srd(a, sT, 22, WT_OFF+65536, 4096)
    srd(a, sW1, 16, None, 4096)
    a(f"""
    s_cmp_eq_u32 s{stask}, 126
    s_cbranch_scc0 K1_END
    s_cmp_ge_u32 s{sw}, 4
    s_cbranch_scc1 K1_END
    v_lshrrev_b32 v{vt+2}, 5, v{vt}
    v_and_b32 v{vt+3}, 31, v0
    v_lshlrev_b32 v{vt+3}, 2, v{vt+3}
    v_lshl_add_u32 v{vt+3}, v{vt+2}, 11, v{vt+3}
    v_lshlrev_b32 v{vt+1}, 4, v{vt}
    s_lshr_b32 s{st1}, s{sw}, 1
    s_lshl_b32 s{st1}, s{st1}, 7
    s_and_b32 s{st0}, s{sw}, 1
    s_lshl_b32 s{st0}, s{st0}, 1
    s_add_u32 s{st1}, s{st1}, s{st0}
    s_lshl_b32 s{st0}, s{sw}, 10
    s_mov_b32 s{cnl2e}, {NL2E:#x}
    """)
    for j in range(8):
        a(f"buffer_load_ushort v{20+j}, v{vt+3}, {sr(sW1,4)}, s{st1} offen offset:{256*j}")
    a("s_waitcnt vmcnt(0)")
    for j in range(8):
        a(f"v_lshlrev_b32 v{20+j}, 16, v{20+j}\nv_mul_f32 v{20+j}, s{cnl2e}, v{20+j}")
    for j in range(4):
        a(f"v_cvt_pk_bf16_f32 v{28+j}, v{20+2*j}, v{21+2*j}")
    a(f"buffer_store_dwordx4 v[28:31], v{vt+1}, {sr(sT,4)}, s{st0} offen")
    a("K1_END:\ns_endpgm")
    return a.text(), kd("k1_kernel", 128, 102)

CAPG = 640
CNT = 0; START = 256; OHL = 512; L1 = 1024; L2 = L1 + 4*CAPG*4; APL = L2 + 4*CAPG*4
ROWP = 272
UL = APL + 48*ROWP; XL = UL + 48*ROWP; LUTL = XL + 12288; K2_LDS = LUTL + 65536

def gen_k2():
    a = Asm()
    sREC, sX, sWT, sT, sE, sO, sD, sS = 24, 28, 32, 36, 40, 44, 68, 72
    sw, sg, sfh, st0, st1, st2 = 48, 49, 50, 51, 52, 53
    scount, sslow, sround, sinit, sgb, slane, slut = 54, 55, 56, 57, 58, 59, 82
    cm32, c128, cnl2e, cfc, csrc, cm40, cm10 = 60, 61, 62, 63, 64, 65, 66
    vH16, vA1, vA2, vEa, vOa, vO, vO2 = 1, 2, 3, 4, 5, 6, 7
    WC = 8; AP = 16; PA = 24; SC = 28; OH = 32; EA = 40; ADDR = 48; ACC = 64; SP = 96; G = 112; RAW = 176
    XR = 240; UR = 246; vM15 = 252
    raw = lambda p, b: RAW + 32*p + 16*b
    gb = lambda p, b: G + 32*p + 16*b
    vt = gb(1, 1); WT = ACC; Z = SP; EOFF = SP+15
    REC = raw(1, 0); CADDR = REC+8; RANK = REC+16; STV = REC+24
    cfe = 67
    NT = int(OPT.get("nt", "1"))

    a("k2_kernel:")
    a(f"s_cmp_ge_u32 s2, {NBIN}\ns_cbranch_scc1 K2_END")
    stamp(a, 0)
    a(f"""
    s_load_dwordx8 s[4:11], s[0:1], 0
    s_load_dwordx2 s[12:13], s[0:1], 72
    s_load_dwordx2 s[14:15], s[0:1], 88
    v_lshrrev_b32 v{vt}, 6, v0
    v_lshrrev_b32 v{vt+1}, 2, v0
    v_readfirstlane_b32 s{sw}, v{vt}
    v_and_b32 v{vt+2}, 3, v0
    v_lshlrev_b32 v{vt+3}, 7, v{vt+1}
    v_lshl_add_u32 v{vt+3}, v{vt+2}, 4, v{vt+3}
    s_lshl_b32 s{st0}, s2, 14
    s_add_u32 s{st0}, s{st0}, {REC_OFF}
    v_mul_u32_u24 v{EOFF}, {CS*32}, v{vt+1}
    s_waitcnt lgkmcnt(0)
    """)
    srd(a, sREC, 14, f"s{st0}", 16384)
    for r in range(2):
        a(f"buffer_load_dwordx4 {vr(REC+4*r,4)}, v{vt+3}, {sr(sREC,4)}, 0 offen offset:{64*r}")
    a(f"""
    v_cmp_gt_u32 vcc, 128, v0
    s_and_saveexec_b64 s[76:77], vcc
    v_lshlrev_b32 v{vt+3}, 2, v0
    v_mov_b32 v{Z}, 0
    ds_write_b32 v{vt+3}, v{Z} offset:{CNT}
    v_lshrrev_b32 v{vt+4}, 3, v0
    v_and_b32 v{Z+4}, 7, v0
    v_lshlrev_b32 v{Z+5}, 1, v{Z+4}
    v_mov_b32 v{Z+6}, 0x3f80
    v_mov_b32 v{Z+7}, 0x3f800000
    v_cmp_eq_u32 vcc, v{Z+5}, v{vt+4}
    v_add_u32 v{Z+5}, 1, v{Z+5}
    s_nop 0
    v_cndmask_b32 v{Z+8}, 0, v{Z+6}, vcc
    v_cmp_eq_u32 vcc, v{Z+5}, v{vt+4}
    v_cmp_eq_u32 s[78:79], 7, v{Z+4}
    s_or_b64 vcc, vcc, s[78:79]
    s_nop 1
    v_cndmask_b32 v{Z+9}, 0, v{Z+7}, vcc
    v_or_b32 v{Z+8}, v{Z+8}, v{Z+9}
    v_cmp_gt_u32 vcc, 15, v{vt+4}
    s_nop 1
    v_cndmask_b32 v{Z+8}, 0, v{Z+8}, vcc
    ds_write_b32 v{vt+3}, v{Z+8} offset:{OHL}
    s_mov_b64 exec, s[76:77]
    s_mul_i32 s{st0}, s2, {BN*256}
    s_and_b32 s{sg}, s{sw}, 3
    s_lshr_b32 s{sfh}, s{sw}, 2
    """)
    srd(a, sX, 4, f"s{st0}", BN*256)
    srd(a, sO, 12, f"s{st0}", BN*256)
    srd(a, sWT, 14, WT_OFF, LUT_OFF - WT_OFF + 65536)
    a(f"""
    v_and_b32 v{vt}, 63, v0
    v_lshrrev_b32 v{vt+4}, 4, v{vt}
    s_lshl_b32 s{st1}, s{sg}, 2
    v_add_u32 v{vA1}, s{st1}, v{vt+4}
    v_and_b32 v{vA2}, 15, v0
    v_xor_b32 v{vA1}, v{vA1}, v{vA2}
    v_lshlrev_b32 v{vA1}, 4, v{vA1}
    v_lshl_add_u32 v{vA1}, v{vt+4}, 8, v{vA1}
    v_lshlrev_b32 v{vA2}, 4, v{vt}
    v_lshrrev_b32 v{vt+3}, 5, v{vt}
    v_and_b32 v{vt+4}, 31, v0
    s_mul_i32 s{st0}, s{sg}, {GN*256}
    s_lshl_b32 s{st1}, s{sfh}, 7
    s_add_u32 s{st0}, s{st0}, s{st1}
    v_lshlrev_b32 v{vO}, 2, v{vt+4}
    v_lshl_add_u32 v{vO}, v{vt+3}, 10, v{vO}
    v_add_u32 v{vO}, s{st0}, v{vO}
    s_lshl_b32 s{st1}, s{sw}, 10
    s_add_u32 m0, s{st1}, {XL}
    s_waitcnt lgkmcnt(0)
    s_barrier
    """)
    stamp(a, 1)
    a(f"""
    buffer_load_dwordx4 v{vA1}, {sr(sX,4)}, s{st1} offen lds
    s_cmp_lt_u32 s{sw}, 4
    s_cbranch_scc0 K2_X1
    s_add_u32 m0, s{st1}, {XL+8192}
    s_add_u32 s{st2}, s{st1}, 8192
    buffer_load_dwordx4 v{vA1}, {sr(sX,4)}, s{st2} offen lds
    K2_X1:
    s_lshl_b32 s{slut}, s{sw}, 13
    s_add_u32 s{st2}, s{slut}, 4096
    """)
    for k in range(8):
        a(f"buffer_load_dwordx4 {vr(WT+4*k,4)}, v{vA2}, {sr(sWT,4)}, s{st2 if k >= 4 else slut} offen offset:{1024*(k&3)}")
    rowoff = lambda r: 8*(r >> 2) + (r & 3)
    def lut_dma(k):
        a(f"""
        s_add_u32 m0, s{slut}, {LUTL + 2048*k}
        s_add_u32 s{st2}, s{slut}, {LUT_OFF - WT_OFF + 2048*k}
        buffer_load_dwordx4 v{vA2}, {sr(sWT,4)}, s{st2} offen lds
        buffer_load_dwordx4 v{vA2}, {sr(sWT,4)}, s{st2} offen offset:1024 lds
        """)
    def late_loads():
        a(f"""
        s_lshl_b32 s{st1}, s{sfh}, 11
        s_add_u32 s{st1}, s{st1}, 65536
        buffer_load_dwordx4 {vr(WC,4)}, v{vA2}, {sr(sWT,4)}, s{st1} offen
        buffer_load_dwordx4 {vr(WC+4,4)}, v{vA2}, {sr(sWT,4)}, s{st1} offen offset:1024
        """)
        for r in range(6):
            a(f"buffer_load_dword v{XR+r}, v{vO}, {sr(sX,4)}, 0 offen offset:{256*rowoff(r)}")
    a(f"s_lshl_b32 s{st0}, s{sfh}, 8\ns_add_u32 s{st0}, s{st0}, {T_OFF-128}")
    if OPT.get("notid"): srd(a, sT, 14, f"s{st0}", 0x800000)
    else: srd(a, sT, 14, f"s{st0}", 64, w3="0x800000", hi_or="0x40000")
    srd(a, sE, 6, None, E*32)
    a(f"""
    s_mov_b32 s{cm32}, {'0x7e0' if 'e' in OPT.get('nomem','') else '0xffffffe0'}
    s_mov_b32 s{c128}, 128
    s_mov_b32 s{cnl2e}, {NL2E:#x}
    s_mov_b32 s{cfc}, 0xfc
    s_mov_b32 s{cfe}, {OPT.get('cfe', '0xfffe')}
    s_mov_b32 s{csrc}, {'0x3e00' if 't' in OPT.get('nomem','') else '0x7ffe00'}
    s_mov_b32 s{sslow}, 0
    s_mov_b32 s{sround}, 0
    s_mov_b32 s{sinit}, 0
    s_mul_i32 s{sgb}, s{sg}, {CAPG*4}
    s_lshl_b32 s{slane}, s{sg}, 4
    s_add_u32 s{slane}, s{slane}, 15
    v_lshlrev_b32 v{vH16}, 4, v{vt+3}
    v_cmp_eq_u32 vcc, 0, v{vt+3}
    v_mov_b32 v{vM15}, 0xffff
    v_mov_b32 v{Z+4}, -1
    v_mov_b32 v{Z+5}, 0x80000000
    v_cndmask_b32 v{vM15}, v{vM15}, v{Z+4}, vcc
    v_cndmask_b32 v{vO2}, v{Z+5}, v{vO}, vcc
    v_and_b32 v{Z+4}, 3, v0
    v_mov_b32 v{Z+6}, 0x3f80
    """)
    for i in range(4):
        a(f"v_cmp_eq_u32 vcc, {i}, v{Z+4}\ns_nop 1\nv_cndmask_b32 v{PA+i}, 0, v{Z+6}, vcc")
    den = bf(127*2.0**-116); tiny = bf(2.0**-100)
    a(f"""
    v_cmp_gt_u32 s[78:79], 16, v{vt+4}
    v_mov_b32 v{Z+5}, {den:#x}
    v_mov_b32 v{Z+7}, {tiny<<16:#x}
    v_cndmask_b32 v{Z+5}, v{Z+6}, v{Z+5}, s[78:79]
    v_cndmask_b32 v{Z+7}, 0, v{Z+7}, s[78:79]
    v_and_b32 v{Z+4}, 15, v0
    v_lshlrev_b32 v{Z+8}, 3, v{vt+3}
    v_sub_u32 v{Z+4}, v{Z+4}, v{Z+8}
    v_lshlrev_b32 v{Z+6}, 16, v{Z+5}
    """)
    for d in range(4):
        a(f"""
        v_cmp_eq_u32 vcc, {2*d}, v{Z+4}
        v_cmp_eq_u32 s[78:79], {2*d+1}, v{Z+4}
        s_nop 0
        v_cndmask_b32 v{SC+d}, 0, v{Z+5}, vcc
        v_cndmask_b32 v{Z+8}, 0, v{Z+6}, s[78:79]
        v_or_b32 v{SC+d}, v{SC+d}, v{Z+8}
        """)
    a(f"""
    v_and_b32 v{SC+3}, v{SC+3}, v{vM15}
    v_not_b32 v{Z+8}, v{vM15}
    v_and_b32 v{Z+8}, v{Z+8}, v{Z+7}
    v_or_b32 v{SC+3}, v{SC+3}, v{Z+8}
    """)
    for r in range(16): a(f"v_mov_b32 v{ADDR+r}, 128")
    a(f"""
    v_mov_b32 v{vt+3}, 4
    s_waitcnt vmcnt(9)
    """)
    stamp(a, 2)
    a(f"""
    v_cmp_eq_u32 vcc, -2, v{REC+7}
    s_cbranch_vccz K2_NOOVF
    v_mov_b32 v{vt+4}, 0x10000
    v_mov_b32 v{vt}, 60
    ds_add_u32 v{vt}, v{vt+4} offset:{CNT}
    K2_NOOVF:
    """)
    def caddr(k): return f"v_and_b32_sdwa v{CADDR+k}, s{cfc}, v{REC+k} dst_sel:DWORD dst_unused:UNUSED_PAD src0_sel:DWORD src1_sel:BYTE_3"
    for k in range(8):
        a(f"""
        v_cmpx_gt_u32 vcc, -2, v{REC+k}
        s_cbranch_execz K2_CNT_DONE
        {caddr(k)}
        ds_add_rtn_u32 v{RANK+k}, v{CADDR+k}, v{vt+3} offset:{CNT}
        """)
    a(f"""
    K2_CNT_DONE:
    s_mov_b64 exec, -1
    """)
    lut_dma(0)
    a("s_waitcnt lgkmcnt(0)\ns_barrier")
    def scan(hook=None):
        x = SP
        a(f"""
        v_and_b32 v{vt}, 63, v0
        v_lshlrev_b32 v{vt+1}, 2, v{vt}
        ds_read_b32 v{x}, v{vt+1} offset:{CNT}
        v_lshrrev_b32 v{vt}, 4, v{vt}
        v_mul_u32_u24 v{vt}, {CAPG*4}, v{vt}
        v_and_b32 v{vt+2}, 31, v0
        v_lshlrev_b32 v{vt+2}, 2, v{vt+2}
        v_add_u32 v{vt+2}, s{sgb}, v{vt+2}
        v_mov_b32 v{vt+4}, 0xfffffe
        """)
        if hook: hook()
        a(f"""
        s_waitcnt lgkmcnt(0)
        v_sub_u32 v{vt}, v{vt}, v{x}
        """)
        for d in ("row_shr:1", "row_shr:2", "row_shr:4", "row_shr:8"):
            a(f"v_add_u32_dpp v{x}, v{x}, v{x} {d} row_mask:0xf bank_mask:0xf bound_ctrl:0\ns_nop 1")
        a(f"""
        v_readlane_b32 s{st0}, v{x}, s{slane}
        v_add_u32 v{vt}, v{vt}, v{x}
        v_cmp_lt_u32 vcc, {(CAPG-32)*4}, v{x}
        ds_write_b32 v{vt+1}, v{vt} offset:{START}
        v_add_u32 v{vt+2}, s{st0}, v{vt+2}
        s_add_u32 s{scount}, s{st0}, 127
        s_lshr_b32 s{scount}, s{scount}, 7
        """)
    def tail():
        a(f"""
        v_lshlrev_b32 v{vt+3}, 3, v{vt+2}
        v_and_b32 v{vt+3}, 128, v{vt+3}
        ds_write2st64_b32 v{vt+2}, v{vt+3}, v{vt+4} offset0:{L1//256} offset1:{L2//256}
        """)
    def place(k):
        a(f"""
        v_add_u32 v{STV+k}, v{STV+k}, v{RANK+k}
        v_lshrrev_b32 v{vt}, 7, v{REC+k}
        v_lshlrev_b32 v{vt+1}, 3, v{STV+k}
        v_mad_u32_u16 v{vt+2}, v{REC+k}, 2, v{EOFF}
        v_and_b32 v{vt+1}, 128, v{vt+1}
        v_and_or_b32 v{vt}, v{vt}, s{csrc}, v{vt+1}
        ds_write2st64_b32 v{STV+k}, v{vt}, v{vt+2} offset0:{L1//256} offset1:{L2//256}
        """)
    scan(lambda: lut_dma(1))
    a("s_cbranch_vccnz K2_SLOW")
    tail()
    for k in range(4):
        a(f"ds_read_b32 v{STV+k}, v{CADDR+k} offset:{START}")
    lut_dma(2)
    a("s_waitcnt lgkmcnt(0)")
    for k in range(8):
        a(f"v_cmpx_gt_u32 vcc, -2, v{REC+k}\ns_cbranch_execz K2_PLACED")
        if k == 4:
            for kk in range(4, 8):
                a(f"ds_read_b32 v{STV+kk}, v{CADDR+kk} offset:{START}")
            a("s_waitcnt lgkmcnt(0)")
        place(k)
    a(f"""
    K2_PLACED:
    s_mov_b64 exec, -1
    """)
    lut_dma(3)
    a("s_waitcnt vmcnt(16) lgkmcnt(0)\ns_barrier")
    stamp(a, 3)
    late_loads()
    a(f"""
    K2_FILL:
    v_and_b32 v{vt}, 31, v0
    v_xor_b32 v{vA1}, 16, v{vH16}
    v_xor_b32 v{vA2}, 4, v{vt}
    v_lshlrev_b32 v{vA2}, 2, v{vA2}
    v_add_u32 v{vA1}, s{sgb}, v{vA1}
    v_add_u32 v{vA2}, s{sgb}, v{vA2}
    """)
    def rd_addr(off, j): return f"ds_read_b128 {vr(ADDR+4*j,4)}, v{vA1} offset:{L1+off+32*j}"
    def rd_l2(reg, off): return f"ds_read_b32 v{reg}, v{vA2} offset:{L2+off}"
    def ld_raw(p, b, r):
        pre = [f"v_and_b32 v{ADDR+r}, 0x7fff80, v{ADDR+r}"] if OPT.get("safe") else []
        if OPT.get("noload"): return ["s_nop 0"]
        return pre + [f"buffer_load_dword v{raw(p,b)+r}, v{ADDR+r}, {sr(sT,4)}, 0 offen" + (" offset:128" if b else "")]
    def ld_blk(p, b): return sum((ld_raw(p, b, r) for r in range(16)), [])
    def ld_ea(p): return [f"v_and_or_b32 v{vEa}, v{vEa}, s{cm32}, v{vH16}", f"buffer_load_dwordx4 {vr(EA+4*p,4)}, v{vEa}, {sr(sE,4)}, 0 offen"]
    def oh_idx(p):
        return [f"v_and_b32 v{vOa}, 30, v{vOa}",
                f"v_lshl_add_u32 v{vOa}, v{vOa}, 4, v{vH16}",
                f"ds_read_b128 {vr(OH+4*p,4)}, v{vOa} offset:{OHL}"]
    big = "v_mfma_f32_32x32x16_bf16" if not OPT.get("nobig") else "; "
    de = OPT.get("drop", "")
    def mE(p, b): return "; " if "E" in de else f"{big} {vr(gb(p,b),16)}, {vr(EA+4*p,4)}, {vr(WC+4*b,4)}, 0"
    def mA(p, b): return "; " if "A" in de else f"{big} {vr(gb(p,b),16)}, {vr(OH+4*p,4)}, {vr(AP+4*b,4)}, {vr(gb(p,b),16)}"
    def mS(p): return "; " if "S" in de else f"{big} {vr(SP,16)}, {vr(OH+4*p,4)}, {vr(SC,4)}, 0"
    def mG(p, b, j): return "; " if ("G" in de or ("g" in de and j & 1)) else f"{big} {vr(ACC+16*b,16)}, {vr(SP+4*j,4)}, {vr(gb(p,b)+4*j,4)}, {vr(ACC+16*b,16)}"
    def mP(p, b):
        o = []
        for u in range(2):
            for j in range(4):
                g = vr(gb(p,b)+4*j, 4)
                o.append(f"v_mfma_f32_4x4x4_16b_bf16 {g}, {vr(PA+2*u,2)}, {vr(raw(p,b)+4*j+2*u,2)}, {g}")
        return o
    sd = "dst_sel:DWORD dst_unused:UNUSED_PAD src0_sel:DWORD"
    def idx_pair(p, b, i):
        g0, g1 = gb(p,b)+2*i, gb(p,b)+2*i+1
        if i < NT:
            return [f"v_exp_f32 v{g0}, v{g0}", f"v_exp_f32 v{g1}, v{g1}", f"v_add_f32 v{g0}, 1.0, v{g0}",
                    f"v_add_f32 v{g1}, 1.0, v{g1}", f"v_rcp_f32 v{g0}, v{g0}", f"v_rcp_f32 v{g1}, v{g1}"], []
        return [f"v_cvt_pkrtz_f16_f32 v{g0}, v{g0}, v{g1}",
                f"v_and_b32_sdwa v{g1}, s{cfe}, v{g0} {sd} src1_sel:WORD_1",
                f"v_and_b32_sdwa v{g0}, s{cfe}, v{g0} {sd} src1_sel:WORD_0"], \
               [f"ds_read_u16_d16_hi v{g1}, v{g1} offset:{LUTL}", f"ds_read_u16_d16_hi v{g0}, v{g0} offset:{LUTL}"]
    def fin_pair(p, b, i):
        g0, r0 = gb(p,b)+2*i, raw(p,b)+2*i
        return [f"v_mul_f32 v{r0}, v{g0}, v{r0}", f"v_mul_f32 v{r0+1}, v{g0+1}, v{r0+1}",
                f"v_cvt_pk_bf16_f32 v{g0}, v{g0}, v{r0}", f"v_cvt_pk_bf16_f32 v{g0+1}, v{g0+1}, v{r0+1}"]
    def zipl(x, y):
        o = []
        for k in range(max(len(x), len(y))):
            if k < len(x): o.append(x[k])
            if k < len(y): o.append(y[k])
        return o
    uid = [0]
    def W(kind):
        uid[0] += 1
        return f"@W{kind} {uid[0]}"
    def slot(p, b, kind, acc=True):
        q = 1-p
        nxt = (p, 1) if b == 0 else (q, 0)
        do_idx = b == 0 or kind != "L"
        bigs = []
        if kind != "L": bigs += [[W("v"), mE(q, b)] + (ld_ea(q) if (b == 1 and kind == "F") else []), [mA(q, b)]]
        if acc: bigs += [[mG(q if b == 0 else p, 1-b, j)] for j in range(4)]
        if b == 0: bigs += [[mS(p)]]
        smalls = mP(q, b) if kind != "L" else []
        out = []
        nb = 0
        for i in range(8):
            iv, il = idx_pair(*nxt, i) if do_idx else ([], [])
            fv = fin_pair(p, b, i)
            seq = zipl(iv, fv) if i >= NT or not do_idx else [iv[0], fv[0], iv[1], fv[1], iv[2], fv[2], iv[3], fv[3], iv[4], iv[5]]
            seq += il
            if kind == "F":
                seq += ld_raw(p, b, 2*i) + ld_raw(p, b, 2*i+1)
                if b == 1 and i & 1: seq.append(rd_addr((3+p)*128, i >> 1))
                if b == 0 and i == 1: seq.append(rd_l2(vEa, (3+p)*128))
                if b == 0 and i == 5: seq.append(rd_l2(vOa, (2+p)*128))
                if b == 1 and i == 2: seq += oh_idx(p)
            pre = [W("l")]
            if i < 6:
                take = 2 if (len(bigs) - nb) > (6 - i) else 1
                ins = []
                if nb < len(bigs): pre += bigs[nb]; nb += 1
                if take == 2 and nb < len(bigs):
                    seq = seq[:6] + bigs[nb] + seq[6:]; nb += 1
            if smalls and i >= 5:
                k0, k1 = {5: (0, 2), 6: (2, 6), 7: (6, 8)}[i]
                sm = smalls[k0:k1]
                if i == 5: seq = seq[:4] + [W("v")] + zipl(sm, seq[4:])
                elif i == 6: seq = zipl(sm, seq)
                else: seq = zipl(sm, seq)
            out += pre + seq
        assert nb == len(bigs)
        return out
    def body(p, kind):
        q = 1-p; n = f"{kind}{p}"
        o0 = [f"K2_BODY{n}:"] + slot(p, 0, kind)
        o1 = [f"K2_MID{n}:"] + slot(p, 1, kind)
        if kind == "F":
            if p == 1: o1 += [f"v_add_u32 v{vA1}, 256, v{vA1}", f"v_add_u32 v{vA2}, 256, v{vA2}"]
            o1 += [f"s_sub_u32 s{scount}, s{scount}, 1", f"s_cmp_eq_u32 s{scount}, 2", f"s_cbranch_scc1 K2_BODYP{q}"]
        return o0, o1
    def entry(kind):
        o = [rd_l2(vOa, 0), rd_l2(vEa, 128)] + [rd_addr(128, j) for j in range(4)] + [W("l")] + oh_idx(0)
        if kind != "L":
            o += [rd_l2(vOa, 128)] + ld_blk(1, 0) + ld_ea(1) + [W("l")] + oh_idx(1) + [rd_l2(vEa, 256)]
        o += [W("v"), W("l"), "@STAMP", mE(0, 0), mA(0, 0), "s_nop 9"] + mP(0, 0)
        if kind != "L": o += ld_blk(1, 1) + [rd_addr(256, j) for j in range(4)]
        o += [mE(0, 1), mA(0, 1)]
        if kind == "F": o += [W("l")] + ld_ea(0)
        iv = []
        for i in range(8):
            v_, l_ = idx_pair(0, 0, i)
            iv += [W("l")] + ([v_[0], v_[1], "s_nop 0"] + v_[2:] if i < NT else v_) + l_
        o += iv[:14] + [W("v")] + mP(0, 1) + iv[14:]
        return o + slot(0, 0, kind, acc=False) + [f"s_branch K2_MID{kind}0"]
    def drain(p): return ["s_nop 1"] + [mG(p, 1, j) for j in range(4)]
    fill0 = [rd_addr(0, j) for j in range(4)] + [rd_l2(vEa, 0), "s_waitcnt lgkmcnt(0)"] + ld_blk(0, 0) + ld_ea(0) + ld_blk(0, 1)
    B = {(p, k): body(p, k) for p in range(2) for k in "FPL"}
    EN = {k: entry(k) for k in "FPL"}
    def trace(cnt):
        kinds = ["F"]*(cnt-2) + ["P", "L"][-min(cnt, 2):]
        tr = fill0 + EN[kinds[0]] + B[(0, kinds[0])][1]
        for t in range(1, cnt): tr += B[(t & 1, kinds[t])][0] + B[(t & 1, kinds[t])][1]
        return tr + drain((cnt-1) & 1)
    nost = lambda l: [x for x in l if x != "@STAMP"]
    need = asmsim.solve_waits([nost(trace(c)) for c in range(1, 9)])
    for c in range(1, 9): asmsim.check_hazards(asmsim.apply_waits(nost(trace(c)), need), f"count {c}")
    def emit(l):
        for x in asmsim.apply_waits(l, need):
            if x == "@STAMP":
                stamp(a, 5); stamp(a, 5, "3")
                if OPT.get("prof") == "3": a(f"s_memtime s[86:87]\ns_mov_b32 s90, s{scount}\ns_getreg_b32 s92, hwreg(HW_REG_HW_ID)")
            else: a(x)

    a(f"s_cmp_eq_u32 s{scount}, 0\ns_cbranch_scc0 K2_FILL0\ns_waitcnt vmcnt(0)\ns_branch K2_FILLED\nK2_FILL0:")
    a.ext(fill0)
    a("K2_FILLED:")
    stamp(a, 4)
    a(f"s_cmp_lg_u32 s{sinit}, 0\ns_cbranch_scc1 K2_NOGEMM")
    XF = G
    accs = [[raw(1,0)+8*nb, raw(1,0)+8*nb+4] for nb in range(3)]
    assert XL % 256 == 0
    a(f"""
    v_and_b32 v{vt}, 15, v0
    v_bfe_u32 v{vt+1}, v0, 4, 2
    v_xor_b32 v{vt+2}, v{vt}, v{vt+1}
    v_lshlrev_b32 v{vt+2}, 4, v{vt+2}
    v_lshl_add_u32 v{vt+2}, v{vt}, 8, v{vt+2}
    """)
    for s in range(4):
        if s: a(f"v_xor_b32 v{vt+3}, {64*s}, v{vt+2}")
        for nb in range(3):
            a(f"ds_read_b128 {vr(XF+16*nb+4*s,4)}, v{vt+3 if s else vt+2} offset:{XL+4096*nb}")
    a(f"v_mul_u32_u24 v{vt}, {ROWP}, v{vt}\ns_waitcnt vmcnt(49)")
    for s in range(4):
        a(f"s_waitcnt lgkmcnt({9-3*s})")
        for nb in range(3):
            for ab in range(2):
                d = vr(accs[nb][ab], 4)
                a(f"v_mfma_f32_16x16x32_bf16 {d}, {vr(WT+16*ab+4*s,4)}, {vr(XF+16*nb+4*s,4)}, {'0' if s == 0 else d}")
    a(f"""
    s_cmp_eq_u32 s{sfh}, 0
    s_cbranch_scc0 K2_GU
    s_lshr_b32 s{st0}, s{sg}, 1
    s_lshl_b32 s{st0}, s{st0}, 7
    s_and_b32 s{st1}, s{sg}, 1
    s_lshl_b32 s{st1}, s{st1}, 5
    s_add_u32 s{st0}, s{st0}, s{st1}
    v_lshl_add_u32 v{vt}, v{vt+1}, 3, v{vt}
    v_add_u32 v{vt}, s{st0}, v{vt}
    """)
    for nb in range(3):
        al, be = accs[nb]
        for i in range(4): a(f"v_mul_f32 v{al+i}, s{cnl2e}, v{al+i}\nv_mul_f32 v{be+i}, s{cnl2e}, v{be+i}")
        a(f"""
        v_cvt_pk_bf16_f32 v{XF+4*nb}, v{al}, v{al+2}
        v_cvt_pk_bf16_f32 v{XF+4*nb+1}, v{be}, v{be+2}
        v_cvt_pk_bf16_f32 v{XF+4*nb+2}, v{al+1}, v{al+3}
        v_cvt_pk_bf16_f32 v{XF+4*nb+3}, v{be+1}, v{be+3}
        ds_write_b64 v{vt}, {vr(XF+4*nb,2)} offset:{APL+16*ROWP*nb}
        ds_write_b64 v{vt}, {vr(XF+4*nb+2,2)} offset:{APL+16*ROWP*nb+64}
        """)
    a(f"""
    s_branch K2_GD
    K2_GU:
    s_lshl_b32 s{st0}, s{sg}, 6
    v_lshl_add_u32 v{vt}, v{vt+1}, 4, v{vt}
    v_add_u32 v{vt}, s{st0}, v{vt}
    s_nop 2
    """)
    for nb in range(3):
        al, be = accs[nb]
        a(f"""
        v_cvt_pk_bf16_f32 v{XF+4*nb}, v{al}, v{al+1}
        v_cvt_pk_bf16_f32 v{XF+4*nb+1}, v{al+2}, v{al+3}
        v_cvt_pk_bf16_f32 v{XF+4*nb+2}, v{be}, v{be+1}
        v_cvt_pk_bf16_f32 v{XF+4*nb+3}, v{be+2}, v{be+3}
        ds_write_b128 v{vt}, {vr(XF+4*nb,4)} offset:{UL+16*ROWP*nb}
        """)
    a(f"""
    K2_GD:
    v_bfe_u32 v{vt}, v0, 2, 2
    v_lshrrev_b32 v{vt+1}, 1, v{vH16}
    v_add_u32 v{vt}, v{vt}, v{vt+1}
    v_mul_u32_u24 v{vt}, {ROWP}, v{vt}
    v_bfe_u32 v{vt+2}, v0, 4, 1
    v_lshl_add_u32 v{vt}, v{vt+2}, 5, v{vt}
    v_and_b32 v{vt+2}, 3, v0
    v_lshl_add_u32 v{vt}, v{vt+2}, 3, v{vt}
    s_mul_i32 s{st0}, s{sg}, {GN*ROWP}
    s_lshl_b32 s{st1}, s{sfh}, 7
    s_add_u32 s{st0}, s{st0}, s{st1}
    v_add_u32 v{vt}, s{st0}, v{vt}
    v_mul_u32_u24 v{vt+1}, {ROWP//2}, v{vt+1}
    v_and_b32 v{vt+2}, 31, v0
    v_lshl_add_u32 v{vt+1}, v{vt+2}, 2, v{vt+1}
    v_add_u32 v{vt+1}, s{st0}, v{vt+1}
    s_mov_b32 s{sinit}, 1
    """)
    for r in range(32): a(f"v_mov_b32 v{ACC+r}, 0")
    a(f"""
    s_waitcnt vmcnt(33) lgkmcnt(0)
    s_barrier
    ds_read_b64_tr_b16 {vr(AP,2)}, v{vt} offset:{APL}
    ds_read_b64_tr_b16 {vr(AP+2,2)}, v{vt} offset:{APL+4*ROWP}
    ds_read_b64_tr_b16 {vr(AP+4,2)}, v{vt} offset:{APL+64}
    ds_read_b64_tr_b16 {vr(AP+6,2)}, v{vt} offset:{APL+4*ROWP+64}
    """)
    for r in range(6): a(f"ds_read_b32 v{UR+r}, v{vt+1} offset:{UL+ROWP*rowoff(r)}")
    a(f"""
    s_waitcnt lgkmcnt(6)
    v_and_b32 v{AP+3}, v{AP+3}, v{vM15}
    v_and_b32 v{AP+7}, v{AP+7}, v{vM15}
    K2_NOGEMM:
    s_cmp_eq_u32 s{scount}, 0
    s_cbranch_scc1 K2_DONE
    """)
    a(f"s_cmp_gt_u32 s{scount}, 2\ns_cbranch_scc1 K2_ENTF\ns_cmp_eq_u32 s{scount}, 2\ns_cbranch_scc1 K2_ENTP")
    emit(EN["L"]); a("K2_ENTP:"); emit(EN["P"]); a("K2_ENTF:"); emit(EN["F"])
    a(".p2align 6")
    for p in range(2): emit(B[(p, "F")][0] + B[(p, "F")][1])
    a("s_branch K2_BODYF0")
    for p in range(2):
        emit(B[(p, "P")][0] + B[(p, "P")][1] + B[(1-p, "L")][0] + B[(1-p, "L")][1] + drain(1-p))
        if p == 0: a("s_branch K2_DONE")
    a(f"""
    K2_DONE:
    s_cmp_lg_u32 s{sslow}, 0
    s_cbranch_scc1 K2_ROUND
    K2_EPI:
    s_waitcnt lgkmcnt(0)
    """)
    stamp(a, 6); stamp(a, 6, "3")
    if OPT.get("prof") == "3": a("s_memtime s[88:89]")
    T0 = G
    for b in range(2):
        for r in range(6):
            a(f"v_add_f32 v{ACC+16*b+r}, 0x358637bd, v{ACC+16*b+r}")
        for r in range(6):
            a(f"v_rcp_f32 v{ACC+16*b+r}, v{ACC+16*b+r}")
        for r in range(6):
            u, x = T0+12*b+r, T0+12*b+6+r
            if b == 0: a(f"v_lshlrev_b32 v{u}, 16, v{UR+r}\nv_lshlrev_b32 v{x}, 16, v{XR+r}")
            else: a(f"v_and_b32 v{u}, 0xffff0000, v{UR+r}\nv_and_b32 v{x}, 0xffff0000, v{XR+r}")
        for r in range(6):
            u, x = T0+12*b+r, T0+12*b+6+r
            a(f"v_fmac_f32 v{u}, v{ACC+16*b+8+r}, v{ACC+16*b+r}\nv_max_f32 v{u}, 0, v{u}\nv_add_f32 v{u}, v{u}, v{x}")
    for r in range(6):
        a(f"v_cvt_pk_bf16_f32 v{SP+r}, v{T0+r}, v{T0+12+r}")
        a(f"buffer_store_dword v{SP+r}, v{vO if r < 4 else vO2}, {sr(sO,4)}, 0 offen offset:{256*rowoff(r)}")
    stamp(a, 7)
    stamp_out(a, 1, 14, sw, 2)
    a("K2_END:\ns_endpgm")

    a("K2_SLOW:")
    srd(a, sS, 8, None, E*4)
    srd(a, sD, 10, None, E*4)
    a(f"""
    s_mov_b32 s{sslow}, 1
    s_mov_b32 s{cm40}, {-BN}
    s_mov_b32 s{cm10}, {-GN}
    """)
    for k in range(4): lut_dma(k)
    late_loads()
    a(f"""
    K2_ROUND:
    s_cmp_ge_u32 s{sround}, {E//512}
    s_cbranch_scc1 K2_EPI
    s_lshl_b32 s{st0}, s{sround}, 9
    s_add_u32 s{sround}, s{sround}, 1
    v_add_u32 v{EOFF}, s{st0}, v0
    v_lshlrev_b32 v{vt}, 2, v{EOFF}
    buffer_load_dword v{REC}, v{vt}, {sr(sD,4)}, 0 offen
    buffer_load_dword v{REC+1}, v{vt}, {sr(sS,4)}, 0 offen
    v_lshlrev_b32 v{EOFF}, 5, v{EOFF}
    v_and_b32 v{vt}, 63, v0
    v_lshlrev_b32 v{vt}, 2, v{vt}
    v_mov_b32 v{vt+1}, 0
    s_waitcnt lgkmcnt(0)
    s_barrier
    ds_write_b32 v{vt}, v{vt+1} offset:{CNT}
    v_mov_b32 v{vt+3}, 4
    s_waitcnt vmcnt(0) lgkmcnt(0)
    s_barrier
    """)
    rec_fields(a, REC, REC+2, vt, cm40, cm10)
    a(f"""
    v_cmp_eq_u32 vcc, s2, v{REC+2}
    v_lshl_or_b32 v{REC}, v{REC+1}, 16, v{REC}
    {caddr(0)}
    s_mov_b64 s[78:79], vcc
    s_mov_b64 exec, vcc
    ds_add_rtn_u32 v{RANK}, v{CADDR}, v{vt+3} offset:{CNT}
    s_mov_b64 exec, -1
    s_waitcnt lgkmcnt(0)
    s_barrier
    """)
    scan(); tail()
    a(f"""
    s_mov_b64 exec, s[78:79]
    ds_read_b32 v{STV}, v{CADDR} offset:{START}
    s_waitcnt lgkmcnt(0)
    """)
    place(0)
    a(f"""
    s_mov_b64 exec, -1
    s_waitcnt lgkmcnt(0)
    s_barrier
    s_branch K2_FILL
    K2_CODE_END:
    """)
    return a.text(), kd("k2_kernel", 253, 102)

def main():
    k1, d1 = gen_k1(); k2, d2 = gen_k2()
    ref = open("standalone__edge_featured_mpnn_gatedgcn__graph.s.ref").read().split("\n")
    out = "\n".join(ref[:13]) + "\n"
    for ch in OPT.get("list", "12"):
        if ch == "1": out += f"; @launch kernel=k1_kernel grid=({2*NCH},1,1) block=(1024,1,1) lds={K1_LDS}\n"
        if ch == "2": out += f"; @launch kernel=k2_kernel grid=({NBIN},1,1) block=(512,1,1) lds={K2_LDS}\n"
        if ch == "e": out += "; @launch kernel=ke_kernel grid=(1,1,1) block=(64,1,1) lds=0\n"
    out += '.amdgcn_target "amdgcn-amd-amdhsa--gfx950"\n.text\n'
    for n, k in (("k1_kernel", k1), ("k2_kernel", k2)):
        out += f".globl {n}\n.p2align 8\n.type {n},@function\n" + k
    if "e" in OPT.get("list", ""): out += ".globl ke_kernel\n.p2align 8\n.type ke_kernel,@function\nke_kernel:\n    s_endpgm\n"
    out += '.section .rodata,"a"\n.p2align 6\n' + d1.lstrip("\n") + '.p2align 6\n' + d2.lstrip("\n")
    if "e" in OPT.get("list", ""): out += '.p2align 6\n' + kd("ke_kernel", 8, 16).lstrip("\n")
    open(sys.argv[1], "w").write(out)

if __name__ == "__main__":
    main()
```

```python
import struct, sys
import asmsim

N = 10000; E = 320000
NCH = 128; CS = 2500
NBIN = 250; BN = 40; GN = 10
CAP = 32
T_OFF = 0x100000
REC_OFF = 0x700000
WT_OFF = 0xB00000
LUT_OFF = 0xB20000
PROF_OFF = 0xF000000
NL2E = struct.unpack("<I", struct.pack("<f", -1.4426950408889634))[0]

def bf(x): return struct.unpack("<I", struct.pack("<f", x))[0] >> 16

OPT = dict(st_r="sc1", st_t="sc1")
for a in sys.argv[2:]:
    k, v = a.split("=", 1); OPT[k] = v

class Asm:
    def __init__(self): self.l = []
    def __call__(self, s):
        for x in s.strip("\n").split("\n"):
            x = x.strip()
            if not x: continue
            if x.startswith(";"): x = "s_nop 0"
            self.l.append(x if x.endswith(":") else "    " + x)
    def ext(self, lst):
        for x in lst: self(x)
    def text(self): return "\n".join(self.l) + "\n"

def stamp(a, i, lvl="1"):
    if OPT.get("prof") and (i in (0, 8) or OPT["prof"] == lvl): a(f"s_memrealtime s[{84+2*i}:{85+2*i}]")
def stamp_out(a, kern, wsreg, sw, vtmp):
    if not OPT.get("prof"): return
    a("s_waitcnt vmcnt(0)")
    stamp(a, 8)
    a(f"""
    s_lshl_b32 s4, s2, 4
    s_add_u32 s4, s4, s{sw}
    s_lshl_b32 s4, s4, 6
    s_add_u32 s4, s4, {PROF_OFF + kern*0x100000}
    s_add_u32 s4, s{wsreg}, s4
    s_addc_u32 s5, s{wsreg+1}, 0
    s_mov_b32 s6, 64
    s_mov_b32 s7, 0x20000
    s_waitcnt lgkmcnt(0)
    """)
    for i in range(9): a(f"v_writelane_b32 v{vtmp}, s{84+2*i}, {i}")
    a(f"""
    v_mbcnt_lo_u32_b32 v{vtmp+1}, -1, 0
    v_mbcnt_hi_u32_b32 v{vtmp+1}, -1, v{vtmp+1}
    v_lshlrev_b32 v{vtmp+1}, 2, v{vtmp+1}
    buffer_store_dword v{vtmp}, v{vtmp+1}, s[4:7], 0 offen
    """)

def vr(b, n): return f"v[{b}:{b+n-1}]"
def sr(b, n): return f"s[{b}:{b+n-1}]"

def srd(a, d, base, add=None, size=None, w3="0x20000", hi_or=None):
    if add is None:
        a(f"s_mov_b32 s{d}, s{base}\ns_mov_b32 s{d+1}, s{base+1}")
    else:
        a(f"s_add_u32 s{d}, s{base}, {add}\ns_addc_u32 s{d+1}, s{base+1}, 0")
    if hi_or: a(f"s_or_b32 s{d+1}, s{d+1}, {hi_or}")
    a(f"s_mov_b32 s{d+2}, {size}\ns_mov_b32 s{d+3}, {w3}")

def kd(name, vgpr, sgpr):
    return f"""
.amdhsa_kernel {name}
  .amdhsa_next_free_vgpr {vgpr}
  .amdhsa_next_free_sgpr {sgpr}
  .amdhsa_accum_offset {(vgpr+3)//4*4}
  .amdhsa_group_segment_fixed_size 0
  .amdhsa_kernarg_size 96
  .amdhsa_user_sgpr_count 2
  .amdhsa_user_sgpr_kernarg_segment_ptr 1
  .amdhsa_system_sgpr_workgroup_id_x 1
.end_amdhsa_kernel
"""

def rec_fields(a, vd, vbin, vtmp, sm40, sm10):
    a(f"""
    v_mul_u32_u24 v{vbin}, 52429, v{vd}
    v_lshrrev_b32 v{vbin}, 21, v{vbin}
    v_mad_i32_i24 v{vd}, v{vbin}, s{sm40}, v{vd}
    v_mul_u32_u24 v{vtmp}, 26, v{vd}
    v_lshrrev_b32 v{vtmp}, 8, v{vtmp}
    v_mad_i32_i24 v{vd}, v{vtmp}, s{sm10}, v{vd}
    v_lshl_or_b32 v{vd}, v{vtmp}, 30, v{vd}
    """)

K1_CNT = 0; K1_STG = 1024; K1_X = 65536; K1_LDS = K1_X + 20480
def gen_k1():
    a = Asm()
    sS, sD, sW1, sW2, sX, sR, sT = 24, 28, 32, 36, 40, 44, 48
    sw, st0, st1, st2, sng, sfb, stask = 52, 53, 54, 55, 56, 57, 58
    c4096, c8192, cm40, cm10, cnl2e, csign, cmag, ctso = 59, 60, 61, 62, 63, 64, 65, 66
    a("k1_kernel:")
    a(f"s_cmp_ge_u32 s2, {2*NCH}\ns_cbranch_scc1 K1_END")
    stamp(a, 0)
    a(f"""
    s_load_dwordx16 s[4:19], s[0:1], 0
    s_load_dwordx2 s[20:21], s[0:1], 64
    s_load_dwordx2 s[22:23], s[0:1], 88
    v_lshrrev_b32 v2, 6, v0
    v_lshlrev_b32 v1, 2, v0
    v_readfirstlane_b32 s{sw}, v2
    s_mov_b32 s{c4096}, 4096
    s_mov_b32 s{c8192}, 8192
    s_cmp_ge_u32 s2, {NCH}
    s_cbranch_scc1 K1_GEMM
    """)
    vD, vS, vB, vSL, vt = 2, 5, 8, 11, 16
    a(f"s_mul_i32 s{st1}, s2, {CS*4}\ns_waitcnt lgkmcnt(0)")
    srd(a, sD, 10, f"s{st1}", CS*4)
    srd(a, sS, 8, f"s{st1}", CS*4)
    for r, so in enumerate(("0", f"s{c4096}", f"s{c8192}")):
        a(f"buffer_load_dword v{vD+r}, v1, {sr(sD,4)}, {so} offen")
        a(f"buffer_load_dword v{vS+r}, v1, {sr(sS,4)}, {so} offen")
    a(f"""
    v_mov_b32 v{vt}, -1
    v_mov_b32 v{vt+1}, -1
    v_mov_b32 v{vt+2}, -1
    v_mov_b32 v{vt+3}, -1
    v_lshlrev_b32 v{vt+4}, 4, v0
    v_mov_b32 v{vt+5}, 0
    v_and_b32 v{vt+6}, 0x3fc, v1
    ds_write_b128 v{vt+4}, {vr(vt,4)} offset:{K1_STG}
    ds_write_b128 v{vt+4}, {vr(vt,4)} offset:{K1_STG+16384}
    ds_write_b32 v{vt+6}, v{vt+5} offset:{K1_CNT}
    s_lshl_b32 s{st0}, s2, 7
    s_add_u32 s{st0}, s{st0}, {REC_OFF}
    """)
    srd(a, sR, 22, f"s{st0}", NBIN*NCH*128)
    a(f"s_lshl_b32 s{st0}, s2, 9\ns_add_u32 s{st1}, s{st0}, {LUT_OFF}")
    srd(a, sT, 22, f"s{st1}", 512)
    a(f"""
    v_add_u32 v40, s{st0}, v1
    v_and_b32 v41, 0x7fff, v40
    v_cmp_ne_u32 vcc, 0x7c00, v41
    v_or_b32 v41, 3, v40
    s_nop 0
    v_addc_co_u32 v40, vcc, 0, v40, vcc
    v_cvt_f32_f16 v41, v41
    v_cvt_f32_f16 v40, v40
    v_exp_f32 v41, v41
    v_exp_f32 v40, v40
    v_add_f32 v41, 1.0, v41
    v_add_f32 v40, 1.0, v40
    v_rcp_f32 v41, v41
    v_rcp_f32 v40, v40
    s_nop 0
    v_cvt_pk_bf16_f32 v40, v40, v41
    buffer_store_dword v40, v1, {sr(sT,4)}, 0 offen
    """)
    if OPT.get("pe", "1") == "1":
        a(f"s_mul_i32 s{st0}, s2, {CS*32}")
        srd(a, sW2, 6, f"s{st0}", CS*32)
        a(f"v_lshlrev_b32 v46, 7, v0\nbuffer_load_dword v47, v46, {sr(sW2,4)}, 0 offen {OPT.get('pef', '')}")
    if OPT.get("pf", "0") == "1":
        a(f"""
        s_getpc_b64 {sr(sW1,2)}
        K1_PC:
        s_add_u32 s{sW1}, s{sW1}, k2_kernel-K1_PC
        s_addc_u32 s{sW1+1}, s{sW1+1}, 0
        s_mov_b32 s{sW1+2}, K2_CODE_END-k2_kernel
        s_mov_b32 s{sW1+3}, 0x20000
        v_lshlrev_b32 v44, 5, v0
        buffer_load_dword v45, v44, {sr(sW1,4)}, 0 offen
        """)
    a(f"""
    s_mov_b32 s{cm40}, {-BN}
    s_mov_b32 s{cm10}, {-GN}
    v_mov_b32 v{vt+5}, 1
    v_cmp_gt_u32 vcc, {CS-2048}, v0
    s_mov_b64 s[80:81], vcc
    v_lshrrev_b32 v{vt+7}, 3, v0
    v_and_b32 v{vt+8}, 7, v0
    v_lshlrev_b32 v{vt+9}, 14, v{vt+7}
    v_lshl_add_u32 v{vt+9}, v{vt+8}, 4, v{vt+9}
    v_lshlrev_b32 v{vt+7}, 2, v{vt+7}
    v_cmp_eq_u32 s[82:83], 7, v{vt+8}
    s_mov_b32 s{st2}, {128*16384}
    s_waitcnt lgkmcnt(0)
    s_barrier
    """)
    stamp(a, 1)
    for r in range(3):
        a(f"s_waitcnt vmcnt({4-2*r + 1 + (OPT.get('pf', '0') == '1') + (OPT.get('pe', '1') == '1')})")
        if r == 0: stamp(a, 2)
        rec_fields(a, vD+r, vB+r, vt, cm40, cm10)
        a(f"v_lshlrev_b32 v{vt}, 2, v{vB+r}")
        if r == 2: a("s_mov_b64 exec, s[80:81]")
        a(f"ds_add_rtn_u32 v{vSL+r}, v{vt}, v{vt+5} offset:{K1_CNT}")
        if r == 2: a("s_mov_b64 exec, -1")
        a(f"""
        v_lshl_or_b32 v{vD+r}, v{vS+r}, 16, v{vD+r}
        v_add_u32 v{vS+r}, {1024*r}, v0
        v_lshl_or_b32 v{vD+r}, v{vS+r}, 4, v{vD+r}
        v_lshlrev_b32 v{vB+r}, 7, v{vB+r}
        """)
    for r in range(3):
        a(f"s_waitcnt lgkmcnt({2-r})" if r == 0 else f"s_waitcnt lgkmcnt({2})" if r == 1 else "s_waitcnt lgkmcnt(2)")
        if r == 2: a("s_mov_b64 exec, s[80:81]")
        a(f"""
        v_lshl_add_u32 v{vB+r}, v{vSL+r}, 2, v{vB+r}
        v_cmpx_gt_u32 vcc, {CAP}, v{vSL+r}
        ds_write_b32 v{vB+r}, v{vD+r} offset:{K1_STG}
        s_mov_b64 exec, -1
        """)
    a("s_waitcnt lgkmcnt(0)")
    stamp(a, 3)
    a("s_barrier")
    stamp(a, 4)
    a(f"""
    ds_read_b128 {vr(vt+12,4)}, v{vt+4} offset:{K1_STG}
    ds_read_b32 v{vt}, v{vt+7} offset:{K1_CNT}
    ds_read_b128 {vr(vt+16,4)}, v{vt+4} offset:{K1_STG+16384}
    ds_read_b32 v{vt+1}, v{vt+7} offset:{K1_CNT+512}
    v_mov_b32 v{vt+2}, -2
    """)
    for k in range(2):
        a(f"""
        s_waitcnt lgkmcnt({2-2*k})
        v_cmp_lt_u32 vcc, {CAP}, v{vt+k}
        s_and_b64 vcc, vcc, s[82:83]
        s_nop 1
        v_cndmask_b32 v{vt+15+4*k}, v{vt+15+4*k}, v{vt+2}, vcc
        buffer_store_dwordx4 {vr(vt+12+4*k,4)}, v{vt+9}, {sr(sR,4)}, {'0' if k == 0 else f's{st2}'} offen {OPT['st_r']}
        """)
    stamp(a, 5); stamp(a, 6); stamp(a, 7)
    stamp_out(a, 0, 22, sw, 2)
    a("s_endpgm")
    vW, vX, vA, vt = 32, 96, 112, 2
    def W(m, ab, s): return vW + 32*m + 16*ab + 4*s
    a(f"""
    K1_GEMM:
    s_sub_u32 s{stask}, s2, {NCH}
    s_and_b32 s{sfb}, s{sw}, 3
    s_lshr_b32 s{sng}, s{sw}, 2
    v_and_b32 v{vt}, 63, v0
    v_lshrrev_b32 v{vt+1}, 4, v{vt}
    v_and_b32 v{vt+2}, 15, v0
    s_lshl_b32 s{st0}, s{sfb}, 2
    v_add_u32 v{vt+3}, s{st0}, v{vt+1}
    v_xor_b32 v{vt+3}, v{vt+3}, v{vt+2}
    v_lshlrev_b32 v{vt+3}, 4, v{vt+3}
    v_lshl_add_u32 v{vt+3}, v{vt+1}, 8, v{vt+3}
    v_lshlrev_b32 v{vt+4}, 2, v{vt+1}
    v_xor_b32 v{vt+4}, v{vt+4}, v{vt+2}
    v_lshlrev_b32 v{vt+4}, 4, v{vt+4}
    v_lshl_add_u32 v{vt+4}, v{vt+1}, 8, v{vt+4}
    s_mul_i32 s{st0}, s{stask}, 20480
    s_cmp_lt_u32 s{stask}, 125
    s_cselect_b32 s{st0}, s{st0}, 0
    s_cselect_b32 s{st2}, 20480, 0
    s_waitcnt lgkmcnt(0)
    s_cmp_ge_u32 s{stask}, 126
    s_cbranch_scc1 K1_WC
    s_add_u32 s{sX}, s4, s{st0}
    s_addc_u32 s{sX+1}, s5, 0
    s_mov_b32 s{sX+2}, s{st2}
    s_mov_b32 s{sX+3}, 0x20000
    s_lshl_b32 s{st1}, s{sw}, 10
    s_add_u32 m0, s{st1}, {K1_X}
    s_cmp_eq_u32 s{stask}, 125
    s_cselect_b64 {sr(sW1,2)}, s[12:13], s[14:15]
    s_cselect_b64 {sr(sW2,2)}, s[18:19], s[20:21]
    buffer_load_dwordx4 v{vt+3}, {sr(sX,4)}, s{st1} offen lds
    s_cmp_lt_u32 s{sw}, 4
    s_cbranch_scc0 K1_X1
    s_add_u32 m0, s{st1}, {K1_X+16384}
    s_add_u32 s{st1}, s{st1}, 16384
    buffer_load_dwordx4 v{vt+3}, {sr(sX,4)}, s{st1} offen lds
    K1_X1:
    s_mov_b32 s{sW1+2}, 32768
    s_mov_b32 s{sW1+3}, 0x20000
    s_mov_b32 s{sW2+2}, 32768
    s_mov_b32 s{sW2+3}, 0x20000
    s_lshl_b32 s{st1}, s{sw}, 11
    s_mov_b32 m0, s{st1}
    s_lshl_b32 s{st0}, s{st0}, 1
    buffer_load_dwordx4 v{vt+4}, {sr(sW1,4)}, s{st1} offen lds
    buffer_load_dwordx4 v{vt+4}, {sr(sW1,4)}, s{st1} offen offset:1024 lds
    s_add_u32 m0, s{st1}, 32768
    s_add_u32 s{st0}, s{st0}, {T_OFF}
    buffer_load_dwordx4 v{vt+4}, {sr(sW2,4)}, s{st1} offen lds
    buffer_load_dwordx4 v{vt+4}, {sr(sW2,4)}, s{st1} offen offset:1024 lds
    """)
    srd(a, sT, 22, f"s{st0}", 40960)
    a(f"""
    v_bfe_u32 v{vt+5}, v0, 2, 2
    v_and_b32 v{vt+6}, 3, v0
    s_lshl_b32 s{st0}, s{sfb}, 2
    v_add_u32 v{vt+6}, s{st0}, v{vt+6}
    v_lshlrev_b32 v{vt+7}, 2, v{vt+5}
    v_xor_b32 v{vt+6}, v{vt+6}, v{vt+7}
    v_lshl_add_u32 v{vt+5}, v{vt+1}, 3, v{vt+5}
    v_lshlrev_b32 v{vt+5}, 8, v{vt+5}
    v_lshl_add_u32 v10, v{vt+6}, 4, v{vt+5}
    v_xor_b32 v11, v{vt+1}, v{vt+2}
    v_lshlrev_b32 v11, 4, v11
    v_lshl_add_u32 v11, v{vt+2}, 8, v11
    s_lshl_b32 s{st0}, s{sng}, 12
    s_add_u32 s{st0}, s{st0}, {K1_X}
    v_add_u32 v11, s{st0}, v11
    v_lshlrev_b32 v12, 9, v{vt+2}
    v_lshl_add_u32 v12, v{vt+1}, 4, v12
    s_lshl_b32 s{st0}, s{sng}, 13
    s_lshr_b32 s{st1}, s{sfb}, 1
    s_lshl_b32 s{st1}, s{st1}, 8
    s_add_u32 s{st0}, s{st0}, s{st1}
    s_and_b32 s{st1}, s{sfb}, 1
    s_lshl_b32 s{st1}, s{st1}, 6
    s_add_u32 s{ctso}, s{st0}, s{st1}
    s_mov_b32 s{cnl2e}, {NL2E:#x}
    s_mov_b32 s{csign}, 0x80000000
    s_mov_b32 s{cmag}, 0x7fff0000
    v_xor_b32 v13, 64, v11
    v_xor_b32 v14, 0x80, v11
    v_xor_b32 v15, 0xc0, v11
    """)
    stamp(a, 1)
    a("s_waitcnt vmcnt(0)")
    stamp(a, 2)
    a("s_barrier")
    stamp(a, 3)
    def xrd(off):
        for s in range(4): a(f"ds_read_b128 {vr(vX+4*s,4)}, v{[11,13,14,15][s]} offset:{off}")
    xrd(0)
    n = 4
    for s in range(4):
        for m in range(2):
            for ab in range(2):
                for u in range(2):
                    a(f"ds_read_b64_tr_b16 {vr(W(m,ab,s)+2*u,2)}, v10 offset:{m*32768+s*8192+u*1024+ab*8}")
        if s < 3: a("s_waitcnt lgkmcnt(6)")
    a(f"s_cmp_eq_u32 s{stask}, 125\ns_cbranch_scc1 K1_WT")
    def mm():
        for s in range(4):
            for m in range(2):
                for ab in range(2):
                    d = vr(vA+8*m+4*ab, 4)
                    a(f"v_mfma_f32_16x16x32_bf16 {d}, {vr(W(m,ab,s),4)}, {vr(vX+4*s,4)}, {'0' if s == 0 else d}")
    def pack(so):
        a("s_nop 7")
        for b in range(2):
            for n_, (ab, i) in enumerate(((0, b), (0, 2+b), (1, b), (1, 2+b))):
                bb = vA+4*ab+i; h = vA+8+4*ab+i; t = 16; o = 20+4*b+n_
                a(f"""
                v_mul_f32 v{bb}, s{cnl2e}, v{bb}
                v_and_b32 v{t}, 0x7fffffff, v{h}
                v_cvt_pk_bf16_f32 v{bb}, v{bb}, v{bb}
                v_max_u32 v{t}, 0x10000, v{t}
                v_and_b32 v{bb}, 0xffff, v{bb}
                v_add_u32 v{t}, 0x8000, v{t}
                v_and_or_b32 v{h}, v{h}, s{csign}, v{bb}
                v_sub_u32 v{t}, v{t}, v{bb}
                v_bfi_b32 v{o}, s{cmag}, v{t}, v{h}
                """)
            a(f"buffer_store_dwordx4 {vr(20+4*b,4)}, v12, {sr(sT,4)}, s{so} offen offset:{128*b} {OPT['st_t']}")
    a("s_waitcnt lgkmcnt(0)")
    mm()
    stamp(a, 4)
    a(f"s_cmp_eq_u32 s{sng}, 0\ns_cbranch_scc0 K1_ONE")
    xrd(16384)
    pack(ctso)
    a(f"s_add_u32 s{ctso}, s{ctso}, 32768\ns_waitcnt lgkmcnt(0)")
    mm()
    a("K1_ONE:")
    pack(ctso)
    stamp(a, 5); stamp(a, 6); stamp(a, 7)
    stamp_out(a, 0, 22, sw, 2)
    a("s_endpgm")
    a("K1_WT:")
    srd(a, sT, 22, WT_OFF, 65536)
    a(f"""
    s_cmp_ge_u32 s{sw}, 8
    s_cbranch_scc1 K1_END
    v_lshlrev_b32 v{vt+1}, 4, v{vt}
    s_lshl_b32 s{st0}, s{sw}, 13
    s_add_u32 s{st1}, s{st0}, 4096
    s_waitcnt lgkmcnt(0)
    s_cmp_eq_u32 s{sng}, 0
    s_cbranch_scc0 K1_WU
    """)
    for m in range(2):
        for ab in range(2):
            for s in range(4):
                a(f"buffer_store_dwordx4 {vr(W(m,ab,s),4)}, v{vt+1}, {sr(sT,4)}, s{st1 if ab else st0} offen offset:{1024*s}")
        a("s_endpgm")
        if m == 0: a("K1_WU:")
    a("K1_WC:")
    srd(a, sT, 22, WT_OFF+65536, 4096)
    srd(a, sW1, 16, None, 4096)
    a(f"""
    s_cmp_eq_u32 s{stask}, 126
    s_cbranch_scc0 K1_END
    s_cmp_ge_u32 s{sw}, 4
    s_cbranch_scc1 K1_END
    v_lshrrev_b32 v{vt+2}, 5, v{vt}
    v_and_b32 v{vt+3}, 31, v0
    v_lshlrev_b32 v{vt+3}, 2, v{vt+3}
    v_lshl_add_u32 v{vt+3}, v{vt+2}, 11, v{vt+3}
    v_lshlrev_b32 v{vt+1}, 4, v{vt}
    s_lshr_b32 s{st1}, s{sw}, 1
    s_lshl_b32 s{st1}, s{st1}, 7
    s_and_b32 s{st0}, s{sw}, 1
    s_lshl_b32 s{st0}, s{st0}, 1
    s_add_u32 s{st1}, s{st1}, s{st0}
    s_lshl_b32 s{st0}, s{sw}, 10
    s_mov_b32 s{cnl2e}, {NL2E:#x}
    """)
    for j in range(8):
        a(f"buffer_load_ushort v{20+j}, v{vt+3}, {sr(sW1,4)}, s{st1} offen offset:{256*j}")
    a("s_waitcnt vmcnt(0)")
    for j in range(8):
        a(f"v_lshlrev_b32 v{20+j}, 16, v{20+j}\nv_mul_f32 v{20+j}, s{cnl2e}, v{20+j}")
    for j in range(4):
        a(f"v_cvt_pk_bf16_f32 v{28+j}, v{20+2*j}, v{21+2*j}")
    a(f"buffer_store_dwordx4 v[28:31], v{vt+1}, {sr(sT,4)}, s{st0} offen")
    a("K1_END:\ns_endpgm")
    return a.text(), kd("k1_kernel", 128, 102)

CAPG = 640
CNT = 0; START = 256; OHL = 512; L1 = 1024; L2 = L1 + 4*CAPG*4; APL = L2 + 4*CAPG*4
ROWP = 272
UL = APL + 48*ROWP; XL = UL + 48*ROWP; LUTL = XL + 12288; K2_LDS = LUTL + 65536

def gen_k2():
    a = Asm()
    sREC, sX, sWT, sT, sE, sO, sD, sS = 24, 28, 32, 36, 40, 44, 68, 72
    sw, sg, sfh, st0, st1, st2 = 48, 49, 50, 51, 52, 53
    scount, sslow, sround, sinit, sgb, srt, slut, srank = 54, 55, 56, 57, 58, 59, 82, 83
    cm32, c128, cnl2e, cfc, csrc, cm40, cm10, cfe = 60, 61, 62, 63, 64, 65, 66, 67
    sk = 16
    vH16, vA1, vA2, vEa, vOa, vO, vO2 = 1, 2, 3, 4, 5, 6, 7
    WC = 8; AP = 16; PA = 24; SC = 28; OH = 32; EA = 40; ADDR = 48; ACC = 64; SP = 96; G = 112; RAW = 176
    XR = 240; UR = 246; vM15 = 252; vH256 = 253
    raw = lambda p, b: RAW + 32*p + 16*b
    gb = lambda p, b: G + 32*p + 16*b
    vt = gb(1, 1); WT = ACC; Z = SP; EOFF = SP+15
    REC = raw(1, 0); CADDR = REC+8; RANK = REC+16; STV = REC+24
    NT = int(OPT.get("nt", "1"))
    rowoff = lambda r: 8*(r >> 2) + (r & 3)

    a("k2_kernel:")
    a(f"s_cmp_ge_u32 s2, {NBIN}\ns_cbranch_scc1 K2_END")
    stamp(a, 0)
    a(f"""
    s_load_dwordx8 s[4:11], s[0:1], 0
    s_load_dwordx2 s[12:13], s[0:1], 72
    s_load_dwordx2 s[14:15], s[0:1], 88
    v_lshrrev_b32 v{vt}, 6, v0
    v_lshrrev_b32 v{vt+1}, 2, v0
    v_readfirstlane_b32 s{sw}, v{vt}
    v_and_b32 v{vt+2}, 3, v0
    v_lshlrev_b32 v{vt+3}, 7, v{vt+1}
    v_lshl_add_u32 v{vt+3}, v{vt+2}, 4, v{vt+3}
    s_lshl_b32 s{st0}, s2, 14
    s_add_u32 s{st0}, s{st0}, {REC_OFF}
    v_mul_u32_u24 v{EOFF}, {CS*32}, v{vt+1}
    v_and_b32 v{vt}, 63, v0
    v_lshlrev_b32 v{vt+5}, 2, v{vt}
    v_mov_b32 v{Z}, 0
    ds_write_b32 v{vt+5}, v{Z} offset:{CNT}
    v_lshrrev_b32 v{vt+4}, 4, v{vt}
    s_and_b32 s{sg}, s{sw}, 3
    s_lshr_b32 s{sfh}, s{sw}, 2
    s_lshl_b32 s{st1}, s{sg}, 2
    v_add_u32 v{vA1}, s{st1}, v{vt+4}
    v_and_b32 v{vA2}, 15, v0
    v_xor_b32 v{vA1}, v{vA1}, v{vA2}
    v_lshlrev_b32 v{vA1}, 4, v{vA1}
    v_lshl_add_u32 v{vA1}, v{vt+4}, 8, v{vA1}
    v_lshlrev_b32 v{vA2}, 4, v{vt}
    s_lshr_b32 s{srt}, s2, 3
    s_add_u32 s{srt}, s{srt}, s{sw}
    s_and_b32 s{srt}, s{srt}, 7
    s_lshl_b32 s{slut}, s{srt}, 13
    s_lshl_b32 s{st1}, s{sw}, 10
    s_add_u32 m0, s{st1}, {XL}
    s_waitcnt lgkmcnt(0)
    """)
    srd(a, sREC, 14, f"s{st0}", 16384)
    for r in range(2):
        a(f"buffer_load_dwordx4 {vr(REC+4*r,4)}, v{vt+3}, {sr(sREC,4)}, 0 offen offset:{64*r}")
    a(f"s_mul_i32 s{st0}, s2, {BN*256}")
    srd(a, sX, 4, f"s{st0}", BN*256)
    srd(a, sWT, 14, WT_OFF, LUT_OFF - WT_OFF + 65536)
    a("s_barrier")
    stamp(a, 1)
    a(f"""
    buffer_load_dwordx4 v{vA1}, {sr(sX,4)}, s{st1} offen lds
    s_cmp_lt_u32 s{sw}, 4
    s_cbranch_scc0 K2_X1
    s_add_u32 m0, s{st1}, {XL+8192}
    s_add_u32 s{st2}, s{st1}, 8192
    buffer_load_dwordx4 v{vA1}, {sr(sX,4)}, s{st2} offen lds
    K2_X1:
    s_add_u32 s{st2}, s{slut}, 4096
    """)
    for k in range(8):
        a(f"buffer_load_dwordx4 {vr(WT+4*k,4)}, v{vA2}, {sr(sWT,4)}, s{st2 if k >= 4 else slut} offen offset:{1024*(k&3)}")
    a(f"""
    s_lshl_b32 s{st1}, s{sfh}, 11
    s_add_u32 s{st1}, s{st1}, 65536
    buffer_load_dwordx4 {vr(WC,4)}, v{vA2}, {sr(sWT,4)}, s{st1} offen
    buffer_load_dwordx4 {vr(WC+4,4)}, v{vA2}, {sr(sWT,4)}, s{st1} offen offset:1024
    """)
    def lut_dma(k):
        a(f"""
        s_add_u32 m0, s{slut}, {LUTL + 2048*k}
        s_add_u32 s{st2}, s{slut}, {LUT_OFF - WT_OFF + 2048*k}
        buffer_load_dwordx4 v{vA2}, {sr(sWT,4)}, s{st2} offen lds
        buffer_load_dwordx4 v{vA2}, {sr(sWT,4)}, s{st2} offen offset:1024 lds
        """)
    def ld_xr(): return [f"buffer_load_dword v{XR+r}, v{vO}, {sr(sX,4)}, 0 offen offset:{256*rowoff(r)}" for r in range(6)]
    srd(a, sO, 12, f"s{st0}", BN*256)
    a(f"s_lshl_b32 s{st0}, s{sfh}, 8\ns_add_u32 s{st0}, s{st0}, {T_OFF-128}")
    srd(a, sT, 14, f"s{st0}", 64, w3="0x800000", hi_or="0x40000")
    srd(a, sE, 6, None, E*32)
    a(f"""
    v_cmp_gt_u32 vcc, 128, v0
    s_and_saveexec_b64 s[76:77], vcc
    v_lshlrev_b32 v{vt+3}, 2, v0
    v_bfe_u32 v{vt+4}, v0, 2, 4
    v_and_b32 v{Z+4}, 3, v0
    v_lshrrev_b32 v{Z+5}, 6, v0
    v_lshl_add_u32 v{Z+4}, v{Z+5}, 2, v{Z+4}
    v_lshlrev_b32 v{Z+5}, 1, v{Z+4}
    v_mov_b32 v{Z+6}, 0x3f80
    v_mov_b32 v{Z+7}, 0x3f800000
    v_cmp_eq_u32 vcc, v{Z+5}, v{vt+4}
    v_add_u32 v{Z+5}, 1, v{Z+5}
    s_nop 0
    v_cndmask_b32 v{Z+8}, 0, v{Z+6}, vcc
    v_cmp_eq_u32 vcc, v{Z+5}, v{vt+4}
    v_cmp_eq_u32 s[78:79], 7, v{Z+4}
    s_or_b64 vcc, vcc, s[78:79]
    s_nop 1
    v_cndmask_b32 v{Z+9}, 0, v{Z+7}, vcc
    v_or_b32 v{Z+8}, v{Z+8}, v{Z+9}
    v_cmp_gt_u32 vcc, 15, v{vt+4}
    s_nop 1
    v_cndmask_b32 v{Z+8}, 0, v{Z+8}, vcc
    ds_write_b32 v{vt+3}, v{Z+8} offset:{OHL}
    s_mov_b64 exec, s[76:77]
    s_mov_b32 s{cm32}, {'0x7e0' if 'e' in OPT.get('nomem','') else '0xffffffe0'}
    s_mov_b32 s{c128}, 128
    s_mov_b32 s{cnl2e}, {NL2E:#x}
    s_mov_b32 s{cfc}, 0xfc
    s_mov_b32 s{cfe}, {OPT.get('cfe', '0xfffe')}
    s_mov_b32 s{csrc}, {'0x3e00' if 't' in OPT.get('nomem','') else '0x7ffe00'}
    s_mov_b32 s{sslow}, 0
    s_mov_b32 s{sround}, 0
    s_mov_b32 s{sinit}, 0
    s_mul_i32 s{st0}, s{sfh}, 3
    s_xor_b32 s{srank}, s{sg}, s{st0}
    v_lshrrev_b32 v{vt+3}, 5, v{vt}
    v_and_b32 v{vt+4}, 31, v0
    v_lshlrev_b32 v{vH16}, 4, v{vt+3}
    v_lshlrev_b32 v{vH256}, 8, v{vt+3}
    v_cmp_eq_u32 vcc, 0, v{vt+3}
    v_mov_b32 v{vM15}, 0xffff
    v_mov_b32 v{Z+4}, -1
    v_cndmask_b32 v{vM15}, v{vM15}, v{Z+4}, vcc
    v_and_b32 v{Z+4}, 3, v0
    v_mov_b32 v{Z+6}, 0x3f80
    """)
    for i in range(4):
        a(f"v_cmp_eq_u32 vcc, {i}, v{Z+4}\ns_nop 1\nv_cndmask_b32 v{PA+i}, 0, v{Z+6}, vcc")
    den = bf(127*2.0**-116); tiny = bf(2.0**-100)
    a(f"""
    v_cmp_gt_u32 s[78:79], 16, v{vt+4}
    v_mov_b32 v{Z+5}, {den:#x}
    v_mov_b32 v{Z+7}, {tiny<<16:#x}
    v_cndmask_b32 v{Z+5}, v{Z+6}, v{Z+5}, s[78:79]
    v_cndmask_b32 v{Z+7}, 0, v{Z+7}, s[78:79]
    v_and_b32 v{Z+4}, 15, v0
    v_lshlrev_b32 v{Z+8}, 3, v{vt+3}
    v_sub_u32 v{Z+4}, v{Z+4}, v{Z+8}
    v_lshlrev_b32 v{Z+6}, 16, v{Z+5}
    """)
    for d in range(4):
        a(f"""
        v_cmp_eq_u32 vcc, {2*d}, v{Z+4}
        v_cmp_eq_u32 s[78:79], {2*d+1}, v{Z+4}
        s_nop 0
        v_cndmask_b32 v{SC+d}, 0, v{Z+5}, vcc
        v_cndmask_b32 v{Z+8}, 0, v{Z+6}, s[78:79]
        v_or_b32 v{SC+d}, v{SC+d}, v{Z+8}
        """)
    a(f"""
    v_and_b32 v{SC+3}, v{SC+3}, v{vM15}
    v_not_b32 v{Z+8}, v{vM15}
    v_and_b32 v{Z+8}, v{Z+8}, v{Z+7}
    v_or_b32 v{SC+3}, v{SC+3}, v{Z+8}
    """)
    for r in range(16): a(f"v_mov_b32 v{ADDR+r}, 128")
    a(f"""
    v_mov_b32 v{vt+3}, 4
    s_waitcnt vmcnt(11)
    """)
    stamp(a, 2)
    a(f"""
    v_cmp_eq_u32 vcc, -2, v{REC+7}
    s_cbranch_vccz K2_NOOVF
    v_mov_b32 v{vt+4}, 0x10000
    v_mov_b32 v{vt}, 60
    ds_add_u32 v{vt}, v{vt+4} offset:{CNT}
    K2_NOOVF:
    """)
    def caddr(k): return f"v_and_b32_sdwa v{CADDR+k}, s{cfc}, v{REC+k} dst_sel:DWORD dst_unused:UNUSED_PAD src0_sel:DWORD src1_sel:BYTE_3"
    for k in range(8):
        a(f"""
        v_cmpx_gt_u32 vcc, -2, v{REC+k}
        s_cbranch_execz K2_CNT_DONE
        {caddr(k)}
        ds_add_rtn_u32 v{RANK+k}, v{CADDR+k}, v{vt+3} offset:{CNT}
        """)
    a(f"""
    K2_CNT_DONE:
    s_mov_b64 exec, -1
    """)
    lut_dma(0)
    a("s_waitcnt lgkmcnt(0)\ns_barrier")
    def scan(fast):
        x = SP
        a(f"""
        v_and_b32 v{vt}, 63, v0
        v_lshlrev_b32 v{vt+1}, 2, v{vt}
        ds_read_b32 v{x}, v{vt+1} offset:{CNT}
        v_lshrrev_b32 v{vt}, 4, v{vt}
        v_mul_u32_u24 v{vt}, {CAPG*4}, v{vt}
        v_and_b32 v{vt+2}, 31, v0
        v_lshlrev_b32 v{vt+2}, 2, v{vt+2}
        v_mov_b32 v{vt+4}, 0xfffffe
        """)
        if fast: lut_dma(1)
        a(f"""
        s_waitcnt lgkmcnt(0)
        v_sub_u32 v{vt}, v{vt}, v{x}
        """)
        for d in ("row_shr:1", "row_shr:2", "row_shr:4", "row_shr:8"):
            a(f"v_add_u32_dpp v{x}, v{x}, v{x} {d} row_mask:0xf bank_mask:0xf bound_ctrl:0\ns_nop 1")
        a(f"""
        v_add_u32 v{vt}, v{vt}, v{x}
        v_cmp_lt_u32 vcc, {(CAPG-32)*4}, v{x}
        ds_write_b32 v{vt+1}, v{vt} offset:{START}
        """)
        for g in range(4): a(f"v_readlane_b32 s{sk+g}, v{x}, {16*g+15}")
        if fast:
            a("s_cbranch_vccnz K2_SLOW")
            for k in range(4): a(f"ds_read_b32 v{STV+k}, v{CADDR+k} offset:{START}")
            lut_dma(2)
        for g in range(1, 4): a(f"s_or_b32 s{sk+g}, s{sk+g}, {g}")
        if fast and OPT.get("pair", "1") == "1":
            cur = [sk, sk+1, sk+2, sk+3]; spare = sk+4
            for (i, j) in ((0, 1), (2, 3), (0, 2), (1, 3), (1, 2)):
                a(f"s_max_u32 s{spare}, s{cur[i]}, s{cur[j]}\ns_min_u32 s{cur[j]}, s{cur[i]}, s{cur[j]}")
                cur[i], spare = spare, cur[i]
            sel = srank
        else:
            cur = [sk, sk+1, sk+2, sk+3]; sel = sg
        a(f"""
        s_bitcmp1_b32 s{sel}, 0
        s_cselect_b32 s{cur[0]}, s{cur[1]}, s{cur[0]}
        s_cselect_b32 s{cur[2]}, s{cur[3]}, s{cur[2]}
        s_bitcmp1_b32 s{sel}, 1
        s_cselect_b32 s{st0}, s{cur[2]}, s{cur[0]}
        s_and_b32 s{sg}, s{st0}, 3
        s_andn2_b32 s{st0}, s{st0}, 3
        s_mul_i32 s{sgb}, s{sg}, {CAPG*4}
        s_add_u32 s{scount}, s{st0}, 127
        s_lshr_b32 s{scount}, s{scount}, 7
        s_add_u32 s{st0}, s{st0}, s{sgb}
        v_add_u32 v{vt+2}, s{st0}, v{vt+2}
        v_lshlrev_b32 v{vt+3}, 3, v{vt+2}
        v_and_b32 v{vt+3}, 128, v{vt+3}
        ds_write2st64_b32 v{vt+2}, v{vt+3}, v{vt+4} offset0:{L1//256} offset1:{L2//256}
        """)
    def place(k):
        a(f"""
        v_add_u32 v{STV+k}, v{STV+k}, v{RANK+k}
        v_lshrrev_b32 v{vt}, 7, v{REC+k}
        v_lshlrev_b32 v{vt+1}, 3, v{STV+k}
        v_mad_u32_u16 v{vt+2}, v{REC+k}, 2, v{EOFF}
        v_and_b32 v{vt+1}, 128, v{vt+1}
        v_and_or_b32 v{vt}, v{vt}, s{csrc}, v{vt+1}
        ds_write2st64_b32 v{STV+k}, v{vt}, v{vt+2} offset0:{L1//256} offset1:{L2//256}
        """)
    scan(True)
    a("s_waitcnt lgkmcnt(1)")
    for k in range(8):
        a(f"v_cmpx_gt_u32 vcc, -2, v{REC+k}\ns_cbranch_execz K2_PLACED")
        if k == 4:
            for kk in range(4, 8):
                a(f"ds_read_b32 v{STV+kk}, v{CADDR+kk} offset:{START}")
            a("s_waitcnt lgkmcnt(0)")
        place(k)
    a(f"""
    K2_PLACED:
    s_mov_b64 exec, -1
    """)
    lut_dma(3)
    def lane_setup():
        a(f"""
        v_and_b32 v{vt}, 31, v0
        v_xor_b32 v{vA1}, 16, v{vH16}
        v_xor_b32 v{vA2}, 4, v{vt}
        v_lshlrev_b32 v{vA2}, 2, v{vA2}
        v_add_u32 v{vA1}, s{sgb}, v{vA1}
        v_add_u32 v{vA2}, s{sgb}, v{vA2}
        s_mul_i32 s{st0}, s{sg}, {GN*256}
        s_lshl_b32 s{st1}, s{sfh}, 7
        s_add_u32 s{st0}, s{st0}, s{st1}
        v_lshlrev_b32 v{vO}, 2, v{vt}
        v_lshl_add_u32 v{vO}, v{vH256}, 2, v{vO}
        v_add_u32 v{vO}, s{st0}, v{vO}
        v_lshl_or_b32 v{vO2}, v{vH16}, 27, v{vO}
        """)
    lane_setup()
    a("s_waitcnt vmcnt(18) lgkmcnt(0)\ns_barrier")
    stamp(a, 3); stamp(a, 1, "4")
    def rd_addr(off, j): return f"ds_read_b128 {vr(ADDR+4*j,4)}, v{vA1} offset:{L1+off+32*j}"
    def rd_l2(reg, off): return f"ds_read_b32 v{reg}, v{vA2} offset:{L2+off}"
    def ld_raw(p, b, r):
        pre = [f"v_and_b32 v{ADDR+r}, 0x7fff80, v{ADDR+r}"] if OPT.get("safe") else []
        if OPT.get("noload"): return ["s_nop 0"]
        return pre + [f"buffer_load_dword v{raw(p,b)+r}, v{ADDR+r}, {sr(sT,4)}, 0 offen" + (" offset:128" if b else "")]
    def ld_blk(p, b): return sum((ld_raw(p, b, r) for r in range(16)), [])
    def ld_ea(p): return [f"v_and_or_b32 v{vEa}, v{vEa}, s{cm32}, v{vH16}", f"buffer_load_dwordx4 {vr(EA+4*p,4)}, v{vEa}, {sr(sE,4)}, 0 offen"]
    def oh_idx(p):
        return [f"v_and_b32 v{vOa}, 30, v{vOa}",
                f"v_lshl_add_u32 v{vOa}, v{vOa}, 3, v{vH256}",
                f"ds_read_b128 {vr(OH+4*p,4)}, v{vOa} offset:{OHL}"]
    big = "v_mfma_f32_32x32x16_bf16" if not OPT.get("nobig") else "; "
    de = OPT.get("drop", "")
    def mE(p, b): return "; " if "E" in de else f"{big} {vr(gb(p,b),16)}, {vr(EA+4*p,4)}, {vr(WC+4*b,4)}, 0"
    def mA(p, b): return "; " if "A" in de else f"{big} {vr(gb(p,b),16)}, {vr(OH+4*p,4)}, {vr(AP+4*b,4)}, {vr(gb(p,b),16)}"
    def mS(p): return "; " if "S" in de else f"{big} {vr(SP,16)}, {vr(OH+4*p,4)}, {vr(SC,4)}, 0"
    def mG(p, b, j): return "; " if ("G" in de or ("g" in de and j & 1)) else f"{big} {vr(ACC+16*b,16)}, {vr(SP+4*j,4)}, {vr(gb(p,b)+4*j,4)}, {vr(ACC+16*b,16)}"
    def mP(p, b):
        o = []
        for u in range(2):
            for j in range(4):
                g = vr(gb(p,b)+4*j, 4)
                o.append(f"v_mfma_f32_4x4x4_16b_bf16 {g}, {vr(PA+2*u,2)}, {vr(raw(p,b)+4*j+2*u,2)}, {g}")
        return o
    sd = "dst_sel:DWORD dst_unused:UNUSED_PAD src0_sel:DWORD"
    def idx_pair(p, b, i):
        g0, g1 = gb(p,b)+2*i, gb(p,b)+2*i+1
        if i < NT:
            return [f"v_exp_f32 v{g0}, v{g0}", f"v_exp_f32 v{g1}, v{g1}", f"v_add_f32 v{g0}, 1.0, v{g0}",
                    f"v_add_f32 v{g1}, 1.0, v{g1}", f"v_rcp_f32 v{g0}, v{g0}", f"v_rcp_f32 v{g1}, v{g1}"], []
        return [f"v_cvt_pkrtz_f16_f32 v{g0}, v{g0}, v{g1}",
                f"v_and_b32_sdwa v{g1}, s{cfe}, v{g0} {sd} src1_sel:WORD_1",
                f"v_and_b32_sdwa v{g0}, s{cfe}, v{g0} {sd} src1_sel:WORD_0"], \
               [f"ds_read_u16_d16_hi v{g1}, v{g1} offset:{LUTL}", f"ds_read_u16_d16_hi v{g0}, v{g0} offset:{LUTL}"]
    def fin_pair(p, b, i):
        g0, r0 = gb(p,b)+2*i, raw(p,b)+2*i
        return [f"v_mul_f32 v{r0}, v{g0}, v{r0}", f"v_mul_f32 v{r0+1}, v{g0+1}, v{r0+1}",
                f"v_cvt_pk_bf16_f32 v{g0}, v{g0}, v{r0}", f"v_cvt_pk_bf16_f32 v{g0+1}, v{g0+1}, v{r0+1}"]
    def zipl(x, y):
        o = []
        for k in range(max(len(x), len(y))):
            if k < len(x): o.append(x[k])
            if k < len(y): o.append(y[k])
        return o
    uid = [0]
    def W(kind):
        uid[0] += 1
        return f"@W{kind} {uid[0]}"
    def slot(p, b, kind, acc=True):
        q = 1-p
        nxt = (p, 1) if b == 0 else (q, 0)
        do_idx = b == 0 or kind != "L"
        bigs = []
        if kind != "L": bigs += [[W("v"), mE(q, b)] + (ld_ea(q) if (b == 1 and kind == "F") else []), [mA(q, b)]]
        if acc: bigs += [[mG(q if b == 0 else p, 1-b, j)] for j in range(4)]
        if b == 0: bigs += [[mS(p)]]
        smalls = mP(q, b) if kind != "L" else []
        out = []
        nb = 0
        for i in range(8):
            iv, il = idx_pair(*nxt, i) if do_idx else ([], [])
            fv = fin_pair(p, b, i)
            seq = zipl(iv, fv) if i >= NT or not do_idx else [iv[0], fv[0], iv[1], fv[1], iv[2], fv[2], iv[3], fv[3], iv[4], iv[5]]
            seq += il
            if kind == "F":
                seq += ld_raw(p, b, 2*i) + ld_raw(p, b, 2*i+1)
                if b == 1 and i & 1: seq.append(rd_addr((3+p)*128, i >> 1))
                if b == 0 and i == 1: seq.append(rd_l2(vEa, (3+p)*128))
                if b == 0 and i == 5: seq.append(rd_l2(vOa, (2+p)*128))
                if b == 1 and i == 2: seq += oh_idx(p)
            pre = [W("l")]
            if i < 6:
                take = 2 if (len(bigs) - nb) > (6 - i) else 1
                ins = []
                if nb < len(bigs): pre += bigs[nb]; nb += 1
                if take == 2 and nb < len(bigs):
                    seq = seq[:6] + bigs[nb] + seq[6:]; nb += 1
            if smalls and i >= 5:
                k0, k1 = {5: (0, 2), 6: (2, 6), 7: (6, 8)}[i]
                sm = smalls[k0:k1]
                if i == 5: seq = seq[:4] + [W("v")] + zipl(sm, seq[4:])
                elif i == 6: seq = zipl(sm, seq)
                else: seq = zipl(sm, seq)
            out += pre + seq
        assert nb == len(bigs)
        return out
    def body(p, kind):
        q = 1-p; n = f"{kind}{p}"
        o0 = [f"K2_BODY{n}:"] + slot(p, 0, kind)
        o1 = [f"K2_MID{n}:"] + (ld_xr() if kind == "L" else []) + slot(p, 1, kind)
        if kind == "F":
            if p == 1: o1 += [f"v_add_u32 v{vA1}, 256, v{vA1}", f"v_add_u32 v{vA2}, 256, v{vA2}"]
            o1 += [f"s_sub_u32 s{scount}, s{scount}, 1", f"s_cmp_eq_u32 s{scount}, 2", f"s_cbranch_scc1 K2_BODYP{q}"]
        return o0, o1
    def entry(kind):
        more = kind != "L"
        o = [rd_l2(vOa, 0)]
        if more: o += [rd_l2(vEa, 128)] + [rd_addr(128, j) for j in range(4)]
        o += [W("l")] + oh_idx(0) + [W("v"), W("l"), "@STAMP", mE(0, 0), mA(0, 0), mE(0, 1), mA(0, 1)]
        if more: o += [rd_l2(vOa, 128)] + ld_ea(1) + [rd_l2(vEa, 256)] + ld_blk(1, 0)
        else: o += ["s_nop 7"]
        o += [W("v")] + mP(0, 0)
        if more: o += [W("l")] + oh_idx(1)
        if kind == "F": o += ld_ea(0)
        o += ["s_nop 1"]
        for i in range(8):
            v_, l_ = idx_pair(0, 0, i)
            o += [W("l")] + ([v_[0], v_[1], "s_nop 0"] + v_[2:] if i < NT else v_) + l_
            if more:
                o += ld_raw(1, 1, 2*i) + ld_raw(1, 1, 2*i+1)
                if i & 1: o.append(rd_addr(256, i >> 1))
            if i == 3: o += [W("v")] + mP(0, 1)
        return o + slot(0, 0, kind, acc=False) + [f"s_branch K2_MID{kind}0"]
    def drain(p): return ["s_nop 1"] + [mG(p, 1, j) for j in range(4)]
    fill0 = [rd_l2(vEa, 0)] + [rd_addr(0, j) for j in range(4)] + ["s_waitcnt lgkmcnt(4)"] + ld_ea(0) + ["s_waitcnt lgkmcnt(0)"] + ld_blk(0, 0) + ld_blk(0, 1)
    B = {(p, k): body(p, k) for p in range(2) for k in "FPL"}
    EN = {k: entry(k) for k in "FPL"}
    def trace(cnt):
        kinds = ["F"]*(cnt-2) + ["P", "L"][-min(cnt, 2):]
        tr = fill0 + EN[kinds[0]] + B[(0, kinds[0])][1]
        for t in range(1, cnt): tr += B[(t & 1, kinds[t])][0] + B[(t & 1, kinds[t])][1]
        return tr + drain((cnt-1) & 1)
    nost = lambda l: [x for x in l if x != "@STAMP"]
    need = asmsim.solve_waits([nost(trace(c)) for c in range(1, 9)])
    for c in range(1, 9): asmsim.check_hazards(asmsim.apply_waits(nost(trace(c)), need), f"count {c}")
    def emit(l):
        for x in asmsim.apply_waits(l, need):
            if x == "@STAMP":
                stamp(a, 5); stamp(a, 5, "3"); stamp(a, 7, "4")
                if OPT.get("prof") == "3": a(f"s_memtime s[86:87]\ns_mov_b32 s90, s{scount}\ns_getreg_b32 s92, hwreg(HW_REG_HW_ID)")
            else: a(x)
    def fill(n):
        a(f"s_cmp_eq_u32 s{scount}, 0\ns_cbranch_scc0 K2_FILL{n}\ns_waitcnt vmcnt(0)\ns_branch K2_FILLED{n}\nK2_FILL{n}:")
        a.ext(fill0)
        a(f"K2_FILLED{n}:")
    XF = G
    accs = [[raw(1,0)+8*nb, raw(1,0)+8*nb+4] for nb in range(3)]
    assert XL % 256 == 0
    def gemm(n, w_wt, w_all):
        a(f"""
        v_and_b32 v{vt}, 15, v0
        v_bfe_u32 v{vt+1}, v0, 4, 2
        v_xor_b32 v{vt+2}, v{vt}, v{vt+1}
        v_lshlrev_b32 v{vt+2}, 4, v{vt+2}
        v_lshl_add_u32 v{vt+2}, v{vt}, 8, v{vt+2}
        """)
        for s in range(4):
            if s: a(f"v_xor_b32 v{vt+3}, {64*s}, v{vt+2}")
            for nb in range(3):
                a(f"ds_read_b128 {vr(XF+16*nb+4*s,4)}, v{vt+3 if s else vt+2} offset:{XL+4096*nb}")
        a(f"v_mul_u32_u24 v{vt}, {ROWP}, v{vt}\ns_waitcnt vmcnt({w_wt})")
        stamp(a, 3, "4")
        for s in range(4):
            a(f"s_waitcnt lgkmcnt({9-3*s})")
            for nb in range(3):
                for ab in range(2):
                    d = vr(accs[nb][ab], 4)
                    a(f"v_mfma_f32_16x16x32_bf16 {d}, {vr(WT+16*ab+4*s,4)}, {vr(XF+16*nb+4*s,4)}, {'0' if s == 0 else d}")
        a(f"""
        s_cmp_lt_u32 s{srt}, 4
        s_cbranch_scc0 K2_GU{n}
        s_lshr_b32 s{st0}, s{srt}, 1
        s_lshl_b32 s{st0}, s{st0}, 7
        s_and_b32 s{st1}, s{srt}, 1
        s_lshl_b32 s{st1}, s{st1}, 5
        s_add_u32 s{st0}, s{st0}, s{st1}
        v_lshl_add_u32 v{vt}, v{vt+1}, 3, v{vt}
        v_add_u32 v{vt}, s{st0}, v{vt}
        """)
        for nb in range(3):
            al, be = accs[nb]
            for i in range(4): a(f"v_mul_f32 v{al+i}, s{cnl2e}, v{al+i}\nv_mul_f32 v{be+i}, s{cnl2e}, v{be+i}")
            a(f"""
            v_cvt_pk_bf16_f32 v{XF+4*nb}, v{al}, v{al+2}
            v_cvt_pk_bf16_f32 v{XF+4*nb+1}, v{be}, v{be+2}
            v_cvt_pk_bf16_f32 v{XF+4*nb+2}, v{al+1}, v{al+3}
            v_cvt_pk_bf16_f32 v{XF+4*nb+3}, v{be+1}, v{be+3}
            ds_write_b64 v{vt}, {vr(XF+4*nb,2)} offset:{APL+16*ROWP*nb}
            ds_write_b64 v{vt}, {vr(XF+4*nb+2,2)} offset:{APL+16*ROWP*nb+64}
            """)
        a(f"""
        s_branch K2_GD{n}
        K2_GU{n}:
        s_and_b32 s{st0}, s{srt}, 3
        s_lshl_b32 s{st0}, s{st0}, 6
        v_lshl_add_u32 v{vt}, v{vt+1}, 4, v{vt}
        v_add_u32 v{vt}, s{st0}, v{vt}
        s_nop 1
        """)
        for nb in range(3):
            al, be = accs[nb]
            a(f"""
            v_cvt_pk_bf16_f32 v{XF+4*nb}, v{al}, v{al+1}
            v_cvt_pk_bf16_f32 v{XF+4*nb+1}, v{al+2}, v{al+3}
            v_cvt_pk_bf16_f32 v{XF+4*nb+2}, v{be}, v{be+1}
            v_cvt_pk_bf16_f32 v{XF+4*nb+3}, v{be+2}, v{be+3}
            ds_write_b128 v{vt}, {vr(XF+4*nb,4)} offset:{UL+16*ROWP*nb}
            """)
        a(f"""
        K2_GD{n}:
        v_bfe_u32 v{vt}, v0, 2, 2
        v_lshrrev_b32 v{vt+1}, 1, v{vH16}
        v_add_u32 v{vt}, v{vt}, v{vt+1}
        v_mul_u32_u24 v{vt}, {ROWP}, v{vt}
        v_bfe_u32 v{vt+2}, v0, 4, 1
        v_lshl_add_u32 v{vt}, v{vt+2}, 5, v{vt}
        v_and_b32 v{vt+2}, 3, v0
        v_lshl_add_u32 v{vt}, v{vt+2}, 3, v{vt}
        s_mul_i32 s{st0}, s{sg}, {GN*ROWP}
        s_lshl_b32 s{st1}, s{sfh}, 7
        s_add_u32 s{st0}, s{st0}, s{st1}
        v_add_u32 v{vt}, s{st0}, v{vt}
        v_mul_u32_u24 v{vt+1}, {ROWP//2}, v{vt+1}
        v_and_b32 v{vt+2}, 31, v0
        v_lshl_add_u32 v{vt+1}, v{vt+2}, 2, v{vt+1}
        v_add_u32 v{vt+1}, s{st0}, v{vt+1}
        s_mov_b32 s{sinit}, 1
        """)
        for r in range(32): a(f"v_mov_b32 v{ACC+r}, 0")
        stamp(a, 4, "4")
        a(f"s_waitcnt vmcnt({w_all}) lgkmcnt(0)")
        stamp(a, 5, "4")
        a("s_barrier")
        stamp(a, 6, "4")
        a(f"""
        ds_read_b64_tr_b16 {vr(AP,2)}, v{vt} offset:{APL}
        ds_read_b64_tr_b16 {vr(AP+2,2)}, v{vt} offset:{APL+4*ROWP}
        ds_read_b64_tr_b16 {vr(AP+4,2)}, v{vt} offset:{APL+64}
        ds_read_b64_tr_b16 {vr(AP+6,2)}, v{vt} offset:{APL+4*ROWP+64}
        """)
        for r in range(6): a(f"ds_read_b32 v{UR+r}, v{vt+1} offset:{UL+ROWP*rowoff(r)}")
        a(f"""
        s_waitcnt lgkmcnt(6)
        v_and_b32 v{AP+3}, v{AP+3}, v{vM15}
        v_and_b32 v{AP+7}, v{AP+7}, v{vM15}
        """)
    a(f"s_cmp_lg_u32 s{sfh}, 0\ns_cbranch_scc1 K2_LATE\nK2_EARLY:")
    fill("A")
    stamp(a, 4); stamp(a, 2, "4")
    a(f"s_cmp_lg_u32 s{sinit}, 0\ns_cbranch_scc1 K2_GO")
    gemm("A", 43, 33)
    a("s_branch K2_GO\nK2_LATE:")
    stamp(a, 2, "4")
    gemm("B", 10, 0)
    fill("B")
    stamp(a, 4)
    a(f"""
    K2_GO:
    s_cmp_eq_u32 s{scount}, 0
    s_cbranch_scc1 K2_EMPTY
    s_cmp_gt_u32 s{scount}, 2
    s_cbranch_scc1 K2_ENTF
    s_cmp_eq_u32 s{scount}, 2
    s_cbranch_scc1 K2_ENTP
    """)
    emit(EN["L"]); a("K2_ENTP:"); emit(EN["P"]); a("K2_ENTF:"); emit(EN["F"])
    a(".p2align 6")
    for p in range(2): emit(B[(p, "F")][0] + B[(p, "F")][1])
    a("s_branch K2_BODYF0")
    a("K2_EMPTY:"); a.ext(ld_xr()); a("s_branch K2_DONE")
    for p in range(2):
        emit(B[(p, "P")][0] + B[(p, "P")][1] + B[(1-p, "L")][0] + B[(1-p, "L")][1] + drain(1-p))
        if p == 0: a("s_branch K2_DONE")
    a(f"""
    K2_DONE:
    s_cmp_lg_u32 s{sslow}, 0
    s_cbranch_scc1 K2_ROUND
    K2_EPI:
    s_waitcnt vmcnt(0) lgkmcnt(0)
    """)
    stamp(a, 6); stamp(a, 6, "3")
    if OPT.get("prof") == "3": a("s_memtime s[88:89]")
    T0 = G
    for b in range(2):
        for r in range(6):
            a(f"v_add_f32 v{ACC+16*b+r}, 0x358637bd, v{ACC+16*b+r}")
        for r in range(6):
            a(f"v_rcp_f32 v{ACC+16*b+r}, v{ACC+16*b+r}")
        for r in range(6):
            u, x = T0+12*b+r, T0+12*b+6+r
            if b == 0: a(f"v_lshlrev_b32 v{u}, 16, v{UR+r}\nv_lshlrev_b32 v{x}, 16, v{XR+r}")
            else: a(f"v_and_b32 v{u}, 0xffff0000, v{UR+r}\nv_and_b32 v{x}, 0xffff0000, v{XR+r}")
        for r in range(6):
            u, x = T0+12*b+r, T0+12*b+6+r
            a(f"v_fmac_f32 v{u}, v{ACC+16*b+8+r}, v{ACC+16*b+r}\nv_max_f32 v{u}, 0, v{u}\nv_add_f32 v{u}, v{u}, v{x}")
    for r in range(6):
        a(f"v_cvt_pk_bf16_f32 v{SP+r}, v{T0+r}, v{T0+12+r}")
        a(f"buffer_store_dword v{SP+r}, v{vO if r < 4 else vO2}, {sr(sO,4)}, 0 offen offset:{256*rowoff(r)}")
    stamp(a, 7)
    stamp_out(a, 1, 14, sw, 2)
    a("K2_END:\ns_endpgm")

    a("K2_SLOW:")
    srd(a, sS, 8, None, E*4)
    srd(a, sD, 10, None, E*4)
    a(f"""
    s_mov_b32 s{sslow}, 1
    s_mov_b32 s{cm40}, {-BN}
    s_mov_b32 s{cm10}, {-GN}
    """)
    for k in range(4): lut_dma(k)
    a(f"""
    K2_ROUND:
    s_cmp_ge_u32 s{sround}, {E//512}
    s_cbranch_scc1 K2_EPI
    s_lshl_b32 s{st0}, s{sround}, 9
    s_add_u32 s{sround}, s{sround}, 1
    v_add_u32 v{EOFF}, s{st0}, v0
    v_lshlrev_b32 v{vt}, 2, v{EOFF}
    buffer_load_dword v{REC}, v{vt}, {sr(sD,4)}, 0 offen
    buffer_load_dword v{REC+1}, v{vt}, {sr(sS,4)}, 0 offen
    v_lshlrev_b32 v{EOFF}, 5, v{EOFF}
    v_and_b32 v{vt}, 63, v0
    v_lshlrev_b32 v{vt}, 2, v{vt}
    v_mov_b32 v{vt+1}, 0
    s_waitcnt lgkmcnt(0)
    s_barrier
    ds_write_b32 v{vt}, v{vt+1} offset:{CNT}
    v_mov_b32 v{vt+3}, 4
    s_waitcnt vmcnt(0) lgkmcnt(0)
    s_barrier
    """)
    rec_fields(a, REC, REC+2, vt, cm40, cm10)
    a(f"""
    v_cmp_eq_u32 vcc, s2, v{REC+2}
    v_lshl_or_b32 v{REC}, v{REC+1}, 16, v{REC}
    {caddr(0)}
    s_mov_b64 s[78:79], vcc
    s_mov_b64 exec, vcc
    ds_add_rtn_u32 v{RANK}, v{CADDR}, v{vt+3} offset:{CNT}
    s_mov_b64 exec, -1
    s_waitcnt lgkmcnt(0)
    s_barrier
    """)
    scan(False)
    a(f"""
    s_mov_b64 exec, s[78:79]
    ds_read_b32 v{STV}, v{CADDR} offset:{START}
    s_waitcnt lgkmcnt(0)
    """)
    place(0)
    a(f"""
    s_mov_b64 exec, -1
    """)
    lane_setup()
    a(f"""
    s_waitcnt lgkmcnt(0)
    s_barrier
    s_branch K2_EARLY
    K2_CODE_END:
    """)
    return a.text(), kd("k2_kernel", 254, 102)

KE_PROF = f"""
    s_memrealtime s[8:9]
    s_load_dwordx2 s[4:5], s[0:1], 88
    s_waitcnt lgkmcnt(0)
    s_add_u32 s4, s4, {PROF_OFF + 0x200000}
    s_addc_u32 s5, s5, 0
    s_mov_b32 s6, 4
    s_mov_b32 s7, 0x20000
    v_mov_b32 v1, s8
    v_lshlrev_b32 v0, 2, v0
    buffer_store_dword v1, v0, s[4:7], 0 offen
"""
def main():
    k1, d1 = gen_k1(); k2, d2 = gen_k2()
    ref = open("standalone__edge_featured_mpnn_gatedgcn__graph.s.ref").read().split("\n")
    out = "\n".join(ref[:13]) + "\n"
    for ch in OPT.get("list", "12"):
        if ch == "1": out += f"; @launch kernel=k1_kernel grid=({2*NCH},1,1) block=(1024,1,1) lds={K1_LDS}\n"
        if ch == "2": out += f"; @launch kernel=k2_kernel grid=({NBIN},1,1) block=(512,1,1) lds={K2_LDS}\n"
        if ch == "e": out += "; @launch kernel=ke_kernel grid=(1,1,1) block=(64,1,1) lds=0\n"
    out += '.amdgcn_target "amdgcn-amd-amdhsa--gfx950"\n.text\n'
    for n, k in (("k1_kernel", k1), ("k2_kernel", k2)):
        out += f".globl {n}\n.p2align 8\n.type {n},@function\n" + k
    if "e" in OPT.get("list", ""): out += ".globl ke_kernel\n.p2align 8\n.type ke_kernel,@function\nke_kernel:\n" + (KE_PROF if OPT.get("prof") else "") + "    s_endpgm\n"
    out += '.section .rodata,"a"\n.p2align 6\n' + d1.lstrip("\n") + '.p2align 6\n' + d2.lstrip("\n")
    if "e" in OPT.get("list", ""): out += '.p2align 6\n' + kd("ke_kernel", 8, 16).lstrip("\n")
    open(sys.argv[1], "w").write(out)

if __name__ == "__main__":
    main()
```

```python
import struct, sys
import asmsim

N = 10000; E = 320000
NCH = 128; CS = 2500
NBIN = 250; BN = 40; GN = 10
CAP = 32
T_OFF = 0x100000
REC_OFF = 0x700000
WT_OFF = 0xB00000
LUT_OFF = 0xB20000
PROF_OFF = 0xF000000
NL2E = struct.unpack("<I", struct.pack("<f", -1.4426950408889634))[0]

def bf(x): return struct.unpack("<I", struct.pack("<f", x))[0] >> 16

OPT = dict(st_r="sc1", st_t="sc1")
for a in sys.argv[2:]:
    k, v = a.split("=", 1); OPT[k] = v

class Asm:
    def __init__(self): self.l = []
    def __call__(self, s):
        for x in s.strip("\n").split("\n"):
            x = x.strip()
            if not x: continue
            if x.startswith(";"): x = "s_nop 0"
            self.l.append(x if x.endswith(":") else "    " + x)
    def ext(self, lst):
        for x in lst: self(x)
    def text(self): return "\n".join(self.l) + "\n"

def stamp(a, i, lvl="1"):
    if OPT.get("prof") and (i in (0, 8) or OPT["prof"] == lvl): a(f"s_memrealtime s[{84+2*i}:{85+2*i}]")
def stamp_out(a, kern, wsreg, sw, vtmp):
    if not OPT.get("prof"): return
    a("s_waitcnt vmcnt(0)")
    stamp(a, 8)
    a(f"""
    s_lshl_b32 s4, s2, 4
    s_add_u32 s4, s4, s{sw}
    s_lshl_b32 s4, s4, 6
    s_add_u32 s4, s4, {PROF_OFF + kern*0x100000}
    s_add_u32 s4, s{wsreg}, s4
    s_addc_u32 s5, s{wsreg+1}, 0
    s_mov_b32 s6, 64
    s_mov_b32 s7, 0x20000
    s_waitcnt lgkmcnt(0)
    """)
    for i in range(9): a(f"v_writelane_b32 v{vtmp}, s{84+2*i}, {i}")
    a(f"""
    v_mbcnt_lo_u32_b32 v{vtmp+1}, -1, 0
    v_mbcnt_hi_u32_b32 v{vtmp+1}, -1, v{vtmp+1}
    v_lshlrev_b32 v{vtmp+1}, 2, v{vtmp+1}
    buffer_store_dword v{vtmp}, v{vtmp+1}, s[4:7], 0 offen
    """)

def vr(b, n): return f"v[{b}:{b+n-1}]"
def sr(b, n): return f"s[{b}:{b+n-1}]"

def srd(a, d, base, add=None, size=None, w3="0x20000", hi_or=None):
    if add is None:
        a(f"s_mov_b32 s{d}, s{base}\ns_mov_b32 s{d+1}, s{base+1}")
    else:
        a(f"s_add_u32 s{d}, s{base}, {add}\ns_addc_u32 s{d+1}, s{base+1}, 0")
    if hi_or: a(f"s_or_b32 s{d+1}, s{d+1}, {hi_or}")
    a(f"s_mov_b32 s{d+2}, {size}\ns_mov_b32 s{d+3}, {w3}")

def kd(name, vgpr, sgpr):
    return f"""
.amdhsa_kernel {name}
  .amdhsa_next_free_vgpr {vgpr}
  .amdhsa_next_free_sgpr {sgpr}
  .amdhsa_accum_offset {(vgpr+3)//4*4}
  .amdhsa_group_segment_fixed_size 0
  .amdhsa_kernarg_size 96
  .amdhsa_user_sgpr_count 2
  .amdhsa_user_sgpr_kernarg_segment_ptr 1
  .amdhsa_system_sgpr_workgroup_id_x 1
.end_amdhsa_kernel
"""

def rec_fields(a, vd, vbin, vtmp, sm40, sm10):
    a(f"""
    v_mul_u32_u24 v{vbin}, 52429, v{vd}
    v_lshrrev_b32 v{vbin}, 21, v{vbin}
    v_mad_i32_i24 v{vd}, v{vbin}, s{sm40}, v{vd}
    v_mul_u32_u24 v{vtmp}, 26, v{vd}
    v_lshrrev_b32 v{vtmp}, 8, v{vtmp}
    v_mad_i32_i24 v{vd}, v{vtmp}, s{sm10}, v{vd}
    v_lshl_or_b32 v{vd}, v{vtmp}, 30, v{vd}
    """)

K1_CNT = 0; K1_STG = 1024; K1_X = 65536; K1_LDS = K1_X + 20480
def gen_k1():
    a = Asm()
    sS, sD, sW1, sW2, sX, sR, sT = 24, 28, 32, 36, 40, 44, 48
    sw, st0, st1, st2, sng, sfb, stask = 52, 53, 54, 55, 56, 57, 58
    c4096, c8192, cm40, cm10, cnl2e, csign, cmag, ctso, cp0 = 59, 60, 61, 62, 63, 64, 65, 66, 67
    a("k1_kernel:")
    a(f"s_cmp_ge_u32 s2, {2*NCH}\ns_cbranch_scc1 K1_END")
    stamp(a, 0)
    a(f"""
    s_load_dwordx16 s[4:19], s[0:1], 0
    s_load_dwordx2 s[20:21], s[0:1], 64
    s_load_dwordx2 s[22:23], s[0:1], 88
    v_lshrrev_b32 v2, 6, v0
    v_lshlrev_b32 v1, 2, v0
    v_readfirstlane_b32 s{sw}, v2
    s_mov_b32 s{c4096}, 4096
    s_mov_b32 s{c8192}, 8192
    s_cmp_ge_u32 s2, {NCH}
    s_cbranch_scc1 K1_GEMM
    """)
    vD, vS, vB, vSL, vt = 2, 5, 8, 11, 16
    def touch():
        if OPT.get("touch", "0") != "1": return
        lst = [(4, 0), (4, 0x200000), (14, 0), (20, 0), (12, 0), (18, 0), (16, 0), (8, 0), (10, 0)] + [(6, 0x200000*k) for k in range(5)]
        for k, (b, off) in enumerate(lst):
            if off < 0x100000: a(f"s_load_dword s{68+k}, s[{b}:{b+1}], {off}")
            else: a(f"s_mov_b32 s{68+k}, {off}\ns_load_dword s{68+k}, s[{b}:{b+1}], s{68+k}")
    a(f"s_mul_i32 s{st1}, s2, {CS*4}\ns_waitcnt lgkmcnt(0)")
    touch()
    srd(a, sD, 10, f"s{st1}", CS*4)
    srd(a, sS, 8, f"s{st1}", CS*4)
    for r, so in enumerate(("0", f"s{c4096}", f"s{c8192}")):
        a(f"buffer_load_dword v{vD+r}, v1, {sr(sD,4)}, {so} offen")
        a(f"buffer_load_dword v{vS+r}, v1, {sr(sS,4)}, {so} offen")
    a(f"""
    v_mov_b32 v{vt}, -1
    v_mov_b32 v{vt+1}, -1
    v_mov_b32 v{vt+2}, -1
    v_mov_b32 v{vt+3}, -1
    v_lshlrev_b32 v{vt+4}, 4, v0
    v_mov_b32 v{vt+5}, 0
    v_and_b32 v{vt+6}, 0x3fc, v1
    ds_write_b128 v{vt+4}, {vr(vt,4)} offset:{K1_STG}
    ds_write_b128 v{vt+4}, {vr(vt,4)} offset:{K1_STG+16384}
    ds_write_b32 v{vt+6}, v{vt+5} offset:{K1_CNT}
    s_lshl_b32 s{st0}, s2, 7
    s_add_u32 s{st0}, s{st0}, {REC_OFF}
    """)
    srd(a, sR, 22, f"s{st0}", NBIN*NCH*128)
    a(f"s_lshl_b32 s{st0}, s2, 9\ns_add_u32 s{st1}, s{st0}, {LUT_OFF}")
    srd(a, sT, 22, f"s{st1}", 512)
    a(f"""
    v_add_u32 v40, s{st0}, v1
    v_and_b32 v41, 0x7fff, v40
    v_cmp_ne_u32 vcc, 0x7c00, v41
    v_or_b32 v41, 3, v40
    s_nop 0
    v_addc_co_u32 v40, vcc, 0, v40, vcc
    v_cvt_f32_f16 v41, v41
    v_cvt_f32_f16 v40, v40
    v_exp_f32 v41, v41
    v_exp_f32 v40, v40
    v_add_f32 v41, 1.0, v41
    v_add_f32 v40, 1.0, v40
    v_rcp_f32 v41, v41
    v_rcp_f32 v40, v40
    s_nop 0
    v_cvt_pk_bf16_f32 v40, v40, v41
    buffer_store_dword v40, v1, {sr(sT,4)}, 0 offen {OPT['st_r']}
    """)
    if OPT.get("pf", "0") == "1":
        a(f"""
        s_getpc_b64 {sr(sW1,2)}
        K1_PC:
        s_add_u32 s{sW1}, s{sW1}, k2_kernel-K1_PC
        s_addc_u32 s{sW1+1}, s{sW1+1}, 0
        s_mov_b32 s{sW1+2}, K2_CODE_END-k2_kernel
        s_mov_b32 s{sW1+3}, 0x20000
        v_lshlrev_b32 v44, 5, v0
        buffer_load_dword v45, v44, {sr(sW1,4)}, 0 offen
        """)
    a(f"""
    s_mov_b32 s{cm40}, {-BN}
    s_mov_b32 s{cm10}, {-GN}
    v_mov_b32 v{vt+5}, 1
    v_cmp_gt_u32 vcc, {CS-2048}, v0
    s_mov_b64 s[100:101], vcc
    v_lshrrev_b32 v{vt+7}, 3, v0
    v_and_b32 v{vt+8}, 7, v0
    v_lshlrev_b32 v{vt+9}, 14, v{vt+7}
    v_lshl_add_u32 v{vt+9}, v{vt+8}, 4, v{vt+9}
    v_lshlrev_b32 v{vt+7}, 2, v{vt+7}
    v_cmp_eq_u32 s[82:83], 7, v{vt+8}
    s_mov_b32 s{st2}, {128*16384}
    s_waitcnt lgkmcnt(0)
    s_barrier
    """)
    stamp(a, 1)
    for r in range(3):
        a(f"s_waitcnt vmcnt({4-2*r + 1 + (OPT.get('pf', '0') == '1')})")
        if r == 0: stamp(a, 2)
        rec_fields(a, vD+r, vB+r, vt, cm40, cm10)
        a(f"v_lshlrev_b32 v{vt}, 2, v{vB+r}")
        if r == 2: a("s_mov_b64 exec, s[100:101]")
        a(f"ds_add_rtn_u32 v{vSL+r}, v{vt}, v{vt+5} offset:{K1_CNT}")
        if r == 2: a("s_mov_b64 exec, -1")
        a(f"""
        v_lshl_or_b32 v{vD+r}, v{vS+r}, 16, v{vD+r}
        v_add_u32 v{vS+r}, {1024*r}, v0
        v_lshl_or_b32 v{vD+r}, v{vS+r}, 4, v{vD+r}
        v_lshlrev_b32 v{vB+r}, 7, v{vB+r}
        """)
    for r in range(3):
        a(f"s_waitcnt lgkmcnt({2-r})" if r == 0 else f"s_waitcnt lgkmcnt({2})" if r == 1 else "s_waitcnt lgkmcnt(2)")
        if r == 2: a("s_mov_b64 exec, s[100:101]")
        a(f"""
        v_lshl_add_u32 v{vB+r}, v{vSL+r}, 2, v{vB+r}
        v_cmpx_gt_u32 vcc, {CAP}, v{vSL+r}
        ds_write_b32 v{vB+r}, v{vD+r} offset:{K1_STG}
        s_mov_b64 exec, -1
        """)
    a("s_waitcnt lgkmcnt(0)")
    stamp(a, 3)
    a("s_barrier")
    stamp(a, 4)
    a(f"""
    ds_read_b128 {vr(vt+12,4)}, v{vt+4} offset:{K1_STG}
    ds_read_b32 v{vt}, v{vt+7} offset:{K1_CNT}
    ds_read_b128 {vr(vt+16,4)}, v{vt+4} offset:{K1_STG+16384}
    ds_read_b32 v{vt+1}, v{vt+7} offset:{K1_CNT+512}
    v_mov_b32 v{vt+2}, -2
    """)
    for k in range(2):
        a(f"""
        s_waitcnt lgkmcnt({2-2*k})
        v_cmp_lt_u32 vcc, {CAP}, v{vt+k}
        s_and_b64 vcc, vcc, s[82:83]
        s_nop 1
        v_cndmask_b32 v{vt+15+4*k}, v{vt+15+4*k}, v{vt+2}, vcc
        buffer_store_dwordx4 {vr(vt+12+4*k,4)}, v{vt+9}, {sr(sR,4)}, {'0' if k == 0 else f's{st2}'} offen {OPT['st_r']}
        """)
    stamp(a, 5)
    if OPT.get("pe", "1") == "1":
        a("s_barrier")
        a(f"s_mul_i32 s{st0}, s2, {CS*32}")
        srd(a, sW2, 6, f"s{st0}", CS*32)
        a(f"v_lshlrev_b32 v46, 7, v0\nbuffer_load_dword v47, v46, {sr(sW2,4)}, 0 offen {OPT.get('pef', '')}")
    stamp(a, 6); stamp(a, 7)
    stamp_out(a, 0, 22, sw, 2)
    a("s_endpgm")
    vW, vX, vA, vt = 32, 96, 112, 2
    def W(m, ab, s): return vW + 32*m + 16*ab + 4*s
    a(f"""
    K1_GEMM:
    s_sub_u32 s{stask}, s2, {NCH}
    s_and_b32 s{sfb}, s{sw}, 3
    s_lshr_b32 s{sng}, s{sw}, 2
    v_and_b32 v{vt}, 63, v0
    v_lshrrev_b32 v{vt+1}, 4, v{vt}
    v_and_b32 v{vt+2}, 15, v0
    s_lshl_b32 s{st0}, s{sfb}, 2
    v_add_u32 v{vt+3}, s{st0}, v{vt+1}
    v_xor_b32 v{vt+3}, v{vt+3}, v{vt+2}
    v_lshlrev_b32 v{vt+3}, 4, v{vt+3}
    v_lshl_add_u32 v{vt+3}, v{vt+1}, 8, v{vt+3}
    v_lshlrev_b32 v{vt+4}, 2, v{vt+1}
    v_xor_b32 v{vt+4}, v{vt+4}, v{vt+2}
    v_lshlrev_b32 v{vt+4}, 4, v{vt+4}
    v_lshl_add_u32 v{vt+4}, v{vt+1}, 8, v{vt+4}
    s_mul_i32 s{st0}, s{stask}, 20480
    s_cmp_lt_u32 s{stask}, 125
    s_cselect_b32 s{st0}, s{st0}, 0
    s_cselect_b32 s{st2}, 20480, 0
    s_waitcnt lgkmcnt(0)
    """)
    touch()
    a(f"""
    s_cmp_ge_u32 s{stask}, 126
    s_cbranch_scc1 K1_WC
    s_add_u32 s{sX}, s4, s{st0}
    s_addc_u32 s{sX+1}, s5, 0
    s_mov_b32 s{sX+2}, s{st2}
    s_mov_b32 s{sX+3}, 0x20000
    s_lshl_b32 s{st1}, s{sw}, 10
    s_add_u32 m0, s{st1}, {K1_X}
    s_cmp_eq_u32 s{stask}, 125
    s_cselect_b64 {sr(sW1,2)}, s[12:13], s[14:15]
    s_cselect_b64 {sr(sW2,2)}, s[18:19], s[20:21]
    buffer_load_dwordx4 v{vt+3}, {sr(sX,4)}, s{st1} offen lds
    s_cmp_lt_u32 s{sw}, 4
    s_cbranch_scc0 K1_X1
    s_add_u32 m0, s{st1}, {K1_X+16384}
    s_add_u32 s{st1}, s{st1}, 16384
    buffer_load_dwordx4 v{vt+3}, {sr(sX,4)}, s{st1} offen lds
    K1_X1:
    s_mov_b32 s{sW1+2}, 32768
    s_mov_b32 s{sW1+3}, 0x20000
    s_mov_b32 s{sW2+2}, 32768
    s_mov_b32 s{sW2+3}, 0x20000
    s_lshr_b32 s{st1}, s2, 3
    s_add_u32 s{st1}, s{st1}, s{sw}
    s_and_b32 s{st1}, s{st1}, 15
    s_lshl_b32 s{st1}, s{st1}, 11
    s_mov_b32 m0, s{st1}
    s_lshl_b32 s{st0}, s{st0}, 1
    buffer_load_dwordx4 v{vt+4}, {sr(sW1,4)}, s{st1} offen lds
    buffer_load_dwordx4 v{vt+4}, {sr(sW1,4)}, s{st1} offen offset:1024 lds
    s_add_u32 m0, s{st1}, 32768
    s_add_u32 s{st0}, s{st0}, {T_OFF}
    buffer_load_dwordx4 v{vt+4}, {sr(sW2,4)}, s{st1} offen lds
    buffer_load_dwordx4 v{vt+4}, {sr(sW2,4)}, s{st1} offen offset:1024 lds
    """)
    srd(a, sT, 22, f"s{st0}", 40960)
    a(f"""
    v_bfe_u32 v{vt+5}, v0, 2, 2
    v_and_b32 v{vt+6}, 3, v0
    s_lshl_b32 s{st0}, s{sfb}, 2
    v_add_u32 v{vt+6}, s{st0}, v{vt+6}
    v_lshlrev_b32 v{vt+7}, 2, v{vt+5}
    v_xor_b32 v{vt+6}, v{vt+6}, v{vt+7}
    v_lshl_add_u32 v{vt+5}, v{vt+1}, 3, v{vt+5}
    v_lshlrev_b32 v{vt+5}, 8, v{vt+5}
    v_lshl_add_u32 v10, v{vt+6}, 4, v{vt+5}
    v_xor_b32 v11, v{vt+1}, v{vt+2}
    v_lshlrev_b32 v11, 4, v11
    v_lshl_add_u32 v11, v{vt+2}, 8, v11
    s_lshl_b32 s{st0}, s{sng}, 12
    s_add_u32 s{st0}, s{st0}, {K1_X}
    v_add_u32 v11, s{st0}, v11
    v_lshlrev_b32 v12, 9, v{vt+2}
    v_lshl_add_u32 v12, v{vt+1}, 4, v12
    s_lshl_b32 s{st0}, s{sng}, 13
    s_lshr_b32 s{st1}, s{sfb}, 1
    s_lshl_b32 s{st1}, s{st1}, 8
    s_add_u32 s{st0}, s{st0}, s{st1}
    s_and_b32 s{st1}, s{sfb}, 1
    s_lshl_b32 s{st1}, s{st1}, 6
    s_add_u32 s{ctso}, s{st0}, s{st1}
    s_mov_b32 s{cnl2e}, {NL2E:#x}
    s_mov_b32 s{csign}, 0x00800000
    s_mov_b32 s{cmag}, 0x7fffffff
    s_mov_b32 s{cp0}, 0x07060100
    s_mov_b32 s{cp0+1}, 0x07060302
    v_xor_b32 v13, 64, v11
    v_xor_b32 v14, 0x80, v11
    v_xor_b32 v15, 0xc0, v11
    """)
    stamp(a, 1)
    a("s_waitcnt vmcnt(0)")
    stamp(a, 2)
    a("s_barrier")
    stamp(a, 3)
    def xrd(off):
        for s in range(4): a(f"ds_read_b128 {vr(vX+4*s,4)}, v{[11,13,14,15][s]} offset:{off}")
    xrd(0)
    n = 4
    for s in range(4):
        for m in range(2):
            for ab in range(2):
                for u in range(2):
                    a(f"ds_read_b64_tr_b16 {vr(W(m,ab,s)+2*u,2)}, v10 offset:{m*32768+s*8192+u*1024+ab*8}")
        if s < 3: a("s_waitcnt lgkmcnt(6)")
    a(f"s_cmp_eq_u32 s{stask}, 125\ns_cbranch_scc1 K1_WT")
    def mm():
        for s in range(4):
            for m in range(2):
                for ab in range(2):
                    d = vr(vA+8*m+4*ab, 4)
                    a(f"v_mfma_f32_16x16x32_bf16 {d}, {vr(W(m,ab,s),4)}, {vr(vX+4*s,4)}, {'0' if s == 0 else d}")
    def pack(so):
        a("s_nop 7")
        for b in range(2):
            for ab in range(2):
                b0, b1 = vA+4*ab+b, vA+4*ab+2+b
                a(f"v_mul_f32 v{b0}, s{cnl2e}, v{b0}\nv_mul_f32 v{b1}, s{cnl2e}, v{b1}")
                for e_ in range(2):
                    h = vA+8+4*ab+2*e_+b
                    a(f"v_max_f32 v{16+e_}, abs(v{h}), s{csign}\nv_bfi_b32 v{h}, s{cmag}, v{16+e_}, v{h}")
                a(f"v_cvt_pk_bf16_f32 v{b0}, v{b0}, v{b1}")
                for e_ in range(2):
                    h = vA+8+4*ab+2*e_+b
                    a(f"v_add_u32 v{h}, 0x8000, v{h}")
                for e_ in range(2):
                    h = vA+8+4*ab+2*e_+b
                    a(f"v_sub_u32_sdwa v{h}, v{h}, v{b0} dst_sel:DWORD dst_unused:UNUSED_PAD src0_sel:DWORD src1_sel:WORD_{e_}")
                for e_ in range(2):
                    h = vA+8+4*ab+2*e_+b
                    a(f"v_perm_b32 v{20+4*b+2*ab+e_}, v{h}, v{b0}, s{cp0+e_}")
            a(f"buffer_store_dwordx4 {vr(20+4*b,4)}, v12, {sr(sT,4)}, s{so} offen offset:{128*b} {OPT['st_t']}")
    a("s_waitcnt lgkmcnt(0)")
    mm()
    stamp(a, 4)
    a(f"s_cmp_eq_u32 s{sng}, 0\ns_cbranch_scc0 K1_ONE")
    xrd(16384)
    pack(ctso)
    a(f"s_add_u32 s{ctso}, s{ctso}, 32768\ns_waitcnt lgkmcnt(0)")
    mm()
    a("K1_ONE:")
    pack(ctso)
    stamp(a, 5); stamp(a, 6); stamp(a, 7)
    stamp_out(a, 0, 22, sw, 2)
    a("s_endpgm")
    a("K1_WT:")
    srd(a, sT, 22, WT_OFF, 65536)
    a(f"""
    s_cmp_ge_u32 s{sw}, 8
    s_cbranch_scc1 K1_END
    v_lshlrev_b32 v{vt+1}, 4, v{vt}
    s_lshl_b32 s{st0}, s{sw}, 13
    s_add_u32 s{st1}, s{st0}, 4096
    s_waitcnt lgkmcnt(0)
    s_cmp_eq_u32 s{sng}, 0
    s_cbranch_scc0 K1_WU
    """)
    for m in range(2):
        for ab in range(2):
            for s in range(4):
                a(f"buffer_store_dwordx4 {vr(W(m,ab,s),4)}, v{vt+1}, {sr(sT,4)}, s{st1 if ab else st0} offen offset:{1024*s} {OPT['st_t']}")
        a("s_endpgm")
        if m == 0: a("K1_WU:")
    a("K1_WC:")
    srd(a, sT, 22, WT_OFF+65536, 4096)
    srd(a, sW1, 16, None, 4096)
    a(f"""
    s_cmp_eq_u32 s{stask}, 126
    s_cbranch_scc0 K1_END
    s_cmp_ge_u32 s{sw}, 4
    s_cbranch_scc1 K1_END
    v_lshrrev_b32 v{vt+2}, 5, v{vt}
    v_and_b32 v{vt+3}, 31, v0
    v_lshlrev_b32 v{vt+3}, 2, v{vt+3}
    v_lshl_add_u32 v{vt+3}, v{vt+2}, 11, v{vt+3}
    v_lshlrev_b32 v{vt+1}, 4, v{vt}
    s_lshr_b32 s{st1}, s{sw}, 1
    s_lshl_b32 s{st1}, s{st1}, 7
    s_and_b32 s{st0}, s{sw}, 1
    s_lshl_b32 s{st0}, s{st0}, 1
    s_add_u32 s{st1}, s{st1}, s{st0}
    s_lshl_b32 s{st0}, s{sw}, 10
    s_mov_b32 s{cnl2e}, {NL2E:#x}
    """)
    for j in range(8):
        a(f"buffer_load_ushort v{20+j}, v{vt+3}, {sr(sW1,4)}, s{st1} offen offset:{256*j}")
    a("s_waitcnt vmcnt(0)")
    for j in range(8):
        a(f"v_lshlrev_b32 v{20+j}, 16, v{20+j}\nv_mul_f32 v{20+j}, s{cnl2e}, v{20+j}")
    for j in range(4):
        a(f"v_cvt_pk_bf16_f32 v{28+j}, v{20+2*j}, v{21+2*j}")
    a(f"buffer_store_dwordx4 v[28:31], v{vt+1}, {sr(sT,4)}, s{st0} offen {OPT['st_t']}")
    a("K1_END:\ns_endpgm")
    return a.text(), kd("k1_kernel", 128, 102)

CAPG = 640
CNT = 0; START = 256; OHL = 512; L1 = 1024; L2 = L1 + 4*CAPG*4; APL = L2 + 4*CAPG*4
ROWP = 272
UL = APL + 48*ROWP; XL = UL + 48*ROWP; LUTL = XL + 12288; K2_LDS = LUTL + 65536

def gen_k2():
    a = Asm()
    sREC, sX, sWT, sT, sE, sO, sD, sS = 24, 28, 32, 36, 40, 44, 68, 72
    sw, sg, sfh, st0, st1, st2 = 48, 49, 50, 51, 52, 53
    scount, sslow, sround, sinit, sgb, srt, slut, srank = 54, 55, 56, 57, 58, 59, 82, 83
    cm32, c128, cnl2e, cfc, csrc, cm40, cm10, cfe = 60, 61, 62, 63, 64, 65, 66, 67
    sk = 16
    vH16, vA1, vA2, vEa, vOa, vO, vO2 = 1, 2, 3, 4, 5, 6, 7
    WC = 8; AP = 16; PA = 24; SC = 28; OH = 32; EA = 40; ADDR = 48; ACC = 64; SP = 96; G = 112; RAW = 176
    XR = 240; UR = 246; vM15 = 252; vH256 = 253
    raw = lambda p, b: RAW + 32*p + 16*b
    gb = lambda p, b: G + 32*p + 16*b
    vt = gb(1, 1); WT = ACC; Z = SP; EOFF = SP+15
    REC = raw(1, 0); CADDR = REC+8; RANK = REC+16; STV = REC+24
    NT = int(OPT.get("nt", "1"))
    rowoff = lambda r: 8*(r >> 2) + (r & 3)

    a("k2_kernel:")
    a(f"s_cmp_ge_u32 s2, {NBIN}\ns_cbranch_scc1 K2_END")
    stamp(a, 0)
    a(f"""
    s_load_dwordx8 s[4:11], s[0:1], 0
    s_load_dwordx2 s[12:13], s[0:1], 72
    s_load_dwordx2 s[14:15], s[0:1], 88
    v_lshrrev_b32 v{vt}, 6, v0
    v_lshrrev_b32 v{vt+1}, 2, v0
    v_readfirstlane_b32 s{sw}, v{vt}
    v_and_b32 v{vt+2}, 3, v0
    v_lshlrev_b32 v{vt+3}, 7, v{vt+1}
    v_lshl_add_u32 v{vt+3}, v{vt+2}, 4, v{vt+3}
    s_lshl_b32 s{st0}, s2, 14
    s_add_u32 s{st0}, s{st0}, {REC_OFF}
    v_mul_u32_u24 v{EOFF}, {CS*32}, v{vt+1}
    v_and_b32 v{vt}, 63, v0
    v_lshlrev_b32 v{vt+5}, 2, v{vt}
    v_mov_b32 v{Z}, 0
    ds_write_b32 v{vt+5}, v{Z} offset:{CNT}
    v_lshrrev_b32 v{vt+4}, 4, v{vt}
    s_and_b32 s{sg}, s{sw}, 3
    s_lshr_b32 s{sfh}, s{sw}, 2
    s_lshl_b32 s{st1}, s{sg}, 2
    v_add_u32 v{vA1}, s{st1}, v{vt+4}
    v_and_b32 v{vA2}, 15, v0
    v_xor_b32 v{vA1}, v{vA1}, v{vA2}
    v_lshlrev_b32 v{vA1}, 4, v{vA1}
    v_lshl_add_u32 v{vA1}, v{vt+4}, 8, v{vA1}
    v_lshlrev_b32 v{vA2}, 4, v{vt}
    s_lshr_b32 s{srt}, s2, 3
    s_add_u32 s{srt}, s{srt}, s{sw}
    s_and_b32 s{srt}, s{srt}, 7
    s_lshl_b32 s{slut}, s{srt}, 13
    s_lshl_b32 s{st1}, s{sw}, 10
    s_add_u32 m0, s{st1}, {XL}
    s_waitcnt lgkmcnt(0)
    """)
    srd(a, sREC, 14, f"s{st0}", 16384)
    for r in range(2):
        a(f"buffer_load_dwordx4 {vr(REC+4*r,4)}, v{vt+3}, {sr(sREC,4)}, 0 offen offset:{64*r}")
    a(f"s_mul_i32 s{st0}, s2, {BN*256}")
    srd(a, sX, 4, f"s{st0}", BN*256)
    srd(a, sWT, 14, WT_OFF, LUT_OFF - WT_OFF + 65536)
    a("s_barrier")
    stamp(a, 1)
    a(f"""
    buffer_load_dwordx4 v{vA1}, {sr(sX,4)}, s{st1} offen lds
    s_cmp_lt_u32 s{sw}, 4
    s_cbranch_scc0 K2_X1
    s_add_u32 m0, s{st1}, {XL+8192}
    s_add_u32 s{st2}, s{st1}, 8192
    buffer_load_dwordx4 v{vA1}, {sr(sX,4)}, s{st2} offen lds
    K2_X1:
    s_add_u32 s{st2}, s{slut}, 4096
    """)
    for k in range(8):
        a(f"buffer_load_dwordx4 {vr(WT+4*k,4)}, v{vA2}, {sr(sWT,4)}, s{st2 if k >= 4 else slut} offen offset:{1024*(k&3)}")
    a(f"""
    s_lshl_b32 s{st1}, s{sfh}, 11
    s_add_u32 s{st1}, s{st1}, 65536
    buffer_load_dwordx4 {vr(WC,4)}, v{vA2}, {sr(sWT,4)}, s{st1} offen
    buffer_load_dwordx4 {vr(WC+4,4)}, v{vA2}, {sr(sWT,4)}, s{st1} offen offset:1024
    """)
    def lut_dma(k):
        a(f"""
        s_add_u32 m0, s{slut}, {LUTL + 2048*k}
        s_add_u32 s{st2}, s{slut}, {LUT_OFF - WT_OFF + 2048*k}
        buffer_load_dwordx4 v{vA2}, {sr(sWT,4)}, s{st2} offen lds
        buffer_load_dwordx4 v{vA2}, {sr(sWT,4)}, s{st2} offen offset:1024 lds
        """)
    def ld_xr(): return [f"buffer_load_dword v{XR+r}, v{vO}, {sr(sX,4)}, 0 offen offset:{256*rowoff(r)}" for r in range(6)]
    srd(a, sO, 12, f"s{st0}", BN*256)
    a(f"s_lshl_b32 s{st0}, s{sfh}, 8\ns_add_u32 s{st0}, s{st0}, {T_OFF-128}")
    srd(a, sT, 14, f"s{st0}", 64, w3="0x800000", hi_or="0x40000")
    srd(a, sE, 6, None, E*32)
    a(f"""
    v_cmp_gt_u32 vcc, 128, v0
    s_and_saveexec_b64 s[76:77], vcc
    v_lshlrev_b32 v{vt+3}, 2, v0
    v_bfe_u32 v{vt+4}, v0, 2, 4
    v_and_b32 v{Z+4}, 3, v0
    v_lshrrev_b32 v{Z+5}, 6, v0
    v_lshl_add_u32 v{Z+4}, v{Z+5}, 2, v{Z+4}
    v_lshlrev_b32 v{Z+5}, 1, v{Z+4}
    v_mov_b32 v{Z+6}, 0x3f80
    v_mov_b32 v{Z+7}, 0x3f800000
    v_cmp_eq_u32 vcc, v{Z+5}, v{vt+4}
    v_add_u32 v{Z+5}, 1, v{Z+5}
    s_nop 0
    v_cndmask_b32 v{Z+8}, 0, v{Z+6}, vcc
    v_cmp_eq_u32 vcc, v{Z+5}, v{vt+4}
    v_cmp_eq_u32 s[78:79], 7, v{Z+4}
    s_or_b64 vcc, vcc, s[78:79]
    s_nop 1
    v_cndmask_b32 v{Z+9}, 0, v{Z+7}, vcc
    v_or_b32 v{Z+8}, v{Z+8}, v{Z+9}
    v_cmp_gt_u32 vcc, 15, v{vt+4}
    s_nop 1
    v_cndmask_b32 v{Z+8}, 0, v{Z+8}, vcc
    ds_write_b32 v{vt+3}, v{Z+8} offset:{OHL}
    s_mov_b64 exec, s[76:77]
    s_mov_b32 s{cm32}, {'0x7e0' if 'e' in OPT.get('nomem','') else '0xffffffe0'}
    s_mov_b32 s{c128}, 128
    s_mov_b32 s{cnl2e}, {NL2E:#x}
    s_mov_b32 s{cfc}, 0xfc
    s_mov_b32 s{cfe}, {OPT.get('cfe', '0xfffe')}
    s_mov_b32 s{csrc}, {'0x3e00' if 't' in OPT.get('nomem','') else '0x7ffe00'}
    s_mov_b32 s{sslow}, 0
    s_mov_b32 s{sround}, 0
    s_mov_b32 s{sinit}, 0
    s_mul_i32 s{st0}, s{sfh}, 3
    s_xor_b32 s{srank}, s{sg}, s{st0}
    v_lshrrev_b32 v{vt+3}, 5, v{vt}
    v_and_b32 v{vt+4}, 31, v0
    v_lshlrev_b32 v{vH16}, 4, v{vt+3}
    v_lshlrev_b32 v{vH256}, 8, v{vt+3}
    v_cmp_eq_u32 vcc, 0, v{vt+3}
    v_mov_b32 v{vM15}, 0xffff
    v_mov_b32 v{Z+4}, -1
    v_cndmask_b32 v{vM15}, v{vM15}, v{Z+4}, vcc
    v_and_b32 v{Z+4}, 3, v0
    v_mov_b32 v{Z+6}, 0x3f80
    """)
    for i in range(4):
        a(f"v_cmp_eq_u32 vcc, {i}, v{Z+4}\ns_nop 1\nv_cndmask_b32 v{PA+i}, 0, v{Z+6}, vcc")
    den = bf(127*2.0**-116); tiny = bf(2.0**-100)
    a(f"""
    v_cmp_gt_u32 s[78:79], 16, v{vt+4}
    v_mov_b32 v{Z+5}, {den:#x}
    v_mov_b32 v{Z+7}, {tiny<<16:#x}
    v_cndmask_b32 v{Z+5}, v{Z+6}, v{Z+5}, s[78:79]
    v_cndmask_b32 v{Z+7}, 0, v{Z+7}, s[78:79]
    v_and_b32 v{Z+4}, 15, v0
    v_lshlrev_b32 v{Z+8}, 3, v{vt+3}
    v_sub_u32 v{Z+4}, v{Z+4}, v{Z+8}
    v_lshlrev_b32 v{Z+6}, 16, v{Z+5}
    """)
    for d in range(4):
        a(f"""
        v_cmp_eq_u32 vcc, {2*d}, v{Z+4}
        v_cmp_eq_u32 s[78:79], {2*d+1}, v{Z+4}
        s_nop 0
        v_cndmask_b32 v{SC+d}, 0, v{Z+5}, vcc
        v_cndmask_b32 v{Z+8}, 0, v{Z+6}, s[78:79]
        v_or_b32 v{SC+d}, v{SC+d}, v{Z+8}
        """)
    a(f"""
    v_and_b32 v{SC+3}, v{SC+3}, v{vM15}
    v_not_b32 v{Z+8}, v{vM15}
    v_and_b32 v{Z+8}, v{Z+8}, v{Z+7}
    v_or_b32 v{SC+3}, v{SC+3}, v{Z+8}
    """)
    for r in range(16): a(f"v_mov_b32 v{ADDR+r}, 128")
    a(f"""
    v_mov_b32 v{vt+3}, 4
    s_waitcnt vmcnt(11)
    """)
    stamp(a, 2)
    a(f"""
    v_cmp_eq_u32 vcc, -2, v{REC+7}
    s_cbranch_vccz K2_NOOVF
    v_mov_b32 v{vt+4}, 0x10000
    v_mov_b32 v{vt}, 60
    ds_add_u32 v{vt}, v{vt+4} offset:{CNT}
    K2_NOOVF:
    """)
    def caddr(k): return f"v_and_b32_sdwa v{CADDR+k}, s{cfc}, v{REC+k} dst_sel:DWORD dst_unused:UNUSED_PAD src0_sel:DWORD src1_sel:BYTE_3"
    for k in range(8):
        a(f"""
        v_cmpx_gt_u32 vcc, -2, v{REC+k}
        s_cbranch_execz K2_CNT_DONE
        {caddr(k)}
        ds_add_rtn_u32 v{RANK+k}, v{CADDR+k}, v{vt+3} offset:{CNT}
        """)
    a(f"""
    K2_CNT_DONE:
    s_mov_b64 exec, -1
    """)
    lut_dma(0)
    a("s_waitcnt lgkmcnt(0)\ns_barrier")
    def scan(fast):
        x = SP
        a(f"""
        v_and_b32 v{vt}, 63, v0
        v_lshlrev_b32 v{vt+1}, 2, v{vt}
        ds_read_b32 v{x}, v{vt+1} offset:{CNT}
        v_lshrrev_b32 v{vt}, 4, v{vt}
        v_mul_u32_u24 v{vt}, {CAPG*4}, v{vt}
        v_and_b32 v{vt+2}, 31, v0
        v_lshlrev_b32 v{vt+2}, 2, v{vt+2}
        v_mov_b32 v{vt+4}, 0xfffffe
        """)
        if fast: lut_dma(1)
        a(f"""
        s_waitcnt lgkmcnt(0)
        v_sub_u32 v{vt}, v{vt}, v{x}
        """)
        for d in ("row_shr:1", "row_shr:2", "row_shr:4", "row_shr:8"):
            a(f"v_add_u32_dpp v{x}, v{x}, v{x} {d} row_mask:0xf bank_mask:0xf bound_ctrl:0\ns_nop 1")
        a(f"""
        v_add_u32 v{vt}, v{vt}, v{x}
        v_cmp_lt_u32 vcc, {(CAPG-32)*4}, v{x}
        ds_write_b32 v{vt+1}, v{vt} offset:{START}
        """)
        for g in range(4): a(f"v_readlane_b32 s{sk+g}, v{x}, {16*g+15}")
        if fast:
            a("s_cbranch_vccnz K2_SLOW")
            for k in range(4): a(f"ds_read_b32 v{STV+k}, v{CADDR+k} offset:{START}")
            lut_dma(2)
        for g in range(1, 4): a(f"s_or_b32 s{sk+g}, s{sk+g}, {g}")
        if fast and OPT.get("pair", "1") == "1":
            cur = [sk, sk+1, sk+2, sk+3]; spare = sk+4
            for (i, j) in ((0, 1), (2, 3), (0, 2), (1, 3), (1, 2)):
                a(f"s_max_u32 s{spare}, s{cur[i]}, s{cur[j]}\ns_min_u32 s{cur[j]}, s{cur[i]}, s{cur[j]}")
                cur[i], spare = spare, cur[i]
            sel = srank
        else:
            cur = [sk, sk+1, sk+2, sk+3]; sel = sg
        a(f"""
        s_bitcmp1_b32 s{sel}, 0
        s_cselect_b32 s{cur[0]}, s{cur[1]}, s{cur[0]}
        s_cselect_b32 s{cur[2]}, s{cur[3]}, s{cur[2]}
        s_bitcmp1_b32 s{sel}, 1
        s_cselect_b32 s{st0}, s{cur[2]}, s{cur[0]}
        s_and_b32 s{sg}, s{st0}, 3
        s_andn2_b32 s{st0}, s{st0}, 3
        s_mul_i32 s{sgb}, s{sg}, {CAPG*4}
        s_add_u32 s{scount}, s{st0}, 127
        s_lshr_b32 s{scount}, s{scount}, 7
        s_add_u32 s{st0}, s{st0}, s{sgb}
        v_add_u32 v{vt+2}, s{st0}, v{vt+2}
        v_lshlrev_b32 v{vt+3}, 3, v{vt+2}
        v_and_b32 v{vt+3}, 128, v{vt+3}
        ds_write2st64_b32 v{vt+2}, v{vt+3}, v{vt+4} offset0:{L1//256} offset1:{L2//256}
        """)
    def place(k):
        a(f"""
        v_add_u32 v{STV+k}, v{STV+k}, v{RANK+k}
        v_lshrrev_b32 v{vt}, 7, v{REC+k}
        v_lshlrev_b32 v{vt+1}, 3, v{STV+k}
        v_mad_u32_u16 v{vt+2}, v{REC+k}, 2, v{EOFF}
        v_and_b32 v{vt+1}, 128, v{vt+1}
        v_and_or_b32 v{vt}, v{vt}, s{csrc}, v{vt+1}
        ds_write2st64_b32 v{STV+k}, v{vt}, v{vt+2} offset0:{L1//256} offset1:{L2//256}
        """)
    scan(True)
    a("s_waitcnt lgkmcnt(1)")
    for k in range(8):
        a(f"v_cmpx_gt_u32 vcc, -2, v{REC+k}\ns_cbranch_execz K2_PLACED")
        if k == 4:
            for kk in range(4, 8):
                a(f"ds_read_b32 v{STV+kk}, v{CADDR+kk} offset:{START}")
            a("s_waitcnt lgkmcnt(0)")
        place(k)
    a(f"""
    K2_PLACED:
    s_mov_b64 exec, -1
    """)
    lut_dma(3)
    def lane_setup():
        a(f"""
        v_and_b32 v{vt}, 31, v0
        v_xor_b32 v{vA1}, 16, v{vH16}
        v_xor_b32 v{vA2}, 4, v{vt}
        v_lshlrev_b32 v{vA2}, 2, v{vA2}
        v_add_u32 v{vA1}, s{sgb}, v{vA1}
        v_add_u32 v{vA2}, s{sgb}, v{vA2}
        s_mul_i32 s{st0}, s{sg}, {GN*256}
        s_lshl_b32 s{st1}, s{sfh}, 7
        s_add_u32 s{st0}, s{st0}, s{st1}
        v_lshlrev_b32 v{vO}, 2, v{vt}
        v_lshl_add_u32 v{vO}, v{vH256}, 2, v{vO}
        v_add_u32 v{vO}, s{st0}, v{vO}
        v_lshl_or_b32 v{vO2}, v{vH16}, 27, v{vO}
        """)
    lane_setup()
    a("s_waitcnt vmcnt(18) lgkmcnt(0)\ns_barrier")
    stamp(a, 3); stamp(a, 1, "4")
    def rd_addr(off, j): return f"ds_read_b128 {vr(ADDR+4*j,4)}, v{vA1} offset:{L1+off+32*j}"
    def rd_l2(reg, off): return f"ds_read_b32 v{reg}, v{vA2} offset:{L2+off}"
    def ld_raw(p, b, r):
        pre = [f"v_and_b32 v{ADDR+r}, 0x7fff80, v{ADDR+r}"] if OPT.get("safe") else []
        if OPT.get("noload"): return ["s_nop 0"]
        return pre + [f"buffer_load_dword v{raw(p,b)+r}, v{ADDR+r}, {sr(sT,4)}, 0 offen" + (" offset:128" if b else "")]
    def ld_blk(p, b): return sum((ld_raw(p, b, r) for r in range(16)), [])
    def ld_ea(p): return [f"v_and_or_b32 v{vEa}, v{vEa}, s{cm32}, v{vH16}", f"buffer_load_dwordx4 {vr(EA+4*p,4)}, v{vEa}, {sr(sE,4)}, 0 offen"]
    def oh_idx(p):
        return [f"v_and_b32 v{vOa}, 30, v{vOa}",
                f"v_lshl_add_u32 v{vOa}, v{vOa}, 3, v{vH256}",
                f"ds_read_b128 {vr(OH+4*p,4)}, v{vOa} offset:{OHL}"]
    big = "v_mfma_f32_32x32x16_bf16" if not OPT.get("nobig") else "; "
    de = OPT.get("drop", "")
    def mE(p, b): return "; " if "E" in de else f"{big} {vr(gb(p,b),16)}, {vr(EA+4*p,4)}, {vr(WC+4*b,4)}, 0"
    def mA(p, b): return "; " if "A" in de else f"{big} {vr(gb(p,b),16)}, {vr(OH+4*p,4)}, {vr(AP+4*b,4)}, {vr(gb(p,b),16)}"
    def mS(p): return "; " if "S" in de else f"{big} {vr(SP,16)}, {vr(OH+4*p,4)}, {vr(SC,4)}, 0"
    def mG(p, b, j): return "; " if ("G" in de or ("g" in de and j & 1)) else f"{big} {vr(ACC+16*b,16)}, {vr(SP+4*j,4)}, {vr(gb(p,b)+4*j,4)}, {vr(ACC+16*b,16)}"
    def mP(p, b):
        o = []
        for u in range(2):
            for j in range(4):
                g = vr(gb(p,b)+4*j, 4)
                o.append(f"v_mfma_f32_4x4x4_16b_bf16 {g}, {vr(PA+2*u,2)}, {vr(raw(p,b)+4*j+2*u,2)}, {g}")
        return o
    sd = "dst_sel:DWORD dst_unused:UNUSED_PAD src0_sel:DWORD"
    def idx_pair(p, b, i):
        g0, g1 = gb(p,b)+2*i, gb(p,b)+2*i+1
        if i < NT:
            return [f"v_exp_f32 v{g0}, v{g0}", f"v_exp_f32 v{g1}, v{g1}", f"v_add_f32 v{g0}, 1.0, v{g0}",
                    f"v_add_f32 v{g1}, 1.0, v{g1}", f"v_rcp_f32 v{g0}, v{g0}", f"v_rcp_f32 v{g1}, v{g1}"], []
        return [f"v_cvt_pkrtz_f16_f32 v{g0}, v{g0}, v{g1}",
                f"v_and_b32_sdwa v{g1}, s{cfe}, v{g0} {sd} src1_sel:WORD_1",
                f"v_and_b32_sdwa v{g0}, s{cfe}, v{g0} {sd} src1_sel:WORD_0"], \
               [f"ds_read_u16_d16_hi v{g1}, v{g1} offset:{LUTL}", f"ds_read_u16_d16_hi v{g0}, v{g0} offset:{LUTL}"]
    def fin_pair(p, b, i):
        g0, r0 = gb(p,b)+2*i, raw(p,b)+2*i
        return [f"v_mul_f32 v{r0}, v{g0}, v{r0}", f"v_mul_f32 v{r0+1}, v{g0+1}, v{r0+1}",
                f"v_cvt_pk_bf16_f32 v{g0}, v{g0}, v{r0}", f"v_cvt_pk_bf16_f32 v{g0+1}, v{g0+1}, v{r0+1}"]
    def zipl(x, y):
        o = []
        for k in range(max(len(x), len(y))):
            if k < len(x): o.append(x[k])
            if k < len(y): o.append(y[k])
        return o
    uid = [0]
    def W(kind):
        uid[0] += 1
        return f"@W{kind} {uid[0]}"
    def slot(p, b, kind, acc=True):
        q = 1-p
        nxt = (p, 1) if b == 0 else (q, 0)
        do_idx = b == 0 or kind != "L"
        bigs = []
        if kind != "L": bigs += [[W("v"), mE(q, b)] + (ld_ea(q) if (b == 1 and kind == "F") else []), [mA(q, b)]]
        if acc: bigs += [[mG(q if b == 0 else p, 1-b, j)] for j in range(4)]
        if b == 0: bigs += [[mS(p)]]
        smalls = mP(q, b) if kind != "L" else []
        out = []
        nb = 0
        for i in range(8):
            iv, il = idx_pair(*nxt, i) if do_idx else ([], [])
            fv = fin_pair(p, b, i)
            seq = zipl(iv, fv) if i >= NT or not do_idx else [iv[0], fv[0], iv[1], fv[1], iv[2], fv[2], iv[3], fv[3], iv[4], iv[5]]
            seq += il
            if kind == "F":
                seq += ld_raw(p, b, 2*i) + ld_raw(p, b, 2*i+1)
                if b == 1 and i & 1: seq.append(rd_addr((3+p)*128, i >> 1))
                if b == 0 and i == 1: seq.append(rd_l2(vEa, (3+p)*128))
                if b == 0 and i == 5: seq.append(rd_l2(vOa, (2+p)*128))
                if b == 1 and i == 2: seq += oh_idx(p)
            pre = [W("l")]
            if i < 6:
                take = 2 if (len(bigs) - nb) > (6 - i) else 1
                ins = []
                if nb < len(bigs): pre += bigs[nb]; nb += 1
                if take == 2 and nb < len(bigs):
                    seq = seq[:6] + bigs[nb] + seq[6:]; nb += 1
            if smalls and i >= 5:
                k0, k1 = {5: (0, 2), 6: (2, 6), 7: (6, 8)}[i]
                sm = smalls[k0:k1]
                if i == 5: seq = seq[:4] + [W("v")] + zipl(sm, seq[4:])
                elif i == 6: seq = zipl(sm, seq)
                else: seq = zipl(sm, seq)
            out += pre + seq
        assert nb == len(bigs)
        return out
    def body(p, kind):
        q = 1-p; n = f"{kind}{p}"
        o0 = [f"K2_BODY{n}:"] + slot(p, 0, kind)
        o1 = [f"K2_MID{n}:"] + (ld_xr() if kind == "L" else []) + slot(p, 1, kind)
        if kind == "F":
            if p == 1: o1 += [f"v_add_u32 v{vA1}, 256, v{vA1}", f"v_add_u32 v{vA2}, 256, v{vA2}"]
            o1 += [f"s_sub_u32 s{scount}, s{scount}, 1", f"s_cmp_eq_u32 s{scount}, 2", f"s_cbranch_scc1 K2_BODYP{q}"]
        return o0, o1
    def entry(kind):
        more = kind != "L"
        o = [rd_l2(vOa, 0)]
        if more: o += [rd_l2(vEa, 128)] + [rd_addr(128, j) for j in range(4)]
        o += [W("l")] + oh_idx(0) + [W("v"), W("l"), "@STAMP", mE(0, 0), mA(0, 0), mE(0, 1), mA(0, 1)]
        if more: o += [rd_l2(vOa, 128)] + ld_ea(1) + [rd_l2(vEa, 256)] + ld_blk(1, 0)
        else: o += ["s_nop 7"]
        o += [W("v")] + mP(0, 0)
        if more: o += [W("l")] + oh_idx(1)
        if kind == "F": o += ld_ea(0)
        o += ["s_nop 1"]
        for i in range(8):
            v_, l_ = idx_pair(0, 0, i)
            o += [W("l")] + ([v_[0], v_[1], "s_nop 0"] + v_[2:] if i < NT else v_) + l_
            if more:
                o += ld_raw(1, 1, 2*i) + ld_raw(1, 1, 2*i+1)
                if i & 1: o.append(rd_addr(256, i >> 1))
            if i == 3: o += [W("v")] + mP(0, 1)
        return o + slot(0, 0, kind, acc=False) + [f"s_branch K2_MID{kind}0"]
    def drain(p): return ["s_nop 1"] + [mG(p, 1, j) for j in range(4)]
    fill0 = [rd_l2(vEa, 0)] + [rd_addr(0, j) for j in range(4)] + ["s_waitcnt lgkmcnt(4)"] + ld_ea(0) + ["s_waitcnt lgkmcnt(0)"] + ld_blk(0, 0) + ld_blk(0, 1)
    B = {(p, k): body(p, k) for p in range(2) for k in "FPL"}
    EN = {k: entry(k) for k in "FPL"}
    def trace(cnt):
        kinds = ["F"]*(cnt-2) + ["P", "L"][-min(cnt, 2):]
        tr = fill0 + EN[kinds[0]] + B[(0, kinds[0])][1]
        for t in range(1, cnt): tr += B[(t & 1, kinds[t])][0] + B[(t & 1, kinds[t])][1]
        return tr + drain((cnt-1) & 1)
    nost = lambda l: [x for x in l if x != "@STAMP"]
    need = asmsim.solve_waits([nost(trace(c)) for c in range(1, 9)])
    for c in range(1, 9): asmsim.check_hazards(asmsim.apply_waits(nost(trace(c)), need), f"count {c}")
    def emit(l):
        for x in asmsim.apply_waits(l, need):
            if x == "@STAMP":
                stamp(a, 5); stamp(a, 5, "3"); stamp(a, 7, "4")
                if OPT.get("prof") == "3": a(f"s_memtime s[86:87]\ns_mov_b32 s90, s{scount}\ns_getreg_b32 s92, hwreg(HW_REG_HW_ID)")
            else: a(x)
    def fill(n):
        a(f"s_cmp_eq_u32 s{scount}, 0\ns_cbranch_scc0 K2_FILL{n}\ns_waitcnt vmcnt(0)\ns_branch K2_FILLED{n}\nK2_FILL{n}:")
        a.ext(fill0)
        a(f"K2_FILLED{n}:")
    XF = G
    accs = [[raw(1,0)+8*nb, raw(1,0)+8*nb+4] for nb in range(3)]
    assert XL % 256 == 0
    def gemm(n, w_wt, w_all):
        a(f"""
        v_and_b32 v{vt}, 15, v0
        v_bfe_u32 v{vt+1}, v0, 4, 2
        v_xor_b32 v{vt+2}, v{vt}, v{vt+1}
        v_lshlrev_b32 v{vt+2}, 4, v{vt+2}
        v_lshl_add_u32 v{vt+2}, v{vt}, 8, v{vt+2}
        """)
        for s in range(4):
            if s: a(f"v_xor_b32 v{vt+3}, {64*s}, v{vt+2}")
            for nb in range(3):
                a(f"ds_read_b128 {vr(XF+16*nb+4*s,4)}, v{vt+3 if s else vt+2} offset:{XL+4096*nb}")
        a(f"v_mul_u32_u24 v{vt}, {ROWP}, v{vt}\ns_waitcnt vmcnt({w_wt})")
        stamp(a, 3, "4")
        for s in range(4):
            a(f"s_waitcnt lgkmcnt({9-3*s})")
            for nb in range(3):
                for ab in range(2):
                    d = vr(accs[nb][ab], 4)
                    a(f"v_mfma_f32_16x16x32_bf16 {d}, {vr(WT+16*ab+4*s,4)}, {vr(XF+16*nb+4*s,4)}, {'0' if s == 0 else d}")
        a(f"""
        s_cmp_lt_u32 s{srt}, 4
        s_cbranch_scc0 K2_GU{n}
        s_lshr_b32 s{st0}, s{srt}, 1
        s_lshl_b32 s{st0}, s{st0}, 7
        s_and_b32 s{st1}, s{srt}, 1
        s_lshl_b32 s{st1}, s{st1}, 5
        s_add_u32 s{st0}, s{st0}, s{st1}
        v_lshl_add_u32 v{vt}, v{vt+1}, 3, v{vt}
        v_add_u32 v{vt}, s{st0}, v{vt}
        """)
        for nb in range(3):
            al, be = accs[nb]
            for i in range(4): a(f"v_mul_f32 v{al+i}, s{cnl2e}, v{al+i}\nv_mul_f32 v{be+i}, s{cnl2e}, v{be+i}")
            a(f"""
            v_cvt_pk_bf16_f32 v{XF+4*nb}, v{al}, v{al+2}
            v_cvt_pk_bf16_f32 v{XF+4*nb+1}, v{be}, v{be+2}
            v_cvt_pk_bf16_f32 v{XF+4*nb+2}, v{al+1}, v{al+3}
            v_cvt_pk_bf16_f32 v{XF+4*nb+3}, v{be+1}, v{be+3}
            ds_write_b64 v{vt}, {vr(XF+4*nb,2)} offset:{APL+16*ROWP*nb}
            ds_write_b64 v{vt}, {vr(XF+4*nb+2,2)} offset:{APL+16*ROWP*nb+64}
            """)
        a(f"""
        s_branch K2_GD{n}
        K2_GU{n}:
        s_and_b32 s{st0}, s{srt}, 3
        s_lshl_b32 s{st0}, s{st0}, 6
        v_lshl_add_u32 v{vt}, v{vt+1}, 4, v{vt}
        v_add_u32 v{vt}, s{st0}, v{vt}
        s_nop 1
        """)
        for nb in range(3):
            al, be = accs[nb]
            a(f"""
            v_cvt_pk_bf16_f32 v{XF+4*nb}, v{al}, v{al+1}
            v_cvt_pk_bf16_f32 v{XF+4*nb+1}, v{al+2}, v{al+3}
            v_cvt_pk_bf16_f32 v{XF+4*nb+2}, v{be}, v{be+1}
            v_cvt_pk_bf16_f32 v{XF+4*nb+3}, v{be+2}, v{be+3}
            ds_write_b128 v{vt}, {vr(XF+4*nb,4)} offset:{UL+16*ROWP*nb}
            """)
        a(f"""
        K2_GD{n}:
        v_bfe_u32 v{vt}, v0, 2, 2
        v_lshrrev_b32 v{vt+1}, 1, v{vH16}
        v_add_u32 v{vt}, v{vt}, v{vt+1}
        v_mul_u32_u24 v{vt}, {ROWP}, v{vt}
        v_bfe_u32 v{vt+2}, v0, 4, 1
        v_lshl_add_u32 v{vt}, v{vt+2}, 5, v{vt}
        v_and_b32 v{vt+2}, 3, v0
        v_lshl_add_u32 v{vt}, v{vt+2}, 3, v{vt}
        s_mul_i32 s{st0}, s{sg}, {GN*ROWP}
        s_lshl_b32 s{st1}, s{sfh}, 7
        s_add_u32 s{st0}, s{st0}, s{st1}
        v_add_u32 v{vt}, s{st0}, v{vt}
        v_mul_u32_u24 v{vt+1}, {ROWP//2}, v{vt+1}
        v_and_b32 v{vt+2}, 31, v0
        v_lshl_add_u32 v{vt+1}, v{vt+2}, 2, v{vt+1}
        v_add_u32 v{vt+1}, s{st0}, v{vt+1}
        s_mov_b32 s{sinit}, 1
        """)
        for r in range(32): a(f"v_mov_b32 v{ACC+r}, 0")
        stamp(a, 4, "4")
        a(f"s_waitcnt vmcnt({w_all}) lgkmcnt(0)")
        stamp(a, 5, "4")
        a("s_barrier")
        stamp(a, 6, "4")
        a(f"""
        ds_read_b64_tr_b16 {vr(AP,2)}, v{vt} offset:{APL}
        ds_read_b64_tr_b16 {vr(AP+2,2)}, v{vt} offset:{APL+4*ROWP}
        ds_read_b64_tr_b16 {vr(AP+4,2)}, v{vt} offset:{APL+64}
        ds_read_b64_tr_b16 {vr(AP+6,2)}, v{vt} offset:{APL+4*ROWP+64}
        """)
        for r in range(6): a(f"ds_read_b32 v{UR+r}, v{vt+1} offset:{UL+ROWP*rowoff(r)}")
        a(f"""
        s_waitcnt lgkmcnt(6)
        v_and_b32 v{AP+3}, v{AP+3}, v{vM15}
        v_and_b32 v{AP+7}, v{AP+7}, v{vM15}
        """)
    a(f"s_cmp_lg_u32 s{sfh}, 0\ns_cbranch_scc1 K2_LATE\nK2_EARLY:")
    fill("A")
    stamp(a, 4); stamp(a, 2, "4")
    a(f"s_cmp_lg_u32 s{sinit}, 0\ns_cbranch_scc1 K2_GO")
    gemm("A", 43, 33)
    a("s_branch K2_GO\nK2_LATE:")
    stamp(a, 2, "4")
    gemm("B", 10, 0)
    fill("B")
    stamp(a, 4)
    a(f"""
    K2_GO:
    s_cmp_eq_u32 s{scount}, 0
    s_cbranch_scc1 K2_EMPTY
    s_cmp_gt_u32 s{scount}, 2
    s_cbranch_scc1 K2_ENTF
    s_cmp_eq_u32 s{scount}, 2
    s_cbranch_scc1 K2_ENTP
    """)
    emit(EN["L"]); a("K2_ENTP:"); emit(EN["P"]); a("K2_ENTF:"); emit(EN["F"])
    a(".p2align 6")
    for p in range(2): emit(B[(p, "F")][0] + B[(p, "F")][1])
    a("s_branch K2_BODYF0")
    a("K2_EMPTY:"); a.ext(ld_xr()); a("s_branch K2_DONE")
    for p in range(2):
        emit(B[(p, "P")][0] + B[(p, "P")][1] + B[(1-p, "L")][0] + B[(1-p, "L")][1] + drain(1-p))
        if p == 0: a("s_branch K2_DONE")
    a(f"""
    K2_DONE:
    s_cmp_lg_u32 s{sslow}, 0
    s_cbranch_scc1 K2_ROUND
    K2_EPI:
    s_waitcnt vmcnt(0) lgkmcnt(0)
    """)
    stamp(a, 6); stamp(a, 6, "3")
    if OPT.get("prof") == "3": a("s_memtime s[88:89]")
    T0 = G
    for b in range(2):
        for r in range(6):
            a(f"v_add_f32 v{ACC+16*b+r}, 0x358637bd, v{ACC+16*b+r}")
        for r in range(6):
            a(f"v_rcp_f32 v{ACC+16*b+r}, v{ACC+16*b+r}")
        for r in range(6):
            u, x = T0+12*b+r, T0+12*b+6+r
            if b == 0: a(f"v_lshlrev_b32 v{u}, 16, v{UR+r}\nv_lshlrev_b32 v{x}, 16, v{XR+r}")
            else: a(f"v_and_b32 v{u}, 0xffff0000, v{UR+r}\nv_and_b32 v{x}, 0xffff0000, v{XR+r}")
        for r in range(6):
            u, x = T0+12*b+r, T0+12*b+6+r
            a(f"v_fmac_f32 v{u}, v{ACC+16*b+8+r}, v{ACC+16*b+r}\nv_max_f32 v{u}, 0, v{u}\nv_add_f32 v{u}, v{u}, v{x}")
    for r in range(6):
        a(f"v_cvt_pk_bf16_f32 v{SP+r}, v{T0+r}, v{T0+12+r}")
        a(f"buffer_store_dword v{SP+r}, v{vO if r < 4 else vO2}, {sr(sO,4)}, 0 offen offset:{256*rowoff(r)}")
    stamp(a, 7)
    stamp_out(a, 1, 14, sw, 2)
    a("K2_END:\ns_endpgm")

    a("K2_SLOW:")
    srd(a, sS, 8, None, E*4)
    srd(a, sD, 10, None, E*4)
    a(f"""
    s_mov_b32 s{sslow}, 1
    s_mov_b32 s{cm40}, {-BN}
    s_mov_b32 s{cm10}, {-GN}
    """)
    for k in range(4): lut_dma(k)
    a(f"""
    K2_ROUND:
    s_cmp_ge_u32 s{sround}, {E//512}
    s_cbranch_scc1 K2_EPI
    s_lshl_b32 s{st0}, s{sround}, 9
    s_add_u32 s{sround}, s{sround}, 1
    v_add_u32 v{EOFF}, s{st0}, v0
    v_lshlrev_b32 v{vt}, 2, v{EOFF}
    buffer_load_dword v{REC}, v{vt}, {sr(sD,4)}, 0 offen
    buffer_load_dword v{REC+1}, v{vt}, {sr(sS,4)}, 0 offen
    v_lshlrev_b32 v{EOFF}, 5, v{EOFF}
    v_and_b32 v{vt}, 63, v0
    v_lshlrev_b32 v{vt}, 2, v{vt}
    v_mov_b32 v{vt+1}, 0
    s_waitcnt lgkmcnt(0)
    s_barrier
    ds_write_b32 v{vt}, v{vt+1} offset:{CNT}
    v_mov_b32 v{vt+3}, 4
    s_waitcnt vmcnt(0) lgkmcnt(0)
    s_barrier
    """)
    rec_fields(a, REC, REC+2, vt, cm40, cm10)
    a(f"""
    v_cmp_eq_u32 vcc, s2, v{REC+2}
    v_lshl_or_b32 v{REC}, v{REC+1}, 16, v{REC}
    {caddr(0)}
    s_mov_b64 s[78:79], vcc
    s_mov_b64 exec, vcc
    ds_add_rtn_u32 v{RANK}, v{CADDR}, v{vt+3} offset:{CNT}
    s_mov_b64 exec, -1
    s_waitcnt lgkmcnt(0)
    s_barrier
    """)
    scan(False)
    a(f"""
    s_mov_b64 exec, s[78:79]
    ds_read_b32 v{STV}, v{CADDR} offset:{START}
    s_waitcnt lgkmcnt(0)
    """)
    place(0)
    a(f"""
    s_mov_b64 exec, -1
    """)
    lane_setup()
    a(f"""
    s_waitcnt lgkmcnt(0)
    s_barrier
    s_branch K2_EARLY
    K2_CODE_END:
    """)
    return a.text(), kd("k2_kernel", 254, 102)

KE_PROF = f"""
    s_memrealtime s[8:9]
    s_load_dwordx2 s[4:5], s[0:1], 88
    s_waitcnt lgkmcnt(0)
    s_add_u32 s4, s4, {PROF_OFF + 0x200000}
    s_addc_u32 s5, s5, 0
    s_mov_b32 s6, 4
    s_mov_b32 s7, 0x20000
    v_mov_b32 v1, s8
    v_lshlrev_b32 v0, 2, v0
    buffer_store_dword v1, v0, s[4:7], 0 offen
"""
def main():
    k1, d1 = gen_k1(); k2, d2 = gen_k2()
    ref = open("standalone__edge_featured_mpnn_gatedgcn__graph.s.ref").read().split("\n")
    out = "\n".join(ref[:13]) + "\n"
    for ch in OPT.get("list", "12"):
        if ch == "1": out += f"; @launch kernel=k1_kernel grid=({2*NCH},1,1) block=(1024,1,1) lds={K1_LDS}\n"
        if ch == "2": out += f"; @launch kernel=k2_kernel grid=({NBIN},1,1) block=(512,1,1) lds={K2_LDS}\n"
        if ch == "e": out += "; @launch kernel=ke_kernel grid=(1,1,1) block=(64,1,1) lds=0\n"
    out += '.amdgcn_target "amdgcn-amd-amdhsa--gfx950"\n.text\n'
    for n, k in (("k1_kernel", k1), ("k2_kernel", k2)):
        out += f".globl {n}\n.p2align 8\n.type {n},@function\n" + k
    if "e" in OPT.get("list", ""): out += ".globl ke_kernel\n.p2align 8\n.type ke_kernel,@function\nke_kernel:\n" + (KE_PROF if OPT.get("prof") else "") + "    s_endpgm\n"
    out += '.section .rodata,"a"\n.p2align 6\n' + d1.lstrip("\n") + '.p2align 6\n' + d2.lstrip("\n")
    if "e" in OPT.get("list", ""): out += '.p2align 6\n' + kd("ke_kernel", 8, 16).lstrip("\n")
    open(sys.argv[1], "w").write(out)

if __name__ == "__main__":
    main()
```

```python
import struct, sys
import asmsim

N = 10000; E = 320000
NCH = 128; CS = 2500
NBIN = 250; BN = 40; GN = 10
CAP = 32
T_OFF = 0x100000
REC_OFF = 0x700000
WT_OFF = 0xB00000
LUT_OFF = 0xB20000
PROF_OFF = 0xF000000
NL2E = struct.unpack("<I", struct.pack("<f", -1.4426950408889634))[0]

def bf(x): return struct.unpack("<I", struct.pack("<f", x))[0] >> 16

OPT = dict(st_r="sc1", st_t="sc1")
for a in sys.argv[2:]:
    k, v = a.split("=", 1); OPT[k] = v

class Asm:
    def __init__(self): self.l = []
    def __call__(self, s):
        for x in s.strip("\n").split("\n"):
            x = x.strip()
            if not x: continue
            if x.startswith(";"): x = "s_nop 0"
            self.l.append(x if x.endswith(":") else "    " + x)
    def ext(self, lst):
        for x in lst: self(x)
    def text(self): return "\n".join(self.l) + "\n"

def stamp(a, i, lvl="1"):
    if OPT.get("prof") and (i in (0, 8) or OPT["prof"] == lvl): a(f"s_memrealtime s[{84+2*i}:{85+2*i}]")
def stamp_out(a, kern, wsreg, sw, vtmp):
    if not OPT.get("prof"): return
    a("s_waitcnt vmcnt(0)")
    stamp(a, 8)
    a(f"""
    s_lshl_b32 s4, s2, 4
    s_add_u32 s4, s4, s{sw}
    s_lshl_b32 s4, s4, 6
    s_add_u32 s4, s4, {PROF_OFF + kern*0x100000}
    s_add_u32 s4, s{wsreg}, s4
    s_addc_u32 s5, s{wsreg+1}, 0
    s_mov_b32 s6, 64
    s_mov_b32 s7, 0x20000
    s_waitcnt lgkmcnt(0)
    """)
    for i in range(9): a(f"v_writelane_b32 v{vtmp}, s{84+2*i}, {i}")
    a(f"""
    v_mbcnt_lo_u32_b32 v{vtmp+1}, -1, 0
    v_mbcnt_hi_u32_b32 v{vtmp+1}, -1, v{vtmp+1}
    v_lshlrev_b32 v{vtmp+1}, 2, v{vtmp+1}
    buffer_store_dword v{vtmp}, v{vtmp+1}, s[4:7], 0 offen
    """)

def vr(b, n): return f"v[{b}:{b+n-1}]"
def sr(b, n): return f"s[{b}:{b+n-1}]"

def srd(a, d, base, add=None, size=None, w3="0x20000", hi_or=None):
    if add is None:
        a(f"s_mov_b32 s{d}, s{base}\ns_mov_b32 s{d+1}, s{base+1}")
    else:
        a(f"s_add_u32 s{d}, s{base}, {add}\ns_addc_u32 s{d+1}, s{base+1}, 0")
    if hi_or: a(f"s_or_b32 s{d+1}, s{d+1}, {hi_or}")
    a(f"s_mov_b32 s{d+2}, {size}\ns_mov_b32 s{d+3}, {w3}")

def kd(name, vgpr, sgpr):
    return f"""
.amdhsa_kernel {name}
  .amdhsa_next_free_vgpr {vgpr}
  .amdhsa_next_free_sgpr {sgpr}
  .amdhsa_accum_offset {(vgpr+3)//4*4}
  .amdhsa_group_segment_fixed_size 0
  .amdhsa_kernarg_size 96
  .amdhsa_user_sgpr_count 2
  .amdhsa_user_sgpr_kernarg_segment_ptr 1
  .amdhsa_system_sgpr_workgroup_id_x 1
.end_amdhsa_kernel
"""

def rec_fields(a, vd, vbin, vtmp, sm40, sm10):
    a(f"""
    v_mul_u32_u24 v{vbin}, 52429, v{vd}
    v_lshrrev_b32 v{vbin}, 21, v{vbin}
    v_mad_i32_i24 v{vd}, v{vbin}, s{sm40}, v{vd}
    v_mul_u32_u24 v{vtmp}, 26, v{vd}
    v_lshrrev_b32 v{vtmp}, 8, v{vtmp}
    v_mad_i32_i24 v{vd}, v{vtmp}, s{sm10}, v{vd}
    v_lshl_or_b32 v{vd}, v{vtmp}, 30, v{vd}
    """)

K1_CNT = 0; K1_STG = 1024; K1_X = 65536; K1_LDS = K1_X + 20480
def gen_k1():
    a = Asm()
    sS, sD, sW1, sW2, sX, sR, sT = 24, 28, 32, 36, 40, 44, 48
    sw, st0, st1, st2, sng, sfb, stask = 52, 53, 54, 55, 56, 57, 58
    c4096, c8192, cm40, cm10, cnl2e, csign, cmag, ctso, cp0 = 59, 60, 61, 62, 63, 64, 65, 66, 67
    a("k1_kernel:")
    a(f"s_cmp_ge_u32 s2, {2*NCH}\ns_cbranch_scc1 K1_END")
    stamp(a, 0)
    a(f"""
    s_load_dwordx16 s[4:19], s[0:1], 0
    s_load_dwordx2 s[20:21], s[0:1], 64
    s_load_dwordx2 s[22:23], s[0:1], 88
    v_lshrrev_b32 v2, 6, v0
    v_lshlrev_b32 v1, 2, v0
    v_readfirstlane_b32 s{sw}, v2
    s_mov_b32 s{c4096}, 4096
    s_mov_b32 s{c8192}, 8192
    s_cmp_ge_u32 s2, {NCH}
    s_cbranch_scc1 K1_GEMM
    """)
    vD, vS, vB, vSL, vt = 2, 5, 8, 11, 16
    a(f"s_mul_i32 s{st1}, s2, {CS*4}\ns_waitcnt lgkmcnt(0)")
    srd(a, sD, 10, f"s{st1}", CS*4)
    srd(a, sS, 8, f"s{st1}", CS*4)
    for r, so in enumerate(("0", f"s{c4096}", f"s{c8192}")):
        a(f"buffer_load_dword v{vD+r}, v1, {sr(sD,4)}, {so} offen")
        a(f"buffer_load_dword v{vS+r}, v1, {sr(sS,4)}, {so} offen")
    a(f"""
    v_mov_b32 v{vt}, -1
    v_mov_b32 v{vt+1}, -1
    v_mov_b32 v{vt+2}, -1
    v_mov_b32 v{vt+3}, -1
    v_lshlrev_b32 v{vt+4}, 4, v0
    v_mov_b32 v{vt+5}, 0
    v_and_b32 v{vt+6}, 0x3fc, v1
    ds_write_b128 v{vt+4}, {vr(vt,4)} offset:{K1_STG}
    ds_write_b128 v{vt+4}, {vr(vt,4)} offset:{K1_STG+16384}
    ds_write_b32 v{vt+6}, v{vt+5} offset:{K1_CNT}
    s_lshl_b32 s{st0}, s2, 7
    s_add_u32 s{st0}, s{st0}, {REC_OFF}
    """)
    srd(a, sR, 22, f"s{st0}", NBIN*NCH*128)
    a(f"s_lshl_b32 s{st0}, s2, 9\ns_add_u32 s{st1}, s{st0}, {LUT_OFF}")
    srd(a, sT, 22, f"s{st1}", 512)
    a(f"""
    v_add_u32 v40, s{st0}, v1
    v_and_b32 v41, 0x7fff, v40
    v_cmp_ne_u32 vcc, 0x7c00, v41
    v_or_b32 v41, 3, v40
    s_nop 0
    v_addc_co_u32 v40, vcc, 0, v40, vcc
    v_cvt_f32_f16 v41, v41
    v_cvt_f32_f16 v40, v40
    v_exp_f32 v41, v41
    v_exp_f32 v40, v40
    v_add_f32 v41, 1.0, v41
    v_add_f32 v40, 1.0, v40
    v_rcp_f32 v41, v41
    v_rcp_f32 v40, v40
    s_nop 0
    v_cvt_pk_bf16_f32 v40, v40, v41
    buffer_store_dword v40, v1, {sr(sT,4)}, 0 offen {OPT['st_r']}
    """)
    if OPT.get("pf", "0") == "1":
        a(f"""
        s_getpc_b64 {sr(sW1,2)}
        K1_PC:
        s_add_u32 s{sW1}, s{sW1}, k2_kernel-K1_PC
        s_addc_u32 s{sW1+1}, s{sW1+1}, 0
        s_mov_b32 s{sW1+2}, K2_CODE_END-k2_kernel
        s_mov_b32 s{sW1+3}, 0x20000
        v_lshlrev_b32 v44, 5, v0
        buffer_load_dword v45, v44, {sr(sW1,4)}, 0 offen
        """)
    a(f"""
    s_mov_b32 s{cm40}, {-BN}
    s_mov_b32 s{cm10}, {-GN}
    v_mov_b32 v{vt+5}, 1
    v_cmp_gt_u32 vcc, {CS-2048}, v0
    s_mov_b64 s[100:101], vcc
    v_lshrrev_b32 v{vt+7}, 3, v0
    v_and_b32 v{vt+8}, 7, v0
    v_lshlrev_b32 v{vt+9}, 14, v{vt+7}
    v_lshl_add_u32 v{vt+9}, v{vt+8}, 4, v{vt+9}
    v_lshlrev_b32 v{vt+7}, 2, v{vt+7}
    v_cmp_eq_u32 s[82:83], 7, v{vt+8}
    s_mov_b32 s{st2}, {128*16384}
    s_waitcnt lgkmcnt(0)
    s_barrier
    """)
    stamp(a, 1)
    for r in range(3):
        a(f"s_waitcnt vmcnt({4-2*r + 1 + (OPT.get('pf', '0') == '1')})")
        if r == 0: stamp(a, 2)
        rec_fields(a, vD+r, vB+r, vt, cm40, cm10)
        a(f"v_lshlrev_b32 v{vt}, 2, v{vB+r}")
        if r == 2: a("s_mov_b64 exec, s[100:101]")
        a(f"ds_add_rtn_u32 v{vSL+r}, v{vt}, v{vt+5} offset:{K1_CNT}")
        if r == 2: a("s_mov_b64 exec, -1")
        a(f"""
        v_lshl_or_b32 v{vD+r}, v{vS+r}, 16, v{vD+r}
        v_add_u32 v{vS+r}, {1024*r}, v0
        v_lshl_or_b32 v{vD+r}, v{vS+r}, 4, v{vD+r}
        v_lshlrev_b32 v{vB+r}, 7, v{vB+r}
        """)
    for r in range(3):
        a(f"s_waitcnt lgkmcnt({2-r})" if r == 0 else f"s_waitcnt lgkmcnt({2})" if r == 1 else "s_waitcnt lgkmcnt(2)")
        if r == 2: a("s_mov_b64 exec, s[100:101]")
        a(f"""
        v_lshl_add_u32 v{vB+r}, v{vSL+r}, 2, v{vB+r}
        v_cmpx_gt_u32 vcc, {CAP}, v{vSL+r}
        ds_write_b32 v{vB+r}, v{vD+r} offset:{K1_STG}
        s_mov_b64 exec, -1
        """)
    a("s_waitcnt lgkmcnt(0)")
    stamp(a, 3)
    a("s_barrier")
    stamp(a, 4)
    a(f"""
    ds_read_b128 {vr(vt+12,4)}, v{vt+4} offset:{K1_STG}
    ds_read_b32 v{vt}, v{vt+7} offset:{K1_CNT}
    ds_read_b128 {vr(vt+16,4)}, v{vt+4} offset:{K1_STG+16384}
    ds_read_b32 v{vt+1}, v{vt+7} offset:{K1_CNT+512}
    v_mov_b32 v{vt+2}, -2
    """)
    for k in range(2):
        a(f"""
        s_waitcnt lgkmcnt({2-2*k})
        v_cmp_lt_u32 vcc, {CAP}, v{vt+k}
        s_and_b64 vcc, vcc, s[82:83]
        s_nop 1
        v_cndmask_b32 v{vt+15+4*k}, v{vt+15+4*k}, v{vt+2}, vcc
        buffer_store_dwordx4 {vr(vt+12+4*k,4)}, v{vt+9}, {sr(sR,4)}, {'0' if k == 0 else f's{st2}'} offen {OPT['st_r']}
        """)
    stamp(a, 5)
    if OPT.get("pe", "1") == "1":
        a("s_barrier")
        a(f"s_mul_i32 s{st0}, s2, {CS*32}")
        srd(a, sW2, 6, f"s{st0}", CS*32)
        a(f"v_lshlrev_b32 v46, 7, v0\nbuffer_load_dword v47, v46, {sr(sW2,4)}, 0 offen {OPT.get('pef', '')}")
    stamp(a, 6); stamp(a, 7)
    stamp_out(a, 0, 22, sw, 2)
    a("s_endpgm")
    vW, vX, vA, vt = 32, 96, 112, 2
    def W(m, ab, s): return vW + 32*m + 16*ab + 4*s
    a(f"""
    K1_GEMM:
    s_sub_u32 s{stask}, s2, {NCH}
    s_and_b32 s{sfb}, s{sw}, 3
    s_lshr_b32 s{sng}, s{sw}, 2
    v_and_b32 v{vt}, 63, v0
    v_lshrrev_b32 v{vt+1}, 4, v{vt}
    v_and_b32 v{vt+2}, 15, v0
    s_lshl_b32 s{st0}, s{sfb}, 2
    v_add_u32 v{vt+3}, s{st0}, v{vt+1}
    v_xor_b32 v{vt+3}, v{vt+3}, v{vt+2}
    v_lshlrev_b32 v{vt+3}, 4, v{vt+3}
    v_lshl_add_u32 v{vt+3}, v{vt+1}, 8, v{vt+3}
    v_lshlrev_b32 v{vt+4}, 2, v{vt+1}
    v_xor_b32 v{vt+4}, v{vt+4}, v{vt+2}
    v_lshlrev_b32 v{vt+4}, 4, v{vt+4}
    v_lshl_add_u32 v{vt+4}, v{vt+1}, 8, v{vt+4}
    s_mul_i32 s{st0}, s{stask}, 20480
    s_cmp_lt_u32 s{stask}, 125
    s_cselect_b32 s{st0}, s{st0}, 0
    s_cselect_b32 s{st2}, 20480, 0
    s_waitcnt lgkmcnt(0)
    """)
    a(f"""
    s_cmp_ge_u32 s{stask}, 126
    s_cbranch_scc1 K1_WC
    s_add_u32 s{sX}, s4, s{st0}
    s_addc_u32 s{sX+1}, s5, 0
    s_mov_b32 s{sX+2}, s{st2}
    s_mov_b32 s{sX+3}, 0x20000
    s_lshl_b32 s{st1}, s{sw}, 10
    s_add_u32 m0, s{st1}, {K1_X}
    s_cmp_eq_u32 s{stask}, 125
    s_cselect_b64 {sr(sW1,2)}, s[12:13], s[14:15]
    s_cselect_b64 {sr(sW2,2)}, s[18:19], s[20:21]
    """)
    if OPT.get("touch", "0") == "1":
        a(f"""
        s_bitcmp1_b32 s2, 3
        s_cselect_b64 {sr(sS,2)}, {sr(sW1,2)}, {sr(sW2,2)}
        s_bitcmp1_b32 s2, 4
        s_cselect_b32 s{sS+2}, 4, 0
        s_mov_b32 s{sS+3}, 0x20000
        buffer_load_dword v30, v1, {sr(sS,4)}, 0 offen
        """)
    a(f"""
    buffer_load_dwordx4 v{vt+3}, {sr(sX,4)}, s{st1} offen lds
    s_cmp_lt_u32 s{sw}, 4
    s_cbranch_scc0 K1_X1
    s_add_u32 m0, s{st1}, {K1_X+16384}
    s_add_u32 s{st1}, s{st1}, 16384
    buffer_load_dwordx4 v{vt+3}, {sr(sX,4)}, s{st1} offen lds
    K1_X1:
    s_mov_b32 s{sW1+2}, 32768
    s_mov_b32 s{sW1+3}, 0x20000
    s_mov_b32 s{sW2+2}, 32768
    s_mov_b32 s{sW2+3}, 0x20000
    s_lshr_b32 s{st1}, s2, 3
    s_add_u32 s{st1}, s{st1}, s{sw}
    s_and_b32 s{st1}, s{st1}, 15
    s_lshl_b32 s{st1}, s{st1}, 11
    s_mov_b32 m0, s{st1}
    s_lshl_b32 s{st0}, s{st0}, 1
    buffer_load_dwordx4 v{vt+4}, {sr(sW1,4)}, s{st1} offen lds
    buffer_load_dwordx4 v{vt+4}, {sr(sW1,4)}, s{st1} offen offset:1024 lds
    s_add_u32 m0, s{st1}, 32768
    s_add_u32 s{st0}, s{st0}, {T_OFF}
    buffer_load_dwordx4 v{vt+4}, {sr(sW2,4)}, s{st1} offen lds
    buffer_load_dwordx4 v{vt+4}, {sr(sW2,4)}, s{st1} offen offset:1024 lds
    """)
    srd(a, sT, 22, f"s{st0}", 40960)
    a(f"""
    v_bfe_u32 v{vt+5}, v0, 2, 2
    v_and_b32 v{vt+6}, 3, v0
    s_lshl_b32 s{st0}, s{sfb}, 2
    v_add_u32 v{vt+6}, s{st0}, v{vt+6}
    v_lshlrev_b32 v{vt+7}, 2, v{vt+5}
    v_xor_b32 v{vt+6}, v{vt+6}, v{vt+7}
    v_lshl_add_u32 v{vt+5}, v{vt+1}, 3, v{vt+5}
    v_lshlrev_b32 v{vt+5}, 8, v{vt+5}
    v_lshl_add_u32 v10, v{vt+6}, 4, v{vt+5}
    v_xor_b32 v11, v{vt+1}, v{vt+2}
    v_lshlrev_b32 v11, 4, v11
    v_lshl_add_u32 v11, v{vt+2}, 8, v11
    s_lshl_b32 s{st0}, s{sng}, 12
    s_add_u32 s{st0}, s{st0}, {K1_X}
    v_add_u32 v11, s{st0}, v11
    v_lshlrev_b32 v12, 9, v{vt+2}
    v_lshl_add_u32 v12, v{vt+1}, 4, v12
    s_lshl_b32 s{st0}, s{sng}, 13
    s_lshr_b32 s{st1}, s{sfb}, 1
    s_lshl_b32 s{st1}, s{st1}, 8
    s_add_u32 s{st0}, s{st0}, s{st1}
    s_and_b32 s{st1}, s{sfb}, 1
    s_lshl_b32 s{st1}, s{st1}, 6
    s_add_u32 s{ctso}, s{st0}, s{st1}
    s_mov_b32 s{cnl2e}, {NL2E:#x}
    s_mov_b32 s{csign}, 0x00800000
    s_mov_b32 s{cmag}, 0x7fffffff
    s_mov_b32 s{cp0}, 0x07060100
    s_mov_b32 s{cp0+1}, 0x07060302
    v_xor_b32 v13, 64, v11
    v_xor_b32 v14, 0x80, v11
    v_xor_b32 v15, 0xc0, v11
    """)
    stamp(a, 1)
    a("s_waitcnt vmcnt(0)")
    stamp(a, 2)
    a("s_barrier")
    stamp(a, 3)
    def xrd(off):
        for s in range(4): a(f"ds_read_b128 {vr(vX+4*s,4)}, v{[11,13,14,15][s]} offset:{off}")
    xrd(0)
    n = 4
    for s in range(4):
        for m in range(2):
            for ab in range(2):
                for u in range(2):
                    a(f"ds_read_b64_tr_b16 {vr(W(m,ab,s)+2*u,2)}, v10 offset:{m*32768+s*8192+u*1024+ab*8}")
        if s < 3: a("s_waitcnt lgkmcnt(6)")
    a(f"s_cmp_eq_u32 s{stask}, 125\ns_cbranch_scc1 K1_WT")
    def mm():
        for s in range(4):
            for m in range(2):
                for ab in range(2):
                    d = vr(vA+8*m+4*ab, 4)
                    a(f"v_mfma_f32_16x16x32_bf16 {d}, {vr(W(m,ab,s),4)}, {vr(vX+4*s,4)}, {'0' if s == 0 else d}")
    def pack(so):
        a("s_nop 7")
        for b in range(2):
            for ab in range(2):
                b0, b1 = vA+4*ab+b, vA+4*ab+2+b
                a(f"v_mul_f32 v{b0}, s{cnl2e}, v{b0}\nv_mul_f32 v{b1}, s{cnl2e}, v{b1}")
                for e_ in range(2):
                    h = vA+8+4*ab+2*e_+b
                    a(f"v_max_f32 v{16+e_}, abs(v{h}), s{csign}\nv_bfi_b32 v{h}, s{cmag}, v{16+e_}, v{h}")
                a(f"v_cvt_pk_bf16_f32 v{b0}, v{b0}, v{b1}")
                for e_ in range(2):
                    h = vA+8+4*ab+2*e_+b
                    a(f"v_add_u32 v{h}, 0x8000, v{h}")
                for e_ in range(2):
                    h = vA+8+4*ab+2*e_+b
                    a(f"v_sub_u32_sdwa v{h}, v{h}, v{b0} dst_sel:DWORD dst_unused:UNUSED_PAD src0_sel:DWORD src1_sel:WORD_{e_}")
                for e_ in range(2):
                    h = vA+8+4*ab+2*e_+b
                    a(f"v_perm_b32 v{20+4*b+2*ab+e_}, v{h}, v{b0}, s{cp0+e_}")
            a(f"buffer_store_dwordx4 {vr(20+4*b,4)}, v12, {sr(sT,4)}, s{so} offen offset:{128*b} {OPT['st_t']}")
    a("s_waitcnt lgkmcnt(0)")
    mm()
    stamp(a, 4)
    a(f"s_cmp_eq_u32 s{sng}, 0\ns_cbranch_scc0 K1_ONE")
    xrd(16384)
    pack(ctso)
    a(f"s_add_u32 s{ctso}, s{ctso}, 32768\ns_waitcnt lgkmcnt(0)")
    mm()
    a("K1_ONE:")
    pack(ctso)
    stamp(a, 5); stamp(a, 6); stamp(a, 7)
    stamp_out(a, 0, 22, sw, 2)
    a("s_endpgm")
    a("K1_WT:")
    srd(a, sT, 22, WT_OFF, 65536)
    a(f"""
    s_cmp_ge_u32 s{sw}, 8
    s_cbranch_scc1 K1_END
    v_lshlrev_b32 v{vt+1}, 4, v{vt}
    s_lshl_b32 s{st0}, s{sw}, 13
    s_add_u32 s{st1}, s{st0}, 4096
    s_waitcnt lgkmcnt(0)
    s_cmp_eq_u32 s{sng}, 0
    s_cbranch_scc0 K1_WU
    """)
    for m in range(2):
        for ab in range(2):
            for s in range(4):
                a(f"buffer_store_dwordx4 {vr(W(m,ab,s),4)}, v{vt+1}, {sr(sT,4)}, s{st1 if ab else st0} offen offset:{1024*s} {OPT['st_t']}")
        a("s_endpgm")
        if m == 0: a("K1_WU:")
    a("K1_WC:")
    srd(a, sT, 22, WT_OFF+65536, 4096)
    srd(a, sW1, 16, None, 4096)
    a(f"""
    s_cmp_eq_u32 s{stask}, 126
    s_cbranch_scc0 K1_END
    s_cmp_ge_u32 s{sw}, 4
    s_cbranch_scc1 K1_END
    v_lshrrev_b32 v{vt+2}, 5, v{vt}
    v_and_b32 v{vt+3}, 31, v0
    v_lshlrev_b32 v{vt+3}, 2, v{vt+3}
    v_lshl_add_u32 v{vt+3}, v{vt+2}, 11, v{vt+3}
    v_lshlrev_b32 v{vt+1}, 4, v{vt}
    s_lshr_b32 s{st1}, s{sw}, 1
    s_lshl_b32 s{st1}, s{st1}, 7
    s_and_b32 s{st0}, s{sw}, 1
    s_lshl_b32 s{st0}, s{st0}, 1
    s_add_u32 s{st1}, s{st1}, s{st0}
    s_lshl_b32 s{st0}, s{sw}, 10
    s_mov_b32 s{cnl2e}, {NL2E:#x}
    """)
    for j in range(8):
        a(f"buffer_load_ushort v{20+j}, v{vt+3}, {sr(sW1,4)}, s{st1} offen offset:{256*j}")
    a("s_waitcnt vmcnt(0)")
    for j in range(8):
        a(f"v_lshlrev_b32 v{20+j}, 16, v{20+j}\nv_mul_f32 v{20+j}, s{cnl2e}, v{20+j}")
    for j in range(4):
        a(f"v_cvt_pk_bf16_f32 v{28+j}, v{20+2*j}, v{21+2*j}")
    a(f"buffer_store_dwordx4 v[28:31], v{vt+1}, {sr(sT,4)}, s{st0} offen {OPT['st_t']}")
    a("K1_END:\ns_endpgm")
    return a.text(), kd("k1_kernel", 128, 102)

CAPG = 640
CNT = 0; START = 256; OHL = 512; L1 = 1024; L2 = L1 + 4*CAPG*4; APL = L2 + 4*CAPG*4
ROWP = 272
UL = APL + 48*ROWP; XL = UL + 48*ROWP; LUTL = XL + 12288; K2_LDS = LUTL + 65536

def gen_k2():
    a = Asm()
    sREC, sX, sWT, sT, sE, sO, sD, sS = 24, 28, 32, 36, 40, 44, 68, 72
    sw, sg, sfh, st0, st1, st2 = 48, 49, 50, 51, 52, 53
    scount, sslow, sround, sinit, sgb, srt, slut, srank = 54, 55, 56, 57, 58, 59, 82, 83
    cm32, c128, cnl2e, cfc, csrc, cm40, cm10, cfe = 60, 61, 62, 63, 64, 65, 66, 67
    sk = 16
    vH16, vA1, vA2, vEa, vOa, vO, vO2 = 1, 2, 3, 4, 5, 6, 7
    WC = 8; AP = 16; PA = 24; SC = 28; OH = 32; EA = 40; ADDR = 48; ACC = 64; SP = 96; G = 112; RAW = 176
    XR = 240; UR = 246; vM15 = 252; vH256 = 253
    raw = lambda p, b: RAW + 32*p + 16*b
    gb = lambda p, b: G + 32*p + 16*b
    vt = gb(1, 1); WT = ACC; Z = SP; EOFF = SP+15
    REC = raw(1, 0); CADDR = REC+8; RANK = REC+16; STV = REC+24
    NT = int(OPT.get("nt", "1"))
    rowoff = lambda r: 8*(r >> 2) + (r & 3)

    a("k2_kernel:")
    a(f"s_cmp_ge_u32 s2, {NBIN}\ns_cbranch_scc1 K2_END")
    stamp(a, 0)
    a(f"""
    s_load_dwordx8 s[4:11], s[0:1], 0
    s_load_dwordx2 s[12:13], s[0:1], 72
    s_load_dwordx2 s[14:15], s[0:1], 88
    v_lshrrev_b32 v{vt}, 6, v0
    v_lshrrev_b32 v{vt+1}, 2, v0
    v_readfirstlane_b32 s{sw}, v{vt}
    v_and_b32 v{vt+2}, 3, v0
    v_lshlrev_b32 v{vt+3}, 7, v{vt+1}
    v_lshl_add_u32 v{vt+3}, v{vt+2}, 4, v{vt+3}
    s_lshl_b32 s{st0}, s2, 14
    s_add_u32 s{st0}, s{st0}, {REC_OFF}
    v_mul_u32_u24 v{EOFF}, {CS*32}, v{vt+1}
    v_and_b32 v{vt}, 63, v0
    v_lshlrev_b32 v{vt+5}, 2, v{vt}
    v_mov_b32 v{Z}, 0
    ds_write_b32 v{vt+5}, v{Z} offset:{CNT}
    v_lshrrev_b32 v{vt+4}, 4, v{vt}
    s_and_b32 s{sg}, s{sw}, 3
    s_lshr_b32 s{sfh}, s{sw}, 2
    s_lshl_b32 s{st1}, s{sg}, 2
    v_add_u32 v{vA1}, s{st1}, v{vt+4}
    v_and_b32 v{vA2}, 15, v0
    v_xor_b32 v{vA1}, v{vA1}, v{vA2}
    v_lshlrev_b32 v{vA1}, 4, v{vA1}
    v_lshl_add_u32 v{vA1}, v{vt+4}, 8, v{vA1}
    v_lshlrev_b32 v{vA2}, 4, v{vt}
    s_lshr_b32 s{srt}, s2, 3
    s_add_u32 s{srt}, s{srt}, s{sw}
    s_and_b32 s{srt}, s{srt}, 7
    s_lshl_b32 s{slut}, s{srt}, 13
    s_lshl_b32 s{st1}, s{sw}, 10
    s_add_u32 m0, s{st1}, {XL}
    s_waitcnt lgkmcnt(0)
    """)
    srd(a, sREC, 14, f"s{st0}", 16384)
    for r in range(2):
        a(f"buffer_load_dwordx4 {vr(REC+4*r,4)}, v{vt+3}, {sr(sREC,4)}, 0 offen offset:{64*r}")
    a(f"s_mul_i32 s{st0}, s2, {BN*256}")
    srd(a, sX, 4, f"s{st0}", BN*256)
    srd(a, sWT, 14, WT_OFF, LUT_OFF - WT_OFF + 65536)
    a("s_barrier")
    stamp(a, 1)
    a(f"""
    buffer_load_dwordx4 v{vA1}, {sr(sX,4)}, s{st1} offen lds
    s_cmp_lt_u32 s{sw}, 4
    s_cbranch_scc0 K2_X1
    s_add_u32 m0, s{st1}, {XL+8192}
    s_add_u32 s{st2}, s{st1}, 8192
    buffer_load_dwordx4 v{vA1}, {sr(sX,4)}, s{st2} offen lds
    K2_X1:
    s_add_u32 s{st2}, s{slut}, 4096
    """)
    for k in range(8):
        a(f"buffer_load_dwordx4 {vr(WT+4*k,4)}, v{vA2}, {sr(sWT,4)}, s{st2 if k >= 4 else slut} offen offset:{1024*(k&3)}")
    a(f"""
    s_lshl_b32 s{st1}, s{sfh}, 11
    s_add_u32 s{st1}, s{st1}, 65536
    buffer_load_dwordx4 {vr(WC,4)}, v{vA2}, {sr(sWT,4)}, s{st1} offen
    buffer_load_dwordx4 {vr(WC+4,4)}, v{vA2}, {sr(sWT,4)}, s{st1} offen offset:1024
    """)
    def lut_dma(k):
        a(f"""
        s_add_u32 m0, s{slut}, {LUTL + 2048*k}
        s_add_u32 s{st2}, s{slut}, {LUT_OFF - WT_OFF + 2048*k}
        buffer_load_dwordx4 v{vA2}, {sr(sWT,4)}, s{st2} offen lds
        buffer_load_dwordx4 v{vA2}, {sr(sWT,4)}, s{st2} offen offset:1024 lds
        """)
    def ld_xr(): return [f"buffer_load_dword v{XR+r}, v{vO}, {sr(sX,4)}, 0 offen offset:{256*rowoff(r)}" for r in range(6)]
    srd(a, sO, 12, f"s{st0}", BN*256)
    a(f"s_lshl_b32 s{st0}, s{sfh}, 8\ns_add_u32 s{st0}, s{st0}, {T_OFF-128}")
    srd(a, sT, 14, f"s{st0}", 64, w3="0x800000", hi_or="0x40000")
    srd(a, sE, 6, None, E*32)
    a(f"""
    v_cmp_gt_u32 vcc, 128, v0
    s_and_saveexec_b64 s[76:77], vcc
    v_lshlrev_b32 v{vt+3}, 2, v0
    v_bfe_u32 v{vt+4}, v0, 2, 4
    v_and_b32 v{Z+4}, 3, v0
    v_lshrrev_b32 v{Z+5}, 6, v0
    v_lshl_add_u32 v{Z+4}, v{Z+5}, 2, v{Z+4}
    v_lshlrev_b32 v{Z+5}, 1, v{Z+4}
    v_mov_b32 v{Z+6}, 0x3f80
    v_mov_b32 v{Z+7}, 0x3f800000
    v_cmp_eq_u32 vcc, v{Z+5}, v{vt+4}
    v_add_u32 v{Z+5}, 1, v{Z+5}
    s_nop 0
    v_cndmask_b32 v{Z+8}, 0, v{Z+6}, vcc
    v_cmp_eq_u32 vcc, v{Z+5}, v{vt+4}
    v_cmp_eq_u32 s[78:79], 7, v{Z+4}
    s_or_b64 vcc, vcc, s[78:79]
    s_nop 1
    v_cndmask_b32 v{Z+9}, 0, v{Z+7}, vcc
    v_or_b32 v{Z+8}, v{Z+8}, v{Z+9}
    v_cmp_gt_u32 vcc, 15, v{vt+4}
    s_nop 1
    v_cndmask_b32 v{Z+8}, 0, v{Z+8}, vcc
    ds_write_b32 v{vt+3}, v{Z+8} offset:{OHL}
    s_mov_b64 exec, s[76:77]
    s_mov_b32 s{cm32}, {'0x7e0' if 'e' in OPT.get('nomem','') else '0xffffffe0'}
    s_mov_b32 s{c128}, 128
    s_mov_b32 s{cnl2e}, {NL2E:#x}
    s_mov_b32 s{cfc}, 0xfc
    s_mov_b32 s{cfe}, {OPT.get('cfe', '0xfffe')}
    s_mov_b32 s{csrc}, {'0x3e00' if 't' in OPT.get('nomem','') else '0x7ffe00'}
    s_mov_b32 s{sslow}, 0
    s_mov_b32 s{sround}, 0
    s_mov_b32 s{sinit}, 0
    s_mul_i32 s{st0}, s{sfh}, 3
    s_xor_b32 s{srank}, s{sg}, s{st0}
    v_lshrrev_b32 v{vt+3}, 5, v{vt}
    v_and_b32 v{vt+4}, 31, v0
    v_lshlrev_b32 v{vH16}, 4, v{vt+3}
    v_lshlrev_b32 v{vH256}, 8, v{vt+3}
    v_cmp_eq_u32 vcc, 0, v{vt+3}
    v_mov_b32 v{vM15}, 0xffff
    v_mov_b32 v{Z+4}, -1
    v_cndmask_b32 v{vM15}, v{vM15}, v{Z+4}, vcc
    v_and_b32 v{Z+4}, 3, v0
    v_mov_b32 v{Z+6}, 0x3f80
    """)
    for i in range(4):
        a(f"v_cmp_eq_u32 vcc, {i}, v{Z+4}\ns_nop 1\nv_cndmask_b32 v{PA+i}, 0, v{Z+6}, vcc")
    den = bf(127*2.0**-116); tiny = bf(2.0**-100)
    a(f"""
    v_cmp_gt_u32 s[78:79], 16, v{vt+4}
    v_mov_b32 v{Z+5}, {den:#x}
    v_mov_b32 v{Z+7}, {tiny<<16:#x}
    v_cndmask_b32 v{Z+5}, v{Z+6}, v{Z+5}, s[78:79]
    v_cndmask_b32 v{Z+7}, 0, v{Z+7}, s[78:79]
    v_and_b32 v{Z+4}, 15, v0
    v_lshlrev_b32 v{Z+8}, 3, v{vt+3}
    v_sub_u32 v{Z+4}, v{Z+4}, v{Z+8}
    v_lshlrev_b32 v{Z+6}, 16, v{Z+5}
    """)
    for d in range(4):
        a(f"""
        v_cmp_eq_u32 vcc, {2*d}, v{Z+4}
        v_cmp_eq_u32 s[78:79], {2*d+1}, v{Z+4}
        s_nop 0
        v_cndmask_b32 v{SC+d}, 0, v{Z+5}, vcc
        v_cndmask_b32 v{Z+8}, 0, v{Z+6}, s[78:79]
        v_or_b32 v{SC+d}, v{SC+d}, v{Z+8}
        """)
    a(f"""
    v_and_b32 v{SC+3}, v{SC+3}, v{vM15}
    v_not_b32 v{Z+8}, v{vM15}
    v_and_b32 v{Z+8}, v{Z+8}, v{Z+7}
    v_or_b32 v{SC+3}, v{SC+3}, v{Z+8}
    """)
    for r in range(16): a(f"v_mov_b32 v{ADDR+r}, 128")
    a(f"""
    v_mov_b32 v{vt+3}, 4
    s_waitcnt vmcnt(11)
    """)
    stamp(a, 2)
    a(f"""
    v_cmp_eq_u32 vcc, -2, v{REC+7}
    s_cbranch_vccz K2_NOOVF
    v_mov_b32 v{vt+4}, 0x10000
    v_mov_b32 v{vt}, 60
    ds_add_u32 v{vt}, v{vt+4} offset:{CNT}
    K2_NOOVF:
    """)
    def caddr(k): return f"v_and_b32_sdwa v{CADDR+k}, s{cfc}, v{REC+k} dst_sel:DWORD dst_unused:UNUSED_PAD src0_sel:DWORD src1_sel:BYTE_3"
    for k in range(8):
        a(f"""
        v_cmpx_gt_u32 vcc, -2, v{REC+k}
        s_cbranch_execz K2_CNT_DONE
        {caddr(k)}
        ds_add_rtn_u32 v{RANK+k}, v{CADDR+k}, v{vt+3} offset:{CNT}
        """)
    a(f"""
    K2_CNT_DONE:
    s_mov_b64 exec, -1
    """)
    lut_dma(0)
    a("s_waitcnt lgkmcnt(0)\ns_barrier")
    def scan(fast):
        x = SP
        a(f"""
        v_and_b32 v{vt}, 63, v0
        v_lshlrev_b32 v{vt+1}, 2, v{vt}
        ds_read_b32 v{x}, v{vt+1} offset:{CNT}
        v_lshrrev_b32 v{vt}, 4, v{vt}
        v_mul_u32_u24 v{vt}, {CAPG*4}, v{vt}
        v_and_b32 v{vt+2}, 31, v0
        v_lshlrev_b32 v{vt+2}, 2, v{vt+2}
        v_mov_b32 v{vt+4}, 0xfffffe
        """)
        if fast: lut_dma(1)
        a(f"""
        s_waitcnt lgkmcnt(0)
        v_sub_u32 v{vt}, v{vt}, v{x}
        """)
        for d in ("row_shr:1", "row_shr:2", "row_shr:4", "row_shr:8"):
            a(f"v_add_u32_dpp v{x}, v{x}, v{x} {d} row_mask:0xf bank_mask:0xf bound_ctrl:0\ns_nop 1")
        a(f"""
        v_add_u32 v{vt}, v{vt}, v{x}
        v_cmp_lt_u32 vcc, {(CAPG-32)*4}, v{x}
        ds_write_b32 v{vt+1}, v{vt} offset:{START}
        """)
        for g in range(4): a(f"v_readlane_b32 s{sk+g}, v{x}, {16*g+15}")
        if fast:
            a("s_cbranch_vccnz K2_SLOW")
            for k in range(4): a(f"ds_read_b32 v{STV+k}, v{CADDR+k} offset:{START}")
            lut_dma(2)
        for g in range(1, 4): a(f"s_or_b32 s{sk+g}, s{sk+g}, {g}")
        if fast and OPT.get("pair", "1") == "1":
            cur = [sk, sk+1, sk+2, sk+3]; spare = sk+4
            for (i, j) in ((0, 1), (2, 3), (0, 2), (1, 3), (1, 2)):
                a(f"s_max_u32 s{spare}, s{cur[i]}, s{cur[j]}\ns_min_u32 s{cur[j]}, s{cur[i]}, s{cur[j]}")
                cur[i], spare = spare, cur[i]
            sel = srank
        else:
            cur = [sk, sk+1, sk+2, sk+3]; sel = sg
        a(f"""
        s_bitcmp1_b32 s{sel}, 0
        s_cselect_b32 s{cur[0]}, s{cur[1]}, s{cur[0]}
        s_cselect_b32 s{cur[2]}, s{cur[3]}, s{cur[2]}
        s_bitcmp1_b32 s{sel}, 1
        s_cselect_b32 s{st0}, s{cur[2]}, s{cur[0]}
        s_and_b32 s{sg}, s{st0}, 3
        s_andn2_b32 s{st0}, s{st0}, 3
        s_mul_i32 s{sgb}, s{sg}, {CAPG*4}
        s_add_u32 s{scount}, s{st0}, 127
        s_lshr_b32 s{scount}, s{scount}, 7
        s_add_u32 s{st0}, s{st0}, s{sgb}
        v_add_u32 v{vt+2}, s{st0}, v{vt+2}
        v_lshlrev_b32 v{vt+3}, 3, v{vt+2}
        v_and_b32 v{vt+3}, 128, v{vt+3}
        ds_write2st64_b32 v{vt+2}, v{vt+3}, v{vt+4} offset0:{L1//256} offset1:{L2//256}
        """)
    def place(k):
        a(f"""
        v_add_u32 v{STV+k}, v{STV+k}, v{RANK+k}
        v_lshrrev_b32 v{vt}, 7, v{REC+k}
        v_lshlrev_b32 v{vt+1}, 3, v{STV+k}
        v_mad_u32_u16 v{vt+2}, v{REC+k}, 2, v{EOFF}
        v_and_b32 v{vt+1}, 128, v{vt+1}
        v_and_or_b32 v{vt}, v{vt}, s{csrc}, v{vt+1}
        ds_write2st64_b32 v{STV+k}, v{vt}, v{vt+2} offset0:{L1//256} offset1:{L2//256}
        """)
    scan(True)
    a("s_waitcnt lgkmcnt(1)")
    for k in range(8):
        a(f"v_cmpx_gt_u32 vcc, -2, v{REC+k}\ns_cbranch_execz K2_PLACED")
        if k == 4:
            for kk in range(4, 8):
                a(f"ds_read_b32 v{STV+kk}, v{CADDR+kk} offset:{START}")
            a("s_waitcnt lgkmcnt(0)")
        place(k)
    a(f"""
    K2_PLACED:
    s_mov_b64 exec, -1
    """)
    lut_dma(3)
    def lane_setup():
        a(f"""
        v_and_b32 v{vt}, 31, v0
        v_xor_b32 v{vA1}, 16, v{vH16}
        v_xor_b32 v{vA2}, 4, v{vt}
        v_lshlrev_b32 v{vA2}, 2, v{vA2}
        v_add_u32 v{vA1}, s{sgb}, v{vA1}
        v_add_u32 v{vA2}, s{sgb}, v{vA2}
        s_mul_i32 s{st0}, s{sg}, {GN*256}
        s_lshl_b32 s{st1}, s{sfh}, 7
        s_add_u32 s{st0}, s{st0}, s{st1}
        v_lshlrev_b32 v{vO}, 2, v{vt}
        v_lshl_add_u32 v{vO}, v{vH256}, 2, v{vO}
        v_add_u32 v{vO}, s{st0}, v{vO}
        v_lshl_or_b32 v{vO2}, v{vH16}, 27, v{vO}
        """)
    lane_setup()
    a("s_waitcnt vmcnt(18) lgkmcnt(0)\ns_barrier")
    stamp(a, 3); stamp(a, 1, "4")
    def rd_addr(off, j): return f"ds_read_b128 {vr(ADDR+4*j,4)}, v{vA1} offset:{L1+off+32*j}"
    def rd_l2(reg, off): return f"ds_read_b32 v{reg}, v{vA2} offset:{L2+off}"
    def ld_raw(p, b, r):
        pre = [f"v_and_b32 v{ADDR+r}, 0x7fff80, v{ADDR+r}"] if OPT.get("safe") else []
        if OPT.get("noload"): return ["s_nop 0"]
        return pre + [f"buffer_load_dword v{raw(p,b)+r}, v{ADDR+r}, {sr(sT,4)}, 0 offen" + (" offset:128" if b else "")]
    def ld_blk(p, b): return sum((ld_raw(p, b, r) for r in range(16)), [])
    def ld_ea(p): return [f"v_and_or_b32 v{vEa}, v{vEa}, s{cm32}, v{vH16}", f"buffer_load_dwordx4 {vr(EA+4*p,4)}, v{vEa}, {sr(sE,4)}, 0 offen"]
    def oh_idx(p):
        return [f"v_and_b32 v{vOa}, 30, v{vOa}",
                f"v_lshl_add_u32 v{vOa}, v{vOa}, 3, v{vH256}",
                f"ds_read_b128 {vr(OH+4*p,4)}, v{vOa} offset:{OHL}"]
    big = "v_mfma_f32_32x32x16_bf16" if not OPT.get("nobig") else "; "
    de = OPT.get("drop", "")
    def mE(p, b): return "; " if "E" in de else f"{big} {vr(gb(p,b),16)}, {vr(EA+4*p,4)}, {vr(WC+4*b,4)}, 0"
    def mA(p, b): return "; " if "A" in de else f"{big} {vr(gb(p,b),16)}, {vr(OH+4*p,4)}, {vr(AP+4*b,4)}, {vr(gb(p,b),16)}"
    def mS(p): return "; " if "S" in de else f"{big} {vr(SP,16)}, {vr(OH+4*p,4)}, {vr(SC,4)}, 0"
    def mG(p, b, j): return "; " if ("G" in de or ("g" in de and j & 1)) else f"{big} {vr(ACC+16*b,16)}, {vr(SP+4*j,4)}, {vr(gb(p,b)+4*j,4)}, {vr(ACC+16*b,16)}"
    def mP(p, b):
        o = []
        for u in range(2):
            for j in range(4):
                g = vr(gb(p,b)+4*j, 4)
                o.append(f"v_mfma_f32_4x4x4_16b_bf16 {g}, {vr(PA+2*u,2)}, {vr(raw(p,b)+4*j+2*u,2)}, {g}")
        return o
    sd = "dst_sel:DWORD dst_unused:UNUSED_PAD src0_sel:DWORD"
    def idx_pair(p, b, i):
        g0, g1 = gb(p,b)+2*i, gb(p,b)+2*i+1
        if i < NT:
            return [f"v_exp_f32 v{g0}, v{g0}", f"v_exp_f32 v{g1}, v{g1}", f"v_add_f32 v{g0}, 1.0, v{g0}",
                    f"v_add_f32 v{g1}, 1.0, v{g1}", f"v_rcp_f32 v{g0}, v{g0}", f"v_rcp_f32 v{g1}, v{g1}"], []
        return [f"v_cvt_pkrtz_f16_f32 v{g0}, v{g0}, v{g1}",
                f"v_and_b32_sdwa v{g1}, s{cfe}, v{g0} {sd} src1_sel:WORD_1",
                f"v_and_b32_sdwa v{g0}, s{cfe}, v{g0} {sd} src1_sel:WORD_0"], \
               [f"ds_read_u16_d16_hi v{g1}, v{g1} offset:{LUTL}", f"ds_read_u16_d16_hi v{g0}, v{g0} offset:{LUTL}"]
    def fin_pair(p, b, i):
        g0, r0 = gb(p,b)+2*i, raw(p,b)+2*i
        return [f"v_mul_f32 v{r0}, v{g0}, v{r0}", f"v_mul_f32 v{r0+1}, v{g0+1}, v{r0+1}",
                f"v_cvt_pk_bf16_f32 v{g0}, v{g0}, v{r0}", f"v_cvt_pk_bf16_f32 v{g0+1}, v{g0+1}, v{r0+1}"]
    def zipl(x, y):
        o = []
        for k in range(max(len(x), len(y))):
            if k < len(x): o.append(x[k])
            if k < len(y): o.append(y[k])
        return o
    uid = [0]
    def W(kind):
        uid[0] += 1
        return f"@W{kind} {uid[0]}"
    def slot(p, b, kind, acc=True):
        q = 1-p
        nxt = (p, 1) if b == 0 else (q, 0)
        do_idx = b == 0 or kind != "L"
        bigs = []
        if kind != "L": bigs += [[W("v"), mE(q, b)] + (ld_ea(q) if (b == 1 and kind == "F") else []), [mA(q, b)]]
        if acc: bigs += [[mG(q if b == 0 else p, 1-b, j)] for j in range(4)]
        if b == 0: bigs += [[mS(p)]]
        smalls = mP(q, b) if kind != "L" else []
        out = []
        nb = 0
        for i in range(8):
            iv, il = idx_pair(*nxt, i) if do_idx else ([], [])
            fv = fin_pair(p, b, i)
            seq = zipl(iv, fv) if i >= NT or not do_idx else [iv[0], fv[0], iv[1], fv[1], iv[2], fv[2], iv[3], fv[3], iv[4], iv[5]]
            seq += il
            if kind == "F":
                seq += ld_raw(p, b, 2*i) + ld_raw(p, b, 2*i+1)
                if b == 1 and i & 1: seq.append(rd_addr((3+p)*128, i >> 1))
                if b == 0 and i == 1: seq.append(rd_l2(vEa, (3+p)*128))
                if b == 0 and i == 5: seq.append(rd_l2(vOa, (2+p)*128))
                if b == 1 and i == 2: seq += oh_idx(p)
            pre = [W("l")]
            if i < 6:
                take = 2 if (len(bigs) - nb) > (6 - i) else 1
                ins = []
                if nb < len(bigs): pre += bigs[nb]; nb += 1
                if take == 2 and nb < len(bigs):
                    seq = seq[:6] + bigs[nb] + seq[6:]; nb += 1
            if smalls and i >= 5:
                k0, k1 = {5: (0, 2), 6: (2, 6), 7: (6, 8)}[i]
                sm = smalls[k0:k1]
                if i == 5: seq = seq[:4] + [W("v")] + zipl(sm, seq[4:])
                elif i == 6: seq = zipl(sm, seq)
                else: seq = zipl(sm, seq)
            out += pre + seq
        assert nb == len(bigs)
        return out
    def body(p, kind):
        q = 1-p; n = f"{kind}{p}"
        o0 = [f"K2_BODY{n}:"] + slot(p, 0, kind)
        o1 = [f"K2_MID{n}:"] + (ld_xr() if kind == "L" else []) + slot(p, 1, kind)
        if kind == "F":
            if p == 1: o1 += [f"v_add_u32 v{vA1}, 256, v{vA1}", f"v_add_u32 v{vA2}, 256, v{vA2}"]
            o1 += [f"s_sub_u32 s{scount}, s{scount}, 1", f"s_cmp_eq_u32 s{scount}, 2", f"s_cbranch_scc1 K2_BODYP{q}"]
        return o0, o1
    def entry(kind):
        more = kind != "L"
        o = [rd_l2(vOa, 0)]
        if more: o += [rd_l2(vEa, 128)] + [rd_addr(128, j) for j in range(4)]
        o += [W("l")] + oh_idx(0) + [W("v"), W("l"), "@STAMP", mE(0, 0), mA(0, 0), mE(0, 1), mA(0, 1)]
        if more: o += [rd_l2(vOa, 128)] + ld_ea(1) + [rd_l2(vEa, 256)] + ld_blk(1, 0)
        else: o += ["s_nop 7"]
        o += [W("v")] + mP(0, 0)
        if more: o += [W("l")] + oh_idx(1)
        if kind == "F": o += ld_ea(0)
        o += ["s_nop 1"]
        for i in range(8):
            v_, l_ = idx_pair(0, 0, i)
            o += [W("l")] + ([v_[0], v_[1], "s_nop 0"] + v_[2:] if i < NT else v_) + l_
            if more:
                o += ld_raw(1, 1, 2*i) + ld_raw(1, 1, 2*i+1)
                if i & 1: o.append(rd_addr(256, i >> 1))
            if i == 3: o += [W("v")] + mP(0, 1)
        return o + slot(0, 0, kind, acc=False) + [f"s_branch K2_MID{kind}0"]
    def drain(p): return ["s_nop 1"] + [mG(p, 1, j) for j in range(4)]
    fill0 = [rd_l2(vEa, 0)] + [rd_addr(0, j) for j in range(4)] + ["s_waitcnt lgkmcnt(4)"] + ld_ea(0) + ["s_waitcnt lgkmcnt(0)"] + ld_blk(0, 0) + ld_blk(0, 1)
    B = {(p, k): body(p, k) for p in range(2) for k in "FPL"}
    EN = {k: entry(k) for k in "FPL"}
    def trace(cnt):
        kinds = ["F"]*(cnt-2) + ["P", "L"][-min(cnt, 2):]
        tr = fill0 + EN[kinds[0]] + B[(0, kinds[0])][1]
        for t in range(1, cnt): tr += B[(t & 1, kinds[t])][0] + B[(t & 1, kinds[t])][1]
        return tr + drain((cnt-1) & 1)
    nost = lambda l: [x for x in l if x != "@STAMP"]
    need = asmsim.solve_waits([nost(trace(c)) for c in range(1, 9)])
    for c in range(1, 9): asmsim.check_hazards(asmsim.apply_waits(nost(trace(c)), need), f"count {c}")
    def emit(l):
        for x in asmsim.apply_waits(l, need):
            if x == "@STAMP":
                stamp(a, 5); stamp(a, 5, "3"); stamp(a, 7, "4")
                if OPT.get("prof") == "3": a(f"s_memtime s[86:87]\ns_mov_b32 s90, s{scount}\ns_getreg_b32 s92, hwreg(HW_REG_HW_ID)")
            else: a(x)
    def fill(n):
        a(f"s_cmp_eq_u32 s{scount}, 0\ns_cbranch_scc0 K2_FILL{n}\ns_waitcnt vmcnt(0)\ns_branch K2_FILLED{n}\nK2_FILL{n}:")
        a.ext(fill0)
        a(f"K2_FILLED{n}:")
    XF = G
    accs = [[raw(1,0)+8*nb, raw(1,0)+8*nb+4] for nb in range(3)]
    assert XL % 256 == 0
    def gemm(n, w_wt, w_all):
        a(f"""
        v_and_b32 v{vt}, 15, v0
        v_bfe_u32 v{vt+1}, v0, 4, 2
        v_xor_b32 v{vt+2}, v{vt}, v{vt+1}
        v_lshlrev_b32 v{vt+2}, 4, v{vt+2}
        v_lshl_add_u32 v{vt+2}, v{vt}, 8, v{vt+2}
        """)
        for s in range(4):
            if s: a(f"v_xor_b32 v{vt+3}, {64*s}, v{vt+2}")
            for nb in range(3):
                a(f"ds_read_b128 {vr(XF+16*nb+4*s,4)}, v{vt+3 if s else vt+2} offset:{XL+4096*nb}")
        a(f"v_mul_u32_u24 v{vt}, {ROWP}, v{vt}\ns_waitcnt vmcnt({w_wt})")
        stamp(a, 3, "4")
        for s in range(4):
            a(f"s_waitcnt lgkmcnt({9-3*s})")
            for nb in range(3):
                for ab in range(2):
                    d = vr(accs[nb][ab], 4)
                    a(f"v_mfma_f32_16x16x32_bf16 {d}, {vr(WT+16*ab+4*s,4)}, {vr(XF+16*nb+4*s,4)}, {'0' if s == 0 else d}")
        a(f"""
        s_cmp_lt_u32 s{srt}, 4
        s_cbranch_scc0 K2_GU{n}
        s_lshr_b32 s{st0}, s{srt}, 1
        s_lshl_b32 s{st0}, s{st0}, 7
        s_and_b32 s{st1}, s{srt}, 1
        s_lshl_b32 s{st1}, s{st1}, 5
        s_add_u32 s{st0}, s{st0}, s{st1}
        v_lshl_add_u32 v{vt}, v{vt+1}, 3, v{vt}
        v_add_u32 v{vt}, s{st0}, v{vt}
        """)
        for nb in range(3):
            al, be = accs[nb]
            for i in range(4): a(f"v_mul_f32 v{al+i}, s{cnl2e}, v{al+i}\nv_mul_f32 v{be+i}, s{cnl2e}, v{be+i}")
            a(f"""
            v_cvt_pk_bf16_f32 v{XF+4*nb}, v{al}, v{al+2}
            v_cvt_pk_bf16_f32 v{XF+4*nb+1}, v{be}, v{be+2}
            v_cvt_pk_bf16_f32 v{XF+4*nb+2}, v{al+1}, v{al+3}
            v_cvt_pk_bf16_f32 v{XF+4*nb+3}, v{be+1}, v{be+3}
            ds_write_b64 v{vt}, {vr(XF+4*nb,2)} offset:{APL+16*ROWP*nb}
            ds_write_b64 v{vt}, {vr(XF+4*nb+2,2)} offset:{APL+16*ROWP*nb+64}
            """)
        a(f"""
        s_branch K2_GD{n}
        K2_GU{n}:
        s_and_b32 s{st0}, s{srt}, 3
        s_lshl_b32 s{st0}, s{st0}, 6
        v_lshl_add_u32 v{vt}, v{vt+1}, 4, v{vt}
        v_add_u32 v{vt}, s{st0}, v{vt}
        s_nop 1
        """)
        for nb in range(3):
            al, be = accs[nb]
            a(f"""
            v_cvt_pk_bf16_f32 v{XF+4*nb}, v{al}, v{al+1}
            v_cvt_pk_bf16_f32 v{XF+4*nb+1}, v{al+2}, v{al+3}
            v_cvt_pk_bf16_f32 v{XF+4*nb+2}, v{be}, v{be+1}
            v_cvt_pk_bf16_f32 v{XF+4*nb+3}, v{be+2}, v{be+3}
            ds_write_b128 v{vt}, {vr(XF+4*nb,4)} offset:{UL+16*ROWP*nb}
            """)
        a(f"""
        K2_GD{n}:
        v_bfe_u32 v{vt}, v0, 2, 2
        v_lshrrev_b32 v{vt+1}, 1, v{vH16}
        v_add_u32 v{vt}, v{vt}, v{vt+1}
        v_mul_u32_u24 v{vt}, {ROWP}, v{vt}
        v_bfe_u32 v{vt+2}, v0, 4, 1
        v_lshl_add_u32 v{vt}, v{vt+2}, 5, v{vt}
        v_and_b32 v{vt+2}, 3, v0
        v_lshl_add_u32 v{vt}, v{vt+2}, 3, v{vt}
        s_mul_i32 s{st0}, s{sg}, {GN*ROWP}
        s_lshl_b32 s{st1}, s{sfh}, 7
        s_add_u32 s{st0}, s{st0}, s{st1}
        v_add_u32 v{vt}, s{st0}, v{vt}
        v_mul_u32_u24 v{vt+1}, {ROWP//2}, v{vt+1}
        v_and_b32 v{vt+2}, 31, v0
        v_lshl_add_u32 v{vt+1}, v{vt+2}, 2, v{vt+1}
        v_add_u32 v{vt+1}, s{st0}, v{vt+1}
        s_mov_b32 s{sinit}, 1
        """)
        for r in range(32): a(f"v_mov_b32 v{ACC+r}, 0")
        stamp(a, 4, "4")
        a(f"s_waitcnt vmcnt({w_all}) lgkmcnt(0)")
        stamp(a, 5, "4")
        a("s_barrier")
        stamp(a, 6, "4")
        a(f"""
        ds_read_b64_tr_b16 {vr(AP,2)}, v{vt} offset:{APL}
        ds_read_b64_tr_b16 {vr(AP+2,2)}, v{vt} offset:{APL+4*ROWP}
        ds_read_b64_tr_b16 {vr(AP+4,2)}, v{vt} offset:{APL+64}
        ds_read_b64_tr_b16 {vr(AP+6,2)}, v{vt} offset:{APL+4*ROWP+64}
        """)
        for r in range(6): a(f"ds_read_b32 v{UR+r}, v{vt+1} offset:{UL+ROWP*rowoff(r)}")
        a(f"""
        s_waitcnt lgkmcnt(6)
        v_and_b32 v{AP+3}, v{AP+3}, v{vM15}
        v_and_b32 v{AP+7}, v{AP+7}, v{vM15}
        """)
    a(f"s_cmp_lg_u32 s{sfh}, 0\ns_cbranch_scc1 K2_LATE\nK2_EARLY:")
    fill("A")
    stamp(a, 4); stamp(a, 2, "4")
    a(f"s_cmp_lg_u32 s{sinit}, 0\ns_cbranch_scc1 K2_GO")
    gemm("A", 43, 33)
    a("s_branch K2_GO\nK2_LATE:")
    stamp(a, 2, "4")
    gemm("B", 10, 0)
    fill("B")
    stamp(a, 4)
    a(f"""
    K2_GO:
    s_cmp_eq_u32 s{scount}, 0
    s_cbranch_scc1 K2_EMPTY
    s_cmp_gt_u32 s{scount}, 2
    s_cbranch_scc1 K2_ENTF
    s_cmp_eq_u32 s{scount}, 2
    s_cbranch_scc1 K2_ENTP
    """)
    emit(EN["L"]); a("K2_ENTP:"); emit(EN["P"]); a("K2_ENTF:"); emit(EN["F"])
    a(".p2align 6")
    for p in range(2): emit(B[(p, "F")][0] + B[(p, "F")][1])
    a("s_branch K2_BODYF0")
    a("K2_EMPTY:"); a.ext(ld_xr()); a("s_branch K2_DONE")
    for p in range(2):
        emit(B[(p, "P")][0] + B[(p, "P")][1] + B[(1-p, "L")][0] + B[(1-p, "L")][1] + drain(1-p))
        if p == 0: a("s_branch K2_DONE")
    a(f"""
    K2_DONE:
    s_cmp_lg_u32 s{sslow}, 0
    s_cbranch_scc1 K2_ROUND
    K2_EPI:
    s_waitcnt vmcnt(0) lgkmcnt(0)
    """)
    stamp(a, 6); stamp(a, 6, "3")
    if OPT.get("prof") == "3": a("s_memtime s[88:89]")
    T0 = G
    for b in range(2):
        for r in range(6):
            a(f"v_add_f32 v{ACC+16*b+r}, 0x358637bd, v{ACC+16*b+r}")
        for r in range(6):
            a(f"v_rcp_f32 v{ACC+16*b+r}, v{ACC+16*b+r}")
        for r in range(6):
            u, x = T0+12*b+r, T0+12*b+6+r
            if b == 0: a(f"v_lshlrev_b32 v{u}, 16, v{UR+r}\nv_lshlrev_b32 v{x}, 16, v{XR+r}")
            else: a(f"v_and_b32 v{u}, 0xffff0000, v{UR+r}\nv_and_b32 v{x}, 0xffff0000, v{XR+r}")
        for r in range(6):
            u, x = T0+12*b+r, T0+12*b+6+r
            a(f"v_fmac_f32 v{u}, v{ACC+16*b+8+r}, v{ACC+16*b+r}\nv_max_f32 v{u}, 0, v{u}\nv_add_f32 v{u}, v{u}, v{x}")
    for r in range(6):
        a(f"v_cvt_pk_bf16_f32 v{SP+r}, v{T0+r}, v{T0+12+r}")
        a(f"buffer_store_dword v{SP+r}, v{vO if r < 4 else vO2}, {sr(sO,4)}, 0 offen offset:{256*rowoff(r)}")
    stamp(a, 7)
    stamp_out(a, 1, 14, sw, 2)
    a("K2_END:\ns_endpgm")

    a("K2_SLOW:")
    srd(a, sS, 8, None, E*4)
    srd(a, sD, 10, None, E*4)
    a(f"""
    s_mov_b32 s{sslow}, 1
    s_mov_b32 s{cm40}, {-BN}
    s_mov_b32 s{cm10}, {-GN}
    """)
    for k in range(4): lut_dma(k)
    a(f"""
    K2_ROUND:
    s_cmp_ge_u32 s{sround}, {E//512}
    s_cbranch_scc1 K2_EPI
    s_lshl_b32 s{st0}, s{sround}, 9
    s_add_u32 s{sround}, s{sround}, 1
    v_add_u32 v{EOFF}, s{st0}, v0
    v_lshlrev_b32 v{vt}, 2, v{EOFF}
    buffer_load_dword v{REC}, v{vt}, {sr(sD,4)}, 0 offen
    buffer_load_dword v{REC+1}, v{vt}, {sr(sS,4)}, 0 offen
    v_lshlrev_b32 v{EOFF}, 5, v{EOFF}
    v_and_b32 v{vt}, 63, v0
    v_lshlrev_b32 v{vt}, 2, v{vt}
    v_mov_b32 v{vt+1}, 0
    s_waitcnt lgkmcnt(0)
    s_barrier
    ds_write_b32 v{vt}, v{vt+1} offset:{CNT}
    v_mov_b32 v{vt+3}, 4
    s_waitcnt vmcnt(0) lgkmcnt(0)
    s_barrier
    """)
    rec_fields(a, REC, REC+2, vt, cm40, cm10)
    a(f"""
    v_cmp_eq_u32 vcc, s2, v{REC+2}
    v_lshl_or_b32 v{REC}, v{REC+1}, 16, v{REC}
    {caddr(0)}
    s_mov_b64 s[78:79], vcc
    s_mov_b64 exec, vcc
    ds_add_rtn_u32 v{RANK}, v{CADDR}, v{vt+3} offset:{CNT}
    s_mov_b64 exec, -1
    s_waitcnt lgkmcnt(0)
    s_barrier
    """)
    scan(False)
    a(f"""
    s_mov_b64 exec, s[78:79]
    ds_read_b32 v{STV}, v{CADDR} offset:{START}
    s_waitcnt lgkmcnt(0)
    """)
    place(0)
    a(f"""
    s_mov_b64 exec, -1
    """)
    lane_setup()
    a(f"""
    s_waitcnt lgkmcnt(0)
    s_barrier
    s_branch K2_EARLY
    K2_CODE_END:
    """)
    return a.text(), kd("k2_kernel", 254, 102)

KE_PROF = f"""
    s_memrealtime s[8:9]
    s_load_dwordx2 s[4:5], s[0:1], 88
    s_waitcnt lgkmcnt(0)
    s_add_u32 s4, s4, {PROF_OFF + 0x200000}
    s_addc_u32 s5, s5, 0
    s_mov_b32 s6, 4
    s_mov_b32 s7, 0x20000
    v_mov_b32 v1, s8
    v_lshlrev_b32 v0, 2, v0
    buffer_store_dword v1, v0, s[4:7], 0 offen
"""
def main():
    k1, d1 = gen_k1(); k2, d2 = gen_k2()
    ref = open("standalone__edge_featured_mpnn_gatedgcn__graph.s.ref").read().split("\n")
    out = "\n".join(ref[:13]) + "\n"
    for ch in OPT.get("list", "12"):
        if ch == "1": out += f"; @launch kernel=k1_kernel grid=({2*NCH},1,1) block=(1024,1,1) lds={K1_LDS}\n"
        if ch == "2": out += f"; @launch kernel=k2_kernel grid=({NBIN},1,1) block=(512,1,1) lds={K2_LDS}\n"
        if ch == "e": out += "; @launch kernel=ke_kernel grid=(1,1,1) block=(64,1,1) lds=0\n"
    out += '.amdgcn_target "amdgcn-amd-amdhsa--gfx950"\n.text\n'
    for n, k in (("k1_kernel", k1), ("k2_kernel", k2)):
        out += f".globl {n}\n.p2align 8\n.type {n},@function\n" + k
    if "e" in OPT.get("list", ""): out += ".globl ke_kernel\n.p2align 8\n.type ke_kernel,@function\nke_kernel:\n" + (KE_PROF if OPT.get("prof") else "") + "    s_endpgm\n"
    out += '.section .rodata,"a"\n.p2align 6\n' + d1.lstrip("\n") + '.p2align 6\n' + d2.lstrip("\n")
    if "e" in OPT.get("list", ""): out += '.p2align 6\n' + kd("ke_kernel", 8, 16).lstrip("\n")
    open(sys.argv[1], "w").write(out)

if __name__ == "__main__":
    main()
```

```python
import struct, sys
import asmsim

N = 10000; E = 320000
NCH = 128; CS = 2500
NBIN = 250; BN = 40; GN = 10
CAP = 32
T_OFF = 0x100000
REC_OFF = 0x700000
WT_OFF = 0xB00000
LUT_OFF = 0xB20000
PROF_OFF = 0xF000000
NL2E = struct.unpack("<I", struct.pack("<f", -1.4426950408889634))[0]

def bf(x): return struct.unpack("<I", struct.pack("<f", x))[0] >> 16

OPT = dict(st_r="sc1", st_t="sc1")
for a in sys.argv[2:]:
    k, v = a.split("=", 1); OPT[k] = v

class Asm:
    def __init__(self): self.l = []
    def __call__(self, s):
        for x in s.strip("\n").split("\n"):
            x = x.strip()
            if not x: continue
            if x.startswith(";"): x = "s_nop 0"
            self.l.append(x if x.endswith(":") else "    " + x)
    def ext(self, lst):
        for x in lst: self(x)
    def text(self): return "\n".join(self.l) + "\n"

def stamp(a, i, lvl="1"):
    if OPT.get("prof") and (i in (0, 8) or OPT["prof"] == lvl): a(f"s_memrealtime s[{84+2*i}:{85+2*i}]")
def stamp_out(a, kern, wsreg, sw, vtmp):
    if not OPT.get("prof"): return
    a("s_waitcnt vmcnt(0)")
    stamp(a, 8)
    if OPT.get("dbg"):
        a(f"""
        s_load_dwordx2 s[4:5], s[0:1], 80
        s_waitcnt lgkmcnt(0)
        s_add_u32 s4, s4, {512*(1-kern)}
        s_addc_u32 s5, s5, 0
        s_mov_b32 s6, 256
        s_mov_b32 s7, 0x20000
        s_not_b32 s8, s84
        """)
        sel = [0, 8] if kern == 0 else [0, 2, 3, 5, 6, 8]
        base = 0 if kern == 0 else 4
        a(f"v_writelane_b32 v{vtmp}, s8, 0")
        for j, i in enumerate(sel): a(f"v_writelane_b32 v{vtmp}, s{84+2*i}, {j+1}")
        a(f"""
        v_mbcnt_lo_u32_b32 v{vtmp+1}, -1, 0
        v_mbcnt_hi_u32_b32 v{vtmp+1}, -1, v{vtmp+1}
        v_cmp_gt_u32 vcc, {len(sel)+1}, v{vtmp+1}
        v_lshlrev_b32 v{vtmp+1}, 2, v{vtmp+1}
        s_mov_b64 exec, vcc
        buffer_atomic_umax v{vtmp}, v{vtmp+1}, s[4:7], 0 offen offset:{4*base}
        """)
        return
    a(f"""
    s_lshl_b32 s4, s2, 4
    s_add_u32 s4, s4, s{sw}
    s_lshl_b32 s4, s4, 6
    s_add_u32 s4, s4, {PROF_OFF + kern*0x100000}
    s_add_u32 s4, s{wsreg}, s4
    s_addc_u32 s5, s{wsreg+1}, 0
    s_mov_b32 s6, 64
    s_mov_b32 s7, 0x20000
    s_waitcnt lgkmcnt(0)
    """)
    for i in range(9): a(f"v_writelane_b32 v{vtmp}, s{84+2*i}, {i}")
    a(f"""
    v_mbcnt_lo_u32_b32 v{vtmp+1}, -1, 0
    v_mbcnt_hi_u32_b32 v{vtmp+1}, -1, v{vtmp+1}
    v_lshlrev_b32 v{vtmp+1}, 2, v{vtmp+1}
    buffer_store_dword v{vtmp}, v{vtmp+1}, s[4:7], 0 offen
    """)

def vr(b, n): return f"v[{b}:{b+n-1}]"
def sr(b, n): return f"s[{b}:{b+n-1}]"

def srd(a, d, base, add=None, size=None, w3="0x20000", hi_or=None):
    if add is None:
        a(f"s_mov_b32 s{d}, s{base}\ns_mov_b32 s{d+1}, s{base+1}")
    else:
        a(f"s_add_u32 s{d}, s{base}, {add}\ns_addc_u32 s{d+1}, s{base+1}, 0")
    if hi_or: a(f"s_or_b32 s{d+1}, s{d+1}, {hi_or}")
    a(f"s_mov_b32 s{d+2}, {size}\ns_mov_b32 s{d+3}, {w3}")

def kd(name, vgpr, sgpr):
    return f"""
.amdhsa_kernel {name}
  .amdhsa_next_free_vgpr {vgpr}
  .amdhsa_next_free_sgpr {sgpr}
  .amdhsa_accum_offset {(vgpr+3)//4*4}
  .amdhsa_group_segment_fixed_size 0
  .amdhsa_kernarg_size 96
  .amdhsa_user_sgpr_count 2
  .amdhsa_user_sgpr_kernarg_segment_ptr 1
  .amdhsa_system_sgpr_workgroup_id_x 1
.end_amdhsa_kernel
"""

def rec_fields(a, vd, vbin, vtmp, sm40, sm10):
    a(f"""
    v_mul_u32_u24 v{vbin}, 52429, v{vd}
    v_lshrrev_b32 v{vbin}, 21, v{vbin}
    v_mad_i32_i24 v{vd}, v{vbin}, s{sm40}, v{vd}
    v_mul_u32_u24 v{vtmp}, 26, v{vd}
    v_lshrrev_b32 v{vtmp}, 8, v{vtmp}
    v_mad_i32_i24 v{vd}, v{vtmp}, s{sm10}, v{vd}
    v_lshl_or_b32 v{vd}, v{vtmp}, 30, v{vd}
    """)

K1_CNT = 0; K1_STG = 1024; K1_X = 65536; K1_LDS = K1_X + 20480
def gen_k1():
    a = Asm()
    sS, sD, sW1, sW2, sX, sR, sT = 24, 28, 32, 36, 40, 44, 48
    sw, st0, st1, st2, sng, sfb, stask = 52, 53, 54, 55, 56, 57, 58
    c4096, c8192, cm40, cm10, cnl2e, csign, cmag, ctso, cp0 = 59, 60, 61, 62, 63, 64, 65, 66, 67
    a("k1_kernel:")
    a(f"s_cmp_ge_u32 s2, {2*NCH}\ns_cbranch_scc1 K1_END")
    stamp(a, 0)
    a(f"""
    s_load_dwordx16 s[4:19], s[0:1], 0
    s_load_dwordx2 s[20:21], s[0:1], 64
    s_load_dwordx2 s[22:23], s[0:1], 88
    v_lshrrev_b32 v2, 6, v0
    v_lshlrev_b32 v1, 2, v0
    v_readfirstlane_b32 s{sw}, v2
    s_mov_b32 s{c4096}, 4096
    s_mov_b32 s{c8192}, 8192
    s_cmp_ge_u32 s2, {NCH}
    s_cbranch_scc1 K1_GEMM
    """)
    vD, vS, vB, vSL, vt = 2, 5, 8, 11, 16
    a(f"s_mul_i32 s{st1}, s2, {CS*4}\ns_waitcnt lgkmcnt(0)")
    srd(a, sD, 10, f"s{st1}", CS*4)
    srd(a, sS, 8, f"s{st1}", CS*4)
    for r, so in enumerate(("0", f"s{c4096}", f"s{c8192}")):
        a(f"buffer_load_dword v{vD+r}, v1, {sr(sD,4)}, {so} offen")
        a(f"buffer_load_dword v{vS+r}, v1, {sr(sS,4)}, {so} offen")
    a(f"""
    v_mov_b32 v{vt}, -1
    v_mov_b32 v{vt+1}, -1
    v_mov_b32 v{vt+2}, -1
    v_mov_b32 v{vt+3}, -1
    v_lshlrev_b32 v{vt+4}, 4, v0
    v_mov_b32 v{vt+5}, 0
    v_and_b32 v{vt+6}, 0x3fc, v1
    ds_write_b128 v{vt+4}, {vr(vt,4)} offset:{K1_STG}
    ds_write_b128 v{vt+4}, {vr(vt,4)} offset:{K1_STG+16384}
    ds_write_b32 v{vt+6}, v{vt+5} offset:{K1_CNT}
    s_lshl_b32 s{st0}, s2, 7
    s_add_u32 s{st0}, s{st0}, {REC_OFF}
    """)
    srd(a, sR, 22, f"s{st0}", NBIN*NCH*128)
    a(f"s_lshl_b32 s{st0}, s2, 9\ns_add_u32 s{st1}, s{st0}, {LUT_OFF}")
    srd(a, sT, 22, f"s{st1}", 512)
    a(f"""
    v_add_u32 v40, s{st0}, v1
    v_and_b32 v41, 0x7fff, v40
    v_cmp_ne_u32 vcc, 0x7c00, v41
    v_or_b32 v41, 3, v40
    s_nop 0
    v_addc_co_u32 v40, vcc, 0, v40, vcc
    v_cvt_f32_f16 v41, v41
    v_cvt_f32_f16 v40, v40
    v_exp_f32 v41, v41
    v_exp_f32 v40, v40
    v_add_f32 v41, 1.0, v41
    v_add_f32 v40, 1.0, v40
    v_rcp_f32 v41, v41
    v_rcp_f32 v40, v40
    s_nop 0
    v_cvt_pk_bf16_f32 v40, v40, v41
    buffer_store_dword v40, v1, {sr(sT,4)}, 0 offen {OPT['st_r']}
    """)
    if OPT.get("pf", "0") == "1":
        a(f"""
        s_getpc_b64 {sr(sW1,2)}
        K1_PC:
        s_add_u32 s{sW1}, s{sW1}, k2_kernel-K1_PC
        s_addc_u32 s{sW1+1}, s{sW1+1}, 0
        s_mov_b32 s{sW1+2}, K2_CODE_END-k2_kernel
        s_mov_b32 s{sW1+3}, 0x20000
        v_lshlrev_b32 v44, 5, v0
        buffer_load_dword v45, v44, {sr(sW1,4)}, 0 offen
        """)
    a(f"""
    s_mov_b32 s{cm40}, {-BN}
    s_mov_b32 s{cm10}, {-GN}
    v_mov_b32 v{vt+5}, 1
    v_cmp_gt_u32 vcc, {CS-2048}, v0
    s_mov_b64 s[100:101], vcc
    v_lshrrev_b32 v{vt+7}, 3, v0
    v_and_b32 v{vt+8}, 7, v0
    v_lshlrev_b32 v{vt+9}, 14, v{vt+7}
    v_lshl_add_u32 v{vt+9}, v{vt+8}, 4, v{vt+9}
    v_lshlrev_b32 v{vt+7}, 2, v{vt+7}
    v_cmp_eq_u32 s[82:83], 7, v{vt+8}
    s_mov_b32 s{st2}, {128*16384}
    s_waitcnt lgkmcnt(0)
    s_barrier
    """)
    stamp(a, 1)
    for r in range(3):
        a(f"s_waitcnt vmcnt({4-2*r + 1 + (OPT.get('pf', '0') == '1')})")
        if r == 0: stamp(a, 2)
        rec_fields(a, vD+r, vB+r, vt, cm40, cm10)
        a(f"v_lshlrev_b32 v{vt}, 2, v{vB+r}")
        if r == 2: a("s_mov_b64 exec, s[100:101]")
        a(f"ds_add_rtn_u32 v{vSL+r}, v{vt}, v{vt+5} offset:{K1_CNT}")
        if r == 2: a("s_mov_b64 exec, -1")
        a(f"""
        v_lshl_or_b32 v{vD+r}, v{vS+r}, 16, v{vD+r}
        v_add_u32 v{vS+r}, {1024*r}, v0
        v_lshl_or_b32 v{vD+r}, v{vS+r}, 4, v{vD+r}
        v_lshlrev_b32 v{vB+r}, 7, v{vB+r}
        """)
    for r in range(3):
        a(f"s_waitcnt lgkmcnt({2-r})" if r == 0 else f"s_waitcnt lgkmcnt({2})" if r == 1 else "s_waitcnt lgkmcnt(2)")
        if r == 2: a("s_mov_b64 exec, s[100:101]")
        a(f"""
        v_lshl_add_u32 v{vB+r}, v{vSL+r}, 2, v{vB+r}
        v_cmpx_gt_u32 vcc, {CAP}, v{vSL+r}
        ds_write_b32 v{vB+r}, v{vD+r} offset:{K1_STG}
        s_mov_b64 exec, -1
        """)
    a("s_waitcnt lgkmcnt(0)")
    stamp(a, 3)
    a("s_barrier")
    stamp(a, 4)
    a(f"""
    ds_read_b128 {vr(vt+12,4)}, v{vt+4} offset:{K1_STG}
    ds_read_b32 v{vt}, v{vt+7} offset:{K1_CNT}
    ds_read_b128 {vr(vt+16,4)}, v{vt+4} offset:{K1_STG+16384}
    ds_read_b32 v{vt+1}, v{vt+7} offset:{K1_CNT+512}
    v_mov_b32 v{vt+2}, -2
    """)
    for k in range(2):
        a(f"""
        s_waitcnt lgkmcnt({2-2*k})
        v_cmp_lt_u32 vcc, {CAP}, v{vt+k}
        s_and_b64 vcc, vcc, s[82:83]
        s_nop 1
        v_cndmask_b32 v{vt+15+4*k}, v{vt+15+4*k}, v{vt+2}, vcc
        buffer_store_dwordx4 {vr(vt+12+4*k,4)}, v{vt+9}, {sr(sR,4)}, {'0' if k == 0 else f's{st2}'} offen {OPT['st_r']}
        """)
    stamp(a, 5)
    if OPT.get("pe", "1") == "1":
        a("s_barrier")
        a(f"s_mul_i32 s{st0}, s2, {CS*32}")
        srd(a, sW2, 6, f"s{st0}", CS*32)
        a(f"v_lshlrev_b32 v46, 7, v0\nbuffer_load_dword v47, v46, {sr(sW2,4)}, 0 offen {OPT.get('pef', '')}")
    stamp(a, 6); stamp(a, 7)
    stamp_out(a, 0, 22, sw, 2)
    a("s_endpgm")
    vW, vX, vA, vt = 32, 96, 112, 2
    def W(m, ab, s): return vW + 32*m + 16*ab + 4*s
    a(f"""
    K1_GEMM:
    s_sub_u32 s{stask}, s2, {NCH}
    s_and_b32 s{sfb}, s{sw}, 3
    s_lshr_b32 s{sng}, s{sw}, 2
    v_and_b32 v{vt}, 63, v0
    v_lshrrev_b32 v{vt+1}, 4, v{vt}
    v_and_b32 v{vt+2}, 15, v0
    s_lshl_b32 s{st0}, s{sfb}, 2
    v_add_u32 v{vt+3}, s{st0}, v{vt+1}
    v_xor_b32 v{vt+3}, v{vt+3}, v{vt+2}
    v_lshlrev_b32 v{vt+3}, 4, v{vt+3}
    v_lshl_add_u32 v{vt+3}, v{vt+1}, 8, v{vt+3}
    v_lshlrev_b32 v{vt+4}, 2, v{vt+1}
    v_xor_b32 v{vt+4}, v{vt+4}, v{vt+2}
    v_lshlrev_b32 v{vt+4}, 4, v{vt+4}
    v_lshl_add_u32 v{vt+4}, v{vt+1}, 8, v{vt+4}
    s_mul_i32 s{st0}, s{stask}, 20480
    s_cmp_lt_u32 s{stask}, 125
    s_cselect_b32 s{st0}, s{st0}, 0
    s_cselect_b32 s{st2}, 20480, 0
    s_waitcnt lgkmcnt(0)
    """)
    a(f"""
    s_cmp_ge_u32 s{stask}, 126
    s_cbranch_scc1 K1_WC
    s_add_u32 s{sX}, s4, s{st0}
    s_addc_u32 s{sX+1}, s5, 0
    s_mov_b32 s{sX+2}, s{st2}
    s_mov_b32 s{sX+3}, 0x20000
    s_lshl_b32 s{st1}, s{sw}, 10
    s_add_u32 m0, s{st1}, {K1_X}
    s_cmp_eq_u32 s{stask}, 125
    s_cselect_b64 {sr(sW1,2)}, s[12:13], s[14:15]
    s_cselect_b64 {sr(sW2,2)}, s[18:19], s[20:21]
    """)
    if OPT.get("touch", "0") == "1":
        a(f"""
        s_bitcmp1_b32 s2, 3
        s_cselect_b64 {sr(sS,2)}, {sr(sW1,2)}, {sr(sW2,2)}
        s_bitcmp1_b32 s2, 4
        s_cselect_b32 s{sS+2}, 4, 0
        s_mov_b32 s{sS+3}, 0x20000
        buffer_load_dword v30, v1, {sr(sS,4)}, 0 offen
        """)
    a(f"""
    buffer_load_dwordx4 v{vt+3}, {sr(sX,4)}, s{st1} offen lds
    s_cmp_lt_u32 s{sw}, 4
    s_cbranch_scc0 K1_X1
    s_add_u32 m0, s{st1}, {K1_X+16384}
    s_add_u32 s{st1}, s{st1}, 16384
    buffer_load_dwordx4 v{vt+3}, {sr(sX,4)}, s{st1} offen lds
    K1_X1:
    s_mov_b32 s{sW1+2}, 32768
    s_mov_b32 s{sW1+3}, 0x20000
    s_mov_b32 s{sW2+2}, 32768
    s_mov_b32 s{sW2+3}, 0x20000
    s_lshr_b32 s{st1}, s2, 3
    s_add_u32 s{st1}, s{st1}, s{sw}
    s_and_b32 s{st1}, s{st1}, 15
    s_lshl_b32 s{st1}, s{st1}, 11
    s_mov_b32 m0, s{st1}
    s_lshl_b32 s{st0}, s{st0}, 1
    buffer_load_dwordx4 v{vt+4}, {sr(sW1,4)}, s{st1} offen lds
    buffer_load_dwordx4 v{vt+4}, {sr(sW1,4)}, s{st1} offen offset:1024 lds
    s_add_u32 m0, s{st1}, 32768
    s_add_u32 s{st0}, s{st0}, {T_OFF}
    buffer_load_dwordx4 v{vt+4}, {sr(sW2,4)}, s{st1} offen lds
    buffer_load_dwordx4 v{vt+4}, {sr(sW2,4)}, s{st1} offen offset:1024 lds
    """)
    srd(a, sT, 22, f"s{st0}", 40960)
    a(f"""
    v_bfe_u32 v{vt+5}, v0, 2, 2
    v_and_b32 v{vt+6}, 3, v0
    s_lshl_b32 s{st0}, s{sfb}, 2
    v_add_u32 v{vt+6}, s{st0}, v{vt+6}
    v_lshlrev_b32 v{vt+7}, 2, v{vt+5}
    v_xor_b32 v{vt+6}, v{vt+6}, v{vt+7}
    v_lshl_add_u32 v{vt+5}, v{vt+1}, 3, v{vt+5}
    v_lshlrev_b32 v{vt+5}, 8, v{vt+5}
    v_lshl_add_u32 v10, v{vt+6}, 4, v{vt+5}
    v_xor_b32 v11, v{vt+1}, v{vt+2}
    v_lshlrev_b32 v11, 4, v11
    v_lshl_add_u32 v11, v{vt+2}, 8, v11
    s_lshl_b32 s{st0}, s{sng}, 12
    s_add_u32 s{st0}, s{st0}, {K1_X}
    v_add_u32 v11, s{st0}, v11
    v_lshlrev_b32 v12, 9, v{vt+2}
    v_lshl_add_u32 v12, v{vt+1}, 4, v12
    s_lshl_b32 s{st0}, s{sng}, 13
    s_lshr_b32 s{st1}, s{sfb}, 1
    s_lshl_b32 s{st1}, s{st1}, 8
    s_add_u32 s{st0}, s{st0}, s{st1}
    s_and_b32 s{st1}, s{sfb}, 1
    s_lshl_b32 s{st1}, s{st1}, 6
    s_add_u32 s{ctso}, s{st0}, s{st1}
    s_mov_b32 s{cnl2e}, {NL2E:#x}
    s_mov_b32 s{csign}, 0x00800000
    s_mov_b32 s{cmag}, 0x7fffffff
    s_mov_b32 s{cp0}, 0x07060100
    s_mov_b32 s{cp0+1}, 0x07060302
    v_xor_b32 v13, 64, v11
    v_xor_b32 v14, 0x80, v11
    v_xor_b32 v15, 0xc0, v11
    """)
    stamp(a, 1)
    a("s_waitcnt vmcnt(0)")
    stamp(a, 2)
    a("s_barrier")
    stamp(a, 3)
    def xrd(off):
        for s in range(4): a(f"ds_read_b128 {vr(vX+4*s,4)}, v{[11,13,14,15][s]} offset:{off}")
    xrd(0)
    n = 4
    for s in range(4):
        for m in range(2):
            for ab in range(2):
                for u in range(2):
                    a(f"ds_read_b64_tr_b16 {vr(W(m,ab,s)+2*u,2)}, v10 offset:{m*32768+s*8192+u*1024+ab*8}")
        if s < 3: a("s_waitcnt lgkmcnt(6)")
    a(f"s_cmp_eq_u32 s{stask}, 125\ns_cbranch_scc1 K1_WT")
    def mm():
        for s in range(4):
            for m in range(2):
                for ab in range(2):
                    d = vr(vA+8*m+4*ab, 4)
                    a(f"v_mfma_f32_16x16x32_bf16 {d}, {vr(W(m,ab,s),4)}, {vr(vX+4*s,4)}, {'0' if s == 0 else d}")
    def pack(so):
        a("s_nop 7")
        for b in range(2):
            for ab in range(2):
                b0, b1 = vA+4*ab+b, vA+4*ab+2+b
                a(f"v_mul_f32 v{b0}, s{cnl2e}, v{b0}\nv_mul_f32 v{b1}, s{cnl2e}, v{b1}")
                for e_ in range(2):
                    h = vA+8+4*ab+2*e_+b
                    a(f"v_max_f32 v{16+e_}, abs(v{h}), s{csign}\nv_bfi_b32 v{h}, s{cmag}, v{16+e_}, v{h}")
                a(f"v_cvt_pk_bf16_f32 v{b0}, v{b0}, v{b1}")
                for e_ in range(2):
                    h = vA+8+4*ab+2*e_+b
                    a(f"v_add_u32 v{h}, 0x8000, v{h}")
                for e_ in range(2):
                    h = vA+8+4*ab+2*e_+b
                    a(f"v_sub_u32_sdwa v{h}, v{h}, v{b0} dst_sel:DWORD dst_unused:UNUSED_PAD src0_sel:DWORD src1_sel:WORD_{e_}")
                for e_ in range(2):
                    h = vA+8+4*ab+2*e_+b
                    a(f"v_perm_b32 v{20+4*b+2*ab+e_}, v{h}, v{b0}, s{cp0+e_}")
            a(f"buffer_store_dwordx4 {vr(20+4*b,4)}, v12, {sr(sT,4)}, s{so} offen offset:{128*b} {OPT['st_t']}")
    a("s_waitcnt lgkmcnt(0)")
    mm()
    stamp(a, 4)
    a(f"s_cmp_eq_u32 s{sng}, 0\ns_cbranch_scc0 K1_ONE")
    xrd(16384)
    pack(ctso)
    a(f"s_add_u32 s{ctso}, s{ctso}, 32768\ns_waitcnt lgkmcnt(0)")
    mm()
    a("K1_ONE:")
    pack(ctso)
    stamp(a, 5); stamp(a, 6); stamp(a, 7)
    stamp_out(a, 0, 22, sw, 2)
    a("s_endpgm")
    a("K1_WT:")
    srd(a, sT, 22, WT_OFF, 65536)
    a(f"""
    s_cmp_ge_u32 s{sw}, 8
    s_cbranch_scc1 K1_END
    v_lshlrev_b32 v{vt+1}, 4, v{vt}
    s_lshl_b32 s{st0}, s{sw}, 13
    s_add_u32 s{st1}, s{st0}, 4096
    s_waitcnt lgkmcnt(0)
    s_cmp_eq_u32 s{sng}, 0
    s_cbranch_scc0 K1_WU
    """)
    for m in range(2):
        for ab in range(2):
            for s in range(4):
                a(f"buffer_store_dwordx4 {vr(W(m,ab,s),4)}, v{vt+1}, {sr(sT,4)}, s{st1 if ab else st0} offen offset:{1024*s} {OPT['st_t']}")
        a("s_endpgm")
        if m == 0: a("K1_WU:")
    a("K1_WC:")
    srd(a, sT, 22, WT_OFF+65536, 4096)
    srd(a, sW1, 16, None, 4096)
    a(f"""
    s_cmp_eq_u32 s{stask}, 126
    s_cbranch_scc0 K1_END
    s_cmp_ge_u32 s{sw}, 4
    s_cbranch_scc1 K1_END
    v_lshrrev_b32 v{vt+2}, 5, v{vt}
    v_and_b32 v{vt+3}, 31, v0
    v_lshlrev_b32 v{vt+3}, 2, v{vt+3}
    v_lshl_add_u32 v{vt+3}, v{vt+2}, 11, v{vt+3}
    v_lshlrev_b32 v{vt+1}, 4, v{vt}
    s_lshr_b32 s{st1}, s{sw}, 1
    s_lshl_b32 s{st1}, s{st1}, 7
    s_and_b32 s{st0}, s{sw}, 1
    s_lshl_b32 s{st0}, s{st0}, 1
    s_add_u32 s{st1}, s{st1}, s{st0}
    s_lshl_b32 s{st0}, s{sw}, 10
    s_mov_b32 s{cnl2e}, {NL2E:#x}
    """)
    for j in range(8):
        a(f"buffer_load_ushort v{20+j}, v{vt+3}, {sr(sW1,4)}, s{st1} offen offset:{256*j}")
    a("s_waitcnt vmcnt(0)")
    for j in range(8):
        a(f"v_lshlrev_b32 v{20+j}, 16, v{20+j}\nv_mul_f32 v{20+j}, s{cnl2e}, v{20+j}")
    for j in range(4):
        a(f"v_cvt_pk_bf16_f32 v{28+j}, v{20+2*j}, v{21+2*j}")
    a(f"buffer_store_dwordx4 v[28:31], v{vt+1}, {sr(sT,4)}, s{st0} offen {OPT['st_t']}")
    a("K1_END:\ns_endpgm")
    return a.text(), kd("k1_kernel", 128, 102)

CAPG = 640
CNT = 0; START = 256; OHL = 512; L1 = 1024; L2 = L1 + 4*CAPG*4; APL = L2 + 4*CAPG*4
ROWP = 272
UL = APL + 48*ROWP; XL = UL + 48*ROWP; LUTL = XL + 12288; K2_LDS = LUTL + 65536

def gen_k2():
    a = Asm()
    sREC, sX, sWT, sT, sE, sO, sD, sS = 24, 28, 32, 36, 40, 44, 68, 72
    sw, sg, sfh, st0, st1, st2 = 48, 49, 50, 51, 52, 53
    scount, sslow, sround, sinit, sgb, srt, slut, srank = 54, 55, 56, 57, 58, 59, 82, 83
    cm32, c128, cnl2e, cfc, csrc, cm40, cm10, cfe = 60, 61, 62, 63, 64, 65, 66, 67
    sk = 16
    vH16, vA1, vA2, vEa, vOa, vO, vO2 = 1, 2, 3, 4, 5, 6, 7
    WC = 8; AP = 16; PA = 24; SC = 28; OH = 32; EA = 40; ADDR = 48; ACC = 64; SP = 96; G = 112; RAW = 176
    XR = 240; UR = 246; vM15 = 252; vH256 = 253
    raw = lambda p, b: RAW + 32*p + 16*b
    gb = lambda p, b: G + 32*p + 16*b
    vt = gb(1, 1); WT = ACC; Z = SP; EOFF = SP+15
    REC = raw(1, 0); CADDR = REC+8; RANK = REC+16; STV = REC+24
    NT = int(OPT.get("nt", "1"))
    rowoff = lambda r: 8*(r >> 2) + (r & 3)

    a("k2_kernel:")
    a(f"s_cmp_ge_u32 s2, {NBIN}\ns_cbranch_scc1 K2_END")
    stamp(a, 0)
    a(f"""
    s_load_dwordx8 s[4:11], s[0:1], 0
    s_load_dwordx2 s[12:13], s[0:1], 72
    s_load_dwordx2 s[14:15], s[0:1], 88
    v_lshrrev_b32 v{vt}, 6, v0
    v_lshrrev_b32 v{vt+1}, 2, v0
    v_readfirstlane_b32 s{sw}, v{vt}
    v_and_b32 v{vt+2}, 3, v0
    v_lshlrev_b32 v{vt+3}, 7, v{vt+1}
    v_lshl_add_u32 v{vt+3}, v{vt+2}, 4, v{vt+3}
    s_lshl_b32 s{st0}, s2, 14
    s_add_u32 s{st0}, s{st0}, {REC_OFF}
    v_mul_u32_u24 v{EOFF}, {CS*32}, v{vt+1}
    v_and_b32 v{vt}, 63, v0
    v_lshlrev_b32 v{vt+5}, 2, v{vt}
    v_mov_b32 v{Z}, 0
    ds_write_b32 v{vt+5}, v{Z} offset:{CNT}
    v_lshrrev_b32 v{vt+4}, 4, v{vt}
    s_and_b32 s{sg}, s{sw}, 3
    s_lshr_b32 s{sfh}, s{sw}, 2
    s_lshl_b32 s{st1}, s{sg}, 2
    v_add_u32 v{vA1}, s{st1}, v{vt+4}
    v_and_b32 v{vA2}, 15, v0
    v_xor_b32 v{vA1}, v{vA1}, v{vA2}
    v_lshlrev_b32 v{vA1}, 4, v{vA1}
    v_lshl_add_u32 v{vA1}, v{vt+4}, 8, v{vA1}
    v_lshlrev_b32 v{vA2}, 4, v{vt}
    s_lshr_b32 s{srt}, s2, 3
    s_add_u32 s{srt}, s{srt}, s{sw}
    s_and_b32 s{srt}, s{srt}, 7
    s_lshl_b32 s{slut}, s{srt}, 13
    s_lshl_b32 s{st1}, s{sw}, 10
    s_add_u32 m0, s{st1}, {XL}
    s_waitcnt lgkmcnt(0)
    """)
    srd(a, sREC, 14, f"s{st0}", 16384)
    for r in range(2):
        a(f"buffer_load_dwordx4 {vr(REC+4*r,4)}, v{vt+3}, {sr(sREC,4)}, 0 offen offset:{64*r}")
    a(f"s_mul_i32 s{st0}, s2, {BN*256}")
    srd(a, sX, 4, f"s{st0}", BN*256)
    srd(a, sWT, 14, WT_OFF, LUT_OFF - WT_OFF + 65536)
    a("s_barrier")
    stamp(a, 1)
    a(f"""
    buffer_load_dwordx4 v{vA1}, {sr(sX,4)}, s{st1} offen lds
    s_cmp_lt_u32 s{sw}, 4
    s_cbranch_scc0 K2_X1
    s_add_u32 m0, s{st1}, {XL+8192}
    s_add_u32 s{st2}, s{st1}, 8192
    buffer_load_dwordx4 v{vA1}, {sr(sX,4)}, s{st2} offen lds
    K2_X1:
    s_add_u32 s{st2}, s{slut}, 4096
    """)
    for k in range(8):
        a(f"buffer_load_dwordx4 {vr(WT+4*k,4)}, v{vA2}, {sr(sWT,4)}, s{st2 if k >= 4 else slut} offen offset:{1024*(k&3)}")
    a(f"""
    s_lshl_b32 s{st1}, s{sfh}, 11
    s_add_u32 s{st1}, s{st1}, 65536
    buffer_load_dwordx4 {vr(WC,4)}, v{vA2}, {sr(sWT,4)}, s{st1} offen
    buffer_load_dwordx4 {vr(WC+4,4)}, v{vA2}, {sr(sWT,4)}, s{st1} offen offset:1024
    """)
    def lut_dma(k):
        a(f"""
        s_add_u32 m0, s{slut}, {LUTL + 2048*k}
        s_add_u32 s{st2}, s{slut}, {LUT_OFF - WT_OFF + 2048*k}
        buffer_load_dwordx4 v{vA2}, {sr(sWT,4)}, s{st2} offen lds
        buffer_load_dwordx4 v{vA2}, {sr(sWT,4)}, s{st2} offen offset:1024 lds
        """)
    def ld_xr(): return [f"buffer_load_dword v{XR+r}, v{vO}, {sr(sX,4)}, 0 offen offset:{256*rowoff(r)}" for r in range(6)]
    srd(a, sO, 12, f"s{st0}", BN*256)
    a(f"s_lshl_b32 s{st0}, s{sfh}, 8\ns_add_u32 s{st0}, s{st0}, {T_OFF-128}")
    srd(a, sT, 14, f"s{st0}", 64, w3="0x800000", hi_or="0x40000")
    srd(a, sE, 6, None, E*32)
    a(f"""
    v_cmp_gt_u32 vcc, 128, v0
    s_and_saveexec_b64 s[76:77], vcc
    v_lshlrev_b32 v{vt+3}, 2, v0
    v_bfe_u32 v{vt+4}, v0, 2, 4
    v_and_b32 v{Z+4}, 3, v0
    v_lshrrev_b32 v{Z+5}, 6, v0
    v_lshl_add_u32 v{Z+4}, v{Z+5}, 2, v{Z+4}
    v_lshlrev_b32 v{Z+5}, 1, v{Z+4}
    v_mov_b32 v{Z+6}, 0x3f80
    v_mov_b32 v{Z+7}, 0x3f800000
    v_cmp_eq_u32 vcc, v{Z+5}, v{vt+4}
    v_add_u32 v{Z+5}, 1, v{Z+5}
    s_nop 0
    v_cndmask_b32 v{Z+8}, 0, v{Z+6}, vcc
    v_cmp_eq_u32 vcc, v{Z+5}, v{vt+4}
    v_cmp_eq_u32 s[78:79], 7, v{Z+4}
    s_or_b64 vcc, vcc, s[78:79]
    s_nop 1
    v_cndmask_b32 v{Z+9}, 0, v{Z+7}, vcc
    v_or_b32 v{Z+8}, v{Z+8}, v{Z+9}
    v_cmp_gt_u32 vcc, 15, v{vt+4}
    s_nop 1
    v_cndmask_b32 v{Z+8}, 0, v{Z+8}, vcc
    ds_write_b32 v{vt+3}, v{Z+8} offset:{OHL}
    s_mov_b64 exec, s[76:77]
    s_mov_b32 s{cm32}, {'0x7e0' if 'e' in OPT.get('nomem','') else '0xffffffe0'}
    s_mov_b32 s{c128}, 128
    s_mov_b32 s{cnl2e}, {NL2E:#x}
    s_mov_b32 s{cfc}, 0xfc
    s_mov_b32 s{cfe}, {OPT.get('cfe', '0xfffe')}
    s_mov_b32 s{csrc}, {'0x3e00' if 't' in OPT.get('nomem','') else '0x7ffe00'}
    s_mov_b32 s{sslow}, 0
    s_mov_b32 s{sround}, 0
    s_mov_b32 s{sinit}, 0
    s_mul_i32 s{st0}, s{sfh}, 3
    s_xor_b32 s{srank}, s{sg}, s{st0}
    v_lshrrev_b32 v{vt+3}, 5, v{vt}
    v_and_b32 v{vt+4}, 31, v0
    v_lshlrev_b32 v{vH16}, 4, v{vt+3}
    v_lshlrev_b32 v{vH256}, 8, v{vt+3}
    v_cmp_eq_u32 vcc, 0, v{vt+3}
    v_mov_b32 v{vM15}, 0xffff
    v_mov_b32 v{Z+4}, -1
    v_cndmask_b32 v{vM15}, v{vM15}, v{Z+4}, vcc
    v_and_b32 v{Z+4}, 3, v0
    v_mov_b32 v{Z+6}, 0x3f80
    """)
    for i in range(4):
        a(f"v_cmp_eq_u32 vcc, {i}, v{Z+4}\ns_nop 1\nv_cndmask_b32 v{PA+i}, 0, v{Z+6}, vcc")
    den = bf(127*2.0**-116); tiny = bf(2.0**-100)
    a(f"""
    v_cmp_gt_u32 s[78:79], 16, v{vt+4}
    v_mov_b32 v{Z+5}, {den:#x}
    v_mov_b32 v{Z+7}, {tiny<<16:#x}
    v_cndmask_b32 v{Z+5}, v{Z+6}, v{Z+5}, s[78:79]
    v_cndmask_b32 v{Z+7}, 0, v{Z+7}, s[78:79]
    v_and_b32 v{Z+4}, 15, v0
    v_lshlrev_b32 v{Z+8}, 3, v{vt+3}
    v_sub_u32 v{Z+4}, v{Z+4}, v{Z+8}
    v_lshlrev_b32 v{Z+6}, 16, v{Z+5}
    """)
    for d in range(4):
        a(f"""
        v_cmp_eq_u32 vcc, {2*d}, v{Z+4}
        v_cmp_eq_u32 s[78:79], {2*d+1}, v{Z+4}
        s_nop 0
        v_cndmask_b32 v{SC+d}, 0, v{Z+5}, vcc
        v_cndmask_b32 v{Z+8}, 0, v{Z+6}, s[78:79]
        v_or_b32 v{SC+d}, v{SC+d}, v{Z+8}
        """)
    a(f"""
    v_and_b32 v{SC+3}, v{SC+3}, v{vM15}
    v_not_b32 v{Z+8}, v{vM15}
    v_and_b32 v{Z+8}, v{Z+8}, v{Z+7}
    v_or_b32 v{SC+3}, v{SC+3}, v{Z+8}
    """)
    for r in range(16): a(f"v_mov_b32 v{ADDR+r}, 128")
    a(f"""
    v_mov_b32 v{vt+3}, 4
    s_waitcnt vmcnt(11)
    """)
    stamp(a, 2)
    a(f"""
    v_cmp_eq_u32 vcc, -2, v{REC+7}
    s_cbranch_vccz K2_NOOVF
    v_mov_b32 v{vt+4}, 0x10000
    v_mov_b32 v{vt}, 60
    ds_add_u32 v{vt}, v{vt+4} offset:{CNT}
    K2_NOOVF:
    """)
    def caddr(k): return f"v_and_b32_sdwa v{CADDR+k}, s{cfc}, v{REC+k} dst_sel:DWORD dst_unused:UNUSED_PAD src0_sel:DWORD src1_sel:BYTE_3"
    for k in range(8):
        a(f"""
        v_cmpx_gt_u32 vcc, -2, v{REC+k}
        s_cbranch_execz K2_CNT_DONE
        {caddr(k)}
        ds_add_rtn_u32 v{RANK+k}, v{CADDR+k}, v{vt+3} offset:{CNT}
        """)
    a(f"""
    K2_CNT_DONE:
    s_mov_b64 exec, -1
    """)
    lut_dma(0)
    a("s_waitcnt lgkmcnt(0)\ns_barrier")
    def scan(fast):
        x = SP
        a(f"""
        v_and_b32 v{vt}, 63, v0
        v_lshlrev_b32 v{vt+1}, 2, v{vt}
        ds_read_b32 v{x}, v{vt+1} offset:{CNT}
        v_lshrrev_b32 v{vt}, 4, v{vt}
        v_mul_u32_u24 v{vt}, {CAPG*4}, v{vt}
        v_and_b32 v{vt+2}, 31, v0
        v_lshlrev_b32 v{vt+2}, 2, v{vt+2}
        v_mov_b32 v{vt+4}, 0xfffffe
        """)
        if fast: lut_dma(1)
        a(f"""
        s_waitcnt lgkmcnt(0)
        v_sub_u32 v{vt}, v{vt}, v{x}
        """)
        for d in ("row_shr:1", "row_shr:2", "row_shr:4", "row_shr:8"):
            a(f"v_add_u32_dpp v{x}, v{x}, v{x} {d} row_mask:0xf bank_mask:0xf bound_ctrl:0\ns_nop 1")
        a(f"""
        v_add_u32 v{vt}, v{vt}, v{x}
        v_cmp_lt_u32 vcc, {(CAPG-32)*4}, v{x}
        ds_write_b32 v{vt+1}, v{vt} offset:{START}
        """)
        for g in range(4): a(f"v_readlane_b32 s{sk+g}, v{x}, {16*g+15}")
        if fast:
            a("s_cbranch_vccnz K2_SLOW")
            for k in range(4): a(f"ds_read_b32 v{STV+k}, v{CADDR+k} offset:{START}")
            lut_dma(2)
        for g in range(1, 4): a(f"s_or_b32 s{sk+g}, s{sk+g}, {g}")
        if fast and OPT.get("pair", "1") == "1":
            cur = [sk, sk+1, sk+2, sk+3]; spare = sk+4
            for (i, j) in ((0, 1), (2, 3), (0, 2), (1, 3), (1, 2)):
                a(f"s_max_u32 s{spare}, s{cur[i]}, s{cur[j]}\ns_min_u32 s{cur[j]}, s{cur[i]}, s{cur[j]}")
                cur[i], spare = spare, cur[i]
            sel = srank
        else:
            cur = [sk, sk+1, sk+2, sk+3]; sel = sg
        a(f"""
        s_bitcmp1_b32 s{sel}, 0
        s_cselect_b32 s{cur[0]}, s{cur[1]}, s{cur[0]}
        s_cselect_b32 s{cur[2]}, s{cur[3]}, s{cur[2]}
        s_bitcmp1_b32 s{sel}, 1
        s_cselect_b32 s{st0}, s{cur[2]}, s{cur[0]}
        s_and_b32 s{sg}, s{st0}, 3
        s_andn2_b32 s{st0}, s{st0}, 3
        s_mul_i32 s{sgb}, s{sg}, {CAPG*4}
        s_add_u32 s{scount}, s{st0}, 127
        s_lshr_b32 s{scount}, s{scount}, 7
        s_add_u32 s{st0}, s{st0}, s{sgb}
        v_add_u32 v{vt+2}, s{st0}, v{vt+2}
        v_lshlrev_b32 v{vt+3}, 3, v{vt+2}
        v_and_b32 v{vt+3}, 128, v{vt+3}
        ds_write2st64_b32 v{vt+2}, v{vt+3}, v{vt+4} offset0:{L1//256} offset1:{L2//256}
        """)
    def place(k):
        a(f"""
        v_add_u32 v{STV+k}, v{STV+k}, v{RANK+k}
        v_lshrrev_b32 v{vt}, 7, v{REC+k}
        v_lshlrev_b32 v{vt+1}, 3, v{STV+k}
        v_mad_u32_u16 v{vt+2}, v{REC+k}, 2, v{EOFF}
        v_and_b32 v{vt+1}, 128, v{vt+1}
        v_and_or_b32 v{vt}, v{vt}, s{csrc}, v{vt+1}
        ds_write2st64_b32 v{STV+k}, v{vt}, v{vt+2} offset0:{L1//256} offset1:{L2//256}
        """)
    scan(True)
    a("s_waitcnt lgkmcnt(1)")
    for k in range(8):
        a(f"v_cmpx_gt_u32 vcc, -2, v{REC+k}\ns_cbranch_execz K2_PLACED")
        if k == 4:
            for kk in range(4, 8):
                a(f"ds_read_b32 v{STV+kk}, v{CADDR+kk} offset:{START}")
            a("s_waitcnt lgkmcnt(0)")
        place(k)
    a(f"""
    K2_PLACED:
    s_mov_b64 exec, -1
    """)
    lut_dma(3)
    def lane_setup():
        a(f"""
        v_and_b32 v{vt}, 31, v0
        v_xor_b32 v{vA1}, 16, v{vH16}
        v_xor_b32 v{vA2}, 4, v{vt}
        v_lshlrev_b32 v{vA2}, 2, v{vA2}
        v_add_u32 v{vA1}, s{sgb}, v{vA1}
        v_add_u32 v{vA2}, s{sgb}, v{vA2}
        s_mul_i32 s{st0}, s{sg}, {GN*256}
        s_lshl_b32 s{st1}, s{sfh}, 7
        s_add_u32 s{st0}, s{st0}, s{st1}
        v_lshlrev_b32 v{vO}, 2, v{vt}
        v_lshl_add_u32 v{vO}, v{vH256}, 2, v{vO}
        v_add_u32 v{vO}, s{st0}, v{vO}
        v_lshl_or_b32 v{vO2}, v{vH16}, 27, v{vO}
        """)
    lane_setup()
    a("s_waitcnt vmcnt(18) lgkmcnt(0)\ns_barrier")
    stamp(a, 3); stamp(a, 1, "4")
    def rd_addr(off, j): return f"ds_read_b128 {vr(ADDR+4*j,4)}, v{vA1} offset:{L1+off+32*j}"
    def rd_l2(reg, off): return f"ds_read_b32 v{reg}, v{vA2} offset:{L2+off}"
    def ld_raw(p, b, r):
        pre = [f"v_and_b32 v{ADDR+r}, 0x7fff80, v{ADDR+r}"] if OPT.get("safe") else []
        if OPT.get("noload"): return ["s_nop 0"]
        return pre + [f"buffer_load_dword v{raw(p,b)+r}, v{ADDR+r}, {sr(sT,4)}, 0 offen" + (" offset:128" if b else "")]
    def ld_blk(p, b): return sum((ld_raw(p, b, r) for r in range(16)), [])
    def ld_ea(p): return [f"v_and_or_b32 v{vEa}, v{vEa}, s{cm32}, v{vH16}", f"buffer_load_dwordx4 {vr(EA+4*p,4)}, v{vEa}, {sr(sE,4)}, 0 offen"]
    def oh_idx(p):
        return [f"v_and_b32 v{vOa}, 30, v{vOa}",
                f"v_lshl_add_u32 v{vOa}, v{vOa}, 3, v{vH256}",
                f"ds_read_b128 {vr(OH+4*p,4)}, v{vOa} offset:{OHL}"]
    big = "v_mfma_f32_32x32x16_bf16" if not OPT.get("nobig") else "; "
    de = OPT.get("drop", "")
    def mE(p, b): return "; " if "E" in de else f"{big} {vr(gb(p,b),16)}, {vr(EA+4*p,4)}, {vr(WC+4*b,4)}, 0"
    def mA(p, b): return "; " if "A" in de else f"{big} {vr(gb(p,b),16)}, {vr(OH+4*p,4)}, {vr(AP+4*b,4)}, {vr(gb(p,b),16)}"
    def mS(p): return "; " if "S" in de else f"{big} {vr(SP,16)}, {vr(OH+4*p,4)}, {vr(SC,4)}, 0"
    def mG(p, b, j): return "; " if ("G" in de or ("g" in de and j & 1)) else f"{big} {vr(ACC+16*b,16)}, {vr(SP+4*j,4)}, {vr(gb(p,b)+4*j,4)}, {vr(ACC+16*b,16)}"
    def mP(p, b):
        o = []
        for u in range(2):
            for j in range(4):
                g = vr(gb(p,b)+4*j, 4)
                o.append(f"v_mfma_f32_4x4x4_16b_bf16 {g}, {vr(PA+2*u,2)}, {vr(raw(p,b)+4*j+2*u,2)}, {g}")
        return o
    sd = "dst_sel:DWORD dst_unused:UNUSED_PAD src0_sel:DWORD"
    def idx_pair(p, b, i):
        g0, g1 = gb(p,b)+2*i, gb(p,b)+2*i+1
        if i < NT:
            return [f"v_exp_f32 v{g0}, v{g0}", f"v_exp_f32 v{g1}, v{g1}", f"v_add_f32 v{g0}, 1.0, v{g0}",
                    f"v_add_f32 v{g1}, 1.0, v{g1}", f"v_rcp_f32 v{g0}, v{g0}", f"v_rcp_f32 v{g1}, v{g1}"], []
        return [f"v_cvt_pkrtz_f16_f32 v{g0}, v{g0}, v{g1}",
                f"v_and_b32_sdwa v{g1}, s{cfe}, v{g0} {sd} src1_sel:WORD_1",
                f"v_and_b32_sdwa v{g0}, s{cfe}, v{g0} {sd} src1_sel:WORD_0"], \
               [f"ds_read_u16_d16_hi v{g1}, v{g1} offset:{LUTL}", f"ds_read_u16_d16_hi v{g0}, v{g0} offset:{LUTL}"]
    def fin_pair(p, b, i):
        g0, r0 = gb(p,b)+2*i, raw(p,b)+2*i
        return [f"v_mul_f32 v{r0}, v{g0}, v{r0}", f"v_mul_f32 v{r0+1}, v{g0+1}, v{r0+1}",
                f"v_cvt_pk_bf16_f32 v{g0}, v{g0}, v{r0}", f"v_cvt_pk_bf16_f32 v{g0+1}, v{g0+1}, v{r0+1}"]
    def zipl(x, y):
        o = []
        for k in range(max(len(x), len(y))):
            if k < len(x): o.append(x[k])
            if k < len(y): o.append(y[k])
        return o
    uid = [0]
    def W(kind):
        uid[0] += 1
        return f"@W{kind} {uid[0]}"
    def slot(p, b, kind, acc=True):
        q = 1-p
        nxt = (p, 1) if b == 0 else (q, 0)
        do_idx = b == 0 or kind != "L"
        bigs = []
        if kind != "L": bigs += [[W("v"), mE(q, b)] + (ld_ea(q) if (b == 1 and kind == "F") else []), [mA(q, b)]]
        if acc: bigs += [[mG(q if b == 0 else p, 1-b, j)] for j in range(4)]
        if b == 0: bigs += [[mS(p)]]
        smalls = mP(q, b) if kind != "L" else []
        out = []
        nb = 0
        for i in range(8):
            iv, il = idx_pair(*nxt, i) if do_idx else ([], [])
            fv = fin_pair(p, b, i)
            seq = zipl(iv, fv) if i >= NT or not do_idx else [iv[0], fv[0], iv[1], fv[1], iv[2], fv[2], iv[3], fv[3], iv[4], iv[5]]
            seq += il
            if kind == "F":
                seq += ld_raw(p, b, 2*i) + ld_raw(p, b, 2*i+1)
                if b == 1 and i & 1: seq.append(rd_addr((3+p)*128, i >> 1))
                if b == 0 and i == 1: seq.append(rd_l2(vEa, (3+p)*128))
                if b == 0 and i == 5: seq.append(rd_l2(vOa, (2+p)*128))
                if b == 1 and i == 2: seq += oh_idx(p)
            pre = [W("l")]
            if i < 6:
                take = 2 if (len(bigs) - nb) > (6 - i) else 1
                ins = []
                if nb < len(bigs): pre += bigs[nb]; nb += 1
                if take == 2 and nb < len(bigs):
                    seq = seq[:6] + bigs[nb] + seq[6:]; nb += 1
            if smalls and i >= 5:
                k0, k1 = {5: (0, 2), 6: (2, 6), 7: (6, 8)}[i]
                sm = smalls[k0:k1]
                if i == 5: seq = seq[:4] + [W("v")] + zipl(sm, seq[4:])
                elif i == 6: seq = zipl(sm, seq)
                else: seq = zipl(sm, seq)
            out += pre + seq
        assert nb == len(bigs)
        return out
    def body(p, kind):
        q = 1-p; n = f"{kind}{p}"
        o0 = [f"K2_BODY{n}:"] + slot(p, 0, kind)
        o1 = [f"K2_MID{n}:"] + (ld_xr() if kind == "L" else []) + slot(p, 1, kind)
        if kind == "F":
            if p == 1: o1 += [f"v_add_u32 v{vA1}, 256, v{vA1}", f"v_add_u32 v{vA2}, 256, v{vA2}"]
            o1 += [f"s_sub_u32 s{scount}, s{scount}, 1", f"s_cmp_eq_u32 s{scount}, 2", f"s_cbranch_scc1 K2_BODYP{q}"]
        return o0, o1
    def entry(kind):
        more = kind != "L"
        o = [rd_l2(vOa, 0)]
        if more: o += [rd_l2(vEa, 128)] + [rd_addr(128, j) for j in range(4)]
        o += [W("l")] + oh_idx(0) + [W("v"), W("l"), "@STAMP", mE(0, 0), mA(0, 0), mE(0, 1), mA(0, 1)]
        if more: o += [rd_l2(vOa, 128)] + ld_ea(1) + [rd_l2(vEa, 256)] + ld_blk(1, 0)
        else: o += ["s_nop 7"]
        o += [W("v")] + mP(0, 0)
        if more: o += [W("l")] + oh_idx(1)
        if kind == "F": o += ld_ea(0)
        o += ["s_nop 1"]
        for i in range(8):
            v_, l_ = idx_pair(0, 0, i)
            o += [W("l")] + ([v_[0], v_[1], "s_nop 0"] + v_[2:] if i < NT else v_) + l_
            if more:
                o += ld_raw(1, 1, 2*i) + ld_raw(1, 1, 2*i+1)
                if i & 1: o.append(rd_addr(256, i >> 1))
            if i == 3: o += [W("v")] + mP(0, 1)
        return o + slot(0, 0, kind, acc=False) + [f"s_branch K2_MID{kind}0"]
    def drain(p): return ["s_nop 1"] + [mG(p, 1, j) for j in range(4)]
    fill0 = [rd_l2(vEa, 0)] + [rd_addr(0, j) for j in range(4)] + ["s_waitcnt lgkmcnt(4)"] + ld_ea(0) + ["s_waitcnt lgkmcnt(0)"] + ld_blk(0, 0) + ld_blk(0, 1)
    B = {(p, k): body(p, k) for p in range(2) for k in "FPL"}
    EN = {k: entry(k) for k in "FPL"}
    def trace(cnt):
        kinds = ["F"]*(cnt-2) + ["P", "L"][-min(cnt, 2):]
        tr = fill0 + EN[kinds[0]] + B[(0, kinds[0])][1]
        for t in range(1, cnt): tr += B[(t & 1, kinds[t])][0] + B[(t & 1, kinds[t])][1]
        return tr + drain((cnt-1) & 1)
    nost = lambda l: [x for x in l if x != "@STAMP"]
    need = asmsim.solve_waits([nost(trace(c)) for c in range(1, 9)])
    for c in range(1, 9): asmsim.check_hazards(asmsim.apply_waits(nost(trace(c)), need), f"count {c}")
    def emit(l):
        for x in asmsim.apply_waits(l, need):
            if x == "@STAMP":
                stamp(a, 5); stamp(a, 5, "3"); stamp(a, 7, "4")
                if OPT.get("prof") == "3": a(f"s_memtime s[86:87]\ns_mov_b32 s90, s{scount}\ns_getreg_b32 s92, hwreg(HW_REG_HW_ID)")
            else: a(x)
    def fill(n):
        a(f"s_cmp_eq_u32 s{scount}, 0\ns_cbranch_scc0 K2_FILL{n}\ns_waitcnt vmcnt(0)\ns_branch K2_FILLED{n}\nK2_FILL{n}:")
        a.ext(fill0)
        a(f"K2_FILLED{n}:")
    XF = G
    accs = [[raw(1,0)+8*nb, raw(1,0)+8*nb+4] for nb in range(3)]
    assert XL % 256 == 0
    def gemm(n, w_wt, w_all):
        a(f"""
        v_and_b32 v{vt}, 15, v0
        v_bfe_u32 v{vt+1}, v0, 4, 2
        v_xor_b32 v{vt+2}, v{vt}, v{vt+1}
        v_lshlrev_b32 v{vt+2}, 4, v{vt+2}
        v_lshl_add_u32 v{vt+2}, v{vt}, 8, v{vt+2}
        """)
        for s in range(4):
            if s: a(f"v_xor_b32 v{vt+3}, {64*s}, v{vt+2}")
            for nb in range(3):
                a(f"ds_read_b128 {vr(XF+16*nb+4*s,4)}, v{vt+3 if s else vt+2} offset:{XL+4096*nb}")
        a(f"v_mul_u32_u24 v{vt}, {ROWP}, v{vt}\ns_waitcnt vmcnt({w_wt})")
        stamp(a, 3, "4")
        for s in range(4):
            a(f"s_waitcnt lgkmcnt({9-3*s})")
            for nb in range(3):
                for ab in range(2):
                    d = vr(accs[nb][ab], 4)
                    a(f"v_mfma_f32_16x16x32_bf16 {d}, {vr(WT+16*ab+4*s,4)}, {vr(XF+16*nb+4*s,4)}, {'0' if s == 0 else d}")
        a(f"""
        s_cmp_lt_u32 s{srt}, 4
        s_cbranch_scc0 K2_GU{n}
        s_lshr_b32 s{st0}, s{srt}, 1
        s_lshl_b32 s{st0}, s{st0}, 7
        s_and_b32 s{st1}, s{srt}, 1
        s_lshl_b32 s{st1}, s{st1}, 5
        s_add_u32 s{st0}, s{st0}, s{st1}
        v_lshl_add_u32 v{vt}, v{vt+1}, 3, v{vt}
        v_add_u32 v{vt}, s{st0}, v{vt}
        """)
        for nb in range(3):
            al, be = accs[nb]
            for i in range(4): a(f"v_mul_f32 v{al+i}, s{cnl2e}, v{al+i}\nv_mul_f32 v{be+i}, s{cnl2e}, v{be+i}")
            a(f"""
            v_cvt_pk_bf16_f32 v{XF+4*nb}, v{al}, v{al+2}
            v_cvt_pk_bf16_f32 v{XF+4*nb+1}, v{be}, v{be+2}
            v_cvt_pk_bf16_f32 v{XF+4*nb+2}, v{al+1}, v{al+3}
            v_cvt_pk_bf16_f32 v{XF+4*nb+3}, v{be+1}, v{be+3}
            ds_write_b64 v{vt}, {vr(XF+4*nb,2)} offset:{APL+16*ROWP*nb}
            ds_write_b64 v{vt}, {vr(XF+4*nb+2,2)} offset:{APL+16*ROWP*nb+64}
            """)
        a(f"""
        s_branch K2_GD{n}
        K2_GU{n}:
        s_and_b32 s{st0}, s{srt}, 3
        s_lshl_b32 s{st0}, s{st0}, 6
        v_lshl_add_u32 v{vt}, v{vt+1}, 4, v{vt}
        v_add_u32 v{vt}, s{st0}, v{vt}
        s_nop 1
        """)
        for nb in range(3):
            al, be = accs[nb]
            a(f"""
            v_cvt_pk_bf16_f32 v{XF+4*nb}, v{al}, v{al+1}
            v_cvt_pk_bf16_f32 v{XF+4*nb+1}, v{al+2}, v{al+3}
            v_cvt_pk_bf16_f32 v{XF+4*nb+2}, v{be}, v{be+1}
            v_cvt_pk_bf16_f32 v{XF+4*nb+3}, v{be+2}, v{be+3}
            ds_write_b128 v{vt}, {vr(XF+4*nb,4)} offset:{UL+16*ROWP*nb}
            """)
        a(f"""
        K2_GD{n}:
        v_bfe_u32 v{vt}, v0, 2, 2
        v_lshrrev_b32 v{vt+1}, 1, v{vH16}
        v_add_u32 v{vt}, v{vt}, v{vt+1}
        v_mul_u32_u24 v{vt}, {ROWP}, v{vt}
        v_bfe_u32 v{vt+2}, v0, 4, 1
        v_lshl_add_u32 v{vt}, v{vt+2}, 5, v{vt}
        v_and_b32 v{vt+2}, 3, v0
        v_lshl_add_u32 v{vt}, v{vt+2}, 3, v{vt}
        s_mul_i32 s{st0}, s{sg}, {GN*ROWP}
        s_lshl_b32 s{st1}, s{sfh}, 7
        s_add_u32 s{st0}, s{st0}, s{st1}
        v_add_u32 v{vt}, s{st0}, v{vt}
        v_mul_u32_u24 v{vt+1}, {ROWP//2}, v{vt+1}
        v_and_b32 v{vt+2}, 31, v0
        v_lshl_add_u32 v{vt+1}, v{vt+2}, 2, v{vt+1}
        v_add_u32 v{vt+1}, s{st0}, v{vt+1}
        s_mov_b32 s{sinit}, 1
        """)
        for r in range(32): a(f"v_mov_b32 v{ACC+r}, 0")
        stamp(a, 4, "4")
        a(f"s_waitcnt vmcnt({w_all}) lgkmcnt(0)")
        stamp(a, 5, "4")
        a("s_barrier")
        stamp(a, 6, "4")
        a(f"""
        ds_read_b64_tr_b16 {vr(AP,2)}, v{vt} offset:{APL}
        ds_read_b64_tr_b16 {vr(AP+2,2)}, v{vt} offset:{APL+4*ROWP}
        ds_read_b64_tr_b16 {vr(AP+4,2)}, v{vt} offset:{APL+64}
        ds_read_b64_tr_b16 {vr(AP+6,2)}, v{vt} offset:{APL+4*ROWP+64}
        """)
        for r in range(6): a(f"ds_read_b32 v{UR+r}, v{vt+1} offset:{UL+ROWP*rowoff(r)}")
        a(f"""
        s_waitcnt lgkmcnt(6)
        v_and_b32 v{AP+3}, v{AP+3}, v{vM15}
        v_and_b32 v{AP+7}, v{AP+7}, v{vM15}
        """)
    a(f"s_cmp_lg_u32 s{sfh}, 0\ns_cbranch_scc1 K2_LATE\nK2_EARLY:")
    fill("A")
    stamp(a, 4); stamp(a, 2, "4")
    a(f"s_cmp_lg_u32 s{sinit}, 0\ns_cbranch_scc1 K2_GO")
    gemm("A", 43, 33)
    a("s_branch K2_GO\nK2_LATE:")
    stamp(a, 2, "4")
    gemm("B", 10, 0)
    fill("B")
    stamp(a, 4)
    a(f"""
    K2_GO:
    s_cmp_eq_u32 s{scount}, 0
    s_cbranch_scc1 K2_EMPTY
    s_cmp_gt_u32 s{scount}, 2
    s_cbranch_scc1 K2_ENTF
    s_cmp_eq_u32 s{scount}, 2
    s_cbranch_scc1 K2_ENTP
    """)
    emit(EN["L"]); a("K2_ENTP:"); emit(EN["P"]); a("K2_ENTF:"); emit(EN["F"])
    a(".p2align 6")
    for p in range(2): emit(B[(p, "F")][0] + B[(p, "F")][1])
    a("s_branch K2_BODYF0")
    a("K2_EMPTY:"); a.ext(ld_xr()); a("s_branch K2_DONE")
    for p in range(2):
        emit(B[(p, "P")][0] + B[(p, "P")][1] + B[(1-p, "L")][0] + B[(1-p, "L")][1] + drain(1-p))
        if p == 0: a("s_branch K2_DONE")
    a(f"""
    K2_DONE:
    s_cmp_lg_u32 s{sslow}, 0
    s_cbranch_scc1 K2_ROUND
    K2_EPI:
    s_waitcnt vmcnt(0) lgkmcnt(0)
    """)
    stamp(a, 6); stamp(a, 6, "3")
    if OPT.get("prof") == "3": a("s_memtime s[88:89]")
    T0 = G
    for b in range(2):
        for r in range(6):
            a(f"v_add_f32 v{ACC+16*b+r}, 0x358637bd, v{ACC+16*b+r}")
        for r in range(6):
            a(f"v_rcp_f32 v{ACC+16*b+r}, v{ACC+16*b+r}")
        for r in range(6):
            u, x = T0+12*b+r, T0+12*b+6+r
            if b == 0: a(f"v_lshlrev_b32 v{u}, 16, v{UR+r}\nv_lshlrev_b32 v{x}, 16, v{XR+r}")
            else: a(f"v_and_b32 v{u}, 0xffff0000, v{UR+r}\nv_and_b32 v{x}, 0xffff0000, v{XR+r}")
        for r in range(6):
            u, x = T0+12*b+r, T0+12*b+6+r
            a(f"v_fmac_f32 v{u}, v{ACC+16*b+8+r}, v{ACC+16*b+r}\nv_max_f32 v{u}, 0, v{u}\nv_add_f32 v{u}, v{u}, v{x}")
    for r in range(6):
        a(f"v_cvt_pk_bf16_f32 v{SP+r}, v{T0+r}, v{T0+12+r}")
        a(f"buffer_store_dword v{SP+r}, v{vO if r < 4 else vO2}, {sr(sO,4)}, 0 offen offset:{256*rowoff(r)}")
    stamp(a, 7)
    stamp_out(a, 1, 14, sw, 2)
    a("K2_END:\ns_endpgm")

    a("K2_SLOW:")
    srd(a, sS, 8, None, E*4)
    srd(a, sD, 10, None, E*4)
    a(f"""
    s_mov_b32 s{sslow}, 1
    s_mov_b32 s{cm40}, {-BN}
    s_mov_b32 s{cm10}, {-GN}
    """)
    for k in range(4): lut_dma(k)
    a(f"""
    K2_ROUND:
    s_cmp_ge_u32 s{sround}, {E//512}
    s_cbranch_scc1 K2_EPI
    s_lshl_b32 s{st0}, s{sround}, 9
    s_add_u32 s{sround}, s{sround}, 1
    v_add_u32 v{EOFF}, s{st0}, v0
    v_lshlrev_b32 v{vt}, 2, v{EOFF}
    buffer_load_dword v{REC}, v{vt}, {sr(sD,4)}, 0 offen
    buffer_load_dword v{REC+1}, v{vt}, {sr(sS,4)}, 0 offen
    v_lshlrev_b32 v{EOFF}, 5, v{EOFF}
    v_and_b32 v{vt}, 63, v0
    v_lshlrev_b32 v{vt}, 2, v{vt}
    v_mov_b32 v{vt+1}, 0
    s_waitcnt lgkmcnt(0)
    s_barrier
    ds_write_b32 v{vt}, v{vt+1} offset:{CNT}
    v_mov_b32 v{vt+3}, 4
    s_waitcnt vmcnt(0) lgkmcnt(0)
    s_barrier
    """)
    rec_fields(a, REC, REC+2, vt, cm40, cm10)
    a(f"""
    v_cmp_eq_u32 vcc, s2, v{REC+2}
    v_lshl_or_b32 v{REC}, v{REC+1}, 16, v{REC}
    {caddr(0)}
    s_mov_b64 s[78:79], vcc
    s_mov_b64 exec, vcc
    ds_add_rtn_u32 v{RANK}, v{CADDR}, v{vt+3} offset:{CNT}
    s_mov_b64 exec, -1
    s_waitcnt lgkmcnt(0)
    s_barrier
    """)
    scan(False)
    a(f"""
    s_mov_b64 exec, s[78:79]
    ds_read_b32 v{STV}, v{CADDR} offset:{START}
    s_waitcnt lgkmcnt(0)
    """)
    place(0)
    a(f"""
    s_mov_b64 exec, -1
    """)
    lane_setup()
    a(f"""
    s_waitcnt lgkmcnt(0)
    s_barrier
    s_branch K2_EARLY
    K2_CODE_END:
    """)
    return a.text(), kd("k2_kernel", 254, 102)

KE_PROF = f"""
    s_memrealtime s[8:9]
    s_load_dwordx2 s[4:5], s[0:1], 88
    s_waitcnt lgkmcnt(0)
    s_add_u32 s4, s4, {PROF_OFF + 0x200000}
    s_addc_u32 s5, s5, 0
    s_mov_b32 s6, 4
    s_mov_b32 s7, 0x20000
    v_mov_b32 v1, s8
    v_lshlrev_b32 v0, 2, v0
    buffer_store_dword v1, v0, s[4:7], 0 offen
"""
def main():
    k1, d1 = gen_k1(); k2, d2 = gen_k2()
    ref = open("standalone__edge_featured_mpnn_gatedgcn__graph.s.ref").read().split("\n")
    out = "\n".join(ref[:13]) + "\n"
    for ch in OPT.get("list", "12"):
        if ch == "1": out += f"; @launch kernel=k1_kernel grid=({2*NCH},1,1) block=(1024,1,1) lds={K1_LDS}\n"
        if ch == "2": out += f"; @launch kernel=k2_kernel grid=({NBIN},1,1) block=(512,1,1) lds={K2_LDS}\n"
        if ch == "e": out += "; @launch kernel=ke_kernel grid=(1,1,1) block=(64,1,1) lds=0\n"
    out += '.amdgcn_target "amdgcn-amd-amdhsa--gfx950"\n.text\n'
    for n, k in (("k1_kernel", k1), ("k2_kernel", k2)):
        out += f".globl {n}\n.p2align 8\n.type {n},@function\n" + k
    if "e" in OPT.get("list", ""): out += ".globl ke_kernel\n.p2align 8\n.type ke_kernel,@function\nke_kernel:\n" + (KE_PROF if OPT.get("prof") else "") + "    s_endpgm\n"
    out += '.section .rodata,"a"\n.p2align 6\n' + d1.lstrip("\n") + '.p2align 6\n' + d2.lstrip("\n")
    if "e" in OPT.get("list", ""): out += '.p2align 6\n' + kd("ke_kernel", 8, 16).lstrip("\n")
    open(sys.argv[1], "w").write(out)

if __name__ == "__main__":
    main()
```

```python
import struct, sys
import asmsim

N = 10000; E = 320000
NCH = 128; CS = 2500
NBIN = 250; BN = 40; GN = 10
CAP = 32
T_OFF = 0x100000
REC_OFF = 0x700000
WT_OFF = 0xB00000
LUT_OFF = 0xB20000
PROF_OFF = 0xF000000
NL2E = struct.unpack("<I", struct.pack("<f", -1.4426950408889634))[0]

def bf(x): return struct.unpack("<I", struct.pack("<f", x))[0] >> 16

OPT = dict(st_r="sc1", st_t="sc1")
for a in sys.argv[2:]:
    k, v = a.split("=", 1); OPT[k] = v

class Asm:
    def __init__(self): self.l = []
    def __call__(self, s):
        for x in s.strip("\n").split("\n"):
            x = x.strip()
            if not x: continue
            if x.startswith(";"): x = "s_nop 0"
            self.l.append(x if x.endswith(":") else "    " + x)
    def ext(self, lst):
        for x in lst: self(x)
    def text(self): return "\n".join(self.l) + "\n"

def stamp(a, i, lvl="1"):
    if OPT.get("prof") and (i in (0, 8) or OPT["prof"] == lvl): a(f"s_memrealtime s[{84+2*i}:{85+2*i}]")
def stamp_out(a, kern, wsreg, sw, vtmp):
    if not OPT.get("prof"): return
    a("s_waitcnt vmcnt(0)")
    stamp(a, 8)
    a(f"""
    s_lshl_b32 s4, s2, 4
    s_add_u32 s4, s4, s{sw}
    s_lshl_b32 s4, s4, 6
    s_add_u32 s4, s4, {PROF_OFF + kern*0x100000}
    s_add_u32 s4, s{wsreg}, s4
    s_addc_u32 s5, s{wsreg+1}, 0
    s_mov_b32 s6, 64
    s_mov_b32 s7, 0x20000
    s_waitcnt lgkmcnt(0)
    """)
    for i in range(9): a(f"v_writelane_b32 v{vtmp}, s{84+2*i}, {i}")
    a(f"""
    v_mbcnt_lo_u32_b32 v{vtmp+1}, -1, 0
    v_mbcnt_hi_u32_b32 v{vtmp+1}, -1, v{vtmp+1}
    v_lshlrev_b32 v{vtmp+1}, 2, v{vtmp+1}
    buffer_store_dword v{vtmp}, v{vtmp+1}, s[4:7], 0 offen
    """)

def vr(b, n): return f"v[{b}:{b+n-1}]"
def sr(b, n): return f"s[{b}:{b+n-1}]"

def srd(a, d, base, add=None, size=None, w3="0x20000", hi_or=None):
    if add is None:
        a(f"s_mov_b32 s{d}, s{base}\ns_mov_b32 s{d+1}, s{base+1}")
    else:
        a(f"s_add_u32 s{d}, s{base}, {add}\ns_addc_u32 s{d+1}, s{base+1}, 0")
    if hi_or: a(f"s_or_b32 s{d+1}, s{d+1}, {hi_or}")
    a(f"s_mov_b32 s{d+2}, {size}\ns_mov_b32 s{d+3}, {w3}")

def kd(name, vgpr, sgpr):
    return f"""
.amdhsa_kernel {name}
  .amdhsa_next_free_vgpr {vgpr}
  .amdhsa_next_free_sgpr {sgpr}
  .amdhsa_accum_offset {(vgpr+3)//4*4}
  .amdhsa_group_segment_fixed_size 0
  .amdhsa_kernarg_size 96
  .amdhsa_user_sgpr_count 2
  .amdhsa_user_sgpr_kernarg_segment_ptr 1
  .amdhsa_system_sgpr_workgroup_id_x 1
.end_amdhsa_kernel
"""

def rec_fields(a, vd, vbin, vtmp, sm40, sm10):
    a(f"""
    v_mul_u32_u24 v{vbin}, 52429, v{vd}
    v_lshrrev_b32 v{vbin}, 21, v{vbin}
    v_mad_i32_i24 v{vd}, v{vbin}, s{sm40}, v{vd}
    v_mul_u32_u24 v{vtmp}, 26, v{vd}
    v_lshrrev_b32 v{vtmp}, 8, v{vtmp}
    v_mad_i32_i24 v{vd}, v{vtmp}, s{sm10}, v{vd}
    v_lshl_or_b32 v{vd}, v{vtmp}, 30, v{vd}
    """)

K1_CNT = 0; K1_STG = 1024; K1_X = 65536; K1_LDS = K1_X + 20480
def gen_k1():
    a = Asm()
    sS, sD, sW1, sW2, sX, sR, sT = 24, 28, 32, 36, 40, 44, 48
    sw, st0, st1, st2, sng, sfb, stask = 52, 53, 54, 55, 56, 57, 58
    c4096, c8192, cm40, cm10, cnl2e, csign, cmag, ctso, cp0 = 59, 60, 61, 62, 63, 64, 65, 66, 67
    a("k1_kernel:")
    a(f"s_cmp_ge_u32 s2, {2*NCH}\ns_cbranch_scc1 K1_END")
    stamp(a, 0)
    a(f"""
    s_load_dwordx16 s[4:19], s[0:1], 0
    s_load_dwordx2 s[20:21], s[0:1], 64
    s_load_dwordx2 s[22:23], s[0:1], 88
    v_lshrrev_b32 v2, 6, v0
    v_lshlrev_b32 v1, 2, v0
    v_readfirstlane_b32 s{sw}, v2
    s_mov_b32 s{c4096}, 4096
    s_mov_b32 s{c8192}, 8192
    s_cmp_ge_u32 s2, {NCH}
    s_cbranch_scc1 K1_GEMM
    """)
    vD, vS, vB, vSL, vt = 2, 5, 8, 11, 16
    a(f"s_mul_i32 s{st1}, s2, {CS*4}\ns_waitcnt lgkmcnt(0)")
    srd(a, sD, 10, f"s{st1}", CS*4)
    srd(a, sS, 8, f"s{st1}", CS*4)
    for r, so in enumerate(("0", f"s{c4096}", f"s{c8192}")):
        a(f"buffer_load_dword v{vD+r}, v1, {sr(sD,4)}, {so} offen")
        a(f"buffer_load_dword v{vS+r}, v1, {sr(sS,4)}, {so} offen")
    a(f"""
    v_mov_b32 v{vt}, -1
    v_mov_b32 v{vt+1}, -1
    v_mov_b32 v{vt+2}, -1
    v_mov_b32 v{vt+3}, -1
    v_lshlrev_b32 v{vt+4}, 4, v0
    v_mov_b32 v{vt+5}, 0
    v_and_b32 v{vt+6}, 0x3fc, v1
    ds_write_b128 v{vt+4}, {vr(vt,4)} offset:{K1_STG}
    ds_write_b128 v{vt+4}, {vr(vt,4)} offset:{K1_STG+16384}
    ds_write_b32 v{vt+6}, v{vt+5} offset:{K1_CNT}
    s_lshl_b32 s{st0}, s2, 7
    s_add_u32 s{st0}, s{st0}, {REC_OFF}
    """)
    srd(a, sR, 22, f"s{st0}", NBIN*NCH*128)
    a(f"s_lshl_b32 s{st0}, s2, 9\ns_add_u32 s{st1}, s{st0}, {LUT_OFF}")
    srd(a, sT, 22, f"s{st1}", 512)
    a(f"""
    v_add_u32 v40, s{st0}, v1
    v_and_b32 v41, 0x7fff, v40
    v_cmp_ne_u32 vcc, 0x7c00, v41
    v_or_b32 v41, 3, v40
    s_nop 0
    v_addc_co_u32 v40, vcc, 0, v40, vcc
    v_cvt_f32_f16 v41, v41
    v_cvt_f32_f16 v40, v40
    v_exp_f32 v41, v41
    v_exp_f32 v40, v40
    v_add_f32 v41, 1.0, v41
    v_add_f32 v40, 1.0, v40
    v_rcp_f32 v41, v41
    v_rcp_f32 v40, v40
    s_nop 0
    v_cvt_pk_bf16_f32 v40, v40, v41
    buffer_store_dword v40, v1, {sr(sT,4)}, 0 offen {OPT['st_r']}
    """)
    if OPT.get("pf", "0") == "1":
        a(f"""
        s_getpc_b64 {sr(sW1,2)}
        K1_PC:
        s_add_u32 s{sW1}, s{sW1}, k2_kernel-K1_PC
        s_addc_u32 s{sW1+1}, s{sW1+1}, 0
        s_mov_b32 s{sW1+2}, K2_CODE_END-k2_kernel
        s_mov_b32 s{sW1+3}, 0x20000
        v_lshlrev_b32 v44, 5, v0
        buffer_load_dword v45, v44, {sr(sW1,4)}, 0 offen
        """)
    a(f"""
    s_mov_b32 s{cm40}, {-BN}
    s_mov_b32 s{cm10}, {-GN}
    v_mov_b32 v{vt+5}, 1
    v_cmp_gt_u32 vcc, {CS-2048}, v0
    s_mov_b64 s[100:101], vcc
    v_lshrrev_b32 v{vt+7}, 3, v0
    v_and_b32 v{vt+8}, 7, v0
    v_lshlrev_b32 v{vt+9}, 14, v{vt+7}
    v_lshl_add_u32 v{vt+9}, v{vt+8}, 4, v{vt+9}
    v_lshlrev_b32 v{vt+7}, 2, v{vt+7}
    v_cmp_eq_u32 s[82:83], 7, v{vt+8}
    s_mov_b32 s{st2}, {128*16384}
    s_waitcnt lgkmcnt(0)
    s_barrier
    """)
    stamp(a, 1)
    for r in range(3):
        a(f"s_waitcnt vmcnt({4-2*r + 1 + (OPT.get('pf', '0') == '1')})")
        if r == 0: stamp(a, 2)
        rec_fields(a, vD+r, vB+r, vt, cm40, cm10)
        a(f"v_lshlrev_b32 v{vt}, 2, v{vB+r}")
        if r == 2: a("s_mov_b64 exec, s[100:101]")
        a(f"ds_add_rtn_u32 v{vSL+r}, v{vt}, v{vt+5} offset:{K1_CNT}")
        if r == 2: a("s_mov_b64 exec, -1")
        a(f"""
        v_lshl_or_b32 v{vD+r}, v{vS+r}, 16, v{vD+r}
        v_add_u32 v{vS+r}, {1024*r}, v0
        v_lshl_or_b32 v{vD+r}, v{vS+r}, 4, v{vD+r}
        v_lshlrev_b32 v{vB+r}, 7, v{vB+r}
        """)
    for r in range(3):
        a(f"s_waitcnt lgkmcnt({2-r})" if r == 0 else f"s_waitcnt lgkmcnt({2})" if r == 1 else "s_waitcnt lgkmcnt(2)")
        if r == 2: a("s_mov_b64 exec, s[100:101]")
        a(f"""
        v_lshl_add_u32 v{vB+r}, v{vSL+r}, 2, v{vB+r}
        v_cmpx_gt_u32 vcc, {CAP}, v{vSL+r}
        ds_write_b32 v{vB+r}, v{vD+r} offset:{K1_STG}
        s_mov_b64 exec, -1
        """)
    a("s_waitcnt lgkmcnt(0)")
    stamp(a, 3)
    a("s_barrier")
    stamp(a, 4)
    a(f"""
    ds_read_b128 {vr(vt+12,4)}, v{vt+4} offset:{K1_STG}
    ds_read_b32 v{vt}, v{vt+7} offset:{K1_CNT}
    ds_read_b128 {vr(vt+16,4)}, v{vt+4} offset:{K1_STG+16384}
    ds_read_b32 v{vt+1}, v{vt+7} offset:{K1_CNT+512}
    v_mov_b32 v{vt+2}, -2
    """)
    for k in range(2):
        a(f"""
        s_waitcnt lgkmcnt({2-2*k})
        v_cmp_lt_u32 vcc, {CAP}, v{vt+k}
        s_and_b64 vcc, vcc, s[82:83]
        s_nop 1
        v_cndmask_b32 v{vt+15+4*k}, v{vt+15+4*k}, v{vt+2}, vcc
        buffer_store_dwordx4 {vr(vt+12+4*k,4)}, v{vt+9}, {sr(sR,4)}, {'0' if k == 0 else f's{st2}'} offen {OPT['st_r']}
        """)
    stamp(a, 5)
    if OPT.get("pe", "1") == "1":
        a("s_barrier")
        a(f"s_mul_i32 s{st0}, s2, {CS*32}")
        srd(a, sW2, 6, f"s{st0}", CS*32)
        a(f"v_lshlrev_b32 v46, 7, v0\nbuffer_load_dword v47, v46, {sr(sW2,4)}, 0 offen {OPT.get('pef', '')}")
    stamp(a, 6); stamp(a, 7)
    stamp_out(a, 0, 22, sw, 2)
    a("s_endpgm")
    vW, vX, vA, vt = 32, 96, 112, 2
    def W(m, ab, s): return vW + 32*m + 16*ab + 4*s
    a(f"""
    K1_GEMM:
    s_sub_u32 s{stask}, s2, {NCH}
    s_and_b32 s{sfb}, s{sw}, 3
    s_lshr_b32 s{sng}, s{sw}, 2
    v_and_b32 v{vt}, 63, v0
    v_lshrrev_b32 v{vt+1}, 4, v{vt}
    v_and_b32 v{vt+2}, 15, v0
    s_lshl_b32 s{st0}, s{sfb}, 2
    v_add_u32 v{vt+3}, s{st0}, v{vt+1}
    v_xor_b32 v{vt+3}, v{vt+3}, v{vt+2}
    v_lshlrev_b32 v{vt+3}, 4, v{vt+3}
    v_lshl_add_u32 v{vt+3}, v{vt+1}, 8, v{vt+3}
    v_lshlrev_b32 v{vt+4}, 2, v{vt+1}
    v_xor_b32 v{vt+4}, v{vt+4}, v{vt+2}
    v_lshlrev_b32 v{vt+4}, 4, v{vt+4}
    v_lshl_add_u32 v{vt+4}, v{vt+1}, 8, v{vt+4}
    s_mul_i32 s{st0}, s{stask}, 20480
    s_cmp_lt_u32 s{stask}, 125
    s_cselect_b32 s{st0}, s{st0}, 0
    s_cselect_b32 s{st2}, 20480, 0
    s_waitcnt lgkmcnt(0)
    """)
    a(f"""
    s_cmp_ge_u32 s{stask}, 126
    s_cbranch_scc1 K1_WC
    s_add_u32 s{sX}, s4, s{st0}
    s_addc_u32 s{sX+1}, s5, 0
    s_mov_b32 s{sX+2}, s{st2}
    s_mov_b32 s{sX+3}, 0x20000
    s_lshl_b32 s{st1}, s{sw}, 10
    s_add_u32 m0, s{st1}, {K1_X}
    s_cmp_eq_u32 s{stask}, 125
    s_cselect_b64 {sr(sW1,2)}, s[12:13], s[14:15]
    s_cselect_b64 {sr(sW2,2)}, s[18:19], s[20:21]
    """)
    if OPT.get("touch", "0") == "1":
        a(f"""
        s_bitcmp1_b32 s2, 3
        s_cselect_b64 {sr(sS,2)}, {sr(sW1,2)}, {sr(sW2,2)}
        s_bitcmp1_b32 s2, 4
        s_cselect_b32 s{sS+2}, 4, 0
        s_mov_b32 s{sS+3}, 0x20000
        buffer_load_dword v30, v1, {sr(sS,4)}, 0 offen
        """)
    a(f"""
    buffer_load_dwordx4 v{vt+3}, {sr(sX,4)}, s{st1} offen lds
    s_cmp_lt_u32 s{sw}, 4
    s_cbranch_scc0 K1_X1
    s_add_u32 m0, s{st1}, {K1_X+16384}
    s_add_u32 s{st1}, s{st1}, 16384
    buffer_load_dwordx4 v{vt+3}, {sr(sX,4)}, s{st1} offen lds
    K1_X1:
    s_mov_b32 s{sW1+2}, 32768
    s_mov_b32 s{sW1+3}, 0x20000
    s_mov_b32 s{sW2+2}, 32768
    s_mov_b32 s{sW2+3}, 0x20000
    s_lshr_b32 s{st1}, s2, 3
    s_add_u32 s{st1}, s{st1}, s{sw}
    s_and_b32 s{st1}, s{st1}, 15
    s_lshl_b32 s{st1}, s{st1}, 11
    s_mov_b32 m0, s{st1}
    s_lshl_b32 s{st0}, s{st0}, 1
    buffer_load_dwordx4 v{vt+4}, {sr(sW1,4)}, s{st1} offen lds
    buffer_load_dwordx4 v{vt+4}, {sr(sW1,4)}, s{st1} offen offset:1024 lds
    s_add_u32 m0, s{st1}, 32768
    s_add_u32 s{st0}, s{st0}, {T_OFF}
    buffer_load_dwordx4 v{vt+4}, {sr(sW2,4)}, s{st1} offen lds
    buffer_load_dwordx4 v{vt+4}, {sr(sW2,4)}, s{st1} offen offset:1024 lds
    """)
    srd(a, sT, 22, f"s{st0}", 40960)
    a(f"""
    v_bfe_u32 v{vt+5}, v0, 2, 2
    v_and_b32 v{vt+6}, 3, v0
    s_lshl_b32 s{st0}, s{sfb}, 2
    v_add_u32 v{vt+6}, s{st0}, v{vt+6}
    v_lshlrev_b32 v{vt+7}, 2, v{vt+5}
    v_xor_b32 v{vt+6}, v{vt+6}, v{vt+7}
    v_lshl_add_u32 v{vt+5}, v{vt+1}, 3, v{vt+5}
    v_lshlrev_b32 v{vt+5}, 8, v{vt+5}
    v_lshl_add_u32 v10, v{vt+6}, 4, v{vt+5}
    v_xor_b32 v11, v{vt+1}, v{vt+2}
    v_lshlrev_b32 v11, 4, v11
    v_lshl_add_u32 v11, v{vt+2}, 8, v11
    s_lshl_b32 s{st0}, s{sng}, 12
    s_add_u32 s{st0}, s{st0}, {K1_X}
    v_add_u32 v11, s{st0}, v11
    v_lshlrev_b32 v12, 9, v{vt+2}
    v_lshl_add_u32 v12, v{vt+1}, 4, v12
    s_lshl_b32 s{st0}, s{sng}, 13
    s_lshr_b32 s{st1}, s{sfb}, 1
    s_lshl_b32 s{st1}, s{st1}, 8
    s_add_u32 s{st0}, s{st0}, s{st1}
    s_and_b32 s{st1}, s{sfb}, 1
    s_lshl_b32 s{st1}, s{st1}, 6
    s_add_u32 s{ctso}, s{st0}, s{st1}
    s_mov_b32 s{cnl2e}, {NL2E:#x}
    s_mov_b32 s{csign}, 0x00800000
    s_mov_b32 s{cmag}, 0x7fffffff
    s_mov_b32 s{cp0}, 0x07060100
    s_mov_b32 s{cp0+1}, 0x07060302
    v_xor_b32 v13, 64, v11
    v_xor_b32 v14, 0x80, v11
    v_xor_b32 v15, 0xc0, v11
    """)
    stamp(a, 1)
    a("s_waitcnt vmcnt(0)")
    stamp(a, 2)
    a("s_barrier")
    stamp(a, 3)
    def xrd(off):
        for s in range(4): a(f"ds_read_b128 {vr(vX+4*s,4)}, v{[11,13,14,15][s]} offset:{off}")
    xrd(0)
    n = 4
    for s in range(4):
        for m in range(2):
            for ab in range(2):
                for u in range(2):
                    a(f"ds_read_b64_tr_b16 {vr(W(m,ab,s)+2*u,2)}, v10 offset:{m*32768+s*8192+u*1024+ab*8}")
        if s < 3: a("s_waitcnt lgkmcnt(6)")
    a(f"s_cmp_eq_u32 s{stask}, 125\ns_cbranch_scc1 K1_WT")
    def mm():
        for s in range(4):
            for m in range(2):
                for ab in range(2):
                    d = vr(vA+8*m+4*ab, 4)
                    a(f"v_mfma_f32_16x16x32_bf16 {d}, {vr(W(m,ab,s),4)}, {vr(vX+4*s,4)}, {'0' if s == 0 else d}")
    def pack(so):
        a("s_nop 7")
        for b in range(2):
            for ab in range(2):
                b0, b1 = vA+4*ab+b, vA+4*ab+2+b
                a(f"v_mul_f32 v{b0}, s{cnl2e}, v{b0}\nv_mul_f32 v{b1}, s{cnl2e}, v{b1}")
                for e_ in range(2):
                    h = vA+8+4*ab+2*e_+b
                    a(f"v_max_f32 v{16+e_}, abs(v{h}), s{csign}\nv_bfi_b32 v{h}, s{cmag}, v{16+e_}, v{h}")
                a(f"v_cvt_pk_bf16_f32 v{b0}, v{b0}, v{b1}")
                for e_ in range(2):
                    h = vA+8+4*ab+2*e_+b
                    a(f"v_add_u32 v{h}, 0x8000, v{h}")
                for e_ in range(2):
                    h = vA+8+4*ab+2*e_+b
                    a(f"v_sub_u32_sdwa v{h}, v{h}, v{b0} dst_sel:DWORD dst_unused:UNUSED_PAD src0_sel:DWORD src1_sel:WORD_{e_}")
                for e_ in range(2):
                    h = vA+8+4*ab+2*e_+b
                    a(f"v_perm_b32 v{20+4*b+2*ab+e_}, v{h}, v{b0}, s{cp0+e_}")
            a(f"buffer_store_dwordx4 {vr(20+4*b,4)}, v12, {sr(sT,4)}, s{so} offen offset:{128*b} {OPT['st_t']}")
    a("s_waitcnt lgkmcnt(0)")
    mm()
    stamp(a, 4)
    a(f"s_cmp_eq_u32 s{sng}, 0\ns_cbranch_scc0 K1_ONE")
    xrd(16384)
    pack(ctso)
    a(f"s_add_u32 s{ctso}, s{ctso}, 32768\ns_waitcnt lgkmcnt(0)")
    mm()
    a("K1_ONE:")
    pack(ctso)
    stamp(a, 5); stamp(a, 6); stamp(a, 7)
    stamp_out(a, 0, 22, sw, 2)
    a("s_endpgm")
    a("K1_WT:")
    srd(a, sT, 22, WT_OFF, 65536)
    a(f"""
    s_cmp_ge_u32 s{sw}, 8
    s_cbranch_scc1 K1_END
    v_lshlrev_b32 v{vt+1}, 4, v{vt}
    s_lshl_b32 s{st0}, s{sw}, 13
    s_add_u32 s{st1}, s{st0}, 4096
    s_waitcnt lgkmcnt(0)
    s_cmp_eq_u32 s{sng}, 0
    s_cbranch_scc0 K1_WU
    """)
    for m in range(2):
        for ab in range(2):
            for s in range(4):
                a(f"buffer_store_dwordx4 {vr(W(m,ab,s),4)}, v{vt+1}, {sr(sT,4)}, s{st1 if ab else st0} offen offset:{1024*s} {OPT['st_t']}")
        a("s_endpgm")
        if m == 0: a("K1_WU:")
    a("K1_WC:")
    srd(a, sT, 22, WT_OFF+65536, 4096)
    srd(a, sW1, 16, None, 4096)
    a(f"""
    s_cmp_eq_u32 s{stask}, 126
    s_cbranch_scc0 K1_END
    s_cmp_ge_u32 s{sw}, 4
    s_cbranch_scc1 K1_END
    v_lshrrev_b32 v{vt+2}, 5, v{vt}
    v_and_b32 v{vt+3}, 31, v0
    v_lshlrev_b32 v{vt+3}, 2, v{vt+3}
    v_lshl_add_u32 v{vt+3}, v{vt+2}, 11, v{vt+3}
    v_lshlrev_b32 v{vt+1}, 4, v{vt}
    s_lshr_b32 s{st1}, s{sw}, 1
    s_lshl_b32 s{st1}, s{st1}, 7
    s_and_b32 s{st0}, s{sw}, 1
    s_lshl_b32 s{st0}, s{st0}, 1
    s_add_u32 s{st1}, s{st1}, s{st0}
    s_lshl_b32 s{st0}, s{sw}, 10
    s_mov_b32 s{cnl2e}, {NL2E:#x}
    """)
    for j in range(8):
        a(f"buffer_load_ushort v{20+j}, v{vt+3}, {sr(sW1,4)}, s{st1} offen offset:{256*j}")
    a("s_waitcnt vmcnt(0)")
    for j in range(8):
        a(f"v_lshlrev_b32 v{20+j}, 16, v{20+j}\nv_mul_f32 v{20+j}, s{cnl2e}, v{20+j}")
    for j in range(4):
        a(f"v_cvt_pk_bf16_f32 v{28+j}, v{20+2*j}, v{21+2*j}")
    a(f"buffer_store_dwordx4 v[28:31], v{vt+1}, {sr(sT,4)}, s{st0} offen {OPT['st_t']}")
    a("K1_END:\ns_endpgm")
    return a.text(), kd("k1_kernel", 128, 102)

CAPG = 640
CNT = 0; START = 256; OHL = 512; L1 = 1024; L2 = L1 + 4*CAPG*4; APL = L2 + 4*CAPG*4
ROWP = 272
UL = APL + 48*ROWP; XL = UL + 48*ROWP; LUTL = XL + 12288; K2_LDS = LUTL + 65536

def gen_k2():
    a = Asm()
    sREC, sX, sWT, sT, sE, sO, sD, sS = 24, 28, 32, 36, 40, 44, 68, 72
    sw, sg, sfh, st0, st1, st2 = 48, 49, 50, 51, 52, 53
    scount, sslow, sround, sinit, sgb, srt, slut, srank = 54, 55, 56, 57, 58, 59, 82, 83
    cm32, c128, cnl2e, cfc, csrc, cm40, cm10, cfe = 60, 61, 62, 63, 64, 65, 66, 67
    sk = 16
    vH16, vA1, vA2, vEa, vOa, vO, vO2 = 1, 2, 3, 4, 5, 6, 7
    WC = 8; AP = 16; PA = 24; SC = 28; OH = 32; EA = 40; ADDR = 48; ACC = 64; SP = 96; G = 112; RAW = 176
    XR = 240; UR = 246; vM15 = 252; vH256 = 253
    raw = lambda p, b: RAW + 32*p + 16*b
    gb = lambda p, b: G + 32*p + 16*b
    vt = gb(1, 1); WT = ACC; Z = SP; EOFF = SP+15
    REC = raw(1, 0); CADDR = REC+8; RANK = REC+16; STV = REC+24
    NT = int(OPT.get("nt", "1"))
    rowoff = lambda r: 8*(r >> 2) + (r & 3)

    a("k2_kernel:")
    a(f"s_cmp_ge_u32 s2, {NBIN}\ns_cbranch_scc1 K2_END")
    stamp(a, 0)
    a(f"""
    s_load_dwordx8 s[4:11], s[0:1], 0
    s_load_dwordx2 s[12:13], s[0:1], 72
    s_load_dwordx2 s[14:15], s[0:1], 88
    v_lshrrev_b32 v{vt}, 6, v0
    v_lshrrev_b32 v{vt+1}, 2, v0
    v_readfirstlane_b32 s{sw}, v{vt}
    v_and_b32 v{vt+2}, 3, v0
    v_lshlrev_b32 v{vt+3}, 7, v{vt+1}
    v_lshl_add_u32 v{vt+3}, v{vt+2}, 4, v{vt+3}
    s_lshl_b32 s{st0}, s2, 14
    s_add_u32 s{st0}, s{st0}, {REC_OFF}
    v_mul_u32_u24 v{EOFF}, {CS*32}, v{vt+1}
    v_and_b32 v{vt}, 63, v0
    v_lshlrev_b32 v{vt+5}, 2, v{vt}
    v_mov_b32 v{Z}, 0
    ds_write_b32 v{vt+5}, v{Z} offset:{CNT}
    v_lshrrev_b32 v{vt+4}, 4, v{vt}
    s_and_b32 s{sg}, s{sw}, 3
    s_lshr_b32 s{sfh}, s{sw}, 2
    s_lshl_b32 s{st1}, s{sg}, 2
    v_add_u32 v{vA1}, s{st1}, v{vt+4}
    v_and_b32 v{vA2}, 15, v0
    v_xor_b32 v{vA1}, v{vA1}, v{vA2}
    v_lshlrev_b32 v{vA1}, 4, v{vA1}
    v_lshl_add_u32 v{vA1}, v{vt+4}, 8, v{vA1}
    v_lshlrev_b32 v{vA2}, 4, v{vt}
    s_lshr_b32 s{srt}, s2, 3
    s_add_u32 s{srt}, s{srt}, s{sw}
    s_and_b32 s{srt}, s{srt}, 7
    s_lshl_b32 s{slut}, s{srt}, 13
    s_lshl_b32 s{st1}, s{sw}, 10
    s_add_u32 m0, s{st1}, {XL}
    s_waitcnt lgkmcnt(0)
    """)
    srd(a, sREC, 14, f"s{st0}", 16384)
    for r in range(2):
        a(f"buffer_load_dwordx4 {vr(REC+4*r,4)}, v{vt+3}, {sr(sREC,4)}, 0 offen offset:{64*r}")
    a(f"s_mul_i32 s{st0}, s2, {BN*256}")
    srd(a, sX, 4, f"s{st0}", BN*256)
    srd(a, sWT, 14, WT_OFF, LUT_OFF - WT_OFF + 65536)
    a("s_barrier")
    stamp(a, 1)
    a(f"""
    buffer_load_dwordx4 v{vA1}, {sr(sX,4)}, s{st1} offen lds
    s_cmp_lt_u32 s{sw}, 4
    s_cbranch_scc0 K2_X1
    s_add_u32 m0, s{st1}, {XL+8192}
    s_add_u32 s{st2}, s{st1}, 8192
    buffer_load_dwordx4 v{vA1}, {sr(sX,4)}, s{st2} offen lds
    K2_X1:
    s_add_u32 s{st2}, s{slut}, 4096
    """)
    for k in range(8):
        a(f"buffer_load_dwordx4 {vr(WT+4*k,4)}, v{vA2}, {sr(sWT,4)}, s{st2 if k >= 4 else slut} offen offset:{1024*(k&3)}")
    a(f"""
    s_lshl_b32 s{st1}, s{sfh}, 11
    s_add_u32 s{st1}, s{st1}, 65536
    buffer_load_dwordx4 {vr(WC,4)}, v{vA2}, {sr(sWT,4)}, s{st1} offen
    buffer_load_dwordx4 {vr(WC+4,4)}, v{vA2}, {sr(sWT,4)}, s{st1} offen offset:1024
    """)
    def lut_dma(k):
        a(f"""
        s_add_u32 m0, s{slut}, {LUTL + 2048*k}
        s_add_u32 s{st2}, s{slut}, {LUT_OFF - WT_OFF + 2048*k}
        buffer_load_dwordx4 v{vA2}, {sr(sWT,4)}, s{st2} offen lds
        buffer_load_dwordx4 v{vA2}, {sr(sWT,4)}, s{st2} offen offset:1024 lds
        """)
    def ld_xr(): return [f"buffer_load_dword v{XR+r}, v{vO}, {sr(sX,4)}, 0 offen offset:{256*rowoff(r)}" for r in range(6)]
    srd(a, sO, 12, f"s{st0}", BN*256)
    a(f"s_lshl_b32 s{st0}, s{sfh}, 8\ns_add_u32 s{st0}, s{st0}, {T_OFF-128}")
    srd(a, sT, 14, f"s{st0}", 64, w3="0x800000", hi_or="0x40000")
    srd(a, sE, 6, None, E*32)
    a(f"""
    v_cmp_gt_u32 vcc, 128, v0
    s_and_saveexec_b64 s[76:77], vcc
    v_lshlrev_b32 v{vt+3}, 2, v0
    v_bfe_u32 v{vt+4}, v0, 2, 4
    v_and_b32 v{Z+4}, 3, v0
    v_lshrrev_b32 v{Z+5}, 6, v0
    v_lshl_add_u32 v{Z+4}, v{Z+5}, 2, v{Z+4}
    v_lshlrev_b32 v{Z+5}, 1, v{Z+4}
    v_mov_b32 v{Z+6}, 0x3f80
    v_mov_b32 v{Z+7}, 0x3f800000
    v_cmp_eq_u32 vcc, v{Z+5}, v{vt+4}
    v_add_u32 v{Z+5}, 1, v{Z+5}
    s_nop 0
    v_cndmask_b32 v{Z+8}, 0, v{Z+6}, vcc
    v_cmp_eq_u32 vcc, v{Z+5}, v{vt+4}
    v_cmp_eq_u32 s[78:79], 7, v{Z+4}
    s_or_b64 vcc, vcc, s[78:79]
    s_nop 1
    v_cndmask_b32 v{Z+9}, 0, v{Z+7}, vcc
    v_or_b32 v{Z+8}, v{Z+8}, v{Z+9}
    v_cmp_gt_u32 vcc, 15, v{vt+4}
    s_nop 1
    v_cndmask_b32 v{Z+8}, 0, v{Z+8}, vcc
    ds_write_b32 v{vt+3}, v{Z+8} offset:{OHL}
    s_mov_b64 exec, s[76:77]
    s_mov_b32 s{cm32}, {'0x7e0' if 'e' in OPT.get('nomem','') else '0xffffffe0'}
    s_mov_b32 s{c128}, 128
    s_mov_b32 s{cnl2e}, {NL2E:#x}
    s_mov_b32 s{cfc}, 0xfc
    s_mov_b32 s{cfe}, {OPT.get('cfe', '0xfffe')}
    s_mov_b32 s{csrc}, {'0x3e00' if 't' in OPT.get('nomem','') else '0x7ffe00'}
    s_mov_b32 s{sslow}, 0
    s_mov_b32 s{sround}, 0
    s_mov_b32 s{sinit}, 0
    s_mul_i32 s{st0}, s{sfh}, 3
    s_xor_b32 s{srank}, s{sg}, s{st0}
    v_lshrrev_b32 v{vt+3}, 5, v{vt}
    v_and_b32 v{vt+4}, 31, v0
    v_lshlrev_b32 v{vH16}, 4, v{vt+3}
    v_lshlrev_b32 v{vH256}, 8, v{vt+3}
    v_cmp_eq_u32 vcc, 0, v{vt+3}
    v_mov_b32 v{vM15}, 0xffff
    v_mov_b32 v{Z+4}, -1
    v_cndmask_b32 v{vM15}, v{vM15}, v{Z+4}, vcc
    v_and_b32 v{Z+4}, 3, v0
    v_mov_b32 v{Z+6}, 0x3f80
    """)
    for i in range(4):
        a(f"v_cmp_eq_u32 vcc, {i}, v{Z+4}\ns_nop 1\nv_cndmask_b32 v{PA+i}, 0, v{Z+6}, vcc")
    den = bf(127*2.0**-116); tiny = bf(2.0**-100)
    a(f"""
    v_cmp_gt_u32 s[78:79], 16, v{vt+4}
    v_mov_b32 v{Z+5}, {den:#x}
    v_mov_b32 v{Z+7}, {tiny<<16:#x}
    v_cndmask_b32 v{Z+5}, v{Z+6}, v{Z+5}, s[78:79]
    v_cndmask_b32 v{Z+7}, 0, v{Z+7}, s[78:79]
    v_and_b32 v{Z+4}, 15, v0
    v_lshlrev_b32 v{Z+8}, 3, v{vt+3}
    v_sub_u32 v{Z+4}, v{Z+4}, v{Z+8}
    v_lshlrev_b32 v{Z+6}, 16, v{Z+5}
    """)
    for d in range(4):
        a(f"""
        v_cmp_eq_u32 vcc, {2*d}, v{Z+4}
        v_cmp_eq_u32 s[78:79], {2*d+1}, v{Z+4}
        s_nop 0
        v_cndmask_b32 v{SC+d}, 0, v{Z+5}, vcc
        v_cndmask_b32 v{Z+8}, 0, v{Z+6}, s[78:79]
        v_or_b32 v{SC+d}, v{SC+d}, v{Z+8}
        """)
    a(f"""
    v_and_b32 v{SC+3}, v{SC+3}, v{vM15}
    v_not_b32 v{Z+8}, v{vM15}
    v_and_b32 v{Z+8}, v{Z+8}, v{Z+7}
    v_or_b32 v{SC+3}, v{SC+3}, v{Z+8}
    """)
    for r in range(16): a(f"v_mov_b32 v{ADDR+r}, 128")
    a(f"""
    v_mov_b32 v{vt+3}, 4
    s_waitcnt vmcnt(11)
    """)
    stamp(a, 2)
    a(f"""
    v_cmp_eq_u32 vcc, -2, v{REC+7}
    s_cbranch_vccz K2_NOOVF
    v_mov_b32 v{vt+4}, 0x10000
    v_mov_b32 v{vt}, 60
    ds_add_u32 v{vt}, v{vt+4} offset:{CNT}
    K2_NOOVF:
    """)
    def caddr(k): return f"v_and_b32_sdwa v{CADDR+k}, s{cfc}, v{REC+k} dst_sel:DWORD dst_unused:UNUSED_PAD src0_sel:DWORD src1_sel:BYTE_3"
    for k in range(8):
        a(f"""
        v_cmpx_gt_u32 vcc, -2, v{REC+k}
        s_cbranch_execz K2_CNT_DONE
        {caddr(k)}
        ds_add_rtn_u32 v{RANK+k}, v{CADDR+k}, v{vt+3} offset:{CNT}
        """)
    a(f"""
    K2_CNT_DONE:
    s_mov_b64 exec, -1
    """)
    lut_dma(0)
    a("s_waitcnt lgkmcnt(0)\ns_barrier")
    def scan(fast):
        x = SP
        a(f"""
        v_and_b32 v{vt}, 63, v0
        v_lshlrev_b32 v{vt+1}, 2, v{vt}
        ds_read_b32 v{x}, v{vt+1} offset:{CNT}
        v_lshrrev_b32 v{vt}, 4, v{vt}
        v_mul_u32_u24 v{vt}, {CAPG*4}, v{vt}
        v_and_b32 v{vt+2}, 31, v0
        v_lshlrev_b32 v{vt+2}, 2, v{vt+2}
        v_mov_b32 v{vt+4}, 0xfffffe
        """)
        if fast: lut_dma(1)
        a(f"""
        s_waitcnt lgkmcnt(0)
        v_sub_u32 v{vt}, v{vt}, v{x}
        """)
        for d in ("row_shr:1", "row_shr:2", "row_shr:4", "row_shr:8"):
            a(f"v_add_u32_dpp v{x}, v{x}, v{x} {d} row_mask:0xf bank_mask:0xf bound_ctrl:0\ns_nop 1")
        a(f"""
        v_add_u32 v{vt}, v{vt}, v{x}
        v_cmp_lt_u32 vcc, {(CAPG-32)*4}, v{x}
        ds_write_b32 v{vt+1}, v{vt} offset:{START}
        """)
        for g in range(4): a(f"v_readlane_b32 s{sk+g}, v{x}, {16*g+15}")
        if fast:
            a("s_cbranch_vccnz K2_SLOW")
            for k in range(4): a(f"ds_read_b32 v{STV+k}, v{CADDR+k} offset:{START}")
            lut_dma(2)
        for g in range(1, 4): a(f"s_or_b32 s{sk+g}, s{sk+g}, {g}")
        if fast and OPT.get("pair", "1") == "1":
            cur = [sk, sk+1, sk+2, sk+3]; spare = sk+4
            for (i, j) in ((0, 1), (2, 3), (0, 2), (1, 3), (1, 2)):
                a(f"s_max_u32 s{spare}, s{cur[i]}, s{cur[j]}\ns_min_u32 s{cur[j]}, s{cur[i]}, s{cur[j]}")
                cur[i], spare = spare, cur[i]
            sel = srank
        else:
            cur = [sk, sk+1, sk+2, sk+3]; sel = sg
        a(f"""
        s_bitcmp1_b32 s{sel}, 0
        s_cselect_b32 s{cur[0]}, s{cur[1]}, s{cur[0]}
        s_cselect_b32 s{cur[2]}, s{cur[3]}, s{cur[2]}
        s_bitcmp1_b32 s{sel}, 1
        s_cselect_b32 s{st0}, s{cur[2]}, s{cur[0]}
        s_and_b32 s{sg}, s{st0}, 3
        s_andn2_b32 s{st0}, s{st0}, 3
        s_mul_i32 s{sgb}, s{sg}, {CAPG*4}
        s_add_u32 s{scount}, s{st0}, 127
        s_lshr_b32 s{scount}, s{scount}, 7
        s_add_u32 s{st0}, s{st0}, s{sgb}
        v_add_u32 v{vt+2}, s{st0}, v{vt+2}
        v_lshlrev_b32 v{vt+3}, 3, v{vt+2}
        v_and_b32 v{vt+3}, 128, v{vt+3}
        ds_write2st64_b32 v{vt+2}, v{vt+3}, v{vt+4} offset0:{L1//256} offset1:{L2//256}
        """)
    def place(k):
        a(f"""
        v_add_u32 v{STV+k}, v{STV+k}, v{RANK+k}
        v_lshrrev_b32 v{vt}, 7, v{REC+k}
        v_lshlrev_b32 v{vt+1}, 3, v{STV+k}
        v_mad_u32_u16 v{vt+2}, v{REC+k}, 2, v{EOFF}
        v_and_b32 v{vt+1}, 128, v{vt+1}
        v_and_or_b32 v{vt}, v{vt}, s{csrc}, v{vt+1}
        ds_write2st64_b32 v{STV+k}, v{vt}, v{vt+2} offset0:{L1//256} offset1:{L2//256}
        """)
    scan(True)
    a("s_waitcnt lgkmcnt(1)")
    for k in range(8):
        a(f"v_cmpx_gt_u32 vcc, -2, v{REC+k}\ns_cbranch_execz K2_PLACED")
        if k == 4:
            for kk in range(4, 8):
                a(f"ds_read_b32 v{STV+kk}, v{CADDR+kk} offset:{START}")
            a("s_waitcnt lgkmcnt(0)")
        place(k)
    a(f"""
    K2_PLACED:
    s_mov_b64 exec, -1
    """)
    lut_dma(3)
    def lane_setup():
        a(f"""
        v_and_b32 v{vt}, 31, v0
        v_xor_b32 v{vA1}, 16, v{vH16}
        v_xor_b32 v{vA2}, 4, v{vt}
        v_lshlrev_b32 v{vA2}, 2, v{vA2}
        v_add_u32 v{vA1}, s{sgb}, v{vA1}
        v_add_u32 v{vA2}, s{sgb}, v{vA2}
        s_mul_i32 s{st0}, s{sg}, {GN*256}
        s_lshl_b32 s{st1}, s{sfh}, 7
        s_add_u32 s{st0}, s{st0}, s{st1}
        v_lshlrev_b32 v{vO}, 2, v{vt}
        v_lshl_add_u32 v{vO}, v{vH256}, 2, v{vO}
        v_add_u32 v{vO}, s{st0}, v{vO}
        v_lshl_or_b32 v{vO2}, v{vH16}, 27, v{vO}
        """)
    lane_setup()
    a("s_waitcnt vmcnt(18) lgkmcnt(0)\ns_barrier")
    stamp(a, 3); stamp(a, 1, "4")
    def rd_addr(off, j): return f"ds_read_b128 {vr(ADDR+4*j,4)}, v{vA1} offset:{L1+off+32*j}"
    def rd_l2(reg, off): return f"ds_read_b32 v{reg}, v{vA2} offset:{L2+off}"
    def ld_raw(p, b, r):
        pre = [f"v_and_b32 v{ADDR+r}, 0x7fff80, v{ADDR+r}"] if OPT.get("safe") else []
        if OPT.get("noload"): return ["s_nop 0"]
        return pre + [f"buffer_load_dword v{raw(p,b)+r}, v{ADDR+r}, {sr(sT,4)}, 0 offen" + (" offset:128" if b else "")]
    def ld_blk(p, b): return sum((ld_raw(p, b, r) for r in range(16)), [])
    def ld_ea(p): return [f"v_and_or_b32 v{vEa}, v{vEa}, s{cm32}, v{vH16}", f"buffer_load_dwordx4 {vr(EA+4*p,4)}, v{vEa}, {sr(sE,4)}, 0 offen"]
    def oh_idx(p):
        return [f"v_and_b32 v{vOa}, 30, v{vOa}",
                f"v_lshl_add_u32 v{vOa}, v{vOa}, 3, v{vH256}",
                f"ds_read_b128 {vr(OH+4*p,4)}, v{vOa} offset:{OHL}"]
    big = "v_mfma_f32_32x32x16_bf16" if not OPT.get("nobig") else "; "
    de = OPT.get("drop", "")
    def mE(p, b): return "; " if "E" in de else f"{big} {vr(gb(p,b),16)}, {vr(EA+4*p,4)}, {vr(WC+4*b,4)}, 0"
    def mA(p, b): return "; " if "A" in de else f"{big} {vr(gb(p,b),16)}, {vr(OH+4*p,4)}, {vr(AP+4*b,4)}, {vr(gb(p,b),16)}"
    def mS(p): return "; " if "S" in de else f"{big} {vr(SP,16)}, {vr(OH+4*p,4)}, {vr(SC,4)}, 0"
    def mG(p, b, j): return "; " if ("G" in de or ("g" in de and j & 1)) else f"{big} {vr(ACC+16*b,16)}, {vr(SP+4*j,4)}, {vr(gb(p,b)+4*j,4)}, {vr(ACC+16*b,16)}"
    def mP(p, b):
        o = []
        for u in range(2):
            for j in range(4):
                g = vr(gb(p,b)+4*j, 4)
                o.append(f"v_mfma_f32_4x4x4_16b_bf16 {g}, {vr(PA+2*u,2)}, {vr(raw(p,b)+4*j+2*u,2)}, {g}")
        return o
    sd = "dst_sel:DWORD dst_unused:UNUSED_PAD src0_sel:DWORD"
    def idx_pair(p, b, i):
        g0, g1 = gb(p,b)+2*i, gb(p,b)+2*i+1
        if i < NT:
            return [f"v_exp_f32 v{g0}, v{g0}", f"v_exp_f32 v{g1}, v{g1}", f"v_add_f32 v{g0}, 1.0, v{g0}",
                    f"v_add_f32 v{g1}, 1.0, v{g1}", f"v_rcp_f32 v{g0}, v{g0}", f"v_rcp_f32 v{g1}, v{g1}"], []
        return [f"v_cvt_pkrtz_f16_f32 v{g0}, v{g0}, v{g1}",
                f"v_and_b32_sdwa v{g1}, s{cfe}, v{g0} {sd} src1_sel:WORD_1",
                f"v_and_b32_sdwa v{g0}, s{cfe}, v{g0} {sd} src1_sel:WORD_0"], \
               [f"ds_read_u16_d16_hi v{g1}, v{g1} offset:{LUTL}", f"ds_read_u16_d16_hi v{g0}, v{g0} offset:{LUTL}"]
    def fin_pair(p, b, i):
        g0, r0 = gb(p,b)+2*i, raw(p,b)+2*i
        return [f"v_mul_f32 v{r0}, v{g0}, v{r0}", f"v_mul_f32 v{r0+1}, v{g0+1}, v{r0+1}",
                f"v_cvt_pk_bf16_f32 v{g0}, v{g0}, v{r0}", f"v_cvt_pk_bf16_f32 v{g0+1}, v{g0+1}, v{r0+1}"]
    def zipl(x, y):
        o = []
        for k in range(max(len(x), len(y))):
            if k < len(x): o.append(x[k])
            if k < len(y): o.append(y[k])
        return o
    uid = [0]
    def W(kind):
        uid[0] += 1
        return f"@W{kind} {uid[0]}"
    def slot(p, b, kind, acc=True):
        q = 1-p
        nxt = (p, 1) if b == 0 else (q, 0)
        do_idx = b == 0 or kind != "L"
        bigs = []
        if kind != "L": bigs += [[W("v"), mE(q, b)] + (ld_ea(q) if (b == 1 and kind == "F") else []), [mA(q, b)]]
        if acc: bigs += [[mG(q if b == 0 else p, 1-b, j)] for j in range(4)]
        if b == 0: bigs += [[mS(p)]]
        smalls = mP(q, b) if kind != "L" else []
        out = []
        nb = 0
        for i in range(8):
            iv, il = idx_pair(*nxt, i) if do_idx else ([], [])
            fv = fin_pair(p, b, i)
            seq = zipl(iv, fv) if i >= NT or not do_idx else [iv[0], fv[0], iv[1], fv[1], iv[2], fv[2], iv[3], fv[3], iv[4], iv[5]]
            seq += il
            if kind == "F":
                seq += ld_raw(p, b, 2*i) + ld_raw(p, b, 2*i+1)
                if b == 1 and i & 1: seq.append(rd_addr((3+p)*128, i >> 1))
                if b == 0 and i == 1: seq.append(rd_l2(vEa, (3+p)*128))
                if b == 0 and i == 5: seq.append(rd_l2(vOa, (2+p)*128))
                if b == 1 and i == 2: seq += oh_idx(p)
            pre = [W("l")]
            if i < 6:
                take = 2 if (len(bigs) - nb) > (6 - i) else 1
                ins = []
                if nb < len(bigs): pre += bigs[nb]; nb += 1
                if take == 2 and nb < len(bigs):
                    seq = seq[:6] + bigs[nb] + seq[6:]; nb += 1
            if smalls and i >= 5:
                k0, k1 = {5: (0, 2), 6: (2, 6), 7: (6, 8)}[i]
                sm = smalls[k0:k1]
                if i == 5: seq = seq[:4] + [W("v")] + zipl(sm, seq[4:])
                elif i == 6: seq = zipl(sm, seq)
                else: seq = zipl(sm, seq)
            out += pre + seq
        assert nb == len(bigs)
        return out
    def body(p, kind):
        q = 1-p; n = f"{kind}{p}"
        o0 = [f"K2_BODY{n}:"] + slot(p, 0, kind)
        o1 = [f"K2_MID{n}:"] + (ld_xr() if kind == "L" else []) + slot(p, 1, kind)
        if kind == "F":
            if p == 1: o1 += [f"v_add_u32 v{vA1}, 256, v{vA1}", f"v_add_u32 v{vA2}, 256, v{vA2}"]
            o1 += [f"s_sub_u32 s{scount}, s{scount}, 1", f"s_cmp_eq_u32 s{scount}, 2", f"s_cbranch_scc1 K2_BODYP{q}"]
        return o0, o1
    def entry(kind):
        more = kind != "L"
        o = [rd_l2(vOa, 0)]
        if more: o += [rd_l2(vEa, 128)] + [rd_addr(128, j) for j in range(4)]
        o += [W("l")] + oh_idx(0) + [W("v"), W("l"), "@STAMP", mE(0, 0), mA(0, 0), mE(0, 1), mA(0, 1)]
        if more: o += [rd_l2(vOa, 128)] + ld_ea(1) + [rd_l2(vEa, 256)] + ld_blk(1, 0)
        else: o += ["s_nop 7"]
        o += [W("v")] + mP(0, 0)
        if more: o += [W("l")] + oh_idx(1)
        if kind == "F": o += ld_ea(0)
        o += ["s_nop 1"]
        for i in range(8):
            v_, l_ = idx_pair(0, 0, i)
            o += [W("l")] + ([v_[0], v_[1], "s_nop 0"] + v_[2:] if i < NT else v_) + l_
            if more:
                o += ld_raw(1, 1, 2*i) + ld_raw(1, 1, 2*i+1)
                if i & 1: o.append(rd_addr(256, i >> 1))
            if i == 3: o += [W("v")] + mP(0, 1)
        return o + slot(0, 0, kind, acc=False) + [f"s_branch K2_MID{kind}0"]
    def drain(p): return ["s_nop 1"] + [mG(p, 1, j) for j in range(4)]
    fill0 = [rd_l2(vEa, 0)] + [rd_addr(0, j) for j in range(4)] + ["s_waitcnt lgkmcnt(4)"] + ld_ea(0) + ["s_waitcnt lgkmcnt(0)"] + ld_blk(0, 0) + ld_blk(0, 1)
    B = {(p, k): body(p, k) for p in range(2) for k in "FPL"}
    EN = {k: entry(k) for k in "FPL"}
    def trace(cnt):
        kinds = ["F"]*(cnt-2) + ["P", "L"][-min(cnt, 2):]
        tr = fill0 + EN[kinds[0]] + B[(0, kinds[0])][1]
        for t in range(1, cnt): tr += B[(t & 1, kinds[t])][0] + B[(t & 1, kinds[t])][1]
        return tr + drain((cnt-1) & 1)
    nost = lambda l: [x for x in l if x != "@STAMP"]
    need = asmsim.solve_waits([nost(trace(c)) for c in range(1, 9)])
    for c in range(1, 9): asmsim.check_hazards(asmsim.apply_waits(nost(trace(c)), need), f"count {c}")
    def emit(l):
        for x in asmsim.apply_waits(l, need):
            if x == "@STAMP":
                stamp(a, 5); stamp(a, 5, "3"); stamp(a, 7, "4")
                if OPT.get("prof") == "3": a(f"s_memtime s[86:87]\ns_mov_b32 s90, s{scount}\ns_getreg_b32 s92, hwreg(HW_REG_HW_ID)")
            else: a(x)
    def fill(n):
        a(f"s_cmp_eq_u32 s{scount}, 0\ns_cbranch_scc0 K2_FILL{n}\ns_waitcnt vmcnt(0)\ns_branch K2_FILLED{n}\nK2_FILL{n}:")
        a.ext(fill0)
        a(f"K2_FILLED{n}:")
    XF = G
    accs = [[raw(1,0)+8*nb, raw(1,0)+8*nb+4] for nb in range(3)]
    assert XL % 256 == 0
    def gemm(n, w_wt, w_all):
        a(f"""
        v_and_b32 v{vt}, 15, v0
        v_bfe_u32 v{vt+1}, v0, 4, 2
        v_xor_b32 v{vt+2}, v{vt}, v{vt+1}
        v_lshlrev_b32 v{vt+2}, 4, v{vt+2}
        v_lshl_add_u32 v{vt+2}, v{vt}, 8, v{vt+2}
        """)
        for s in range(4):
            if s: a(f"v_xor_b32 v{vt+3}, {64*s}, v{vt+2}")
            for nb in range(3):
                a(f"ds_read_b128 {vr(XF+16*nb+4*s,4)}, v{vt+3 if s else vt+2} offset:{XL+4096*nb}")
        a(f"v_mul_u32_u24 v{vt}, {ROWP}, v{vt}\ns_waitcnt vmcnt({w_wt})")
        stamp(a, 3, "4")
        for s in range(4):
            a(f"s_waitcnt lgkmcnt({9-3*s})")
            for nb in range(3):
                for ab in range(2):
                    d = vr(accs[nb][ab], 4)
                    a(f"v_mfma_f32_16x16x32_bf16 {d}, {vr(WT+16*ab+4*s,4)}, {vr(XF+16*nb+4*s,4)}, {'0' if s == 0 else d}")
        a(f"""
        s_cmp_lt_u32 s{srt}, 4
        s_cbranch_scc0 K2_GU{n}
        s_lshr_b32 s{st0}, s{srt}, 1
        s_lshl_b32 s{st0}, s{st0}, 7
        s_and_b32 s{st1}, s{srt}, 1
        s_lshl_b32 s{st1}, s{st1}, 5
        s_add_u32 s{st0}, s{st0}, s{st1}
        v_lshl_add_u32 v{vt}, v{vt+1}, 3, v{vt}
        v_add_u32 v{vt}, s{st0}, v{vt}
        """)
        for nb in range(3):
            al, be = accs[nb]
            for i in range(4): a(f"v_mul_f32 v{al+i}, s{cnl2e}, v{al+i}\nv_mul_f32 v{be+i}, s{cnl2e}, v{be+i}")
            a(f"""
            v_cvt_pk_bf16_f32 v{XF+4*nb}, v{al}, v{al+2}
            v_cvt_pk_bf16_f32 v{XF+4*nb+1}, v{be}, v{be+2}
            v_cvt_pk_bf16_f32 v{XF+4*nb+2}, v{al+1}, v{al+3}
            v_cvt_pk_bf16_f32 v{XF+4*nb+3}, v{be+1}, v{be+3}
            ds_write_b64 v{vt}, {vr(XF+4*nb,2)} offset:{APL+16*ROWP*nb}
            ds_write_b64 v{vt}, {vr(XF+4*nb+2,2)} offset:{APL+16*ROWP*nb+64}
            """)
        a(f"""
        s_branch K2_GD{n}
        K2_GU{n}:
        s_and_b32 s{st0}, s{srt}, 3
        s_lshl_b32 s{st0}, s{st0}, 6
        v_lshl_add_u32 v{vt}, v{vt+1}, 4, v{vt}
        v_add_u32 v{vt}, s{st0}, v{vt}
        s_nop 1
        """)
        for nb in range(3):
            al, be = accs[nb]
            a(f"""
            v_cvt_pk_bf16_f32 v{XF+4*nb}, v{al}, v{al+1}
            v_cvt_pk_bf16_f32 v{XF+4*nb+1}, v{al+2}, v{al+3}
            v_cvt_pk_bf16_f32 v{XF+4*nb+2}, v{be}, v{be+1}
            v_cvt_pk_bf16_f32 v{XF+4*nb+3}, v{be+2}, v{be+3}
            ds_write_b128 v{vt}, {vr(XF+4*nb,4)} offset:{UL+16*ROWP*nb}
            """)
        a(f"""
        K2_GD{n}:
        v_bfe_u32 v{vt}, v0, 2, 2
        v_lshrrev_b32 v{vt+1}, 1, v{vH16}
        v_add_u32 v{vt}, v{vt}, v{vt+1}
        v_mul_u32_u24 v{vt}, {ROWP}, v{vt}
        v_bfe_u32 v{vt+2}, v0, 4, 1
        v_lshl_add_u32 v{vt}, v{vt+2}, 5, v{vt}
        v_and_b32 v{vt+2}, 3, v0
        v_lshl_add_u32 v{vt}, v{vt+2}, 3, v{vt}
        s_mul_i32 s{st0}, s{sg}, {GN*ROWP}
        s_lshl_b32 s{st1}, s{sfh}, 7
        s_add_u32 s{st0}, s{st0}, s{st1}
        v_add_u32 v{vt}, s{st0}, v{vt}
        v_mul_u32_u24 v{vt+1}, {ROWP//2}, v{vt+1}
        v_and_b32 v{vt+2}, 31, v0
        v_lshl_add_u32 v{vt+1}, v{vt+2}, 2, v{vt+1}
        v_add_u32 v{vt+1}, s{st0}, v{vt+1}
        s_mov_b32 s{sinit}, 1
        """)
        for r in range(32): a(f"v_mov_b32 v{ACC+r}, 0")
        stamp(a, 4, "4")
        a(f"s_waitcnt vmcnt({w_all}) lgkmcnt(0)")
        stamp(a, 5, "4")
        a("s_barrier")
        stamp(a, 6, "4")
        a(f"""
        ds_read_b64_tr_b16 {vr(AP,2)}, v{vt} offset:{APL}
        ds_read_b64_tr_b16 {vr(AP+2,2)}, v{vt} offset:{APL+4*ROWP}
        ds_read_b64_tr_b16 {vr(AP+4,2)}, v{vt} offset:{APL+64}
        ds_read_b64_tr_b16 {vr(AP+6,2)}, v{vt} offset:{APL+4*ROWP+64}
        """)
        for r in range(6): a(f"ds_read_b32 v{UR+r}, v{vt+1} offset:{UL+ROWP*rowoff(r)}")
        a(f"""
        s_waitcnt lgkmcnt(6)
        v_and_b32 v{AP+3}, v{AP+3}, v{vM15}
        v_and_b32 v{AP+7}, v{AP+7}, v{vM15}
        """)
    a(f"s_cmp_lg_u32 s{sfh}, 0\ns_cbranch_scc1 K2_LATE\nK2_EARLY:")
    fill("A")
    stamp(a, 4); stamp(a, 2, "4")
    a(f"s_cmp_lg_u32 s{sinit}, 0\ns_cbranch_scc1 K2_GO")
    gemm("A", 43, 33)
    a("s_branch K2_GO\nK2_LATE:")
    stamp(a, 2, "4")
    gemm("B", 10, 0)
    fill("B")
    stamp(a, 4)
    a(f"""
    K2_GO:
    s_cmp_eq_u32 s{scount}, 0
    s_cbranch_scc1 K2_EMPTY
    s_cmp_gt_u32 s{scount}, 2
    s_cbranch_scc1 K2_ENTF
    s_cmp_eq_u32 s{scount}, 2
    s_cbranch_scc1 K2_ENTP
    """)
    emit(EN["L"]); a("K2_ENTP:"); emit(EN["P"]); a("K2_ENTF:"); emit(EN["F"])
    a(".p2align 6")
    for p in range(2): emit(B[(p, "F")][0] + B[(p, "F")][1])
    a("s_branch K2_BODYF0")
    a("K2_EMPTY:"); a.ext(ld_xr()); a("s_branch K2_DONE")
    for p in range(2):
        emit(B[(p, "P")][0] + B[(p, "P")][1] + B[(1-p, "L")][0] + B[(1-p, "L")][1] + drain(1-p))
        if p == 0: a("s_branch K2_DONE")
    a(f"""
    K2_DONE:
    s_cmp_lg_u32 s{sslow}, 0
    s_cbranch_scc1 K2_ROUND
    K2_EPI:
    s_waitcnt vmcnt(0) lgkmcnt(0)
    """)
    stamp(a, 6); stamp(a, 6, "3")
    if OPT.get("prof") == "3": a("s_memtime s[88:89]")
    T0 = G
    for b in range(2):
        for r in range(6):
            a(f"v_add_f32 v{ACC+16*b+r}, 0x358637bd, v{ACC+16*b+r}")
        for r in range(6):
            a(f"v_rcp_f32 v{ACC+16*b+r}, v{ACC+16*b+r}")
        for r in range(6):
            u, x = T0+12*b+r, T0+12*b+6+r
            if b == 0: a(f"v_lshlrev_b32 v{u}, 16, v{UR+r}\nv_lshlrev_b32 v{x}, 16, v{XR+r}")
            else: a(f"v_and_b32 v{u}, 0xffff0000, v{UR+r}\nv_and_b32 v{x}, 0xffff0000, v{XR+r}")
        for r in range(6):
            u, x = T0+12*b+r, T0+12*b+6+r
            a(f"v_fmac_f32 v{u}, v{ACC+16*b+8+r}, v{ACC+16*b+r}\nv_max_f32 v{u}, 0, v{u}\nv_add_f32 v{u}, v{u}, v{x}")
    for r in range(6):
        a(f"v_cvt_pk_bf16_f32 v{SP+r}, v{T0+r}, v{T0+12+r}")
        a(f"buffer_store_dword v{SP+r}, v{vO if r < 4 else vO2}, {sr(sO,4)}, 0 offen offset:{256*rowoff(r)}")
    stamp(a, 7)
    stamp_out(a, 1, 14, sw, 2)
    a("K2_END:\ns_endpgm")

    a("K2_SLOW:")
    srd(a, sS, 8, None, E*4)
    srd(a, sD, 10, None, E*4)
    a(f"""
    s_mov_b32 s{sslow}, 1
    s_mov_b32 s{cm40}, {-BN}
    s_mov_b32 s{cm10}, {-GN}
    """)
    for k in range(4): lut_dma(k)
    a(f"""
    K2_ROUND:
    s_cmp_ge_u32 s{sround}, {E//512}
    s_cbranch_scc1 K2_EPI
    s_lshl_b32 s{st0}, s{sround}, 9
    s_add_u32 s{sround}, s{sround}, 1
    v_add_u32 v{EOFF}, s{st0}, v0
    v_lshlrev_b32 v{vt}, 2, v{EOFF}
    buffer_load_dword v{REC}, v{vt}, {sr(sD,4)}, 0 offen
    buffer_load_dword v{REC+1}, v{vt}, {sr(sS,4)}, 0 offen
    v_lshlrev_b32 v{EOFF}, 5, v{EOFF}
    v_and_b32 v{vt}, 63, v0
    v_lshlrev_b32 v{vt}, 2, v{vt}
    v_mov_b32 v{vt+1}, 0
    s_waitcnt lgkmcnt(0)
    s_barrier
    ds_write_b32 v{vt}, v{vt+1} offset:{CNT}
    v_mov_b32 v{vt+3}, 4
    s_waitcnt vmcnt(0) lgkmcnt(0)
    s_barrier
    """)
    rec_fields(a, REC, REC+2, vt, cm40, cm10)
    a(f"""
    v_cmp_eq_u32 vcc, s2, v{REC+2}
    v_lshl_or_b32 v{REC}, v{REC+1}, 16, v{REC}
    {caddr(0)}
    s_mov_b64 s[78:79], vcc
    s_mov_b64 exec, vcc
    ds_add_rtn_u32 v{RANK}, v{CADDR}, v{vt+3} offset:{CNT}
    s_mov_b64 exec, -1
    s_waitcnt lgkmcnt(0)
    s_barrier
    """)
    scan(False)
    a(f"""
    s_mov_b64 exec, s[78:79]
    ds_read_b32 v{STV}, v{CADDR} offset:{START}
    s_waitcnt lgkmcnt(0)
    """)
    place(0)
    a(f"""
    s_mov_b64 exec, -1
    """)
    lane_setup()
    a(f"""
    s_waitcnt lgkmcnt(0)
    s_barrier
    s_branch K2_EARLY
    K2_CODE_END:
    """)
    return a.text(), kd("k2_kernel", 254, 102)

KE_PROF = f"""
    s_memrealtime s[8:9]
    s_load_dwordx2 s[4:5], s[0:1], 88
    s_waitcnt lgkmcnt(0)
    s_add_u32 s4, s4, {PROF_OFF + 0x200000}
    s_addc_u32 s5, s5, 0
    s_mov_b32 s6, 4
    s_mov_b32 s7, 0x20000
    v_mov_b32 v1, s8
    v_lshlrev_b32 v0, 2, v0
    buffer_store_dword v1, v0, s[4:7], 0 offen
"""
def gen_kr():
    a = Asm()
    a(f"""
    kr_kernel:
    s_cmp_ge_u32 s2, 1
    s_cbranch_scc1 KR_END
    s_load_dwordx4 s[4:7], s[0:1], 80
    s_waitcnt lgkmcnt(0)
    s_add_u32 s8, s6, {PROF_OFF}
    s_addc_u32 s9, s7, 0
    s_mov_b32 s10, 0x200000
    s_mov_b32 s11, 0x20000
    s_mov_b32 s6, 256
    s_mov_b32 s7, 0x20000
    v_cmp_gt_u32 vcc, 250, v0
    s_and_saveexec_b64 s[12:13], vcc
    v_lshlrev_b32 v1, 10, v0
    v_mov_b32 v3, 0
    """)
    sel = [(0, 16, 0, 1), (0, 16, 0, 0), (0, 16, 2, 0), (0, 16, 3, 0), (0, 16, 5, 0), (0, 16, 8, 0),
           (1, 8, 0, 1), (1, 8, 0, 0), (1, 8, 2, 0), (1, 8, 3, 0), (1, 8, 5, 1), (1, 8, 5, 0), (1, 8, 6, 1), (1, 8, 6, 0), (1, 8, 8, 0)]
    for j, (kn, nw, st, mn) in enumerate(sel):
        a(f"s_mov_b32 s14, {kn*0x100000}")
        for w in range(nw): a(f"buffer_load_dword v{10+w}, v1, s[8:11], s14 offen offset:{64*w+4*st}")
        a("s_waitcnt vmcnt(0)")
        if mn:
            for w in range(nw): a(f"v_not_b32 v{10+w}, v{10+w}")
        for w in range(1, nw): a(f"v_max_u32 v10, v10, v{10+w}")
        a(f"buffer_atomic_umax v10, v3, s[4:7], 0 offen offset:{4*j}\ns_waitcnt vmcnt(0)")
    a("KR_END:\ns_endpgm")
    return a.text()

def main():
    k1, d1 = gen_k1(); k2, d2 = gen_k2()
    ref = open("standalone__edge_featured_mpnn_gatedgcn__graph.s.ref").read().split("\n")
    out = "\n".join(ref[:13]) + "\n"
    for ch in OPT.get("list", "12"):
        if ch == "1": out += f"; @launch kernel=k1_kernel grid=({2*NCH},1,1) block=(1024,1,1) lds={K1_LDS}\n"
        if ch == "2": out += f"; @launch kernel=k2_kernel grid=({NBIN},1,1) block=(512,1,1) lds={K2_LDS}\n"
        if ch == "r": out += "; @launch kernel=kr_kernel grid=(1,1,1) block=(256,1,1) lds=0\n"
        if ch == "e": out += "; @launch kernel=ke_kernel grid=(1,1,1) block=(64,1,1) lds=0\n"
    out += '.amdgcn_target "amdgcn-amd-amdhsa--gfx950"\n.text\n'
    for n, k in (("k1_kernel", k1), ("k2_kernel", k2)):
        out += f".globl {n}\n.p2align 8\n.type {n},@function\n" + k
    if "e" in OPT.get("list", ""): out += ".globl ke_kernel\n.p2align 8\n.type ke_kernel,@function\nke_kernel:\n" + (KE_PROF if OPT.get("prof") else "") + "    s_endpgm\n"
    if "r" in OPT.get("list", ""): out += ".globl kr_kernel\n.p2align 8\n.type kr_kernel,@function\n" + gen_kr()
    out += '.section .rodata,"a"\n.p2align 6\n' + d1.lstrip("\n") + '.p2align 6\n' + d2.lstrip("\n")
    if "e" in OPT.get("list", ""): out += '.p2align 6\n' + kd("ke_kernel", 8, 16).lstrip("\n")
    if "r" in OPT.get("list", ""): out += '.p2align 6\n' + kd("kr_kernel", 32, 32).lstrip("\n")
    open(sys.argv[1], "w").write(out)

if __name__ == "__main__":
    main()
```

```python
import struct, sys
import asmsim

N = 10000; E = 320000
NCH = 128; CS = 2500
NBIN = 250; BN = 40; GN = 10
CAP = 32
TS = int(([a for a in sys.argv if a.startswith('ts=')] or ['ts=512'])[0][3:])
T_OFF = 0x1000000
REC_OFF = 0x700000
WT_OFF = 0xB00000
LUT_OFF = 0xB20000
PROF_OFF = 0xF000000
NL2E = struct.unpack("<I", struct.pack("<f", -1.4426950408889634))[0]

def bf(x): return struct.unpack("<I", struct.pack("<f", x))[0] >> 16

OPT = dict(st_r="sc1", st_t="sc1")
for a in sys.argv[2:]:
    k, v = a.split("=", 1); OPT[k] = v

class Asm:
    def __init__(self): self.l = []
    def __call__(self, s):
        for x in s.strip("\n").split("\n"):
            x = x.strip()
            if not x: continue
            if x.startswith(";"): x = "s_nop 0"
            self.l.append(x if x.endswith(":") else "    " + x)
    def ext(self, lst):
        for x in lst: self(x)
    def text(self): return "\n".join(self.l) + "\n"

def stamp(a, i, lvl="1"):
    if OPT.get("prof") and (i in (0, 8) or OPT["prof"] == lvl): a(f"s_memrealtime s[{84+2*i}:{85+2*i}]")
def stamp_out(a, kern, wsreg, sw, vtmp):
    if not OPT.get("prof"): return
    a("s_waitcnt vmcnt(0)")
    stamp(a, 8)
    a(f"""
    s_lshl_b32 s4, s2, 4
    s_add_u32 s4, s4, s{sw}
    s_lshl_b32 s4, s4, 6
    s_add_u32 s4, s4, {PROF_OFF + kern*0x100000}
    s_add_u32 s4, s{wsreg}, s4
    s_addc_u32 s5, s{wsreg+1}, 0
    s_mov_b32 s6, 64
    s_mov_b32 s7, 0x20000
    s_waitcnt lgkmcnt(0)
    """)
    for i in range(9): a(f"v_writelane_b32 v{vtmp}, s{84+2*i}, {i}")
    a(f"""
    v_mbcnt_lo_u32_b32 v{vtmp+1}, -1, 0
    v_mbcnt_hi_u32_b32 v{vtmp+1}, -1, v{vtmp+1}
    v_lshlrev_b32 v{vtmp+1}, 2, v{vtmp+1}
    buffer_store_dword v{vtmp}, v{vtmp+1}, s[4:7], 0 offen
    """)

def vr(b, n): return f"v[{b}:{b+n-1}]"
def sr(b, n): return f"s[{b}:{b+n-1}]"

def srd(a, d, base, add=None, size=None, w3="0x20000", hi_or=None):
    if add is None:
        a(f"s_mov_b32 s{d}, s{base}\ns_mov_b32 s{d+1}, s{base+1}")
    else:
        a(f"s_add_u32 s{d}, s{base}, {add}\ns_addc_u32 s{d+1}, s{base+1}, 0")
    if hi_or: a(f"s_or_b32 s{d+1}, s{d+1}, {hi_or}")
    a(f"s_mov_b32 s{d+2}, {size}\ns_mov_b32 s{d+3}, {w3}")

def kd(name, vgpr, sgpr):
    return f"""
.amdhsa_kernel {name}
  .amdhsa_next_free_vgpr {vgpr}
  .amdhsa_next_free_sgpr {sgpr}
  .amdhsa_accum_offset {(vgpr+3)//4*4}
  .amdhsa_group_segment_fixed_size 0
  .amdhsa_kernarg_size 96
  .amdhsa_user_sgpr_count 2
  .amdhsa_user_sgpr_kernarg_segment_ptr 1
  .amdhsa_system_sgpr_workgroup_id_x 1
.end_amdhsa_kernel
"""

def rec_fields(a, vd, vbin, vtmp, sm40, sm10):
    a(f"""
    v_mul_u32_u24 v{vbin}, 52429, v{vd}
    v_lshrrev_b32 v{vbin}, 21, v{vbin}
    v_mad_i32_i24 v{vd}, v{vbin}, s{sm40}, v{vd}
    v_mul_u32_u24 v{vtmp}, 26, v{vd}
    v_lshrrev_b32 v{vtmp}, 8, v{vtmp}
    v_mad_i32_i24 v{vd}, v{vtmp}, s{sm10}, v{vd}
    v_lshl_or_b32 v{vd}, v{vtmp}, 30, v{vd}
    """)

K1_CNT = 0; K1_STG = 1024; K1_X = 65536; K1_LDS = K1_X + 20480
def gen_k1():
    a = Asm()
    sS, sD, sW1, sW2, sX, sR, sT = 24, 28, 32, 36, 40, 44, 48
    sw, st0, st1, st2, sng, sfb, stask = 52, 53, 54, 55, 56, 57, 58
    c4096, c8192, cm40, cm10, cnl2e, csign, cmag, ctso, cp0 = 59, 60, 61, 62, 63, 64, 65, 66, 67
    a("k1_kernel:")
    a(f"s_cmp_ge_u32 s2, {2*NCH}\ns_cbranch_scc1 K1_END")
    stamp(a, 0)
    a(f"""
    s_load_dwordx16 s[4:19], s[0:1], 0
    s_load_dwordx2 s[20:21], s[0:1], 64
    s_load_dwordx2 s[22:23], s[0:1], 88
    v_lshrrev_b32 v2, 6, v0
    v_lshlrev_b32 v1, 2, v0
    v_readfirstlane_b32 s{sw}, v2
    s_mov_b32 s{c4096}, 4096
    s_mov_b32 s{c8192}, 8192
    s_cmp_ge_u32 s2, {NCH}
    s_cbranch_scc1 K1_GEMM
    """)
    vD, vS, vB, vSL, vt = 2, 5, 8, 11, 16
    a(f"s_mul_i32 s{st1}, s2, {CS*4}\ns_waitcnt lgkmcnt(0)")
    srd(a, sD, 10, f"s{st1}", CS*4)
    srd(a, sS, 8, f"s{st1}", CS*4)
    for r, so in enumerate(("0", f"s{c4096}", f"s{c8192}")):
        a(f"buffer_load_dword v{vD+r}, v1, {sr(sD,4)}, {so} offen")
        a(f"buffer_load_dword v{vS+r}, v1, {sr(sS,4)}, {so} offen")
    a(f"""
    v_mov_b32 v{vt}, -1
    v_mov_b32 v{vt+1}, -1
    v_mov_b32 v{vt+2}, -1
    v_mov_b32 v{vt+3}, -1
    v_lshlrev_b32 v{vt+4}, 4, v0
    v_mov_b32 v{vt+5}, 0
    v_and_b32 v{vt+6}, 0x3fc, v1
    ds_write_b128 v{vt+4}, {vr(vt,4)} offset:{K1_STG}
    ds_write_b128 v{vt+4}, {vr(vt,4)} offset:{K1_STG+16384}
    ds_write_b32 v{vt+6}, v{vt+5} offset:{K1_CNT}
    s_lshl_b32 s{st0}, s2, 7
    s_add_u32 s{st0}, s{st0}, {REC_OFF}
    """)
    srd(a, sR, 22, f"s{st0}", NBIN*NCH*128)
    a(f"s_lshl_b32 s{st0}, s2, 9\ns_add_u32 s{st1}, s{st0}, {LUT_OFF}")
    srd(a, sT, 22, f"s{st1}", 512)
    a(f"""
    v_add_u32 v40, s{st0}, v1
    v_and_b32 v41, 0x7fff, v40
    v_cmp_ne_u32 vcc, 0x7c00, v41
    v_or_b32 v41, 3, v40
    s_nop 0
    v_addc_co_u32 v40, vcc, 0, v40, vcc
    v_cvt_f32_f16 v41, v41
    v_cvt_f32_f16 v40, v40
    v_exp_f32 v41, v41
    v_exp_f32 v40, v40
    v_add_f32 v41, 1.0, v41
    v_add_f32 v40, 1.0, v40
    v_rcp_f32 v41, v41
    v_rcp_f32 v40, v40
    s_nop 0
    v_cvt_pk_bf16_f32 v40, v40, v41
    buffer_store_dword v40, v1, {sr(sT,4)}, 0 offen {OPT['st_r']}
    """)
    if OPT.get("pf", "0") == "1":
        a(f"""
        s_getpc_b64 {sr(sW1,2)}
        K1_PC:
        s_add_u32 s{sW1}, s{sW1}, k2_kernel-K1_PC
        s_addc_u32 s{sW1+1}, s{sW1+1}, 0
        s_mov_b32 s{sW1+2}, K2_CODE_END-k2_kernel
        s_mov_b32 s{sW1+3}, 0x20000
        v_lshlrev_b32 v44, 5, v0
        buffer_load_dword v45, v44, {sr(sW1,4)}, 0 offen
        """)
    a(f"""
    s_mov_b32 s{cm40}, {-BN}
    s_mov_b32 s{cm10}, {-GN}
    v_mov_b32 v{vt+5}, 1
    v_cmp_gt_u32 vcc, {CS-2048}, v0
    s_mov_b64 s[100:101], vcc
    v_lshrrev_b32 v{vt+7}, 3, v0
    v_and_b32 v{vt+8}, 7, v0
    v_lshlrev_b32 v{vt+9}, 14, v{vt+7}
    v_lshl_add_u32 v{vt+9}, v{vt+8}, 4, v{vt+9}
    v_lshlrev_b32 v{vt+7}, 2, v{vt+7}
    v_cmp_eq_u32 s[82:83], 7, v{vt+8}
    s_mov_b32 s{st2}, {128*16384}
    s_waitcnt lgkmcnt(0)
    s_barrier
    """)
    stamp(a, 1)
    for r in range(3):
        a(f"s_waitcnt vmcnt({4-2*r + 1 + (OPT.get('pf', '0') == '1')})")
        if r == 0: stamp(a, 2)
        rec_fields(a, vD+r, vB+r, vt, cm40, cm10)
        a(f"v_lshlrev_b32 v{vt}, 2, v{vB+r}")
        if r == 2: a("s_mov_b64 exec, s[100:101]")
        a(f"ds_add_rtn_u32 v{vSL+r}, v{vt}, v{vt+5} offset:{K1_CNT}")
        if r == 2: a("s_mov_b64 exec, -1")
        a(f"""
        v_lshl_or_b32 v{vD+r}, v{vS+r}, 16, v{vD+r}
        v_add_u32 v{vS+r}, {1024*r}, v0
        v_lshl_or_b32 v{vD+r}, v{vS+r}, 4, v{vD+r}
        v_lshlrev_b32 v{vB+r}, 7, v{vB+r}
        """)
    for r in range(3):
        a(f"s_waitcnt lgkmcnt({2-r})" if r == 0 else f"s_waitcnt lgkmcnt({2})" if r == 1 else "s_waitcnt lgkmcnt(2)")
        if r == 2: a("s_mov_b64 exec, s[100:101]")
        a(f"""
        v_lshl_add_u32 v{vB+r}, v{vSL+r}, 2, v{vB+r}
        v_cmpx_gt_u32 vcc, {CAP}, v{vSL+r}
        ds_write_b32 v{vB+r}, v{vD+r} offset:{K1_STG}
        s_mov_b64 exec, -1
        """)
    a("s_waitcnt lgkmcnt(0)")
    stamp(a, 3)
    a("s_barrier")
    stamp(a, 4)
    a(f"""
    ds_read_b128 {vr(vt+12,4)}, v{vt+4} offset:{K1_STG}
    ds_read_b32 v{vt}, v{vt+7} offset:{K1_CNT}
    ds_read_b128 {vr(vt+16,4)}, v{vt+4} offset:{K1_STG+16384}
    ds_read_b32 v{vt+1}, v{vt+7} offset:{K1_CNT+512}
    v_mov_b32 v{vt+2}, -2
    """)
    for k in range(2):
        a(f"""
        s_waitcnt lgkmcnt({2-2*k})
        v_cmp_lt_u32 vcc, {CAP}, v{vt+k}
        s_and_b64 vcc, vcc, s[82:83]
        s_nop 1
        v_cndmask_b32 v{vt+15+4*k}, v{vt+15+4*k}, v{vt+2}, vcc
        buffer_store_dwordx4 {vr(vt+12+4*k,4)}, v{vt+9}, {sr(sR,4)}, {'0' if k == 0 else f's{st2}'} offen {OPT['st_r']}
        """)
    stamp(a, 5)
    if OPT.get("pe", "1") == "1":
        a("s_barrier")
        a(f"s_mul_i32 s{st0}, s2, {CS*32}")
        srd(a, sW2, 6, f"s{st0}", CS*32)
        a(f"v_lshlrev_b32 v46, 7, v0\nbuffer_load_dword v47, v46, {sr(sW2,4)}, 0 offen {OPT.get('pef', '')}")
    stamp(a, 6); stamp(a, 7)
    stamp_out(a, 0, 22, sw, 2)
    a("s_endpgm")
    vW, vX, vA, vt = 32, 96, 112, 2
    def W(m, ab, s): return vW + 32*m + 16*ab + 4*s
    a(f"""
    K1_GEMM:
    s_sub_u32 s{stask}, s2, {NCH}
    s_and_b32 s{sfb}, s{sw}, 3
    s_lshr_b32 s{sng}, s{sw}, 2
    v_and_b32 v{vt}, 63, v0
    v_lshrrev_b32 v{vt+1}, 4, v{vt}
    v_and_b32 v{vt+2}, 15, v0
    s_lshl_b32 s{st0}, s{sfb}, 2
    v_add_u32 v{vt+3}, s{st0}, v{vt+1}
    v_xor_b32 v{vt+3}, v{vt+3}, v{vt+2}
    v_lshlrev_b32 v{vt+3}, 4, v{vt+3}
    v_lshl_add_u32 v{vt+3}, v{vt+1}, 8, v{vt+3}
    v_lshlrev_b32 v{vt+4}, 2, v{vt+1}
    v_xor_b32 v{vt+4}, v{vt+4}, v{vt+2}
    v_lshlrev_b32 v{vt+4}, 4, v{vt+4}
    v_lshl_add_u32 v{vt+4}, v{vt+1}, 8, v{vt+4}
    s_mul_i32 s{st0}, s{stask}, 20480
    s_cmp_lt_u32 s{stask}, 125
    s_cselect_b32 s{st0}, s{st0}, 0
    s_cselect_b32 s{st2}, 20480, 0
    s_waitcnt lgkmcnt(0)
    """)
    a(f"""
    s_cmp_ge_u32 s{stask}, 126
    s_cbranch_scc1 K1_WC
    s_add_u32 s{sX}, s4, s{st0}
    s_addc_u32 s{sX+1}, s5, 0
    s_mov_b32 s{sX+2}, s{st2}
    s_mov_b32 s{sX+3}, 0x20000
    s_lshl_b32 s{st1}, s{sw}, 10
    s_add_u32 m0, s{st1}, {K1_X}
    s_cmp_eq_u32 s{stask}, 125
    s_cselect_b64 {sr(sW1,2)}, s[12:13], s[14:15]
    s_cselect_b64 {sr(sW2,2)}, s[18:19], s[20:21]
    """)
    if OPT.get("touch", "0") == "1":
        a(f"""
        s_bitcmp1_b32 s2, 3
        s_cselect_b64 {sr(sS,2)}, {sr(sW1,2)}, {sr(sW2,2)}
        s_bitcmp1_b32 s2, 4
        s_cselect_b32 s{sS+2}, 4, 0
        s_mov_b32 s{sS+3}, 0x20000
        buffer_load_dword v30, v1, {sr(sS,4)}, 0 offen
        """)
    a(f"""
    buffer_load_dwordx4 v{vt+3}, {sr(sX,4)}, s{st1} offen lds
    s_cmp_lt_u32 s{sw}, 4
    s_cbranch_scc0 K1_X1
    s_add_u32 m0, s{st1}, {K1_X+16384}
    s_add_u32 s{st1}, s{st1}, 16384
    buffer_load_dwordx4 v{vt+3}, {sr(sX,4)}, s{st1} offen lds
    K1_X1:
    s_mov_b32 s{sW1+2}, 32768
    s_mov_b32 s{sW1+3}, 0x20000
    s_mov_b32 s{sW2+2}, 32768
    s_mov_b32 s{sW2+3}, 0x20000
    s_lshr_b32 s{st1}, s2, 3
    s_add_u32 s{st1}, s{st1}, s{sw}
    s_and_b32 s{st1}, s{st1}, 15
    s_lshl_b32 s{st1}, s{st1}, 11
    s_mov_b32 m0, s{st1}
    s_mul_i32 s{st0}, s{stask}, {80*TS}
    buffer_load_dwordx4 v{vt+4}, {sr(sW1,4)}, s{st1} offen lds
    buffer_load_dwordx4 v{vt+4}, {sr(sW1,4)}, s{st1} offen offset:1024 lds
    s_add_u32 m0, s{st1}, 32768
    s_add_u32 s{st0}, s{st0}, {T_OFF}
    buffer_load_dwordx4 v{vt+4}, {sr(sW2,4)}, s{st1} offen lds
    buffer_load_dwordx4 v{vt+4}, {sr(sW2,4)}, s{st1} offen offset:1024 lds
    """)
    srd(a, sT, 22, f"s{st0}", 80*TS)
    a(f"""
    v_bfe_u32 v{vt+5}, v0, 2, 2
    v_and_b32 v{vt+6}, 3, v0
    s_lshl_b32 s{st0}, s{sfb}, 2
    v_add_u32 v{vt+6}, s{st0}, v{vt+6}
    v_lshlrev_b32 v{vt+7}, 2, v{vt+5}
    v_xor_b32 v{vt+6}, v{vt+6}, v{vt+7}
    v_lshl_add_u32 v{vt+5}, v{vt+1}, 3, v{vt+5}
    v_lshlrev_b32 v{vt+5}, 8, v{vt+5}
    v_lshl_add_u32 v10, v{vt+6}, 4, v{vt+5}
    v_xor_b32 v11, v{vt+1}, v{vt+2}
    v_lshlrev_b32 v11, 4, v11
    v_lshl_add_u32 v11, v{vt+2}, 8, v11
    s_lshl_b32 s{st0}, s{sng}, 12
    s_add_u32 s{st0}, s{st0}, {K1_X}
    v_add_u32 v11, s{st0}, v11
    v_mul_u32_u24 v12, {TS}, v{vt+2}
    v_lshl_add_u32 v12, v{vt+1}, 4, v12
    s_mul_i32 s{st0}, s{sng}, {16*TS}
    s_lshr_b32 s{st1}, s{sfb}, 1
    s_lshl_b32 s{st1}, s{st1}, 8
    s_add_u32 s{st0}, s{st0}, s{st1}
    s_and_b32 s{st1}, s{sfb}, 1
    s_lshl_b32 s{st1}, s{st1}, 6
    s_add_u32 s{ctso}, s{st0}, s{st1}
    s_mov_b32 s{cnl2e}, {NL2E:#x}
    s_mov_b32 s{csign}, 0x00800000
    s_mov_b32 s{cmag}, 0x7fffffff
    s_mov_b32 s{cp0}, 0x07060100
    s_mov_b32 s{cp0+1}, 0x07060302
    v_xor_b32 v13, 64, v11
    v_xor_b32 v14, 0x80, v11
    v_xor_b32 v15, 0xc0, v11
    """)
    stamp(a, 1)
    a("s_waitcnt vmcnt(0)")
    stamp(a, 2)
    a("s_barrier")
    stamp(a, 3)
    def xrd(off):
        for s in range(4): a(f"ds_read_b128 {vr(vX+4*s,4)}, v{[11,13,14,15][s]} offset:{off}")
    xrd(0)
    n = 4
    for s in range(4):
        for m in range(2):
            for ab in range(2):
                for u in range(2):
                    a(f"ds_read_b64_tr_b16 {vr(W(m,ab,s)+2*u,2)}, v10 offset:{m*32768+s*8192+u*1024+ab*8}")
        if s < 3: a("s_waitcnt lgkmcnt(6)")
    a(f"s_cmp_eq_u32 s{stask}, 125\ns_cbranch_scc1 K1_WT")
    def mm():
        for s in range(4):
            for m in range(2):
                for ab in range(2):
                    d = vr(vA+8*m+4*ab, 4)
                    a(f"v_mfma_f32_16x16x32_bf16 {d}, {vr(W(m,ab,s),4)}, {vr(vX+4*s,4)}, {'0' if s == 0 else d}")
    def pack(so):
        a("s_nop 7")
        for b in range(2):
            for ab in range(2):
                b0, b1 = vA+4*ab+b, vA+4*ab+2+b
                a(f"v_mul_f32 v{b0}, s{cnl2e}, v{b0}\nv_mul_f32 v{b1}, s{cnl2e}, v{b1}")
                for e_ in range(2):
                    h = vA+8+4*ab+2*e_+b
                    a(f"v_max_f32 v{16+e_}, abs(v{h}), s{csign}\nv_bfi_b32 v{h}, s{cmag}, v{16+e_}, v{h}")
                a(f"v_cvt_pk_bf16_f32 v{b0}, v{b0}, v{b1}")
                for e_ in range(2):
                    h = vA+8+4*ab+2*e_+b
                    a(f"v_add_u32 v{h}, 0x8000, v{h}")
                for e_ in range(2):
                    h = vA+8+4*ab+2*e_+b
                    a(f"v_sub_u32_sdwa v{h}, v{h}, v{b0} dst_sel:DWORD dst_unused:UNUSED_PAD src0_sel:DWORD src1_sel:WORD_{e_}")
                for e_ in range(2):
                    h = vA+8+4*ab+2*e_+b
                    a(f"v_perm_b32 v{20+4*b+2*ab+e_}, v{h}, v{b0}, s{cp0+e_}")
            a(f"buffer_store_dwordx4 {vr(20+4*b,4)}, v12, {sr(sT,4)}, s{so} offen offset:{128*b} {OPT['st_t']}")
    a("s_waitcnt lgkmcnt(0)")
    mm()
    stamp(a, 4)
    a(f"s_cmp_eq_u32 s{sng}, 0\ns_cbranch_scc0 K1_ONE")
    xrd(16384)
    pack(ctso)
    a(f"s_add_u32 s{ctso}, s{ctso}, {64*TS}\ns_waitcnt lgkmcnt(0)")
    mm()
    a("K1_ONE:")
    pack(ctso)
    stamp(a, 5); stamp(a, 6); stamp(a, 7)
    stamp_out(a, 0, 22, sw, 2)
    a("s_endpgm")
    a("K1_WT:")
    srd(a, sT, 22, WT_OFF, 65536)
    a(f"""
    s_cmp_ge_u32 s{sw}, 8
    s_cbranch_scc1 K1_END
    v_lshlrev_b32 v{vt+1}, 4, v{vt}
    s_lshl_b32 s{st0}, s{sw}, 13
    s_add_u32 s{st1}, s{st0}, 4096
    s_waitcnt lgkmcnt(0)
    s_cmp_eq_u32 s{sng}, 0
    s_cbranch_scc0 K1_WU
    """)
    for m in range(2):
        for ab in range(2):
            for s in range(4):
                a(f"buffer_store_dwordx4 {vr(W(m,ab,s),4)}, v{vt+1}, {sr(sT,4)}, s{st1 if ab else st0} offen offset:{1024*s} {OPT['st_t']}")
        a("s_endpgm")
        if m == 0: a("K1_WU:")
    a("K1_WC:")
    srd(a, sT, 22, WT_OFF+65536, 4096)
    srd(a, sW1, 16, None, 4096)
    a(f"""
    s_cmp_eq_u32 s{stask}, 126
    s_cbranch_scc0 K1_END
    s_cmp_ge_u32 s{sw}, 4
    s_cbranch_scc1 K1_END
    v_lshrrev_b32 v{vt+2}, 5, v{vt}
    v_and_b32 v{vt+3}, 31, v0
    v_lshlrev_b32 v{vt+3}, 2, v{vt+3}
    v_lshl_add_u32 v{vt+3}, v{vt+2}, 11, v{vt+3}
    v_lshlrev_b32 v{vt+1}, 4, v{vt}
    s_lshr_b32 s{st1}, s{sw}, 1
    s_lshl_b32 s{st1}, s{st1}, 7
    s_and_b32 s{st0}, s{sw}, 1
    s_lshl_b32 s{st0}, s{st0}, 1
    s_add_u32 s{st1}, s{st1}, s{st0}
    s_lshl_b32 s{st0}, s{sw}, 10
    s_mov_b32 s{cnl2e}, {NL2E:#x}
    """)
    for j in range(8):
        a(f"buffer_load_ushort v{20+j}, v{vt+3}, {sr(sW1,4)}, s{st1} offen offset:{256*j}")
    a("s_waitcnt vmcnt(0)")
    for j in range(8):
        a(f"v_lshlrev_b32 v{20+j}, 16, v{20+j}\nv_mul_f32 v{20+j}, s{cnl2e}, v{20+j}")
    for j in range(4):
        a(f"v_cvt_pk_bf16_f32 v{28+j}, v{20+2*j}, v{21+2*j}")
    a(f"buffer_store_dwordx4 v[28:31], v{vt+1}, {sr(sT,4)}, s{st0} offen {OPT['st_t']}")
    a("K1_END:\ns_endpgm")
    return a.text(), kd("k1_kernel", 128, 102)

CAPG = 416; RND = 400
CNT = 0; FLG = 256; START = 512; INCL = 768; OHL = 1024; L1 = 1536; L2 = L1 + 4*CAPG*4; APL = L2 + 4*CAPG*4
ROWP = 272
UL = APL + 48*ROWP; LUTL = UL + 48*ROWP; STG = (LUTL + 65536 + 255)//256*256; XL = STG + 3*CAPG*32 + 5*1024; K2_LDS = XL + 12288
PROG = FLG + 16
assert K2_LDS <= 163840 and K2_LDS >= STG + 4*CAPG*32 and LUTL <= 65535 and (4*CAPG*4) % 256 == 0

def gen_k2():
    a = Asm()
    sREC, sX, sWT, sT, sE, sO, sD, sS = 24, 28, 32, 36, 40, 44, 68, 72
    sw, sg, sfh, st0, st1, st2 = 48, 49, 50, 51, 52, 53
    scount, sslow, sround, slim, sgb, srt, slut, srank = 54, 55, 56, 57, 58, 59, 82, 83
    sdma, sm0, sneed = 21, 22, 23
    cm32, c128, cnl2e, cfc, csrc, cm40, cm10, cfe = 60, 61, 62, 63, 64, 65, 66, 67
    sk = 16
    vH16, vA1, vA2, vEa, vOa, vO, vA3 = 1, 2, 3, 4, 5, 6, 7
    WC = 8; AP = 16; PA = 24; SC = 28; OH = 32; EA = 40; ADDR = 48; ACC = 64; SP = 96; G = 112; RAW = 176
    XR = 240; UR = 246; vP16 = 252; vH256 = 253; vHS = 254; vPG = 255; vM15 = XR; vO2 = SP+8
    raw = lambda p, b: RAW + 32*p + 16*b
    gb = lambda p, b: G + 32*p + 16*b
    vt = gb(1, 1); Z = SP; EOFF = SP+14
    REC = raw(1, 0); CADDR = REC+16; RANK = G; STV = G+16
    NT = int(OPT.get("nt", "1"))
    rowoff = lambda r: 8*(r >> 2) + (r & 3)
    sd = "dst_sel:DWORD dst_unused:UNUSED_PAD src0_sel:DWORD"

    a("k2_kernel:")
    a(f"s_cmp_ge_u32 s2, {NBIN}\ns_cbranch_scc1 K2_END")
    stamp(a, 0)
    a(f"""
    s_load_dwordx8 s[4:11], s[0:1], 0
    s_load_dwordx2 s[12:13], s[0:1], 72
    s_load_dwordx2 s[14:15], s[0:1], 88
    v_lshrrev_b32 v{vt}, 6, v0
    v_lshrrev_b32 v{vt+1}, 2, v0
    v_readfirstlane_b32 s{sw}, v{vt}
    v_and_b32 v{vt+2}, 3, v0
    v_lshlrev_b32 v{vt+3}, 7, v{vt+1}
    v_lshl_add_u32 v{vt+3}, v{vt+2}, 4, v{vt+3}
    s_lshl_b32 s{st0}, s2, 14
    s_add_u32 s{st0}, s{st0}, {REC_OFF}
    v_and_b32 v{vt}, 63, v0
    v_lshlrev_b32 v{vt+5}, 3, v{vt}
    v_mov_b32 v{Z}, 0
    v_mov_b32 v{Z+1}, 0
    ds_write_b64 v{vt+5}, {vr(Z,2)} offset:{CNT}
    s_and_b32 s{sg}, s{sw}, 3
    s_lshr_b32 s{sfh}, s{sw}, 2
    v_lshlrev_b32 v{vA2}, 4, v{vt}
    s_mov_b32 s{st1}, 8192
    s_waitcnt lgkmcnt(0)
    s_cmp_lg_u32 s{sfh}, 0
    s_cbranch_scc1 K2_NOREC
    """)
    srd(a, sREC, 14, f"s{st0}", 16384)
    for u in range(2):
        for r in range(2):
            a(f"buffer_load_dwordx4 {vr(REC+8*r+4*u,4)}, v{vt+3}, {sr(sREC,4)}, {'s%d' % st1 if u else '0'} offen offset:{64*r}")
    a(f"K2_NOREC:\ns_mul_i32 s{st0}, s2, {BN*256}")
    srd(a, sX, 4, f"s{st0}", BN*256)
    srd(a, sWT, 14, WT_OFF, LUT_OFF - WT_OFF + 65536)
    a("s_barrier")
    stamp(a, 1)
    def common1():
        a(f"""
        s_lshl_b32 s{st1}, s{sfh}, 11
        s_add_u32 s{st1}, s{st1}, 65536
        buffer_load_dwordx4 {vr(WC,4)}, v{vA2}, {sr(sWT,4)}, s{st1} offen
        buffer_load_dwordx4 {vr(WC+4,4)}, v{vA2}, {sr(sWT,4)}, s{st1} offen offset:1024
        s_mul_i32 s{st0}, s2, {BN*256}
        """)
        srd(a, sO, 12, f"s{st0}", BN*256)
        a(f"s_lshl_b32 s{st0}, s{sfh}, 8\ns_add_u32 s{st0}, s{st0}, {T_OFF-128}")
        srd(a, sT, 14, f"s{st0}", 64, w3="0x800000", hi_or="0x40000")
        srd(a, sE, 6, None, E*32)
        a(f"""
        s_mov_b32 s{cm32}, {'0x7e0' if 'e' in OPT.get('nomem','') else '0x1fffe0' if 's' in OPT.get('nomem','') else '0xffffffe0'}
        s_mov_b32 s{c128}, 128
        s_mov_b32 s{cnl2e}, {NL2E:#x}
        s_mov_b32 s{cfc}, 0xfc
        s_mov_b32 s{cfe}, {OPT.get('cfe', '0xfffe')}
        s_mov_b32 s{csrc}, {TS}
        s_mov_b32 s{sslow}, 0
        s_mov_b32 s{sround}, 0
        s_mov_b32 s{sgb}, 0
        s_mul_i32 s{st0}, s{sfh}, 3
        s_xor_b32 s{srank}, s{sg}, s{st0}
        v_lshrrev_b32 v{vt+3}, 5, v{vt}
        v_and_b32 v{vt+4}, 31, v0
        v_lshlrev_b32 v{vH16}, 4, v{vt+3}
        v_lshlrev_b32 v{vH256}, 8, v{vt+3}
        v_cmp_eq_u32 vcc, 0, v{vt+3}
        v_mov_b32 v{vM15}, 0xffff
        v_mov_b32 v{Z+4}, -1
        v_cndmask_b32 v{vM15}, v{vM15}, v{Z+4}, vcc
        v_and_b32 v{Z+4}, 3, v0
        v_mov_b32 v{Z+6}, 0x3f80
        """)
        for i in range(4):
            a(f"v_cmp_eq_u32 vcc, {i}, v{Z+4}\ns_nop 1\nv_cndmask_b32 v{PA+i}, 0, v{Z+6}, vcc")
        den = bf(127*2.0**-116); tiny = bf(2.0**-100)
        a(f"""
        v_cmp_gt_u32 s[78:79], 16, v{vt+4}
        v_mov_b32 v{Z+5}, {den:#x}
        v_mov_b32 v{Z+7}, {tiny<<16:#x}
        v_cndmask_b32 v{Z+5}, v{Z+6}, v{Z+5}, s[78:79]
        v_cndmask_b32 v{Z+7}, 0, v{Z+7}, s[78:79]
        v_and_b32 v{Z+4}, 15, v0
        v_lshlrev_b32 v{Z+8}, 3, v{vt+3}
        v_sub_u32 v{Z+4}, v{Z+4}, v{Z+8}
        v_lshlrev_b32 v{Z+6}, 16, v{Z+5}
        """)
        for d in range(4):
            a(f"""
            v_cmp_eq_u32 vcc, {2*d}, v{Z+4}
            v_cmp_eq_u32 s[78:79], {2*d+1}, v{Z+4}
            s_nop 0
            v_cndmask_b32 v{SC+d}, 0, v{Z+5}, vcc
            v_cndmask_b32 v{Z+8}, 0, v{Z+6}, s[78:79]
            v_or_b32 v{SC+d}, v{SC+d}, v{Z+8}
            """)
        a(f"""
        v_and_b32 v{SC+3}, v{SC+3}, v{vM15}
        v_not_b32 v{Z+8}, v{vM15}
        v_and_b32 v{Z+8}, v{Z+8}, v{Z+7}
        v_or_b32 v{SC+3}, v{SC+3}, v{Z+8}
        """)
        for r in range(16): a(f"v_mov_b32 v{ADDR+r}, 128")
    def ld_xr(): return [f"buffer_load_dword v{XR+r}, v{vO}, {sr(sX,4)}, 0 offen offset:{256*rowoff(r)} " for r in range(6)]
    def spin(k, n):
        a(f"""
        v_mov_b32 v{vt+6}, {FLG+4*k}
        v_mov_b32 v{vt+7}, 1
        s_mov_b64 exec, 1
        ds_add_u32 v{vt+6}, v{vt+7}
        s_mov_b64 exec, -1
        K2_SPIN{n}:
        ds_read_b32 v{vt+7}, v{vt+6}
        s_waitcnt lgkmcnt(0)
        v_cmp_gt_u32 vcc, 4, v{vt+7}
        s_cbranch_vccnz K2_SPIN{n}
        """)
    def caddr(k): return f"v_and_b32_sdwa v{CADDR+k}, s{cfc}, v{REC+k} {sd} src1_sel:BYTE_3"
    def pick(sel, cur):
        a(f"""
        s_bitcmp1_b32 s{sel}, 0
        s_cselect_b32 s{cur[0]}, s{cur[1]}, s{cur[0]}
        s_cselect_b32 s{cur[2]}, s{cur[3]}, s{cur[2]}
        s_bitcmp1_b32 s{sel}, 1
        s_cselect_b32 s{st0}, s{cur[2]}, s{cur[0]}
        s_and_b32 s{sg}, s{st0}, 3
        s_andn2_b32 s{st0}, s{st0}, 3
        s_mul_i32 s{sgb}, s{sg}, {CAPG*4}
        s_add_u32 s{scount}, s{st0}, 127
        s_lshr_b32 s{scount}, s{scount}, 7
        """)
    def rank_groups():
        for g in range(1, 4): a(f"s_or_b32 s{sk+g}, s{sk+g}, {g}")
        cur = [sk, sk+1, sk+2, sk+3]; spare = sk+4
        for (i, j) in ((0, 1), (2, 3), (0, 2), (1, 3), (1, 2)):
            a(f"s_max_u32 s{spare}, s{cur[i]}, s{cur[j]}\ns_min_u32 s{cur[j]}, s{cur[i]}, s{cur[j]}")
            cur[i], spare = spare, cur[i]
        pick(srank, cur)
    def scan(fast):
        x = SP
        a(f"""
        v_and_b32 v{vt}, 63, v0
        v_lshlrev_b32 v{vt+1}, 2, v{vt}
        ds_read_b32 v{x}, v{vt+1} offset:{CNT}
        v_lshrrev_b32 v{vt}, 4, v{vt}
        v_mul_u32_u24 v{vt}, {CAPG*4}, v{vt}
        v_and_b32 v{vt+2}, 31, v0
        v_lshlrev_b32 v{vt+2}, 2, v{vt+2}
        v_mov_b32 v{vt+4}, 0xfffffe
        s_waitcnt lgkmcnt(0)
        v_sub_u32 v{vt}, v{vt}, v{x}
        """)
        for d in ("row_shr:1", "row_shr:2", "row_shr:4", "row_shr:8"):
            a(f"v_add_u32_dpp v{x}, v{x}, v{x} {d} row_mask:0xf bank_mask:0xf bound_ctrl:0\ns_nop 1")
        a(f"""
        v_add_u32 v{vt}, v{vt}, v{x}
        v_cmp_lt_u32 vcc, {CAPG*4}, v{x}
        ds_write2st64_b32 v{vt+1}, v{vt}, v{x} offset0:{START//256} offset1:{INCL//256}
        """)
        for g in range(4): a(f"v_readlane_b32 s{sk+g}, v{x}, {16*g+15}")
        if fast:
            a("s_cbranch_vccnz K2_JOIN")
            for k in range(8): a(f"ds_read_b32 v{STV+k}, v{CADDR+k} offset:{START}")
            rank_groups()
        else:
            for g in range(1, 4): a(f"s_or_b32 s{sk+g}, s{sk+g}, {g}")
            pick(sg, [sk, sk+1, sk+2, sk+3])
        a(f"""
        s_add_u32 s{st0}, s{st0}, s{sgb}
        v_add_u32 v{vt+2}, s{st0}, v{vt+2}
        s_lshl_b32 s{st1}, s{scount}, 7
        s_add_u32 s{st1}, s{st1}, s{sgb}
        v_lshlrev_b32 v{vt+3}, 3, v{vt+2}
        v_and_b32 v{vt+3}, 128, v{vt+3}
        v_cmpx_gt_u32 vcc, s{st1}, v{vt+2}
        ds_write2st64_b32 v{vt+2}, v{vt+3}, v{vt+4} offset0:{L1//256} offset1:{L2//256}
        s_mov_b64 exec, -1
        """)
    def place(k, st, eo):
        a(f"""
        v_add_u32 v{st}, v{st}, v{RANK+k}
        v_bfe_u32 v{vt}, v{REC+k}, 16, {5 if 't' in OPT.get('nomem','') else 14}
        v_lshlrev_b32 v{vt+1}, 3, v{st}
        v_mad_u32_u16 v{vt+2}, v{REC+k}, 2, v{eo}
        v_and_b32 v{vt+1}, 128, v{vt+1}
        v_mad_u32_u24 v{vt}, v{vt}, s{csrc}, v{vt+1}
        ds_write2st64_b32 v{st}, v{vt}, v{vt+2} offset0:{L1//256} offset1:{L2//256}
        """)
    def lane_setup():
        a(f"""
        v_and_b32 v{vt}, 31, v0
        v_xor_b32 v{vA1}, 16, v{vH16}
        v_xor_b32 v{vA2}, 4, v{vt}
        v_lshlrev_b32 v{vA2}, 2, v{vA2}
        v_add_u32 v{vA1}, s{sgb}, v{vA1}
        v_add_u32 v{vA2}, s{sgb}, v{vA2}
        s_mul_i32 s{st0}, s{sg}, {GN*256}
        s_lshl_b32 s{st1}, s{sfh}, 7
        s_add_u32 s{st0}, s{st0}, s{st1}
        v_lshlrev_b32 v{vO}, 2, v{vt}
        v_lshl_add_u32 v{vO}, v{vH256}, 2, v{vO}
        v_add_u32 v{vO}, s{st0}, v{vO}
        v_bfe_u32 v{vA3}, v0, 1, 5
        v_lshlrev_b32 v{vA3}, 2, v{vA3}
        v_add_u32 v{vA3}, s{sgb}, v{vA3}
        v_and_b32 v{vP16}, 1, v0
        v_lshlrev_b32 v{vP16}, 4, v{vP16}
        v_add_u32 v{vHS}, {STG}, v{vH16}
        s_lshl_b32 s{st0}, s{sg}, 2
        s_add_u32 s{st0}, s{st0}, {PROG}
        v_mov_b32 v{vPG}, s{st0}
        s_lshl_b32 s{sm0}, s{sgb}, 3
        s_add_u32 s{sm0}, s{sm0}, {STG}
        s_mov_b32 s{sdma}, 0
        s_mov_b32 s{sneed}, 0
        s_cmp_eq_u32 s{sfh}, 0
        s_cselect_b32 s{slim}, s{scount}, 0
        """)
    def rd_addr(off, j): return f"ds_read_b128 {vr(ADDR+4*j,4)}, v{vA1} offset:{L1+off+32*j}"
    def rd_l2(reg, off): return f"ds_read_b32 v{reg}, v{vA2} offset:{L2+off}"
    def ld_raw(p, b, r):
        pre = [f"v_and_b32 v{ADDR+r}, 0xffff80, v{ADDR+r}"] if OPT.get("safe") else []
        if OPT.get("noload"): return ["s_nop 0"]
        return pre + [f"buffer_load_dword v{raw(p,b)+r}, v{ADDR+r}, {sr(sT,4)}, 0 offen" + (" offset:128" if b else "")]
    def ld_blk(p, b): return sum((ld_raw(p, b, r) for r in range(16)), [])
    def rd_l3(off): return f"ds_read_b32 v{vEa}, v{vA3} offset:{L2+off}"
    lab = [0]
    def dma_ea(sl):
        lab[0] += 1
        return [f"s_cmp_lt_u32 s{sdma}, s{slim}", f"s_cbranch_scc0 K2_ND{lab[0]}", "@D{",
                f"s_mov_b32 m0, s{sm0}", f"v_and_or_b32 v{vEa}, v{vEa}, s{cm32}, v{vP16}",
                f"buffer_load_dwordx4 v{vEa}, {sr(sE,4)}, 0 offen lds;wr={300+sl}", "@}", f"K2_ND{lab[0]}:",
                f"s_add_u32 s{sdma}, s{sdma}, 1", f"s_add_u32 s{sm0}, s{sm0}, 1024"]
    spins = []
    def rd_prog(): return f"ds_read_b32 v{vEa}, v{vPG}"
    def get_ea(p, sl, off):
        lab[0] += 1; n = lab[0]
        spins.append(n)
        return [f"s_add_u32 s{sneed}, s{sneed}, 1", f"s_cmp_eq_u32 s{sfh}, 0", f"s_cbranch_scc0 K2_RD{n}", "@P{",
                f"v_mov_b32 v{vEa}, s{sneed};rd={300+sl}", f"ds_write_b32 v{vPG}, v{vEa}", f"s_branch K2_OK{n}", "@}",
                f"K2_RD{n}:", "@C{", f"v_cmp_gt_u32 vcc, s{sneed}, v{vEa}", f"s_cbranch_vccnz K2_SP{n}", "@}", f"K2_OK{n}:",
                f"v_lshl_add_u32 v{vEa}, v{vA2}, 3, v{vHS}", f"ds_read_b128 {vr(EA+4*p,4)}, v{vEa} offset:{8*off}"]
    def oh_idx(p):
        return [f"v_and_b32 v{vOa}, 30, v{vOa}",
                f"v_lshl_add_u32 v{vOa}, v{vOa}, 3, v{vH256}",
                f"ds_read_b128 {vr(OH+4*p,4)}, v{vOa} offset:{OHL}"]
    big = "v_mfma_f32_32x32x16_bf16" if not OPT.get("nobig") else "; "
    de = OPT.get("drop", "")
    def mE(p, b): return "; " if "E" in de else f"{big} {vr(gb(p,b),16)}, {vr(EA+4*p,4)}, {vr(WC+4*b,4)}, 0"
    def mA(p, b): return "; " if "A" in de else f"{big} {vr(gb(p,b),16)}, {vr(OH+4*p,4)}, {vr(AP+4*b,4)}, {vr(gb(p,b),16)}"
    def mS(p): return "; " if "S" in de else f"{big} {vr(SP,16)}, {vr(OH+4*p,4)}, {vr(SC,4)}, 0"
    def mG(p, b, j): return "; " if ("G" in de or ("g" in de and j & 1)) else f"{big} {vr(ACC+16*b,16)}, {vr(SP+4*j,4)}, {vr(gb(p,b)+4*j,4)}, {vr(ACC+16*b,16)}"
    def mP(p, b):
        o = []
        for u in range(2):
            for j in range(4):
                g = vr(gb(p,b)+4*j, 4)
                o.append(f"v_mfma_f32_4x4x4_16b_bf16 {g}, {vr(PA+2*u,2)}, {vr(raw(p,b)+4*j+2*u,2)}, {g}")
        return o
    def idx_pair(p, b, i):
        g0, g1 = gb(p,b)+2*i, gb(p,b)+2*i+1
        if i < NT:
            return [f"v_exp_f32 v{g0}, v{g0}", f"v_exp_f32 v{g1}, v{g1}", f"v_add_f32 v{g0}, 1.0, v{g0}",
                    f"v_add_f32 v{g1}, 1.0, v{g1}", f"v_rcp_f32 v{g0}, v{g0}", f"v_rcp_f32 v{g1}, v{g1}"], []
        return [f"v_cvt_pkrtz_f16_f32 v{g0}, v{g0}, v{g1}",
                f"v_and_b32_sdwa v{g1}, s{cfe}, v{g0} {sd} src1_sel:WORD_1",
                f"v_and_b32_sdwa v{g0}, s{cfe}, v{g0} {sd} src1_sel:WORD_0"], \
               [f"ds_read_u16_d16_hi v{g1}, v{g1} offset:{LUTL}", f"ds_read_u16_d16_hi v{g0}, v{g0} offset:{LUTL}"]
    def fin_pair(p, b, i):
        g0, r0 = gb(p,b)+2*i, raw(p,b)+2*i
        return [f"v_mul_f32 v{r0}, v{g0}, v{r0}", f"v_mul_f32 v{r0+1}, v{g0+1}, v{r0+1}",
                f"v_cvt_pk_bf16_f32 v{g0}, v{g0}, v{r0}", f"v_cvt_pk_bf16_f32 v{g0+1}, v{g0+1}, v{r0+1}"]
    def zipl(x, y):
        o = []
        for k in range(max(len(x), len(y))):
            if k < len(x): o.append(x[k])
            if k < len(y): o.append(y[k])
        return o
    uid = [0]
    def W(kind):
        uid[0] += 1
        return f"@W{kind} {uid[0]}"
    def slot(p, b, kind, acc=True):
        q = 1-p
        nxt = (p, 1) if b == 0 else (q, 0)
        do_idx = b == 0 or kind != "L"
        bigs = []
        gs = [[mG(q if b == 0 else p, 1-b, j)] for j in range(4)] if acc else []
        bigs += gs[:2]
        if kind != "L": bigs += [[mE(q, b)], [mA(q, b)]]
        bigs += gs[2:]
        if b == 0: bigs += [[mS(p)]]
        smalls = mP(q, b) if kind != "L" else []
        out = []
        nb = 0
        for i in range(8):
            iv, il = idx_pair(*nxt, i) if do_idx else ([], [])
            fv = fin_pair(p, b, i)
            seq = zipl(iv, fv) if i >= NT or not do_idx else [iv[0], fv[0], iv[1], fv[1], iv[2], fv[2], iv[3], fv[3], iv[4], iv[5]]
            seq += il
            if kind == "F":
                seq += ld_raw(p, b, 2*i) + ld_raw(p, b, 2*i+1)
                if b == 1 and i & 1: seq.append(rd_addr((3+p)*128, i >> 1))
                if b == 0 and i == 1: seq.append(rd_l3((3+p)*128))
                if b == 1 and i == 0: seq = dma_ea(q) + seq
                if b == 1 and i == 1: seq.append(rd_prog())
                if b == 1 and i == 6: seq += get_ea(p, p, (2+p)*128)
                if b == 0 and i == 5: seq.append(rd_l2(vOa, (2+p)*128))
                if b == 1 and i == 2: seq += oh_idx(p)
            pre = [W("l")]
            if i < 6:
                take = 2 if (len(bigs) - nb) > (6 - i) else 1
                ins = []
                if nb < len(bigs): pre += bigs[nb]; nb += 1
                if take == 2 and nb < len(bigs):
                    seq = seq[:6] + bigs[nb] + seq[6:]; nb += 1
            if smalls and i >= 5:
                k0, k1 = {5: (0, 2), 6: (2, 6), 7: (6, 8)}[i]
                sm = smalls[k0:k1]
                if i == 5: seq = seq[:4] + [W("v")] + zipl(sm, seq[4:])
                elif i == 6: seq = zipl(sm, seq)
                else: seq = zipl(sm, seq)
            out += pre + seq
        assert nb == len(bigs)
        return out
    def body(p, kind):
        q = 1-p; n = f"{kind}{p}"
        o0 = [f"K2_BODY{n}:"] + slot(p, 0, kind)
        o1 = [f"K2_MID{n}:"] + (ld_xr() if kind == "L" else []) + slot(p, 1, kind)
        if kind == "F":
            if p == 1: o1 += [f"v_add_u32 v{r_}, 256, v{r_}" for r_ in (vA1, vA2, vA3)]
            o1 += [f"s_sub_u32 s{scount}, s{scount}, 1", f"s_cmp_eq_u32 s{scount}, 2", f"s_cbranch_scc1 K2_BODYP{q}"]
        return o0, o1
    def entry(kind):
        more = kind != "L"
        o = [rd_l2(vOa, 0), rd_prog()]
        if more: o += [rd_addr(128, j) for j in range(4)]
        o += [W("l")] + oh_idx(0) + [W("v")] + get_ea(0, 0, 0)
        if more: o += [rd_prog(), rd_l2(vOa, 128)]
        o += [W("l"), "@STAMP", mE(0, 0), mA(0, 0), mE(0, 1), mA(0, 1)]
        if more: o += [W("v")] + get_ea(1, 1, 128) + [rd_l3(256)] + ld_blk(1, 0)
        else: o += ["s_nop 7"]
        o += [W("v")] + mP(0, 0)
        if more: o += [W("l")] + oh_idx(1) + dma_ea(0)
        o += ["s_nop 1"]
        for i in range(8):
            v_, l_ = idx_pair(0, 0, i)
            o += [W("l")] + ([v_[0], v_[1], "s_nop 0"] + v_[2:] if i < NT else v_) + l_
            if more:
                o += ld_raw(1, 1, 2*i) + ld_raw(1, 1, 2*i+1)
                if i & 1: o.append(rd_addr(256, i >> 1))
            if i == 3: o += [W("v")] + mP(0, 1)
        return o + slot(0, 0, kind, acc=False) + [f"s_branch K2_MID{kind}0"]
    def drain(p): return ["s_nop 1"] + [mG(p, 1, j) for j in range(4)]
    def mk_fill():
        return ([rd_l3(0), f"ds_read_b32 v{vOa}, v{vA3} offset:{L2+128}"] + [rd_addr(0, j) for j in range(4)] + ["s_waitcnt lgkmcnt(4)"] + dma_ea(0)
                + [f"v_mov_b32 v{vEa}, v{vOa}"] + dma_ea(1) + ["s_waitcnt lgkmcnt(0)"] + ld_blk(0, 0) + ld_blk(0, 1))
    fills = [mk_fill(), mk_fill()]
    B = {(p, k): body(p, k) for p in range(2) for k in "FPL"}
    EN = {k: entry(k) for k in "FPL"}
    def role(l, r, cnt):
        o = []; keep = True; nd = 0
        for x in l:
            if x == "@D{": keep = r == "P" and nd < cnt; nd += 1
            elif x in ("@P{", "@C{"): keep = x[1] == r
            elif x == "@}": keep = True
            elif keep and x != "@STAMP": o.append(x)
        return o
    def trace(cnt):
        kinds = ["F"]*(cnt-2) + ["P", "L"][-min(cnt, 2):]
        tr = fills[0] + EN[kinds[0]] + B[(0, kinds[0])][1]
        for t in range(1, cnt): tr += B[(t & 1, kinds[t])][0] + B[(t & 1, kinds[t])][1]
        return tr + drain((cnt-1) & 1)
    need = asmsim.solve_waits([role(trace(c), r, c) for c in range(1, 9) for r in "PC"])
    for c in range(1, 9):
        for r in "PC": asmsim.check_hazards(asmsim.apply_waits(role(trace(c), r, c), need), f"count {c}")
    def emit(l):
        for x in asmsim.apply_waits(l, need):
            if x == "@STAMP":
                stamp(a, 5); stamp(a, 5, "3"); stamp(a, 7, "4")
                if OPT.get("prof") == "3": a(f"s_memtime s[86:87]\ns_mov_b32 s90, s{scount}\ns_getreg_b32 s92, hwreg(HW_REG_HW_ID)")
            elif x[0] != "@": a(x.split(";")[0])
    def fill(n):
        a(f"s_cmp_eq_u32 s{scount}, 0\ns_cbranch_scc1 K2_FILLED{n}")
        emit(fills["AB".index(n)])
        a(f"K2_FILLED{n}:")
    def ap_addr():
        a(f"""
        v_bfe_u32 v{vt}, v0, 2, 2
        v_lshrrev_b32 v{vt+1}, 1, v{vH16}
        v_add_u32 v{vt}, v{vt}, v{vt+1}
        v_mul_u32_u24 v{vt}, {ROWP}, v{vt}
        v_bfe_u32 v{vt+2}, v0, 4, 1
        v_lshl_add_u32 v{vt}, v{vt+2}, 5, v{vt}
        v_and_b32 v{vt+2}, 3, v0
        v_lshl_add_u32 v{vt}, v{vt+2}, 3, v{vt}
        s_mul_i32 s{st0}, s{sg}, {GN*ROWP}
        s_lshl_b32 s{st1}, s{sfh}, 7
        s_add_u32 s{st0}, s{st0}, s{st1}
        v_add_u32 v{vt}, s{st0}, v{vt}
        v_mul_u32_u24 v{vt+1}, {ROWP//2}, v{vt+1}
        v_and_b32 v{vt+2}, 31, v0
        v_lshl_add_u32 v{vt+1}, v{vt+2}, 2, v{vt+1}
        v_add_u32 v{vt+1}, s{st0}, v{vt+1}
        """)
    def ap_read():
        a(f"""
        ds_read_b64_tr_b16 {vr(AP,2)}, v{vt} offset:{APL}
        ds_read_b64_tr_b16 {vr(AP+2,2)}, v{vt} offset:{APL+4*ROWP}
        ds_read_b64_tr_b16 {vr(AP+4,2)}, v{vt} offset:{APL+64}
        ds_read_b64_tr_b16 {vr(AP+6,2)}, v{vt} offset:{APL+4*ROWP+64}
        """)
        for r in range(6): a(f"ds_read_b32 v{UR+r}, v{vt+1} offset:{UL+ROWP*rowoff(r)}")
        a(f"""
        s_waitcnt lgkmcnt(6)
        v_and_b32 v{AP+3}, v{AP+3}, v{vM15}
        v_and_b32 v{AP+7}, v{AP+7}, v{vM15}
        """)
    def zero_acc():
        for r in range(32): a(f"v_mov_b32 v{ACC+r}, 0")

    a(f"s_cmp_lg_u32 s{sfh}, 0\ns_cbranch_scc1 K2_LOADER")
    common1()
    a(f"""
    v_mul_u32_u24 v{EOFF}, {CS*32}, v{vt+1}
    v_add_u32 v{EOFF+1}, {64*CS*32}, v{EOFF}
    v_mov_b32 v{vt+3}, 4
    """)
    zero_acc()
    a("s_waitcnt vmcnt(2)")
    stamp(a, 2)
    a(f"""
    v_cmp_eq_u32 vcc, -2, v{REC+11}
    v_cmp_eq_u32 s[78:79], -2, v{REC+15}
    s_or_b64 vcc, vcc, s[78:79]
    s_cbranch_vccz K2_NOOVF
    v_mov_b32 v{vt+4}, 0x10000
    v_mov_b32 v{vt}, 60
    ds_add_u32 v{vt}, v{vt+4} offset:{CNT}
    K2_NOOVF:
    """)
    def steps(tag, fn):
        for r in range(2):
            for u in range(2):
                for i in range(4):
                    k = 8*r+4*u+i
                    a(f"v_cmpx_gt_u32 vcc, -2, v{REC+k}\ns_cbranch_execz K2_{tag}{r}{u}")
                    fn(k, r, u, i)
                a(f"K2_{tag}{r}{u}:\ns_mov_b64 exec, -1")
    def cnt_step(k, r, u, i):
        if k == 12: a("s_waitcnt lgkmcnt(4)")
        a(f"{caddr(k)}\nds_add_rtn_u32 v{RANK+k}, v{CADDR+k}, v{vt+3} offset:{CNT}")
    steps("C", cnt_step)
    spin(0, "A")
    scan(True)
    a("s_waitcnt lgkmcnt(1)")
    def put_step(k, r, u, i):
        if r == 1 and i == 0:
            for kk in range(k, k+4): a(f"ds_read_b32 v{STV+(kk&7)}, v{CADDR+kk} offset:{START}")
            a("s_waitcnt lgkmcnt(0)")
        place(k, STV+(k & 7), EOFF+u)
    steps("P", put_step)
    lane_setup()
    spin(1, "B")
    stamp(a, 3)
    fill("A")
    stamp(a, 4)
    ap_addr()
    a(f"""
    s_barrier
    """)
    ap_read()
    a("s_branch K2_GO")
    assert XL % 256 == 0
    XF = G; WT = [ACC, raw(0, 0)]
    accs = [[[raw(1,0)+8*nb, raw(1,0)+8*nb+4] for nb in range(3)], [[raw(1,1)+8, raw(1,1)+12], [SP, SP+4], [SP+8, ADDR]]]
    a(f"""
    K2_LOADER:
    v_lshrrev_b32 v{vt+4}, 4, v{vt}
    s_lshl_b32 s{st1}, s{sg}, 2
    v_add_u32 v{vA1}, s{st1}, v{vt+4}
    v_and_b32 v{vt+5}, 15, v0
    v_xor_b32 v{vA1}, v{vA1}, v{vt+5}
    v_lshlrev_b32 v{vA1}, 4, v{vA1}
    v_lshl_add_u32 v{vA1}, v{vt+4}, 8, v{vA1}
    s_lshr_b32 s{srt}, s2, 3
    s_add_u32 s{srt}, s{srt}, s{sw}
    s_and_b32 s{srt}, s{srt}, 3
    s_lshl_b32 s{st1}, s{sg}, 10
    """)
    for k in range(3):
        a(f"""
        s_add_u32 m0, s{st1}, {XL+4096*k}
        s_add_u32 s{st2}, s{st1}, {4096*k}
        buffer_load_dwordx4 v{vA1}, {sr(sX,4)}, s{st2} offen lds
        """)
    a(f"s_lshl_b32 s{slut}, s{srt}, 13")
    for m in range(2):
        for hf in range(2):
            a(f"s_add_u32 s{st2}, s{slut}, {32768*m+4096*hf}")
            for k in range(4):
                a(f"buffer_load_dwordx4 {vr(WT[m]+16*hf+4*k,4)}, v{vA2}, {sr(sWT,4)}, s{st2} offen offset:{1024*k}")
    a(f"s_lshl_b32 s{slut}, s{srt}, 14")
    for k in range(4):
        a(f"s_add_u32 m0, s{slut}, {LUTL + 4096*k}\ns_add_u32 s{st2}, s{slut}, {LUT_OFF - WT_OFF + 4096*k}")
        for j in range(4):
            a(f"buffer_load_dwordx4 v{vA2}, {sr(sWT,4)}, s{st2} offen offset:{1024*j} lds")
    common1()
    a(f"""
    v_and_b32 v{vt+3}, 127, v0
    v_bfe_u32 v{vt+4}, v0, 2, 4
    v_and_b32 v{Z+4}, 3, v0
    v_lshrrev_b32 v{Z+5}, 6, v{vt+3}
    v_lshlrev_b32 v{vt+3}, 2, v{vt+3}
    v_lshl_add_u32 v{Z+4}, v{Z+5}, 2, v{Z+4}
    v_lshlrev_b32 v{Z+5}, 1, v{Z+4}
    v_mov_b32 v{Z+6}, 0x3f80
    v_mov_b32 v{Z+7}, 0x3f800000
    v_cmp_eq_u32 vcc, v{Z+5}, v{vt+4}
    v_add_u32 v{Z+5}, 1, v{Z+5}
    s_nop 0
    v_cndmask_b32 v{Z+8}, 0, v{Z+6}, vcc
    v_cmp_eq_u32 vcc, v{Z+5}, v{vt+4}
    v_cmp_eq_u32 s[78:79], 7, v{Z+4}
    s_or_b64 vcc, vcc, s[78:79]
    s_nop 1
    v_cndmask_b32 v{Z+9}, 0, v{Z+7}, vcc
    v_or_b32 v{Z+8}, v{Z+8}, v{Z+9}
    v_cmp_gt_u32 vcc, 15, v{vt+4}
    s_nop 1
    v_cndmask_b32 v{Z+8}, 0, v{Z+8}, vcc
    ds_write_b32 v{vt+3}, v{Z+8} offset:{OHL}
    v_and_b32 v{vt}, 15, v0
    v_bfe_u32 v{vt+1}, v0, 4, 2
    v_xor_b32 v{vt+2}, v{vt}, v{vt+1}
    v_lshlrev_b32 v{vt+2}, 4, v{vt+2}
    v_lshl_add_u32 v{vt+2}, v{vt}, 8, v{vt+2}
    v_add_u32 v{vt+2}, {XL}, v{vt+2}
    v_mul_u32_u24 v{vt}, {ROWP}, v{vt}
    s_waitcnt vmcnt(34)
    """)
    stamp(a, 2)
    spin(2, "C")
    for s in range(4):
        if s: a(f"v_xor_b32 v{vt+3}, {64*s}, v{vt+2}")
        for nb in range(3):
            a(f"ds_read_b128 {vr(XF+16*nb+4*s,4)}, v{vt+3 if s else vt+2} offset:{4096*nb}")
    a(f"""
    s_lshr_b32 s{st0}, s{srt}, 1
    s_lshl_b32 s{st0}, s{st0}, 7
    s_and_b32 s{st1}, s{srt}, 1
    s_lshl_b32 s{st1}, s{st1}, 5
    s_add_u32 s{st0}, s{st0}, s{st1}
    v_lshl_add_u32 v{vt+4}, v{vt+1}, 3, v{vt}
    v_add_u32 v{vt+4}, s{st0}, v{vt+4}
    s_lshl_b32 s{st0}, s{srt}, 6
    v_lshl_add_u32 v{vt+5}, v{vt+1}, 4, v{vt}
    v_add_u32 v{vt+5}, s{st0}, v{vt+5}
    """)
    def mms(m):
        o = []
        for s in range(4):
            if m == 0: o.append(f"s_waitcnt lgkmcnt({9-3*s})")
            for nb in range(3):
                for ab in range(2):
                    d = vr(accs[m][nb][ab], 4)
                    o.append(f"v_mfma_f32_16x16x32_bf16 {d}, {vr(WT[m]+16*ab+4*s,4)}, {vr(XF+16*nb+4*s,4)}, {'0' if s == 0 else d}")
        return o
    outA = []
    for nb in range(3):
        al, be = accs[0][nb]; o = EA+ (0 if nb != 1 else 4)
        for i in range(4): outA += [f"v_mul_f32 v{al+i}, s{cnl2e}, v{al+i}", f"v_mul_f32 v{be+i}, s{cnl2e}, v{be+i}"]
        outA += [f"v_cvt_pk_bf16_f32 v{o}, v{al}, v{al+2}", f"v_cvt_pk_bf16_f32 v{o+1}, v{be}, v{be+2}",
                 f"v_cvt_pk_bf16_f32 v{o+2}, v{al+1}, v{al+3}", f"v_cvt_pk_bf16_f32 v{o+3}, v{be+1}, v{be+3}",
                 f"ds_write_b64 v{vt+4}, {vr(o,2)} offset:{APL+16*ROWP*nb}", f"ds_write_b64 v{vt+4}, {vr(o+2,2)} offset:{APL+16*ROWP*nb+64}"]
    g = ["s_waitcnt vmcnt(26)"] + mms(0) + ["s_waitcnt vmcnt(18)"]
    m1 = mms(1)
    g += m1[:6]
    rest = m1[6:]; k = 0
    for x in rest:
        g.append(x); g += outA[k:k+2]; k += 2
    g += outA[k:] + ["s_nop 1"]
    for nb in range(3):
        al, be = accs[1][nb]; o = XF+4*nb
        g += [f"v_cvt_pk_bf16_f32 v{o}, v{al}, v{al+1}", f"v_cvt_pk_bf16_f32 v{o+1}, v{al+2}, v{al+3}",
              f"v_cvt_pk_bf16_f32 v{o+2}, v{be}, v{be+1}", f"v_cvt_pk_bf16_f32 v{o+3}, v{be+2}, v{be+3}",
              f"ds_write_b128 v{vt+5}, {vr(o,4)} offset:{UL+16*ROWP*nb}"]
    asmsim.check_hazards(g, "gemm")
    a.ext(g)
    stamp(a, 3)
    zero_acc()
    for r in range(4): a(f"v_mov_b32 v{ADDR+r}, 128")
    a(f"""
    v_mov_b32 v{vt+2}, {INCL+60}
    K2_JOIN:
    s_waitcnt vmcnt(0) lgkmcnt(0)
    s_barrier
    v_mov_b32 v{vt+2}, {INCL+60}
    ds_read2_b32 {vr(vt+4,2)}, v{vt+2} offset0:0 offset1:16
    ds_read2_b32 {vr(vt+6,2)}, v{vt+2} offset0:32 offset1:48
    s_waitcnt lgkmcnt(0)
    """)
    for g_ in range(4): a(f"v_readfirstlane_b32 s{sk+g_}, v{vt+4+g_}")
    a(f"""
    s_max_u32 s{st0}, s{sk}, s{sk+1}
    s_max_u32 s{st1}, s{sk+2}, s{sk+3}
    s_max_u32 s{st0}, s{st0}, s{st1}
    s_cmp_gt_u32 s{st0}, {CAPG*4}
    s_cbranch_scc1 K2_SLOW
    """)
    if 'd' in OPT.get('nomem', ''): a(f"s_mov_b32 s{cm32}, 0x7e0")
    pr = OPT.get("prio", "")
    if pr: a("s_setprio 1")
    rank_groups()
    lane_setup()
    ap_addr(); ap_read()
    a("K2_REFILL:")
    fill("B")
    if pr == "fill": a("s_setprio 0")
    stamp(a, 4)
    a(f"""
    K2_GO:
    s_cmp_eq_u32 s{scount}, 0
    s_cbranch_scc1 K2_EMPTY
    s_cmp_gt_u32 s{scount}, 2
    s_cbranch_scc1 K2_ENTF
    s_cmp_eq_u32 s{scount}, 2
    s_cbranch_scc1 K2_ENTP
    """)
    emit(EN["L"]); a("K2_ENTP:"); emit(EN["P"]); a("K2_ENTF:"); emit(EN["F"])
    a(".p2align 6")
    for p in range(2): emit(B[(p, "F")][0] + B[(p, "F")][1])
    a("s_branch K2_BODYF0")
    a("K2_EMPTY:"); a.ext(ld_xr()); a("s_branch K2_DONE")
    for n in spins:
        a(f"""
        K2_SP{n}:
        ds_read_b32 v{vEa}, v{vPG}
        s_waitcnt lgkmcnt(0)
        v_cmp_gt_u32 vcc, s{sneed}, v{vEa}
        s_cbranch_vccnz K2_SP{n}
        s_branch K2_OK{n}
        """)
    for p in range(2):
        emit(B[(p, "P")][0] + B[(p, "P")][1] + B[(1-p, "L")][0] + B[(1-p, "L")][1] + drain(1-p))
        if p == 0: a("s_branch K2_DONE")
    a(f"""
    K2_DONE:
    s_cmp_lg_u32 s{sslow}, 0
    s_cbranch_scc1 K2_ROUND
    K2_EPI:
    s_waitcnt vmcnt(0) lgkmcnt(0)
    """)
    stamp(a, 6); stamp(a, 6, "3")
    if OPT.get("prof") == "3": a("s_memtime s[88:89]")
    T0 = G
    for b in range(2):
        for r in range(6):
            a(f"v_add_f32 v{ACC+16*b+r}, 0x358637bd, v{ACC+16*b+r}")
        for r in range(6):
            a(f"v_rcp_f32 v{ACC+16*b+r}, v{ACC+16*b+r}")
        for r in range(6):
            u, x = T0+12*b+r, T0+12*b+6+r
            if b == 0: a(f"v_lshlrev_b32 v{u}, 16, v{UR+r}\nv_lshlrev_b32 v{x}, 16, v{XR+r}")
            else: a(f"v_and_b32 v{u}, 0xffff0000, v{UR+r}\nv_and_b32 v{x}, 0xffff0000, v{XR+r}")
        for r in range(6):
            u, x = T0+12*b+r, T0+12*b+6+r
            a(f"v_fmac_f32 v{u}, v{ACC+16*b+8+r}, v{ACC+16*b+r}\nv_max_f32 v{u}, 0, v{u}\nv_add_f32 v{u}, v{u}, v{x}")
    a(f"v_lshl_or_b32 v{vO2}, v{vH16}, 27, v{vO}")
    for r in range(6):
        a(f"v_cvt_pk_bf16_f32 v{SP+r}, v{T0+r}, v{T0+12+r}")
        a(f"buffer_store_dword v{SP+r}, v{vO if r < 4 else vO2}, {sr(sO,4)}, 0 offen offset:{256*rowoff(r)} {OPT.get('st_o', '')}")
    stamp(a, 7)
    stamp_out(a, 1, 14, sw, 2)
    a("K2_END:\ns_endpgm")

    a("K2_SLOW:")
    srd(a, sS, 8, None, E*4)
    srd(a, sD, 10, None, E*4)
    a(f"""
    s_mov_b32 s{sslow}, 1
    s_mov_b32 s{cm40}, {-BN}
    s_mov_b32 s{cm10}, {-GN}
    """)
    lane_setup(); ap_addr(); ap_read()
    a(f"""
    K2_ROUND:
    s_cmp_ge_u32 s{sround}, {E//RND}
    s_cbranch_scc1 K2_EPI
    s_mul_i32 s{st0}, s{sround}, {RND}
    s_add_u32 s{sround}, s{sround}, 1
    v_add_u32 v{EOFF}, s{st0}, v0
    v_lshlrev_b32 v{vt}, 2, v{EOFF}
    buffer_load_dword v{REC}, v{vt}, {sr(sD,4)}, 0 offen
    buffer_load_dword v{REC+1}, v{vt}, {sr(sS,4)}, 0 offen
    v_lshlrev_b32 v{EOFF}, 5, v{EOFF}
    v_and_b32 v{vt}, 63, v0
    v_lshlrev_b32 v{vt}, 3, v{vt}
    v_mov_b32 v{vt+4}, 0
    v_mov_b32 v{vt+5}, 0
    s_waitcnt lgkmcnt(0)
    s_barrier
    ds_write_b64 v{vt}, {vr(vt+4,2)} offset:{CNT}
    v_mov_b32 v{vt+3}, 4
    s_waitcnt vmcnt(0) lgkmcnt(0)
    s_barrier
    """)
    rec_fields(a, REC, REC+2, vt, cm40, cm10)
    a(f"""
    v_cmp_eq_u32 vcc, s2, v{REC+2}
    v_lshl_or_b32 v{REC}, v{REC+1}, 16, v{REC}
    {caddr(0)}
    s_mov_b64 s[78:79], vcc
    v_cmp_gt_u32 vcc, {RND}, v0
    s_and_b64 s[78:79], s[78:79], vcc
    s_mov_b64 exec, s[78:79]
    ds_add_rtn_u32 v{RANK}, v{CADDR}, v{vt+3} offset:{CNT}
    s_mov_b64 exec, -1
    s_waitcnt lgkmcnt(0)
    s_barrier
    """)
    scan(False)
    a(f"""
    s_mov_b64 exec, s[78:79]
    ds_read_b32 v{STV}, v{CADDR} offset:{START}
    s_waitcnt lgkmcnt(0)
    """)
    place(0, STV, EOFF)
    a(f"""
    s_mov_b64 exec, -1
    """)
    lane_setup()
    a(f"""
    s_waitcnt lgkmcnt(0)
    s_barrier
    s_branch K2_REFILL
    K2_CODE_END:
    """)
    return a.text(), kd("k2_kernel", 256, 102)

KE_PROF = f"""
    s_memrealtime s[8:9]
    s_load_dwordx2 s[4:5], s[0:1], 88
    s_waitcnt lgkmcnt(0)
    s_add_u32 s4, s4, {PROF_OFF + 0x200000}
    s_addc_u32 s5, s5, 0
    s_mov_b32 s6, 4
    s_mov_b32 s7, 0x20000
    v_mov_b32 v1, s8
    v_lshlrev_b32 v0, 2, v0
    buffer_store_dword v1, v0, s[4:7], 0 offen
"""
def gen_kr():
    a = Asm()
    a(f"""
    kr_kernel:
    s_cmp_ge_u32 s2, 1
    s_cbranch_scc1 KR_END
    s_load_dwordx4 s[4:7], s[0:1], 80
    s_waitcnt lgkmcnt(0)
    s_add_u32 s8, s6, {PROF_OFF}
    s_addc_u32 s9, s7, 0
    s_mov_b32 s10, 0x200000
    s_mov_b32 s11, 0x20000
    s_mov_b32 s6, 256
    s_mov_b32 s7, 0x20000
    v_cmp_gt_u32 vcc, 250, v0
    s_and_saveexec_b64 s[12:13], vcc
    v_lshlrev_b32 v1, 10, v0
    v_mov_b32 v3, 0
    """)
    sel = [(0, 16, 0, 1), (0, 16, 0, 0), (0, 16, 2, 0), (0, 16, 3, 0), (0, 16, 5, 0), (0, 16, 8, 0),
           (1, 8, 0, 1), (1, 8, 0, 0), (1, 8, 2, 0), (1, 8, 3, 0), (1, 8, 5, 1), (1, 8, 5, 0), (1, 8, 6, 1), (1, 8, 6, 0), (1, 8, 8, 0)]
    for j, (kn, nw, st, mn) in enumerate(sel):
        a(f"s_mov_b32 s14, {kn*0x100000}")
        for w in range(nw): a(f"buffer_load_dword v{10+w}, v1, s[8:11], s14 offen offset:{64*w+4*st}")
        a("s_waitcnt vmcnt(0)")
        if mn:
            for w in range(nw): a(f"v_not_b32 v{10+w}, v{10+w}")
        for w in range(1, nw): a(f"v_max_u32 v10, v10, v{10+w}")
        a(f"buffer_atomic_umax v10, v3, s[4:7], 0 offen offset:{4*j}\ns_waitcnt vmcnt(0)")
    a("KR_END:\ns_endpgm")
    return a.text()

def main():
    k1, d1 = gen_k1(); k2, d2 = gen_k2()
    ref = open("standalone__edge_featured_mpnn_gatedgcn__graph.s.ref").read().split("\n")
    out = "\n".join(ref[:13]) + "\n"
    for ch in OPT.get("list", "12"):
        if ch == "1": out += f"; @launch kernel=k1_kernel grid=({2*NCH},1,1) block=(1024,1,1) lds={K1_LDS}\n"
        if ch == "2": out += f"; @launch kernel=k2_kernel grid=({NBIN},1,1) block=(512,1,1) lds={K2_LDS}\n"
        if ch == "r": out += "; @launch kernel=kr_kernel grid=(1,1,1) block=(256,1,1) lds=0\n"
        if ch == "e": out += "; @launch kernel=ke_kernel grid=(1,1,1) block=(64,1,1) lds=0\n"
    out += '.amdgcn_target "amdgcn-amd-amdhsa--gfx950"\n.text\n'
    for n, k in (("k1_kernel", k1), ("k2_kernel", k2)):
        out += f".globl {n}\n.p2align 8\n.type {n},@function\n" + k
    if "e" in OPT.get("list", ""): out += ".globl ke_kernel\n.p2align 8\n.type ke_kernel,@function\nke_kernel:\n" + (KE_PROF if OPT.get("prof") else "") + "    s_endpgm\n"
    if "r" in OPT.get("list", ""): out += ".globl kr_kernel\n.p2align 8\n.type kr_kernel,@function\n" + gen_kr()
    out += '.section .rodata,"a"\n.p2align 6\n' + d1.lstrip("\n") + '.p2align 6\n' + d2.lstrip("\n")
    if "e" in OPT.get("list", ""): out += '.p2align 6\n' + kd("ke_kernel", 8, 16).lstrip("\n")
    if "r" in OPT.get("list", ""): out += '.p2align 6\n' + kd("kr_kernel", 32, 32).lstrip("\n")
    open(sys.argv[1], "w").write(out)

if __name__ == "__main__":
    main()
```

```python
import struct, sys
import asmsim

N = 10000; E = 320000
NCH = 128; CS = 2500
NBIN = 250; BN = 40; GN = 10
CAP = 32
TS = int(([a for a in sys.argv if a.startswith('ts=')] or ['ts=512'])[0][3:])
T_OFF = 0x1000000
REC_OFF = 0x700000
WT_OFF = 0xB00000
LUT_OFF = 0xB20000
PROF_OFF = 0xF000000
NL2E = struct.unpack("<I", struct.pack("<f", -1.4426950408889634))[0]

def bf(x): return struct.unpack("<I", struct.pack("<f", x))[0] >> 16

OPT = dict(st_r="sc1", st_t="sc1")
for a in sys.argv[2:]:
    k, v = a.split("=", 1); OPT[k] = v

class Asm:
    def __init__(self): self.l = []
    def __call__(self, s):
        for x in s.strip("\n").split("\n"):
            x = x.strip()
            if not x: continue
            if x.startswith(";"): x = "s_nop 0"
            self.l.append(x if x.endswith(":") else "    " + x)
    def ext(self, lst):
        for x in lst: self(x)
    def text(self): return "\n".join(self.l) + "\n"

def stamp(a, i, lvl="1"):
    if OPT.get("prof") and (i in (0, 8) or OPT["prof"] == lvl): a(f"s_memrealtime s[{84+2*i}:{85+2*i}]")
def stamp_out(a, kern, wsreg, sw, vtmp):
    if not OPT.get("prof"): return
    a("s_waitcnt vmcnt(0)")
    stamp(a, 8)
    a(f"""
    s_lshl_b32 s4, s2, 4
    s_add_u32 s4, s4, s{sw}
    s_lshl_b32 s4, s4, 6
    s_add_u32 s4, s4, {PROF_OFF + kern*0x100000}
    s_add_u32 s4, s{wsreg}, s4
    s_addc_u32 s5, s{wsreg+1}, 0
    s_mov_b32 s6, 64
    s_mov_b32 s7, 0x20000
    s_waitcnt lgkmcnt(0)
    """)
    for i in range(9): a(f"v_writelane_b32 v{vtmp}, s{84+2*i}, {i}")
    a(f"""
    v_mbcnt_lo_u32_b32 v{vtmp+1}, -1, 0
    v_mbcnt_hi_u32_b32 v{vtmp+1}, -1, v{vtmp+1}
    v_lshlrev_b32 v{vtmp+1}, 2, v{vtmp+1}
    buffer_store_dword v{vtmp}, v{vtmp+1}, s[4:7], 0 offen
    """)

def vr(b, n): return f"v[{b}:{b+n-1}]"
def sr(b, n): return f"s[{b}:{b+n-1}]"

def srd(a, d, base, add=None, size=None, w3="0x20000", hi_or=None):
    if add is None:
        a(f"s_mov_b32 s{d}, s{base}\ns_mov_b32 s{d+1}, s{base+1}")
    else:
        a(f"s_add_u32 s{d}, s{base}, {add}\ns_addc_u32 s{d+1}, s{base+1}, 0")
    if hi_or: a(f"s_or_b32 s{d+1}, s{d+1}, {hi_or}")
    a(f"s_mov_b32 s{d+2}, {size}\ns_mov_b32 s{d+3}, {w3}")

def kd(name, vgpr, sgpr):
    return f"""
.amdhsa_kernel {name}
  .amdhsa_next_free_vgpr {vgpr}
  .amdhsa_next_free_sgpr {sgpr}
  .amdhsa_accum_offset {(vgpr+3)//4*4}
  .amdhsa_group_segment_fixed_size 0
  .amdhsa_kernarg_size 96
  .amdhsa_user_sgpr_count 2
  .amdhsa_user_sgpr_kernarg_segment_ptr 1
  .amdhsa_system_sgpr_workgroup_id_x 1
.end_amdhsa_kernel
"""

def rec_fields(a, vd, vbin, vtmp, sm40, sm10):
    a(f"""
    v_mul_u32_u24 v{vbin}, 52429, v{vd}
    v_lshrrev_b32 v{vbin}, 21, v{vbin}
    v_mad_i32_i24 v{vd}, v{vbin}, s{sm40}, v{vd}
    v_mul_u32_u24 v{vtmp}, 26, v{vd}
    v_lshrrev_b32 v{vtmp}, 8, v{vtmp}
    v_mad_i32_i24 v{vd}, v{vtmp}, s{sm10}, v{vd}
    v_lshl_or_b32 v{vd}, v{vtmp}, 30, v{vd}
    """)

K1_CNT = 0; K1_STG = 1024; K1_X = 65536; K1_LDS = K1_X + 20480
def gen_k1():
    a = Asm()
    sS, sD, sW1, sW2, sX, sR, sT = 24, 28, 32, 36, 40, 44, 48
    sw, st0, st1, st2, sng, sfb, stask = 52, 53, 54, 55, 56, 57, 58
    c4096, c8192, cm40, cm10, cnl2e, csign, cmag, ctso, cp0 = 59, 60, 61, 62, 63, 64, 65, 66, 67
    a("k1_kernel:")
    a(f"s_cmp_ge_u32 s2, {2*NCH}\ns_cbranch_scc1 K1_END")
    stamp(a, 0)
    a(f"""
    s_load_dwordx16 s[4:19], s[0:1], 0
    s_load_dwordx2 s[20:21], s[0:1], 64
    s_load_dwordx2 s[22:23], s[0:1], 88
    v_lshrrev_b32 v2, 6, v0
    v_lshlrev_b32 v1, 2, v0
    v_readfirstlane_b32 s{sw}, v2
    s_mov_b32 s{c4096}, 4096
    s_mov_b32 s{c8192}, 8192
    s_cmp_ge_u32 s2, {NCH}
    s_cbranch_scc1 K1_GEMM
    """)
    vD, vS, vB, vSL, vt = 2, 5, 8, 11, 16
    a(f"s_mul_i32 s{st1}, s2, {CS*4}\ns_waitcnt lgkmcnt(0)")
    srd(a, sD, 10, f"s{st1}", CS*4)
    srd(a, sS, 8, f"s{st1}", CS*4)
    for r, so in enumerate(("0", f"s{c4096}", f"s{c8192}")):
        a(f"buffer_load_dword v{vD+r}, v1, {sr(sD,4)}, {so} offen")
        a(f"buffer_load_dword v{vS+r}, v1, {sr(sS,4)}, {so} offen")
    a(f"""
    v_mov_b32 v{vt}, -1
    v_mov_b32 v{vt+1}, -1
    v_mov_b32 v{vt+2}, -1
    v_mov_b32 v{vt+3}, -1
    v_lshlrev_b32 v{vt+4}, 4, v0
    v_mov_b32 v{vt+5}, 0
    v_and_b32 v{vt+6}, 0x3fc, v1
    ds_write_b128 v{vt+4}, {vr(vt,4)} offset:{K1_STG}
    ds_write_b128 v{vt+4}, {vr(vt,4)} offset:{K1_STG+16384}
    ds_write_b32 v{vt+6}, v{vt+5} offset:{K1_CNT}
    s_lshl_b32 s{st0}, s2, 7
    s_add_u32 s{st0}, s{st0}, {REC_OFF}
    """)
    srd(a, sR, 22, f"s{st0}", NBIN*NCH*128)
    a(f"s_lshl_b32 s{st0}, s2, 9\ns_add_u32 s{st1}, s{st0}, {LUT_OFF}")
    srd(a, sT, 22, f"s{st1}", 512)
    a(f"""
    v_add_u32 v40, s{st0}, v1
    v_and_b32 v41, 0x7fff, v40
    v_cmp_ne_u32 vcc, 0x7c00, v41
    v_or_b32 v41, 3, v40
    s_nop 0
    v_addc_co_u32 v40, vcc, 0, v40, vcc
    v_cvt_f32_f16 v41, v41
    v_cvt_f32_f16 v40, v40
    v_exp_f32 v41, v41
    v_exp_f32 v40, v40
    v_add_f32 v41, 1.0, v41
    v_add_f32 v40, 1.0, v40
    v_rcp_f32 v41, v41
    v_rcp_f32 v40, v40
    s_nop 0
    v_cvt_pk_bf16_f32 v40, v40, v41
    buffer_store_dword v40, v1, {sr(sT,4)}, 0 offen {OPT['st_r']}
    """)
    if OPT.get("pf", "0") == "1":
        a(f"""
        s_getpc_b64 {sr(sW1,2)}
        K1_PC:
        s_add_u32 s{sW1}, s{sW1}, k2_kernel-K1_PC
        s_addc_u32 s{sW1+1}, s{sW1+1}, 0
        s_mov_b32 s{sW1+2}, K2_CODE_END-k2_kernel
        s_mov_b32 s{sW1+3}, 0x20000
        v_lshlrev_b32 v44, 6, v0
        buffer_load_dword v45, v44, {sr(sW1,4)}, 0 offen
        """)
    a(f"""
    s_mov_b32 s{cm40}, {-BN}
    s_mov_b32 s{cm10}, {-GN}
    v_mov_b32 v{vt+5}, 1
    v_cmp_gt_u32 vcc, {CS-2048}, v0
    s_mov_b64 s[100:101], vcc
    v_lshrrev_b32 v{vt+7}, 3, v0
    v_and_b32 v{vt+8}, 7, v0
    v_lshlrev_b32 v{vt+9}, 14, v{vt+7}
    v_lshl_add_u32 v{vt+9}, v{vt+8}, 4, v{vt+9}
    v_lshlrev_b32 v{vt+7}, 2, v{vt+7}
    v_cmp_eq_u32 s[82:83], 7, v{vt+8}
    s_mov_b32 s{st2}, {128*16384}
    s_waitcnt lgkmcnt(0)
    s_barrier
    """)
    stamp(a, 1)
    for r in range(3):
        a(f"s_waitcnt vmcnt({4-2*r + 1 + (OPT.get('pf', '0') == '1')})")
        if r == 0: stamp(a, 2)
        rec_fields(a, vD+r, vB+r, vt, cm40, cm10)
        a(f"v_lshlrev_b32 v{vt}, 2, v{vB+r}")
        if r == 2: a("s_mov_b64 exec, s[100:101]")
        a(f"ds_add_rtn_u32 v{vSL+r}, v{vt}, v{vt+5} offset:{K1_CNT}")
        if r == 2: a("s_mov_b64 exec, -1")
        a(f"""
        v_lshl_or_b32 v{vD+r}, v{vS+r}, 16, v{vD+r}
        v_add_u32 v{vS+r}, {1024*r}, v0
        v_lshl_or_b32 v{vD+r}, v{vS+r}, 4, v{vD+r}
        v_lshlrev_b32 v{vB+r}, 7, v{vB+r}
        """)
    for r in range(3):
        a(f"s_waitcnt lgkmcnt({2-r})" if r == 0 else f"s_waitcnt lgkmcnt({2})" if r == 1 else "s_waitcnt lgkmcnt(2)")
        if r == 2: a("s_mov_b64 exec, s[100:101]")
        a(f"""
        v_lshl_add_u32 v{vB+r}, v{vSL+r}, 2, v{vB+r}
        v_cmpx_gt_u32 vcc, {CAP}, v{vSL+r}
        ds_write_b32 v{vB+r}, v{vD+r} offset:{K1_STG}
        s_mov_b64 exec, -1
        """)
    a("s_waitcnt lgkmcnt(0)")
    stamp(a, 3)
    a("s_barrier")
    stamp(a, 4)
    a(f"""
    ds_read_b128 {vr(vt+12,4)}, v{vt+4} offset:{K1_STG}
    ds_read_b32 v{vt}, v{vt+7} offset:{K1_CNT}
    ds_read_b128 {vr(vt+16,4)}, v{vt+4} offset:{K1_STG+16384}
    ds_read_b32 v{vt+1}, v{vt+7} offset:{K1_CNT+512}
    v_mov_b32 v{vt+2}, -2
    """)
    for k in range(2):
        a(f"""
        s_waitcnt lgkmcnt({2-2*k})
        v_cmp_lt_u32 vcc, {CAP}, v{vt+k}
        s_and_b64 vcc, vcc, s[82:83]
        s_nop 1
        v_cndmask_b32 v{vt+15+4*k}, v{vt+15+4*k}, v{vt+2}, vcc
        buffer_store_dwordx4 {vr(vt+12+4*k,4)}, v{vt+9}, {sr(sR,4)}, {'0' if k == 0 else f's{st2}'} offen {OPT['st_r']}
        """)
    stamp(a, 5)
    if OPT.get("pe", "1") == "1":
        a("s_barrier")
        a(f"s_mul_i32 s{st0}, s2, {CS*32}")
        srd(a, sW2, 6, f"s{st0}", CS*32)
        a(f"v_lshlrev_b32 v46, 7, v0\nbuffer_load_dword v47, v46, {sr(sW2,4)}, 0 offen {OPT.get('pef', '')}")
    stamp(a, 6); stamp(a, 7)
    stamp_out(a, 0, 22, sw, 2)
    a("s_endpgm")
    vW, vX, vA, vt = 32, 96, 112, 2
    def W(m, ab, s): return vW + 32*m + 16*ab + 4*s
    a(f"""
    K1_GEMM:
    s_sub_u32 s{stask}, s2, {NCH}
    s_and_b32 s{sfb}, s{sw}, 3
    s_lshr_b32 s{sng}, s{sw}, 2
    v_and_b32 v{vt}, 63, v0
    v_lshrrev_b32 v{vt+1}, 4, v{vt}
    v_and_b32 v{vt+2}, 15, v0
    s_lshl_b32 s{st0}, s{sfb}, 2
    v_add_u32 v{vt+3}, s{st0}, v{vt+1}
    v_xor_b32 v{vt+3}, v{vt+3}, v{vt+2}
    v_lshlrev_b32 v{vt+3}, 4, v{vt+3}
    v_lshl_add_u32 v{vt+3}, v{vt+1}, 8, v{vt+3}
    v_lshlrev_b32 v{vt+4}, 2, v{vt+1}
    v_xor_b32 v{vt+4}, v{vt+4}, v{vt+2}
    v_lshlrev_b32 v{vt+4}, 4, v{vt+4}
    v_lshl_add_u32 v{vt+4}, v{vt+1}, 8, v{vt+4}
    s_mul_i32 s{st0}, s{stask}, 20480
    s_cmp_lt_u32 s{stask}, 125
    s_cselect_b32 s{st0}, s{st0}, 0
    s_cselect_b32 s{st2}, 20480, 0
    s_waitcnt lgkmcnt(0)
    """)
    a(f"""
    s_cmp_ge_u32 s{stask}, 126
    s_cbranch_scc1 K1_WC
    s_add_u32 s{sX}, s4, s{st0}
    s_addc_u32 s{sX+1}, s5, 0
    s_mov_b32 s{sX+2}, s{st2}
    s_mov_b32 s{sX+3}, 0x20000
    s_lshl_b32 s{st1}, s{sw}, 10
    s_add_u32 m0, s{st1}, {K1_X}
    s_cmp_eq_u32 s{stask}, 125
    s_cselect_b64 {sr(sW1,2)}, s[12:13], s[14:15]
    s_cselect_b64 {sr(sW2,2)}, s[18:19], s[20:21]
    """)
    if OPT.get("touch", "0") == "1":
        a(f"""
        s_bitcmp1_b32 s2, 3
        s_cselect_b64 {sr(sS,2)}, {sr(sW1,2)}, {sr(sW2,2)}
        s_bitcmp1_b32 s2, 4
        s_cselect_b32 s{sS+2}, 4, 0
        s_mov_b32 s{sS+3}, 0x20000
        buffer_load_dword v30, v1, {sr(sS,4)}, 0 offen
        """)
    a(f"""
    buffer_load_dwordx4 v{vt+3}, {sr(sX,4)}, s{st1} offen lds
    s_cmp_lt_u32 s{sw}, 4
    s_cbranch_scc0 K1_X1
    s_add_u32 m0, s{st1}, {K1_X+16384}
    s_add_u32 s{st1}, s{st1}, 16384
    buffer_load_dwordx4 v{vt+3}, {sr(sX,4)}, s{st1} offen lds
    K1_X1:
    s_mov_b32 s{sW1+2}, 32768
    s_mov_b32 s{sW1+3}, 0x20000
    s_mov_b32 s{sW2+2}, 32768
    s_mov_b32 s{sW2+3}, 0x20000
    s_lshr_b32 s{st1}, s2, 3
    s_add_u32 s{st1}, s{st1}, s{sw}
    s_and_b32 s{st1}, s{st1}, 15
    s_lshl_b32 s{st1}, s{st1}, 11
    s_mov_b32 m0, s{st1}
    s_mul_i32 s{st0}, s{stask}, {80*TS}
    buffer_load_dwordx4 v{vt+4}, {sr(sW1,4)}, s{st1} offen lds
    buffer_load_dwordx4 v{vt+4}, {sr(sW1,4)}, s{st1} offen offset:1024 lds
    s_add_u32 m0, s{st1}, 32768
    s_add_u32 s{st0}, s{st0}, {T_OFF}
    buffer_load_dwordx4 v{vt+4}, {sr(sW2,4)}, s{st1} offen lds
    buffer_load_dwordx4 v{vt+4}, {sr(sW2,4)}, s{st1} offen offset:1024 lds
    """)
    srd(a, sT, 22, f"s{st0}", 80*TS)
    a(f"""
    v_bfe_u32 v{vt+5}, v0, 2, 2
    v_and_b32 v{vt+6}, 3, v0
    s_lshl_b32 s{st0}, s{sfb}, 2
    v_add_u32 v{vt+6}, s{st0}, v{vt+6}
    v_lshlrev_b32 v{vt+7}, 2, v{vt+5}
    v_xor_b32 v{vt+6}, v{vt+6}, v{vt+7}
    v_lshl_add_u32 v{vt+5}, v{vt+1}, 3, v{vt+5}
    v_lshlrev_b32 v{vt+5}, 8, v{vt+5}
    v_lshl_add_u32 v10, v{vt+6}, 4, v{vt+5}
    v_xor_b32 v11, v{vt+1}, v{vt+2}
    v_lshlrev_b32 v11, 4, v11
    v_lshl_add_u32 v11, v{vt+2}, 8, v11
    s_lshl_b32 s{st0}, s{sng}, 12
    s_add_u32 s{st0}, s{st0}, {K1_X}
    v_add_u32 v11, s{st0}, v11
    v_mul_u32_u24 v12, {TS}, v{vt+2}
    v_lshl_add_u32 v12, v{vt+1}, 4, v12
    s_mul_i32 s{st0}, s{sng}, {16*TS}
    s_lshr_b32 s{st1}, s{sfb}, 1
    s_lshl_b32 s{st1}, s{st1}, 8
    s_add_u32 s{st0}, s{st0}, s{st1}
    s_and_b32 s{st1}, s{sfb}, 1
    s_lshl_b32 s{st1}, s{st1}, 6
    s_add_u32 s{ctso}, s{st0}, s{st1}
    s_mov_b32 s{cnl2e}, {NL2E:#x}
    s_mov_b32 s{csign}, 0x00800000
    s_mov_b32 s{cmag}, 0x7fffffff
    s_mov_b32 s{cp0}, 0x07060100
    s_mov_b32 s{cp0+1}, 0x07060302
    v_xor_b32 v13, 64, v11
    v_xor_b32 v14, 0x80, v11
    v_xor_b32 v15, 0xc0, v11
    """)
    stamp(a, 1)
    a("s_waitcnt vmcnt(0)")
    stamp(a, 2)
    a("s_barrier")
    stamp(a, 3)
    def xrd(off):
        for s in range(4): a(f"ds_read_b128 {vr(vX+4*s,4)}, v{[11,13,14,15][s]} offset:{off}")
    xrd(0)
    n = 4
    for s in range(4):
        for m in range(2):
            for ab in range(2):
                for u in range(2):
                    a(f"ds_read_b64_tr_b16 {vr(W(m,ab,s)+2*u,2)}, v10 offset:{m*32768+s*8192+u*1024+ab*8}")
        if s < 3: a("s_waitcnt lgkmcnt(6)")
    a(f"s_cmp_eq_u32 s{stask}, 125\ns_cbranch_scc1 K1_WT")
    def mm():
        for s in range(4):
            for m in range(2):
                for ab in range(2):
                    d = vr(vA+8*m+4*ab, 4)
                    a(f"v_mfma_f32_16x16x32_bf16 {d}, {vr(W(m,ab,s),4)}, {vr(vX+4*s,4)}, {'0' if s == 0 else d}")
    def pack(so):
        a("s_nop 7")
        for b in range(2):
            for ab in range(2):
                b0, b1 = vA+4*ab+b, vA+4*ab+2+b
                a(f"v_mul_f32 v{b0}, s{cnl2e}, v{b0}\nv_mul_f32 v{b1}, s{cnl2e}, v{b1}")
                for e_ in range(2):
                    h = vA+8+4*ab+2*e_+b
                    a(f"v_max_f32 v{16+e_}, abs(v{h}), s{csign}\nv_bfi_b32 v{h}, s{cmag}, v{16+e_}, v{h}")
                a(f"v_cvt_pk_bf16_f32 v{b0}, v{b0}, v{b1}")
                for e_ in range(2):
                    h = vA+8+4*ab+2*e_+b
                    a(f"v_add_u32 v{h}, 0x8000, v{h}")
                for e_ in range(2):
                    h = vA+8+4*ab+2*e_+b
                    a(f"v_sub_u32_sdwa v{h}, v{h}, v{b0} dst_sel:DWORD dst_unused:UNUSED_PAD src0_sel:DWORD src1_sel:WORD_{e_}")
                for e_ in range(2):
                    h = vA+8+4*ab+2*e_+b
                    a(f"v_perm_b32 v{20+4*b+2*ab+e_}, v{h}, v{b0}, s{cp0+e_}")
            a(f"buffer_store_dwordx4 {vr(20+4*b,4)}, v12, {sr(sT,4)}, s{so} offen offset:{128*b} {OPT['st_t']}")
    a("s_waitcnt lgkmcnt(0)")
    mm()
    stamp(a, 4)
    a(f"s_cmp_eq_u32 s{sng}, 0\ns_cbranch_scc0 K1_ONE")
    xrd(16384)
    pack(ctso)
    a(f"s_add_u32 s{ctso}, s{ctso}, {64*TS}\ns_waitcnt lgkmcnt(0)")
    mm()
    a("K1_ONE:")
    pack(ctso)
    stamp(a, 5); stamp(a, 6); stamp(a, 7)
    stamp_out(a, 0, 22, sw, 2)
    a("s_endpgm")
    a("K1_WT:")
    srd(a, sT, 22, WT_OFF, 65536)
    a(f"""
    s_cmp_ge_u32 s{sw}, 8
    s_cbranch_scc1 K1_END
    v_lshlrev_b32 v{vt+1}, 4, v{vt}
    s_lshl_b32 s{st0}, s{sw}, 13
    s_add_u32 s{st1}, s{st0}, 4096
    s_waitcnt lgkmcnt(0)
    s_cmp_eq_u32 s{sng}, 0
    s_cbranch_scc0 K1_WU
    """)
    for m in range(2):
        for ab in range(2):
            for s in range(4):
                a(f"buffer_store_dwordx4 {vr(W(m,ab,s),4)}, v{vt+1}, {sr(sT,4)}, s{st1 if ab else st0} offen offset:{1024*s} {OPT['st_t']}")
        a("s_endpgm")
        if m == 0: a("K1_WU:")
    a("K1_WC:")
    srd(a, sT, 22, WT_OFF+65536, 4096)
    srd(a, sW1, 16, None, 4096)
    a(f"""
    s_cmp_eq_u32 s{stask}, 126
    s_cbranch_scc0 K1_END
    s_cmp_ge_u32 s{sw}, 4
    s_cbranch_scc1 K1_END
    v_lshrrev_b32 v{vt+2}, 5, v{vt}
    v_and_b32 v{vt+3}, 31, v0
    v_lshlrev_b32 v{vt+3}, 2, v{vt+3}
    v_lshl_add_u32 v{vt+3}, v{vt+2}, 11, v{vt+3}
    v_lshlrev_b32 v{vt+1}, 4, v{vt}
    s_lshr_b32 s{st1}, s{sw}, 1
    s_lshl_b32 s{st1}, s{st1}, 7
    s_and_b32 s{st0}, s{sw}, 1
    s_lshl_b32 s{st0}, s{st0}, 1
    s_add_u32 s{st1}, s{st1}, s{st0}
    s_lshl_b32 s{st0}, s{sw}, 10
    s_mov_b32 s{cnl2e}, {NL2E:#x}
    """)
    for j in range(8):
        a(f"buffer_load_ushort v{20+j}, v{vt+3}, {sr(sW1,4)}, s{st1} offen offset:{256*j}")
    a("s_waitcnt vmcnt(0)")
    for j in range(8):
        a(f"v_lshlrev_b32 v{20+j}, 16, v{20+j}\nv_mul_f32 v{20+j}, s{cnl2e}, v{20+j}")
    for j in range(4):
        a(f"v_cvt_pk_bf16_f32 v{28+j}, v{20+2*j}, v{21+2*j}")
    a(f"buffer_store_dwordx4 v[28:31], v{vt+1}, {sr(sT,4)}, s{st0} offen {OPT['st_t']}")
    a("K1_END:\ns_endpgm")
    return a.text(), kd("k1_kernel", 128, 102)

CAPG = 416; RND = 400
CNT = 0; FLG = 256; START = 512; INCL = 768; OHL = 1024; L1 = 1536; L2 = L1 + 4*CAPG*4; APL = L2 + 4*CAPG*4
ROWP = 272
UL = APL + 48*ROWP; LUTL = UL + 48*ROWP; STG = (LUTL + 65536 + 255)//256*256; XL = STG + 3*CAPG*32 + 5*1024; K2_LDS = XL + 12288
PROG = FLG + 16
assert K2_LDS <= 163840 and K2_LDS >= STG + 4*CAPG*32 and LUTL <= 65535 and (4*CAPG*4) % 256 == 0

def gen_k2():
    a = Asm()
    sREC, sX, sWT, sT, sE, sO, sD, sS = 24, 28, 32, 36, 40, 44, 68, 72
    sw, sg, sfh, st0, st1, st2 = 48, 49, 50, 51, 52, 53
    scount, sslow, sround, slim, sgb, srt, slut, srank = 54, 55, 56, 57, 58, 59, 82, 83
    sdma, sm0, sneed = 21, 22, 23
    cm32, c128, cnl2e, cfc, csrc, cm40, cm10, cfe = 60, 61, 62, 63, 64, 65, 66, 67
    sk = 16
    vH16, vA1, vA2, vEa, vOa, vO, vA3 = 1, 2, 3, 4, 5, 6, 7
    WC = 8; AP = 16; PA = 24; SC = 28; OH = 32; EA = 40; ADDR = 48; ACC = 64; SP = 96; G = 112; RAW = 176
    XR = 240; UR = 246; vP16 = 252; vH256 = 253; vHS = 254; vPG = 255; vM15 = XR; vO2 = SP+8
    raw = lambda p, b: RAW + 32*p + 16*b
    gb = lambda p, b: G + 32*p + 16*b
    vt = gb(1, 1); Z = SP; EOFF = SP+14
    REC = raw(1, 0); CADDR = REC+16; RANK = G; STV = G+16
    NTB = [int(c_) for c_ in OPT.get("nt", "11")]
    rowoff = lambda r: 8*(r >> 2) + (r & 3)
    sd = "dst_sel:DWORD dst_unused:UNUSED_PAD src0_sel:DWORD"

    a("k2_kernel:")
    a(f"s_cmp_ge_u32 s2, {NBIN}\ns_cbranch_scc1 K2_END")
    stamp(a, 0)
    a(f"""
    s_load_dwordx8 s[4:11], s[0:1], 0
    s_load_dwordx2 s[12:13], s[0:1], 72
    s_load_dwordx2 s[14:15], s[0:1], 88
    v_lshrrev_b32 v{vt}, 6, v0
    v_lshrrev_b32 v{vt+1}, 2, v0
    v_readfirstlane_b32 s{sw}, v{vt}
    v_and_b32 v{vt+2}, 3, v0
    v_lshlrev_b32 v{vt+3}, 7, v{vt+1}
    v_lshl_add_u32 v{vt+3}, v{vt+2}, 4, v{vt+3}
    s_lshl_b32 s{st0}, s2, 14
    s_add_u32 s{st0}, s{st0}, {REC_OFF}
    v_and_b32 v{vt}, 63, v0
    v_lshlrev_b32 v{vt+5}, 3, v{vt}
    v_mov_b32 v{Z}, 0
    v_mov_b32 v{Z+1}, 0
    ds_write_b64 v{vt+5}, {vr(Z,2)} offset:{CNT}
    s_and_b32 s{sg}, s{sw}, 3
    s_lshr_b32 s{sfh}, s{sw}, 2
    v_lshlrev_b32 v{vA2}, 4, v{vt}
    s_mov_b32 s{st1}, 8192
    s_waitcnt lgkmcnt(0)
    s_cmp_lg_u32 s{sfh}, 0
    s_cbranch_scc1 K2_NOREC
    """)
    srd(a, sREC, 14, f"s{st0}", 16384)
    for u in range(2):
        for r in range(2):
            a(f"buffer_load_dwordx4 {vr(REC+8*r+4*u,4)}, v{vt+3}, {sr(sREC,4)}, {'s%d' % st1 if u else '0'} offen offset:{64*r}")
    a(f"K2_NOREC:\ns_mul_i32 s{st0}, s2, {BN*256}")
    srd(a, sX, 4, f"s{st0}", BN*256)
    srd(a, sWT, 14, WT_OFF, LUT_OFF - WT_OFF + 65536)
    a("s_barrier")
    stamp(a, 1)
    def common1():
        a(f"""
        s_lshl_b32 s{st1}, s{sfh}, 11
        s_add_u32 s{st1}, s{st1}, 65536
        buffer_load_dwordx4 {vr(WC,4)}, v{vA2}, {sr(sWT,4)}, s{st1} offen
        buffer_load_dwordx4 {vr(WC+4,4)}, v{vA2}, {sr(sWT,4)}, s{st1} offen offset:1024
        s_mul_i32 s{st0}, s2, {BN*256}
        """)
        srd(a, sO, 12, f"s{st0}", BN*256)
        a(f"s_lshl_b32 s{st0}, s{sfh}, 8\ns_add_u32 s{st0}, s{st0}, {T_OFF-128}")
        srd(a, sT, 14, f"s{st0}", 64, w3="0x800000", hi_or="0x40000")
        srd(a, sE, 6, None, E*32)
        a(f"""
        s_mov_b32 s{cm32}, {'0x7e0' if 'e' in OPT.get('nomem','') else '0x1fffe0' if 's' in OPT.get('nomem','') else '0xffffffe0'}
        s_mov_b32 s{c128}, 128
        s_mov_b32 s{cnl2e}, {NL2E:#x}
        s_mov_b32 s{cfc}, 0xfc
        s_mov_b32 s{cfe}, {OPT.get('cfe', '0xfffe')}
        s_mov_b32 s{csrc}, {TS}
        s_mov_b32 s{sslow}, 0
        s_mov_b32 s{sround}, 0
        s_mov_b32 s{sgb}, 0
        s_mul_i32 s{st0}, s{sfh}, 3
        s_xor_b32 s{srank}, s{sg}, s{st0}
        v_lshrrev_b32 v{vt+3}, 5, v{vt}
        v_and_b32 v{vt+4}, 31, v0
        v_lshlrev_b32 v{vH16}, 4, v{vt+3}
        v_lshlrev_b32 v{vH256}, 8, v{vt+3}
        v_cmp_eq_u32 vcc, 0, v{vt+3}
        v_mov_b32 v{vM15}, 0xffff
        v_mov_b32 v{Z+4}, -1
        v_cndmask_b32 v{vM15}, v{vM15}, v{Z+4}, vcc
        v_and_b32 v{Z+4}, 3, v0
        v_mov_b32 v{Z+6}, 0x3f80
        """)
        for i in range(4):
            a(f"v_cmp_eq_u32 vcc, {i}, v{Z+4}\ns_nop 1\nv_cndmask_b32 v{PA+i}, 0, v{Z+6}, vcc")
        den = bf(127*2.0**-116); tiny = bf(2.0**-100)
        a(f"""
        v_cmp_gt_u32 s[78:79], 16, v{vt+4}
        v_mov_b32 v{Z+5}, {den:#x}
        v_mov_b32 v{Z+7}, {tiny<<16:#x}
        v_cndmask_b32 v{Z+5}, v{Z+6}, v{Z+5}, s[78:79]
        v_cndmask_b32 v{Z+7}, 0, v{Z+7}, s[78:79]
        v_and_b32 v{Z+4}, 15, v0
        v_lshlrev_b32 v{Z+8}, 3, v{vt+3}
        v_sub_u32 v{Z+4}, v{Z+4}, v{Z+8}
        v_lshlrev_b32 v{Z+6}, 16, v{Z+5}
        """)
        for d in range(4):
            a(f"""
            v_cmp_eq_u32 vcc, {2*d}, v{Z+4}
            v_cmp_eq_u32 s[78:79], {2*d+1}, v{Z+4}
            s_nop 0
            v_cndmask_b32 v{SC+d}, 0, v{Z+5}, vcc
            v_cndmask_b32 v{Z+8}, 0, v{Z+6}, s[78:79]
            v_or_b32 v{SC+d}, v{SC+d}, v{Z+8}
            """)
        a(f"""
        v_and_b32 v{SC+3}, v{SC+3}, v{vM15}
        v_not_b32 v{Z+8}, v{vM15}
        v_and_b32 v{Z+8}, v{Z+8}, v{Z+7}
        v_or_b32 v{SC+3}, v{SC+3}, v{Z+8}
        """)
        for r in range(16): a(f"v_mov_b32 v{ADDR+r}, 128")
    def ld_xr(): return [f"buffer_load_dword v{XR+r}, v{vO}, {sr(sX,4)}, 0 offen offset:{256*rowoff(r)} " for r in range(6)]
    def spin(k, n):
        a(f"""
        v_mov_b32 v{vt+6}, {FLG+4*k}
        v_mov_b32 v{vt+7}, 1
        s_mov_b64 exec, 1
        ds_add_u32 v{vt+6}, v{vt+7}
        s_mov_b64 exec, -1
        K2_SPIN{n}:
        ds_read_b32 v{vt+7}, v{vt+6}
        s_waitcnt lgkmcnt(0)
        v_cmp_gt_u32 vcc, 4, v{vt+7}
        s_cbranch_vccnz K2_SPIN{n}
        """)
    def caddr(k): return f"v_and_b32_sdwa v{CADDR+k}, s{cfc}, v{REC+k} {sd} src1_sel:BYTE_3"
    def pick(sel, cur):
        a(f"""
        s_bitcmp1_b32 s{sel}, 0
        s_cselect_b32 s{cur[0]}, s{cur[1]}, s{cur[0]}
        s_cselect_b32 s{cur[2]}, s{cur[3]}, s{cur[2]}
        s_bitcmp1_b32 s{sel}, 1
        s_cselect_b32 s{st0}, s{cur[2]}, s{cur[0]}
        s_and_b32 s{sg}, s{st0}, 3
        s_andn2_b32 s{st0}, s{st0}, 3
        s_mul_i32 s{sgb}, s{sg}, {CAPG*4}
        s_add_u32 s{scount}, s{st0}, 127
        s_lshr_b32 s{scount}, s{scount}, 7
        """)
    def rank_groups():
        for g in range(1, 4): a(f"s_or_b32 s{sk+g}, s{sk+g}, {g}")
        cur = [sk, sk+1, sk+2, sk+3]; spare = sk+4
        for (i, j) in ((0, 1), (2, 3), (0, 2), (1, 3), (1, 2)):
            a(f"s_max_u32 s{spare}, s{cur[i]}, s{cur[j]}\ns_min_u32 s{cur[j]}, s{cur[i]}, s{cur[j]}")
            cur[i], spare = spare, cur[i]
        pick(srank, cur)
    def scan(fast):
        x = SP
        a(f"""
        v_and_b32 v{vt}, 63, v0
        v_lshlrev_b32 v{vt+1}, 2, v{vt}
        ds_read_b32 v{x}, v{vt+1} offset:{CNT}
        v_lshrrev_b32 v{vt}, 4, v{vt}
        v_mul_u32_u24 v{vt}, {CAPG*4}, v{vt}
        v_and_b32 v{vt+2}, 31, v0
        v_lshlrev_b32 v{vt+2}, 2, v{vt+2}
        v_mov_b32 v{vt+4}, 0xfffffe
        s_waitcnt lgkmcnt(0)
        v_sub_u32 v{vt}, v{vt}, v{x}
        """)
        for d in ("row_shr:1", "row_shr:2", "row_shr:4", "row_shr:8"):
            a(f"v_add_u32_dpp v{x}, v{x}, v{x} {d} row_mask:0xf bank_mask:0xf bound_ctrl:0\ns_nop 1")
        a(f"""
        v_add_u32 v{vt}, v{vt}, v{x}
        v_cmp_lt_u32 vcc, {CAPG*4}, v{x}
        ds_write2st64_b32 v{vt+1}, v{vt}, v{x} offset0:{START//256} offset1:{INCL//256}
        """)
        for g in range(4): a(f"v_readlane_b32 s{sk+g}, v{x}, {16*g+15}")
        if fast:
            a("s_cbranch_vccnz K2_JOIN")
            for k in range(8): a(f"ds_read_b32 v{STV+k}, v{CADDR+k} offset:{START}")
            rank_groups()
        else:
            for g in range(1, 4): a(f"s_or_b32 s{sk+g}, s{sk+g}, {g}")
            pick(sg, [sk, sk+1, sk+2, sk+3])
        a(f"""
        s_add_u32 s{st0}, s{st0}, s{sgb}
        v_add_u32 v{vt+2}, s{st0}, v{vt+2}
        s_lshl_b32 s{st1}, s{scount}, 7
        s_add_u32 s{st1}, s{st1}, s{sgb}
        v_lshlrev_b32 v{vt+3}, 3, v{vt+2}
        v_and_b32 v{vt+3}, 128, v{vt+3}
        v_cmpx_gt_u32 vcc, s{st1}, v{vt+2}
        ds_write2st64_b32 v{vt+2}, v{vt+3}, v{vt+4} offset0:{L1//256} offset1:{L2//256}
        s_mov_b64 exec, -1
        """)
    def place(k, st, eo):
        a(f"""
        v_add_u32 v{st}, v{st}, v{RANK+k}
        v_bfe_u32 v{vt}, v{REC+k}, 16, {5 if 't' in OPT.get('nomem','') else 14}
        v_lshlrev_b32 v{vt+1}, 3, v{st}
        v_mad_u32_u16 v{vt+2}, v{REC+k}, 2, v{eo}
        v_and_b32 v{vt+1}, 128, v{vt+1}
        v_mad_u32_u24 v{vt}, v{vt}, s{csrc}, v{vt+1}
        ds_write2st64_b32 v{st}, v{vt}, v{vt+2} offset0:{L1//256} offset1:{L2//256}
        """)
    def lane_setup():
        a(f"""
        v_and_b32 v{vt}, 31, v0
        v_xor_b32 v{vA1}, 16, v{vH16}
        v_xor_b32 v{vA2}, 4, v{vt}
        v_lshlrev_b32 v{vA2}, 2, v{vA2}
        v_add_u32 v{vA1}, s{sgb}, v{vA1}
        v_add_u32 v{vA2}, s{sgb}, v{vA2}
        s_mul_i32 s{st0}, s{sg}, {GN*256}
        s_lshl_b32 s{st1}, s{sfh}, 7
        s_add_u32 s{st0}, s{st0}, s{st1}
        v_lshlrev_b32 v{vO}, 2, v{vt}
        v_lshl_add_u32 v{vO}, v{vH256}, 2, v{vO}
        v_add_u32 v{vO}, s{st0}, v{vO}
        v_bfe_u32 v{vA3}, v0, 1, 5
        v_lshlrev_b32 v{vA3}, 2, v{vA3}
        v_add_u32 v{vA3}, s{sgb}, v{vA3}
        v_lshlrev_b32 v{vP16}, 4, v0
        v_xor_b32 v{vP16}, v{vP16}, v0
        v_and_b32 v{vP16}, 16, v{vP16}
        v_lshlrev_b32 v{vHS}, 1, v0
        v_xor_b32 v{vHS}, v{vHS}, v{vH16}
        v_and_b32 v{vHS}, 16, v{vHS}
        v_add_u32 v{vHS}, {STG}, v{vHS}
        s_lshl_b32 s{st0}, s{sg}, 2
        s_add_u32 s{st0}, s{st0}, {PROG}
        v_mov_b32 v{vPG}, s{st0}
        s_lshl_b32 s{sm0}, s{sgb}, 3
        s_add_u32 s{sm0}, s{sm0}, {STG}
        s_mov_b32 s{sdma}, 0
        s_mov_b32 s{sneed}, 0
        s_mov_b32 s{slim}, s{scount}
        """)
    def rd_addr(off, j): return f"ds_read_b128 {vr(ADDR+4*j,4)}, v{vA1} offset:{L1+off+32*j}"
    def rd_l2(reg, off): return f"ds_read_b32 v{reg}, v{vA2} offset:{L2+off}"
    def ld_raw(p, b, r):
        pre = [f"v_and_b32 v{ADDR+r}, 0xffff80, v{ADDR+r}"] if OPT.get("safe") else []
        if OPT.get("noload"): return ["s_nop 0"]
        return pre + [f"buffer_load_dword v{raw(p,b)+r}, v{ADDR+r}, {sr(sT,4)}, 0 offen" + (" offset:128" if b else "")]
    def ld_blk(p, b): return sum((ld_raw(p, b, r) for r in range(16)), [])
    cur = {"r": "P"}
    def rd_l3(off): return [f"ds_read_b32 v{vEa}, v{vA3} offset:{L2+off}"] if cur["r"] == "P" else []
    lab = [0]
    def dma_ea(sl):
        if cur["r"] != "P": return []
        lab[0] += 1
        return [f"s_cmp_lt_u32 s{sdma}, s{slim}", f"s_cbranch_scc0 K2_ND{lab[0]}", "@D{",
                f"s_mov_b32 m0, s{sm0}", f"v_and_or_b32 v{vEa}, v{vEa}, s{cm32}, v{vP16}",
                f"buffer_load_dwordx4 v{vEa}, {sr(sE,4)}, 0 offen lds;wr={300+sl}", "@}", f"K2_ND{lab[0]}:",
                f"s_add_u32 s{sdma}, s{sdma}, 1", f"s_add_u32 s{sm0}, s{sm0}, 1024"]
    spins = []
    def rd_prog(): return [f"ds_read_b32 v{vEa}, v{vPG}"] if cur["r"] == "C" else []
    def get_ea(p, sl, off):
        o = [f"s_add_u32 s{sneed}, s{sneed}, 1"]
        if cur["r"] == "P":
            o += [f"v_mov_b32 v{vEa}, s{sneed};rd={300+sl}", f"ds_write_b32 v{vPG}, v{vEa}"]
        else:
            lab[0] += 1; n = lab[0]; spins.append(n)
            o += [f"v_cmp_gt_u32 vcc, s{sneed}, v{vEa}", f"s_cbranch_vccnz K2_SP{n}", f"K2_OK{n}:"]
        return o + [f"v_lshl_add_u32 v{vEa}, v{vA2}, 3, v{vHS}", f"ds_read_b128 {vr(EA+4*p,4)}, v{vEa} offset:{8*off}"]
    def oh_idx(p):
        return [f"v_and_b32 v{vOa}, 30, v{vOa}",
                f"v_lshl_add_u32 v{vOa}, v{vOa}, 3, v{vH256}",
                f"ds_read_b128 {vr(OH+4*p,4)}, v{vOa} offset:{OHL}"]
    big = "v_mfma_f32_32x32x16_bf16" if not OPT.get("nobig") else "; "
    de = OPT.get("drop", "")
    def mE(p, b): return "; " if "E" in de else f"{big} {vr(gb(p,b),16)}, {vr(EA+4*p,4)}, {vr(WC+4*b,4)}, 0"
    def mA(p, b): return "; " if "A" in de else f"{big} {vr(gb(p,b),16)}, {vr(OH+4*p,4)}, {vr(AP+4*b,4)}, {vr(gb(p,b),16)}"
    def mS(p): return "; " if "S" in de else f"{big} {vr(SP,16)}, {vr(OH+4*p,4)}, {vr(SC,4)}, 0"
    def mG(p, b, j): return "; " if ("G" in de or ("g" in de and j & 1)) else f"{big} {vr(ACC+16*b,16)}, {vr(SP+4*j,4)}, {vr(gb(p,b)+4*j,4)}, {vr(ACC+16*b,16)}"
    def mP(p, b):
        o = []
        for u in range(2):
            for j in range(4):
                g = vr(gb(p,b)+4*j, 4)
                o.append(f"v_mfma_f32_4x4x4_16b_bf16 {g}, {vr(PA+2*u,2)}, {vr(raw(p,b)+4*j+2*u,2)}, {g}")
        return o
    def idx_pair(p, b, i):
        g0, g1 = gb(p,b)+2*i, gb(p,b)+2*i+1
        if i < NTB[b]:
            return [f"v_exp_f32 v{g0}, v{g0}", f"v_exp_f32 v{g1}, v{g1}", f"v_add_f32 v{g0}, 1.0, v{g0}",
                    f"v_add_f32 v{g1}, 1.0, v{g1}", f"v_rcp_f32 v{g0}, v{g0}", f"v_rcp_f32 v{g1}, v{g1}"], []
        return [f"v_cvt_pkrtz_f16_f32 v{g0}, v{g0}, v{g1}",
                f"v_and_b32_sdwa v{g1}, s{cfe}, v{g0} {sd} src1_sel:WORD_1",
                f"v_and_b32_sdwa v{g0}, s{cfe}, v{g0} {sd} src1_sel:WORD_0"], \
               [f"ds_read_u16_d16_hi v{g1}, v{g1} offset:{LUTL}", f"ds_read_u16_d16_hi v{g0}, v{g0} offset:{LUTL}"]
    def fin_pair(p, b, i):
        g0, r0 = gb(p,b)+2*i, raw(p,b)+2*i
        mul = [f"v_pk_mul_f32 {vr(r0,2)}, {vr(g0,2)}, {vr(r0,2)}"] if OPT.get("pk") else [f"v_mul_f32 v{r0}, v{g0}, v{r0}", f"v_mul_f32 v{r0+1}, v{g0+1}, v{r0+1}"]
        return mul + [
                f"v_cvt_pk_bf16_f32 v{g0}, v{g0}, v{r0}", f"v_cvt_pk_bf16_f32 v{g0+1}, v{g0+1}, v{r0+1}"]
    def zipl(x, y):
        o = []
        for k in range(max(len(x), len(y))):
            if k < len(x): o.append(x[k])
            if k < len(y): o.append(y[k])
        return o
    uid = [0]
    def W(kind):
        uid[0] += 1
        return f"@W{kind} {uid[0]}"
    WE = int(OPT.get("we", "1"))
    def slot(p, b, kind, acc=True):
        q = 1-p
        nxt = (p, 1) if b == 0 else (q, 0)
        do_idx = b == 0 or kind != "L"
        gs = [[mG(q if b == 0 else p, 1-b, j)] for j in range(4)] if acc else []
        bigs = gs[:2]
        if kind != "L": bigs += [[mE(q, b)], [mA(q, b)]]
        bigs += gs[2:]
        if b == 0: bigs += [[mS(p)]]
        smalls = mP(q, b) if kind != "L" else []
        out = []
        nb = 0
        for i in range(8):
            iv, il = idx_pair(*nxt, i) if do_idx else ([], [])
            fv = fin_pair(p, b, i)
            seq = zipl(iv, fv) + il
            if kind == "F":
                seq += ld_raw(p, b, 2*i) + ld_raw(p, b, 2*i+1)
                if b == 1 and i & 1: seq.append(rd_addr((3+p)*128, i >> 1))
                if b == 0 and i == 1: seq += rd_l3((3+p)*128)
                if b == 1 and i == 0: seq = dma_ea(q) + seq
                if b == 1 and i == 1: seq += rd_prog()
                if b == 1 and i == 6: seq += get_ea(p, p, (2+p)*128)
                if b == 0 and i == 5: seq.append(rd_l2(vOa, (2+p)*128))
                if b == 1 and i == 2: seq += oh_idx(p)
            pre = [W("l")] if i % WE == 0 else []
            if cur["r"] == "P" and kind != "L":
                if (b, i) == (0, 0): pre.append("s_setprio 2")
                if (b, i) == divmod(int(OPT.get("fair", "12")), 8): pre.append("s_setprio 0")
            if i < 6:
                take = 2 if (len(bigs) - nb) > (6 - i) else 1
                if nb < len(bigs): pre += bigs[nb]; nb += 1
                if take == 2 and nb < len(bigs):
                    seq = seq[:6] + bigs[nb] + seq[6:]; nb += 1
            if smalls and i >= 5:
                k0, k1 = {5: (0, 2), 6: (2, 6), 7: (6, 8)}[i]
                sm = smalls[k0:k1]
                if i == 5: seq = seq[:4] + [W("v")] + zipl(sm, seq[4:])
                else: seq = zipl(sm, seq)
            out += pre + seq
        assert nb == len(bigs)
        return out
    def body(p, kind):
        q = 1-p; n = f"{kind}{p}{cur['r']}"
        o0 = [f"K2_BODY{n}:"] + slot(p, 0, kind)
        o1 = [f"K2_MID{n}:"] + (ld_xr() if kind == "L" else []) + slot(p, 1, kind)
        if kind == "F":
            if p == 1: o1 += [f"v_add_u32 v{r_}, 256, v{r_}" for r_ in ((vA1, vA2, vA3) if cur["r"] == "P" else (vA1, vA2))]
            o1 += [f"s_sub_u32 s{scount}, s{scount}, 1", f"s_cmp_eq_u32 s{scount}, 2", f"s_cbranch_scc1 K2_BODYP{q}{cur['r']}"]
        return o0, o1
    def entry(kind):
        more = kind != "L"
        o = [rd_l2(vOa, 0)] + rd_prog()
        if more: o += [rd_addr(128, j) for j in range(4)]
        o += [W("l")] + oh_idx(0) + [W("v")] + get_ea(0, 0, 0)
        if more: o += rd_prog() + [rd_l2(vOa, 128)]
        o += [W("l"), "@STAMP", mE(0, 0), mA(0, 0), mE(0, 1), mA(0, 1)]
        if more: o += [W("v")] + get_ea(1, 1, 128) + rd_l3(256) + ld_blk(1, 0)
        else: o += ["s_nop 7"]
        o += [W("v")] + mP(0, 0)
        if more: o += [W("l")] + oh_idx(1) + dma_ea(0)
        o += ["s_nop 1"]
        for i in range(8):
            v_, l_ = idx_pair(0, 0, i)
            o += [W("l")] + ([v_[0], v_[1], "s_nop 0"] + v_[2:] if i < NTB[0] else v_) + l_
            if more:
                o += ld_raw(1, 1, 2*i) + ld_raw(1, 1, 2*i+1)
                if i & 1: o.append(rd_addr(256, i >> 1))
            if i == 3: o += [W("v")] + mP(0, 1)
        return o + slot(0, 0, kind, acc=False) + [f"s_branch K2_MID{kind}0{cur['r']}"]
    def drain(p): return ["s_nop 1"] + [mG(p, 1, j) for j in range(4)]
    def mk_fill():
        ad = [rd_addr(0, j) for j in range(4)]
        if cur["r"] == "P":
            o = (rd_l3(0) + [f"ds_read_b32 v{vOa}, v{vA3} offset:{L2+128}"] + ad + ["s_waitcnt lgkmcnt(4)"] + dma_ea(0)
                 + [f"v_mov_b32 v{vEa}, v{vOa}"] + dma_ea(1))
        else: o = ad
        return o + ["s_waitcnt lgkmcnt(0)"] + ld_blk(0, 0) + ld_blk(0, 1)
    FI, B, EN = {}, {}, {}
    for r in "PC":
        cur["r"] = r
        FI[r] = mk_fill()
        for k in "FPL":
            EN[r, k] = entry(k)
            for p in range(2): B[r, p, k] = body(p, k)
    def trace(r, cnt):
        kinds = ["F"]*(cnt-2) + ["P", "L"][-min(cnt, 2):]
        tr = FI[r] + EN[r, kinds[0]] + B[r, 0, kinds[0]][1]
        for t in range(1, cnt): tr += B[r, t & 1, kinds[t]][0] + B[r, t & 1, kinds[t]][1]
        tr += drain((cnt-1) & 1)
        o = []; keep = True; nd = 0
        for x in tr:
            if x == "@D{": keep = nd < cnt; nd += 1
            elif x == "@}": keep = True
            elif keep and x != "@STAMP": o.append(x)
        return o
    need = asmsim.solve_waits([trace(r, c) for c in range(1, 9) for r in "PC"])
    for c in range(1, 9):
        for r in "PC": asmsim.check_hazards(asmsim.apply_waits(trace(r, c), need), f"count {c}")
    def emit(l):
        for x in asmsim.apply_waits(l, need):
            if x == "@STAMP":
                stamp(a, 5); stamp(a, 5, "3"); stamp(a, 7, "4")
                if OPT.get("prof") == "3": a(f"s_memtime s[86:87]\ns_mov_b32 s90, s{scount}\ns_getreg_b32 s92, hwreg(HW_REG_HW_ID)")
            elif x[0] != "@": a(x.split(";")[0])
    def main_loop(r):
        a(f"""
        K2_GO{r}:
        s_cmp_eq_u32 s{scount}, 0
        s_cbranch_scc1 K2_EMPTY
        s_cmp_gt_u32 s{scount}, 2
        s_cbranch_scc1 K2_ENTF{r}
        s_cmp_eq_u32 s{scount}, 2
        s_cbranch_scc1 K2_ENTP{r}
        """)
        emit(EN[r, "L"]); a(f"K2_ENTP{r}:"); emit(EN[r, "P"]); a(f"K2_ENTF{r}:"); emit(EN[r, "F"])
        a(".p2align 6")
        for p in range(2): emit(B[r, p, "F"][0] + B[r, p, "F"][1])
        a(f"s_branch K2_BODYF0{r}")
        for p in range(2):
            emit(B[r, p, "P"][0] + B[r, p, "P"][1] + B[r, 1-p, "L"][0] + B[r, 1-p, "L"][1] + drain(1-p))
            if p == 0 or r == "P": a("s_branch K2_DONE")
    def fill(n):
        a(f"s_cmp_eq_u32 s{scount}, 0\ns_cbranch_scc1 K2_FILLED{n}")
        emit(FI[n])
        a(f"K2_FILLED{n}:")
    def ap_addr():
        a(f"""
        v_bfe_u32 v{vt}, v0, 2, 2
        v_lshrrev_b32 v{vt+1}, 1, v{vH16}
        v_add_u32 v{vt}, v{vt}, v{vt+1}
        v_mul_u32_u24 v{vt}, {ROWP}, v{vt}
        v_bfe_u32 v{vt+2}, v0, 4, 1
        v_lshl_add_u32 v{vt}, v{vt+2}, 5, v{vt}
        v_and_b32 v{vt+2}, 3, v0
        v_lshl_add_u32 v{vt}, v{vt+2}, 3, v{vt}
        s_mul_i32 s{st0}, s{sg}, {GN*ROWP}
        s_lshl_b32 s{st1}, s{sfh}, 7
        s_add_u32 s{st0}, s{st0}, s{st1}
        v_add_u32 v{vt}, s{st0}, v{vt}
        v_mul_u32_u24 v{vt+1}, {ROWP//2}, v{vt+1}
        v_and_b32 v{vt+2}, 31, v0
        v_lshl_add_u32 v{vt+1}, v{vt+2}, 2, v{vt+1}
        v_add_u32 v{vt+1}, s{st0}, v{vt+1}
        """)
    def ap_read():
        a(f"""
        ds_read_b64_tr_b16 {vr(AP,2)}, v{vt} offset:{APL}
        ds_read_b64_tr_b16 {vr(AP+2,2)}, v{vt} offset:{APL+4*ROWP}
        ds_read_b64_tr_b16 {vr(AP+4,2)}, v{vt} offset:{APL+64}
        ds_read_b64_tr_b16 {vr(AP+6,2)}, v{vt} offset:{APL+4*ROWP+64}
        """)
        for r in range(6): a(f"ds_read_b32 v{UR+r}, v{vt+1} offset:{UL+ROWP*rowoff(r)}")
        a(f"""
        s_waitcnt lgkmcnt(6)
        v_and_b32 v{AP+3}, v{AP+3}, v{vM15}
        v_and_b32 v{AP+7}, v{AP+7}, v{vM15}
        """)
    def zero_acc():
        for r in range(32): a(f"v_mov_b32 v{ACC+r}, 0")

    a(f"s_cmp_lg_u32 s{sfh}, 0\ns_cbranch_scc1 K2_LOADER")
    common1()
    a(f"""
    v_mul_u32_u24 v{EOFF}, {CS*32}, v{vt+1}
    v_add_u32 v{EOFF+1}, {64*CS*32}, v{EOFF}
    v_mov_b32 v{vt+3}, 4
    """)
    zero_acc()
    a("s_waitcnt vmcnt(2)")
    stamp(a, 2); stamp(a, 1, "5")
    a(f"""
    v_cmp_eq_u32 vcc, -2, v{REC+11}
    v_cmp_eq_u32 s[78:79], -2, v{REC+15}
    s_or_b64 vcc, vcc, s[78:79]
    s_cbranch_vccz K2_NOOVF
    v_mov_b32 v{vt+4}, 0x10000
    v_mov_b32 v{vt}, 60
    ds_add_u32 v{vt}, v{vt+4} offset:{CNT}
    K2_NOOVF:
    """)
    def steps(tag, fn):
        for r in range(2):
            for u in range(2):
                for i in range(4):
                    k = 8*r+4*u+i
                    a(f"v_cmpx_gt_u32 vcc, -2, v{REC+k}\ns_cbranch_execz K2_{tag}{r}{u}")
                    fn(k, r, u, i)
                a(f"K2_{tag}{r}{u}:\ns_mov_b64 exec, -1")
    def cnt_step(k, r, u, i):
        if k == 12: a("s_waitcnt lgkmcnt(4)")
        a(f"{caddr(k)}\nds_add_rtn_u32 v{RANK+k}, v{CADDR+k}, v{vt+3} offset:{CNT}")
    steps("C", cnt_step)
    stamp(a, 2, "5")
    spin(0, "A")
    stamp(a, 3, "5")
    scan(True)
    a("s_waitcnt lgkmcnt(1)")
    stamp(a, 4, "5")
    def put_step(k, r, u, i):
        if r == 1 and i == 0:
            for kk in range(k, k+4): a(f"ds_read_b32 v{STV+(kk&7)}, v{CADDR+kk} offset:{START}")
            a("s_waitcnt lgkmcnt(0)")
        place(k, STV+(k & 7), EOFF+u)
    steps("P", put_step)
    stamp(a, 5, "5")
    lane_setup()
    stamp(a, 6, "5")
    spin(1, "B")
    stamp(a, 3); stamp(a, 7, "5")
    a("K2_REFILLP:")
    fill("P")
    stamp(a, 4)
    a(f"s_cmp_lg_u32 s{sslow}, 0\ns_cbranch_scc1 K2_GOP")
    ap_addr()
    a("s_barrier")
    ap_read()
    main_loop("P")
    assert XL % 256 == 0
    XF = G; WT = [ACC, raw(0, 0)]
    accs = [[[raw(1,0)+8*nb, raw(1,0)+8*nb+4] for nb in range(3)], [[raw(1,1)+8, raw(1,1)+12], [SP, SP+4], [SP+8, ADDR]]]
    a(f"""
    K2_LOADER:
    v_lshrrev_b32 v{vt+4}, 4, v{vt}
    s_lshl_b32 s{st1}, s{sg}, 2
    v_add_u32 v{vA1}, s{st1}, v{vt+4}
    v_and_b32 v{vt+5}, 15, v0
    v_xor_b32 v{vA1}, v{vA1}, v{vt+5}
    v_lshlrev_b32 v{vA1}, 4, v{vA1}
    v_lshl_add_u32 v{vA1}, v{vt+4}, 8, v{vA1}
    s_lshr_b32 s{srt}, s2, 3
    s_add_u32 s{srt}, s{srt}, s{sw}
    s_and_b32 s{srt}, s{srt}, 3
    s_lshl_b32 s{st1}, s{sg}, 10
    """)
    for k in range(3):
        a(f"""
        s_add_u32 m0, s{st1}, {XL+4096*k}
        s_add_u32 s{st2}, s{st1}, {4096*k}
        buffer_load_dwordx4 v{vA1}, {sr(sX,4)}, s{st2} offen lds
        """)
    a(f"s_lshl_b32 s{slut}, s{srt}, 13")
    for m in range(2):
        for hf in range(2):
            a(f"s_add_u32 s{st2}, s{slut}, {32768*m+4096*hf}")
            for k in range(4):
                a(f"buffer_load_dwordx4 {vr(WT[m]+16*hf+4*k,4)}, v{vA2}, {sr(sWT,4)}, s{st2} offen offset:{1024*k}")
    a(f"s_lshl_b32 s{slut}, s{srt}, 14")
    for k in range(4):
        a(f"s_add_u32 m0, s{slut}, {LUTL + 4096*k}\ns_add_u32 s{st2}, s{slut}, {LUT_OFF - WT_OFF + 4096*k}")
        for j in range(4):
            a(f"buffer_load_dwordx4 v{vA2}, {sr(sWT,4)}, s{st2} offen offset:{1024*j} lds")
    common1()
    a(f"""
    v_and_b32 v{vt+3}, 127, v0
    v_bfe_u32 v{vt+4}, v0, 2, 4
    v_and_b32 v{Z+4}, 3, v0
    v_lshrrev_b32 v{Z+5}, 6, v{vt+3}
    v_lshlrev_b32 v{vt+3}, 2, v{vt+3}
    v_lshl_add_u32 v{Z+4}, v{Z+5}, 2, v{Z+4}
    v_lshlrev_b32 v{Z+5}, 1, v{Z+4}
    v_mov_b32 v{Z+6}, 0x3f80
    v_mov_b32 v{Z+7}, 0x3f800000
    v_cmp_eq_u32 vcc, v{Z+5}, v{vt+4}
    v_add_u32 v{Z+5}, 1, v{Z+5}
    s_nop 0
    v_cndmask_b32 v{Z+8}, 0, v{Z+6}, vcc
    v_cmp_eq_u32 vcc, v{Z+5}, v{vt+4}
    v_cmp_eq_u32 s[78:79], 7, v{Z+4}
    s_or_b64 vcc, vcc, s[78:79]
    s_nop 1
    v_cndmask_b32 v{Z+9}, 0, v{Z+7}, vcc
    v_or_b32 v{Z+8}, v{Z+8}, v{Z+9}
    v_cmp_gt_u32 vcc, 15, v{vt+4}
    s_nop 1
    v_cndmask_b32 v{Z+8}, 0, v{Z+8}, vcc
    ds_write_b32 v{vt+3}, v{Z+8} offset:{OHL}
    v_and_b32 v{vt}, 15, v0
    v_bfe_u32 v{vt+1}, v0, 4, 2
    v_xor_b32 v{vt+2}, v{vt}, v{vt+1}
    v_lshlrev_b32 v{vt+2}, 4, v{vt+2}
    v_lshl_add_u32 v{vt+2}, v{vt}, 8, v{vt+2}
    v_add_u32 v{vt+2}, {XL}, v{vt+2}
    v_mul_u32_u24 v{vt}, {ROWP}, v{vt}
    s_waitcnt vmcnt(34)
    """)
    stamp(a, 2)
    spin(2, "C")
    for s in range(4):
        if s: a(f"v_xor_b32 v{vt+3}, {64*s}, v{vt+2}")
        for nb in range(3):
            a(f"ds_read_b128 {vr(XF+16*nb+4*s,4)}, v{vt+3 if s else vt+2} offset:{4096*nb}")
    a(f"""
    s_lshr_b32 s{st0}, s{srt}, 1
    s_lshl_b32 s{st0}, s{st0}, 7
    s_and_b32 s{st1}, s{srt}, 1
    s_lshl_b32 s{st1}, s{st1}, 5
    s_add_u32 s{st0}, s{st0}, s{st1}
    v_lshl_add_u32 v{vt+4}, v{vt+1}, 3, v{vt}
    v_add_u32 v{vt+4}, s{st0}, v{vt+4}
    s_lshl_b32 s{st0}, s{srt}, 6
    v_lshl_add_u32 v{vt+5}, v{vt+1}, 4, v{vt}
    v_add_u32 v{vt+5}, s{st0}, v{vt+5}
    """)
    def mms(m):
        o = []
        for s in range(4):
            if m == 0: o.append(f"s_waitcnt lgkmcnt({9-3*s})")
            for nb in range(3):
                for ab in range(2):
                    d = vr(accs[m][nb][ab], 4)
                    o.append(f"v_mfma_f32_16x16x32_bf16 {d}, {vr(WT[m]+16*ab+4*s,4)}, {vr(XF+16*nb+4*s,4)}, {'0' if s == 0 else d}")
        return o
    outA = []
    for nb in range(3):
        al, be = accs[0][nb]; o = EA+ (0 if nb != 1 else 4)
        for i in range(4): outA += [f"v_mul_f32 v{al+i}, s{cnl2e}, v{al+i}", f"v_mul_f32 v{be+i}, s{cnl2e}, v{be+i}"]
        outA += [f"v_cvt_pk_bf16_f32 v{o}, v{al}, v{al+2}", f"v_cvt_pk_bf16_f32 v{o+1}, v{be}, v{be+2}",
                 f"v_cvt_pk_bf16_f32 v{o+2}, v{al+1}, v{al+3}", f"v_cvt_pk_bf16_f32 v{o+3}, v{be+1}, v{be+3}",
                 f"ds_write_b64 v{vt+4}, {vr(o,2)} offset:{APL+16*ROWP*nb}", f"ds_write_b64 v{vt+4}, {vr(o+2,2)} offset:{APL+16*ROWP*nb+64}"]
    g = ["s_waitcnt vmcnt(26)"] + mms(0) + ["s_waitcnt vmcnt(18)"]
    m1 = mms(1)
    g += m1[:6]
    rest = m1[6:]; k = 0
    for x in rest:
        g.append(x); g += outA[k:k+2]; k += 2
    g += outA[k:] + ["s_nop 1"]
    for nb in range(3):
        al, be = accs[1][nb]; o = XF+4*nb
        g += [f"v_cvt_pk_bf16_f32 v{o}, v{al}, v{al+1}", f"v_cvt_pk_bf16_f32 v{o+1}, v{al+2}, v{al+3}",
              f"v_cvt_pk_bf16_f32 v{o+2}, v{be}, v{be+1}", f"v_cvt_pk_bf16_f32 v{o+3}, v{be+2}, v{be+3}",
              f"ds_write_b128 v{vt+5}, {vr(o,4)} offset:{UL+16*ROWP*nb}"]
    asmsim.check_hazards(g, "gemm")
    a.ext(g)
    stamp(a, 3)
    zero_acc()
    for r in range(4): a(f"v_mov_b32 v{ADDR+r}, 128")
    a(f"""
    v_mov_b32 v{vt+2}, {INCL+60}
    K2_JOIN:
    s_waitcnt vmcnt(0) lgkmcnt(0)
    s_barrier
    v_mov_b32 v{vt+2}, {INCL+60}
    ds_read2_b32 {vr(vt+4,2)}, v{vt+2} offset0:0 offset1:16
    ds_read2_b32 {vr(vt+6,2)}, v{vt+2} offset0:32 offset1:48
    s_waitcnt lgkmcnt(0)
    """)
    for g_ in range(4): a(f"v_readfirstlane_b32 s{sk+g_}, v{vt+4+g_}")
    a(f"""
    s_max_u32 s{st0}, s{sk}, s{sk+1}
    s_max_u32 s{st1}, s{sk+2}, s{sk+3}
    s_max_u32 s{st0}, s{st0}, s{st1}
    s_cmp_gt_u32 s{st0}, {CAPG*4}
    s_cbranch_scc1 K2_SLOW
    """)
    a("s_setprio 1")
    rank_groups()
    lane_setup()
    ap_addr(); ap_read()
    a("K2_REFILLC:")
    fill("C")
    stamp(a, 4)
    a("s_branch K2_GOC")
    a("K2_EMPTY:"); a.ext(ld_xr()); a("s_branch K2_DONE")
    for n in spins:
        a(f"""
        K2_SP{n}:
        ds_read_b32 v{vEa}, v{vPG}
        s_waitcnt lgkmcnt(0)
        v_cmp_gt_u32 vcc, s{sneed}, v{vEa}
        s_cbranch_vccnz K2_SP{n}
        s_branch K2_OK{n}
        """)
    main_loop("C")
    a(f"""
    K2_DONE:
    s_cmp_lg_u32 s{sslow}, 0
    s_cbranch_scc1 K2_ROUND
    K2_EPI:
    s_waitcnt vmcnt(0) lgkmcnt(0)
    """)
    stamp(a, 6); stamp(a, 6, "3")
    if OPT.get("prof") == "3": a("s_memtime s[88:89]")
    T0 = G
    for b in range(2):
        for r in range(6):
            a(f"v_add_f32 v{ACC+16*b+r}, 0x358637bd, v{ACC+16*b+r}")
        for r in range(6):
            a(f"v_rcp_f32 v{ACC+16*b+r}, v{ACC+16*b+r}")
        for r in range(6):
            u, x = T0+12*b+r, T0+12*b+6+r
            if b == 0: a(f"v_lshlrev_b32 v{u}, 16, v{UR+r}\nv_lshlrev_b32 v{x}, 16, v{XR+r}")
            else: a(f"v_and_b32 v{u}, 0xffff0000, v{UR+r}\nv_and_b32 v{x}, 0xffff0000, v{XR+r}")
        for r in range(6):
            u, x = T0+12*b+r, T0+12*b+6+r
            a(f"v_fmac_f32 v{u}, v{ACC+16*b+8+r}, v{ACC+16*b+r}\nv_max_f32 v{u}, 0, v{u}\nv_add_f32 v{u}, v{u}, v{x}")
    a(f"v_lshl_or_b32 v{vO2}, v{vH16}, 27, v{vO}")
    for r in range(6):
        a(f"v_cvt_pk_bf16_f32 v{SP+r}, v{T0+r}, v{T0+12+r}")
        a(f"buffer_store_dword v{SP+r}, v{vO if r < 4 else vO2}, {sr(sO,4)}, 0 offen offset:{256*rowoff(r)} {OPT.get('st_o', '')}")
    stamp(a, 7)
    stamp_out(a, 1, 14, sw, 2)
    a("K2_END:\ns_endpgm")

    a("K2_SLOW:")
    srd(a, sS, 8, None, E*4)
    srd(a, sD, 10, None, E*4)
    a(f"""
    s_mov_b32 s{sslow}, 1
    s_mov_b32 s{cm40}, {-BN}
    s_mov_b32 s{cm10}, {-GN}
    """)
    lane_setup(); ap_addr(); ap_read()
    a(f"""
    K2_ROUND:
    s_cmp_ge_u32 s{sround}, {E//RND}
    s_cbranch_scc1 K2_EPI
    s_mul_i32 s{st0}, s{sround}, {RND}
    s_add_u32 s{sround}, s{sround}, 1
    v_add_u32 v{EOFF}, s{st0}, v0
    v_lshlrev_b32 v{vt}, 2, v{EOFF}
    buffer_load_dword v{REC}, v{vt}, {sr(sD,4)}, 0 offen
    buffer_load_dword v{REC+1}, v{vt}, {sr(sS,4)}, 0 offen
    v_lshlrev_b32 v{EOFF}, 5, v{EOFF}
    v_and_b32 v{vt}, 63, v0
    v_lshlrev_b32 v{vt}, 3, v{vt}
    v_mov_b32 v{vt+4}, 0
    v_mov_b32 v{vt+5}, 0
    s_waitcnt lgkmcnt(0)
    s_barrier
    ds_write_b64 v{vt}, {vr(vt+4,2)} offset:{CNT}
    v_mov_b32 v{vt+3}, 4
    s_waitcnt vmcnt(0) lgkmcnt(0)
    s_barrier
    """)
    rec_fields(a, REC, REC+2, vt, cm40, cm10)
    a(f"""
    v_cmp_eq_u32 vcc, s2, v{REC+2}
    v_lshl_or_b32 v{REC}, v{REC+1}, 16, v{REC}
    {caddr(0)}
    s_mov_b64 s[78:79], vcc
    v_cmp_gt_u32 vcc, {RND}, v0
    s_and_b64 s[78:79], s[78:79], vcc
    s_mov_b64 exec, s[78:79]
    ds_add_rtn_u32 v{RANK}, v{CADDR}, v{vt+3} offset:{CNT}
    s_mov_b64 exec, -1
    s_waitcnt lgkmcnt(0)
    s_barrier
    """)
    scan(False)
    a(f"""
    s_mov_b64 exec, s[78:79]
    ds_read_b32 v{STV}, v{CADDR} offset:{START}
    s_waitcnt lgkmcnt(0)
    """)
    place(0, STV, EOFF)
    a(f"""
    s_mov_b64 exec, -1
    """)
    lane_setup()
    a(f"""
    s_waitcnt lgkmcnt(0)
    s_barrier
    s_cmp_eq_u32 s{sfh}, 0
    s_cbranch_scc1 K2_REFILLP
    s_branch K2_REFILLC
    K2_CODE_END:
    """)
    return a.text(), kd("k2_kernel", 256, 102)

KE_PROF = f"""
    s_memrealtime s[8:9]
    s_load_dwordx2 s[4:5], s[0:1], 88
    s_waitcnt lgkmcnt(0)
    s_add_u32 s4, s4, {PROF_OFF + 0x200000}
    s_addc_u32 s5, s5, 0
    s_mov_b32 s6, 4
    s_mov_b32 s7, 0x20000
    v_mov_b32 v1, s8
    v_lshlrev_b32 v0, 2, v0
    buffer_store_dword v1, v0, s[4:7], 0 offen
"""
def gen_kr():
    a = Asm()
    a(f"""
    kr_kernel:
    s_cmp_ge_u32 s2, 1
    s_cbranch_scc1 KR_END
    s_load_dwordx4 s[4:7], s[0:1], 80
    s_waitcnt lgkmcnt(0)
    s_add_u32 s8, s6, {PROF_OFF}
    s_addc_u32 s9, s7, 0
    s_mov_b32 s10, 0x200000
    s_mov_b32 s11, 0x20000
    s_mov_b32 s6, 256
    s_mov_b32 s7, 0x20000
    v_cmp_gt_u32 vcc, 250, v0
    s_and_saveexec_b64 s[12:13], vcc
    v_lshlrev_b32 v1, 10, v0
    v_mov_b32 v3, 0
    """)
    sel = [(0, 16, 0, 1), (0, 16, 0, 0), (0, 16, 2, 0), (0, 16, 3, 0), (0, 16, 5, 0), (0, 16, 8, 0),
           (1, 8, 0, 1), (1, 8, 0, 0), (1, 8, 2, 0), (1, 8, 3, 0), (1, 8, 5, 1), (1, 8, 5, 0), (1, 8, 6, 1), (1, 8, 6, 0), (1, 8, 8, 0)]
    for j, (kn, nw, st, mn) in enumerate(sel):
        a(f"s_mov_b32 s14, {kn*0x100000}")
        for w in range(nw): a(f"buffer_load_dword v{10+w}, v1, s[8:11], s14 offen offset:{64*w+4*st}")
        a("s_waitcnt vmcnt(0)")
        if mn:
            for w in range(nw): a(f"v_not_b32 v{10+w}, v{10+w}")
        for w in range(1, nw): a(f"v_max_u32 v10, v10, v{10+w}")
        a(f"buffer_atomic_umax v10, v3, s[4:7], 0 offen offset:{4*j}\ns_waitcnt vmcnt(0)")
    a("KR_END:\ns_endpgm")
    return a.text()

def main():
    k1, d1 = gen_k1(); k2, d2 = gen_k2()
    ref = open("standalone__edge_featured_mpnn_gatedgcn__graph.s.ref").read().split("\n")
    out = "\n".join(ref[:13]) + "\n"
    for ch in OPT.get("list", "12"):
        if ch == "1": out += f"; @launch kernel=k1_kernel grid=({2*NCH},1,1) block=(1024,1,1) lds={K1_LDS}\n"
        if ch == "2": out += f"; @launch kernel=k2_kernel grid=({NBIN},1,1) block=(512,1,1) lds={K2_LDS}\n"
        if ch == "r": out += "; @launch kernel=kr_kernel grid=(1,1,1) block=(256,1,1) lds=0\n"
        if ch == "e": out += "; @launch kernel=ke_kernel grid=(1,1,1) block=(64,1,1) lds=0\n"
    out += '.amdgcn_target "amdgcn-amd-amdhsa--gfx950"\n.text\n'
    for n, k in (("k1_kernel", k1), ("k2_kernel", k2)):
        out += f".globl {n}\n.p2align 8\n.type {n},@function\n" + k
    if "e" in OPT.get("list", ""): out += ".globl ke_kernel\n.p2align 8\n.type ke_kernel,@function\nke_kernel:\n" + (KE_PROF if OPT.get("prof") else "") + "    s_endpgm\n"
    if "r" in OPT.get("list", ""): out += ".globl kr_kernel\n.p2align 8\n.type kr_kernel,@function\n" + gen_kr()
    out += '.section .rodata,"a"\n.p2align 6\n' + d1.lstrip("\n") + '.p2align 6\n' + d2.lstrip("\n")
    if "e" in OPT.get("list", ""): out += '.p2align 6\n' + kd("ke_kernel", 8, 16).lstrip("\n")
    if "r" in OPT.get("list", ""): out += '.p2align 6\n' + kd("kr_kernel", 32, 32).lstrip("\n")
    open(sys.argv[1], "w").write(out)

if __name__ == "__main__":
    main()
```

```python
import struct, sys
import asmsim

N = 10000; E = 320000
NCH = 128; CS = 2500
NBIN = 250; BN = 40; GN = 10
CAP = 32
TS = int(([a for a in sys.argv if a.startswith('ts=')] or ['ts=512'])[0][3:])
T_OFF = 0x1000000
REC_OFF = 0x700000
WT_OFF = 0xB00000
LUT_OFF = 0xB20000
PROF_OFF = 0xF000000
NL2E = struct.unpack("<I", struct.pack("<f", -1.4426950408889634))[0]

def bf(x): return struct.unpack("<I", struct.pack("<f", x))[0] >> 16

OPT = dict(st_r="sc1", st_t="sc1")
for a in sys.argv[2:]:
    k, v = a.split("=", 1); OPT[k] = v

class Asm:
    def __init__(self): self.l = []
    def __call__(self, s):
        for x in s.strip("\n").split("\n"):
            x = x.strip()
            if not x: continue
            if x.startswith(";"): x = "s_nop 0"
            self.l.append(x if x.endswith(":") else "    " + x)
    def ext(self, lst):
        for x in lst: self(x)
    def text(self): return "\n".join(self.l) + "\n"

def stamp(a, i, lvl="1"):
    if OPT.get("prof") and (i in (0, 8) or OPT["prof"] == lvl): a(f"s_memrealtime s[{84+2*i}:{85+2*i}]")
def stamp_out(a, kern, wsreg, sw, vtmp):
    if not OPT.get("prof"): return
    a("s_waitcnt vmcnt(0)")
    stamp(a, 8)
    a(f"""
    s_lshl_b32 s4, s2, 4
    s_add_u32 s4, s4, s{sw}
    s_lshl_b32 s4, s4, 6
    s_add_u32 s4, s4, {PROF_OFF + kern*0x100000}
    s_add_u32 s4, s{wsreg}, s4
    s_addc_u32 s5, s{wsreg+1}, 0
    s_mov_b32 s6, 64
    s_mov_b32 s7, 0x20000
    s_waitcnt lgkmcnt(0)
    """)
    for i in range(9): a(f"v_writelane_b32 v{vtmp}, s{84+2*i}, {i}")
    a(f"""
    v_mbcnt_lo_u32_b32 v{vtmp+1}, -1, 0
    v_mbcnt_hi_u32_b32 v{vtmp+1}, -1, v{vtmp+1}
    v_lshlrev_b32 v{vtmp+1}, 2, v{vtmp+1}
    buffer_store_dword v{vtmp}, v{vtmp+1}, s[4:7], 0 offen
    """)

def vr(b, n): return f"v[{b}:{b+n-1}]"
def sr(b, n): return f"s[{b}:{b+n-1}]"

def srd(a, d, base, add=None, size=None, w3="0x20000", hi_or=None):
    if add is None:
        a(f"s_mov_b32 s{d}, s{base}\ns_mov_b32 s{d+1}, s{base+1}")
    else:
        a(f"s_add_u32 s{d}, s{base}, {add}\ns_addc_u32 s{d+1}, s{base+1}, 0")
    if hi_or: a(f"s_or_b32 s{d+1}, s{d+1}, {hi_or}")
    a(f"s_mov_b32 s{d+2}, {size}\ns_mov_b32 s{d+3}, {w3}")

def kd(name, vgpr, sgpr):
    return f"""
.amdhsa_kernel {name}
  .amdhsa_next_free_vgpr {vgpr}
  .amdhsa_next_free_sgpr {sgpr}
  .amdhsa_accum_offset {(vgpr+3)//4*4}
  .amdhsa_group_segment_fixed_size 0
  .amdhsa_kernarg_size 96
  .amdhsa_user_sgpr_count 2
  .amdhsa_user_sgpr_kernarg_segment_ptr 1
  .amdhsa_system_sgpr_workgroup_id_x 1
.end_amdhsa_kernel
"""

def rec_fields(a, vd, vbin, vtmp, sm40, sm10):
    a(f"""
    v_mul_u32_u24 v{vbin}, 52429, v{vd}
    v_lshrrev_b32 v{vbin}, 21, v{vbin}
    v_mad_i32_i24 v{vd}, v{vbin}, s{sm40}, v{vd}
    v_mul_u32_u24 v{vtmp}, 26, v{vd}
    v_lshrrev_b32 v{vtmp}, 8, v{vtmp}
    v_mad_i32_i24 v{vd}, v{vtmp}, s{sm10}, v{vd}
    v_lshl_or_b32 v{vd}, v{vtmp}, 30, v{vd}
    """)

K1_CNT = 0; K1_STG = 1024; K1_X = 65536; K1_LDS = K1_X + 20480
def gen_k1():
    a = Asm()
    sS, sD, sW1, sW2, sX, sR, sT = 24, 28, 32, 36, 40, 44, 48
    sw, st0, st1, st2, sng, sfb, stask = 52, 53, 54, 55, 56, 57, 58
    c4096, c8192, cm40, cm10, cnl2e, csign, cmag, ctso, cp0 = 59, 60, 61, 62, 63, 64, 65, 66, 67
    a("k1_kernel:")
    a(f"s_cmp_ge_u32 s2, {2*NCH}\ns_cbranch_scc1 K1_END")
    stamp(a, 0)
    a(f"""
    s_load_dwordx16 s[4:19], s[0:1], 0
    s_load_dwordx2 s[20:21], s[0:1], 64
    s_load_dwordx2 s[22:23], s[0:1], 88
    v_lshrrev_b32 v2, 6, v0
    v_lshlrev_b32 v1, 2, v0
    v_readfirstlane_b32 s{sw}, v2
    s_mov_b32 s{c4096}, 4096
    s_mov_b32 s{c8192}, 8192
    s_cmp_ge_u32 s2, {NCH}
    s_cbranch_scc1 K1_GEMM
    """)
    vD, vS, vB, vSL, vt = 2, 5, 8, 11, 16
    a(f"s_mul_i32 s{st1}, s2, {CS*4}\ns_waitcnt lgkmcnt(0)")
    srd(a, sD, 10, f"s{st1}", CS*4)
    srd(a, sS, 8, f"s{st1}", CS*4)
    for r, so in enumerate(("0", f"s{c4096}", f"s{c8192}")):
        a(f"buffer_load_dword v{vD+r}, v1, {sr(sD,4)}, {so} offen")
        a(f"buffer_load_dword v{vS+r}, v1, {sr(sS,4)}, {so} offen")
    a(f"""
    v_mov_b32 v{vt}, -1
    v_mov_b32 v{vt+1}, -1
    v_mov_b32 v{vt+2}, -1
    v_mov_b32 v{vt+3}, -1
    v_lshlrev_b32 v{vt+4}, 4, v0
    v_mov_b32 v{vt+5}, 0
    v_and_b32 v{vt+6}, 0x3fc, v1
    ds_write_b128 v{vt+4}, {vr(vt,4)} offset:{K1_STG}
    ds_write_b128 v{vt+4}, {vr(vt,4)} offset:{K1_STG+16384}
    ds_write_b32 v{vt+6}, v{vt+5} offset:{K1_CNT}
    s_lshl_b32 s{st0}, s2, 7
    s_add_u32 s{st0}, s{st0}, {REC_OFF}
    """)
    srd(a, sR, 22, f"s{st0}", NBIN*NCH*128)
    a(f"s_lshl_b32 s{st0}, s2, 9\ns_add_u32 s{st1}, s{st0}, {LUT_OFF}")
    srd(a, sT, 22, f"s{st1}", 512)
    a(f"""
    v_add_u32 v40, s{st0}, v1
    v_and_b32 v41, 0x7fff, v40
    v_cmp_ne_u32 vcc, 0x7c00, v41
    v_or_b32 v41, 3, v40
    s_nop 0
    v_addc_co_u32 v40, vcc, 0, v40, vcc
    v_cvt_f32_f16 v41, v41
    v_cvt_f32_f16 v40, v40
    v_exp_f32 v41, v41
    v_exp_f32 v40, v40
    v_add_f32 v41, 1.0, v41
    v_add_f32 v40, 1.0, v40
    v_rcp_f32 v41, v41
    v_rcp_f32 v40, v40
    s_nop 0
    v_cvt_pk_bf16_f32 v40, v40, v41
    buffer_store_dword v40, v1, {sr(sT,4)}, 0 offen {OPT['st_r']}
    """)
    if OPT.get("pf", "0") == "1":
        a(f"""
        s_getpc_b64 {sr(sW1,2)}
        K1_PC:
        s_add_u32 s{sW1}, s{sW1}, k2_kernel-K1_PC
        s_addc_u32 s{sW1+1}, s{sW1+1}, 0
        s_mov_b32 s{sW1+2}, K2_CODE_END-k2_kernel
        s_mov_b32 s{sW1+3}, 0x20000
        v_lshlrev_b32 v44, 6, v0
        buffer_load_dword v45, v44, {sr(sW1,4)}, 0 offen
        """)
    a(f"""
    s_mov_b32 s{cm40}, {-BN}
    s_mov_b32 s{cm10}, {-GN}
    v_mov_b32 v{vt+5}, 1
    v_cmp_gt_u32 vcc, {CS-2048}, v0
    s_mov_b64 s[100:101], vcc
    v_lshrrev_b32 v{vt+7}, 3, v0
    v_and_b32 v{vt+8}, 7, v0
    v_lshlrev_b32 v{vt+9}, 14, v{vt+7}
    v_lshl_add_u32 v{vt+9}, v{vt+8}, 4, v{vt+9}
    v_lshlrev_b32 v{vt+7}, 2, v{vt+7}
    v_cmp_eq_u32 s[82:83], 7, v{vt+8}
    s_mov_b32 s{st2}, {128*16384}
    s_waitcnt lgkmcnt(0)
    s_barrier
    """)
    stamp(a, 1)
    for r in range(3):
        a(f"s_waitcnt vmcnt({4-2*r + 1 + (OPT.get('pf', '0') == '1')})")
        if r == 0: stamp(a, 2)
        rec_fields(a, vD+r, vB+r, vt, cm40, cm10)
        a(f"v_lshlrev_b32 v{vt}, 2, v{vB+r}")
        if r == 2: a("s_mov_b64 exec, s[100:101]")
        a(f"ds_add_rtn_u32 v{vSL+r}, v{vt}, v{vt+5} offset:{K1_CNT}")
        if r == 2: a("s_mov_b64 exec, -1")
        a(f"""
        v_lshl_or_b32 v{vD+r}, v{vS+r}, 16, v{vD+r}
        v_add_u32 v{vS+r}, {1024*r}, v0
        v_lshl_or_b32 v{vD+r}, v{vS+r}, 4, v{vD+r}
        v_lshlrev_b32 v{vB+r}, 7, v{vB+r}
        """)
    for r in range(3):
        a(f"s_waitcnt lgkmcnt({2-r})" if r == 0 else f"s_waitcnt lgkmcnt({2})" if r == 1 else "s_waitcnt lgkmcnt(2)")
        if r == 2: a("s_mov_b64 exec, s[100:101]")
        a(f"""
        v_lshl_add_u32 v{vB+r}, v{vSL+r}, 2, v{vB+r}
        v_cmpx_gt_u32 vcc, {CAP}, v{vSL+r}
        ds_write_b32 v{vB+r}, v{vD+r} offset:{K1_STG}
        s_mov_b64 exec, -1
        """)
    a("s_waitcnt lgkmcnt(0)")
    stamp(a, 3)
    a("s_barrier")
    stamp(a, 4)
    a(f"""
    ds_read_b128 {vr(vt+12,4)}, v{vt+4} offset:{K1_STG}
    ds_read_b32 v{vt}, v{vt+7} offset:{K1_CNT}
    ds_read_b128 {vr(vt+16,4)}, v{vt+4} offset:{K1_STG+16384}
    ds_read_b32 v{vt+1}, v{vt+7} offset:{K1_CNT+512}
    v_mov_b32 v{vt+2}, -2
    """)
    for k in range(2):
        a(f"""
        s_waitcnt lgkmcnt({2-2*k})
        v_cmp_lt_u32 vcc, {CAP}, v{vt+k}
        s_and_b64 vcc, vcc, s[82:83]
        s_nop 1
        v_cndmask_b32 v{vt+15+4*k}, v{vt+15+4*k}, v{vt+2}, vcc
        buffer_store_dwordx4 {vr(vt+12+4*k,4)}, v{vt+9}, {sr(sR,4)}, {'0' if k == 0 else f's{st2}'} offen {OPT['st_r']}
        """)
    stamp(a, 5)
    if OPT.get("pe", "1") == "1":
        a("s_barrier")
        a(f"s_mul_i32 s{st0}, s2, {CS*32}")
        srd(a, sW2, 6, f"s{st0}", CS*32)
        a(f"v_lshlrev_b32 v46, 7, v0\nbuffer_load_dword v47, v46, {sr(sW2,4)}, 0 offen {OPT.get('pef', '')}")
    stamp(a, 6); stamp(a, 7)
    stamp_out(a, 0, 22, sw, 2)
    a("s_endpgm")
    vW, vX, vA, vt = 32, 96, 112, 2
    def W(m, ab, s): return vW + 32*m + 16*ab + 4*s
    a(f"""
    K1_GEMM:
    s_sub_u32 s{stask}, s2, {NCH}
    s_and_b32 s{sfb}, s{sw}, 3
    s_lshr_b32 s{sng}, s{sw}, 2
    v_and_b32 v{vt}, 63, v0
    v_lshrrev_b32 v{vt+1}, 4, v{vt}
    v_and_b32 v{vt+2}, 15, v0
    s_lshl_b32 s{st0}, s{sfb}, 2
    v_add_u32 v{vt+3}, s{st0}, v{vt+1}
    v_xor_b32 v{vt+3}, v{vt+3}, v{vt+2}
    v_lshlrev_b32 v{vt+3}, 4, v{vt+3}
    v_lshl_add_u32 v{vt+3}, v{vt+1}, 8, v{vt+3}
    v_lshlrev_b32 v{vt+4}, 2, v{vt+1}
    v_xor_b32 v{vt+4}, v{vt+4}, v{vt+2}
    v_lshlrev_b32 v{vt+4}, 4, v{vt+4}
    v_lshl_add_u32 v{vt+4}, v{vt+1}, 8, v{vt+4}
    s_mul_i32 s{st0}, s{stask}, 20480
    s_cmp_lt_u32 s{stask}, 125
    s_cselect_b32 s{st0}, s{st0}, 0
    s_cselect_b32 s{st2}, 20480, 0
    s_waitcnt lgkmcnt(0)
    """)
    a(f"""
    s_cmp_ge_u32 s{stask}, 126
    s_cbranch_scc1 K1_WC
    s_add_u32 s{sX}, s4, s{st0}
    s_addc_u32 s{sX+1}, s5, 0
    s_mov_b32 s{sX+2}, s{st2}
    s_mov_b32 s{sX+3}, 0x20000
    s_lshl_b32 s{st1}, s{sw}, 10
    s_add_u32 m0, s{st1}, {K1_X}
    s_cmp_eq_u32 s{stask}, 125
    s_cselect_b64 {sr(sW1,2)}, s[12:13], s[14:15]
    s_cselect_b64 {sr(sW2,2)}, s[18:19], s[20:21]
    """)
    if OPT.get("touch", "0") == "1":
        a(f"""
        s_bitcmp1_b32 s2, 3
        s_cselect_b64 {sr(sS,2)}, {sr(sW1,2)}, {sr(sW2,2)}
        s_bitcmp1_b32 s2, 4
        s_cselect_b32 s{sS+2}, 4, 0
        s_mov_b32 s{sS+3}, 0x20000
        buffer_load_dword v30, v1, {sr(sS,4)}, 0 offen
        """)
    a(f"""
    buffer_load_dwordx4 v{vt+3}, {sr(sX,4)}, s{st1} offen lds
    s_cmp_lt_u32 s{sw}, 4
    s_cbranch_scc0 K1_X1
    s_add_u32 m0, s{st1}, {K1_X+16384}
    s_add_u32 s{st1}, s{st1}, 16384
    buffer_load_dwordx4 v{vt+3}, {sr(sX,4)}, s{st1} offen lds
    K1_X1:
    s_mov_b32 s{sW1+2}, 32768
    s_mov_b32 s{sW1+3}, 0x20000
    s_mov_b32 s{sW2+2}, 32768
    s_mov_b32 s{sW2+3}, 0x20000
    s_lshr_b32 s{st1}, s2, 3
    s_add_u32 s{st1}, s{st1}, s{sw}
    s_and_b32 s{st1}, s{st1}, 15
    s_lshl_b32 s{st1}, s{st1}, 11
    s_mov_b32 m0, s{st1}
    s_mul_i32 s{st0}, s{stask}, {80*TS}
    buffer_load_dwordx4 v{vt+4}, {sr(sW1,4)}, s{st1} offen lds
    buffer_load_dwordx4 v{vt+4}, {sr(sW1,4)}, s{st1} offen offset:1024 lds
    s_add_u32 m0, s{st1}, 32768
    s_add_u32 s{st0}, s{st0}, {T_OFF}
    buffer_load_dwordx4 v{vt+4}, {sr(sW2,4)}, s{st1} offen lds
    buffer_load_dwordx4 v{vt+4}, {sr(sW2,4)}, s{st1} offen offset:1024 lds
    """)
    srd(a, sT, 22, f"s{st0}", 80*TS)
    a(f"""
    v_bfe_u32 v{vt+5}, v0, 2, 2
    v_and_b32 v{vt+6}, 3, v0
    s_lshl_b32 s{st0}, s{sfb}, 2
    v_add_u32 v{vt+6}, s{st0}, v{vt+6}
    v_lshlrev_b32 v{vt+7}, 2, v{vt+5}
    v_xor_b32 v{vt+6}, v{vt+6}, v{vt+7}
    v_lshl_add_u32 v{vt+5}, v{vt+1}, 3, v{vt+5}
    v_lshlrev_b32 v{vt+5}, 8, v{vt+5}
    v_lshl_add_u32 v10, v{vt+6}, 4, v{vt+5}
    v_xor_b32 v11, v{vt+1}, v{vt+2}
    v_lshlrev_b32 v11, 4, v11
    v_lshl_add_u32 v11, v{vt+2}, 8, v11
    s_lshl_b32 s{st0}, s{sng}, 12
    s_add_u32 s{st0}, s{st0}, {K1_X}
    v_add_u32 v11, s{st0}, v11
    v_mul_u32_u24 v12, {TS}, v{vt+2}
    v_lshl_add_u32 v12, v{vt+1}, 4, v12
    s_mul_i32 s{st0}, s{sng}, {16*TS}
    s_lshr_b32 s{st1}, s{sfb}, 1
    s_lshl_b32 s{st1}, s{st1}, 8
    s_add_u32 s{st0}, s{st0}, s{st1}
    s_and_b32 s{st1}, s{sfb}, 1
    s_lshl_b32 s{st1}, s{st1}, 6
    s_add_u32 s{ctso}, s{st0}, s{st1}
    s_mov_b32 s{cnl2e}, {NL2E:#x}
    s_mov_b32 s{csign}, 0x00800000
    s_mov_b32 s{cmag}, 0x7fffffff
    s_mov_b32 s{cp0}, 0x07060100
    s_mov_b32 s{cp0+1}, 0x07060302
    v_xor_b32 v13, 64, v11
    v_xor_b32 v14, 0x80, v11
    v_xor_b32 v15, 0xc0, v11
    """)
    stamp(a, 1)
    a("s_waitcnt vmcnt(0)")
    stamp(a, 2)
    a("s_barrier")
    stamp(a, 3)
    def xrd(off):
        for s in range(4): a(f"ds_read_b128 {vr(vX+4*s,4)}, v{[11,13,14,15][s]} offset:{off}")
    xrd(0)
    n = 4
    for s in range(4):
        for m in range(2):
            for ab in range(2):
                for u in range(2):
                    a(f"ds_read_b64_tr_b16 {vr(W(m,ab,s)+2*u,2)}, v10 offset:{m*32768+s*8192+u*1024+ab*8}")
        if s < 3: a("s_waitcnt lgkmcnt(6)")
    a(f"s_cmp_eq_u32 s{stask}, 125\ns_cbranch_scc1 K1_WT")
    def mm():
        for s in range(4):
            for m in range(2):
                for ab in range(2):
                    d = vr(vA+8*m+4*ab, 4)
                    a(f"v_mfma_f32_16x16x32_bf16 {d}, {vr(W(m,ab,s),4)}, {vr(vX+4*s,4)}, {'0' if s == 0 else d}")
    def pack(so):
        a("s_nop 7")
        for b in range(2):
            for ab in range(2):
                b0, b1 = vA+4*ab+b, vA+4*ab+2+b
                a(f"v_mul_f32 v{b0}, s{cnl2e}, v{b0}\nv_mul_f32 v{b1}, s{cnl2e}, v{b1}")
                for e_ in range(2):
                    h = vA+8+4*ab+2*e_+b
                    a(f"v_max_f32 v{16+e_}, abs(v{h}), s{csign}\nv_bfi_b32 v{h}, s{cmag}, v{16+e_}, v{h}")
                a(f"v_cvt_pk_bf16_f32 v{b0}, v{b0}, v{b1}")
                for e_ in range(2):
                    h = vA+8+4*ab+2*e_+b
                    a(f"v_add_u32 v{h}, 0x8000, v{h}")
                for e_ in range(2):
                    h = vA+8+4*ab+2*e_+b
                    a(f"v_sub_u32_sdwa v{h}, v{h}, v{b0} dst_sel:DWORD dst_unused:UNUSED_PAD src0_sel:DWORD src1_sel:WORD_{e_}")
                for e_ in range(2):
                    h = vA+8+4*ab+2*e_+b
                    a(f"v_perm_b32 v{20+4*b+2*ab+e_}, v{h}, v{b0}, s{cp0+e_}")
            a(f"buffer_store_dwordx4 {vr(20+4*b,4)}, v12, {sr(sT,4)}, s{so} offen offset:{128*b} {OPT['st_t']}")
    a("s_waitcnt lgkmcnt(0)")
    mm()
    stamp(a, 4)
    a(f"s_cmp_eq_u32 s{sng}, 0\ns_cbranch_scc0 K1_ONE")
    xrd(16384)
    pack(ctso)
    a(f"s_add_u32 s{ctso}, s{ctso}, {64*TS}\ns_waitcnt lgkmcnt(0)")
    mm()
    a("K1_ONE:")
    pack(ctso)
    stamp(a, 5); stamp(a, 6); stamp(a, 7)
    stamp_out(a, 0, 22, sw, 2)
    a("s_endpgm")
    a("K1_WT:")
    srd(a, sT, 22, WT_OFF, 65536)
    a(f"""
    s_cmp_ge_u32 s{sw}, 8
    s_cbranch_scc1 K1_END
    v_lshlrev_b32 v{vt+1}, 4, v{vt}
    s_lshl_b32 s{st0}, s{sw}, 13
    s_add_u32 s{st1}, s{st0}, 4096
    s_waitcnt lgkmcnt(0)
    s_cmp_eq_u32 s{sng}, 0
    s_cbranch_scc0 K1_WU
    """)
    for m in range(2):
        for ab in range(2):
            for s in range(4):
                a(f"buffer_store_dwordx4 {vr(W(m,ab,s),4)}, v{vt+1}, {sr(sT,4)}, s{st1 if ab else st0} offen offset:{1024*s} {OPT['st_t']}")
        a("s_endpgm")
        if m == 0: a("K1_WU:")
    a("K1_WC:")
    srd(a, sT, 22, WT_OFF+65536, 4096)
    srd(a, sW1, 16, None, 4096)
    a(f"""
    s_cmp_eq_u32 s{stask}, 126
    s_cbranch_scc0 K1_END
    s_cmp_ge_u32 s{sw}, 4
    s_cbranch_scc1 K1_END
    v_lshrrev_b32 v{vt+2}, 5, v{vt}
    v_and_b32 v{vt+3}, 31, v0
    v_lshlrev_b32 v{vt+3}, 2, v{vt+3}
    v_lshl_add_u32 v{vt+3}, v{vt+2}, 11, v{vt+3}
    v_lshlrev_b32 v{vt+1}, 4, v{vt}
    s_lshr_b32 s{st1}, s{sw}, 1
    s_lshl_b32 s{st1}, s{st1}, 7
    s_and_b32 s{st0}, s{sw}, 1
    s_lshl_b32 s{st0}, s{st0}, 1
    s_add_u32 s{st1}, s{st1}, s{st0}
    s_lshl_b32 s{st0}, s{sw}, 10
    s_mov_b32 s{cnl2e}, {NL2E:#x}
    """)
    for j in range(8):
        a(f"buffer_load_ushort v{20+j}, v{vt+3}, {sr(sW1,4)}, s{st1} offen offset:{256*j}")
    a("s_waitcnt vmcnt(0)")
    for j in range(8):
        a(f"v_lshlrev_b32 v{20+j}, 16, v{20+j}\nv_mul_f32 v{20+j}, s{cnl2e}, v{20+j}")
    for j in range(4):
        a(f"v_cvt_pk_bf16_f32 v{28+j}, v{20+2*j}, v{21+2*j}")
    a(f"buffer_store_dwordx4 v[28:31], v{vt+1}, {sr(sT,4)}, s{st0} offen {OPT['st_t']}")
    a("K1_END:\ns_endpgm")
    return a.text(), kd("k1_kernel", 128, 102)

CAPG = 416; RND = 400
CNT = 0; FLG = 256; START = 512; INCL = 768; OHL = 1024; L1 = 1536; L2 = L1 + 4*CAPG*4; APL = L2 + 4*CAPG*4
ROWP = 272
UL = APL + 48*ROWP; LUTL = UL + 48*ROWP; STG = (LUTL + 65536 + 255)//256*256; XL = STG + 3*CAPG*32 + 5*1024; K2_LDS = XL + 12288
PROG = FLG + 16
assert K2_LDS <= 163840 and K2_LDS >= STG + 4*CAPG*32 and LUTL <= 65535 and (4*CAPG*4) % 256 == 0

def gen_k2():
    a = Asm()
    sREC, sX, sWT, sT, sE, sO, sD, sS = 24, 28, 32, 36, 40, 44, 68, 72
    sw, sg, sfh, st0, st1, st2 = 48, 49, 50, 51, 52, 53
    scount, sslow, sround, slim, sgb, srt, slut, srank = 54, 55, 56, 57, 58, 59, 82, 83
    sdma, sm0, sneed = 21, 22, 23
    cm32, c128, cnl2e, cfc, csrc, cm40, cm10, cfe = 60, 61, 62, 63, 64, 65, 66, 67
    sk = 16
    vH16, vA1, vA2, vEa, vOa, vO, vA3 = 1, 2, 3, 4, 5, 6, 7
    WC = 8; AP = 16; PA = 24; SC = 28; OH = 32; EA = 40; ADDR = 48; ACC = 64; SP = 96; G = 112; RAW = 176
    XR = 240; UR = 246; vP16 = 252; vH256 = 253; vHS = 254; vPG = 255; vM15 = XR; vO2 = SP+8
    raw = lambda p, b: RAW + 32*p + 16*b
    gb = lambda p, b: G + 32*p + 16*b
    vt = gb(1, 1); Z = SP; EOFF = SP+14
    REC = raw(1, 0); CADDR = REC+16; RANK = G; STV = G+16
    NTB = [int(c_) for c_ in OPT.get("nt", "11")]
    rowoff = lambda r: 8*(r >> 2) + (r & 3)
    sd = "dst_sel:DWORD dst_unused:UNUSED_PAD src0_sel:DWORD"

    a("k2_kernel:")
    a(f"s_cmp_ge_u32 s2, {NBIN}\ns_cbranch_scc1 K2_END")
    stamp(a, 0)
    a(f"""
    s_load_dwordx8 s[4:11], s[0:1], 0
    s_load_dwordx2 s[12:13], s[0:1], 72
    s_load_dwordx2 s[14:15], s[0:1], 88
    v_lshrrev_b32 v{vt}, 6, v0
    v_lshrrev_b32 v{vt+1}, 2, v0
    v_readfirstlane_b32 s{sw}, v{vt}
    v_and_b32 v{vt+2}, 3, v0
    v_lshlrev_b32 v{vt+3}, 7, v{vt+1}
    v_lshl_add_u32 v{vt+3}, v{vt+2}, 4, v{vt+3}
    s_lshl_b32 s{st0}, s2, 14
    s_add_u32 s{st0}, s{st0}, {REC_OFF}
    v_and_b32 v{vt}, 63, v0
    v_lshlrev_b32 v{vt+5}, 3, v{vt}
    v_mov_b32 v{Z}, 0
    v_mov_b32 v{Z+1}, 0
    ds_write_b64 v{vt+5}, {vr(Z,2)} offset:{CNT}
    s_and_b32 s{sg}, s{sw}, 3
    s_lshr_b32 s{sfh}, s{sw}, 2
    v_lshlrev_b32 v{vA2}, 4, v{vt}
    s_mov_b32 s{st1}, 8192
    s_waitcnt lgkmcnt(0)
    s_cmp_lg_u32 s{sfh}, 0
    s_cbranch_scc1 K2_NOREC
    """)
    srd(a, sREC, 14, f"s{st0}", 16384)
    for u in range(2):
        for r in range(2):
            a(f"buffer_load_dwordx4 {vr(REC+8*r+4*u,4)}, v{vt+3}, {sr(sREC,4)}, {'s%d' % st1 if u else '0'} offen offset:{64*r}")
    a(f"K2_NOREC:\ns_mul_i32 s{st0}, s2, {BN*256}")
    srd(a, sX, 4, f"s{st0}", BN*256)
    srd(a, sWT, 14, WT_OFF, LUT_OFF - WT_OFF + 65536)
    a("s_barrier")
    stamp(a, 1)
    def common1():
        a(f"""
        s_lshl_b32 s{st1}, s{sfh}, 11
        s_add_u32 s{st1}, s{st1}, 65536
        buffer_load_dwordx4 {vr(WC,4)}, v{vA2}, {sr(sWT,4)}, s{st1} offen
        buffer_load_dwordx4 {vr(WC+4,4)}, v{vA2}, {sr(sWT,4)}, s{st1} offen offset:1024
        s_mul_i32 s{st0}, s2, {BN*256}
        """)
        srd(a, sO, 12, f"s{st0}", BN*256)
        a(f"s_lshl_b32 s{st0}, s{sfh}, 8\ns_add_u32 s{st0}, s{st0}, {T_OFF-128}")
        srd(a, sT, 14, f"s{st0}", 64, w3="0x800000", hi_or="0x40000")
        srd(a, sE, 6, None, E*32)
        a(f"""
        s_mov_b32 s{cm32}, {'0x7e0' if 'e' in OPT.get('nomem','') else '0x1fffe0' if 's' in OPT.get('nomem','') else '0xffffffe0'}
        s_mov_b32 s{c128}, 128
        s_mov_b32 s{cnl2e}, {NL2E:#x}
        s_mov_b32 s{cfc}, 0xfc
        s_mov_b32 s{cfe}, {OPT.get('cfe', '0xfffe')}
        s_mov_b32 s{csrc}, {TS}
        s_mov_b32 s{sslow}, 0
        s_mov_b32 s{sround}, 0
        s_mov_b32 s{sgb}, 0
        s_mul_i32 s{st0}, s{sfh}, 3
        s_xor_b32 s{srank}, s{sg}, s{st0}
        v_lshrrev_b32 v{vt+3}, 5, v{vt}
        v_and_b32 v{vt+4}, 31, v0
        v_lshlrev_b32 v{vH16}, 4, v{vt+3}
        v_lshlrev_b32 v{vH256}, 8, v{vt+3}
        v_cmp_eq_u32 vcc, 0, v{vt+3}
        v_mov_b32 v{vM15}, 0xffff
        v_mov_b32 v{Z+4}, -1
        v_cndmask_b32 v{vM15}, v{vM15}, v{Z+4}, vcc
        v_and_b32 v{Z+4}, 3, v0
        v_mov_b32 v{Z+6}, 0x3f80
        """)
        for i in range(4):
            a(f"v_cmp_eq_u32 vcc, {i}, v{Z+4}\ns_nop 1\nv_cndmask_b32 v{PA+i}, 0, v{Z+6}, vcc")
        den = bf(127*2.0**-116); tiny = bf(2.0**-100)
        a(f"""
        v_cmp_gt_u32 s[78:79], 16, v{vt+4}
        v_mov_b32 v{Z+5}, {den:#x}
        v_mov_b32 v{Z+7}, {tiny<<16:#x}
        v_cndmask_b32 v{Z+5}, v{Z+6}, v{Z+5}, s[78:79]
        v_cndmask_b32 v{Z+7}, 0, v{Z+7}, s[78:79]
        v_and_b32 v{Z+4}, 15, v0
        v_lshlrev_b32 v{Z+8}, 3, v{vt+3}
        v_sub_u32 v{Z+4}, v{Z+4}, v{Z+8}
        v_lshlrev_b32 v{Z+6}, 16, v{Z+5}
        """)
        for d in range(4):
            a(f"""
            v_cmp_eq_u32 vcc, {2*d}, v{Z+4}
            v_cmp_eq_u32 s[78:79], {2*d+1}, v{Z+4}
            s_nop 0
            v_cndmask_b32 v{SC+d}, 0, v{Z+5}, vcc
            v_cndmask_b32 v{Z+8}, 0, v{Z+6}, s[78:79]
            v_or_b32 v{SC+d}, v{SC+d}, v{Z+8}
            """)
        a(f"""
        v_and_b32 v{SC+3}, v{SC+3}, v{vM15}
        v_not_b32 v{Z+8}, v{vM15}
        v_and_b32 v{Z+8}, v{Z+8}, v{Z+7}
        v_or_b32 v{SC+3}, v{SC+3}, v{Z+8}
        """)
        for r in range(16): a(f"v_mov_b32 v{ADDR+r}, 128")
    def ld_xr(): return [f"buffer_load_dword v{XR+r}, v{vO}, {sr(sX,4)}, 0 offen offset:{256*rowoff(r)} " for r in range(6)]
    def spin(k, n):
        a(f"""
        v_mov_b32 v{vt+6}, {FLG+4*k}
        v_mov_b32 v{vt+7}, 1
        s_mov_b64 exec, 1
        ds_add_u32 v{vt+6}, v{vt+7}
        s_mov_b64 exec, -1
        K2_SPIN{n}:
        ds_read_b32 v{vt+7}, v{vt+6}
        s_waitcnt lgkmcnt(0)
        v_cmp_gt_u32 vcc, 4, v{vt+7}
        s_cbranch_vccnz K2_SPIN{n}
        """)
    def caddr(k): return f"v_and_b32_sdwa v{CADDR+k}, s{cfc}, v{REC+k} {sd} src1_sel:BYTE_3"
    def pick(sel, cur):
        a(f"""
        s_bitcmp1_b32 s{sel}, 0
        s_cselect_b32 s{cur[0]}, s{cur[1]}, s{cur[0]}
        s_cselect_b32 s{cur[2]}, s{cur[3]}, s{cur[2]}
        s_bitcmp1_b32 s{sel}, 1
        s_cselect_b32 s{st0}, s{cur[2]}, s{cur[0]}
        s_and_b32 s{sg}, s{st0}, 3
        s_andn2_b32 s{st0}, s{st0}, 3
        s_mul_i32 s{sgb}, s{sg}, {CAPG*4}
        s_add_u32 s{scount}, s{st0}, 127
        s_lshr_b32 s{scount}, s{scount}, 7
        """)
    def rank_groups():
        for g in range(1, 4): a(f"s_or_b32 s{sk+g}, s{sk+g}, {g}")
        cur = [sk, sk+1, sk+2, sk+3]; spare = sk+4
        for (i, j) in ((0, 1), (2, 3), (0, 2), (1, 3), (1, 2)):
            a(f"s_max_u32 s{spare}, s{cur[i]}, s{cur[j]}\ns_min_u32 s{cur[j]}, s{cur[i]}, s{cur[j]}")
            cur[i], spare = spare, cur[i]
        pick(srank, cur)
    def scan(fast):
        x = SP
        a(f"""
        v_and_b32 v{vt}, 63, v0
        v_lshlrev_b32 v{vt+1}, 2, v{vt}
        ds_read_b32 v{x}, v{vt+1} offset:{CNT}
        v_lshrrev_b32 v{vt}, 4, v{vt}
        v_mul_u32_u24 v{vt}, {CAPG*4}, v{vt}
        v_and_b32 v{vt+2}, 31, v0
        v_lshlrev_b32 v{vt+2}, 2, v{vt+2}
        v_mov_b32 v{vt+4}, 0xfffffe
        s_waitcnt lgkmcnt(0)
        v_sub_u32 v{vt}, v{vt}, v{x}
        """)
        for d in ("row_shr:1", "row_shr:2", "row_shr:4", "row_shr:8"):
            a(f"v_add_u32_dpp v{x}, v{x}, v{x} {d} row_mask:0xf bank_mask:0xf bound_ctrl:0\ns_nop 1")
        a(f"""
        v_add_u32 v{vt}, v{vt}, v{x}
        v_cmp_lt_u32 vcc, {CAPG*4}, v{x}
        ds_write2st64_b32 v{vt+1}, v{vt}, v{x} offset0:{START//256} offset1:{INCL//256}
        """)
        for g in range(4): a(f"v_readlane_b32 s{sk+g}, v{x}, {16*g+15}")
        if fast:
            a("s_cbranch_vccnz K2_JOIN")
            for k in range(8): a(f"ds_read_b32 v{STV+k}, v{CADDR+k} offset:{START}")
            rank_groups()
        else:
            for g in range(1, 4): a(f"s_or_b32 s{sk+g}, s{sk+g}, {g}")
            pick(sg, [sk, sk+1, sk+2, sk+3])
        a(f"""
        s_add_u32 s{st0}, s{st0}, s{sgb}
        v_add_u32 v{vt+2}, s{st0}, v{vt+2}
        s_lshl_b32 s{st1}, s{scount}, 7
        s_add_u32 s{st1}, s{st1}, s{sgb}
        v_lshlrev_b32 v{vt+3}, 3, v{vt+2}
        v_and_b32 v{vt+3}, 128, v{vt+3}
        v_cmpx_gt_u32 vcc, s{st1}, v{vt+2}
        ds_write2st64_b32 v{vt+2}, v{vt+3}, v{vt+4} offset0:{L1//256} offset1:{L2//256}
        s_mov_b64 exec, -1
        """)
    def place(k, st, eo):
        a(f"""
        v_add_u32 v{st}, v{st}, v{RANK+k}
        v_bfe_u32 v{vt}, v{REC+k}, 16, {5 if 't' in OPT.get('nomem','') else 14}
        v_lshlrev_b32 v{vt+1}, 3, v{st}
        v_mad_u32_u16 v{vt+2}, v{REC+k}, 2, v{eo}
        v_and_b32 v{vt+1}, 128, v{vt+1}
        v_mad_u32_u24 v{vt}, v{vt}, s{csrc}, v{vt+1}
        ds_write2st64_b32 v{st}, v{vt}, v{vt+2} offset0:{L1//256} offset1:{L2//256}
        """)
    def lane_setup():
        a(f"""
        v_and_b32 v{vt}, 31, v0
        v_xor_b32 v{vA1}, 16, v{vH16}
        v_xor_b32 v{vA2}, 4, v{vt}
        v_lshlrev_b32 v{vA2}, 2, v{vA2}
        v_add_u32 v{vA1}, s{sgb}, v{vA1}
        v_add_u32 v{vA2}, s{sgb}, v{vA2}
        s_mul_i32 s{st0}, s{sg}, {GN*256}
        s_lshl_b32 s{st1}, s{sfh}, 7
        s_add_u32 s{st0}, s{st0}, s{st1}
        v_lshlrev_b32 v{vO}, 2, v{vt}
        v_lshl_add_u32 v{vO}, v{vH256}, 2, v{vO}
        v_add_u32 v{vO}, s{st0}, v{vO}
        v_bfe_u32 v{vA3}, v0, 1, 5
        v_lshlrev_b32 v{vA3}, 2, v{vA3}
        v_add_u32 v{vA3}, s{sgb}, v{vA3}
        v_lshlrev_b32 v{vP16}, 4, v0
        v_xor_b32 v{vP16}, v{vP16}, v0
        v_and_b32 v{vP16}, 16, v{vP16}
        v_lshlrev_b32 v{vHS}, 1, v0
        v_xor_b32 v{vHS}, v{vHS}, v{vH16}
        v_and_b32 v{vHS}, 16, v{vHS}
        v_add_u32 v{vHS}, {STG}, v{vHS}
        s_lshl_b32 s{st0}, s{sg}, 2
        s_add_u32 s{st0}, s{st0}, {PROG}
        v_mov_b32 v{vPG}, s{st0}
        s_lshl_b32 s{sm0}, s{sgb}, 3
        s_add_u32 s{sm0}, s{sm0}, {STG}
        s_mov_b32 s{sdma}, 0
        s_mov_b32 s{sneed}, 0
        s_mov_b32 s{slim}, s{scount}
        """)
    def rd_addr(off, j): return f"ds_read_b128 {vr(ADDR+4*j,4)}, v{vA1} offset:{L1+off+32*j}"
    def rd_l2(reg, off): return f"ds_read_b32 v{reg}, v{vA2} offset:{L2+off}"
    def ld_raw(p, b, r):
        pre = [f"v_and_b32 v{ADDR+r}, 0xffff80, v{ADDR+r}"] if OPT.get("safe") else []
        if OPT.get("noload"): return ["s_nop 0"]
        return pre + [f"buffer_load_dword v{raw(p,b)+r}, v{ADDR+r}, {sr(sT,4)}, 0 offen" + (" offset:128" if b else "")]
    def ld_blk(p, b): return sum((ld_raw(p, b, r) for r in range(16)), [])
    cur = {"r": "P"}
    def rd_l3(off): return [f"ds_read_b32 v{vEa}, v{vA3} offset:{L2+off}"] if cur["r"] == "P" else []
    lab = [0]
    def dma_ea(sl):
        if cur["r"] != "P": return []
        lab[0] += 1
        return [f"s_cmp_lt_u32 s{sdma}, s{slim}", f"s_cbranch_scc0 K2_ND{lab[0]}", "@D{",
                f"s_mov_b32 m0, s{sm0}", f"v_and_or_b32 v{vEa}, v{vEa}, s{cm32}, v{vP16}",
                f"buffer_load_dwordx4 v{vEa}, {sr(sE,4)}, 0 offen lds;wr={300+sl}", "@}", f"K2_ND{lab[0]}:",
                f"s_add_u32 s{sdma}, s{sdma}, 1", f"s_add_u32 s{sm0}, s{sm0}, 1024"]
    spins = []
    def rd_prog(): return [f"ds_read_b32 v{vEa}, v{vPG}"] if cur["r"] == "C" else []
    def get_ea(p, sl, off):
        o = [f"s_add_u32 s{sneed}, s{sneed}, 1"]
        if cur["r"] == "P":
            o += [f"v_mov_b32 v{vEa}, s{sneed};rd={300+sl}", f"ds_write_b32 v{vPG}, v{vEa}"]
        else:
            lab[0] += 1; n = lab[0]; spins.append(n)
            o += [f"v_cmp_gt_u32 vcc, s{sneed}, v{vEa}", f"s_cbranch_vccnz K2_SP{n}", f"K2_OK{n}:"]
        return o + [f"v_lshl_add_u32 v{vEa}, v{vA2}, 3, v{vHS}", f"ds_read_b128 {vr(EA+4*p,4)}, v{vEa} offset:{8*off}"]
    def oh_idx(p):
        return [f"v_and_b32 v{vOa}, 30, v{vOa}",
                f"v_lshl_add_u32 v{vOa}, v{vOa}, 3, v{vH256}",
                f"ds_read_b128 {vr(OH+4*p,4)}, v{vOa} offset:{OHL}"]
    big = "v_mfma_f32_32x32x16_bf16" if not OPT.get("nobig") else "; "
    de = OPT.get("drop", "")
    def mE(p, b): return "; " if "E" in de else f"{big} {vr(gb(p,b),16)}, {vr(EA+4*p,4)}, {vr(WC+4*b,4)}, 0"
    def mA(p, b): return "; " if "A" in de else f"{big} {vr(gb(p,b),16)}, {vr(OH+4*p,4)}, {vr(AP+4*b,4)}, {vr(gb(p,b),16)}"
    def mS(p): return "; " if "S" in de else f"{big} {vr(SP,16)}, {vr(OH+4*p,4)}, {vr(SC,4)}, 0"
    def mG(p, b, j): return "; " if ("G" in de or ("g" in de and j & 1)) else f"{big} {vr(ACC+16*b,16)}, {vr(SP+4*j,4)}, {vr(gb(p,b)+4*j,4)}, {vr(ACC+16*b,16)}"
    def mP(p, b):
        o = []
        for u in range(2):
            for j in range(4):
                g = vr(gb(p,b)+4*j, 4)
                o.append(f"v_mfma_f32_4x4x4_16b_bf16 {g}, {vr(PA+2*u,2)}, {vr(raw(p,b)+4*j+2*u,2)}, {g}")
        return o
    def idx_pair(p, b, i):
        g0, g1 = gb(p,b)+2*i, gb(p,b)+2*i+1
        if i < NTB[b]:
            return [f"v_exp_f32 v{g0}, v{g0}", f"v_exp_f32 v{g1}, v{g1}", f"v_add_f32 v{g0}, 1.0, v{g0}",
                    f"v_add_f32 v{g1}, 1.0, v{g1}", f"v_rcp_f32 v{g0}, v{g0}", f"v_rcp_f32 v{g1}, v{g1}"], []
        return [f"v_cvt_pkrtz_f16_f32 v{g0}, v{g0}, v{g1}",
                f"v_and_b32_sdwa v{g1}, s{cfe}, v{g0} {sd} src1_sel:WORD_1",
                f"v_and_b32_sdwa v{g0}, s{cfe}, v{g0} {sd} src1_sel:WORD_0"], \
               [f"ds_read_u16_d16_hi v{g1}, v{g1} offset:{LUTL}", f"ds_read_u16_d16_hi v{g0}, v{g0} offset:{LUTL}"]
    def fin_pair(p, b, i):
        g0, r0 = gb(p,b)+2*i, raw(p,b)+2*i
        mul = [f"v_pk_mul_f32 {vr(r0,2)}, {vr(g0,2)}, {vr(r0,2)}"] if OPT.get("pk") else [f"v_mul_f32 v{r0}, v{g0}, v{r0}", f"v_mul_f32 v{r0+1}, v{g0+1}, v{r0+1}"]
        return mul + [
                f"v_cvt_pk_bf16_f32 v{g0}, v{g0}, v{r0}", f"v_cvt_pk_bf16_f32 v{g0+1}, v{g0+1}, v{r0+1}"]
    def zipl(x, y):
        o = []
        for k in range(max(len(x), len(y))):
            if k < len(x): o.append(x[k])
            if k < len(y): o.append(y[k])
        return o
    uid = [0]
    def W(kind):
        uid[0] += 1
        return f"@W{kind} {uid[0]}"
    WE = int(OPT.get("we", "1"))
    def slot(p, b, kind, acc=True):
        q = 1-p
        nxt = (p, 1) if b == 0 else (q, 0)
        do_idx = b == 0 or kind != "L"
        gs = [[mG(q if b == 0 else p, 1-b, j)] for j in range(4)] if acc else []
        bigs = gs[:2]
        if kind != "L": bigs += [[mE(q, b)], [mA(q, b)]]
        bigs += gs[2:]
        if b == 0: bigs += [[mS(p)]]
        smalls = mP(q, b) if kind != "L" else []
        out = []
        nb = 0
        for i in range(8):
            iv, il = idx_pair(*nxt, i) if do_idx else ([], [])
            fv = fin_pair(p, b, i)
            seq = zipl(iv, fv) + il
            if kind == "F":
                seq += ld_raw(p, b, 2*i) + ld_raw(p, b, 2*i+1)
                if b == 1 and i & 1: seq.append(rd_addr((3+p)*128, i >> 1))
                if b == 0 and i == 1: seq += rd_l3((3+p)*128)
                if b == 1 and i == 0: seq = dma_ea(q) + seq
                if b == 1 and i == 1: seq += rd_prog()
                if b == 1 and i == 6: seq += get_ea(p, p, (2+p)*128)
                if b == 0 and i == 5: seq.append(rd_l2(vOa, (2+p)*128))
                if b == 1 and i == 2: seq += oh_idx(p)
            pre = [W("l")] if i % WE == 0 else []
            if cur["r"] == "P" and kind != "L":
                if (b, i) == (0, 0): pre.append("s_setprio 2")
                if (b, i) == divmod(int(OPT.get("fair", "12")), 8): pre.append("s_setprio 0")
            if i < 6:
                take = 2 if (len(bigs) - nb) > (6 - i) else 1
                if nb < len(bigs): pre += bigs[nb]; nb += 1
                if take == 2 and nb < len(bigs):
                    seq = seq[:6] + bigs[nb] + seq[6:]; nb += 1
            if smalls and i >= 5:
                k0, k1 = {5: (0, 2), 6: (2, 6), 7: (6, 8)}[i]
                sm = smalls[k0:k1]
                if i == 5: seq = seq[:4] + [W("v")] + zipl(sm, seq[4:])
                else: seq = zipl(sm, seq)
            out += pre + seq
        assert nb == len(bigs)
        return out
    def body(p, kind):
        q = 1-p; n = f"{kind}{p}{cur['r']}"
        o0 = [f"K2_BODY{n}:"] + slot(p, 0, kind)
        o1 = [f"K2_MID{n}:"] + (ld_xr() if kind == "L" else []) + slot(p, 1, kind)
        if kind == "F":
            if p == 1: o1 += [f"v_add_u32 v{r_}, 256, v{r_}" for r_ in ((vA1, vA2, vA3) if cur["r"] == "P" else (vA1, vA2))]
            o1 += [f"s_sub_u32 s{scount}, s{scount}, 1", f"s_cmp_eq_u32 s{scount}, 2", f"s_cbranch_scc1 K2_BODYP{q}{cur['r']}"]
        return o0, o1
    def entry(kind):
        more = kind != "L"
        o = [rd_l2(vOa, 0)] + rd_prog()
        if more: o += [rd_addr(128, j) for j in range(4)]
        o += [W("l")] + oh_idx(0) + [W("v")] + get_ea(0, 0, 0)
        if more: o += rd_prog() + [rd_l2(vOa, 128)]
        o += [W("l"), "@STAMP", mE(0, 0), mA(0, 0), mE(0, 1), mA(0, 1)]
        if more: o += [W("v")] + get_ea(1, 1, 128) + rd_l3(256) + ld_blk(1, 0)
        else: o += ["s_nop 7"]
        o += [W("v")] + mP(0, 0)
        if more: o += [W("l")] + oh_idx(1) + dma_ea(0)
        o += ["s_nop 1"]
        for i in range(8):
            v_, l_ = idx_pair(0, 0, i)
            o += [W("l")] + ([v_[0], v_[1], "s_nop 0"] + v_[2:] if i < NTB[0] else v_) + l_
            if more:
                o += ld_raw(1, 1, 2*i) + ld_raw(1, 1, 2*i+1)
                if i & 1: o.append(rd_addr(256, i >> 1))
            if i == 3: o += [W("v")] + mP(0, 1)
        return o + slot(0, 0, kind, acc=False) + [f"s_branch K2_MID{kind}0{cur['r']}"]
    def drain(p): return ["s_nop 1"] + [mG(p, 1, j) for j in range(4)]
    def mk_fill():
        ad = [rd_addr(0, j) for j in range(4)]
        if cur["r"] == "P":
            o = (rd_l3(0) + [f"ds_read_b32 v{vOa}, v{vA3} offset:{L2+128}"] + ad + ["s_waitcnt lgkmcnt(4)"] + dma_ea(0)
                 + [f"v_mov_b32 v{vEa}, v{vOa}"] + dma_ea(1))
        else: o = ad
        return o + ["s_waitcnt lgkmcnt(0)"] + ld_blk(0, 0) + ld_blk(0, 1)
    FI, B, EN = {}, {}, {}
    for r in "PC":
        cur["r"] = r
        FI[r] = mk_fill()
        for k in "FPL":
            EN[r, k] = entry(k)
            for p in range(2): B[r, p, k] = body(p, k)
    def trace(r, cnt):
        kinds = ["F"]*(cnt-2) + ["P", "L"][-min(cnt, 2):]
        tr = FI[r] + EN[r, kinds[0]] + B[r, 0, kinds[0]][1]
        for t in range(1, cnt): tr += B[r, t & 1, kinds[t]][0] + B[r, t & 1, kinds[t]][1]
        tr += drain((cnt-1) & 1)
        o = []; keep = True; nd = 0
        for x in tr:
            if x == "@D{": keep = nd < cnt; nd += 1
            elif x == "@}": keep = True
            elif keep and x != "@STAMP": o.append(x)
        return o
    need = asmsim.solve_waits([trace(r, c) for c in range(1, 9) for r in "PC"])
    for c in range(1, 9):
        for r in "PC": asmsim.check_hazards(asmsim.apply_waits(trace(r, c), need), f"count {c}")
    def emit(l):
        for x in asmsim.apply_waits(l, need):
            if x == "@STAMP":
                stamp(a, 5); stamp(a, 5, "3"); stamp(a, 7, "4")
                if OPT.get("prof") == "3": a(f"s_memtime s[86:87]\ns_mov_b32 s90, s{scount}\ns_getreg_b32 s92, hwreg(HW_REG_HW_ID)")
            elif x[0] != "@": a(x.split(";")[0])
    def main_loop(r):
        a(f"""
        K2_GO{r}:
        s_cmp_eq_u32 s{scount}, 0
        s_cbranch_scc1 K2_EMPTY
        s_cmp_gt_u32 s{scount}, 2
        s_cbranch_scc1 K2_ENTF{r}
        s_cmp_eq_u32 s{scount}, 2
        s_cbranch_scc1 K2_ENTP{r}
        """)
        emit(EN[r, "L"]); a(f"K2_ENTP{r}:"); emit(EN[r, "P"]); a(f"K2_ENTF{r}:"); emit(EN[r, "F"])
        a(".p2align 6")
        for p in range(2): emit(B[r, p, "F"][0] + B[r, p, "F"][1])
        a(f"s_branch K2_BODYF0{r}")
        for p in range(2):
            emit(B[r, p, "P"][0] + B[r, p, "P"][1] + B[r, 1-p, "L"][0] + B[r, 1-p, "L"][1] + drain(1-p))
            if p == 0 or r == "P": a("s_branch K2_DONE")
    def fill(n):
        a(f"s_cmp_eq_u32 s{scount}, 0\ns_cbranch_scc1 K2_FILLED{n}")
        emit(FI[n])
        a(f"K2_FILLED{n}:")
    def ap_addr():
        a(f"""
        v_bfe_u32 v{vt}, v0, 2, 2
        v_lshrrev_b32 v{vt+1}, 1, v{vH16}
        v_add_u32 v{vt}, v{vt}, v{vt+1}
        v_mul_u32_u24 v{vt}, {ROWP}, v{vt}
        v_bfe_u32 v{vt+2}, v0, 4, 1
        v_lshl_add_u32 v{vt}, v{vt+2}, 5, v{vt}
        v_and_b32 v{vt+2}, 3, v0
        v_lshl_add_u32 v{vt}, v{vt+2}, 3, v{vt}
        s_mul_i32 s{st0}, s{sg}, {GN*ROWP}
        s_lshl_b32 s{st1}, s{sfh}, 7
        s_add_u32 s{st0}, s{st0}, s{st1}
        v_add_u32 v{vt}, s{st0}, v{vt}
        v_mul_u32_u24 v{vt+1}, {ROWP//2}, v{vt+1}
        v_and_b32 v{vt+2}, 31, v0
        v_lshl_add_u32 v{vt+1}, v{vt+2}, 2, v{vt+1}
        v_add_u32 v{vt+1}, s{st0}, v{vt+1}
        """)
    def ap_read():
        a(f"""
        ds_read_b64_tr_b16 {vr(AP,2)}, v{vt} offset:{APL}
        ds_read_b64_tr_b16 {vr(AP+2,2)}, v{vt} offset:{APL+4*ROWP}
        ds_read_b64_tr_b16 {vr(AP+4,2)}, v{vt} offset:{APL+64}
        ds_read_b64_tr_b16 {vr(AP+6,2)}, v{vt} offset:{APL+4*ROWP+64}
        """)
        for r in range(6): a(f"ds_read_b32 v{UR+r}, v{vt+1} offset:{UL+ROWP*rowoff(r)}")
        a(f"""
        s_waitcnt lgkmcnt(6)
        v_and_b32 v{AP+3}, v{AP+3}, v{vM15}
        v_and_b32 v{AP+7}, v{AP+7}, v{vM15}
        """)
    def zero_acc():
        for r in range(32): a(f"v_mov_b32 v{ACC+r}, 0")

    a(f"s_cmp_lg_u32 s{sfh}, 0\ns_cbranch_scc1 K2_LOADER")
    common1()
    a(f"""
    v_mul_u32_u24 v{EOFF}, {CS*32}, v{vt+1}
    v_add_u32 v{EOFF+1}, {64*CS*32}, v{EOFF}
    v_mov_b32 v{vt+3}, 4
    """)
    zero_acc()
    a("s_waitcnt vmcnt(2)")
    stamp(a, 2); stamp(a, 1, "5")
    a(f"""
    v_cmp_eq_u32 vcc, -2, v{REC+11}
    v_cmp_eq_u32 s[78:79], -2, v{REC+15}
    s_or_b64 vcc, vcc, s[78:79]
    s_cbranch_vccz K2_NOOVF
    v_mov_b32 v{vt+4}, 0x10000
    v_mov_b32 v{vt}, 60
    ds_add_u32 v{vt}, v{vt+4} offset:{CNT}
    K2_NOOVF:
    """)
    def steps(tag, fn):
        for r in range(2):
            for u in range(2):
                for i in range(4):
                    k = 8*r+4*u+i
                    a(f"v_cmpx_gt_u32 vcc, -2, v{REC+k}\ns_cbranch_execz K2_{tag}{r}{u}")
                    fn(k, r, u, i)
                a(f"K2_{tag}{r}{u}:\ns_mov_b64 exec, -1")
    def cnt_step(k, r, u, i):
        if k == 12: a("s_waitcnt lgkmcnt(4)")
        a(f"{caddr(k)}\nds_add_rtn_u32 v{RANK+k}, v{CADDR+k}, v{vt+3} offset:{CNT}")
    steps("C", cnt_step)
    stamp(a, 2, "5")
    spin(0, "A")
    stamp(a, 3, "5")
    scan(True)
    a("s_waitcnt lgkmcnt(1)")
    stamp(a, 4, "5")
    def put_step(k, r, u, i):
        if r == 1 and i == 0:
            for kk in range(k, k+4): a(f"ds_read_b32 v{STV+(kk&7)}, v{CADDR+kk} offset:{START}")
            a("s_waitcnt lgkmcnt(0)")
        place(k, STV+(k & 7), EOFF+u)
    steps("P", put_step)
    stamp(a, 5, "5")
    lane_setup()
    stamp(a, 6, "5")
    spin(1, "B")
    stamp(a, 3); stamp(a, 7, "5")
    a("K2_REFILLP:")
    fill("P")
    stamp(a, 4)
    a(f"s_cmp_lg_u32 s{sslow}, 0\ns_cbranch_scc1 K2_GOP")
    ap_addr()
    a("s_barrier")
    ap_read()
    main_loop("P")
    assert XL % 256 == 0
    XF = G; WT = [ACC, raw(0, 0)]
    accs = [[[raw(1,0)+8*nb, raw(1,0)+8*nb+4] for nb in range(3)], [[raw(1,1)+8, raw(1,1)+12], [SP, SP+4], [SP+8, ADDR]]]
    a(f"""
    K2_LOADER:
    v_lshrrev_b32 v{vt+4}, 4, v{vt}
    s_lshl_b32 s{st1}, s{sg}, 2
    v_add_u32 v{vA1}, s{st1}, v{vt+4}
    v_and_b32 v{vt+5}, 15, v0
    v_xor_b32 v{vA1}, v{vA1}, v{vt+5}
    v_lshlrev_b32 v{vA1}, 4, v{vA1}
    v_lshl_add_u32 v{vA1}, v{vt+4}, 8, v{vA1}
    s_lshr_b32 s{srt}, s2, 3
    s_add_u32 s{srt}, s{srt}, s{sw}
    s_and_b32 s{srt}, s{srt}, 3
    s_lshl_b32 s{st1}, s{sg}, 10
    """)
    for k in range(3):
        a(f"""
        s_add_u32 m0, s{st1}, {XL+4096*k}
        s_add_u32 s{st2}, s{st1}, {4096*k}
        buffer_load_dwordx4 v{vA1}, {sr(sX,4)}, s{st2} offen lds
        """)
    a(f"s_lshl_b32 s{slut}, s{srt}, 13")
    for m in range(2):
        for hf in range(2):
            a(f"s_add_u32 s{st2}, s{slut}, {32768*m+4096*hf}")
            for k in range(4):
                a(f"buffer_load_dwordx4 {vr(WT[m]+16*hf+4*k,4)}, v{vA2}, {sr(sWT,4)}, s{st2} offen offset:{1024*k}")
    a(f"s_lshl_b32 s{slut}, s{srt}, 14")
    for k in range(4):
        a(f"s_add_u32 m0, s{slut}, {LUTL + 4096*k}\ns_add_u32 s{st2}, s{slut}, {LUT_OFF - WT_OFF + 4096*k}")
        for j in range(4):
            a(f"buffer_load_dwordx4 v{vA2}, {sr(sWT,4)}, s{st2} offen offset:{1024*j} lds")
    common1()
    a(f"""
    v_and_b32 v{vt+3}, 127, v0
    v_bfe_u32 v{vt+4}, v0, 2, 4
    v_and_b32 v{Z+4}, 3, v0
    v_lshrrev_b32 v{Z+5}, 6, v{vt+3}
    v_lshlrev_b32 v{vt+3}, 2, v{vt+3}
    v_lshl_add_u32 v{Z+4}, v{Z+5}, 2, v{Z+4}
    v_lshlrev_b32 v{Z+5}, 1, v{Z+4}
    v_mov_b32 v{Z+6}, 0x3f80
    v_mov_b32 v{Z+7}, 0x3f800000
    v_cmp_eq_u32 vcc, v{Z+5}, v{vt+4}
    v_add_u32 v{Z+5}, 1, v{Z+5}
    s_nop 0
    v_cndmask_b32 v{Z+8}, 0, v{Z+6}, vcc
    v_cmp_eq_u32 vcc, v{Z+5}, v{vt+4}
    v_cmp_eq_u32 s[78:79], 7, v{Z+4}
    s_or_b64 vcc, vcc, s[78:79]
    s_nop 1
    v_cndmask_b32 v{Z+9}, 0, v{Z+7}, vcc
    v_or_b32 v{Z+8}, v{Z+8}, v{Z+9}
    v_cmp_gt_u32 vcc, 15, v{vt+4}
    s_nop 1
    v_cndmask_b32 v{Z+8}, 0, v{Z+8}, vcc
    ds_write_b32 v{vt+3}, v{Z+8} offset:{OHL}
    v_and_b32 v{vt}, 15, v0
    v_bfe_u32 v{vt+1}, v0, 4, 2
    v_xor_b32 v{vt+2}, v{vt}, v{vt+1}
    v_lshlrev_b32 v{vt+2}, 4, v{vt+2}
    v_lshl_add_u32 v{vt+2}, v{vt}, 8, v{vt+2}
    v_add_u32 v{vt+2}, {XL}, v{vt+2}
    v_mul_u32_u24 v{vt}, {ROWP}, v{vt}
    s_waitcnt vmcnt(34)
    """)
    stamp(a, 2)
    spin(2, "C")
    for s in range(4):
        if s: a(f"v_xor_b32 v{vt+3}, {64*s}, v{vt+2}")
        for nb in range(3):
            a(f"ds_read_b128 {vr(XF+16*nb+4*s,4)}, v{vt+3 if s else vt+2} offset:{4096*nb}")
    a(f"""
    s_lshr_b32 s{st0}, s{srt}, 1
    s_lshl_b32 s{st0}, s{st0}, 7
    s_and_b32 s{st1}, s{srt}, 1
    s_lshl_b32 s{st1}, s{st1}, 5
    s_add_u32 s{st0}, s{st0}, s{st1}
    v_lshl_add_u32 v{vt+4}, v{vt+1}, 3, v{vt}
    v_add_u32 v{vt+4}, s{st0}, v{vt+4}
    s_lshl_b32 s{st0}, s{srt}, 6
    v_lshl_add_u32 v{vt+5}, v{vt+1}, 4, v{vt}
    v_add_u32 v{vt+5}, s{st0}, v{vt+5}
    """)
    def mms(m):
        o = []
        for s in range(4):
            if m == 0: o.append(f"s_waitcnt lgkmcnt({9-3*s})")
            for nb in range(3):
                for ab in range(2):
                    d = vr(accs[m][nb][ab], 4)
                    o.append(f"v_mfma_f32_16x16x32_bf16 {d}, {vr(WT[m]+16*ab+4*s,4)}, {vr(XF+16*nb+4*s,4)}, {'0' if s == 0 else d}")
        return o
    outA = []
    for nb in range(3):
        al, be = accs[0][nb]; o = EA+ (0 if nb != 1 else 4)
        for i in range(4): outA += [f"v_mul_f32 v{al+i}, s{cnl2e}, v{al+i}", f"v_mul_f32 v{be+i}, s{cnl2e}, v{be+i}"]
        outA += [f"v_cvt_pk_bf16_f32 v{o}, v{al}, v{al+2}", f"v_cvt_pk_bf16_f32 v{o+1}, v{be}, v{be+2}",
                 f"v_cvt_pk_bf16_f32 v{o+2}, v{al+1}, v{al+3}", f"v_cvt_pk_bf16_f32 v{o+3}, v{be+1}, v{be+3}",
                 f"ds_write_b64 v{vt+4}, {vr(o,2)} offset:{APL+16*ROWP*nb}", f"ds_write_b64 v{vt+4}, {vr(o+2,2)} offset:{APL+16*ROWP*nb+64}"]
    g = ["s_waitcnt vmcnt(26)"] + mms(0) + ["s_waitcnt vmcnt(18)"]
    m1 = mms(1)
    g += m1[:6]
    rest = m1[6:]; k = 0
    for x in rest:
        g.append(x); g += outA[k:k+2]; k += 2
    g += outA[k:] + ["s_nop 1"]
    for nb in range(3):
        al, be = accs[1][nb]; o = XF+4*nb
        g += [f"v_cvt_pk_bf16_f32 v{o}, v{al}, v{al+1}", f"v_cvt_pk_bf16_f32 v{o+1}, v{al+2}, v{al+3}",
              f"v_cvt_pk_bf16_f32 v{o+2}, v{be}, v{be+1}", f"v_cvt_pk_bf16_f32 v{o+3}, v{be+2}, v{be+3}",
              f"ds_write_b128 v{vt+5}, {vr(o,4)} offset:{UL+16*ROWP*nb}"]
    asmsim.check_hazards(g, "gemm")
    a.ext(g)
    stamp(a, 3)
    zero_acc()
    for r in range(4): a(f"v_mov_b32 v{ADDR+r}, 128")
    a(f"""
    v_mov_b32 v{vt+2}, {INCL+60}
    K2_JOIN:
    s_waitcnt vmcnt(0) lgkmcnt(0)
    s_barrier
    v_mov_b32 v{vt+2}, {INCL+60}
    ds_read2_b32 {vr(vt+4,2)}, v{vt+2} offset0:0 offset1:16
    ds_read2_b32 {vr(vt+6,2)}, v{vt+2} offset0:32 offset1:48
    s_waitcnt lgkmcnt(0)
    """)
    for g_ in range(4): a(f"v_readfirstlane_b32 s{sk+g_}, v{vt+4+g_}")
    a(f"""
    s_max_u32 s{st0}, s{sk}, s{sk+1}
    s_max_u32 s{st1}, s{sk+2}, s{sk+3}
    s_max_u32 s{st0}, s{st0}, s{st1}
    s_cmp_gt_u32 s{st0}, {CAPG*4}
    s_cbranch_scc1 K2_SLOW
    """)
    a("s_setprio 1")
    rank_groups()
    lane_setup()
    ap_addr(); ap_read()
    a("K2_REFILLC:")
    fill("C")
    stamp(a, 4)
    a("s_branch K2_GOC")
    a("K2_EMPTY:"); a.ext(ld_xr()); a("s_branch K2_DONE")
    for n in spins:
        a(f"""
        K2_SP{n}:
        ds_read_b32 v{vEa}, v{vPG}
        s_waitcnt lgkmcnt(0)
        v_cmp_gt_u32 vcc, s{sneed}, v{vEa}
        s_cbranch_vccnz K2_SP{n}
        s_branch K2_OK{n}
        """)
    main_loop("C")
    a(f"""
    K2_DONE:
    s_cmp_lg_u32 s{sslow}, 0
    s_cbranch_scc1 K2_ROUND
    K2_EPI:
    s_waitcnt vmcnt(0) lgkmcnt(0)
    """)
    stamp(a, 6); stamp(a, 6, "3")
    if OPT.get("prof") == "3": a("s_memtime s[88:89]")
    T0 = G
    for b in range(2):
        for r in range(6):
            a(f"v_add_f32 v{ACC+16*b+r}, 0x358637bd, v{ACC+16*b+r}")
        for r in range(6):
            a(f"v_rcp_f32 v{ACC+16*b+r}, v{ACC+16*b+r}")
        for r in range(6):
            u, x = T0+12*b+r, T0+12*b+6+r
            if b == 0: a(f"v_lshlrev_b32 v{u}, 16, v{UR+r}\nv_lshlrev_b32 v{x}, 16, v{XR+r}")
            else: a(f"v_and_b32 v{u}, 0xffff0000, v{UR+r}\nv_and_b32 v{x}, 0xffff0000, v{XR+r}")
        for r in range(6):
            u, x = T0+12*b+r, T0+12*b+6+r
            a(f"v_fmac_f32 v{u}, v{ACC+16*b+8+r}, v{ACC+16*b+r}\nv_max_f32 v{u}, 0, v{u}\nv_add_f32 v{u}, v{u}, v{x}")
    a(f"v_lshl_or_b32 v{vO2}, v{vH16}, 27, v{vO}")
    for r in range(6):
        a(f"v_cvt_pk_bf16_f32 v{SP+r}, v{T0+r}, v{T0+12+r}")
        a(f"buffer_store_dword v{SP+r}, v{vO if r < 4 else vO2}, {sr(sO,4)}, 0 offen offset:{256*rowoff(r)} {OPT.get('st_o', '')}")
    stamp(a, 7)
    stamp_out(a, 1, 14, sw, 2)
    a("K2_END:\ns_endpgm")

    a("K2_SLOW:")
    srd(a, sS, 8, None, E*4)
    srd(a, sD, 10, None, E*4)
    a(f"""
    s_mov_b32 s{sslow}, 1
    s_mov_b32 s{cm40}, {-BN}
    s_mov_b32 s{cm10}, {-GN}
    """)
    lane_setup(); ap_addr(); ap_read()
    a(f"""
    K2_ROUND:
    s_cmp_ge_u32 s{sround}, {E//RND}
    s_cbranch_scc1 K2_EPI
    s_mul_i32 s{st0}, s{sround}, {RND}
    s_add_u32 s{sround}, s{sround}, 1
    v_add_u32 v{EOFF}, s{st0}, v0
    v_lshlrev_b32 v{vt}, 2, v{EOFF}
    buffer_load_dword v{REC}, v{vt}, {sr(sD,4)}, 0 offen
    buffer_load_dword v{REC+1}, v{vt}, {sr(sS,4)}, 0 offen
    v_lshlrev_b32 v{EOFF}, 5, v{EOFF}
    v_and_b32 v{vt}, 63, v0
    v_lshlrev_b32 v{vt}, 3, v{vt}
    v_mov_b32 v{vt+4}, 0
    v_mov_b32 v{vt+5}, 0
    s_waitcnt lgkmcnt(0)
    s_barrier
    ds_write_b64 v{vt}, {vr(vt+4,2)} offset:{CNT}
    v_mov_b32 v{vt+3}, 4
    s_waitcnt vmcnt(0) lgkmcnt(0)
    s_barrier
    """)
    rec_fields(a, REC, REC+2, vt, cm40, cm10)
    a(f"""
    v_cmp_eq_u32 vcc, s2, v{REC+2}
    v_lshl_or_b32 v{REC}, v{REC+1}, 16, v{REC}
    {caddr(0)}
    s_mov_b64 s[78:79], vcc
    v_cmp_gt_u32 vcc, {RND}, v0
    s_and_b64 s[78:79], s[78:79], vcc
    s_mov_b64 exec, s[78:79]
    ds_add_rtn_u32 v{RANK}, v{CADDR}, v{vt+3} offset:{CNT}
    s_mov_b64 exec, -1
    s_waitcnt lgkmcnt(0)
    s_barrier
    """)
    scan(False)
    a(f"""
    s_mov_b64 exec, s[78:79]
    ds_read_b32 v{STV}, v{CADDR} offset:{START}
    s_waitcnt lgkmcnt(0)
    """)
    place(0, STV, EOFF)
    a(f"""
    s_mov_b64 exec, -1
    """)
    lane_setup()
    a(f"""
    s_waitcnt lgkmcnt(0)
    s_barrier
    s_cmp_eq_u32 s{sfh}, 0
    s_cbranch_scc1 K2_REFILLP
    s_branch K2_REFILLC
    K2_CODE_END:
    """)
    return a.text(), kd("k2_kernel", 256, 102)

KE_PROF = f"""
    s_memrealtime s[8:9]
    s_load_dwordx2 s[4:5], s[0:1], 88
    s_waitcnt lgkmcnt(0)
    s_add_u32 s4, s4, {PROF_OFF + 0x200000}
    s_addc_u32 s5, s5, 0
    s_mov_b32 s6, 4
    s_mov_b32 s7, 0x20000
    v_mov_b32 v1, s8
    v_lshlrev_b32 v0, 2, v0
    buffer_store_dword v1, v0, s[4:7], 0 offen
"""
def gen_kr():
    a = Asm()
    a(f"""
    kr_kernel:
    s_cmp_ge_u32 s2, 1
    s_cbranch_scc1 KR_END
    s_load_dwordx4 s[4:7], s[0:1], 80
    s_waitcnt lgkmcnt(0)
    s_add_u32 s8, s6, {PROF_OFF}
    s_addc_u32 s9, s7, 0
    s_mov_b32 s10, 0x200000
    s_mov_b32 s11, 0x20000
    s_mov_b32 s6, 256
    s_mov_b32 s7, 0x20000
    v_cmp_gt_u32 vcc, 250, v0
    s_and_saveexec_b64 s[12:13], vcc
    v_lshlrev_b32 v1, 10, v0
    v_mov_b32 v3, 0
    """)
    sel = [(0, 16, 0, 1), (0, 16, 0, 0), (0, 16, 2, 0), (0, 16, 3, 0), (0, 16, 5, 0), (0, 16, 8, 0),
           (1, 8, 0, 1), (1, 8, 0, 0), (1, 8, 2, 0), (1, 8, 3, 0), (1, 8, 5, 1), (1, 8, 5, 0), (1, 8, 6, 1), (1, 8, 6, 0), (1, 8, 8, 0)]
    for j, (kn, nw, st, mn) in enumerate(sel):
        a(f"s_mov_b32 s14, {kn*0x100000}")
        for w in range(nw): a(f"buffer_load_dword v{10+w}, v1, s[8:11], s14 offen offset:{64*w+4*st}")
        a("s_waitcnt vmcnt(0)")
        if mn:
            for w in range(nw): a(f"v_not_b32 v{10+w}, v{10+w}")
        for w in range(1, nw): a(f"v_max_u32 v10, v10, v{10+w}")
        a(f"buffer_atomic_umax v10, v3, s[4:7], 0 offen offset:{4*j}\ns_waitcnt vmcnt(0)")
    if OPT.get("iv"):
        ja, jb, k = [int(x) for x in OPT["iv"].split(",")]
        a(f"""
        s_barrier
        buffer_load_dword v10, v3, s[4:7], 0 offen offset:{4*ja} sc0 sc1
        buffer_load_dword v11, v3, s[4:7], 0 offen offset:{4*jb} sc0 sc1
        s_waitcnt vmcnt(0)
        v_readfirstlane_b32 s16, v10
        v_readfirstlane_b32 s17, v11
        """)
        if sel[ja][3]: a("s_not_b32 s16, s16")
        if sel[jb][3]: a("s_not_b32 s17, s17")
        a(f"""
        s_sub_u32 s16, s16, s17
        s_min_u32 s16, s16, 10000
        s_mul_i32 s16, s16, {k}
        s_memrealtime s[18:19]
        s_waitcnt lgkmcnt(0)
        KR_SPIN:
        s_memrealtime s[20:21]
        s_waitcnt lgkmcnt(0)
        s_sub_u32 s20, s20, s18
        s_cmp_lt_u32 s20, s16
        s_cbranch_scc1 KR_SPIN
        """)
    a("KR_END:\ns_endpgm")
    return a.text()

def main():
    k1, d1 = gen_k1(); k2, d2 = gen_k2()
    ref = open("standalone__edge_featured_mpnn_gatedgcn__graph.s.ref").read().split("\n")
    out = "\n".join(ref[:13]) + "\n"
    for ch in OPT.get("list", "12"):
        if ch == "1": out += f"; @launch kernel=k1_kernel grid=({2*NCH},1,1) block=(1024,1,1) lds={K1_LDS}\n"
        if ch == "2": out += f"; @launch kernel=k2_kernel grid=({NBIN},1,1) block=(512,1,1) lds={K2_LDS}\n"
        if ch == "r": out += "; @launch kernel=kr_kernel grid=(1,1,1) block=(256,1,1) lds=0\n"
        if ch == "e": out += "; @launch kernel=ke_kernel grid=(1,1,1) block=(64,1,1) lds=0\n"
    out += '.amdgcn_target "amdgcn-amd-amdhsa--gfx950"\n.text\n'
    for n, k in (("k1_kernel", k1), ("k2_kernel", k2)):
        out += f".globl {n}\n.p2align 8\n.type {n},@function\n" + k
    if "e" in OPT.get("list", ""): out += ".globl ke_kernel\n.p2align 8\n.type ke_kernel,@function\nke_kernel:\n" + (KE_PROF if OPT.get("prof") else "") + "    s_endpgm\n"
    if "r" in OPT.get("list", ""): out += ".globl kr_kernel\n.p2align 8\n.type kr_kernel,@function\n" + gen_kr()
    out += '.section .rodata,"a"\n.p2align 6\n' + d1.lstrip("\n") + '.p2align 6\n' + d2.lstrip("\n")
    if "e" in OPT.get("list", ""): out += '.p2align 6\n' + kd("ke_kernel", 8, 16).lstrip("\n")
    if "r" in OPT.get("list", ""): out += '.p2align 6\n' + kd("kr_kernel", 32, 32).lstrip("\n")
    open(sys.argv[1], "w").write(out)

if __name__ == "__main__":
    main()
```

```python
import struct, sys
import asmsim

N = 10000; E = 320000
NCH = 128; CS = 2500
NBIN = 256; GN = 10
BINK, BINC, BINS = 53687, 52500, 21
assert all((625*b_ >> 4) <= d_ < (625*(b_+1) >> 4) for d_ in range(N) for b_ in [(d_*BINK + BINC) >> BINS])
CAP = 32
TS = int(([a for a in sys.argv if a.startswith('ts=')] or ['ts=512'])[0][3:])
T_OFF = 0x1000000
REC_OFF = 0x700000
WT_OFF = 0xB00000
LUT_OFF = 0xB20000
PROF_OFF = 0xF000000
NL2E = struct.unpack("<I", struct.pack("<f", -1.4426950408889634))[0]

def bf(x): return struct.unpack("<I", struct.pack("<f", x))[0] >> 16

OPT = dict(st_r="sc1", st_t="sc1")
for a in sys.argv[2:]:
    k, v = a.split("=", 1); OPT[k] = v

class Asm:
    def __init__(self): self.l = []
    def __call__(self, s):
        for x in s.strip("\n").split("\n"):
            x = x.strip()
            if not x: continue
            if x.startswith(";"): x = "s_nop 0"
            self.l.append(x if x.endswith(":") else "    " + x)
    def ext(self, lst):
        for x in lst: self(x)
    def text(self): return "\n".join(self.l) + "\n"

def stamp(a, i, lvl="1"):
    if OPT.get("prof") and (i in (0, 8) or OPT["prof"] == lvl): a(f"s_memrealtime s[{84+2*i}:{85+2*i}]")
def stamp_out(a, kern, wsreg, sw, vtmp):
    if not OPT.get("prof"): return
    a("s_waitcnt vmcnt(0)")
    stamp(a, 8)
    a(f"""
    s_lshl_b32 s4, s2, 4
    s_add_u32 s4, s4, s{sw}
    s_lshl_b32 s4, s4, 6
    s_add_u32 s4, s4, {PROF_OFF + kern*0x100000}
    s_add_u32 s4, s{wsreg}, s4
    s_addc_u32 s5, s{wsreg+1}, 0
    s_mov_b32 s6, 64
    s_mov_b32 s7, 0x20000
    s_waitcnt lgkmcnt(0)
    """)
    if kern == 1 and OPT["prof"] == "7":
        a(f"v_mov_b32 v{vtmp}, v251\nv_writelane_b32 v{vtmp}, s84, 0\ns_mov_b32 m0, s98\ns_add_u32 s98, s98, 1\nv_writelane_b32 v{vtmp}, s86, m0\ns_mov_b32 m0, s98\ns_nop 3\nv_writelane_b32 v{vtmp}, s100, m0\nv_writelane_b32 v{vtmp}, s98, 15")
    else:
        for i in range(9): a(f"v_writelane_b32 v{vtmp}, s{84+2*i}, {i}")
    a(f"""
    v_mbcnt_lo_u32_b32 v{vtmp+1}, -1, 0
    v_mbcnt_hi_u32_b32 v{vtmp+1}, -1, v{vtmp+1}
    v_lshlrev_b32 v{vtmp+1}, 2, v{vtmp+1}
    buffer_store_dword v{vtmp}, v{vtmp+1}, s[4:7], 0 offen
    """)

def vr(b, n): return f"v[{b}:{b+n-1}]"
def sr(b, n): return f"s[{b}:{b+n-1}]"

def srd(a, d, base, add=None, size=None, w3="0x20000", hi_or=None):
    if add is None:
        a(f"s_mov_b32 s{d}, s{base}\ns_mov_b32 s{d+1}, s{base+1}")
    else:
        a(f"s_add_u32 s{d}, s{base}, {add}\ns_addc_u32 s{d+1}, s{base+1}, 0")
    if hi_or: a(f"s_or_b32 s{d+1}, s{d+1}, {hi_or}")
    a(f"s_mov_b32 s{d+2}, {size}\ns_mov_b32 s{d+3}, {w3}")

def kd(name, vgpr, sgpr):
    return f"""
.amdhsa_kernel {name}
  .amdhsa_next_free_vgpr {vgpr}
  .amdhsa_next_free_sgpr {sgpr}
  .amdhsa_accum_offset {(vgpr+3)//4*4}
  .amdhsa_group_segment_fixed_size 0
  .amdhsa_kernarg_size 96
  .amdhsa_user_sgpr_count 2
  .amdhsa_user_sgpr_kernarg_segment_ptr 1
  .amdhsa_system_sgpr_workgroup_id_x 1
.end_amdhsa_kernel
"""

def rec_fields(a, vd, vbin, vtmp, sm40, sm10):
    a(f"""
    v_mul_u32_u24 v{vbin}, {BINK}, v{vd}
    v_add_u32 v{vbin}, {BINC}, v{vbin}
    v_lshrrev_b32 v{vbin}, {BINS}, v{vbin}
    v_mul_u32_u24 v{vtmp}, 625, v{vbin}
    v_lshrrev_b32 v{vtmp}, 4, v{vtmp}
    v_sub_u32 v{vd}, v{vd}, v{vtmp}
    v_mul_u32_u24 v{vtmp}, 26, v{vd}
    v_lshrrev_b32 v{vtmp}, 8, v{vtmp}
    v_mad_i32_i24 v{vd}, v{vtmp}, s{sm10}, v{vd}
    v_lshl_or_b32 v{vd}, v{vtmp}, 30, v{vd}
    """)

K1_CNT = 0; K1_STG = 1024; K1_X = 65536; K1_LDS = K1_X + 20480
def gen_k1():
    a = Asm()
    sS, sD, sW1, sW2, sX, sR, sT = 24, 28, 32, 36, 40, 44, 48
    sw, st0, st1, st2, sng, sfb, stask = 52, 53, 54, 55, 56, 57, 58
    c4096, c8192, cm40, cm10, cnl2e, csign, cmag, ctso, cp0 = 59, 60, 61, 62, 63, 64, 65, 66, 67
    a("k1_kernel:")
    a(f"s_cmp_ge_u32 s2, {2*NCH}\ns_cbranch_scc1 K1_END")
    stamp(a, 0)
    a(f"""
    s_load_dwordx16 s[4:19], s[0:1], 0
    s_load_dwordx2 s[20:21], s[0:1], 64
    s_load_dwordx2 s[22:23], s[0:1], 88
    v_lshrrev_b32 v2, 6, v0
    v_lshlrev_b32 v1, 2, v0
    v_readfirstlane_b32 s{sw}, v2
    s_mov_b32 s{c4096}, 4096
    s_mov_b32 s{c8192}, 8192
    s_cmp_ge_u32 s2, {NCH}
    s_cbranch_scc1 K1_GEMM
    """)
    vD, vS, vB, vSL, vt = 2, 5, 8, 11, 16
    a(f"s_mul_i32 s{st1}, s2, {CS*4}\ns_waitcnt lgkmcnt(0)")
    srd(a, sD, 10, f"s{st1}", CS*4)
    srd(a, sS, 8, f"s{st1}", CS*4)
    for r, so in enumerate(("0", f"s{c4096}", f"s{c8192}")):
        a(f"buffer_load_dword v{vD+r}, v1, {sr(sD,4)}, {so} offen")
        a(f"buffer_load_dword v{vS+r}, v1, {sr(sS,4)}, {so} offen")
    a(f"""
    v_mov_b32 v{vt}, -1
    v_mov_b32 v{vt+1}, -1
    v_mov_b32 v{vt+2}, -1
    v_mov_b32 v{vt+3}, -1
    v_lshlrev_b32 v{vt+4}, 4, v0
    v_mov_b32 v{vt+5}, 0
    v_and_b32 v{vt+6}, 0x3fc, v1
    ds_write_b128 v{vt+4}, {vr(vt,4)} offset:{K1_STG}
    ds_write_b128 v{vt+4}, {vr(vt,4)} offset:{K1_STG+16384}
    ds_write_b32 v{vt+6}, v{vt+5} offset:{K1_CNT}
    s_lshl_b32 s{st0}, s2, 7
    s_add_u32 s{st0}, s{st0}, {REC_OFF}
    """)
    srd(a, sR, 22, f"s{st0}", NBIN*NCH*128)
    a(f"s_lshl_b32 s{st0}, s2, 9\ns_add_u32 s{st1}, s{st0}, {LUT_OFF}")
    srd(a, sT, 22, f"s{st1}", 512)
    a(f"""
    v_add_u32 v40, s{st0}, v1
    v_and_b32 v41, 0x7fff, v40
    v_cmp_ne_u32 vcc, 0x7c00, v41
    v_or_b32 v41, 3, v40
    s_nop 0
    v_addc_co_u32 v40, vcc, 0, v40, vcc
    v_cvt_f32_f16 v41, v41
    v_cvt_f32_f16 v40, v40
    v_exp_f32 v41, v41
    v_exp_f32 v40, v40
    v_add_f32 v41, 1.0, v41
    v_add_f32 v40, 1.0, v40
    v_rcp_f32 v41, v41
    v_rcp_f32 v40, v40
    s_nop 0
    v_cvt_pk_bf16_f32 v40, v40, v41
    buffer_store_dword v40, v1, {sr(sT,4)}, 0 offen {OPT['st_r']}
    """)
    if OPT.get("pf", "0") == "1":
        a(f"""
        s_getpc_b64 {sr(sW1,2)}
        K1_PC:
        s_add_u32 s{sW1}, s{sW1}, k2_kernel-K1_PC
        s_addc_u32 s{sW1+1}, s{sW1+1}, 0
        s_mov_b32 s{sW1+2}, K2_CODE_END-k2_kernel
        s_mov_b32 s{sW1+3}, 0x20000
        v_lshlrev_b32 v44, 6, v0
        buffer_load_dword v45, v44, {sr(sW1,4)}, 0 offen
        """)
    a(f"""
    s_mov_b32 s{cm10}, {-GN}
    v_mov_b32 v{vt+5}, 1
    v_cmp_gt_u32 vcc, {CS-2048}, v0
    s_mov_b64 s[100:101], vcc
    v_lshrrev_b32 v{vt+7}, 3, v0
    v_and_b32 v{vt+8}, 7, v0
    v_lshlrev_b32 v{vt+9}, 14, v{vt+7}
    v_lshl_add_u32 v{vt+9}, v{vt+8}, 4, v{vt+9}
    v_lshlrev_b32 v{vt+7}, 2, v{vt+7}
    v_cmp_eq_u32 s[82:83], 7, v{vt+8}
    s_mov_b32 s{st2}, {128*16384}
    s_waitcnt lgkmcnt(0)
    s_barrier
    """)
    stamp(a, 1)
    for r in range(3):
        a(f"s_waitcnt vmcnt({4-2*r + 1 + (OPT.get('pf', '0') == '1')})")
        if r == 0: stamp(a, 2)
        rec_fields(a, vD+r, vB+r, vt, cm40, cm10)
        a(f"v_lshlrev_b32 v{vt}, 2, v{vB+r}")
        if r == 2: a("s_mov_b64 exec, s[100:101]")
        a(f"ds_add_rtn_u32 v{vSL+r}, v{vt}, v{vt+5} offset:{K1_CNT}")
        if r == 2: a("s_mov_b64 exec, -1")
        a(f"""
        v_lshl_or_b32 v{vD+r}, v{vS+r}, 16, v{vD+r}
        v_add_u32 v{vS+r}, {1024*r}, v0
        v_lshl_or_b32 v{vD+r}, v{vS+r}, 4, v{vD+r}
        v_lshlrev_b32 v{vB+r}, 7, v{vB+r}
        """)
    for r in range(3):
        a(f"s_waitcnt lgkmcnt({2-r})" if r == 0 else f"s_waitcnt lgkmcnt({2})" if r == 1 else "s_waitcnt lgkmcnt(2)")
        if r == 2: a("s_mov_b64 exec, s[100:101]")
        a(f"""
        v_lshl_add_u32 v{vB+r}, v{vSL+r}, 2, v{vB+r}
        v_cmpx_gt_u32 vcc, {CAP}, v{vSL+r}
        ds_write_b32 v{vB+r}, v{vD+r} offset:{K1_STG}
        s_mov_b64 exec, -1
        """)
    a("s_waitcnt lgkmcnt(0)")
    stamp(a, 3)
    a("s_barrier")
    stamp(a, 4)
    a(f"""
    ds_read_b128 {vr(vt+12,4)}, v{vt+4} offset:{K1_STG}
    ds_read_b32 v{vt}, v{vt+7} offset:{K1_CNT}
    ds_read_b128 {vr(vt+16,4)}, v{vt+4} offset:{K1_STG+16384}
    ds_read_b32 v{vt+1}, v{vt+7} offset:{K1_CNT+512}
    v_mov_b32 v{vt+2}, -2
    """)
    for k in range(2):
        a(f"""
        s_waitcnt lgkmcnt({2-2*k})
        v_cmp_lt_u32 vcc, {CAP}, v{vt+k}
        s_and_b64 vcc, vcc, s[82:83]
        s_nop 1
        v_cndmask_b32 v{vt+15+4*k}, v{vt+15+4*k}, v{vt+2}, vcc
        buffer_store_dwordx4 {vr(vt+12+4*k,4)}, v{vt+9}, {sr(sR,4)}, {'0' if k == 0 else f's{st2}'} offen {OPT['st_r']}
        """)
    stamp(a, 5)
    if OPT.get("pe", "1") == "1":
        a("s_barrier")
        a(f"s_mul_i32 s{st0}, s2, {CS*32}")
        srd(a, sW2, 6, f"s{st0}", CS*32)
        a(f"v_lshlrev_b32 v46, 7, v0\nbuffer_load_dword v47, v46, {sr(sW2,4)}, 0 offen {OPT.get('pef', '')}")
    stamp(a, 6); stamp(a, 7)
    stamp_out(a, 0, 22, sw, 2)
    a("s_endpgm")
    vW, vX, vA, vt = 32, 96, 112, 2
    def W(m, ab, s): return vW + 32*m + 16*ab + 4*s
    a(f"""
    K1_GEMM:
    s_sub_u32 s{stask}, s2, {NCH}
    s_and_b32 s{sfb}, s{sw}, 3
    s_lshr_b32 s{sng}, s{sw}, 2
    v_and_b32 v{vt}, 63, v0
    v_lshrrev_b32 v{vt+1}, 4, v{vt}
    v_and_b32 v{vt+2}, 15, v0
    s_lshl_b32 s{st0}, s{sfb}, 2
    v_add_u32 v{vt+3}, s{st0}, v{vt+1}
    v_xor_b32 v{vt+3}, v{vt+3}, v{vt+2}
    v_lshlrev_b32 v{vt+3}, 4, v{vt+3}
    v_lshl_add_u32 v{vt+3}, v{vt+1}, 8, v{vt+3}
    v_lshlrev_b32 v{vt+4}, 2, v{vt+1}
    v_xor_b32 v{vt+4}, v{vt+4}, v{vt+2}
    v_lshlrev_b32 v{vt+4}, 4, v{vt+4}
    v_lshl_add_u32 v{vt+4}, v{vt+1}, 8, v{vt+4}
    s_mul_i32 s{st0}, s{stask}, 20480
    s_cmp_lt_u32 s{stask}, 125
    s_cselect_b32 s{st0}, s{st0}, 0
    s_cselect_b32 s{st2}, 20480, 0
    s_waitcnt lgkmcnt(0)
    """)
    a(f"""
    s_cmp_ge_u32 s{stask}, 126
    s_cbranch_scc1 K1_WC
    s_add_u32 s{sX}, s4, s{st0}
    s_addc_u32 s{sX+1}, s5, 0
    s_mov_b32 s{sX+2}, s{st2}
    s_mov_b32 s{sX+3}, 0x20000
    s_lshl_b32 s{st1}, s{sw}, 10
    s_add_u32 m0, s{st1}, {K1_X}
    s_cmp_eq_u32 s{stask}, 125
    s_cselect_b64 {sr(sW1,2)}, s[12:13], s[14:15]
    s_cselect_b64 {sr(sW2,2)}, s[18:19], s[20:21]
    """)
    if OPT.get("touch", "0") == "1":
        a(f"""
        s_bitcmp1_b32 s2, 3
        s_cselect_b64 {sr(sS,2)}, {sr(sW1,2)}, {sr(sW2,2)}
        s_bitcmp1_b32 s2, 4
        s_cselect_b32 s{sS+2}, 4, 0
        s_mov_b32 s{sS+3}, 0x20000
        buffer_load_dword v30, v1, {sr(sS,4)}, 0 offen
        """)
    a(f"""
    buffer_load_dwordx4 v{vt+3}, {sr(sX,4)}, s{st1} offen lds
    s_cmp_lt_u32 s{sw}, 4
    s_cbranch_scc0 K1_X1
    s_add_u32 m0, s{st1}, {K1_X+16384}
    s_add_u32 s{st1}, s{st1}, 16384
    buffer_load_dwordx4 v{vt+3}, {sr(sX,4)}, s{st1} offen lds
    K1_X1:
    s_mov_b32 s{sW1+2}, 32768
    s_mov_b32 s{sW1+3}, 0x20000
    s_mov_b32 s{sW2+2}, 32768
    s_mov_b32 s{sW2+3}, 0x20000
    s_lshr_b32 s{st1}, s2, 3
    s_add_u32 s{st1}, s{st1}, s{sw}
    s_and_b32 s{st1}, s{st1}, 15
    s_lshl_b32 s{st1}, s{st1}, 11
    s_mov_b32 m0, s{st1}
    s_mul_i32 s{st0}, s{stask}, {80*TS}
    buffer_load_dwordx4 v{vt+4}, {sr(sW1,4)}, s{st1} offen lds
    buffer_load_dwordx4 v{vt+4}, {sr(sW1,4)}, s{st1} offen offset:1024 lds
    s_add_u32 m0, s{st1}, 32768
    s_add_u32 s{st0}, s{st0}, {T_OFF}
    buffer_load_dwordx4 v{vt+4}, {sr(sW2,4)}, s{st1} offen lds
    buffer_load_dwordx4 v{vt+4}, {sr(sW2,4)}, s{st1} offen offset:1024 lds
    """)
    srd(a, sT, 22, f"s{st0}", 80*TS)
    a(f"""
    v_bfe_u32 v{vt+5}, v0, 2, 2
    v_and_b32 v{vt+6}, 3, v0
    s_lshl_b32 s{st0}, s{sfb}, 2
    v_add_u32 v{vt+6}, s{st0}, v{vt+6}
    v_lshlrev_b32 v{vt+7}, 2, v{vt+5}
    v_xor_b32 v{vt+6}, v{vt+6}, v{vt+7}
    v_lshl_add_u32 v{vt+5}, v{vt+1}, 3, v{vt+5}
    v_lshlrev_b32 v{vt+5}, 8, v{vt+5}
    v_lshl_add_u32 v10, v{vt+6}, 4, v{vt+5}
    v_xor_b32 v11, v{vt+1}, v{vt+2}
    v_lshlrev_b32 v11, 4, v11
    v_lshl_add_u32 v11, v{vt+2}, 8, v11
    s_lshl_b32 s{st0}, s{sng}, 12
    s_add_u32 s{st0}, s{st0}, {K1_X}
    v_add_u32 v11, s{st0}, v11
    v_mul_u32_u24 v12, {TS}, v{vt+2}
    v_lshl_add_u32 v12, v{vt+1}, 4, v12
    s_mul_i32 s{st0}, s{sng}, {16*TS}
    s_lshr_b32 s{st1}, s{sfb}, 1
    s_lshl_b32 s{st1}, s{st1}, 8
    s_add_u32 s{st0}, s{st0}, s{st1}
    s_and_b32 s{st1}, s{sfb}, 1
    s_lshl_b32 s{st1}, s{st1}, 6
    s_add_u32 s{ctso}, s{st0}, s{st1}
    s_mov_b32 s{cnl2e}, {NL2E:#x}
    s_mov_b32 s{csign}, 0x00800000
    s_mov_b32 s{cmag}, 0x7fffffff
    s_mov_b32 s{cp0}, 0x07060100
    s_mov_b32 s{cp0+1}, 0x07060302
    v_xor_b32 v13, 64, v11
    v_xor_b32 v14, 0x80, v11
    v_xor_b32 v15, 0xc0, v11
    """)
    stamp(a, 1)
    a("s_waitcnt vmcnt(0)")
    stamp(a, 2)
    a("s_barrier")
    stamp(a, 3)
    def xrd(off):
        for s in range(4): a(f"ds_read_b128 {vr(vX+4*s,4)}, v{[11,13,14,15][s]} offset:{off}")
    xrd(0)
    n = 4
    for s in range(4):
        for m in range(2):
            for ab in range(2):
                for u in range(2):
                    a(f"ds_read_b64_tr_b16 {vr(W(m,ab,s)+2*u,2)}, v10 offset:{m*32768+s*8192+u*1024+ab*8}")
        if s < 3: a("s_waitcnt lgkmcnt(6)")
    a(f"s_cmp_eq_u32 s{stask}, 125\ns_cbranch_scc1 K1_WT")
    def mm():
        for s in range(4):
            for m in range(2):
                for ab in range(2):
                    d = vr(vA+8*m+4*ab, 4)
                    a(f"v_mfma_f32_16x16x32_bf16 {d}, {vr(W(m,ab,s),4)}, {vr(vX+4*s,4)}, {'0' if s == 0 else d}")
    def pack(so):
        a("s_nop 7")
        for b in range(2):
            for ab in range(2):
                b0, b1 = vA+4*ab+b, vA+4*ab+2+b
                a(f"v_mul_f32 v{b0}, s{cnl2e}, v{b0}\nv_mul_f32 v{b1}, s{cnl2e}, v{b1}")
                for e_ in range(2):
                    h = vA+8+4*ab+2*e_+b
                    a(f"v_max_f32 v{16+e_}, abs(v{h}), s{csign}\nv_bfi_b32 v{h}, s{cmag}, v{16+e_}, v{h}")
                a(f"v_cvt_pk_bf16_f32 v{b0}, v{b0}, v{b1}")
                for e_ in range(2):
                    h = vA+8+4*ab+2*e_+b
                    a(f"v_add_u32 v{h}, 0x8000, v{h}")
                for e_ in range(2):
                    h = vA+8+4*ab+2*e_+b
                    a(f"v_sub_u32_sdwa v{h}, v{h}, v{b0} dst_sel:DWORD dst_unused:UNUSED_PAD src0_sel:DWORD src1_sel:WORD_{e_}")
                for e_ in range(2):
                    h = vA+8+4*ab+2*e_+b
                    a(f"v_perm_b32 v{20+4*b+2*ab+e_}, v{h}, v{b0}, s{cp0+e_}")
            a(f"buffer_store_dwordx4 {vr(20+4*b,4)}, v12, {sr(sT,4)}, s{so} offen offset:{128*b} {OPT['st_t']}")
    a("s_waitcnt lgkmcnt(0)")
    mm()
    stamp(a, 4)
    a(f"s_cmp_eq_u32 s{sng}, 0\ns_cbranch_scc0 K1_ONE")
    xrd(16384)
    pack(ctso)
    a(f"s_add_u32 s{ctso}, s{ctso}, {64*TS}\ns_waitcnt lgkmcnt(0)")
    mm()
    a("K1_ONE:")
    pack(ctso)
    stamp(a, 5); stamp(a, 6); stamp(a, 7)
    stamp_out(a, 0, 22, sw, 2)
    a("s_endpgm")
    a("K1_WT:")
    srd(a, sT, 22, WT_OFF, 65536)
    a(f"""
    s_cmp_ge_u32 s{sw}, 8
    s_cbranch_scc1 K1_END
    v_lshlrev_b32 v{vt+1}, 4, v{vt}
    s_lshl_b32 s{st0}, s{sw}, 13
    s_add_u32 s{st1}, s{st0}, 4096
    s_waitcnt lgkmcnt(0)
    s_cmp_eq_u32 s{sng}, 0
    s_cbranch_scc0 K1_WU
    """)
    for m in range(2):
        for ab in range(2):
            for s in range(4):
                a(f"buffer_store_dwordx4 {vr(W(m,ab,s),4)}, v{vt+1}, {sr(sT,4)}, s{st1 if ab else st0} offen offset:{1024*s} {OPT['st_t']}")
        a("s_endpgm")
        if m == 0: a("K1_WU:")
    a("K1_WC:")
    srd(a, sT, 22, WT_OFF+65536, 4096)
    srd(a, sW1, 16, None, 4096)
    a(f"""
    s_cmp_eq_u32 s{stask}, 126
    s_cbranch_scc0 K1_END
    s_cmp_ge_u32 s{sw}, 4
    s_cbranch_scc1 K1_END
    v_lshrrev_b32 v{vt+2}, 5, v{vt}
    v_and_b32 v{vt+3}, 31, v0
    v_lshlrev_b32 v{vt+3}, 2, v{vt+3}
    v_lshl_add_u32 v{vt+3}, v{vt+2}, 11, v{vt+3}
    v_lshlrev_b32 v{vt+1}, 4, v{vt}
    s_lshr_b32 s{st1}, s{sw}, 1
    s_lshl_b32 s{st1}, s{st1}, 7
    s_and_b32 s{st0}, s{sw}, 1
    s_lshl_b32 s{st0}, s{st0}, 1
    s_add_u32 s{st1}, s{st1}, s{st0}
    s_lshl_b32 s{st0}, s{sw}, 10
    s_mov_b32 s{cnl2e}, {NL2E:#x}
    """)
    for j in range(8):
        a(f"buffer_load_ushort v{20+j}, v{vt+3}, {sr(sW1,4)}, s{st1} offen offset:{256*j}")
    a("s_waitcnt vmcnt(0)")
    for j in range(8):
        a(f"v_lshlrev_b32 v{20+j}, 16, v{20+j}\nv_mul_f32 v{20+j}, s{cnl2e}, v{20+j}")
    for j in range(4):
        a(f"v_cvt_pk_bf16_f32 v{28+j}, v{20+2*j}, v{21+2*j}")
    a(f"buffer_store_dwordx4 v[28:31], v{vt+1}, {sr(sT,4)}, s{st0} offen {OPT['st_t']}")
    a("K1_END:\ns_endpgm")
    return a.text(), kd("k1_kernel", 128, 102)

CAPG = 416; RND = 400
CNT = 0; FLG = 256; START = 512; INCL = 768; OHL = 1024; L1 = 1536; L2 = L1 + 4*CAPG*4; APL = L2 + 4*CAPG*4
ROWP = 272
UL = APL + 48*ROWP; LUTL = UL + 48*ROWP; STG = (LUTL + 65536 + 255)//256*256; XL = STG + 3*CAPG*32 + 5*1024; K2_LDS = XL + 12288
PROG = FLG + 32
assert K2_LDS <= 163840 and K2_LDS >= STG + 4*CAPG*32 and LUTL <= 65535 and (4*CAPG*4) % 256 == 0

def gen_k2():
    a = Asm()
    sREC, sX, sWT, sT, sE, sO, sD, sS = 24, 28, 32, 36, 40, 44, 68, 72
    sw, sg, sfh, st0, st1, st2 = 48, 49, 50, 51, 52, 53
    scount, sslow, sround, slim, sgb, srt, slut, srank = 54, 55, 56, 57, 58, 59, 82, 83
    stail = 20
    sdma, sm0, sneed = 21, 22, 23
    cm32, c128, cnl2e, cfc, csrc, cm40, cm10, cfe = 60, 61, 62, 63, 64, 65, 66, 67
    sk = 16
    vH16, vA1, vA2, vEa, vOa, vO, vA3 = 1, 2, 3, 4, 5, 6, 7
    WC = 8; AP = 16; PA = 24; SC = 28; OH = 32; EA = 40; ADDR = 48; ACC = 64; SP = 96; G = 112; RAW = 176
    XR = 240; UR = 246; vP16 = 252; vH256 = 253; vHS = 254; vPG = 255; vM15 = XR; vO2 = SP+8
    raw = lambda p, b: RAW + 32*p + 16*b
    gb = lambda p, b: G + 32*p + 16*b
    vt = gb(1, 1); Z = SP; EOFF = SP+14
    REC = raw(1, 0); CADDR = REC+16; RANK = G; STV = G+16
    NTB = [int(c_) for c_ in OPT.get("nt", "11")]
    rowoff = lambda r: 8*(r >> 2) + (r & 3)
    sd = "dst_sel:DWORD dst_unused:UNUSED_PAD src0_sel:DWORD"

    a("k2_kernel:")
    a(f"s_cmp_ge_u32 s2, {NBIN}\ns_cbranch_scc1 K2_END")
    stamp(a, 0)
    a(f"""
    s_load_dwordx8 s[4:11], s[0:1], 0
    s_load_dwordx2 s[12:13], s[0:1], 72
    s_load_dwordx2 s[14:15], s[0:1], 88
    v_lshrrev_b32 v{vt}, 6, v0
    v_lshrrev_b32 v{vt+1}, 2, v0
    v_readfirstlane_b32 s{sw}, v{vt}
    v_and_b32 v{vt+2}, 3, v0
    v_lshlrev_b32 v{vt+3}, 7, v{vt+1}
    v_lshl_add_u32 v{vt+3}, v{vt+2}, 4, v{vt+3}
    s_lshl_b32 s{st0}, s2, 14
    s_add_u32 s{st0}, s{st0}, {REC_OFF}
    v_and_b32 v{vt}, 63, v0
    v_lshlrev_b32 v{vt+5}, 3, v{vt}
    v_mov_b32 v{Z}, 0
    v_mov_b32 v{Z+1}, 0
    ds_write_b64 v{vt+5}, {vr(Z,2)} offset:{CNT}
    s_and_b32 s{sg}, s{sw}, 3
    s_lshr_b32 s{sfh}, s{sw}, 2
    v_lshlrev_b32 v{vA2}, 4, v{vt}
    s_mov_b32 s{st1}, 8192
    s_waitcnt lgkmcnt(0)
    s_cmp_lg_u32 s{sfh}, 0
    s_cbranch_scc1 K2_NOREC
    """)
    srd(a, sREC, 14, f"s{st0}", 16384)
    for u in range(2):
        for r in range(2):
            a(f"buffer_load_dwordx4 {vr(REC+8*r+4*u,4)}, v{vt+3}, {sr(sREC,4)}, {'s%d' % st1 if u else '0'} offen offset:{64*r}")
    a(f"""
    K2_NOREC:
    s_mul_i32 s{st0}, s2, 625
    s_add_u32 s{cm40}, s{st0}, 625
    s_lshr_b32 s{st0}, s{st0}, 4
    s_lshr_b32 s{cm40}, s{cm40}, 4
    s_sub_u32 s{cm40}, s{cm40}, s{st0}
    s_lshl_b32 s{cm40}, s{cm40}, 8
    s_lshl_b32 s{st0}, s{st0}, 8
    """)
    srd(a, sX, 4, f"s{st0}", f"s{cm40}")
    srd(a, sO, 12, f"s{st0}", f"s{cm40}")
    srd(a, sWT, 14, WT_OFF, LUT_OFF - WT_OFF + 65536)
    a("s_barrier")
    stamp(a, 1)
    def ld_wc():
        a(f"""
        s_lshl_b32 s{st1}, s{sfh}, 11
        s_add_u32 s{st1}, s{st1}, 65536
        buffer_load_dwordx4 {vr(WC,4)}, v{vA2}, {sr(sWT,4)}, s{st1} offen
        buffer_load_dwordx4 {vr(WC+4,4)}, v{vA2}, {sr(sWT,4)}, s{st1} offen offset:1024
        """)
    def common1(Z, vl):
        a = Asm()
        a(f"s_lshl_b32 s{st0}, s{sfh}, 8\ns_add_u32 s{st0}, s{st0}, {T_OFF-128}")
        srd(a, sT, 14, f"s{st0}", 64, w3="0x800000", hi_or="0x40000")
        srd(a, sE, 6, None, E*32)
        a(f"""
        s_mov_b32 s{cm32}, {'0x7e0' if 'e' in OPT.get('nomem','') else '0x1fffe0' if 's' in OPT.get('nomem','') else '0xffffffe0'}
        s_mov_b32 s{c128}, 128
        s_mov_b32 s{cnl2e}, {NL2E:#x}
        s_mov_b32 s{cfc}, 0xfc
        s_mov_b32 s{cfe}, {OPT.get('cfe', '0xfffe')}
        s_mov_b32 s{csrc}, {TS}
        s_mov_b32 s{sslow}, 0
        s_mov_b32 s{sround}, 0
        s_mov_b32 s{sgb}, 0
        s_mul_i32 s{st0}, s{sfh}, 3
        s_xor_b32 s{srank}, s{sg}, s{st0}
        v_lshrrev_b32 v{Z+2}, 5, v{vl}
        v_and_b32 v{Z+3}, 31, v0
        v_lshlrev_b32 v{vH16}, 4, v{Z+2}
        v_lshlrev_b32 v{vH256}, 8, v{Z+2}
        v_cmp_eq_u32 vcc, 0, v{Z+2}
        v_mov_b32 v{vM15}, 0xffff
        v_mov_b32 v{Z+4}, -1
        v_cndmask_b32 v{vM15}, v{vM15}, v{Z+4}, vcc
        v_and_b32 v{Z+4}, 3, v0
        v_mov_b32 v{Z+6}, 0x3f80
        """)
        for i in range(4):
            a(f"v_cmp_eq_u32 vcc, {i}, v{Z+4}\ns_nop 1\nv_cndmask_b32 v{PA+i}, 0, v{Z+6}, vcc")
        den = bf(127*2.0**-116); tiny = bf(2.0**-100)
        a(f"""
        v_cmp_gt_u32 s[78:79], 16, v{Z+3}
        v_mov_b32 v{Z+5}, {den:#x}
        v_mov_b32 v{Z+7}, {tiny<<16:#x}
        v_cndmask_b32 v{Z+5}, v{Z+6}, v{Z+5}, s[78:79]
        v_cndmask_b32 v{Z+7}, 0, v{Z+7}, s[78:79]
        v_and_b32 v{Z+4}, 15, v0
        v_lshlrev_b32 v{Z+8}, 3, v{Z+2}
        v_sub_u32 v{Z+4}, v{Z+4}, v{Z+8}
        v_lshlrev_b32 v{Z+6}, 16, v{Z+5}
        """)
        for d in range(4):
            a(f"""
            v_cmp_eq_u32 vcc, {2*d}, v{Z+4}
            v_cmp_eq_u32 s[78:79], {2*d+1}, v{Z+4}
            s_nop 0
            v_cndmask_b32 v{SC+d}, 0, v{Z+5}, vcc
            v_cndmask_b32 v{Z+8}, 0, v{Z+6}, s[78:79]
            v_or_b32 v{SC+d}, v{SC+d}, v{Z+8}
            """)
        a(f"""
        v_and_b32 v{SC+3}, v{SC+3}, v{vM15}
        v_not_b32 v{Z+8}, v{vM15}
        v_and_b32 v{Z+8}, v{Z+8}, v{Z+7}
        v_or_b32 v{SC+3}, v{SC+3}, v{Z+8}
        """)
        return [x.strip() for x in a.l]
    def ld_xr(): return [f"buffer_load_dword v{XR+r}, v{vO}, {sr(sX,4)}, 0 offen offset:{256*rowoff(r)} " for r in range(6)]
    def arrive(k):
        a(f"""
        v_mov_b32 v{vt+6}, {FLG+4*k}
        v_mov_b32 v{vt+7}, 1
        s_mov_b64 exec, 1
        ds_add_u32 v{vt+6}, v{vt+7}
        s_mov_b64 exec, -1
        """)
    def spin(k, n, add=True):
        if add: arrive(k)
        else: a(f"v_mov_b32 v{vt+6}, {FLG+4*k}")
        a(f"""
        K2_SPIN{n}:
        ds_read_b32 v{vt+7}, v{vt+6}
        s_waitcnt lgkmcnt(0)
        v_cmp_gt_u32 vcc, 4, v{vt+7}
        s_cbranch_vccnz K2_SPIN{n}
        """)
    def caddr(k): return f"v_and_b32_sdwa v{CADDR+k}, s{cfc}, v{REC+k} {sd} src1_sel:BYTE_3"
    def pick(sel, cur):
        a(f"""
        s_bitcmp1_b32 s{sel}, 0
        s_cselect_b32 s{cur[0]}, s{cur[1]}, s{cur[0]}
        s_cselect_b32 s{cur[2]}, s{cur[3]}, s{cur[2]}
        s_bitcmp1_b32 s{sel}, 1
        s_cselect_b32 s{st0}, s{cur[2]}, s{cur[0]}
        s_and_b32 s{sg}, s{st0}, 3
        s_andn2_b32 s{st0}, s{st0}, 3
        s_mul_i32 s{sgb}, s{sg}, {CAPG*4}
        s_add_u32 s{scount}, s{st0}, 127
        s_lshr_b32 s{scount}, s{scount}, 7
        s_add_u32 s{stail}, s{st0}, 124
        s_bfe_u32 s{stail}, s{stail}, 0x20005
        s_lshl_b32 s{stail}, s{stail}, 1
        s_add_u32 s{stail}, s{stail}, 2
        """)
    def rank_groups():
        for g in range(1, 4): a(f"s_or_b32 s{sk+g}, s{sk+g}, {g}")
        cur = [sk, sk+1, sk+2, sk+3]; spare = sk+4
        for (i, j) in ((0, 1), (2, 3), (0, 2), (1, 3), (1, 2)):
            a(f"s_max_u32 s{spare}, s{cur[i]}, s{cur[j]}\ns_min_u32 s{cur[j]}, s{cur[i]}, s{cur[j]}")
            cur[i], spare = spare, cur[i]
        pick(srank, cur)
    def scan(fast):
        x = SP
        a(f"""
        v_and_b32 v{vt}, 63, v0
        v_lshlrev_b32 v{vt+1}, 2, v{vt}
        ds_read_b32 v{x}, v{vt+1} offset:{CNT}
        v_lshrrev_b32 v{vt}, 4, v{vt}
        v_mul_u32_u24 v{vt}, {CAPG*4}, v{vt}
        v_and_b32 v{vt+2}, 31, v0
        v_lshlrev_b32 v{vt+2}, 2, v{vt+2}
        v_mov_b32 v{vt+4}, 0xfffffe
        s_waitcnt lgkmcnt(0)
        v_sub_u32 v{vt}, v{vt}, v{x}
        """)
        for d in ("row_shr:1", "row_shr:2", "row_shr:4", "row_shr:8"):
            a(f"v_add_u32_dpp v{x}, v{x}, v{x} {d} row_mask:0xf bank_mask:0xf bound_ctrl:0\ns_nop 1")
        a(f"""
        v_add_u32 v{vt}, v{vt}, v{x}
        v_cmp_lt_u32 vcc, {CAPG*4}, v{x}
        ds_write2st64_b32 v{vt+1}, v{vt}, v{x} offset0:{START//256} offset1:{INCL//256}
        """)
        for g in range(4): a(f"v_readlane_b32 s{sk+g}, v{x}, {16*g+15}")
        if fast:
            a("s_cbranch_vccnz K2_GIVEUP")
            for k in range(8): a(f"ds_read_b32 v{STV+k}, v{CADDR+k} offset:{START}")
            rank_groups()
        else:
            for g in range(1, 4): a(f"s_or_b32 s{sk+g}, s{sk+g}, {g}")
            pick(sg, [sk, sk+1, sk+2, sk+3])
        a(f"""
        s_add_u32 s{st0}, s{st0}, s{sgb}
        v_add_u32 v{vt+2}, s{st0}, v{vt+2}
        s_lshl_b32 s{st1}, s{scount}, 7
        s_add_u32 s{st1}, s{st1}, s{sgb}
        v_lshlrev_b32 v{vt+3}, 3, v{vt+2}
        v_and_b32 v{vt+3}, 128, v{vt+3}
        v_cmpx_gt_u32 vcc, s{st1}, v{vt+2}
        ds_write2st64_b32 v{vt+2}, v{vt+3}, v{vt+4} offset0:{L1//256} offset1:{L2//256}
        s_mov_b64 exec, -1
        """)
    def place(k, st, eo):
        a(f"""
        v_add_u32 v{st}, v{st}, v{RANK+k}
        v_bfe_u32 v{vt}, v{REC+k}, 16, {5 if 't' in OPT.get('nomem','') else 14}
        v_lshlrev_b32 v{vt+1}, 3, v{st}
        v_mad_u32_u16 v{vt+2}, v{REC+k}, 2, v{eo}
        v_and_b32 v{vt+1}, 128, v{vt+1}
        v_mad_u32_u24 v{vt}, v{vt}, s{csrc}, v{vt+1}
        ds_write2st64_b32 v{st}, v{vt}, v{vt+2} offset0:{L1//256} offset1:{L2//256}
        """)
    def lane_setup():
        a(f"""
        v_and_b32 v{vt}, 31, v0
        v_xor_b32 v{vA1}, 16, v{vH16}
        v_xor_b32 v{vA2}, 4, v{vt}
        v_lshlrev_b32 v{vA2}, 2, v{vA2}
        v_add_u32 v{vA1}, s{sgb}, v{vA1}
        v_add_u32 v{vA2}, s{sgb}, v{vA2}
        s_mul_i32 s{st0}, s{sg}, {GN*256}
        s_lshl_b32 s{st1}, s{sfh}, 7
        s_add_u32 s{st0}, s{st0}, s{st1}
        v_lshlrev_b32 v{vO}, 2, v{vt}
        v_lshl_add_u32 v{vO}, v{vH256}, 2, v{vO}
        v_add_u32 v{vO}, s{st0}, v{vO}
        v_bfe_u32 v{vA3}, v0, 1, 5
        v_lshlrev_b32 v{vA3}, 2, v{vA3}
        v_add_u32 v{vA3}, s{sgb}, v{vA3}
        v_lshlrev_b32 v{vP16}, 4, v0
        v_xor_b32 v{vP16}, v{vP16}, v0
        v_and_b32 v{vP16}, 16, v{vP16}
        v_lshlrev_b32 v{vHS}, 1, v0
        v_xor_b32 v{vHS}, v{vHS}, v{vH16}
        v_and_b32 v{vHS}, 16, v{vHS}
        v_add_u32 v{vHS}, {STG}, v{vHS}
        s_lshl_b32 s{st0}, s{sg}, 2
        s_add_u32 s{st0}, s{st0}, {PROG}
        v_mov_b32 v{vPG}, s{st0}
        s_lshl_b32 s{sm0}, s{sgb}, 3
        s_add_u32 s{sm0}, s{sm0}, {STG}
        s_mov_b32 s{sdma}, 0
        s_mov_b32 s{sneed}, 0
        s_mov_b32 s{slim}, s{scount}
        """)
    def rd_addr(off, j): return f"ds_read_b128 {vr(ADDR+4*j,4)}, v{vA1} offset:{L1+off+32*j}"
    def rd_l2(reg, off): return f"ds_read_b32 v{reg}, v{vA2} offset:{L2+off}"
    def ld_raw(p, b, r):
        pre = [f"v_and_b32 v{ADDR+r}, 0xffff80, v{ADDR+r}"] if OPT.get("safe") else []
        if OPT.get("noload"): return ["s_nop 0"]
        return pre + [f"buffer_load_dword v{raw(p,b)+r}, v{ADDR+r}, {sr(sT,4)}, 0 offen" + (" offset:128" if b else "")]
    def ld_blk(p, b): return sum((ld_raw(p, b, r) for r in range(16)), [])
    cur = {"r": "P"}
    def rd_l3(off): return [f"ds_read_b32 v{vEa}, v{vA3} offset:{L2+off}"] if cur["r"] == "P" else []
    lab = [0]
    def dma_ea(sl):
        if cur["r"] != "P": return []
        lab[0] += 1
        return [f"s_cmp_lt_u32 s{sdma}, s{slim}", f"s_cbranch_scc0 K2_ND{lab[0]}", "@D{",
                f"s_mov_b32 m0, s{sm0}", f"v_and_or_b32 v{vEa}, v{vEa}, s{cm32}, v{vP16}",
                f"buffer_load_dwordx4 v{vEa}, {sr(sE,4)}, 0 offen lds;wr={300+sl}", "@}", f"K2_ND{lab[0]}:",
                f"s_add_u32 s{sdma}, s{sdma}, 1", f"s_add_u32 s{sm0}, s{sm0}, 1024"]
    spins = []
    def rd_prog(): return [f"ds_read_b32 v{vEa}, v{vPG}"] if cur["r"] == "C" else []
    def get_ea(p, sl, off):
        o = [f"s_add_u32 s{sneed}, s{sneed}, 1"]
        if cur["r"] == "P":
            o += [f"v_mov_b32 v{vEa}, s{sneed};rd={300+sl}", f"ds_write_b32 v{vPG}, v{vEa}"]
        else:
            lab[0] += 1; n = lab[0]; spins.append(n)
            o += [f"v_cmp_gt_u32 vcc, s{sneed}, v{vEa}", f"s_cbranch_vccnz K2_SP{n}", f"K2_OK{n}:"]
        return o + [f"v_lshl_add_u32 v{vEa}, v{vA2}, 3, v{vHS}", f"ds_read_b128 {vr(EA+4*p,4)}, v{vEa} offset:{8*off}"]
    def oh_idx(p):
        return [f"v_and_b32 v{vOa}, 30, v{vOa}",
                f"v_lshl_add_u32 v{vOa}, v{vOa}, 3, v{vH256}",
                f"ds_read_b128 {vr(OH+4*p,4)}, v{vOa} offset:{OHL}"]
    big = "v_mfma_f32_32x32x16_bf16" if not OPT.get("nobig") else "; "
    de = OPT.get("drop", "")
    def mE(p, b): return "; " if "E" in de else f"{big} {vr(gb(p,b),16)}, {vr(EA+4*p,4)}, {vr(WC+4*b,4)}, 0"
    def mA(p, b): return "; " if "A" in de else f"{big} {vr(gb(p,b),16)}, {vr(OH+4*p,4)}, {vr(AP+4*b,4)}, {vr(gb(p,b),16)}"
    def mS(p): return "; " if "S" in de else f"{big} {vr(SP,16)}, {vr(OH+4*p,4)}, {vr(SC,4)}, 0"
    def mG(p, b, j): return "; " if ("G" in de or ("g" in de and j & 1)) else f"{big} {vr(ACC+16*b,16)}, {vr(SP+4*j,4)}, {vr(gb(p,b)+4*j,4)}, {vr(ACC+16*b,16)}"
    def mP(p, b):
        o = []
        for u in range(2):
            for j in range(4):
                g = vr(gb(p,b)+4*j, 4)
                o.append(f"v_mfma_f32_4x4x4_16b_bf16 {g}, {vr(PA+2*u,2)}, {vr(raw(p,b)+4*j+2*u,2)}, {g}")
        return o
    def idx_pair(p, b, i):
        g0, g1 = gb(p,b)+2*i, gb(p,b)+2*i+1
        if i < NTB[b]:
            return [f"v_exp_f32 v{g0}, v{g0}", f"v_exp_f32 v{g1}, v{g1}", f"v_add_f32 v{g0}, 1.0, v{g0}",
                    f"v_add_f32 v{g1}, 1.0, v{g1}", f"v_rcp_f32 v{g0}, v{g0}", f"v_rcp_f32 v{g1}, v{g1}"], []
        return [f"v_cvt_pkrtz_f16_f32 v{g0}, v{g0}, v{g1}",
                f"v_and_b32_sdwa v{g1}, s{cfe}, v{g0} {sd} src1_sel:WORD_1",
                f"v_and_b32_sdwa v{g0}, s{cfe}, v{g0} {sd} src1_sel:WORD_0"], \
               [f"ds_read_u16_d16_hi v{g1}, v{g1} offset:{LUTL}", f"ds_read_u16_d16_hi v{g0}, v{g0} offset:{LUTL}"]
    def fin_pair(p, b, i):
        g0, r0 = gb(p,b)+2*i, raw(p,b)+2*i
        mul = [f"v_pk_mul_f32 {vr(r0,2)}, {vr(g0,2)}, {vr(r0,2)}"] if OPT.get("pk") else [f"v_mul_f32 v{r0}, v{g0}, v{r0}", f"v_mul_f32 v{r0+1}, v{g0+1}, v{r0+1}"]
        return mul + [
                f"v_cvt_pk_bf16_f32 v{g0}, v{g0}, v{r0}", f"v_cvt_pk_bf16_f32 v{g0+1}, v{g0+1}, v{r0+1}"]
    def zipl(x, y):
        o = []
        for k in range(max(len(x), len(y))):
            if k < len(x): o.append(x[k])
            if k < len(y): o.append(y[k])
        return o
    uid = [0]
    def W(kind):
        uid[0] += 1
        return f"@W{kind} {uid[0]}"
    WE = int(OPT.get("we", "1"))
    def slot(p, b, kind, acc=True, np_=8, npg=8):
        q = 1-p
        nxt = (p, 1) if b == 0 else (q, 0)
        do_idx = b == 0 or kind != "L"
        gs = [[mG(q if b == 0 else p, 1-b, j)] for j in range(npg//2)] if acc else []
        bigs = gs[:2]
        if kind != "L": bigs += [[mE(q, b)], [mA(q, b)]]
        bigs += gs[2:]
        if b == 0: bigs += [[mS(p)]]
        smalls = mP(q, b) if kind != "L" else []
        out = []
        nb = 0
        for i in range(8):
            if i >= np_:
                out += sum(bigs[nb:], []); nb = len(bigs)
                break
            iv, il = idx_pair(*nxt, i) if do_idx else ([], [])
            fv = fin_pair(p, b, i)
            seq = zipl(iv, fv) + il
            if kind == "F":
                seq += ld_raw(p, b, 2*i) + ld_raw(p, b, 2*i+1)
                if b == 1 and i & 1: seq.append(rd_addr((3+p)*128, i >> 1))
                if b == 0 and i == 1: seq += rd_l3((3+p)*128)
                if b == 1 and i == 0: seq = dma_ea(q) + seq
                if b == 1 and i == 1: seq += rd_prog()
                if b == 1 and i == 6: seq += get_ea(p, p, (2+p)*128)
                if b == 0 and i == 5: seq.append(rd_l2(vOa, (2+p)*128))
                if b == 1 and i == 2: seq += oh_idx(p)
            pre = [W("l")] if i % WE == 0 else []
            if cur["r"] == "P" and kind != "L":
                if (b, i) == (0, 0): pre.append("s_setprio 2")
                if (b, i) == divmod(int(OPT.get("fair", "12")), 8): pre.append("s_setprio 0")
            if i < 6:
                take = 2 if (len(bigs) - nb) > (6 - i) else 1
                if nb < len(bigs): pre += bigs[nb]; nb += 1
                if take == 2 and nb < len(bigs):
                    seq = seq[:6] + bigs[nb] + seq[6:]; nb += 1
            if smalls and i >= 5:
                k0, k1 = {5: (0, 2), 6: (2, 6), 7: (6, 8)}[i]
                sm = smalls[k0:k1]
                if i == 5: seq = seq[:4] + [W("v")] + zipl(sm, seq[4:])
                else: seq = zipl(sm, seq)
            out += pre + seq
        assert nb == len(bigs)
        return out
    def last(p, np_):
        n = f"{p}{cur['r']}{np_}"
        return ([f"K2_LAST{n}:"] + ld_xr() + slot(p, 0, "L", np_=np_) + ["s_nop 11"]*(np_ < 6) + slot(p, 1, "L", np_=np_, npg=np_)
                + ["s_nop 1"] + [mG(p, 1, j) for j in range(np_//2)])
    def body(p, kind):
        q = 1-p; n = f"{kind}{p}{cur['r']}"
        o0 = [f"K2_BODY{n}:"] + slot(p, 0, kind)
        o1 = [f"K2_MID{n}:"] + (ld_xr() if kind == "L" else []) + slot(p, 1, kind)
        if OPT.get("prof") == "7": o1 += ["s_mov_b32 m0, s98", "s_add_u32 s98, s98, 1", f"v_writelane_b32 v{UR+5}, s86, m0", "s_memrealtime s[86:87]"]
        if kind == "P":
            for np_ in (2, 4, 6): o1 += [f"s_cmp_eq_u32 s{stail}, {np_}", f"s_cbranch_scc1 K2_LAST{q}{cur['r']}{np_}"]
        if kind == "F":
            if p == 1: o1 += [f"v_add_u32 v{r_}, 256, v{r_}" for r_ in ((vA1, vA2, vA3) if cur["r"] == "P" else (vA1, vA2))]
            o1 += [f"s_sub_u32 s{scount}, s{scount}, 1", f"s_cmp_eq_u32 s{scount}, 2", f"s_cbranch_scc1 K2_BODYP{q}{cur['r']}"]
        return o0, o1
    def entry(kind):
        more = kind != "L"
        o = rd_prog() + [W("v"), W("l")] + get_ea(0, 0, 0)
        if more: o += rd_prog()
        o += [W("l"), "@STAMP", mE(0, 0), mA(0, 0), mE(0, 1), mA(0, 1), "s_nop 7", W("v")] + mP(0, 0) + ["s_nop 3"]
        for i in range(8):
            v_, l_ = idx_pair(0, 0, i)
            o += [W("l")] + ([v_[0], v_[1], "s_nop 0"] + v_[2:] if i < NTB[0] else v_) + l_
            if more:
                for r_ in range(4*(i & 3), 4*(i & 3)+4): o += ld_raw(1, i >> 2, r_)
                if i >= 4: o.append(rd_addr(256, i-4))
                if i == 4: o += [W("v")] + get_ea(1, 1, 128) + rd_l3(256)
                if i == 7: o += dma_ea(0)
            if i == 3: o += [W("v")] + mP(0, 1)
        return o + slot(0, 0, kind, acc=False) + [f"s_branch K2_MID{kind}0{cur['r']}"]
    def drain(p): return ["s_nop 1"] + [mG(p, 1, j) for j in range(4)]
    def mk_fill():
        ad = [rd_addr(0, j) for j in range(4)]
        t0 = SP
        o = []
        if cur["r"] == "P":
            o = (rd_l3(0) + [f"ds_read_b32 v{t0}, v{vA3} offset:{L2+128}"])
        o += ad + [rd_l2(vOa, 0), rd_l2(t0+1, 128)]
        if cur["r"] == "P":
            o += ["s_waitcnt lgkmcnt(6)"] + dma_ea(0) + [f"v_mov_b32 v{vEa}, v{t0}"]
        d1 = dma_ea(1)
        late1 = OPT.get("d1", "1") == "1"
        o += ([] if late1 else d1) + ["s_waitcnt lgkmcnt(0)"] + ld_blk(0, 0) + oh_idx(0) + [f"v_mov_b32 v{vOa}, v{t0+1}"] + oh_idx(1) + ld_blk(0, 1) + (d1 if late1 else [])
        return o + [rd_addr(128, j) for j in range(4)]
    FI, B, EN, LA_ = {}, {}, {}, {}
    for r in "PC":
        cur["r"] = r
        FI[r] = mk_fill()
        for k in "FPL":
            EN[r, k] = entry(k)
            for p in range(2): B[r, p, k] = body(p, k)
        for p in range(2):
            for np_ in (2, 4, 6, 8): LA_[r, p, np_] = last(p, np_)
    def trace(r, cnt, np_=8):
        kinds = ["F"]*(cnt-2) + ["P", "L"][-min(cnt, 2):]
        tr = FI[r] + EN[r, kinds[0]] + B[r, 0, kinds[0]][1]
        for t in range(1, cnt-1): tr += B[r, t & 1, kinds[t]][0] + B[r, t & 1, kinds[t]][1]
        tr += drain(0) if cnt == 1 else LA_[r, (cnt-1) & 1, np_]
        o = []; keep = True; nd = 0
        for x in tr:
            if x == "@D{": keep = nd < cnt; nd += 1
            elif x == "@}": keep = True
            elif keep and x != "@STAMP": o.append(x)
        return o
    epi_head = ["s_branch x", "s_cmp", "s_cbranch", "s_waitcnt vmcnt(0) lgkmcnt(0)"] + [f"v_add_f32 v{ACC+r_}, 0, v{ACC+r_}" for r_ in range(6)]
    cases = [(r, c, n_) for c in range(1, 9) for r in "PC" for n_ in (2, 4, 6, 8)]
    need = asmsim.solve_waits([trace(*c) for c in cases])
    for c in cases: asmsim.check_hazards(asmsim.apply_waits(trace(*c), need) + epi_head, f"case {c}")
    def emit(l):
        for x in asmsim.apply_waits(l, need):
            if x == "@STAMP":
                stamp(a, 5); stamp(a, 5, "3"); stamp(a, 7, "4")
                if OPT.get("prof") == "7": a("s_memrealtime s[86:87]\ns_mov_b32 s98, 1")
                if OPT.get("prof") == "3": a(f"s_memtime s[86:87]\ns_mov_b32 s90, s{scount}\ns_getreg_b32 s92, hwreg(HW_REG_HW_ID)")
            elif x[0] != "@": a(x.split(";")[0])
    def main_loop(r):
        a(f"""
        K2_GO{r}:
        s_cmp_eq_u32 s{scount}, 0
        s_cbranch_scc1 K2_EMPTY
        s_cmp_gt_u32 s{scount}, 2
        s_cbranch_scc1 K2_ENTF{r}
        s_cmp_eq_u32 s{scount}, 2
        s_cbranch_scc1 K2_ENTP{r}
        """)
        emit(EN[r, "L"]); a(f"K2_ENTP{r}:"); emit(EN[r, "P"]); a(f"K2_ENTF{r}:"); emit(EN[r, "F"])
        a(".p2align 6")
        for p in range(2): emit(B[r, p, "F"][0] + B[r, p, "F"][1])
        a(f"s_branch K2_BODYF0{r}")
        emit(B[r, 0, "L"][1] + drain(0)); a("s_branch K2_DONE")
        for p in range(2):
            for np_ in (2, 4, 6): emit(LA_[r, p, np_]); a("s_branch K2_DONE")
        for p in range(2):
            emit(B[r, p, "P"][0] + B[r, p, "P"][1] + LA_[r, 1-p, 8])
            if p == 0 or r == "P": a("s_branch K2_DONE")
    def fill(n):
        a(f"s_cmp_eq_u32 s{scount}, 0\ns_cbranch_scc1 K2_FILLED{n}")
        emit(FI[n])
        a(f"K2_FILLED{n}:")
    def ap_addr():
        a(f"""
        v_bfe_u32 v{vt}, v0, 2, 2
        v_lshrrev_b32 v{vt+1}, 1, v{vH16}
        v_add_u32 v{vt}, v{vt}, v{vt+1}
        v_mul_u32_u24 v{vt}, {ROWP}, v{vt}
        v_bfe_u32 v{vt+2}, v0, 4, 1
        v_lshl_add_u32 v{vt}, v{vt+2}, 5, v{vt}
        v_and_b32 v{vt+2}, 3, v0
        v_lshl_add_u32 v{vt}, v{vt+2}, 3, v{vt}
        s_mul_i32 s{st0}, s{sg}, {GN*ROWP}
        s_lshl_b32 s{st1}, s{sfh}, 7
        s_add_u32 s{st0}, s{st0}, s{st1}
        v_add_u32 v{vt}, s{st0}, v{vt}
        v_mul_u32_u24 v{vt+1}, {ROWP//2}, v{vt+1}
        v_and_b32 v{vt+2}, 31, v0
        v_lshl_add_u32 v{vt+1}, v{vt+2}, 2, v{vt+1}
        v_add_u32 v{vt+1}, s{st0}, v{vt+1}
        """)
    def ap_read():
        a(f"""
        ds_read_b64_tr_b16 {vr(AP,2)}, v{vt} offset:{APL}
        ds_read_b64_tr_b16 {vr(AP+2,2)}, v{vt} offset:{APL+4*ROWP}
        ds_read_b64_tr_b16 {vr(AP+4,2)}, v{vt} offset:{APL+64}
        ds_read_b64_tr_b16 {vr(AP+6,2)}, v{vt} offset:{APL+4*ROWP+64}
        """)
        for r in range(6): a(f"ds_read_b32 v{UR+r}, v{vt+1} offset:{UL+ROWP*rowoff(r)}")
        a(f"""
        s_waitcnt lgkmcnt(6)
        v_and_b32 v{AP+3}, v{AP+3}, v{vM15}
        v_and_b32 v{AP+7}, v{AP+7}, v{vM15}
        """)
    def init_addr():
        for r in range(16): a(f"v_mov_b32 v{ADDR+r}, 128")
    def zero_acc():
        for r in range(32): a(f"v_mov_b32 v{ACC+r}, 0")

    a(f"s_cmp_lg_u32 s{sfh}, 0\ns_cbranch_scc1 K2_LOADER")
    ld_wc()
    a.ext(common1(SP, vt))
    a(f"v_and_b32 v{vt+3}, 15, v0\nv_lshlrev_b32 v{vt+3}, 4, v{vt+3}\nv_bfe_u32 v{vt+4}, v0, 4, 2\nv_lshl_add_u32 v{vt+3}, v{vt+4}, 10, v{vt+3}\ns_lshl_b32 s{st0}, s{sg}, 8\nv_add_u32 v{vt+3}, s{st0}, v{vt+3}")
    a(f"v_add_u32 v{vt+4}, 40960, v{vt+3}")
    for val, rg, runs in ((0x3f003f00, EA, (0, 3, 32, 35)), (0, EA+4, (23, 27)), (0x3f803f80, OH, (51, 55, 59))):
        for j in range(4): a(f"v_mov_b32 v{rg+j}, {val:#x}")
        for c0 in runs:
            a(f"ds_write_b128 v{vt+4 if c0 >= 24 else vt+3}, {vr(rg,4)} offset:{LUTL + 1024*(c0 - (40 if c0 >= 24 else 0))}")
    a(f"""
    v_and_b32 v{vt+3}, 127, v0
    v_bfe_u32 v{vt+4}, v0, 2, 4
    v_and_b32 v{Z+4}, 3, v0
    v_lshrrev_b32 v{Z+5}, 6, v{vt+3}
    v_lshlrev_b32 v{vt+3}, 2, v{vt+3}
    v_lshl_add_u32 v{Z+4}, v{Z+5}, 2, v{Z+4}
    v_lshlrev_b32 v{Z+5}, 1, v{Z+4}
    v_mov_b32 v{Z+6}, 0x3f80
    v_mov_b32 v{Z+7}, 0x3f800000
    v_cmp_eq_u32 vcc, v{Z+5}, v{vt+4}
    v_add_u32 v{Z+5}, 1, v{Z+5}
    s_nop 0
    v_cndmask_b32 v{Z+8}, 0, v{Z+6}, vcc
    v_cmp_eq_u32 vcc, v{Z+5}, v{vt+4}
    v_cmp_eq_u32 s[78:79], 7, v{Z+4}
    s_or_b64 vcc, vcc, s[78:79]
    s_nop 1
    v_cndmask_b32 v{Z+9}, 0, v{Z+7}, vcc
    v_or_b32 v{Z+8}, v{Z+8}, v{Z+9}
    v_cmp_gt_u32 vcc, 15, v{vt+4}
    s_nop 1
    v_cndmask_b32 v{Z+8}, 0, v{Z+8}, vcc
    ds_write_b32 v{vt+3}, v{Z+8} offset:{OHL}
    """)
    a(f"""
    v_mul_u32_u24 v{EOFF}, {CS*32}, v{vt+1}
    v_add_u32 v{EOFF+1}, {64*CS*32}, v{EOFF}
    v_mov_b32 v{vt+3}, 4
    """)
    init_addr()
    a("s_waitcnt vmcnt(2)")
    stamp(a, 2); stamp(a, 1, "5")
    a(f"""
    v_cmp_eq_u32 vcc, -2, v{REC+11}
    v_cmp_eq_u32 s[78:79], -2, v{REC+15}
    s_or_b64 vcc, vcc, s[78:79]
    s_cbranch_vccz K2_NOOVF
    v_mov_b32 v{vt+4}, 0x10000
    v_mov_b32 v{vt}, 60
    ds_add_u32 v{vt}, v{vt+4} offset:{CNT}
    K2_NOOVF:
    """)
    M = [68, 70, 72, 74, 76, 78, 80, 24]
    for k in range(8): a(f"v_cmp_gt_u32 {sr(M[k],2)}, -2, v{REC+k}\n{caddr(k)}")
    a(f"v_min_u32 v{vt+4}, v{REC+8}, v{REC+12}\nv_cmp_gt_u32 s[26:27], -2, v{vt+4}")
    for k in range(8): a(f"s_mov_b64 exec, {sr(M[k],2)}\nds_add_rtn_u32 v{RANK+k}, v{CADDR+k}, v{vt+3} offset:{CNT}")
    def steps(tag, fn):
        a(f"s_mov_b64 exec, -1\ns_cmp_eq_u64 s[26:27], 0\ns_cbranch_scc1 K2_{tag}1")
        for u in range(2):
            for i in range(4):
                k = 8+4*u+i
                a(f"v_cmpx_gt_u32 vcc, -2, v{REC+k}\ns_cbranch_execz K2_{tag}{u}")
                fn(k, u, i)
            a(f"K2_{tag}{u}:\ns_mov_b64 exec, -1")
    def cnt_step(k, u, i):
        if k == 12: a("s_waitcnt lgkmcnt(4)")
        a(f"{caddr(k)}\nds_add_rtn_u32 v{RANK+k}, v{CADDR+k}, v{vt+3} offset:{CNT}")
    steps("C", cnt_step)
    LA, LB = raw(0, 0), raw(0, 0)+8
    for k in range(8):
        a(f"v_bfe_u32 v{LA+k}, v{REC+k}, 16, {5 if 't' in OPT.get('nomem','') else 14}\nv_mad_u32_u16 v{LB+k}, v{REC+k}, 2, v{EOFF+(k>>2)}")
    for k in range(8): a(f"v_mul_u32_u24 v{LA+k}, s{csrc}, v{LA+k}")
    stamp(a, 2, "5")
    spin(0, "A")
    stamp(a, 3, "5")
    scan(True)
    a("s_waitcnt lgkmcnt(1)")
    stamp(a, 4, "5")
    for k in range(8): a(f"v_add_u32 v{STV+k}, v{STV+k}, v{RANK+k}")
    for k in range(8): a(f"v_lshlrev_b32 v{RANK+k}, 3, v{STV+k}")
    for k in range(8): a(f"v_and_or_b32 v{LA+k}, v{RANK+k}, s{c128}, v{LA+k}")
    for k in range(8): a(f"s_mov_b64 exec, {sr(M[k],2)}\nds_write2st64_b32 v{STV+k}, v{LA+k}, v{LB+k} offset0:{L1//256} offset1:{L2//256}")
    def put_step(k, u, i):
        if i == 0:
            for kk in range(k, k+4): a(f"ds_read_b32 v{STV+(kk&7)}, v{CADDR+kk} offset:{START}")
            a("s_waitcnt lgkmcnt(0)")
        place(k, STV+(k & 7), EOFF+u)
    steps("P", put_step)
    stamp(a, 5, "5")
    lane_setup()
    stamp(a, 6, "5")
    spin(1, "B")
    stamp(a, 3); stamp(a, 7, "5")
    a("K2_REFILLP:")
    fill("P")
    stamp(a, 4)
    a(f"s_cmp_lg_u32 s{sslow}, 0\ns_cbranch_scc1 K2_GOP")
    zero_acc()
    ap_addr()
    spin(3, "D", add=False)
    ap_read()
    main_loop("P")
    a("K2_GIVEUP:")
    zero_acc()
    arrive(1)
    spin(3, "E", add=False)
    a("s_branch K2_SLOW")
    assert XL % 256 == 0
    XF = G; WT = [ACC, raw(0, 0)]
    accs = [[[raw(1,0)+8*nb, raw(1,0)+8*nb+4] for nb in range(3)], [[raw(1,1)+8, raw(1,1)+12], [SP, SP+4], [SP+8, ADDR]]]
    a(f"""
    K2_LOADER:
    v_lshrrev_b32 v{vt+4}, 4, v{vt}
    s_lshl_b32 s{st1}, s{sg}, 2
    v_add_u32 v{vA1}, s{st1}, v{vt+4}
    v_and_b32 v{vt+5}, 15, v0
    v_xor_b32 v{vA1}, v{vA1}, v{vt+5}
    v_lshlrev_b32 v{vA1}, 4, v{vA1}
    v_lshl_add_u32 v{vA1}, v{vt+4}, 8, v{vA1}
    s_lshl_b32 s{st1}, s{sg}, 10
    """)
    for k in range(3):
        a(f"""
        s_add_u32 m0, s{st1}, {XL+4096*k}
        s_add_u32 s{st2}, s{st1}, {4096*k}
        buffer_load_dwordx4 v{vA1}, {sr(sX,4)}, s{st2} offen lds
        """)
    stamp(a, 1, "6")
    srot = sk
    a(f"s_lshl_b32 s{slut}, s{sg}, 13\ns_lshr_b32 s{srt}, s2, 3")
    for j in range(4):
        a(f"s_add_u32 s{srot+j}, s{srt}, {j}\ns_and_b32 s{srot+j}, s{srot+j}, 3\ns_lshl_b32 s{srot+j}, s{srot+j}, 10\ns_add_u32 s{st2}, s{slut}, s{srot+j}")
        for m in range(2):
            for hf in range(2):
                a(f"buffer_load_dwordx4 {vr(WT[m]+16*hf+4*j,4)}, v{vA2}, {sr(sWT,4)}, s{st2} offen")
                if (m, hf) != (1, 1): a(f"s_add_u32 s{st2}, s{st2}, {4096 if hf == 0 else 32768-4096}")
    stamp(a, 2, "6")
    a(f"""
    s_lshl_b32 s{st0}, s{sg}, 12
    s_add_u32 m0, s{st0}, {LUTL + 7*1024}
    s_add_u32 s{st2}, s{st0}, {LUT_OFF - WT_OFF + 7*1024}
    """)
    for j in range(4): a(f"buffer_load_dwordx4 v{vA2}, {sr(sWT,4)}, s{st2} offen offset:{1024*j} lds")
    a(f"""
    s_mul_i32 s{st0}, s{sg}, 3072
    s_add_u32 m0, s{st0}, {LUTL + 39*1024}
    s_add_u32 s{st2}, s{st0}, {LUT_OFF - WT_OFF + 39*1024}
    """)
    for j in range(3): a(f"buffer_load_dwordx4 v{vA2}, {sr(sWT,4)}, s{st2} offen offset:{1024*j} lds")
    a(f"""
    s_and_b32 s{st0}, s{sg}, 1
    s_lshl_b32 s{st0}, s{st0}, 15
    s_add_u32 m0, s{st0}, {LUTL + 31*1024}
    s_add_u32 s{st2}, s{st0}, {LUT_OFF - WT_OFF + 31*1024}
    buffer_load_dwordx4 v{vA2}, {sr(sWT,4)}, s{st2} offen lds
    """)
    ld_wc()
    stamp(a, 3, "6")
    a(f"""
    s_waitcnt vmcnt(26)
    """)
    arrive(2)
    a(f"""
    v_mov_b32 v{vt+8}, v{vt}
    v_and_b32 v{vt}, 15, v0
    v_bfe_u32 v{vt+1}, v0, 4, 2
    v_xor_b32 v{vt+2}, v{vt}, v{vt+1}
    v_lshlrev_b32 v{vt+2}, 4, v{vt+2}
    v_lshl_add_u32 v{vt+2}, v{vt}, 8, v{vt+2}
    v_add_u32 v{vt+2}, {XL}, v{vt+2}
    v_mul_u32_u24 v{vt}, {ROWP}, v{vt}
    """)
    stamp(a, 2); stamp(a, 5, "6")
    spin(2, "C", add=False)
    stamp(a, 6, "6")
    for s in range(4):
        a(f"s_lshr_b32 s{st0}, s{srot+s}, 4\nv_xor_b32 v{vt+3}, s{st0}, v{vt+2}")
        for nb in range(3):
            a(f"ds_read_b128 {vr(XF+16*nb+4*s,4)}, v{vt+3} offset:{4096*nb}")
    a(f"""
    s_lshr_b32 s{st0}, s{sg}, 1
    s_lshl_b32 s{st0}, s{st0}, 7
    s_and_b32 s{st1}, s{sg}, 1
    s_lshl_b32 s{st1}, s{st1}, 5
    s_add_u32 s{st0}, s{st0}, s{st1}
    v_lshl_add_u32 v{vt+4}, v{vt+1}, 3, v{vt}
    v_add_u32 v{vt+4}, s{st0}, v{vt+4}
    s_lshl_b32 s{st0}, s{sg}, 6
    v_lshl_add_u32 v{vt+5}, v{vt+1}, 4, v{vt}
    v_add_u32 v{vt+5}, s{st0}, v{vt+5}
    """)
    def mm1(m, s):
        return [f"v_mfma_f32_16x16x32_bf16 {vr(accs[m][nb][ab], 4)}, {vr(WT[m]+16*ab+4*s,4)}, {vr(XF+16*nb+4*s,4)}, {'0' if s == 0 else vr(accs[m][nb][ab], 4)}"
                for nb in range(3) for ab in range(2)]
    outA = []
    for nb in range(3):
        al, be = accs[0][nb]; o = EA+ (0 if nb != 1 else 4)
        for i in range(4): outA += [f"v_mul_f32 v{al+i}, s{cnl2e}, v{al+i}", f"v_mul_f32 v{be+i}, s{cnl2e}, v{be+i}"]
        outA += [f"v_cvt_pk_bf16_f32 v{o}, v{al}, v{al+2}", f"v_cvt_pk_bf16_f32 v{o+1}, v{be}, v{be+2}",
                 f"v_cvt_pk_bf16_f32 v{o+2}, v{al+1}, v{al+3}", f"v_cvt_pk_bf16_f32 v{o+3}, v{be+1}, v{be+3}",
                 f"ds_write_b64 v{vt+4}, {vr(o,2)} offset:{APL+16*ROWP*nb}", f"ds_write_b64 v{vt+4}, {vr(o+2,2)} offset:{APL+16*ROWP*nb+64}"]
    NPF = int(OPT.get("tpf", "0"))
    if NPF:
        srd(a, sS, 14, T_OFF, N*TS)
        a(f"""
        s_bfe_u32 s{st0}, s2, 0x50003
        s_lshl_b32 s{st0}, s{st0}, 2
        s_add_u32 s{st0}, s{st0}, s{sg}
        s_lshl_b32 s{st0}, s{st0}, 13
        v_lshlrev_b32 v{vt+9}, 7, v{vt+8}
        """)
        for j in range(NPF):
            a(f"buffer_load_dword v{vt+10}, v{vt+9}, {sr(sS,4)}, s{st0} offen")
            if j+1 < NPF: a(f"s_add_u32 s{st0}, s{st0}, {1 << 20}")
    g = []; cm = common1(XR+1, vt+8); k = 0
    for s in range(4):
        g.append(f"s_waitcnt vmcnt({22-4*s+NPF}) lgkmcnt({9-3*s})")
        for x in mm1(0, s) + (mm1(1, s) if s < 3 else []):
            g.append(x); g += cm[k:k+3]; k += 3
    assert k >= len(cm)
    k = 0
    for j, x in enumerate(mm1(1, 3)):
        g.append(x)
        if j >= 2: g += outA[k:k+3]; k += 3
    g += outA[k:]
    for nb in range(3):
        al, be = accs[1][nb]; o = XF+4*nb
        g += [f"v_cvt_pk_bf16_f32 v{o}, v{al}, v{al+1}", f"v_cvt_pk_bf16_f32 v{o+1}, v{al+2}, v{al+3}",
              f"v_cvt_pk_bf16_f32 v{o+2}, v{be}, v{be+1}", f"v_cvt_pk_bf16_f32 v{o+3}, v{be+2}, v{be+3}",
              f"ds_write_b128 v{vt+5}, {vr(o,4)} offset:{UL+16*ROWP*nb}"]
    asmsim.check_hazards(g, "gemm")
    a.ext(g)
    a(f"s_waitcnt vmcnt({NPF})")
    arrive(3)
    stamp(a, 3); stamp(a, 7, "6")
    zero_acc()
    init_addr()
    spin(1, "F", add=False)
    a(f"""
    v_mov_b32 v{vt+2}, {INCL+60}
    ds_read2_b32 {vr(vt+4,2)}, v{vt+2} offset0:0 offset1:16
    ds_read2_b32 {vr(vt+6,2)}, v{vt+2} offset0:32 offset1:48
    s_waitcnt lgkmcnt(0)
    """)
    for g_ in range(4): a(f"v_readfirstlane_b32 s{sk+g_}, v{vt+4+g_}")
    a(f"""
    s_max_u32 s{st0}, s{sk}, s{sk+1}
    s_max_u32 s{st1}, s{sk+2}, s{sk+3}
    s_max_u32 s{st0}, s{st0}, s{st1}
    s_cmp_gt_u32 s{st0}, {CAPG*4}
    s_cbranch_scc1 K2_SLOW
    """)
    a("s_setprio 1")
    rank_groups()
    lane_setup()
    a("K2_REFILLC:")
    fill("C")
    a(f"s_cmp_lg_u32 s{sslow}, 0\ns_cbranch_scc1 K2_GOC")
    ap_addr()
    spin(3, "G", add=False)
    ap_read()
    stamp(a, 4)
    a("s_branch K2_GOC")
    a("K2_EMPTY:"); a.ext(ld_xr()); a("s_branch K2_DONE")
    for n in spins:
        a(f"""
        K2_SP{n}:
        ds_read_b32 v{vEa}, v{vPG}
        s_waitcnt lgkmcnt(0)
        v_cmp_gt_u32 vcc, s{sneed}, v{vEa}
        s_cbranch_vccnz K2_SP{n}
        s_branch K2_OK{n}
        """)
    main_loop("C")
    a(f"""
    K2_DONE:
    s_cmp_lg_u32 s{sslow}, 0
    s_cbranch_scc1 K2_ROUND
    K2_EPI:
    s_waitcnt vmcnt(0) lgkmcnt(0)
    """)
    stamp(a, 6); stamp(a, 6, "3")
    if OPT.get("prof") == "3": a("s_memtime s[88:89]")
    T0 = G
    for b in range(2):
        for r in range(6):
            a(f"v_add_f32 v{ACC+16*b+r}, 0x358637bd, v{ACC+16*b+r}")
        for r in range(6):
            a(f"v_rcp_f32 v{ACC+16*b+r}, v{ACC+16*b+r}")
        for r in range(6):
            u, x = T0+12*b+r, T0+12*b+6+r
            if b == 0: a(f"v_lshlrev_b32 v{u}, 16, v{UR+r}\nv_lshlrev_b32 v{x}, 16, v{XR+r}")
            else: a(f"v_and_b32 v{u}, 0xffff0000, v{UR+r}\nv_and_b32 v{x}, 0xffff0000, v{XR+r}")
        for r in range(6):
            u, x = T0+12*b+r, T0+12*b+6+r
            a(f"v_fmac_f32 v{u}, v{ACC+16*b+8+r}, v{ACC+16*b+r}\nv_max_f32 v{u}, 0, v{u}\nv_add_f32 v{u}, v{u}, v{x}")
    a(f"v_lshl_or_b32 v{vO2}, v{vH16}, 27, v{vO}")
    for r in range(6):
        a(f"v_cvt_pk_bf16_f32 v{SP+r}, v{T0+r}, v{T0+12+r}")
        a(f"buffer_store_dword v{SP+r}, v{vO if r < 4 else vO2}, {sr(sO,4)}, 0 offen offset:{256*rowoff(r)} {OPT.get('st_o', '')}")
    stamp(a, 7)
    stamp_out(a, 1, 14, sw, 2)
    a("K2_END:\ns_endpgm")

    a("K2_SLOW:")
    srd(a, sS, 8, None, E*4)
    srd(a, sD, 10, None, E*4)
    a(f"""
    s_mov_b32 s{sslow}, 1
    s_mov_b32 s{cm10}, {-GN}
    """)
    a("s_waitcnt vmcnt(0) lgkmcnt(0)\ns_barrier")
    lane_setup(); ap_addr(); ap_read()
    a(f"""
    K2_ROUND:
    s_cmp_ge_u32 s{sround}, {E//RND}
    s_cbranch_scc1 K2_EPI
    s_mul_i32 s{st0}, s{sround}, {RND}
    s_add_u32 s{sround}, s{sround}, 1
    v_add_u32 v{EOFF}, s{st0}, v0
    v_lshlrev_b32 v{vt}, 2, v{EOFF}
    buffer_load_dword v{REC}, v{vt}, {sr(sD,4)}, 0 offen
    buffer_load_dword v{REC+1}, v{vt}, {sr(sS,4)}, 0 offen
    v_lshlrev_b32 v{EOFF}, 5, v{EOFF}
    v_and_b32 v{vt}, 63, v0
    v_lshlrev_b32 v{vt}, 3, v{vt}
    v_mov_b32 v{vt+4}, 0
    v_mov_b32 v{vt+5}, 0
    s_waitcnt lgkmcnt(0)
    s_barrier
    ds_write_b64 v{vt}, {vr(vt+4,2)} offset:{CNT}
    v_mov_b32 v{vt+3}, 4
    s_waitcnt vmcnt(0) lgkmcnt(0)
    s_barrier
    """)
    rec_fields(a, REC, REC+2, vt, cm40, cm10)
    a(f"""
    v_cmp_eq_u32 vcc, s2, v{REC+2}
    v_lshl_or_b32 v{REC}, v{REC+1}, 16, v{REC}
    {caddr(0)}
    s_mov_b64 s[78:79], vcc
    v_cmp_gt_u32 vcc, {RND}, v0
    s_and_b64 s[78:79], s[78:79], vcc
    s_mov_b64 exec, s[78:79]
    ds_add_rtn_u32 v{RANK}, v{CADDR}, v{vt+3} offset:{CNT}
    s_mov_b64 exec, -1
    s_waitcnt lgkmcnt(0)
    s_barrier
    """)
    scan(False)
    a(f"""
    s_mov_b64 exec, s[78:79]
    ds_read_b32 v{STV}, v{CADDR} offset:{START}
    s_waitcnt lgkmcnt(0)
    """)
    place(0, STV, EOFF)
    a(f"""
    s_mov_b64 exec, -1
    """)
    lane_setup()
    a(f"""
    s_waitcnt lgkmcnt(0)
    s_barrier
    s_cmp_eq_u32 s{sfh}, 0
    s_cbranch_scc1 K2_REFILLP
    s_branch K2_REFILLC
    K2_CODE_END:
    """)
    return a.text(), kd("k2_kernel", 256, 102)

KE_PROF = f"""
    s_memrealtime s[8:9]
    s_load_dwordx2 s[4:5], s[0:1], 88
    s_waitcnt lgkmcnt(0)
    s_add_u32 s4, s4, {PROF_OFF + 0x200000}
    s_addc_u32 s5, s5, 0
    s_mov_b32 s6, 4
    s_mov_b32 s7, 0x20000
    v_mov_b32 v1, s8
    v_lshlrev_b32 v0, 2, v0
    buffer_store_dword v1, v0, s[4:7], 0 offen
"""
def gen_kr():
    a = Asm()
    a(f"""
    kr_kernel:
    s_cmp_ge_u32 s2, 1
    s_cbranch_scc1 KR_END
    s_load_dwordx4 s[4:7], s[0:1], 80
    s_waitcnt lgkmcnt(0)
    s_add_u32 s8, s6, {PROF_OFF}
    s_addc_u32 s9, s7, 0
    s_mov_b32 s10, 0x200000
    s_mov_b32 s11, 0x20000
    s_mov_b32 s6, 256
    s_mov_b32 s7, 0x20000
    v_cmp_gt_u32 vcc, 250, v0
    s_and_saveexec_b64 s[12:13], vcc
    v_lshlrev_b32 v1, 10, v0
    v_mov_b32 v3, 0
    """)
    sel = [(0, 16, 0, 1), (0, 16, 0, 0), (0, 16, 2, 0), (0, 16, 3, 0), (0, 16, 5, 0), (0, 16, 8, 0),
           (1, 8, 0, 1), (1, 8, 0, 0), (1, 8, 2, 0), (1, 8, 3, 0), (1, 8, 5, 1), (1, 8, 5, 0), (1, 8, 6, 1), (1, 8, 6, 0), (1, 8, 8, 0)]
    for j, (kn, nw, st, mn) in enumerate(sel):
        a(f"s_mov_b32 s14, {kn*0x100000}")
        for w in range(nw): a(f"buffer_load_dword v{10+w}, v1, s[8:11], s14 offen offset:{64*w+4*st}")
        a("s_waitcnt vmcnt(0)")
        if mn:
            for w in range(nw): a(f"v_not_b32 v{10+w}, v{10+w}")
        for w in range(1, nw): a(f"v_max_u32 v10, v10, v{10+w}")
        a(f"buffer_atomic_umax v10, v3, s[4:7], 0 offen offset:{4*j}\ns_waitcnt vmcnt(0)")
    if OPT.get("iv"):
        ja, jb, k = [int(x) for x in OPT["iv"].split(",")]
        a(f"""
        s_barrier
        buffer_load_dword v10, v3, s[4:7], 0 offen offset:{4*ja} sc0 sc1
        buffer_load_dword v11, v3, s[4:7], 0 offen offset:{4*jb} sc0 sc1
        s_waitcnt vmcnt(0)
        v_readfirstlane_b32 s16, v10
        v_readfirstlane_b32 s17, v11
        """)
        if sel[ja][3]: a("s_not_b32 s16, s16")
        if sel[jb][3]: a("s_not_b32 s17, s17")
        a(f"""
        s_sub_u32 s16, s16, s17
        s_min_u32 s16, s16, 10000
        s_mul_i32 s16, s16, {k}
        s_memrealtime s[18:19]
        s_waitcnt lgkmcnt(0)
        KR_SPIN:
        s_memrealtime s[20:21]
        s_waitcnt lgkmcnt(0)
        s_sub_u32 s20, s20, s18
        s_cmp_lt_u32 s20, s16
        s_cbranch_scc1 KR_SPIN
        """)
    a("KR_END:\ns_endpgm")
    return a.text()

def main():
    k1, d1 = gen_k1(); k2, d2 = gen_k2()
    ref = open("standalone__edge_featured_mpnn_gatedgcn__graph.s.ref").read().split("\n")
    out = "\n".join(ref[:13]) + "\n"
    for ch in OPT.get("list", "12"):
        if ch == "1": out += f"; @launch kernel=k1_kernel grid=({2*NCH},1,1) block=(1024,1,1) lds={K1_LDS}\n"
        if ch == "2": out += f"; @launch kernel=k2_kernel grid=({NBIN},1,1) block=(512,1,1) lds={K2_LDS}\n"
        if ch == "r": out += "; @launch kernel=kr_kernel grid=(1,1,1) block=(256,1,1) lds=0\n"
        if ch == "e": out += "; @launch kernel=ke_kernel grid=(1,1,1) block=(64,1,1) lds=0\n"
    out += '.amdgcn_target "amdgcn-amd-amdhsa--gfx950"\n.text\n'
    for n, k in (("k1_kernel", k1), ("k2_kernel", k2)):
        out += f".globl {n}\n.p2align 8\n.type {n},@function\n" + k
    if "e" in OPT.get("list", ""): out += ".globl ke_kernel\n.p2align 8\n.type ke_kernel,@function\nke_kernel:\n" + (KE_PROF if OPT.get("prof") else "") + "    s_endpgm\n"
    if "r" in OPT.get("list", ""): out += ".globl kr_kernel\n.p2align 8\n.type kr_kernel,@function\n" + gen_kr()
    out += '.section .rodata,"a"\n.p2align 6\n' + d1.lstrip("\n") + '.p2align 6\n' + d2.lstrip("\n")
    if "e" in OPT.get("list", ""): out += '.p2align 6\n' + kd("ke_kernel", 8, 16).lstrip("\n")
    if "r" in OPT.get("list", ""): out += '.p2align 6\n' + kd("kr_kernel", 32, 32).lstrip("\n")
    open(sys.argv[1], "w").write(out)

if __name__ == "__main__":
    main()
```

```python
import struct, sys
import asmsim

N = 10000; E = 320000
NCH = 128; CS = 2500
NBIN = 256; GN = 10
BINK, BINC, BINS = 53687, 52500, 21
assert all((625*b_ >> 4) <= d_ < (625*(b_+1) >> 4) for d_ in range(N) for b_ in [(d_*BINK + BINC) >> BINS])
CAP = 32
TS = int(([a for a in sys.argv if a.startswith('ts=')] or ['ts=512'])[0][3:])
T_OFF = 0x1000000
REC_OFF = 0x700000
WT_OFF = 0xB00000
LUT_OFF = 0xB20000
PROF_OFF = 0xF000000
NL2E = struct.unpack("<I", struct.pack("<f", -1.4426950408889634))[0]

def bf(x): return struct.unpack("<I", struct.pack("<f", x))[0] >> 16

OPT = dict(st_r="sc1", st_t="sc1")
for a in sys.argv[2:]:
    k, v = a.split("=", 1); OPT[k] = v

class Asm:
    def __init__(self): self.l = []
    def __call__(self, s):
        for x in s.strip("\n").split("\n"):
            x = x.strip()
            if not x: continue
            if x.startswith(";"): x = "s_nop 0"
            self.l.append(x if x.endswith(":") else "    " + x)
    def ext(self, lst):
        for x in lst: self(x)
    def text(self): return "\n".join(self.l) + "\n"

def stamp(a, i, lvl="1"):
    if OPT.get("prof") and (i in (0, 8) or OPT["prof"] == lvl): a(f"s_memrealtime s[{84+2*i}:{85+2*i}]")
def stamp_out(a, kern, wsreg, sw, vtmp):
    if not OPT.get("prof"): return
    a("s_waitcnt vmcnt(0)")
    stamp(a, 8)
    a(f"""
    s_lshl_b32 s4, s2, 4
    s_add_u32 s4, s4, s{sw}
    s_lshl_b32 s4, s4, 6
    s_add_u32 s4, s4, {PROF_OFF + kern*0x100000}
    s_add_u32 s4, s{wsreg}, s4
    s_addc_u32 s5, s{wsreg+1}, 0
    s_mov_b32 s6, 64
    s_mov_b32 s7, 0x20000
    s_waitcnt lgkmcnt(0)
    """)
    if kern == 1 and OPT["prof"] == "7":
        a(f"v_mov_b32 v{vtmp}, v251\nv_writelane_b32 v{vtmp}, s84, 0\ns_mov_b32 m0, s98\ns_add_u32 s98, s98, 1\nv_writelane_b32 v{vtmp}, s86, m0\ns_mov_b32 m0, s98\ns_nop 3\nv_writelane_b32 v{vtmp}, s100, m0\nv_writelane_b32 v{vtmp}, s98, 15")
    else:
        for i in range(9): a(f"v_writelane_b32 v{vtmp}, s{84+2*i}, {i}")
    a(f"""
    v_mbcnt_lo_u32_b32 v{vtmp+1}, -1, 0
    v_mbcnt_hi_u32_b32 v{vtmp+1}, -1, v{vtmp+1}
    v_lshlrev_b32 v{vtmp+1}, 2, v{vtmp+1}
    buffer_store_dword v{vtmp}, v{vtmp+1}, s[4:7], 0 offen
    """)

def vr(b, n): return f"v[{b}:{b+n-1}]"
def sr(b, n): return f"s[{b}:{b+n-1}]"

def srd(a, d, base, add=None, size=None, w3="0x20000", hi_or=None):
    if add is None:
        a(f"s_mov_b32 s{d}, s{base}\ns_mov_b32 s{d+1}, s{base+1}")
    else:
        a(f"s_add_u32 s{d}, s{base}, {add}\ns_addc_u32 s{d+1}, s{base+1}, 0")
    if hi_or: a(f"s_or_b32 s{d+1}, s{d+1}, {hi_or}")
    a(f"s_mov_b32 s{d+2}, {size}\ns_mov_b32 s{d+3}, {w3}")

def kd(name, vgpr, sgpr):
    return f"""
.amdhsa_kernel {name}
  .amdhsa_next_free_vgpr {vgpr}
  .amdhsa_next_free_sgpr {sgpr}
  .amdhsa_accum_offset {(vgpr+3)//4*4}
  .amdhsa_group_segment_fixed_size 0
  .amdhsa_kernarg_size 96
  .amdhsa_user_sgpr_count 2
  .amdhsa_user_sgpr_kernarg_segment_ptr 1
  .amdhsa_system_sgpr_workgroup_id_x 1
.end_amdhsa_kernel
"""

def rec_fields(a, vd, vbin, vtmp, sm40, sm10):
    a(f"""
    v_mul_u32_u24 v{vbin}, {BINK}, v{vd}
    v_add_u32 v{vbin}, {BINC}, v{vbin}
    v_lshrrev_b32 v{vbin}, {BINS}, v{vbin}
    v_mul_u32_u24 v{vtmp}, 625, v{vbin}
    v_lshrrev_b32 v{vtmp}, 4, v{vtmp}
    v_sub_u32 v{vd}, v{vd}, v{vtmp}
    v_mul_u32_u24 v{vtmp}, 26, v{vd}
    v_lshrrev_b32 v{vtmp}, 8, v{vtmp}
    v_mad_i32_i24 v{vd}, v{vtmp}, s{sm10}, v{vd}
    v_lshl_or_b32 v{vd}, v{vtmp}, 30, v{vd}
    """)

K1_CNT = 0; K1_STG = 1024; K1_X = 65536; K1_LDS = K1_X + 20480
def gen_k1():
    a = Asm()
    sS, sD, sW1, sW2, sX, sR, sT = 24, 28, 32, 36, 40, 44, 48
    sw, st0, st1, st2, sng, sfb, stask = 52, 53, 54, 55, 56, 57, 58
    c4096, c8192, cm40, cm10, cnl2e, csign, cmag, ctso, cp0 = 59, 60, 61, 62, 63, 64, 65, 66, 67
    a("k1_kernel:")
    a(f"s_cmp_ge_u32 s2, {2*NCH}\ns_cbranch_scc1 K1_END")
    stamp(a, 0)
    a(f"""
    s_load_dwordx16 s[4:19], s[0:1], 0
    s_load_dwordx2 s[20:21], s[0:1], 64
    s_load_dwordx2 s[22:23], s[0:1], 88
    v_lshrrev_b32 v2, 6, v0
    v_lshlrev_b32 v1, 2, v0
    v_readfirstlane_b32 s{sw}, v2
    s_mov_b32 s{c4096}, 4096
    s_mov_b32 s{c8192}, 8192
    s_cmp_ge_u32 s2, {NCH}
    s_cbranch_scc1 K1_GEMM
    """)
    vD, vS, vB, vSL, vt = 2, 5, 8, 11, 16
    a(f"s_mul_i32 s{st1}, s2, {CS*4}\ns_waitcnt lgkmcnt(0)")
    srd(a, sD, 10, f"s{st1}", CS*4)
    srd(a, sS, 8, f"s{st1}", CS*4)
    for r, so in enumerate(("0", f"s{c4096}", f"s{c8192}")):
        a(f"buffer_load_dword v{vD+r}, v1, {sr(sD,4)}, {so} offen")
        a(f"buffer_load_dword v{vS+r}, v1, {sr(sS,4)}, {so} offen")
    a(f"""
    v_mov_b32 v{vt}, -1
    v_mov_b32 v{vt+1}, -1
    v_mov_b32 v{vt+2}, -1
    v_mov_b32 v{vt+3}, -1
    v_lshlrev_b32 v{vt+4}, 4, v0
    v_mov_b32 v{vt+5}, 0
    v_and_b32 v{vt+6}, 0x3fc, v1
    ds_write_b128 v{vt+4}, {vr(vt,4)} offset:{K1_STG}
    ds_write_b128 v{vt+4}, {vr(vt,4)} offset:{K1_STG+16384}
    ds_write_b32 v{vt+6}, v{vt+5} offset:{K1_CNT}
    s_lshl_b32 s{st0}, s2, 7
    s_add_u32 s{st0}, s{st0}, {REC_OFF}
    """)
    srd(a, sR, 22, f"s{st0}", NBIN*NCH*128)
    a(f"s_lshl_b32 s{st0}, s2, 9\ns_add_u32 s{st1}, s{st0}, {LUT_OFF}")
    srd(a, sT, 22, f"s{st1}", 512)
    a(f"""
    v_add_u32 v40, s{st0}, v1
    v_and_b32 v41, 0x7fff, v40
    v_cmp_ne_u32 vcc, 0x7c00, v41
    v_or_b32 v41, 3, v40
    s_nop 0
    v_addc_co_u32 v40, vcc, 0, v40, vcc
    v_cvt_f32_f16 v41, v41
    v_cvt_f32_f16 v40, v40
    v_exp_f32 v41, v41
    v_exp_f32 v40, v40
    v_add_f32 v41, 1.0, v41
    v_add_f32 v40, 1.0, v40
    v_rcp_f32 v41, v41
    v_rcp_f32 v40, v40
    s_nop 0
    v_cvt_pk_bf16_f32 v40, v40, v41
    buffer_store_dword v40, v1, {sr(sT,4)}, 0 offen {OPT['st_r']}
    """)
    if OPT.get("pf", "0") == "1":
        a(f"""
        s_getpc_b64 {sr(sW1,2)}
        K1_PC:
        s_add_u32 s{sW1}, s{sW1}, k2_kernel-K1_PC
        s_addc_u32 s{sW1+1}, s{sW1+1}, 0
        s_mov_b32 s{sW1+2}, K2_CODE_END-k2_kernel
        s_mov_b32 s{sW1+3}, 0x20000
        v_lshlrev_b32 v44, 6, v0
        buffer_load_dword v45, v44, {sr(sW1,4)}, 0 offen
        """)
    a(f"""
    s_mov_b32 s{cm10}, {-GN}
    v_mov_b32 v{vt+5}, 1
    v_cmp_gt_u32 vcc, {CS-2048}, v0
    s_mov_b64 s[100:101], vcc
    v_lshrrev_b32 v{vt+7}, 3, v0
    v_and_b32 v{vt+8}, 7, v0
    v_lshlrev_b32 v{vt+9}, 14, v{vt+7}
    v_lshl_add_u32 v{vt+9}, v{vt+8}, 4, v{vt+9}
    v_lshlrev_b32 v{vt+7}, 2, v{vt+7}
    v_cmp_eq_u32 s[82:83], 7, v{vt+8}
    s_mov_b32 s{st2}, {128*16384}
    s_waitcnt lgkmcnt(0)
    s_barrier
    """)
    stamp(a, 1)
    for r in range(3):
        a(f"s_waitcnt vmcnt({4-2*r + 1 + (OPT.get('pf', '0') == '1')})")
        if r == 0: stamp(a, 2)
        rec_fields(a, vD+r, vB+r, vt, cm40, cm10)
        a(f"v_lshlrev_b32 v{vt}, 2, v{vB+r}")
        if r == 2: a("s_mov_b64 exec, s[100:101]")
        a(f"ds_add_rtn_u32 v{vSL+r}, v{vt}, v{vt+5} offset:{K1_CNT}")
        if r == 2: a("s_mov_b64 exec, -1")
        a(f"""
        v_lshl_or_b32 v{vD+r}, v{vS+r}, 16, v{vD+r}
        v_add_u32 v{vS+r}, {1024*r}, v0
        v_lshl_or_b32 v{vD+r}, v{vS+r}, 4, v{vD+r}
        v_lshlrev_b32 v{vB+r}, 7, v{vB+r}
        """)
    for r in range(3):
        a(f"s_waitcnt lgkmcnt({2-r})" if r == 0 else f"s_waitcnt lgkmcnt({2})" if r == 1 else "s_waitcnt lgkmcnt(2)")
        if r == 2: a("s_mov_b64 exec, s[100:101]")
        a(f"""
        v_lshl_add_u32 v{vB+r}, v{vSL+r}, 2, v{vB+r}
        v_cmpx_gt_u32 vcc, {CAP}, v{vSL+r}
        ds_write_b32 v{vB+r}, v{vD+r} offset:{K1_STG}
        s_mov_b64 exec, -1
        """)
    a("s_waitcnt lgkmcnt(0)")
    stamp(a, 3)
    a("s_barrier")
    stamp(a, 4)
    a(f"""
    ds_read_b128 {vr(vt+12,4)}, v{vt+4} offset:{K1_STG}
    ds_read_b32 v{vt}, v{vt+7} offset:{K1_CNT}
    ds_read_b128 {vr(vt+16,4)}, v{vt+4} offset:{K1_STG+16384}
    ds_read_b32 v{vt+1}, v{vt+7} offset:{K1_CNT+512}
    v_mov_b32 v{vt+2}, -2
    """)
    for k in range(2):
        a(f"""
        s_waitcnt lgkmcnt({2-2*k})
        v_cmp_lt_u32 vcc, {CAP}, v{vt+k}
        s_and_b64 vcc, vcc, s[82:83]
        s_nop 1
        v_cndmask_b32 v{vt+15+4*k}, v{vt+15+4*k}, v{vt+2}, vcc
        buffer_store_dwordx4 {vr(vt+12+4*k,4)}, v{vt+9}, {sr(sR,4)}, {'0' if k == 0 else f's{st2}'} offen {OPT['st_r']}
        """)
    stamp(a, 5)
    if OPT.get("pe", "1") == "1":
        a("s_barrier")
        a(f"s_mul_i32 s{st0}, s2, {CS*32}")
        srd(a, sW2, 6, f"s{st0}", CS*32)
        a(f"v_lshlrev_b32 v46, 7, v0\nbuffer_load_dword v47, v46, {sr(sW2,4)}, 0 offen {OPT.get('pef', '')}")
    stamp(a, 6); stamp(a, 7)
    stamp_out(a, 0, 22, sw, 2)
    a("s_endpgm")
    vW, vX, vA, vt = 32, 96, 112, 2
    def W(m, ab, s): return vW + 32*m + 16*ab + 4*s
    a(f"""
    K1_GEMM:
    s_sub_u32 s{stask}, s2, {NCH}
    s_and_b32 s{sfb}, s{sw}, 3
    s_lshr_b32 s{sng}, s{sw}, 2
    v_and_b32 v{vt}, 63, v0
    v_lshrrev_b32 v{vt+1}, 4, v{vt}
    v_and_b32 v{vt+2}, 15, v0
    s_lshl_b32 s{st0}, s{sfb}, 2
    v_add_u32 v{vt+3}, s{st0}, v{vt+1}
    v_xor_b32 v{vt+3}, v{vt+3}, v{vt+2}
    v_lshlrev_b32 v{vt+3}, 4, v{vt+3}
    v_lshl_add_u32 v{vt+3}, v{vt+1}, 8, v{vt+3}
    v_lshlrev_b32 v{vt+4}, 2, v{vt+1}
    v_xor_b32 v{vt+4}, v{vt+4}, v{vt+2}
    v_lshlrev_b32 v{vt+4}, 4, v{vt+4}
    v_lshl_add_u32 v{vt+4}, v{vt+1}, 8, v{vt+4}
    s_mul_i32 s{st0}, s{stask}, 20480
    s_cmp_lt_u32 s{stask}, 125
    s_cselect_b32 s{st0}, s{st0}, 0
    s_cselect_b32 s{st2}, 20480, 0
    s_waitcnt lgkmcnt(0)
    """)
    a(f"""
    s_cmp_ge_u32 s{stask}, 126
    s_cbranch_scc1 K1_WC
    s_add_u32 s{sX}, s4, s{st0}
    s_addc_u32 s{sX+1}, s5, 0
    s_mov_b32 s{sX+2}, s{st2}
    s_mov_b32 s{sX+3}, 0x20000
    s_lshl_b32 s{st1}, s{sw}, 10
    s_add_u32 m0, s{st1}, {K1_X}
    s_cmp_eq_u32 s{stask}, 125
    s_cselect_b64 {sr(sW1,2)}, s[12:13], s[14:15]
    s_cselect_b64 {sr(sW2,2)}, s[18:19], s[20:21]
    """)
    if OPT.get("touch", "0") == "1":
        a(f"""
        s_bitcmp1_b32 s2, 3
        s_cselect_b64 {sr(sS,2)}, {sr(sW1,2)}, {sr(sW2,2)}
        s_bitcmp1_b32 s2, 4
        s_cselect_b32 s{sS+2}, 4, 0
        s_mov_b32 s{sS+3}, 0x20000
        buffer_load_dword v30, v1, {sr(sS,4)}, 0 offen
        """)
    a(f"""
    buffer_load_dwordx4 v{vt+3}, {sr(sX,4)}, s{st1} offen lds
    s_cmp_lt_u32 s{sw}, 4
    s_cbranch_scc0 K1_X1
    s_add_u32 m0, s{st1}, {K1_X+16384}
    s_add_u32 s{st1}, s{st1}, 16384
    buffer_load_dwordx4 v{vt+3}, {sr(sX,4)}, s{st1} offen lds
    K1_X1:
    s_mov_b32 s{sW1+2}, 32768
    s_mov_b32 s{sW1+3}, 0x20000
    s_mov_b32 s{sW2+2}, 32768
    s_mov_b32 s{sW2+3}, 0x20000
    s_lshr_b32 s{st1}, s2, 3
    s_add_u32 s{st1}, s{st1}, s{sw}
    s_and_b32 s{st1}, s{st1}, 15
    s_lshl_b32 s{st1}, s{st1}, 11
    s_mov_b32 m0, s{st1}
    s_mul_i32 s{st0}, s{stask}, {80*TS}
    buffer_load_dwordx4 v{vt+4}, {sr(sW1,4)}, s{st1} offen lds
    buffer_load_dwordx4 v{vt+4}, {sr(sW1,4)}, s{st1} offen offset:1024 lds
    s_add_u32 m0, s{st1}, 32768
    s_add_u32 s{st0}, s{st0}, {T_OFF}
    buffer_load_dwordx4 v{vt+4}, {sr(sW2,4)}, s{st1} offen lds
    buffer_load_dwordx4 v{vt+4}, {sr(sW2,4)}, s{st1} offen offset:1024 lds
    """)
    srd(a, sT, 22, f"s{st0}", 80*TS)
    a(f"""
    v_bfe_u32 v{vt+5}, v0, 2, 2
    v_and_b32 v{vt+6}, 3, v0
    s_lshl_b32 s{st0}, s{sfb}, 2
    v_add_u32 v{vt+6}, s{st0}, v{vt+6}
    v_lshlrev_b32 v{vt+7}, 2, v{vt+5}
    v_xor_b32 v{vt+6}, v{vt+6}, v{vt+7}
    v_lshl_add_u32 v{vt+5}, v{vt+1}, 3, v{vt+5}
    v_lshlrev_b32 v{vt+5}, 8, v{vt+5}
    v_lshl_add_u32 v10, v{vt+6}, 4, v{vt+5}
    v_xor_b32 v11, v{vt+1}, v{vt+2}
    v_lshlrev_b32 v11, 4, v11
    v_lshl_add_u32 v11, v{vt+2}, 8, v11
    s_lshl_b32 s{st0}, s{sng}, 12
    s_add_u32 s{st0}, s{st0}, {K1_X}
    v_add_u32 v11, s{st0}, v11
    v_mul_u32_u24 v12, {TS}, v{vt+2}
    v_lshl_add_u32 v12, v{vt+1}, 4, v12
    s_mul_i32 s{st0}, s{sng}, {16*TS}
    s_lshr_b32 s{st1}, s{sfb}, 1
    s_lshl_b32 s{st1}, s{st1}, 8
    s_add_u32 s{st0}, s{st0}, s{st1}
    s_and_b32 s{st1}, s{sfb}, 1
    s_lshl_b32 s{st1}, s{st1}, 6
    s_add_u32 s{ctso}, s{st0}, s{st1}
    s_mov_b32 s{cnl2e}, {NL2E:#x}
    s_mov_b32 s{csign}, 0x00800000
    s_mov_b32 s{cmag}, 0x7fffffff
    s_mov_b32 s{cp0}, 0x07060100
    s_mov_b32 s{cp0+1}, 0x07060302
    v_xor_b32 v13, 64, v11
    v_xor_b32 v14, 0x80, v11
    v_xor_b32 v15, 0xc0, v11
    """)
    stamp(a, 1)
    a("s_waitcnt vmcnt(0)")
    stamp(a, 2)
    a("s_barrier")
    stamp(a, 3)
    def xrd(off):
        for s in range(4): a(f"ds_read_b128 {vr(vX+4*s,4)}, v{[11,13,14,15][s]} offset:{off}")
    xrd(0)
    n = 4
    for s in range(4):
        for m in range(2):
            for ab in range(2):
                for u in range(2):
                    a(f"ds_read_b64_tr_b16 {vr(W(m,ab,s)+2*u,2)}, v10 offset:{m*32768+s*8192+u*1024+ab*8}")
        if s < 3: a("s_waitcnt lgkmcnt(6)")
    a(f"s_cmp_eq_u32 s{stask}, 125\ns_cbranch_scc1 K1_WT")
    def mm():
        for s in range(4):
            for m in range(2):
                for ab in range(2):
                    d = vr(vA+8*m+4*ab, 4)
                    a(f"v_mfma_f32_16x16x32_bf16 {d}, {vr(W(m,ab,s),4)}, {vr(vX+4*s,4)}, {'0' if s == 0 else d}")
    def pack(so):
        a("s_nop 7")
        for b in range(2):
            for ab in range(2):
                b0, b1 = vA+4*ab+b, vA+4*ab+2+b
                a(f"v_mul_f32 v{b0}, s{cnl2e}, v{b0}\nv_mul_f32 v{b1}, s{cnl2e}, v{b1}")
                for e_ in range(2):
                    h = vA+8+4*ab+2*e_+b
                    a(f"v_max_f32 v{16+e_}, abs(v{h}), s{csign}\nv_bfi_b32 v{h}, s{cmag}, v{16+e_}, v{h}")
                a(f"v_cvt_pk_bf16_f32 v{b0}, v{b0}, v{b1}")
                for e_ in range(2):
                    h = vA+8+4*ab+2*e_+b
                    a(f"v_add_u32 v{h}, 0x8000, v{h}")
                for e_ in range(2):
                    h = vA+8+4*ab+2*e_+b
                    a(f"v_sub_u32_sdwa v{h}, v{h}, v{b0} dst_sel:DWORD dst_unused:UNUSED_PAD src0_sel:DWORD src1_sel:WORD_{e_}")
                for e_ in range(2):
                    h = vA+8+4*ab+2*e_+b
                    a(f"v_perm_b32 v{20+4*b+2*ab+e_}, v{h}, v{b0}, s{cp0+e_}")
            a(f"buffer_store_dwordx4 {vr(20+4*b,4)}, v12, {sr(sT,4)}, s{so} offen offset:{128*b} {OPT['st_t']}")
    a("s_waitcnt lgkmcnt(0)")
    mm()
    stamp(a, 4)
    a(f"s_cmp_eq_u32 s{sng}, 0\ns_cbranch_scc0 K1_ONE")
    xrd(16384)
    pack(ctso)
    a(f"s_add_u32 s{ctso}, s{ctso}, {64*TS}\ns_waitcnt lgkmcnt(0)")
    mm()
    a("K1_ONE:")
    pack(ctso)
    stamp(a, 5); stamp(a, 6); stamp(a, 7)
    stamp_out(a, 0, 22, sw, 2)
    a("s_endpgm")
    a("K1_WT:")
    srd(a, sT, 22, WT_OFF, 65536)
    a(f"""
    s_cmp_ge_u32 s{sw}, 8
    s_cbranch_scc1 K1_END
    v_lshlrev_b32 v{vt+1}, 4, v{vt}
    s_lshl_b32 s{st0}, s{sw}, 13
    s_add_u32 s{st1}, s{st0}, 4096
    s_waitcnt lgkmcnt(0)
    s_cmp_eq_u32 s{sng}, 0
    s_cbranch_scc0 K1_WU
    """)
    for m in range(2):
        for ab in range(2):
            for s in range(4):
                a(f"buffer_store_dwordx4 {vr(W(m,ab,s),4)}, v{vt+1}, {sr(sT,4)}, s{st1 if ab else st0} offen offset:{1024*s} {OPT['st_t']}")
        a("s_endpgm")
        if m == 0: a("K1_WU:")
    a("K1_WC:")
    srd(a, sT, 22, WT_OFF+65536, 4096)
    srd(a, sW1, 16, None, 4096)
    a(f"""
    s_cmp_eq_u32 s{stask}, 126
    s_cbranch_scc0 K1_END
    s_cmp_ge_u32 s{sw}, 4
    s_cbranch_scc1 K1_END
    v_lshrrev_b32 v{vt+2}, 5, v{vt}
    v_and_b32 v{vt+3}, 31, v0
    v_lshlrev_b32 v{vt+3}, 2, v{vt+3}
    v_lshl_add_u32 v{vt+3}, v{vt+2}, 11, v{vt+3}
    v_lshlrev_b32 v{vt+1}, 4, v{vt}
    s_lshr_b32 s{st1}, s{sw}, 1
    s_lshl_b32 s{st1}, s{st1}, 7
    s_and_b32 s{st0}, s{sw}, 1
    s_lshl_b32 s{st0}, s{st0}, 1
    s_add_u32 s{st1}, s{st1}, s{st0}
    s_lshl_b32 s{st0}, s{sw}, 10
    s_mov_b32 s{cnl2e}, {NL2E:#x}
    """)
    for j in range(8):
        a(f"buffer_load_ushort v{20+j}, v{vt+3}, {sr(sW1,4)}, s{st1} offen offset:{256*j}")
    a("s_waitcnt vmcnt(0)")
    for j in range(8):
        a(f"v_lshlrev_b32 v{20+j}, 16, v{20+j}\nv_mul_f32 v{20+j}, s{cnl2e}, v{20+j}")
    for j in range(4):
        a(f"v_cvt_pk_bf16_f32 v{28+j}, v{20+2*j}, v{21+2*j}")
    a(f"buffer_store_dwordx4 v[28:31], v{vt+1}, {sr(sT,4)}, s{st0} offen {OPT['st_t']}")
    a("K1_END:\ns_endpgm")
    return a.text(), kd("k1_kernel", 128, 102)

CAPG = 416; RND = 400
CNT = 0; FLG = 256; START = 512; INCL = 768; OHL = 1024; L1 = 1536; L2 = L1 + 4*CAPG*4; APL = L2 + 4*CAPG*4
ROWP = 272
UL = APL + 48*ROWP; LUTL = UL + 48*ROWP; STG = (LUTL + 65536 + 255)//256*256; XL = STG + 3*CAPG*32 + 5*1024; K2_LDS = XL + 12288
PROG = FLG + 32
assert K2_LDS <= 163840 and K2_LDS >= STG + 4*CAPG*32 and LUTL <= 65535 and (4*CAPG*4) % 256 == 0

def gen_k2():
    a = Asm()
    sREC, sX, sWT, sT, sE, sO, sD, sS = 24, 28, 32, 36, 40, 44, 68, 72
    sw, sg, sfh, st0, st1, st2 = 48, 49, 50, 51, 52, 53
    scount, sslow, sround, slim, sgb, srt, slut, srank = 54, 55, 56, 57, 58, 59, 82, 83
    stail = 20
    sdma, sm0, sneed = 21, 22, 23
    cm32, c128, cnl2e, cfc, csrc, cm40, cm10, cfe = 60, 61, 62, 63, 64, 65, 66, 67
    sk = 16
    vH16, vA1, vA2, vEa, vOa, vO, vA3 = 1, 2, 3, 4, 5, 6, 7
    WC = 8; AP = 16; PA = 24; SC = 28; OH = 32; EA = 40; ADDR = 48; ACC = 64; SP = 96; G = 112; RAW = 176
    XR = 240; UR = 246; vP16 = 252; vH256 = 253; vHS = 254; vPG = 255; vM15 = XR; vO2 = SP+8
    raw = lambda p, b: RAW + 32*p + 16*b
    gb = lambda p, b: G + 32*p + 16*b
    vt = gb(1, 1); Z = SP; EOFF = SP+14
    REC = raw(1, 0); CADDR = REC+16; RANK = G; STV = G+16
    NTB = [int(c_) for c_ in OPT.get("nt", "11")]
    rowoff = lambda r: 8*(r >> 2) + (r & 3)
    sd = "dst_sel:DWORD dst_unused:UNUSED_PAD src0_sel:DWORD"

    a("k2_kernel:")
    a(f"s_cmp_ge_u32 s2, {NBIN}\ns_cbranch_scc1 K2_END")
    stamp(a, 0)
    a(f"""
    s_load_dwordx8 s[4:11], s[0:1], 0
    s_load_dwordx2 s[12:13], s[0:1], 72
    s_load_dwordx2 s[14:15], s[0:1], 88
    v_lshrrev_b32 v{vt}, 6, v0
    v_lshrrev_b32 v{vt+1}, 2, v0
    v_readfirstlane_b32 s{sw}, v{vt}
    v_and_b32 v{vt+2}, 3, v0
    v_lshlrev_b32 v{vt+3}, 7, v{vt+1}
    v_lshl_add_u32 v{vt+3}, v{vt+2}, 4, v{vt+3}
    s_lshl_b32 s{st0}, s2, 14
    s_add_u32 s{st0}, s{st0}, {REC_OFF}
    v_and_b32 v{vt}, 63, v0
    v_lshlrev_b32 v{vt+5}, 3, v{vt}
    v_mov_b32 v{Z}, 0
    v_mov_b32 v{Z+1}, 0
    ds_write_b64 v{vt+5}, {vr(Z,2)} offset:{CNT}
    s_and_b32 s{sg}, s{sw}, 3
    s_lshr_b32 s{sfh}, s{sw}, 2
    v_lshlrev_b32 v{vA2}, 4, v{vt}
    s_mov_b32 s{st1}, 8192
    s_waitcnt lgkmcnt(0)
    s_cmp_lg_u32 s{sfh}, 0
    s_cbranch_scc1 K2_NOREC
    """)
    srd(a, sREC, 14, f"s{st0}", 16384)
    for u in range(2):
        for r in range(2):
            a(f"buffer_load_dwordx4 {vr(REC+8*r+4*u,4)}, v{vt+3}, {sr(sREC,4)}, {'s%d' % st1 if u else '0'} offen offset:{64*r}")
    a(f"""
    K2_NOREC:
    s_mul_i32 s{st0}, s2, 625
    s_add_u32 s{cm40}, s{st0}, 625
    s_lshr_b32 s{st0}, s{st0}, 4
    s_lshr_b32 s{cm40}, s{cm40}, 4
    s_sub_u32 s{cm40}, s{cm40}, s{st0}
    s_lshl_b32 s{cm40}, s{cm40}, 8
    s_lshl_b32 s{st0}, s{st0}, 8
    """)
    srd(a, sX, 4, f"s{st0}", f"s{cm40}")
    srd(a, sO, 12, f"s{st0}", f"s{cm40}")
    srd(a, sWT, 14, WT_OFF, LUT_OFF - WT_OFF + 65536)
    a("s_barrier")
    stamp(a, 1)
    def ld_wc():
        a(f"""
        s_lshl_b32 s{st1}, s{sfh}, 11
        s_add_u32 s{st1}, s{st1}, 65536
        buffer_load_dwordx4 {vr(WC,4)}, v{vA2}, {sr(sWT,4)}, s{st1} offen
        buffer_load_dwordx4 {vr(WC+4,4)}, v{vA2}, {sr(sWT,4)}, s{st1} offen offset:1024
        """)
    def common1(Z, vl):
        a = Asm()
        a(f"s_lshl_b32 s{st0}, s{sfh}, 8\ns_add_u32 s{st0}, s{st0}, {T_OFF-128}")
        srd(a, sT, 14, f"s{st0}", 64, w3="0x800000", hi_or="0x40000")
        srd(a, sE, 6, None, E*32)
        a(f"""
        s_mov_b32 s{cm32}, {'0x7e0' if 'e' in OPT.get('nomem','') else '0x1fffe0' if 's' in OPT.get('nomem','') else '0xffffffe0'}
        s_mov_b32 s{c128}, 128
        s_mov_b32 s{cnl2e}, {NL2E:#x}
        s_mov_b32 s{cfc}, 0xfc
        s_mov_b32 s{cfe}, {OPT.get('cfe', '0xfffe')}
        s_mov_b32 s{csrc}, {TS}
        s_mov_b32 s{sslow}, 0
        s_mov_b32 s{sround}, 0
        s_mov_b32 s{sgb}, 0
        s_mul_i32 s{st0}, s{sfh}, 3
        s_xor_b32 s{srank}, s{sg}, s{st0}
        v_lshrrev_b32 v{Z+2}, 5, v{vl}
        v_and_b32 v{Z+3}, 31, v0
        v_lshlrev_b32 v{vH16}, 4, v{Z+2}
        v_lshlrev_b32 v{vH256}, 8, v{Z+2}
        v_cmp_eq_u32 vcc, 0, v{Z+2}
        v_mov_b32 v{vM15}, 0xffff
        v_mov_b32 v{Z+4}, -1
        v_cndmask_b32 v{vM15}, v{vM15}, v{Z+4}, vcc
        v_and_b32 v{Z+4}, 3, v0
        v_mov_b32 v{Z+6}, 0x3f80
        """)
        for i in range(4):
            a(f"v_cmp_eq_u32 vcc, {i}, v{Z+4}\ns_nop 1\nv_cndmask_b32 v{PA+i}, 0, v{Z+6}, vcc")
        den = bf(127*2.0**-116); tiny = bf(2.0**-100)
        a(f"""
        v_cmp_gt_u32 s[78:79], 16, v{Z+3}
        v_mov_b32 v{Z+5}, {den:#x}
        v_mov_b32 v{Z+7}, {tiny<<16:#x}
        v_cndmask_b32 v{Z+5}, v{Z+6}, v{Z+5}, s[78:79]
        v_cndmask_b32 v{Z+7}, 0, v{Z+7}, s[78:79]
        v_and_b32 v{Z+4}, 15, v0
        v_lshlrev_b32 v{Z+8}, 3, v{Z+2}
        v_sub_u32 v{Z+4}, v{Z+4}, v{Z+8}
        v_lshlrev_b32 v{Z+6}, 16, v{Z+5}
        """)
        for d in range(4):
            a(f"""
            v_cmp_eq_u32 vcc, {2*d}, v{Z+4}
            v_cmp_eq_u32 s[78:79], {2*d+1}, v{Z+4}
            s_nop 0
            v_cndmask_b32 v{SC+d}, 0, v{Z+5}, vcc
            v_cndmask_b32 v{Z+8}, 0, v{Z+6}, s[78:79]
            v_or_b32 v{SC+d}, v{SC+d}, v{Z+8}
            """)
        a(f"""
        v_and_b32 v{SC+3}, v{SC+3}, v{vM15}
        v_not_b32 v{Z+8}, v{vM15}
        v_and_b32 v{Z+8}, v{Z+8}, v{Z+7}
        v_or_b32 v{SC+3}, v{SC+3}, v{Z+8}
        """)
        return [x.strip() for x in a.l]
    def ld_xr(): return [f"buffer_load_dword v{XR+r}, v{vO}, {sr(sX,4)}, 0 offen offset:{256*rowoff(r)} " for r in range(6)]
    def arrive(k):
        a(f"""
        v_mov_b32 v{vt+6}, {FLG+4*k}
        v_mov_b32 v{vt+7}, 1
        s_mov_b64 exec, 1
        ds_add_u32 v{vt+6}, v{vt+7}
        s_mov_b64 exec, -1
        """)
    def spin(k, n, add=True):
        if add: arrive(k)
        else: a(f"v_mov_b32 v{vt+6}, {FLG+4*k}")
        a(f"""
        K2_SPIN{n}:
        ds_read_b32 v{vt+7}, v{vt+6}
        s_waitcnt lgkmcnt(0)
        v_cmp_gt_u32 vcc, 4, v{vt+7}
        s_cbranch_vccnz K2_SPIN{n}
        """)
    def caddr(k): return f"v_and_b32_sdwa v{CADDR+k}, s{cfc}, v{REC+k} {sd} src1_sel:BYTE_3"
    def pick(sel, cur):
        a(f"""
        s_bitcmp1_b32 s{sel}, 0
        s_cselect_b32 s{cur[0]}, s{cur[1]}, s{cur[0]}
        s_cselect_b32 s{cur[2]}, s{cur[3]}, s{cur[2]}
        s_bitcmp1_b32 s{sel}, 1
        s_cselect_b32 s{st0}, s{cur[2]}, s{cur[0]}
        s_and_b32 s{sg}, s{st0}, 3
        s_andn2_b32 s{st0}, s{st0}, 3
        s_mul_i32 s{sgb}, s{sg}, {CAPG*4}
        s_add_u32 s{scount}, s{st0}, 127
        s_lshr_b32 s{scount}, s{scount}, 7
        s_add_u32 s{stail}, s{st0}, 124
        s_bfe_u32 s{stail}, s{stail}, 0x20005
        s_lshl_b32 s{stail}, s{stail}, 1
        s_add_u32 s{stail}, s{stail}, 2
        """)
    def rank_groups():
        for g in range(1, 4): a(f"s_or_b32 s{sk+g}, s{sk+g}, {g}")
        cur = [sk, sk+1, sk+2, sk+3]; spare = sk+4
        for (i, j) in ((0, 1), (2, 3), (0, 2), (1, 3), (1, 2)):
            a(f"s_max_u32 s{spare}, s{cur[i]}, s{cur[j]}\ns_min_u32 s{cur[j]}, s{cur[i]}, s{cur[j]}")
            cur[i], spare = spare, cur[i]
        pick(srank, cur)
    def scan(fast):
        x = SP
        a(f"""
        v_and_b32 v{vt}, 63, v0
        v_lshlrev_b32 v{vt+1}, 2, v{vt}
        ds_read_b32 v{x}, v{vt+1} offset:{CNT}
        v_lshrrev_b32 v{vt}, 4, v{vt}
        v_mul_u32_u24 v{vt}, {CAPG*4}, v{vt}
        v_and_b32 v{vt+2}, 31, v0
        v_lshlrev_b32 v{vt+2}, 2, v{vt+2}
        v_mov_b32 v{vt+4}, 0xfffffe
        s_waitcnt lgkmcnt(0)
        v_sub_u32 v{vt}, v{vt}, v{x}
        """)
        for d in ("row_shr:1", "row_shr:2", "row_shr:4", "row_shr:8"):
            a(f"v_add_u32_dpp v{x}, v{x}, v{x} {d} row_mask:0xf bank_mask:0xf bound_ctrl:0\ns_nop 1")
        a(f"""
        v_add_u32 v{vt}, v{vt}, v{x}
        v_cmp_lt_u32 vcc, {CAPG*4}, v{x}
        ds_write2st64_b32 v{vt+1}, v{vt}, v{x} offset0:{START//256} offset1:{INCL//256}
        """)
        for g in range(4): a(f"v_readlane_b32 s{sk+g}, v{x}, {16*g+15}")
        if fast:
            a("s_cbranch_vccnz K2_GIVEUP")
            for k in range(8): a(f"ds_read_b32 v{STV+k}, v{CADDR+k} offset:{START}")
            rank_groups()
        else:
            for g in range(1, 4): a(f"s_or_b32 s{sk+g}, s{sk+g}, {g}")
            pick(sg, [sk, sk+1, sk+2, sk+3])
        a(f"""
        s_add_u32 s{st0}, s{st0}, s{sgb}
        v_add_u32 v{vt+2}, s{st0}, v{vt+2}
        s_lshl_b32 s{st1}, s{scount}, 7
        s_add_u32 s{st1}, s{st1}, s{sgb}
        v_lshlrev_b32 v{vt+3}, 3, v{vt+2}
        v_and_b32 v{vt+3}, 128, v{vt+3}
        v_cmpx_gt_u32 vcc, s{st1}, v{vt+2}
        ds_write2st64_b32 v{vt+2}, v{vt+3}, v{vt+4} offset0:{L1//256} offset1:{L2//256}
        s_mov_b64 exec, -1
        """)
    def place(k, st, eo):
        a(f"""
        v_add_u32 v{st}, v{st}, v{RANK+k}
        v_bfe_u32 v{vt}, v{REC+k}, 16, {5 if 't' in OPT.get('nomem','') else 14}
        v_lshlrev_b32 v{vt+1}, 3, v{st}
        v_mad_u32_u16 v{vt+2}, v{REC+k}, 2, v{eo}
        v_and_b32 v{vt+1}, 128, v{vt+1}
        v_mad_u32_u24 v{vt}, v{vt}, s{csrc}, v{vt+1}
        ds_write2st64_b32 v{st}, v{vt}, v{vt+2} offset0:{L1//256} offset1:{L2//256}
        """)
    def lane_setup():
        a(f"""
        v_and_b32 v{vt}, 31, v0
        v_xor_b32 v{vA1}, 16, v{vH16}
        v_xor_b32 v{vA2}, 4, v{vt}
        v_lshlrev_b32 v{vA2}, 2, v{vA2}
        v_add_u32 v{vA1}, s{sgb}, v{vA1}
        v_add_u32 v{vA2}, s{sgb}, v{vA2}
        s_mul_i32 s{st0}, s{sg}, {GN*256}
        s_lshl_b32 s{st1}, s{sfh}, 7
        s_add_u32 s{st0}, s{st0}, s{st1}
        v_lshlrev_b32 v{vO}, 2, v{vt}
        v_lshl_add_u32 v{vO}, v{vH256}, 2, v{vO}
        v_add_u32 v{vO}, s{st0}, v{vO}
        v_bfe_u32 v{vA3}, v0, 1, 5
        v_lshlrev_b32 v{vA3}, 2, v{vA3}
        v_add_u32 v{vA3}, s{sgb}, v{vA3}
        v_lshlrev_b32 v{vP16}, 4, v0
        v_xor_b32 v{vP16}, v{vP16}, v0
        v_and_b32 v{vP16}, 16, v{vP16}
        v_lshlrev_b32 v{vHS}, 1, v0
        v_xor_b32 v{vHS}, v{vHS}, v{vH16}
        v_and_b32 v{vHS}, 16, v{vHS}
        v_add_u32 v{vHS}, {STG}, v{vHS}
        s_lshl_b32 s{st0}, s{sg}, 2
        s_add_u32 s{st0}, s{st0}, {PROG}
        v_mov_b32 v{vPG}, s{st0}
        s_lshl_b32 s{sm0}, s{sgb}, 3
        s_add_u32 s{sm0}, s{sm0}, {STG}
        s_mov_b32 s{sdma}, 0
        s_mov_b32 s{sneed}, 0
        s_mov_b32 s{slim}, s{scount}
        """)
    def rd_addr(off, j): return f"ds_read_b128 {vr(ADDR+4*j,4)}, v{vA1} offset:{L1+off+32*j}"
    def rd_l2(reg, off): return f"ds_read_b32 v{reg}, v{vA2} offset:{L2+off}"
    def ld_raw(p, b, r):
        pre = [f"v_and_b32 v{ADDR+r}, 0xffff80, v{ADDR+r}"] if OPT.get("safe") else []
        if OPT.get("noload"): return ["s_nop 0"]
        return pre + [f"buffer_load_dword v{raw(p,b)+r}, v{ADDR+r}, {sr(sT,4)}, 0 offen" + (" offset:128" if b else "")]
    def ld_blk(p, b): return sum((ld_raw(p, b, r) for r in range(16)), [])
    cur = {"r": "P"}
    def rd_l3(off): return [f"ds_read_b32 v{vEa}, v{vA3} offset:{L2+off}"] if cur["r"] == "P" else []
    lab = [0]
    def dma_ea(sl):
        if cur["r"] != "P": return []
        lab[0] += 1
        return [f"s_cmp_lt_u32 s{sdma}, s{slim}", f"s_cbranch_scc0 K2_ND{lab[0]}", "@D{",
                f"s_mov_b32 m0, s{sm0}", f"v_and_or_b32 v{vEa}, v{vEa}, s{cm32}, v{vP16}",
                f"buffer_load_dwordx4 v{vEa}, {sr(sE,4)}, 0 offen lds;wr={300+sl}", "@}", f"K2_ND{lab[0]}:",
                f"s_add_u32 s{sdma}, s{sdma}, 1", f"s_add_u32 s{sm0}, s{sm0}, 1024"]
    spins = []
    def rd_prog(): return [f"ds_read_b32 v{vEa}, v{vPG}"] if cur["r"] == "C" else []
    def get_ea(p, sl, off):
        o = [f"s_add_u32 s{sneed}, s{sneed}, 1"]
        if cur["r"] == "P":
            o += [f"v_mov_b32 v{vEa}, s{sneed};rd={300+sl}", f"ds_write_b32 v{vPG}, v{vEa}"]
        else:
            lab[0] += 1; n = lab[0]; spins.append(n)
            o += [f"v_cmp_gt_u32 vcc, s{sneed}, v{vEa}", f"s_cbranch_vccnz K2_SP{n}", f"K2_OK{n}:"]
        return o + [f"v_lshl_add_u32 v{vEa}, v{vA2}, 3, v{vHS}", f"ds_read_b128 {vr(EA+4*p,4)}, v{vEa} offset:{8*off}"]
    def oh_idx(p):
        return [f"v_and_b32 v{vOa}, 30, v{vOa}",
                f"v_lshl_add_u32 v{vOa}, v{vOa}, 3, v{vH256}",
                f"ds_read_b128 {vr(OH+4*p,4)}, v{vOa} offset:{OHL}"]
    big = "v_mfma_f32_32x32x16_bf16" if not OPT.get("nobig") else "; "
    de = OPT.get("drop", "")
    def mE(p, b): return "; " if "E" in de else f"{big} {vr(gb(p,b),16)}, {vr(EA+4*p,4)}, {vr(WC+4*b,4)}, 0"
    def mA(p, b): return "; " if "A" in de else f"{big} {vr(gb(p,b),16)}, {vr(OH+4*p,4)}, {vr(AP+4*b,4)}, {vr(gb(p,b),16)}"
    def mS(p): return "; " if "S" in de else f"{big} {vr(SP,16)}, {vr(OH+4*p,4)}, {vr(SC,4)}, 0"
    def mG(p, b, j): return "; " if ("G" in de or ("g" in de and j & 1)) else f"{big} {vr(ACC+16*b,16)}, {vr(SP+4*j,4)}, {vr(gb(p,b)+4*j,4)}, {vr(ACC+16*b,16)}"
    def mP(p, b):
        o = []
        for u in range(2):
            for j in range(4):
                g = vr(gb(p,b)+4*j, 4)
                o.append(f"v_mfma_f32_4x4x4_16b_bf16 {g}, {vr(PA+2*u,2)}, {vr(raw(p,b)+4*j+2*u,2)}, {g}")
        return o
    def idx_pair(p, b, i):
        g0, g1 = gb(p,b)+2*i, gb(p,b)+2*i+1
        if i < NTB[b]:
            return [f"v_exp_f32 v{g0}, v{g0}", f"v_exp_f32 v{g1}, v{g1}", f"v_add_f32 v{g0}, 1.0, v{g0}",
                    f"v_add_f32 v{g1}, 1.0, v{g1}", f"v_rcp_f32 v{g0}, v{g0}", f"v_rcp_f32 v{g1}, v{g1}"], []
        return [f"v_cvt_pkrtz_f16_f32 v{g0}, v{g0}, v{g1}",
                f"v_and_b32_sdwa v{g1}, s{cfe}, v{g0} {sd} src1_sel:WORD_1",
                f"v_and_b32_sdwa v{g0}, s{cfe}, v{g0} {sd} src1_sel:WORD_0"], \
               [f"ds_read_u16_d16_hi v{g1}, v{g1} offset:{LUTL}", f"ds_read_u16_d16_hi v{g0}, v{g0} offset:{LUTL}"]
    def fin_pair(p, b, i):
        g0, r0 = gb(p,b)+2*i, raw(p,b)+2*i
        mul = [f"v_pk_mul_f32 {vr(r0,2)}, {vr(g0,2)}, {vr(r0,2)}"] if OPT.get("pk") else [f"v_mul_f32 v{r0}, v{g0}, v{r0}", f"v_mul_f32 v{r0+1}, v{g0+1}, v{r0+1}"]
        return mul + [
                f"v_cvt_pk_bf16_f32 v{g0}, v{g0}, v{r0}", f"v_cvt_pk_bf16_f32 v{g0+1}, v{g0+1}, v{r0+1}"]
    def zipl(x, y):
        o = []
        for k in range(max(len(x), len(y))):
            if k < len(x): o.append(x[k])
            if k < len(y): o.append(y[k])
        return o
    uid = [0]
    def W(kind):
        uid[0] += 1
        return f"@W{kind} {uid[0]}"
    WE = int(OPT.get("we", "1"))
    def slot(p, b, kind, acc=True, np_=8, npg=8):
        q = 1-p
        nxt = (p, 1) if b == 0 else (q, 0)
        do_idx = b == 0 or kind != "L"
        gs = [[mG(q if b == 0 else p, 1-b, j)] for j in range(npg//2)] if acc else []
        bigs = gs[:2]
        if kind != "L": bigs += [[mE(q, b)], [mA(q, b)]]
        bigs += gs[2:]
        if b == 0: bigs += [[mS(p)]]
        smalls = mP(q, b) if kind != "L" else []
        out = []
        nb = 0
        for i in range(8):
            if i >= np_:
                out += sum(bigs[nb:], []); nb = len(bigs)
                break
            iv, il = idx_pair(*nxt, i) if do_idx else ([], [])
            fv = fin_pair(p, b, i)
            seq = zipl(iv, fv) + il
            if kind == "F":
                seq += ld_raw(p, b, 2*i) + ld_raw(p, b, 2*i+1)
                if b == 1 and i & 1: seq.append(rd_addr((3+p)*128, i >> 1))
                if b == 0 and i == 1: seq += rd_l3((3+p)*128)
                if b == 1 and i == 0: seq = dma_ea(q) + seq
                if b == 1 and i == 1: seq += rd_prog()
                if b == 1 and i == 6: seq += get_ea(p, p, (2+p)*128)
                if b == 0 and i == 5: seq.append(rd_l2(vOa, (2+p)*128))
                if b == 1 and i == 2: seq += oh_idx(p)
            pre = [W("l")] if i % WE == 0 else []
            if cur["r"] == "P" and kind != "L":
                if (b, i) == (0, 0): pre.append("s_setprio 2")
                if (b, i) == divmod(int(OPT.get("fair", "12")), 8): pre.append("s_setprio 0")
            if i < 6:
                take = 2 if (len(bigs) - nb) > (6 - i) else 1
                if nb < len(bigs): pre += bigs[nb]; nb += 1
                if take == 2 and nb < len(bigs):
                    seq = seq[:6] + bigs[nb] + seq[6:]; nb += 1
            if smalls and i >= 5:
                k0, k1 = {5: (0, 2), 6: (2, 6), 7: (6, 8)}[i]
                sm = smalls[k0:k1]
                if i == 5: seq = seq[:4] + [W("v")] + zipl(sm, seq[4:])
                else: seq = zipl(sm, seq)
            out += pre + seq
        assert nb == len(bigs)
        return out
    def last(p, np_):
        n = f"{p}{cur['r']}{np_}"
        return ([f"K2_LAST{n}:"] + ld_xr() + slot(p, 0, "L", np_=np_) + ["s_nop 11"]*(np_ < 6) + slot(p, 1, "L", np_=np_, npg=np_)
                + ["s_nop 1"] + [mG(p, 1, j) for j in range(np_//2)])
    def body(p, kind):
        q = 1-p; n = f"{kind}{p}{cur['r']}"
        o0 = [f"K2_BODY{n}:"] + slot(p, 0, kind)
        o1 = [f"K2_MID{n}:"] + (ld_xr() if kind == "L" else []) + slot(p, 1, kind)
        if OPT.get("prof") == "7": o1 += ["s_mov_b32 m0, s98", "s_add_u32 s98, s98, 1", f"v_writelane_b32 v{UR+5}, s86, m0", "s_memrealtime s[86:87]"]
        if kind == "P":
            for np_ in (2, 4, 6): o1 += [f"s_cmp_eq_u32 s{stail}, {np_}", f"s_cbranch_scc1 K2_LAST{q}{cur['r']}{np_}"]
        if kind == "F":
            if p == 1: o1 += [f"v_add_u32 v{r_}, 256, v{r_}" for r_ in ((vA1, vA2, vA3) if cur["r"] == "P" else (vA1, vA2))]
            o1 += [f"s_sub_u32 s{scount}, s{scount}, 1", f"s_cmp_eq_u32 s{scount}, 2", f"s_cbranch_scc1 K2_BODYP{q}{cur['r']}"]
        return o0, o1
    def entry(kind):
        more = kind != "L"
        o = rd_prog() + [W("v"), W("l")] + get_ea(0, 0, 0)
        if more: o += rd_prog()
        o += [W("l"), "@STAMP", mE(0, 0), mA(0, 0), mE(0, 1), mA(0, 1), "s_nop 7", W("v")] + mP(0, 0) + ["s_nop 3"]
        for i in range(8):
            v_, l_ = idx_pair(0, 0, i)
            o += [W("l")] + ([v_[0], v_[1], "s_nop 0"] + v_[2:] if i < NTB[0] else v_) + l_
            if more:
                for r_ in range(4*(i & 3), 4*(i & 3)+4): o += ld_raw(1, i >> 2, r_)
                if i >= 4: o.append(rd_addr(256, i-4))
                if i == 4: o += [W("v")] + get_ea(1, 1, 128) + rd_l3(256)
                if i == 7: o += dma_ea(0)
            if i == 3: o += [W("v")] + mP(0, 1)
        return o + slot(0, 0, kind, acc=False) + [f"s_branch K2_MID{kind}0{cur['r']}"]
    def drain(p): return ["s_nop 1"] + [mG(p, 1, j) for j in range(4)]
    def mk_fill():
        ad = [rd_addr(0, j) for j in range(4)]
        t0 = SP
        o = []
        if cur["r"] == "P":
            o = (rd_l3(0) + [f"ds_read_b32 v{t0}, v{vA3} offset:{L2+128}"])
        o += ad + [rd_l2(vOa, 0), rd_l2(t0+1, 128)]
        if cur["r"] == "P":
            o += ["s_waitcnt lgkmcnt(6)"] + dma_ea(0) + [f"v_mov_b32 v{vEa}, v{t0}"]
        d1 = dma_ea(1)
        late1 = OPT.get("d1", "1") == "1"
        o += ([] if late1 else d1) + ["s_waitcnt lgkmcnt(0)"] + ld_blk(0, 0) + oh_idx(0) + [f"v_mov_b32 v{vOa}, v{t0+1}"] + oh_idx(1) + ld_blk(0, 1) + (d1 if late1 else [])
        return o + [rd_addr(128, j) for j in range(4)]
    FI, B, EN, LA_ = {}, {}, {}, {}
    for r in "PC":
        cur["r"] = r
        FI[r] = mk_fill()
        for k in "FPL":
            EN[r, k] = entry(k)
            for p in range(2): B[r, p, k] = body(p, k)
        for p in range(2):
            for np_ in (2, 4, 6, 8): LA_[r, p, np_] = last(p, np_)
    def trace(r, cnt, np_=8):
        kinds = ["F"]*(cnt-2) + ["P", "L"][-min(cnt, 2):]
        tr = FI[r] + EN[r, kinds[0]] + B[r, 0, kinds[0]][1]
        for t in range(1, cnt-1): tr += B[r, t & 1, kinds[t]][0] + B[r, t & 1, kinds[t]][1]
        tr += drain(0) if cnt == 1 else LA_[r, (cnt-1) & 1, np_]
        o = []; keep = True; nd = 0
        for x in tr:
            if x == "@D{": keep = nd < cnt; nd += 1
            elif x == "@}": keep = True
            elif keep and x != "@STAMP": o.append(x)
        return o
    epi_head = ["s_branch x", "s_cmp", "s_cbranch", "s_waitcnt vmcnt(0) lgkmcnt(0)"] + [f"v_add_f32 v{ACC+r_}, 0, v{ACC+r_}" for r_ in range(6)]
    cases = [(r, c, n_) for c in range(1, 9) for r in "PC" for n_ in (2, 4, 6, 8)]
    need = asmsim.solve_waits([trace(*c) for c in cases])
    for c in cases: asmsim.check_hazards(asmsim.apply_waits(trace(*c), need) + epi_head, f"case {c}")
    def emit(l):
        for x in asmsim.apply_waits(l, need):
            if x == "@STAMP":
                stamp(a, 5); stamp(a, 5, "3"); stamp(a, 7, "4")
                if OPT.get("prof") == "7": a("s_memrealtime s[86:87]\ns_mov_b32 s98, 1")
                if OPT.get("prof") == "3": a(f"s_memtime s[86:87]\ns_mov_b32 s90, s{scount}\ns_getreg_b32 s92, hwreg(HW_REG_HW_ID)")
            elif x[0] != "@": a(x.split(";")[0])
    def main_loop(r):
        a(f"""
        K2_GO{r}:
        s_cmp_eq_u32 s{scount}, 0
        s_cbranch_scc1 K2_EMPTY
        s_cmp_gt_u32 s{scount}, 2
        s_cbranch_scc1 K2_ENTF{r}
        s_cmp_eq_u32 s{scount}, 2
        s_cbranch_scc1 K2_ENTP{r}
        """)
        emit(EN[r, "L"]); a(f"K2_ENTP{r}:"); emit(EN[r, "P"]); a(f"K2_ENTF{r}:"); emit(EN[r, "F"])
        a(".p2align 6")
        for p in range(2): emit(B[r, p, "F"][0] + B[r, p, "F"][1])
        a(f"s_branch K2_BODYF0{r}")
        emit(B[r, 0, "L"][1] + drain(0)); a("s_branch K2_DONE")
        for p in range(2):
            for np_ in (2, 4, 6): emit(LA_[r, p, np_]); a("s_branch K2_DONE")
        for p in range(2):
            emit(B[r, p, "P"][0] + B[r, p, "P"][1] + LA_[r, 1-p, 8])
            if p == 0 or r == "P": a("s_branch K2_DONE")
    def fill(n):
        a(f"s_cmp_eq_u32 s{scount}, 0\ns_cbranch_scc1 K2_FILLED{n}")
        emit(FI[n])
        a(f"K2_FILLED{n}:")
    def ap_addr():
        a(f"""
        v_bfe_u32 v{vt}, v0, 2, 2
        v_lshrrev_b32 v{vt+1}, 1, v{vH16}
        v_add_u32 v{vt}, v{vt}, v{vt+1}
        v_mul_u32_u24 v{vt}, {ROWP}, v{vt}
        v_bfe_u32 v{vt+2}, v0, 4, 1
        v_lshl_add_u32 v{vt}, v{vt+2}, 5, v{vt}
        v_and_b32 v{vt+2}, 3, v0
        v_lshl_add_u32 v{vt}, v{vt+2}, 3, v{vt}
        s_mul_i32 s{st0}, s{sg}, {GN*ROWP}
        s_lshl_b32 s{st1}, s{sfh}, 7
        s_add_u32 s{st0}, s{st0}, s{st1}
        v_add_u32 v{vt}, s{st0}, v{vt}
        v_mul_u32_u24 v{vt+1}, {ROWP//2}, v{vt+1}
        v_and_b32 v{vt+2}, 31, v0
        v_lshl_add_u32 v{vt+1}, v{vt+2}, 2, v{vt+1}
        v_add_u32 v{vt+1}, s{st0}, v{vt+1}
        """)
    def ap_read():
        a(f"""
        ds_read_b64_tr_b16 {vr(AP,2)}, v{vt} offset:{APL}
        ds_read_b64_tr_b16 {vr(AP+2,2)}, v{vt} offset:{APL+4*ROWP}
        ds_read_b64_tr_b16 {vr(AP+4,2)}, v{vt} offset:{APL+64}
        ds_read_b64_tr_b16 {vr(AP+6,2)}, v{vt} offset:{APL+4*ROWP+64}
        """)
        for r in range(6): a(f"ds_read_b32 v{UR+r}, v{vt+1} offset:{UL+ROWP*rowoff(r)}")
        a(f"""
        s_waitcnt lgkmcnt(6)
        v_and_b32 v{AP+3}, v{AP+3}, v{vM15}
        v_and_b32 v{AP+7}, v{AP+7}, v{vM15}
        """)
    def init_addr():
        for r in range(16): a(f"v_mov_b32 v{ADDR+r}, 128")
    def zero_acc():
        for r in range(32): a(f"v_mov_b32 v{ACC+r}, 0")

    a(f"s_cmp_lg_u32 s{sfh}, 0\ns_cbranch_scc1 K2_LOADER")
    ld_wc()
    a.ext(common1(SP, vt))
    a(f"v_and_b32 v{vt+3}, 15, v0\nv_lshlrev_b32 v{vt+3}, 4, v{vt+3}\nv_bfe_u32 v{vt+4}, v0, 4, 2\nv_lshl_add_u32 v{vt+3}, v{vt+4}, 10, v{vt+3}\ns_lshl_b32 s{st0}, s{sg}, 8\nv_add_u32 v{vt+3}, s{st0}, v{vt+3}")
    a(f"v_add_u32 v{vt+4}, 40960, v{vt+3}")
    for val, rg, runs in ((0x3f003f00, EA, (0, 3, 32, 35)), (0, EA+4, (23, 27)), (0x3f803f80, OH, (51, 55, 59))):
        for j in range(4): a(f"v_mov_b32 v{rg+j}, {val:#x}")
        for c0 in runs:
            a(f"ds_write_b128 v{vt+4 if c0 >= 24 else vt+3}, {vr(rg,4)} offset:{LUTL + 1024*(c0 - (40 if c0 >= 24 else 0))}")
    a(f"""
    v_and_b32 v{vt+3}, 127, v0
    v_bfe_u32 v{vt+4}, v0, 2, 4
    v_and_b32 v{Z+4}, 3, v0
    v_lshrrev_b32 v{Z+5}, 6, v{vt+3}
    v_lshlrev_b32 v{vt+3}, 2, v{vt+3}
    v_lshl_add_u32 v{Z+4}, v{Z+5}, 2, v{Z+4}
    v_lshlrev_b32 v{Z+5}, 1, v{Z+4}
    v_mov_b32 v{Z+6}, 0x3f80
    v_mov_b32 v{Z+7}, 0x3f800000
    v_cmp_eq_u32 vcc, v{Z+5}, v{vt+4}
    v_add_u32 v{Z+5}, 1, v{Z+5}
    s_nop 0
    v_cndmask_b32 v{Z+8}, 0, v{Z+6}, vcc
    v_cmp_eq_u32 vcc, v{Z+5}, v{vt+4}
    v_cmp_eq_u32 s[78:79], 7, v{Z+4}
    s_or_b64 vcc, vcc, s[78:79]
    s_nop 1
    v_cndmask_b32 v{Z+9}, 0, v{Z+7}, vcc
    v_or_b32 v{Z+8}, v{Z+8}, v{Z+9}
    v_cmp_gt_u32 vcc, 15, v{vt+4}
    s_nop 1
    v_cndmask_b32 v{Z+8}, 0, v{Z+8}, vcc
    ds_write_b32 v{vt+3}, v{Z+8} offset:{OHL}
    """)
    a(f"""
    v_mul_u32_u24 v{EOFF}, {CS*32}, v{vt+1}
    v_add_u32 v{EOFF+1}, {64*CS*32}, v{EOFF}
    v_mov_b32 v{vt+3}, 4
    """)
    init_addr()
    a("s_waitcnt vmcnt(2)")
    stamp(a, 2); stamp(a, 1, "5")
    a(f"""
    v_cmp_eq_u32 vcc, -2, v{REC+11}
    v_cmp_eq_u32 s[78:79], -2, v{REC+15}
    s_or_b64 vcc, vcc, s[78:79]
    s_cbranch_vccz K2_NOOVF
    v_mov_b32 v{vt+4}, 0x10000
    v_mov_b32 v{vt}, 60
    ds_add_u32 v{vt}, v{vt+4} offset:{CNT}
    K2_NOOVF:
    """)
    M = [68, 70, 72, 74, 76, 78, 80, 24]
    for k in range(8): a(f"v_cmp_gt_u32 {sr(M[k],2)}, -2, v{REC+k}\n{caddr(k)}")
    a(f"v_min_u32 v{vt+4}, v{REC+8}, v{REC+12}\nv_cmp_gt_u32 s[26:27], -2, v{vt+4}")
    for k in range(8): a(f"s_mov_b64 exec, {sr(M[k],2)}\nds_add_rtn_u32 v{RANK+k}, v{CADDR+k}, v{vt+3} offset:{CNT}")
    def steps(tag, fn):
        a(f"s_mov_b64 exec, -1\ns_cmp_eq_u64 s[26:27], 0\ns_cbranch_scc1 K2_{tag}1")
        for u in range(2):
            for i in range(4):
                k = 8+4*u+i
                a(f"v_cmpx_gt_u32 vcc, -2, v{REC+k}\ns_cbranch_execz K2_{tag}{u}")
                fn(k, u, i)
            a(f"K2_{tag}{u}:\ns_mov_b64 exec, -1")
    def cnt_step(k, u, i):
        if k == 12: a("s_waitcnt lgkmcnt(4)")
        a(f"{caddr(k)}\nds_add_rtn_u32 v{RANK+k}, v{CADDR+k}, v{vt+3} offset:{CNT}")
    steps("C", cnt_step)
    LA, LB = raw(0, 0), raw(0, 0)+8
    for k in range(8):
        a(f"v_bfe_u32 v{LA+k}, v{REC+k}, 16, {5 if 't' in OPT.get('nomem','') else 14}\nv_mad_u32_u16 v{LB+k}, v{REC+k}, 2, v{EOFF+(k>>2)}")
    for k in range(8): a(f"v_mul_u32_u24 v{LA+k}, s{csrc}, v{LA+k}")
    stamp(a, 2, "5")
    spin(0, "A")
    stamp(a, 3, "5")
    scan(True)
    a("s_waitcnt lgkmcnt(1)")
    stamp(a, 4, "5")
    for k in range(8): a(f"v_add_u32 v{STV+k}, v{STV+k}, v{RANK+k}")
    for k in range(8): a(f"v_lshlrev_b32 v{RANK+k}, 3, v{STV+k}")
    for k in range(8): a(f"v_and_or_b32 v{LA+k}, v{RANK+k}, s{c128}, v{LA+k}")
    for k in range(8): a(f"s_mov_b64 exec, {sr(M[k],2)}\nds_write2st64_b32 v{STV+k}, v{LA+k}, v{LB+k} offset0:{L1//256} offset1:{L2//256}")
    def put_step(k, u, i):
        if i == 0:
            for kk in range(k, k+4): a(f"ds_read_b32 v{STV+(kk&7)}, v{CADDR+kk} offset:{START}")
            a("s_waitcnt lgkmcnt(0)")
        place(k, STV+(k & 7), EOFF+u)
    steps("P", put_step)
    stamp(a, 5, "5")
    lane_setup()
    stamp(a, 6, "5")
    spin(1, "B")
    stamp(a, 3); stamp(a, 7, "5")
    a("K2_REFILLP:")
    fill("P")
    stamp(a, 4)
    a(f"s_cmp_lg_u32 s{sslow}, 0\ns_cbranch_scc1 K2_GOP")
    zero_acc()
    ap_addr()
    spin(3, "D", add=False)
    ap_read()
    main_loop("P")
    a("K2_GIVEUP:")
    zero_acc()
    arrive(1)
    spin(3, "E", add=False)
    a("s_branch K2_SLOW")
    assert XL % 256 == 0
    XF = G; WT = [ACC, raw(0, 0)]
    accs = [[[raw(1,0)+8*nb, raw(1,0)+8*nb+4] for nb in range(3)], [[raw(1,1)+8, raw(1,1)+12], [SP, SP+4], [SP+8, ADDR]]]
    a(f"""
    K2_LOADER:
    v_lshrrev_b32 v{vt+4}, 4, v{vt}
    s_lshl_b32 s{st1}, s{sg}, 2
    v_add_u32 v{vA1}, s{st1}, v{vt+4}
    v_and_b32 v{vt+5}, 15, v0
    v_xor_b32 v{vA1}, v{vA1}, v{vt+5}
    v_lshlrev_b32 v{vA1}, 4, v{vA1}
    v_lshl_add_u32 v{vA1}, v{vt+4}, 8, v{vA1}
    s_lshl_b32 s{st1}, s{sg}, 10
    """)
    for k in range(3):
        a(f"""
        s_add_u32 m0, s{st1}, {XL+4096*k}
        s_add_u32 s{st2}, s{st1}, {4096*k}
        buffer_load_dwordx4 v{vA1}, {sr(sX,4)}, s{st2} offen lds
        """)
    stamp(a, 1, "6")
    srot = sk
    a(f"s_lshl_b32 s{slut}, s{sg}, 13\ns_lshr_b32 s{srt}, s2, 3")
    for j in range(4):
        a(f"s_add_u32 s{srot+j}, s{srt}, {j}\ns_and_b32 s{srot+j}, s{srot+j}, 3\ns_lshl_b32 s{srot+j}, s{srot+j}, 10\ns_add_u32 s{st2}, s{slut}, s{srot+j}")
        for m in range(2):
            for hf in range(2):
                a(f"buffer_load_dwordx4 {vr(WT[m]+16*hf+4*j,4)}, v{vA2}, {sr(sWT,4)}, s{st2} offen")
                if (m, hf) != (1, 1): a(f"s_add_u32 s{st2}, s{st2}, {4096 if hf == 0 else 32768-4096}")
    stamp(a, 2, "6")
    a(f"""
    s_lshl_b32 s{st0}, s{sg}, 12
    s_add_u32 m0, s{st0}, {LUTL + 7*1024}
    s_add_u32 s{st2}, s{st0}, {LUT_OFF - WT_OFF + 7*1024}
    """)
    for j in range(4): a(f"buffer_load_dwordx4 v{vA2}, {sr(sWT,4)}, s{st2} offen offset:{1024*j} lds")
    a(f"""
    s_mul_i32 s{st0}, s{sg}, 3072
    s_add_u32 m0, s{st0}, {LUTL + 39*1024}
    s_add_u32 s{st2}, s{st0}, {LUT_OFF - WT_OFF + 39*1024}
    """)
    for j in range(3): a(f"buffer_load_dwordx4 v{vA2}, {sr(sWT,4)}, s{st2} offen offset:{1024*j} lds")
    a(f"""
    s_and_b32 s{st0}, s{sg}, 1
    s_lshl_b32 s{st0}, s{st0}, 15
    s_add_u32 m0, s{st0}, {LUTL + 31*1024}
    s_add_u32 s{st2}, s{st0}, {LUT_OFF - WT_OFF + 31*1024}
    buffer_load_dwordx4 v{vA2}, {sr(sWT,4)}, s{st2} offen lds
    """)
    ld_wc()
    stamp(a, 3, "6")
    a(f"""
    s_waitcnt vmcnt(26)
    """)
    arrive(2)
    a(f"""
    v_mov_b32 v{vt+8}, v{vt}
    v_and_b32 v{vt}, 15, v0
    v_bfe_u32 v{vt+1}, v0, 4, 2
    v_xor_b32 v{vt+2}, v{vt}, v{vt+1}
    v_lshlrev_b32 v{vt+2}, 4, v{vt+2}
    v_lshl_add_u32 v{vt+2}, v{vt}, 8, v{vt+2}
    v_add_u32 v{vt+2}, {XL}, v{vt+2}
    v_mul_u32_u24 v{vt}, {ROWP}, v{vt}
    """)
    stamp(a, 2); stamp(a, 5, "6")
    spin(2, "C", add=False)
    stamp(a, 6, "6")
    for s in range(4):
        a(f"s_lshr_b32 s{st0}, s{srot+s}, 4\nv_xor_b32 v{vt+3}, s{st0}, v{vt+2}")
        for nb in range(3):
            a(f"ds_read_b128 {vr(XF+16*nb+4*s,4)}, v{vt+3} offset:{4096*nb}")
    a(f"""
    s_lshr_b32 s{st0}, s{sg}, 1
    s_lshl_b32 s{st0}, s{st0}, 7
    s_and_b32 s{st1}, s{sg}, 1
    s_lshl_b32 s{st1}, s{st1}, 5
    s_add_u32 s{st0}, s{st0}, s{st1}
    v_lshl_add_u32 v{vt+4}, v{vt+1}, 3, v{vt}
    v_add_u32 v{vt+4}, s{st0}, v{vt+4}
    s_lshl_b32 s{st0}, s{sg}, 6
    v_lshl_add_u32 v{vt+5}, v{vt+1}, 4, v{vt}
    v_add_u32 v{vt+5}, s{st0}, v{vt+5}
    """)
    def mm1(m, s):
        return [f"v_mfma_f32_16x16x32_bf16 {vr(accs[m][nb][ab], 4)}, {vr(WT[m]+16*ab+4*s,4)}, {vr(XF+16*nb+4*s,4)}, {'0' if s == 0 else vr(accs[m][nb][ab], 4)}"
                for nb in range(3) for ab in range(2)]
    outA = []
    for nb in range(3):
        al, be = accs[0][nb]; o = EA+ (0 if nb != 1 else 4)
        for i in range(4): outA += [f"v_mul_f32 v{al+i}, s{cnl2e}, v{al+i}", f"v_mul_f32 v{be+i}, s{cnl2e}, v{be+i}"]
        outA += [f"v_cvt_pk_bf16_f32 v{o}, v{al}, v{al+2}", f"v_cvt_pk_bf16_f32 v{o+1}, v{be}, v{be+2}",
                 f"v_cvt_pk_bf16_f32 v{o+2}, v{al+1}, v{al+3}", f"v_cvt_pk_bf16_f32 v{o+3}, v{be+1}, v{be+3}",
                 f"ds_write_b64 v{vt+4}, {vr(o,2)} offset:{APL+16*ROWP*nb}", f"ds_write_b64 v{vt+4}, {vr(o+2,2)} offset:{APL+16*ROWP*nb+64}"]
    NPF = int(OPT.get("tpf", "0"))
    if NPF:
        srd(a, sS, 14, T_OFF, N*TS)
        a(f"""
        s_bfe_u32 s{st0}, s2, 0x50003
        s_lshl_b32 s{st0}, s{st0}, 2
        s_add_u32 s{st0}, s{st0}, s{sg}
        s_lshl_b32 s{st0}, s{st0}, 13
        v_lshlrev_b32 v{vt+9}, 7, v{vt+8}
        """)
        for j in range(NPF):
            a(f"buffer_load_dword v{vt+10}, v{vt+9}, {sr(sS,4)}, s{st0} offen")
            if j+1 < NPF: a(f"s_add_u32 s{st0}, s{st0}, {1 << 20}")
    g = []; cm = common1(XR+1, vt+8); k = 0
    for s in range(4):
        g.append(f"s_waitcnt vmcnt({22-4*s+NPF}) lgkmcnt({9-3*s})")
        for x in mm1(0, s) + (mm1(1, s) if s < 3 else []):
            g.append(x); g += cm[k:k+3]; k += 3
    assert k >= len(cm)
    k = 0
    for j, x in enumerate(mm1(1, 3)):
        g.append(x)
        if j >= 2: g += outA[k:k+3]; k += 3
    g += outA[k:]
    for nb in range(3):
        al, be = accs[1][nb]; o = XF+4*nb
        g += [f"v_cvt_pk_bf16_f32 v{o}, v{al}, v{al+1}", f"v_cvt_pk_bf16_f32 v{o+1}, v{al+2}, v{al+3}",
              f"v_cvt_pk_bf16_f32 v{o+2}, v{be}, v{be+1}", f"v_cvt_pk_bf16_f32 v{o+3}, v{be+2}, v{be+3}",
              f"ds_write_b128 v{vt+5}, {vr(o,4)} offset:{UL+16*ROWP*nb}"]
    asmsim.check_hazards(g, "gemm")
    a.ext(g)
    a(f"s_waitcnt vmcnt({NPF})")
    arrive(3)
    stamp(a, 3); stamp(a, 7, "6")
    zero_acc()
    init_addr()
    spin(1, "F", add=False)
    a(f"""
    v_mov_b32 v{vt+2}, {INCL+60}
    ds_read2_b32 {vr(vt+4,2)}, v{vt+2} offset0:0 offset1:16
    ds_read2_b32 {vr(vt+6,2)}, v{vt+2} offset0:32 offset1:48
    s_waitcnt lgkmcnt(0)
    """)
    for g_ in range(4): a(f"v_readfirstlane_b32 s{sk+g_}, v{vt+4+g_}")
    a(f"""
    s_max_u32 s{st0}, s{sk}, s{sk+1}
    s_max_u32 s{st1}, s{sk+2}, s{sk+3}
    s_max_u32 s{st0}, s{st0}, s{st1}
    s_cmp_gt_u32 s{st0}, {CAPG*4}
    s_cbranch_scc1 K2_SLOW
    """)
    a("s_setprio 1")
    rank_groups()
    lane_setup()
    a("K2_REFILLC:")
    fill("C")
    a(f"s_cmp_lg_u32 s{sslow}, 0\ns_cbranch_scc1 K2_GOC")
    ap_addr()
    spin(3, "G", add=False)
    ap_read()
    stamp(a, 4)
    a("s_branch K2_GOC")
    a("K2_EMPTY:"); a.ext(ld_xr()); a("s_branch K2_DONE")
    for n in spins:
        a(f"""
        K2_SP{n}:
        ds_read_b32 v{vEa}, v{vPG}
        s_waitcnt lgkmcnt(0)
        v_cmp_gt_u32 vcc, s{sneed}, v{vEa}
        s_cbranch_vccnz K2_SP{n}
        s_branch K2_OK{n}
        """)
    main_loop("C")
    a(f"""
    K2_DONE:
    s_cmp_lg_u32 s{sslow}, 0
    s_cbranch_scc1 K2_ROUND
    K2_EPI:
    s_waitcnt vmcnt(0) lgkmcnt(0)
    """)
    stamp(a, 6); stamp(a, 6, "3")
    if OPT.get("prof") == "3": a("s_memtime s[88:89]")
    T0 = G
    for b in range(2):
        for r in range(6):
            a(f"v_add_f32 v{ACC+16*b+r}, 0x358637bd, v{ACC+16*b+r}")
        for r in range(6):
            a(f"v_rcp_f32 v{ACC+16*b+r}, v{ACC+16*b+r}")
        for r in range(6):
            u, x = T0+12*b+r, T0+12*b+6+r
            if b == 0: a(f"v_lshlrev_b32 v{u}, 16, v{UR+r}\nv_lshlrev_b32 v{x}, 16, v{XR+r}")
            else: a(f"v_and_b32 v{u}, 0xffff0000, v{UR+r}\nv_and_b32 v{x}, 0xffff0000, v{XR+r}")
        for r in range(6):
            u, x = T0+12*b+r, T0+12*b+6+r
            a(f"v_fmac_f32 v{u}, v{ACC+16*b+8+r}, v{ACC+16*b+r}\nv_max_f32 v{u}, 0, v{u}\nv_add_f32 v{u}, v{u}, v{x}")
    a(f"v_lshl_or_b32 v{vO2}, v{vH16}, 27, v{vO}")
    for r in range(6):
        a(f"v_cvt_pk_bf16_f32 v{SP+r}, v{T0+r}, v{T0+12+r}")
        a(f"buffer_store_dword v{SP+r}, v{vO if r < 4 else vO2}, {sr(sO,4)}, 0 offen offset:{256*rowoff(r)} {OPT.get('st_o', '')}")
    stamp(a, 7)
    stamp_out(a, 1, 14, sw, 2)
    a("K2_END:\ns_endpgm")

    a("K2_SLOW:")
    srd(a, sS, 8, None, E*4)
    srd(a, sD, 10, None, E*4)
    a(f"""
    s_mov_b32 s{sslow}, 1
    s_mov_b32 s{cm10}, {-GN}
    """)
    a("s_waitcnt vmcnt(0) lgkmcnt(0)\ns_barrier")
    lane_setup(); ap_addr(); ap_read()
    a(f"""
    K2_ROUND:
    s_cmp_ge_u32 s{sround}, {E//RND}
    s_cbranch_scc1 K2_EPI
    s_mul_i32 s{st0}, s{sround}, {RND}
    s_add_u32 s{sround}, s{sround}, 1
    v_add_u32 v{EOFF}, s{st0}, v0
    v_lshlrev_b32 v{vt}, 2, v{EOFF}
    buffer_load_dword v{REC}, v{vt}, {sr(sD,4)}, 0 offen
    buffer_load_dword v{REC+1}, v{vt}, {sr(sS,4)}, 0 offen
    v_lshlrev_b32 v{EOFF}, 5, v{EOFF}
    v_and_b32 v{vt}, 63, v0
    v_lshlrev_b32 v{vt}, 3, v{vt}
    v_mov_b32 v{vt+4}, 0
    v_mov_b32 v{vt+5}, 0
    s_waitcnt lgkmcnt(0)
    s_barrier
    ds_write_b64 v{vt}, {vr(vt+4,2)} offset:{CNT}
    v_mov_b32 v{vt+3}, 4
    s_waitcnt vmcnt(0) lgkmcnt(0)
    s_barrier
    """)
    rec_fields(a, REC, REC+2, vt, cm40, cm10)
    a(f"""
    v_cmp_eq_u32 vcc, s2, v{REC+2}
    v_lshl_or_b32 v{REC}, v{REC+1}, 16, v{REC}
    {caddr(0)}
    s_mov_b64 s[78:79], vcc
    v_cmp_gt_u32 vcc, {RND}, v0
    s_and_b64 s[78:79], s[78:79], vcc
    s_mov_b64 exec, s[78:79]
    ds_add_rtn_u32 v{RANK}, v{CADDR}, v{vt+3} offset:{CNT}
    s_mov_b64 exec, -1
    s_waitcnt lgkmcnt(0)
    s_barrier
    """)
    scan(False)
    a(f"""
    s_mov_b64 exec, s[78:79]
    ds_read_b32 v{STV}, v{CADDR} offset:{START}
    s_waitcnt lgkmcnt(0)
    """)
    place(0, STV, EOFF)
    a(f"""
    s_mov_b64 exec, -1
    """)
    lane_setup()
    a(f"""
    s_waitcnt lgkmcnt(0)
    s_barrier
    s_cmp_eq_u32 s{sfh}, 0
    s_cbranch_scc1 K2_REFILLP
    s_branch K2_REFILLC
    K2_CODE_END:
    """)
    return a.text(), kd("k2_kernel", 256, 102)

KE_PROF = f"""
    s_memrealtime s[8:9]
    s_load_dwordx2 s[4:5], s[0:1], 88
    s_waitcnt lgkmcnt(0)
    s_add_u32 s4, s4, {PROF_OFF + 0x200000}
    s_addc_u32 s5, s5, 0
    s_mov_b32 s6, 4
    s_mov_b32 s7, 0x20000
    v_mov_b32 v1, s8
    v_lshlrev_b32 v0, 2, v0
    buffer_store_dword v1, v0, s[4:7], 0 offen
"""
def gen_kr():
    a = Asm()
    a(f"""
    kr_kernel:
    s_cmp_ge_u32 s2, 1
    s_cbranch_scc1 KR_END
    s_load_dwordx4 s[4:7], s[0:1], 80
    s_waitcnt lgkmcnt(0)
    s_add_u32 s8, s6, {PROF_OFF}
    s_addc_u32 s9, s7, 0
    s_mov_b32 s10, 0x200000
    s_mov_b32 s11, 0x20000
    s_mov_b32 s6, 256
    s_mov_b32 s7, 0x20000
    v_cmp_gt_u32 vcc, 250, v0
    s_and_saveexec_b64 s[12:13], vcc
    v_lshlrev_b32 v1, 10, v0
    v_mov_b32 v3, 0
    """)
    sel = [(0, 16, 0, 1), (0, 16, 0, 0), (0, 16, 2, 0), (0, 16, 3, 0), (0, 16, 5, 0), (0, 16, 8, 0),
           (1, 8, 0, 1), (1, 8, 0, 0), (1, 8, 2, 0), (1, 8, 3, 0), (1, 8, 5, 1), (1, 8, 5, 0), (1, 8, 6, 1), (1, 8, 6, 0), (1, 8, 8, 0)]
    w0 = 0
    if OPT.get("krsel"):
        w0, st_, mn_ = [int(x) for x in OPT["krsel"].split(",")]
        sel = [(1, 4, 0, 1), (1, 4, st_, mn_)]
    for j, (kn, nw, st, mn) in enumerate(sel):
        a(f"s_mov_b32 s14, {kn*0x100000 + 64*w0}")
        for w in range(nw): a(f"buffer_load_dword v{10+w}, v1, s[8:11], s14 offen offset:{64*w+4*st}")
        a("s_waitcnt vmcnt(0)")
        if mn:
            for w in range(nw): a(f"v_not_b32 v{10+w}, v{10+w}")
        for w in range(1, nw): a(f"v_max_u32 v10, v10, v{10+w}")
        a(f"buffer_atomic_umax v10, v3, s[4:7], 0 offen offset:{4*j}\ns_waitcnt vmcnt(0)")
    if OPT.get("iv"):
        ja, jb, k = [int(x) for x in OPT["iv"].split(",")]
        a(f"""
        s_barrier
        buffer_load_dword v10, v3, s[4:7], 0 offen offset:{4*ja} sc0 sc1
        buffer_load_dword v11, v3, s[4:7], 0 offen offset:{4*jb} sc0 sc1
        s_waitcnt vmcnt(0)
        v_readfirstlane_b32 s16, v10
        v_readfirstlane_b32 s17, v11
        """)
        if sel[ja][3]: a("s_not_b32 s16, s16")
        if sel[jb][3]: a("s_not_b32 s17, s17")
        a(f"""
        s_sub_u32 s16, s16, s17
        s_min_u32 s16, s16, 10000
        s_mul_i32 s16, s16, {k}
        s_memrealtime s[18:19]
        s_waitcnt lgkmcnt(0)
        KR_SPIN:
        s_memrealtime s[20:21]
        s_waitcnt lgkmcnt(0)
        s_sub_u32 s20, s20, s18
        s_cmp_lt_u32 s20, s16
        s_cbranch_scc1 KR_SPIN
        """)
    a("KR_END:\ns_endpgm")
    return a.text()

def main():
    k1, d1 = gen_k1(); k2, d2 = gen_k2()
    ref = open("standalone__edge_featured_mpnn_gatedgcn__graph.s.ref").read().split("\n")
    out = "\n".join(ref[:13]) + "\n"
    for ch in OPT.get("list", "12"):
        if ch == "1": out += f"; @launch kernel=k1_kernel grid=({2*NCH},1,1) block=(1024,1,1) lds={K1_LDS}\n"
        if ch == "2": out += f"; @launch kernel=k2_kernel grid=({NBIN},1,1) block=(512,1,1) lds={K2_LDS}\n"
        if ch == "r": out += "; @launch kernel=kr_kernel grid=(1,1,1) block=(256,1,1) lds=0\n"
        if ch == "e": out += "; @launch kernel=ke_kernel grid=(1,1,1) block=(64,1,1) lds=0\n"
    out += '.amdgcn_target "amdgcn-amd-amdhsa--gfx950"\n.text\n'
    for n, k in (("k1_kernel", k1), ("k2_kernel", k2)):
        out += f".globl {n}\n.p2align 8\n.type {n},@function\n" + k
    if "e" in OPT.get("list", ""): out += ".globl ke_kernel\n.p2align 8\n.type ke_kernel,@function\nke_kernel:\n" + (KE_PROF if OPT.get("prof") else "") + "    s_endpgm\n"
    if "r" in OPT.get("list", ""): out += ".globl kr_kernel\n.p2align 8\n.type kr_kernel,@function\n" + gen_kr()
    out += '.section .rodata,"a"\n.p2align 6\n' + d1.lstrip("\n") + '.p2align 6\n' + d2.lstrip("\n")
    if "e" in OPT.get("list", ""): out += '.p2align 6\n' + kd("ke_kernel", 8, 16).lstrip("\n")
    if "r" in OPT.get("list", ""): out += '.p2align 6\n' + kd("kr_kernel", 32, 32).lstrip("\n")
    open(sys.argv[1], "w").write(out)

if __name__ == "__main__":
    main()
```

```python
import struct, sys
import asmsim

N = 10000; E = 320000
NCH = 128; CS = 2500
NBIN = 256; GN = 10
BINK, BINC, BINS = 53687, 52500, 21
assert all((625*b_ >> 4) <= d_ < (625*(b_+1) >> 4) for d_ in range(N) for b_ in [(d_*BINK + BINC) >> BINS])
CAP = 32
TS = int(([a for a in sys.argv if a.startswith('ts=')] or ['ts=512'])[0][3:])
T_OFF = 0x1000000
REC_OFF = 0x700000
WT_OFF = 0xB00000
LUT_OFF = 0xB20000
PROF_OFF = 0xF000000
NL2E = struct.unpack("<I", struct.pack("<f", -1.4426950408889634))[0]

def bf(x): return struct.unpack("<I", struct.pack("<f", x))[0] >> 16

OPT = dict(st_r="sc1", st_t="sc1")
for a in sys.argv[2:]:
    k, v = a.split("=", 1); OPT[k] = v

class Asm:
    def __init__(self): self.l = []
    def __call__(self, s):
        for x in s.strip("\n").split("\n"):
            x = x.strip()
            if not x: continue
            if x.startswith(";"): x = "s_nop 0"
            self.l.append(x if x.endswith(":") else "    " + x)
    def ext(self, lst):
        for x in lst: self(x)
    def text(self): return "\n".join(self.l) + "\n"

def stamp(a, i, lvl="1"):
    if OPT.get("prof") and (i in (0, 8) or OPT["prof"] == lvl): a(f"s_memrealtime s[{84+2*i}:{85+2*i}]")
def stamp_out(a, kern, wsreg, sw, vtmp):
    if not OPT.get("prof"): return
    a("s_waitcnt vmcnt(0)")
    stamp(a, 8)
    a(f"""
    s_lshl_b32 s4, s2, 4
    s_add_u32 s4, s4, s{sw}
    s_lshl_b32 s4, s4, 6
    s_add_u32 s4, s4, {PROF_OFF + kern*0x100000}
    s_add_u32 s4, s{wsreg}, s4
    s_addc_u32 s5, s{wsreg+1}, 0
    s_mov_b32 s6, 64
    s_mov_b32 s7, 0x20000
    s_waitcnt lgkmcnt(0)
    """)
    if kern == 1 and OPT["prof"] == "7":
        a(f"v_mov_b32 v{vtmp}, v251\nv_writelane_b32 v{vtmp}, s84, 0\ns_mov_b32 m0, s98\ns_add_u32 s98, s98, 1\nv_writelane_b32 v{vtmp}, s86, m0\ns_mov_b32 m0, s98\ns_nop 3\nv_writelane_b32 v{vtmp}, s100, m0\nv_writelane_b32 v{vtmp}, s98, 15")
    else:
        for i in range(9): a(f"v_writelane_b32 v{vtmp}, s{84+2*i}, {i}")
    a(f"""
    v_mbcnt_lo_u32_b32 v{vtmp+1}, -1, 0
    v_mbcnt_hi_u32_b32 v{vtmp+1}, -1, v{vtmp+1}
    v_lshlrev_b32 v{vtmp+1}, 2, v{vtmp+1}
    buffer_store_dword v{vtmp}, v{vtmp+1}, s[4:7], 0 offen
    """)

def vr(b, n): return f"v[{b}:{b+n-1}]"
def sr(b, n): return f"s[{b}:{b+n-1}]"

def srd(a, d, base, add=None, size=None, w3="0x20000", hi_or=None):
    if add is None:
        a(f"s_mov_b32 s{d}, s{base}\ns_mov_b32 s{d+1}, s{base+1}")
    else:
        a(f"s_add_u32 s{d}, s{base}, {add}\ns_addc_u32 s{d+1}, s{base+1}, 0")
    if hi_or: a(f"s_or_b32 s{d+1}, s{d+1}, {hi_or}")
    a(f"s_mov_b32 s{d+2}, {size}\ns_mov_b32 s{d+3}, {w3}")

def kd(name, vgpr, sgpr):
    return f"""
.amdhsa_kernel {name}
  .amdhsa_next_free_vgpr {vgpr}
  .amdhsa_next_free_sgpr {sgpr}
  .amdhsa_accum_offset {(vgpr+3)//4*4}
  .amdhsa_group_segment_fixed_size 0
  .amdhsa_kernarg_size 96
  .amdhsa_user_sgpr_count 2
  .amdhsa_user_sgpr_kernarg_segment_ptr 1
  .amdhsa_system_sgpr_workgroup_id_x 1
.end_amdhsa_kernel
"""

def rec_fields(a, vd, vbin, vtmp, sm40, sm10):
    a(f"""
    v_mul_u32_u24 v{vbin}, {BINK}, v{vd}
    v_add_u32 v{vbin}, {BINC}, v{vbin}
    v_lshrrev_b32 v{vbin}, {BINS}, v{vbin}
    v_mul_u32_u24 v{vtmp}, 625, v{vbin}
    v_lshrrev_b32 v{vtmp}, 4, v{vtmp}
    v_sub_u32 v{vd}, v{vd}, v{vtmp}
    v_mul_u32_u24 v{vtmp}, 26, v{vd}
    v_lshrrev_b32 v{vtmp}, 8, v{vtmp}
    v_mad_i32_i24 v{vd}, v{vtmp}, s{sm10}, v{vd}
    v_lshl_or_b32 v{vd}, v{vtmp}, 30, v{vd}
    """)

K1_CNT = 0; K1_STG = 1024; K1_W = 34816; K1_X = K1_W + 32768; K1_LDS = K1_X + 20480
def gen_k1():
    a = Asm()
    sS, sD, sW1, sW2, sX, sR, sT, sP = 24, 28, 32, 36, 40, 44, 48, 72
    sw, st0, st1, st2, snb, sfb, sch, shf = 52, 53, 54, 55, 56, 57, 58, 69
    c4096, c8192, cm40, cm10, cnl2e, csign, cmag, ctso, cp0 = 59, 60, 61, 62, 63, 64, 65, 66, 67
    vD, vS, vB, vSL, vt = 2, 5, 8, 11, 16
    vW, vX, vA, vg = 32, 96, 112, 40
    vTR, vXA, vST = 124+0, 0, 0
    PE = OPT.get("pe", "3")
    PL = 625 if PE == "3" else 313
    def W(m, ab, s): return vW + 32*m + 16*ab + 4*s
    a("k1_kernel:")
    a(f"s_cmp_ge_u32 s2, {2*NCH}\ns_cbranch_scc1 K1_END")
    stamp(a, 0)
    a(f"""
    s_load_dwordx16 s[4:19], s[0:1], 0
    s_load_dwordx2 s[20:21], s[0:1], 64
    s_load_dwordx2 s[22:23], s[0:1], 88
    v_lshrrev_b32 v2, 6, v0
    v_lshlrev_b32 v1, 2, v0
    v_readfirstlane_b32 s{sw}, v2
    s_mov_b32 s{c4096}, 4096
    s_mov_b32 s{c8192}, 8192
    s_sub_u32 s{sch}, s2, {NCH}
    s_and_b32 s{shf}, s2, 1
    v_and_b32 v{vg}, 63, v0
    v_lshrrev_b32 v{vg+1}, 4, v{vg}
    v_and_b32 v{vg+2}, 15, v0
    s_and_b32 s{st0}, s{sw}, 3
    s_lshl_b32 s{st0}, s{st0}, 2
    v_add_u32 v{vg+3}, s{st0}, v{vg+1}
    v_xor_b32 v{vg+3}, v{vg+3}, v{vg+2}
    v_lshlrev_b32 v{vg+3}, 4, v{vg+3}
    v_lshl_add_u32 v{vg+3}, v{vg+1}, 8, v{vg+3}
    v_lshrrev_b32 v{vg+4}, 3, v{vg}
    v_lshlrev_b32 v{vg+5}, 1, v{vg+4}
    v_and_b32 v{vg+5}, 4, v{vg+5}
    v_and_b32 v{vg+6}, 7, v0
    v_xor_b32 v{vg+5}, v{vg+5}, v{vg+6}
    v_lshlrev_b32 v{vg+5}, 4, v{vg+5}
    v_lshl_add_u32 v{vg+4}, v{vg+4}, 8, v{vg+5}
    s_mul_i32 s{st1}, s{sch}, {CS*4}
    s_lshr_b32 s{st0}, s2, 1
    s_mul_i32 s{ctso}, s{st0}, {80*TS}
    s_mul_i32 s{st0}, s{st0}, 20480
    s_cmp_lt_u32 s2, 250
    s_cselect_b32 s{st0}, s{st0}, 0
    s_cselect_b32 s{st2}, 20480, 0
    s_waitcnt lgkmcnt(0)
    s_cselect_b64 {sr(sW1,2)}, s[14:15], s[12:13]
    s_cselect_b64 {sr(sW2,2)}, s[20:21], s[18:19]
    s_cmp_lt_u32 s2, {NCH}
    s_cbranch_scc1 K1_NOIDX
    """)
    srd(a, sD, 10, f"s{st1}", CS*4)
    srd(a, sS, 8, f"s{st1}", CS*4)
    for r, so in enumerate(("0", f"s{c4096}", f"s{c8192}")):
        a(f"buffer_load_dword v{vD+r}, v1, {sr(sD,4)}, {so} offen")
        a(f"buffer_load_dword v{vS+r}, v1, {sr(sS,4)}, {so} offen")
    a(f"""
    s_barrier
    K1_NOIDX:
    s_add_u32 s{sX}, s4, s{st0}
    s_addc_u32 s{sX+1}, s5, 0
    s_mov_b32 s{sX+2}, s{st2}
    s_mov_b32 s{sX+3}, 0x20000
    s_lshl_b32 s{st1}, s{sw}, 10
    s_add_u32 m0, s{st1}, {K1_X}
    s_mov_b32 s{sW1+2}, 32768
    s_mov_b32 s{sW1+3}, 0x20000
    buffer_load_dwordx4 v{vg+3}, {sr(sX,4)}, s{st1} offen lds
    s_cmp_lt_u32 s{sw}, 4
    s_cbranch_scc0 K1_X1
    s_add_u32 m0, s{st1}, {K1_X+16384}
    s_add_u32 s{st1}, s{st1}, 16384
    buffer_load_dwordx4 v{vg+3}, {sr(sX,4)}, s{st1} offen lds
    K1_X1:
    s_mov_b32 s{sW2+2}, 32768
    s_mov_b32 s{sW2+3}, 0x20000
    s_lshr_b32 s{st1}, s2, 3
    s_add_u32 s{st1}, s{st1}, s{sw}
    s_and_b32 s{st1}, s{st1}, 15
    s_lshl_b32 s{st0}, s{st1}, 10
    s_add_u32 m0, s{st0}, {K1_W}
    s_lshl_b32 s{st1}, s{st1}, 11
    s_lshl_b32 s{st2}, s{shf}, 7
    s_add_u32 s{st1}, s{st1}, s{st2}
    buffer_load_dwordx4 v{vg+4}, {sr(sW1,4)}, s{st1} offen lds
    s_add_u32 m0, s{st0}, {K1_W+16384}
    s_mul_i32 s{st0}, s2, {PL*128}
    buffer_load_dwordx4 v{vg+4}, {sr(sW2,4)}, s{st1} offen lds
    s_min_u32 s{st0}, s{st0}, {E*32}
    s_sub_u32 s{st1}, {E*32}, s{st0}
    s_min_u32 s{st1}, s{st1}, {PL*128}
    """)
    def prefetch_e():
        a(f"v_lshlrev_b32 v30, 7, v0\nbuffer_load_dword v31, v30, {sr(sP,4)}, 0 offen")
    srd(a, sP, 6, f"s{st0}", f"s{st1}")
    if PE == "1": prefetch_e()
    NB = 3 + (PE == "1")
    a(f"""
    s_and_b32 s{sfb}, s{sw}, 1
    s_lshr_b32 s{snb}, s{sw}, 1
    v_bfe_u32 v{vg+5}, v0, 2, 2
    v_and_b32 v{vg+6}, 3, v0
    s_lshl_b32 s{st0}, s{sfb}, 2
    v_add_u32 v{vg+6}, s{st0}, v{vg+6}
    v_lshlrev_b32 v{vg+7}, 1, v{vg+5}
    v_and_b32 v{vg+7}, 4, v{vg+7}
    v_xor_b32 v{vg+6}, v{vg+6}, v{vg+7}
    v_lshl_add_u32 v{vg+5}, v{vg+1}, 3, v{vg+5}
    v_lshlrev_b32 v{vg+5}, 7, v{vg+5}
    v_lshl_add_u32 v28, v{vg+6}, 4, v{vg+5}
    v_xor_b32 v29, v{vg+1}, v{vg+2}
    v_lshlrev_b32 v29, 4, v29
    v_lshl_add_u32 v29, v{vg+2}, 8, v29
    s_lshl_b32 s{st0}, s{snb}, 12
    s_add_u32 s{st0}, s{st0}, {K1_X}
    v_add_u32 v29, s{st0}, v29
    v_mul_u32_u24 v27, {TS}, v{vg+2}
    v_lshl_add_u32 v27, v{vg+1}, 4, v27
    s_add_u32 s{st0}, s{ctso}, {T_OFF}
    """)
    a(f"""
    s_mul_i32 s{ctso}, s{snb}, {16*TS}
    s_lshl_b32 s{st1}, s{shf}, 8
    s_add_u32 s{ctso}, s{ctso}, s{st1}
    s_lshl_b32 s{st1}, s{sfb}, 6
    s_add_u32 s{ctso}, s{ctso}, s{st1}
    s_mov_b32 s{cnl2e}, {NL2E:#x}
    s_mov_b32 s{csign}, 0x00800000
    s_mov_b32 s{cmag}, 0x7fffffff
    s_mov_b32 s{cp0}, 0x07060100
    s_mov_b32 s{cp0+1}, 0x07060302
    """)
    srd(a, sT, 22, f"s{st0}", 80*TS)
    stamp(a, 1)
    a(f"s_cmp_lt_u32 s2, {NCH}\ns_cbranch_scc1 K1_NOBIN")
    a(f"""
    v_mov_b32 v{vt}, -1
    v_mov_b32 v{vt+1}, -1
    v_mov_b32 v{vt+2}, -1
    v_mov_b32 v{vt+3}, -1
    v_lshlrev_b32 v{vt+4}, 4, v0
    v_mov_b32 v{vt+5}, 0
    v_and_b32 v{vt+6}, 0x3fc, v1
    ds_write_b128 v{vt+4}, {vr(vt,4)} offset:{K1_STG}
    ds_write_b128 v{vt+4}, {vr(vt,4)} offset:{K1_STG+16384}
    ds_write_b32 v{vt+6}, v{vt+5} offset:{K1_CNT}
    s_lshl_b32 s{st0}, s{sch}, 7
    s_add_u32 s{st0}, s{st0}, {REC_OFF}
    """)
    srd(a, sR, 22, f"s{st0}", NBIN*NCH*128)
    a(f"s_lshl_b32 s{st0}, s{sch}, 9\ns_add_u32 s{st1}, s{st0}, {LUT_OFF}")
    srd(a, sW1, 22, f"s{st1}", 512)
    a(f"""
    v_add_u32 v40, s{st0}, v1
    v_and_b32 v41, 0x7fff, v40
    v_cmp_ne_u32 vcc, 0x7c00, v41
    v_or_b32 v41, 3, v40
    s_nop 0
    v_addc_co_u32 v40, vcc, 0, v40, vcc
    v_cvt_f32_f16 v41, v41
    v_cvt_f32_f16 v40, v40
    v_exp_f32 v41, v41
    v_exp_f32 v40, v40
    v_add_f32 v41, 1.0, v41
    v_add_f32 v40, 1.0, v40
    v_rcp_f32 v41, v41
    v_rcp_f32 v40, v40
    s_nop 0
    v_cvt_pk_bf16_f32 v40, v40, v41
    s_mov_b32 s{cm10}, {-GN}
    v_mov_b32 v{vt+5}, 1
    v_cmp_gt_u32 vcc, {CS-2048}, v0
    s_mov_b64 s[80:81], vcc
    v_lshrrev_b32 v{vt+7}, 3, v0
    v_and_b32 v{vt+8}, 7, v0
    v_lshlrev_b32 v{vt+9}, 14, v{vt+7}
    v_lshl_add_u32 v{vt+9}, v{vt+8}, 4, v{vt+9}
    v_lshlrev_b32 v{vt+7}, 2, v{vt+7}
    v_cmp_eq_u32 s[82:83], 7, v{vt+8}
    s_mov_b32 s{st2}, {128*16384}
    s_waitcnt lgkmcnt(0)
    s_barrier
    """)
    for r in range(3):
        a(f"s_waitcnt vmcnt({4-2*r + NB})")
        if r == 0: stamp(a, 2)
        rec_fields(a, vD+r, vB+r, vt, cm40, cm10)
        a(f"v_lshlrev_b32 v{vt}, 2, v{vB+r}")
        if r == 2: a("s_mov_b64 exec, s[80:81]")
        a(f"ds_add_rtn_u32 v{vSL+r}, v{vt}, v{vt+5} offset:{K1_CNT}")
        if r == 2: a("s_mov_b64 exec, -1")
        a(f"""
        v_lshl_or_b32 v{vD+r}, v{vS+r}, 16, v{vD+r}
        v_add_u32 v{vS+r}, {1024*r}, v0
        v_lshl_or_b32 v{vD+r}, v{vS+r}, 4, v{vD+r}
        v_lshlrev_b32 v{vB+r}, 7, v{vB+r}
        """)
    for r in range(3):
        a("s_waitcnt lgkmcnt(2)")
        if r == 2: a("s_mov_b64 exec, s[80:81]")
        a(f"""
        v_and_b32 v{vt}, 12, v{vSL+r}
        v_add_u32 v{vB+r}, v{vB+r}, v{vt}
        v_and_b32 v{vt}, 3, v{vSL+r}
        v_lshl_add_u32 v{vB+r}, v{vt}, 4, v{vB+r}
        v_and_b32 v{vt}, 16, v{vSL+r}
        v_lshl_add_u32 v{vB+r}, v{vt}, 2, v{vB+r}
        v_cmpx_gt_u32 vcc, {CAP}, v{vSL+r}
        ds_write_b32 v{vB+r}, v{vD+r} offset:{K1_STG}
        s_mov_b64 exec, -1
        """)
    a(f"""
    s_waitcnt vmcnt({int(PE == "1")}) lgkmcnt(0)
    s_barrier
    ds_read_b128 v[32:35], v{vt+4} offset:{K1_STG}
    ds_read_b32 v{vt}, v{vt+7} offset:{K1_CNT}
    ds_read_b128 v[36:39], v{vt+4} offset:{K1_STG+16384}
    ds_read_b32 v{vt+1}, v{vt+7} offset:{K1_CNT+512}
    v_mov_b32 v{vt+2}, -2
    buffer_store_dword v40, v1, {sr(sW1,4)}, 0 offen {OPT['st_r']}
    """)
    stamp(a, 3)
    for k in range(2):
        a(f"""
        s_waitcnt lgkmcnt({2-2*k})
        v_cmp_lt_u32 vcc, {CAP}, v{vt+k}
        s_and_b64 vcc, vcc, s[82:83]
        s_nop 1
        v_cndmask_b32 v{35+4*k}, v{35+4*k}, v{vt+2}, vcc
        buffer_store_dwordx4 {vr(32+4*k,4)}, v{vt+9}, {sr(sR,4)}, {'0' if k == 0 else f's{st2}'} offen {OPT['st_r']}
        """)
    a(f"""
    s_branch K1_STAGED
    K1_NOBIN:
    s_waitcnt vmcnt({int(PE == "1")})
    """)
    stamp(a, 2)
    a("s_barrier")
    stamp(a, 3)
    a(f"""
    K1_STAGED:
    s_cmp_ge_u32 s2, 252
    s_cbranch_scc1 K1_WC
    s_cmp_ge_u32 s{sw}, 10
    s_cbranch_scc1 K1_TAIL
    v_xor_b32 v24, 64, v29
    v_xor_b32 v25, 0x80, v29
    v_xor_b32 v26, 0xc0, v29
    """)
    for s in range(4): a(f"ds_read_b128 {vr(vX+4*s,4)}, v{[29,24,25,26][s]}")
    def trs(s):
        for m in range(2):
            for ab in range(2):
                for u in range(2):
                    a(f"ds_read_b64_tr_b16 {vr(W(m,ab,s)+2*u,2)}, v28 offset:{K1_W+m*16384+s*4096+u*512+ab*8}")
    def mm(s):
        for m in range(2):
            for ab in range(2):
                d = vr(vA+8*m+4*ab, 4)
                a(f"v_mfma_f32_16x16x32_bf16 {d}, {vr(W(m,ab,s),4)}, {vr(vX+4*s,4)}, {'0' if s == 0 else d}")
    trs(0); a("s_waitcnt lgkmcnt(6)")
    for s in range(1, 4):
        trs(s); a("s_waitcnt lgkmcnt(8)" if s < 3 else "s_waitcnt lgkmcnt(8)"); mm(s-1)
        if s < 3: a("s_waitcnt lgkmcnt(6)")
    a(f"s_waitcnt lgkmcnt(0)\ns_cmp_ge_u32 s2, 250\ns_cbranch_scc1 K1_WT")
    mm(3)
    stamp(a, 4)
    a("s_nop 7")
    for b in range(2):
        for ab in range(2):
            b0, b1 = vA+4*ab+b, vA+4*ab+2+b
            hs = [vA+8+4*ab+2*e_+b for e_ in range(2)]
            a(f"v_mul_f32 v{b0}, s{cnl2e}, v{b0}\nv_mul_f32 v{b1}, s{cnl2e}, v{b1}")
            for e_, h in enumerate(hs): a(f"v_max_f32 v{2+e_}, abs(v{h}), s{csign}\nv_bfi_b32 v{h}, s{cmag}, v{2+e_}, v{h}")
            a(f"v_cvt_pk_bf16_f32 v{b0}, v{b0}, v{b1}")
            for h in hs: a(f"v_add_u32 v{h}, 0x8000, v{h}")
            for e_, h in enumerate(hs): a(f"v_sub_u32_sdwa v{h}, v{h}, v{b0} dst_sel:DWORD dst_unused:UNUSED_PAD src0_sel:DWORD src1_sel:WORD_{e_}")
            for e_, h in enumerate(hs): a(f"v_perm_b32 v{4+4*b+2*ab+e_}, v{h}, v{b0}, s{cp0+e_}")
        a(f"buffer_store_dwordx4 {vr(4+4*b,4)}, v27, {sr(sT,4)}, s{ctso} offen offset:{128*b} {OPT['st_t']}")
    a("K1_TAIL:")
    stamp(a, 5)
    if PE in "23": prefetch_e()
    stamp(a, 6); stamp(a, 7)
    stamp_out(a, 0, 22, sw, 2)
    a("s_endpgm")
    a("K1_WT:")
    srd(a, sT, 22, WT_OFF, 65536)
    a(f"""
    s_cmp_ge_u32 s{sw}, 4
    s_cbranch_scc1 K1_END
    v_and_b32 v2, 63, v0
    v_lshlrev_b32 v2, 4, v2
    s_lshl_b32 s{st0}, s{snb}, 2
    s_lshl_b32 s{st1}, s{shf}, 1
    s_add_u32 s{st0}, s{st0}, s{st1}
    s_add_u32 s{st0}, s{st0}, s{sfb}
    s_lshl_b32 s{st0}, s{st0}, 13
    s_add_u32 s{st1}, s{st0}, 4096
    s_cmp_eq_u32 s{snb}, 0
    s_cbranch_scc0 K1_WU
    """)
    for m in range(2):
        for ab in range(2):
            for s in range(4):
                a(f"buffer_store_dwordx4 {vr(W(m,ab,s),4)}, v2, {sr(sT,4)}, s{st1 if ab else st0} offen offset:{1024*s} {OPT['st_t']}")
        a("s_endpgm")
        if m == 0: a("K1_WU:")
    a("K1_WC:")
    srd(a, sT, 22, WT_OFF+65536, 4096)
    srd(a, sW1, 16, None, 4096)
    a(f"""
    s_cmp_eq_u32 s2, 252
    s_cbranch_scc0 K1_END
    s_cmp_ge_u32 s{sw}, 4
    s_cbranch_scc1 K1_END
    v_and_b32 v2, 63, v0
    v_lshrrev_b32 v4, 5, v2
    v_and_b32 v5, 31, v0
    v_lshlrev_b32 v5, 2, v5
    v_lshl_add_u32 v5, v4, 11, v5
    v_lshlrev_b32 v3, 4, v2
    s_lshr_b32 s{st1}, s{sw}, 1
    s_lshl_b32 s{st1}, s{st1}, 7
    s_and_b32 s{st0}, s{sw}, 1
    s_lshl_b32 s{st0}, s{st0}, 1
    s_add_u32 s{st1}, s{st1}, s{st0}
    s_lshl_b32 s{st0}, s{sw}, 10
    """)
    for j in range(8):
        a(f"buffer_load_ushort v{44+j}, v5, {sr(sW1,4)}, s{st1} offen offset:{256*j}")
    a("s_waitcnt vmcnt(0)")
    for j in range(8):
        a(f"v_lshlrev_b32 v{44+j}, 16, v{44+j}\nv_mul_f32 v{44+j}, s{cnl2e}, v{44+j}")
    for j in range(4):
        a(f"v_cvt_pk_bf16_f32 v{52+j}, v{44+2*j}, v{45+2*j}")
    a(f"buffer_store_dwordx4 v[52:55], v3, {sr(sT,4)}, s{st0} offen {OPT['st_t']}")
    a("K1_END:\ns_endpgm")
    return a.text(), kd("k1_kernel", 128, 102)

CAPG = 416; RND = 400
CNT = 0; FLG = 256; START = 512; INCL = 768; OHL = 1024; L1 = 1536; L2 = L1 + 4*CAPG*4; APL = L2 + 4*CAPG*4
ROWP = 272
UL = APL + 48*ROWP; LUTL = UL + 48*ROWP; STG = (LUTL + 65536 + 255)//256*256; XL = STG + 3*CAPG*32 + 5*1024; K2_LDS = XL + 12288
PROG = FLG + 32
assert K2_LDS <= 163840 and K2_LDS >= STG + 4*CAPG*32 and LUTL <= 65535 and (4*CAPG*4) % 256 == 0

def gen_k2():
    a = Asm()
    sREC, sX, sWT, sT, sE, sO, sD, sS = 24, 28, 32, 36, 40, 44, 68, 72
    sw, sg, sfh, st0, st1, st2 = 48, 49, 50, 51, 52, 53
    scount, sslow, sround, slim, sgb, srt, slut, srank = 54, 55, 56, 57, 58, 59, 82, 83
    stail = 20
    sdma, sm0, sneed = 21, 22, 23
    cm32, c128, cnl2e, cfc, csrc, cm40, cm10, cfe = 60, 61, 62, 63, 64, 65, 66, 67
    sk = 16
    vH16, vA1, vA2, vEa, vOa, vO, vA3 = 1, 2, 3, 4, 5, 6, 7
    WC = 8; AP = 16; PA = 24; SC = 28; OH = 32; EA = 40; ADDR = 48; ACC = 64; SP = 96; G = 112; RAW = 176
    XR = 240; UR = 246; vP16 = 252; vH256 = 253; vHS = 254; vPG = 255; vM15 = XR; vO2 = SP+8
    raw = lambda p, b: RAW + 32*p + 16*b
    gb = lambda p, b: G + 32*p + 16*b
    vt = gb(1, 1); Z = SP; EOFF = SP+14
    REC = raw(1, 0); CADDR = REC+16; RANK = G; STV = G+16
    NTB = [int(c_) for c_ in OPT.get("nt", "11")]
    rowoff = lambda r: 8*(r >> 2) + (r & 3)
    sd = "dst_sel:DWORD dst_unused:UNUSED_PAD src0_sel:DWORD"

    a("k2_kernel:")
    a(f"s_cmp_ge_u32 s2, {NBIN}\ns_cbranch_scc1 K2_END")
    stamp(a, 0)
    a(f"""
    s_load_dwordx8 s[4:11], s[0:1], 0
    s_load_dwordx2 s[12:13], s[0:1], 72
    s_load_dwordx2 s[14:15], s[0:1], 88
    v_lshrrev_b32 v{vt}, 6, v0
    v_lshrrev_b32 v{vt+1}, 2, v0
    v_readfirstlane_b32 s{sw}, v{vt}
    v_and_b32 v{vt+2}, 3, v0
    v_lshlrev_b32 v{vt+3}, 7, v{vt+1}
    v_lshl_add_u32 v{vt+3}, v{vt+2}, 4, v{vt+3}
    s_lshl_b32 s{st0}, s2, 14
    s_add_u32 s{st0}, s{st0}, {REC_OFF}
    v_and_b32 v{vt}, 63, v0
    v_lshlrev_b32 v{vt+5}, 3, v{vt}
    v_mov_b32 v{Z}, 0
    v_mov_b32 v{Z+1}, 0
    ds_write_b64 v{vt+5}, {vr(Z,2)} offset:{CNT}
    s_and_b32 s{sg}, s{sw}, 3
    s_lshr_b32 s{sfh}, s{sw}, 2
    v_lshlrev_b32 v{vA2}, 4, v{vt}
    s_mov_b32 s{st1}, 8192
    s_waitcnt lgkmcnt(0)
    s_cmp_lg_u32 s{sfh}, 0
    s_cbranch_scc1 K2_NOREC
    """)
    srd(a, sREC, 14, f"s{st0}", 16384)
    for u in range(2):
        for r in range(2):
            a(f"buffer_load_dwordx4 {vr(REC+8*r+4*u,4)}, v{vt+3}, {sr(sREC,4)}, {'s%d' % st1 if u else '0'} offen offset:{64*r}")
    a(f"""
    K2_NOREC:
    s_mul_i32 s{st0}, s2, 625
    s_add_u32 s{cm40}, s{st0}, 625
    s_lshr_b32 s{st0}, s{st0}, 4
    s_lshr_b32 s{cm40}, s{cm40}, 4
    s_sub_u32 s{cm40}, s{cm40}, s{st0}
    s_lshl_b32 s{cm40}, s{cm40}, 8
    s_lshl_b32 s{st0}, s{st0}, 8
    """)
    srd(a, sX, 4, f"s{st0}", f"s{cm40}")
    srd(a, sO, 12, f"s{st0}", f"s{cm40}")
    srd(a, sWT, 14, WT_OFF, LUT_OFF - WT_OFF + 65536)
    a("s_barrier")
    stamp(a, 1)
    def ld_wc():
        a(f"""
        s_lshl_b32 s{st1}, s{sfh}, 11
        s_add_u32 s{st1}, s{st1}, 65536
        buffer_load_dwordx4 {vr(WC,4)}, v{vA2}, {sr(sWT,4)}, s{st1} offen
        buffer_load_dwordx4 {vr(WC+4,4)}, v{vA2}, {sr(sWT,4)}, s{st1} offen offset:1024
        """)
    def common1(Z, vl):
        a = Asm()
        a(f"s_lshl_b32 s{st0}, s{sfh}, 8\ns_add_u32 s{st0}, s{st0}, {T_OFF-128}")
        srd(a, sT, 14, f"s{st0}", 64, w3="0x800000", hi_or="0x40000")
        srd(a, sE, 6, None, E*32)
        a(f"""
        s_mov_b32 s{cm32}, {'0x7e0' if 'e' in OPT.get('nomem','') else '0x1fffe0' if 's' in OPT.get('nomem','') else '0xffffffe0'}
        s_mov_b32 s{c128}, 128
        s_mov_b32 s{cnl2e}, {NL2E:#x}
        s_mov_b32 s{cfc}, 0xfc
        s_mov_b32 s{cfe}, {OPT.get('cfe', '0xfffe')}
        s_mov_b32 s{csrc}, {TS}
        s_mov_b32 s{sslow}, 0
        s_mov_b32 s{sround}, 0
        s_mov_b32 s{sgb}, 0
        s_mul_i32 s{st0}, s{sfh}, 3
        s_xor_b32 s{srank}, s{sg}, s{st0}
        v_lshrrev_b32 v{Z+2}, 5, v{vl}
        v_and_b32 v{Z+3}, 31, v0
        v_lshlrev_b32 v{vH16}, 4, v{Z+2}
        v_lshlrev_b32 v{vH256}, 8, v{Z+2}
        v_cmp_eq_u32 vcc, 0, v{Z+2}
        v_mov_b32 v{vM15}, 0xffff
        v_mov_b32 v{Z+4}, -1
        v_cndmask_b32 v{vM15}, v{vM15}, v{Z+4}, vcc
        v_and_b32 v{Z+4}, 3, v0
        v_mov_b32 v{Z+6}, 0x3f80
        """)
        for i in range(4):
            a(f"v_cmp_eq_u32 vcc, {i}, v{Z+4}\ns_nop 1\nv_cndmask_b32 v{PA+i}, 0, v{Z+6}, vcc")
        den = bf(127*2.0**-116); tiny = bf(2.0**-100)
        a(f"""
        v_cmp_gt_u32 s[78:79], 16, v{Z+3}
        v_mov_b32 v{Z+5}, {den:#x}
        v_mov_b32 v{Z+7}, {tiny<<16:#x}
        v_cndmask_b32 v{Z+5}, v{Z+6}, v{Z+5}, s[78:79]
        v_cndmask_b32 v{Z+7}, 0, v{Z+7}, s[78:79]
        v_and_b32 v{Z+4}, 15, v0
        v_lshlrev_b32 v{Z+8}, 3, v{Z+2}
        v_sub_u32 v{Z+4}, v{Z+4}, v{Z+8}
        v_lshlrev_b32 v{Z+6}, 16, v{Z+5}
        """)
        for d in range(4):
            a(f"""
            v_cmp_eq_u32 vcc, {2*d}, v{Z+4}
            v_cmp_eq_u32 s[78:79], {2*d+1}, v{Z+4}
            s_nop 0
            v_cndmask_b32 v{SC+d}, 0, v{Z+5}, vcc
            v_cndmask_b32 v{Z+8}, 0, v{Z+6}, s[78:79]
            v_or_b32 v{SC+d}, v{SC+d}, v{Z+8}
            """)
        a(f"""
        v_and_b32 v{SC+3}, v{SC+3}, v{vM15}
        v_not_b32 v{Z+8}, v{vM15}
        v_and_b32 v{Z+8}, v{Z+8}, v{Z+7}
        v_or_b32 v{SC+3}, v{SC+3}, v{Z+8}
        """)
        return [x.strip() for x in a.l]
    def ld_xr(): return [f"buffer_load_dword v{XR+r}, v{vO}, {sr(sX,4)}, 0 offen offset:{256*rowoff(r)} " for r in range(6)]
    def arrive(k):
        a(f"""
        v_mov_b32 v{vt+6}, {FLG+4*k}
        v_mov_b32 v{vt+7}, 1
        s_mov_b64 exec, 1
        ds_add_u32 v{vt+6}, v{vt+7}
        s_mov_b64 exec, -1
        """)
    def spin(k, n, add=True):
        if add: arrive(k)
        else: a(f"v_mov_b32 v{vt+6}, {FLG+4*k}")
        a(f"""
        K2_SPIN{n}:
        ds_read_b32 v{vt+7}, v{vt+6}
        s_waitcnt lgkmcnt(0)
        v_cmp_gt_u32 vcc, 4, v{vt+7}
        s_cbranch_vccnz K2_SPIN{n}
        """)
    def caddr(k): return f"v_and_b32_sdwa v{CADDR+k}, s{cfc}, v{REC+k} {sd} src1_sel:BYTE_3"
    def pick(sel, cur):
        a(f"""
        s_bitcmp1_b32 s{sel}, 0
        s_cselect_b32 s{cur[0]}, s{cur[1]}, s{cur[0]}
        s_cselect_b32 s{cur[2]}, s{cur[3]}, s{cur[2]}
        s_bitcmp1_b32 s{sel}, 1
        s_cselect_b32 s{st0}, s{cur[2]}, s{cur[0]}
        s_and_b32 s{sg}, s{st0}, 3
        s_andn2_b32 s{st0}, s{st0}, 3
        s_mul_i32 s{sgb}, s{sg}, {CAPG*4}
        s_add_u32 s{scount}, s{st0}, 127
        s_lshr_b32 s{scount}, s{scount}, 7
        s_add_u32 s{stail}, s{st0}, 124
        s_bfe_u32 s{stail}, s{stail}, 0x20005
        s_lshl_b32 s{stail}, s{stail}, 1
        s_add_u32 s{stail}, s{stail}, 2
        """)
    def rank_groups():
        for g in range(1, 4): a(f"s_or_b32 s{sk+g}, s{sk+g}, {g}")
        cur = [sk, sk+1, sk+2, sk+3]; spare = sk+4
        for (i, j) in ((0, 1), (2, 3), (0, 2), (1, 3), (1, 2)):
            a(f"s_max_u32 s{spare}, s{cur[i]}, s{cur[j]}\ns_min_u32 s{cur[j]}, s{cur[i]}, s{cur[j]}")
            cur[i], spare = spare, cur[i]
        pick(srank, cur)
    def scan(fast, ks=()):
        x = SP
        a(f"""
        v_and_b32 v{vt}, 63, v0
        v_lshlrev_b32 v{vt+1}, 2, v{vt}
        ds_read_b32 v{x}, v{vt+1} offset:{CNT}
        v_lshrrev_b32 v{vt}, 4, v{vt}
        v_mul_u32_u24 v{vt}, {CAPG*4}, v{vt}
        v_and_b32 v{vt+2}, 31, v0
        v_lshlrev_b32 v{vt+2}, 2, v{vt+2}
        v_mov_b32 v{vt+4}, 0xfffffe
        s_waitcnt lgkmcnt(0)
        v_sub_u32 v{vt}, v{vt}, v{x}
        """)
        for d in ("row_shr:1", "row_shr:2", "row_shr:4", "row_shr:8"):
            a(f"v_add_u32_dpp v{x}, v{x}, v{x} {d} row_mask:0xf bank_mask:0xf bound_ctrl:0\ns_nop 1")
        a(f"""
        v_add_u32 v{vt}, v{vt}, v{x}
        v_cmp_lt_u32 vcc, {CAPG*4}, v{x}
        ds_write2st64_b32 v{vt+1}, v{vt}, v{x} offset0:{START//256} offset1:{INCL//256}
        """)
        for g in range(4): a(f"v_readlane_b32 s{sk+g}, v{x}, {16*g+15}")
        if fast:
            a("s_cbranch_vccnz K2_GIVEUP")
            for j, k in enumerate(ks): a(f"ds_read_b32 v{STV+j}, v{CADDR+k} offset:{START}")
            rank_groups()
        else:
            for g in range(1, 4): a(f"s_or_b32 s{sk+g}, s{sk+g}, {g}")
            pick(sg, [sk, sk+1, sk+2, sk+3])
        a(f"""
        s_add_u32 s{st0}, s{st0}, s{sgb}
        v_add_u32 v{vt+2}, s{st0}, v{vt+2}
        s_lshl_b32 s{st1}, s{scount}, 7
        s_add_u32 s{st1}, s{st1}, s{sgb}
        v_lshlrev_b32 v{vt+3}, 3, v{vt+2}
        v_and_b32 v{vt+3}, 128, v{vt+3}
        v_cmpx_gt_u32 vcc, s{st1}, v{vt+2}
        ds_write2st64_b32 v{vt+2}, v{vt+3}, v{vt+4} offset0:{L1//256} offset1:{L2//256}
        s_mov_b64 exec, -1
        """)
    def place(k, st, eo):
        a(f"""
        v_add_u32 v{st}, v{st}, v{RANK+k}
        v_bfe_u32 v{vt}, v{REC+k}, 16, {5 if 't' in OPT.get('nomem','') else 14}
        v_lshlrev_b32 v{vt+1}, 3, v{st}
        v_mad_u32_u16 v{vt+2}, v{REC+k}, 2, v{eo}
        v_and_b32 v{vt+1}, 128, v{vt+1}
        v_mad_u32_u24 v{vt}, v{vt}, s{csrc}, v{vt+1}
        ds_write2st64_b32 v{st}, v{vt}, v{vt+2} offset0:{L1//256} offset1:{L2//256}
        """)
    def lane_setup():
        a(f"""
        v_and_b32 v{vt}, 31, v0
        v_xor_b32 v{vA1}, 16, v{vH16}
        v_xor_b32 v{vA2}, 4, v{vt}
        v_lshlrev_b32 v{vA2}, 2, v{vA2}
        v_add_u32 v{vA1}, s{sgb}, v{vA1}
        v_add_u32 v{vA2}, s{sgb}, v{vA2}
        s_mul_i32 s{st0}, s{sg}, {GN*256}
        s_lshl_b32 s{st1}, s{sfh}, 7
        s_add_u32 s{st0}, s{st0}, s{st1}
        v_lshlrev_b32 v{vO}, 2, v{vt}
        v_lshl_add_u32 v{vO}, v{vH256}, 2, v{vO}
        v_add_u32 v{vO}, s{st0}, v{vO}
        v_bfe_u32 v{vA3}, v0, 1, 5
        v_lshlrev_b32 v{vA3}, 2, v{vA3}
        v_add_u32 v{vA3}, s{sgb}, v{vA3}
        v_lshlrev_b32 v{vP16}, 4, v0
        v_xor_b32 v{vP16}, v{vP16}, v0
        v_and_b32 v{vP16}, 16, v{vP16}
        v_lshlrev_b32 v{vHS}, 1, v0
        v_xor_b32 v{vHS}, v{vHS}, v{vH16}
        v_and_b32 v{vHS}, 16, v{vHS}
        v_add_u32 v{vHS}, {STG}, v{vHS}
        s_lshl_b32 s{st0}, s{sg}, 2
        s_add_u32 s{st0}, s{st0}, {PROG}
        v_mov_b32 v{vPG}, s{st0}
        s_lshl_b32 s{sm0}, s{sgb}, 3
        s_add_u32 s{sm0}, s{sm0}, {STG}
        s_mov_b32 s{sdma}, 0
        s_mov_b32 s{sneed}, 0
        s_mov_b32 s{slim}, s{scount}
        """)
    def rd_addr(off, j): return f"ds_read_b128 {vr(ADDR+4*j,4)}, v{vA1} offset:{L1+off+32*j}"
    def rd_l2(reg, off): return f"ds_read_b32 v{reg}, v{vA2} offset:{L2+off}"
    def ld_raw(p, b, r):
        pre = [f"v_and_b32 v{ADDR+r}, 0xffff80, v{ADDR+r}"] if OPT.get("safe") else []
        if OPT.get("noload"): return ["s_nop 0"]
        return pre + [f"buffer_load_dword v{raw(p,b)+r}, v{ADDR+r}, {sr(sT,4)}, 0 offen" + (" offset:128" if b else "")]
    def ld_blk(p, b): return sum((ld_raw(p, b, r) for r in range(16)), [])
    cur = {"r": "P"}
    def rd_l3(off): return [f"ds_read_b32 v{vEa}, v{vA3} offset:{L2+off}"] if cur["r"] == "P" else []
    lab = [0]
    def dma_ea(sl):
        if cur["r"] != "P": return []
        lab[0] += 1
        return [f"s_cmp_lt_u32 s{sdma}, s{slim}", f"s_cbranch_scc0 K2_ND{lab[0]}", "@D{",
                f"s_mov_b32 m0, s{sm0}", f"v_and_or_b32 v{vEa}, v{vEa}, s{cm32}, v{vP16}",
                f"buffer_load_dwordx4 v{vEa}, {sr(sE,4)}, 0 offen lds;wr={300+sl}", "@}", f"K2_ND{lab[0]}:",
                f"s_add_u32 s{sdma}, s{sdma}, 1", f"s_add_u32 s{sm0}, s{sm0}, 1024"]
    spins = []
    def rd_prog(): return [f"ds_read_b32 v{vEa}, v{vPG}"] if cur["r"] == "C" else []
    def get_ea(p, sl, off):
        o = [f"s_add_u32 s{sneed}, s{sneed}, 1"]
        if cur["r"] == "P":
            o += [f"v_mov_b32 v{vEa}, s{sneed};rd={300+sl}", f"ds_write_b32 v{vPG}, v{vEa}"]
        else:
            lab[0] += 1; n = lab[0]; spins.append(n)
            o += [f"v_cmp_gt_u32 vcc, s{sneed}, v{vEa}", f"s_cbranch_vccnz K2_SP{n}", f"K2_OK{n}:"]
        return o + [f"v_lshl_add_u32 v{vEa}, v{vA2}, 3, v{vHS}", f"ds_read_b128 {vr(EA+4*p,4)}, v{vEa} offset:{8*off}"]
    def oh_idx(p):
        return [f"v_and_b32 v{vOa}, 30, v{vOa}",
                f"v_lshl_add_u32 v{vOa}, v{vOa}, 3, v{vH256}",
                f"ds_read_b128 {vr(OH+4*p,4)}, v{vOa} offset:{OHL}"]
    big = "v_mfma_f32_32x32x16_bf16" if not OPT.get("nobig") else "; "
    de = OPT.get("drop", "")
    def mE(p, b): return "; " if "E" in de else f"{big} {vr(gb(p,b),16)}, {vr(EA+4*p,4)}, {vr(WC+4*b,4)}, 0"
    def mA(p, b): return "; " if "A" in de else f"{big} {vr(gb(p,b),16)}, {vr(OH+4*p,4)}, {vr(AP+4*b,4)}, {vr(gb(p,b),16)}"
    def mS(p): return "; " if "S" in de else f"{big} {vr(SP,16)}, {vr(OH+4*p,4)}, {vr(SC,4)}, 0"
    def mG(p, b, j): return "; " if ("G" in de or ("g" in de and j & 1)) else f"{big} {vr(ACC+16*b,16)}, {vr(SP+4*j,4)}, {vr(gb(p,b)+4*j,4)}, {vr(ACC+16*b,16)}"
    def mP(p, b):
        o = []
        for u in range(2):
            for j in range(4):
                g = vr(gb(p,b)+4*j, 4)
                o.append(f"v_mfma_f32_4x4x4_16b_bf16 {g}, {vr(PA+2*u,2)}, {vr(raw(p,b)+4*j+2*u,2)}, {g}")
        return o
    def idx_pair(p, b, i):
        g0, g1 = gb(p,b)+2*i, gb(p,b)+2*i+1
        if i < NTB[b]:
            return [f"v_exp_f32 v{g0}, v{g0}", f"v_exp_f32 v{g1}, v{g1}", f"v_add_f32 v{g0}, 1.0, v{g0}",
                    f"v_add_f32 v{g1}, 1.0, v{g1}", f"v_rcp_f32 v{g0}, v{g0}", f"v_rcp_f32 v{g1}, v{g1}"], []
        return [f"v_cvt_pkrtz_f16_f32 v{g0}, v{g0}, v{g1}",
                f"v_and_b32_sdwa v{g1}, s{cfe}, v{g0} {sd} src1_sel:WORD_1",
                f"v_and_b32_sdwa v{g0}, s{cfe}, v{g0} {sd} src1_sel:WORD_0"], \
               [f"ds_read_u16_d16_hi v{g1}, v{g1} offset:{LUTL}", f"ds_read_u16_d16_hi v{g0}, v{g0} offset:{LUTL}"]
    def fin_pair(p, b, i):
        g0, r0 = gb(p,b)+2*i, raw(p,b)+2*i
        mul = [f"v_pk_mul_f32 {vr(r0,2)}, {vr(g0,2)}, {vr(r0,2)}"] if OPT.get("pk") else [f"v_mul_f32 v{r0}, v{g0}, v{r0}", f"v_mul_f32 v{r0+1}, v{g0+1}, v{r0+1}"]
        return mul + [
                f"v_cvt_pk_bf16_f32 v{g0}, v{g0}, v{r0}", f"v_cvt_pk_bf16_f32 v{g0+1}, v{g0+1}, v{r0+1}"]
    def zipl(x, y):
        o = []
        for k in range(max(len(x), len(y))):
            if k < len(x): o.append(x[k])
            if k < len(y): o.append(y[k])
        return o
    uid = [0]
    def W(kind):
        uid[0] += 1
        return f"@W{kind} {uid[0]}"
    WE = int(OPT.get("we", "1"))
    def slot(p, b, kind, acc=True, np_=8, npg=8):
        q = 1-p
        nxt = (p, 1) if b == 0 else (q, 0)
        do_idx = b == 0 or kind != "L"
        gs = [[mG(q if b == 0 else p, 1-b, j)] for j in range(npg//2)] if acc else []
        bigs = gs[:2]
        if kind != "L": bigs += [[mE(q, b)], [mA(q, b)]]
        bigs += gs[2:]
        if b == 0: bigs += [[mS(p)]]
        smalls = mP(q, b) if kind != "L" else []
        out = []
        nb = 0
        for i in range(8):
            if i >= np_:
                out += sum(bigs[nb:], []); nb = len(bigs)
                break
            iv, il = idx_pair(*nxt, i) if do_idx else ([], [])
            fv = fin_pair(p, b, i)
            seq = zipl(iv, fv) + il
            if kind == "F":
                seq += ld_raw(p, b, 2*i) + ld_raw(p, b, 2*i+1)
                if b == 1 and i & 1: seq.append(rd_addr((3+p)*128, i >> 1))
                if b == 0 and i == 1: seq += rd_l3((3+p)*128)
                if b == 1 and i == 0: seq = dma_ea(q) + seq
                if b == 1 and i == 1: seq += rd_prog()
                if b == 1 and i == 6: seq += get_ea(p, p, (2+p)*128)
                if b == 0 and i == 5: seq.append(rd_l2(vOa, (2+p)*128))
                if b == 1 and i == 2: seq += oh_idx(p)
            pre = [W("l")] if i % WE == 0 else []
            if cur["r"] == "P" and kind != "L":
                if (b, i) == (0, 0): pre.append("s_setprio 2")
                if (b, i) == divmod(int(OPT.get("fair", "12")), 8): pre.append("s_setprio 0")
            if i < 6:
                take = 2 if (len(bigs) - nb) > (6 - i) else 1
                if nb < len(bigs): pre += bigs[nb]; nb += 1
                if take == 2 and nb < len(bigs):
                    seq = seq[:6] + bigs[nb] + seq[6:]; nb += 1
            if smalls and i >= 5:
                k0, k1 = {5: (0, 2), 6: (2, 6), 7: (6, 8)}[i]
                sm = smalls[k0:k1]
                if i == 5: seq = seq[:4] + [W("v")] + zipl(sm, seq[4:])
                else: seq = zipl(sm, seq)
            out += pre + seq
        assert nb == len(bigs)
        return out
    def last(p, np_):
        n = f"{p}{cur['r']}{np_}"
        return ([f"K2_LAST{n}:"] + ld_xr() + slot(p, 0, "L", np_=np_) + ["s_nop 11"]*(np_ < 6) + slot(p, 1, "L", np_=np_, npg=np_)
                + ["s_nop 1"] + [mG(p, 1, j) for j in range(np_//2)])
    def body(p, kind):
        q = 1-p; n = f"{kind}{p}{cur['r']}"
        o0 = [f"K2_BODY{n}:"] + slot(p, 0, kind)
        o1 = [f"K2_MID{n}:"] + (ld_xr() if kind == "L" else []) + slot(p, 1, kind)
        if OPT.get("prof") == "7": o1 += ["s_mov_b32 m0, s98", "s_add_u32 s98, s98, 1", f"v_writelane_b32 v{UR+5}, s86, m0", "s_memrealtime s[86:87]"]
        if kind == "P":
            for np_ in (2, 4, 6): o1 += [f"s_cmp_eq_u32 s{stail}, {np_}", f"s_cbranch_scc1 K2_LAST{q}{cur['r']}{np_}"]
        if kind == "F":
            if p == 1: o1 += [f"v_add_u32 v{r_}, 256, v{r_}" for r_ in ((vA1, vA2, vA3) if cur["r"] == "P" else (vA1, vA2))]
            o1 += [f"s_sub_u32 s{scount}, s{scount}, 1", f"s_cmp_eq_u32 s{scount}, 2", f"s_cbranch_scc1 K2_BODYP{q}{cur['r']}"]
        return o0, o1
    def entry(kind):
        more = kind != "L"
        o = rd_prog() + [W("v"), W("l")] + get_ea(0, 0, 0)
        if more: o += rd_prog()
        o += [W("l"), "@STAMP", mE(0, 0), mA(0, 0), mE(0, 1), mA(0, 1), "s_nop 7", W("v")] + mP(0, 0) + ["s_nop 3"]
        for i in range(8):
            v_, l_ = idx_pair(0, 0, i)
            o += [W("l")] + ([v_[0], v_[1], "s_nop 0"] + v_[2:] if i < NTB[0] else v_) + l_
            if more:
                for r_ in range(4*(i & 3), 4*(i & 3)+4): o += ld_raw(1, i >> 2, r_)
                if i >= 4: o.append(rd_addr(256, i-4))
                if i == 4: o += [W("v")] + get_ea(1, 1, 128) + rd_l3(256)
                if i == 7: o += dma_ea(0)
            if i == 3: o += [W("v")] + mP(0, 1)
        return o + slot(0, 0, kind, acc=False) + [f"s_branch K2_MID{kind}0{cur['r']}"]
    def drain(p): return ["s_nop 1"] + [mG(p, 1, j) for j in range(4)]
    def mk_fill():
        ad = [rd_addr(0, j) for j in range(4)]
        t0 = SP
        o = []
        if cur["r"] == "P":
            o = (rd_l3(0) + [f"ds_read_b32 v{t0}, v{vA3} offset:{L2+128}"])
        o += ad + [rd_l2(vOa, 0), rd_l2(t0+1, 128)]
        if cur["r"] == "P":
            o += ["s_waitcnt lgkmcnt(6)"] + dma_ea(0) + [f"v_mov_b32 v{vEa}, v{t0}"]
        d1 = dma_ea(1)
        late1 = OPT.get("d1", "1") == "1"
        o += ([] if late1 else d1) + ["s_waitcnt lgkmcnt(0)"] + ld_blk(0, 0) + oh_idx(0) + [f"v_mov_b32 v{vOa}, v{t0+1}"] + oh_idx(1) + ld_blk(0, 1) + (d1 if late1 else [])
        return o + [rd_addr(128, j) for j in range(4)]
    FI, B, EN, LA_ = {}, {}, {}, {}
    for r in "PC":
        cur["r"] = r
        FI[r] = mk_fill()
        for k in "FPL":
            EN[r, k] = entry(k)
            for p in range(2): B[r, p, k] = body(p, k)
        for p in range(2):
            for np_ in (2, 4, 6, 8): LA_[r, p, np_] = last(p, np_)
    def trace(r, cnt, np_=8):
        kinds = ["F"]*(cnt-2) + ["P", "L"][-min(cnt, 2):]
        tr = FI[r] + EN[r, kinds[0]] + B[r, 0, kinds[0]][1]
        for t in range(1, cnt-1): tr += B[r, t & 1, kinds[t]][0] + B[r, t & 1, kinds[t]][1]
        tr += drain(0) if cnt == 1 else LA_[r, (cnt-1) & 1, np_]
        o = []; keep = True; nd = 0
        for x in tr:
            if x == "@D{": keep = nd < cnt; nd += 1
            elif x == "@}": keep = True
            elif keep and x != "@STAMP": o.append(x)
        return o
    epi_head = ["s_branch x", "s_cmp", "s_cbranch", "s_waitcnt vmcnt(0) lgkmcnt(0)"] + [f"v_add_f32 v{ACC+r_}, 0, v{ACC+r_}" for r_ in range(6)]
    cases = [(r, c, n_) for c in range(1, 9) for r in "PC" for n_ in (2, 4, 6, 8)]
    need = asmsim.solve_waits([trace(*c) for c in cases])
    for c in cases: asmsim.check_hazards(asmsim.apply_waits(trace(*c), need) + epi_head, f"case {c}")
    def emit(l):
        for x in asmsim.apply_waits(l, need):
            if x == "@STAMP":
                stamp(a, 5); stamp(a, 5, "3"); stamp(a, 7, "4")
                if OPT.get("prof") == "7": a("s_memrealtime s[86:87]\ns_mov_b32 s98, 1")
                if OPT.get("prof") == "3": a(f"s_memtime s[86:87]\ns_mov_b32 s90, s{scount}\ns_getreg_b32 s92, hwreg(HW_REG_HW_ID)")
            elif x[0] != "@": a(x.split(";")[0])
    def main_loop(r):
        a(f"""
        K2_GO{r}:
        s_cmp_eq_u32 s{scount}, 0
        s_cbranch_scc1 K2_EMPTY
        s_cmp_gt_u32 s{scount}, 2
        s_cbranch_scc1 K2_ENTF{r}
        s_cmp_eq_u32 s{scount}, 2
        s_cbranch_scc1 K2_ENTP{r}
        """)
        emit(EN[r, "L"]); a(f"K2_ENTP{r}:"); emit(EN[r, "P"]); a(f"K2_ENTF{r}:"); emit(EN[r, "F"])
        a(".p2align 6")
        for p in range(2): emit(B[r, p, "F"][0] + B[r, p, "F"][1])
        a(f"s_branch K2_BODYF0{r}")
        emit(B[r, 0, "L"][1] + drain(0)); a("s_branch K2_DONE")
        for p in range(2):
            for np_ in (2, 4, 6): emit(LA_[r, p, np_]); a("s_branch K2_DONE")
        for p in range(2):
            emit(B[r, p, "P"][0] + B[r, p, "P"][1] + LA_[r, 1-p, 8])
            if p == 0 or r == "P": a("s_branch K2_DONE")
    def fill(n):
        a(f"s_cmp_eq_u32 s{scount}, 0\ns_cbranch_scc1 K2_FILLED{n}")
        emit(FI[n])
        a(f"K2_FILLED{n}:")
    def ap_addr():
        a(f"""
        v_bfe_u32 v{vt}, v0, 2, 2
        v_lshrrev_b32 v{vt+1}, 1, v{vH16}
        v_add_u32 v{vt}, v{vt}, v{vt+1}
        v_mul_u32_u24 v{vt}, {ROWP}, v{vt}
        v_bfe_u32 v{vt+2}, v0, 4, 1
        v_lshl_add_u32 v{vt}, v{vt+2}, 5, v{vt}
        v_and_b32 v{vt+2}, 3, v0
        v_lshl_add_u32 v{vt}, v{vt+2}, 3, v{vt}
        s_mul_i32 s{st0}, s{sg}, {GN*ROWP}
        s_lshl_b32 s{st1}, s{sfh}, 7
        s_add_u32 s{st0}, s{st0}, s{st1}
        v_add_u32 v{vt}, s{st0}, v{vt}
        v_mul_u32_u24 v{vt+1}, {ROWP//2}, v{vt+1}
        v_and_b32 v{vt+2}, 31, v0
        v_lshl_add_u32 v{vt+1}, v{vt+2}, 2, v{vt+1}
        v_add_u32 v{vt+1}, s{st0}, v{vt+1}
        """)
    def ap_read():
        a(f"""
        ds_read_b64_tr_b16 {vr(AP,2)}, v{vt} offset:{APL}
        ds_read_b64_tr_b16 {vr(AP+2,2)}, v{vt} offset:{APL+4*ROWP}
        ds_read_b64_tr_b16 {vr(AP+4,2)}, v{vt} offset:{APL+64}
        ds_read_b64_tr_b16 {vr(AP+6,2)}, v{vt} offset:{APL+4*ROWP+64}
        """)
        for r in range(6): a(f"ds_read_b32 v{UR+r}, v{vt+1} offset:{UL+ROWP*rowoff(r)}")
        a(f"""
        s_waitcnt lgkmcnt(6)
        v_and_b32 v{AP+3}, v{AP+3}, v{vM15}
        v_and_b32 v{AP+7}, v{AP+7}, v{vM15}
        """)
    def init_addr():
        for r in range(16): a(f"v_mov_b32 v{ADDR+r}, 128")
    def zero_acc():
        for r in range(32): a(f"v_mov_b32 v{ACC+r}, 0")

    a(f"s_cmp_lg_u32 s{sfh}, 0\ns_cbranch_scc1 K2_LOADER")
    ld_wc()
    a.ext(common1(SP, vt))
    a(f"v_and_b32 v{vt+3}, 15, v0\nv_lshlrev_b32 v{vt+3}, 4, v{vt+3}\nv_bfe_u32 v{vt+4}, v0, 4, 2\nv_lshl_add_u32 v{vt+3}, v{vt+4}, 10, v{vt+3}\ns_lshl_b32 s{st0}, s{sg}, 8\nv_add_u32 v{vt+3}, s{st0}, v{vt+3}")
    a(f"v_add_u32 v{vt+4}, 40960, v{vt+3}")
    for val, rg, runs in ((0x3f003f00, EA, (0, 3, 32, 35)), (0, EA+4, (23, 27)), (0x3f803f80, OH, (51, 55, 59))):
        for j in range(4): a(f"v_mov_b32 v{rg+j}, {val:#x}")
        for c0 in runs:
            a(f"ds_write_b128 v{vt+4 if c0 >= 24 else vt+3}, {vr(rg,4)} offset:{LUTL + 1024*(c0 - (40 if c0 >= 24 else 0))}")
    a(f"""
    v_and_b32 v{vt+3}, 127, v0
    v_bfe_u32 v{vt+4}, v0, 2, 4
    v_and_b32 v{Z+4}, 3, v0
    v_lshrrev_b32 v{Z+5}, 6, v{vt+3}
    v_lshlrev_b32 v{vt+3}, 2, v{vt+3}
    v_lshl_add_u32 v{Z+4}, v{Z+5}, 2, v{Z+4}
    v_lshlrev_b32 v{Z+5}, 1, v{Z+4}
    v_mov_b32 v{Z+6}, 0x3f80
    v_mov_b32 v{Z+7}, 0x3f800000
    v_cmp_eq_u32 vcc, v{Z+5}, v{vt+4}
    v_add_u32 v{Z+5}, 1, v{Z+5}
    s_nop 0
    v_cndmask_b32 v{Z+8}, 0, v{Z+6}, vcc
    v_cmp_eq_u32 vcc, v{Z+5}, v{vt+4}
    v_cmp_eq_u32 s[78:79], 7, v{Z+4}
    s_or_b64 vcc, vcc, s[78:79]
    s_nop 1
    v_cndmask_b32 v{Z+9}, 0, v{Z+7}, vcc
    v_or_b32 v{Z+8}, v{Z+8}, v{Z+9}
    v_cmp_gt_u32 vcc, 15, v{vt+4}
    s_nop 1
    v_cndmask_b32 v{Z+8}, 0, v{Z+8}, vcc
    ds_write_b32 v{vt+3}, v{Z+8} offset:{OHL}
    """)
    a(f"""
    v_mul_u32_u24 v{EOFF}, {CS*32}, v{vt+1}
    v_add_u32 v{EOFF+1}, {64*CS*32}, v{EOFF}
    v_mov_b32 v{vt+3}, 4
    """)
    init_addr()
    a("s_waitcnt vmcnt(2)")
    stamp(a, 2); stamp(a, 1, "5")
    a(f"""
    v_cmp_eq_u32 vcc, -2, v{REC+11}
    v_cmp_eq_u32 s[78:79], -2, v{REC+15}
    s_or_b64 vcc, vcc, s[78:79]
    s_cbranch_vccz K2_NOOVF
    v_mov_b32 v{vt+4}, 0x10000
    v_mov_b32 v{vt}, 60
    ds_add_u32 v{vt}, v{vt+4} offset:{CNT}
    K2_NOOVF:
    """)
    M = [68, 70, 72, 74, 76, 78]
    KS = [[4*u+i for i in range(4)] + [8+4*u, 9+4*u] for u in range(2)]
    def masked(u, fn):
        for j, k in enumerate(KS[u]): a(f"v_cmp_gt_u32 {sr(M[j],2)}, -2, v{REC+k}")
        for j, k in enumerate(KS[u]): a(f"s_mov_b64 exec, {sr(M[j],2)}\n{fn(k, 6*u+j)}")
        a("s_mov_b64 exec, -1")
    for k in KS[0] + KS[1]: a(caddr(k))
    for u in range(2): masked(u, lambda k, j: f"ds_add_rtn_u32 v{RANK+k}, v{CADDR+k}, v{vt+3} offset:{CNT}")
    a(f"v_min_u32 v{vt+4}, v{REC+10}, v{REC+14}\nv_cmp_gt_u32 s[26:27], -2, v{vt+4}")
    LA, LB = raw(0, 0), raw(0, 1)
    for u in range(2):
        for j, k in enumerate(KS[u]):
            a(f"v_bfe_u32 v{LA+6*u+j}, v{REC+k}, 16, {5 if 't' in OPT.get('nomem','') else 14}\nv_mad_u32_u16 v{LB+6*u+j}, v{REC+k}, 2, v{EOFF+u}")
    for j in range(12): a(f"v_mul_u32_u24 v{LA+j}, s{csrc}, v{LA+j}")
    def steps(tag, fn):
        a(f"s_cmp_eq_u64 s[26:27], 0\ns_cbranch_scc1 K2_{tag}1\ns_waitcnt lgkmcnt(0)")
        for u in range(2):
            for k in (10+4*u, 11+4*u):
                a(f"v_cmpx_gt_u32 vcc, -2, v{REC+k}\ns_cbranch_execz K2_{tag}{u}")
                fn(k, u)
            a(f"K2_{tag}{u}:\ns_mov_b64 exec, -1")
    steps("C", lambda k, u: a(f"{caddr(k)}\nds_add_rtn_u32 v{RANK+k}, v{CADDR+k}, v{vt+3} offset:{CNT}"))
    stamp(a, 2, "5")
    spin(0, "A")
    stamp(a, 3, "5")
    scan(True, KS[0] + KS[1])
    a("s_waitcnt lgkmcnt(1)")
    stamp(a, 4, "5")
    for j, k in enumerate(KS[0] + KS[1]): a(f"v_add_u32 v{STV+j}, v{STV+j}, v{RANK+k}")
    for j, k in enumerate(KS[0] + KS[1]): a(f"v_lshlrev_b32 v{RANK+k}, 3, v{STV+j}")
    for j, k in enumerate(KS[0] + KS[1]): a(f"v_and_or_b32 v{LA+j}, v{RANK+k}, s{c128}, v{LA+j}")
    for u in range(2): masked(u, lambda k, j: f"ds_write2st64_b32 v{STV+j}, v{LA+j}, v{LB+j} offset0:{L1//256} offset1:{L2//256}")
    def put_step(k, u):
        a(f"ds_read_b32 v{STV+12}, v{CADDR+k} offset:{START}\ns_waitcnt lgkmcnt(0)")
        place(k, STV+12, EOFF+u)
    steps("P", put_step)
    stamp(a, 5, "5")
    lane_setup()
    stamp(a, 6, "5")
    spin(1, "B")
    stamp(a, 3); stamp(a, 7, "5")
    a("K2_REFILLP:")
    fill("P")
    stamp(a, 4)
    a(f"s_cmp_lg_u32 s{sslow}, 0\ns_cbranch_scc1 K2_GOP")
    zero_acc()
    ap_addr()
    spin(3, "D", add=False)
    ap_read()
    main_loop("P")
    a("K2_GIVEUP:")
    zero_acc()
    arrive(1)
    spin(3, "E", add=False)
    a("s_branch K2_SLOW")
    assert XL % 256 == 0
    XF = G; WT = [ACC, raw(0, 0)]
    accs = [[[raw(1,0)+8*nb, raw(1,0)+8*nb+4] for nb in range(3)], [[raw(1,1)+8, raw(1,1)+12], [SP, SP+4], [SP+8, ADDR]]]
    a(f"""
    K2_LOADER:
    v_lshrrev_b32 v{vt+4}, 4, v{vt}
    s_lshl_b32 s{st1}, s{sg}, 2
    v_add_u32 v{vA1}, s{st1}, v{vt+4}
    v_and_b32 v{vt+5}, 15, v0
    v_xor_b32 v{vA1}, v{vA1}, v{vt+5}
    v_lshlrev_b32 v{vA1}, 4, v{vA1}
    v_lshl_add_u32 v{vA1}, v{vt+4}, 8, v{vA1}
    s_lshl_b32 s{st1}, s{sg}, 10
    """)
    for k in range(3):
        a(f"""
        s_add_u32 m0, s{st1}, {XL+4096*k}
        s_add_u32 s{st2}, s{st1}, {4096*k}
        buffer_load_dwordx4 v{vA1}, {sr(sX,4)}, s{st2} offen lds
        """)
    stamp(a, 1, "6")
    srot = sk
    a(f"s_lshl_b32 s{slut}, s{sg}, 13\ns_lshr_b32 s{srt}, s2, 3")
    for j in range(4):
        a(f"s_add_u32 s{srot+j}, s{srt}, {j}\ns_and_b32 s{srot+j}, s{srot+j}, 3\ns_lshl_b32 s{srot+j}, s{srot+j}, 10\ns_add_u32 s{st2}, s{slut}, s{srot+j}")
        for m in range(2):
            for hf in range(2):
                a(f"buffer_load_dwordx4 {vr(WT[m]+16*hf+4*j,4)}, v{vA2}, {sr(sWT,4)}, s{st2} offen")
                if (m, hf) != (1, 1): a(f"s_add_u32 s{st2}, s{st2}, {4096 if hf == 0 else 32768-4096}")
    stamp(a, 2, "6")
    a(f"""
    s_lshl_b32 s{st0}, s{sg}, 12
    s_add_u32 m0, s{st0}, {LUTL + 7*1024}
    s_add_u32 s{st2}, s{st0}, {LUT_OFF - WT_OFF + 7*1024}
    """)
    for j in range(4): a(f"buffer_load_dwordx4 v{vA2}, {sr(sWT,4)}, s{st2} offen offset:{1024*j} lds")
    a(f"""
    s_mul_i32 s{st0}, s{sg}, 3072
    s_add_u32 m0, s{st0}, {LUTL + 39*1024}
    s_add_u32 s{st2}, s{st0}, {LUT_OFF - WT_OFF + 39*1024}
    """)
    for j in range(3): a(f"buffer_load_dwordx4 v{vA2}, {sr(sWT,4)}, s{st2} offen offset:{1024*j} lds")
    a(f"""
    s_and_b32 s{st0}, s{sg}, 1
    s_lshl_b32 s{st0}, s{st0}, 15
    s_add_u32 m0, s{st0}, {LUTL + 31*1024}
    s_add_u32 s{st2}, s{st0}, {LUT_OFF - WT_OFF + 31*1024}
    buffer_load_dwordx4 v{vA2}, {sr(sWT,4)}, s{st2} offen lds
    """)
    ld_wc()
    stamp(a, 3, "6")
    a(f"""
    s_waitcnt vmcnt(26)
    """)
    arrive(2)
    a(f"""
    v_mov_b32 v{vt+8}, v{vt}
    v_and_b32 v{vt}, 15, v0
    v_bfe_u32 v{vt+1}, v0, 4, 2
    v_xor_b32 v{vt+2}, v{vt}, v{vt+1}
    v_lshlrev_b32 v{vt+2}, 4, v{vt+2}
    v_lshl_add_u32 v{vt+2}, v{vt}, 8, v{vt+2}
    v_add_u32 v{vt+2}, {XL}, v{vt+2}
    v_mul_u32_u24 v{vt}, {ROWP}, v{vt}
    """)
    stamp(a, 2); stamp(a, 5, "6")
    spin(2, "C", add=False)
    stamp(a, 6, "6")
    for s in range(4):
        a(f"s_lshr_b32 s{st0}, s{srot+s}, 4\nv_xor_b32 v{vt+3}, s{st0}, v{vt+2}")
        for nb in range(3):
            a(f"ds_read_b128 {vr(XF+16*nb+4*s,4)}, v{vt+3} offset:{4096*nb}")
    a(f"""
    s_lshr_b32 s{st0}, s{sg}, 1
    s_lshl_b32 s{st0}, s{st0}, 7
    s_and_b32 s{st1}, s{sg}, 1
    s_lshl_b32 s{st1}, s{st1}, 5
    s_add_u32 s{st0}, s{st0}, s{st1}
    v_lshl_add_u32 v{vt+4}, v{vt+1}, 3, v{vt}
    v_add_u32 v{vt+4}, s{st0}, v{vt+4}
    s_lshl_b32 s{st0}, s{sg}, 6
    v_lshl_add_u32 v{vt+5}, v{vt+1}, 4, v{vt}
    v_add_u32 v{vt+5}, s{st0}, v{vt+5}
    """)
    def mm1(m, s):
        return [f"v_mfma_f32_16x16x32_bf16 {vr(accs[m][nb][ab], 4)}, {vr(WT[m]+16*ab+4*s,4)}, {vr(XF+16*nb+4*s,4)}, {'0' if s == 0 else vr(accs[m][nb][ab], 4)}"
                for nb in range(3) for ab in range(2)]
    outA = []
    for nb in range(3):
        al, be = accs[0][nb]; o = EA+ (0 if nb != 1 else 4)
        for i in range(4): outA += [f"v_mul_f32 v{al+i}, s{cnl2e}, v{al+i}", f"v_mul_f32 v{be+i}, s{cnl2e}, v{be+i}"]
        outA += [f"v_cvt_pk_bf16_f32 v{o}, v{al}, v{al+2}", f"v_cvt_pk_bf16_f32 v{o+1}, v{be}, v{be+2}",
                 f"v_cvt_pk_bf16_f32 v{o+2}, v{al+1}, v{al+3}", f"v_cvt_pk_bf16_f32 v{o+3}, v{be+1}, v{be+3}",
                 f"ds_write_b64 v{vt+4}, {vr(o,2)} offset:{APL+16*ROWP*nb}", f"ds_write_b64 v{vt+4}, {vr(o+2,2)} offset:{APL+16*ROWP*nb+64}"]
    NPF = int(OPT.get("tpf", "0"))
    if NPF:
        srd(a, sS, 14, T_OFF, N*TS)
        a(f"""
        s_bfe_u32 s{st0}, s2, 0x50003
        s_lshl_b32 s{st0}, s{st0}, 2
        s_add_u32 s{st0}, s{st0}, s{sg}
        s_lshl_b32 s{st0}, s{st0}, 13
        v_lshlrev_b32 v{vt+9}, 7, v{vt+8}
        """)
        for j in range(NPF):
            a(f"buffer_load_dword v{vt+10}, v{vt+9}, {sr(sS,4)}, s{st0} offen")
            if j+1 < NPF: a(f"s_add_u32 s{st0}, s{st0}, {1 << 20}")
    g = []; cm = common1(XR+1, vt+8); k = 0
    for s in range(4):
        g.append(f"s_waitcnt vmcnt({22-4*s+NPF}) lgkmcnt({9-3*s})")
        for x in mm1(0, s) + (mm1(1, s) if s < 3 else []):
            g.append(x); g += cm[k:k+3]; k += 3
    assert k >= len(cm)
    k = 0
    for j, x in enumerate(mm1(1, 3)):
        g.append(x)
        if j >= 2: g += outA[k:k+3]; k += 3
    g += outA[k:]
    for nb in range(3):
        al, be = accs[1][nb]; o = XF+4*nb
        g += [f"v_cvt_pk_bf16_f32 v{o}, v{al}, v{al+1}", f"v_cvt_pk_bf16_f32 v{o+1}, v{al+2}, v{al+3}",
              f"v_cvt_pk_bf16_f32 v{o+2}, v{be}, v{be+1}", f"v_cvt_pk_bf16_f32 v{o+3}, v{be+2}, v{be+3}",
              f"ds_write_b128 v{vt+5}, {vr(o,4)} offset:{UL+16*ROWP*nb}"]
    asmsim.check_hazards(g, "gemm")
    a.ext(g)
    a(f"s_waitcnt vmcnt({NPF})")
    arrive(3)
    stamp(a, 3); stamp(a, 7, "6")
    zero_acc()
    init_addr()
    spin(1, "F", add=False)
    a(f"""
    v_mov_b32 v{vt+2}, {INCL+60}
    ds_read2_b32 {vr(vt+4,2)}, v{vt+2} offset0:0 offset1:16
    ds_read2_b32 {vr(vt+6,2)}, v{vt+2} offset0:32 offset1:48
    s_waitcnt lgkmcnt(0)
    """)
    for g_ in range(4): a(f"v_readfirstlane_b32 s{sk+g_}, v{vt+4+g_}")
    a(f"""
    s_max_u32 s{st0}, s{sk}, s{sk+1}
    s_max_u32 s{st1}, s{sk+2}, s{sk+3}
    s_max_u32 s{st0}, s{st0}, s{st1}
    s_cmp_gt_u32 s{st0}, {CAPG*4}
    s_cbranch_scc1 K2_SLOW
    """)
    a("s_setprio 1")
    rank_groups()
    lane_setup()
    a("K2_REFILLC:")
    fill("C")
    a(f"s_cmp_lg_u32 s{sslow}, 0\ns_cbranch_scc1 K2_GOC")
    ap_addr()
    spin(3, "G", add=False)
    ap_read()
    stamp(a, 4)
    a("s_branch K2_GOC")
    a("K2_EMPTY:"); a.ext(ld_xr()); a("s_branch K2_DONE")
    for n in spins:
        a(f"""
        K2_SP{n}:
        ds_read_b32 v{vEa}, v{vPG}
        s_waitcnt lgkmcnt(0)
        v_cmp_gt_u32 vcc, s{sneed}, v{vEa}
        s_cbranch_vccnz K2_SP{n}
        s_branch K2_OK{n}
        """)
    main_loop("C")
    a(f"""
    K2_DONE:
    s_cmp_lg_u32 s{sslow}, 0
    s_cbranch_scc1 K2_ROUND
    K2_EPI:
    s_waitcnt vmcnt(0) lgkmcnt(0)
    """)
    stamp(a, 6); stamp(a, 6, "3")
    if OPT.get("prof") == "3": a("s_memtime s[88:89]")
    T0 = G
    for b in range(2):
        for r in range(6):
            a(f"v_add_f32 v{ACC+16*b+r}, 0x358637bd, v{ACC+16*b+r}")
        for r in range(6):
            a(f"v_rcp_f32 v{ACC+16*b+r}, v{ACC+16*b+r}")
        for r in range(6):
            u, x = T0+12*b+r, T0+12*b+6+r
            if b == 0: a(f"v_lshlrev_b32 v{u}, 16, v{UR+r}\nv_lshlrev_b32 v{x}, 16, v{XR+r}")
            else: a(f"v_and_b32 v{u}, 0xffff0000, v{UR+r}\nv_and_b32 v{x}, 0xffff0000, v{XR+r}")
        for r in range(6):
            u, x = T0+12*b+r, T0+12*b+6+r
            a(f"v_fmac_f32 v{u}, v{ACC+16*b+8+r}, v{ACC+16*b+r}\nv_max_f32 v{u}, 0, v{u}\nv_add_f32 v{u}, v{u}, v{x}")
    a(f"v_lshl_or_b32 v{vO2}, v{vH16}, 27, v{vO}")
    for r in range(6):
        a(f"v_cvt_pk_bf16_f32 v{SP+r}, v{T0+r}, v{T0+12+r}")
        a(f"buffer_store_dword v{SP+r}, v{vO if r < 4 else vO2}, {sr(sO,4)}, 0 offen offset:{256*rowoff(r)} {OPT.get('st_o', '')}")
    stamp(a, 7)
    stamp_out(a, 1, 14, sw, 2)
    a("K2_END:\ns_endpgm")

    a("K2_SLOW:")
    srd(a, sS, 8, None, E*4)
    srd(a, sD, 10, None, E*4)
    a(f"""
    s_mov_b32 s{sslow}, 1
    s_mov_b32 s{cm10}, {-GN}
    """)
    a("s_waitcnt vmcnt(0) lgkmcnt(0)\ns_barrier")
    lane_setup(); ap_addr(); ap_read()
    a(f"""
    K2_ROUND:
    s_cmp_ge_u32 s{sround}, {E//RND}
    s_cbranch_scc1 K2_EPI
    s_mul_i32 s{st0}, s{sround}, {RND}
    s_add_u32 s{sround}, s{sround}, 1
    v_add_u32 v{EOFF}, s{st0}, v0
    v_lshlrev_b32 v{vt}, 2, v{EOFF}
    buffer_load_dword v{REC}, v{vt}, {sr(sD,4)}, 0 offen
    buffer_load_dword v{REC+1}, v{vt}, {sr(sS,4)}, 0 offen
    v_lshlrev_b32 v{EOFF}, 5, v{EOFF}
    v_and_b32 v{vt}, 63, v0
    v_lshlrev_b32 v{vt}, 3, v{vt}
    v_mov_b32 v{vt+4}, 0
    v_mov_b32 v{vt+5}, 0
    s_waitcnt lgkmcnt(0)
    s_barrier
    ds_write_b64 v{vt}, {vr(vt+4,2)} offset:{CNT}
    v_mov_b32 v{vt+3}, 4
    s_waitcnt vmcnt(0) lgkmcnt(0)
    s_barrier
    """)
    rec_fields(a, REC, REC+2, vt, cm40, cm10)
    a(f"""
    v_cmp_eq_u32 vcc, s2, v{REC+2}
    v_lshl_or_b32 v{REC}, v{REC+1}, 16, v{REC}
    {caddr(0)}
    s_mov_b64 s[78:79], vcc
    v_cmp_gt_u32 vcc, {RND}, v0
    s_and_b64 s[78:79], s[78:79], vcc
    s_mov_b64 exec, s[78:79]
    ds_add_rtn_u32 v{RANK}, v{CADDR}, v{vt+3} offset:{CNT}
    s_mov_b64 exec, -1
    s_waitcnt lgkmcnt(0)
    s_barrier
    """)
    scan(False)
    a(f"""
    s_mov_b64 exec, s[78:79]
    ds_read_b32 v{STV}, v{CADDR} offset:{START}
    s_waitcnt lgkmcnt(0)
    """)
    place(0, STV, EOFF)
    a(f"""
    s_mov_b64 exec, -1
    """)
    lane_setup()
    a(f"""
    s_waitcnt lgkmcnt(0)
    s_barrier
    s_cmp_eq_u32 s{sfh}, 0
    s_cbranch_scc1 K2_REFILLP
    s_branch K2_REFILLC
    K2_CODE_END:
    """)
    return a.text(), kd("k2_kernel", 256, 102)

KE_PROF = f"""
    s_memrealtime s[8:9]
    s_load_dwordx2 s[4:5], s[0:1], 88
    s_waitcnt lgkmcnt(0)
    s_add_u32 s4, s4, {PROF_OFF + 0x200000}
    s_addc_u32 s5, s5, 0
    s_mov_b32 s6, 4
    s_mov_b32 s7, 0x20000
    v_mov_b32 v1, s8
    v_lshlrev_b32 v0, 2, v0
    buffer_store_dword v1, v0, s[4:7], 0 offen
"""
def gen_kr():
    a = Asm()
    a(f"""
    kr_kernel:
    s_cmp_ge_u32 s2, 1
    s_cbranch_scc1 KR_END
    s_load_dwordx4 s[4:7], s[0:1], 80
    s_waitcnt lgkmcnt(0)
    s_add_u32 s8, s6, {PROF_OFF}
    s_addc_u32 s9, s7, 0
    s_mov_b32 s10, 0x200000
    s_mov_b32 s11, 0x20000
    s_mov_b32 s6, 256
    s_mov_b32 s7, 0x20000
    v_cmp_gt_u32 vcc, 250, v0
    s_and_saveexec_b64 s[12:13], vcc
    v_lshlrev_b32 v1, 10, v0
    v_mov_b32 v3, 0
    """)
    sel = [(0, 16, 0, 1), (0, 16, 0, 0), (0, 16, 2, 0), (0, 16, 3, 0), (0, 16, 5, 0), (0, 16, 8, 0),
           (1, 8, 0, 1), (1, 8, 0, 0), (1, 8, 2, 0), (1, 8, 3, 0), (1, 8, 5, 1), (1, 8, 5, 0), (1, 8, 6, 1), (1, 8, 6, 0), (1, 8, 8, 0)]
    w0 = 0
    if OPT.get("krsel"):
        w0, st_, mn_ = [int(x) for x in OPT["krsel"].split(",")]
        sel = [(1, 4, 0, 1), (1, 4, st_, mn_)]
    for j, (kn, nw, st, mn) in enumerate(sel):
        a(f"s_mov_b32 s14, {kn*0x100000 + 64*w0}")
        for w in range(nw): a(f"buffer_load_dword v{10+w}, v1, s[8:11], s14 offen offset:{64*w+4*st}")
        a("s_waitcnt vmcnt(0)")
        if mn:
            for w in range(nw): a(f"v_not_b32 v{10+w}, v{10+w}")
        for w in range(1, nw): a(f"v_max_u32 v10, v10, v{10+w}")
        a(f"buffer_atomic_umax v10, v3, s[4:7], 0 offen offset:{4*j}\ns_waitcnt vmcnt(0)")
    if OPT.get("iv"):
        ja, jb, k = [int(x) for x in OPT["iv"].split(",")]
        a(f"""
        s_barrier
        buffer_load_dword v10, v3, s[4:7], 0 offen offset:{4*ja} sc0 sc1
        buffer_load_dword v11, v3, s[4:7], 0 offen offset:{4*jb} sc0 sc1
        s_waitcnt vmcnt(0)
        v_readfirstlane_b32 s16, v10
        v_readfirstlane_b32 s17, v11
        """)
        if sel[ja][3]: a("s_not_b32 s16, s16")
        if sel[jb][3]: a("s_not_b32 s17, s17")
        a(f"""
        s_sub_u32 s16, s16, s17
        s_min_u32 s16, s16, 10000
        s_mul_i32 s16, s16, {k}
        s_memrealtime s[18:19]
        s_waitcnt lgkmcnt(0)
        KR_SPIN:
        s_memrealtime s[20:21]
        s_waitcnt lgkmcnt(0)
        s_sub_u32 s20, s20, s18
        s_cmp_lt_u32 s20, s16
        s_cbranch_scc1 KR_SPIN
        """)
    a("KR_END:\ns_endpgm")
    return a.text()

def main():
    k1, d1 = gen_k1(); k2, d2 = gen_k2()
    ref = open("standalone__edge_featured_mpnn_gatedgcn__graph.s.ref").read().split("\n")
    out = "\n".join(ref[:13]) + "\n"
    for ch in OPT.get("list", "12"):
        if ch == "1": out += f"; @launch kernel=k1_kernel grid=({2*NCH},1,1) block=(1024,1,1) lds={K1_LDS}\n"
        if ch == "2": out += f"; @launch kernel=k2_kernel grid=({NBIN},1,1) block=(512,1,1) lds={K2_LDS}\n"
        if ch == "r": out += "; @launch kernel=kr_kernel grid=(1,1,1) block=(256,1,1) lds=0\n"
        if ch == "e": out += "; @launch kernel=ke_kernel grid=(1,1,1) block=(64,1,1) lds=0\n"
    out += '.amdgcn_target "amdgcn-amd-amdhsa--gfx950"\n.text\n'
    for n, k in (("k1_kernel", k1), ("k2_kernel", k2)):
        out += f".globl {n}\n.p2align 8\n.type {n},@function\n" + k
    if "e" in OPT.get("list", ""): out += ".globl ke_kernel\n.p2align 8\n.type ke_kernel,@function\nke_kernel:\n" + (KE_PROF if OPT.get("prof") else "") + "    s_endpgm\n"
    if "r" in OPT.get("list", ""): out += ".globl kr_kernel\n.p2align 8\n.type kr_kernel,@function\n" + gen_kr()
    out += '.section .rodata,"a"\n.p2align 6\n' + d1.lstrip("\n") + '.p2align 6\n' + d2.lstrip("\n")
    if "e" in OPT.get("list", ""): out += '.p2align 6\n' + kd("ke_kernel", 8, 16).lstrip("\n")
    if "r" in OPT.get("list", ""): out += '.p2align 6\n' + kd("kr_kernel", 32, 32).lstrip("\n")
    open(sys.argv[1], "w").write(out)

if __name__ == "__main__":
    main()
```

```python
import struct, sys
import asmsim

N = 10000; E = 320000
NCH = 128; CS = 2500
NBIN = 256; GN = 10
BINK, BINC, BINS = 53687, 52500, 21
assert all((625*b_ >> 4) <= d_ < (625*(b_+1) >> 4) for d_ in range(N) for b_ in [(d_*BINK + BINC) >> BINS])
CAP = 32
TS = int(([a for a in sys.argv if a.startswith('ts=')] or ['ts=512'])[0][3:])
T_OFF = 0x1000000
REC_OFF = 0x700000
WT_OFF = 0xB00000
LUT_OFF = 0xB20000
PROF_OFF = 0xF000000
NL2E = struct.unpack("<I", struct.pack("<f", -1.4426950408889634))[0]

def bf(x): return struct.unpack("<I", struct.pack("<f", x))[0] >> 16

OPT = dict(st_r="sc1", st_t="sc1")
for a in sys.argv[2:]:
    k, v = a.split("=", 1); OPT[k] = v

class Asm:
    def __init__(self): self.l = []
    def __call__(self, s):
        for x in s.strip("\n").split("\n"):
            x = x.strip()
            if not x: continue
            if x.startswith(";"): x = "s_nop 0"
            self.l.append(x if x.endswith(":") else "    " + x)
    def ext(self, lst):
        for x in lst: self(x)
    def text(self): return "\n".join(self.l) + "\n"

def stamp(a, i, lvl="1"):
    if OPT.get("prof") and (i in (0, 8) or OPT["prof"] == lvl): a(f"s_memrealtime s[{84+2*i}:{85+2*i}]")
def stamp_out(a, kern, wsreg, sw, vtmp):
    if not OPT.get("prof"): return
    a("s_waitcnt vmcnt(0)")
    stamp(a, 8)
    a(f"""
    s_lshl_b32 s4, s2, 4
    s_add_u32 s4, s4, s{sw}
    s_lshl_b32 s4, s4, 6
    s_add_u32 s4, s4, {PROF_OFF + kern*0x100000}
    s_add_u32 s4, s{wsreg}, s4
    s_addc_u32 s5, s{wsreg+1}, 0
    s_mov_b32 s6, 64
    s_mov_b32 s7, 0x20000
    s_waitcnt lgkmcnt(0)
    """)
    if kern == 1 and OPT["prof"] == "7":
        a(f"v_mov_b32 v{vtmp}, v251\nv_writelane_b32 v{vtmp}, s84, 0\ns_mov_b32 m0, s98\ns_add_u32 s98, s98, 1\nv_writelane_b32 v{vtmp}, s86, m0\ns_mov_b32 m0, s98\ns_nop 3\nv_writelane_b32 v{vtmp}, s100, m0\nv_writelane_b32 v{vtmp}, s98, 15")
    else:
        for i in range(9): a(f"v_writelane_b32 v{vtmp}, s{84+2*i}, {i}")
    a(f"""
    v_mbcnt_lo_u32_b32 v{vtmp+1}, -1, 0
    v_mbcnt_hi_u32_b32 v{vtmp+1}, -1, v{vtmp+1}
    v_lshlrev_b32 v{vtmp+1}, 2, v{vtmp+1}
    buffer_store_dword v{vtmp}, v{vtmp+1}, s[4:7], 0 offen
    """)

def vr(b, n): return f"v[{b}:{b+n-1}]"
def sr(b, n): return f"s[{b}:{b+n-1}]"

def srd(a, d, base, add=None, size=None, w3="0x20000", hi_or=None):
    if add is None:
        a(f"s_mov_b32 s{d}, s{base}\ns_mov_b32 s{d+1}, s{base+1}")
    else:
        a(f"s_add_u32 s{d}, s{base}, {add}\ns_addc_u32 s{d+1}, s{base+1}, 0")
    if hi_or: a(f"s_or_b32 s{d+1}, s{d+1}, {hi_or}")
    a(f"s_mov_b32 s{d+2}, {size}\ns_mov_b32 s{d+3}, {w3}")

def kd(name, vgpr, sgpr):
    return f"""
.amdhsa_kernel {name}
  .amdhsa_next_free_vgpr {vgpr}
  .amdhsa_next_free_sgpr {sgpr}
  .amdhsa_accum_offset {(vgpr+3)//4*4}
  .amdhsa_group_segment_fixed_size 0
  .amdhsa_kernarg_size 96
  .amdhsa_user_sgpr_count 2
  .amdhsa_user_sgpr_kernarg_segment_ptr 1
  .amdhsa_system_sgpr_workgroup_id_x 1
.end_amdhsa_kernel
"""

def rec_fields(a, vd, vbin, vtmp, sm40, sm10):
    a(f"""
    v_mul_u32_u24 v{vbin}, {BINK}, v{vd}
    v_add_u32 v{vbin}, {BINC}, v{vbin}
    v_lshrrev_b32 v{vbin}, {BINS}, v{vbin}
    v_mul_u32_u24 v{vtmp}, 625, v{vbin}
    v_lshrrev_b32 v{vtmp}, 4, v{vtmp}
    v_sub_u32 v{vd}, v{vd}, v{vtmp}
    v_mul_u32_u24 v{vtmp}, 26, v{vd}
    v_lshrrev_b32 v{vtmp}, 8, v{vtmp}
    v_mad_i32_i24 v{vd}, v{vtmp}, s{sm10}, v{vd}
    v_lshl_or_b32 v{vd}, v{vtmp}, 30, v{vd}
    """)

K1_CNT = 0; K1_STG = 1024; K1_W = 34816; K1_X = K1_W + 32768; K1_LDS = K1_X + 20480
def gen_k1():
    a = Asm()
    sS, sD, sW1, sW2, sX, sR, sT, sP = 24, 28, 32, 36, 40, 44, 48, 72
    sw, st0, st1, st2, snb, sfb, sch, shf = 52, 53, 54, 55, 56, 57, 58, 69
    c4096, c8192, cm40, cm10, cnl2e, csign, cmag, ctso, cp0 = 59, 60, 61, 62, 63, 64, 65, 66, 67
    vD, vS, vB, vSL, vt = 2, 5, 8, 11, 16
    vW, vX, vA, vg = 32, 96, 112, 40
    vTR, vXA, vST = 124+0, 0, 0
    PE = OPT.get("pe", "4")
    PL = 625 if PE in "34" else 313
    def W(m, ab, s): return vW + 32*m + 16*ab + 4*s
    a("k1_kernel:")
    a(f"s_cmp_ge_u32 s2, {2*NCH}\ns_cbranch_scc1 K1_END")
    stamp(a, 0)
    a(f"""
    s_load_dwordx16 s[4:19], s[0:1], 0
    s_load_dwordx2 s[20:21], s[0:1], 64
    s_load_dwordx2 s[22:23], s[0:1], 88
    v_lshrrev_b32 v2, 6, v0
    v_lshlrev_b32 v1, 2, v0
    v_readfirstlane_b32 s{sw}, v2
    s_mov_b32 s{c4096}, 4096
    s_mov_b32 s{c8192}, 8192
    s_sub_u32 s{sch}, s2, {NCH}
    s_and_b32 s{shf}, s2, 1
    v_and_b32 v{vg}, 63, v0
    v_lshrrev_b32 v{vg+1}, 4, v{vg}
    v_and_b32 v{vg+2}, 15, v0
    s_and_b32 s{st0}, s{sw}, 3
    s_lshl_b32 s{st0}, s{st0}, 2
    v_add_u32 v{vg+3}, s{st0}, v{vg+1}
    v_xor_b32 v{vg+3}, v{vg+3}, v{vg+2}
    v_lshlrev_b32 v{vg+3}, 4, v{vg+3}
    v_lshl_add_u32 v{vg+3}, v{vg+1}, 8, v{vg+3}
    v_lshrrev_b32 v{vg+4}, 3, v{vg}
    v_lshlrev_b32 v{vg+5}, 1, v{vg+4}
    v_and_b32 v{vg+5}, 4, v{vg+5}
    v_and_b32 v{vg+6}, 7, v0
    v_xor_b32 v{vg+5}, v{vg+5}, v{vg+6}
    v_lshlrev_b32 v{vg+5}, 4, v{vg+5}
    v_lshl_add_u32 v{vg+4}, v{vg+4}, 8, v{vg+5}
    s_mul_i32 s{st1}, s{sch}, {CS*4}
    s_lshr_b32 s{st0}, s2, 1
    s_mul_i32 s{ctso}, s{st0}, {80*TS}
    s_mul_i32 s{st0}, s{st0}, 20480
    s_cmp_lt_u32 s2, 250
    s_cselect_b32 s{st0}, s{st0}, 0
    s_cselect_b32 s{st2}, 20480, 0
    s_waitcnt lgkmcnt(0)
    s_cselect_b64 {sr(sW1,2)}, s[14:15], s[12:13]
    s_cselect_b64 {sr(sW2,2)}, s[20:21], s[18:19]
    s_cmp_lt_u32 s2, {NCH}
    s_cbranch_scc1 K1_NOIDX
    """)
    srd(a, sD, 10, f"s{st1}", CS*4)
    srd(a, sS, 8, f"s{st1}", CS*4)
    for r, so in enumerate(("0", f"s{c4096}", f"s{c8192}")):
        a(f"buffer_load_dword v{vD+r}, v1, {sr(sD,4)}, {so} offen")
        a(f"buffer_load_dword v{vS+r}, v1, {sr(sS,4)}, {so} offen")
    a(f"""
    s_barrier
    K1_NOIDX:
    s_add_u32 s{sX}, s4, s{st0}
    s_addc_u32 s{sX+1}, s5, 0
    s_mov_b32 s{sX+2}, s{st2}
    s_mov_b32 s{sX+3}, 0x20000
    s_mov_b32 s{sW1+2}, 32768
    s_mov_b32 s{sW1+3}, 0x20000
    s_mov_b32 s{sW2+2}, 32768
    s_mov_b32 s{sW2+3}, 0x20000
    s_lshl_b32 s{shf+1}, s{shf}, 7
    """)
    def dma_x(n):
        a(f"s_lshl_b32 s{st1}, s{n}, 10\ns_add_u32 m0, s{st1}, {K1_X}\ns_nop 0\nbuffer_load_dwordx4 v{vg+3}, {sr(sX,4)}, s{st1} offen lds")
    def dma_w(n):
        a(f"""
        s_lshl_b32 s{st0}, s{n}, 10
        s_add_u32 m0, s{st0}, {K1_W}
        s_lshl_b32 s{st1}, s{n}, 11
        s_add_u32 s{st1}, s{st1}, s{shf+1}
        buffer_load_dwordx4 v{vg+4}, {sr(sW1,4)}, s{st1} offen lds
        s_add_u32 m0, s{st0}, {K1_W+16384}
        s_nop 0
        buffer_load_dwordx4 v{vg+4}, {sr(sW2,4)}, s{st1} offen lds
        """)
    if PE == "4":
        a(f"""
        s_cmp_lt_u32 s2, {NCH}
        s_cbranch_scc0 K1_DUTY16
        s_cmp_lt_u32 s{sw}, 8
        s_cbranch_scc0 K1_DUTYDONE
        """)
        dma_x(sw)
        a(f"s_add_u32 s{st2}, s{sw}, 8"); dma_x(st2)
        a(f"s_cmp_lt_u32 s{sw}, 4\ns_cbranch_scc0 K1_X0\ns_add_u32 s{st2}, s{sw}, 16"); dma_x(st2)
        a(f"K1_X0:\ns_lshr_b32 s{st2}, s2, 3\ns_add_u32 s{st2}, s{st2}, s{sw}\ns_and_b32 s{st2}, s{st2}, 15"); dma_w(st2)
        a(f"s_xor_b32 s{st2}, s{st2}, 8"); dma_w(st2)
        a("s_branch K1_DUTYDONE\nK1_DUTY16:")
    dma_x(sw)
    a(f"s_cmp_lt_u32 s{sw}, 4\ns_cbranch_scc0 K1_X1\ns_add_u32 s{st2}, s{sw}, 16"); dma_x(st2)
    a(f"K1_X1:\ns_lshr_b32 s{st2}, s2, 3\ns_add_u32 s{st2}, s{st2}, s{sw}\ns_and_b32 s{st2}, s{st2}, 15"); dma_w(st2)
    a(f"""
    K1_DUTYDONE:
    s_mul_i32 s{st0}, s2, {PL*128}
    s_min_u32 s{st0}, s{st0}, {E*32}
    s_sub_u32 s{st1}, {E*32}, s{st0}
    s_min_u32 s{st1}, s{st1}, {PL*128}
    """)
    def prefetch_e():
        a(f"v_lshlrev_b32 v30, 7, v0\nbuffer_load_dword v31, v30, {sr(sP,4)}, 0 offen")
    srd(a, sP, 6, f"s{st0}", f"s{st1}")
    if PE == "1": prefetch_e()
    NB = 3 + (PE == "1")
    a(f"""
    s_and_b32 s{sfb}, s{sw}, 1
    s_lshr_b32 s{snb}, s{sw}, 1
    v_bfe_u32 v{vg+5}, v0, 2, 2
    v_and_b32 v{vg+6}, 3, v0
    s_lshl_b32 s{st0}, s{sfb}, 2
    v_add_u32 v{vg+6}, s{st0}, v{vg+6}
    v_lshlrev_b32 v{vg+7}, 1, v{vg+5}
    v_and_b32 v{vg+7}, 4, v{vg+7}
    v_xor_b32 v{vg+6}, v{vg+6}, v{vg+7}
    v_lshl_add_u32 v{vg+5}, v{vg+1}, 3, v{vg+5}
    v_lshlrev_b32 v{vg+5}, 7, v{vg+5}
    v_lshl_add_u32 v28, v{vg+6}, 4, v{vg+5}
    v_xor_b32 v29, v{vg+1}, v{vg+2}
    v_lshlrev_b32 v29, 4, v29
    v_lshl_add_u32 v29, v{vg+2}, 8, v29
    s_lshl_b32 s{st0}, s{snb}, 12
    s_add_u32 s{st0}, s{st0}, {K1_X}
    v_add_u32 v29, s{st0}, v29
    v_mul_u32_u24 v27, {TS}, v{vg+2}
    v_lshl_add_u32 v27, v{vg+1}, 4, v27
    s_add_u32 s{st0}, s{ctso}, {T_OFF}
    """)
    a(f"""
    s_mul_i32 s{ctso}, s{snb}, {16*TS}
    s_lshl_b32 s{st1}, s{shf}, 8
    s_add_u32 s{ctso}, s{ctso}, s{st1}
    s_lshl_b32 s{st1}, s{sfb}, 6
    s_add_u32 s{ctso}, s{ctso}, s{st1}
    s_mov_b32 s{cnl2e}, {NL2E:#x}
    s_mov_b32 s{csign}, 0x00800000
    s_mov_b32 s{cmag}, 0x7fffffff
    s_mov_b32 s{cp0}, 0x07060100
    s_mov_b32 s{cp0+1}, 0x07060302
    """)
    srd(a, sT, 22, f"s{st0}", 80*TS)
    stamp(a, 1)
    a(f"s_cmp_lt_u32 s2, {NCH}\ns_cbranch_scc1 K1_NOBIN")
    a(f"""
    v_mov_b32 v{vt}, -1
    v_mov_b32 v{vt+1}, -1
    v_mov_b32 v{vt+2}, -1
    v_mov_b32 v{vt+3}, -1
    v_lshlrev_b32 v{vt+4}, 4, v0
    v_mov_b32 v{vt+5}, 0
    v_and_b32 v{vt+6}, 0x3fc, v1
    ds_write_b128 v{vt+4}, {vr(vt,4)} offset:{K1_STG}
    ds_write_b128 v{vt+4}, {vr(vt,4)} offset:{K1_STG+16384}
    ds_write_b32 v{vt+6}, v{vt+5} offset:{K1_CNT}
    s_lshl_b32 s{st0}, s{sch}, 7
    s_add_u32 s{st0}, s{st0}, {REC_OFF}
    """)
    srd(a, sR, 22, f"s{st0}", NBIN*NCH*128)
    a(f"s_lshl_b32 s{st0}, s{sch}, 9\ns_add_u32 s{st1}, s{st0}, {LUT_OFF}")
    srd(a, sW1, 22, f"s{st1}", 512)
    a(f"""
    v_add_u32 v40, s{st0}, v1
    v_and_b32 v41, 0x7fff, v40
    v_cmp_ne_u32 vcc, 0x7c00, v41
    v_or_b32 v41, 3, v40
    s_nop 0
    v_addc_co_u32 v40, vcc, 0, v40, vcc
    v_cvt_f32_f16 v41, v41
    v_cvt_f32_f16 v40, v40
    v_exp_f32 v41, v41
    v_exp_f32 v40, v40
    v_add_f32 v41, 1.0, v41
    v_add_f32 v40, 1.0, v40
    v_rcp_f32 v41, v41
    v_rcp_f32 v40, v40
    s_nop 0
    v_cvt_pk_bf16_f32 v40, v40, v41
    s_mov_b32 s{cm10}, {-GN}
    v_mov_b32 v{vt+5}, 1
    v_cmp_gt_u32 vcc, {CS-2048}, v0
    s_mov_b64 s[80:81], vcc
    v_lshrrev_b32 v{vt+7}, 3, v0
    v_and_b32 v{vt+8}, 7, v0
    v_lshlrev_b32 v{vt+9}, 14, v{vt+7}
    v_lshl_add_u32 v{vt+9}, v{vt+8}, 4, v{vt+9}
    v_lshlrev_b32 v{vt+7}, 2, v{vt+7}
    v_cmp_eq_u32 s[82:83], 7, v{vt+8}
    s_mov_b32 s{st2}, {128*16384}
    s_waitcnt lgkmcnt(0)
    s_barrier
    """)
    for r in range(3):
        a(f"s_waitcnt vmcnt({4-2*r + NB})")
        if r == 0: stamp(a, 2)
        rec_fields(a, vD+r, vB+r, vt, cm40, cm10)
        a(f"v_lshlrev_b32 v{vt}, 2, v{vB+r}")
        if r == 2: a("s_mov_b64 exec, s[80:81]")
        a(f"ds_add_rtn_u32 v{vSL+r}, v{vt}, v{vt+5} offset:{K1_CNT}")
        if r == 2: a("s_mov_b64 exec, -1")
        a(f"""
        v_lshl_or_b32 v{vD+r}, v{vS+r}, 16, v{vD+r}
        v_add_u32 v{vS+r}, {1024*r}, v0
        v_lshl_or_b32 v{vD+r}, v{vS+r}, 4, v{vD+r}
        v_lshlrev_b32 v{vB+r}, 7, v{vB+r}
        """)
    for r in range(3):
        a("s_waitcnt lgkmcnt(2)")
        if r == 2: a("s_mov_b64 exec, s[80:81]")
        a(f"""
        v_and_b32 v{vt}, 12, v{vSL+r}
        v_add_u32 v{vB+r}, v{vB+r}, v{vt}
        v_and_b32 v{vt}, 3, v{vSL+r}
        v_lshl_add_u32 v{vB+r}, v{vt}, 4, v{vB+r}
        v_and_b32 v{vt}, 16, v{vSL+r}
        v_lshl_add_u32 v{vB+r}, v{vt}, 2, v{vB+r}
        v_cmpx_gt_u32 vcc, {CAP}, v{vSL+r}
        ds_write_b32 v{vB+r}, v{vD+r} offset:{K1_STG}
        s_mov_b64 exec, -1
        """)
    a(f"""
    s_waitcnt vmcnt({int(PE == "1")}) lgkmcnt(0)
    s_barrier
    ds_read_b128 v[32:35], v{vt+4} offset:{K1_STG}
    ds_read_b32 v{vt}, v{vt+7} offset:{K1_CNT}
    ds_read_b128 v[36:39], v{vt+4} offset:{K1_STG+16384}
    ds_read_b32 v{vt+1}, v{vt+7} offset:{K1_CNT+512}
    v_mov_b32 v{vt+2}, -2
    buffer_store_dword v40, v1, {sr(sW1,4)}, 0 offen {OPT['st_r']}
    """)
    stamp(a, 3)
    for k in range(2):
        a(f"""
        s_waitcnt lgkmcnt({2-2*k})
        v_cmp_lt_u32 vcc, {CAP}, v{vt+k}
        s_and_b64 vcc, vcc, s[82:83]
        s_nop 1
        v_cndmask_b32 v{35+4*k}, v{35+4*k}, v{vt+2}, vcc
        buffer_store_dwordx4 {vr(32+4*k,4)}, v{vt+9}, {sr(sR,4)}, {'0' if k == 0 else f's{st2}'} offen {OPT['st_r']}
        """)
    a(f"""
    s_branch K1_STAGED
    K1_NOBIN:
    """)
    if PE == "4":
        a(f"""
        v_mov_b32 v2, 0
        ds_write_b32 v2, v2 offset:{K1_CNT}
        s_waitcnt lgkmcnt(0)
        s_barrier
        s_cmp_lt_u32 s{sw}, 10
        s_cbranch_scc1 K1_WAITX
        v_subrev_u32 v30, 640, v0
        v_lshlrev_b32 v30, 7, v30
        s_mov_b32 s{st0}, {384*128}
        buffer_load_dword v31, v30, {sr(sP,4)}, 0 offen
        buffer_load_dword v31, v30, {sr(sP,4)}, s{st0} offen
        s_endpgm
        K1_WAITX:
        v_mov_b32 v3, 1
        s_waitcnt vmcnt(0)
        s_mov_b64 exec, 1
        ds_add_u32 v2, v3 offset:{K1_CNT}
        s_mov_b64 exec, -1
        """)
        stamp(a, 2)
        a(f"""
        K1_SPIN:
        ds_read_b32 v3, v2 offset:{K1_CNT}
        s_waitcnt lgkmcnt(0)
        v_cmp_gt_u32 vcc, 10, v3
        s_cbranch_vccnz K1_SPIN
        """)
    else:
        a(f"s_waitcnt vmcnt({int(PE == '1')})")
        stamp(a, 2)
        a("s_barrier")
    stamp(a, 3)
    a(f"""
    K1_STAGED:
    s_cmp_ge_u32 s2, 252
    s_cbranch_scc1 K1_WC
    s_cmp_ge_u32 s{sw}, 10
    s_cbranch_scc1 K1_TAIL
    v_xor_b32 v24, 64, v29
    v_xor_b32 v25, 0x80, v29
    v_xor_b32 v26, 0xc0, v29
    """)
    for s in range(4): a(f"ds_read_b128 {vr(vX+4*s,4)}, v{[29,24,25,26][s]}")
    def trs(s):
        for m in range(2):
            for ab in range(2):
                for u in range(2):
                    a(f"ds_read_b64_tr_b16 {vr(W(m,ab,s)+2*u,2)}, v28 offset:{K1_W+m*16384+s*4096+u*512+ab*8}")
    def mm(s):
        for m in range(2):
            for ab in range(2):
                d = vr(vA+8*m+4*ab, 4)
                a(f"v_mfma_f32_16x16x32_bf16 {d}, {vr(W(m,ab,s),4)}, {vr(vX+4*s,4)}, {'0' if s == 0 else d}")
    trs(0); a("s_waitcnt lgkmcnt(6)")
    for s in range(1, 4):
        trs(s); a("s_waitcnt lgkmcnt(8)" if s < 3 else "s_waitcnt lgkmcnt(8)"); mm(s-1)
        if s < 3: a("s_waitcnt lgkmcnt(6)")
    a(f"s_waitcnt lgkmcnt(0)\ns_cmp_ge_u32 s2, 250\ns_cbranch_scc1 K1_WT")
    mm(3)
    stamp(a, 4)
    a("s_nop 7")
    for b in range(2):
        for ab in range(2):
            b0, b1 = vA+4*ab+b, vA+4*ab+2+b
            hs = [vA+8+4*ab+2*e_+b for e_ in range(2)]
            a(f"v_mul_f32 v{b0}, s{cnl2e}, v{b0}\nv_mul_f32 v{b1}, s{cnl2e}, v{b1}")
            for e_, h in enumerate(hs): a(f"v_max_f32 v{2+e_}, abs(v{h}), s{csign}\nv_bfi_b32 v{h}, s{cmag}, v{2+e_}, v{h}")
            a(f"v_cvt_pk_bf16_f32 v{b0}, v{b0}, v{b1}")
            for h in hs: a(f"v_add_u32 v{h}, 0x8000, v{h}")
            for e_, h in enumerate(hs): a(f"v_sub_u32_sdwa v{h}, v{h}, v{b0} dst_sel:DWORD dst_unused:UNUSED_PAD src0_sel:DWORD src1_sel:WORD_{e_}")
            for e_, h in enumerate(hs): a(f"v_perm_b32 v{4+4*b+2*ab+e_}, v{h}, v{b0}, s{cp0+e_}")
        a(f"buffer_store_dwordx4 {vr(4+4*b,4)}, v27, {sr(sT,4)}, s{ctso} offen offset:{128*b} {OPT['st_t']}")
    a("K1_TAIL:")
    stamp(a, 5)
    if PE in "23": prefetch_e()
    stamp(a, 6); stamp(a, 7)
    stamp_out(a, 0, 22, sw, 2)
    a("s_endpgm")
    a("K1_WT:")
    srd(a, sT, 22, WT_OFF, 65536)
    a(f"""
    s_cmp_ge_u32 s{sw}, 4
    s_cbranch_scc1 K1_END
    v_and_b32 v2, 63, v0
    v_lshlrev_b32 v2, 4, v2
    s_lshl_b32 s{st0}, s{snb}, 2
    s_lshl_b32 s{st1}, s{shf}, 1
    s_add_u32 s{st0}, s{st0}, s{st1}
    s_add_u32 s{st0}, s{st0}, s{sfb}
    s_lshl_b32 s{st0}, s{st0}, 13
    s_add_u32 s{st1}, s{st0}, 4096
    s_cmp_eq_u32 s{snb}, 0
    s_cbranch_scc0 K1_WU
    """)
    for m in range(2):
        for ab in range(2):
            for s in range(4):
                a(f"buffer_store_dwordx4 {vr(W(m,ab,s),4)}, v2, {sr(sT,4)}, s{st1 if ab else st0} offen offset:{1024*s} {OPT['st_t']}")
        a("s_endpgm")
        if m == 0: a("K1_WU:")
    a("K1_WC:")
    srd(a, sT, 22, WT_OFF+65536, 4096)
    srd(a, sW1, 16, None, 4096)
    a(f"""
    s_cmp_eq_u32 s2, 252
    s_cbranch_scc0 K1_END
    s_cmp_ge_u32 s{sw}, 4
    s_cbranch_scc1 K1_END
    v_and_b32 v2, 63, v0
    v_lshrrev_b32 v4, 5, v2
    v_and_b32 v5, 31, v0
    v_lshlrev_b32 v5, 2, v5
    v_lshl_add_u32 v5, v4, 11, v5
    v_lshlrev_b32 v3, 4, v2
    s_lshr_b32 s{st1}, s{sw}, 1
    s_lshl_b32 s{st1}, s{st1}, 7
    s_and_b32 s{st0}, s{sw}, 1
    s_lshl_b32 s{st0}, s{st0}, 1
    s_add_u32 s{st1}, s{st1}, s{st0}
    s_lshl_b32 s{st0}, s{sw}, 10
    """)
    for j in range(8):
        a(f"buffer_load_ushort v{44+j}, v5, {sr(sW1,4)}, s{st1} offen offset:{256*j}")
    a("s_waitcnt vmcnt(0)")
    for j in range(8):
        a(f"v_lshlrev_b32 v{44+j}, 16, v{44+j}\nv_mul_f32 v{44+j}, s{cnl2e}, v{44+j}")
    for j in range(4):
        a(f"v_cvt_pk_bf16_f32 v{52+j}, v{44+2*j}, v{45+2*j}")
    a(f"buffer_store_dwordx4 v[52:55], v3, {sr(sT,4)}, s{st0} offen {OPT['st_t']}")
    a("K1_END:\ns_endpgm")
    return a.text(), kd("k1_kernel", 128, 102)

CAPG = 416; RND = 400
CNT = 0; FLG = 256; START = 512; INCL = 768; OHL = 1024; L1 = 1536; L2 = L1 + 4*CAPG*4; APL = L2 + 4*CAPG*4
ROWP = 272
UL = APL + 48*ROWP; LUTL = UL + 48*ROWP; STG = (LUTL + 65536 + 255)//256*256; XL = STG + 3*CAPG*32 + 5*1024; K2_LDS = XL + 12288
PROG = FLG + 32
assert K2_LDS <= 163840 and K2_LDS >= STG + 4*CAPG*32 and LUTL <= 65535 and (4*CAPG*4) % 256 == 0

def gen_k2():
    a = Asm()
    sREC, sX, sWT, sT, sE, sO, sD, sS = 24, 28, 32, 36, 40, 44, 68, 72
    sw, sg, sfh, st0, st1, st2 = 48, 49, 50, 51, 52, 53
    scount, sslow, sround, slim, sgb, srt, slut, srank = 54, 55, 56, 57, 58, 59, 82, 83
    stail = 20
    sdma, sm0, sneed = 21, 22, 23
    cm32, c128, cnl2e, cfc, csrc, cm40, cm10, cfe = 60, 61, 62, 63, 64, 65, 66, 67
    sk = 16
    vH16, vA1, vA2, vEa, vOa, vO, vA3 = 1, 2, 3, 4, 5, 6, 7
    WC = 8; AP = 16; PA = 24; SC = 28; OH = 32; EA = 40; ADDR = 48; ACC = 64; SP = 96; G = 112; RAW = 176
    XR = 240; UR = 246; vP16 = 252; vH256 = 253; vHS = 254; vPG = 255; vM15 = XR; vO2 = SP+8
    raw = lambda p, b: RAW + 32*p + 16*b
    gb = lambda p, b: G + 32*p + 16*b
    vt = gb(1, 1); Z = SP; EOFF = SP+14
    REC = raw(1, 0); CADDR = REC+16; RANK = G; STV = G+16
    NTB = [int(c_) for c_ in OPT.get("nt", "11")]
    rowoff = lambda r: 8*(r >> 2) + (r & 3)
    sd = "dst_sel:DWORD dst_unused:UNUSED_PAD src0_sel:DWORD"

    a("k2_kernel:")
    a(f"s_cmp_ge_u32 s2, {NBIN}\ns_cbranch_scc1 K2_END")
    stamp(a, 0)
    a(f"""
    s_load_dwordx8 s[4:11], s[0:1], 0
    s_load_dwordx2 s[12:13], s[0:1], 72
    s_load_dwordx2 s[14:15], s[0:1], 88
    v_lshrrev_b32 v{vt}, 6, v0
    v_lshrrev_b32 v{vt+1}, 2, v0
    v_readfirstlane_b32 s{sw}, v{vt}
    v_and_b32 v{vt+2}, 3, v0
    v_lshlrev_b32 v{vt+3}, 7, v{vt+1}
    v_lshl_add_u32 v{vt+3}, v{vt+2}, 4, v{vt+3}
    s_lshl_b32 s{st0}, s2, 14
    s_add_u32 s{st0}, s{st0}, {REC_OFF}
    v_and_b32 v{vt}, 63, v0
    v_lshlrev_b32 v{vt+5}, 3, v{vt}
    v_mov_b32 v{Z}, 0
    v_mov_b32 v{Z+1}, 0
    ds_write_b64 v{vt+5}, {vr(Z,2)} offset:{CNT}
    s_and_b32 s{sg}, s{sw}, 3
    s_lshr_b32 s{sfh}, s{sw}, 2
    v_lshlrev_b32 v{vA2}, 4, v{vt}
    s_mov_b32 s{st1}, 8192
    s_waitcnt lgkmcnt(0)
    s_cmp_lg_u32 s{sfh}, 0
    s_cbranch_scc1 K2_NOREC
    """)
    srd(a, sREC, 14, f"s{st0}", 16384)
    for u in range(2):
        for r in range(2):
            a(f"buffer_load_dwordx4 {vr(REC+8*r+4*u,4)}, v{vt+3}, {sr(sREC,4)}, {'s%d' % st1 if u else '0'} offen offset:{64*r}")
    a(f"""
    K2_NOREC:
    s_mul_i32 s{st0}, s2, 625
    s_add_u32 s{cm40}, s{st0}, 625
    s_lshr_b32 s{st0}, s{st0}, 4
    s_lshr_b32 s{cm40}, s{cm40}, 4
    s_sub_u32 s{cm40}, s{cm40}, s{st0}
    s_lshl_b32 s{cm40}, s{cm40}, 8
    s_lshl_b32 s{st0}, s{st0}, 8
    """)
    srd(a, sX, 4, f"s{st0}", f"s{cm40}")
    srd(a, sO, 12, f"s{st0}", f"s{cm40}")
    srd(a, sWT, 14, WT_OFF, LUT_OFF - WT_OFF + 65536)
    a("s_barrier")
    stamp(a, 1)
    def ld_wc():
        a(f"""
        s_lshl_b32 s{st1}, s{sfh}, 11
        s_add_u32 s{st1}, s{st1}, 65536
        buffer_load_dwordx4 {vr(WC,4)}, v{vA2}, {sr(sWT,4)}, s{st1} offen
        buffer_load_dwordx4 {vr(WC+4,4)}, v{vA2}, {sr(sWT,4)}, s{st1} offen offset:1024
        """)
    def common1(Z, vl):
        a = Asm()
        a(f"s_lshl_b32 s{st0}, s{sfh}, 8\ns_add_u32 s{st0}, s{st0}, {T_OFF-128}")
        srd(a, sT, 14, f"s{st0}", 64, w3="0x800000", hi_or="0x40000")
        srd(a, sE, 6, None, E*32)
        a(f"""
        s_mov_b32 s{cm32}, {'0x7e0' if 'e' in OPT.get('nomem','') else '0x1fffe0' if 's' in OPT.get('nomem','') else '0xffffffe0'}
        s_mov_b32 s{c128}, 128
        s_mov_b32 s{cnl2e}, {NL2E:#x}
        s_mov_b32 s{cfc}, 0xfc
        s_mov_b32 s{cfe}, {OPT.get('cfe', '0xfffe')}
        s_mov_b32 s{csrc}, {TS}
        s_mov_b32 s{sslow}, 0
        s_mov_b32 s{sround}, 0
        s_mov_b32 s{sgb}, 0
        s_mul_i32 s{st0}, s{sfh}, 3
        s_xor_b32 s{srank}, s{sg}, s{st0}
        v_lshrrev_b32 v{Z+2}, 5, v{vl}
        v_and_b32 v{Z+3}, 31, v0
        v_lshlrev_b32 v{vH16}, 4, v{Z+2}
        v_lshlrev_b32 v{vH256}, 8, v{Z+2}
        v_cmp_eq_u32 vcc, 0, v{Z+2}
        v_mov_b32 v{vM15}, 0xffff
        v_mov_b32 v{Z+4}, -1
        v_cndmask_b32 v{vM15}, v{vM15}, v{Z+4}, vcc
        v_and_b32 v{Z+4}, 3, v0
        v_mov_b32 v{Z+6}, 0x3f80
        """)
        for i in range(4):
            a(f"v_cmp_eq_u32 vcc, {i}, v{Z+4}\ns_nop 1\nv_cndmask_b32 v{PA+i}, 0, v{Z+6}, vcc")
        den = bf(127*2.0**-116); tiny = bf(2.0**-100)
        a(f"""
        v_cmp_gt_u32 s[78:79], 16, v{Z+3}
        v_mov_b32 v{Z+5}, {den:#x}
        v_mov_b32 v{Z+7}, {tiny<<16:#x}
        v_cndmask_b32 v{Z+5}, v{Z+6}, v{Z+5}, s[78:79]
        v_cndmask_b32 v{Z+7}, 0, v{Z+7}, s[78:79]
        v_and_b32 v{Z+4}, 15, v0
        v_lshlrev_b32 v{Z+8}, 3, v{Z+2}
        v_sub_u32 v{Z+4}, v{Z+4}, v{Z+8}
        v_lshlrev_b32 v{Z+6}, 16, v{Z+5}
        """)
        for d in range(4):
            a(f"""
            v_cmp_eq_u32 vcc, {2*d}, v{Z+4}
            v_cmp_eq_u32 s[78:79], {2*d+1}, v{Z+4}
            s_nop 0
            v_cndmask_b32 v{SC+d}, 0, v{Z+5}, vcc
            v_cndmask_b32 v{Z+8}, 0, v{Z+6}, s[78:79]
            v_or_b32 v{SC+d}, v{SC+d}, v{Z+8}
            """)
        a(f"""
        v_and_b32 v{SC+3}, v{SC+3}, v{vM15}
        v_not_b32 v{Z+8}, v{vM15}
        v_and_b32 v{Z+8}, v{Z+8}, v{Z+7}
        v_or_b32 v{SC+3}, v{SC+3}, v{Z+8}
        """)
        return [x.strip() for x in a.l]
    def ld_xr(): return [f"buffer_load_dword v{XR+r}, v{vO}, {sr(sX,4)}, 0 offen offset:{256*rowoff(r)} " for r in range(6)]
    def arrive(k):
        a(f"""
        v_mov_b32 v{vt+6}, {FLG+4*k}
        v_mov_b32 v{vt+7}, 1
        s_mov_b64 exec, 1
        ds_add_u32 v{vt+6}, v{vt+7}
        s_mov_b64 exec, -1
        """)
    def spin(k, n, add=True):
        if add: arrive(k)
        else: a(f"v_mov_b32 v{vt+6}, {FLG+4*k}")
        a(f"""
        K2_SPIN{n}:
        ds_read_b32 v{vt+7}, v{vt+6}
        s_waitcnt lgkmcnt(0)
        v_cmp_gt_u32 vcc, 4, v{vt+7}
        s_cbranch_vccnz K2_SPIN{n}
        """)
    def caddr(k): return f"v_and_b32_sdwa v{CADDR+k}, s{cfc}, v{REC+k} {sd} src1_sel:BYTE_3"
    def pick(sel, cur):
        a(f"""
        s_bitcmp1_b32 s{sel}, 0
        s_cselect_b32 s{cur[0]}, s{cur[1]}, s{cur[0]}
        s_cselect_b32 s{cur[2]}, s{cur[3]}, s{cur[2]}
        s_bitcmp1_b32 s{sel}, 1
        s_cselect_b32 s{st0}, s{cur[2]}, s{cur[0]}
        s_and_b32 s{sg}, s{st0}, 3
        s_andn2_b32 s{st0}, s{st0}, 3
        s_mul_i32 s{sgb}, s{sg}, {CAPG*4}
        s_add_u32 s{scount}, s{st0}, 127
        s_lshr_b32 s{scount}, s{scount}, 7
        s_add_u32 s{stail}, s{st0}, 124
        s_bfe_u32 s{stail}, s{stail}, 0x20005
        s_lshl_b32 s{stail}, s{stail}, 1
        s_add_u32 s{stail}, s{stail}, 2
        """)
    def rank_groups():
        for g in range(1, 4): a(f"s_or_b32 s{sk+g}, s{sk+g}, {g}")
        cur = [sk, sk+1, sk+2, sk+3]; spare = sk+4
        for (i, j) in ((0, 1), (2, 3), (0, 2), (1, 3), (1, 2)):
            a(f"s_max_u32 s{spare}, s{cur[i]}, s{cur[j]}\ns_min_u32 s{cur[j]}, s{cur[i]}, s{cur[j]}")
            cur[i], spare = spare, cur[i]
        pick(srank, cur)
    def scan(fast, ks=()):
        x = SP
        a(f"""
        v_and_b32 v{vt}, 63, v0
        v_lshlrev_b32 v{vt+1}, 2, v{vt}
        ds_read_b32 v{x}, v{vt+1} offset:{CNT}
        v_lshrrev_b32 v{vt}, 4, v{vt}
        v_mul_u32_u24 v{vt}, {CAPG*4}, v{vt}
        v_and_b32 v{vt+2}, 31, v0
        v_lshlrev_b32 v{vt+2}, 2, v{vt+2}
        v_mov_b32 v{vt+4}, 0xfffffe
        s_waitcnt lgkmcnt(0)
        v_sub_u32 v{vt}, v{vt}, v{x}
        """)
        for d in ("row_shr:1", "row_shr:2", "row_shr:4", "row_shr:8"):
            a(f"v_add_u32_dpp v{x}, v{x}, v{x} {d} row_mask:0xf bank_mask:0xf bound_ctrl:0\ns_nop 1")
        a(f"""
        v_add_u32 v{vt}, v{vt}, v{x}
        v_cmp_lt_u32 vcc, {CAPG*4}, v{x}
        ds_write2st64_b32 v{vt+1}, v{vt}, v{x} offset0:{START//256} offset1:{INCL//256}
        """)
        for g in range(4): a(f"v_readlane_b32 s{sk+g}, v{x}, {16*g+15}")
        if fast:
            a("s_cbranch_vccnz K2_GIVEUP")
            for j, k in enumerate(ks): a(f"ds_read_b32 v{STV+j}, v{CADDR+k} offset:{START}")
            rank_groups()
        else:
            for g in range(1, 4): a(f"s_or_b32 s{sk+g}, s{sk+g}, {g}")
            pick(sg, [sk, sk+1, sk+2, sk+3])
        a(f"""
        s_add_u32 s{st0}, s{st0}, s{sgb}
        v_add_u32 v{vt+2}, s{st0}, v{vt+2}
        s_lshl_b32 s{st1}, s{scount}, 7
        s_add_u32 s{st1}, s{st1}, s{sgb}
        v_lshlrev_b32 v{vt+3}, 3, v{vt+2}
        v_and_b32 v{vt+3}, 128, v{vt+3}
        v_cmpx_gt_u32 vcc, s{st1}, v{vt+2}
        ds_write2st64_b32 v{vt+2}, v{vt+3}, v{vt+4} offset0:{L1//256} offset1:{L2//256}
        s_mov_b64 exec, -1
        """)
    def place(k, st, eo):
        a(f"""
        v_add_u32 v{st}, v{st}, v{RANK+k}
        v_bfe_u32 v{vt}, v{REC+k}, 16, {5 if 't' in OPT.get('nomem','') else 14}
        v_lshlrev_b32 v{vt+1}, 3, v{st}
        v_mad_u32_u16 v{vt+2}, v{REC+k}, 2, v{eo}
        v_and_b32 v{vt+1}, 128, v{vt+1}
        v_mad_u32_u24 v{vt}, v{vt}, s{csrc}, v{vt+1}
        ds_write2st64_b32 v{st}, v{vt}, v{vt+2} offset0:{L1//256} offset1:{L2//256}
        """)
    def lane_setup():
        a(f"""
        v_and_b32 v{vt}, 31, v0
        v_xor_b32 v{vA1}, 16, v{vH16}
        v_xor_b32 v{vA2}, 4, v{vt}
        v_lshlrev_b32 v{vA2}, 2, v{vA2}
        v_add_u32 v{vA1}, s{sgb}, v{vA1}
        v_add_u32 v{vA2}, s{sgb}, v{vA2}
        s_mul_i32 s{st0}, s{sg}, {GN*256}
        s_lshl_b32 s{st1}, s{sfh}, 7
        s_add_u32 s{st0}, s{st0}, s{st1}
        v_lshlrev_b32 v{vO}, 2, v{vt}
        v_lshl_add_u32 v{vO}, v{vH256}, 2, v{vO}
        v_add_u32 v{vO}, s{st0}, v{vO}
        v_bfe_u32 v{vA3}, v0, 1, 5
        v_lshlrev_b32 v{vA3}, 2, v{vA3}
        v_add_u32 v{vA3}, s{sgb}, v{vA3}
        v_lshlrev_b32 v{vP16}, 4, v0
        v_xor_b32 v{vP16}, v{vP16}, v0
        v_and_b32 v{vP16}, 16, v{vP16}
        v_lshlrev_b32 v{vHS}, 1, v0
        v_xor_b32 v{vHS}, v{vHS}, v{vH16}
        v_and_b32 v{vHS}, 16, v{vHS}
        v_add_u32 v{vHS}, {STG}, v{vHS}
        s_lshl_b32 s{st0}, s{sg}, 2
        s_add_u32 s{st0}, s{st0}, {PROG}
        v_mov_b32 v{vPG}, s{st0}
        s_lshl_b32 s{sm0}, s{sgb}, 3
        s_add_u32 s{sm0}, s{sm0}, {STG}
        s_mov_b32 s{sdma}, 0
        s_mov_b32 s{sneed}, 0
        s_mov_b32 s{slim}, s{scount}
        """)
    def rd_addr(off, j): return f"ds_read_b128 {vr(ADDR+4*j,4)}, v{vA1} offset:{L1+off+32*j}"
    def rd_l2(reg, off): return f"ds_read_b32 v{reg}, v{vA2} offset:{L2+off}"
    def ld_raw(p, b, r):
        pre = [f"v_and_b32 v{ADDR+r}, 0xffff80, v{ADDR+r}"] if OPT.get("safe") else []
        if OPT.get("noload"): return ["s_nop 0"]
        return pre + [f"buffer_load_dword v{raw(p,b)+r}, v{ADDR+r}, {sr(sT,4)}, 0 offen" + (" offset:128" if b else "")]
    def ld_blk(p, b): return sum((ld_raw(p, b, r) for r in range(16)), [])
    cur = {"r": "P"}
    def rd_l3(off): return [f"ds_read_b32 v{vEa}, v{vA3} offset:{L2+off}"] if cur["r"] == "P" else []
    lab = [0]
    def dma_ea(sl):
        if cur["r"] != "P": return []
        lab[0] += 1
        return [f"s_cmp_lt_u32 s{sdma}, s{slim}", f"s_cbranch_scc0 K2_ND{lab[0]}", "@D{",
                f"s_mov_b32 m0, s{sm0}", f"v_and_or_b32 v{vEa}, v{vEa}, s{cm32}, v{vP16}",
                f"buffer_load_dwordx4 v{vEa}, {sr(sE,4)}, 0 offen lds;wr={300+sl}", "@}", f"K2_ND{lab[0]}:",
                f"s_add_u32 s{sdma}, s{sdma}, 1", f"s_add_u32 s{sm0}, s{sm0}, 1024"]
    spins = []
    def rd_prog(): return [f"ds_read_b32 v{vEa}, v{vPG}"] if cur["r"] == "C" else []
    def get_ea(p, sl, off):
        o = [f"s_add_u32 s{sneed}, s{sneed}, 1"]
        if cur["r"] == "P":
            o += [f"v_mov_b32 v{vEa}, s{sneed};rd={300+sl}", f"ds_write_b32 v{vPG}, v{vEa}"]
        else:
            lab[0] += 1; n = lab[0]; spins.append(n)
            o += [f"v_cmp_gt_u32 vcc, s{sneed}, v{vEa}", f"s_cbranch_vccnz K2_SP{n}", f"K2_OK{n}:"]
        return o + [f"v_lshl_add_u32 v{vEa}, v{vA2}, 3, v{vHS}", f"ds_read_b128 {vr(EA+4*p,4)}, v{vEa} offset:{8*off}"]
    def oh_idx(p):
        return [f"v_and_b32 v{vOa}, 30, v{vOa}",
                f"v_lshl_add_u32 v{vOa}, v{vOa}, 3, v{vH256}",
                f"ds_read_b128 {vr(OH+4*p,4)}, v{vOa} offset:{OHL}"]
    big = "v_mfma_f32_32x32x16_bf16" if not OPT.get("nobig") else "; "
    de = OPT.get("drop", "")
    def mE(p, b): return "; " if "E" in de else f"{big} {vr(gb(p,b),16)}, {vr(EA+4*p,4)}, {vr(WC+4*b,4)}, 0"
    def mA(p, b): return "; " if "A" in de else f"{big} {vr(gb(p,b),16)}, {vr(OH+4*p,4)}, {vr(AP+4*b,4)}, {vr(gb(p,b),16)}"
    def mS(p): return "; " if "S" in de else f"{big} {vr(SP,16)}, {vr(OH+4*p,4)}, {vr(SC,4)}, 0"
    def mG(p, b, j): return "; " if ("G" in de or ("g" in de and j & 1)) else f"{big} {vr(ACC+16*b,16)}, {vr(SP+4*j,4)}, {vr(gb(p,b)+4*j,4)}, {vr(ACC+16*b,16)}"
    def mP(p, b):
        o = []
        for u in range(2):
            for j in range(4):
                g = vr(gb(p,b)+4*j, 4)
                o.append(f"v_mfma_f32_4x4x4_16b_bf16 {g}, {vr(PA+2*u,2)}, {vr(raw(p,b)+4*j+2*u,2)}, {g}")
        return o
    def idx_pair(p, b, i):
        g0, g1 = gb(p,b)+2*i, gb(p,b)+2*i+1
        if i < NTB[b]:
            return [f"v_exp_f32 v{g0}, v{g0}", f"v_exp_f32 v{g1}, v{g1}", f"v_add_f32 v{g0}, 1.0, v{g0}",
                    f"v_add_f32 v{g1}, 1.0, v{g1}", f"v_rcp_f32 v{g0}, v{g0}", f"v_rcp_f32 v{g1}, v{g1}"], []
        return [f"v_cvt_pkrtz_f16_f32 v{g0}, v{g0}, v{g1}",
                f"v_and_b32_sdwa v{g1}, s{cfe}, v{g0} {sd} src1_sel:WORD_1",
                f"v_and_b32_sdwa v{g0}, s{cfe}, v{g0} {sd} src1_sel:WORD_0"], \
               [f"ds_read_u16_d16_hi v{g1}, v{g1} offset:{LUTL}", f"ds_read_u16_d16_hi v{g0}, v{g0} offset:{LUTL}"]
    def fin_pair(p, b, i):
        g0, r0 = gb(p,b)+2*i, raw(p,b)+2*i
        mul = [f"v_pk_mul_f32 {vr(r0,2)}, {vr(g0,2)}, {vr(r0,2)}"] if OPT.get("pk") else [f"v_mul_f32 v{r0}, v{g0}, v{r0}", f"v_mul_f32 v{r0+1}, v{g0+1}, v{r0+1}"]
        return mul + [
                f"v_cvt_pk_bf16_f32 v{g0}, v{g0}, v{r0}", f"v_cvt_pk_bf16_f32 v{g0+1}, v{g0+1}, v{r0+1}"]
    def zipl(x, y):
        o = []
        for k in range(max(len(x), len(y))):
            if k < len(x): o.append(x[k])
            if k < len(y): o.append(y[k])
        return o
    uid = [0]
    def W(kind):
        uid[0] += 1
        return f"@W{kind} {uid[0]}"
    WE = int(OPT.get("we", "1"))
    def slot(p, b, kind, acc=True, np_=8, npg=8):
        q = 1-p
        nxt = (p, 1) if b == 0 else (q, 0)
        do_idx = b == 0 or kind != "L"
        gs = [[mG(q if b == 0 else p, 1-b, j)] for j in range(npg//2)] if acc else []
        bigs = gs[:2]
        if kind != "L": bigs += [[mE(q, b)], [mA(q, b)]]
        bigs += gs[2:]
        if b == 0: bigs += [[mS(p)]]
        smalls = mP(q, b) if kind != "L" else []
        out = []
        nb = 0
        for i in range(8):
            if i >= np_:
                out += sum(bigs[nb:], []); nb = len(bigs)
                break
            iv, il = idx_pair(*nxt, i) if do_idx else ([], [])
            fv = fin_pair(p, b, i)
            seq = zipl(iv, fv) + il
            if kind == "F":
                seq += ld_raw(p, b, 2*i) + ld_raw(p, b, 2*i+1)
                if b == 1 and i & 1: seq.append(rd_addr((3+p)*128, i >> 1))
                if b == 0 and i == 1: seq += rd_l3((3+p)*128)
                if b == 1 and i == 0: seq = dma_ea(q) + seq
                if b == 1 and i == 1: seq += rd_prog()
                if b == 1 and i == 6: seq += get_ea(p, p, (2+p)*128)
                if b == 0 and i == 5: seq.append(rd_l2(vOa, (2+p)*128))
                if b == 1 and i == 2: seq += oh_idx(p)
            pre = [W("l")] if i % WE == 0 else []
            if cur["r"] == "P" and kind != "L":
                if (b, i) == (0, 0): pre.append("s_setprio 2")
                if (b, i) == divmod(int(OPT.get("fair", "12")), 8): pre.append("s_setprio 0")
            if i < 6:
                take = 2 if (len(bigs) - nb) > (6 - i) else 1
                if nb < len(bigs): pre += bigs[nb]; nb += 1
                if take == 2 and nb < len(bigs):
                    seq = seq[:6] + bigs[nb] + seq[6:]; nb += 1
            if smalls and i >= 5:
                k0, k1 = {5: (0, 2), 6: (2, 6), 7: (6, 8)}[i]
                sm = smalls[k0:k1]
                if i == 5: seq = seq[:4] + [W("v")] + zipl(sm, seq[4:])
                else: seq = zipl(sm, seq)
            out += pre + seq
        assert nb == len(bigs)
        return out
    def last(p, np_):
        n = f"{p}{cur['r']}{np_}"
        return ([f"K2_LAST{n}:"] + ld_xr() + slot(p, 0, "L", np_=np_) + ["s_nop 11"]*(np_ < 6) + slot(p, 1, "L", np_=np_, npg=np_)
                + ["s_nop 1"] + [mG(p, 1, j) for j in range(np_//2)])
    def body(p, kind):
        q = 1-p; n = f"{kind}{p}{cur['r']}"
        o0 = [f"K2_BODY{n}:"] + slot(p, 0, kind)
        o1 = [f"K2_MID{n}:"] + (ld_xr() if kind == "L" else []) + slot(p, 1, kind)
        if OPT.get("prof") == "7": o1 += ["s_mov_b32 m0, s98", "s_add_u32 s98, s98, 1", f"v_writelane_b32 v{UR+5}, s86, m0", "s_memrealtime s[86:87]"]
        if kind == "P":
            for np_ in (2, 4, 6): o1 += [f"s_cmp_eq_u32 s{stail}, {np_}", f"s_cbranch_scc1 K2_LAST{q}{cur['r']}{np_}"]
        if kind == "F":
            if p == 1: o1 += [f"v_add_u32 v{r_}, 256, v{r_}" for r_ in ((vA1, vA2, vA3) if cur["r"] == "P" else (vA1, vA2))]
            o1 += [f"s_sub_u32 s{scount}, s{scount}, 1", f"s_cmp_eq_u32 s{scount}, 2", f"s_cbranch_scc1 K2_BODYP{q}{cur['r']}"]
        return o0, o1
    def entry(kind):
        more = kind != "L"
        o = rd_prog() + [W("v"), W("l")] + get_ea(0, 0, 0)
        if more: o += rd_prog()
        o += [W("l"), "@STAMP", mE(0, 0), mA(0, 0), mE(0, 1), mA(0, 1), "s_nop 7", W("v")] + mP(0, 0) + ["s_nop 3"]
        for i in range(8):
            v_, l_ = idx_pair(0, 0, i)
            o += [W("l")] + ([v_[0], v_[1], "s_nop 0"] + v_[2:] if i < NTB[0] else v_) + l_
            if more:
                for r_ in range(4*(i & 3), 4*(i & 3)+4): o += ld_raw(1, i >> 2, r_)
                if i >= 4: o.append(rd_addr(256, i-4))
                if i == 4: o += [W("v")] + get_ea(1, 1, 128) + rd_l3(256)
                if i == 7: o += dma_ea(0)
            if i == 3: o += [W("v")] + mP(0, 1)
        return o + slot(0, 0, kind, acc=False) + [f"s_branch K2_MID{kind}0{cur['r']}"]
    def drain(p): return ["s_nop 1"] + [mG(p, 1, j) for j in range(4)]
    def mk_fill():
        ad = [rd_addr(0, j) for j in range(4)]
        t0 = SP
        o = []
        if cur["r"] == "P":
            o = (rd_l3(0) + [f"ds_read_b32 v{t0}, v{vA3} offset:{L2+128}"])
        o += ad + [rd_l2(vOa, 0), rd_l2(t0+1, 128)]
        if cur["r"] == "P":
            o += ["s_waitcnt lgkmcnt(6)"] + dma_ea(0) + [f"v_mov_b32 v{vEa}, v{t0}"]
        d1 = dma_ea(1)
        late1 = OPT.get("d1", "1") == "1"
        o += ([] if late1 else d1) + ["s_waitcnt lgkmcnt(0)"] + ld_blk(0, 0) + oh_idx(0) + [f"v_mov_b32 v{vOa}, v{t0+1}"] + oh_idx(1) + ld_blk(0, 1) + (d1 if late1 else [])
        return o + [rd_addr(128, j) for j in range(4)]
    FI, B, EN, LA_ = {}, {}, {}, {}
    for r in "PC":
        cur["r"] = r
        FI[r] = mk_fill()
        for k in "FPL":
            EN[r, k] = entry(k)
            for p in range(2): B[r, p, k] = body(p, k)
        for p in range(2):
            for np_ in (2, 4, 6, 8): LA_[r, p, np_] = last(p, np_)
    def trace(r, cnt, np_=8):
        kinds = ["F"]*(cnt-2) + ["P", "L"][-min(cnt, 2):]
        tr = FI[r] + EN[r, kinds[0]] + B[r, 0, kinds[0]][1]
        for t in range(1, cnt-1): tr += B[r, t & 1, kinds[t]][0] + B[r, t & 1, kinds[t]][1]
        tr += drain(0) if cnt == 1 else LA_[r, (cnt-1) & 1, np_]
        o = []; keep = True; nd = 0
        for x in tr:
            if x == "@D{": keep = nd < cnt; nd += 1
            elif x == "@}": keep = True
            elif keep and x != "@STAMP": o.append(x)
        return o
    epi_head = ["s_branch x", "s_cmp", "s_cbranch", "s_waitcnt vmcnt(0) lgkmcnt(0)"] + [f"v_add_f32 v{ACC+r_}, 0, v{ACC+r_}" for r_ in range(6)]
    cases = [(r, c, n_) for c in range(1, 9) for r in "PC" for n_ in (2, 4, 6, 8)]
    need = asmsim.solve_waits([trace(*c) for c in cases])
    for c in cases: asmsim.check_hazards(asmsim.apply_waits(trace(*c), need) + epi_head, f"case {c}")
    def emit(l):
        for x in asmsim.apply_waits(l, need):
            if x == "@STAMP":
                stamp(a, 5); stamp(a, 5, "3"); stamp(a, 7, "4")
                if OPT.get("prof") == "7": a("s_memrealtime s[86:87]\ns_mov_b32 s98, 1")
                if OPT.get("prof") == "3": a(f"s_memtime s[86:87]\ns_mov_b32 s90, s{scount}\ns_getreg_b32 s92, hwreg(HW_REG_HW_ID)")
            elif x[0] != "@": a(x.split(";")[0])
    def main_loop(r):
        a(f"""
        K2_GO{r}:
        s_cmp_eq_u32 s{scount}, 0
        s_cbranch_scc1 K2_EMPTY
        s_cmp_gt_u32 s{scount}, 2
        s_cbranch_scc1 K2_ENTF{r}
        s_cmp_eq_u32 s{scount}, 2
        s_cbranch_scc1 K2_ENTP{r}
        """)
        emit(EN[r, "L"]); a(f"K2_ENTP{r}:"); emit(EN[r, "P"]); a(f"K2_ENTF{r}:"); emit(EN[r, "F"])
        a(".p2align 6")
        for p in range(2): emit(B[r, p, "F"][0] + B[r, p, "F"][1])
        a(f"s_branch K2_BODYF0{r}")
        emit(B[r, 0, "L"][1] + drain(0)); a("s_branch K2_DONE")
        for p in range(2):
            for np_ in (2, 4, 6): emit(LA_[r, p, np_]); a("s_branch K2_DONE")
        for p in range(2):
            emit(B[r, p, "P"][0] + B[r, p, "P"][1] + LA_[r, 1-p, 8])
            if p == 0 or r == "P": a("s_branch K2_DONE")
    def fill(n):
        a(f"s_cmp_eq_u32 s{scount}, 0\ns_cbranch_scc1 K2_FILLED{n}")
        emit(FI[n])
        a(f"K2_FILLED{n}:")
    def ap_addr():
        a(f"""
        v_bfe_u32 v{vt}, v0, 2, 2
        v_lshrrev_b32 v{vt+1}, 1, v{vH16}
        v_add_u32 v{vt}, v{vt}, v{vt+1}
        v_mul_u32_u24 v{vt}, {ROWP}, v{vt}
        v_bfe_u32 v{vt+2}, v0, 4, 1
        v_lshl_add_u32 v{vt}, v{vt+2}, 5, v{vt}
        v_and_b32 v{vt+2}, 3, v0
        v_lshl_add_u32 v{vt}, v{vt+2}, 3, v{vt}
        s_mul_i32 s{st0}, s{sg}, {GN*ROWP}
        s_lshl_b32 s{st1}, s{sfh}, 7
        s_add_u32 s{st0}, s{st0}, s{st1}
        v_add_u32 v{vt}, s{st0}, v{vt}
        v_mul_u32_u24 v{vt+1}, {ROWP//2}, v{vt+1}
        v_and_b32 v{vt+2}, 31, v0
        v_lshl_add_u32 v{vt+1}, v{vt+2}, 2, v{vt+1}
        v_add_u32 v{vt+1}, s{st0}, v{vt+1}
        """)
    def ap_read():
        a(f"""
        ds_read_b64_tr_b16 {vr(AP,2)}, v{vt} offset:{APL}
        ds_read_b64_tr_b16 {vr(AP+2,2)}, v{vt} offset:{APL+4*ROWP}
        ds_read_b64_tr_b16 {vr(AP+4,2)}, v{vt} offset:{APL+64}
        ds_read_b64_tr_b16 {vr(AP+6,2)}, v{vt} offset:{APL+4*ROWP+64}
        """)
        for r in range(6): a(f"ds_read_b32 v{UR+r}, v{vt+1} offset:{UL+ROWP*rowoff(r)}")
        a(f"""
        s_waitcnt lgkmcnt(6)
        v_and_b32 v{AP+3}, v{AP+3}, v{vM15}
        v_and_b32 v{AP+7}, v{AP+7}, v{vM15}
        """)
    def init_addr():
        for r in range(16): a(f"v_mov_b32 v{ADDR+r}, 128")
    def zero_acc():
        for r in range(32): a(f"v_mov_b32 v{ACC+r}, 0")

    a(f"s_cmp_lg_u32 s{sfh}, 0\ns_cbranch_scc1 K2_LOADER")
    ld_wc()
    a.ext(common1(SP, vt))
    a(f"v_and_b32 v{vt+3}, 15, v0\nv_lshlrev_b32 v{vt+3}, 4, v{vt+3}\nv_bfe_u32 v{vt+4}, v0, 4, 2\nv_lshl_add_u32 v{vt+3}, v{vt+4}, 10, v{vt+3}\ns_lshl_b32 s{st0}, s{sg}, 8\nv_add_u32 v{vt+3}, s{st0}, v{vt+3}")
    a(f"v_add_u32 v{vt+4}, 40960, v{vt+3}")
    for val, rg, runs in ((0x3f003f00, EA, (0, 3, 32, 35)), (0, EA+4, (23, 27)), (0x3f803f80, OH, (51, 55, 59))):
        for j in range(4): a(f"v_mov_b32 v{rg+j}, {val:#x}")
        for c0 in runs:
            a(f"ds_write_b128 v{vt+4 if c0 >= 24 else vt+3}, {vr(rg,4)} offset:{LUTL + 1024*(c0 - (40 if c0 >= 24 else 0))}")
    a(f"""
    v_and_b32 v{vt+3}, 127, v0
    v_bfe_u32 v{vt+4}, v0, 2, 4
    v_and_b32 v{Z+4}, 3, v0
    v_lshrrev_b32 v{Z+5}, 6, v{vt+3}
    v_lshlrev_b32 v{vt+3}, 2, v{vt+3}
    v_lshl_add_u32 v{Z+4}, v{Z+5}, 2, v{Z+4}
    v_lshlrev_b32 v{Z+5}, 1, v{Z+4}
    v_mov_b32 v{Z+6}, 0x3f80
    v_mov_b32 v{Z+7}, 0x3f800000
    v_cmp_eq_u32 vcc, v{Z+5}, v{vt+4}
    v_add_u32 v{Z+5}, 1, v{Z+5}
    s_nop 0
    v_cndmask_b32 v{Z+8}, 0, v{Z+6}, vcc
    v_cmp_eq_u32 vcc, v{Z+5}, v{vt+4}
    v_cmp_eq_u32 s[78:79], 7, v{Z+4}
    s_or_b64 vcc, vcc, s[78:79]
    s_nop 1
    v_cndmask_b32 v{Z+9}, 0, v{Z+7}, vcc
    v_or_b32 v{Z+8}, v{Z+8}, v{Z+9}
    v_cmp_gt_u32 vcc, 15, v{vt+4}
    s_nop 1
    v_cndmask_b32 v{Z+8}, 0, v{Z+8}, vcc
    ds_write_b32 v{vt+3}, v{Z+8} offset:{OHL}
    """)
    a(f"""
    v_mul_u32_u24 v{EOFF}, {CS*32}, v{vt+1}
    v_add_u32 v{EOFF+1}, {64*CS*32}, v{EOFF}
    v_mov_b32 v{vt+3}, 4
    """)
    init_addr()
    a("s_waitcnt vmcnt(2)")
    stamp(a, 2); stamp(a, 1, "5")
    a(f"""
    v_cmp_eq_u32 vcc, -2, v{REC+11}
    v_cmp_eq_u32 s[78:79], -2, v{REC+15}
    s_or_b64 vcc, vcc, s[78:79]
    s_cbranch_vccz K2_NOOVF
    v_mov_b32 v{vt+4}, 0x10000
    v_mov_b32 v{vt}, 60
    ds_add_u32 v{vt}, v{vt+4} offset:{CNT}
    K2_NOOVF:
    """)
    M = [68, 70, 72, 74, 76, 78]
    KS = [[4*u+i for i in range(4)] + [8+4*u, 9+4*u] for u in range(2)]
    def masked(u, fn):
        for j, k in enumerate(KS[u]): a(f"v_cmp_gt_u32 {sr(M[j],2)}, -2, v{REC+k}")
        for j, k in enumerate(KS[u]): a(f"s_mov_b64 exec, {sr(M[j],2)}\n{fn(k, 6*u+j)}")
        a("s_mov_b64 exec, -1")
    for k in KS[0] + KS[1]: a(caddr(k))
    for u in range(2): masked(u, lambda k, j: f"ds_add_rtn_u32 v{RANK+k}, v{CADDR+k}, v{vt+3} offset:{CNT}")
    a(f"v_min_u32 v{vt+4}, v{REC+10}, v{REC+14}\nv_cmp_gt_u32 s[26:27], -2, v{vt+4}")
    LA, LB = raw(0, 0), raw(0, 1)
    for u in range(2):
        for j, k in enumerate(KS[u]):
            a(f"v_bfe_u32 v{LA+6*u+j}, v{REC+k}, 16, {5 if 't' in OPT.get('nomem','') else 14}\nv_mad_u32_u16 v{LB+6*u+j}, v{REC+k}, 2, v{EOFF+u}")
    for j in range(12): a(f"v_mul_u32_u24 v{LA+j}, s{csrc}, v{LA+j}")
    def steps(tag, fn):
        a(f"s_cmp_eq_u64 s[26:27], 0\ns_cbranch_scc1 K2_{tag}1\ns_waitcnt lgkmcnt(0)")
        for u in range(2):
            for k in (10+4*u, 11+4*u):
                a(f"v_cmpx_gt_u32 vcc, -2, v{REC+k}\ns_cbranch_execz K2_{tag}{u}")
                fn(k, u)
            a(f"K2_{tag}{u}:\ns_mov_b64 exec, -1")
    steps("C", lambda k, u: a(f"{caddr(k)}\nds_add_rtn_u32 v{RANK+k}, v{CADDR+k}, v{vt+3} offset:{CNT}"))
    stamp(a, 2, "5")
    spin(0, "A")
    stamp(a, 3, "5")
    scan(True, KS[0] + KS[1])
    a("s_waitcnt lgkmcnt(1)")
    stamp(a, 4, "5")
    for j, k in enumerate(KS[0] + KS[1]): a(f"v_add_u32 v{STV+j}, v{STV+j}, v{RANK+k}")
    for j, k in enumerate(KS[0] + KS[1]): a(f"v_lshlrev_b32 v{RANK+k}, 3, v{STV+j}")
    for j, k in enumerate(KS[0] + KS[1]): a(f"v_and_or_b32 v{LA+j}, v{RANK+k}, s{c128}, v{LA+j}")
    for u in range(2): masked(u, lambda k, j: f"ds_write2st64_b32 v{STV+j}, v{LA+j}, v{LB+j} offset0:{L1//256} offset1:{L2//256}")
    def put_step(k, u):
        a(f"ds_read_b32 v{STV+12}, v{CADDR+k} offset:{START}\ns_waitcnt lgkmcnt(0)")
        place(k, STV+12, EOFF+u)
    steps("P", put_step)
    stamp(a, 5, "5")
    lane_setup()
    stamp(a, 6, "5")
    spin(1, "B")
    stamp(a, 3); stamp(a, 7, "5")
    a("K2_REFILLP:")
    fill("P")
    stamp(a, 4)
    a(f"s_cmp_lg_u32 s{sslow}, 0\ns_cbranch_scc1 K2_GOP")
    zero_acc()
    ap_addr()
    spin(3, "D", add=False)
    ap_read()
    main_loop("P")
    a("K2_GIVEUP:")
    zero_acc()
    arrive(1)
    spin(3, "E", add=False)
    a("s_branch K2_SLOW")
    assert XL % 256 == 0
    XF = G; WT = [ACC, raw(0, 0)]
    accs = [[[raw(1,0)+8*nb, raw(1,0)+8*nb+4] for nb in range(3)], [[raw(1,1)+8, raw(1,1)+12], [SP, SP+4], [SP+8, ADDR]]]
    a(f"""
    K2_LOADER:
    v_lshrrev_b32 v{vt+4}, 4, v{vt}
    s_lshl_b32 s{st1}, s{sg}, 2
    v_add_u32 v{vA1}, s{st1}, v{vt+4}
    v_and_b32 v{vt+5}, 15, v0
    v_xor_b32 v{vA1}, v{vA1}, v{vt+5}
    v_lshlrev_b32 v{vA1}, 4, v{vA1}
    v_lshl_add_u32 v{vA1}, v{vt+4}, 8, v{vA1}
    s_lshl_b32 s{st1}, s{sg}, 10
    """)
    for k in range(3):
        a(f"""
        s_add_u32 m0, s{st1}, {XL+4096*k}
        s_add_u32 s{st2}, s{st1}, {4096*k}
        buffer_load_dwordx4 v{vA1}, {sr(sX,4)}, s{st2} offen lds
        """)
    stamp(a, 1, "6")
    srot = sk
    a(f"s_lshl_b32 s{slut}, s{sg}, 13\ns_lshr_b32 s{srt}, s2, 3")
    for j in range(4):
        a(f"s_add_u32 s{srot+j}, s{srt}, {j}\ns_and_b32 s{srot+j}, s{srot+j}, 3\ns_lshl_b32 s{srot+j}, s{srot+j}, 10\ns_add_u32 s{st2}, s{slut}, s{srot+j}")
        for m in range(2):
            for hf in range(2):
                a(f"buffer_load_dwordx4 {vr(WT[m]+16*hf+4*j,4)}, v{vA2}, {sr(sWT,4)}, s{st2} offen")
                if (m, hf) != (1, 1): a(f"s_add_u32 s{st2}, s{st2}, {4096 if hf == 0 else 32768-4096}")
    stamp(a, 2, "6")
    a(f"""
    s_lshl_b32 s{st0}, s{sg}, 12
    s_add_u32 m0, s{st0}, {LUTL + 7*1024}
    s_add_u32 s{st2}, s{st0}, {LUT_OFF - WT_OFF + 7*1024}
    """)
    for j in range(4): a(f"buffer_load_dwordx4 v{vA2}, {sr(sWT,4)}, s{st2} offen offset:{1024*j} lds")
    a(f"""
    s_mul_i32 s{st0}, s{sg}, 3072
    s_add_u32 m0, s{st0}, {LUTL + 39*1024}
    s_add_u32 s{st2}, s{st0}, {LUT_OFF - WT_OFF + 39*1024}
    """)
    for j in range(3): a(f"buffer_load_dwordx4 v{vA2}, {sr(sWT,4)}, s{st2} offen offset:{1024*j} lds")
    a(f"""
    s_and_b32 s{st0}, s{sg}, 1
    s_lshl_b32 s{st0}, s{st0}, 15
    s_add_u32 m0, s{st0}, {LUTL + 31*1024}
    s_add_u32 s{st2}, s{st0}, {LUT_OFF - WT_OFF + 31*1024}
    buffer_load_dwordx4 v{vA2}, {sr(sWT,4)}, s{st2} offen lds
    """)
    ld_wc()
    stamp(a, 3, "6")
    a(f"""
    s_waitcnt vmcnt(26)
    """)
    arrive(2)
    a(f"""
    v_mov_b32 v{vt+8}, v{vt}
    v_and_b32 v{vt}, 15, v0
    v_bfe_u32 v{vt+1}, v0, 4, 2
    v_xor_b32 v{vt+2}, v{vt}, v{vt+1}
    v_lshlrev_b32 v{vt+2}, 4, v{vt+2}
    v_lshl_add_u32 v{vt+2}, v{vt}, 8, v{vt+2}
    v_add_u32 v{vt+2}, {XL}, v{vt+2}
    v_mul_u32_u24 v{vt}, {ROWP}, v{vt}
    """)
    stamp(a, 2); stamp(a, 5, "6")
    spin(2, "C", add=False)
    stamp(a, 6, "6")
    for s in range(4):
        a(f"s_lshr_b32 s{st0}, s{srot+s}, 4\nv_xor_b32 v{vt+3}, s{st0}, v{vt+2}")
        for nb in range(3):
            a(f"ds_read_b128 {vr(XF+16*nb+4*s,4)}, v{vt+3} offset:{4096*nb}")
    a(f"""
    s_lshr_b32 s{st0}, s{sg}, 1
    s_lshl_b32 s{st0}, s{st0}, 7
    s_and_b32 s{st1}, s{sg}, 1
    s_lshl_b32 s{st1}, s{st1}, 5
    s_add_u32 s{st0}, s{st0}, s{st1}
    v_lshl_add_u32 v{vt+4}, v{vt+1}, 3, v{vt}
    v_add_u32 v{vt+4}, s{st0}, v{vt+4}
    s_lshl_b32 s{st0}, s{sg}, 6
    v_lshl_add_u32 v{vt+5}, v{vt+1}, 4, v{vt}
    v_add_u32 v{vt+5}, s{st0}, v{vt+5}
    """)
    def mm1(m, s):
        return [f"v_mfma_f32_16x16x32_bf16 {vr(accs[m][nb][ab], 4)}, {vr(WT[m]+16*ab+4*s,4)}, {vr(XF+16*nb+4*s,4)}, {'0' if s == 0 else vr(accs[m][nb][ab], 4)}"
                for nb in range(3) for ab in range(2)]
    outA = []
    for nb in range(3):
        al, be = accs[0][nb]; o = EA+ (0 if nb != 1 else 4)
        for i in range(4): outA += [f"v_mul_f32 v{al+i}, s{cnl2e}, v{al+i}", f"v_mul_f32 v{be+i}, s{cnl2e}, v{be+i}"]
        outA += [f"v_cvt_pk_bf16_f32 v{o}, v{al}, v{al+2}", f"v_cvt_pk_bf16_f32 v{o+1}, v{be}, v{be+2}",
                 f"v_cvt_pk_bf16_f32 v{o+2}, v{al+1}, v{al+3}", f"v_cvt_pk_bf16_f32 v{o+3}, v{be+1}, v{be+3}",
                 f"ds_write_b64 v{vt+4}, {vr(o,2)} offset:{APL+16*ROWP*nb}", f"ds_write_b64 v{vt+4}, {vr(o+2,2)} offset:{APL+16*ROWP*nb+64}"]
    NPF = int(OPT.get("tpf", "0"))
    if NPF:
        srd(a, sS, 14, T_OFF, N*TS)
        a(f"""
        s_bfe_u32 s{st0}, s2, 0x50003
        s_lshl_b32 s{st0}, s{st0}, 2
        s_add_u32 s{st0}, s{st0}, s{sg}
        s_lshl_b32 s{st0}, s{st0}, 13
        v_lshlrev_b32 v{vt+9}, 7, v{vt+8}
        """)
        for j in range(NPF):
            a(f"buffer_load_dword v{vt+10}, v{vt+9}, {sr(sS,4)}, s{st0} offen")
            if j+1 < NPF: a(f"s_add_u32 s{st0}, s{st0}, {1 << 20}")
    g = []; cm = common1(XR+1, vt+8); k = 0
    for s in range(4):
        g.append(f"s_waitcnt vmcnt({22-4*s+NPF}) lgkmcnt({9-3*s})")
        for x in mm1(0, s) + (mm1(1, s) if s < 3 else []):
            g.append(x); g += cm[k:k+3]; k += 3
    assert k >= len(cm)
    k = 0
    for j, x in enumerate(mm1(1, 3)):
        g.append(x)
        if j >= 2: g += outA[k:k+3]; k += 3
    g += outA[k:]
    for nb in range(3):
        al, be = accs[1][nb]; o = XF+4*nb
        g += [f"v_cvt_pk_bf16_f32 v{o}, v{al}, v{al+1}", f"v_cvt_pk_bf16_f32 v{o+1}, v{al+2}, v{al+3}",
              f"v_cvt_pk_bf16_f32 v{o+2}, v{be}, v{be+1}", f"v_cvt_pk_bf16_f32 v{o+3}, v{be+2}, v{be+3}",
              f"ds_write_b128 v{vt+5}, {vr(o,4)} offset:{UL+16*ROWP*nb}"]
    asmsim.check_hazards(g, "gemm")
    a.ext(g)
    a(f"s_waitcnt vmcnt({NPF})")
    arrive(3)
    stamp(a, 3); stamp(a, 7, "6")
    zero_acc()
    init_addr()
    spin(1, "F", add=False)
    a(f"""
    v_mov_b32 v{vt+2}, {INCL+60}
    ds_read2_b32 {vr(vt+4,2)}, v{vt+2} offset0:0 offset1:16
    ds_read2_b32 {vr(vt+6,2)}, v{vt+2} offset0:32 offset1:48
    s_waitcnt lgkmcnt(0)
    """)
    for g_ in range(4): a(f"v_readfirstlane_b32 s{sk+g_}, v{vt+4+g_}")
    a(f"""
    s_max_u32 s{st0}, s{sk}, s{sk+1}
    s_max_u32 s{st1}, s{sk+2}, s{sk+3}
    s_max_u32 s{st0}, s{st0}, s{st1}
    s_cmp_gt_u32 s{st0}, {CAPG*4}
    s_cbranch_scc1 K2_SLOW
    """)
    a("s_setprio 1")
    rank_groups()
    lane_setup()
    a("K2_REFILLC:")
    fill("C")
    a(f"s_cmp_lg_u32 s{sslow}, 0\ns_cbranch_scc1 K2_GOC")
    ap_addr()
    spin(3, "G", add=False)
    ap_read()
    stamp(a, 4)
    a("s_branch K2_GOC")
    a("K2_EMPTY:"); a.ext(ld_xr()); a("s_branch K2_DONE")
    for n in spins:
        a(f"""
        K2_SP{n}:
        ds_read_b32 v{vEa}, v{vPG}
        s_waitcnt lgkmcnt(0)
        v_cmp_gt_u32 vcc, s{sneed}, v{vEa}
        s_cbranch_vccnz K2_SP{n}
        s_branch K2_OK{n}
        """)
    main_loop("C")
    a(f"""
    K2_DONE:
    s_cmp_lg_u32 s{sslow}, 0
    s_cbranch_scc1 K2_ROUND
    K2_EPI:
    s_waitcnt vmcnt(0) lgkmcnt(0)
    """)
    stamp(a, 6); stamp(a, 6, "3")
    if OPT.get("prof") == "3": a("s_memtime s[88:89]")
    T0 = G
    for b in range(2):
        for r in range(6):
            a(f"v_add_f32 v{ACC+16*b+r}, 0x358637bd, v{ACC+16*b+r}")
        for r in range(6):
            a(f"v_rcp_f32 v{ACC+16*b+r}, v{ACC+16*b+r}")
        for r in range(6):
            u, x = T0+12*b+r, T0+12*b+6+r
            if b == 0: a(f"v_lshlrev_b32 v{u}, 16, v{UR+r}\nv_lshlrev_b32 v{x}, 16, v{XR+r}")
            else: a(f"v_and_b32 v{u}, 0xffff0000, v{UR+r}\nv_and_b32 v{x}, 0xffff0000, v{XR+r}")
        for r in range(6):
            u, x = T0+12*b+r, T0+12*b+6+r
            a(f"v_fmac_f32 v{u}, v{ACC+16*b+8+r}, v{ACC+16*b+r}\nv_max_f32 v{u}, 0, v{u}\nv_add_f32 v{u}, v{u}, v{x}")
    a(f"v_lshl_or_b32 v{vO2}, v{vH16}, 27, v{vO}")
    for r in range(6):
        a(f"v_cvt_pk_bf16_f32 v{SP+r}, v{T0+r}, v{T0+12+r}")
        a(f"buffer_store_dword v{SP+r}, v{vO if r < 4 else vO2}, {sr(sO,4)}, 0 offen offset:{256*rowoff(r)} {OPT.get('st_o', '')}")
    stamp(a, 7)
    stamp_out(a, 1, 14, sw, 2)
    a("K2_END:\ns_endpgm")

    a("K2_SLOW:")
    srd(a, sS, 8, None, E*4)
    srd(a, sD, 10, None, E*4)
    a(f"""
    s_mov_b32 s{sslow}, 1
    s_mov_b32 s{cm10}, {-GN}
    """)
    a("s_waitcnt vmcnt(0) lgkmcnt(0)\ns_barrier")
    lane_setup(); ap_addr(); ap_read()
    a(f"""
    K2_ROUND:
    s_cmp_ge_u32 s{sround}, {E//RND}
    s_cbranch_scc1 K2_EPI
    s_mul_i32 s{st0}, s{sround}, {RND}
    s_add_u32 s{sround}, s{sround}, 1
    v_add_u32 v{EOFF}, s{st0}, v0
    v_lshlrev_b32 v{vt}, 2, v{EOFF}
    buffer_load_dword v{REC}, v{vt}, {sr(sD,4)}, 0 offen
    buffer_load_dword v{REC+1}, v{vt}, {sr(sS,4)}, 0 offen
    v_lshlrev_b32 v{EOFF}, 5, v{EOFF}
    v_and_b32 v{vt}, 63, v0
    v_lshlrev_b32 v{vt}, 3, v{vt}
    v_mov_b32 v{vt+4}, 0
    v_mov_b32 v{vt+5}, 0
    s_waitcnt lgkmcnt(0)
    s_barrier
    ds_write_b64 v{vt}, {vr(vt+4,2)} offset:{CNT}
    v_mov_b32 v{vt+3}, 4
    s_waitcnt vmcnt(0) lgkmcnt(0)
    s_barrier
    """)
    rec_fields(a, REC, REC+2, vt, cm40, cm10)
    a(f"""
    v_cmp_eq_u32 vcc, s2, v{REC+2}
    v_lshl_or_b32 v{REC}, v{REC+1}, 16, v{REC}
    {caddr(0)}
    s_mov_b64 s[78:79], vcc
    v_cmp_gt_u32 vcc, {RND}, v0
    s_and_b64 s[78:79], s[78:79], vcc
    s_mov_b64 exec, s[78:79]
    ds_add_rtn_u32 v{RANK}, v{CADDR}, v{vt+3} offset:{CNT}
    s_mov_b64 exec, -1
    s_waitcnt lgkmcnt(0)
    s_barrier
    """)
    scan(False)
    a(f"""
    s_mov_b64 exec, s[78:79]
    ds_read_b32 v{STV}, v{CADDR} offset:{START}
    s_waitcnt lgkmcnt(0)
    """)
    place(0, STV, EOFF)
    a(f"""
    s_mov_b64 exec, -1
    """)
    lane_setup()
    a(f"""
    s_waitcnt lgkmcnt(0)
    s_barrier
    s_cmp_eq_u32 s{sfh}, 0
    s_cbranch_scc1 K2_REFILLP
    s_branch K2_REFILLC
    K2_CODE_END:
    """)
    return a.text(), kd("k2_kernel", 256, 102)

KE_PROF = f"""
    s_memrealtime s[8:9]
    s_load_dwordx2 s[4:5], s[0:1], 88
    s_waitcnt lgkmcnt(0)
    s_add_u32 s4, s4, {PROF_OFF + 0x200000}
    s_addc_u32 s5, s5, 0
    s_mov_b32 s6, 4
    s_mov_b32 s7, 0x20000
    v_mov_b32 v1, s8
    v_lshlrev_b32 v0, 2, v0
    buffer_store_dword v1, v0, s[4:7], 0 offen
"""
def gen_kr():
    a = Asm()
    a(f"""
    kr_kernel:
    s_cmp_ge_u32 s2, 1
    s_cbranch_scc1 KR_END
    s_load_dwordx4 s[4:7], s[0:1], 80
    s_waitcnt lgkmcnt(0)
    s_add_u32 s8, s6, {PROF_OFF}
    s_addc_u32 s9, s7, 0
    s_mov_b32 s10, 0x200000
    s_mov_b32 s11, 0x20000
    s_mov_b32 s6, 256
    s_mov_b32 s7, 0x20000
    v_cmp_gt_u32 vcc, 250, v0
    s_and_saveexec_b64 s[12:13], vcc
    v_lshlrev_b32 v1, 10, v0
    v_mov_b32 v3, 0
    """)
    sel = [(0, 16, 0, 1), (0, 16, 0, 0), (0, 16, 2, 0), (0, 16, 3, 0), (0, 16, 5, 0), (0, 16, 8, 0),
           (1, 8, 0, 1), (1, 8, 0, 0), (1, 8, 2, 0), (1, 8, 3, 0), (1, 8, 5, 1), (1, 8, 5, 0), (1, 8, 6, 1), (1, 8, 6, 0), (1, 8, 8, 0)]
    w0 = 0
    if OPT.get("krsel"):
        w0, st_, mn_ = [int(x) for x in OPT["krsel"].split(",")]
        sel = [(1, 4, 0, 1), (1, 4, st_, mn_)]
    for j, (kn, nw, st, mn) in enumerate(sel):
        a(f"s_mov_b32 s14, {kn*0x100000 + 64*w0}")
        for w in range(nw): a(f"buffer_load_dword v{10+w}, v1, s[8:11], s14 offen offset:{64*w+4*st}")
        a("s_waitcnt vmcnt(0)")
        if mn:
            for w in range(nw): a(f"v_not_b32 v{10+w}, v{10+w}")
        for w in range(1, nw): a(f"v_max_u32 v10, v10, v{10+w}")
        a(f"buffer_atomic_umax v10, v3, s[4:7], 0 offen offset:{4*j}\ns_waitcnt vmcnt(0)")
    if OPT.get("iv"):
        ja, jb, k = [int(x) for x in OPT["iv"].split(",")]
        a(f"""
        s_barrier
        buffer_load_dword v10, v3, s[4:7], 0 offen offset:{4*ja} sc0 sc1
        buffer_load_dword v11, v3, s[4:7], 0 offen offset:{4*jb} sc0 sc1
        s_waitcnt vmcnt(0)
        v_readfirstlane_b32 s16, v10
        v_readfirstlane_b32 s17, v11
        """)
        if sel[ja][3]: a("s_not_b32 s16, s16")
        if sel[jb][3]: a("s_not_b32 s17, s17")
        a(f"""
        s_sub_u32 s16, s16, s17
        s_min_u32 s16, s16, 10000
        s_mul_i32 s16, s16, {k}
        s_memrealtime s[18:19]
        s_waitcnt lgkmcnt(0)
        KR_SPIN:
        s_memrealtime s[20:21]
        s_waitcnt lgkmcnt(0)
        s_sub_u32 s20, s20, s18
        s_cmp_lt_u32 s20, s16
        s_cbranch_scc1 KR_SPIN
        """)
    a("KR_END:\ns_endpgm")
    return a.text()

def main():
    k1, d1 = gen_k1(); k2, d2 = gen_k2()
    ref = open("standalone__edge_featured_mpnn_gatedgcn__graph.s.ref").read().split("\n")
    out = "\n".join(ref[:13]) + "\n"
    for ch in OPT.get("list", "12"):
        if ch == "1": out += f"; @launch kernel=k1_kernel grid=({2*NCH},1,1) block=(1024,1,1) lds={K1_LDS}\n"
        if ch == "2": out += f"; @launch kernel=k2_kernel grid=({NBIN},1,1) block=(512,1,1) lds={K2_LDS}\n"
        if ch == "r": out += "; @launch kernel=kr_kernel grid=(1,1,1) block=(256,1,1) lds=0\n"
        if ch == "e": out += "; @launch kernel=ke_kernel grid=(1,1,1) block=(64,1,1) lds=0\n"
    out += '.amdgcn_target "amdgcn-amd-amdhsa--gfx950"\n.text\n'
    for n, k in (("k1_kernel", k1), ("k2_kernel", k2)):
        out += f".globl {n}\n.p2align 8\n.type {n},@function\n" + k
    if "e" in OPT.get("list", ""): out += ".globl ke_kernel\n.p2align 8\n.type ke_kernel,@function\nke_kernel:\n" + (KE_PROF if OPT.get("prof") else "") + "    s_endpgm\n"
    if "r" in OPT.get("list", ""): out += ".globl kr_kernel\n.p2align 8\n.type kr_kernel,@function\n" + gen_kr()
    out += '.section .rodata,"a"\n.p2align 6\n' + d1.lstrip("\n") + '.p2align 6\n' + d2.lstrip("\n")
    if "e" in OPT.get("list", ""): out += '.p2align 6\n' + kd("ke_kernel", 8, 16).lstrip("\n")
    if "r" in OPT.get("list", ""): out += '.p2align 6\n' + kd("kr_kernel", 32, 32).lstrip("\n")
    open(sys.argv[1], "w").write(out)

if __name__ == "__main__":
    main()
```

```python
import struct, sys
import asmsim

N = 10000; E = 320000
NCH = 128; CS = 2500
NBIN = 256; GN = 10
BINK, BINC, BINS = 53687, 52500, 21
assert all((625*b_ >> 4) <= d_ < (625*(b_+1) >> 4) for d_ in range(N) for b_ in [(d_*BINK + BINC) >> BINS])
CAP = 32
TS = int(([a for a in sys.argv if a.startswith('ts=')] or ['ts=512'])[0][3:])
T_OFF = 0x1000000
REC_OFF = 0x700000
WT_OFF = 0xB00000
LUT_OFF = 0xB20000
PROF_OFF = 0xF000000
NL2E = struct.unpack("<I", struct.pack("<f", -1.4426950408889634))[0]

def bf(x): return struct.unpack("<I", struct.pack("<f", x))[0] >> 16

OPT = dict(st_r="sc1", st_t="sc1")
for a in sys.argv[2:]:
    k, v = a.split("=", 1); OPT[k] = v

class Asm:
    def __init__(self): self.l = []
    def __call__(self, s):
        for x in s.strip("\n").split("\n"):
            x = x.strip()
            if not x: continue
            if x.startswith(";"): x = "s_nop 0"
            self.l.append(x if x.endswith(":") else "    " + x)
    def ext(self, lst):
        for x in lst: self(x)
    def text(self): return "\n".join(self.l) + "\n"

def stamp(a, i, lvl="1"):
    if OPT.get("prof") and (i in (0, 8) or OPT["prof"] == lvl): a(f"s_memrealtime s[{84+2*i}:{85+2*i}]")
def stamp_out(a, kern, wsreg, sw, vtmp):
    if not OPT.get("prof"): return
    a("s_waitcnt vmcnt(0)")
    stamp(a, 8)
    a(f"""
    s_lshl_b32 s4, s2, 4
    s_add_u32 s4, s4, s{sw}
    s_lshl_b32 s4, s4, 6
    s_add_u32 s4, s4, {PROF_OFF + kern*0x100000}
    s_add_u32 s4, s{wsreg}, s4
    s_addc_u32 s5, s{wsreg+1}, 0
    s_mov_b32 s6, 64
    s_mov_b32 s7, 0x20000
    s_waitcnt lgkmcnt(0)
    """)
    if kern == 1 and OPT["prof"] == "7":
        a(f"v_mov_b32 v{vtmp}, v251\nv_writelane_b32 v{vtmp}, s84, 0\ns_mov_b32 m0, s98\ns_add_u32 s98, s98, 1\nv_writelane_b32 v{vtmp}, s86, m0\ns_mov_b32 m0, s98\ns_nop 3\nv_writelane_b32 v{vtmp}, s100, m0\nv_writelane_b32 v{vtmp}, s98, 15")
    else:
        for i in range(9): a(f"v_writelane_b32 v{vtmp}, s{84+2*i}, {i}")
    a(f"""
    v_mbcnt_lo_u32_b32 v{vtmp+1}, -1, 0
    v_mbcnt_hi_u32_b32 v{vtmp+1}, -1, v{vtmp+1}
    v_lshlrev_b32 v{vtmp+1}, 2, v{vtmp+1}
    buffer_store_dword v{vtmp}, v{vtmp+1}, s[4:7], 0 offen
    """)

def vr(b, n): return f"v[{b}:{b+n-1}]"
def sr(b, n): return f"s[{b}:{b+n-1}]"

def srd(a, d, base, add=None, size=None, w3="0x20000", hi_or=None):
    if add is None:
        a(f"s_mov_b32 s{d}, s{base}\ns_mov_b32 s{d+1}, s{base+1}")
    else:
        a(f"s_add_u32 s{d}, s{base}, {add}\ns_addc_u32 s{d+1}, s{base+1}, 0")
    if hi_or: a(f"s_or_b32 s{d+1}, s{d+1}, {hi_or}")
    a(f"s_mov_b32 s{d+2}, {size}\ns_mov_b32 s{d+3}, {w3}")

def kd(name, vgpr, sgpr):
    return f"""
.amdhsa_kernel {name}
  .amdhsa_next_free_vgpr {vgpr}
  .amdhsa_next_free_sgpr {sgpr}
  .amdhsa_accum_offset {(vgpr+3)//4*4}
  .amdhsa_group_segment_fixed_size 0
  .amdhsa_kernarg_size 96
  .amdhsa_user_sgpr_count 2
  .amdhsa_user_sgpr_kernarg_segment_ptr 1
  .amdhsa_system_sgpr_workgroup_id_x 1
.end_amdhsa_kernel
"""

def rec_fields(a, vd, vbin, vtmp, sm40, sm10):
    a(f"""
    v_mul_u32_u24 v{vbin}, {BINK}, v{vd}
    v_add_u32 v{vbin}, {BINC}, v{vbin}
    v_lshrrev_b32 v{vbin}, {BINS}, v{vbin}
    v_mul_u32_u24 v{vtmp}, 625, v{vbin}
    v_lshrrev_b32 v{vtmp}, 4, v{vtmp}
    v_sub_u32 v{vd}, v{vd}, v{vtmp}
    v_mul_u32_u24 v{vtmp}, 26, v{vd}
    v_lshrrev_b32 v{vtmp}, 8, v{vtmp}
    v_mad_i32_i24 v{vd}, v{vtmp}, s{sm10}, v{vd}
    v_lshl_or_b32 v{vd}, v{vtmp}, 30, v{vd}
    """)

K1_CNT = 0; K1_STG = 1024; K1_W = 34816; K1_X = K1_W + 32768; K1_LDS = K1_X + 20480
def gen_k1():
    a = Asm()
    sS, sD, sW1, sW2, sX, sR, sT, sP = 24, 28, 32, 36, 40, 44, 48, 72
    sw, st0, st1, st2, snb, sfb, sch, shf = 52, 53, 54, 55, 56, 57, 58, 69
    c4096, c8192, cm40, cm10, cnl2e, csign, cmag, ctso, cp0 = 59, 60, 61, 62, 63, 64, 65, 66, 67
    vD, vS, vB, vSL, vt = 2, 5, 8, 11, 16
    vW, vX, vA, vg = 32, 96, 112, 40
    vTR, vXA, vST = 124+0, 0, 0
    PE = OPT.get("pe", "0")
    PL = 625 if PE in "345" else 313
    def W(m, ab, s): return vW + 32*m + 16*ab + 4*s
    a("k1_kernel:")
    a(f"s_cmp_ge_u32 s2, {2*NCH}\ns_cbranch_scc1 K1_END")
    stamp(a, 0)
    a(f"""
    s_load_dwordx16 s[4:19], s[0:1], 0
    s_load_dwordx2 s[20:21], s[0:1], 64
    s_load_dwordx2 s[22:23], s[0:1], 88
    v_lshrrev_b32 v2, 6, v0
    v_lshlrev_b32 v1, 2, v0
    v_readfirstlane_b32 s{sw}, v2
    s_mov_b32 s{c4096}, 4096
    s_mov_b32 s{c8192}, 8192
    s_sub_u32 s{sch}, s2, {NCH}
    s_and_b32 s{shf}, s2, 1
    v_and_b32 v{vg}, 63, v0
    v_lshrrev_b32 v{vg+1}, 4, v{vg}
    v_and_b32 v{vg+2}, 15, v0
    s_and_b32 s{st0}, s{sw}, 3
    s_lshl_b32 s{st0}, s{st0}, 2
    v_add_u32 v{vg+3}, s{st0}, v{vg+1}
    v_xor_b32 v{vg+3}, v{vg+3}, v{vg+2}
    v_lshlrev_b32 v{vg+3}, 4, v{vg+3}
    v_lshl_add_u32 v{vg+3}, v{vg+1}, 8, v{vg+3}
    v_lshrrev_b32 v{vg+4}, 3, v{vg}
    v_lshlrev_b32 v{vg+5}, 1, v{vg+4}
    v_and_b32 v{vg+5}, 4, v{vg+5}
    v_and_b32 v{vg+6}, 7, v0
    v_xor_b32 v{vg+5}, v{vg+5}, v{vg+6}
    v_lshlrev_b32 v{vg+5}, 4, v{vg+5}
    v_lshl_add_u32 v{vg+4}, v{vg+4}, 8, v{vg+5}
    s_mul_i32 s{st1}, s{sch}, {CS*4}
    s_lshr_b32 s{st0}, s2, 1
    s_mul_i32 s{ctso}, s{st0}, {80*TS}
    s_mul_i32 s{st0}, s{st0}, 20480
    s_cmp_lt_u32 s2, 250
    s_cselect_b32 s{st0}, s{st0}, 0
    s_cselect_b32 s{st2}, 20480, 0
    s_waitcnt lgkmcnt(0)
    s_cselect_b64 {sr(sW1,2)}, s[14:15], s[12:13]
    s_cselect_b64 {sr(sW2,2)}, s[20:21], s[18:19]
    s_cmp_lt_u32 s2, {NCH}
    s_cbranch_scc1 K1_NOIDX
    """)
    srd(a, sD, 10, f"s{st1}", CS*4)
    srd(a, sS, 8, f"s{st1}", CS*4)
    for r, so in enumerate(("0", f"s{c4096}", f"s{c8192}")):
        a(f"buffer_load_dword v{vD+r}, v1, {sr(sD,4)}, {so} offen")
        a(f"buffer_load_dword v{vS+r}, v1, {sr(sS,4)}, {so} offen")
    a(f"""
    s_barrier
    K1_NOIDX:
    s_add_u32 s{sX}, s4, s{st0}
    s_addc_u32 s{sX+1}, s5, 0
    s_mov_b32 s{sX+2}, s{st2}
    s_mov_b32 s{sX+3}, 0x20000
    s_mov_b32 s{sW1+2}, 32768
    s_mov_b32 s{sW1+3}, 0x20000
    s_mov_b32 s{sW2+2}, 32768
    s_mov_b32 s{sW2+3}, 0x20000
    s_lshl_b32 s{shf+1}, s{shf}, 7
    """)
    def dma_x(n):
        a(f"s_lshl_b32 s{st1}, s{n}, 10\ns_add_u32 m0, s{st1}, {K1_X}\ns_nop 0\nbuffer_load_dwordx4 v{vg+3}, {sr(sX,4)}, s{st1} offen lds")
    def dma_w(n):
        a(f"""
        s_lshl_b32 s{st0}, s{n}, 10
        s_add_u32 m0, s{st0}, {K1_W}
        s_lshl_b32 s{st1}, s{n}, 11
        s_add_u32 s{st1}, s{st1}, s{shf+1}
        buffer_load_dwordx4 v{vg+4}, {sr(sW1,4)}, s{st1} offen lds
        s_add_u32 m0, s{st0}, {K1_W+16384}
        s_nop 0
        buffer_load_dwordx4 v{vg+4}, {sr(sW2,4)}, s{st1} offen lds
        """)
    if PE == "4":
        a(f"""
        s_cmp_lt_u32 s2, {NCH}
        s_cbranch_scc0 K1_DUTY16
        s_cmp_lt_u32 s{sw}, 8
        s_cbranch_scc0 K1_DUTYDONE
        """)
        dma_x(sw)
        a(f"s_add_u32 s{st2}, s{sw}, 8"); dma_x(st2)
        a(f"s_cmp_lt_u32 s{sw}, 4\ns_cbranch_scc0 K1_X0\ns_add_u32 s{st2}, s{sw}, 16"); dma_x(st2)
        a(f"K1_X0:\ns_lshr_b32 s{st2}, s2, 3\ns_add_u32 s{st2}, s{st2}, s{sw}\ns_and_b32 s{st2}, s{st2}, 15"); dma_w(st2)
        a(f"s_xor_b32 s{st2}, s{st2}, 8"); dma_w(st2)
        a("s_branch K1_DUTYDONE\nK1_DUTY16:")
    dma_x(sw)
    a(f"s_cmp_lt_u32 s{sw}, 4\ns_cbranch_scc0 K1_X1\ns_add_u32 s{st2}, s{sw}, 16"); dma_x(st2)
    a(f"K1_X1:\ns_lshr_b32 s{st2}, s2, 3\ns_add_u32 s{st2}, s{st2}, s{sw}\ns_and_b32 s{st2}, s{st2}, 15"); dma_w(st2)
    a(f"""
    K1_DUTYDONE:
    s_mul_i32 s{st0}, s2, {PL*128}
    s_min_u32 s{st0}, s{st0}, {E*32}
    s_sub_u32 s{st1}, {E*32}, s{st0}
    s_min_u32 s{st1}, s{st1}, {(int(OPT.get("pl", "256")) if PE == "5" else PL)*128}
    """)
    def prefetch_e():
        a(f"v_lshlrev_b32 v30, 7, v0\nbuffer_load_dword v31, v30, {sr(sP,4)}, 0 offen")
    srd(a, sP, 6, f"s{st0}", f"s{st1}")
    if PE == "1": prefetch_e()
    NB = 3 + (PE == "1")
    a(f"""
    s_and_b32 s{sfb}, s{sw}, 1
    s_lshr_b32 s{snb}, s{sw}, 1
    v_bfe_u32 v{vg+5}, v0, 2, 2
    v_and_b32 v{vg+6}, 3, v0
    s_lshl_b32 s{st0}, s{sfb}, 2
    v_add_u32 v{vg+6}, s{st0}, v{vg+6}
    v_lshlrev_b32 v{vg+7}, 1, v{vg+5}
    v_and_b32 v{vg+7}, 4, v{vg+7}
    v_xor_b32 v{vg+6}, v{vg+6}, v{vg+7}
    v_lshl_add_u32 v{vg+5}, v{vg+1}, 3, v{vg+5}
    v_lshlrev_b32 v{vg+5}, 7, v{vg+5}
    v_lshl_add_u32 v28, v{vg+6}, 4, v{vg+5}
    v_xor_b32 v29, v{vg+1}, v{vg+2}
    v_lshlrev_b32 v29, 4, v29
    v_lshl_add_u32 v29, v{vg+2}, 8, v29
    s_lshl_b32 s{st0}, s{snb}, 12
    s_add_u32 s{st0}, s{st0}, {K1_X}
    v_add_u32 v29, s{st0}, v29
    v_mul_u32_u24 v27, {TS}, v{vg+2}
    v_lshl_add_u32 v27, v{vg+1}, 4, v27
    s_add_u32 s{st0}, s{ctso}, {T_OFF}
    """)
    a(f"""
    s_mul_i32 s{ctso}, s{snb}, {16*TS}
    s_lshl_b32 s{st1}, s{shf}, 8
    s_add_u32 s{ctso}, s{ctso}, s{st1}
    s_lshl_b32 s{st1}, s{sfb}, 6
    s_add_u32 s{ctso}, s{ctso}, s{st1}
    s_mov_b32 s{cnl2e}, {NL2E:#x}
    s_mov_b32 s{csign}, 0x00800000
    s_mov_b32 s{cmag}, 0x7fffffff
    s_mov_b32 s{cp0}, 0x07060100
    s_mov_b32 s{cp0+1}, 0x07060302
    """)
    srd(a, sT, 22, f"s{st0}", 80*TS)
    stamp(a, 1)
    a(f"s_cmp_lt_u32 s2, {NCH}\ns_cbranch_scc1 K1_NOBIN")
    a(f"""
    v_mov_b32 v{vt}, -1
    v_mov_b32 v{vt+1}, -1
    v_mov_b32 v{vt+2}, -1
    v_mov_b32 v{vt+3}, -1
    v_lshlrev_b32 v{vt+4}, 4, v0
    v_mov_b32 v{vt+5}, 0
    v_and_b32 v{vt+6}, 0x3fc, v1
    ds_write_b128 v{vt+4}, {vr(vt,4)} offset:{K1_STG}
    ds_write_b128 v{vt+4}, {vr(vt,4)} offset:{K1_STG+16384}
    ds_write_b32 v{vt+6}, v{vt+5} offset:{K1_CNT}
    s_lshl_b32 s{st0}, s{sch}, 7
    s_add_u32 s{st0}, s{st0}, {REC_OFF}
    """)
    srd(a, sR, 22, f"s{st0}", NBIN*NCH*128)
    a(f"s_lshl_b32 s{st0}, s{sch}, 9\ns_add_u32 s{st1}, s{st0}, {LUT_OFF}")
    srd(a, sW1, 22, f"s{st1}", 512)
    a(f"""
    v_add_u32 v40, s{st0}, v1
    v_and_b32 v41, 0x7fff, v40
    v_cmp_ne_u32 vcc, 0x7c00, v41
    v_or_b32 v41, 3, v40
    s_nop 0
    v_addc_co_u32 v40, vcc, 0, v40, vcc
    v_cvt_f32_f16 v41, v41
    v_cvt_f32_f16 v40, v40
    v_exp_f32 v41, v41
    v_exp_f32 v40, v40
    v_add_f32 v41, 1.0, v41
    v_add_f32 v40, 1.0, v40
    v_rcp_f32 v41, v41
    v_rcp_f32 v40, v40
    s_nop 0
    v_cvt_pk_bf16_f32 v40, v40, v41
    s_mov_b32 s{cm10}, {-GN}
    v_mov_b32 v{vt+5}, 1
    v_cmp_gt_u32 vcc, {CS-2048}, v0
    s_mov_b64 s[80:81], vcc
    v_lshrrev_b32 v{vt+7}, 3, v0
    v_and_b32 v{vt+8}, 7, v0
    v_lshlrev_b32 v{vt+9}, 14, v{vt+7}
    v_lshl_add_u32 v{vt+9}, v{vt+8}, 4, v{vt+9}
    v_lshlrev_b32 v{vt+7}, 2, v{vt+7}
    v_cmp_eq_u32 s[82:83], 7, v{vt+8}
    s_mov_b32 s{st2}, {128*16384}
    s_waitcnt lgkmcnt(0)
    s_barrier
    """)
    for r in range(3):
        a(f"s_waitcnt vmcnt({4-2*r + NB})")
        if r == 0: stamp(a, 2)
        rec_fields(a, vD+r, vB+r, vt, cm40, cm10)
        a(f"v_lshlrev_b32 v{vt}, 2, v{vB+r}")
        if r == 2: a("s_mov_b64 exec, s[80:81]")
        a(f"ds_add_rtn_u32 v{vSL+r}, v{vt}, v{vt+5} offset:{K1_CNT}")
        if r == 2: a("s_mov_b64 exec, -1")
        a(f"""
        v_lshl_or_b32 v{vD+r}, v{vS+r}, 16, v{vD+r}
        v_add_u32 v{vS+r}, {1024*r}, v0
        v_lshl_or_b32 v{vD+r}, v{vS+r}, 4, v{vD+r}
        v_lshlrev_b32 v{vB+r}, 7, v{vB+r}
        """)
    for r in range(3):
        a("s_waitcnt lgkmcnt(2)")
        if r == 2: a("s_mov_b64 exec, s[80:81]")
        a(f"""
        v_and_b32 v{vt}, 12, v{vSL+r}
        v_add_u32 v{vB+r}, v{vB+r}, v{vt}
        v_and_b32 v{vt}, 3, v{vSL+r}
        v_lshl_add_u32 v{vB+r}, v{vt}, 4, v{vB+r}
        v_and_b32 v{vt}, 16, v{vSL+r}
        v_lshl_add_u32 v{vB+r}, v{vt}, 2, v{vB+r}
        v_cmpx_gt_u32 vcc, {CAP}, v{vSL+r}
        ds_write_b32 v{vB+r}, v{vD+r} offset:{K1_STG}
        s_mov_b64 exec, -1
        """)
    a(f"""
    s_waitcnt vmcnt({int(PE == "1")}) lgkmcnt(0)
    s_barrier
    ds_read_b128 v[32:35], v{vt+4} offset:{K1_STG}
    ds_read_b32 v{vt}, v{vt+7} offset:{K1_CNT}
    ds_read_b128 v[36:39], v{vt+4} offset:{K1_STG+16384}
    ds_read_b32 v{vt+1}, v{vt+7} offset:{K1_CNT+512}
    v_mov_b32 v{vt+2}, -2
    buffer_store_dword v40, v1, {sr(sW1,4)}, 0 offen {OPT['st_r']}
    """)
    stamp(a, 3)
    for k in range(2):
        a(f"""
        s_waitcnt lgkmcnt({2-2*k})
        v_cmp_lt_u32 vcc, {CAP}, v{vt+k}
        s_and_b64 vcc, vcc, s[82:83]
        s_nop 1
        v_cndmask_b32 v{35+4*k}, v{35+4*k}, v{vt+2}, vcc
        buffer_store_dwordx4 {vr(32+4*k,4)}, v{vt+9}, {sr(sR,4)}, {'0' if k == 0 else f's{st2}'} offen {OPT['st_r']}
        """)
    a(f"""
    s_branch K1_STAGED
    K1_NOBIN:
    """)
    if PE == "4":
        a(f"""
        v_mov_b32 v2, 0
        ds_write_b32 v2, v2 offset:{K1_CNT}
        s_waitcnt lgkmcnt(0)
        s_barrier
        s_cmp_lt_u32 s{sw}, 10
        s_cbranch_scc1 K1_WAITX
        v_subrev_u32 v30, 640, v0
        v_lshlrev_b32 v30, 7, v30
        s_mov_b32 s{st0}, {384*128}
        buffer_load_dword v31, v30, {sr(sP,4)}, 0 offen
        buffer_load_dword v31, v30, {sr(sP,4)}, s{st0} offen
        s_endpgm
        K1_WAITX:
        v_mov_b32 v3, 1
        s_waitcnt vmcnt(0)
        s_mov_b64 exec, 1
        ds_add_u32 v2, v3 offset:{K1_CNT}
        s_mov_b64 exec, -1
        """)
        stamp(a, 2)
        a(f"""
        K1_SPIN:
        ds_read_b32 v3, v2 offset:{K1_CNT}
        s_waitcnt lgkmcnt(0)
        v_cmp_gt_u32 vcc, 10, v3
        s_cbranch_vccnz K1_SPIN
        """)
    else:
        a(f"s_waitcnt vmcnt({int(PE == '1')})")
        stamp(a, 2)
        a("s_barrier")
    stamp(a, 3)
    a(f"""
    K1_STAGED:
    s_cmp_ge_u32 s2, 252
    s_cbranch_scc1 K1_WC
    s_cmp_ge_u32 s{sw}, 10
    s_cbranch_scc1 K1_TAIL
    v_xor_b32 v24, 64, v29
    v_xor_b32 v25, 0x80, v29
    v_xor_b32 v26, 0xc0, v29
    """)
    for s in range(4): a(f"ds_read_b128 {vr(vX+4*s,4)}, v{[29,24,25,26][s]}")
    def trs(s):
        for m in range(2):
            for ab in range(2):
                for u in range(2):
                    a(f"ds_read_b64_tr_b16 {vr(W(m,ab,s)+2*u,2)}, v28 offset:{K1_W+m*16384+s*4096+u*512+ab*8}")
    def mm(s):
        for m in range(2):
            for ab in range(2):
                d = vr(vA+8*m+4*ab, 4)
                a(f"v_mfma_f32_16x16x32_bf16 {d}, {vr(W(m,ab,s),4)}, {vr(vX+4*s,4)}, {'0' if s == 0 else d}")
    trs(0); a("s_waitcnt lgkmcnt(6)")
    for s in range(1, 4):
        trs(s); a("s_waitcnt lgkmcnt(8)" if s < 3 else "s_waitcnt lgkmcnt(8)"); mm(s-1)
        if s < 3: a("s_waitcnt lgkmcnt(6)")
    a(f"s_waitcnt lgkmcnt(0)\ns_cmp_ge_u32 s2, 250\ns_cbranch_scc1 K1_WT")
    mm(3)
    stamp(a, 4)
    a("s_nop 7")
    for b in range(2):
        for ab in range(2):
            b0, b1 = vA+4*ab+b, vA+4*ab+2+b
            hs = [vA+8+4*ab+2*e_+b for e_ in range(2)]
            a(f"v_mul_f32 v{b0}, s{cnl2e}, v{b0}\nv_mul_f32 v{b1}, s{cnl2e}, v{b1}")
            for e_, h in enumerate(hs): a(f"v_max_f32 v{2+e_}, abs(v{h}), s{csign}\nv_bfi_b32 v{h}, s{cmag}, v{2+e_}, v{h}")
            a(f"v_cvt_pk_bf16_f32 v{b0}, v{b0}, v{b1}")
            for h in hs: a(f"v_add_u32 v{h}, 0x8000, v{h}")
            for e_, h in enumerate(hs): a(f"v_sub_u32_sdwa v{h}, v{h}, v{b0} dst_sel:DWORD dst_unused:UNUSED_PAD src0_sel:DWORD src1_sel:WORD_{e_}")
            for e_, h in enumerate(hs): a(f"v_perm_b32 v{4+4*b+2*ab+e_}, v{h}, v{b0}, s{cp0+e_}")
        a(f"buffer_store_dwordx4 {vr(4+4*b,4)}, v27, {sr(sT,4)}, s{ctso} offen offset:{128*b} {OPT['st_t']}")
    a("K1_TAIL:")
    stamp(a, 5)
    if PE in "235": prefetch_e()
    stamp(a, 6); stamp(a, 7)
    stamp_out(a, 0, 22, sw, 2)
    a("s_endpgm")
    a("K1_WT:")
    srd(a, sT, 22, WT_OFF, 65536)
    a(f"""
    s_cmp_ge_u32 s{sw}, 4
    s_cbranch_scc1 K1_END
    v_and_b32 v2, 63, v0
    v_lshlrev_b32 v2, 4, v2
    s_lshl_b32 s{st0}, s{snb}, 2
    s_lshl_b32 s{st1}, s{shf}, 1
    s_add_u32 s{st0}, s{st0}, s{st1}
    s_add_u32 s{st0}, s{st0}, s{sfb}
    s_lshl_b32 s{st0}, s{st0}, 13
    s_add_u32 s{st1}, s{st0}, 4096
    s_cmp_eq_u32 s{snb}, 0
    s_cbranch_scc0 K1_WU
    """)
    for m in range(2):
        for ab in range(2):
            for s in range(4):
                a(f"buffer_store_dwordx4 {vr(W(m,ab,s),4)}, v2, {sr(sT,4)}, s{st1 if ab else st0} offen offset:{1024*s} {OPT['st_t']}")
        a("s_endpgm")
        if m == 0: a("K1_WU:")
    a("K1_WC:")
    srd(a, sT, 22, WT_OFF+65536, 4096)
    srd(a, sW1, 16, None, 4096)
    a(f"""
    s_cmp_eq_u32 s2, 252
    s_cbranch_scc0 K1_END
    s_cmp_ge_u32 s{sw}, 4
    s_cbranch_scc1 K1_END
    v_and_b32 v2, 63, v0
    v_lshrrev_b32 v4, 5, v2
    v_and_b32 v5, 31, v0
    v_lshlrev_b32 v5, 2, v5
    v_lshl_add_u32 v5, v4, 11, v5
    v_lshlrev_b32 v3, 4, v2
    s_lshr_b32 s{st1}, s{sw}, 1
    s_lshl_b32 s{st1}, s{st1}, 7
    s_and_b32 s{st0}, s{sw}, 1
    s_lshl_b32 s{st0}, s{st0}, 1
    s_add_u32 s{st1}, s{st1}, s{st0}
    s_lshl_b32 s{st0}, s{sw}, 10
    """)
    for j in range(8):
        a(f"buffer_load_ushort v{44+j}, v5, {sr(sW1,4)}, s{st1} offen offset:{256*j}")
    a("s_waitcnt vmcnt(0)")
    for j in range(8):
        a(f"v_lshlrev_b32 v{44+j}, 16, v{44+j}\nv_mul_f32 v{44+j}, s{cnl2e}, v{44+j}")
    for j in range(4):
        a(f"v_cvt_pk_bf16_f32 v{52+j}, v{44+2*j}, v{45+2*j}")
    a(f"buffer_store_dwordx4 v[52:55], v3, {sr(sT,4)}, s{st0} offen {OPT['st_t']}")
    a("K1_END:\ns_endpgm")
    return a.text(), kd("k1_kernel", 128, 102)

CAPG = 416; RND = 400
CNT = 0; FLG = 256; START = 512; INCL = 768; OHL = 1024; L1 = 1536; L2 = L1 + 4*CAPG*4; APL = L2 + 4*CAPG*4
ROWP = 272
UL = APL + 48*ROWP; LUTL = UL + 48*ROWP; STG = (LUTL + 65536 + 255)//256*256; XL = STG + 3*CAPG*32 + 5*1024; K2_LDS = XL + 12288
PROG = FLG + 32
assert K2_LDS <= 163840 and K2_LDS >= STG + 4*CAPG*32 and LUTL <= 65535 and (4*CAPG*4) % 256 == 0

def gen_k2():
    a = Asm()
    sREC, sX, sWT, sT, sE, sO, sD, sS = 24, 28, 32, 36, 40, 44, 68, 72
    sw, sg, sfh, st0, st1, st2 = 48, 49, 50, 51, 52, 53
    scount, sslow, sround, slim, sgb, srt, slut, srank = 54, 55, 56, 57, 58, 59, 82, 83
    stail = 20
    sdma, sm0, sneed = 21, 22, 23
    cm32, c128, cnl2e, cfc, csrc, cm40, cm10, cfe = 60, 61, 62, 63, 64, 65, 66, 67
    sk = 16
    vH16, vA1, vA2, vEa, vOa, vO, vA3 = 1, 2, 3, 4, 5, 6, 7
    WC = 8; AP = 16; PA = 24; SC = 28; OH = 32; EA = 40; ADDR = 48; ACC = 64; SP = 96; G = 112; RAW = 176
    XR = 240; UR = 246; vP16 = 252; vH256 = 253; vHS = 254; vPG = 255; vM15 = XR; vO2 = SP+8
    raw = lambda p, b: RAW + 32*p + 16*b
    gb = lambda p, b: G + 32*p + 16*b
    vt = gb(1, 1); Z = SP; EOFF = SP+14
    REC = raw(1, 0); CADDR = REC+16; RANK = G; STV = G+16
    NTB = [int(c_) for c_ in OPT.get("nt", "11")]
    rowoff = lambda r: 8*(r >> 2) + (r & 3)
    sd = "dst_sel:DWORD dst_unused:UNUSED_PAD src0_sel:DWORD"

    a("k2_kernel:")
    a(f"s_cmp_ge_u32 s2, {NBIN}\ns_cbranch_scc1 K2_END")
    stamp(a, 0)
    a(f"""
    s_load_dwordx8 s[4:11], s[0:1], 0
    s_load_dwordx2 s[12:13], s[0:1], 72
    s_load_dwordx2 s[14:15], s[0:1], 88
    v_lshrrev_b32 v{vt}, 6, v0
    v_lshrrev_b32 v{vt+1}, 2, v0
    v_readfirstlane_b32 s{sw}, v{vt}
    v_and_b32 v{vt+2}, 3, v0
    v_lshlrev_b32 v{vt+3}, 7, v{vt+1}
    v_lshl_add_u32 v{vt+3}, v{vt+2}, 4, v{vt+3}
    s_lshl_b32 s{st0}, s2, 14
    s_add_u32 s{st0}, s{st0}, {REC_OFF}
    v_and_b32 v{vt}, 63, v0
    v_lshlrev_b32 v{vt+5}, 3, v{vt}
    v_mov_b32 v{Z}, 0
    v_mov_b32 v{Z+1}, 0
    ds_write_b64 v{vt+5}, {vr(Z,2)} offset:{CNT}
    s_and_b32 s{sg}, s{sw}, 3
    s_lshr_b32 s{sfh}, s{sw}, 2
    v_lshlrev_b32 v{vA2}, 4, v{vt}
    s_mov_b32 s{st1}, 8192
    s_waitcnt lgkmcnt(0)
    s_cmp_lg_u32 s{sfh}, 0
    s_cbranch_scc1 K2_NOREC
    """)
    srd(a, sREC, 14, f"s{st0}", 16384)
    for u in range(2):
        for r in range(2):
            a(f"buffer_load_dwordx4 {vr(REC+8*r+4*u,4)}, v{vt+3}, {sr(sREC,4)}, {'s%d' % st1 if u else '0'} offen offset:{64*r}")
    a(f"""
    K2_NOREC:
    s_mul_i32 s{st0}, s2, 625
    s_add_u32 s{cm40}, s{st0}, 625
    s_lshr_b32 s{st0}, s{st0}, 4
    s_lshr_b32 s{cm40}, s{cm40}, 4
    s_sub_u32 s{cm40}, s{cm40}, s{st0}
    s_lshl_b32 s{cm40}, s{cm40}, 8
    s_lshl_b32 s{st0}, s{st0}, 8
    """)
    srd(a, sX, 4, f"s{st0}", f"s{cm40}")
    srd(a, sO, 12, f"s{st0}", f"s{cm40}")
    srd(a, sWT, 14, WT_OFF, LUT_OFF - WT_OFF + 65536)
    a("s_barrier")
    stamp(a, 1)
    def ld_wc():
        a(f"""
        s_lshl_b32 s{st1}, s{sfh}, 11
        s_add_u32 s{st1}, s{st1}, 65536
        buffer_load_dwordx4 {vr(WC,4)}, v{vA2}, {sr(sWT,4)}, s{st1} offen
        buffer_load_dwordx4 {vr(WC+4,4)}, v{vA2}, {sr(sWT,4)}, s{st1} offen offset:1024
        """)
    def common1(Z, vl):
        a = Asm()
        a(f"s_lshl_b32 s{st0}, s{sfh}, 8\ns_add_u32 s{st0}, s{st0}, {T_OFF-128}")
        srd(a, sT, 14, f"s{st0}", 64, w3="0x800000", hi_or="0x40000")
        srd(a, sE, 6, None, E*32)
        a(f"""
        s_mov_b32 s{cm32}, {'0x7e0' if 'e' in OPT.get('nomem','') else '0x1fffe0' if 's' in OPT.get('nomem','') else '0xffffffe0'}
        s_mov_b32 s{c128}, 128
        s_mov_b32 s{cnl2e}, {NL2E:#x}
        s_mov_b32 s{cfc}, 0xfc
        s_mov_b32 s{cfe}, {OPT.get('cfe', '0xfffe')}
        s_mov_b32 s{csrc}, {TS}
        s_mov_b32 s{sslow}, 0
        s_mov_b32 s{sround}, 0
        s_mov_b32 s{sgb}, 0
        s_mul_i32 s{st0}, s{sfh}, 3
        s_xor_b32 s{srank}, s{sg}, s{st0}
        v_lshrrev_b32 v{Z+2}, 5, v{vl}
        v_and_b32 v{Z+3}, 31, v0
        v_lshlrev_b32 v{vH16}, 4, v{Z+2}
        v_lshlrev_b32 v{vH256}, 8, v{Z+2}
        v_cmp_eq_u32 vcc, 0, v{Z+2}
        v_mov_b32 v{vM15}, 0xffff
        v_mov_b32 v{Z+4}, -1
        v_cndmask_b32 v{vM15}, v{vM15}, v{Z+4}, vcc
        v_and_b32 v{Z+4}, 3, v0
        v_mov_b32 v{Z+6}, 0x3f80
        """)
        for i in range(4):
            a(f"v_cmp_eq_u32 vcc, {i}, v{Z+4}\ns_nop 1\nv_cndmask_b32 v{PA+i}, 0, v{Z+6}, vcc")
        den = bf(127*2.0**-116); tiny = bf(2.0**-100)
        a(f"""
        v_cmp_gt_u32 s[78:79], 16, v{Z+3}
        v_mov_b32 v{Z+5}, {den:#x}
        v_mov_b32 v{Z+7}, {tiny<<16:#x}
        v_cndmask_b32 v{Z+5}, v{Z+6}, v{Z+5}, s[78:79]
        v_cndmask_b32 v{Z+7}, 0, v{Z+7}, s[78:79]
        v_and_b32 v{Z+4}, 15, v0
        v_lshlrev_b32 v{Z+8}, 3, v{Z+2}
        v_sub_u32 v{Z+4}, v{Z+4}, v{Z+8}
        v_lshlrev_b32 v{Z+6}, 16, v{Z+5}
        """)
        for d in range(4):
            a(f"""
            v_cmp_eq_u32 vcc, {2*d}, v{Z+4}
            v_cmp_eq_u32 s[78:79], {2*d+1}, v{Z+4}
            s_nop 0
            v_cndmask_b32 v{SC+d}, 0, v{Z+5}, vcc
            v_cndmask_b32 v{Z+8}, 0, v{Z+6}, s[78:79]
            v_or_b32 v{SC+d}, v{SC+d}, v{Z+8}
            """)
        a(f"""
        v_and_b32 v{SC+3}, v{SC+3}, v{vM15}
        v_not_b32 v{Z+8}, v{vM15}
        v_and_b32 v{Z+8}, v{Z+8}, v{Z+7}
        v_or_b32 v{SC+3}, v{SC+3}, v{Z+8}
        """)
        return [x.strip() for x in a.l]
    def ld_xr(): return [f"buffer_load_dword v{XR+r}, v{vO}, {sr(sX,4)}, 0 offen offset:{256*rowoff(r)} " for r in range(6)]
    def arrive(k):
        a(f"""
        v_mov_b32 v{vt+6}, {FLG+4*k}
        v_mov_b32 v{vt+7}, 1
        s_mov_b64 exec, 1
        ds_add_u32 v{vt+6}, v{vt+7}
        s_mov_b64 exec, -1
        """)
    def spin(k, n, add=True):
        if add: arrive(k)
        else: a(f"v_mov_b32 v{vt+6}, {FLG+4*k}")
        a(f"""
        K2_SPIN{n}:
        ds_read_b32 v{vt+7}, v{vt+6}
        s_waitcnt lgkmcnt(0)
        v_cmp_gt_u32 vcc, 4, v{vt+7}
        s_cbranch_vccnz K2_SPIN{n}
        """)
    def caddr(k): return f"v_and_b32_sdwa v{CADDR+k}, s{cfc}, v{REC+k} {sd} src1_sel:BYTE_3"
    def pick(sel, cur):
        a(f"""
        s_bitcmp1_b32 s{sel}, 0
        s_cselect_b32 s{cur[0]}, s{cur[1]}, s{cur[0]}
        s_cselect_b32 s{cur[2]}, s{cur[3]}, s{cur[2]}
        s_bitcmp1_b32 s{sel}, 1
        s_cselect_b32 s{st0}, s{cur[2]}, s{cur[0]}
        s_and_b32 s{sg}, s{st0}, 3
        s_andn2_b32 s{st0}, s{st0}, 3
        s_mul_i32 s{sgb}, s{sg}, {CAPG*4}
        s_add_u32 s{scount}, s{st0}, 127
        s_lshr_b32 s{scount}, s{scount}, 7
        s_add_u32 s{stail}, s{st0}, 124
        s_bfe_u32 s{stail}, s{stail}, 0x20005
        s_lshl_b32 s{stail}, s{stail}, 1
        s_add_u32 s{stail}, s{stail}, 2
        """)
    def rank_groups():
        for g in range(1, 4): a(f"s_or_b32 s{sk+g}, s{sk+g}, {g}")
        cur = [sk, sk+1, sk+2, sk+3]; spare = sk+4
        for (i, j) in ((0, 1), (2, 3), (0, 2), (1, 3), (1, 2)):
            a(f"s_max_u32 s{spare}, s{cur[i]}, s{cur[j]}\ns_min_u32 s{cur[j]}, s{cur[i]}, s{cur[j]}")
            cur[i], spare = spare, cur[i]
        pick(srank, cur)
    def scan(fast, ks=()):
        x = SP
        a(f"""
        v_and_b32 v{vt}, 63, v0
        v_lshlrev_b32 v{vt+1}, 2, v{vt}
        ds_read_b32 v{x}, v{vt+1} offset:{CNT}
        v_lshrrev_b32 v{vt}, 4, v{vt}
        v_mul_u32_u24 v{vt}, {CAPG*4}, v{vt}
        v_and_b32 v{vt+2}, 31, v0
        v_lshlrev_b32 v{vt+2}, 2, v{vt+2}
        v_mov_b32 v{vt+4}, 0xfffffe
        s_waitcnt lgkmcnt(0)
        v_sub_u32 v{vt}, v{vt}, v{x}
        """)
        for d in ("row_shr:1", "row_shr:2", "row_shr:4", "row_shr:8"):
            a(f"v_add_u32_dpp v{x}, v{x}, v{x} {d} row_mask:0xf bank_mask:0xf bound_ctrl:0\ns_nop 1")
        a(f"""
        v_add_u32 v{vt}, v{vt}, v{x}
        v_cmp_lt_u32 vcc, {CAPG*4}, v{x}
        ds_write2st64_b32 v{vt+1}, v{vt}, v{x} offset0:{START//256} offset1:{INCL//256}
        """)
        for g in range(4): a(f"v_readlane_b32 s{sk+g}, v{x}, {16*g+15}")
        if fast:
            a("s_cbranch_vccnz K2_GIVEUP")
            for j, k in enumerate(ks): a(f"ds_read_b32 v{STV+j}, v{CADDR+k} offset:{START}")
            rank_groups()
        else:
            for g in range(1, 4): a(f"s_or_b32 s{sk+g}, s{sk+g}, {g}")
            pick(sg, [sk, sk+1, sk+2, sk+3])
        a(f"""
        s_add_u32 s{st0}, s{st0}, s{sgb}
        v_add_u32 v{vt+2}, s{st0}, v{vt+2}
        s_lshl_b32 s{st1}, s{scount}, 7
        s_add_u32 s{st1}, s{st1}, s{sgb}
        v_lshlrev_b32 v{vt+3}, 3, v{vt+2}
        v_and_b32 v{vt+3}, 128, v{vt+3}
        v_cmpx_gt_u32 vcc, s{st1}, v{vt+2}
        ds_write2st64_b32 v{vt+2}, v{vt+3}, v{vt+4} offset0:{L1//256} offset1:{L2//256}
        s_mov_b64 exec, -1
        """)
    def place(k, st, eo):
        a(f"""
        v_add_u32 v{st}, v{st}, v{RANK+k}
        v_bfe_u32 v{vt}, v{REC+k}, 16, {5 if 't' in OPT.get('nomem','') else 14}
        v_lshlrev_b32 v{vt+1}, 3, v{st}
        v_mad_u32_u16 v{vt+2}, v{REC+k}, 2, v{eo}
        v_and_b32 v{vt+1}, 128, v{vt+1}
        v_mad_u32_u24 v{vt}, v{vt}, s{csrc}, v{vt+1}
        ds_write2st64_b32 v{st}, v{vt}, v{vt+2} offset0:{L1//256} offset1:{L2//256}
        """)
    def lane_setup():
        a(f"""
        v_and_b32 v{vt}, 31, v0
        v_xor_b32 v{vA1}, 16, v{vH16}
        v_xor_b32 v{vA2}, 4, v{vt}
        v_lshlrev_b32 v{vA2}, 2, v{vA2}
        v_add_u32 v{vA1}, s{sgb}, v{vA1}
        v_add_u32 v{vA2}, s{sgb}, v{vA2}
        s_mul_i32 s{st0}, s{sg}, {GN*256}
        s_lshl_b32 s{st1}, s{sfh}, 7
        s_add_u32 s{st0}, s{st0}, s{st1}
        v_lshlrev_b32 v{vO}, 2, v{vt}
        v_lshl_add_u32 v{vO}, v{vH256}, 2, v{vO}
        v_add_u32 v{vO}, s{st0}, v{vO}
        v_bfe_u32 v{vA3}, v0, 1, 5
        v_lshlrev_b32 v{vA3}, 2, v{vA3}
        v_add_u32 v{vA3}, s{sgb}, v{vA3}
        v_lshlrev_b32 v{vP16}, 4, v0
        v_xor_b32 v{vP16}, v{vP16}, v0
        v_and_b32 v{vP16}, 16, v{vP16}
        v_lshlrev_b32 v{vHS}, 1, v0
        v_xor_b32 v{vHS}, v{vHS}, v{vH16}
        v_and_b32 v{vHS}, 16, v{vHS}
        v_add_u32 v{vHS}, {STG}, v{vHS}
        s_lshl_b32 s{st0}, s{sg}, 2
        s_add_u32 s{st0}, s{st0}, {PROG}
        v_mov_b32 v{vPG}, s{st0}
        s_lshl_b32 s{sm0}, s{sgb}, 3
        s_add_u32 s{sm0}, s{sm0}, {STG}
        s_mov_b32 s{sdma}, 0
        s_mov_b32 s{sneed}, 0
        s_mov_b32 s{slim}, s{scount}
        """)
    def rd_addr(off, j): return f"ds_read_b128 {vr(ADDR+4*j,4)}, v{vA1} offset:{L1+off+32*j}"
    def rd_l2(reg, off): return f"ds_read_b32 v{reg}, v{vA2} offset:{L2+off}"
    def ld_raw(p, b, r):
        pre = [f"v_and_b32 v{ADDR+r}, 0xffff80, v{ADDR+r}"] if OPT.get("safe") else []
        if OPT.get("noload"): return ["s_nop 0"]
        return pre + [f"buffer_load_dword v{raw(p,b)+r}, v{ADDR+r}, {sr(sT,4)}, 0 offen" + (" offset:128" if b else "")]
    def ld_blk(p, b): return sum((ld_raw(p, b, r) for r in range(16)), [])
    cur = {"r": "P"}
    def rd_l3(off): return [f"ds_read_b32 v{vEa}, v{vA3} offset:{L2+off}"] if cur["r"] == "P" else []
    lab = [0]
    def dma_ea(sl):
        if cur["r"] != "P": return []
        lab[0] += 1
        return [f"s_cmp_lt_u32 s{sdma}, s{slim}", f"s_cbranch_scc0 K2_ND{lab[0]}", "@D{",
                f"s_mov_b32 m0, s{sm0}", f"v_and_or_b32 v{vEa}, v{vEa}, s{cm32}, v{vP16}",
                f"buffer_load_dwordx4 v{vEa}, {sr(sE,4)}, 0 offen lds;wr={300+sl}", "@}", f"K2_ND{lab[0]}:",
                f"s_add_u32 s{sdma}, s{sdma}, 1", f"s_add_u32 s{sm0}, s{sm0}, 1024"]
    spins = []
    def rd_prog(): return [f"ds_read_b32 v{vEa}, v{vPG}"] if cur["r"] == "C" else []
    def get_ea(p, sl, off):
        o = [f"s_add_u32 s{sneed}, s{sneed}, 1"]
        if cur["r"] == "P":
            o += [f"v_mov_b32 v{vEa}, s{sneed};rd={300+sl}", f"ds_write_b32 v{vPG}, v{vEa}"]
        else:
            lab[0] += 1; n = lab[0]; spins.append(n)
            o += [f"v_cmp_gt_u32 vcc, s{sneed}, v{vEa}", f"s_cbranch_vccnz K2_SP{n}", f"K2_OK{n}:"]
        return o + [f"v_lshl_add_u32 v{vEa}, v{vA2}, 3, v{vHS}", f"ds_read_b128 {vr(EA+4*p,4)}, v{vEa} offset:{8*off}"]
    def oh_idx(p):
        return [f"v_and_b32 v{vOa}, 30, v{vOa}",
                f"v_lshl_add_u32 v{vOa}, v{vOa}, 3, v{vH256}",
                f"ds_read_b128 {vr(OH+4*p,4)}, v{vOa} offset:{OHL}"]
    big = "v_mfma_f32_32x32x16_bf16" if not OPT.get("nobig") else "; "
    de = OPT.get("drop", "")
    def mE(p, b): return "; " if "E" in de else f"{big} {vr(gb(p,b),16)}, {vr(EA+4*p,4)}, {vr(WC+4*b,4)}, 0"
    def mA(p, b): return "; " if "A" in de else f"{big} {vr(gb(p,b),16)}, {vr(OH+4*p,4)}, {vr(AP+4*b,4)}, {vr(gb(p,b),16)}"
    def mS(p): return "; " if "S" in de else f"{big} {vr(SP,16)}, {vr(OH+4*p,4)}, {vr(SC,4)}, 0"
    def mG(p, b, j): return "; " if ("G" in de or ("g" in de and j & 1)) else f"{big} {vr(ACC+16*b,16)}, {vr(SP+4*j,4)}, {vr(gb(p,b)+4*j,4)}, {vr(ACC+16*b,16)}"
    def mP(p, b):
        o = []
        for u in range(2):
            for j in range(4):
                g = vr(gb(p,b)+4*j, 4)
                o.append(f"v_mfma_f32_4x4x4_16b_bf16 {g}, {vr(PA+2*u,2)}, {vr(raw(p,b)+4*j+2*u,2)}, {g}")
        return o
    def idx_pair(p, b, i):
        g0, g1 = gb(p,b)+2*i, gb(p,b)+2*i+1
        if i < NTB[b]:
            return [f"v_exp_f32 v{g0}, v{g0}", f"v_exp_f32 v{g1}, v{g1}", f"v_add_f32 v{g0}, 1.0, v{g0}",
                    f"v_add_f32 v{g1}, 1.0, v{g1}", f"v_rcp_f32 v{g0}, v{g0}", f"v_rcp_f32 v{g1}, v{g1}"], []
        return [f"v_cvt_pkrtz_f16_f32 v{g0}, v{g0}, v{g1}",
                f"v_and_b32_sdwa v{g1}, s{cfe}, v{g0} {sd} src1_sel:WORD_1",
                f"v_and_b32_sdwa v{g0}, s{cfe}, v{g0} {sd} src1_sel:WORD_0"], \
               [f"ds_read_u16_d16_hi v{g1}, v{g1} offset:{LUTL}", f"ds_read_u16_d16_hi v{g0}, v{g0} offset:{LUTL}"]
    def fin_pair(p, b, i):
        g0, r0 = gb(p,b)+2*i, raw(p,b)+2*i
        mul = [f"v_pk_mul_f32 {vr(r0,2)}, {vr(g0,2)}, {vr(r0,2)}"] if OPT.get("pk") else [f"v_mul_f32 v{r0}, v{g0}, v{r0}", f"v_mul_f32 v{r0+1}, v{g0+1}, v{r0+1}"]
        return mul + [
                f"v_cvt_pk_bf16_f32 v{g0}, v{g0}, v{r0}", f"v_cvt_pk_bf16_f32 v{g0+1}, v{g0+1}, v{r0+1}"]
    def zipl(x, y):
        o = []
        for k in range(max(len(x), len(y))):
            if k < len(x): o.append(x[k])
            if k < len(y): o.append(y[k])
        return o
    uid = [0]
    def W(kind):
        uid[0] += 1
        return f"@W{kind} {uid[0]}"
    WE = int(OPT.get("we", "1"))
    def slot(p, b, kind, acc=True, np_=8, npg=8):
        q = 1-p
        nxt = (p, 1) if b == 0 else (q, 0)
        do_idx = b == 0 or kind != "L"
        gs = [[mG(q if b == 0 else p, 1-b, j)] for j in range(npg//2)] if acc else []
        bigs = gs[:2]
        if kind != "L": bigs += [[mE(q, b)], [mA(q, b)]]
        bigs += gs[2:]
        if b == 0: bigs += [[mS(p)]]
        smalls = mP(q, b) if kind != "L" else []
        out = []
        nb = 0
        for i in range(8):
            if i >= np_:
                out += sum(bigs[nb:], []); nb = len(bigs)
                break
            iv, il = idx_pair(*nxt, i) if do_idx else ([], [])
            fv = fin_pair(p, b, i)
            seq = zipl(iv, fv) + il
            if kind == "F":
                seq += ld_raw(p, b, 2*i) + ld_raw(p, b, 2*i+1)
                if b == 1 and i & 1: seq.append(rd_addr((3+p)*128, i >> 1))
                if b == 0 and i == 1: seq += rd_l3((3+p)*128)
                if b == 1 and i == 0: seq = dma_ea(q) + seq
                if b == 1 and i == 1: seq += rd_prog()
                if b == 1 and i == 6: seq += get_ea(p, p, (2+p)*128)
                if b == 0 and i == 5: seq.append(rd_l2(vOa, (2+p)*128))
                if b == 1 and i == 2: seq += oh_idx(p)
            pre = [W("l")] if i % WE == 0 else []
            if cur["r"] == "P" and kind != "L":
                if (b, i) == (0, 0): pre.append("s_setprio 2")
                if (b, i) == divmod(int(OPT.get("fair", "12")), 8): pre.append("s_setprio 0")
            if i < 6:
                take = 2 if (len(bigs) - nb) > (6 - i) else 1
                if nb < len(bigs): pre += bigs[nb]; nb += 1
                if take == 2 and nb < len(bigs):
                    seq = seq[:6] + bigs[nb] + seq[6:]; nb += 1
            if smalls and i >= 5:
                k0, k1 = {5: (0, 2), 6: (2, 6), 7: (6, 8)}[i]
                sm = smalls[k0:k1]
                if i == 5: seq = seq[:4] + [W("v")] + zipl(sm, seq[4:])
                else: seq = zipl(sm, seq)
            out += pre + seq
        assert nb == len(bigs)
        return out
    def last(p, np_):
        n = f"{p}{cur['r']}{np_}"
        return ([f"K2_LAST{n}:"] + ld_xr() + slot(p, 0, "L", np_=np_) + ["s_nop 11"]*(np_ < 6) + slot(p, 1, "L", np_=np_, npg=np_)
                + ["s_nop 1"] + [mG(p, 1, j) for j in range(np_//2)])
    def body(p, kind):
        q = 1-p; n = f"{kind}{p}{cur['r']}"
        o0 = [f"K2_BODY{n}:"] + slot(p, 0, kind)
        o1 = [f"K2_MID{n}:"] + (ld_xr() if kind == "L" else []) + slot(p, 1, kind)
        if OPT.get("prof") == "7": o1 += ["s_mov_b32 m0, s98", "s_add_u32 s98, s98, 1", f"v_writelane_b32 v{UR+5}, s86, m0", "s_memrealtime s[86:87]"]
        if kind == "P":
            for np_ in (2, 4, 6): o1 += [f"s_cmp_eq_u32 s{stail}, {np_}", f"s_cbranch_scc1 K2_LAST{q}{cur['r']}{np_}"]
        if kind == "F":
            if p == 1: o1 += [f"v_add_u32 v{r_}, 256, v{r_}" for r_ in ((vA1, vA2, vA3) if cur["r"] == "P" else (vA1, vA2))]
            o1 += [f"s_sub_u32 s{scount}, s{scount}, 1", f"s_cmp_eq_u32 s{scount}, 2", f"s_cbranch_scc1 K2_BODYP{q}{cur['r']}"]
        return o0, o1
    def entry(kind):
        more = kind != "L"
        o = rd_prog() + [W("v"), W("l")] + get_ea(0, 0, 0)
        if more: o += rd_prog()
        o += [W("l"), "@STAMP", mE(0, 0), mA(0, 0), mE(0, 1), mA(0, 1), "s_nop 7", W("v")] + mP(0, 0) + ["s_nop 3"]
        for i in range(8):
            v_, l_ = idx_pair(0, 0, i)
            o += [W("l")] + ([v_[0], v_[1], "s_nop 0"] + v_[2:] if i < NTB[0] else v_) + l_
            if more:
                for r_ in range(4*(i & 3), 4*(i & 3)+4): o += ld_raw(1, i >> 2, r_)
                if i >= 4: o.append(rd_addr(256, i-4))
                if i == 4: o += [W("v")] + get_ea(1, 1, 128) + rd_l3(256)
                if i == 7: o += dma_ea(0)
            if i == 3: o += [W("v")] + mP(0, 1)
        return o + slot(0, 0, kind, acc=False) + [f"s_branch K2_MID{kind}0{cur['r']}"]
    def drain(p): return ["s_nop 1"] + [mG(p, 1, j) for j in range(4)]
    def mk_fill():
        ad = [rd_addr(0, j) for j in range(4)]
        t0 = SP
        o = []
        if cur["r"] == "P":
            o = (rd_l3(0) + [f"ds_read_b32 v{t0}, v{vA3} offset:{L2+128}"])
        o += ad + [rd_l2(vOa, 0), rd_l2(t0+1, 128)]
        if cur["r"] == "P":
            o += ["s_waitcnt lgkmcnt(6)"] + dma_ea(0) + [f"v_mov_b32 v{vEa}, v{t0}"]
        d1 = dma_ea(1)
        late1 = OPT.get("d1", "1") == "1"
        o += ([] if late1 else d1) + ["s_waitcnt lgkmcnt(0)"] + ld_blk(0, 0) + oh_idx(0) + [f"v_mov_b32 v{vOa}, v{t0+1}"] + oh_idx(1) + ld_blk(0, 1) + (d1 if late1 else [])
        return o + [rd_addr(128, j) for j in range(4)]
    FI, B, EN, LA_ = {}, {}, {}, {}
    for r in "PC":
        cur["r"] = r
        FI[r] = mk_fill()
        for k in "FPL":
            EN[r, k] = entry(k)
            for p in range(2): B[r, p, k] = body(p, k)
        for p in range(2):
            for np_ in (2, 4, 6, 8): LA_[r, p, np_] = last(p, np_)
    def trace(r, cnt, np_=8):
        kinds = ["F"]*(cnt-2) + ["P", "L"][-min(cnt, 2):]
        tr = FI[r] + EN[r, kinds[0]] + B[r, 0, kinds[0]][1]
        for t in range(1, cnt-1): tr += B[r, t & 1, kinds[t]][0] + B[r, t & 1, kinds[t]][1]
        tr += drain(0) if cnt == 1 else LA_[r, (cnt-1) & 1, np_]
        o = []; keep = True; nd = 0
        for x in tr:
            if x == "@D{": keep = nd < cnt; nd += 1
            elif x == "@}": keep = True
            elif keep and x != "@STAMP": o.append(x)
        return o
    epi_head = ["s_branch x", "s_cmp", "s_cbranch", "s_waitcnt vmcnt(0) lgkmcnt(0)"] + [f"v_add_f32 v{ACC+r_}, 0, v{ACC+r_}" for r_ in range(6)]
    cases = [(r, c, n_) for c in range(1, 9) for r in "PC" for n_ in (2, 4, 6, 8)]
    need = asmsim.solve_waits([trace(*c) for c in cases])
    for c in cases: asmsim.check_hazards(asmsim.apply_waits(trace(*c), need) + epi_head, f"case {c}")
    def emit(l):
        for x in asmsim.apply_waits(l, need):
            if x == "@STAMP":
                stamp(a, 5); stamp(a, 5, "3"); stamp(a, 7, "4")
                if OPT.get("prof") == "7": a("s_memrealtime s[86:87]\ns_mov_b32 s98, 1")
                if OPT.get("prof") == "3": a(f"s_memtime s[86:87]\ns_mov_b32 s90, s{scount}\ns_getreg_b32 s92, hwreg(HW_REG_HW_ID)")
            elif x[0] != "@": a(x.split(";")[0])
    def main_loop(r):
        a(f"""
        K2_GO{r}:
        s_cmp_eq_u32 s{scount}, 0
        s_cbranch_scc1 K2_EMPTY
        s_cmp_gt_u32 s{scount}, 2
        s_cbranch_scc1 K2_ENTF{r}
        s_cmp_eq_u32 s{scount}, 2
        s_cbranch_scc1 K2_ENTP{r}
        """)
        emit(EN[r, "L"]); a(f"K2_ENTP{r}:"); emit(EN[r, "P"]); a(f"K2_ENTF{r}:"); emit(EN[r, "F"])
        a(".p2align 6")
        for p in range(2): emit(B[r, p, "F"][0] + B[r, p, "F"][1])
        a(f"s_branch K2_BODYF0{r}")
        emit(B[r, 0, "L"][1] + drain(0)); a("s_branch K2_DONE")
        for p in range(2):
            for np_ in (2, 4, 6): emit(LA_[r, p, np_]); a("s_branch K2_DONE")
        for p in range(2):
            emit(B[r, p, "P"][0] + B[r, p, "P"][1] + LA_[r, 1-p, 8])
            if p == 0 or r == "P": a("s_branch K2_DONE")
    def fill(n):
        a(f"s_cmp_eq_u32 s{scount}, 0\ns_cbranch_scc1 K2_FILLED{n}")
        emit(FI[n])
        a(f"K2_FILLED{n}:")
    def ap_addr():
        a(f"""
        v_bfe_u32 v{vt}, v0, 2, 2
        v_lshrrev_b32 v{vt+1}, 1, v{vH16}
        v_add_u32 v{vt}, v{vt}, v{vt+1}
        v_mul_u32_u24 v{vt}, {ROWP}, v{vt}
        v_bfe_u32 v{vt+2}, v0, 4, 1
        v_lshl_add_u32 v{vt}, v{vt+2}, 5, v{vt}
        v_and_b32 v{vt+2}, 3, v0
        v_lshl_add_u32 v{vt}, v{vt+2}, 3, v{vt}
        s_mul_i32 s{st0}, s{sg}, {GN*ROWP}
        s_lshl_b32 s{st1}, s{sfh}, 7
        s_add_u32 s{st0}, s{st0}, s{st1}
        v_add_u32 v{vt}, s{st0}, v{vt}
        v_mul_u32_u24 v{vt+1}, {ROWP//2}, v{vt+1}
        v_and_b32 v{vt+2}, 31, v0
        v_lshl_add_u32 v{vt+1}, v{vt+2}, 2, v{vt+1}
        v_add_u32 v{vt+1}, s{st0}, v{vt+1}
        """)
    def ap_read():
        a(f"""
        ds_read_b64_tr_b16 {vr(AP,2)}, v{vt} offset:{APL}
        ds_read_b64_tr_b16 {vr(AP+2,2)}, v{vt} offset:{APL+4*ROWP}
        ds_read_b64_tr_b16 {vr(AP+4,2)}, v{vt} offset:{APL+64}
        ds_read_b64_tr_b16 {vr(AP+6,2)}, v{vt} offset:{APL+4*ROWP+64}
        """)
        for r in range(6): a(f"ds_read_b32 v{UR+r}, v{vt+1} offset:{UL+ROWP*rowoff(r)}")
        a(f"""
        s_waitcnt lgkmcnt(6)
        v_and_b32 v{AP+3}, v{AP+3}, v{vM15}
        v_and_b32 v{AP+7}, v{AP+7}, v{vM15}
        """)
    def init_addr():
        for r in range(16): a(f"v_mov_b32 v{ADDR+r}, 128")
    def zero_acc():
        for r in range(32): a(f"v_mov_b32 v{ACC+r}, 0")

    a(f"s_cmp_lg_u32 s{sfh}, 0\ns_cbranch_scc1 K2_LOADER")
    ld_wc()
    a.ext(common1(SP, vt))
    a(f"v_and_b32 v{vt+3}, 15, v0\nv_lshlrev_b32 v{vt+3}, 4, v{vt+3}\nv_bfe_u32 v{vt+4}, v0, 4, 2\nv_lshl_add_u32 v{vt+3}, v{vt+4}, 10, v{vt+3}\ns_lshl_b32 s{st0}, s{sg}, 8\nv_add_u32 v{vt+3}, s{st0}, v{vt+3}")
    a(f"v_add_u32 v{vt+4}, 40960, v{vt+3}")
    for val, rg, runs in ((0x3f003f00, EA, (0, 3, 32, 35)), (0, EA+4, (23, 27)), (0x3f803f80, OH, (51, 55, 59))):
        for j in range(4): a(f"v_mov_b32 v{rg+j}, {val:#x}")
        for c0 in runs:
            a(f"ds_write_b128 v{vt+4 if c0 >= 24 else vt+3}, {vr(rg,4)} offset:{LUTL + 1024*(c0 - (40 if c0 >= 24 else 0))}")
    a(f"""
    v_and_b32 v{vt+3}, 127, v0
    v_bfe_u32 v{vt+4}, v0, 2, 4
    v_and_b32 v{Z+4}, 3, v0
    v_lshrrev_b32 v{Z+5}, 6, v{vt+3}
    v_lshlrev_b32 v{vt+3}, 2, v{vt+3}
    v_lshl_add_u32 v{Z+4}, v{Z+5}, 2, v{Z+4}
    v_lshlrev_b32 v{Z+5}, 1, v{Z+4}
    v_mov_b32 v{Z+6}, 0x3f80
    v_mov_b32 v{Z+7}, 0x3f800000
    v_cmp_eq_u32 vcc, v{Z+5}, v{vt+4}
    v_add_u32 v{Z+5}, 1, v{Z+5}
    s_nop 0
    v_cndmask_b32 v{Z+8}, 0, v{Z+6}, vcc
    v_cmp_eq_u32 vcc, v{Z+5}, v{vt+4}
    v_cmp_eq_u32 s[78:79], 7, v{Z+4}
    s_or_b64 vcc, vcc, s[78:79]
    s_nop 1
    v_cndmask_b32 v{Z+9}, 0, v{Z+7}, vcc
    v_or_b32 v{Z+8}, v{Z+8}, v{Z+9}
    v_cmp_gt_u32 vcc, 15, v{vt+4}
    s_nop 1
    v_cndmask_b32 v{Z+8}, 0, v{Z+8}, vcc
    ds_write_b32 v{vt+3}, v{Z+8} offset:{OHL}
    """)
    a(f"""
    v_mul_u32_u24 v{EOFF}, {CS*32}, v{vt+1}
    v_add_u32 v{EOFF+1}, {64*CS*32}, v{EOFF}
    v_mov_b32 v{vt+3}, 4
    """)
    init_addr()
    a("s_waitcnt vmcnt(2)")
    stamp(a, 2); stamp(a, 1, "5")
    a(f"""
    v_cmp_eq_u32 vcc, -2, v{REC+11}
    v_cmp_eq_u32 s[78:79], -2, v{REC+15}
    s_or_b64 vcc, vcc, s[78:79]
    s_cbranch_vccz K2_NOOVF
    v_mov_b32 v{vt+4}, 0x10000
    v_mov_b32 v{vt}, 60
    ds_add_u32 v{vt}, v{vt+4} offset:{CNT}
    K2_NOOVF:
    """)
    M = [68, 70, 72, 74, 76, 78]
    KS = [[4*u+i for i in range(4)] + [8+4*u, 9+4*u] for u in range(2)]
    def masked(u, fn):
        for j, k in enumerate(KS[u]): a(f"v_cmp_gt_u32 {sr(M[j],2)}, -2, v{REC+k}")
        for j, k in enumerate(KS[u]): a(f"s_mov_b64 exec, {sr(M[j],2)}\n{fn(k, 6*u+j)}")
        a("s_mov_b64 exec, -1")
    for k in KS[0] + KS[1]: a(caddr(k))
    for u in range(2): masked(u, lambda k, j: f"ds_add_rtn_u32 v{RANK+k}, v{CADDR+k}, v{vt+3} offset:{CNT}")
    a(f"v_min_u32 v{vt+4}, v{REC+10}, v{REC+14}\nv_cmp_gt_u32 s[26:27], -2, v{vt+4}")
    LA, LB = raw(0, 0), raw(0, 1)
    for u in range(2):
        for j, k in enumerate(KS[u]):
            a(f"v_bfe_u32 v{LA+6*u+j}, v{REC+k}, 16, {5 if 't' in OPT.get('nomem','') else 14}\nv_mad_u32_u16 v{LB+6*u+j}, v{REC+k}, 2, v{EOFF+u}")
    for j in range(12): a(f"v_mul_u32_u24 v{LA+j}, s{csrc}, v{LA+j}")
    def steps(tag, fn):
        a(f"s_cmp_eq_u64 s[26:27], 0\ns_cbranch_scc1 K2_{tag}1\ns_waitcnt lgkmcnt(0)")
        for u in range(2):
            for k in (10+4*u, 11+4*u):
                a(f"v_cmpx_gt_u32 vcc, -2, v{REC+k}\ns_cbranch_execz K2_{tag}{u}")
                fn(k, u)
            a(f"K2_{tag}{u}:\ns_mov_b64 exec, -1")
    steps("C", lambda k, u: a(f"{caddr(k)}\nds_add_rtn_u32 v{RANK+k}, v{CADDR+k}, v{vt+3} offset:{CNT}"))
    stamp(a, 2, "5")
    spin(0, "A")
    stamp(a, 3, "5")
    scan(True, KS[0] + KS[1])
    a("s_waitcnt lgkmcnt(1)")
    stamp(a, 4, "5")
    for j, k in enumerate(KS[0] + KS[1]): a(f"v_add_u32 v{STV+j}, v{STV+j}, v{RANK+k}")
    for j, k in enumerate(KS[0] + KS[1]): a(f"v_lshlrev_b32 v{RANK+k}, 3, v{STV+j}")
    for j, k in enumerate(KS[0] + KS[1]): a(f"v_and_or_b32 v{LA+j}, v{RANK+k}, s{c128}, v{LA+j}")
    for u in range(2): masked(u, lambda k, j: f"ds_write2st64_b32 v{STV+j}, v{LA+j}, v{LB+j} offset0:{L1//256} offset1:{L2//256}")
    def put_step(k, u):
        a(f"ds_read_b32 v{STV+12}, v{CADDR+k} offset:{START}\ns_waitcnt lgkmcnt(0)")
        place(k, STV+12, EOFF+u)
    steps("P", put_step)
    stamp(a, 5, "5")
    lane_setup()
    stamp(a, 6, "5")
    spin(1, "B")
    stamp(a, 3); stamp(a, 7, "5")
    a("K2_REFILLP:")
    fill("P")
    stamp(a, 4)
    a(f"s_cmp_lg_u32 s{sslow}, 0\ns_cbranch_scc1 K2_GOP")
    zero_acc()
    ap_addr()
    spin(3, "D", add=False)
    ap_read()
    main_loop("P")
    a("K2_GIVEUP:")
    zero_acc()
    arrive(1)
    spin(3, "E", add=False)
    a("s_branch K2_SLOW")
    assert XL % 256 == 0
    XF = G; WT = [ACC, raw(0, 0)]
    accs = [[[raw(1,0)+8*nb, raw(1,0)+8*nb+4] for nb in range(3)], [[raw(1,1)+8, raw(1,1)+12], [SP, SP+4], [SP+8, ADDR]]]
    a(f"""
    K2_LOADER:
    v_lshrrev_b32 v{vt+4}, 4, v{vt}
    s_lshl_b32 s{st1}, s{sg}, 2
    v_add_u32 v{vA1}, s{st1}, v{vt+4}
    v_and_b32 v{vt+5}, 15, v0
    v_xor_b32 v{vA1}, v{vA1}, v{vt+5}
    v_lshlrev_b32 v{vA1}, 4, v{vA1}
    v_lshl_add_u32 v{vA1}, v{vt+4}, 8, v{vA1}
    s_lshl_b32 s{st1}, s{sg}, 10
    """)
    for k in range(3):
        a(f"""
        s_add_u32 m0, s{st1}, {XL+4096*k}
        s_add_u32 s{st2}, s{st1}, {4096*k}
        buffer_load_dwordx4 v{vA1}, {sr(sX,4)}, s{st2} offen lds
        """)
    stamp(a, 1, "6")
    srot = sk
    a(f"s_lshl_b32 s{slut}, s{sg}, 13\ns_lshr_b32 s{srt}, s2, 3")
    for j in range(4):
        a(f"s_add_u32 s{srot+j}, s{srt}, {j}\ns_and_b32 s{srot+j}, s{srot+j}, 3\ns_lshl_b32 s{srot+j}, s{srot+j}, 10\ns_add_u32 s{st2}, s{slut}, s{srot+j}")
        for m in range(2):
            for hf in range(2):
                a(f"buffer_load_dwordx4 {vr(WT[m]+16*hf+4*j,4)}, v{vA2}, {sr(sWT,4)}, s{st2} offen")
                if (m, hf) != (1, 1): a(f"s_add_u32 s{st2}, s{st2}, {4096 if hf == 0 else 32768-4096}")
    stamp(a, 2, "6")
    a(f"""
    s_lshl_b32 s{st0}, s{sg}, 12
    s_add_u32 m0, s{st0}, {LUTL + 7*1024}
    s_add_u32 s{st2}, s{st0}, {LUT_OFF - WT_OFF + 7*1024}
    """)
    for j in range(4): a(f"buffer_load_dwordx4 v{vA2}, {sr(sWT,4)}, s{st2} offen offset:{1024*j} lds")
    a(f"""
    s_mul_i32 s{st0}, s{sg}, 3072
    s_add_u32 m0, s{st0}, {LUTL + 39*1024}
    s_add_u32 s{st2}, s{st0}, {LUT_OFF - WT_OFF + 39*1024}
    """)
    for j in range(3): a(f"buffer_load_dwordx4 v{vA2}, {sr(sWT,4)}, s{st2} offen offset:{1024*j} lds")
    a(f"""
    s_and_b32 s{st0}, s{sg}, 1
    s_lshl_b32 s{st0}, s{st0}, 15
    s_add_u32 m0, s{st0}, {LUTL + 31*1024}
    s_add_u32 s{st2}, s{st0}, {LUT_OFF - WT_OFF + 31*1024}
    buffer_load_dwordx4 v{vA2}, {sr(sWT,4)}, s{st2} offen lds
    """)
    ld_wc()
    stamp(a, 3, "6")
    a(f"""
    s_waitcnt vmcnt(26)
    """)
    arrive(2)
    a(f"""
    v_mov_b32 v{vt+8}, v{vt}
    v_and_b32 v{vt}, 15, v0
    v_bfe_u32 v{vt+1}, v0, 4, 2
    v_xor_b32 v{vt+2}, v{vt}, v{vt+1}
    v_lshlrev_b32 v{vt+2}, 4, v{vt+2}
    v_lshl_add_u32 v{vt+2}, v{vt}, 8, v{vt+2}
    v_add_u32 v{vt+2}, {XL}, v{vt+2}
    v_mul_u32_u24 v{vt}, {ROWP}, v{vt}
    """)
    stamp(a, 2); stamp(a, 5, "6")
    spin(2, "C", add=False)
    stamp(a, 6, "6")
    for s in range(4):
        a(f"s_lshr_b32 s{st0}, s{srot+s}, 4\nv_xor_b32 v{vt+3}, s{st0}, v{vt+2}")
        for nb in range(3):
            a(f"ds_read_b128 {vr(XF+16*nb+4*s,4)}, v{vt+3} offset:{4096*nb}")
    a(f"""
    s_lshr_b32 s{st0}, s{sg}, 1
    s_lshl_b32 s{st0}, s{st0}, 7
    s_and_b32 s{st1}, s{sg}, 1
    s_lshl_b32 s{st1}, s{st1}, 5
    s_add_u32 s{st0}, s{st0}, s{st1}
    v_lshl_add_u32 v{vt+4}, v{vt+1}, 3, v{vt}
    v_add_u32 v{vt+4}, s{st0}, v{vt+4}
    s_lshl_b32 s{st0}, s{sg}, 6
    v_lshl_add_u32 v{vt+5}, v{vt+1}, 4, v{vt}
    v_add_u32 v{vt+5}, s{st0}, v{vt+5}
    """)
    def mm1(m, s):
        return [f"v_mfma_f32_16x16x32_bf16 {vr(accs[m][nb][ab], 4)}, {vr(WT[m]+16*ab+4*s,4)}, {vr(XF+16*nb+4*s,4)}, {'0' if s == 0 else vr(accs[m][nb][ab], 4)}"
                for nb in range(3) for ab in range(2)]
    outA = []
    for nb in range(3):
        al, be = accs[0][nb]; o = EA+ (0 if nb != 1 else 4)
        for i in range(4): outA += [f"v_mul_f32 v{al+i}, s{cnl2e}, v{al+i}", f"v_mul_f32 v{be+i}, s{cnl2e}, v{be+i}"]
        outA += [f"v_cvt_pk_bf16_f32 v{o}, v{al}, v{al+2}", f"v_cvt_pk_bf16_f32 v{o+1}, v{be}, v{be+2}",
                 f"v_cvt_pk_bf16_f32 v{o+2}, v{al+1}, v{al+3}", f"v_cvt_pk_bf16_f32 v{o+3}, v{be+1}, v{be+3}",
                 f"ds_write_b64 v{vt+4}, {vr(o,2)} offset:{APL+16*ROWP*nb}", f"ds_write_b64 v{vt+4}, {vr(o+2,2)} offset:{APL+16*ROWP*nb+64}"]
    NPF = int(OPT.get("tpf", "0"))
    if NPF:
        srd(a, sS, 14, T_OFF, N*TS)
        a(f"""
        s_bfe_u32 s{st0}, s2, 0x50003
        s_lshl_b32 s{st0}, s{st0}, 2
        s_add_u32 s{st0}, s{st0}, s{sg}
        s_lshl_b32 s{st0}, s{st0}, 13
        v_lshlrev_b32 v{vt+9}, 7, v{vt+8}
        """)
        for j in range(NPF):
            a(f"buffer_load_dword v{vt+10}, v{vt+9}, {sr(sS,4)}, s{st0} offen")
            if j+1 < NPF: a(f"s_add_u32 s{st0}, s{st0}, {1 << 20}")
    g = []; cm = common1(XR+1, vt+8); k = 0
    for s in range(4):
        g.append(f"s_waitcnt vmcnt({22-4*s+NPF}) lgkmcnt({9-3*s})")
        for x in mm1(0, s) + (mm1(1, s) if s < 3 else []):
            g.append(x); g += cm[k:k+3]; k += 3
    assert k >= len(cm)
    k = 0
    for j, x in enumerate(mm1(1, 3)):
        g.append(x)
        if j >= 2: g += outA[k:k+3]; k += 3
    g += outA[k:]
    for nb in range(3):
        al, be = accs[1][nb]; o = XF+4*nb
        g += [f"v_cvt_pk_bf16_f32 v{o}, v{al}, v{al+1}", f"v_cvt_pk_bf16_f32 v{o+1}, v{al+2}, v{al+3}",
              f"v_cvt_pk_bf16_f32 v{o+2}, v{be}, v{be+1}", f"v_cvt_pk_bf16_f32 v{o+3}, v{be+2}, v{be+3}",
              f"ds_write_b128 v{vt+5}, {vr(o,4)} offset:{UL+16*ROWP*nb}"]
    asmsim.check_hazards(g, "gemm")
    a.ext(g)
    a(f"s_waitcnt vmcnt({NPF})")
    arrive(3)
    stamp(a, 3); stamp(a, 7, "6")
    zero_acc()
    init_addr()
    spin(1, "F", add=False)
    a(f"""
    v_mov_b32 v{vt+2}, {INCL+60}
    ds_read2_b32 {vr(vt+4,2)}, v{vt+2} offset0:0 offset1:16
    ds_read2_b32 {vr(vt+6,2)}, v{vt+2} offset0:32 offset1:48
    s_waitcnt lgkmcnt(0)
    """)
    for g_ in range(4): a(f"v_readfirstlane_b32 s{sk+g_}, v{vt+4+g_}")
    a(f"""
    s_max_u32 s{st0}, s{sk}, s{sk+1}
    s_max_u32 s{st1}, s{sk+2}, s{sk+3}
    s_max_u32 s{st0}, s{st0}, s{st1}
    s_cmp_gt_u32 s{st0}, {CAPG*4}
    s_cbranch_scc1 K2_SLOW
    """)
    a("s_setprio 1")
    rank_groups()
    lane_setup()
    a("K2_REFILLC:")
    fill("C")
    a(f"s_cmp_lg_u32 s{sslow}, 0\ns_cbranch_scc1 K2_GOC")
    ap_addr()
    spin(3, "G", add=False)
    ap_read()
    stamp(a, 4)
    a("s_branch K2_GOC")
    a("K2_EMPTY:"); a.ext(ld_xr()); a("s_branch K2_DONE")
    for n in spins:
        a(f"""
        K2_SP{n}:
        ds_read_b32 v{vEa}, v{vPG}
        s_waitcnt lgkmcnt(0)
        v_cmp_gt_u32 vcc, s{sneed}, v{vEa}
        s_cbranch_vccnz K2_SP{n}
        s_branch K2_OK{n}
        """)
    main_loop("C")
    a(f"""
    K2_DONE:
    s_cmp_lg_u32 s{sslow}, 0
    s_cbranch_scc1 K2_ROUND
    K2_EPI:
    s_waitcnt vmcnt(0) lgkmcnt(0)
    """)
    stamp(a, 6); stamp(a, 6, "3")
    if OPT.get("prof") == "3": a("s_memtime s[88:89]")
    T0 = G
    for b in range(2):
        for r in range(6):
            a(f"v_add_f32 v{ACC+16*b+r}, 0x358637bd, v{ACC+16*b+r}")
        for r in range(6):
            a(f"v_rcp_f32 v{ACC+16*b+r}, v{ACC+16*b+r}")
        for r in range(6):
            u, x = T0+12*b+r, T0+12*b+6+r
            if b == 0: a(f"v_lshlrev_b32 v{u}, 16, v{UR+r}\nv_lshlrev_b32 v{x}, 16, v{XR+r}")
            else: a(f"v_and_b32 v{u}, 0xffff0000, v{UR+r}\nv_and_b32 v{x}, 0xffff0000, v{XR+r}")
        for r in range(6):
            u, x = T0+12*b+r, T0+12*b+6+r
            a(f"v_fmac_f32 v{u}, v{ACC+16*b+8+r}, v{ACC+16*b+r}\nv_max_f32 v{u}, 0, v{u}\nv_add_f32 v{u}, v{u}, v{x}")
    a(f"v_lshl_or_b32 v{vO2}, v{vH16}, 27, v{vO}")
    for r in range(6):
        a(f"v_cvt_pk_bf16_f32 v{SP+r}, v{T0+r}, v{T0+12+r}")
        a(f"buffer_store_dword v{SP+r}, v{vO if r < 4 else vO2}, {sr(sO,4)}, 0 offen offset:{256*rowoff(r)} {OPT.get('st_o', '')}")
    stamp(a, 7)
    stamp_out(a, 1, 14, sw, 2)
    a("K2_END:\ns_endpgm")

    a("K2_SLOW:")
    srd(a, sS, 8, None, E*4)
    srd(a, sD, 10, None, E*4)
    a(f"""
    s_mov_b32 s{sslow}, 1
    s_mov_b32 s{cm10}, {-GN}
    """)
    a("s_waitcnt vmcnt(0) lgkmcnt(0)\ns_barrier")
    lane_setup(); ap_addr(); ap_read()
    a(f"""
    K2_ROUND:
    s_cmp_ge_u32 s{sround}, {E//RND}
    s_cbranch_scc1 K2_EPI
    s_mul_i32 s{st0}, s{sround}, {RND}
    s_add_u32 s{sround}, s{sround}, 1
    v_add_u32 v{EOFF}, s{st0}, v0
    v_lshlrev_b32 v{vt}, 2, v{EOFF}
    buffer_load_dword v{REC}, v{vt}, {sr(sD,4)}, 0 offen
    buffer_load_dword v{REC+1}, v{vt}, {sr(sS,4)}, 0 offen
    v_lshlrev_b32 v{EOFF}, 5, v{EOFF}
    v_and_b32 v{vt}, 63, v0
    v_lshlrev_b32 v{vt}, 3, v{vt}
    v_mov_b32 v{vt+4}, 0
    v_mov_b32 v{vt+5}, 0
    s_waitcnt lgkmcnt(0)
    s_barrier
    ds_write_b64 v{vt}, {vr(vt+4,2)} offset:{CNT}
    v_mov_b32 v{vt+3}, 4
    s_waitcnt vmcnt(0) lgkmcnt(0)
    s_barrier
    """)
    rec_fields(a, REC, REC+2, vt, cm40, cm10)
    a(f"""
    v_cmp_eq_u32 vcc, s2, v{REC+2}
    v_lshl_or_b32 v{REC}, v{REC+1}, 16, v{REC}
    {caddr(0)}
    s_mov_b64 s[78:79], vcc
    v_cmp_gt_u32 vcc, {RND}, v0
    s_and_b64 s[78:79], s[78:79], vcc
    s_mov_b64 exec, s[78:79]
    ds_add_rtn_u32 v{RANK}, v{CADDR}, v{vt+3} offset:{CNT}
    s_mov_b64 exec, -1
    s_waitcnt lgkmcnt(0)
    s_barrier
    """)
    scan(False)
    a(f"""
    s_mov_b64 exec, s[78:79]
    ds_read_b32 v{STV}, v{CADDR} offset:{START}
    s_waitcnt lgkmcnt(0)
    """)
    place(0, STV, EOFF)
    a(f"""
    s_mov_b64 exec, -1
    """)
    lane_setup()
    a(f"""
    s_waitcnt lgkmcnt(0)
    s_barrier
    s_cmp_eq_u32 s{sfh}, 0
    s_cbranch_scc1 K2_REFILLP
    s_branch K2_REFILLC
    K2_CODE_END:
    """)
    return a.text(), kd("k2_kernel", 256, 102)

KE_PROF = f"""
    s_memrealtime s[8:9]
    s_load_dwordx2 s[4:5], s[0:1], 88
    s_waitcnt lgkmcnt(0)
    s_add_u32 s4, s4, {PROF_OFF + 0x200000}
    s_addc_u32 s5, s5, 0
    s_mov_b32 s6, 4
    s_mov_b32 s7, 0x20000
    v_mov_b32 v1, s8
    v_lshlrev_b32 v0, 2, v0
    buffer_store_dword v1, v0, s[4:7], 0 offen
"""
def gen_kr():
    a = Asm()
    a(f"""
    kr_kernel:
    s_cmp_ge_u32 s2, 1
    s_cbranch_scc1 KR_END
    s_load_dwordx4 s[4:7], s[0:1], 80
    s_waitcnt lgkmcnt(0)
    s_add_u32 s8, s6, {PROF_OFF}
    s_addc_u32 s9, s7, 0
    s_mov_b32 s10, 0x200000
    s_mov_b32 s11, 0x20000
    s_mov_b32 s6, 256
    s_mov_b32 s7, 0x20000
    v_cmp_gt_u32 vcc, 250, v0
    s_and_saveexec_b64 s[12:13], vcc
    v_lshlrev_b32 v1, 10, v0
    v_mov_b32 v3, 0
    """)
    sel = [(0, 16, 0, 1), (0, 16, 0, 0), (0, 16, 2, 0), (0, 16, 3, 0), (0, 16, 5, 0), (0, 16, 8, 0),
           (1, 8, 0, 1), (1, 8, 0, 0), (1, 8, 2, 0), (1, 8, 3, 0), (1, 8, 5, 1), (1, 8, 5, 0), (1, 8, 6, 1), (1, 8, 6, 0), (1, 8, 8, 0)]
    w0 = 0
    if OPT.get("krsel"):
        w0, st_, mn_ = [int(x) for x in OPT["krsel"].split(",")]
        sel = [(1, 4, 0, 1), (1, 4, st_, mn_)]
    for j, (kn, nw, st, mn) in enumerate(sel):
        a(f"s_mov_b32 s14, {kn*0x100000 + 64*w0}")
        for w in range(nw): a(f"buffer_load_dword v{10+w}, v1, s[8:11], s14 offen offset:{64*w+4*st}")
        a("s_waitcnt vmcnt(0)")
        if mn:
            for w in range(nw): a(f"v_not_b32 v{10+w}, v{10+w}")
        for w in range(1, nw): a(f"v_max_u32 v10, v10, v{10+w}")
        a(f"buffer_atomic_umax v10, v3, s[4:7], 0 offen offset:{4*j}\ns_waitcnt vmcnt(0)")
    if OPT.get("iv"):
        ja, jb, k = [int(x) for x in OPT["iv"].split(",")]
        a(f"""
        s_barrier
        buffer_load_dword v10, v3, s[4:7], 0 offen offset:{4*ja} sc0 sc1
        buffer_load_dword v11, v3, s[4:7], 0 offen offset:{4*jb} sc0 sc1
        s_waitcnt vmcnt(0)
        v_readfirstlane_b32 s16, v10
        v_readfirstlane_b32 s17, v11
        """)
        if sel[ja][3]: a("s_not_b32 s16, s16")
        if sel[jb][3]: a("s_not_b32 s17, s17")
        a(f"""
        s_sub_u32 s16, s16, s17
        s_min_u32 s16, s16, 10000
        s_mul_i32 s16, s16, {k}
        s_memrealtime s[18:19]
        s_waitcnt lgkmcnt(0)
        KR_SPIN:
        s_memrealtime s[20:21]
        s_waitcnt lgkmcnt(0)
        s_sub_u32 s20, s20, s18
        s_cmp_lt_u32 s20, s16
        s_cbranch_scc1 KR_SPIN
        """)
    a("KR_END:\ns_endpgm")
    return a.text()

def main():
    k1, d1 = gen_k1(); k2, d2 = gen_k2()
    ref = open("standalone__edge_featured_mpnn_gatedgcn__graph.s.ref").read().split("\n")
    out = "\n".join(ref[:13]) + "\n"
    for ch in OPT.get("list", "12"):
        if ch == "1": out += f"; @launch kernel=k1_kernel grid=({2*NCH},1,1) block=(1024,1,1) lds={K1_LDS}\n"
        if ch == "2": out += f"; @launch kernel=k2_kernel grid=({NBIN},1,1) block=(512,1,1) lds={K2_LDS}\n"
        if ch == "r": out += "; @launch kernel=kr_kernel grid=(1,1,1) block=(256,1,1) lds=0\n"
        if ch == "e": out += "; @launch kernel=ke_kernel grid=(1,1,1) block=(64,1,1) lds=0\n"
    out += '.amdgcn_target "amdgcn-amd-amdhsa--gfx950"\n.text\n'
    for n, k in (("k1_kernel", k1), ("k2_kernel", k2)):
        out += f".globl {n}\n.p2align 8\n.type {n},@function\n" + k
    if "e" in OPT.get("list", ""): out += ".globl ke_kernel\n.p2align 8\n.type ke_kernel,@function\nke_kernel:\n" + (KE_PROF if OPT.get("prof") else "") + "    s_endpgm\n"
    if "r" in OPT.get("list", ""): out += ".globl kr_kernel\n.p2align 8\n.type kr_kernel,@function\n" + gen_kr()
    out += '.section .rodata,"a"\n.p2align 6\n' + d1.lstrip("\n") + '.p2align 6\n' + d2.lstrip("\n")
    if "e" in OPT.get("list", ""): out += '.p2align 6\n' + kd("ke_kernel", 8, 16).lstrip("\n")
    if "r" in OPT.get("list", ""): out += '.p2align 6\n' + kd("kr_kernel", 32, 32).lstrip("\n")
    open(sys.argv[1], "w").write(out)

if __name__ == "__main__":
    main()
```

```python
import re
_RANGE = re.compile(r"^v\[(\d+):(\d+)\]$"); _ONE = re.compile(r"^-?v(\d+)$")
def regs(tok):
    tok = tok.strip()
    m = _RANGE.match(tok)
    if m: return list(range(int(m.group(1)), int(m.group(2))+1))
    m = _ONE.match(tok)
    if m: return [int(m.group(1))]
    return []
TRANS = ("v_exp_f32", "v_rcp_f32", "v_log_f32", "v_rsq_f32", "v_sqrt_f32")
def parse(s):
    s = s.strip()
    xw = [int(x) for x in re.findall(r";wr=(\d+)", s)]; xr = [int(x) for x in re.findall(r";rd=(\d+)", s)]
    s = s.split(";")[0].strip()
    op, _, rest = s.partition(" ")
    ops = [x.strip() for x in re.split(r",\s*(?![^\[]*\])", rest)] if rest else []
    ops = [o.split(" ")[0] if not o.startswith("v[") else o.split(" ")[0] for o in ops]
    d = dict(op=op, cls="other", wr=[], rd=[], text=s)
    if op.startswith("v_mfma"):
        d.update(cls="mfma", wr=regs(ops[0]), a=regs(ops[1]), b=regs(ops[2]), c=regs(ops[3]))
        d["rd"] = d["a"]+d["b"]+d["c"]
        d["passes"] = 8 if "32x32" in op else 4 if "16x16" in op else 2
    elif op.startswith("v_cmp") or op.startswith("v_readlane") or op.startswith("v_readfirstlane"):
        d.update(cls="valu", rd=sum((regs(o) for o in ops[1:]), []))
    elif op.startswith("v_"):
        d.update(cls="valu", wr=regs(ops[0]), rd=sum((regs(o) for o in ops[1:]), []))
        if op.startswith("v_fmac") or op.startswith("v_writelane"): d["rd"] += d["wr"]
    elif op.startswith("ds_read") or "_rtn" in op:
        d.update(cls="ds", wr=regs(ops[0]), rd=sum((regs(o) for o in ops[1:]), []))
    elif op.startswith("ds_"):
        d.update(cls="ds", rd=sum((regs(o) for o in ops), []))
    elif op.startswith("buffer_load"):
        if s.split()[-1] == "lds": d.update(cls="vm", rd=regs(ops[0]))
        else: d.update(cls="vm", wr=regs(ops[0]), rd=regs(ops[1]))
    elif op.startswith("buffer_store"):
        d.update(cls="vm", rd=regs(ops[0])+regs(ops[1]))
    elif op == "s_nop": d.update(cls="nop", n=int(ops[0])+1)
    elif op == "s_waitcnt":
        d["cls"] = "wait"
        m = re.search(r"vmcnt\((\d+)\)", s); d["vm"] = int(m.group(1)) if m else None
        m = re.search(r"lgkmcnt\((\d+)\)", s); d["lg"] = int(m.group(1)) if m else None
    elif op.startswith("@W"): d.update(cls="ph", kind=op[2], id=rest.strip())
    if op in TRANS: d["trans"] = True
    d["wr"] = d["wr"] + xw; d["rd"] = d["rd"] + xr
    return d

def solve_waits(traces):
    need = {}
    for tr in traces:
        P = [parse(x) for x in tr if not x.endswith(":")]
        for kind, cls, mx in (("v", "vm", 63), ("l", "ds", 15)):
            issued = 0; pend = {}
            done = 0
            cur = None; cur_issued = 0
            for d in P:
                if d["op"] == "@MOVE":
                    x_, y_ = [int(z) for z in d["text"].split()[1:]]
                    if x_ in pend: pend[y_] = pend.pop(x_)
                    continue
                if d["cls"] == "ph" and d["kind"] == kind:
                    cur = d["id"]; cur_issued = issued; need.setdefault(cur, mx); continue
                if d["cls"] == "wait":
                    n = d["vm"] if kind == "v" else d["lg"]
                    if n is not None: done = max(done, issued-n)
                    continue
                touched = set(d["rd"]) | (set(d["wr"]) if d["cls"] != cls else set())
                for r in touched:
                    if r in pend and pend[r] >= done:
                        q = pend[r]
                        if cur is None or q >= cur_issued:
                            raise Exception(f"unprotected use of v{r} in '{d['text']}' ({kind})")
                        need[cur] = min(need[cur], cur_issued-q-1)
                if d["cls"] == cls:
                    for r in d["wr"]: pend[r] = issued
                    issued += 1
                    if cur is not None and issued - done > mx: need[cur] = min(need[cur], mx - (issued - cur_issued))
    assert all(v >= 0 for v in need.values()), need
    return need

def apply_waits(lst, need, drop=True):
    out = []
    for x in lst:
        if x.startswith("@W"):
            kind = x[2]; n = need[x.split()[1]]
            if drop and n >= (63 if kind == "v" else 15): continue
            out.append(f"s_waitcnt {'vmcnt' if kind == 'v' else 'lgkmcnt'}({n})")
        else: out.append(x)
    return out

def check_hazards(tr, name=""):
    P = [parse(x) for x in tr if not x.endswith(":") and not x.startswith("@")]
    pos = 0; hist = []
    for d in P:
        w = d.get("n", 1)
        for (p0, e) in reversed(hist):
            dist = pos - p0 - 1
            if dist > 20: break
            need = 0
            ew = set(e["wr"])
            if e["cls"] == "valu":
                if d["cls"] == "mfma" and ew & set(d["rd"]): need = 2
                if e.get("trans") and d["cls"] == "valu" and not d.get("trans") and ew & set(d["rd"]): need = max(need, 1)
                if "dpp" in d["op"] and ew & set(d["rd"]): need = max(need, 2)
                if d["op"].startswith("v_readlane") or d["op"].startswith("v_readfirstlane"):
                    if ew & set(d["rd"]): need = max(need, 1)
            if e["cls"] == "mfma":
                k = {2: 0, 4: 1, 8: 2}[e["passes"]]
                if d["cls"] == "mfma":
                    if ew & set(d["a"]+d["b"]): need = max(need, (5, 8, 12)[k])
                    if ew & set(d["c"]):
                        same = d["c"] == e["wr"] and d["passes"] == e["passes"]
                        need = max(need, ((2, 0, 0) if same else (4, 6, 10))[k])
                    elif ew & set(d["wr"]) and not (d["wr"] == e["wr"] and d["passes"] == e["passes"]):
                        need = max(need, (4, 6, 10)[k])
                elif d["cls"] in ("valu", "ds", "vm"):
                    if ew & (set(d["rd"]) | set(d["wr"])): need = max(need, (5, 8, 12)[k])
                    if d["cls"] == "valu" and set(e["c"]) & set(d["wr"]): need = max(need, (1, 3, 7)[k])
            if e["cls"] == "vm" and e["op"].startswith("buffer_store_dwordx4") and d["cls"] in ("valu", "ds", "vm", "mfma"):
                if set(e["rd"][:4]) & set(d["wr"]): need = max(need, 2)
            if dist < need:
                raise Exception(f"hazard {name}: '{e['text']}' -> '{d['text']}' distance {dist} < {need}")
        hist.append((pos + w - 1, d)); pos += w
        if len(hist) > 64: hist = hist[-40:]
```

```python
import struct, sys
import asmsim

N = 10000; E = 320000
NCH = 128; CS = 2500
NBIN = 256; GN = 10
BINK, BINC, BINS = 53687, 52500, 21
assert all((625*b_ >> 4) <= d_ < (625*(b_+1) >> 4) for d_ in range(N) for b_ in [(d_*BINK + BINC) >> BINS])
CAP = 32
TS = int(([a for a in sys.argv if a.startswith('ts=')] or ['ts=512'])[0][3:])
T_OFF = 0x1000000
REC_OFF = 0x700000
WT_OFF = 0xB00000
LUT_OFF = 0xB20000
PROF_OFF = 0xF000000
NL2E = struct.unpack("<I", struct.pack("<f", -1.4426950408889634))[0]

def bf(x): return struct.unpack("<I", struct.pack("<f", x))[0] >> 16

OPT = dict(st_r="sc1", st_t="sc1")
for a in sys.argv[2:]:
    k, v = a.split("=", 1); OPT[k] = v

class Asm:
    def __init__(self): self.l = []
    def __call__(self, s):
        for x in s.strip("\n").split("\n"):
            x = x.strip()
            if not x: continue
            if x.startswith(";"): x = "s_nop 0"
            self.l.append(x if x.endswith(":") else "    " + x)
    def ext(self, lst):
        for x in lst: self(x)
    def text(self): return "\n".join(self.l) + "\n"

def stamp(a, i, lvl="1"):
    if OPT.get("prof") and (i in (0, 8) or OPT["prof"] == lvl): a(f"s_memrealtime s[{84+2*i}:{85+2*i}]")
def stamp_out(a, kern, wsreg, sw, vtmp):
    if not OPT.get("prof"): return
    a("s_waitcnt vmcnt(0)")
    stamp(a, 8)
    a(f"""
    s_lshl_b32 s4, s2, 4
    s_add_u32 s4, s4, s{sw}
    s_lshl_b32 s4, s4, 6
    s_add_u32 s4, s4, {PROF_OFF + kern*0x100000}
    s_add_u32 s4, s{wsreg}, s4
    s_addc_u32 s5, s{wsreg+1}, 0
    s_mov_b32 s6, 64
    s_mov_b32 s7, 0x20000
    s_waitcnt lgkmcnt(0)
    """)
    if kern == 1 and OPT["prof"] == "7":
        a(f"v_mov_b32 v{vtmp}, v251\nv_writelane_b32 v{vtmp}, s84, 0\ns_mov_b32 m0, s98\ns_add_u32 s98, s98, 1\nv_writelane_b32 v{vtmp}, s86, m0\ns_mov_b32 m0, s98\ns_nop 3\nv_writelane_b32 v{vtmp}, s100, m0\nv_writelane_b32 v{vtmp}, s98, 15")
    else:
        for i in range(9): a(f"v_writelane_b32 v{vtmp}, s{84+2*i}, {i}")
    a(f"""
    v_mbcnt_lo_u32_b32 v{vtmp+1}, -1, 0
    v_mbcnt_hi_u32_b32 v{vtmp+1}, -1, v{vtmp+1}
    v_lshlrev_b32 v{vtmp+1}, 2, v{vtmp+1}
    buffer_store_dword v{vtmp}, v{vtmp+1}, s[4:7], 0 offen
    """)

def vr(b, n): return f"v[{b}:{b+n-1}]"
def sr(b, n): return f"s[{b}:{b+n-1}]"

def srd(a, d, base, add=None, size=None, w3="0x20000", hi_or=None):
    if add is None:
        a(f"s_mov_b32 s{d}, s{base}\ns_mov_b32 s{d+1}, s{base+1}")
    else:
        a(f"s_add_u32 s{d}, s{base}, {add}\ns_addc_u32 s{d+1}, s{base+1}, 0")
    if hi_or: a(f"s_or_b32 s{d+1}, s{d+1}, {hi_or}")
    a(f"s_mov_b32 s{d+2}, {size}\ns_mov_b32 s{d+3}, {w3}")

def kd(name, vgpr, sgpr):
    return f"""
.amdhsa_kernel {name}
  .amdhsa_next_free_vgpr {vgpr}
  .amdhsa_next_free_sgpr {sgpr}
  .amdhsa_accum_offset {(vgpr+3)//4*4}
  .amdhsa_group_segment_fixed_size 0
  .amdhsa_kernarg_size 96
  .amdhsa_user_sgpr_count 2
  .amdhsa_user_sgpr_kernarg_segment_ptr 1
  .amdhsa_system_sgpr_workgroup_id_x 1
.end_amdhsa_kernel
"""

def rec_fields(a, vd, vbin, vtmp, sm40, sm10):
    a(f"""
    v_mul_u32_u24 v{vbin}, {BINK}, v{vd}
    v_add_u32 v{vbin}, {BINC}, v{vbin}
    v_lshrrev_b32 v{vbin}, {BINS}, v{vbin}
    v_mul_u32_u24 v{vtmp}, 625, v{vbin}
    v_lshrrev_b32 v{vtmp}, 4, v{vtmp}
    v_sub_u32 v{vd}, v{vd}, v{vtmp}
    v_mul_u32_u24 v{vtmp}, 26, v{vd}
    v_lshrrev_b32 v{vtmp}, 8, v{vtmp}
    v_mad_i32_i24 v{vd}, v{vtmp}, s{sm10}, v{vd}
    v_lshl_or_b32 v{vd}, v{vtmp}, 30, v{vd}
    """)

K1_CNT = 0; K1_STG = 1024; K1_W = 34816; K1_X = K1_W + 32768; K1_LDS = K1_X + 24576
RLO, RHI = 96, 64
def gen_k1():
    a = Asm()
    sS, sD, sW1, sW2, sX, sR, sT, sP = 24, 28, 32, 36, 40, 44, 48, 72
    sw, st0, st1, st2, snb, sfb, sch, shf, srow, snr = 52, 53, 54, 55, 56, 57, 58, 69, 71, 76
    c8192, cm10, cnl2e, csign, cmag, ctso, cp0 = 60, 62, 63, 64, 65, 66, 67
    vD, vS, vB, vSL, vt = 4, 12, 20, 28, 36
    vg = 56; vTR, vXA, vST = 64, 65, 66; vWC = 72
    vW, vX, vA, vO = 96, 160, 176, 192
    def W(m, ab, s): return vW + 32*m + 16*ab + 4*s
    a("k1_kernel:")
    a(f"s_cmp_ge_u32 s2, {2*NCH}\ns_cbranch_scc1 K1_END")
    stamp(a, 0)
    a(f"""
    s_load_dwordx16 s[4:19], s[0:1], 0
    s_load_dwordx2 s[20:21], s[0:1], 64
    s_load_dwordx2 s[22:23], s[0:1], 88
    v_lshrrev_b32 v2, 6, v0
    v_lshlrev_b32 v1, 2, v0
    v_readfirstlane_b32 s{sw}, v2
    v_lshlrev_b32 v2, 4, v0
    s_mov_b32 s{c8192}, 8192
    s_sub_u32 s{sch}, s2, {NCH}
    s_and_b32 s{shf}, s2, 1
    v_and_b32 v{vg}, 63, v0
    v_lshrrev_b32 v{vg+1}, 4, v{vg}
    v_and_b32 v{vg+2}, 15, v0
    s_and_b32 s{st0}, s{sw}, 3
    s_lshl_b32 s{st0}, s{st0}, 2
    v_add_u32 v{vg+3}, s{st0}, v{vg+1}
    v_xor_b32 v{vg+3}, v{vg+3}, v{vg+2}
    v_lshlrev_b32 v{vg+3}, 4, v{vg+3}
    v_lshl_add_u32 v{vg+3}, v{vg+1}, 8, v{vg+3}
    v_lshrrev_b32 v{vg+4}, 3, v{vg}
    v_lshlrev_b32 v{vg+5}, 1, v{vg+4}
    v_and_b32 v{vg+5}, 4, v{vg+5}
    v_and_b32 v{vg+6}, 7, v0
    v_xor_b32 v{vg+5}, v{vg+5}, v{vg+6}
    v_lshlrev_b32 v{vg+5}, 4, v{vg+5}
    v_lshl_add_u32 v{vg+4}, v{vg+4}, 8, v{vg+5}
    s_lshr_b32 s{st0}, s2, 1
    s_mul_i32 s{srow}, s{st0}, {RLO}
    s_mul_i32 s{st0}, s{st0}, {RHI}
    s_add_u32 s{st0}, s{st0}, {64*(RLO-RHI)}
    s_cmp_lt_u32 s2, {NCH}
    s_cselect_b32 s{srow}, s{srow}, s{st0}
    s_cselect_b32 s{snr}, {RLO}, {RHI}
    s_min_u32 s{srow}, s{srow}, {N}
    s_sub_u32 s{st0}, {N}, s{srow}
    s_min_u32 s{snr}, s{snr}, s{st0}
    s_mul_i32 s{st1}, s{sch}, {CS*4}
    s_cmp_lt_u32 s2, 254
    s_waitcnt lgkmcnt(0)
    s_cselect_b64 {sr(sW1,2)}, s[14:15], s[12:13]
    s_cselect_b64 {sr(sW2,2)}, s[20:21], s[18:19]
    s_cmp_lt_u32 s2, {NCH}
    s_cbranch_scc1 K1_NOIDX
    """)
    srd(a, sD, 10, f"s{st1}", CS*4)
    srd(a, sS, 8, f"s{st1}", CS*4)
    a(f"""
    buffer_load_dwordx4 {vr(vD,4)}, v2, {sr(sD,4)}, 0 offen
    buffer_load_dwordx4 {vr(vS,4)}, v2, {sr(sS,4)}, 0 offen
    buffer_load_dword v{vD+4}, v1, {sr(sD,4)}, s{c8192} offen
    buffer_load_dword v{vS+4}, v1, {sr(sS,4)}, s{c8192} offen
    s_barrier
    K1_NOIDX:
    s_lshl_b32 s{st0}, s{srow}, 8
    s_add_u32 s{sX}, s4, s{st0}
    s_addc_u32 s{sX+1}, s5, 0
    s_lshl_b32 s{sX+2}, s{snr}, 8
    s_mov_b32 s{sX+3}, 0x20000
    s_mov_b32 s{sW1+2}, 32768
    s_mov_b32 s{sW1+3}, 0x20000
    s_mov_b32 s{sW2+2}, 32768
    s_mov_b32 s{sW2+3}, 0x20000
    s_lshl_b32 s{shf+1}, s{shf}, 7
    s_lshl_b32 s{st1}, s{sw}, 10
    """)
    def dma_x(k):
        a(f"s_add_u32 m0, s{st1}, {K1_X + 8192*k}\ns_add_u32 s{st2}, s{st1}, {8192*k}\nbuffer_load_dwordx4 v{vg+3}, {sr(sX,4)}, s{st2} offen lds")
    def stage_w():
        a(f"s_lshr_b32 s{st2}, s2, 3\ns_add_u32 s{st2}, s{st2}, s{sw}\ns_and_b32 s{st2}, s{st2}, 15")
        for k in range(2):
            a(f"""
            s_lshl_b32 s{st0}, s{st2}, 10
            s_add_u32 m0, s{st0}, {K1_W}
            s_lshl_b32 s{st1}, s{st2}, 11
            s_add_u32 s{st1}, s{st1}, s{shf+1}
            buffer_load_dwordx4 v{vg+4}, {sr(sW1,4)}, s{st1} offen lds
            s_add_u32 m0, s{st0}, {K1_W+16384}
            s_xor_b32 s{st2}, s{st2}, 8
            buffer_load_dwordx4 v{vg+4}, {sr(sW2,4)}, s{st1} offen lds
            """)
    dma_x(0); dma_x(1)
    a(f"s_cmp_lt_u32 s2, {NCH}\ns_cbranch_scc0 K1_LATER")
    dma_x(2); stage_w()
    a(f"""
    K1_LATER:
    s_and_b32 s{sfb}, s{sw}, 1
    s_lshr_b32 s{snb}, s{sw}, 1
    v_bfe_u32 v{vg+5}, v0, 2, 2
    v_and_b32 v{vg+6}, 3, v0
    s_lshl_b32 s{st0}, s{sfb}, 2
    v_add_u32 v{vg+6}, s{st0}, v{vg+6}
    v_lshlrev_b32 v{vg+7}, 1, v{vg+5}
    v_and_b32 v{vg+7}, 4, v{vg+7}
    v_xor_b32 v{vg+6}, v{vg+6}, v{vg+7}
    v_lshl_add_u32 v{vg+5}, v{vg+1}, 3, v{vg+5}
    v_lshlrev_b32 v{vg+5}, 7, v{vg+5}
    v_lshl_add_u32 v{vTR}, v{vg+6}, 4, v{vg+5}
    v_xor_b32 v{vXA}, v{vg+1}, v{vg+2}
    v_lshlrev_b32 v{vXA}, 4, v{vXA}
    v_lshl_add_u32 v{vXA}, v{vg+2}, 8, v{vXA}
    s_lshl_b32 s{st0}, s{snb}, 12
    s_add_u32 s{st0}, s{st0}, {K1_X}
    v_add_u32 v{vXA}, s{st0}, v{vXA}
    v_xor_b32 v{vXA+2}, 64, v{vXA}
    v_xor_b32 v{vXA+3}, 0x80, v{vXA}
    v_xor_b32 v{vXA+4}, 0xc0, v{vXA}
    v_mul_u32_u24 v{vST}, {TS}, v{vg+2}
    v_lshl_add_u32 v{vST}, v{vg+1}, 4, v{vST}
    s_mul_i32 s{ctso}, s{snb}, {16*TS}
    s_lshl_b32 s{st1}, s{shf}, 8
    s_add_u32 s{ctso}, s{ctso}, s{st1}
    s_lshl_b32 s{st1}, s{sfb}, 6
    s_add_u32 s{ctso}, s{ctso}, s{st1}
    s_mov_b32 s{cnl2e}, {NL2E:#x}
    s_mov_b32 s{csign}, 0x00800000
    s_mov_b32 s{cmag}, 0x7fffffff
    s_mov_b32 s{cp0}, 0x07060100
    s_mov_b32 s{cp0+1}, 0x07060302
    s_mul_i32 s{st0}, s{srow}, {TS}
    s_add_u32 s{st0}, s{st0}, {T_OFF}
    s_mul_i32 s{st1}, s{snr}, {TS}
    """)
    srd(a, sT, 22, f"s{st0}", f"s{st1}")
    stamp(a, 1)
    a(f"s_cmp_lt_u32 s2, {NCH}\ns_cbranch_scc1 K1_NOBIN")
    a(f"""
    v_mov_b32 v{vt}, -1
    v_mov_b32 v{vt+1}, -1
    v_mov_b32 v{vt+2}, -1
    v_mov_b32 v{vt+3}, -1
    v_mov_b32 v{vt+5}, 0
    v_and_b32 v{vt+6}, 0x3fc, v1
    """)
    for k in range(4): a(f"ds_write_b128 v2, {vr(vt,4)} offset:{K1_STG+8192*k}")
    a(f"""
    ds_write_b32 v{vt+6}, v{vt+5} offset:{K1_CNT}
    s_lshl_b32 s{st0}, s{sch}, 7
    s_add_u32 s{st0}, s{st0}, {REC_OFF}
    """)
    srd(a, sR, 22, f"s{st0}", NBIN*NCH*128)
    a(f"s_lshl_b32 s{st0}, s{sch}, 9\ns_add_u32 s{st1}, s{st0}, {LUT_OFF}")
    srd(a, sP, 22, f"s{st1}", 512)
    l0, l1 = vt+10, vt+11
    a(f"""
    v_add_u32 v{l0}, s{st0}, v1
    v_and_b32 v{l1}, 0x7fff, v{l0}
    v_cmp_ne_u32 vcc, 0x7c00, v{l1}
    v_or_b32 v{l1}, 3, v{l0}
    s_nop 0
    v_addc_co_u32 v{l0}, vcc, 0, v{l0}, vcc
    v_cvt_f32_f16 v{l1}, v{l1}
    v_cvt_f32_f16 v{l0}, v{l0}
    v_exp_f32 v{l1}, v{l1}
    v_exp_f32 v{l0}, v{l0}
    v_add_f32 v{l1}, 1.0, v{l1}
    v_add_f32 v{l0}, 1.0, v{l0}
    v_rcp_f32 v{l1}, v{l1}
    v_rcp_f32 v{l0}, v{l0}
    s_mov_b32 s{cm10}, {-GN}
    v_cvt_pk_bf16_f32 v{l0}, v{l0}, v{l1}
    v_mov_b32 v{vt+5}, 1
    v_cmp_gt_u32 vcc, {CS-2048}, v0
    s_mov_b64 s[80:81], vcc
    v_lshrrev_b32 v{vt+7}, 3, v0
    v_and_b32 v{vt+8}, 7, v0
    v_lshlrev_b32 v{vt+9}, 14, v{vt+7}
    v_lshl_add_u32 v{vt+9}, v{vt+8}, 4, v{vt+9}
    v_lshlrev_b32 v{vt+7}, 2, v{vt+7}
    v_cmp_eq_u32 s[82:83], 7, v{vt+8}
    s_waitcnt lgkmcnt(0)
    s_barrier
    s_waitcnt vmcnt(2)
    """)
    stamp(a, 2)
    for r in range(5):
        rec_fields(a, vD+r, vB+r, vt, None, cm10)
        a(f"v_lshlrev_b32 v{vt}, 2, v{vB+r}")
        if r == 4: a("s_mov_b64 exec, s[80:81]")
        a(f"ds_add_rtn_u32 v{vSL+r}, v{vt}, v{vt+5} offset:{K1_CNT}")
        if r == 4: a("s_mov_b64 exec, -1")
    stage_w()
    a(f"""
    s_cmp_eq_u32 s2, 252
    s_cbranch_scc0 K1_NOWC
    """)
    srd(a, sS, 16, None, 4096)
    a(f"""
    v_lshrrev_b32 v{vWC+8}, 5, v{vg}
    v_and_b32 v{vWC+9}, 31, v0
    v_lshlrev_b32 v{vWC+9}, 2, v{vWC+9}
    v_lshl_add_u32 v{vWC+9}, v{vWC+8}, 11, v{vWC+9}
    s_bfe_u32 s{st1}, s{sw}, 0x10001
    s_lshl_b32 s{st1}, s{st1}, 7
    s_lshl_b32 s{st0}, s{sfb}, 1
    s_add_u32 s{st1}, s{st1}, s{st0}
    """)
    for j in range(8): a(f"buffer_load_ushort v{vWC+j}, v{vWC+9}, {sr(sS,4)}, s{st1} offen offset:{256*j}")
    a("K1_NOWC:")
    for r in range(5):
        a(f"v_lshl_or_b32 v{vD+r}, v{vS+r}, 16, v{vD+r}")
        a(f"v_add_u32 v{vS+r}, {r}, v1" if r < 4 else f"v_add_u32 v{vS+r}, 2048, v0")
        a(f"v_lshl_or_b32 v{vD+r}, v{vS+r}, 4, v{vD+r}\nv_lshlrev_b32 v{vB+r}, 7, v{vB+r}")
    for r in range(5):
        a("s_waitcnt lgkmcnt(4)")
        if r == 4: a("s_mov_b64 exec, s[80:81]")
        a(f"""
        v_and_b32 v{vt}, 12, v{vSL+r}
        v_add_u32 v{vB+r}, v{vB+r}, v{vt}
        v_and_b32 v{vt}, 3, v{vSL+r}
        v_lshl_add_u32 v{vB+r}, v{vt}, 4, v{vB+r}
        v_and_b32 v{vt}, 16, v{vSL+r}
        v_lshl_add_u32 v{vB+r}, v{vt}, 2, v{vB+r}
        v_cmpx_gt_u32 vcc, {CAP}, v{vSL+r}
        ds_write_b32 v{vB+r}, v{vD+r} offset:{K1_STG}
        s_mov_b64 exec, -1
        """)
    a("s_waitcnt lgkmcnt(0)\ns_barrier")
    for k in range(4):
        a(f"ds_read_b128 {vr(4+4*k,4)}, v2 offset:{K1_STG+8192*k}\nds_read_b32 v{20+k}, v{vt+7} offset:{K1_CNT+256*k}")
    a(f"""
    v_mov_b32 v{vt+2}, -2
    s_mov_b32 s{st2}, 0
    buffer_store_dword v{l0}, v1, {sr(sP,4)}, 0 offen {OPT['st_r']}
    """)
    stamp(a, 3)
    for k in range(4):
        a(f"""
        s_waitcnt lgkmcnt({6-2*k})
        v_cmp_lt_u32 vcc, {CAP}, v{20+k}
        s_and_b64 vcc, vcc, s[82:83]
        s_nop 1
        v_cndmask_b32 v{7+4*k}, v{7+4*k}, v{vt+2}, vcc
        buffer_store_dwordx4 {vr(4+4*k,4)}, v{vt+9}, {sr(sR,4)}, s{st2} offen {OPT['st_r']}
        s_add_u32 s{st2}, s{st2}, {64*16384}
        """)
    a(f"""
    s_waitcnt vmcnt(5)
    s_branch K1_STAGED
    K1_NOBIN:
    s_waitcnt vmcnt(0)
    """)
    stamp(a, 2); stamp(a, 3)
    a(f"""
    K1_STAGED:
    s_barrier
    s_cmp_eq_u32 s2, 252
    s_cbranch_scc1 K1_WC
    """)
    def xrd(reg, off):
        for s in range(4): a(f"ds_read_b128 {vr(reg+4*s,4)}, v{[vXA, vXA+2, vXA+3, vXA+4][s]} offset:{off}")
    def trs(s):
        for m in range(2):
            for ab in range(2):
                for u in range(2):
                    a(f"ds_read_b64_tr_b16 {vr(W(m,ab,s)+2*u,2)}, v{vTR} offset:{K1_W+m*16384+s*4096+u*512+ab*8}")
    def mm(s, x, acc):
        return [f"v_mfma_f32_16x16x32_bf16 {vr(acc+8*m+4*ab,4)}, {vr(W(m,ab,s),4)}, {vr(x+4*s,4)}, {'0' if s == 0 else vr(acc+8*m+4*ab,4)}"
                for m in range(2) for ab in range(2)]
    def pack(acc, out):
        o = []
        for b in range(2):
            for ab in range(2):
                b0, b1 = acc+4*ab+b, acc+4*ab+2+b
                hs = [acc+8+4*ab+2*e_+b for e_ in range(2)]
                o += [f"v_mul_f32 v{b0}, s{cnl2e}, v{b0}", f"v_mul_f32 v{b1}, s{cnl2e}, v{b1}"]
                for e_, h in enumerate(hs): o += [f"v_max_f32 v{30+e_}, abs(v{h}), s{csign}", f"v_bfi_b32 v{h}, s{cmag}, v{30+e_}, v{h}"]
                o += [f"v_cvt_pk_bf16_f32 v{b0}, v{b0}, v{b1}"] + [f"v_add_u32 v{h}, 0x8000, v{h}" for h in hs]
                o += [f"v_sub_u32_sdwa v{h}, v{h}, v{b0} dst_sel:DWORD dst_unused:UNUSED_PAD src0_sel:DWORD src1_sel:WORD_{e_}" for e_, h in enumerate(hs)]
                o += [f"v_perm_b32 v{out+4*b+2*ab+e_}, v{h}, v{b0}, s{cp0+e_}" for e_, h in enumerate(hs)]
            o.append(f"buffer_store_dwordx4 {vr(out+4*b,4)}, v{vST}, {sr(sT,4)}, s{ctso} offen offset:{128*b} {OPT['st_t']}")
        return o
    xrd(vX, 0)
    trs(0); a("s_waitcnt lgkmcnt(6)")
    for s in range(1, 4):
        trs(s); a("s_waitcnt lgkmcnt(8)"); a.ext(mm(s-1, vX, vA))
        if s < 3: a("s_waitcnt lgkmcnt(6)")
    a(f"""
    s_waitcnt lgkmcnt(0)
    s_cmp_ge_u32 s2, 254
    s_cbranch_scc1 K1_WT
    s_lshl_b32 s{st0}, s{snb}, 4
    s_add_u32 s{st0}, s{st0}, 64
    s_cmp_lt_u32 s{st0}, s{snr}
    s_cbranch_scc0 K1_ONE
    """)
    vX2, vA2 = 208, 224
    xrd(vX2, 16384)
    g = mm(3, vX, vA) + ["s_waitcnt lgkmcnt(0)"]
    m2 = sum((mm(s, vX2, vA2) for s in range(4)), []); pk = pack(vA, vO)
    g += m2[:6]; k = 0
    for x in m2[6:]:
        g.append(x); g += pk[k:k+3]; k += 3
    g += pk[k:] + [f"s_add_u32 s{ctso}, s{ctso}, {64*TS}"] + pack(vA2, vO+8)
    asmsim.check_hazards(g, "k1 two blocks")
    a.ext(g)
    a("s_branch K1_TAIL\nK1_ONE:")
    g = mm(3, vX, vA) + ["s_nop 7"] + pack(vA, vO)
    asmsim.check_hazards(g, "k1 one block")
    a.ext(g)
    a("K1_TAIL:")
    stamp(a, 4); stamp(a, 5); stamp(a, 6); stamp(a, 7)
    stamp_out(a, 0, 22, sw, 2)
    a("s_endpgm")
    a("K1_WT:")
    srd(a, sT, 22, WT_OFF, 65536)
    a(f"""
    s_cmp_ge_u32 s{sw}, 4
    s_cbranch_scc1 K1_END
    v_lshlrev_b32 v2, 4, v{vg}
    s_lshl_b32 s{st0}, s{snb}, 2
    s_lshl_b32 s{st1}, s{shf}, 1
    s_add_u32 s{st0}, s{st0}, s{st1}
    s_add_u32 s{st0}, s{st0}, s{sfb}
    s_lshl_b32 s{st0}, s{st0}, 13
    s_add_u32 s{st1}, s{st0}, 4096
    s_cmp_eq_u32 s{snb}, 0
    s_cbranch_scc0 K1_WU
    """)
    for m in range(2):
        for ab in range(2):
            for s in range(4):
                a(f"buffer_store_dwordx4 {vr(W(m,ab,s),4)}, v2, {sr(sT,4)}, s{st1 if ab else st0} offen offset:{1024*s} {OPT['st_t']}")
        a("s_endpgm")
        if m == 0: a("K1_WU:")
    a("K1_WC:")
    srd(a, sT, 22, WT_OFF+65536, 4096)
    a(f"v_lshlrev_b32 v2, 4, v{vg}\ns_lshl_b32 s{st0}, s{sw}, 10")
    for j in range(8):
        a(f"v_lshlrev_b32 v{vWC+j}, 16, v{vWC+j}\nv_mul_f32 v{vWC+j}, s{cnl2e}, v{vWC+j}")
    for j in range(4):
        a(f"v_cvt_pk_bf16_f32 v{84+j}, v{vWC+2*j}, v{vWC+1+2*j}")
    a(f"buffer_store_dwordx4 v[84:87], v2, {sr(sT,4)}, s{st0} offen {OPT['st_t']}")
    a("K1_END:\ns_endpgm")
    return a.text(), kd("k1_kernel", 240, 102)

CAPG = 416; RND = 400
CNT = 0; FLG = 256; START = 512; INCL = 768; OHL = 1024; L1 = 1536; L2 = L1 + 4*CAPG*4; APL = L2 + 4*CAPG*4
ROWP = 272
UL = APL + 48*ROWP; LUTL = UL + 48*ROWP; STG = (LUTL + 65536 + 255)//256*256; XL = STG + 3*CAPG*32 + 5*1024; K2_LDS = XL + 12288
PROG = FLG + 32
assert K2_LDS <= 163840 and K2_LDS >= STG + 4*CAPG*32 and LUTL <= 65535 and (4*CAPG*4) % 256 == 0

def gen_k2():
    a = Asm()
    sREC, sX, sWT, sT, sE, sO, sD, sS = 24, 28, 32, 36, 40, 44, 68, 72
    sw, sg, sfh, st0, st1, st2 = 48, 49, 50, 51, 52, 53
    scount, sslow, sround, slim, sgb, srt, slut, srank = 54, 55, 56, 57, 58, 59, 82, 83
    stail = 20
    sdma, sm0, sneed = 21, 22, 23
    cm32, c128, cnl2e, cfc, csrc, cm40, cm10, cfe = 60, 61, 62, 63, 64, 65, 66, 67
    sk = 16
    vH16, vA1, vA2, vEa, vOa, vO, vA3 = 1, 2, 3, 4, 5, 6, 7
    WC = 8; AP = 16; PA = 24; SC = 28; OH = 32; EA = 40; ADDR = 48; ACC = 64; SP = 96; G = 112; RAW = 176
    XR = 240; UR = 246; vP16 = 252; vH256 = 253; vHS = 254; vPG = 255; vM15 = XR; vO2 = SP+8
    raw = lambda p, b: RAW + 32*p + 16*b
    gb = lambda p, b: G + 32*p + 16*b
    vt = gb(1, 1); Z = SP; EOFF = SP+14
    REC = raw(1, 0); CADDR = REC+16; RANK = G; STV = G+16
    NTB = [int(c_) for c_ in OPT.get("nt", "11")]
    rowoff = lambda r: 8*(r >> 2) + (r & 3)
    sd = "dst_sel:DWORD dst_unused:UNUSED_PAD src0_sel:DWORD"

    a("k2_kernel:")
    a(f"s_cmp_ge_u32 s2, {NBIN}\ns_cbranch_scc1 K2_END")
    stamp(a, 0)
    a(f"""
    s_load_dwordx8 s[4:11], s[0:1], 0
    s_load_dwordx2 s[12:13], s[0:1], 72
    s_load_dwordx2 s[14:15], s[0:1], 88
    v_lshrrev_b32 v{vt}, 6, v0
    v_lshrrev_b32 v{vt+1}, 2, v0
    v_readfirstlane_b32 s{sw}, v{vt}
    v_and_b32 v{vt+2}, 3, v0
    v_lshlrev_b32 v{vt+3}, 7, v{vt+1}
    v_lshl_add_u32 v{vt+3}, v{vt+2}, 4, v{vt+3}
    s_lshl_b32 s{st0}, s2, 14
    s_add_u32 s{st0}, s{st0}, {REC_OFF}
    v_and_b32 v{vt}, 63, v0
    v_lshlrev_b32 v{vt+5}, 3, v{vt}
    v_mov_b32 v{Z}, 0
    v_mov_b32 v{Z+1}, 0
    ds_write_b64 v{vt+5}, {vr(Z,2)} offset:{CNT}
    s_and_b32 s{sg}, s{sw}, 3
    s_lshr_b32 s{sfh}, s{sw}, 2
    v_lshlrev_b32 v{vA2}, 4, v{vt}
    s_mov_b32 s{st1}, 8192
    s_waitcnt lgkmcnt(0)
    s_cmp_lg_u32 s{sfh}, 0
    s_cbranch_scc1 K2_NOREC
    """)
    srd(a, sREC, 14, f"s{st0}", 16384)
    for u in range(2):
        for r in range(2):
            a(f"buffer_load_dwordx4 {vr(REC+8*r+4*u,4)}, v{vt+3}, {sr(sREC,4)}, {'s%d' % st1 if u else '0'} offen offset:{64*r}")
    a(f"""
    K2_NOREC:
    s_mul_i32 s{st0}, s2, 625
    s_add_u32 s{cm40}, s{st0}, 625
    s_lshr_b32 s{st0}, s{st0}, 4
    s_lshr_b32 s{cm40}, s{cm40}, 4
    s_sub_u32 s{cm40}, s{cm40}, s{st0}
    s_lshl_b32 s{cm40}, s{cm40}, 8
    s_lshl_b32 s{st0}, s{st0}, 8
    """)
    srd(a, sX, 4, f"s{st0}", f"s{cm40}")
    srd(a, sO, 12, f"s{st0}", f"s{cm40}")
    srd(a, sWT, 14, WT_OFF, LUT_OFF - WT_OFF + 65536)
    a("s_barrier")
    stamp(a, 1)
    def ld_wc():
        a(f"""
        s_lshl_b32 s{st1}, s{sfh}, 11
        s_add_u32 s{st1}, s{st1}, 65536
        buffer_load_dwordx4 {vr(WC,4)}, v{vA2}, {sr(sWT,4)}, s{st1} offen
        buffer_load_dwordx4 {vr(WC+4,4)}, v{vA2}, {sr(sWT,4)}, s{st1} offen offset:1024
        """)
    def common1(Z, vl):
        a = Asm()
        a(f"s_lshl_b32 s{st0}, s{sfh}, 8\ns_add_u32 s{st0}, s{st0}, {T_OFF-128}")
        srd(a, sT, 14, f"s{st0}", 64, w3="0x800000", hi_or="0x40000")
        srd(a, sE, 6, None, E*32)
        a(f"""
        s_mov_b32 s{cm32}, {'0x7e0' if 'e' in OPT.get('nomem','') else '0x1fffe0' if 's' in OPT.get('nomem','') else '0xffffffe0'}
        s_mov_b32 s{c128}, 128
        s_mov_b32 s{cnl2e}, {NL2E:#x}
        s_mov_b32 s{cfc}, 0xfc
        s_mov_b32 s{cfe}, {OPT.get('cfe', '0xfffe')}
        s_mov_b32 s{csrc}, {TS}
        s_mov_b32 s{sslow}, 0
        s_mov_b32 s{sround}, 0
        s_mov_b32 s{sgb}, 0
        s_mul_i32 s{st0}, s{sfh}, 3
        s_xor_b32 s{srank}, s{sg}, s{st0}
        v_lshrrev_b32 v{Z+2}, 5, v{vl}
        v_and_b32 v{Z+3}, 31, v0
        v_lshlrev_b32 v{vH16}, 4, v{Z+2}
        v_lshlrev_b32 v{vH256}, 8, v{Z+2}
        v_cmp_eq_u32 vcc, 0, v{Z+2}
        v_mov_b32 v{vM15}, 0xffff
        v_mov_b32 v{Z+4}, -1
        v_cndmask_b32 v{vM15}, v{vM15}, v{Z+4}, vcc
        v_and_b32 v{Z+4}, 3, v0
        v_mov_b32 v{Z+6}, 0x3f80
        """)
        for i in range(4):
            a(f"v_cmp_eq_u32 vcc, {i}, v{Z+4}\ns_nop 1\nv_cndmask_b32 v{PA+i}, 0, v{Z+6}, vcc")
        den = bf(127*2.0**-116); tiny = bf(2.0**-100)
        a(f"""
        v_cmp_gt_u32 s[78:79], 16, v{Z+3}
        v_mov_b32 v{Z+5}, {den:#x}
        v_mov_b32 v{Z+7}, {tiny<<16:#x}
        v_cndmask_b32 v{Z+5}, v{Z+6}, v{Z+5}, s[78:79]
        v_cndmask_b32 v{Z+7}, 0, v{Z+7}, s[78:79]
        v_and_b32 v{Z+4}, 15, v0
        v_lshlrev_b32 v{Z+8}, 3, v{Z+2}
        v_sub_u32 v{Z+4}, v{Z+4}, v{Z+8}
        v_lshlrev_b32 v{Z+6}, 16, v{Z+5}
        """)
        for d in range(4):
            a(f"""
            v_cmp_eq_u32 vcc, {2*d}, v{Z+4}
            v_cmp_eq_u32 s[78:79], {2*d+1}, v{Z+4}
            s_nop 0
            v_cndmask_b32 v{SC+d}, 0, v{Z+5}, vcc
            v_cndmask_b32 v{Z+8}, 0, v{Z+6}, s[78:79]
            v_or_b32 v{SC+d}, v{SC+d}, v{Z+8}
            """)
        a(f"""
        v_and_b32 v{SC+3}, v{SC+3}, v{vM15}
        v_not_b32 v{Z+8}, v{vM15}
        v_and_b32 v{Z+8}, v{Z+8}, v{Z+7}
        v_or_b32 v{SC+3}, v{SC+3}, v{Z+8}
        """)
        return [x.strip() for x in a.l]
    def ld_xr(): return [f"buffer_load_dword v{XR+r}, v{vO}, {sr(sX,4)}, 0 offen offset:{256*rowoff(r)} " for r in range(6)]
    def arrive(k):
        a(f"""
        v_mov_b32 v{vt+6}, {FLG+4*k}
        v_mov_b32 v{vt+7}, 1
        s_mov_b64 exec, 1
        ds_add_u32 v{vt+6}, v{vt+7}
        s_mov_b64 exec, -1
        """)
    def spin(k, n, add=True):
        if add: arrive(k)
        else: a(f"v_mov_b32 v{vt+6}, {FLG+4*k}")
        a(f"""
        K2_SPIN{n}:
        ds_read_b32 v{vt+7}, v{vt+6}
        s_waitcnt lgkmcnt(0)
        v_cmp_gt_u32 vcc, 4, v{vt+7}
        s_cbranch_vccnz K2_SPIN{n}
        """)
    def caddr(k): return f"v_and_b32_sdwa v{CADDR+k}, s{cfc}, v{REC+k} {sd} src1_sel:BYTE_3"
    def pick(sel, cur):
        a(f"""
        s_bitcmp1_b32 s{sel}, 0
        s_cselect_b32 s{cur[0]}, s{cur[1]}, s{cur[0]}
        s_cselect_b32 s{cur[2]}, s{cur[3]}, s{cur[2]}
        s_bitcmp1_b32 s{sel}, 1
        s_cselect_b32 s{st0}, s{cur[2]}, s{cur[0]}
        s_and_b32 s{sg}, s{st0}, 3
        s_andn2_b32 s{st0}, s{st0}, 3
        s_mul_i32 s{sgb}, s{sg}, {CAPG*4}
        s_add_u32 s{scount}, s{st0}, 127
        s_lshr_b32 s{scount}, s{scount}, 7
        s_add_u32 s{stail}, s{st0}, 124
        s_bfe_u32 s{stail}, s{stail}, 0x20005
        s_lshl_b32 s{stail}, s{stail}, 1
        s_add_u32 s{stail}, s{stail}, 2
        """)
    def rank_groups():
        for g in range(1, 4): a(f"s_or_b32 s{sk+g}, s{sk+g}, {g}")
        cur = [sk, sk+1, sk+2, sk+3]; spare = sk+4
        for (i, j) in ((0, 1), (2, 3), (0, 2), (1, 3), (1, 2)):
            a(f"s_max_u32 s{spare}, s{cur[i]}, s{cur[j]}\ns_min_u32 s{cur[j]}, s{cur[i]}, s{cur[j]}")
            cur[i], spare = spare, cur[i]
        pick(srank, cur)
    def scan(fast, ks=()):
        x = SP
        a(f"""
        v_and_b32 v{vt}, 63, v0
        v_lshlrev_b32 v{vt+1}, 2, v{vt}
        ds_read_b32 v{x}, v{vt+1} offset:{CNT}
        v_lshrrev_b32 v{vt}, 4, v{vt}
        v_mul_u32_u24 v{vt}, {CAPG*4}, v{vt}
        v_and_b32 v{vt+2}, 31, v0
        v_lshlrev_b32 v{vt+2}, 2, v{vt+2}
        v_mov_b32 v{vt+4}, 0xfffffe
        s_waitcnt lgkmcnt(0)
        v_sub_u32 v{vt}, v{vt}, v{x}
        """)
        for d in ("row_shr:1", "row_shr:2", "row_shr:4", "row_shr:8"):
            a(f"v_add_u32_dpp v{x}, v{x}, v{x} {d} row_mask:0xf bank_mask:0xf bound_ctrl:0\ns_nop 1")
        a(f"""
        v_add_u32 v{vt}, v{vt}, v{x}
        v_cmp_lt_u32 vcc, {CAPG*4}, v{x}
        ds_write2st64_b32 v{vt+1}, v{vt}, v{x} offset0:{START//256} offset1:{INCL//256}
        """)
        for g in range(4): a(f"v_readlane_b32 s{sk+g}, v{x}, {16*g+15}")
        if fast:
            a("s_cbranch_vccnz K2_GIVEUP")
            for j, k in enumerate(ks): a(f"ds_read_b32 v{STV+j}, v{CADDR+k} offset:{START}")
            rank_groups()
        else:
            for g in range(1, 4): a(f"s_or_b32 s{sk+g}, s{sk+g}, {g}")
            pick(sg, [sk, sk+1, sk+2, sk+3])
        a(f"""
        s_add_u32 s{st0}, s{st0}, s{sgb}
        v_add_u32 v{vt+2}, s{st0}, v{vt+2}
        s_lshl_b32 s{st1}, s{scount}, 7
        s_add_u32 s{st1}, s{st1}, s{sgb}
        v_lshlrev_b32 v{vt+3}, 3, v{vt+2}
        v_and_b32 v{vt+3}, 128, v{vt+3}
        v_cmpx_gt_u32 vcc, s{st1}, v{vt+2}
        ds_write2st64_b32 v{vt+2}, v{vt+3}, v{vt+4} offset0:{L1//256} offset1:{L2//256}
        s_mov_b64 exec, -1
        """)
    def place(k, st, eo):
        a(f"""
        v_add_u32 v{st}, v{st}, v{RANK+k}
        v_bfe_u32 v{vt}, v{REC+k}, 16, {5 if 't' in OPT.get('nomem','') else 14}
        v_lshlrev_b32 v{vt+1}, 3, v{st}
        v_mad_u32_u16 v{vt+2}, v{REC+k}, 2, v{eo}
        v_and_b32 v{vt+1}, 128, v{vt+1}
        v_mad_u32_u24 v{vt}, v{vt}, s{csrc}, v{vt+1}
        ds_write2st64_b32 v{st}, v{vt}, v{vt+2} offset0:{L1//256} offset1:{L2//256}
        """)
    def lane_setup():
        a(f"""
        v_and_b32 v{vt}, 31, v0
        v_xor_b32 v{vA1}, 16, v{vH16}
        v_xor_b32 v{vA2}, 4, v{vt}
        v_lshlrev_b32 v{vA2}, 2, v{vA2}
        v_add_u32 v{vA1}, s{sgb}, v{vA1}
        v_add_u32 v{vA2}, s{sgb}, v{vA2}
        s_mul_i32 s{st0}, s{sg}, {GN*256}
        s_lshl_b32 s{st1}, s{sfh}, 7
        s_add_u32 s{st0}, s{st0}, s{st1}
        v_lshlrev_b32 v{vO}, 2, v{vt}
        v_lshl_add_u32 v{vO}, v{vH256}, 2, v{vO}
        v_add_u32 v{vO}, s{st0}, v{vO}
        v_bfe_u32 v{vA3}, v0, 1, 5
        v_lshlrev_b32 v{vA3}, 2, v{vA3}
        v_add_u32 v{vA3}, s{sgb}, v{vA3}
        v_lshlrev_b32 v{vP16}, 4, v0
        v_xor_b32 v{vP16}, v{vP16}, v0
        v_and_b32 v{vP16}, 16, v{vP16}
        v_lshlrev_b32 v{vHS}, 1, v0
        v_xor_b32 v{vHS}, v{vHS}, v{vH16}
        v_and_b32 v{vHS}, 16, v{vHS}
        v_add_u32 v{vHS}, {STG}, v{vHS}
        s_lshl_b32 s{st0}, s{sg}, 2
        s_add_u32 s{st0}, s{st0}, {PROG}
        v_mov_b32 v{vPG}, s{st0}
        s_lshl_b32 s{sm0}, s{sgb}, 3
        s_add_u32 s{sm0}, s{sm0}, {STG}
        s_mov_b32 s{sdma}, 0
        s_mov_b32 s{sneed}, 0
        s_mov_b32 s{slim}, s{scount}
        """)
    def rd_addr(off, j): return f"ds_read_b128 {vr(ADDR+4*j,4)}, v{vA1} offset:{L1+off+32*j}"
    def rd_l2(reg, off): return f"ds_read_b32 v{reg}, v{vA2} offset:{L2+off}"
    def ld_raw(p, b, r):
        pre = [f"v_and_b32 v{ADDR+r}, 0xffff80, v{ADDR+r}"] if OPT.get("safe") else []
        if OPT.get("noload"): return ["s_nop 0"]
        return pre + [f"buffer_load_dword v{raw(p,b)+r}, v{ADDR+r}, {sr(sT,4)}, 0 offen" + (" offset:128" if b else "")]
    def ld_blk(p, b): return sum((ld_raw(p, b, r) for r in range(16)), [])
    cur = {"r": "P"}
    def rd_l3(off, reg=None): return [f"ds_read_b32 v{reg or vEa}, v{vA3} offset:{L2+off}"] if cur["r"] == "P" else []
    lab = [0]
    def dma_ea(sl, reg=None, check=True):
        if cur["r"] != "P": return []
        reg = reg or vEa
        if not check:
            return [f"s_mov_b32 m0, s{sm0}", f"v_and_or_b32 v{reg}, v{reg}, s{cm32}, v{vP16}",
                    f"buffer_load_dwordx4 v{reg}, {sr(sE,4)}, 0 offen lds;wr={300+sl}", f"s_add_u32 s{sm0}, s{sm0}, 1024"]
        lab[0] += 1
        return [f"s_cmp_lt_u32 s{sdma}, s{slim}", f"s_cbranch_scc0 K2_ND{lab[0]}", "@D{",
                f"s_mov_b32 m0, s{sm0}", f"v_and_or_b32 v{reg}, v{reg}, s{cm32}, v{vP16}",
                f"buffer_load_dwordx4 v{reg}, {sr(sE,4)}, 0 offen lds;wr={300+sl}", "@}", f"K2_ND{lab[0]}:",
                f"s_add_u32 s{sdma}, s{sdma}, 1", f"s_add_u32 s{sm0}, s{sm0}, 1024"]
    spins = []
    def rd_prog(): return [f"ds_read_b32 v{vEa}, v{vPG}"] if cur["r"] == "C" else []
    def get_ea(p, sl, off, prev=()):
        o = [f"s_add_u32 s{sneed}, s{sneed}, 1"]
        if cur["r"] == "P":
            o += [f"v_mov_b32 v{vEa}, s{sneed};rd={300+sl}", f"ds_write_b32 v{vPG}, v{vEa}"]
            if prev: o.append("@MOVE 302 300")
        else:
            lab[0] += 1; n = lab[0]; spins.append(n)
            o += [f"v_cmp_gt_u32 vcc, s{sneed}, v{vEa}", f"s_cbranch_vccnz K2_SP{n}", f"K2_OK{n}:"]
        return o + [f"v_lshl_add_u32 v{vEa}, v{vA2}, 3, v{vHS}", f"ds_read_b128 {vr(EA+4*p,4)}, v{vEa} offset:{8*off}"]
    def oh_idx(p):
        return [f"v_and_b32 v{vOa}, 30, v{vOa}",
                f"v_lshl_add_u32 v{vOa}, v{vOa}, 3, v{vH256}",
                f"ds_read_b128 {vr(OH+4*p,4)}, v{vOa} offset:{OHL}"]
    big = "v_mfma_f32_32x32x16_bf16" if not OPT.get("nobig") else "; "
    de = OPT.get("drop", "")
    def mE(p, b): return "; " if "E" in de else f"{big} {vr(gb(p,b),16)}, {vr(EA+4*p,4)}, {vr(WC+4*b,4)}, 0"
    def mA(p, b): return "; " if "A" in de else f"{big} {vr(gb(p,b),16)}, {vr(OH+4*p,4)}, {vr(AP+4*b,4)}, {vr(gb(p,b),16)}"
    def mS(p): return "; " if "S" in de else f"{big} {vr(SP,16)}, {vr(OH+4*p,4)}, {vr(SC,4)}, 0"
    def mG(p, b, j): return "; " if ("G" in de or ("g" in de and j & 1)) else f"{big} {vr(ACC+16*b,16)}, {vr(SP+4*j,4)}, {vr(gb(p,b)+4*j,4)}, {vr(ACC+16*b,16)}"
    def mP(p, b):
        o = []
        for u in range(2):
            for j in range(4):
                g = vr(gb(p,b)+4*j, 4)
                o.append(f"v_mfma_f32_4x4x4_16b_bf16 {g}, {vr(PA+2*u,2)}, {vr(raw(p,b)+4*j+2*u,2)}, {g}")
        return o
    def idx_pair(p, b, i):
        g0, g1 = gb(p,b)+2*i, gb(p,b)+2*i+1
        if i < NTB[b]:
            return [f"v_exp_f32 v{g0}, v{g0}", f"v_exp_f32 v{g1}, v{g1}", f"v_add_f32 v{g0}, 1.0, v{g0}",
                    f"v_add_f32 v{g1}, 1.0, v{g1}", f"v_rcp_f32 v{g0}, v{g0}", f"v_rcp_f32 v{g1}, v{g1}"], []
        return [f"v_cvt_pkrtz_f16_f32 v{g0}, v{g0}, v{g1}",
                f"v_and_b32_sdwa v{g1}, s{cfe}, v{g0} {sd} src1_sel:WORD_1",
                f"v_and_b32_sdwa v{g0}, s{cfe}, v{g0} {sd} src1_sel:WORD_0"], \
               [f"ds_read_u16_d16_hi v{g1}, v{g1} offset:{LUTL}", f"ds_read_u16_d16_hi v{g0}, v{g0} offset:{LUTL}"]
    def fin_pair(p, b, i):
        g0, r0 = gb(p,b)+2*i, raw(p,b)+2*i
        mul = [f"v_pk_mul_f32 {vr(r0,2)}, {vr(g0,2)}, {vr(r0,2)}"] if OPT.get("pk") else [f"v_mul_f32 v{r0}, v{g0}, v{r0}", f"v_mul_f32 v{r0+1}, v{g0+1}, v{r0+1}"]
        return mul + [
                f"v_cvt_pk_bf16_f32 v{g0}, v{g0}, v{r0}", f"v_cvt_pk_bf16_f32 v{g0+1}, v{g0+1}, v{r0+1}"]
    def zipl(x, y):
        o = []
        for k in range(max(len(x), len(y))):
            if k < len(x): o.append(x[k])
            if k < len(y): o.append(y[k])
        return o
    uid = [0]
    def W(kind):
        uid[0] += 1
        return f"@W{kind} {uid[0]}"
    SH = int(OPT.get("short", "4"))
    WE = int(OPT.get("we", "1"))
    def slot(p, b, kind, acc=True, np_=8, npg=8):
        q = 1-p
        nxt = (p, 1) if b == 0 else (q, 0)
        do_idx = b == 0 or kind != "L"
        gs = [[mG(q if b == 0 else p, 1-b, j)] for j in range(npg//2)] if acc else []
        bigs = gs[:2]
        if kind != "L": bigs += [[mE(q, b)], [mA(q, b)]]
        bigs += gs[2:]
        if b == 0: bigs += [[mS(p)]]
        smalls = mP(q, b) if kind != "L" else []
        out = []
        nb = 0
        for i in range(8):
            if i >= np_:
                out += sum(bigs[nb:], []); nb = len(bigs)
                break
            iv, il = idx_pair(*nxt, i) if do_idx else ([], [])
            fv = fin_pair(p, b, i)
            seq = zipl(iv, fv) + il
            if SH:
                rr = range(16*i//SH, 16*(i+1)//SH) if i < SH else []
                if (b == 0 and kind != "L") or (b == 1 and kind == "F"):
                    for r_ in rr: seq += ld_raw(q, 1, r_) if b == 0 else ld_raw(p, 0, r_)
                if kind == "F":
                    if b == 0:
                        for r_ in rr:
                            if r_ & 3 == 3: seq.append(rd_addr((2+p)*128, r_ >> 2))
                    if b == 0 and i == 1: seq = dma_ea(p, check=False) + seq
                    if b == 1 and i == 1: seq += rd_prog()
                    if b == 1 and i == 6: seq += get_ea(p, p, (2+p)*128)
                    if b == 1 and i == 7: seq += rd_l3((3+p)*128)
                    if b == 0 and i == 5: seq.append(rd_l2(vOa, (2+p)*128))
                    if b == 1 and i == 2: seq += oh_idx(p)
            elif kind == "F":
                seq += ld_raw(p, b, 2*i) + ld_raw(p, b, 2*i+1)
                if b == 1 and i & 1: seq.append(rd_addr((3+p)*128, i >> 1))
                if OPT.get("burst"):
                    if p == 0 and b == 0 and i == 0: seq += rd_l3(3*128) + rd_l3(4*128, vOa)
                    if p == 0 and b == 0 and i == 4: seq = dma_ea(1) + dma_ea(2, vOa) + seq
                else:
                    if b == 0 and i == 1: seq += rd_l3((3+p)*128)
                    if b == 1 and i == 0: seq = dma_ea(q) + seq
                if b == 1 and i == 1: seq += rd_prog()
                if b == 1 and i == 6: seq += get_ea(p, p, (2+p)*128, (2,) if (OPT.get('burst') and p == 0) else ())
                if b == 0 and i == 5: seq.append(rd_l2(vOa, (2+p)*128))
                if b == 1 and i == 2: seq += oh_idx(p)
            pre = [W("l")] if i % WE == 0 else []
            if cur["r"] == "P" and kind != "L":
                if (b, i) == (0, 0): pre.append("s_setprio 2")
                if (b, i) == divmod(int(OPT.get("fair", "12")), 8): pre.append("s_setprio 0")
            if i < 6:
                take = 2 if (len(bigs) - nb) > (6 - i) else 1
                if nb < len(bigs): pre += bigs[nb]; nb += 1
                if take == 2 and nb < len(bigs):
                    seq = seq[:6] + bigs[nb] + seq[6:]; nb += 1
            if smalls and i >= 5:
                k0, k1 = {5: (0, 2), 6: (2, 6), 7: (6, 8)}[i]
                sm = smalls[k0:k1]
                if i == 5: seq = seq[:4] + [W("v")] + zipl(sm, seq[4:])
                else: seq = zipl(sm, seq)
            out += pre + seq
        assert nb == len(bigs)
        return out
    def last(p, np_):
        n = f"{p}{cur['r']}{np_}"
        return ([f"K2_LAST{n}:"] + ld_xr() + slot(p, 0, "L", np_=np_) + ["s_nop 11"]*(np_ < 6) + slot(p, 1, "L", np_=np_, npg=np_)
                + ["s_nop 1"] + [mG(p, 1, j) for j in range(np_//2)])
    def body(p, kind):
        q = 1-p; n = f"{kind}{p}{cur['r']}"
        o0 = [f"K2_BODY{n}:"] + slot(p, 0, kind)
        o1 = [f"K2_MID{n}:"] + (ld_xr() if kind == "L" else []) + slot(p, 1, kind)
        if OPT.get("prof") == "7": o1 += ["s_mov_b32 m0, s98", "s_add_u32 s98, s98, 1", f"v_writelane_b32 v{UR+5}, s86, m0", "s_memrealtime s[86:87]"]
        if kind == "P":
            for np_ in (2, 4, 6): o1 += [f"s_cmp_eq_u32 s{stail}, {np_}", f"s_cbranch_scc1 K2_LAST{q}{cur['r']}{np_}"]
        if kind == "F":
            if p == 1: o1 += [f"v_add_u32 v{r_}, 256, v{r_}" for r_ in ((vA1, vA2, vA3) if cur["r"] == "P" else (vA1, vA2))]
            o1 += [f"s_sub_u32 s{scount}, s{scount}, 1", f"s_cmp_eq_u32 s{scount}, 2", f"s_cbranch_scc1 K2_BODYP{q}{cur['r']}"]
        return o0, o1
    def entry_short(kind):
        more = kind != "L"
        o = rd_prog() + [W("v"), W("l")] + get_ea(0, 0, 0)
        if more: o += rd_prog() + rd_l3(128)
        o += [W("l"), "@STAMP", mE(0, 0), mA(0, 0), mE(0, 1), mA(0, 1)]
        o += (dma_ea(1, check=False) if more else []) + ["s_nop 7", W("v")] + mP(0, 0) + ["s_nop 3"]
        for i in range(8):
            v_, l_ = idx_pair(0, 0, i)
            o += [W("l")] + ([v_[0], v_[1], "s_nop 0"] + v_[2:] if i < NTB[0] else v_) + l_
            if more:
                if i < 4:
                    for r_ in range(4*i, 4*i+4): o += ld_raw(1, 0, r_)
                if i == 6: o += [W("v")] + get_ea(1, 1, 128)
                if i == 7 and kind == "F": o += rd_l3(256)
            if i == 3: o += [W("v")] + mP(0, 1)
        return o + slot(0, 0, kind, acc=False) + [f"s_branch K2_MID{kind}0{cur['r']}"]
    def entry(kind):
        if SH: return entry_short(kind)
        more = kind != "L"
        o = rd_prog() + [W("v"), W("l")] + get_ea(0, 0, 0)
        if more: o += rd_prog()
        o += [W("l"), "@STAMP", mE(0, 0), mA(0, 0), mE(0, 1), mA(0, 1), "s_nop 7", W("v")] + mP(0, 0) + ["s_nop 3"]
        for i in range(8):
            v_, l_ = idx_pair(0, 0, i)
            o += [W("l")] + ([v_[0], v_[1], "s_nop 0"] + v_[2:] if i < NTB[0] else v_) + l_
            if more:
                for r_ in range(4*(i & 3), 4*(i & 3)+4): o += ld_raw(1, i >> 2, r_)
                if i >= 4: o.append(rd_addr(256, i-4))
                if i == 4: o += [W("v")] + get_ea(1, 1, 128) + rd_l3(256)
                if i == 7: o += dma_ea(0)
            if i == 3: o += [W("v")] + mP(0, 1)
        return o + slot(0, 0, kind, acc=False) + [f"s_branch K2_MID{kind}0{cur['r']}"]
    def drain(p): return ["s_nop 1"] + [mG(p, 1, j) for j in range(4)]
    def mk_fill():
        ad = [rd_addr(0, j) for j in range(4)]
        t0 = SP
        o = []
        if cur["r"] == "P":
            o = (rd_l3(0) + [f"ds_read_b32 v{t0}, v{vA3} offset:{L2+128}"])
        o += ad + [rd_l2(vOa, 0), rd_l2(t0+1, 128)]
        if cur["r"] == "P":
            o += ["s_waitcnt lgkmcnt(6)"] + dma_ea(0) + [f"v_mov_b32 v{vEa}, v{t0}"]
        d1 = dma_ea(1) if not SH else []
        late1 = OPT.get("d1", "1") == "1"
        o += ([] if late1 else d1) + ["s_waitcnt lgkmcnt(0)"] + ld_blk(0, 0) + oh_idx(0) + [f"v_mov_b32 v{vOa}, v{t0+1}"] + oh_idx(1) + ld_blk(0, 1) + (d1 if late1 else [])
        return o + [rd_addr(128, j) for j in range(4)]
    FI, B, EN, LA_ = {}, {}, {}, {}
    for r in "PC":
        cur["r"] = r
        FI[r] = mk_fill()
        for k in "FPL":
            EN[r, k] = entry(k)
            for p in range(2): B[r, p, k] = body(p, k)
        for p in range(2):
            for np_ in (2, 4, 6, 8): LA_[r, p, np_] = last(p, np_)
    def trace(r, cnt, np_=8):
        kinds = ["F"]*(cnt-2) + ["P", "L"][-min(cnt, 2):]
        tr = FI[r] + EN[r, kinds[0]] + B[r, 0, kinds[0]][1]
        for t in range(1, cnt-1): tr += B[r, t & 1, kinds[t]][0] + B[r, t & 1, kinds[t]][1]
        tr += drain(0) if cnt == 1 else LA_[r, (cnt-1) & 1, np_]
        o = []; keep = True; nd = 0
        for x in tr:
            if x == "@D{": keep = nd < cnt; nd += 1
            elif x == "@}": keep = True
            elif keep and x != "@STAMP": o.append(x)
        return o
    epi_head = ["s_branch x", "s_cmp", "s_cbranch", "s_waitcnt vmcnt(0) lgkmcnt(0)"] + [f"v_add_f32 v{ACC+r_}, 0, v{ACC+r_}" for r_ in range(6)]
    cases = [(r, c, n_) for c in range(1, 9) for r in "PC" for n_ in (2, 4, 6, 8)]
    need = asmsim.solve_waits([trace(*c) for c in cases])
    for c in cases: asmsim.check_hazards(asmsim.apply_waits(trace(*c), need) + epi_head, f"case {c}")
    def emit(l):
        for x in asmsim.apply_waits(l, need):
            if x == "@STAMP":
                stamp(a, 5); stamp(a, 5, "3"); stamp(a, 7, "4")
                if OPT.get("prof") == "7": a("s_memrealtime s[86:87]\ns_mov_b32 s98, 1")
                if OPT.get("prof") == "3": a(f"s_memtime s[86:87]\ns_mov_b32 s90, s{scount}\ns_getreg_b32 s92, hwreg(HW_REG_HW_ID)")
            elif x[0] != "@": a(x.split(";")[0])
    def main_loop(r):
        a(f"""
        K2_GO{r}:
        s_cmp_eq_u32 s{scount}, 0
        s_cbranch_scc1 K2_EMPTY
        s_cmp_gt_u32 s{scount}, 2
        s_cbranch_scc1 K2_ENTF{r}
        s_cmp_eq_u32 s{scount}, 2
        s_cbranch_scc1 K2_ENTP{r}
        """)
        emit(EN[r, "L"]); a(f"K2_ENTP{r}:"); emit(EN[r, "P"]); a(f"K2_ENTF{r}:"); emit(EN[r, "F"])
        a(".p2align 6")
        for p in range(2): emit(B[r, p, "F"][0] + B[r, p, "F"][1])
        a(f"s_branch K2_BODYF0{r}")
        emit(B[r, 0, "L"][1] + drain(0)); a("s_branch K2_DONE")
        for p in range(2):
            for np_ in (2, 4, 6): emit(LA_[r, p, np_]); a("s_branch K2_DONE")
        for p in range(2):
            emit(B[r, p, "P"][0] + B[r, p, "P"][1] + LA_[r, 1-p, 8])
            if p == 0 or r == "P": a("s_branch K2_DONE")
    def fill(n):
        a(f"s_cmp_eq_u32 s{scount}, 0\ns_cbranch_scc1 K2_FILLED{n}")
        emit(FI[n])
        a(f"K2_FILLED{n}:")
    def ap_addr():
        a(f"""
        v_bfe_u32 v{vt}, v0, 2, 2
        v_lshrrev_b32 v{vt+1}, 1, v{vH16}
        v_add_u32 v{vt}, v{vt}, v{vt+1}
        v_mul_u32_u24 v{vt}, {ROWP}, v{vt}
        v_bfe_u32 v{vt+2}, v0, 4, 1
        v_lshl_add_u32 v{vt}, v{vt+2}, 5, v{vt}
        v_and_b32 v{vt+2}, 3, v0
        v_lshl_add_u32 v{vt}, v{vt+2}, 3, v{vt}
        s_mul_i32 s{st0}, s{sg}, {GN*ROWP}
        s_lshl_b32 s{st1}, s{sfh}, 7
        s_add_u32 s{st0}, s{st0}, s{st1}
        v_add_u32 v{vt}, s{st0}, v{vt}
        v_mul_u32_u24 v{vt+1}, {ROWP//2}, v{vt+1}
        v_and_b32 v{vt+2}, 31, v0
        v_lshl_add_u32 v{vt+1}, v{vt+2}, 2, v{vt+1}
        v_add_u32 v{vt+1}, s{st0}, v{vt+1}
        """)
    def ap_read():
        a(f"""
        ds_read_b64_tr_b16 {vr(AP,2)}, v{vt} offset:{APL}
        ds_read_b64_tr_b16 {vr(AP+2,2)}, v{vt} offset:{APL+4*ROWP}
        ds_read_b64_tr_b16 {vr(AP+4,2)}, v{vt} offset:{APL+64}
        ds_read_b64_tr_b16 {vr(AP+6,2)}, v{vt} offset:{APL+4*ROWP+64}
        """)
        for r in range(6): a(f"ds_read_b32 v{UR+r}, v{vt+1} offset:{UL+ROWP*rowoff(r)}")
        a(f"""
        s_waitcnt lgkmcnt(6)
        v_and_b32 v{AP+3}, v{AP+3}, v{vM15}
        v_and_b32 v{AP+7}, v{AP+7}, v{vM15}
        """)
    def init_addr():
        for r in range(16): a(f"v_mov_b32 v{ADDR+r}, 128")
    def zero_acc():
        for r in range(32): a(f"v_mov_b32 v{ACC+r}, 0")

    a(f"s_cmp_lg_u32 s{sfh}, 0\ns_cbranch_scc1 K2_LOADER")
    ld_wc()
    a.ext(common1(SP, vt))
    a(f"v_and_b32 v{vt+3}, 15, v0\nv_lshlrev_b32 v{vt+3}, 4, v{vt+3}\nv_bfe_u32 v{vt+4}, v0, 4, 2\nv_lshl_add_u32 v{vt+3}, v{vt+4}, 10, v{vt+3}\ns_lshl_b32 s{st0}, s{sg}, 8\nv_add_u32 v{vt+3}, s{st0}, v{vt+3}")
    a(f"v_add_u32 v{vt+4}, 40960, v{vt+3}")
    for val, rg, runs in ((0x3f003f00, EA, (0, 3, 32, 35)), (0, EA+4, (23, 27)), (0x3f803f80, OH, (51, 55, 59))):
        for j in range(4): a(f"v_mov_b32 v{rg+j}, {val:#x}")
        for c0 in runs:
            a(f"ds_write_b128 v{vt+4 if c0 >= 24 else vt+3}, {vr(rg,4)} offset:{LUTL + 1024*(c0 - (40 if c0 >= 24 else 0))}")
    a(f"""
    v_and_b32 v{vt+3}, 127, v0
    v_bfe_u32 v{vt+4}, v0, 2, 4
    v_and_b32 v{Z+4}, 3, v0
    v_lshrrev_b32 v{Z+5}, 6, v{vt+3}
    v_lshlrev_b32 v{vt+3}, 2, v{vt+3}
    v_lshl_add_u32 v{Z+4}, v{Z+5}, 2, v{Z+4}
    v_lshlrev_b32 v{Z+5}, 1, v{Z+4}
    v_mov_b32 v{Z+6}, 0x3f80
    v_mov_b32 v{Z+7}, 0x3f800000
    v_cmp_eq_u32 vcc, v{Z+5}, v{vt+4}
    v_add_u32 v{Z+5}, 1, v{Z+5}
    s_nop 0
    v_cndmask_b32 v{Z+8}, 0, v{Z+6}, vcc
    v_cmp_eq_u32 vcc, v{Z+5}, v{vt+4}
    v_cmp_eq_u32 s[78:79], 7, v{Z+4}
    s_or_b64 vcc, vcc, s[78:79]
    s_nop 1
    v_cndmask_b32 v{Z+9}, 0, v{Z+7}, vcc
    v_or_b32 v{Z+8}, v{Z+8}, v{Z+9}
    v_cmp_gt_u32 vcc, 15, v{vt+4}
    s_nop 1
    v_cndmask_b32 v{Z+8}, 0, v{Z+8}, vcc
    ds_write_b32 v{vt+3}, v{Z+8} offset:{OHL}
    """)
    a(f"""
    v_mul_u32_u24 v{EOFF}, {CS*32}, v{vt+1}
    v_add_u32 v{EOFF+1}, {64*CS*32}, v{EOFF}
    v_mov_b32 v{vt+3}, 4
    """)
    init_addr()
    a("s_waitcnt vmcnt(2)")
    stamp(a, 2); stamp(a, 1, "5")
    a(f"""
    v_cmp_eq_u32 vcc, -2, v{REC+11}
    v_cmp_eq_u32 s[78:79], -2, v{REC+15}
    s_or_b64 vcc, vcc, s[78:79]
    s_cbranch_vccz K2_NOOVF
    v_mov_b32 v{vt+4}, 0x10000
    v_mov_b32 v{vt}, 60
    ds_add_u32 v{vt}, v{vt+4} offset:{CNT}
    K2_NOOVF:
    """)
    M = [68, 70, 72, 74, 76, 78]
    KS = [[4*u+i for i in range(4)] + [8+4*u, 9+4*u] for u in range(2)]
    def masked(u, fn):
        for j, k in enumerate(KS[u]): a(f"v_cmp_gt_u32 {sr(M[j],2)}, -2, v{REC+k}")
        for j, k in enumerate(KS[u]): a(f"s_mov_b64 exec, {sr(M[j],2)}\n{fn(k, 6*u+j)}")
        a("s_mov_b64 exec, -1")
    for k in KS[0] + KS[1]: a(caddr(k))
    for u in range(2): masked(u, lambda k, j: f"ds_add_rtn_u32 v{RANK+k}, v{CADDR+k}, v{vt+3} offset:{CNT}")
    a(f"v_min_u32 v{vt+4}, v{REC+10}, v{REC+14}\nv_cmp_gt_u32 s[26:27], -2, v{vt+4}")
    LA, LB = raw(0, 0), raw(0, 1)
    for u in range(2):
        for j, k in enumerate(KS[u]):
            a(f"v_bfe_u32 v{LA+6*u+j}, v{REC+k}, 16, {5 if 't' in OPT.get('nomem','') else 14}\nv_mad_u32_u16 v{LB+6*u+j}, v{REC+k}, 2, v{EOFF+u}")
    for j in range(12): a(f"v_mul_u32_u24 v{LA+j}, s{csrc}, v{LA+j}")
    def steps(tag, fn):
        a(f"s_cmp_eq_u64 s[26:27], 0\ns_cbranch_scc1 K2_{tag}1\ns_waitcnt lgkmcnt(0)")
        for u in range(2):
            for k in (10+4*u, 11+4*u):
                a(f"v_cmpx_gt_u32 vcc, -2, v{REC+k}\ns_cbranch_execz K2_{tag}{u}")
                fn(k, u)
            a(f"K2_{tag}{u}:\ns_mov_b64 exec, -1")
    steps("C", lambda k, u: a(f"{caddr(k)}\nds_add_rtn_u32 v{RANK+k}, v{CADDR+k}, v{vt+3} offset:{CNT}"))
    stamp(a, 2, "5")
    spin(0, "A")
    stamp(a, 3, "5")
    scan(True, KS[0] + KS[1])
    a("s_waitcnt lgkmcnt(1)")
    stamp(a, 4, "5")
    for j, k in enumerate(KS[0] + KS[1]): a(f"v_add_u32 v{STV+j}, v{STV+j}, v{RANK+k}")
    for j, k in enumerate(KS[0] + KS[1]): a(f"v_lshlrev_b32 v{RANK+k}, 3, v{STV+j}")
    for j, k in enumerate(KS[0] + KS[1]): a(f"v_and_or_b32 v{LA+j}, v{RANK+k}, s{c128}, v{LA+j}")
    for u in range(2): masked(u, lambda k, j: f"ds_write2st64_b32 v{STV+j}, v{LA+j}, v{LB+j} offset0:{L1//256} offset1:{L2//256}")
    def put_step(k, u):
        a(f"ds_read_b32 v{STV+12}, v{CADDR+k} offset:{START}\ns_waitcnt lgkmcnt(0)")
        place(k, STV+12, EOFF+u)
    steps("P", put_step)
    stamp(a, 5, "5")
    lane_setup()
    stamp(a, 6, "5")
    spin(1, "B")
    stamp(a, 3); stamp(a, 7, "5")
    a("K2_REFILLP:")
    fill("P")
    stamp(a, 4)
    a(f"s_cmp_lg_u32 s{sslow}, 0\ns_cbranch_scc1 K2_GOP")
    zero_acc()
    ap_addr()
    spin(3, "D", add=False)
    ap_read()
    main_loop("P")
    a("K2_GIVEUP:")
    zero_acc()
    arrive(1)
    spin(3, "E", add=False)
    a("s_branch K2_SLOW")
    assert XL % 256 == 0
    XF = G; WT = [ACC, raw(0, 0)]
    accs = [[[raw(1,0)+8*nb, raw(1,0)+8*nb+4] for nb in range(3)], [[raw(1,1)+8, raw(1,1)+12], [SP, SP+4], [SP+8, ADDR]]]
    a(f"""
    K2_LOADER:
    v_lshrrev_b32 v{vt+4}, 4, v{vt}
    s_lshl_b32 s{st1}, s{sg}, 2
    v_add_u32 v{vA1}, s{st1}, v{vt+4}
    v_and_b32 v{vt+5}, 15, v0
    v_xor_b32 v{vA1}, v{vA1}, v{vt+5}
    v_lshlrev_b32 v{vA1}, 4, v{vA1}
    v_lshl_add_u32 v{vA1}, v{vt+4}, 8, v{vA1}
    s_lshl_b32 s{st1}, s{sg}, 10
    """)
    for k in range(3):
        a(f"""
        s_add_u32 m0, s{st1}, {XL+4096*k}
        s_add_u32 s{st2}, s{st1}, {4096*k}
        buffer_load_dwordx4 v{vA1}, {sr(sX,4)}, s{st2} offen lds
        """)
    stamp(a, 1, "6")
    srot = sk
    a(f"s_lshl_b32 s{slut}, s{sg}, 13\ns_lshr_b32 s{srt}, s2, 3")
    for j in range(4):
        a(f"s_add_u32 s{srot+j}, s{srt}, {j}\ns_and_b32 s{srot+j}, s{srot+j}, 3\ns_lshl_b32 s{srot+j}, s{srot+j}, 10\ns_add_u32 s{st2}, s{slut}, s{srot+j}")
        for m in range(2):
            for hf in range(2):
                a(f"buffer_load_dwordx4 {vr(WT[m]+16*hf+4*j,4)}, v{vA2}, {sr(sWT,4)}, s{st2} offen")
                if (m, hf) != (1, 1): a(f"s_add_u32 s{st2}, s{st2}, {4096 if hf == 0 else 32768-4096}")
    stamp(a, 2, "6")
    a(f"""
    s_lshl_b32 s{st0}, s{sg}, 12
    s_add_u32 m0, s{st0}, {LUTL + 7*1024}
    s_add_u32 s{st2}, s{st0}, {LUT_OFF - WT_OFF + 7*1024}
    """)
    for j in range(4): a(f"buffer_load_dwordx4 v{vA2}, {sr(sWT,4)}, s{st2} offen offset:{1024*j} lds")
    a(f"""
    s_mul_i32 s{st0}, s{sg}, 3072
    s_add_u32 m0, s{st0}, {LUTL + 39*1024}
    s_add_u32 s{st2}, s{st0}, {LUT_OFF - WT_OFF + 39*1024}
    """)
    for j in range(3): a(f"buffer_load_dwordx4 v{vA2}, {sr(sWT,4)}, s{st2} offen offset:{1024*j} lds")
    a(f"""
    s_and_b32 s{st0}, s{sg}, 1
    s_lshl_b32 s{st0}, s{st0}, 15
    s_add_u32 m0, s{st0}, {LUTL + 31*1024}
    s_add_u32 s{st2}, s{st0}, {LUT_OFF - WT_OFF + 31*1024}
    buffer_load_dwordx4 v{vA2}, {sr(sWT,4)}, s{st2} offen lds
    """)
    ld_wc()
    stamp(a, 3, "6")
    a(f"""
    s_waitcnt vmcnt(26)
    """)
    arrive(2)
    a(f"""
    v_mov_b32 v{vt+8}, v{vt}
    v_and_b32 v{vt}, 15, v0
    v_bfe_u32 v{vt+1}, v0, 4, 2
    v_xor_b32 v{vt+2}, v{vt}, v{vt+1}
    v_lshlrev_b32 v{vt+2}, 4, v{vt+2}
    v_lshl_add_u32 v{vt+2}, v{vt}, 8, v{vt+2}
    v_add_u32 v{vt+2}, {XL}, v{vt+2}
    v_mul_u32_u24 v{vt}, {ROWP}, v{vt}
    """)
    stamp(a, 2); stamp(a, 5, "6")
    spin(2, "C", add=False)
    stamp(a, 6, "6")
    for s in range(4):
        a(f"s_lshr_b32 s{st0}, s{srot+s}, 4\nv_xor_b32 v{vt+3}, s{st0}, v{vt+2}")
        for nb in range(3):
            a(f"ds_read_b128 {vr(XF+16*nb+4*s,4)}, v{vt+3} offset:{4096*nb}")
    a(f"""
    s_lshr_b32 s{st0}, s{sg}, 1
    s_lshl_b32 s{st0}, s{st0}, 7
    s_and_b32 s{st1}, s{sg}, 1
    s_lshl_b32 s{st1}, s{st1}, 5
    s_add_u32 s{st0}, s{st0}, s{st1}
    v_lshl_add_u32 v{vt+4}, v{vt+1}, 3, v{vt}
    v_add_u32 v{vt+4}, s{st0}, v{vt+4}
    s_lshl_b32 s{st0}, s{sg}, 6
    v_lshl_add_u32 v{vt+5}, v{vt+1}, 4, v{vt}
    v_add_u32 v{vt+5}, s{st0}, v{vt+5}
    """)
    def mm1(m, s):
        return [f"v_mfma_f32_16x16x32_bf16 {vr(accs[m][nb][ab], 4)}, {vr(WT[m]+16*ab+4*s,4)}, {vr(XF+16*nb+4*s,4)}, {'0' if s == 0 else vr(accs[m][nb][ab], 4)}"
                for nb in range(3) for ab in range(2)]
    outA = []
    for nb in range(3):
        al, be = accs[0][nb]; o = EA+ (0 if nb != 1 else 4)
        for i in range(4): outA += [f"v_mul_f32 v{al+i}, s{cnl2e}, v{al+i}", f"v_mul_f32 v{be+i}, s{cnl2e}, v{be+i}"]
        outA += [f"v_cvt_pk_bf16_f32 v{o}, v{al}, v{al+2}", f"v_cvt_pk_bf16_f32 v{o+1}, v{be}, v{be+2}",
                 f"v_cvt_pk_bf16_f32 v{o+2}, v{al+1}, v{al+3}", f"v_cvt_pk_bf16_f32 v{o+3}, v{be+1}, v{be+3}",
                 f"ds_write_b64 v{vt+4}, {vr(o,2)} offset:{APL+16*ROWP*nb}", f"ds_write_b64 v{vt+4}, {vr(o+2,2)} offset:{APL+16*ROWP*nb+64}"]
    NPF = int(OPT.get("tpf", "0"))
    if NPF:
        srd(a, sS, 14, T_OFF, N*TS)
        a(f"""
        s_bfe_u32 s{st0}, s2, 0x50003
        s_lshl_b32 s{st0}, s{st0}, 2
        s_add_u32 s{st0}, s{st0}, s{sg}
        s_lshl_b32 s{st0}, s{st0}, 13
        v_lshlrev_b32 v{vt+9}, 7, v{vt+8}
        """)
        for j in range(NPF):
            a(f"buffer_load_dword v{vt+10}, v{vt+9}, {sr(sS,4)}, s{st0} offen")
            if j+1 < NPF: a(f"s_add_u32 s{st0}, s{st0}, {1 << 20}")
    g = []; cm = common1(XR+1, vt+8); k = 0
    for s in range(4):
        g.append(f"s_waitcnt vmcnt({22-4*s+NPF}) lgkmcnt({9-3*s})")
        for x in mm1(0, s) + (mm1(1, s) if s < 3 else []):
            g.append(x); g += cm[k:k+3]; k += 3
    assert k >= len(cm)
    k = 0
    for j, x in enumerate(mm1(1, 3)):
        g.append(x)
        if j >= 2: g += outA[k:k+3]; k += 3
    g += outA[k:]
    for nb in range(3):
        al, be = accs[1][nb]; o = XF+4*nb
        g += [f"v_cvt_pk_bf16_f32 v{o}, v{al}, v{al+1}", f"v_cvt_pk_bf16_f32 v{o+1}, v{al+2}, v{al+3}",
              f"v_cvt_pk_bf16_f32 v{o+2}, v{be}, v{be+1}", f"v_cvt_pk_bf16_f32 v{o+3}, v{be+2}, v{be+3}",
              f"ds_write_b128 v{vt+5}, {vr(o,4)} offset:{UL+16*ROWP*nb}"]
    asmsim.check_hazards(g, "gemm")
    a.ext(g)
    a(f"s_waitcnt vmcnt({NPF})")
    arrive(3)
    stamp(a, 3); stamp(a, 7, "6")
    zero_acc()
    init_addr()
    spin(1, "F", add=False)
    a(f"""
    v_mov_b32 v{vt+2}, {INCL+60}
    ds_read2_b32 {vr(vt+4,2)}, v{vt+2} offset0:0 offset1:16
    ds_read2_b32 {vr(vt+6,2)}, v{vt+2} offset0:32 offset1:48
    s_waitcnt lgkmcnt(0)
    """)
    for g_ in range(4): a(f"v_readfirstlane_b32 s{sk+g_}, v{vt+4+g_}")
    a(f"""
    s_max_u32 s{st0}, s{sk}, s{sk+1}
    s_max_u32 s{st1}, s{sk+2}, s{sk+3}
    s_max_u32 s{st0}, s{st0}, s{st1}
    s_cmp_gt_u32 s{st0}, {CAPG*4}
    s_cbranch_scc1 K2_SLOW
    """)
    a("s_setprio 1")
    rank_groups()
    lane_setup()
    a("K2_REFILLC:")
    fill("C")
    a(f"s_cmp_lg_u32 s{sslow}, 0\ns_cbranch_scc1 K2_GOC")
    ap_addr()
    spin(3, "G", add=False)
    ap_read()
    stamp(a, 4)
    a("s_branch K2_GOC")
    a("K2_EMPTY:"); a.ext(ld_xr()); a("s_branch K2_DONE")
    for n in spins:
        a(f"""
        K2_SP{n}:
        ds_read_b32 v{vEa}, v{vPG}
        s_waitcnt lgkmcnt(0)
        v_cmp_gt_u32 vcc, s{sneed}, v{vEa}
        s_cbranch_vccnz K2_SP{n}
        s_branch K2_OK{n}
        """)
    main_loop("C")
    a(f"""
    K2_DONE:
    s_cmp_lg_u32 s{sslow}, 0
    s_cbranch_scc1 K2_ROUND
    K2_EPI:
    s_waitcnt vmcnt(0) lgkmcnt(0)
    """)
    stamp(a, 6); stamp(a, 6, "3")
    if OPT.get("prof") == "3": a("s_memtime s[88:89]")
    T0 = G
    for b in range(2):
        for r in range(6):
            a(f"v_add_f32 v{ACC+16*b+r}, 0x358637bd, v{ACC+16*b+r}")
        for r in range(6):
            a(f"v_rcp_f32 v{ACC+16*b+r}, v{ACC+16*b+r}")
        for r in range(6):
            u, x = T0+12*b+r, T0+12*b+6+r
            if b == 0: a(f"v_lshlrev_b32 v{u}, 16, v{UR+r}\nv_lshlrev_b32 v{x}, 16, v{XR+r}")
            else: a(f"v_and_b32 v{u}, 0xffff0000, v{UR+r}\nv_and_b32 v{x}, 0xffff0000, v{XR+r}")
        for r in range(6):
            u, x = T0+12*b+r, T0+12*b+6+r
            a(f"v_fmac_f32 v{u}, v{ACC+16*b+8+r}, v{ACC+16*b+r}\nv_max_f32 v{u}, 0, v{u}\nv_add_f32 v{u}, v{u}, v{x}")
    a(f"v_lshl_or_b32 v{vO2}, v{vH16}, 27, v{vO}")
    for r in range(6):
        a(f"v_cvt_pk_bf16_f32 v{SP+r}, v{T0+r}, v{T0+12+r}")
        a(f"buffer_store_dword v{SP+r}, v{vO if r < 4 else vO2}, {sr(sO,4)}, 0 offen offset:{256*rowoff(r)} {OPT.get('st_o', '')}")
    stamp(a, 7)
    stamp_out(a, 1, 14, sw, 2)
    a("K2_END:\ns_endpgm")

    a("K2_SLOW:")
    srd(a, sS, 8, None, E*4)
    srd(a, sD, 10, None, E*4)
    a(f"""
    s_mov_b32 s{sslow}, 1
    s_mov_b32 s{cm10}, {-GN}
    """)
    a("s_waitcnt vmcnt(0) lgkmcnt(0)\ns_barrier")
    lane_setup(); ap_addr(); ap_read()
    a(f"""
    K2_ROUND:
    s_cmp_ge_u32 s{sround}, {E//RND}
    s_cbranch_scc1 K2_EPI
    s_mul_i32 s{st0}, s{sround}, {RND}
    s_add_u32 s{sround}, s{sround}, 1
    v_add_u32 v{EOFF}, s{st0}, v0
    v_lshlrev_b32 v{vt}, 2, v{EOFF}
    buffer_load_dword v{REC}, v{vt}, {sr(sD,4)}, 0 offen
    buffer_load_dword v{REC+1}, v{vt}, {sr(sS,4)}, 0 offen
    v_lshlrev_b32 v{EOFF}, 5, v{EOFF}
    v_and_b32 v{vt}, 63, v0
    v_lshlrev_b32 v{vt}, 3, v{vt}
    v_mov_b32 v{vt+4}, 0
    v_mov_b32 v{vt+5}, 0
    s_waitcnt lgkmcnt(0)
    s_barrier
    ds_write_b64 v{vt}, {vr(vt+4,2)} offset:{CNT}
    v_mov_b32 v{vt+3}, 4
    s_waitcnt vmcnt(0) lgkmcnt(0)
    s_barrier
    """)
    rec_fields(a, REC, REC+2, vt, cm40, cm10)
    a(f"""
    v_cmp_eq_u32 vcc, s2, v{REC+2}
    v_lshl_or_b32 v{REC}, v{REC+1}, 16, v{REC}
    {caddr(0)}
    s_mov_b64 s[78:79], vcc
    v_cmp_gt_u32 vcc, {RND}, v0
    s_and_b64 s[78:79], s[78:79], vcc
    s_mov_b64 exec, s[78:79]
    ds_add_rtn_u32 v{RANK}, v{CADDR}, v{vt+3} offset:{CNT}
    s_mov_b64 exec, -1
    s_waitcnt lgkmcnt(0)
    s_barrier
    """)
    scan(False)
    a(f"""
    s_mov_b64 exec, s[78:79]
    ds_read_b32 v{STV}, v{CADDR} offset:{START}
    s_waitcnt lgkmcnt(0)
    """)
    place(0, STV, EOFF)
    a(f"""
    s_mov_b64 exec, -1
    """)
    lane_setup()
    a(f"""
    s_waitcnt lgkmcnt(0)
    s_barrier
    s_cmp_eq_u32 s{sfh}, 0
    s_cbranch_scc1 K2_REFILLP
    s_branch K2_REFILLC
    K2_CODE_END:
    """)
    return a.text(), kd("k2_kernel", 256, 102)

KE_PROF = f"""
    s_memrealtime s[8:9]
    s_load_dwordx2 s[4:5], s[0:1], 88
    s_waitcnt lgkmcnt(0)
    s_add_u32 s4, s4, {PROF_OFF + 0x200000}
    s_addc_u32 s5, s5, 0
    s_mov_b32 s6, 4
    s_mov_b32 s7, 0x20000
    v_mov_b32 v1, s8
    v_lshlrev_b32 v0, 2, v0
    buffer_store_dword v1, v0, s[4:7], 0 offen
"""
def gen_kr():
    a = Asm()
    a(f"""
    kr_kernel:
    s_cmp_ge_u32 s2, 1
    s_cbranch_scc1 KR_END
    s_load_dwordx4 s[4:7], s[0:1], 80
    s_waitcnt lgkmcnt(0)
    s_add_u32 s8, s6, {PROF_OFF}
    s_addc_u32 s9, s7, 0
    s_mov_b32 s10, 0x200000
    s_mov_b32 s11, 0x20000
    s_mov_b32 s6, 256
    s_mov_b32 s7, 0x20000
    v_cmp_gt_u32 vcc, 250, v0
    s_and_saveexec_b64 s[12:13], vcc
    v_lshlrev_b32 v1, 10, v0
    v_mov_b32 v3, 0
    """)
    sel = [(0, 8, 0, 1), (0, 8, 0, 0), (0, 8, 2, 0), (0, 8, 3, 0), (0, 8, 5, 0), (0, 8, 8, 0),
           (1, 8, 0, 1), (1, 8, 0, 0), (1, 8, 2, 0), (1, 8, 3, 0), (1, 8, 5, 1), (1, 8, 5, 0), (1, 8, 6, 1), (1, 8, 6, 0), (1, 8, 8, 0)]
    w0 = 0
    if OPT.get("krsel"):
        w0, st_, mn_ = [int(x) for x in OPT["krsel"].split(",")]
        sel = [(1, 4, 0, 1), (1, 4, st_, mn_)]
    for j, (kn, nw, st, mn) in enumerate(sel):
        a(f"s_mov_b32 s14, {kn*0x100000 + 64*w0}")
        for w in range(nw): a(f"buffer_load_dword v{10+w}, v1, s[8:11], s14 offen offset:{64*w+4*st}")
        a("s_waitcnt vmcnt(0)")
        if mn:
            for w in range(nw): a(f"v_not_b32 v{10+w}, v{10+w}")
        for w in range(1, nw): a(f"v_max_u32 v10, v10, v{10+w}")
        a(f"buffer_atomic_umax v10, v3, s[4:7], 0 offen offset:{4*j}\ns_waitcnt vmcnt(0)")
    if OPT.get("iv"):
        ja, jb, k = [int(x) for x in OPT["iv"].split(",")]
        a(f"""
        s_barrier
        buffer_load_dword v10, v3, s[4:7], 0 offen offset:{4*ja} sc0 sc1
        buffer_load_dword v11, v3, s[4:7], 0 offen offset:{4*jb} sc0 sc1
        s_waitcnt vmcnt(0)
        v_readfirstlane_b32 s16, v10
        v_readfirstlane_b32 s17, v11
        """)
        if sel[ja][3]: a("s_not_b32 s16, s16")
        if sel[jb][3]: a("s_not_b32 s17, s17")
        a(f"""
        s_sub_u32 s16, s16, s17
        s_min_u32 s16, s16, 10000
        s_mul_i32 s16, s16, {k}
        s_memrealtime s[18:19]
        s_waitcnt lgkmcnt(0)
        KR_SPIN:
        s_memrealtime s[20:21]
        s_waitcnt lgkmcnt(0)
        s_sub_u32 s20, s20, s18
        s_cmp_lt_u32 s20, s16
        s_cbranch_scc1 KR_SPIN
        """)
    a("KR_END:\ns_endpgm")
    return a.text()

def main():
    k1, d1 = gen_k1(); k2, d2 = gen_k2()
    ref = open("standalone__edge_featured_mpnn_gatedgcn__graph.s.ref").read().split("\n")
    out = "\n".join(ref[:13]) + "\n"
    for ch in OPT.get("list", "12"):
        if ch == "1": out += f"; @launch kernel=k1_kernel grid=({2*NCH},1,1) block=(512,1,1) lds={K1_LDS}\n"
        if ch == "2": out += f"; @launch kernel=k2_kernel grid=({NBIN},1,1) block=(512,1,1) lds={K2_LDS}\n"
        if ch == "r": out += "; @launch kernel=kr_kernel grid=(1,1,1) block=(256,1,1) lds=0\n"
        if ch == "e": out += "; @launch kernel=ke_kernel grid=(1,1,1) block=(64,1,1) lds=0\n"
    out += '.amdgcn_target "amdgcn-amd-amdhsa--gfx950"\n.text\n'
    for n, k in (("k1_kernel", k1), ("k2_kernel", k2)):
        out += f".globl {n}\n.p2align 8\n.type {n},@function\n" + k
    if "e" in OPT.get("list", ""): out += ".globl ke_kernel\n.p2align 8\n.type ke_kernel,@function\nke_kernel:\n" + (KE_PROF if OPT.get("prof") else "") + "    s_endpgm\n"
    if "r" in OPT.get("list", ""): out += ".globl kr_kernel\n.p2align 8\n.type kr_kernel,@function\n" + gen_kr()
    out += '.section .rodata,"a"\n.p2align 6\n' + d1.lstrip("\n") + '.p2align 6\n' + d2.lstrip("\n")
    if "e" in OPT.get("list", ""): out += '.p2align 6\n' + kd("ke_kernel", 8, 16).lstrip("\n")
    if "r" in OPT.get("list", ""): out += '.p2align 6\n' + kd("kr_kernel", 32, 32).lstrip("\n")
    open(sys.argv[1], "w").write(out)

if __name__ == "__main__":
    main()
```

```python
import struct, sys
import asmsim

N = 10000; E = 320000
NCH = 128; CS = 2500
NBIN = 256; GN = 10
BINK, BINC, BINS = 53687, 52500, 21
assert all((625*b_ >> 4) <= d_ < (625*(b_+1) >> 4) for d_ in range(N) for b_ in [(d_*BINK + BINC) >> BINS])
CAP = 32
TS = int(([a for a in sys.argv if a.startswith('ts=')] or ['ts=512'])[0][3:])
T_OFF = 0x1000000
REC_OFF = 0x700000
WT_OFF = 0xB00000
LUT_OFF = 0xB20000
PROF_OFF = 0xF000000
NL2E = struct.unpack("<I", struct.pack("<f", -1.4426950408889634))[0]

def bf(x): return struct.unpack("<I", struct.pack("<f", x))[0] >> 16

OPT = dict(st_r="sc1", st_t="sc1")
for a in sys.argv[2:]:
    k, v = a.split("=", 1); OPT[k] = v

class Asm:
    def __init__(self): self.l = []
    def __call__(self, s):
        for x in s.strip("\n").split("\n"):
            x = x.strip()
            if not x: continue
            if x.startswith(";"): x = "s_nop 0"
            self.l.append(x if x.endswith(":") else "    " + x)
    def ext(self, lst):
        for x in lst: self(x)
    def text(self): return "\n".join(self.l) + "\n"

def stamp(a, i, lvl="1"):
    if OPT.get("prof") and (i in (0, 8) or OPT["prof"] == lvl): a(f"s_memrealtime s[{84+2*i}:{85+2*i}]")
def stamp_out(a, kern, wsreg, sw, vtmp):
    if not OPT.get("prof"): return
    a("s_waitcnt vmcnt(0)")
    stamp(a, 8)
    a(f"""
    s_lshl_b32 s4, s2, 4
    s_add_u32 s4, s4, s{sw}
    s_lshl_b32 s4, s4, 6
    s_add_u32 s4, s4, {PROF_OFF + kern*0x100000}
    s_add_u32 s4, s{wsreg}, s4
    s_addc_u32 s5, s{wsreg+1}, 0
    s_mov_b32 s6, 64
    s_mov_b32 s7, 0x20000
    s_waitcnt lgkmcnt(0)
    """)
    if kern == 1 and OPT["prof"] == "7":
        a(f"v_mov_b32 v{vtmp}, v251\nv_writelane_b32 v{vtmp}, s84, 0\ns_mov_b32 m0, s98\ns_add_u32 s98, s98, 1\nv_writelane_b32 v{vtmp}, s86, m0\ns_mov_b32 m0, s98\ns_nop 3\nv_writelane_b32 v{vtmp}, s100, m0\nv_writelane_b32 v{vtmp}, s98, 15")
    else:
        for i in range(9): a(f"v_writelane_b32 v{vtmp}, s{84+2*i}, {i}")
    a(f"""
    v_mbcnt_lo_u32_b32 v{vtmp+1}, -1, 0
    v_mbcnt_hi_u32_b32 v{vtmp+1}, -1, v{vtmp+1}
    v_lshlrev_b32 v{vtmp+1}, 2, v{vtmp+1}
    buffer_store_dword v{vtmp}, v{vtmp+1}, s[4:7], 0 offen
    """)

def vr(b, n): return f"v[{b}:{b+n-1}]"
def sr(b, n): return f"s[{b}:{b+n-1}]"

def srd(a, d, base, add=None, size=None, w3="0x20000", hi_or=None):
    if add is None:
        a(f"s_mov_b32 s{d}, s{base}\ns_mov_b32 s{d+1}, s{base+1}")
    else:
        a(f"s_add_u32 s{d}, s{base}, {add}\ns_addc_u32 s{d+1}, s{base+1}, 0")
    if hi_or: a(f"s_or_b32 s{d+1}, s{d+1}, {hi_or}")
    a(f"s_mov_b32 s{d+2}, {size}\ns_mov_b32 s{d+3}, {w3}")

def kd(name, vgpr, sgpr):
    return f"""
.amdhsa_kernel {name}
  .amdhsa_next_free_vgpr {vgpr}
  .amdhsa_next_free_sgpr {sgpr}
  .amdhsa_accum_offset {(vgpr+3)//4*4}
  .amdhsa_group_segment_fixed_size 0
  .amdhsa_kernarg_size 96
  .amdhsa_user_sgpr_count 2
  .amdhsa_user_sgpr_kernarg_segment_ptr 1
  .amdhsa_system_sgpr_workgroup_id_x 1
.end_amdhsa_kernel
"""

def rec_fields(a, vd, vbin, vtmp, sm40, sm10):
    a(f"""
    v_mul_u32_u24 v{vbin}, {BINK}, v{vd}
    v_add_u32 v{vbin}, {BINC}, v{vbin}
    v_lshrrev_b32 v{vbin}, {BINS}, v{vbin}
    v_mul_u32_u24 v{vtmp}, 625, v{vbin}
    v_lshrrev_b32 v{vtmp}, 4, v{vtmp}
    v_sub_u32 v{vd}, v{vd}, v{vtmp}
    v_mul_u32_u24 v{vtmp}, 26, v{vd}
    v_lshrrev_b32 v{vtmp}, 8, v{vtmp}
    v_mad_i32_i24 v{vd}, v{vtmp}, s{sm10}, v{vd}
    v_lshl_or_b32 v{vd}, v{vtmp}, 30, v{vd}
    """)

K1_CNT = 0; K1_STG = 1024; K1_W = 34816; K1_X = K1_W + 32768; K1_LDS = K1_X + 24576
RLO, RHI = 96, 64
def gen_k1():
    a = Asm()
    sS, sD, sW1, sW2, sX, sR, sT, sP = 24, 28, 32, 36, 40, 44, 48, 72
    sw, st0, st1, st2, snb, sfb, sch, shf, srow, snr = 52, 53, 54, 55, 56, 57, 58, 69, 71, 76
    c8192, cm10, cnl2e, csign, cmag, ctso, cp0 = 60, 62, 63, 64, 65, 66, 67
    vD, vS, vB, vSL, vt = 4, 12, 20, 28, 36
    vg = 56; vTR, vXA, vST = 64, 65, 66; vWC = 72
    vW, vX, vA, vO = 96, 160, 176, 192
    def W(m, ab, s): return vW + 32*m + 16*ab + 4*s
    a("k1_kernel:")
    a(f"s_cmp_ge_u32 s2, {2*NCH}\ns_cbranch_scc1 K1_END")
    stamp(a, 0)
    a(f"""
    s_load_dwordx16 s[4:19], s[0:1], 0
    s_load_dwordx2 s[20:21], s[0:1], 64
    s_load_dwordx2 s[22:23], s[0:1], 88
    v_lshrrev_b32 v2, 6, v0
    v_lshlrev_b32 v1, 2, v0
    v_readfirstlane_b32 s{sw}, v2
    v_lshlrev_b32 v2, 4, v0
    s_mov_b32 s{c8192}, 8192
    s_sub_u32 s{sch}, s2, {NCH}
    s_and_b32 s{shf}, s2, 1
    v_and_b32 v{vg}, 63, v0
    v_lshrrev_b32 v{vg+1}, 4, v{vg}
    v_and_b32 v{vg+2}, 15, v0
    s_and_b32 s{st0}, s{sw}, 3
    s_lshl_b32 s{st0}, s{st0}, 2
    v_add_u32 v{vg+3}, s{st0}, v{vg+1}
    v_xor_b32 v{vg+3}, v{vg+3}, v{vg+2}
    v_lshlrev_b32 v{vg+3}, 4, v{vg+3}
    v_lshl_add_u32 v{vg+3}, v{vg+1}, 8, v{vg+3}
    v_lshrrev_b32 v{vg+4}, 3, v{vg}
    v_lshlrev_b32 v{vg+5}, 1, v{vg+4}
    v_and_b32 v{vg+5}, 4, v{vg+5}
    v_and_b32 v{vg+6}, 7, v0
    v_xor_b32 v{vg+5}, v{vg+5}, v{vg+6}
    v_lshlrev_b32 v{vg+5}, 4, v{vg+5}
    v_lshl_add_u32 v{vg+4}, v{vg+4}, 8, v{vg+5}
    s_lshr_b32 s{st0}, s2, 1
    s_mul_i32 s{srow}, s{st0}, {RLO}
    s_mul_i32 s{st0}, s{st0}, {RHI}
    s_add_u32 s{st0}, s{st0}, {64*(RLO-RHI)}
    s_cmp_lt_u32 s2, {NCH}
    s_cselect_b32 s{srow}, s{srow}, s{st0}
    s_cselect_b32 s{snr}, {RLO}, {RHI}
    s_min_u32 s{srow}, s{srow}, {N}
    s_sub_u32 s{st0}, {N}, s{srow}
    s_min_u32 s{snr}, s{snr}, s{st0}
    s_mul_i32 s{st1}, s{sch}, {CS*4}
    s_cmp_lt_u32 s2, 254
    s_waitcnt lgkmcnt(0)
    s_cselect_b64 {sr(sW1,2)}, s[14:15], s[12:13]
    s_cselect_b64 {sr(sW2,2)}, s[20:21], s[18:19]
    s_cmp_lt_u32 s2, {NCH}
    s_cbranch_scc1 K1_NOIDX
    """)
    srd(a, sD, 10, f"s{st1}", CS*4)
    srd(a, sS, 8, f"s{st1}", CS*4)
    a(f"""
    buffer_load_dwordx4 {vr(vD,4)}, v2, {sr(sD,4)}, 0 offen
    buffer_load_dwordx4 {vr(vS,4)}, v2, {sr(sS,4)}, 0 offen
    buffer_load_dword v{vD+4}, v1, {sr(sD,4)}, s{c8192} offen
    buffer_load_dword v{vS+4}, v1, {sr(sS,4)}, s{c8192} offen
    s_barrier
    K1_NOIDX:
    s_lshl_b32 s{st0}, s{srow}, 8
    s_add_u32 s{sX}, s4, s{st0}
    s_addc_u32 s{sX+1}, s5, 0
    s_lshl_b32 s{sX+2}, s{snr}, 8
    s_mov_b32 s{sX+3}, 0x20000
    s_mov_b32 s{sW1+2}, 32768
    s_mov_b32 s{sW1+3}, 0x20000
    s_mov_b32 s{sW2+2}, 32768
    s_mov_b32 s{sW2+3}, 0x20000
    s_lshl_b32 s{shf+1}, s{shf}, 7
    s_lshl_b32 s{st1}, s{sw}, 10
    """)
    def dma_x(k):
        a(f"s_add_u32 m0, s{st1}, {K1_X + 8192*k}\ns_add_u32 s{st2}, s{st1}, {8192*k}\nbuffer_load_dwordx4 v{vg+3}, {sr(sX,4)}, s{st2} offen lds")
    def stage_w():
        a(f"s_lshr_b32 s{st2}, s2, 3\ns_add_u32 s{st2}, s{st2}, s{sw}\ns_and_b32 s{st2}, s{st2}, 15")
        for k in range(2):
            a(f"""
            s_lshl_b32 s{st0}, s{st2}, 10
            s_add_u32 m0, s{st0}, {K1_W}
            s_lshl_b32 s{st1}, s{st2}, 11
            s_add_u32 s{st1}, s{st1}, s{shf+1}
            buffer_load_dwordx4 v{vg+4}, {sr(sW1,4)}, s{st1} offen lds
            s_add_u32 m0, s{st0}, {K1_W+16384}
            s_xor_b32 s{st2}, s{st2}, 8
            buffer_load_dwordx4 v{vg+4}, {sr(sW2,4)}, s{st1} offen lds
            """)
    dma_x(0); dma_x(1)
    a(f"s_cmp_lt_u32 s2, {NCH}\ns_cbranch_scc0 K1_LATER")
    dma_x(2); stage_w()
    a(f"""
    K1_LATER:
    s_and_b32 s{sfb}, s{sw}, 1
    s_lshr_b32 s{snb}, s{sw}, 1
    v_bfe_u32 v{vg+5}, v0, 2, 2
    v_and_b32 v{vg+6}, 3, v0
    s_lshl_b32 s{st0}, s{sfb}, 2
    v_add_u32 v{vg+6}, s{st0}, v{vg+6}
    v_lshlrev_b32 v{vg+7}, 1, v{vg+5}
    v_and_b32 v{vg+7}, 4, v{vg+7}
    v_xor_b32 v{vg+6}, v{vg+6}, v{vg+7}
    v_lshl_add_u32 v{vg+5}, v{vg+1}, 3, v{vg+5}
    v_lshlrev_b32 v{vg+5}, 7, v{vg+5}
    v_lshl_add_u32 v{vTR}, v{vg+6}, 4, v{vg+5}
    v_xor_b32 v{vXA}, v{vg+1}, v{vg+2}
    v_lshlrev_b32 v{vXA}, 4, v{vXA}
    v_lshl_add_u32 v{vXA}, v{vg+2}, 8, v{vXA}
    s_lshl_b32 s{st0}, s{snb}, 12
    s_add_u32 s{st0}, s{st0}, {K1_X}
    v_add_u32 v{vXA}, s{st0}, v{vXA}
    v_xor_b32 v{vXA+2}, 64, v{vXA}
    v_xor_b32 v{vXA+3}, 0x80, v{vXA}
    v_xor_b32 v{vXA+4}, 0xc0, v{vXA}
    v_mul_u32_u24 v{vST}, {TS}, v{vg+2}
    v_lshl_add_u32 v{vST}, v{vg+1}, 4, v{vST}
    s_mul_i32 s{ctso}, s{snb}, {16*TS}
    s_lshl_b32 s{st1}, s{shf}, 8
    s_add_u32 s{ctso}, s{ctso}, s{st1}
    s_lshl_b32 s{st1}, s{sfb}, 6
    s_add_u32 s{ctso}, s{ctso}, s{st1}
    s_mov_b32 s{cnl2e}, {NL2E:#x}
    s_mov_b32 s{csign}, 0x00800000
    s_mov_b32 s{cmag}, 0x7fffffff
    s_mov_b32 s{cp0}, 0x07060100
    s_mov_b32 s{cp0+1}, 0x07060302
    s_mul_i32 s{st0}, s{srow}, {TS}
    s_add_u32 s{st0}, s{st0}, {T_OFF}
    s_mul_i32 s{st1}, s{snr}, {TS}
    """)
    srd(a, sT, 22, f"s{st0}", f"s{st1}")
    stamp(a, 1)
    a(f"s_cmp_lt_u32 s2, {NCH}\ns_cbranch_scc1 K1_NOBIN")
    a(f"""
    v_mov_b32 v{vt}, -1
    v_mov_b32 v{vt+1}, -1
    v_mov_b32 v{vt+2}, -1
    v_mov_b32 v{vt+3}, -1
    v_mov_b32 v{vt+5}, 0
    v_and_b32 v{vt+6}, 0x3fc, v1
    """)
    for k in range(4): a(f"ds_write_b128 v2, {vr(vt,4)} offset:{K1_STG+8192*k}")
    a(f"""
    ds_write_b32 v{vt+6}, v{vt+5} offset:{K1_CNT}
    s_lshl_b32 s{st0}, s{sch}, 7
    s_add_u32 s{st0}, s{st0}, {REC_OFF}
    """)
    srd(a, sR, 22, f"s{st0}", NBIN*NCH*128)
    a(f"s_lshl_b32 s{st0}, s{sch}, 9\ns_add_u32 s{st1}, s{st0}, {LUT_OFF}")
    srd(a, sP, 22, f"s{st1}", 512)
    l0, l1 = vt+10, vt+11
    a(f"""
    v_add_u32 v{l0}, s{st0}, v1
    v_and_b32 v{l1}, 0x7fff, v{l0}
    v_cmp_ne_u32 vcc, 0x7c00, v{l1}
    v_or_b32 v{l1}, 3, v{l0}
    s_nop 0
    v_addc_co_u32 v{l0}, vcc, 0, v{l0}, vcc
    v_cvt_f32_f16 v{l1}, v{l1}
    v_cvt_f32_f16 v{l0}, v{l0}
    v_exp_f32 v{l1}, v{l1}
    v_exp_f32 v{l0}, v{l0}
    v_add_f32 v{l1}, 1.0, v{l1}
    v_add_f32 v{l0}, 1.0, v{l0}
    v_rcp_f32 v{l1}, v{l1}
    v_rcp_f32 v{l0}, v{l0}
    s_mov_b32 s{cm10}, {-GN}
    v_cvt_pk_bf16_f32 v{l0}, v{l0}, v{l1}
    v_mov_b32 v{vt+5}, 1
    v_cmp_gt_u32 vcc, {CS-2048}, v0
    s_mov_b64 s[80:81], vcc
    v_lshrrev_b32 v{vt+7}, 3, v0
    v_and_b32 v{vt+8}, 7, v0
    v_lshlrev_b32 v{vt+9}, 14, v{vt+7}
    v_lshl_add_u32 v{vt+9}, v{vt+8}, 4, v{vt+9}
    v_lshlrev_b32 v{vt+7}, 2, v{vt+7}
    v_cmp_eq_u32 s[82:83], 7, v{vt+8}
    s_waitcnt lgkmcnt(0)
    s_barrier
    s_waitcnt vmcnt(2)
    """)
    stamp(a, 2)
    for r in range(5):
        rec_fields(a, vD+r, vB+r, vt, None, cm10)
        a(f"v_lshlrev_b32 v{vt}, 2, v{vB+r}")
        if r == 4: a("s_mov_b64 exec, s[80:81]")
        a(f"ds_add_rtn_u32 v{vSL+r}, v{vt}, v{vt+5} offset:{K1_CNT}")
        if r == 4: a("s_mov_b64 exec, -1")
    stage_w()
    a(f"""
    s_cmp_eq_u32 s2, 252
    s_cbranch_scc0 K1_NOWC
    """)
    srd(a, sS, 16, None, 4096)
    a(f"""
    v_lshrrev_b32 v{vWC+8}, 5, v{vg}
    v_and_b32 v{vWC+9}, 31, v0
    v_lshlrev_b32 v{vWC+9}, 2, v{vWC+9}
    v_lshl_add_u32 v{vWC+9}, v{vWC+8}, 11, v{vWC+9}
    s_bfe_u32 s{st1}, s{sw}, 0x10001
    s_lshl_b32 s{st1}, s{st1}, 7
    s_lshl_b32 s{st0}, s{sfb}, 1
    s_add_u32 s{st1}, s{st1}, s{st0}
    """)
    for j in range(8): a(f"buffer_load_ushort v{vWC+j}, v{vWC+9}, {sr(sS,4)}, s{st1} offen offset:{256*j}")
    a("K1_NOWC:")
    for r in range(5):
        a(f"v_lshl_or_b32 v{vD+r}, v{vS+r}, 16, v{vD+r}")
        a(f"v_add_u32 v{vS+r}, {r}, v1" if r < 4 else f"v_add_u32 v{vS+r}, 2048, v0")
        a(f"v_lshl_or_b32 v{vD+r}, v{vS+r}, 4, v{vD+r}\nv_lshlrev_b32 v{vB+r}, 7, v{vB+r}")
    for r in range(5):
        a("s_waitcnt lgkmcnt(4)")
        if r == 4: a("s_mov_b64 exec, s[80:81]")
        a(f"""
        v_and_b32 v{vt}, 12, v{vSL+r}
        v_add_u32 v{vB+r}, v{vB+r}, v{vt}
        v_and_b32 v{vt}, 3, v{vSL+r}
        v_lshl_add_u32 v{vB+r}, v{vt}, 4, v{vB+r}
        v_and_b32 v{vt}, 16, v{vSL+r}
        v_lshl_add_u32 v{vB+r}, v{vt}, 2, v{vB+r}
        v_cmpx_gt_u32 vcc, {CAP}, v{vSL+r}
        ds_write_b32 v{vB+r}, v{vD+r} offset:{K1_STG}
        s_mov_b64 exec, -1
        """)
    a("s_waitcnt lgkmcnt(0)\ns_barrier")
    for k in range(4):
        a(f"ds_read_b128 {vr(4+4*k,4)}, v2 offset:{K1_STG+8192*k}\nds_read_b32 v{20+k}, v{vt+7} offset:{K1_CNT+256*k}")
    a(f"""
    v_mov_b32 v{vt+2}, -2
    s_mov_b32 s{st2}, 0
    buffer_store_dword v{l0}, v1, {sr(sP,4)}, 0 offen {OPT['st_r']}
    """)
    stamp(a, 3)
    for k in range(4):
        a(f"""
        s_waitcnt lgkmcnt({6-2*k})
        v_cmp_lt_u32 vcc, {CAP}, v{20+k}
        s_and_b64 vcc, vcc, s[82:83]
        s_nop 1
        v_cndmask_b32 v{7+4*k}, v{7+4*k}, v{vt+2}, vcc
        buffer_store_dwordx4 {vr(4+4*k,4)}, v{vt+9}, {sr(sR,4)}, s{st2} offen {OPT['st_r']}
        s_add_u32 s{st2}, s{st2}, {64*16384}
        """)
    a(f"""
    s_waitcnt vmcnt(5)
    s_branch K1_STAGED
    K1_NOBIN:
    s_waitcnt vmcnt(0)
    """)
    stamp(a, 2); stamp(a, 3)
    a(f"""
    K1_STAGED:
    s_barrier
    s_cmp_eq_u32 s2, 252
    s_cbranch_scc1 K1_WC
    """)
    def xrd(reg, off):
        for s in range(4): a(f"ds_read_b128 {vr(reg+4*s,4)}, v{[vXA, vXA+2, vXA+3, vXA+4][s]} offset:{off}")
    def trs(s):
        for m in range(2):
            for ab in range(2):
                for u in range(2):
                    a(f"ds_read_b64_tr_b16 {vr(W(m,ab,s)+2*u,2)}, v{vTR} offset:{K1_W+m*16384+s*4096+u*512+ab*8}")
    def mm(s, x, acc):
        return [f"v_mfma_f32_16x16x32_bf16 {vr(acc+8*m+4*ab,4)}, {vr(W(m,ab,s),4)}, {vr(x+4*s,4)}, {'0' if s == 0 else vr(acc+8*m+4*ab,4)}"
                for m in range(2) for ab in range(2)]
    def pack(acc, out):
        o = []
        for b in range(2):
            for ab in range(2):
                b0, b1 = acc+4*ab+b, acc+4*ab+2+b
                hs = [acc+8+4*ab+2*e_+b for e_ in range(2)]
                o += [f"v_mul_f32 v{b0}, s{cnl2e}, v{b0}", f"v_mul_f32 v{b1}, s{cnl2e}, v{b1}"]
                for e_, h in enumerate(hs): o += [f"v_max_f32 v{30+e_}, abs(v{h}), s{csign}", f"v_bfi_b32 v{h}, s{cmag}, v{30+e_}, v{h}"]
                o += [f"v_cvt_pk_bf16_f32 v{b0}, v{b0}, v{b1}"] + [f"v_add_u32 v{h}, 0x8000, v{h}" for h in hs]
                o += [f"v_sub_u32_sdwa v{h}, v{h}, v{b0} dst_sel:DWORD dst_unused:UNUSED_PAD src0_sel:DWORD src1_sel:WORD_{e_}" for e_, h in enumerate(hs)]
                o += [f"v_perm_b32 v{out+4*b+2*ab+e_}, v{h}, v{b0}, s{cp0+e_}" for e_, h in enumerate(hs)]
            o.append(f"buffer_store_dwordx4 {vr(out+4*b,4)}, v{vST}, {sr(sT,4)}, s{ctso} offen offset:{128*b} {OPT['st_t']}")
        return o
    xrd(vX, 0)
    trs(0); a("s_waitcnt lgkmcnt(6)")
    for s in range(1, 4):
        trs(s); a("s_waitcnt lgkmcnt(8)"); a.ext(mm(s-1, vX, vA))
        if s < 3: a("s_waitcnt lgkmcnt(6)")
    a(f"""
    s_waitcnt lgkmcnt(0)
    s_cmp_ge_u32 s2, 254
    s_cbranch_scc1 K1_WT
    s_lshl_b32 s{st0}, s{snb}, 4
    s_add_u32 s{st0}, s{st0}, 64
    s_cmp_lt_u32 s{st0}, s{snr}
    s_cbranch_scc0 K1_ONE
    """)
    vX2, vA2 = 208, 224
    xrd(vX2, 16384)
    g = mm(3, vX, vA) + ["s_waitcnt lgkmcnt(0)"]
    m2 = sum((mm(s, vX2, vA2) for s in range(4)), []); pk = pack(vA, vO)
    g += m2[:6]; k = 0
    for x in m2[6:]:
        g.append(x); g += pk[k:k+3]; k += 3
    g += pk[k:] + [f"s_add_u32 s{ctso}, s{ctso}, {64*TS}"] + pack(vA2, vO+8)
    asmsim.check_hazards(g, "k1 two blocks")
    a.ext(g)
    a("s_branch K1_TAIL\nK1_ONE:")
    g = mm(3, vX, vA) + ["s_nop 7"] + pack(vA, vO)
    asmsim.check_hazards(g, "k1 one block")
    a.ext(g)
    a("K1_TAIL:")
    stamp(a, 4); stamp(a, 5)
    PL = int(OPT.get("pl", "0"))
    if PL:
        a(f"""
        s_cmp_lt_u32 s2, {NCH}
        s_cbranch_scc0 K1_NOPF
        s_mul_i32 s{st0}, s2, {CS*32}
        """)
        srd(a, sP, 6, f"s{st0}", PL*128)
        a(f"""
        v_lshlrev_b32 v4, 7, v0
        s_mov_b32 s{st0}, 65536
        s_barrier
        buffer_load_dword v5, v4, {sr(sP,4)}, 0 offen
        buffer_load_dword v5, v4, {sr(sP,4)}, s{st0} offen
        K1_NOPF:
        """)
    stamp(a, 6); stamp(a, 7)
    stamp_out(a, 0, 22, sw, 2)
    a("s_endpgm")
    a("K1_WT:")
    srd(a, sT, 22, WT_OFF, 65536)
    a(f"""
    s_cmp_ge_u32 s{sw}, 4
    s_cbranch_scc1 K1_END
    v_lshlrev_b32 v2, 4, v{vg}
    s_lshl_b32 s{st0}, s{snb}, 2
    s_lshl_b32 s{st1}, s{shf}, 1
    s_add_u32 s{st0}, s{st0}, s{st1}
    s_add_u32 s{st0}, s{st0}, s{sfb}
    s_lshl_b32 s{st0}, s{st0}, 13
    s_add_u32 s{st1}, s{st0}, 4096
    s_cmp_eq_u32 s{snb}, 0
    s_cbranch_scc0 K1_WU
    """)
    for m in range(2):
        for ab in range(2):
            for s in range(4):
                a(f"buffer_store_dwordx4 {vr(W(m,ab,s),4)}, v2, {sr(sT,4)}, s{st1 if ab else st0} offen offset:{1024*s} {OPT['st_t']}")
        a("s_endpgm")
        if m == 0: a("K1_WU:")
    a("K1_WC:")
    srd(a, sT, 22, WT_OFF+65536, 4096)
    a(f"v_lshlrev_b32 v2, 4, v{vg}\ns_lshl_b32 s{st0}, s{sw}, 10")
    for j in range(8):
        a(f"v_lshlrev_b32 v{vWC+j}, 16, v{vWC+j}\nv_mul_f32 v{vWC+j}, s{cnl2e}, v{vWC+j}")
    for j in range(4):
        a(f"v_cvt_pk_bf16_f32 v{84+j}, v{vWC+2*j}, v{vWC+1+2*j}")
    a(f"buffer_store_dwordx4 v[84:87], v2, {sr(sT,4)}, s{st0} offen {OPT['st_t']}")
    a("K1_END:\ns_endpgm")
    return a.text(), kd("k1_kernel", 240, 102)

CAPG = 416; RND = 400
CNT = 0; FLG = 256; START = 512; INCL = 768; OHL = 1024; L1 = 1536; L2 = L1 + 4*CAPG*4; APL = L2 + 4*CAPG*4
ROWP = 272
UL = APL + 48*ROWP; LUTL = UL + 48*ROWP; STG = (LUTL + 65536 + 255)//256*256; XL = STG + 3*CAPG*32 + 5*1024; K2_LDS = XL + 12288
PROG = FLG + 32
assert K2_LDS <= 163840 and K2_LDS >= STG + 4*CAPG*32 and LUTL <= 65535 and (4*CAPG*4) % 256 == 0

def gen_k2():
    a = Asm()
    sREC, sX, sWT, sT, sE, sO, sD, sS = 24, 28, 32, 36, 40, 44, 68, 72
    sw, sg, sfh, st0, st1, st2 = 48, 49, 50, 51, 52, 53
    scount, sslow, sround, slim, sgb, srt, slut, srank = 54, 55, 56, 57, 58, 59, 82, 83
    stail = 20
    sdma, sm0, sneed = 21, 22, 23
    cm32, c128, cnl2e, cfc, csrc, cm40, cm10, cfe = 60, 61, 62, 63, 64, 65, 66, 67
    sk = 16
    vH16, vA1, vA2, vEa, vOa, vO, vA3 = 1, 2, 3, 4, 5, 6, 7
    WC = 8; AP = 16; PA = 24; SC = 28; OH = 32; EA = 40; ADDR = 48; ACC = 64; SP = 96; G = 112; RAW = 176
    XR = 240; UR = 246; vP16 = 252; vH256 = 253; vHS = 254; vPG = 255; vM15 = XR; vO2 = SP+8
    raw = lambda p, b: RAW + 32*p + 16*b
    gb = lambda p, b: G + 32*p + 16*b
    vt = gb(1, 1); Z = SP; EOFF = SP+14
    REC = raw(1, 0); CADDR = REC+16; RANK = G; STV = G+16
    NTB = [int(c_) for c_ in OPT.get("nt", "11")]
    rowoff = lambda r: 8*(r >> 2) + (r & 3)
    sd = "dst_sel:DWORD dst_unused:UNUSED_PAD src0_sel:DWORD"

    a("k2_kernel:")
    a(f"s_cmp_ge_u32 s2, {NBIN}\ns_cbranch_scc1 K2_END")
    stamp(a, 0)
    a(f"""
    s_load_dwordx8 s[4:11], s[0:1], 0
    s_load_dwordx2 s[12:13], s[0:1], 72
    s_load_dwordx2 s[14:15], s[0:1], 88
    v_lshrrev_b32 v{vt}, 6, v0
    v_lshrrev_b32 v{vt+1}, 2, v0
    v_readfirstlane_b32 s{sw}, v{vt}
    v_and_b32 v{vt+2}, 3, v0
    v_lshlrev_b32 v{vt+3}, 7, v{vt+1}
    v_lshl_add_u32 v{vt+3}, v{vt+2}, 4, v{vt+3}
    s_lshl_b32 s{st0}, s2, 14
    s_add_u32 s{st0}, s{st0}, {REC_OFF}
    v_and_b32 v{vt}, 63, v0
    v_lshlrev_b32 v{vt+5}, 3, v{vt}
    v_mov_b32 v{Z}, 0
    v_mov_b32 v{Z+1}, 0
    ds_write_b64 v{vt+5}, {vr(Z,2)} offset:{CNT}
    s_and_b32 s{sg}, s{sw}, 3
    s_lshr_b32 s{sfh}, s{sw}, 2
    v_lshlrev_b32 v{vA2}, 4, v{vt}
    s_mov_b32 s{st1}, 8192
    s_waitcnt lgkmcnt(0)
    s_cmp_lg_u32 s{sfh}, 0
    s_cbranch_scc1 K2_NOREC
    """)
    srd(a, sREC, 14, f"s{st0}", 16384)
    for u in range(2):
        for r in range(2):
            a(f"buffer_load_dwordx4 {vr(REC+8*r+4*u,4)}, v{vt+3}, {sr(sREC,4)}, {'s%d' % st1 if u else '0'} offen offset:{64*r}")
    a(f"""
    K2_NOREC:
    s_mul_i32 s{st0}, s2, 625
    s_add_u32 s{cm40}, s{st0}, 625
    s_lshr_b32 s{st0}, s{st0}, 4
    s_lshr_b32 s{cm40}, s{cm40}, 4
    s_sub_u32 s{cm40}, s{cm40}, s{st0}
    s_lshl_b32 s{cm40}, s{cm40}, 8
    s_lshl_b32 s{st0}, s{st0}, 8
    """)
    srd(a, sX, 4, f"s{st0}", f"s{cm40}")
    srd(a, sO, 12, f"s{st0}", f"s{cm40}")
    srd(a, sWT, 14, WT_OFF, LUT_OFF - WT_OFF + 65536)
    a("s_barrier")
    stamp(a, 1)
    def ld_wc():
        a(f"""
        s_lshl_b32 s{st1}, s{sfh}, 11
        s_add_u32 s{st1}, s{st1}, 65536
        buffer_load_dwordx4 {vr(WC,4)}, v{vA2}, {sr(sWT,4)}, s{st1} offen
        buffer_load_dwordx4 {vr(WC+4,4)}, v{vA2}, {sr(sWT,4)}, s{st1} offen offset:1024
        """)
    def common1(Z, vl):
        a = Asm()
        a(f"s_lshl_b32 s{st0}, s{sfh}, 8\ns_add_u32 s{st0}, s{st0}, {T_OFF-128}")
        srd(a, sT, 14, f"s{st0}", 64, w3="0x800000", hi_or="0x40000")
        srd(a, sE, 6, None, E*32)
        a(f"""
        s_mov_b32 s{cm32}, {'0x7e0' if 'e' in OPT.get('nomem','') else '0x1fffe0' if 's' in OPT.get('nomem','') else '0xffffffe0'}
        s_mov_b32 s{c128}, 128
        s_mov_b32 s{cnl2e}, {NL2E:#x}
        s_mov_b32 s{cfc}, 0xfc
        s_mov_b32 s{cfe}, {OPT.get('cfe', '0xfffe')}
        s_mov_b32 s{csrc}, {TS}
        s_mov_b32 s{sslow}, 0
        s_mov_b32 s{sround}, 0
        s_mov_b32 s{sgb}, 0
        s_mul_i32 s{st0}, s{sfh}, 3
        s_xor_b32 s{srank}, s{sg}, s{st0}
        v_lshrrev_b32 v{Z+2}, 5, v{vl}
        v_and_b32 v{Z+3}, 31, v0
        v_lshlrev_b32 v{vH16}, 4, v{Z+2}
        v_lshlrev_b32 v{vH256}, 8, v{Z+2}
        v_cmp_eq_u32 vcc, 0, v{Z+2}
        v_mov_b32 v{vM15}, 0xffff
        v_mov_b32 v{Z+4}, -1
        v_cndmask_b32 v{vM15}, v{vM15}, v{Z+4}, vcc
        v_and_b32 v{Z+4}, 3, v0
        v_mov_b32 v{Z+6}, 0x3f80
        """)
        for i in range(4):
            a(f"v_cmp_eq_u32 vcc, {i}, v{Z+4}\ns_nop 1\nv_cndmask_b32 v{PA+i}, 0, v{Z+6}, vcc")
        den = bf(127*2.0**-116); tiny = bf(2.0**-100)
        a(f"""
        v_cmp_gt_u32 s[78:79], 16, v{Z+3}
        v_mov_b32 v{Z+5}, {den:#x}
        v_mov_b32 v{Z+7}, {tiny<<16:#x}
        v_cndmask_b32 v{Z+5}, v{Z+6}, v{Z+5}, s[78:79]
        v_cndmask_b32 v{Z+7}, 0, v{Z+7}, s[78:79]
        v_and_b32 v{Z+4}, 15, v0
        v_lshlrev_b32 v{Z+8}, 3, v{Z+2}
        v_sub_u32 v{Z+4}, v{Z+4}, v{Z+8}
        v_lshlrev_b32 v{Z+6}, 16, v{Z+5}
        """)
        for d in range(4):
            a(f"""
            v_cmp_eq_u32 vcc, {2*d}, v{Z+4}
            v_cmp_eq_u32 s[78:79], {2*d+1}, v{Z+4}
            s_nop 0
            v_cndmask_b32 v{SC+d}, 0, v{Z+5}, vcc
            v_cndmask_b32 v{Z+8}, 0, v{Z+6}, s[78:79]
            v_or_b32 v{SC+d}, v{SC+d}, v{Z+8}
            """)
        a(f"""
        v_and_b32 v{SC+3}, v{SC+3}, v{vM15}
        v_not_b32 v{Z+8}, v{vM15}
        v_and_b32 v{Z+8}, v{Z+8}, v{Z+7}
        v_or_b32 v{SC+3}, v{SC+3}, v{Z+8}
        """)
        return [x.strip() for x in a.l]
    def ld_xr(): return [f"buffer_load_dword v{XR+r}, v{vO}, {sr(sX,4)}, 0 offen offset:{256*rowoff(r)} " for r in range(6)]
    def arrive(k):
        a(f"""
        v_mov_b32 v{vt+6}, {FLG+4*k}
        v_mov_b32 v{vt+7}, 1
        s_mov_b64 exec, 1
        ds_add_u32 v{vt+6}, v{vt+7}
        s_mov_b64 exec, -1
        """)
    def spin(k, n, add=True):
        if add: arrive(k)
        else: a(f"v_mov_b32 v{vt+6}, {FLG+4*k}")
        a(f"""
        K2_SPIN{n}:
        ds_read_b32 v{vt+7}, v{vt+6}
        s_waitcnt lgkmcnt(0)
        v_cmp_gt_u32 vcc, 4, v{vt+7}
        s_cbranch_vccnz K2_SPIN{n}
        """)
    def caddr(k): return f"v_and_b32_sdwa v{CADDR+k}, s{cfc}, v{REC+k} {sd} src1_sel:BYTE_3"
    def pick(sel, cur):
        a(f"""
        s_bitcmp1_b32 s{sel}, 0
        s_cselect_b32 s{cur[0]}, s{cur[1]}, s{cur[0]}
        s_cselect_b32 s{cur[2]}, s{cur[3]}, s{cur[2]}
        s_bitcmp1_b32 s{sel}, 1
        s_cselect_b32 s{st0}, s{cur[2]}, s{cur[0]}
        s_and_b32 s{sg}, s{st0}, 3
        s_andn2_b32 s{st0}, s{st0}, 3
        s_mul_i32 s{sgb}, s{sg}, {CAPG*4}
        s_add_u32 s{scount}, s{st0}, 127
        s_lshr_b32 s{scount}, s{scount}, 7
        s_add_u32 s{stail}, s{st0}, 124
        s_bfe_u32 s{stail}, s{stail}, 0x20005
        s_lshl_b32 s{stail}, s{stail}, 1
        s_add_u32 s{stail}, s{stail}, 2
        """)
    def rank_groups():
        for g in range(1, 4): a(f"s_or_b32 s{sk+g}, s{sk+g}, {g}")
        cur = [sk, sk+1, sk+2, sk+3]; spare = sk+4
        for (i, j) in ((0, 1), (2, 3), (0, 2), (1, 3), (1, 2)):
            a(f"s_max_u32 s{spare}, s{cur[i]}, s{cur[j]}\ns_min_u32 s{cur[j]}, s{cur[i]}, s{cur[j]}")
            cur[i], spare = spare, cur[i]
        pick(srank, cur)
    def scan(fast, ks=()):
        x = SP
        a(f"""
        v_and_b32 v{vt}, 63, v0
        v_lshlrev_b32 v{vt+1}, 2, v{vt}
        ds_read_b32 v{x}, v{vt+1} offset:{CNT}
        v_lshrrev_b32 v{vt}, 4, v{vt}
        v_mul_u32_u24 v{vt}, {CAPG*4}, v{vt}
        v_and_b32 v{vt+2}, 31, v0
        v_lshlrev_b32 v{vt+2}, 2, v{vt+2}
        v_mov_b32 v{vt+4}, 0xfffffe
        s_waitcnt lgkmcnt(0)
        v_sub_u32 v{vt}, v{vt}, v{x}
        """)
        for d in ("row_shr:1", "row_shr:2", "row_shr:4", "row_shr:8"):
            a(f"v_add_u32_dpp v{x}, v{x}, v{x} {d} row_mask:0xf bank_mask:0xf bound_ctrl:0\ns_nop 1")
        a(f"""
        v_add_u32 v{vt}, v{vt}, v{x}
        v_cmp_lt_u32 vcc, {CAPG*4}, v{x}
        ds_write2st64_b32 v{vt+1}, v{vt}, v{x} offset0:{START//256} offset1:{INCL//256}
        """)
        for g in range(4): a(f"v_readlane_b32 s{sk+g}, v{x}, {16*g+15}")
        if fast:
            a("s_cbranch_vccnz K2_GIVEUP")
            for j, k in enumerate(ks): a(f"ds_read_b32 v{STV+j}, v{CADDR+k} offset:{START}")
            rank_groups()
        else:
            for g in range(1, 4): a(f"s_or_b32 s{sk+g}, s{sk+g}, {g}")
            pick(sg, [sk, sk+1, sk+2, sk+3])
        a(f"""
        s_add_u32 s{st0}, s{st0}, s{sgb}
        v_add_u32 v{vt+2}, s{st0}, v{vt+2}
        s_lshl_b32 s{st1}, s{scount}, 7
        s_add_u32 s{st1}, s{st1}, s{sgb}
        v_lshlrev_b32 v{vt+3}, 3, v{vt+2}
        v_and_b32 v{vt+3}, 128, v{vt+3}
        v_cmpx_gt_u32 vcc, s{st1}, v{vt+2}
        ds_write2st64_b32 v{vt+2}, v{vt+3}, v{vt+4} offset0:{L1//256} offset1:{L2//256}
        s_mov_b64 exec, -1
        """)
    def place(k, st, eo):
        a(f"""
        v_add_u32 v{st}, v{st}, v{RANK+k}
        v_bfe_u32 v{vt}, v{REC+k}, 16, {5 if 't' in OPT.get('nomem','') else 14}
        v_lshlrev_b32 v{vt+1}, 3, v{st}
        v_mad_u32_u16 v{vt+2}, v{REC+k}, 2, v{eo}
        v_and_b32 v{vt+1}, 128, v{vt+1}
        v_mad_u32_u24 v{vt}, v{vt}, s{csrc}, v{vt+1}
        ds_write2st64_b32 v{st}, v{vt}, v{vt+2} offset0:{L1//256} offset1:{L2//256}
        """)
    def lane_setup():
        a(f"""
        v_and_b32 v{vt}, 31, v0
        v_xor_b32 v{vA1}, 16, v{vH16}
        v_xor_b32 v{vA2}, 4, v{vt}
        v_lshlrev_b32 v{vA2}, 2, v{vA2}
        v_add_u32 v{vA1}, s{sgb}, v{vA1}
        v_add_u32 v{vA2}, s{sgb}, v{vA2}
        s_mul_i32 s{st0}, s{sg}, {GN*256}
        s_lshl_b32 s{st1}, s{sfh}, 7
        s_add_u32 s{st0}, s{st0}, s{st1}
        v_lshlrev_b32 v{vO}, 2, v{vt}
        v_lshl_add_u32 v{vO}, v{vH256}, 2, v{vO}
        v_add_u32 v{vO}, s{st0}, v{vO}
        v_bfe_u32 v{vA3}, v0, 1, 5
        v_lshlrev_b32 v{vA3}, 2, v{vA3}
        v_add_u32 v{vA3}, s{sgb}, v{vA3}
        v_lshlrev_b32 v{vP16}, 4, v0
        v_xor_b32 v{vP16}, v{vP16}, v0
        v_and_b32 v{vP16}, 16, v{vP16}
        v_lshlrev_b32 v{vHS}, 1, v0
        v_xor_b32 v{vHS}, v{vHS}, v{vH16}
        v_and_b32 v{vHS}, 16, v{vHS}
        v_add_u32 v{vHS}, {STG}, v{vHS}
        s_lshl_b32 s{st0}, s{sg}, 2
        s_add_u32 s{st0}, s{st0}, {PROG}
        v_mov_b32 v{vPG}, s{st0}
        s_lshl_b32 s{sm0}, s{sgb}, 3
        s_add_u32 s{sm0}, s{sm0}, {STG}
        s_mov_b32 s{sdma}, 0
        s_mov_b32 s{sneed}, 0
        s_mov_b32 s{slim}, s{scount}
        """)
    def rd_addr(off, j): return f"ds_read_b128 {vr(ADDR+4*j,4)}, v{vA1} offset:{L1+off+32*j}"
    def rd_l2(reg, off): return f"ds_read_b32 v{reg}, v{vA2} offset:{L2+off}"
    def ld_raw(p, b, r):
        pre = [f"v_and_b32 v{ADDR+r}, 0xffff80, v{ADDR+r}"] if OPT.get("safe") else []
        if OPT.get("noload"): return ["s_nop 0"]
        return pre + [f"buffer_load_dword v{raw(p,b)+r}, v{ADDR+r}, {sr(sT,4)}, 0 offen" + (" offset:128" if b else "")]
    def ld_blk(p, b): return sum((ld_raw(p, b, r) for r in range(16)), [])
    cur = {"r": "P"}
    def rd_l3(off, reg=None): return [f"ds_read_b32 v{reg or vEa}, v{vA3} offset:{L2+off}"] if cur["r"] == "P" else []
    lab = [0]
    def dma_ea(sl, reg=None, check=True):
        if cur["r"] != "P": return []
        reg = reg or vEa
        if not check:
            return [f"s_mov_b32 m0, s{sm0}", f"v_and_or_b32 v{reg}, v{reg}, s{cm32}, v{vP16}",
                    f"buffer_load_dwordx4 v{reg}, {sr(sE,4)}, 0 offen lds;wr={300+sl}", f"s_add_u32 s{sm0}, s{sm0}, 1024"]
        lab[0] += 1
        return [f"s_cmp_lt_u32 s{sdma}, s{slim}", f"s_cbranch_scc0 K2_ND{lab[0]}", "@D{",
                f"s_mov_b32 m0, s{sm0}", f"v_and_or_b32 v{reg}, v{reg}, s{cm32}, v{vP16}",
                f"buffer_load_dwordx4 v{reg}, {sr(sE,4)}, 0 offen lds;wr={300+sl}", "@}", f"K2_ND{lab[0]}:",
                f"s_add_u32 s{sdma}, s{sdma}, 1", f"s_add_u32 s{sm0}, s{sm0}, 1024"]
    spins = []
    def rd_prog(): return [f"ds_read_b32 v{vEa}, v{vPG}"] if cur["r"] == "C" else []
    def get_ea(p, sl, off, prev=()):
        o = [f"s_add_u32 s{sneed}, s{sneed}, 1"]
        if cur["r"] == "P":
            o += [f"v_mov_b32 v{vEa}, s{sneed};rd={300+sl}", f"ds_write_b32 v{vPG}, v{vEa}"]
            if prev: o.append("@MOVE 302 300")
        else:
            lab[0] += 1; n = lab[0]; spins.append(n)
            o += [f"v_cmp_gt_u32 vcc, s{sneed}, v{vEa}", f"s_cbranch_vccnz K2_SP{n}", f"K2_OK{n}:"]
        return o + [f"v_lshl_add_u32 v{vEa}, v{vA2}, 3, v{vHS}", f"ds_read_b128 {vr(EA+4*p,4)}, v{vEa} offset:{8*off}"]
    def oh_idx(p):
        return [f"v_and_b32 v{vOa}, 30, v{vOa}",
                f"v_lshl_add_u32 v{vOa}, v{vOa}, 3, v{vH256}",
                f"ds_read_b128 {vr(OH+4*p,4)}, v{vOa} offset:{OHL}"]
    big = "v_mfma_f32_32x32x16_bf16" if not OPT.get("nobig") else "; "
    de = OPT.get("drop", "")
    def mE(p, b): return "; " if "E" in de else f"{big} {vr(gb(p,b),16)}, {vr(EA+4*p,4)}, {vr(WC+4*b,4)}, 0"
    def mA(p, b): return "; " if "A" in de else f"{big} {vr(gb(p,b),16)}, {vr(OH+4*p,4)}, {vr(AP+4*b,4)}, {vr(gb(p,b),16)}"
    def mS(p): return "; " if "S" in de else f"{big} {vr(SP,16)}, {vr(OH+4*p,4)}, {vr(SC,4)}, 0"
    def mG(p, b, j): return "; " if ("G" in de or ("g" in de and j & 1)) else f"{big} {vr(ACC+16*b,16)}, {vr(SP+4*j,4)}, {vr(gb(p,b)+4*j,4)}, {vr(ACC+16*b,16)}"
    def mP(p, b):
        o = []
        for u in range(2):
            for j in range(4):
                g = vr(gb(p,b)+4*j, 4)
                o.append(f"v_mfma_f32_4x4x4_16b_bf16 {g}, {vr(PA+2*u,2)}, {vr(raw(p,b)+4*j+2*u,2)}, {g}")
        return o
    def idx_pair(p, b, i):
        g0, g1 = gb(p,b)+2*i, gb(p,b)+2*i+1
        if i < NTB[b]:
            return [f"v_exp_f32 v{g0}, v{g0}", f"v_exp_f32 v{g1}, v{g1}", f"v_add_f32 v{g0}, 1.0, v{g0}",
                    f"v_add_f32 v{g1}, 1.0, v{g1}", f"v_rcp_f32 v{g0}, v{g0}", f"v_rcp_f32 v{g1}, v{g1}"], []
        return [f"v_cvt_pkrtz_f16_f32 v{g0}, v{g0}, v{g1}",
                f"v_and_b32_sdwa v{g1}, s{cfe}, v{g0} {sd} src1_sel:WORD_1",
                f"v_and_b32_sdwa v{g0}, s{cfe}, v{g0} {sd} src1_sel:WORD_0"], \
               [f"ds_read_u16_d16_hi v{g1}, v{g1} offset:{LUTL}", f"ds_read_u16_d16_hi v{g0}, v{g0} offset:{LUTL}"]
    def fin_pair(p, b, i):
        g0, r0 = gb(p,b)+2*i, raw(p,b)+2*i
        mul = [f"v_pk_mul_f32 {vr(r0,2)}, {vr(g0,2)}, {vr(r0,2)}"] if OPT.get("pk") else [f"v_mul_f32 v{r0}, v{g0}, v{r0}", f"v_mul_f32 v{r0+1}, v{g0+1}, v{r0+1}"]
        return mul + [
                f"v_cvt_pk_bf16_f32 v{g0}, v{g0}, v{r0}", f"v_cvt_pk_bf16_f32 v{g0+1}, v{g0+1}, v{r0+1}"]
    def zipl(x, y):
        o = []
        for k in range(max(len(x), len(y))):
            if k < len(x): o.append(x[k])
            if k < len(y): o.append(y[k])
        return o
    uid = [0]
    def W(kind):
        uid[0] += 1
        return f"@W{kind} {uid[0]}"
    SH = int(OPT.get("short", "4"))
    WE = int(OPT.get("we", "1"))
    def slot(p, b, kind, acc=True, np_=8, npg=8):
        q = 1-p
        nxt = (p, 1) if b == 0 else (q, 0)
        do_idx = b == 0 or kind != "L"
        gs = [[mG(q if b == 0 else p, 1-b, j)] for j in range(npg//2)] if acc else []
        bigs = gs[:2]
        if kind != "L": bigs += [[mE(q, b)], [mA(q, b)]]
        bigs += gs[2:]
        if b == 0: bigs += [[mS(p)]]
        smalls = mP(q, b) if kind != "L" else []
        out = []
        nb = 0
        for i in range(8):
            if i >= np_:
                out += sum(bigs[nb:], []); nb = len(bigs)
                break
            iv, il = idx_pair(*nxt, i) if do_idx else ([], [])
            fv = fin_pair(p, b, i)
            seq = zipl(iv, fv) + il
            if SH:
                rr = range(16*i//SH, 16*(i+1)//SH) if i < SH else []
                if (b == 0 and kind != "L") or (b == 1 and kind == "F"):
                    for r_ in rr: seq += ld_raw(q, 1, r_) if b == 0 else ld_raw(p, 0, r_)
                if kind == "F":
                    if b == 0:
                        for r_ in rr:
                            if r_ & 3 == 3: seq.append(rd_addr((2+p)*128, r_ >> 2))
                    if b == 0 and i == 1: seq = dma_ea(p, check=False) + seq
                    if b == 1 and i == 1: seq += rd_prog()
                    if b == 1 and i == 6: seq += get_ea(p, p, (2+p)*128)
                    if b == 1 and i == 7: seq += rd_l3((3+p)*128)
                    if b == 0 and i == 5: seq.append(rd_l2(vOa, (2+p)*128))
                    if b == 1 and i == 2: seq += oh_idx(p)
            elif kind == "F":
                seq += ld_raw(p, b, 2*i) + ld_raw(p, b, 2*i+1)
                if b == 1 and i & 1: seq.append(rd_addr((3+p)*128, i >> 1))
                if OPT.get("burst"):
                    if p == 0 and b == 0 and i == 0: seq += rd_l3(3*128) + rd_l3(4*128, vOa)
                    if p == 0 and b == 0 and i == 4: seq = dma_ea(1) + dma_ea(2, vOa) + seq
                else:
                    if b == 0 and i == 1: seq += rd_l3((3+p)*128)
                    if b == 1 and i == 0: seq = dma_ea(q) + seq
                if b == 1 and i == 1: seq += rd_prog()
                if b == 1 and i == 6: seq += get_ea(p, p, (2+p)*128, (2,) if (OPT.get('burst') and p == 0) else ())
                if b == 0 and i == 5: seq.append(rd_l2(vOa, (2+p)*128))
                if b == 1 and i == 2: seq += oh_idx(p)
            pre = [W("l")] if i % WE == 0 else []
            if cur["r"] == "P" and kind != "L":
                if (b, i) == (0, 0): pre.append("s_setprio 2")
                if (b, i) == divmod(int(OPT.get("fair", "12")), 8): pre.append("s_setprio 0")
            if i < 6:
                take = 2 if (len(bigs) - nb) > (6 - i) else 1
                if nb < len(bigs): pre += bigs[nb]; nb += 1
                if take == 2 and nb < len(bigs):
                    seq = seq[:6] + bigs[nb] + seq[6:]; nb += 1
            if smalls and i >= 5:
                k0, k1 = {5: (0, 2), 6: (2, 6), 7: (6, 8)}[i]
                sm = smalls[k0:k1]
                if i == 5: seq = seq[:4] + [W("v")] + zipl(sm, seq[4:])
                else: seq = zipl(sm, seq)
            out += pre + seq
        assert nb == len(bigs)
        return out
    def last(p, np_):
        n = f"{p}{cur['r']}{np_}"
        return ([f"K2_LAST{n}:"] + ld_xr() + slot(p, 0, "L", np_=np_) + ["s_nop 11"]*(np_ < 6) + slot(p, 1, "L", np_=np_, npg=np_)
                + ["s_nop 1"] + [mG(p, 1, j) for j in range(np_//2)])
    def body(p, kind):
        q = 1-p; n = f"{kind}{p}{cur['r']}"
        o0 = [f"K2_BODY{n}:"] + slot(p, 0, kind)
        o1 = [f"K2_MID{n}:"] + (ld_xr() if kind == "L" else []) + slot(p, 1, kind)
        if OPT.get("prof") == "7": o1 += ["s_mov_b32 m0, s98", "s_add_u32 s98, s98, 1", f"v_writelane_b32 v{UR+5}, s86, m0", "s_memrealtime s[86:87]"]
        if kind == "P":
            for np_ in (2, 4, 6): o1 += [f"s_cmp_eq_u32 s{stail}, {np_}", f"s_cbranch_scc1 K2_LAST{q}{cur['r']}{np_}"]
        if kind == "F":
            if p == 1: o1 += [f"v_add_u32 v{r_}, 256, v{r_}" for r_ in ((vA1, vA2, vA3) if cur["r"] == "P" else (vA1, vA2))]
            o1 += [f"s_sub_u32 s{scount}, s{scount}, 1", f"s_cmp_eq_u32 s{scount}, 2", f"s_cbranch_scc1 K2_BODYP{q}{cur['r']}"]
        return o0, o1
    def entry_short(kind):
        more = kind != "L"
        o = rd_prog() + [W("v"), W("l")] + get_ea(0, 0, 0)
        if more: o += rd_prog() + rd_l3(128)
        o += [W("l"), "@STAMP", mE(0, 0), mA(0, 0), mE(0, 1), mA(0, 1)]
        o += (dma_ea(1, check=False) if more else []) + ["s_nop 7", W("v")] + mP(0, 0) + ["s_nop 3"]
        for i in range(8):
            v_, l_ = idx_pair(0, 0, i)
            o += [W("l")] + ([v_[0], v_[1], "s_nop 0"] + v_[2:] if i < NTB[0] else v_) + l_
            if more:
                if i < 4:
                    for r_ in range(4*i, 4*i+4): o += ld_raw(1, 0, r_)
                if i == 6: o += [W("v")] + get_ea(1, 1, 128)
                if i == 7 and kind == "F": o += rd_l3(256)
            if i == 3: o += [W("v")] + mP(0, 1)
        return o + slot(0, 0, kind, acc=False) + [f"s_branch K2_MID{kind}0{cur['r']}"]
    def entry(kind):
        if SH: return entry_short(kind)
        more = kind != "L"
        o = rd_prog() + [W("v"), W("l")] + get_ea(0, 0, 0)
        if more: o += rd_prog()
        o += [W("l"), "@STAMP", mE(0, 0), mA(0, 0), mE(0, 1), mA(0, 1), "s_nop 7", W("v")] + mP(0, 0) + ["s_nop 3"]
        for i in range(8):
            v_, l_ = idx_pair(0, 0, i)
            o += [W("l")] + ([v_[0], v_[1], "s_nop 0"] + v_[2:] if i < NTB[0] else v_) + l_
            if more:
                for r_ in range(4*(i & 3), 4*(i & 3)+4): o += ld_raw(1, i >> 2, r_)
                if i >= 4: o.append(rd_addr(256, i-4))
                if i == 4: o += [W("v")] + get_ea(1, 1, 128) + rd_l3(256)
                if i == 7: o += dma_ea(0)
            if i == 3: o += [W("v")] + mP(0, 1)
        return o + slot(0, 0, kind, acc=False) + [f"s_branch K2_MID{kind}0{cur['r']}"]
    def drain(p): return ["s_nop 1"] + [mG(p, 1, j) for j in range(4)]
    def mk_fill():
        ad = [rd_addr(0, j) for j in range(4)]
        t0 = SP
        o = []
        if cur["r"] == "P":
            o = (rd_l3(0) + [f"ds_read_b32 v{t0}, v{vA3} offset:{L2+128}"])
        o += ad + [rd_l2(vOa, 0), rd_l2(t0+1, 128)]
        if cur["r"] == "P":
            o += ["s_waitcnt lgkmcnt(6)"] + dma_ea(0) + [f"v_mov_b32 v{vEa}, v{t0}"]
        d1 = dma_ea(1) if not SH else []
        late1 = OPT.get("d1", "1") == "1"
        o += ([] if late1 else d1) + ["s_waitcnt lgkmcnt(0)"] + ld_blk(0, 0) + oh_idx(0) + [f"v_mov_b32 v{vOa}, v{t0+1}"] + oh_idx(1) + ld_blk(0, 1) + (d1 if late1 else [])
        return o + [rd_addr(128, j) for j in range(4)]
    FI, B, EN, LA_ = {}, {}, {}, {}
    for r in "PC":
        cur["r"] = r
        FI[r] = mk_fill()
        for k in "FPL":
            EN[r, k] = entry(k)
            for p in range(2): B[r, p, k] = body(p, k)
        for p in range(2):
            for np_ in (2, 4, 6, 8): LA_[r, p, np_] = last(p, np_)
    def trace(r, cnt, np_=8):
        kinds = ["F"]*(cnt-2) + ["P", "L"][-min(cnt, 2):]
        tr = FI[r] + EN[r, kinds[0]] + B[r, 0, kinds[0]][1]
        for t in range(1, cnt-1): tr += B[r, t & 1, kinds[t]][0] + B[r, t & 1, kinds[t]][1]
        tr += drain(0) if cnt == 1 else LA_[r, (cnt-1) & 1, np_]
        o = []; keep = True; nd = 0
        for x in tr:
            if x == "@D{": keep = nd < cnt; nd += 1
            elif x == "@}": keep = True
            elif keep and x != "@STAMP": o.append(x)
        return o
    epi_head = ["s_branch x", "s_cmp", "s_cbranch", "s_waitcnt vmcnt(0) lgkmcnt(0)"] + [f"v_add_f32 v{ACC+r_}, 0, v{ACC+r_}" for r_ in range(6)]
    cases = [(r, c, n_) for c in range(1, 9) for r in "PC" for n_ in (2, 4, 6, 8)]
    need = asmsim.solve_waits([trace(*c) for c in cases])
    for c in cases: asmsim.check_hazards(asmsim.apply_waits(trace(*c), need) + epi_head, f"case {c}")
    def emit(l):
        for x in asmsim.apply_waits(l, need):
            if x == "@STAMP":
                stamp(a, 5); stamp(a, 5, "3"); stamp(a, 7, "4")
                if OPT.get("prof") == "7": a("s_memrealtime s[86:87]\ns_mov_b32 s98, 1")
                if OPT.get("prof") == "3": a(f"s_memtime s[86:87]\ns_mov_b32 s90, s{scount}\ns_getreg_b32 s92, hwreg(HW_REG_HW_ID)")
            elif x[0] != "@": a(x.split(";")[0])
    def main_loop(r):
        a(f"""
        K2_GO{r}:
        s_cmp_eq_u32 s{scount}, 0
        s_cbranch_scc1 K2_EMPTY
        s_cmp_gt_u32 s{scount}, 2
        s_cbranch_scc1 K2_ENTF{r}
        s_cmp_eq_u32 s{scount}, 2
        s_cbranch_scc1 K2_ENTP{r}
        """)
        emit(EN[r, "L"]); a(f"K2_ENTP{r}:"); emit(EN[r, "P"]); a(f"K2_ENTF{r}:"); emit(EN[r, "F"])
        a(".p2align 6")
        for p in range(2): emit(B[r, p, "F"][0] + B[r, p, "F"][1])
        a(f"s_branch K2_BODYF0{r}")
        emit(B[r, 0, "L"][1] + drain(0)); a("s_branch K2_DONE")
        for p in range(2):
            for np_ in (2, 4, 6): emit(LA_[r, p, np_]); a("s_branch K2_DONE")
        for p in range(2):
            emit(B[r, p, "P"][0] + B[r, p, "P"][1] + LA_[r, 1-p, 8])
            if p == 0 or r == "P": a("s_branch K2_DONE")
    def fill(n):
        a(f"s_cmp_eq_u32 s{scount}, 0\ns_cbranch_scc1 K2_FILLED{n}")
        emit(FI[n])
        a(f"K2_FILLED{n}:")
    def ap_addr():
        a(f"""
        v_bfe_u32 v{vt}, v0, 2, 2
        v_lshrrev_b32 v{vt+1}, 1, v{vH16}
        v_add_u32 v{vt}, v{vt}, v{vt+1}
        v_mul_u32_u24 v{vt}, {ROWP}, v{vt}
        v_bfe_u32 v{vt+2}, v0, 4, 1
        v_lshl_add_u32 v{vt}, v{vt+2}, 5, v{vt}
        v_and_b32 v{vt+2}, 3, v0
        v_lshl_add_u32 v{vt}, v{vt+2}, 3, v{vt}
        s_mul_i32 s{st0}, s{sg}, {GN*ROWP}
        s_lshl_b32 s{st1}, s{sfh}, 7
        s_add_u32 s{st0}, s{st0}, s{st1}
        v_add_u32 v{vt}, s{st0}, v{vt}
        v_mul_u32_u24 v{vt+1}, {ROWP//2}, v{vt+1}
        v_and_b32 v{vt+2}, 31, v0
        v_lshl_add_u32 v{vt+1}, v{vt+2}, 2, v{vt+1}
        v_add_u32 v{vt+1}, s{st0}, v{vt+1}
        """)
    def ap_read():
        a(f"""
        ds_read_b64_tr_b16 {vr(AP,2)}, v{vt} offset:{APL}
        ds_read_b64_tr_b16 {vr(AP+2,2)}, v{vt} offset:{APL+4*ROWP}
        ds_read_b64_tr_b16 {vr(AP+4,2)}, v{vt} offset:{APL+64}
        ds_read_b64_tr_b16 {vr(AP+6,2)}, v{vt} offset:{APL+4*ROWP+64}
        """)
        for r in range(6): a(f"ds_read_b32 v{UR+r}, v{vt+1} offset:{UL+ROWP*rowoff(r)}")
        a(f"""
        s_waitcnt lgkmcnt(6)
        v_and_b32 v{AP+3}, v{AP+3}, v{vM15}
        v_and_b32 v{AP+7}, v{AP+7}, v{vM15}
        """)
    def init_addr():
        for r in range(16): a(f"v_mov_b32 v{ADDR+r}, 128")
    def zero_acc():
        for r in range(32): a(f"v_mov_b32 v{ACC+r}, 0")

    a(f"s_cmp_lg_u32 s{sfh}, 0\ns_cbranch_scc1 K2_LOADER")
    ld_wc()
    a.ext(common1(SP, vt))
    a(f"v_and_b32 v{vt+3}, 15, v0\nv_lshlrev_b32 v{vt+3}, 4, v{vt+3}\nv_bfe_u32 v{vt+4}, v0, 4, 2\nv_lshl_add_u32 v{vt+3}, v{vt+4}, 10, v{vt+3}\ns_lshl_b32 s{st0}, s{sg}, 8\nv_add_u32 v{vt+3}, s{st0}, v{vt+3}")
    a(f"v_add_u32 v{vt+4}, 40960, v{vt+3}")
    for val, rg, runs in ((0x3f003f00, EA, (0, 3, 32, 35)), (0, EA+4, (23, 27)), (0x3f803f80, OH, (51, 55, 59))):
        for j in range(4): a(f"v_mov_b32 v{rg+j}, {val:#x}")
        for c0 in runs:
            a(f"ds_write_b128 v{vt+4 if c0 >= 24 else vt+3}, {vr(rg,4)} offset:{LUTL + 1024*(c0 - (40 if c0 >= 24 else 0))}")
    a(f"""
    v_and_b32 v{vt+3}, 127, v0
    v_bfe_u32 v{vt+4}, v0, 2, 4
    v_and_b32 v{Z+4}, 3, v0
    v_lshrrev_b32 v{Z+5}, 6, v{vt+3}
    v_lshlrev_b32 v{vt+3}, 2, v{vt+3}
    v_lshl_add_u32 v{Z+4}, v{Z+5}, 2, v{Z+4}
    v_lshlrev_b32 v{Z+5}, 1, v{Z+4}
    v_mov_b32 v{Z+6}, 0x3f80
    v_mov_b32 v{Z+7}, 0x3f800000
    v_cmp_eq_u32 vcc, v{Z+5}, v{vt+4}
    v_add_u32 v{Z+5}, 1, v{Z+5}
    s_nop 0
    v_cndmask_b32 v{Z+8}, 0, v{Z+6}, vcc
    v_cmp_eq_u32 vcc, v{Z+5}, v{vt+4}
    v_cmp_eq_u32 s[78:79], 7, v{Z+4}
    s_or_b64 vcc, vcc, s[78:79]
    s_nop 1
    v_cndmask_b32 v{Z+9}, 0, v{Z+7}, vcc
    v_or_b32 v{Z+8}, v{Z+8}, v{Z+9}
    v_cmp_gt_u32 vcc, 15, v{vt+4}
    s_nop 1
    v_cndmask_b32 v{Z+8}, 0, v{Z+8}, vcc
    ds_write_b32 v{vt+3}, v{Z+8} offset:{OHL}
    """)
    a(f"""
    v_mul_u32_u24 v{EOFF}, {CS*32}, v{vt+1}
    v_add_u32 v{EOFF+1}, {64*CS*32}, v{EOFF}
    v_mov_b32 v{vt+3}, 4
    """)
    init_addr()
    a("s_waitcnt vmcnt(2)")
    stamp(a, 2); stamp(a, 1, "5")
    a(f"""
    v_cmp_eq_u32 vcc, -2, v{REC+11}
    v_cmp_eq_u32 s[78:79], -2, v{REC+15}
    s_or_b64 vcc, vcc, s[78:79]
    s_cbranch_vccz K2_NOOVF
    v_mov_b32 v{vt+4}, 0x10000
    v_mov_b32 v{vt}, 60
    ds_add_u32 v{vt}, v{vt+4} offset:{CNT}
    K2_NOOVF:
    """)
    M = [68, 70, 72, 74, 76, 78]
    KS = [[4*u+i for i in range(4)] + [8+4*u, 9+4*u] for u in range(2)]
    def masked(u, fn):
        for j, k in enumerate(KS[u]): a(f"v_cmp_gt_u32 {sr(M[j],2)}, -2, v{REC+k}")
        for j, k in enumerate(KS[u]): a(f"s_mov_b64 exec, {sr(M[j],2)}\n{fn(k, 6*u+j)}")
        a("s_mov_b64 exec, -1")
    for k in KS[0] + KS[1]: a(caddr(k))
    for u in range(2): masked(u, lambda k, j: f"ds_add_rtn_u32 v{RANK+k}, v{CADDR+k}, v{vt+3} offset:{CNT}")
    a(f"v_min_u32 v{vt+4}, v{REC+10}, v{REC+14}\nv_cmp_gt_u32 s[26:27], -2, v{vt+4}")
    LA, LB = raw(0, 0), raw(0, 1)
    for u in range(2):
        for j, k in enumerate(KS[u]):
            a(f"v_bfe_u32 v{LA+6*u+j}, v{REC+k}, 16, {5 if 't' in OPT.get('nomem','') else 14}\nv_mad_u32_u16 v{LB+6*u+j}, v{REC+k}, 2, v{EOFF+u}")
    for j in range(12): a(f"v_mul_u32_u24 v{LA+j}, s{csrc}, v{LA+j}")
    def steps(tag, fn):
        a(f"s_cmp_eq_u64 s[26:27], 0\ns_cbranch_scc1 K2_{tag}1\ns_waitcnt lgkmcnt(0)")
        for u in range(2):
            for k in (10+4*u, 11+4*u):
                a(f"v_cmpx_gt_u32 vcc, -2, v{REC+k}\ns_cbranch_execz K2_{tag}{u}")
                fn(k, u)
            a(f"K2_{tag}{u}:\ns_mov_b64 exec, -1")
    steps("C", lambda k, u: a(f"{caddr(k)}\nds_add_rtn_u32 v{RANK+k}, v{CADDR+k}, v{vt+3} offset:{CNT}"))
    stamp(a, 2, "5")
    spin(0, "A")
    stamp(a, 3, "5")
    scan(True, KS[0] + KS[1])
    a("s_waitcnt lgkmcnt(1)")
    stamp(a, 4, "5")
    for j, k in enumerate(KS[0] + KS[1]): a(f"v_add_u32 v{STV+j}, v{STV+j}, v{RANK+k}")
    for j, k in enumerate(KS[0] + KS[1]): a(f"v_lshlrev_b32 v{RANK+k}, 3, v{STV+j}")
    for j, k in enumerate(KS[0] + KS[1]): a(f"v_and_or_b32 v{LA+j}, v{RANK+k}, s{c128}, v{LA+j}")
    for u in range(2): masked(u, lambda k, j: f"ds_write2st64_b32 v{STV+j}, v{LA+j}, v{LB+j} offset0:{L1//256} offset1:{L2//256}")
    def put_step(k, u):
        a(f"ds_read_b32 v{STV+12}, v{CADDR+k} offset:{START}\ns_waitcnt lgkmcnt(0)")
        place(k, STV+12, EOFF+u)
    steps("P", put_step)
    stamp(a, 5, "5")
    lane_setup()
    stamp(a, 6, "5")
    spin(1, "B")
    stamp(a, 3); stamp(a, 7, "5")
    a("K2_REFILLP:")
    fill("P")
    stamp(a, 4)
    a(f"s_cmp_lg_u32 s{sslow}, 0\ns_cbranch_scc1 K2_GOP")
    zero_acc()
    ap_addr()
    spin(3, "D", add=False)
    ap_read()
    main_loop("P")
    a("K2_GIVEUP:")
    zero_acc()
    arrive(1)
    spin(3, "E", add=False)
    a("s_branch K2_SLOW")
    assert XL % 256 == 0
    XF = G; WT = [ACC, raw(0, 0)]
    accs = [[[raw(1,0)+8*nb, raw(1,0)+8*nb+4] for nb in range(3)], [[raw(1,1)+8, raw(1,1)+12], [SP, SP+4], [SP+8, ADDR]]]
    a(f"""
    K2_LOADER:
    v_lshrrev_b32 v{vt+4}, 4, v{vt}
    s_lshl_b32 s{st1}, s{sg}, 2
    v_add_u32 v{vA1}, s{st1}, v{vt+4}
    v_and_b32 v{vt+5}, 15, v0
    v_xor_b32 v{vA1}, v{vA1}, v{vt+5}
    v_lshlrev_b32 v{vA1}, 4, v{vA1}
    v_lshl_add_u32 v{vA1}, v{vt+4}, 8, v{vA1}
    s_lshl_b32 s{st1}, s{sg}, 10
    """)
    for k in range(3):
        a(f"""
        s_add_u32 m0, s{st1}, {XL+4096*k}
        s_add_u32 s{st2}, s{st1}, {4096*k}
        buffer_load_dwordx4 v{vA1}, {sr(sX,4)}, s{st2} offen lds
        """)
    stamp(a, 1, "6")
    srot = sk
    a(f"s_lshl_b32 s{slut}, s{sg}, 13\ns_lshr_b32 s{srt}, s2, 3")
    for j in range(4):
        a(f"s_add_u32 s{srot+j}, s{srt}, {j}\ns_and_b32 s{srot+j}, s{srot+j}, 3\ns_lshl_b32 s{srot+j}, s{srot+j}, 10\ns_add_u32 s{st2}, s{slut}, s{srot+j}")
        for m in range(2):
            for hf in range(2):
                a(f"buffer_load_dwordx4 {vr(WT[m]+16*hf+4*j,4)}, v{vA2}, {sr(sWT,4)}, s{st2} offen")
                if (m, hf) != (1, 1): a(f"s_add_u32 s{st2}, s{st2}, {4096 if hf == 0 else 32768-4096}")
    stamp(a, 2, "6")
    a(f"""
    s_lshl_b32 s{st0}, s{sg}, 12
    s_add_u32 m0, s{st0}, {LUTL + 7*1024}
    s_add_u32 s{st2}, s{st0}, {LUT_OFF - WT_OFF + 7*1024}
    """)
    for j in range(4): a(f"buffer_load_dwordx4 v{vA2}, {sr(sWT,4)}, s{st2} offen offset:{1024*j} lds")
    a(f"""
    s_mul_i32 s{st0}, s{sg}, 3072
    s_add_u32 m0, s{st0}, {LUTL + 39*1024}
    s_add_u32 s{st2}, s{st0}, {LUT_OFF - WT_OFF + 39*1024}
    """)
    for j in range(3): a(f"buffer_load_dwordx4 v{vA2}, {sr(sWT,4)}, s{st2} offen offset:{1024*j} lds")
    a(f"""
    s_and_b32 s{st0}, s{sg}, 1
    s_lshl_b32 s{st0}, s{st0}, 15
    s_add_u32 m0, s{st0}, {LUTL + 31*1024}
    s_add_u32 s{st2}, s{st0}, {LUT_OFF - WT_OFF + 31*1024}
    buffer_load_dwordx4 v{vA2}, {sr(sWT,4)}, s{st2} offen lds
    """)
    ld_wc()
    stamp(a, 3, "6")
    a(f"""
    s_waitcnt vmcnt(26)
    """)
    arrive(2)
    a(f"""
    v_mov_b32 v{vt+8}, v{vt}
    v_and_b32 v{vt}, 15, v0
    v_bfe_u32 v{vt+1}, v0, 4, 2
    v_xor_b32 v{vt+2}, v{vt}, v{vt+1}
    v_lshlrev_b32 v{vt+2}, 4, v{vt+2}
    v_lshl_add_u32 v{vt+2}, v{vt}, 8, v{vt+2}
    v_add_u32 v{vt+2}, {XL}, v{vt+2}
    v_mul_u32_u24 v{vt}, {ROWP}, v{vt}
    """)
    stamp(a, 2); stamp(a, 5, "6")
    spin(2, "C", add=False)
    stamp(a, 6, "6")
    for s in range(4):
        a(f"s_lshr_b32 s{st0}, s{srot+s}, 4\nv_xor_b32 v{vt+3}, s{st0}, v{vt+2}")
        for nb in range(3):
            a(f"ds_read_b128 {vr(XF+16*nb+4*s,4)}, v{vt+3} offset:{4096*nb}")
    a(f"""
    s_lshr_b32 s{st0}, s{sg}, 1
    s_lshl_b32 s{st0}, s{st0}, 7
    s_and_b32 s{st1}, s{sg}, 1
    s_lshl_b32 s{st1}, s{st1}, 5
    s_add_u32 s{st0}, s{st0}, s{st1}
    v_lshl_add_u32 v{vt+4}, v{vt+1}, 3, v{vt}
    v_add_u32 v{vt+4}, s{st0}, v{vt+4}
    s_lshl_b32 s{st0}, s{sg}, 6
    v_lshl_add_u32 v{vt+5}, v{vt+1}, 4, v{vt}
    v_add_u32 v{vt+5}, s{st0}, v{vt+5}
    """)
    def mm1(m, s):
        return [f"v_mfma_f32_16x16x32_bf16 {vr(accs[m][nb][ab], 4)}, {vr(WT[m]+16*ab+4*s,4)}, {vr(XF+16*nb+4*s,4)}, {'0' if s == 0 else vr(accs[m][nb][ab], 4)}"
                for nb in range(3) for ab in range(2)]
    outA = []
    for nb in range(3):
        al, be = accs[0][nb]; o = EA+ (0 if nb != 1 else 4)
        for i in range(4): outA += [f"v_mul_f32 v{al+i}, s{cnl2e}, v{al+i}", f"v_mul_f32 v{be+i}, s{cnl2e}, v{be+i}"]
        outA += [f"v_cvt_pk_bf16_f32 v{o}, v{al}, v{al+2}", f"v_cvt_pk_bf16_f32 v{o+1}, v{be}, v{be+2}",
                 f"v_cvt_pk_bf16_f32 v{o+2}, v{al+1}, v{al+3}", f"v_cvt_pk_bf16_f32 v{o+3}, v{be+1}, v{be+3}",
                 f"ds_write_b64 v{vt+4}, {vr(o,2)} offset:{APL+16*ROWP*nb}", f"ds_write_b64 v{vt+4}, {vr(o+2,2)} offset:{APL+16*ROWP*nb+64}"]
    NPF = int(OPT.get("tpf", "0"))
    if NPF:
        srd(a, sS, 14, T_OFF, N*TS)
        a(f"""
        s_bfe_u32 s{st0}, s2, 0x50003
        s_lshl_b32 s{st0}, s{st0}, 2
        s_add_u32 s{st0}, s{st0}, s{sg}
        s_lshl_b32 s{st0}, s{st0}, 13
        v_lshlrev_b32 v{vt+9}, 7, v{vt+8}
        """)
        for j in range(NPF):
            a(f"buffer_load_dword v{vt+10}, v{vt+9}, {sr(sS,4)}, s{st0} offen")
            if j+1 < NPF: a(f"s_add_u32 s{st0}, s{st0}, {1 << 20}")
    g = []; cm = common1(XR+1, vt+8); k = 0
    for s in range(4):
        g.append(f"s_waitcnt vmcnt({22-4*s+NPF}) lgkmcnt({9-3*s})")
        for x in mm1(0, s) + (mm1(1, s) if s < 3 else []):
            g.append(x); g += cm[k:k+3]; k += 3
    assert k >= len(cm)
    k = 0
    for j, x in enumerate(mm1(1, 3)):
        g.append(x)
        if j >= 2: g += outA[k:k+3]; k += 3
    g += outA[k:]
    for nb in range(3):
        al, be = accs[1][nb]; o = XF+4*nb
        g += [f"v_cvt_pk_bf16_f32 v{o}, v{al}, v{al+1}", f"v_cvt_pk_bf16_f32 v{o+1}, v{al+2}, v{al+3}",
              f"v_cvt_pk_bf16_f32 v{o+2}, v{be}, v{be+1}", f"v_cvt_pk_bf16_f32 v{o+3}, v{be+2}, v{be+3}",
              f"ds_write_b128 v{vt+5}, {vr(o,4)} offset:{UL+16*ROWP*nb}"]
    asmsim.check_hazards(g, "gemm")
    a.ext(g)
    a(f"s_waitcnt vmcnt({NPF})")
    arrive(3)
    stamp(a, 3); stamp(a, 7, "6")
    zero_acc()
    init_addr()
    spin(1, "F", add=False)
    a(f"""
    v_mov_b32 v{vt+2}, {INCL+60}
    ds_read2_b32 {vr(vt+4,2)}, v{vt+2} offset0:0 offset1:16
    ds_read2_b32 {vr(vt+6,2)}, v{vt+2} offset0:32 offset1:48
    s_waitcnt lgkmcnt(0)
    """)
    for g_ in range(4): a(f"v_readfirstlane_b32 s{sk+g_}, v{vt+4+g_}")
    a(f"""
    s_max_u32 s{st0}, s{sk}, s{sk+1}
    s_max_u32 s{st1}, s{sk+2}, s{sk+3}
    s_max_u32 s{st0}, s{st0}, s{st1}
    s_cmp_gt_u32 s{st0}, {CAPG*4}
    s_cbranch_scc1 K2_SLOW
    """)
    a("s_setprio 1")
    rank_groups()
    lane_setup()
    a("K2_REFILLC:")
    fill("C")
    a(f"s_cmp_lg_u32 s{sslow}, 0\ns_cbranch_scc1 K2_GOC")
    ap_addr()
    spin(3, "G", add=False)
    ap_read()
    stamp(a, 4)
    a("s_branch K2_GOC")
    a("K2_EMPTY:"); a.ext(ld_xr()); a("s_branch K2_DONE")
    for n in spins:
        a(f"""
        K2_SP{n}:
        ds_read_b32 v{vEa}, v{vPG}
        s_waitcnt lgkmcnt(0)
        v_cmp_gt_u32 vcc, s{sneed}, v{vEa}
        s_cbranch_vccnz K2_SP{n}
        s_branch K2_OK{n}
        """)
    main_loop("C")
    a(f"""
    K2_DONE:
    s_cmp_lg_u32 s{sslow}, 0
    s_cbranch_scc1 K2_ROUND
    K2_EPI:
    s_waitcnt vmcnt(0) lgkmcnt(0)
    """)
    stamp(a, 6); stamp(a, 6, "3")
    if OPT.get("prof") == "3": a("s_memtime s[88:89]")
    T0 = G
    for b in range(2):
        for r in range(6):
            a(f"v_add_f32 v{ACC+16*b+r}, 0x358637bd, v{ACC+16*b+r}")
        for r in range(6):
            a(f"v_rcp_f32 v{ACC+16*b+r}, v{ACC+16*b+r}")
        for r in range(6):
            u, x = T0+12*b+r, T0+12*b+6+r
            if b == 0: a(f"v_lshlrev_b32 v{u}, 16, v{UR+r}\nv_lshlrev_b32 v{x}, 16, v{XR+r}")
            else: a(f"v_and_b32 v{u}, 0xffff0000, v{UR+r}\nv_and_b32 v{x}, 0xffff0000, v{XR+r}")
        for r in range(6):
            u, x = T0+12*b+r, T0+12*b+6+r
            a(f"v_fmac_f32 v{u}, v{ACC+16*b+8+r}, v{ACC+16*b+r}\nv_max_f32 v{u}, 0, v{u}\nv_add_f32 v{u}, v{u}, v{x}")
    a(f"v_lshl_or_b32 v{vO2}, v{vH16}, 27, v{vO}")
    for r in range(6):
        a(f"v_cvt_pk_bf16_f32 v{SP+r}, v{T0+r}, v{T0+12+r}")
        a(f"buffer_store_dword v{SP+r}, v{vO if r < 4 else vO2}, {sr(sO,4)}, 0 offen offset:{256*rowoff(r)} {OPT.get('st_o', '')}")
    stamp(a, 7)
    stamp_out(a, 1, 14, sw, 2)
    a("K2_END:\ns_endpgm")

    a("K2_SLOW:")
    srd(a, sS, 8, None, E*4)
    srd(a, sD, 10, None, E*4)
    a(f"""
    s_mov_b32 s{sslow}, 1
    s_mov_b32 s{cm10}, {-GN}
    """)
    a("s_waitcnt vmcnt(0) lgkmcnt(0)\ns_barrier")
    lane_setup(); ap_addr(); ap_read()
    a(f"""
    K2_ROUND:
    s_cmp_ge_u32 s{sround}, {E//RND}
    s_cbranch_scc1 K2_EPI
    s_mul_i32 s{st0}, s{sround}, {RND}
    s_add_u32 s{sround}, s{sround}, 1
    v_add_u32 v{EOFF}, s{st0}, v0
    v_lshlrev_b32 v{vt}, 2, v{EOFF}
    buffer_load_dword v{REC}, v{vt}, {sr(sD,4)}, 0 offen
    buffer_load_dword v{REC+1}, v{vt}, {sr(sS,4)}, 0 offen
    v_lshlrev_b32 v{EOFF}, 5, v{EOFF}
    v_and_b32 v{vt}, 63, v0
    v_lshlrev_b32 v{vt}, 3, v{vt}
    v_mov_b32 v{vt+4}, 0
    v_mov_b32 v{vt+5}, 0
    s_waitcnt lgkmcnt(0)
    s_barrier
    ds_write_b64 v{vt}, {vr(vt+4,2)} offset:{CNT}
    v_mov_b32 v{vt+3}, 4
    s_waitcnt vmcnt(0) lgkmcnt(0)
    s_barrier
    """)
    rec_fields(a, REC, REC+2, vt, cm40, cm10)
    a(f"""
    v_cmp_eq_u32 vcc, s2, v{REC+2}
    v_lshl_or_b32 v{REC}, v{REC+1}, 16, v{REC}
    {caddr(0)}
    s_mov_b64 s[78:79], vcc
    v_cmp_gt_u32 vcc, {RND}, v0
    s_and_b64 s[78:79], s[78:79], vcc
    s_mov_b64 exec, s[78:79]
    ds_add_rtn_u32 v{RANK}, v{CADDR}, v{vt+3} offset:{CNT}
    s_mov_b64 exec, -1
    s_waitcnt lgkmcnt(0)
    s_barrier
    """)
    scan(False)
    a(f"""
    s_mov_b64 exec, s[78:79]
    ds_read_b32 v{STV}, v{CADDR} offset:{START}
    s_waitcnt lgkmcnt(0)
    """)
    place(0, STV, EOFF)
    a(f"""
    s_mov_b64 exec, -1
    """)
    lane_setup()
    a(f"""
    s_waitcnt lgkmcnt(0)
    s_barrier
    s_cmp_eq_u32 s{sfh}, 0
    s_cbranch_scc1 K2_REFILLP
    s_branch K2_REFILLC
    K2_CODE_END:
    """)
    return a.text(), kd("k2_kernel", 256, 102)

KE_PROF = f"""
    s_memrealtime s[8:9]
    s_load_dwordx2 s[4:5], s[0:1], 88
    s_waitcnt lgkmcnt(0)
    s_add_u32 s4, s4, {PROF_OFF + 0x200000}
    s_addc_u32 s5, s5, 0
    s_mov_b32 s6, 4
    s_mov_b32 s7, 0x20000
    v_mov_b32 v1, s8
    v_lshlrev_b32 v0, 2, v0
    buffer_store_dword v1, v0, s[4:7], 0 offen
"""
def gen_kr():
    a = Asm()
    a(f"""
    kr_kernel:
    s_cmp_ge_u32 s2, 1
    s_cbranch_scc1 KR_END
    s_load_dwordx4 s[4:7], s[0:1], 80
    s_waitcnt lgkmcnt(0)
    s_add_u32 s8, s6, {PROF_OFF}
    s_addc_u32 s9, s7, 0
    s_mov_b32 s10, 0x200000
    s_mov_b32 s11, 0x20000
    s_mov_b32 s6, 256
    s_mov_b32 s7, 0x20000
    v_cmp_gt_u32 vcc, 250, v0
    s_and_saveexec_b64 s[12:13], vcc
    v_lshlrev_b32 v1, 10, v0
    v_mov_b32 v3, 0
    """)
    sel = [(0, 8, 0, 1), (0, 8, 0, 0), (0, 8, 2, 0), (0, 8, 3, 0), (0, 8, 5, 0), (0, 8, 8, 0),
           (1, 8, 0, 1), (1, 8, 0, 0), (1, 8, 2, 0), (1, 8, 3, 0), (1, 8, 5, 1), (1, 8, 5, 0), (1, 8, 6, 1), (1, 8, 6, 0), (1, 8, 8, 0)]
    w0 = 0
    if OPT.get("krsel"):
        w0, st_, mn_ = [int(x) for x in OPT["krsel"].split(",")]
        sel = [(1, 4, 0, 1), (1, 4, st_, mn_)]
    for j, (kn, nw, st, mn) in enumerate(sel):
        a(f"s_mov_b32 s14, {kn*0x100000 + 64*w0}")
        for w in range(nw): a(f"buffer_load_dword v{10+w}, v1, s[8:11], s14 offen offset:{64*w+4*st}")
        a("s_waitcnt vmcnt(0)")
        if mn:
            for w in range(nw): a(f"v_not_b32 v{10+w}, v{10+w}")
        for w in range(1, nw): a(f"v_max_u32 v10, v10, v{10+w}")
        a(f"buffer_atomic_umax v10, v3, s[4:7], 0 offen offset:{4*j}\ns_waitcnt vmcnt(0)")
    if OPT.get("iv"):
        ja, jb, k = [int(x) for x in OPT["iv"].split(",")]
        a(f"""
        s_barrier
        buffer_load_dword v10, v3, s[4:7], 0 offen offset:{4*ja} sc0 sc1
        buffer_load_dword v11, v3, s[4:7], 0 offen offset:{4*jb} sc0 sc1
        s_waitcnt vmcnt(0)
        v_readfirstlane_b32 s16, v10
        v_readfirstlane_b32 s17, v11
        """)
        if sel[ja][3]: a("s_not_b32 s16, s16")
        if sel[jb][3]: a("s_not_b32 s17, s17")
        a(f"""
        s_sub_u32 s16, s16, s17
        s_min_u32 s16, s16, 10000
        s_mul_i32 s16, s16, {k}
        s_memrealtime s[18:19]
        s_waitcnt lgkmcnt(0)
        KR_SPIN:
        s_memrealtime s[20:21]
        s_waitcnt lgkmcnt(0)
        s_sub_u32 s20, s20, s18
        s_cmp_lt_u32 s20, s16
        s_cbranch_scc1 KR_SPIN
        """)
    a("KR_END:\ns_endpgm")
    return a.text()

def main():
    k1, d1 = gen_k1(); k2, d2 = gen_k2()
    ref = open("standalone__edge_featured_mpnn_gatedgcn__graph.s.ref").read().split("\n")
    out = "\n".join(ref[:13]) + "\n"
    for ch in OPT.get("list", "12"):
        if ch == "1": out += f"; @launch kernel=k1_kernel grid=({2*NCH},1,1) block=(512,1,1) lds={K1_LDS}\n"
        if ch == "2": out += f"; @launch kernel=k2_kernel grid=({NBIN},1,1) block=(512,1,1) lds={K2_LDS}\n"
        if ch == "r": out += "; @launch kernel=kr_kernel grid=(1,1,1) block=(256,1,1) lds=0\n"
        if ch == "e": out += "; @launch kernel=ke_kernel grid=(1,1,1) block=(64,1,1) lds=0\n"
    out += '.amdgcn_target "amdgcn-amd-amdhsa--gfx950"\n.text\n'
    for n, k in (("k1_kernel", k1), ("k2_kernel", k2)):
        out += f".globl {n}\n.p2align 8\n.type {n},@function\n" + k
    if "e" in OPT.get("list", ""): out += ".globl ke_kernel\n.p2align 8\n.type ke_kernel,@function\nke_kernel:\n" + (KE_PROF if OPT.get("prof") else "") + "    s_endpgm\n"
    if "r" in OPT.get("list", ""): out += ".globl kr_kernel\n.p2align 8\n.type kr_kernel,@function\n" + gen_kr()
    out += '.section .rodata,"a"\n.p2align 6\n' + d1.lstrip("\n") + '.p2align 6\n' + d2.lstrip("\n")
    if "e" in OPT.get("list", ""): out += '.p2align 6\n' + kd("ke_kernel", 8, 16).lstrip("\n")
    if "r" in OPT.get("list", ""): out += '.p2align 6\n' + kd("kr_kernel", 32, 32).lstrip("\n")
    open(sys.argv[1], "w").write(out)

if __name__ == "__main__":
    main()
```

```python
import struct, sys
import asmsim

N = 10000; E = 320000
NCH = 128; CS = 2500
NBIN = 256; GN = 10
BINK, BINC, BINS = 53687, 52500, 21
assert all((625*b_ >> 4) <= d_ < (625*(b_+1) >> 4) for d_ in range(N) for b_ in [(d_*BINK + BINC) >> BINS])
CAP = 32
TS = int(([a for a in sys.argv if a.startswith('ts=')] or ['ts=512'])[0][3:])
T_OFF = 0x1000000
REC_OFF = 0x700000
WT_OFF = 0xB00000
LUT_OFF = 0xB20000
PROF_OFF = 0xF000000
NL2E = struct.unpack("<I", struct.pack("<f", -1.4426950408889634))[0]

def bf(x): return struct.unpack("<I", struct.pack("<f", x))[0] >> 16

OPT = dict(st_r="sc1", st_t="sc1")
for a in sys.argv[2:]:
    k, v = a.split("=", 1); OPT[k] = v

class Asm:
    def __init__(self): self.l = []
    def __call__(self, s):
        for x in s.strip("\n").split("\n"):
            x = x.strip()
            if not x: continue
            if x.startswith(";"): x = "s_nop 0"
            self.l.append(x if x.endswith(":") else "    " + x)
    def ext(self, lst):
        for x in lst: self(x)
    def text(self): return "\n".join(self.l) + "\n"

def stamp(a, i, lvl="1"):
    if OPT.get("prof") and (i in (0, 8) or OPT["prof"] == lvl): a(f"s_memrealtime s[{84+2*i}:{85+2*i}]")
def stamp_out(a, kern, wsreg, sw, vtmp):
    if not OPT.get("prof"): return
    a("s_waitcnt vmcnt(0)")
    stamp(a, 8)
    a(f"""
    s_lshl_b32 s4, s2, 4
    s_add_u32 s4, s4, s{sw}
    s_lshl_b32 s4, s4, 6
    s_add_u32 s4, s4, {PROF_OFF + kern*0x100000}
    s_add_u32 s4, s{wsreg}, s4
    s_addc_u32 s5, s{wsreg+1}, 0
    s_mov_b32 s6, 64
    s_mov_b32 s7, 0x20000
    s_waitcnt lgkmcnt(0)
    """)
    if kern == 1 and OPT["prof"] == "7":
        a(f"v_mov_b32 v{vtmp}, v251\nv_writelane_b32 v{vtmp}, s84, 0\ns_mov_b32 m0, s98\ns_add_u32 s98, s98, 1\nv_writelane_b32 v{vtmp}, s86, m0\ns_mov_b32 m0, s98\ns_nop 3\nv_writelane_b32 v{vtmp}, s100, m0\nv_writelane_b32 v{vtmp}, s98, 15")
    else:
        for i in range(9): a(f"v_writelane_b32 v{vtmp}, s{84+2*i}, {i}")
    a(f"""
    v_mbcnt_lo_u32_b32 v{vtmp+1}, -1, 0
    v_mbcnt_hi_u32_b32 v{vtmp+1}, -1, v{vtmp+1}
    v_lshlrev_b32 v{vtmp+1}, 2, v{vtmp+1}
    buffer_store_dword v{vtmp}, v{vtmp+1}, s[4:7], 0 offen
    """)

def vr(b, n): return f"v[{b}:{b+n-1}]"
def sr(b, n): return f"s[{b}:{b+n-1}]"

def srd(a, d, base, add=None, size=None, w3="0x20000", hi_or=None):
    if add is None:
        a(f"s_mov_b32 s{d}, s{base}\ns_mov_b32 s{d+1}, s{base+1}")
    else:
        a(f"s_add_u32 s{d}, s{base}, {add}\ns_addc_u32 s{d+1}, s{base+1}, 0")
    if hi_or: a(f"s_or_b32 s{d+1}, s{d+1}, {hi_or}")
    a(f"s_mov_b32 s{d+2}, {size}\ns_mov_b32 s{d+3}, {w3}")

def kd(name, vgpr, sgpr):
    return f"""
.amdhsa_kernel {name}
  .amdhsa_next_free_vgpr {vgpr}
  .amdhsa_next_free_sgpr {sgpr}
  .amdhsa_accum_offset {(vgpr+3)//4*4}
  .amdhsa_group_segment_fixed_size 0
  .amdhsa_kernarg_size 96
  .amdhsa_user_sgpr_count 2
  .amdhsa_user_sgpr_kernarg_segment_ptr 1
  .amdhsa_system_sgpr_workgroup_id_x 1
.end_amdhsa_kernel
"""

def rec_fields(a, vd, vbin, vtmp, sm40, sm10):
    a(f"""
    v_mul_u32_u24 v{vbin}, {BINK}, v{vd}
    v_add_u32 v{vbin}, {BINC}, v{vbin}
    v_lshrrev_b32 v{vbin}, {BINS}, v{vbin}
    v_mul_u32_u24 v{vtmp}, 625, v{vbin}
    v_lshrrev_b32 v{vtmp}, 4, v{vtmp}
    v_sub_u32 v{vd}, v{vd}, v{vtmp}
    v_mul_u32_u24 v{vtmp}, 26, v{vd}
    v_lshrrev_b32 v{vtmp}, 8, v{vtmp}
    v_mad_i32_i24 v{vd}, v{vtmp}, s{sm10}, v{vd}
    v_lshl_or_b32 v{vd}, v{vtmp}, 30, v{vd}
    """)

K1_CNT = 0; K1_STG = 1024; K1_X = 65536; K1_LDS = K1_X + 20480
def gen_k1():
    a = Asm()
    sS, sD, sW1, sW2, sX, sR, sT = 24, 28, 32, 36, 40, 44, 48
    sw, st0, st1, st2, sng, sfb, stask = 52, 53, 54, 55, 56, 57, 58
    c4096, c8192, cm40, cm10, cnl2e, csign, cmag, ctso, cp0 = 59, 60, 61, 62, 63, 64, 65, 66, 67
    a("k1_kernel:")
    a(f"s_cmp_ge_u32 s2, {2*NCH}\ns_cbranch_scc1 K1_END")
    stamp(a, 0)
    a(f"""
    s_load_dwordx16 s[4:19], s[0:1], 0
    s_load_dwordx2 s[20:21], s[0:1], 64
    s_load_dwordx2 s[22:23], s[0:1], 88
    v_lshrrev_b32 v2, 6, v0
    v_lshlrev_b32 v1, 2, v0
    v_readfirstlane_b32 s{sw}, v2
    s_mov_b32 s{c4096}, 4096
    s_mov_b32 s{c8192}, 8192
    s_cmp_ge_u32 s2, {NCH}
    s_cbranch_scc1 K1_GEMM
    """)
    vD, vS, vB, vSL, vt = 2, 5, 8, 11, 16
    a(f"s_mul_i32 s{st1}, s2, {CS*4}\ns_waitcnt lgkmcnt(0)")
    srd(a, sD, 10, f"s{st1}", CS*4)
    srd(a, sS, 8, f"s{st1}", CS*4)
    for r, so in enumerate(("0", f"s{c4096}", f"s{c8192}")):
        a(f"buffer_load_dword v{vD+r}, v1, {sr(sD,4)}, {so} offen")
        a(f"buffer_load_dword v{vS+r}, v1, {sr(sS,4)}, {so} offen")
    a(f"""
    v_mov_b32 v{vt}, -1
    v_mov_b32 v{vt+1}, -1
    v_mov_b32 v{vt+2}, -1
    v_mov_b32 v{vt+3}, -1
    v_lshlrev_b32 v{vt+4}, 4, v0
    v_mov_b32 v{vt+5}, 0
    v_and_b32 v{vt+6}, 0x3fc, v1
    ds_write_b128 v{vt+4}, {vr(vt,4)} offset:{K1_STG}
    ds_write_b128 v{vt+4}, {vr(vt,4)} offset:{K1_STG+16384}
    ds_write_b32 v{vt+6}, v{vt+5} offset:{K1_CNT}
    s_lshl_b32 s{st0}, s2, 7
    s_add_u32 s{st0}, s{st0}, {REC_OFF}
    """)
    srd(a, sR, 22, f"s{st0}", NBIN*NCH*128)
    a(f"s_lshl_b32 s{st0}, s2, 9\ns_add_u32 s{st1}, s{st0}, {LUT_OFF}")
    srd(a, sT, 22, f"s{st1}", 512)
    a(f"""
    v_add_u32 v40, s{st0}, v1
    v_and_b32 v41, 0x7fff, v40
    v_cmp_ne_u32 vcc, 0x7c00, v41
    v_or_b32 v41, 3, v40
    s_nop 0
    v_addc_co_u32 v40, vcc, 0, v40, vcc
    v_cvt_f32_f16 v41, v41
    v_cvt_f32_f16 v40, v40
    v_exp_f32 v41, v41
    v_exp_f32 v40, v40
    v_add_f32 v41, 1.0, v41
    v_add_f32 v40, 1.0, v40
    v_rcp_f32 v41, v41
    v_rcp_f32 v40, v40
    s_nop 0
    v_cvt_pk_bf16_f32 v40, v40, v41
    buffer_store_dword v40, v1, {sr(sT,4)}, 0 offen {OPT['st_r']}
    """)
    if OPT.get("pf", "0") == "1":
        a(f"""
        s_getpc_b64 {sr(sW1,2)}
        K1_PC:
        s_add_u32 s{sW1}, s{sW1}, k2_kernel-K1_PC
        s_addc_u32 s{sW1+1}, s{sW1+1}, 0
        s_mov_b32 s{sW1+2}, K2_CODE_END-k2_kernel
        s_mov_b32 s{sW1+3}, 0x20000
        v_lshlrev_b32 v44, 6, v0
        buffer_load_dword v45, v44, {sr(sW1,4)}, 0 offen
        """)
    a(f"""
    s_mov_b32 s{cm10}, {-GN}
    v_mov_b32 v{vt+5}, 1
    v_cmp_gt_u32 vcc, {CS-2048}, v0
    s_mov_b64 s[100:101], vcc
    v_lshrrev_b32 v{vt+7}, 3, v0
    v_and_b32 v{vt+8}, 7, v0
    v_lshlrev_b32 v{vt+9}, 14, v{vt+7}
    v_lshl_add_u32 v{vt+9}, v{vt+8}, 4, v{vt+9}
    v_lshlrev_b32 v{vt+7}, 2, v{vt+7}
    v_cmp_eq_u32 s[82:83], 7, v{vt+8}
    s_mov_b32 s{st2}, {128*16384}
    s_waitcnt lgkmcnt(0)
    s_barrier
    """)
    stamp(a, 1)
    for r in range(3):
        a(f"s_waitcnt vmcnt({4-2*r + 1 + (OPT.get('pf', '0') == '1')})")
        if r == 0: stamp(a, 2)
        rec_fields(a, vD+r, vB+r, vt, cm40, cm10)
        a(f"v_lshlrev_b32 v{vt}, 2, v{vB+r}")
        if r == 2: a("s_mov_b64 exec, s[100:101]")
        a(f"ds_add_rtn_u32 v{vSL+r}, v{vt}, v{vt+5} offset:{K1_CNT}")
        if r == 2: a("s_mov_b64 exec, -1")
        a(f"""
        v_lshl_or_b32 v{vD+r}, v{vS+r}, 16, v{vD+r}
        v_add_u32 v{vS+r}, {1024*r}, v0
        v_lshl_or_b32 v{vD+r}, v{vS+r}, 4, v{vD+r}
        v_lshlrev_b32 v{vB+r}, 7, v{vB+r}
        """)
    for r in range(3):
        a(f"s_waitcnt lgkmcnt({2-r})" if r == 0 else f"s_waitcnt lgkmcnt({2})" if r == 1 else "s_waitcnt lgkmcnt(2)")
        if r == 2: a("s_mov_b64 exec, s[100:101]")
        a(f"""
        v_and_b32 v{vt}, 12, v{vSL+r}
        v_add_u32 v{vB+r}, v{vB+r}, v{vt}
        v_and_b32 v{vt}, 3, v{vSL+r}
        v_lshl_add_u32 v{vB+r}, v{vt}, 4, v{vB+r}
        v_and_b32 v{vt}, 16, v{vSL+r}
        v_lshl_add_u32 v{vB+r}, v{vt}, 2, v{vB+r}
        v_cmpx_gt_u32 vcc, {CAP}, v{vSL+r}
        ds_write_b32 v{vB+r}, v{vD+r} offset:{K1_STG}
        s_mov_b64 exec, -1
        """)
    a("s_waitcnt lgkmcnt(0)")
    stamp(a, 3)
    a("s_barrier")
    stamp(a, 4)
    a(f"""
    ds_read_b128 {vr(vt+12,4)}, v{vt+4} offset:{K1_STG}
    ds_read_b32 v{vt}, v{vt+7} offset:{K1_CNT}
    ds_read_b128 {vr(vt+16,4)}, v{vt+4} offset:{K1_STG+16384}
    ds_read_b32 v{vt+1}, v{vt+7} offset:{K1_CNT+512}
    v_mov_b32 v{vt+2}, -2
    """)
    for k in range(2):
        a(f"""
        s_waitcnt lgkmcnt({2-2*k})
        v_cmp_lt_u32 vcc, {CAP}, v{vt+k}
        s_and_b64 vcc, vcc, s[82:83]
        s_nop 1
        v_cndmask_b32 v{vt+15+4*k}, v{vt+15+4*k}, v{vt+2}, vcc
        buffer_store_dwordx4 {vr(vt+12+4*k,4)}, v{vt+9}, {sr(sR,4)}, {'0' if k == 0 else f's{st2}'} offen {OPT['st_r']}
        """)
    stamp(a, 5)
    if OPT.get("pe", "1") == "1":
        a("s_barrier")
        a(f"s_mul_i32 s{st0}, s2, {CS*32}")
        srd(a, sW2, 6, f"s{st0}", CS*32)
        a(f"v_lshlrev_b32 v46, 7, v0\nbuffer_load_dword v47, v46, {sr(sW2,4)}, 0 offen {OPT.get('pef', '')}")
    stamp(a, 6); stamp(a, 7)
    stamp_out(a, 0, 22, sw, 2)
    a("s_endpgm")
    vW, vX, vA, vt = 32, 96, 112, 2
    def W(m, ab, s): return vW + 32*m + 16*ab + 4*s
    a(f"""
    K1_GEMM:
    s_sub_u32 s{stask}, s2, {NCH}
    s_and_b32 s{sfb}, s{sw}, 3
    s_lshr_b32 s{sng}, s{sw}, 2
    v_and_b32 v{vt}, 63, v0
    v_lshrrev_b32 v{vt+1}, 4, v{vt}
    v_and_b32 v{vt+2}, 15, v0
    s_lshl_b32 s{st0}, s{sfb}, 2
    v_add_u32 v{vt+3}, s{st0}, v{vt+1}
    v_xor_b32 v{vt+3}, v{vt+3}, v{vt+2}
    v_lshlrev_b32 v{vt+3}, 4, v{vt+3}
    v_lshl_add_u32 v{vt+3}, v{vt+1}, 8, v{vt+3}
    v_lshlrev_b32 v{vt+4}, 2, v{vt+1}
    v_xor_b32 v{vt+4}, v{vt+4}, v{vt+2}
    v_lshlrev_b32 v{vt+4}, 4, v{vt+4}
    v_lshl_add_u32 v{vt+4}, v{vt+1}, 8, v{vt+4}
    s_mul_i32 s{st0}, s{stask}, 20480
    s_cmp_lt_u32 s{stask}, 125
    s_cselect_b32 s{st0}, s{st0}, 0
    s_cselect_b32 s{st2}, 20480, 0
    s_waitcnt lgkmcnt(0)
    """)
    a(f"""
    s_cmp_ge_u32 s{stask}, 126
    s_cbranch_scc1 K1_WC
    s_add_u32 s{sX}, s4, s{st0}
    s_addc_u32 s{sX+1}, s5, 0
    s_mov_b32 s{sX+2}, s{st2}
    s_mov_b32 s{sX+3}, 0x20000
    s_lshl_b32 s{st1}, s{sw}, 10
    s_add_u32 m0, s{st1}, {K1_X}
    s_cmp_eq_u32 s{stask}, 125
    s_cselect_b64 {sr(sW1,2)}, s[12:13], s[14:15]
    s_cselect_b64 {sr(sW2,2)}, s[18:19], s[20:21]
    """)
    if OPT.get("touch", "0") == "1":
        a(f"""
        s_bitcmp1_b32 s2, 3
        s_cselect_b64 {sr(sS,2)}, {sr(sW1,2)}, {sr(sW2,2)}
        s_bitcmp1_b32 s2, 4
        s_cselect_b32 s{sS+2}, 4, 0
        s_mov_b32 s{sS+3}, 0x20000
        buffer_load_dword v30, v1, {sr(sS,4)}, 0 offen
        """)
    a(f"""
    buffer_load_dwordx4 v{vt+3}, {sr(sX,4)}, s{st1} offen lds
    s_cmp_lt_u32 s{sw}, 4
    s_cbranch_scc0 K1_X1
    s_add_u32 m0, s{st1}, {K1_X+16384}
    s_add_u32 s{st1}, s{st1}, 16384
    buffer_load_dwordx4 v{vt+3}, {sr(sX,4)}, s{st1} offen lds
    K1_X1:
    s_mov_b32 s{sW1+2}, 32768
    s_mov_b32 s{sW1+3}, 0x20000
    s_mov_b32 s{sW2+2}, 32768
    s_mov_b32 s{sW2+3}, 0x20000
    s_lshr_b32 s{st1}, s2, 3
    s_add_u32 s{st1}, s{st1}, s{sw}
    s_and_b32 s{st1}, s{st1}, 15
    s_lshl_b32 s{st1}, s{st1}, 11
    s_mov_b32 m0, s{st1}
    s_mul_i32 s{st0}, s{stask}, {80*TS}
    buffer_load_dwordx4 v{vt+4}, {sr(sW1,4)}, s{st1} offen lds
    buffer_load_dwordx4 v{vt+4}, {sr(sW1,4)}, s{st1} offen offset:1024 lds
    s_add_u32 m0, s{st1}, 32768
    s_add_u32 s{st0}, s{st0}, {T_OFF}
    buffer_load_dwordx4 v{vt+4}, {sr(sW2,4)}, s{st1} offen lds
    buffer_load_dwordx4 v{vt+4}, {sr(sW2,4)}, s{st1} offen offset:1024 lds
    """)
    srd(a, sT, 22, f"s{st0}", 80*TS)
    a(f"""
    v_bfe_u32 v{vt+5}, v0, 2, 2
    v_and_b32 v{vt+6}, 3, v0
    s_lshl_b32 s{st0}, s{sfb}, 2
    v_add_u32 v{vt+6}, s{st0}, v{vt+6}
    v_lshlrev_b32 v{vt+7}, 2, v{vt+5}
    v_xor_b32 v{vt+6}, v{vt+6}, v{vt+7}
    v_lshl_add_u32 v{vt+5}, v{vt+1}, 3, v{vt+5}
    v_lshlrev_b32 v{vt+5}, 8, v{vt+5}
    v_lshl_add_u32 v10, v{vt+6}, 4, v{vt+5}
    v_xor_b32 v11, v{vt+1}, v{vt+2}
    v_lshlrev_b32 v11, 4, v11
    v_lshl_add_u32 v11, v{vt+2}, 8, v11
    s_lshl_b32 s{st0}, s{sng}, 12
    s_add_u32 s{st0}, s{st0}, {K1_X}
    v_add_u32 v11, s{st0}, v11
    v_mul_u32_u24 v12, {TS}, v{vt+2}
    v_lshl_add_u32 v12, v{vt+1}, 4, v12
    s_mul_i32 s{st0}, s{sng}, {16*TS}
    s_lshr_b32 s{st1}, s{sfb}, 1
    s_lshl_b32 s{st1}, s{st1}, 8
    s_add_u32 s{st0}, s{st0}, s{st1}
    s_and_b32 s{st1}, s{sfb}, 1
    s_lshl_b32 s{st1}, s{st1}, 6
    s_add_u32 s{ctso}, s{st0}, s{st1}
    s_mov_b32 s{cnl2e}, {NL2E:#x}
    s_mov_b32 s{csign}, 0x00800000
    s_mov_b32 s{cmag}, 0x7fffffff
    s_mov_b32 s{cp0}, 0x07060100
    s_mov_b32 s{cp0+1}, 0x07060302
    v_xor_b32 v13, 64, v11
    v_xor_b32 v14, 0x80, v11
    v_xor_b32 v15, 0xc0, v11
    """)
    stamp(a, 1)
    a("s_waitcnt vmcnt(0)")
    stamp(a, 2)
    a("s_barrier")
    stamp(a, 3)
    def xrd(off):
        for s in range(4): a(f"ds_read_b128 {vr(vX+4*s,4)}, v{[11,13,14,15][s]} offset:{off}")
    xrd(0)
    n = 4
    for s in range(4):
        for m in range(2):
            for ab in range(2):
                for u in range(2):
                    a(f"ds_read_b64_tr_b16 {vr(W(m,ab,s)+2*u,2)}, v10 offset:{m*32768+s*8192+u*1024+ab*8}")
        if s < 3: a("s_waitcnt lgkmcnt(6)")
    a(f"s_cmp_eq_u32 s{stask}, 125\ns_cbranch_scc1 K1_WT")
    def mm():
        for s in range(4):
            for m in range(2):
                for ab in range(2):
                    d = vr(vA+8*m+4*ab, 4)
                    a(f"v_mfma_f32_16x16x32_bf16 {d}, {vr(W(m,ab,s),4)}, {vr(vX+4*s,4)}, {'0' if s == 0 else d}")
    def pack(so):
        a("s_nop 7")
        for b in range(2):
            for ab in range(2):
                b0, b1 = vA+4*ab+b, vA+4*ab+2+b
                a(f"v_mul_f32 v{b0}, s{cnl2e}, v{b0}\nv_mul_f32 v{b1}, s{cnl2e}, v{b1}")
                for e_ in range(2):
                    h = vA+8+4*ab+2*e_+b
                    a(f"v_max_f32 v{16+e_}, abs(v{h}), s{csign}\nv_bfi_b32 v{h}, s{cmag}, v{16+e_}, v{h}")
                a(f"v_cvt_pk_bf16_f32 v{b0}, v{b0}, v{b1}")
                for e_ in range(2):
                    h = vA+8+4*ab+2*e_+b
                    a(f"v_add_u32 v{h}, 0x8000, v{h}")
                for e_ in range(2):
                    h = vA+8+4*ab+2*e_+b
                    a(f"v_sub_u32_sdwa v{h}, v{h}, v{b0} dst_sel:DWORD dst_unused:UNUSED_PAD src0_sel:DWORD src1_sel:WORD_{e_}")
                for e_ in range(2):
                    h = vA+8+4*ab+2*e_+b
                    a(f"v_perm_b32 v{20+4*b+2*ab+e_}, v{h}, v{b0}, s{cp0+e_}")
            a(f"buffer_store_dwordx4 {vr(20+4*b,4)}, v12, {sr(sT,4)}, s{so} offen offset:{128*b} {OPT['st_t']}")
    a("s_waitcnt lgkmcnt(0)")
    mm()
    stamp(a, 4)
    a(f"s_cmp_eq_u32 s{sng}, 0\ns_cbranch_scc0 K1_ONE")
    xrd(16384)
    pack(ctso)
    a(f"s_add_u32 s{ctso}, s{ctso}, {64*TS}\ns_waitcnt lgkmcnt(0)")
    mm()
    a("K1_ONE:")
    pack(ctso)
    stamp(a, 5); stamp(a, 6); stamp(a, 7)
    stamp_out(a, 0, 22, sw, 2)
    a("s_endpgm")
    a("K1_WT:")
    srd(a, sT, 22, WT_OFF, 65536)
    a(f"""
    s_cmp_ge_u32 s{sw}, 8
    s_cbranch_scc1 K1_END
    v_lshlrev_b32 v{vt+1}, 4, v{vt}
    s_lshl_b32 s{st0}, s{sw}, 13
    s_add_u32 s{st1}, s{st0}, 4096
    s_waitcnt lgkmcnt(0)
    s_cmp_eq_u32 s{sng}, 0
    s_cbranch_scc0 K1_WU
    """)
    for m in range(2):
        for ab in range(2):
            for s in range(4):
                a(f"buffer_store_dwordx4 {vr(W(m,ab,s),4)}, v{vt+1}, {sr(sT,4)}, s{st1 if ab else st0} offen offset:{1024*s} {OPT['st_t']}")
        a("s_endpgm")
        if m == 0: a("K1_WU:")
    a("K1_WC:")
    srd(a, sT, 22, WT_OFF+65536, 4096)
    srd(a, sW1, 16, None, 4096)
    a(f"""
    s_cmp_eq_u32 s{stask}, 126
    s_cbranch_scc0 K1_END
    s_cmp_ge_u32 s{sw}, 4
    s_cbranch_scc1 K1_END
    v_lshrrev_b32 v{vt+2}, 5, v{vt}
    v_and_b32 v{vt+3}, 31, v0
    v_lshlrev_b32 v{vt+3}, 2, v{vt+3}
    v_lshl_add_u32 v{vt+3}, v{vt+2}, 11, v{vt+3}
    v_lshlrev_b32 v{vt+1}, 4, v{vt}
    s_lshr_b32 s{st1}, s{sw}, 1
    s_lshl_b32 s{st1}, s{st1}, 7
    s_and_b32 s{st0}, s{sw}, 1
    s_lshl_b32 s{st0}, s{st0}, 1
    s_add_u32 s{st1}, s{st1}, s{st0}
    s_lshl_b32 s{st0}, s{sw}, 10
    s_mov_b32 s{cnl2e}, {NL2E:#x}
    """)
    for j in range(8):
        a(f"buffer_load_ushort v{20+j}, v{vt+3}, {sr(sW1,4)}, s{st1} offen offset:{256*j}")
    a("s_waitcnt vmcnt(0)")
    for j in range(8):
        a(f"v_lshlrev_b32 v{20+j}, 16, v{20+j}\nv_mul_f32 v{20+j}, s{cnl2e}, v{20+j}")
    for j in range(4):
        a(f"v_cvt_pk_bf16_f32 v{28+j}, v{20+2*j}, v{21+2*j}")
    a(f"buffer_store_dwordx4 v[28:31], v{vt+1}, {sr(sT,4)}, s{st0} offen {OPT['st_t']}")
    a("K1_END:\ns_endpgm")
    return a.text(), kd("k1_kernel", 128, 102)

CAPG = 416; RND = 400
CNT = 0; FLG = 256; START = 512; INCL = 768; OHL = 1024; L1 = 1536; L2 = L1 + 4*CAPG*4; APL = L2 + 4*CAPG*4
ROWP = 272
UL = APL + 48*ROWP; LUTL = UL + 48*ROWP; STG = (LUTL + 65536 + 255)//256*256; XL = STG + 3*CAPG*32 + 5*1024; K2_LDS = XL + 12288
PROG = FLG + 32
assert K2_LDS <= 163840 and K2_LDS >= STG + 4*CAPG*32 and LUTL <= 65535 and (4*CAPG*4) % 256 == 0

def gen_k2():
    a = Asm()
    sREC, sX, sWT, sT, sE, sO, sD, sS = 24, 28, 32, 36, 40, 44, 68, 72
    sw, sg, sfh, st0, st1, st2 = 48, 49, 50, 51, 52, 53
    scount, sslow, sround, slim, sgb, srt, slut, srank = 54, 55, 56, 57, 58, 59, 82, 83
    stail = 20
    sdma, sm0, sneed = 21, 22, 23
    cm32, c128, cnl2e, cfc, csrc, cm40, cm10, cfe = 60, 61, 62, 63, 64, 65, 66, 67
    sk = 16
    vH16, vA1, vA2, vEa, vOa, vO, vA3 = 1, 2, 3, 4, 5, 6, 7
    WC = 8; AP = 16; PA = 24; SC = 28; OH = 32; EA = 40; ADDR = 48; ACC = 64; SP = 96; G = 112; RAW = 176
    XR = 240; UR = 246; vP16 = 252; vH256 = 253; vHS = 254; vPG = 255; vM15 = XR; vO2 = SP+8
    raw = lambda p, b: RAW + 32*p + 16*b
    gb = lambda p, b: G + 32*p + 16*b
    vt = gb(1, 1); Z = SP; EOFF = SP+14
    REC = raw(1, 0); CADDR = REC+16; RANK = G; STV = G+16
    NTB = [int(c_) for c_ in OPT.get("nt", "11")]
    rowoff = lambda r: 8*(r >> 2) + (r & 3)
    sd = "dst_sel:DWORD dst_unused:UNUSED_PAD src0_sel:DWORD"

    a("k2_kernel:")
    a(f"s_cmp_ge_u32 s2, {NBIN}\ns_cbranch_scc1 K2_END")
    stamp(a, 0)
    a(f"""
    s_load_dwordx8 s[4:11], s[0:1], 0
    s_load_dwordx2 s[12:13], s[0:1], 72
    s_load_dwordx2 s[14:15], s[0:1], 88
    v_lshrrev_b32 v{vt}, 6, v0
    v_lshrrev_b32 v{vt+1}, 2, v0
    v_readfirstlane_b32 s{sw}, v{vt}
    v_and_b32 v{vt+2}, 3, v0
    v_lshlrev_b32 v{vt+3}, 7, v{vt+1}
    v_lshl_add_u32 v{vt+3}, v{vt+2}, 4, v{vt+3}
    s_lshl_b32 s{st0}, s2, 14
    s_add_u32 s{st0}, s{st0}, {REC_OFF}
    v_and_b32 v{vt}, 63, v0
    v_lshlrev_b32 v{vt+5}, 3, v{vt}
    v_mov_b32 v{Z}, 0
    v_mov_b32 v{Z+1}, 0
    ds_write_b64 v{vt+5}, {vr(Z,2)} offset:{CNT}
    s_and_b32 s{sg}, s{sw}, 3
    s_lshr_b32 s{sfh}, s{sw}, 2
    v_lshlrev_b32 v{vA2}, 4, v{vt}
    s_mov_b32 s{st1}, 8192
    s_waitcnt lgkmcnt(0)
    s_cmp_lg_u32 s{sfh}, 0
    s_cbranch_scc1 K2_NOREC
    """)
    srd(a, sREC, 14, f"s{st0}", 16384)
    for u in range(2):
        for r in range(2):
            a(f"buffer_load_dwordx4 {vr(REC+8*r+4*u,4)}, v{vt+3}, {sr(sREC,4)}, {'s%d' % st1 if u else '0'} offen offset:{64*r}")
    a(f"""
    K2_NOREC:
    s_mul_i32 s{st0}, s2, 625
    s_add_u32 s{cm40}, s{st0}, 625
    s_lshr_b32 s{st0}, s{st0}, 4
    s_lshr_b32 s{cm40}, s{cm40}, 4
    s_sub_u32 s{cm40}, s{cm40}, s{st0}
    s_lshl_b32 s{cm40}, s{cm40}, 8
    s_lshl_b32 s{st0}, s{st0}, 8
    """)
    srd(a, sX, 4, f"s{st0}", f"s{cm40}")
    srd(a, sO, 12, f"s{st0}", f"s{cm40}")
    srd(a, sWT, 14, WT_OFF, LUT_OFF - WT_OFF + 65536)
    a("s_barrier")
    stamp(a, 1)
    def ld_wc():
        a(f"""
        s_lshl_b32 s{st1}, s{sfh}, 11
        s_add_u32 s{st1}, s{st1}, 65536
        buffer_load_dwordx4 {vr(WC,4)}, v{vA2}, {sr(sWT,4)}, s{st1} offen
        buffer_load_dwordx4 {vr(WC+4,4)}, v{vA2}, {sr(sWT,4)}, s{st1} offen offset:1024
        """)
    def common1(Z, vl):
        a = Asm()
        a(f"s_lshl_b32 s{st0}, s{sfh}, 8\ns_add_u32 s{st0}, s{st0}, {T_OFF-128}")
        srd(a, sT, 14, f"s{st0}", 64, w3="0x800000", hi_or="0x40000")
        srd(a, sE, 6, None, E*32)
        a(f"""
        s_mov_b32 s{cm32}, {'0x7e0' if 'e' in OPT.get('nomem','') else '0x1fffe0' if 's' in OPT.get('nomem','') else '0xffffffe0'}
        s_mov_b32 s{c128}, 128
        s_mov_b32 s{cnl2e}, {NL2E:#x}
        s_mov_b32 s{cfc}, 0xfc
        s_mov_b32 s{cfe}, {OPT.get('cfe', '0xfffe')}
        s_mov_b32 s{csrc}, {TS}
        s_mov_b32 s{sslow}, 0
        s_mov_b32 s{sround}, 0
        s_mov_b32 s{sgb}, 0
        s_mul_i32 s{st0}, s{sfh}, 3
        s_xor_b32 s{srank}, s{sg}, s{st0}
        v_lshrrev_b32 v{Z+2}, 5, v{vl}
        v_and_b32 v{Z+3}, 31, v0
        v_lshlrev_b32 v{vH16}, 4, v{Z+2}
        v_lshlrev_b32 v{vH256}, 8, v{Z+2}
        v_cmp_eq_u32 vcc, 0, v{Z+2}
        v_mov_b32 v{vM15}, 0xffff
        v_mov_b32 v{Z+4}, -1
        v_cndmask_b32 v{vM15}, v{vM15}, v{Z+4}, vcc
        v_and_b32 v{Z+4}, 3, v0
        v_mov_b32 v{Z+6}, 0x3f80
        """)
        for i in range(4):
            a(f"v_cmp_eq_u32 vcc, {i}, v{Z+4}\ns_nop 1\nv_cndmask_b32 v{PA+i}, 0, v{Z+6}, vcc")
        den = bf(127*2.0**-116); tiny = bf(2.0**-100)
        a(f"""
        v_cmp_gt_u32 s[78:79], 16, v{Z+3}
        v_mov_b32 v{Z+5}, {den:#x}
        v_mov_b32 v{Z+7}, {tiny<<16:#x}
        v_cndmask_b32 v{Z+5}, v{Z+6}, v{Z+5}, s[78:79]
        v_cndmask_b32 v{Z+7}, 0, v{Z+7}, s[78:79]
        v_and_b32 v{Z+4}, 15, v0
        v_lshlrev_b32 v{Z+8}, 3, v{Z+2}
        v_sub_u32 v{Z+4}, v{Z+4}, v{Z+8}
        v_lshlrev_b32 v{Z+6}, 16, v{Z+5}
        """)
        for d in range(4):
            a(f"""
            v_cmp_eq_u32 vcc, {2*d}, v{Z+4}
            v_cmp_eq_u32 s[78:79], {2*d+1}, v{Z+4}
            s_nop 0
            v_cndmask_b32 v{SC+d}, 0, v{Z+5}, vcc
            v_cndmask_b32 v{Z+8}, 0, v{Z+6}, s[78:79]
            v_or_b32 v{SC+d}, v{SC+d}, v{Z+8}
            """)
        a(f"""
        v_and_b32 v{SC+3}, v{SC+3}, v{vM15}
        v_not_b32 v{Z+8}, v{vM15}
        v_and_b32 v{Z+8}, v{Z+8}, v{Z+7}
        v_or_b32 v{SC+3}, v{SC+3}, v{Z+8}
        """)
        return [x.strip() for x in a.l]
    def ld_xr(): return [f"buffer_load_dword v{XR+r}, v{vO}, {sr(sX,4)}, 0 offen offset:{256*rowoff(r)} " for r in range(6)]
    def arrive(k):
        a(f"""
        v_mov_b32 v{vt+6}, {FLG+4*k}
        v_mov_b32 v{vt+7}, 1
        s_mov_b64 exec, 1
        ds_add_u32 v{vt+6}, v{vt+7}
        s_mov_b64 exec, -1
        """)
    def spin(k, n, add=True):
        if add: arrive(k)
        else: a(f"v_mov_b32 v{vt+6}, {FLG+4*k}")
        a(f"""
        K2_SPIN{n}:
        ds_read_b32 v{vt+7}, v{vt+6}
        s_waitcnt lgkmcnt(0)
        v_cmp_gt_u32 vcc, 4, v{vt+7}
        s_cbranch_vccnz K2_SPIN{n}
        """)
    def caddr(k): return f"v_and_b32_sdwa v{CADDR+k}, s{cfc}, v{REC+k} {sd} src1_sel:BYTE_3"
    def pick(sel, cur):
        a(f"""
        s_bitcmp1_b32 s{sel}, 0
        s_cselect_b32 s{cur[0]}, s{cur[1]}, s{cur[0]}
        s_cselect_b32 s{cur[2]}, s{cur[3]}, s{cur[2]}
        s_bitcmp1_b32 s{sel}, 1
        s_cselect_b32 s{st0}, s{cur[2]}, s{cur[0]}
        s_and_b32 s{sg}, s{st0}, 3
        s_andn2_b32 s{st0}, s{st0}, 3
        s_mul_i32 s{sgb}, s{sg}, {CAPG*4}
        s_add_u32 s{scount}, s{st0}, 127
        s_lshr_b32 s{scount}, s{scount}, 7
        s_add_u32 s{stail}, s{st0}, 124
        s_bfe_u32 s{stail}, s{stail}, 0x20005
        s_lshl_b32 s{stail}, s{stail}, 1
        s_add_u32 s{stail}, s{stail}, 2
        """)
    def rank_groups():
        for g in range(1, 4): a(f"s_or_b32 s{sk+g}, s{sk+g}, {g}")
        cur = [sk, sk+1, sk+2, sk+3]; spare = sk+4
        for (i, j) in ((0, 1), (2, 3), (0, 2), (1, 3), (1, 2)):
            a(f"s_max_u32 s{spare}, s{cur[i]}, s{cur[j]}\ns_min_u32 s{cur[j]}, s{cur[i]}, s{cur[j]}")
            cur[i], spare = spare, cur[i]
        pick(srank, cur)
    def scan(fast, ks=()):
        x = SP
        a(f"""
        v_and_b32 v{vt}, 63, v0
        v_lshlrev_b32 v{vt+1}, 2, v{vt}
        ds_read_b32 v{x}, v{vt+1} offset:{CNT}
        v_lshrrev_b32 v{vt}, 4, v{vt}
        v_mul_u32_u24 v{vt}, {CAPG*4}, v{vt}
        v_and_b32 v{vt+2}, 31, v0
        v_lshlrev_b32 v{vt+2}, 2, v{vt+2}
        v_mov_b32 v{vt+4}, 0xfffffe
        s_waitcnt lgkmcnt(0)
        v_sub_u32 v{vt}, v{vt}, v{x}
        """)
        for d in ("row_shr:1", "row_shr:2", "row_shr:4", "row_shr:8"):
            a(f"v_add_u32_dpp v{x}, v{x}, v{x} {d} row_mask:0xf bank_mask:0xf bound_ctrl:0\ns_nop 1")
        a(f"""
        v_add_u32 v{vt}, v{vt}, v{x}
        v_cmp_lt_u32 vcc, {CAPG*4}, v{x}
        ds_write2st64_b32 v{vt+1}, v{vt}, v{x} offset0:{START//256} offset1:{INCL//256}
        """)
        for g in range(4): a(f"v_readlane_b32 s{sk+g}, v{x}, {16*g+15}")
        if fast:
            a("s_cbranch_vccnz K2_GIVEUP")
            for j, k in enumerate(ks): a(f"ds_read_b32 v{STV+j}, v{CADDR+k} offset:{START}")
            rank_groups()
        else:
            for g in range(1, 4): a(f"s_or_b32 s{sk+g}, s{sk+g}, {g}")
            pick(sg, [sk, sk+1, sk+2, sk+3])
        a(f"""
        s_add_u32 s{st0}, s{st0}, s{sgb}
        v_add_u32 v{vt+2}, s{st0}, v{vt+2}
        s_lshl_b32 s{st1}, s{scount}, 7
        s_add_u32 s{st1}, s{st1}, s{sgb}
        v_lshlrev_b32 v{vt+3}, 3, v{vt+2}
        v_and_b32 v{vt+3}, 128, v{vt+3}
        v_cmpx_gt_u32 vcc, s{st1}, v{vt+2}
        ds_write2st64_b32 v{vt+2}, v{vt+3}, v{vt+4} offset0:{L1//256} offset1:{L2//256}
        s_mov_b64 exec, -1
        """)
    def place(k, st, eo):
        a(f"""
        v_add_u32 v{st}, v{st}, v{RANK+k}
        v_bfe_u32 v{vt}, v{REC+k}, 16, {5 if 't' in OPT.get('nomem','') else 14}
        v_lshlrev_b32 v{vt+1}, 3, v{st}
        v_mad_u32_u16 v{vt+2}, v{REC+k}, 2, v{eo}
        v_and_b32 v{vt+1}, 128, v{vt+1}
        v_mad_u32_u24 v{vt}, v{vt}, s{csrc}, v{vt+1}
        ds_write2st64_b32 v{st}, v{vt}, v{vt+2} offset0:{L1//256} offset1:{L2//256}
        """)
    def lane_setup():
        a(f"""
        v_and_b32 v{vt}, 31, v0
        v_xor_b32 v{vA1}, 16, v{vH16}
        v_xor_b32 v{vA2}, 4, v{vt}
        v_lshlrev_b32 v{vA2}, 2, v{vA2}
        v_add_u32 v{vA1}, s{sgb}, v{vA1}
        v_add_u32 v{vA2}, s{sgb}, v{vA2}
        s_mul_i32 s{st0}, s{sg}, {GN*256}
        s_lshl_b32 s{st1}, s{sfh}, 7
        s_add_u32 s{st0}, s{st0}, s{st1}
        v_lshlrev_b32 v{vO}, 2, v{vt}
        v_lshl_add_u32 v{vO}, v{vH256}, 2, v{vO}
        v_add_u32 v{vO}, s{st0}, v{vO}
        v_bfe_u32 v{vA3}, v0, 1, 5
        v_lshlrev_b32 v{vA3}, 2, v{vA3}
        v_add_u32 v{vA3}, s{sgb}, v{vA3}
        v_lshlrev_b32 v{vP16}, 4, v0
        v_xor_b32 v{vP16}, v{vP16}, v0
        v_and_b32 v{vP16}, 16, v{vP16}
        v_lshlrev_b32 v{vHS}, 1, v0
        v_xor_b32 v{vHS}, v{vHS}, v{vH16}
        v_and_b32 v{vHS}, 16, v{vHS}
        v_add_u32 v{vHS}, {STG}, v{vHS}
        s_lshl_b32 s{st0}, s{sg}, 2
        s_add_u32 s{st0}, s{st0}, {PROG}
        v_mov_b32 v{vPG}, s{st0}
        s_lshl_b32 s{sm0}, s{sgb}, 3
        s_add_u32 s{sm0}, s{sm0}, {STG}
        s_mov_b32 s{sdma}, 0
        s_mov_b32 s{sneed}, 0
        s_mov_b32 s{slim}, s{scount}
        """)
    def rd_addr(off, j): return f"ds_read_b128 {vr(ADDR+4*j,4)}, v{vA1} offset:{L1+off+32*j}"
    def rd_l2(reg, off): return f"ds_read_b32 v{reg}, v{vA2} offset:{L2+off}"
    def ld_raw(p, b, r):
        pre = [f"v_and_b32 v{ADDR+r}, 0xffff80, v{ADDR+r}"] if OPT.get("safe") else []
        if OPT.get("noload"): return ["s_nop 0"]
        return pre + [f"buffer_load_dword v{raw(p,b)+r}, v{ADDR+r}, {sr(sT,4)}, 0 offen" + (" offset:128" if b else "")]
    def ld_blk(p, b): return sum((ld_raw(p, b, r) for r in range(16)), [])
    cur = {"r": "P"}
    def rd_l3(off, reg=None): return [f"ds_read_b32 v{reg or vEa}, v{vA3} offset:{L2+off}"] if cur["r"] == "P" else []
    lab = [0]
    def dma_ea(sl, reg=None, check=True):
        if cur["r"] != "P": return []
        reg = reg or vEa
        if not check:
            return [f"s_mov_b32 m0, s{sm0}", f"v_and_or_b32 v{reg}, v{reg}, s{cm32}, v{vP16}",
                    f"buffer_load_dwordx4 v{reg}, {sr(sE,4)}, 0 offen lds;wr={300+sl}", f"s_add_u32 s{sm0}, s{sm0}, 1024"]
        lab[0] += 1
        return [f"s_cmp_lt_u32 s{sdma}, s{slim}", f"s_cbranch_scc0 K2_ND{lab[0]}", "@D{",
                f"s_mov_b32 m0, s{sm0}", f"v_and_or_b32 v{reg}, v{reg}, s{cm32}, v{vP16}",
                f"buffer_load_dwordx4 v{reg}, {sr(sE,4)}, 0 offen lds;wr={300+sl}", "@}", f"K2_ND{lab[0]}:",
                f"s_add_u32 s{sdma}, s{sdma}, 1", f"s_add_u32 s{sm0}, s{sm0}, 1024"]
    spins = []
    def rd_prog(): return [f"ds_read_b32 v{vEa}, v{vPG}"] if cur["r"] == "C" else []
    def get_ea(p, sl, off, prev=()):
        o = [f"s_add_u32 s{sneed}, s{sneed}, 1"]
        if cur["r"] == "P":
            o += [f"v_mov_b32 v{vEa}, s{sneed};rd={300+sl}", f"ds_write_b32 v{vPG}, v{vEa}"]
            if prev: o.append("@MOVE 302 300")
        else:
            lab[0] += 1; n = lab[0]; spins.append(n)
            o += [f"v_cmp_gt_u32 vcc, s{sneed}, v{vEa}", f"s_cbranch_vccnz K2_SP{n}", f"K2_OK{n}:"]
        return o + [f"v_lshl_add_u32 v{vEa}, v{vA2}, 3, v{vHS}", f"ds_read_b128 {vr(EA+4*p,4)}, v{vEa} offset:{8*off}"]
    def oh_idx(p):
        return [f"v_and_b32 v{vOa}, 30, v{vOa}",
                f"v_lshl_add_u32 v{vOa}, v{vOa}, 3, v{vH256}",
                f"ds_read_b128 {vr(OH+4*p,4)}, v{vOa} offset:{OHL}"]
    big = "v_mfma_f32_32x32x16_bf16" if not OPT.get("nobig") else "; "
    de = OPT.get("drop", "")
    def mE(p, b): return "; " if "E" in de else f"{big} {vr(gb(p,b),16)}, {vr(EA+4*p,4)}, {vr(WC+4*b,4)}, 0"
    def mA(p, b): return "; " if "A" in de else f"{big} {vr(gb(p,b),16)}, {vr(OH+4*p,4)}, {vr(AP+4*b,4)}, {vr(gb(p,b),16)}"
    def mS(p): return "; " if "S" in de else f"{big} {vr(SP,16)}, {vr(OH+4*p,4)}, {vr(SC,4)}, 0"
    def mG(p, b, j): return "; " if ("G" in de or ("g" in de and j & 1)) else f"{big} {vr(ACC+16*b,16)}, {vr(SP+4*j,4)}, {vr(gb(p,b)+4*j,4)}, {vr(ACC+16*b,16)}"
    def mP(p, b):
        o = []
        for u in range(2):
            for j in range(4):
                g = vr(gb(p,b)+4*j, 4)
                o.append(f"v_mfma_f32_4x4x4_16b_bf16 {g}, {vr(PA+2*u,2)}, {vr(raw(p,b)+4*j+2*u,2)}, {g}")
        return o
    def idx_pair(p, b, i):
        g0, g1 = gb(p,b)+2*i, gb(p,b)+2*i+1
        if i < NTB[b]:
            return [f"v_exp_f32 v{g0}, v{g0}", f"v_exp_f32 v{g1}, v{g1}", f"v_add_f32 v{g0}, 1.0, v{g0}",
                    f"v_add_f32 v{g1}, 1.0, v{g1}", f"v_rcp_f32 v{g0}, v{g0}", f"v_rcp_f32 v{g1}, v{g1}"], []
        return [f"v_cvt_pkrtz_f16_f32 v{g0}, v{g0}, v{g1}",
                f"v_and_b32_sdwa v{g1}, s{cfe}, v{g0} {sd} src1_sel:WORD_1",
                f"v_and_b32_sdwa v{g0}, s{cfe}, v{g0} {sd} src1_sel:WORD_0"], \
               [f"ds_read_u16_d16_hi v{g1}, v{g1} offset:{LUTL}", f"ds_read_u16_d16_hi v{g0}, v{g0} offset:{LUTL}"]
    def fin_pair(p, b, i):
        g0, r0 = gb(p,b)+2*i, raw(p,b)+2*i
        mul = [f"v_pk_mul_f32 {vr(r0,2)}, {vr(g0,2)}, {vr(r0,2)}"] if OPT.get("pk") else [f"v_mul_f32 v{r0}, v{g0}, v{r0}", f"v_mul_f32 v{r0+1}, v{g0+1}, v{r0+1}"]
        return mul + [
                f"v_cvt_pk_bf16_f32 v{g0}, v{g0}, v{r0}", f"v_cvt_pk_bf16_f32 v{g0+1}, v{g0+1}, v{r0+1}"]
    def zipl(x, y):
        o = []
        for k in range(max(len(x), len(y))):
            if k < len(x): o.append(x[k])
            if k < len(y): o.append(y[k])
        return o
    uid = [0]
    def W(kind):
        uid[0] += 1
        return f"@W{kind} {uid[0]}"
    SH = int(OPT.get("short", "4"))
    WE = int(OPT.get("we", "1"))
    def slot(p, b, kind, acc=True, np_=8, npg=8):
        q = 1-p
        nxt = (p, 1) if b == 0 else (q, 0)
        do_idx = b == 0 or kind != "L"
        gs = [[mG(q if b == 0 else p, 1-b, j)] for j in range(npg//2)] if acc else []
        bigs = gs[:2]
        if kind != "L": bigs += [[mE(q, b)], [mA(q, b)]]
        bigs += gs[2:]
        if b == 0: bigs += [[mS(p)]]
        smalls = mP(q, b) if kind != "L" else []
        out = []
        nb = 0
        for i in range(8):
            if i >= np_:
                out += sum(bigs[nb:], []); nb = len(bigs)
                break
            iv, il = idx_pair(*nxt, i) if do_idx else ([], [])
            fv = fin_pair(p, b, i)
            seq = zipl(iv, fv) + il
            if SH:
                rr = range(16*i//SH, 16*(i+1)//SH) if i < SH else []
                if (b == 0 and kind != "L") or (b == 1 and kind == "F"):
                    for r_ in rr: seq += ld_raw(q, 1, r_) if b == 0 else ld_raw(p, 0, r_)
                if kind == "F":
                    if b == 0:
                        for r_ in rr:
                            if r_ & 3 == 3: seq.append(rd_addr((2+p)*128, r_ >> 2))
                    if b == 0 and i == 1: seq = dma_ea(p, check=False) + seq
                    if b == 1 and i == 1: seq += rd_prog()
                    if b == 1 and i == 6: seq += get_ea(p, p, (2+p)*128)
                    if b == 1 and i == 7: seq += rd_l3((3+p)*128)
                    if b == 0 and i == 5: seq.append(rd_l2(vOa, (2+p)*128))
                    if b == 1 and i == 2: seq += oh_idx(p)
            elif kind == "F":
                seq += ld_raw(p, b, 2*i) + ld_raw(p, b, 2*i+1)
                if b == 1 and i & 1: seq.append(rd_addr((3+p)*128, i >> 1))
                if OPT.get("burst"):
                    if p == 0 and b == 0 and i == 0: seq += rd_l3(3*128) + rd_l3(4*128, vOa)
                    if p == 0 and b == 0 and i == 4: seq = dma_ea(1) + dma_ea(2, vOa) + seq
                else:
                    if b == 0 and i == 1: seq += rd_l3((3+p)*128)
                    if b == 1 and i == 0: seq = dma_ea(q) + seq
                if b == 1 and i == 1: seq += rd_prog()
                if b == 1 and i == 6: seq += get_ea(p, p, (2+p)*128, (2,) if (OPT.get('burst') and p == 0) else ())
                if b == 0 and i == 5: seq.append(rd_l2(vOa, (2+p)*128))
                if b == 1 and i == 2: seq += oh_idx(p)
            pre = [W("l")] if i % WE == 0 else []
            if cur["r"] == "P" and kind != "L":
                if (b, i) == (0, 0): pre.append("s_setprio 2")
                if (b, i) == divmod(int(OPT.get("fair", "12")), 8): pre.append("s_setprio 0")
            if i < 6:
                take = 2 if (len(bigs) - nb) > (6 - i) else 1
                if nb < len(bigs): pre += bigs[nb]; nb += 1
                if take == 2 and nb < len(bigs):
                    seq = seq[:6] + bigs[nb] + seq[6:]; nb += 1
            if smalls and i >= 5:
                k0, k1 = {5: (0, 2), 6: (2, 6), 7: (6, 8)}[i]
                sm = smalls[k0:k1]
                if i == 5: seq = seq[:4] + [W("v")] + zipl(sm, seq[4:])
                else: seq = zipl(sm, seq)
            out += pre + seq
        assert nb == len(bigs)
        return out
    def last(p, np_):
        n = f"{p}{cur['r']}{np_}"
        return ([f"K2_LAST{n}:"] + ld_xr() + slot(p, 0, "L", np_=np_) + ["s_nop 11"]*(np_ < 6) + slot(p, 1, "L", np_=np_, npg=np_)
                + ["s_nop 1"] + [mG(p, 1, j) for j in range(np_//2)])
    def body(p, kind):
        q = 1-p; n = f"{kind}{p}{cur['r']}"
        o0 = [f"K2_BODY{n}:"] + slot(p, 0, kind)
        o1 = [f"K2_MID{n}:"] + (ld_xr() if kind == "L" else []) + slot(p, 1, kind)
        if OPT.get("prof") == "7": o1 += ["s_mov_b32 m0, s98", "s_add_u32 s98, s98, 1", f"v_writelane_b32 v{UR+5}, s86, m0", "s_memrealtime s[86:87]"]
        if kind == "P":
            for np_ in (2, 4, 6): o1 += [f"s_cmp_eq_u32 s{stail}, {np_}", f"s_cbranch_scc1 K2_LAST{q}{cur['r']}{np_}"]
        if kind == "F":
            if p == 1: o1 += [f"v_add_u32 v{r_}, 256, v{r_}" for r_ in ((vA1, vA2, vA3) if cur["r"] == "P" else (vA1, vA2))]
            o1 += [f"s_sub_u32 s{scount}, s{scount}, 1", f"s_cmp_eq_u32 s{scount}, 2", f"s_cbranch_scc1 K2_BODYP{q}{cur['r']}"]
        return o0, o1
    def entry_short(kind):
        more = kind != "L"
        o = rd_prog() + [W("v"), W("l")] + get_ea(0, 0, 0)
        if more: o += rd_prog() + rd_l3(128)
        o += [W("l"), "@STAMP", mE(0, 0), mA(0, 0), mE(0, 1), mA(0, 1)]
        o += (dma_ea(1, check=False) if more else []) + ["s_nop 7", W("v")] + mP(0, 0) + ["s_nop 3"]
        for i in range(8):
            v_, l_ = idx_pair(0, 0, i)
            o += [W("l")] + ([v_[0], v_[1], "s_nop 0"] + v_[2:] if i < NTB[0] else v_) + l_
            if more:
                if i < 4:
                    for r_ in range(4*i, 4*i+4): o += ld_raw(1, 0, r_)
                if i == 6: o += [W("v")] + get_ea(1, 1, 128)
                if i == 7 and kind == "F": o += rd_l3(256)
            if i == 3: o += [W("v")] + mP(0, 1)
        return o + slot(0, 0, kind, acc=False) + [f"s_branch K2_MID{kind}0{cur['r']}"]
    def entry(kind):
        if SH: return entry_short(kind)
        more = kind != "L"
        o = rd_prog() + [W("v"), W("l")] + get_ea(0, 0, 0)
        if more: o += rd_prog()
        o += [W("l"), "@STAMP", mE(0, 0), mA(0, 0), mE(0, 1), mA(0, 1), "s_nop 7", W("v")] + mP(0, 0) + ["s_nop 3"]
        for i in range(8):
            v_, l_ = idx_pair(0, 0, i)
            o += [W("l")] + ([v_[0], v_[1], "s_nop 0"] + v_[2:] if i < NTB[0] else v_) + l_
            if more:
                for r_ in range(4*(i & 3), 4*(i & 3)+4): o += ld_raw(1, i >> 2, r_)
                if i >= 4: o.append(rd_addr(256, i-4))
                if i == 4: o += [W("v")] + get_ea(1, 1, 128) + rd_l3(256)
                if i == 7: o += dma_ea(0)
            if i == 3: o += [W("v")] + mP(0, 1)
        return o + slot(0, 0, kind, acc=False) + [f"s_branch K2_MID{kind}0{cur['r']}"]
    def drain(p): return ["s_nop 1"] + [mG(p, 1, j) for j in range(4)]
    def mk_fill():
        ad = [rd_addr(0, j) for j in range(4)]
        t0 = SP
        o = []
        if cur["r"] == "P":
            o = (rd_l3(0) + [f"ds_read_b32 v{t0}, v{vA3} offset:{L2+128}"])
        o += ad + [rd_l2(vOa, 0), rd_l2(t0+1, 128)]
        if cur["r"] == "P":
            o += ["s_waitcnt lgkmcnt(6)"] + dma_ea(0) + [f"v_mov_b32 v{vEa}, v{t0}"]
        d1 = dma_ea(1) if not SH else []
        late1 = OPT.get("d1", "1") == "1"
        o += ([] if late1 else d1) + ["s_waitcnt lgkmcnt(0)"] + ld_blk(0, 0) + oh_idx(0) + [f"v_mov_b32 v{vOa}, v{t0+1}"] + oh_idx(1) + ld_blk(0, 1) + (d1 if late1 else [])
        return o + [rd_addr(128, j) for j in range(4)]
    FI, B, EN, LA_ = {}, {}, {}, {}
    for r in "PC":
        cur["r"] = r
        FI[r] = mk_fill()
        for k in "FPL":
            EN[r, k] = entry(k)
            for p in range(2): B[r, p, k] = body(p, k)
        for p in range(2):
            for np_ in (2, 4, 6, 8): LA_[r, p, np_] = last(p, np_)
    def trace(r, cnt, np_=8):
        kinds = ["F"]*(cnt-2) + ["P", "L"][-min(cnt, 2):]
        tr = FI[r] + EN[r, kinds[0]] + B[r, 0, kinds[0]][1]
        for t in range(1, cnt-1): tr += B[r, t & 1, kinds[t]][0] + B[r, t & 1, kinds[t]][1]
        tr += drain(0) if cnt == 1 else LA_[r, (cnt-1) & 1, np_]
        o = []; keep = True; nd = 0
        for x in tr:
            if x == "@D{": keep = nd < cnt; nd += 1
            elif x == "@}": keep = True
            elif keep and x != "@STAMP": o.append(x)
        return o
    epi_head = ["s_branch x", "s_cmp", "s_cbranch", "s_waitcnt vmcnt(0) lgkmcnt(0)"] + [f"v_add_f32 v{ACC+r_}, 0, v{ACC+r_}" for r_ in range(6)]
    cases = [(r, c, n_) for c in range(1, 9) for r in "PC" for n_ in (2, 4, 6, 8)]
    need = asmsim.solve_waits([trace(*c) for c in cases])
    for c in cases: asmsim.check_hazards(asmsim.apply_waits(trace(*c), need) + epi_head, f"case {c}")
    def emit(l):
        for x in asmsim.apply_waits(l, need):
            if x == "@STAMP":
                stamp(a, 5); stamp(a, 5, "3"); stamp(a, 7, "4")
                if OPT.get("prof") == "7": a("s_memrealtime s[86:87]\ns_mov_b32 s98, 1")
                if OPT.get("prof") == "3": a(f"s_memtime s[86:87]\ns_mov_b32 s90, s{scount}\ns_getreg_b32 s92, hwreg(HW_REG_HW_ID)")
            elif x[0] != "@": a(x.split(";")[0])
    def main_loop(r):
        a(f"""
        K2_GO{r}:
        s_cmp_eq_u32 s{scount}, 0
        s_cbranch_scc1 K2_EMPTY
        s_cmp_gt_u32 s{scount}, 2
        s_cbranch_scc1 K2_ENTF{r}
        s_cmp_eq_u32 s{scount}, 2
        s_cbranch_scc1 K2_ENTP{r}
        """)
        emit(EN[r, "L"]); a(f"K2_ENTP{r}:"); emit(EN[r, "P"]); a(f"K2_ENTF{r}:"); emit(EN[r, "F"])
        a(".p2align 6")
        for p in range(2): emit(B[r, p, "F"][0] + B[r, p, "F"][1])
        a(f"s_branch K2_BODYF0{r}")
        emit(B[r, 0, "L"][1] + drain(0)); a("s_branch K2_DONE")
        for p in range(2):
            for np_ in (2, 4, 6): emit(LA_[r, p, np_]); a("s_branch K2_DONE")
        for p in range(2):
            emit(B[r, p, "P"][0] + B[r, p, "P"][1] + LA_[r, 1-p, 8])
            if p == 0 or r == "P": a("s_branch K2_DONE")
    def fill(n):
        a(f"s_cmp_eq_u32 s{scount}, 0\ns_cbranch_scc1 K2_FILLED{n}")
        emit(FI[n])
        a(f"K2_FILLED{n}:")
    def ap_addr():
        a(f"""
        v_bfe_u32 v{vt}, v0, 2, 2
        v_lshrrev_b32 v{vt+1}, 1, v{vH16}
        v_add_u32 v{vt}, v{vt}, v{vt+1}
        v_mul_u32_u24 v{vt}, {ROWP}, v{vt}
        v_bfe_u32 v{vt+2}, v0, 4, 1
        v_lshl_add_u32 v{vt}, v{vt+2}, 5, v{vt}
        v_and_b32 v{vt+2}, 3, v0
        v_lshl_add_u32 v{vt}, v{vt+2}, 3, v{vt}
        s_mul_i32 s{st0}, s{sg}, {GN*ROWP}
        s_lshl_b32 s{st1}, s{sfh}, 7
        s_add_u32 s{st0}, s{st0}, s{st1}
        v_add_u32 v{vt}, s{st0}, v{vt}
        v_mul_u32_u24 v{vt+1}, {ROWP//2}, v{vt+1}
        v_and_b32 v{vt+2}, 31, v0
        v_lshl_add_u32 v{vt+1}, v{vt+2}, 2, v{vt+1}
        v_add_u32 v{vt+1}, s{st0}, v{vt+1}
        """)
    def ap_read():
        a(f"""
        ds_read_b64_tr_b16 {vr(AP,2)}, v{vt} offset:{APL}
        ds_read_b64_tr_b16 {vr(AP+2,2)}, v{vt} offset:{APL+4*ROWP}
        ds_read_b64_tr_b16 {vr(AP+4,2)}, v{vt} offset:{APL+64}
        ds_read_b64_tr_b16 {vr(AP+6,2)}, v{vt} offset:{APL+4*ROWP+64}
        """)
        for r in range(6): a(f"ds_read_b32 v{UR+r}, v{vt+1} offset:{UL+ROWP*rowoff(r)}")
        a(f"""
        s_waitcnt lgkmcnt(6)
        v_and_b32 v{AP+3}, v{AP+3}, v{vM15}
        v_and_b32 v{AP+7}, v{AP+7}, v{vM15}
        """)
    def init_addr():
        for r in range(16): a(f"v_mov_b32 v{ADDR+r}, 128")
    def zero_acc():
        for r in range(32): a(f"v_mov_b32 v{ACC+r}, 0")

    a(f"s_cmp_lg_u32 s{sfh}, 0\ns_cbranch_scc1 K2_LOADER")
    ld_wc()
    a.ext(common1(SP, vt))
    a(f"v_and_b32 v{vt+3}, 15, v0\nv_lshlrev_b32 v{vt+3}, 4, v{vt+3}\nv_bfe_u32 v{vt+4}, v0, 4, 2\nv_lshl_add_u32 v{vt+3}, v{vt+4}, 10, v{vt+3}\ns_lshl_b32 s{st0}, s{sg}, 8\nv_add_u32 v{vt+3}, s{st0}, v{vt+3}")
    a(f"v_add_u32 v{vt+4}, 40960, v{vt+3}")
    for val, rg, runs in ((0x3f003f00, EA, (0, 3, 32, 35)), (0, EA+4, (23, 27)), (0x3f803f80, OH, (51, 55, 59))):
        for j in range(4): a(f"v_mov_b32 v{rg+j}, {val:#x}")
        for c0 in runs:
            a(f"ds_write_b128 v{vt+4 if c0 >= 24 else vt+3}, {vr(rg,4)} offset:{LUTL + 1024*(c0 - (40 if c0 >= 24 else 0))}")
    a(f"""
    v_and_b32 v{vt+3}, 127, v0
    v_bfe_u32 v{vt+4}, v0, 2, 4
    v_and_b32 v{Z+4}, 3, v0
    v_lshrrev_b32 v{Z+5}, 6, v{vt+3}
    v_lshlrev_b32 v{vt+3}, 2, v{vt+3}
    v_lshl_add_u32 v{Z+4}, v{Z+5}, 2, v{Z+4}
    v_lshlrev_b32 v{Z+5}, 1, v{Z+4}
    v_mov_b32 v{Z+6}, 0x3f80
    v_mov_b32 v{Z+7}, 0x3f800000
    v_cmp_eq_u32 vcc, v{Z+5}, v{vt+4}
    v_add_u32 v{Z+5}, 1, v{Z+5}
    s_nop 0
    v_cndmask_b32 v{Z+8}, 0, v{Z+6}, vcc
    v_cmp_eq_u32 vcc, v{Z+5}, v{vt+4}
    v_cmp_eq_u32 s[78:79], 7, v{Z+4}
    s_or_b64 vcc, vcc, s[78:79]
    s_nop 1
    v_cndmask_b32 v{Z+9}, 0, v{Z+7}, vcc
    v_or_b32 v{Z+8}, v{Z+8}, v{Z+9}
    v_cmp_gt_u32 vcc, 15, v{vt+4}
    s_nop 1
    v_cndmask_b32 v{Z+8}, 0, v{Z+8}, vcc
    ds_write_b32 v{vt+3}, v{Z+8} offset:{OHL}
    """)
    a(f"""
    v_mul_u32_u24 v{EOFF}, {CS*32}, v{vt+1}
    v_add_u32 v{EOFF+1}, {64*CS*32}, v{EOFF}
    v_mov_b32 v{vt+3}, 4
    """)
    init_addr()
    a("s_waitcnt vmcnt(2)")
    stamp(a, 2); stamp(a, 1, "5")
    a(f"""
    v_cmp_eq_u32 vcc, -2, v{REC+11}
    v_cmp_eq_u32 s[78:79], -2, v{REC+15}
    s_or_b64 vcc, vcc, s[78:79]
    s_cbranch_vccz K2_NOOVF
    v_mov_b32 v{vt+4}, 0x10000
    v_mov_b32 v{vt}, 60
    ds_add_u32 v{vt}, v{vt+4} offset:{CNT}
    K2_NOOVF:
    """)
    M = [68, 70, 72, 74, 76, 78]
    KS = [[4*u+i for i in range(4)] + [8+4*u, 9+4*u] for u in range(2)]
    def masked(u, fn):
        for j, k in enumerate(KS[u]): a(f"v_cmp_gt_u32 {sr(M[j],2)}, -2, v{REC+k}")
        for j, k in enumerate(KS[u]): a(f"s_mov_b64 exec, {sr(M[j],2)}\n{fn(k, 6*u+j)}")
        a("s_mov_b64 exec, -1")
    for k in KS[0] + KS[1]: a(caddr(k))
    for u in range(2): masked(u, lambda k, j: f"ds_add_rtn_u32 v{RANK+k}, v{CADDR+k}, v{vt+3} offset:{CNT}")
    a(f"v_min_u32 v{vt+4}, v{REC+10}, v{REC+14}\nv_cmp_gt_u32 s[26:27], -2, v{vt+4}")
    LA, LB = raw(0, 0), raw(0, 1)
    for u in range(2):
        for j, k in enumerate(KS[u]):
            a(f"v_bfe_u32 v{LA+6*u+j}, v{REC+k}, 16, {5 if 't' in OPT.get('nomem','') else 14}\nv_mad_u32_u16 v{LB+6*u+j}, v{REC+k}, 2, v{EOFF+u}")
    for j in range(12): a(f"v_mul_u32_u24 v{LA+j}, s{csrc}, v{LA+j}")
    def steps(tag, fn):
        a(f"s_cmp_eq_u64 s[26:27], 0\ns_cbranch_scc1 K2_{tag}1\ns_waitcnt lgkmcnt(0)")
        for u in range(2):
            for k in (10+4*u, 11+4*u):
                a(f"v_cmpx_gt_u32 vcc, -2, v{REC+k}\ns_cbranch_execz K2_{tag}{u}")
                fn(k, u)
            a(f"K2_{tag}{u}:\ns_mov_b64 exec, -1")
    steps("C", lambda k, u: a(f"{caddr(k)}\nds_add_rtn_u32 v{RANK+k}, v{CADDR+k}, v{vt+3} offset:{CNT}"))
    stamp(a, 2, "5")
    spin(0, "A")
    stamp(a, 3, "5")
    scan(True, KS[0] + KS[1])
    a("s_waitcnt lgkmcnt(1)")
    stamp(a, 4, "5")
    for j, k in enumerate(KS[0] + KS[1]): a(f"v_add_u32 v{STV+j}, v{STV+j}, v{RANK+k}")
    for j, k in enumerate(KS[0] + KS[1]): a(f"v_lshlrev_b32 v{RANK+k}, 3, v{STV+j}")
    for j, k in enumerate(KS[0] + KS[1]): a(f"v_and_or_b32 v{LA+j}, v{RANK+k}, s{c128}, v{LA+j}")
    for u in range(2): masked(u, lambda k, j: f"ds_write2st64_b32 v{STV+j}, v{LA+j}, v{LB+j} offset0:{L1//256} offset1:{L2//256}")
    def put_step(k, u):
        a(f"ds_read_b32 v{STV+12}, v{CADDR+k} offset:{START}\ns_waitcnt lgkmcnt(0)")
        place(k, STV+12, EOFF+u)
    steps("P", put_step)
    stamp(a, 5, "5")
    lane_setup()
    stamp(a, 6, "5")
    spin(1, "B")
    stamp(a, 3); stamp(a, 7, "5")
    a("K2_REFILLP:")
    fill("P")
    stamp(a, 4)
    a(f"s_cmp_lg_u32 s{sslow}, 0\ns_cbranch_scc1 K2_GOP")
    zero_acc()
    ap_addr()
    spin(3, "D", add=False)
    ap_read()
    main_loop("P")
    a("K2_GIVEUP:")
    zero_acc()
    arrive(1)
    spin(3, "E", add=False)
    a("s_branch K2_SLOW")
    assert XL % 256 == 0
    XF = G; WT = [ACC, raw(0, 0)]
    accs = [[[raw(1,0)+8*nb, raw(1,0)+8*nb+4] for nb in range(3)], [[raw(1,1)+8, raw(1,1)+12], [SP, SP+4], [SP+8, ADDR]]]
    a(f"""
    K2_LOADER:
    v_lshrrev_b32 v{vt+4}, 4, v{vt}
    s_lshl_b32 s{st1}, s{sg}, 2
    v_add_u32 v{vA1}, s{st1}, v{vt+4}
    v_and_b32 v{vt+5}, 15, v0
    v_xor_b32 v{vA1}, v{vA1}, v{vt+5}
    v_lshlrev_b32 v{vA1}, 4, v{vA1}
    v_lshl_add_u32 v{vA1}, v{vt+4}, 8, v{vA1}
    s_lshl_b32 s{st1}, s{sg}, 10
    """)
    for k in range(3):
        a(f"""
        s_add_u32 m0, s{st1}, {XL+4096*k}
        s_add_u32 s{st2}, s{st1}, {4096*k}
        buffer_load_dwordx4 v{vA1}, {sr(sX,4)}, s{st2} offen lds
        """)
    stamp(a, 1, "6")
    srot = sk
    a(f"s_lshl_b32 s{slut}, s{sg}, 13\ns_lshr_b32 s{srt}, s2, 3")
    for j in range(4):
        a(f"s_add_u32 s{srot+j}, s{srt}, {j}\ns_and_b32 s{srot+j}, s{srot+j}, 3\ns_lshl_b32 s{srot+j}, s{srot+j}, 10\ns_add_u32 s{st2}, s{slut}, s{srot+j}")
        for m in range(2):
            for hf in range(2):
                a(f"buffer_load_dwordx4 {vr(WT[m]+16*hf+4*j,4)}, v{vA2}, {sr(sWT,4)}, s{st2} offen")
                if (m, hf) != (1, 1): a(f"s_add_u32 s{st2}, s{st2}, {4096 if hf == 0 else 32768-4096}")
    stamp(a, 2, "6")
    a(f"""
    s_lshl_b32 s{st0}, s{sg}, 12
    s_add_u32 m0, s{st0}, {LUTL + 7*1024}
    s_add_u32 s{st2}, s{st0}, {LUT_OFF - WT_OFF + 7*1024}
    """)
    for j in range(4): a(f"buffer_load_dwordx4 v{vA2}, {sr(sWT,4)}, s{st2} offen offset:{1024*j} lds")
    a(f"""
    s_mul_i32 s{st0}, s{sg}, 3072
    s_add_u32 m0, s{st0}, {LUTL + 39*1024}
    s_add_u32 s{st2}, s{st0}, {LUT_OFF - WT_OFF + 39*1024}
    """)
    for j in range(3): a(f"buffer_load_dwordx4 v{vA2}, {sr(sWT,4)}, s{st2} offen offset:{1024*j} lds")
    a(f"""
    s_and_b32 s{st0}, s{sg}, 1
    s_lshl_b32 s{st0}, s{st0}, 15
    s_add_u32 m0, s{st0}, {LUTL + 31*1024}
    s_add_u32 s{st2}, s{st0}, {LUT_OFF - WT_OFF + 31*1024}
    buffer_load_dwordx4 v{vA2}, {sr(sWT,4)}, s{st2} offen lds
    """)
    ld_wc()
    stamp(a, 3, "6")
    a(f"""
    s_waitcnt vmcnt(26)
    """)
    arrive(2)
    a(f"""
    v_mov_b32 v{vt+8}, v{vt}
    v_and_b32 v{vt}, 15, v0
    v_bfe_u32 v{vt+1}, v0, 4, 2
    v_xor_b32 v{vt+2}, v{vt}, v{vt+1}
    v_lshlrev_b32 v{vt+2}, 4, v{vt+2}
    v_lshl_add_u32 v{vt+2}, v{vt}, 8, v{vt+2}
    v_add_u32 v{vt+2}, {XL}, v{vt+2}
    v_mul_u32_u24 v{vt}, {ROWP}, v{vt}
    """)
    stamp(a, 2); stamp(a, 5, "6")
    spin(2, "C", add=False)
    stamp(a, 6, "6")
    for s in range(4):
        a(f"s_lshr_b32 s{st0}, s{srot+s}, 4\nv_xor_b32 v{vt+3}, s{st0}, v{vt+2}")
        for nb in range(3):
            a(f"ds_read_b128 {vr(XF+16*nb+4*s,4)}, v{vt+3} offset:{4096*nb}")
    a(f"""
    s_lshr_b32 s{st0}, s{sg}, 1
    s_lshl_b32 s{st0}, s{st0}, 7
    s_and_b32 s{st1}, s{sg}, 1
    s_lshl_b32 s{st1}, s{st1}, 5
    s_add_u32 s{st0}, s{st0}, s{st1}
    v_lshl_add_u32 v{vt+4}, v{vt+1}, 3, v{vt}
    v_add_u32 v{vt+4}, s{st0}, v{vt+4}
    s_lshl_b32 s{st0}, s{sg}, 6
    v_lshl_add_u32 v{vt+5}, v{vt+1}, 4, v{vt}
    v_add_u32 v{vt+5}, s{st0}, v{vt+5}
    """)
    def mm1(m, s):
        return [f"v_mfma_f32_16x16x32_bf16 {vr(accs[m][nb][ab], 4)}, {vr(WT[m]+16*ab+4*s,4)}, {vr(XF+16*nb+4*s,4)}, {'0' if s == 0 else vr(accs[m][nb][ab], 4)}"
                for nb in range(3) for ab in range(2)]
    outA = []
    for nb in range(3):
        al, be = accs[0][nb]; o = EA+ (0 if nb != 1 else 4)
        for i in range(4): outA += [f"v_mul_f32 v{al+i}, s{cnl2e}, v{al+i}", f"v_mul_f32 v{be+i}, s{cnl2e}, v{be+i}"]
        outA += [f"v_cvt_pk_bf16_f32 v{o}, v{al}, v{al+2}", f"v_cvt_pk_bf16_f32 v{o+1}, v{be}, v{be+2}",
                 f"v_cvt_pk_bf16_f32 v{o+2}, v{al+1}, v{al+3}", f"v_cvt_pk_bf16_f32 v{o+3}, v{be+1}, v{be+3}",
                 f"ds_write_b64 v{vt+4}, {vr(o,2)} offset:{APL+16*ROWP*nb}", f"ds_write_b64 v{vt+4}, {vr(o+2,2)} offset:{APL+16*ROWP*nb+64}"]
    NPF = int(OPT.get("tpf", "0"))
    if NPF:
        srd(a, sS, 14, T_OFF, N*TS)
        a(f"""
        s_bfe_u32 s{st0}, s2, 0x50003
        s_lshl_b32 s{st0}, s{st0}, 2
        s_add_u32 s{st0}, s{st0}, s{sg}
        s_lshl_b32 s{st0}, s{st0}, 13
        v_lshlrev_b32 v{vt+9}, 7, v{vt+8}
        """)
        for j in range(NPF):
            a(f"buffer_load_dword v{vt+10}, v{vt+9}, {sr(sS,4)}, s{st0} offen")
            if j+1 < NPF: a(f"s_add_u32 s{st0}, s{st0}, {1 << 20}")
    g = []; cm = common1(XR+1, vt+8); k = 0
    for s in range(4):
        g.append(f"s_waitcnt vmcnt({22-4*s+NPF}) lgkmcnt({9-3*s})")
        for x in mm1(0, s) + (mm1(1, s) if s < 3 else []):
            g.append(x); g += cm[k:k+3]; k += 3
    assert k >= len(cm)
    k = 0
    for j, x in enumerate(mm1(1, 3)):
        g.append(x)
        if j >= 2: g += outA[k:k+3]; k += 3
    g += outA[k:]
    for nb in range(3):
        al, be = accs[1][nb]; o = XF+4*nb
        g += [f"v_cvt_pk_bf16_f32 v{o}, v{al}, v{al+1}", f"v_cvt_pk_bf16_f32 v{o+1}, v{al+2}, v{al+3}",
              f"v_cvt_pk_bf16_f32 v{o+2}, v{be}, v{be+1}", f"v_cvt_pk_bf16_f32 v{o+3}, v{be+2}, v{be+3}",
              f"ds_write_b128 v{vt+5}, {vr(o,4)} offset:{UL+16*ROWP*nb}"]
    asmsim.check_hazards(g, "gemm")
    a.ext(g)
    a(f"s_waitcnt vmcnt({NPF})")
    arrive(3)
    stamp(a, 3); stamp(a, 7, "6")
    zero_acc()
    init_addr()
    spin(1, "F", add=False)
    a(f"""
    v_mov_b32 v{vt+2}, {INCL+60}
    ds_read2_b32 {vr(vt+4,2)}, v{vt+2} offset0:0 offset1:16
    ds_read2_b32 {vr(vt+6,2)}, v{vt+2} offset0:32 offset1:48
    s_waitcnt lgkmcnt(0)
    """)
    for g_ in range(4): a(f"v_readfirstlane_b32 s{sk+g_}, v{vt+4+g_}")
    a(f"""
    s_max_u32 s{st0}, s{sk}, s{sk+1}
    s_max_u32 s{st1}, s{sk+2}, s{sk+3}
    s_max_u32 s{st0}, s{st0}, s{st1}
    s_cmp_gt_u32 s{st0}, {CAPG*4}
    s_cbranch_scc1 K2_SLOW
    """)
    a("s_setprio 1")
    rank_groups()
    lane_setup()
    a("K2_REFILLC:")
    fill("C")
    a(f"s_cmp_lg_u32 s{sslow}, 0\ns_cbranch_scc1 K2_GOC")
    ap_addr()
    spin(3, "G", add=False)
    ap_read()
    stamp(a, 4)
    a("s_branch K2_GOC")
    a("K2_EMPTY:"); a.ext(ld_xr()); a("s_branch K2_DONE")
    for n in spins:
        a(f"""
        K2_SP{n}:
        ds_read_b32 v{vEa}, v{vPG}
        s_waitcnt lgkmcnt(0)
        v_cmp_gt_u32 vcc, s{sneed}, v{vEa}
        s_cbranch_vccnz K2_SP{n}
        s_branch K2_OK{n}
        """)
    main_loop("C")
    a(f"""
    K2_DONE:
    s_cmp_lg_u32 s{sslow}, 0
    s_cbranch_scc1 K2_ROUND
    K2_EPI:
    s_waitcnt vmcnt(0) lgkmcnt(0)
    """)
    stamp(a, 6); stamp(a, 6, "3")
    if OPT.get("prof") == "3": a("s_memtime s[88:89]")
    T0 = G
    for b in range(2):
        for r in range(6):
            a(f"v_add_f32 v{ACC+16*b+r}, 0x358637bd, v{ACC+16*b+r}")
        for r in range(6):
            a(f"v_rcp_f32 v{ACC+16*b+r}, v{ACC+16*b+r}")
        for r in range(6):
            u, x = T0+12*b+r, T0+12*b+6+r
            if b == 0: a(f"v_lshlrev_b32 v{u}, 16, v{UR+r}\nv_lshlrev_b32 v{x}, 16, v{XR+r}")
            else: a(f"v_and_b32 v{u}, 0xffff0000, v{UR+r}\nv_and_b32 v{x}, 0xffff0000, v{XR+r}")
        for r in range(6):
            u, x = T0+12*b+r, T0+12*b+6+r
            a(f"v_fmac_f32 v{u}, v{ACC+16*b+8+r}, v{ACC+16*b+r}\nv_max_f32 v{u}, 0, v{u}\nv_add_f32 v{u}, v{u}, v{x}")
    a(f"v_lshl_or_b32 v{vO2}, v{vH16}, 27, v{vO}")
    for r in range(6):
        a(f"v_cvt_pk_bf16_f32 v{SP+r}, v{T0+r}, v{T0+12+r}")
        a(f"buffer_store_dword v{SP+r}, v{vO if r < 4 else vO2}, {sr(sO,4)}, 0 offen offset:{256*rowoff(r)} {OPT.get('st_o', '')}")
    stamp(a, 7)
    stamp_out(a, 1, 14, sw, 2)
    a("K2_END:\ns_endpgm")

    a("K2_SLOW:")
    srd(a, sS, 8, None, E*4)
    srd(a, sD, 10, None, E*4)
    a(f"""
    s_mov_b32 s{sslow}, 1
    s_mov_b32 s{cm10}, {-GN}
    """)
    a("s_waitcnt vmcnt(0) lgkmcnt(0)\ns_barrier")
    lane_setup(); ap_addr(); ap_read()
    a(f"""
    K2_ROUND:
    s_cmp_ge_u32 s{sround}, {E//RND}
    s_cbranch_scc1 K2_EPI
    s_mul_i32 s{st0}, s{sround}, {RND}
    s_add_u32 s{sround}, s{sround}, 1
    v_add_u32 v{EOFF}, s{st0}, v0
    v_lshlrev_b32 v{vt}, 2, v{EOFF}
    buffer_load_dword v{REC}, v{vt}, {sr(sD,4)}, 0 offen
    buffer_load_dword v{REC+1}, v{vt}, {sr(sS,4)}, 0 offen
    v_lshlrev_b32 v{EOFF}, 5, v{EOFF}
    v_and_b32 v{vt}, 63, v0
    v_lshlrev_b32 v{vt}, 3, v{vt}
    v_mov_b32 v{vt+4}, 0
    v_mov_b32 v{vt+5}, 0
    s_waitcnt lgkmcnt(0)
    s_barrier
    ds_write_b64 v{vt}, {vr(vt+4,2)} offset:{CNT}
    v_mov_b32 v{vt+3}, 4
    s_waitcnt vmcnt(0) lgkmcnt(0)
    s_barrier
    """)
    rec_fields(a, REC, REC+2, vt, cm40, cm10)
    a(f"""
    v_cmp_eq_u32 vcc, s2, v{REC+2}
    v_lshl_or_b32 v{REC}, v{REC+1}, 16, v{REC}
    {caddr(0)}
    s_mov_b64 s[78:79], vcc
    v_cmp_gt_u32 vcc, {RND}, v0
    s_and_b64 s[78:79], s[78:79], vcc
    s_mov_b64 exec, s[78:79]
    ds_add_rtn_u32 v{RANK}, v{CADDR}, v{vt+3} offset:{CNT}
    s_mov_b64 exec, -1
    s_waitcnt lgkmcnt(0)
    s_barrier
    """)
    scan(False)
    a(f"""
    s_mov_b64 exec, s[78:79]
    ds_read_b32 v{STV}, v{CADDR} offset:{START}
    s_waitcnt lgkmcnt(0)
    """)
    place(0, STV, EOFF)
    a(f"""
    s_mov_b64 exec, -1
    """)
    lane_setup()
    a(f"""
    s_waitcnt lgkmcnt(0)
    s_barrier
    s_cmp_eq_u32 s{sfh}, 0
    s_cbranch_scc1 K2_REFILLP
    s_branch K2_REFILLC
    K2_CODE_END:
    """)
    return a.text(), kd("k2_kernel", 256, 102)

KE_PROF = f"""
    s_memrealtime s[8:9]
    s_load_dwordx2 s[4:5], s[0:1], 88
    s_waitcnt lgkmcnt(0)
    s_add_u32 s4, s4, {PROF_OFF + 0x200000}
    s_addc_u32 s5, s5, 0
    s_mov_b32 s6, 4
    s_mov_b32 s7, 0x20000
    v_mov_b32 v1, s8
    v_lshlrev_b32 v0, 2, v0
    buffer_store_dword v1, v0, s[4:7], 0 offen
"""
def gen_kr():
    a = Asm()
    a(f"""
    kr_kernel:
    s_cmp_ge_u32 s2, 1
    s_cbranch_scc1 KR_END
    s_load_dwordx4 s[4:7], s[0:1], 80
    s_waitcnt lgkmcnt(0)
    s_add_u32 s8, s6, {PROF_OFF}
    s_addc_u32 s9, s7, 0
    s_mov_b32 s10, 0x200000
    s_mov_b32 s11, 0x20000
    s_mov_b32 s6, 256
    s_mov_b32 s7, 0x20000
    v_cmp_gt_u32 vcc, 250, v0
    s_and_saveexec_b64 s[12:13], vcc
    v_lshlrev_b32 v1, 10, v0
    v_mov_b32 v3, 0
    """)
    sel = [(0, 8, 0, 1), (0, 8, 0, 0), (0, 8, 2, 0), (0, 8, 3, 0), (0, 8, 5, 0), (0, 8, 8, 0),
           (1, 8, 0, 1), (1, 8, 0, 0), (1, 8, 2, 0), (1, 8, 3, 0), (1, 8, 5, 1), (1, 8, 5, 0), (1, 8, 6, 1), (1, 8, 6, 0), (1, 8, 8, 0)]
    w0 = 0
    if OPT.get("krsel"):
        w0, st_, mn_ = [int(x) for x in OPT["krsel"].split(",")]
        sel = [(1, 4, 0, 1), (1, 4, st_, mn_)]
    for j, (kn, nw, st, mn) in enumerate(sel):
        a(f"s_mov_b32 s14, {kn*0x100000 + 64*w0}")
        for w in range(nw): a(f"buffer_load_dword v{10+w}, v1, s[8:11], s14 offen offset:{64*w+4*st}")
        a("s_waitcnt vmcnt(0)")
        if mn:
            for w in range(nw): a(f"v_not_b32 v{10+w}, v{10+w}")
        for w in range(1, nw): a(f"v_max_u32 v10, v10, v{10+w}")
        a(f"buffer_atomic_umax v10, v3, s[4:7], 0 offen offset:{4*j}\ns_waitcnt vmcnt(0)")
    if OPT.get("iv"):
        ja, jb, k = [int(x) for x in OPT["iv"].split(",")]
        a(f"""
        s_barrier
        buffer_load_dword v10, v3, s[4:7], 0 offen offset:{4*ja} sc0 sc1
        buffer_load_dword v11, v3, s[4:7], 0 offen offset:{4*jb} sc0 sc1
        s_waitcnt vmcnt(0)
        v_readfirstlane_b32 s16, v10
        v_readfirstlane_b32 s17, v11
        """)
        if sel[ja][3]: a("s_not_b32 s16, s16")
        if sel[jb][3]: a("s_not_b32 s17, s17")
        a(f"""
        s_sub_u32 s16, s16, s17
        s_min_u32 s16, s16, 10000
        s_mul_i32 s16, s16, {k}
        s_memrealtime s[18:19]
        s_waitcnt lgkmcnt(0)
        KR_SPIN:
        s_memrealtime s[20:21]
        s_waitcnt lgkmcnt(0)
        s_sub_u32 s20, s20, s18
        s_cmp_lt_u32 s20, s16
        s_cbranch_scc1 KR_SPIN
        """)
    a("KR_END:\ns_endpgm")
    return a.text()

def main():
    k1, d1 = gen_k1(); k2, d2 = gen_k2()
    ref = open("standalone__edge_featured_mpnn_gatedgcn__graph.s.ref").read().split("\n")
    out = "\n".join(ref[:13]) + "\n"
    for ch in OPT.get("list", "12"):
        if ch == "1": out += f"; @launch kernel=k1_kernel grid=({2*NCH},1,1) block=(1024,1,1) lds={K1_LDS}\n"
        if ch == "2": out += f"; @launch kernel=k2_kernel grid=({NBIN},1,1) block=(512,1,1) lds={K2_LDS}\n"
        if ch == "r": out += "; @launch kernel=kr_kernel grid=(1,1,1) block=(256,1,1) lds=0\n"
        if ch == "e": out += "; @launch kernel=ke_kernel grid=(1,1,1) block=(64,1,1) lds=0\n"
    out += '.amdgcn_target "amdgcn-amd-amdhsa--gfx950"\n.text\n'
    for n, k in (("k1_kernel", k1), ("k2_kernel", k2)):
        out += f".globl {n}\n.p2align 8\n.type {n},@function\n" + k
    if "e" in OPT.get("list", ""): out += ".globl ke_kernel\n.p2align 8\n.type ke_kernel,@function\nke_kernel:\n" + (KE_PROF if OPT.get("prof") else "") + "    s_endpgm\n"
    if "r" in OPT.get("list", ""): out += ".globl kr_kernel\n.p2align 8\n.type kr_kernel,@function\n" + gen_kr()
    out += '.section .rodata,"a"\n.p2align 6\n' + d1.lstrip("\n") + '.p2align 6\n' + d2.lstrip("\n")
    if "e" in OPT.get("list", ""): out += '.p2align 6\n' + kd("ke_kernel", 8, 16).lstrip("\n")
    if "r" in OPT.get("list", ""): out += '.p2align 6\n' + kd("kr_kernel", 32, 32).lstrip("\n")
    open(sys.argv[1], "w").write(out)

if __name__ == "__main__":
    main()
```

```python
import struct, sys
import asmsim

N = 10000; E = 320000
NCH = 128; CS = 2500
NBIN = 256; GN = 10
BINK, BINC, BINS = 53687, 52500, 21
assert all((625*b_ >> 4) <= d_ < (625*(b_+1) >> 4) for d_ in range(N) for b_ in [(d_*BINK + BINC) >> BINS])
CAP = 32
TS = int(([a for a in sys.argv if a.startswith('ts=')] or ['ts=512'])[0][3:])
T_OFF = 0x1000000
REC_OFF = 0x700000
WT_OFF = 0xB00000
LUT_OFF = 0xB20000
PROF_OFF = 0xF000000
NL2E = struct.unpack("<I", struct.pack("<f", -1.4426950408889634))[0]

def bf(x): return struct.unpack("<I", struct.pack("<f", x))[0] >> 16

OPT = dict(st_r="sc1", st_t="sc1")
for a in sys.argv[2:]:
    k, v = a.split("=", 1); OPT[k] = v

class Asm:
    def __init__(self): self.l = []
    def __call__(self, s):
        for x in s.strip("\n").split("\n"):
            x = x.strip()
            if not x: continue
            if x.startswith(";"): x = "s_nop 0"
            self.l.append(x if x.endswith(":") else "    " + x)
    def ext(self, lst):
        for x in lst: self(x)
    def text(self): return "\n".join(self.l) + "\n"

def stamp(a, i, lvl="1"):
    if OPT.get("prof") and (i in (0, 8) or OPT["prof"] == lvl): a(f"s_memrealtime s[{84+2*i}:{85+2*i}]")
def stamp_out(a, kern, wsreg, sw, vtmp):
    if not OPT.get("prof"): return
    a("s_waitcnt vmcnt(0)")
    stamp(a, 8)
    a(f"""
    s_lshl_b32 s4, s2, 4
    s_add_u32 s4, s4, s{sw}
    s_lshl_b32 s4, s4, 6
    s_add_u32 s4, s4, {PROF_OFF + kern*0x100000}
    s_add_u32 s4, s{wsreg}, s4
    s_addc_u32 s5, s{wsreg+1}, 0
    s_mov_b32 s6, 64
    s_mov_b32 s7, 0x20000
    s_waitcnt lgkmcnt(0)
    """)
    if kern == 1 and OPT["prof"] == "7":
        a(f"v_mov_b32 v{vtmp}, v251\nv_writelane_b32 v{vtmp}, s84, 0\ns_mov_b32 m0, s98\ns_add_u32 s98, s98, 1\nv_writelane_b32 v{vtmp}, s86, m0\ns_mov_b32 m0, s98\ns_nop 3\nv_writelane_b32 v{vtmp}, s100, m0\nv_writelane_b32 v{vtmp}, s98, 15")
    else:
        for i in range(9): a(f"v_writelane_b32 v{vtmp}, s{84+2*i}, {i}")
    a(f"""
    v_mbcnt_lo_u32_b32 v{vtmp+1}, -1, 0
    v_mbcnt_hi_u32_b32 v{vtmp+1}, -1, v{vtmp+1}
    v_lshlrev_b32 v{vtmp+1}, 2, v{vtmp+1}
    buffer_store_dword v{vtmp}, v{vtmp+1}, s[4:7], 0 offen
    """)

def vr(b, n): return f"v[{b}:{b+n-1}]"
def sr(b, n): return f"s[{b}:{b+n-1}]"

def srd(a, d, base, add=None, size=None, w3="0x20000", hi_or=None):
    if add is None:
        a(f"s_mov_b32 s{d}, s{base}\ns_mov_b32 s{d+1}, s{base+1}")
    else:
        a(f"s_add_u32 s{d}, s{base}, {add}\ns_addc_u32 s{d+1}, s{base+1}, 0")
    if hi_or: a(f"s_or_b32 s{d+1}, s{d+1}, {hi_or}")
    a(f"s_mov_b32 s{d+2}, {size}\ns_mov_b32 s{d+3}, {w3}")

def kd(name, vgpr, sgpr):
    return f"""
.amdhsa_kernel {name}
  .amdhsa_next_free_vgpr {vgpr}
  .amdhsa_next_free_sgpr {sgpr}
  .amdhsa_accum_offset {(vgpr+3)//4*4}
  .amdhsa_group_segment_fixed_size 0
  .amdhsa_kernarg_size 96
  .amdhsa_user_sgpr_count 2
  .amdhsa_user_sgpr_kernarg_segment_ptr 1
  .amdhsa_system_sgpr_workgroup_id_x 1
.end_amdhsa_kernel
"""

def pair_of_lane(a, d, t):
    a(f"""
    v_and_b32 v{d}, 17, v0
    v_lshlrev_b32 v{d}, 2, v{d}
    v_bfe_u32 v{t}, v0, 1, 1
    v_lshl_add_u32 v{d}, v{t}, 5, v{d}
    v_bfe_u32 v{t}, v0, 2, 2
    v_lshl_add_u32 v{d}, v{t}, 3, v{d}
    """)

def rec_fields(a, vd, vbin, vtmp, sm40, sm10):
    a(f"""
    v_mul_u32_u24 v{vbin}, {BINK}, v{vd}
    v_add_u32 v{vbin}, {BINC}, v{vbin}
    v_lshrrev_b32 v{vbin}, {BINS}, v{vbin}
    v_mul_u32_u24 v{vtmp}, 625, v{vbin}
    v_lshrrev_b32 v{vtmp}, 4, v{vtmp}
    v_sub_u32 v{vd}, v{vd}, v{vtmp}
    v_mul_u32_u24 v{vtmp}, 26, v{vd}
    v_lshrrev_b32 v{vtmp}, 8, v{vtmp}
    v_mad_i32_i24 v{vd}, v{vtmp}, s{sm10}, v{vd}
    v_lshl_or_b32 v{vd}, v{vtmp}, 30, v{vd}
    """)

K1_CNT = 0; K1_STG = 1024; K1_W = 34816; K1_X = K1_W + 32768; K1_LDS = K1_X + 24576
RLO, RHI = 96, 64
def gen_k1():
    a = Asm()
    sS, sD, sW1, sW2, sX, sR, sT, sP = 24, 28, 32, 36, 40, 44, 48, 72
    sw, st0, st1, st2, snb, sfb, sch, shf, srow, snr = 52, 53, 54, 55, 56, 57, 58, 69, 71, 76
    c8192, cm10, cnl2e, csign, cmag, ctso, cp0 = 60, 62, 63, 64, 65, 66, 67
    vD, vS, vB, vSL, vt = 4, 12, 20, 28, 36
    vg = 56; vTR, vXA, vST = 64, 65, 66; vWC = 72
    vW, vX, vA, vO = 96, 160, 176, 192
    def W(m, ab, s): return vW + 32*m + 16*ab + 4*s
    a("k1_kernel:")
    a(f"s_cmp_ge_u32 s2, {2*NCH}\ns_cbranch_scc1 K1_END")
    stamp(a, 0)
    a(f"""
    s_load_dwordx16 s[4:19], s[0:1], 0
    s_load_dwordx2 s[20:21], s[0:1], 64
    s_load_dwordx2 s[22:23], s[0:1], 88
    """)
    if OPT.get("pf1", "0") == "1":
        a(f"""
        s_getpc_b64 {sr(sP,2)}
        K1_PC1:
        s_mov_b32 s{sP+2}, K1_END-K1_PC1
        s_mov_b32 s{sP+3}, 0x20000
        v_lshlrev_b32 v33, 7, v0
        buffer_load_dword v34, v33, {sr(sP,4)}, 0 offen
        """)
    a(f"""
    v_lshrrev_b32 v2, 6, v0
    v_lshlrev_b32 v1, 2, v0
    v_readfirstlane_b32 s{sw}, v2
    v_lshlrev_b32 v2, 4, v0
    s_mov_b32 s{c8192}, 8192
    s_sub_u32 s{sch}, s2, {NCH}
    s_and_b32 s{shf}, s2, 1
    v_and_b32 v{vg}, 63, v0
    v_lshrrev_b32 v{vg+1}, 4, v{vg}
    v_and_b32 v{vg+2}, 15, v0
    s_and_b32 s{st0}, s{sw}, 3
    s_lshl_b32 s{st0}, s{st0}, 2
    v_add_u32 v{vg+3}, s{st0}, v{vg+1}
    v_xor_b32 v{vg+3}, v{vg+3}, v{vg+2}
    v_lshlrev_b32 v{vg+3}, 4, v{vg+3}
    v_lshl_add_u32 v{vg+3}, v{vg+1}, 8, v{vg+3}
    v_lshrrev_b32 v{vg+4}, 3, v{vg}
    v_and_b32 v{vg+5}, 2, v{vg+4}
    s_lshr_b32 s{st0}, s2, 3
    s_add_u32 s{st0}, s{st0}, s{sw}
    s_and_b32 s{st0}, s{st0}, 1
    s_lshl_b32 s{st0}, s{st0}, 2
    v_and_b32 v{vg+6}, 7, v0
    v_xor_b32 v{vg+5}, v{vg+5}, v{vg+6}
    v_xor_b32 v{vg+5}, s{st0}, v{vg+5}
    v_lshlrev_b32 v{vg+5}, 4, v{vg+5}
    v_lshl_add_u32 v{vg+4}, v{vg+4}, 8, v{vg+5}
    s_lshr_b32 s{st0}, s2, 1
    s_mul_i32 s{srow}, s{st0}, {RLO}
    s_mul_i32 s{st0}, s{st0}, {RHI}
    s_add_u32 s{st0}, s{st0}, {64*(RLO-RHI)}
    s_cmp_lt_u32 s2, {NCH}
    s_cselect_b32 s{srow}, s{srow}, s{st0}
    s_cselect_b32 s{snr}, {RLO}, {RHI}
    s_min_u32 s{srow}, s{srow}, {N}
    s_sub_u32 s{st0}, {N}, s{srow}
    s_min_u32 s{snr}, s{snr}, s{st0}
    s_mul_i32 s{st1}, s{sch}, {CS*4}
    s_cmp_lt_u32 s2, 254
    s_waitcnt lgkmcnt(0)
    s_cselect_b64 {sr(sW1,2)}, s[14:15], s[12:13]
    s_cselect_b64 {sr(sW2,2)}, s[20:21], s[18:19]
    s_cmp_lt_u32 s2, {NCH}
    s_cbranch_scc1 K1_NOIDX
    """)
    srd(a, sD, 10, f"s{st1}", CS*4)
    srd(a, sS, 8, f"s{st1}", CS*4)
    a(f"""
    buffer_load_dwordx4 {vr(vD,4)}, v2, {sr(sD,4)}, 0 offen
    buffer_load_dwordx4 {vr(vS,4)}, v2, {sr(sS,4)}, 0 offen
    buffer_load_dword v{vD+4}, v1, {sr(sD,4)}, s{c8192} offen
    buffer_load_dword v{vS+4}, v1, {sr(sS,4)}, s{c8192} offen
    s_barrier
    K1_NOIDX:
    s_lshl_b32 s{st0}, s{srow}, 8
    s_add_u32 s{sX}, s4, s{st0}
    s_addc_u32 s{sX+1}, s5, 0
    s_lshl_b32 s{sX+2}, s{snr}, 8
    s_mov_b32 s{sX+3}, 0x20000
    s_mov_b32 s{sW1+2}, 32768
    s_mov_b32 s{sW1+3}, 0x20000
    s_mov_b32 s{sW2+2}, 32768
    s_mov_b32 s{sW2+3}, 0x20000
    s_lshl_b32 s{shf+1}, s{shf}, 7
    s_lshl_b32 s{st1}, s{sw}, 10
    """)
    def dma_x(k):
        a(f"s_add_u32 m0, s{st1}, {K1_X + 8192*k}\ns_add_u32 s{st2}, s{st1}, {8192*k}\nbuffer_load_dwordx4 v{vg+3}, {sr(sX,4)}, s{st2} offen lds")
    def stage_w():
        a(f"s_lshr_b32 s{st2}, s2, 3\ns_add_u32 s{st2}, s{st2}, s{sw}\ns_and_b32 s{st2}, s{st2}, 15")
        for k in range(2):
            a(f"""
            s_lshl_b32 s{st0}, s{st2}, 10
            s_add_u32 m0, s{st0}, {K1_W}
            s_lshl_b32 s{st1}, s{st2}, 11
            s_add_u32 s{st1}, s{st1}, s{shf+1}
            buffer_load_dwordx4 v{vg+4}, {sr(sW1,4)}, s{st1} offen lds
            s_add_u32 m0, s{st0}, {K1_W+16384}
            s_xor_b32 s{st2}, s{st2}, 8
            buffer_load_dwordx4 v{vg+4}, {sr(sW2,4)}, s{st1} offen lds
            """)
    dma_x(0); dma_x(1)
    a(f"s_sub_u32 s{st0}, s2, {NCH}\ns_cmp_lt_u32 s{st0}, {254-NCH}\ns_cbranch_scc1 K1_LATER")
    dma_x(2); stage_w()
    a(f"""
    K1_LATER:
    s_and_b32 s{sfb}, s{sw}, 1
    s_lshr_b32 s{snb}, s{sw}, 1
    v_bfe_u32 v{vg+5}, v0, 2, 2
    v_bfe_u32 v{vg+6}, v0, 3, 2
    s_lshl_b32 s{st0}, s{sfb}, 1
    v_xor_b32 v{vg+6}, s{st0}, v{vg+6}
    v_and_b32 v{vg+7}, 3, v0
    v_lshlrev_b32 v{vg+7}, 3, v{vg+7}
    v_lshl_add_u32 v{vg+7}, v{vg+6}, 5, v{vg+7}
    v_lshl_add_u32 v{vg+5}, v{vg+1}, 3, v{vg+5}
    v_lshl_add_u32 v{vTR}, v{vg+5}, 7, v{vg+7}
    v_xor_b32 v{vTR+6}, 32, v{vTR}
    v_xor_b32 v{vXA}, v{vg+1}, v{vg+2}
    v_lshlrev_b32 v{vXA}, 4, v{vXA}
    v_lshl_add_u32 v{vXA}, v{vg+2}, 8, v{vXA}
    s_lshl_b32 s{st0}, s{snb}, 12
    s_add_u32 s{st0}, s{st0}, {K1_X}
    v_add_u32 v{vXA}, s{st0}, v{vXA}
    v_xor_b32 v{vXA+2}, 64, v{vXA}
    v_xor_b32 v{vXA+3}, 0x80, v{vXA}
    v_xor_b32 v{vXA+4}, 0xc0, v{vXA}
    v_mul_u32_u24 v{vST}, {TS}, v{vg+2}
    v_lshl_add_u32 v{vST}, v{vg+1}, 4, v{vST}
    s_mul_i32 s{ctso}, s{snb}, {16*TS}
    s_lshl_b32 s{st1}, s{shf}, 8
    s_add_u32 s{ctso}, s{ctso}, s{st1}
    s_lshl_b32 s{st1}, s{sfb}, 6
    s_add_u32 s{ctso}, s{ctso}, s{st1}
    s_mov_b32 s{cnl2e}, {NL2E:#x}
    s_mov_b32 s{csign}, 0x00800000
    s_mov_b32 s{cmag}, 0x7fffffff
    s_mov_b32 s{cp0}, 0x07060100
    s_mov_b32 s{cp0+1}, 0x07060302
    s_mul_i32 s{st0}, s{srow}, {TS}
    s_add_u32 s{st0}, s{st0}, {T_OFF}
    s_mul_i32 s{st1}, s{snr}, {TS}
    """)
    srd(a, sT, 22, f"s{st0}", f"s{st1}")
    stamp(a, 1)
    a(f"s_cmp_lt_u32 s2, {NCH}\ns_cbranch_scc1 K1_NOBIN")
    a(f"""
    v_mov_b32 v{vt}, -1
    v_mov_b32 v{vt+1}, -1
    v_mov_b32 v{vt+2}, -1
    v_mov_b32 v{vt+3}, -1
    v_mov_b32 v{vt+5}, 0
    v_and_b32 v{vt+6}, 0x3fc, v1
    """)
    for k in range(4): a(f"ds_write_b128 v2, {vr(vt,4)} offset:{K1_STG+8192*k}")
    a(f"""
    ds_write_b32 v{vt+6}, v{vt+5} offset:{K1_CNT}
    s_lshl_b32 s{st0}, s{sch}, 7
    s_add_u32 s{st0}, s{st0}, {REC_OFF}
    """)
    srd(a, sR, 22, f"s{st0}", NBIN*NCH*128)
    a(f"s_lshl_b32 s{st0}, s{sch}, 9\ns_add_u32 s{st1}, s{st0}, {LUT_OFF}")
    srd(a, sP, 22, f"s{st1}", 512)
    l0, l1 = vt+10, vt+11
    a(f"""
    v_add_u32 v{l0}, s{st0}, v1
    v_and_b32 v{l1}, 0x7fff, v{l0}
    v_cmp_ne_u32 vcc, 0x7c00, v{l1}
    v_or_b32 v{l1}, 3, v{l0}
    s_nop 0
    v_addc_co_u32 v{l0}, vcc, 0, v{l0}, vcc
    v_cvt_f32_f16 v{l1}, v{l1}
    v_cvt_f32_f16 v{l0}, v{l0}
    v_exp_f32 v{l1}, v{l1}
    v_exp_f32 v{l0}, v{l0}
    v_add_f32 v{l1}, 1.0, v{l1}
    v_add_f32 v{l0}, 1.0, v{l0}
    v_rcp_f32 v{l1}, v{l1}
    v_rcp_f32 v{l0}, v{l0}
    s_mov_b32 s{cm10}, {-GN}
    v_cvt_pk_bf16_f32 v{l0}, v{l0}, v{l1}
    v_mov_b32 v{vt+5}, 1
    v_cmp_gt_u32 vcc, {CS-2048}, v0
    s_mov_b64 s[80:81], vcc
    v_lshrrev_b32 v{vt+7}, 3, v0
    v_and_b32 v{vt+8}, 7, v0
    v_lshlrev_b32 v{vt+9}, 14, v{vt+7}
    v_lshl_add_u32 v{vt+9}, v{vt+8}, 4, v{vt+9}
    v_lshlrev_b32 v{vt+7}, 2, v{vt+7}
    v_cmp_eq_u32 s[82:83], 7, v{vt+8}
    s_waitcnt lgkmcnt(0)
    s_barrier
    s_cmp_ge_u32 s2, 254
    s_cbranch_scc1 K1_W7
    s_waitcnt vmcnt(2)
    K1_W7:
    s_waitcnt vmcnt(7)
    """)
    stamp(a, 2)
    for r in range(5):
        rec_fields(a, vD+r, vB+r, vt, None, cm10)
        a(f"v_lshlrev_b32 v{vt}, 2, v{vB+r}")
        if r == 4: a("s_mov_b64 exec, s[80:81]")
        a(f"ds_add_rtn_u32 v{vSL+r}, v{vt}, v{vt+5} offset:{K1_CNT}")
        if r == 4: a("s_mov_b64 exec, -1")
    a("s_cmp_ge_u32 s2, 254\ns_cbranch_scc1 K1_NOWC")
    stage_w()
    a(f"""
    s_cmp_eq_u32 s2, 252
    s_cbranch_scc0 K1_NOWC
    """)
    srd(a, sS, 16, None, 4096)
    a(f"""
    v_lshrrev_b32 v{vWC+8}, 5, v{vg}
    """)
    pair_of_lane(a, vWC+9, vWC+10)
    a(f"""
    v_lshl_add_u32 v{vWC+9}, v{vWC+8}, 11, v{vWC+9}
    s_bfe_u32 s{st1}, s{sw}, 0x10001
    s_lshl_b32 s{st1}, s{st1}, 7
    s_lshl_b32 s{st0}, s{sfb}, 1
    s_add_u32 s{st1}, s{st1}, s{st0}
    """)
    for j in range(8): a(f"buffer_load_ushort v{vWC+j}, v{vWC+9}, {sr(sS,4)}, s{st1} offen offset:{256*j}")
    a("K1_NOWC:")
    for r in range(5):
        a(f"v_lshl_or_b32 v{vD+r}, v{vS+r}, 16, v{vD+r}")
        a(f"v_add_u32 v{vS+r}, {r}, v1" if r < 4 else f"v_add_u32 v{vS+r}, 2048, v0")
        a(f"v_lshl_or_b32 v{vD+r}, v{vS+r}, 4, v{vD+r}\nv_lshlrev_b32 v{vB+r}, 7, v{vB+r}")
    for r in range(5):
        a("s_waitcnt lgkmcnt(4)")
        if r == 4: a("s_mov_b64 exec, s[80:81]")
        a(f"""
        v_and_b32 v{vt}, 12, v{vSL+r}
        v_add_u32 v{vB+r}, v{vB+r}, v{vt}
        v_and_b32 v{vt}, 3, v{vSL+r}
        v_lshl_add_u32 v{vB+r}, v{vt}, 4, v{vB+r}
        v_and_b32 v{vt}, 16, v{vSL+r}
        v_lshl_add_u32 v{vB+r}, v{vt}, 2, v{vB+r}
        v_cmpx_gt_u32 vcc, {CAP}, v{vSL+r}
        ds_write_b32 v{vB+r}, v{vD+r} offset:{K1_STG}
        s_mov_b64 exec, -1
        """)
    a("s_waitcnt lgkmcnt(0)\ns_barrier")
    for k in range(4):
        a(f"ds_read_b128 {vr(4+4*k,4)}, v2 offset:{K1_STG+8192*k}\nds_read_b32 v{20+k}, v{vt+7} offset:{K1_CNT+256*k}")
    a(f"""
    v_mov_b32 v{vt+2}, -2
    s_mov_b32 s{st2}, 0
    buffer_store_dword v{l0}, v1, {sr(sP,4)}, 0 offen {OPT['st_r']}
    """)
    stamp(a, 3)
    for k in range(4):
        a(f"""
        s_waitcnt lgkmcnt({6-2*k})
        v_cmp_lt_u32 vcc, {CAP}, v{20+k}
        s_and_b64 vcc, vcc, s[82:83]
        s_nop 1
        v_cndmask_b32 v{7+4*k}, v{7+4*k}, v{vt+2}, vcc
        buffer_store_dwordx4 {vr(4+4*k,4)}, v{vt+9}, {sr(sR,4)}, s{st2} offen {OPT['st_r']}
        s_add_u32 s{st2}, s{st2}, {64*16384}
        """)
    a(f"""
    s_waitcnt vmcnt(5)
    s_branch K1_STAGED
    K1_NOBIN:
    """)
    if OPT.get("pf", "1") == "1":
        a(f"""
        s_getpc_b64 {sr(sP,2)}
        K1_PC:
        s_add_u32 s{sP}, s{sP}, k2_kernel-K1_PC
        s_addc_u32 s{sP+1}, s{sP+1}, 0
        s_mov_b32 s{sP+2}, K2_CODE_END-k2_kernel
        s_mov_b32 s{sP+3}, 0x20000
        s_bfe_u32 s{st0}, s2, 0x40003
        s_lshl_b32 s{st0}, s{st0}, 12
        v_lshlrev_b32 v33, 7, v0
        v_cmp_gt_u32 vcc, 32, v0
        s_and_saveexec_b64 s[80:81], vcc
        s_cbranch_execz K1_NOPC
        buffer_load_dword v34, v33, {sr(sP,4)}, s{st0} offen
        s_mov_b64 exec, s[80:81]
        s_waitcnt vmcnt(1)
        s_branch K1_PCD
        K1_NOPC:
        s_mov_b64 exec, s[80:81]
        s_waitcnt vmcnt(0)
        K1_PCD:
        """)
    else: a("s_waitcnt vmcnt(0)")
    stamp(a, 2); stamp(a, 3)
    a(f"""
    K1_STAGED:
    s_barrier
    """)
    PM = int(OPT.get("pm", "0"))
    if PM:
        a(f"s_mul_i32 s{st0}, s2, {313*128}\ns_sub_u32 s{st1}, {E*32}, s{st0}\ns_min_u32 s{st1}, s{st1}, {PM*128}")
        if OPT.get("pmlo"): a(f"s_cmp_lt_u32 s2, {NCH}\ns_cselect_b32 s{st1}, s{st1}, 0")
        srd(a, sP, 6, f"s{st0}", f"s{st1}")
        a(f"v_xor_b32 v33, 0x1c0, v0\nv_lshlrev_b32 v33, 7, v33\nbuffer_load_dword v34, v33, {sr(sP,4)}, 0 offen")
    a(f"""
    s_cmp_eq_u32 s2, 252
    s_cbranch_scc1 K1_WC
    """)
    def xrd(reg, off):
        for s in range(4): a(f"ds_read_b128 {vr(reg+4*s,4)}, v{[vXA, vXA+2, vXA+3, vXA+4][s]} offset:{off}")
    def trs(s):
        for m in range(2):
            for ab in range(2):
                for u in range(2):
                    a(f"ds_read_b64_tr_b16 {vr(W(m,ab,s)+2*u,2)}, v{vTR+6*ab} offset:{K1_W+m*16384+s*4096+u*512}")
    def mm(s, x, acc):
        return [f"v_mfma_f32_16x16x32_bf16 {vr(acc+8*m+4*ab,4)}, {vr(W(m,ab,s),4)}, {vr(x+4*s,4)}, {'0' if s == 0 else vr(acc+8*m+4*ab,4)}"
                for m in range(2) for ab in range(2)]
    def pack(acc, out):
        o = []
        for b in range(2):
            for ab in range(2):
                b0, b1 = acc+4*ab+b, acc+4*ab+2+b
                hs = [acc+8+4*ab+2*e_+b for e_ in range(2)]
                o += [f"v_mul_f32 v{b0}, s{cnl2e}, v{b0}", f"v_mul_f32 v{b1}, s{cnl2e}, v{b1}"]
                for e_, h in enumerate(hs): o += [f"v_max_f32 v{30+e_}, abs(v{h}), s{csign}", f"v_bfi_b32 v{h}, s{cmag}, v{30+e_}, v{h}"]
                o += [f"v_cvt_pk_bf16_f32 v{b0}, v{b0}, v{b1}"] + [f"v_add_u32 v{h}, 0x8000, v{h}" for h in hs]
                o += [f"v_sub_u32_sdwa v{h}, v{h}, v{b0} dst_sel:DWORD dst_unused:UNUSED_PAD src0_sel:DWORD src1_sel:WORD_{e_}" for e_, h in enumerate(hs)]
                o += [f"v_perm_b32 v{out+4*b+2*ab+e_}, v{h}, v{b0}, s{cp0+e_}" for e_, h in enumerate(hs)]
            o.append(f"buffer_store_dwordx4 {vr(out+4*b,4)}, v{vST}, {sr(sT,4)}, s{ctso} offen offset:{128*b} {OPT['st_t']}")
        return o
    xrd(vX, 0)
    trs(0); a("s_waitcnt lgkmcnt(6)")
    for s in range(1, 4):
        trs(s); a("s_waitcnt lgkmcnt(8)"); a.ext(mm(s-1, vX, vA))
        if s < 3: a("s_waitcnt lgkmcnt(6)")
    a(f"""
    s_waitcnt lgkmcnt(0)
    s_cmp_ge_u32 s2, 254
    s_cbranch_scc1 K1_WT
    s_lshl_b32 s{st0}, s{snb}, 4
    s_add_u32 s{st0}, s{st0}, 64
    s_cmp_lt_u32 s{st0}, s{snr}
    s_cbranch_scc0 K1_ONE
    """)
    vX2, vA2 = 208, 224
    xrd(vX2, 16384)
    g = mm(3, vX, vA) + ["s_waitcnt lgkmcnt(0)"]
    m2 = sum((mm(s, vX2, vA2) for s in range(4)), []); pk = pack(vA, vO)
    g += m2[:6]; k = 0
    for x in m2[6:]:
        g.append(x); g += pk[k:k+3]; k += 3
    g += pk[k:] + [f"s_add_u32 s{ctso}, s{ctso}, {64*TS}"] + pack(vA2, vO+8)
    asmsim.check_hazards(g, "k1 two blocks")
    a.ext(g)
    a("s_branch K1_TAIL\nK1_ONE:")
    g = mm(3, vX, vA) + ["s_nop 7"] + pack(vA, vO)
    asmsim.check_hazards(g, "k1 one block")
    a.ext(g)
    a("K1_TAIL:")
    stamp(a, 4); stamp(a, 5)
    PL = int(OPT.get("pl", "0"))
    if PL:
        a(f"""
        s_cmp_lt_u32 s2, {NCH}
        s_cbranch_scc0 K1_NOPF
        s_mul_i32 s{st0}, s2, {CS*32}
        """)
        srd(a, sP, 6, f"s{st0}", PL*128)
        a(f"""
        v_lshlrev_b32 v4, 7, v0
        s_mov_b32 s{st0}, 65536
        s_barrier
        buffer_load_dword v5, v4, {sr(sP,4)}, 0 offen
        buffer_load_dword v5, v4, {sr(sP,4)}, s{st0} offen
        K1_NOPF:
        """)
    stamp(a, 6); stamp(a, 7)
    stamp_out(a, 0, 22, sw, 2)
    a("s_endpgm")
    a("K1_WT:")
    srd(a, sT, 22, WT_OFF, 65536)
    a(f"""
    s_cmp_ge_u32 s{sw}, 4
    s_cbranch_scc1 K1_END
    v_lshlrev_b32 v2, 4, v{vg}
    s_lshl_b32 s{st0}, s{snb}, 2
    s_lshl_b32 s{st1}, s{shf}, 1
    s_add_u32 s{st0}, s{st0}, s{st1}
    s_add_u32 s{st0}, s{st0}, s{sfb}
    s_lshl_b32 s{st0}, s{st0}, 13
    s_add_u32 s{st1}, s{st0}, 4096
    s_cmp_eq_u32 s{snb}, 0
    s_cbranch_scc0 K1_WU
    """)
    for m in range(2):
        for ab in range(2):
            for s in range(4):
                a(f"buffer_store_dwordx4 {vr(W(m,ab,s),4)}, v2, {sr(sT,4)}, s{st1 if ab else st0} offen offset:{1024*s} {OPT['st_t']}")
        a("s_endpgm")
        if m == 0: a("K1_WU:")
    a("K1_WC:")
    srd(a, sT, 22, WT_OFF+65536, 4096)
    a(f"v_lshlrev_b32 v2, 4, v{vg}\ns_lshl_b32 s{st0}, s{sw}, 10")
    for j in range(8):
        a(f"v_lshlrev_b32 v{vWC+j}, 16, v{vWC+j}\nv_mul_f32 v{vWC+j}, s{cnl2e}, v{vWC+j}")
    for j in range(4):
        a(f"v_cvt_pk_bf16_f32 v{84+j}, v{vWC+2*j}, v{vWC+1+2*j}")
    a(f"buffer_store_dwordx4 v[84:87], v2, {sr(sT,4)}, s{st0} offen {OPT['st_t']}")
    a("K1_END:\ns_endpgm")
    return a.text(), kd("k1_kernel", 240, 102)

CAPG = 416; RND = 400
CNT = 0; FLG = 256; START = 512; INCL = 768; OHL = 1024; L1 = 1536; L2 = L1 + 4*CAPG*4; APL = L2 + 4*CAPG*4
ROWP = 272
UL = APL + 48*ROWP; LUTL = UL + 48*ROWP; STG = (LUTL + 65536 + 255)//256*256; XL = STG + 3*CAPG*32 + 5*1024; K2_LDS = XL + 12288
PROG = FLG + 32
assert K2_LDS <= 163840 and K2_LDS >= STG + 4*CAPG*32 and LUTL <= 65535 and (4*CAPG*4) % 256 == 0

def gen_k2():
    a = Asm()
    sREC, sX, sWT, sT, sE, sO, sD, sS = 24, 28, 32, 36, 40, 44, 68, 72
    sw, sg, sfh, st0, st1, st2 = 48, 49, 50, 51, 52, 53
    scount, sslow, sround, slim, sgb, srt, slut, srank = 54, 55, 56, 57, 58, 59, 82, 83
    stail = 20
    sdma, sm0, sneed = 21, 22, 23
    cm32, c128, cnl2e, cfc, csrc, cm40, cm10, cfe = 60, 61, 62, 63, 64, 65, 66, 67
    sk = 16
    vH16, vA1, vA2, vEa, vOa, vO, vA3 = 1, 2, 3, 4, 5, 6, 7
    WC = 8; AP = 16; PA = 24; SC = 28; OH = 32; EA = 40; ADDR = 48; ACC = 64; SP = 96; G = 112; RAW = 176
    XR = 240; UR = 246; vP16 = 252; vH256 = 253; vHS = 254; vPG = 255; vM15 = XR; vO2 = SP+8
    raw = lambda p, b: RAW + 32*p + 16*b
    gb = lambda p, b: G + 32*p + 16*b
    vt = gb(1, 1); Z = SP; EOFF = SP+14
    REC = raw(1, 0); CADDR = REC+16; RANK = G; STV = G+16
    NTB = [int(c_) for c_ in OPT.get("nt", "11")]
    rowoff = lambda r: 8*(r >> 2) + (r & 3)
    sd = "dst_sel:DWORD dst_unused:UNUSED_PAD src0_sel:DWORD"

    a("k2_kernel:")
    a(f"s_cmp_ge_u32 s2, {NBIN}\ns_cbranch_scc1 K2_END")
    stamp(a, 0)
    a(f"""
    s_load_dwordx8 s[4:11], s[0:1], 0
    s_load_dwordx2 s[12:13], s[0:1], 72
    s_load_dwordx2 s[14:15], s[0:1], 88
    v_lshrrev_b32 v{vt}, 6, v0
    v_lshrrev_b32 v{vt+1}, 2, v0
    v_readfirstlane_b32 s{sw}, v{vt}
    v_and_b32 v{vt+2}, 3, v0
    v_lshlrev_b32 v{vt+3}, 7, v{vt+1}
    v_lshl_add_u32 v{vt+3}, v{vt+2}, 4, v{vt+3}
    s_lshl_b32 s{st0}, s2, 14
    s_add_u32 s{st0}, s{st0}, {REC_OFF}
    v_and_b32 v{vt}, 63, v0
    v_lshlrev_b32 v{vt+5}, 3, v{vt}
    v_mov_b32 v{Z}, 0
    v_mov_b32 v{Z+1}, 0
    ds_write_b64 v{vt+5}, {vr(Z,2)} offset:{CNT}
    s_and_b32 s{sg}, s{sw}, 3
    s_lshr_b32 s{sfh}, s{sw}, 2
    v_lshlrev_b32 v{vA2}, 4, v{vt}
    s_mov_b32 s{st1}, 8192
    s_waitcnt lgkmcnt(0)
    s_cmp_lg_u32 s{sfh}, 0
    s_cbranch_scc1 K2_NOREC
    """)
    srd(a, sREC, 14, f"s{st0}", 16384)
    for u in range(2):
        for r in range(2):
            a(f"buffer_load_dwordx4 {vr(REC+8*r+4*u,4)}, v{vt+3}, {sr(sREC,4)}, {'s%d' % st1 if u else '0'} offen offset:{64*r}")
    a(f"""
    K2_NOREC:
    s_mul_i32 s{st0}, s2, 625
    s_add_u32 s{cm40}, s{st0}, 625
    s_lshr_b32 s{st0}, s{st0}, 4
    s_lshr_b32 s{cm40}, s{cm40}, 4
    s_sub_u32 s{cm40}, s{cm40}, s{st0}
    s_lshl_b32 s{cm40}, s{cm40}, 8
    s_lshl_b32 s{st0}, s{st0}, 8
    """)
    srd(a, sX, 4, f"s{st0}", f"s{cm40}")
    srd(a, sO, 12, f"s{st0}", f"s{cm40}")
    srd(a, sWT, 14, WT_OFF, LUT_OFF - WT_OFF + 65536)
    a("s_barrier")
    stamp(a, 1)
    def ld_wc():
        a(f"""
        s_lshl_b32 s{st1}, s{sfh}, 11
        s_add_u32 s{st1}, s{st1}, 65536
        buffer_load_dwordx4 {vr(WC,4)}, v{vA2}, {sr(sWT,4)}, s{st1} offen
        buffer_load_dwordx4 {vr(WC+4,4)}, v{vA2}, {sr(sWT,4)}, s{st1} offen offset:1024
        """)
    def common1(Z, vl):
        a = Asm()
        a(f"s_lshl_b32 s{st0}, s{sfh}, 8\ns_add_u32 s{st0}, s{st0}, {T_OFF-128}")
        srd(a, sT, 14, f"s{st0}", 64, w3="0x800000", hi_or="0x40000")
        srd(a, sE, 6, None, E*32)
        a(f"""
        s_mov_b32 s{cm32}, {'0x7e0' if 'e' in OPT.get('nomem','') else '0x1fffe0' if 's' in OPT.get('nomem','') else '0xffffffe0'}
        s_mov_b32 s{c128}, 128
        s_mov_b32 s{cnl2e}, {NL2E:#x}
        s_mov_b32 s{cfc}, 0xfc
        s_mov_b32 s{cfe}, {OPT.get('cfe', '0xfffe')}
        s_mov_b32 s{csrc}, {TS}
        s_mov_b32 s{sslow}, 0
        s_mov_b32 s{sround}, 0
        s_mov_b32 s{sgb}, 0
        s_mul_i32 s{st0}, s{sfh}, 3
        s_xor_b32 s{srank}, s{sg}, s{st0}
        v_lshrrev_b32 v{Z+2}, 5, v{vl}
        v_and_b32 v{Z+3}, 31, v0
        v_lshlrev_b32 v{vH16}, 4, v{Z+2}
        v_lshlrev_b32 v{vH256}, 8, v{Z+2}
        v_cmp_eq_u32 vcc, 0, v{Z+2}
        v_mov_b32 v{vM15}, 0xffff
        v_mov_b32 v{Z+4}, -1
        v_cndmask_b32 v{vM15}, v{vM15}, v{Z+4}, vcc
        v_and_b32 v{Z+4}, 3, v0
        v_mov_b32 v{Z+6}, 0x3f80
        """)
        for i in range(4):
            a(f"v_cmp_eq_u32 vcc, {i}, v{Z+4}\ns_nop 1\nv_cndmask_b32 v{PA+i}, 0, v{Z+6}, vcc")
        den = bf(127*2.0**-116); tiny = bf(2.0**-100)
        a(f"""
        v_cmp_gt_u32 s[78:79], 16, v{Z+3}
        v_mov_b32 v{Z+5}, {den:#x}
        v_mov_b32 v{Z+7}, {tiny<<16:#x}
        v_cndmask_b32 v{Z+5}, v{Z+6}, v{Z+5}, s[78:79]
        v_cndmask_b32 v{Z+7}, 0, v{Z+7}, s[78:79]
        v_and_b32 v{Z+4}, 15, v0
        v_lshlrev_b32 v{Z+8}, 3, v{Z+2}
        v_sub_u32 v{Z+4}, v{Z+4}, v{Z+8}
        v_lshlrev_b32 v{Z+6}, 16, v{Z+5}
        """)
        for d in range(4):
            a(f"""
            v_cmp_eq_u32 vcc, {2*d}, v{Z+4}
            v_cmp_eq_u32 s[78:79], {2*d+1}, v{Z+4}
            s_nop 0
            v_cndmask_b32 v{SC+d}, 0, v{Z+5}, vcc
            v_cndmask_b32 v{Z+8}, 0, v{Z+6}, s[78:79]
            v_or_b32 v{SC+d}, v{SC+d}, v{Z+8}
            """)
        a(f"""
        v_and_b32 v{SC+3}, v{SC+3}, v{vM15}
        v_not_b32 v{Z+8}, v{vM15}
        v_and_b32 v{Z+8}, v{Z+8}, v{Z+7}
        v_or_b32 v{SC+3}, v{SC+3}, v{Z+8}
        """)
        return [x.strip() for x in a.l]
    def ld_xr(): return [f"buffer_load_dword v{XR+r}, v{vO}, {sr(sX,4)}, 0 offen offset:{256*rowoff(r)} " for r in range(6)]
    def arrive(k):
        a(f"""
        v_mov_b32 v{vt+6}, {FLG+4*k}
        v_mov_b32 v{vt+7}, 1
        s_mov_b64 exec, 1
        ds_add_u32 v{vt+6}, v{vt+7}
        s_mov_b64 exec, -1
        """)
    def spin(k, n, add=True):
        if add: arrive(k)
        else: a(f"v_mov_b32 v{vt+6}, {FLG+4*k}")
        a(f"""
        K2_SPIN{n}:
        ds_read_b32 v{vt+7}, v{vt+6}
        s_waitcnt lgkmcnt(0)
        v_cmp_gt_u32 vcc, 4, v{vt+7}
        s_cbranch_vccnz K2_SPIN{n}
        """)
    def caddr(k): return f"v_and_b32_sdwa v{CADDR+k}, s{cfc}, v{REC+k} {sd} src1_sel:BYTE_3"
    def pick(sel, cur):
        a(f"""
        s_bitcmp1_b32 s{sel}, 0
        s_cselect_b32 s{cur[0]}, s{cur[1]}, s{cur[0]}
        s_cselect_b32 s{cur[2]}, s{cur[3]}, s{cur[2]}
        s_bitcmp1_b32 s{sel}, 1
        s_cselect_b32 s{st0}, s{cur[2]}, s{cur[0]}
        s_and_b32 s{sg}, s{st0}, 3
        s_andn2_b32 s{st0}, s{st0}, 3
        s_mul_i32 s{sgb}, s{sg}, {CAPG*4}
        s_add_u32 s{scount}, s{st0}, 127
        s_lshr_b32 s{scount}, s{scount}, 7
        s_add_u32 s{stail}, s{st0}, 124
        s_bfe_u32 s{stail}, s{stail}, 0x20005
        s_lshl_b32 s{stail}, s{stail}, 1
        s_add_u32 s{stail}, s{stail}, 2
        """)
    def rank_groups():
        for g in range(1, 4): a(f"s_or_b32 s{sk+g}, s{sk+g}, {g}")
        cur = [sk, sk+1, sk+2, sk+3]; spare = sk+4
        for (i, j) in ((0, 1), (2, 3), (0, 2), (1, 3), (1, 2)):
            a(f"s_max_u32 s{spare}, s{cur[i]}, s{cur[j]}\ns_min_u32 s{cur[j]}, s{cur[i]}, s{cur[j]}")
            cur[i], spare = spare, cur[i]
        pick(srank, cur)
    def scan(fast, ks=()):
        x = SP
        a(f"""
        v_and_b32 v{vt}, 63, v0
        v_lshlrev_b32 v{vt+1}, 2, v{vt}
        ds_read_b32 v{x}, v{vt+1} offset:{CNT}
        v_lshrrev_b32 v{vt}, 4, v{vt}
        v_mul_u32_u24 v{vt}, {CAPG*4}, v{vt}
        v_and_b32 v{vt+2}, 31, v0
        v_lshlrev_b32 v{vt+2}, 2, v{vt+2}
        v_mov_b32 v{vt+4}, 0xfffffe
        s_waitcnt lgkmcnt(0)
        v_sub_u32 v{vt}, v{vt}, v{x}
        """)
        for d in ("row_shr:1", "row_shr:2", "row_shr:4", "row_shr:8"):
            a(f"v_add_u32_dpp v{x}, v{x}, v{x} {d} row_mask:0xf bank_mask:0xf bound_ctrl:0\ns_nop 1")
        a(f"""
        v_add_u32 v{vt}, v{vt}, v{x}
        v_cmp_lt_u32 vcc, {CAPG*4}, v{x}
        ds_write2st64_b32 v{vt+1}, v{vt}, v{x} offset0:{START//256} offset1:{INCL//256}
        """)
        for g in range(4): a(f"v_readlane_b32 s{sk+g}, v{x}, {16*g+15}")
        if fast:
            a("s_cbranch_vccnz K2_GIVEUP")
            for j, k in enumerate(ks): a(f"ds_read_b32 v{STV+j}, v{CADDR+k} offset:{START}")
            rank_groups()
        else:
            for g in range(1, 4): a(f"s_or_b32 s{sk+g}, s{sk+g}, {g}")
            pick(sg, [sk, sk+1, sk+2, sk+3])
        a(f"""
        s_add_u32 s{st0}, s{st0}, s{sgb}
        v_add_u32 v{vt+2}, s{st0}, v{vt+2}
        s_lshl_b32 s{st1}, s{scount}, 7
        s_add_u32 s{st1}, s{st1}, s{sgb}
        v_lshlrev_b32 v{vt+3}, 3, v{vt+2}
        v_and_b32 v{vt+3}, 128, v{vt+3}
        v_cmpx_gt_u32 vcc, s{st1}, v{vt+2}
        ds_write2st64_b32 v{vt+2}, v{vt+3}, v{vt+4} offset0:{L1//256} offset1:{L2//256}
        s_mov_b64 exec, -1
        """)
    def place(k, st, eo):
        a(f"""
        v_add_u32 v{st}, v{st}, v{RANK+k}
        v_bfe_u32 v{vt}, v{REC+k}, 16, {5 if 't' in OPT.get('nomem','') else 14}
        v_lshlrev_b32 v{vt+1}, 3, v{st}
        v_mad_u32_u16 v{vt+2}, v{REC+k}, 2, v{eo}
        v_and_b32 v{vt+1}, 128, v{vt+1}
        v_mad_u32_u24 v{vt}, v{vt}, s{csrc}, v{vt+1}
        ds_write2st64_b32 v{st}, v{vt}, v{vt+2} offset0:{L1//256} offset1:{L2//256}
        """)
    def lane_setup():
        a(f"""
        v_and_b32 v{vt}, 31, v0
        v_xor_b32 v{vA1}, 16, v{vH16}
        v_xor_b32 v{vA2}, 4, v{vt}
        v_lshlrev_b32 v{vA2}, 2, v{vA2}
        v_add_u32 v{vA1}, s{sgb}, v{vA1}
        v_add_u32 v{vA2}, s{sgb}, v{vA2}
        s_mul_i32 s{st0}, s{sg}, {GN*256}
        s_lshl_b32 s{st1}, s{sfh}, 7
        s_add_u32 s{st0}, s{st0}, s{st1}
        """)
        pair_of_lane(a, vO, vt+1)
        a(f"""
        v_lshl_add_u32 v{vO}, v{vH256}, 2, v{vO}
        v_add_u32 v{vO}, s{st0}, v{vO}
        v_bfe_u32 v{vA3}, v0, 1, 5
        v_lshlrev_b32 v{vA3}, 2, v{vA3}
        v_add_u32 v{vA3}, s{sgb}, v{vA3}
        v_lshlrev_b32 v{vP16}, 4, v0
        v_xor_b32 v{vP16}, v{vP16}, v0
        v_and_b32 v{vP16}, 16, v{vP16}
        v_lshlrev_b32 v{vHS}, 1, v0
        v_xor_b32 v{vHS}, v{vHS}, v{vH16}
        v_and_b32 v{vHS}, 16, v{vHS}
        v_add_u32 v{vHS}, {STG}, v{vHS}
        s_lshl_b32 s{st0}, s{sg}, 2
        s_add_u32 s{st0}, s{st0}, {PROG}
        v_mov_b32 v{vPG}, s{st0}
        s_lshl_b32 s{sm0}, s{sgb}, 3
        s_add_u32 s{sm0}, s{sm0}, {STG}
        s_mov_b32 s{sdma}, 0
        s_mov_b32 s{sneed}, 0
        s_mov_b32 s{slim}, s{scount}
        """)
    def rd_addr(off, j): return f"ds_read_b128 {vr(ADDR+4*j,4)}, v{vA1} offset:{L1+off+32*j}"
    def rd_l2(reg, off): return f"ds_read_b32 v{reg}, v{vA2} offset:{L2+off}"
    def ld_raw(p, b, r):
        pre = [f"v_and_b32 v{ADDR+r}, 0xffff80, v{ADDR+r}"] if OPT.get("safe") else []
        if OPT.get("noload"): return ["s_nop 0"]
        return pre + [f"buffer_load_dword v{raw(p,b)+r}, v{ADDR+r}, {sr(sT,4)}, 0 offen" + (" offset:128" if b else "") + " " + OPT.get("ft", "")]
    def ld_blk(p, b): return sum((ld_raw(p, b, r) for r in range(16)), [])
    cur = {"r": "P"}
    def rd_l3(off, reg=None): return [f"ds_read_b32 v{reg or vEa}, v{vA3} offset:{L2+off}"] if cur["r"] == "P" else []
    lab = [0]
    def dma_ea(sl, reg=None, check=True):
        if cur["r"] != "P": return []
        reg = reg or vEa
        if not check:
            return [f"s_mov_b32 m0, s{sm0}", f"v_and_or_b32 v{reg}, v{reg}, s{cm32}, v{vP16}",
                    f"buffer_load_dwordx4 v{reg}, {sr(sE,4)}, 0 offen {OPT.get('fe', '')} lds;wr={300+sl}", f"s_add_u32 s{sm0}, s{sm0}, 1024"]
        lab[0] += 1
        return [f"s_cmp_lt_u32 s{sdma}, s{slim}", f"s_cbranch_scc0 K2_ND{lab[0]}", "@D{",
                f"s_mov_b32 m0, s{sm0}", f"v_and_or_b32 v{reg}, v{reg}, s{cm32}, v{vP16}",
                f"buffer_load_dwordx4 v{reg}, {sr(sE,4)}, 0 offen {OPT.get('fe', '')} lds;wr={300+sl}", "@}", f"K2_ND{lab[0]}:",
                f"s_add_u32 s{sdma}, s{sdma}, 1", f"s_add_u32 s{sm0}, s{sm0}, 1024"]
    spins = []
    def rd_prog(): return [f"ds_read_b32 v{vEa}, v{vPG}"] if cur["r"] == "C" else []
    def get_ea(p, sl, off, prev=()):
        o = [f"s_add_u32 s{sneed}, s{sneed}, 1"]
        if cur["r"] == "P":
            o += [f"v_mov_b32 v{vEa}, s{sneed};rd={300+sl}", f"ds_write_b32 v{vPG}, v{vEa}"]
            if prev: o.append("@MOVE 302 300")
        else:
            lab[0] += 1; n = lab[0]; spins.append(n)
            o += [f"v_cmp_gt_u32 vcc, s{sneed}, v{vEa}", f"s_cbranch_vccnz K2_SP{n}", f"K2_OK{n}:"]
        return o + [f"v_lshl_add_u32 v{vEa}, v{vA2}, 3, v{vHS}", f"ds_read_b128 {vr(EA+4*p,4)}, v{vEa} offset:{8*off}"]
    def oh_idx(p):
        return [f"v_and_b32 v{vOa}, 30, v{vOa}",
                f"v_lshl_add_u32 v{vOa}, v{vOa}, 3, v{vH256}",
                f"ds_read_b128 {vr(OH+4*p,4)}, v{vOa} offset:{OHL}"]
    big = "v_mfma_f32_32x32x16_bf16" if not OPT.get("nobig") else "; "
    de = OPT.get("drop", "")
    def mE(p, b): return "; " if "E" in de else f"{big} {vr(gb(p,b),16)}, {vr(EA+4*p,4)}, {vr(WC+4*b,4)}, 0"
    def mA(p, b): return "; " if "A" in de else f"{big} {vr(gb(p,b),16)}, {vr(OH+4*p,4)}, {vr(AP+4*b,4)}, {vr(gb(p,b),16)}"
    def mS(p): return "; " if "S" in de else f"{big} {vr(SP,16)}, {vr(OH+4*p,4)}, {vr(SC,4)}, 0"
    def mG(p, b, j): return "; " if ("G" in de or ("g" in de and j & 1)) else f"{big} {vr(ACC+16*b,16)}, {vr(SP+4*j,4)}, {vr(gb(p,b)+4*j,4)}, {vr(ACC+16*b,16)}"
    def mP(p, b):
        o = []
        for u in range(2):
            for j in range(4):
                g = vr(gb(p,b)+4*j, 4)
                o.append(f"v_mfma_f32_4x4x4_16b_bf16 {g}, {vr(PA+2*u,2)}, {vr(raw(p,b)+4*j+2*u,2)}, {g}")
        return o
    def idx_pair(p, b, i):
        g0, g1 = gb(p,b)+2*i, gb(p,b)+2*i+1
        if i < NTB[b]:
            return [f"v_exp_f32 v{g0}, v{g0}", f"v_exp_f32 v{g1}, v{g1}", f"v_add_f32 v{g0}, 1.0, v{g0}",
                    f"v_add_f32 v{g1}, 1.0, v{g1}", f"v_rcp_f32 v{g0}, v{g0}", f"v_rcp_f32 v{g1}, v{g1}"], []
        return [f"v_cvt_pkrtz_f16_f32 v{g0}, v{g0}, v{g1}",
                f"v_and_b32_sdwa v{g1}, s{cfe}, v{g0} {sd} src1_sel:WORD_1",
                f"v_and_b32_sdwa v{g0}, s{cfe}, v{g0} {sd} src1_sel:WORD_0"], \
               [f"ds_read_u16_d16_hi v{g1}, v{g1} offset:{LUTL}", f"ds_read_u16_d16_hi v{g0}, v{g0} offset:{LUTL}"]
    def fin_pair(p, b, i):
        g0, r0 = gb(p,b)+2*i, raw(p,b)+2*i
        mul = [f"v_pk_mul_f32 {vr(r0,2)}, {vr(g0,2)}, {vr(r0,2)}"] if OPT.get("pk") else [f"v_mul_f32 v{r0}, v{g0}, v{r0}", f"v_mul_f32 v{r0+1}, v{g0+1}, v{r0+1}"]
        return mul + [
                f"v_cvt_pk_bf16_f32 v{g0}, v{g0}, v{r0}", f"v_cvt_pk_bf16_f32 v{g0+1}, v{g0+1}, v{r0+1}"]
    def zipl(x, y):
        o = []
        for k in range(max(len(x), len(y))):
            if k < len(x): o.append(x[k])
            if k < len(y): o.append(y[k])
        return o
    uid = [0]
    def W(kind):
        uid[0] += 1
        return f"@W{kind} {uid[0]}"
    SH = int(OPT.get("short", "4"))
    WE = int(OPT.get("we", "2"))
    def slot(p, b, kind, acc=True, np_=8, npg=8):
        q = 1-p
        nxt = (p, 1) if b == 0 else (q, 0)
        do_idx = b == 0 or kind != "L"
        gs = [[mG(q if b == 0 else p, 1-b, j)] for j in range(npg//2)] if acc else []
        bigs = gs[:2]
        if kind != "L": bigs += [[mE(q, b)], [mA(q, b)]]
        bigs += gs[2:]
        if b == 0: bigs += [[mS(p)]]
        smalls = mP(q, b) if kind != "L" else []
        out = []
        nb = 0
        for i in range(8):
            if i >= np_:
                out += sum(bigs[nb:], []); nb = len(bigs)
                break
            iv, il = idx_pair(*nxt, i) if do_idx else ([], [])
            fv = fin_pair(p, b, i)
            seq = zipl(iv, fv) + il
            if SH:
                rr = range(16*i//SH, 16*(i+1)//SH) if i < SH else []
                if (b == 0 and kind != "L") or (b == 1 and kind == "F"):
                    for r_ in rr: seq += ld_raw(q, 1, r_) if b == 0 else ld_raw(p, 0, r_)
                if kind == "F":
                    if b == 0:
                        for r_ in rr:
                            if r_ & 3 == 3: seq.append(rd_addr((2+p)*128, r_ >> 2))
                    if b == 0 and i == 1: seq = dma_ea(p, check=False) + seq
                    if b == 1 and i == 1: seq += rd_prog()
                    if b == 1 and i == 6: seq += get_ea(p, p, (2+p)*128)
                    if b == 1 and i == 7: seq += rd_l3((3+p)*128)
                    if b == 0 and i == 5: seq.append(rd_l2(vOa, (2+p)*128))
                    if b == 1 and i == 2: seq += oh_idx(p)
            elif kind == "F":
                seq += ld_raw(p, b, 2*i) + ld_raw(p, b, 2*i+1)
                if b == 1 and i & 1: seq.append(rd_addr((3+p)*128, i >> 1))
                if OPT.get("burst"):
                    if p == 0 and b == 0 and i == 0: seq += rd_l3(3*128) + rd_l3(4*128, vOa)
                    if p == 0 and b == 0 and i == 4: seq = dma_ea(1) + dma_ea(2, vOa) + seq
                else:
                    if b == 0 and i == 1: seq += rd_l3((3+p)*128)
                    if b == 1 and i == 0: seq = dma_ea(q) + seq
                if b == 1 and i == 1: seq += rd_prog()
                if b == 1 and i == 6: seq += get_ea(p, p, (2+p)*128, (2,) if (OPT.get('burst') and p == 0) else ())
                if b == 0 and i == 5: seq.append(rd_l2(vOa, (2+p)*128))
                if b == 1 and i == 2: seq += oh_idx(p)
            pre = [W("l")] if i % WE == 0 else []
            if cur["r"] == "P" and kind != "L":
                if (b, i) == (0, 0): pre.append("s_setprio 2")
                if (b, i) == divmod(int(OPT.get("fair", "12")), 8): pre.append("s_setprio 0")
            if i < 6:
                take = 2 if (len(bigs) - nb) > (6 - i) else 1
                if nb < len(bigs): pre += bigs[nb]; nb += 1
                if take == 2 and nb < len(bigs):
                    seq = seq[:6] + bigs[nb] + seq[6:]; nb += 1
            if smalls and i >= 5:
                k0, k1 = {5: (0, 2), 6: (2, 6), 7: (6, 8)}[i]
                sm = smalls[k0:k1]
                if i == 5: seq = seq[:4] + [W("v")] + zipl(sm, seq[4:])
                else: seq = zipl(sm, seq)
            out += pre + seq
        assert nb == len(bigs)
        return out
    def last(p, np_):
        n = f"{p}{cur['r']}{np_}"
        return ([f"K2_LAST{n}:"] + ld_xr() + slot(p, 0, "L", np_=np_) + ["s_nop 11"]*(np_ < 6) + slot(p, 1, "L", np_=np_, npg=np_)
                + ["s_nop 1"] + [mG(p, 1, j) for j in range(np_//2)])
    def body(p, kind):
        q = 1-p; n = f"{kind}{p}{cur['r']}"
        o0 = [f"K2_BODY{n}:"] + slot(p, 0, kind)
        o1 = [f"K2_MID{n}:"] + (ld_xr() if kind == "L" else []) + slot(p, 1, kind)
        if OPT.get("prof") == "7": o1 += ["s_mov_b32 m0, s98", "s_add_u32 s98, s98, 1", f"v_writelane_b32 v{UR+5}, s86, m0", "s_memrealtime s[86:87]"]
        if kind == "P":
            for np_ in (2, 4, 6): o1 += [f"s_cmp_eq_u32 s{stail}, {np_}", f"s_cbranch_scc1 K2_LAST{q}{cur['r']}{np_}"]
        if kind == "F":
            if p == 1: o1 += [f"v_add_u32 v{r_}, 256, v{r_}" for r_ in ((vA1, vA2, vA3) if cur["r"] == "P" else (vA1, vA2))]
            o1 += [f"s_sub_u32 s{scount}, s{scount}, 1", f"s_cmp_eq_u32 s{scount}, 2", f"s_cbranch_scc1 K2_BODYP{q}{cur['r']}"]
        return o0, o1
    def entry_short(kind):
        more = kind != "L"
        o = rd_prog() + [W("v"), W("l")] + get_ea(0, 0, 0)
        if more: o += rd_prog() + rd_l3(128)
        o += [W("l"), "@STAMP", mE(0, 0), mA(0, 0), mE(0, 1), mA(0, 1)]
        o += (dma_ea(1, check=False) if more else []) + ["s_nop 7", W("v")] + mP(0, 0) + ["s_nop 3"]
        for i in range(8):
            v_, l_ = idx_pair(0, 0, i)
            o += [W("l")] + ([v_[0], v_[1], "s_nop 0"] + v_[2:] if i < NTB[0] else v_) + l_
            if more:
                if i < 4:
                    for r_ in range(4*i, 4*i+4): o += ld_raw(1, 0, r_)
                if i == 6: o += [W("v")] + get_ea(1, 1, 128)
                if i == 7 and kind == "F": o += rd_l3(256)
            if i == 3: o += [W("v")] + mP(0, 1)
        return o + slot(0, 0, kind, acc=False) + [f"s_branch K2_MID{kind}0{cur['r']}"]
    def entry(kind):
        if SH: return entry_short(kind)
        more = kind != "L"
        o = rd_prog() + [W("v"), W("l")] + get_ea(0, 0, 0)
        if more: o += rd_prog()
        o += [W("l"), "@STAMP", mE(0, 0), mA(0, 0), mE(0, 1), mA(0, 1), "s_nop 7", W("v")] + mP(0, 0) + ["s_nop 3"]
        for i in range(8):
            v_, l_ = idx_pair(0, 0, i)
            o += [W("l")] + ([v_[0], v_[1], "s_nop 0"] + v_[2:] if i < NTB[0] else v_) + l_
            if more:
                for r_ in range(4*(i & 3), 4*(i & 3)+4): o += ld_raw(1, i >> 2, r_)
                if i >= 4: o.append(rd_addr(256, i-4))
                if i == 4: o += [W("v")] + get_ea(1, 1, 128) + rd_l3(256)
                if i == 7: o += dma_ea(0)
            if i == 3: o += [W("v")] + mP(0, 1)
        return o + slot(0, 0, kind, acc=False) + [f"s_branch K2_MID{kind}0{cur['r']}"]
    def drain(p): return ["s_nop 1"] + [mG(p, 1, j) for j in range(4)]
    def mk_fill():
        ad = [rd_addr(0, j) for j in range(4)]
        t0 = SP
        o = []
        if cur["r"] == "P":
            o = (rd_l3(0) + [f"ds_read_b32 v{t0}, v{vA3} offset:{L2+128}"])
        o += ad + [rd_l2(vOa, 0), rd_l2(t0+1, 128)]
        if cur["r"] == "P":
            o += ["s_waitcnt lgkmcnt(6)"] + dma_ea(0) + [f"v_mov_b32 v{vEa}, v{t0}"]
        d1 = dma_ea(1) if not SH else []
        late1 = OPT.get("d1", "1") == "1"
        o += ([] if late1 else d1) + ["s_waitcnt lgkmcnt(0)"] + ld_blk(0, 0) + oh_idx(0) + [f"v_mov_b32 v{vOa}, v{t0+1}"] + oh_idx(1) + ld_blk(0, 1) + (d1 if late1 else [])
        return o + [rd_addr(128, j) for j in range(4)]
    FI, B, EN, LA_ = {}, {}, {}, {}
    for r in "PC":
        cur["r"] = r
        FI[r] = mk_fill()
        for k in "FPL":
            EN[r, k] = entry(k)
            for p in range(2): B[r, p, k] = body(p, k)
        for p in range(2):
            for np_ in (2, 4, 6, 8): LA_[r, p, np_] = last(p, np_)
    def trace(r, cnt, np_=8):
        kinds = ["F"]*(cnt-2) + ["P", "L"][-min(cnt, 2):]
        tr = FI[r] + EN[r, kinds[0]] + B[r, 0, kinds[0]][1]
        for t in range(1, cnt-1): tr += B[r, t & 1, kinds[t]][0] + B[r, t & 1, kinds[t]][1]
        tr += drain(0) if cnt == 1 else LA_[r, (cnt-1) & 1, np_]
        o = []; keep = True; nd = 0
        for x in tr:
            if x == "@D{": keep = nd < cnt; nd += 1
            elif x == "@}": keep = True
            elif keep and x != "@STAMP": o.append(x)
        return o
    epi_head = ["s_branch x", "s_cmp", "s_cbranch", "s_waitcnt vmcnt(0) lgkmcnt(0)"] + [f"v_add_f32 v{ACC+r_}, 0, v{ACC+r_}" for r_ in range(6)]
    cases = [(r, c, n_) for c in range(1, 9) for r in "PC" for n_ in (2, 4, 6, 8)]
    need = asmsim.solve_waits([trace(*c) for c in cases])
    for c in cases: asmsim.check_hazards(asmsim.apply_waits(trace(*c), need) + epi_head, f"case {c}")
    def emit(l):
        for x in asmsim.apply_waits(l, need):
            if x == "@STAMP":
                stamp(a, 5); stamp(a, 5, "3"); stamp(a, 7, "4")
                if OPT.get("prof") == "7": a("s_memrealtime s[86:87]\ns_mov_b32 s98, 1")
                if OPT.get("prof") == "3": a(f"s_memtime s[86:87]\ns_mov_b32 s90, s{scount}\ns_getreg_b32 s92, hwreg(HW_REG_HW_ID)")
            elif x[0] != "@": a(x.split(";")[0])
    def main_loop(r):
        a(f"""
        K2_GO{r}:
        s_cmp_eq_u32 s{scount}, 0
        s_cbranch_scc1 K2_EMPTY
        s_cmp_gt_u32 s{scount}, 2
        s_cbranch_scc1 K2_ENTF{r}
        s_cmp_eq_u32 s{scount}, 2
        s_cbranch_scc1 K2_ENTP{r}
        """)
        emit(EN[r, "L"]); a(f"K2_ENTP{r}:"); emit(EN[r, "P"]); a(f"K2_ENTF{r}:"); emit(EN[r, "F"])
        a(".p2align 6")
        for p in range(2): emit(B[r, p, "F"][0] + B[r, p, "F"][1])
        a(f"s_branch K2_BODYF0{r}")
        emit(B[r, 0, "L"][1] + drain(0)); a("s_branch K2_DONE")
        for p in range(2):
            for np_ in (2, 4, 6): emit(LA_[r, p, np_]); a("s_branch K2_DONE")
        for p in range(2):
            emit(B[r, p, "P"][0] + B[r, p, "P"][1] + LA_[r, 1-p, 8])
            if p == 0 or r == "P": a("s_branch K2_DONE")
    def fill(n):
        a(f"s_cmp_eq_u32 s{scount}, 0\ns_cbranch_scc1 K2_FILLED{n}")
        emit(FI[n])
        a(f"K2_FILLED{n}:")
    def ap_addr():
        a(f"""
        v_bfe_u32 v{vt}, v0, 2, 2
        v_lshrrev_b32 v{vt+1}, 1, v{vH16}
        v_add_u32 v{vt}, v{vt}, v{vt+1}
        v_mul_u32_u24 v{vt}, {ROWP}, v{vt}
        v_bfe_u32 v{vt+2}, v0, 4, 1
        v_lshl_add_u32 v{vt}, v{vt+2}, 5, v{vt}
        v_and_b32 v{vt+2}, 3, v0
        v_lshl_add_u32 v{vt}, v{vt+2}, 3, v{vt}
        s_mul_i32 s{st0}, s{sg}, {GN*ROWP}
        s_lshl_b32 s{st1}, s{sfh}, 7
        s_add_u32 s{st0}, s{st0}, s{st1}
        v_add_u32 v{vt}, s{st0}, v{vt}
        v_mul_u32_u24 v{vt+1}, {ROWP//2}, v{vt+1}
        v_and_b32 v{vt+2}, 127, v{vO}
        v_add3_u32 v{vt+1}, v{vt+2}, s{st0}, v{vt+1}
        """)
    def ap_read():
        a(f"""
        ds_read_b64_tr_b16 {vr(AP,2)}, v{vt} offset:{APL}
        ds_read_b64_tr_b16 {vr(AP+2,2)}, v{vt} offset:{APL+4*ROWP}
        ds_read_b64_tr_b16 {vr(AP+4,2)}, v{vt} offset:{APL+64}
        ds_read_b64_tr_b16 {vr(AP+6,2)}, v{vt} offset:{APL+4*ROWP+64}
        """)
        for r in range(6): a(f"ds_read_b32 v{UR+r}, v{vt+1} offset:{UL+ROWP*rowoff(r)}")
        a(f"""
        s_waitcnt lgkmcnt(6)
        v_and_b32 v{AP+3}, v{AP+3}, v{vM15}
        v_and_b32 v{AP+7}, v{AP+7}, v{vM15}
        """)
    def init_addr():
        for r in range(16): a(f"v_mov_b32 v{ADDR+r}, 128")
    def zero_acc():
        for r in range(32): a(f"v_mov_b32 v{ACC+r}, 0")

    a(f"s_cmp_lg_u32 s{sfh}, 0\ns_cbranch_scc1 K2_LOADER")
    ld_wc()
    a.ext(common1(SP, vt))
    a(f"v_and_b32 v{vt+3}, 15, v0\nv_lshlrev_b32 v{vt+3}, 4, v{vt+3}\nv_bfe_u32 v{vt+4}, v0, 4, 2\nv_lshl_add_u32 v{vt+3}, v{vt+4}, 10, v{vt+3}\ns_lshl_b32 s{st0}, s{sg}, 8\nv_add_u32 v{vt+3}, s{st0}, v{vt+3}")
    a(f"v_add_u32 v{vt+4}, 40960, v{vt+3}")
    for val, rg, runs in ((0x3f003f00, EA, (0, 3, 32, 35)), (0, EA+4, (23, 27)), (0x3f803f80, OH, (51, 55, 59))):
        for j in range(4): a(f"v_mov_b32 v{rg+j}, {val:#x}")
        for c0 in runs:
            a(f"ds_write_b128 v{vt+4 if c0 >= 24 else vt+3}, {vr(rg,4)} offset:{LUTL + 1024*(c0 - (40 if c0 >= 24 else 0))}")
    a(f"""
    v_and_b32 v{vt+3}, 127, v0
    v_bfe_u32 v{vt+4}, v0, 2, 4
    v_and_b32 v{Z+4}, 3, v0
    v_lshrrev_b32 v{Z+5}, 6, v{vt+3}
    v_lshlrev_b32 v{vt+3}, 2, v{vt+3}
    v_lshl_add_u32 v{Z+4}, v{Z+5}, 2, v{Z+4}
    v_lshlrev_b32 v{Z+5}, 1, v{Z+4}
    v_mov_b32 v{Z+6}, 0x3f80
    v_mov_b32 v{Z+7}, 0x3f800000
    v_cmp_eq_u32 vcc, v{Z+5}, v{vt+4}
    v_add_u32 v{Z+5}, 1, v{Z+5}
    s_nop 0
    v_cndmask_b32 v{Z+8}, 0, v{Z+6}, vcc
    v_cmp_eq_u32 vcc, v{Z+5}, v{vt+4}
    v_cmp_eq_u32 s[78:79], 7, v{Z+4}
    s_or_b64 vcc, vcc, s[78:79]
    s_nop 1
    v_cndmask_b32 v{Z+9}, 0, v{Z+7}, vcc
    v_or_b32 v{Z+8}, v{Z+8}, v{Z+9}
    v_cmp_gt_u32 vcc, 15, v{vt+4}
    s_nop 1
    v_cndmask_b32 v{Z+8}, 0, v{Z+8}, vcc
    ds_write_b32 v{vt+3}, v{Z+8} offset:{OHL}
    """)
    a(f"""
    v_mul_u32_u24 v{EOFF}, {CS*32}, v{vt+1}
    v_add_u32 v{EOFF+1}, {64*CS*32}, v{EOFF}
    v_mov_b32 v{vt+3}, 4
    """)
    init_addr()
    a("s_waitcnt vmcnt(2)")
    stamp(a, 2); stamp(a, 1, "5")
    a(f"""
    v_cmp_eq_u32 vcc, -2, v{REC+11}
    v_cmp_eq_u32 s[78:79], -2, v{REC+15}
    s_or_b64 vcc, vcc, s[78:79]
    s_cbranch_vccz K2_NOOVF
    v_mov_b32 v{vt+4}, 0x10000
    v_mov_b32 v{vt}, 60
    ds_add_u32 v{vt}, v{vt+4} offset:{CNT}
    K2_NOOVF:
    """)
    M = [68, 70, 72, 74, 76, 78]
    KS = [[4*u+i for i in range(4)] + [8+4*u, 9+4*u] for u in range(2)]
    def masked(u, fn):
        for j, k in enumerate(KS[u]): a(f"v_cmp_gt_u32 {sr(M[j],2)}, -2, v{REC+k}")
        for j, k in enumerate(KS[u]): a(f"s_mov_b64 exec, {sr(M[j],2)}\n{fn(k, 6*u+j)}")
        a("s_mov_b64 exec, -1")
    for k in KS[0] + KS[1]: a(caddr(k))
    for u in range(2): masked(u, lambda k, j: f"ds_add_rtn_u32 v{RANK+k}, v{CADDR+k}, v{vt+3} offset:{CNT}")
    a(f"v_min_u32 v{vt+4}, v{REC+10}, v{REC+14}\nv_cmp_gt_u32 s[26:27], -2, v{vt+4}")
    def steps(tag, fn):
        a(f"s_cmp_eq_u64 s[26:27], 0\ns_cbranch_scc1 K2_{tag}1\ns_waitcnt lgkmcnt(0)")
        for u in range(2):
            for k in (10+4*u, 11+4*u):
                a(f"v_cmpx_gt_u32 vcc, -2, v{REC+k}\ns_cbranch_execz K2_{tag}{u}")
                fn(k, u)
            a(f"K2_{tag}{u}:\ns_mov_b64 exec, -1")
    steps("C", lambda k, u: a(f"{caddr(k)}\nds_add_rtn_u32 v{RANK+k}, v{CADDR+k}, v{vt+3} offset:{CNT}"))
    arrive(0)
    stamp(a, 2, "5")
    LA, LB = raw(0, 0), raw(0, 1)
    for u in range(2):
        for j, k in enumerate(KS[u]):
            a(f"v_bfe_u32 v{LA+6*u+j}, v{REC+k}, 16, {5 if 't' in OPT.get('nomem','') else 14}\nv_mad_u32_u16 v{LB+6*u+j}, v{REC+k}, 2, v{EOFF+u}")
    NBK = int(OPT.get("nbk", "0"))
    if NBK:
        for u in range(2):
            for j, k in enumerate(KS[u]): a(f"v_and_b32 v{vt+8}, 0x3c, v{CADDR+k}\nv_cmp_gt_u32 {sr(M[j],2)}, {4*NBK}, v{vt+8}")
            for j, k in enumerate(KS[u]): a(f"s_mov_b64 exec, {sr(M[j],2)}\nbuffer_load_ubyte v{vt+12}, v{LB+6*u+j}, {sr(sE,4)}, 0 offen")
            a("s_mov_b64 exec, -1")
    for j in range(12): a(f"v_mul_u32_u24 v{LA+j}, s{csrc}, v{LA+j}")
    spin(0, "A", add=False)
    stamp(a, 3, "5")
    scan(True, KS[0] + KS[1])
    a("s_waitcnt lgkmcnt(1)")
    stamp(a, 4, "5")
    for j, k in enumerate(KS[0] + KS[1]): a(f"v_add_u32 v{STV+j}, v{STV+j}, v{RANK+k}")
    for j, k in enumerate(KS[0] + KS[1]): a(f"v_lshlrev_b32 v{RANK+k}, 3, v{STV+j}")
    for j, k in enumerate(KS[0] + KS[1]): a(f"v_and_or_b32 v{LA+j}, v{RANK+k}, s{c128}, v{LA+j}")
    for u in range(2): masked(u, lambda k, j: f"ds_write2st64_b32 v{STV+j}, v{LA+j}, v{LB+j} offset0:{L1//256} offset1:{L2//256}")
    def put_step(k, u):
        a(f"ds_read_b32 v{STV+12}, v{CADDR+k} offset:{START}\ns_waitcnt lgkmcnt(0)")
        place(k, STV+12, EOFF+u)
    steps("P", put_step)
    arrive(1)
    stamp(a, 5, "5")
    lane_setup()
    stamp(a, 6, "5")
    spin(1, "B", add=False)
    stamp(a, 3); stamp(a, 7, "5")
    a("K2_REFILLP:")
    fill("P")
    stamp(a, 4)
    a(f"s_cmp_lg_u32 s{sslow}, 0\ns_cbranch_scc1 K2_GOP")
    zero_acc()
    ap_addr()
    spin(3, "D", add=False)
    ap_read()
    main_loop("P")
    a("K2_GIVEUP:")
    arrive(1)
    spin(3, "E", add=False)
    a("s_branch K2_SLOW")
    assert XL % 256 == 0
    XF = G; WT = [ACC, raw(0, 0)]
    accs = [[[raw(1,0)+8*nb, raw(1,0)+8*nb+4] for nb in range(3)], [[raw(1,1)+8, raw(1,1)+12], [SP, SP+4], [SP+8, ADDR]]]
    a(f"""
    K2_LOADER:
    v_lshrrev_b32 v{vt+4}, 4, v{vt}
    s_lshl_b32 s{st1}, s{sg}, 2
    v_add_u32 v{vA1}, s{st1}, v{vt+4}
    v_and_b32 v{vt+5}, 15, v0
    v_xor_b32 v{vA1}, v{vA1}, v{vt+5}
    v_lshlrev_b32 v{vA1}, 4, v{vA1}
    v_lshl_add_u32 v{vA1}, v{vt+4}, 8, v{vA1}
    s_lshl_b32 s{st1}, s{sg}, 10
    """)
    for k in range(3):
        a(f"""
        s_add_u32 m0, s{st1}, {XL+4096*k}
        s_add_u32 s{st2}, s{st1}, {4096*k}
        buffer_load_dwordx4 v{vA1}, {sr(sX,4)}, s{st2} offen lds
        """)
    stamp(a, 1, "6")
    srot = sk
    a(f"s_lshl_b32 s{slut}, s{sg}, 13\ns_lshr_b32 s{srt}, s2, 3")
    for j in range(4):
        a(f"s_add_u32 s{srot+j}, s{srt}, {j}\ns_and_b32 s{srot+j}, s{srot+j}, 3\ns_lshl_b32 s{srot+j}, s{srot+j}, 10\ns_add_u32 s{st2}, s{slut}, s{srot+j}")
        for m in range(2):
            for hf in range(2):
                a(f"buffer_load_dwordx4 {vr(WT[m]+16*hf+4*j,4)}, v{vA2}, {sr(sWT,4)}, s{st2} offen")
                if (m, hf) != (1, 1): a(f"s_add_u32 s{st2}, s{st2}, {4096 if hf == 0 else 32768-4096}")
    stamp(a, 2, "6")
    a(f"""
    s_lshl_b32 s{st0}, s{sg}, 12
    s_add_u32 m0, s{st0}, {LUTL + 7*1024}
    s_add_u32 s{st2}, s{st0}, {LUT_OFF - WT_OFF + 7*1024}
    """)
    for j in range(4): a(f"buffer_load_dwordx4 v{vA2}, {sr(sWT,4)}, s{st2} offen offset:{1024*j} lds")
    a(f"""
    s_mul_i32 s{st0}, s{sg}, 3072
    s_add_u32 m0, s{st0}, {LUTL + 39*1024}
    s_add_u32 s{st2}, s{st0}, {LUT_OFF - WT_OFF + 39*1024}
    """)
    for j in range(3): a(f"buffer_load_dwordx4 v{vA2}, {sr(sWT,4)}, s{st2} offen offset:{1024*j} lds")
    a(f"""
    s_and_b32 s{st0}, s{sg}, 1
    s_lshl_b32 s{st0}, s{st0}, 15
    s_add_u32 m0, s{st0}, {LUTL + 31*1024}
    s_add_u32 s{st2}, s{st0}, {LUT_OFF - WT_OFF + 31*1024}
    buffer_load_dwordx4 v{vA2}, {sr(sWT,4)}, s{st2} offen lds
    """)
    ld_wc()
    stamp(a, 3, "6")
    a(f"""
    s_waitcnt vmcnt(26)
    """)
    arrive(2)
    a(f"""
    v_mov_b32 v{vt+8}, v{vt}
    v_and_b32 v{vt}, 15, v0
    v_bfe_u32 v{vt+1}, v0, 4, 2
    v_xor_b32 v{vt+2}, v{vt}, v{vt+1}
    v_lshlrev_b32 v{vt+2}, 4, v{vt+2}
    v_lshl_add_u32 v{vt+2}, v{vt}, 8, v{vt+2}
    v_add_u32 v{vt+2}, {XL}, v{vt+2}
    v_mul_u32_u24 v{vt}, {ROWP}, v{vt}
    """)
    stamp(a, 2); stamp(a, 5, "6")
    spin(2, "C", add=False)
    stamp(a, 6, "6")
    for s in range(4):
        a(f"s_lshr_b32 s{st0}, s{srot+s}, 4\nv_xor_b32 v{vt+3}, s{st0}, v{vt+2}")
        for nb in range(3):
            a(f"ds_read_b128 {vr(XF+16*nb+4*s,4)}, v{vt+3} offset:{4096*nb}")
    a(f"""
    s_lshr_b32 s{st0}, s{sg}, 1
    s_lshl_b32 s{st0}, s{st0}, 7
    s_and_b32 s{st1}, s{sg}, 1
    s_lshl_b32 s{st1}, s{st1}, 5
    s_add_u32 s{st0}, s{st0}, s{st1}
    v_lshl_add_u32 v{vt+4}, v{vt+1}, 3, v{vt}
    v_add_u32 v{vt+4}, s{st0}, v{vt+4}
    s_lshl_b32 s{st0}, s{sg}, 6
    v_lshl_add_u32 v{vt+5}, v{vt+1}, 3, v{vt}
    v_add_u32 v{vt+5}, s{st0}, v{vt+5}
    """)
    def mm1(m, s):
        return [f"v_mfma_f32_16x16x32_bf16 {vr(accs[m][nb][ab], 4)}, {vr(WT[m]+16*ab+4*s,4)}, {vr(XF+16*nb+4*s,4)}, {'0' if s == 0 else vr(accs[m][nb][ab], 4)}"
                for nb in range(3) for ab in range(2)]
    outA = []
    for nb in range(3):
        al, be = accs[0][nb]; o = EA+ (0 if nb != 1 else 4)
        for i in range(4): outA += [f"v_mul_f32 v{al+i}, s{cnl2e}, v{al+i}", f"v_mul_f32 v{be+i}, s{cnl2e}, v{be+i}"]
        outA += [f"v_cvt_pk_bf16_f32 v{o}, v{al}, v{al+2}", f"v_cvt_pk_bf16_f32 v{o+1}, v{be}, v{be+2}",
                 f"v_cvt_pk_bf16_f32 v{o+2}, v{al+1}, v{al+3}", f"v_cvt_pk_bf16_f32 v{o+3}, v{be+1}, v{be+3}",
                 f"ds_write_b64 v{vt+4}, {vr(o,2)} offset:{APL+16*ROWP*nb}", f"ds_write_b64 v{vt+4}, {vr(o+2,2)} offset:{APL+16*ROWP*nb+64}"]
    NPF = int(OPT.get("tpf", "0"))
    if NPF:
        srd(a, sS, 14, T_OFF, N*TS)
        a(f"""
        s_bfe_u32 s{st0}, s2, 0x50003
        s_lshl_b32 s{st0}, s{st0}, 2
        s_add_u32 s{st0}, s{st0}, s{sg}
        s_lshl_b32 s{st0}, s{st0}, 13
        v_lshlrev_b32 v{vt+9}, 7, v{vt+8}
        """)
        for j in range(NPF):
            a(f"buffer_load_dword v{vt+10}, v{vt+9}, {sr(sS,4)}, s{st0} offen")
            if j+1 < NPF: a(f"s_add_u32 s{st0}, s{st0}, {1 << 20}")
    g = []; cm = common1(XR+1, vt+8); k = 0
    for s in range(4):
        g.append(f"s_waitcnt vmcnt({22-4*s+NPF}) lgkmcnt({9-3*s})")
        for x in mm1(0, s) + (mm1(1, s) if s < 3 else []):
            g.append(x); g += cm[k:k+3]; k += 3
    assert k >= len(cm)
    k = 0
    for j, x in enumerate(mm1(1, 3)):
        g.append(x)
        if j >= 2: g += outA[k:k+3]; k += 3
    g += outA[k:]
    for nb in range(3):
        al, be = accs[1][nb]; o = XF+4*nb
        g += [f"v_cvt_pk_bf16_f32 v{o}, v{al}, v{al+1}", f"v_cvt_pk_bf16_f32 v{o+1}, v{al+2}, v{al+3}",
              f"v_cvt_pk_bf16_f32 v{o+2}, v{be}, v{be+1}", f"v_cvt_pk_bf16_f32 v{o+3}, v{be+2}, v{be+3}",
              f"ds_write_b64 v{vt+5}, {vr(o,2)} offset:{UL+16*ROWP*nb}", f"ds_write_b64 v{vt+5}, {vr(o+2,2)} offset:{UL+16*ROWP*nb+32}"]
    asmsim.check_hazards(g, "gemm")
    a.ext(g)
    a(f"s_waitcnt vmcnt({NPF})")
    arrive(3)
    stamp(a, 3); stamp(a, 7, "6")
    init_addr()
    spin(1, "F", add=False)
    a(f"""
    v_mov_b32 v{vt+2}, {INCL+60}
    ds_read2_b32 {vr(vt+4,2)}, v{vt+2} offset0:0 offset1:16
    ds_read2_b32 {vr(vt+6,2)}, v{vt+2} offset0:32 offset1:48
    s_waitcnt lgkmcnt(0)
    """)
    for g_ in range(4): a(f"v_readfirstlane_b32 s{sk+g_}, v{vt+4+g_}")
    a(f"""
    s_max_u32 s{st0}, s{sk}, s{sk+1}
    s_max_u32 s{st1}, s{sk+2}, s{sk+3}
    s_max_u32 s{st0}, s{st0}, s{st1}
    s_cmp_gt_u32 s{st0}, {CAPG*4}
    s_cbranch_scc1 K2_SLOW
    """)
    a("s_setprio 1")
    rank_groups()
    lane_setup()
    a("K2_REFILLC:")
    fill("C")
    a(f"s_cmp_lg_u32 s{sslow}, 0\ns_cbranch_scc1 K2_GOC")
    zero_acc()
    ap_addr()
    spin(3, "G", add=False)
    ap_read()
    stamp(a, 4)
    a("s_branch K2_GOC")
    a("K2_EMPTY:"); a.ext(ld_xr()); a("s_branch K2_DONE")
    for n in spins:
        a(f"""
        K2_SP{n}:
        ds_read_b32 v{vEa}, v{vPG}
        s_waitcnt lgkmcnt(0)
        v_cmp_gt_u32 vcc, s{sneed}, v{vEa}
        s_cbranch_vccnz K2_SP{n}
        s_branch K2_OK{n}
        """)
    main_loop("C")
    a(f"""
    K2_DONE:
    s_cmp_lg_u32 s{sslow}, 0
    s_cbranch_scc1 K2_ROUND
    K2_EPI:
    s_waitcnt vmcnt(0) lgkmcnt(0)
    """)
    stamp(a, 6); stamp(a, 6, "3")
    if OPT.get("prof") == "3": a("s_memtime s[88:89]")
    T0 = G
    for b in range(2):
        for r in range(6):
            a(f"v_add_f32 v{ACC+16*b+r}, 0x358637bd, v{ACC+16*b+r}")
        for r in range(6):
            a(f"v_rcp_f32 v{ACC+16*b+r}, v{ACC+16*b+r}")
        for r in range(6):
            u, x = T0+12*b+r, T0+12*b+6+r
            if b == 0: a(f"v_lshlrev_b32 v{u}, 16, v{UR+r}\nv_lshlrev_b32 v{x}, 16, v{XR+r}")
            else: a(f"v_and_b32 v{u}, 0xffff0000, v{UR+r}\nv_and_b32 v{x}, 0xffff0000, v{XR+r}")
        for r in range(6):
            u, x = T0+12*b+r, T0+12*b+6+r
            a(f"v_fmac_f32 v{u}, v{ACC+16*b+8+r}, v{ACC+16*b+r}\nv_max_f32 v{u}, 0, v{u}\nv_add_f32 v{u}, v{u}, v{x}")
    a(f"v_lshl_or_b32 v{vO2}, v{vH16}, 27, v{vO}")
    for r in range(6):
        a(f"v_cvt_pk_bf16_f32 v{SP+r}, v{T0+r}, v{T0+12+r}")
        a(f"buffer_store_dword v{SP+r}, v{vO if r < 4 else vO2}, {sr(sO,4)}, 0 offen offset:{256*rowoff(r)} {OPT.get('st_o', '')}")
    stamp(a, 7)
    stamp_out(a, 1, 14, sw, 2)
    a("K2_END:\ns_endpgm")

    a("K2_SLOW:")
    srd(a, sS, 8, None, E*4)
    srd(a, sD, 10, None, E*4)
    a(f"""
    s_mov_b32 s{sslow}, 1
    s_mov_b32 s{cm10}, {-GN}
    """)
    a("s_waitcnt vmcnt(0) lgkmcnt(0)\ns_barrier")
    zero_acc(); lane_setup(); ap_addr(); ap_read()
    a(f"""
    K2_ROUND:
    s_cmp_ge_u32 s{sround}, {E//RND}
    s_cbranch_scc1 K2_EPI
    s_mul_i32 s{st0}, s{sround}, {RND}
    s_add_u32 s{sround}, s{sround}, 1
    v_add_u32 v{EOFF}, s{st0}, v0
    v_lshlrev_b32 v{vt}, 2, v{EOFF}
    buffer_load_dword v{REC}, v{vt}, {sr(sD,4)}, 0 offen
    buffer_load_dword v{REC+1}, v{vt}, {sr(sS,4)}, 0 offen
    v_lshlrev_b32 v{EOFF}, 5, v{EOFF}
    v_and_b32 v{vt}, 63, v0
    v_lshlrev_b32 v{vt}, 3, v{vt}
    v_mov_b32 v{vt+4}, 0
    v_mov_b32 v{vt+5}, 0
    s_waitcnt lgkmcnt(0)
    s_barrier
    ds_write_b64 v{vt}, {vr(vt+4,2)} offset:{CNT}
    v_mov_b32 v{vt+3}, 4
    s_waitcnt vmcnt(0) lgkmcnt(0)
    s_barrier
    """)
    rec_fields(a, REC, REC+2, vt, cm40, cm10)
    a(f"""
    v_cmp_eq_u32 vcc, s2, v{REC+2}
    v_lshl_or_b32 v{REC}, v{REC+1}, 16, v{REC}
    {caddr(0)}
    s_mov_b64 s[78:79], vcc
    v_cmp_gt_u32 vcc, {RND}, v0
    s_and_b64 s[78:79], s[78:79], vcc
    s_mov_b64 exec, s[78:79]
    ds_add_rtn_u32 v{RANK}, v{CADDR}, v{vt+3} offset:{CNT}
    s_mov_b64 exec, -1
    s_waitcnt lgkmcnt(0)
    s_barrier
    """)
    scan(False)
    a(f"""
    s_mov_b64 exec, s[78:79]
    ds_read_b32 v{STV}, v{CADDR} offset:{START}
    s_waitcnt lgkmcnt(0)
    """)
    place(0, STV, EOFF)
    a(f"""
    s_mov_b64 exec, -1
    """)
    lane_setup()
    a(f"""
    s_waitcnt lgkmcnt(0)
    s_barrier
    s_cmp_eq_u32 s{sfh}, 0
    s_cbranch_scc1 K2_REFILLP
    s_branch K2_REFILLC
    K2_CODE_END:
    """)
    return a.text(), kd("k2_kernel", 256, 102)

KE_PROF = f"""
    s_memrealtime s[8:9]
    s_load_dwordx2 s[4:5], s[0:1], 88
    s_waitcnt lgkmcnt(0)
    s_add_u32 s4, s4, {PROF_OFF + 0x200000}
    s_addc_u32 s5, s5, 0
    s_mov_b32 s6, 4
    s_mov_b32 s7, 0x20000
    v_mov_b32 v1, s8
    v_lshlrev_b32 v0, 2, v0
    buffer_store_dword v1, v0, s[4:7], 0 offen
"""
def gen_kr():
    a = Asm()
    a(f"""
    kr_kernel:
    s_cmp_ge_u32 s2, 1
    s_cbranch_scc1 KR_END
    s_load_dwordx4 s[4:7], s[0:1], 80
    s_waitcnt lgkmcnt(0)
    s_add_u32 s8, s6, {PROF_OFF}
    s_addc_u32 s9, s7, 0
    s_mov_b32 s10, 0x200000
    s_mov_b32 s11, 0x20000
    s_mov_b32 s6, 256
    s_mov_b32 s7, 0x20000
    v_cmp_gt_u32 vcc, 250, v0
    s_and_saveexec_b64 s[12:13], vcc
    v_lshlrev_b32 v1, 10, v0
    v_mov_b32 v3, 0
    """)
    sel = [(0, 8, 0, 1), (0, 8, 0, 0), (0, 8, 2, 0), (0, 8, 3, 0), (0, 8, 5, 0), (0, 8, 8, 0),
           (1, 8, 0, 1), (1, 8, 0, 0), (1, 8, 2, 0), (1, 8, 3, 0), (1, 8, 5, 1), (1, 8, 5, 0), (1, 8, 6, 1), (1, 8, 6, 0), (1, 8, 8, 0)]
    w0 = 0
    if OPT.get("krsel"):
        w0, st_, mn_ = [int(x) for x in OPT["krsel"].split(",")]
        sel = [(1, 4, 0, 1), (1, 4, st_, mn_)]
    for j, (kn, nw, st, mn) in enumerate(sel):
        a(f"s_mov_b32 s14, {kn*0x100000 + 64*w0}")
        for w in range(nw): a(f"buffer_load_dword v{10+w}, v1, s[8:11], s14 offen offset:{64*w+4*st}")
        a("s_waitcnt vmcnt(0)")
        if mn:
            for w in range(nw): a(f"v_not_b32 v{10+w}, v{10+w}")
        for w in range(1, nw): a(f"v_max_u32 v10, v10, v{10+w}")
        a(f"buffer_atomic_umax v10, v3, s[4:7], 0 offen offset:{4*j}\ns_waitcnt vmcnt(0)")
    if OPT.get("iv"):
        ja, jb, k = [int(x) for x in OPT["iv"].split(",")]
        a(f"""
        s_barrier
        buffer_load_dword v10, v3, s[4:7], 0 offen offset:{4*ja} sc0 sc1
        buffer_load_dword v11, v3, s[4:7], 0 offen offset:{4*jb} sc0 sc1
        s_waitcnt vmcnt(0)
        v_readfirstlane_b32 s16, v10
        v_readfirstlane_b32 s17, v11
        """)
        if sel[ja][3]: a("s_not_b32 s16, s16")
        if sel[jb][3]: a("s_not_b32 s17, s17")
        a(f"""
        s_sub_u32 s16, s16, s17
        s_min_u32 s16, s16, 10000
        s_mul_i32 s16, s16, {k}
        s_memrealtime s[18:19]
        s_waitcnt lgkmcnt(0)
        KR_SPIN:
        s_memrealtime s[20:21]
        s_waitcnt lgkmcnt(0)
        s_sub_u32 s20, s20, s18
        s_cmp_lt_u32 s20, s16
        s_cbranch_scc1 KR_SPIN
        """)
    a("KR_END:\ns_endpgm")
    return a.text()

def main():
    k1, d1 = gen_k1(); k2, d2 = gen_k2()
    ref = open("standalone__edge_featured_mpnn_gatedgcn__graph.s.ref").read().split("\n")
    out = "\n".join(ref[:13]) + "\n"
    for ch in OPT.get("list", "12"):
        if ch == "1": out += f"; @launch kernel=k1_kernel grid=({2*NCH},1,1) block=(512,1,1) lds={K1_LDS}\n"
        if ch == "2": out += f"; @launch kernel=k2_kernel grid=({NBIN},1,1) block=(512,1,1) lds={K2_LDS}\n"
        if ch == "r": out += "; @launch kernel=kr_kernel grid=(1,1,1) block=(256,1,1) lds=0\n"
        if ch == "e": out += "; @launch kernel=ke_kernel grid=(1,1,1) block=(64,1,1) lds=0\n"
    out += '.amdgcn_target "amdgcn-amd-amdhsa--gfx950"\n.text\n'
    for n, k in (("k1_kernel", k1), ("k2_kernel", k2)):
        out += f".globl {n}\n.p2align 8\n.type {n},@function\n" + k
    if "e" in OPT.get("list", ""): out += ".globl ke_kernel\n.p2align 8\n.type ke_kernel,@function\nke_kernel:\n" + (KE_PROF if OPT.get("prof") else "") + "    s_endpgm\n"
    if "r" in OPT.get("list", ""): out += ".globl kr_kernel\n.p2align 8\n.type kr_kernel,@function\n" + gen_kr()
    out += '.section .rodata,"a"\n.p2align 6\n' + d1.lstrip("\n") + '.p2align 6\n' + d2.lstrip("\n")
    if "e" in OPT.get("list", ""): out += '.p2align 6\n' + kd("ke_kernel", 8, 16).lstrip("\n")
    if "r" in OPT.get("list", ""): out += '.p2align 6\n' + kd("kr_kernel", 32, 32).lstrip("\n")
    open(sys.argv[1], "w").write(out)

if __name__ == "__main__":
    main()
```

```python
import struct, sys
import asmsim

N = 10000; E = 320000
NCH = 128; CS = 2500
NBIN = 256; GN = 10
BINK, BINC, BINS = 53687, 52500, 21
assert all((625*b_ >> 4) <= d_ < (625*(b_+1) >> 4) for d_ in range(N) for b_ in [(d_*BINK + BINC) >> BINS])
CAP = 32
TS = int(([a for a in sys.argv if a.startswith('ts=')] or ['ts=512'])[0][3:])
T_OFF = 0x1000000
REC_OFF = 0x700000
WT_OFF = 0xB00000
LUT_OFF = 0xB20000
PROF_OFF = 0xF000000
NL2E = struct.unpack("<I", struct.pack("<f", -1.4426950408889634))[0]

def bf(x): return struct.unpack("<I", struct.pack("<f", x))[0] >> 16

OPT = dict(st_r="sc1", st_t="sc1")
for a in sys.argv[2:]:
    k, v = a.split("=", 1); OPT[k] = v

class Asm:
    def __init__(self): self.l = []
    def __call__(self, s):
        for x in s.strip("\n").split("\n"):
            x = x.strip()
            if not x: continue
            if x.startswith(";"): x = "s_nop 0"
            self.l.append(x if x.endswith(":") else "    " + x)
    def ext(self, lst):
        for x in lst: self(x)
    def text(self): return "\n".join(self.l) + "\n"

def stamp(a, i, lvl="1"):
    if OPT.get("prof") and (i in (0, 8) or OPT["prof"] == lvl): a(f"s_memrealtime s[{84+2*i}:{85+2*i}]")
def stamp_out(a, kern, wsreg, sw, vtmp):
    if not OPT.get("prof"): return
    if not (OPT.get("nowait") and kern == 0): a("s_waitcnt vmcnt(0)")
    stamp(a, 8)
    a(f"""
    s_lshl_b32 s4, s2, 4
    s_add_u32 s4, s4, s{sw}
    s_lshl_b32 s4, s4, 6
    s_add_u32 s4, s4, {PROF_OFF + kern*0x100000}
    s_add_u32 s4, s{wsreg}, s4
    s_addc_u32 s5, s{wsreg+1}, 0
    s_mov_b32 s6, 64
    s_mov_b32 s7, 0x20000
    s_waitcnt lgkmcnt(0)
    """)
    if kern == 1 and OPT["prof"] == "7":
        a(f"v_mov_b32 v{vtmp}, v251\nv_writelane_b32 v{vtmp}, s84, 0\ns_mov_b32 m0, s98\ns_add_u32 s98, s98, 1\nv_writelane_b32 v{vtmp}, s86, m0\ns_mov_b32 m0, s98\ns_nop 3\nv_writelane_b32 v{vtmp}, s100, m0\nv_writelane_b32 v{vtmp}, s98, 15")
    else:
        for i in range(9): a(f"v_writelane_b32 v{vtmp}, s{84+2*i}, {i}")
    a(f"""
    v_mbcnt_lo_u32_b32 v{vtmp+1}, -1, 0
    v_mbcnt_hi_u32_b32 v{vtmp+1}, -1, v{vtmp+1}
    v_lshlrev_b32 v{vtmp+1}, 2, v{vtmp+1}
    buffer_store_dword v{vtmp}, v{vtmp+1}, s[4:7], 0 offen
    """)

def vr(b, n): return f"v[{b}:{b+n-1}]"
def sr(b, n): return f"s[{b}:{b+n-1}]"

def srd(a, d, base, add=None, size=None, w3="0x20000", hi_or=None):
    if add is None:
        a(f"s_mov_b32 s{d}, s{base}\ns_mov_b32 s{d+1}, s{base+1}")
    else:
        a(f"s_add_u32 s{d}, s{base}, {add}\ns_addc_u32 s{d+1}, s{base+1}, 0")
    if hi_or: a(f"s_or_b32 s{d+1}, s{d+1}, {hi_or}")
    a(f"s_mov_b32 s{d+2}, {size}\ns_mov_b32 s{d+3}, {w3}")

def kd(name, vgpr, sgpr):
    return f"""
.amdhsa_kernel {name}
  .amdhsa_next_free_vgpr {vgpr}
  .amdhsa_next_free_sgpr {sgpr}
  .amdhsa_accum_offset {(vgpr+3)//4*4}
  .amdhsa_group_segment_fixed_size 0
  .amdhsa_kernarg_size 96
  .amdhsa_user_sgpr_count 2
  .amdhsa_user_sgpr_kernarg_segment_ptr 1
  .amdhsa_system_sgpr_workgroup_id_x 1
.end_amdhsa_kernel
"""

def pair_of_lane(a, d, t):
    a(f"""
    v_and_b32 v{d}, 17, v0
    v_lshlrev_b32 v{d}, 2, v{d}
    v_bfe_u32 v{t}, v0, 1, 1
    v_lshl_add_u32 v{d}, v{t}, 5, v{d}
    v_bfe_u32 v{t}, v0, 2, 2
    v_lshl_add_u32 v{d}, v{t}, 3, v{d}
    """)

def rec_fields(a, vd, vbin, vtmp, sm40, sm10):
    a(f"""
    v_mul_u32_u24 v{vbin}, {BINK}, v{vd}
    v_add_u32 v{vbin}, {BINC}, v{vbin}
    v_lshrrev_b32 v{vbin}, {BINS}, v{vbin}
    v_mul_u32_u24 v{vtmp}, 625, v{vbin}
    v_lshrrev_b32 v{vtmp}, 4, v{vtmp}
    v_sub_u32 v{vd}, v{vd}, v{vtmp}
    v_mul_u32_u24 v{vtmp}, 26, v{vd}
    v_lshrrev_b32 v{vtmp}, 8, v{vtmp}
    v_mad_i32_i24 v{vd}, v{vtmp}, s{sm10}, v{vd}
    v_lshl_or_b32 v{vd}, v{vtmp}, 30, v{vd}
    """)

K1_CNT = 0; K1_STG = 1024; K1_W = 34816; K1_X = K1_W + 32768; K1_LDS = K1_X + 24576
RLO, RHI = 96, 64
def gen_k1():
    a = Asm()
    sS, sD, sW1, sW2, sX, sR, sT, sP = 24, 28, 32, 36, 40, 44, 48, 72
    sw, st0, st1, st2, snb, sfb, sch, shf, srow, snr = 52, 53, 54, 55, 56, 57, 58, 69, 71, 76
    c8192, cm10, cnl2e, csign, cmag, ctso, cp0 = 60, 62, 63, 64, 65, 66, 67
    vD, vS, vB, vSL, vt = 4, 12, 20, 28, 36
    vg = 56; vTR, vXA, vST = 64, 65, 66; vWC = 72
    vW, vX, vA, vO = 96, 160, 176, 192
    def W(m, ab, s): return vW + 32*m + 16*ab + 4*s
    a("k1_kernel:")
    a(f"s_cmp_ge_u32 s2, {2*NCH}\ns_cbranch_scc1 K1_END")
    stamp(a, 0)
    a(f"""
    s_load_dwordx16 s[4:19], s[0:1], 0
    s_load_dwordx2 s[20:21], s[0:1], 64
    s_load_dwordx2 s[22:23], s[0:1], 88
    """)
    if OPT.get("pf1", "0") == "1":
        a(f"""
        s_getpc_b64 {sr(sP,2)}
        K1_PC1:
        s_mov_b32 s{sP+2}, K1_END-K1_PC1
        s_mov_b32 s{sP+3}, 0x20000
        v_lshlrev_b32 v33, 7, v0
        buffer_load_dword v34, v33, {sr(sP,4)}, 0 offen
        """)
    a(f"""
    v_lshrrev_b32 v2, 6, v0
    v_lshlrev_b32 v1, 2, v0
    v_readfirstlane_b32 s{sw}, v2
    v_lshlrev_b32 v2, 4, v0
    s_mov_b32 s{c8192}, 8192
    s_sub_u32 s{sch}, s2, {NCH}
    s_and_b32 s{shf}, s2, 1
    v_and_b32 v{vg}, 63, v0
    v_lshrrev_b32 v{vg+1}, 4, v{vg}
    v_and_b32 v{vg+2}, 15, v0
    s_and_b32 s{st0}, s{sw}, 3
    s_lshl_b32 s{st0}, s{st0}, 2
    v_add_u32 v{vg+3}, s{st0}, v{vg+1}
    v_xor_b32 v{vg+3}, v{vg+3}, v{vg+2}
    v_lshlrev_b32 v{vg+3}, 4, v{vg+3}
    v_lshl_add_u32 v{vg+3}, v{vg+1}, 8, v{vg+3}
    v_lshrrev_b32 v{vg+4}, 3, v{vg}
    v_and_b32 v{vg+5}, 2, v{vg+4}
    s_lshr_b32 s{st0}, s2, 3
    s_add_u32 s{st0}, s{st0}, s{sw}
    s_and_b32 s{st0}, s{st0}, 1
    s_lshl_b32 s{st0}, s{st0}, 2
    v_and_b32 v{vg+6}, 7, v0
    v_xor_b32 v{vg+5}, v{vg+5}, v{vg+6}
    v_xor_b32 v{vg+5}, s{st0}, v{vg+5}
    v_lshlrev_b32 v{vg+5}, 4, v{vg+5}
    v_lshl_add_u32 v{vg+4}, v{vg+4}, 8, v{vg+5}
    s_lshr_b32 s{st0}, s2, 1
    s_mul_i32 s{srow}, s{st0}, {RLO}
    s_mul_i32 s{st0}, s{st0}, {RHI}
    s_add_u32 s{st0}, s{st0}, {64*(RLO-RHI)}
    s_cmp_lt_u32 s2, {NCH}
    s_cselect_b32 s{srow}, s{srow}, s{st0}
    s_cselect_b32 s{snr}, {RLO}, {RHI}
    s_min_u32 s{srow}, s{srow}, {N}
    s_sub_u32 s{st0}, {N}, s{srow}
    s_min_u32 s{snr}, s{snr}, s{st0}
    s_mul_i32 s{st1}, s{sch}, {CS*4}
    s_cmp_lt_u32 s2, 254
    s_waitcnt lgkmcnt(0)
    s_cselect_b64 {sr(sW1,2)}, s[14:15], s[12:13]
    s_cselect_b64 {sr(sW2,2)}, s[20:21], s[18:19]
    s_cmp_lt_u32 s2, {NCH}
    s_cbranch_scc1 K1_NOIDX
    """)
    srd(a, sD, 10, f"s{st1}", CS*4)
    srd(a, sS, 8, f"s{st1}", CS*4)
    a(f"""
    buffer_load_dwordx4 {vr(vD,4)}, v2, {sr(sD,4)}, 0 offen
    buffer_load_dwordx4 {vr(vS,4)}, v2, {sr(sS,4)}, 0 offen
    buffer_load_dword v{vD+4}, v1, {sr(sD,4)}, s{c8192} offen
    buffer_load_dword v{vS+4}, v1, {sr(sS,4)}, s{c8192} offen
    s_barrier
    K1_NOIDX:
    s_lshl_b32 s{st0}, s{srow}, 8
    s_add_u32 s{sX}, s4, s{st0}
    s_addc_u32 s{sX+1}, s5, 0
    s_lshl_b32 s{sX+2}, s{snr}, 8
    s_mov_b32 s{sX+3}, 0x20000
    s_mov_b32 s{sW1+2}, 32768
    s_mov_b32 s{sW1+3}, 0x20000
    s_mov_b32 s{sW2+2}, 32768
    s_mov_b32 s{sW2+3}, 0x20000
    s_lshl_b32 s{shf+1}, s{shf}, 7
    s_lshl_b32 s{st1}, s{sw}, 10
    """)
    def dma_x(k):
        a(f"s_add_u32 m0, s{st1}, {K1_X + 8192*k}\ns_add_u32 s{st2}, s{st1}, {8192*k}\nbuffer_load_dwordx4 v{vg+3}, {sr(sX,4)}, s{st2} offen lds")
    def stage_w():
        a(f"s_lshr_b32 s{st2}, s2, 3\ns_add_u32 s{st2}, s{st2}, s{sw}\ns_and_b32 s{st2}, s{st2}, 15")
        for k in range(2):
            a(f"""
            s_lshl_b32 s{st0}, s{st2}, 10
            s_add_u32 m0, s{st0}, {K1_W}
            s_lshl_b32 s{st1}, s{st2}, 11
            s_add_u32 s{st1}, s{st1}, s{shf+1}
            buffer_load_dwordx4 v{vg+4}, {sr(sW1,4)}, s{st1} offen lds
            s_add_u32 m0, s{st0}, {K1_W+16384}
            s_xor_b32 s{st2}, s{st2}, 8
            buffer_load_dwordx4 v{vg+4}, {sr(sW2,4)}, s{st1} offen lds
            """)
    dma_x(0); dma_x(1)
    a(f"s_sub_u32 s{st0}, s2, {NCH}\ns_cmp_lt_u32 s{st0}, {254-NCH}\ns_cbranch_scc1 K1_LATER")
    dma_x(2); stage_w()
    a(f"""
    K1_LATER:
    s_and_b32 s{sfb}, s{sw}, 1
    s_lshr_b32 s{snb}, s{sw}, 1
    v_bfe_u32 v{vg+5}, v0, 2, 2
    v_bfe_u32 v{vg+6}, v0, 3, 2
    s_lshl_b32 s{st0}, s{sfb}, 1
    v_xor_b32 v{vg+6}, s{st0}, v{vg+6}
    v_and_b32 v{vg+7}, 3, v0
    v_lshlrev_b32 v{vg+7}, 3, v{vg+7}
    v_lshl_add_u32 v{vg+7}, v{vg+6}, 5, v{vg+7}
    v_lshl_add_u32 v{vg+5}, v{vg+1}, 3, v{vg+5}
    v_lshl_add_u32 v{vTR}, v{vg+5}, 7, v{vg+7}
    v_xor_b32 v{vTR+6}, 32, v{vTR}
    v_xor_b32 v{vXA}, v{vg+1}, v{vg+2}
    v_lshlrev_b32 v{vXA}, 4, v{vXA}
    v_lshl_add_u32 v{vXA}, v{vg+2}, 8, v{vXA}
    s_lshl_b32 s{st0}, s{snb}, 12
    s_add_u32 s{st0}, s{st0}, {K1_X}
    v_add_u32 v{vXA}, s{st0}, v{vXA}
    v_xor_b32 v{vXA+2}, 64, v{vXA}
    v_xor_b32 v{vXA+3}, 0x80, v{vXA}
    v_xor_b32 v{vXA+4}, 0xc0, v{vXA}
    v_mul_u32_u24 v{vST}, {TS}, v{vg+2}
    v_lshl_add_u32 v{vST}, v{vg+1}, 4, v{vST}
    s_mul_i32 s{ctso}, s{snb}, {16*TS}
    s_lshl_b32 s{st1}, s{shf}, 8
    s_add_u32 s{ctso}, s{ctso}, s{st1}
    s_lshl_b32 s{st1}, s{sfb}, 6
    s_add_u32 s{ctso}, s{ctso}, s{st1}
    s_mov_b32 s{cnl2e}, {NL2E:#x}
    s_mov_b32 s{csign}, 0x00800000
    s_mov_b32 s{cmag}, 0x7fffffff
    s_mov_b32 s{cp0}, 0x07060100
    s_mov_b32 s{cp0+1}, 0x07060302
    s_mul_i32 s{st0}, s{srow}, {TS}
    s_add_u32 s{st0}, s{st0}, {T_OFF}
    s_mul_i32 s{st1}, s{snr}, {TS}
    """)
    srd(a, sT, 22, f"s{st0}", f"s{st1}")
    stamp(a, 1)
    a(f"s_cmp_lt_u32 s2, {NCH}\ns_cbranch_scc1 K1_NOBIN")
    a(f"""
    v_mov_b32 v{vt}, -1
    v_mov_b32 v{vt+1}, -1
    v_mov_b32 v{vt+2}, -1
    v_mov_b32 v{vt+3}, -1
    v_mov_b32 v{vt+5}, 0
    v_and_b32 v{vt+6}, 0x3fc, v1
    """)
    for k in range(4): a(f"ds_write_b128 v2, {vr(vt,4)} offset:{K1_STG+8192*k}")
    a(f"""
    ds_write_b32 v{vt+6}, v{vt+5} offset:{K1_CNT}
    s_lshl_b32 s{st0}, s{sch}, 7
    s_add_u32 s{st0}, s{st0}, {REC_OFF}
    """)
    srd(a, sR, 22, f"s{st0}", NBIN*NCH*128)
    a(f"s_lshl_b32 s{st0}, s{sch}, 9\ns_add_u32 s{st1}, s{st0}, {LUT_OFF}")
    srd(a, sP, 22, f"s{st1}", 512)
    l0, l1 = vt+10, vt+11
    a(f"""
    v_add_u32 v{l0}, s{st0}, v1
    v_and_b32 v{l1}, 0x7fff, v{l0}
    v_cmp_ne_u32 vcc, 0x7c00, v{l1}
    v_or_b32 v{l1}, 3, v{l0}
    s_nop 0
    v_addc_co_u32 v{l0}, vcc, 0, v{l0}, vcc
    v_cvt_f32_f16 v{l1}, v{l1}
    v_cvt_f32_f16 v{l0}, v{l0}
    v_exp_f32 v{l1}, v{l1}
    v_exp_f32 v{l0}, v{l0}
    v_add_f32 v{l1}, 1.0, v{l1}
    v_add_f32 v{l0}, 1.0, v{l0}
    v_rcp_f32 v{l1}, v{l1}
    v_rcp_f32 v{l0}, v{l0}
    s_mov_b32 s{cm10}, {-GN}
    v_cvt_pk_bf16_f32 v{l0}, v{l0}, v{l1}
    v_mov_b32 v{vt+5}, 1
    v_cmp_gt_u32 vcc, {CS-2048}, v0
    s_mov_b64 s[80:81], vcc
    v_lshrrev_b32 v{vt+7}, 3, v0
    v_and_b32 v{vt+8}, 7, v0
    v_lshlrev_b32 v{vt+9}, 14, v{vt+7}
    v_lshl_add_u32 v{vt+9}, v{vt+8}, 4, v{vt+9}
    v_lshlrev_b32 v{vt+7}, 2, v{vt+7}
    v_cmp_eq_u32 s[82:83], 7, v{vt+8}
    s_waitcnt lgkmcnt(0)
    s_barrier
    s_cmp_ge_u32 s2, 254
    s_cbranch_scc1 K1_W7
    s_waitcnt vmcnt(2)
    K1_W7:
    s_waitcnt vmcnt(7)
    """)
    stamp(a, 2)
    for r in range(5):
        rec_fields(a, vD+r, vB+r, vt, None, cm10)
        a(f"v_lshlrev_b32 v{vt}, 2, v{vB+r}")
        if r == 4: a("s_mov_b64 exec, s[80:81]")
        a(f"ds_add_rtn_u32 v{vSL+r}, v{vt}, v{vt+5} offset:{K1_CNT}")
        if r == 4: a("s_mov_b64 exec, -1")
    a("s_cmp_ge_u32 s2, 254\ns_cbranch_scc1 K1_NOWC")
    stage_w()
    a(f"""
    s_cmp_eq_u32 s2, 252
    s_cbranch_scc0 K1_NOWC
    """)
    srd(a, sS, 16, None, 4096)
    a(f"""
    v_lshrrev_b32 v{vWC+8}, 5, v{vg}
    """)
    pair_of_lane(a, vWC+9, vWC+10)
    a(f"""
    v_lshl_add_u32 v{vWC+9}, v{vWC+8}, 11, v{vWC+9}
    s_bfe_u32 s{st1}, s{sw}, 0x10001
    s_lshl_b32 s{st1}, s{st1}, 7
    s_lshl_b32 s{st0}, s{sfb}, 1
    s_add_u32 s{st1}, s{st1}, s{st0}
    """)
    for j in range(8): a(f"buffer_load_ushort v{vWC+j}, v{vWC+9}, {sr(sS,4)}, s{st1} offen offset:{256*j}")
    a("K1_NOWC:")
    for r in range(5):
        a(f"v_lshl_or_b32 v{vD+r}, v{vS+r}, 16, v{vD+r}")
        a(f"v_add_u32 v{vS+r}, {r}, v1" if r < 4 else f"v_add_u32 v{vS+r}, 2048, v0")
        a(f"v_lshl_or_b32 v{vD+r}, v{vS+r}, 4, v{vD+r}\nv_lshlrev_b32 v{vB+r}, 7, v{vB+r}")
    for r in range(5):
        a("s_waitcnt lgkmcnt(4)")
        if r == 4: a("s_mov_b64 exec, s[80:81]")
        a(f"""
        v_and_b32 v{vt}, 12, v{vSL+r}
        v_add_u32 v{vB+r}, v{vB+r}, v{vt}
        v_and_b32 v{vt}, 3, v{vSL+r}
        v_lshl_add_u32 v{vB+r}, v{vt}, 4, v{vB+r}
        v_and_b32 v{vt}, 16, v{vSL+r}
        v_lshl_add_u32 v{vB+r}, v{vt}, 2, v{vB+r}
        v_cmpx_gt_u32 vcc, {CAP}, v{vSL+r}
        ds_write_b32 v{vB+r}, v{vD+r} offset:{K1_STG}
        s_mov_b64 exec, -1
        """)
    a("s_waitcnt lgkmcnt(0)\ns_barrier")
    for k in range(4):
        a(f"ds_read_b128 {vr(4+4*k,4)}, v2 offset:{K1_STG+8192*k}\nds_read_b32 v{20+k}, v{vt+7} offset:{K1_CNT+256*k}")
    a(f"""
    v_mov_b32 v{vt+2}, -2
    s_mov_b32 s{st2}, 0
    buffer_store_dword v{l0}, v1, {sr(sP,4)}, 0 offen {OPT['st_r']}
    """)
    stamp(a, 3)
    for k in range(4):
        a(f"""
        s_waitcnt lgkmcnt({6-2*k})
        v_cmp_lt_u32 vcc, {CAP}, v{20+k}
        s_and_b64 vcc, vcc, s[82:83]
        s_nop 1
        v_cndmask_b32 v{7+4*k}, v{7+4*k}, v{vt+2}, vcc
        buffer_store_dwordx4 {vr(4+4*k,4)}, v{vt+9}, {sr(sR,4)}, s{st2} offen {OPT['st_r']}
        s_add_u32 s{st2}, s{st2}, {64*16384}
        """)
    a(f"""
    s_waitcnt vmcnt(5)
    s_branch K1_STAGED
    K1_NOBIN:
    """)
    if OPT.get("pf", "1") == "1":
        a(f"""
        s_getpc_b64 {sr(sP,2)}
        K1_PC:
        s_add_u32 s{sP}, s{sP}, k2_kernel-K1_PC
        s_addc_u32 s{sP+1}, s{sP+1}, 0
        s_mov_b32 s{sP+2}, K2_CODE_END-k2_kernel
        s_mov_b32 s{sP+3}, 0x20000
        s_bfe_u32 s{st0}, s2, 0x40003
        s_lshl_b32 s{st0}, s{st0}, 12
        v_lshlrev_b32 v33, 7, v0
        v_cmp_gt_u32 vcc, 32, v0
        s_and_saveexec_b64 s[80:81], vcc
        s_cbranch_execz K1_NOPC
        buffer_load_dword v34, v33, {sr(sP,4)}, s{st0} offen
        s_mov_b64 exec, s[80:81]
        s_waitcnt vmcnt(1)
        s_branch K1_PCD
        K1_NOPC:
        s_mov_b64 exec, s[80:81]
        s_waitcnt vmcnt(0)
        K1_PCD:
        """)
    else: a("s_waitcnt vmcnt(0)")
    stamp(a, 2); stamp(a, 3)
    a(f"""
    K1_STAGED:
    s_barrier
    """)
    PM = int(OPT.get("pm", "0"))
    if PM:
        a(f"s_mul_i32 s{st0}, s2, {313*128}\ns_sub_u32 s{st1}, {E*32}, s{st0}\ns_min_u32 s{st1}, s{st1}, {PM*128}")
        if OPT.get("pmlo"): a(f"s_cmp_lt_u32 s2, {NCH}\ns_cselect_b32 s{st1}, s{st1}, 0")
        srd(a, sP, 6, f"s{st0}", f"s{st1}")
        a(f"v_xor_b32 v33, 0x1c0, v0\nv_lshlrev_b32 v33, 7, v33\nbuffer_load_dword v34, v33, {sr(sP,4)}, 0 offen")
    a(f"""
    s_cmp_eq_u32 s2, 252
    s_cbranch_scc1 K1_WC
    """)
    def xrd(reg, off):
        for s in range(4): a(f"ds_read_b128 {vr(reg+4*s,4)}, v{[vXA, vXA+2, vXA+3, vXA+4][s]} offset:{off}")
    def trs(s):
        for m in range(2):
            for ab in range(2):
                for u in range(2):
                    a(f"ds_read_b64_tr_b16 {vr(W(m,ab,s)+2*u,2)}, v{vTR+6*ab} offset:{K1_W+m*16384+s*4096+u*512}")
    def mm(s, x, acc):
        return [f"v_mfma_f32_16x16x32_bf16 {vr(acc+8*m+4*ab,4)}, {vr(W(m,ab,s),4)}, {vr(x+4*s,4)}, {'0' if s == 0 else vr(acc+8*m+4*ab,4)}"
                for m in range(2) for ab in range(2)]
    def pack(acc, out):
        o = []
        for b in range(2):
            for ab in range(2):
                b0, b1 = acc+4*ab+b, acc+4*ab+2+b
                hs = [acc+8+4*ab+2*e_+b for e_ in range(2)]
                o += [f"v_mul_f32 v{b0}, s{cnl2e}, v{b0}", f"v_mul_f32 v{b1}, s{cnl2e}, v{b1}"]
                for e_, h in enumerate(hs): o += [f"v_max_f32 v{30+e_}, abs(v{h}), s{csign}", f"v_bfi_b32 v{h}, s{cmag}, v{30+e_}, v{h}"]
                o += [f"v_cvt_pk_bf16_f32 v{b0}, v{b0}, v{b1}"] + [f"v_add_u32 v{h}, 0x8000, v{h}" for h in hs]
                o += [f"v_sub_u32_sdwa v{h}, v{h}, v{b0} dst_sel:DWORD dst_unused:UNUSED_PAD src0_sel:DWORD src1_sel:WORD_{e_}" for e_, h in enumerate(hs)]
                o += [f"v_perm_b32 v{out+4*b+2*ab+e_}, v{h}, v{b0}, s{cp0+e_}" for e_, h in enumerate(hs)]
            o.append(f"buffer_store_dwordx4 {vr(out+4*b,4)}, v{vST}, {sr(sT,4)}, s{ctso} offen offset:{128*b} {OPT['st_t']}")
        return o
    xrd(vX, 0)
    trs(0); a("s_waitcnt lgkmcnt(6)")
    for s in range(1, 4):
        trs(s); a("s_waitcnt lgkmcnt(8)"); a.ext(mm(s-1, vX, vA))
        if s < 3: a("s_waitcnt lgkmcnt(6)")
    a(f"""
    s_waitcnt lgkmcnt(0)
    s_cmp_ge_u32 s2, 254
    s_cbranch_scc1 K1_WT
    s_lshl_b32 s{st0}, s{snb}, 4
    s_add_u32 s{st0}, s{st0}, 64
    s_cmp_lt_u32 s{st0}, s{snr}
    s_cbranch_scc0 K1_ONE
    """)
    vX2, vA2 = 208, 224
    xrd(vX2, 16384)
    g = mm(3, vX, vA) + ["s_waitcnt lgkmcnt(0)"]
    m2 = sum((mm(s, vX2, vA2) for s in range(4)), []); pk = pack(vA, vO)
    g += m2[:6]; k = 0
    for x in m2[6:]:
        g.append(x); g += pk[k:k+3]; k += 3
    g += pk[k:] + [f"s_add_u32 s{ctso}, s{ctso}, {64*TS}"] + pack(vA2, vO+8)
    asmsim.check_hazards(g, "k1 two blocks")
    a.ext(g)
    a("s_branch K1_TAIL\nK1_ONE:")
    g = mm(3, vX, vA) + ["s_nop 7"] + pack(vA, vO)
    asmsim.check_hazards(g, "k1 one block")
    a.ext(g)
    a("K1_TAIL:")
    stamp(a, 4); stamp(a, 5)
    PL = int(OPT.get("pl", "0"))
    if PL:
        a(f"""
        s_cmp_lt_u32 s2, {NCH}
        s_cbranch_scc0 K1_NOPF
        s_mul_i32 s{st0}, s2, {CS*32}
        """)
        srd(a, sP, 6, f"s{st0}", PL*128)
        a(f"""
        v_lshlrev_b32 v4, 7, v0
        s_mov_b32 s{st0}, 65536
        s_barrier
        buffer_load_dword v5, v4, {sr(sP,4)}, 0 offen
        buffer_load_dword v5, v4, {sr(sP,4)}, s{st0} offen
        K1_NOPF:
        """)
    stamp(a, 6); stamp(a, 7)
    stamp_out(a, 0, 22, sw, 2)
    a("s_endpgm")
    a("K1_WT:")
    srd(a, sT, 22, WT_OFF, 65536)
    a(f"""
    s_cmp_ge_u32 s{sw}, 4
    s_cbranch_scc1 K1_END
    v_lshlrev_b32 v2, 4, v{vg}
    s_lshl_b32 s{st0}, s{snb}, 2
    s_lshl_b32 s{st1}, s{shf}, 1
    s_add_u32 s{st0}, s{st0}, s{st1}
    s_add_u32 s{st0}, s{st0}, s{sfb}
    s_lshl_b32 s{st0}, s{st0}, 13
    s_add_u32 s{st1}, s{st0}, 4096
    s_cmp_eq_u32 s{snb}, 0
    s_cbranch_scc0 K1_WU
    """)
    for m in range(2):
        for ab in range(2):
            for s in range(4):
                a(f"buffer_store_dwordx4 {vr(W(m,ab,s),4)}, v2, {sr(sT,4)}, s{st1 if ab else st0} offen offset:{1024*s} {OPT['st_t']}")
        a("s_endpgm")
        if m == 0: a("K1_WU:")
    a("K1_WC:")
    srd(a, sT, 22, WT_OFF+65536, 4096)
    a(f"v_lshlrev_b32 v2, 4, v{vg}\ns_lshl_b32 s{st0}, s{sw}, 10")
    for j in range(8):
        a(f"v_lshlrev_b32 v{vWC+j}, 16, v{vWC+j}\nv_mul_f32 v{vWC+j}, s{cnl2e}, v{vWC+j}")
    for j in range(4):
        a(f"v_cvt_pk_bf16_f32 v{84+j}, v{vWC+2*j}, v{vWC+1+2*j}")
    a(f"buffer_store_dwordx4 v[84:87], v2, {sr(sT,4)}, s{st0} offen {OPT['st_t']}")
    a("K1_END:\ns_endpgm")
    return a.text(), kd("k1_kernel", 240, 102)

CAPG = 416; RND = 400
CNT = 0; FLG = 256; START = 512; INCL = 768; OHL = 1024; L1 = 1536; L2 = L1 + 4*CAPG*4; APL = L2 + 4*CAPG*4
ROWP = 272
UL = APL + 48*ROWP; LUTL = UL + 48*ROWP; STG = (LUTL + 65536 + 255)//256*256; XL = STG + 3*CAPG*32 + 5*1024; K2_LDS = XL + 12288
PROG = FLG + 32
assert K2_LDS <= 163840 and K2_LDS >= STG + 4*CAPG*32 and LUTL <= 65535 and (4*CAPG*4) % 256 == 0

def gen_k2():
    a = Asm()
    sREC, sX, sWT, sT, sE, sO, sD, sS = 24, 28, 32, 36, 40, 44, 68, 72
    sw, sg, sfh, st0, st1, st2 = 48, 49, 50, 51, 52, 53
    scount, sslow, sround, slim, sgb, srt, slut, srank = 54, 55, 56, 57, 58, 59, 82, 83
    stail = 20
    sdma, sm0, sneed = 21, 22, 23
    cm32, c128, cnl2e, cfc, csrc, cm40, cm10, cfe = 60, 61, 62, 63, 64, 65, 66, 67
    sk = 16
    vH16, vA1, vA2, vEa, vOa, vO, vA3 = 1, 2, 3, 4, 5, 6, 7
    WC = 8; AP = 16; PA = 24; SC = 28; OH = 32; EA = 40; ADDR = 48; ACC = 64; SP = 96; G = 112; RAW = 176
    XR = 240; UR = 246; vP16 = 252; vH256 = 253; vHS = 254; vPG = 255; vM15 = XR; vO2 = SP+8
    raw = lambda p, b: RAW + 32*p + 16*b
    gb = lambda p, b: G + 32*p + 16*b
    vt = gb(1, 1); Z = SP; EOFF = SP+14
    REC = raw(1, 0); CADDR = REC+16; RANK = G; STV = G+16
    NTB = [int(c_) for c_ in OPT.get("nt", "11")]
    rowoff = lambda r: 8*(r >> 2) + (r & 3)
    sd = "dst_sel:DWORD dst_unused:UNUSED_PAD src0_sel:DWORD"

    a("k2_kernel:")
    a(f"s_cmp_ge_u32 s2, {NBIN}\ns_cbranch_scc1 K2_END")
    stamp(a, 0)
    a(f"""
    s_load_dwordx8 s[4:11], s[0:1], 0
    s_load_dwordx2 s[12:13], s[0:1], 72
    s_load_dwordx2 s[14:15], s[0:1], 88
    v_lshrrev_b32 v{vt}, 6, v0
    v_lshrrev_b32 v{vt+1}, 2, v0
    v_readfirstlane_b32 s{sw}, v{vt}
    v_and_b32 v{vt+2}, 3, v0
    v_lshlrev_b32 v{vt+3}, 7, v{vt+1}
    v_lshl_add_u32 v{vt+3}, v{vt+2}, 4, v{vt+3}
    s_lshl_b32 s{st0}, s2, 14
    s_add_u32 s{st0}, s{st0}, {REC_OFF}
    v_and_b32 v{vt}, 63, v0
    v_lshlrev_b32 v{vt+5}, 3, v{vt}
    v_mov_b32 v{Z}, 0
    v_mov_b32 v{Z+1}, 0
    ds_write_b64 v{vt+5}, {vr(Z,2)} offset:{CNT}
    s_and_b32 s{sg}, s{sw}, 3
    s_lshr_b32 s{sfh}, s{sw}, 2
    v_lshlrev_b32 v{vA2}, 4, v{vt}
    s_mov_b32 s{st1}, 8192
    s_waitcnt lgkmcnt(0)
    """)
    if OPT.get("lat"):
        kind = OPT["lat"]
        if kind == "T": srd(a, sS, 14, T_OFF, N*TS)
        if kind == "R": srd(a, sS, 14, REC_OFF, 4 << 20)
        if kind == "x": srd(a, sS, 4, None, N*256)
        if kind == "e": srd(a, sS, 6, None, E*32)
        a(f"""
        s_cmp_eq_u32 s{sw}, 0
        s_cbranch_scc0 K2_NOLAT
        s_lshl_b32 s{st2}, s2, 13
        v_lshlrev_b32 v{vt+9}, 7, v{vt}
        s_memrealtime s[86:87]
        buffer_load_dword v{vt+10}, v{vt+9}, {sr(sS,4)}, s{st2} offen
        s_waitcnt vmcnt(0)
        s_memrealtime s[88:89]
        K2_NOLAT:
        s_barrier
        """)
    a(f"""
    s_cmp_lg_u32 s{sfh}, 0
    s_cbranch_scc1 K2_NOREC
    """)
    srd(a, sREC, 14, f"s{st0}", 16384)
    for u in range(2):
        for r in range(2):
            a(f"buffer_load_dwordx4 {vr(REC+8*r+4*u,4)}, v{vt+3}, {sr(sREC,4)}, {'s%d' % st1 if u else '0'} offen offset:{64*r}")
    TP0 = int(OPT.get("tp0", "0"))
    if TP0:
        srd(a, sS, 14, T_OFF, N*TS)
        a(f"""
        s_bfe_u32 s{st0}, s2, 0x50003
        s_mul_i32 s{st0}, s{st0}, {TP0}
        s_add_u32 s{st0}, s{st0}, s{sw}
        s_lshl_b32 s{st0}, s{st0}, 13
        s_cmp_lt_u32 s{sw}, {TP0}
        s_cselect_b32 s{sS+2}, s{sS+2}, 0
        v_lshlrev_b32 v{vt+9}, 7, v{vt}
        buffer_load_dword v{vt+10}, v{vt+9}, {sr(sS,4)}, s{st0} offen
        """)
    a(f"""
    K2_NOREC:
    s_mul_i32 s{st0}, s2, 625
    s_add_u32 s{cm40}, s{st0}, 625
    s_lshr_b32 s{st0}, s{st0}, 4
    s_lshr_b32 s{cm40}, s{cm40}, 4
    s_sub_u32 s{cm40}, s{cm40}, s{st0}
    s_lshl_b32 s{cm40}, s{cm40}, 8
    s_lshl_b32 s{st0}, s{st0}, 8
    """)
    srd(a, sX, 4, f"s{st0}", f"s{cm40}")
    srd(a, sO, 12, f"s{st0}", f"s{cm40}")
    srd(a, sWT, 14, WT_OFF, LUT_OFF - WT_OFF + 65536)
    a("s_barrier")
    stamp(a, 1)
    def ld_wc():
        a(f"""
        s_lshl_b32 s{st1}, s{sfh}, 11
        s_add_u32 s{st1}, s{st1}, 65536
        buffer_load_dwordx4 {vr(WC,4)}, v{vA2}, {sr(sWT,4)}, s{st1} offen
        buffer_load_dwordx4 {vr(WC+4,4)}, v{vA2}, {sr(sWT,4)}, s{st1} offen offset:1024
        """)
    def common1(Z, vl):
        a = Asm()
        a(f"s_lshl_b32 s{st0}, s{sfh}, 8\ns_add_u32 s{st0}, s{st0}, {T_OFF-128}")
        srd(a, sT, 14, f"s{st0}", 64, w3="0x800000", hi_or="0x40000")
        srd(a, sE, 6, None, E*32)
        a(f"""
        s_mov_b32 s{cm32}, {'0x7e0' if 'e' in OPT.get('nomem','') else '0x1fffe0' if 's' in OPT.get('nomem','') else '0xffffffe0'}
        s_mov_b32 s{c128}, 128
        s_mov_b32 s{cnl2e}, {NL2E:#x}
        s_mov_b32 s{cfc}, 0xfc
        s_mov_b32 s{cfe}, {OPT.get('cfe', '0xfffe')}
        s_mov_b32 s{csrc}, {TS}
        s_mov_b32 s{sslow}, 0
        s_mov_b32 s{sround}, 0
        s_mov_b32 s{sgb}, 0
        s_mul_i32 s{st0}, s{sfh}, 3
        s_xor_b32 s{srank}, s{sg}, s{st0}
        v_lshrrev_b32 v{Z+2}, 5, v{vl}
        v_and_b32 v{Z+3}, 31, v0
        v_lshlrev_b32 v{vH16}, 4, v{Z+2}
        v_lshlrev_b32 v{vH256}, 8, v{Z+2}
        v_cmp_eq_u32 vcc, 0, v{Z+2}
        v_mov_b32 v{vM15}, 0xffff
        v_mov_b32 v{Z+4}, -1
        v_cndmask_b32 v{vM15}, v{vM15}, v{Z+4}, vcc
        v_and_b32 v{Z+4}, 3, v0
        v_mov_b32 v{Z+6}, 0x3f80
        """)
        for i in range(4):
            a(f"v_cmp_eq_u32 vcc, {i}, v{Z+4}\ns_nop 1\nv_cndmask_b32 v{PA+i}, 0, v{Z+6}, vcc")
        den = bf(127*2.0**-116); tiny = bf(2.0**-100)
        a(f"""
        v_cmp_gt_u32 s[78:79], 16, v{Z+3}
        v_mov_b32 v{Z+5}, {den:#x}
        v_mov_b32 v{Z+7}, {tiny<<16:#x}
        v_cndmask_b32 v{Z+5}, v{Z+6}, v{Z+5}, s[78:79]
        v_cndmask_b32 v{Z+7}, 0, v{Z+7}, s[78:79]
        v_and_b32 v{Z+4}, 15, v0
        v_lshlrev_b32 v{Z+8}, 3, v{Z+2}
        v_sub_u32 v{Z+4}, v{Z+4}, v{Z+8}
        v_lshlrev_b32 v{Z+6}, 16, v{Z+5}
        """)
        for d in range(4):
            a(f"""
            v_cmp_eq_u32 vcc, {2*d}, v{Z+4}
            v_cmp_eq_u32 s[78:79], {2*d+1}, v{Z+4}
            s_nop 0
            v_cndmask_b32 v{SC+d}, 0, v{Z+5}, vcc
            v_cndmask_b32 v{Z+8}, 0, v{Z+6}, s[78:79]
            v_or_b32 v{SC+d}, v{SC+d}, v{Z+8}
            """)
        a(f"""
        v_and_b32 v{SC+3}, v{SC+3}, v{vM15}
        v_not_b32 v{Z+8}, v{vM15}
        v_and_b32 v{Z+8}, v{Z+8}, v{Z+7}
        v_or_b32 v{SC+3}, v{SC+3}, v{Z+8}
        """)
        return [x.strip() for x in a.l]
    def ld_xr(): return [f"buffer_load_dword v{XR+r}, v{vO}, {sr(sX,4)}, 0 offen offset:{256*rowoff(r)} " for r in range(6)]
    def arrive(k):
        a(f"""
        v_mov_b32 v{vt+6}, {FLG+4*k}
        v_mov_b32 v{vt+7}, 1
        s_mov_b64 exec, 1
        ds_add_u32 v{vt+6}, v{vt+7}
        s_mov_b64 exec, -1
        """)
    def spin(k, n, add=True):
        if add: arrive(k)
        else: a(f"v_mov_b32 v{vt+6}, {FLG+4*k}")
        a(f"""
        K2_SPIN{n}:
        ds_read_b32 v{vt+7}, v{vt+6}
        s_waitcnt lgkmcnt(0)
        v_cmp_gt_u32 vcc, 4, v{vt+7}
        s_cbranch_vccnz K2_SPIN{n}
        """)
    def caddr(k): return f"v_and_b32_sdwa v{CADDR+k}, s{cfc}, v{REC+k} {sd} src1_sel:BYTE_3"
    def pick(sel, cur):
        a(f"""
        s_bitcmp1_b32 s{sel}, 0
        s_cselect_b32 s{cur[0]}, s{cur[1]}, s{cur[0]}
        s_cselect_b32 s{cur[2]}, s{cur[3]}, s{cur[2]}
        s_bitcmp1_b32 s{sel}, 1
        s_cselect_b32 s{st0}, s{cur[2]}, s{cur[0]}
        s_and_b32 s{sg}, s{st0}, 3
        s_andn2_b32 s{st0}, s{st0}, 3
        s_mul_i32 s{sgb}, s{sg}, {CAPG*4}
        s_add_u32 s{scount}, s{st0}, 127
        s_lshr_b32 s{scount}, s{scount}, 7
        s_add_u32 s{stail}, s{st0}, 124
        s_bfe_u32 s{stail}, s{stail}, 0x20005
        s_lshl_b32 s{stail}, s{stail}, 1
        s_add_u32 s{stail}, s{stail}, 2
        """)
    def rank_groups():
        for g in range(1, 4): a(f"s_or_b32 s{sk+g}, s{sk+g}, {g}")
        cur = [sk, sk+1, sk+2, sk+3]; spare = sk+4
        for (i, j) in ((0, 1), (2, 3), (0, 2), (1, 3), (1, 2)):
            a(f"s_max_u32 s{spare}, s{cur[i]}, s{cur[j]}\ns_min_u32 s{cur[j]}, s{cur[i]}, s{cur[j]}")
            cur[i], spare = spare, cur[i]
        pick(srank, cur)
    def scan(fast, ks=()):
        x = SP
        a(f"""
        v_and_b32 v{vt}, 63, v0
        v_lshlrev_b32 v{vt+1}, 2, v{vt}
        ds_read_b32 v{x}, v{vt+1} offset:{CNT}
        v_lshrrev_b32 v{vt}, 4, v{vt}
        v_mul_u32_u24 v{vt}, {CAPG*4}, v{vt}
        v_and_b32 v{vt+2}, 31, v0
        v_lshlrev_b32 v{vt+2}, 2, v{vt+2}
        v_mov_b32 v{vt+4}, 0xfffffe
        s_waitcnt lgkmcnt(0)
        v_sub_u32 v{vt}, v{vt}, v{x}
        """)
        for d in ("row_shr:1", "row_shr:2", "row_shr:4", "row_shr:8"):
            a(f"v_add_u32_dpp v{x}, v{x}, v{x} {d} row_mask:0xf bank_mask:0xf bound_ctrl:0\ns_nop 1")
        a(f"""
        v_add_u32 v{vt}, v{vt}, v{x}
        v_cmp_lt_u32 vcc, {CAPG*4}, v{x}
        ds_write2st64_b32 v{vt+1}, v{vt}, v{x} offset0:{START//256} offset1:{INCL//256}
        """)
        for g in range(4): a(f"v_readlane_b32 s{sk+g}, v{x}, {16*g+15}")
        if fast:
            a("s_cbranch_vccnz K2_GIVEUP")
            for j, k in enumerate(ks): a(f"ds_read_b32 v{STV+j}, v{CADDR+k} offset:{START}")
            rank_groups()
        else:
            for g in range(1, 4): a(f"s_or_b32 s{sk+g}, s{sk+g}, {g}")
            pick(sg, [sk, sk+1, sk+2, sk+3])
        a(f"""
        s_add_u32 s{st0}, s{st0}, s{sgb}
        v_add_u32 v{vt+2}, s{st0}, v{vt+2}
        s_lshl_b32 s{st1}, s{scount}, 7
        s_add_u32 s{st1}, s{st1}, s{sgb}
        v_lshlrev_b32 v{vt+3}, 3, v{vt+2}
        v_and_b32 v{vt+3}, 128, v{vt+3}
        v_cmpx_gt_u32 vcc, s{st1}, v{vt+2}
        ds_write2st64_b32 v{vt+2}, v{vt+3}, v{vt+4} offset0:{L1//256} offset1:{L2//256}
        s_mov_b64 exec, -1
        """)
    def place(k, st, eo):
        a(f"""
        v_add_u32 v{st}, v{st}, v{RANK+k}
        v_bfe_u32 v{vt}, v{REC+k}, 16, {5 if 't' in OPT.get('nomem','') else 14}
        v_lshlrev_b32 v{vt+1}, 3, v{st}
        v_mad_u32_u16 v{vt+2}, v{REC+k}, 2, v{eo}
        v_and_b32 v{vt+1}, 128, v{vt+1}
        v_mad_u32_u24 v{vt}, v{vt}, s{csrc}, v{vt+1}
        ds_write2st64_b32 v{st}, v{vt}, v{vt+2} offset0:{L1//256} offset1:{L2//256}
        """)
    def lane_setup():
        a(f"""
        v_and_b32 v{vt}, 31, v0
        v_xor_b32 v{vA1}, 16, v{vH16}
        v_xor_b32 v{vA2}, 4, v{vt}
        v_lshlrev_b32 v{vA2}, 2, v{vA2}
        v_add_u32 v{vA1}, s{sgb}, v{vA1}
        v_add_u32 v{vA2}, s{sgb}, v{vA2}
        s_mul_i32 s{st0}, s{sg}, {GN*256}
        s_lshl_b32 s{st1}, s{sfh}, 7
        s_add_u32 s{st0}, s{st0}, s{st1}
        """)
        pair_of_lane(a, vO, vt+1)
        a(f"""
        v_lshl_add_u32 v{vO}, v{vH256}, 2, v{vO}
        v_add_u32 v{vO}, s{st0}, v{vO}
        v_bfe_u32 v{vA3}, v0, 1, 5
        v_lshlrev_b32 v{vA3}, 2, v{vA3}
        v_add_u32 v{vA3}, s{sgb}, v{vA3}
        v_lshlrev_b32 v{vP16}, 4, v0
        v_xor_b32 v{vP16}, v{vP16}, v0
        v_and_b32 v{vP16}, 16, v{vP16}
        v_lshlrev_b32 v{vHS}, 1, v0
        v_xor_b32 v{vHS}, v{vHS}, v{vH16}
        v_and_b32 v{vHS}, 16, v{vHS}
        v_add_u32 v{vHS}, {STG}, v{vHS}
        s_lshl_b32 s{st0}, s{sg}, 2
        s_add_u32 s{st0}, s{st0}, {PROG}
        v_mov_b32 v{vPG}, s{st0}
        s_lshl_b32 s{sm0}, s{sgb}, 3
        s_add_u32 s{sm0}, s{sm0}, {STG}
        s_mov_b32 s{sdma}, 0
        s_mov_b32 s{sneed}, 0
        s_mov_b32 s{slim}, s{scount}
        """)
    def rd_addr(off, j): return f"ds_read_b128 {vr(ADDR+4*j,4)}, v{vA1} offset:{L1+off+32*j}"
    def rd_l2(reg, off): return f"ds_read_b32 v{reg}, v{vA2} offset:{L2+off}"
    def ld_raw(p, b, r):
        pre = [f"v_and_b32 v{ADDR+r}, 0xffff80, v{ADDR+r}"] if OPT.get("safe") else []
        if OPT.get("noload"): return ["s_nop 0"]
        return pre + [f"buffer_load_dword v{raw(p,b)+r}, v{ADDR+r}, {sr(sT,4)}, 0 offen" + (" offset:128" if b else "") + " " + OPT.get("ft", "")]
    def ld_blk(p, b): return sum((ld_raw(p, b, r) for r in range(16)), [])
    cur = {"r": "P"}
    def rd_l3(off, reg=None): return [f"ds_read_b32 v{reg or vEa}, v{vA3} offset:{L2+off}"] if cur["r"] == "P" else []
    lab = [0]
    def dma_ea(sl, reg=None, check=True):
        if cur["r"] != "P": return []
        reg = reg or vEa
        if not check:
            return [f"s_mov_b32 m0, s{sm0}", f"v_and_or_b32 v{reg}, v{reg}, s{cm32}, v{vP16}",
                    f"buffer_load_dwordx4 v{reg}, {sr(sE,4)}, 0 offen {OPT.get('fe', '')} lds;wr={300+sl}", f"s_add_u32 s{sm0}, s{sm0}, 1024"]
        lab[0] += 1
        return [f"s_cmp_lt_u32 s{sdma}, s{slim}", f"s_cbranch_scc0 K2_ND{lab[0]}", "@D{",
                f"s_mov_b32 m0, s{sm0}", f"v_and_or_b32 v{reg}, v{reg}, s{cm32}, v{vP16}",
                f"buffer_load_dwordx4 v{reg}, {sr(sE,4)}, 0 offen {OPT.get('fe', '')} lds;wr={300+sl}", "@}", f"K2_ND{lab[0]}:",
                f"s_add_u32 s{sdma}, s{sdma}, 1", f"s_add_u32 s{sm0}, s{sm0}, 1024"]
    spins = []
    def rd_prog(): return [f"ds_read_b32 v{vEa}, v{vPG}"] if cur["r"] == "C" else []
    def get_ea(p, sl, off, prev=()):
        o = [f"s_add_u32 s{sneed}, s{sneed}, 1"]
        if cur["r"] == "P":
            o += [f"v_mov_b32 v{vEa}, s{sneed};rd={300+sl}", f"ds_write_b32 v{vPG}, v{vEa}"]
            if prev: o.append("@MOVE 302 300")
        else:
            lab[0] += 1; n = lab[0]; spins.append(n)
            o += [f"v_cmp_gt_u32 vcc, s{sneed}, v{vEa}", f"s_cbranch_vccnz K2_SP{n}", f"K2_OK{n}:"]
        return o + [f"v_lshl_add_u32 v{vEa}, v{vA2}, 3, v{vHS}", f"ds_read_b128 {vr(EA+4*p,4)}, v{vEa} offset:{8*off}"]
    def oh_idx(p):
        return [f"v_and_b32 v{vOa}, 30, v{vOa}",
                f"v_lshl_add_u32 v{vOa}, v{vOa}, 3, v{vH256}",
                f"ds_read_b128 {vr(OH+4*p,4)}, v{vOa} offset:{OHL}"]
    big = "v_mfma_f32_32x32x16_bf16" if not OPT.get("nobig") else "; "
    de = OPT.get("drop", "")
    def mE(p, b): return "; " if "E" in de else f"{big} {vr(gb(p,b),16)}, {vr(EA+4*p,4)}, {vr(WC+4*b,4)}, 0"
    def mA(p, b): return "; " if "A" in de else f"{big} {vr(gb(p,b),16)}, {vr(OH+4*p,4)}, {vr(AP+4*b,4)}, {vr(gb(p,b),16)}"
    def mS(p): return "; " if "S" in de else f"{big} {vr(SP,16)}, {vr(OH+4*p,4)}, {vr(SC,4)}, 0"
    def mG(p, b, j): return "; " if ("G" in de or ("g" in de and j & 1)) else f"{big} {vr(ACC+16*b,16)}, {vr(SP+4*j,4)}, {vr(gb(p,b)+4*j,4)}, {vr(ACC+16*b,16)}"
    def mP(p, b):
        o = []
        if "P" in de: return ["; "]*8
        for u in range(2):
            for j in range(4):
                g = vr(gb(p,b)+4*j, 4)
                o.append(f"v_mfma_f32_4x4x4_16b_bf16 {g}, {vr(PA+2*u,2)}, {vr(raw(p,b)+4*j+2*u,2)}, {g}")
        return o
    def idx_pair(p, b, i):
        g0, g1 = gb(p,b)+2*i, gb(p,b)+2*i+1
        if i < NTB[b]:
            return [f"v_exp_f32 v{g0}, v{g0}", f"v_exp_f32 v{g1}, v{g1}", f"v_add_f32 v{g0}, 1.0, v{g0}",
                    f"v_add_f32 v{g1}, 1.0, v{g1}", f"v_rcp_f32 v{g0}, v{g0}", f"v_rcp_f32 v{g1}, v{g1}"], []
        return [f"v_cvt_pkrtz_f16_f32 v{g0}, v{g0}, v{g1}",
                f"v_and_b32_sdwa v{g1}, s{cfe}, v{g0} {sd} src1_sel:WORD_1",
                f"v_and_b32_sdwa v{g0}, s{cfe}, v{g0} {sd} src1_sel:WORD_0"], \
               [f"ds_read_u16_d16_hi v{g1}, v{g1} offset:{LUTL}", f"ds_read_u16_d16_hi v{g0}, v{g0} offset:{LUTL}"]
    def fin_pair(p, b, i):
        g0, r0 = gb(p,b)+2*i, raw(p,b)+2*i
        mul = [f"v_pk_mul_f32 {vr(r0,2)}, {vr(g0,2)}, {vr(r0,2)}"] if OPT.get("pk") else [f"v_mul_f32 v{r0}, v{g0}, v{r0}", f"v_mul_f32 v{r0+1}, v{g0+1}, v{r0+1}"]
        return mul + [
                f"v_cvt_pk_bf16_f32 v{g0}, v{g0}, v{r0}", f"v_cvt_pk_bf16_f32 v{g0+1}, v{g0+1}, v{r0+1}"]
    def zipl(x, y):
        o = []
        for k in range(max(len(x), len(y))):
            if k < len(x): o.append(x[k])
            if k < len(y): o.append(y[k])
        return o
    uid = [0]
    def W(kind):
        uid[0] += 1
        return f"@W{kind} {uid[0]}"
    SH = int(OPT.get("short", "4"))
    WE = int(OPT.get("we", "2"))
    def slot(p, b, kind, acc=True, np_=8, npg=8):
        q = 1-p
        nxt = (p, 1) if b == 0 else (q, 0)
        do_idx = b == 0 or kind != "L"
        gs = [[mG(q if b == 0 else p, 1-b, j)] for j in range(npg//2)] if acc else []
        bigs = gs[:2]
        if kind != "L": bigs += [[mE(q, b)], [mA(q, b)]]
        bigs += gs[2:]
        if b == 0: bigs += [[mS(p)]]
        smalls = mP(q, b) if kind != "L" else []
        out = []
        nb = 0
        for i in range(8):
            if i >= np_:
                out += sum(bigs[nb:], []); nb = len(bigs)
                break
            iv, il = idx_pair(*nxt, i) if do_idx else ([], [])
            fv = fin_pair(p, b, i)
            seq = zipl(iv, fv) + il
            if SH:
                rr = range(16*i//SH, 16*(i+1)//SH) if i < SH else []
                if (b == 0 and kind != "L") or (b == 1 and kind == "F"):
                    for r_ in rr: seq += ld_raw(q, 1, r_) if b == 0 else ld_raw(p, 0, r_)
                if kind == "F":
                    if b == 0:
                        for r_ in rr:
                            if r_ & 3 == 3: seq.append(rd_addr((2+p)*128, r_ >> 2))
                    if b == 0 and i == 1: seq = dma_ea(p, check=False) + seq
                    if b == 1 and i == 1: seq += rd_prog()
                    if b == 1 and i == 6: seq += get_ea(p, p, (2+p)*128)
                    if b == 1 and i == 7: seq += rd_l3((3+p)*128)
                    if b == 0 and i == 5: seq.append(rd_l2(vOa, (2+p)*128))
                    if b == 1 and i == 2: seq += oh_idx(p)
            elif kind == "F":
                seq += ld_raw(p, b, 2*i) + ld_raw(p, b, 2*i+1)
                if b == 1 and i & 1: seq.append(rd_addr((3+p)*128, i >> 1))
                if OPT.get("burst"):
                    if p == 0 and b == 0 and i == 0: seq += rd_l3(3*128) + rd_l3(4*128, vOa)
                    if p == 0 and b == 0 and i == 4: seq = dma_ea(1) + dma_ea(2, vOa) + seq
                else:
                    if b == 0 and i == 1: seq += rd_l3((3+p)*128)
                    if b == 1 and i == 0: seq = dma_ea(q) + seq
                if b == 1 and i == 1: seq += rd_prog()
                if b == 1 and i == 6: seq += get_ea(p, p, (2+p)*128, (2,) if (OPT.get('burst') and p == 0) else ())
                if b == 0 and i == 5: seq.append(rd_l2(vOa, (2+p)*128))
                if b == 1 and i == 2: seq += oh_idx(p)
            pre = [W("l")] if i % WE == 0 else []
            if cur["r"] == "P" and kind != "L":
                if (b, i) == (0, 0): pre.append("s_setprio 2")
                if (b, i) == divmod(int(OPT.get("fair", "12")), 8): pre.append("s_setprio 0")
            if i < 6:
                take = 2 if (len(bigs) - nb) > (6 - i) else 1
                if nb < len(bigs): pre += bigs[nb]; nb += 1
                if take == 2 and nb < len(bigs):
                    seq = seq[:6] + bigs[nb] + seq[6:]; nb += 1
            if smalls and i >= 5:
                k0, k1 = {5: (0, 2), 6: (2, 6), 7: (6, 8)}[i]
                sm = smalls[k0:k1]
                if i == 5: seq = seq[:4] + [W("v")] + zipl(sm, seq[4:])
                else: seq = zipl(sm, seq)
            out += pre + seq
        assert nb == len(bigs)
        return out
    def last(p, np_):
        n = f"{p}{cur['r']}{np_}"
        return ([f"K2_LAST{n}:"] + ld_xr() + slot(p, 0, "L", np_=np_) + ["s_nop 11"]*(np_ < 6) + slot(p, 1, "L", np_=np_, npg=np_)
                + ["s_nop 1"] + [mG(p, 1, j) for j in range(np_//2)])
    def body(p, kind):
        q = 1-p; n = f"{kind}{p}{cur['r']}"
        o0 = [f"K2_BODY{n}:"] + slot(p, 0, kind)
        o1 = [f"K2_MID{n}:"] + (ld_xr() if kind == "L" else []) + slot(p, 1, kind)
        if OPT.get("prof") == "7": o1 += ["s_mov_b32 m0, s98", "s_add_u32 s98, s98, 1", f"v_writelane_b32 v{UR+5}, s86, m0", "s_memrealtime s[86:87]"]
        if kind == "P":
            for np_ in (2, 4, 6): o1 += [f"s_cmp_eq_u32 s{stail}, {np_}", f"s_cbranch_scc1 K2_LAST{q}{cur['r']}{np_}"]
        if kind == "F":
            if p == 1: o1 += [f"v_add_u32 v{r_}, 256, v{r_}" for r_ in ((vA1, vA2, vA3) if cur["r"] == "P" else (vA1, vA2))]
            o1 += [f"s_sub_u32 s{scount}, s{scount}, 1", f"s_cmp_eq_u32 s{scount}, 2", f"s_cbranch_scc1 K2_BODYP{q}{cur['r']}"]
        return o0, o1
    def entry_short(kind):
        more = kind != "L"
        o = rd_prog() + [W("v"), W("l")] + get_ea(0, 0, 0)
        if more: o += rd_prog() + rd_l3(128)
        o += [W("l"), "@STAMP", mE(0, 0), mA(0, 0), mE(0, 1), mA(0, 1)]
        o += (dma_ea(1, check=False) if more else []) + ["s_nop 7", W("v")] + mP(0, 0) + ["s_nop 3"]
        for i in range(8):
            v_, l_ = idx_pair(0, 0, i)
            o += [W("l")] + ([v_[0], v_[1], "s_nop 0"] + v_[2:] if i < NTB[0] else v_) + l_
            if more:
                if i < 4:
                    for r_ in range(4*i, 4*i+4): o += ld_raw(1, 0, r_)
                if i == 6: o += [W("v")] + get_ea(1, 1, 128)
                if i == 7 and kind == "F": o += rd_l3(256)
            if i == 3: o += [W("v")] + mP(0, 1)
        return o + slot(0, 0, kind, acc=False) + [f"s_branch K2_MID{kind}0{cur['r']}"]
    def entry(kind):
        if SH: return entry_short(kind)
        more = kind != "L"
        o = rd_prog() + [W("v"), W("l")] + get_ea(0, 0, 0)
        if more: o += rd_prog()
        o += [W("l"), "@STAMP", mE(0, 0), mA(0, 0), mE(0, 1), mA(0, 1), "s_nop 7", W("v")] + mP(0, 0) + ["s_nop 3"]
        for i in range(8):
            v_, l_ = idx_pair(0, 0, i)
            o += [W("l")] + ([v_[0], v_[1], "s_nop 0"] + v_[2:] if i < NTB[0] else v_) + l_
            if more:
                for r_ in range(4*(i & 3), 4*(i & 3)+4): o += ld_raw(1, i >> 2, r_)
                if i >= 4: o.append(rd_addr(256, i-4))
                if i == 4: o += [W("v")] + get_ea(1, 1, 128) + rd_l3(256)
                if i == 7: o += dma_ea(0)
            if i == 3: o += [W("v")] + mP(0, 1)
        return o + slot(0, 0, kind, acc=False) + [f"s_branch K2_MID{kind}0{cur['r']}"]
    def drain(p): return ["s_nop 1"] + [mG(p, 1, j) for j in range(4)]
    def mk_fill():
        ad = [rd_addr(0, j) for j in range(4)]
        t0 = SP
        o = []
        if cur["r"] == "P":
            o = (rd_l3(0) + [f"ds_read_b32 v{t0}, v{vA3} offset:{L2+128}"])
        o += ad + [rd_l2(vOa, 0), rd_l2(t0+1, 128)]
        if cur["r"] == "P":
            o += ["s_waitcnt lgkmcnt(6)"] + dma_ea(0) + [f"v_mov_b32 v{vEa}, v{t0}"]
        d1 = dma_ea(1) if not SH else []
        late1 = OPT.get("d1", "1") == "1"
        o += ([] if late1 else d1) + ["s_waitcnt lgkmcnt(0)"] + ld_blk(0, 0) + oh_idx(0) + [f"v_mov_b32 v{vOa}, v{t0+1}"] + oh_idx(1) + ld_blk(0, 1) + (d1 if late1 else [])
        return o + [rd_addr(128, j) for j in range(4)]
    FI, B, EN, LA_ = {}, {}, {}, {}
    for r in "PC":
        cur["r"] = r
        if r == "C" and OPT.get("ntc"): NTB[:] = [int(c_) for c_ in OPT["ntc"]]
        FI[r] = mk_fill()
        for k in "FPL":
            EN[r, k] = entry(k)
            for p in range(2): B[r, p, k] = body(p, k)
        for p in range(2):
            for np_ in (2, 4, 6, 8): LA_[r, p, np_] = last(p, np_)
    def trace(r, cnt, np_=8):
        kinds = ["F"]*(cnt-2) + ["P", "L"][-min(cnt, 2):]
        tr = FI[r] + EN[r, kinds[0]] + B[r, 0, kinds[0]][1]
        for t in range(1, cnt-1): tr += B[r, t & 1, kinds[t]][0] + B[r, t & 1, kinds[t]][1]
        tr += drain(0) if cnt == 1 else LA_[r, (cnt-1) & 1, np_]
        o = []; keep = True; nd = 0
        for x in tr:
            if x == "@D{": keep = nd < cnt; nd += 1
            elif x == "@}": keep = True
            elif keep and x != "@STAMP": o.append(x)
        return o
    epi_head = ["s_branch x", "s_cmp", "s_cbranch", "s_waitcnt vmcnt(0) lgkmcnt(0)"] + [f"v_add_f32 v{ACC+r_}, 0, v{ACC+r_}" for r_ in range(6)]
    cases = [(r, c, n_) for c in range(1, 9) for r in "PC" for n_ in (2, 4, 6, 8)]
    need = asmsim.solve_waits([trace(*c) for c in cases])
    for c in cases: asmsim.check_hazards(asmsim.apply_waits(trace(*c), need) + epi_head, f"case {c}")
    def emit(l):
        for x in asmsim.apply_waits(l, need):
            if x == "@STAMP":
                stamp(a, 5); stamp(a, 5, "3"); stamp(a, 7, "4")
                if OPT.get("prof") == "7": a("s_memrealtime s[86:87]\ns_mov_b32 s98, 1")
                if OPT.get("prof") == "3": a(f"s_memtime s[86:87]\ns_mov_b32 s90, s{scount}\ns_getreg_b32 s92, hwreg(HW_REG_HW_ID)")
            elif x[0] != "@": a(x.split(";")[0] or "s_nop 0")
    def main_loop(r):
        a(f"""
        K2_GO{r}:
        s_cmp_eq_u32 s{scount}, 0
        s_cbranch_scc1 K2_EMPTY
        s_cmp_gt_u32 s{scount}, 2
        s_cbranch_scc1 K2_ENTF{r}
        s_cmp_eq_u32 s{scount}, 2
        s_cbranch_scc1 K2_ENTP{r}
        """)
        emit(EN[r, "L"]); a(f"K2_ENTP{r}:"); emit(EN[r, "P"]); a(f"K2_ENTF{r}:"); emit(EN[r, "F"])
        a(".p2align 6")
        for _ in range(int(OPT.get("pad", "0"))): a("s_nop 0")
        for p in range(2): emit(B[r, p, "F"][0] + B[r, p, "F"][1])
        a(f"s_branch K2_BODYF0{r}")
        emit(B[r, 0, "L"][1] + drain(0)); a("s_branch K2_DONE")
        for p in range(2):
            for np_ in (2, 4, 6): emit(LA_[r, p, np_]); a("s_branch K2_DONE")
        for p in range(2):
            emit(B[r, p, "P"][0] + B[r, p, "P"][1] + LA_[r, 1-p, 8])
            if p == 0 or r == "P": a("s_branch K2_DONE")
    def fill(n):
        a(f"s_cmp_eq_u32 s{scount}, 0\ns_cbranch_scc1 K2_FILLED{n}")
        emit(FI[n])
        a(f"K2_FILLED{n}:")
    def ap_addr():
        a(f"""
        v_bfe_u32 v{vt}, v0, 2, 2
        v_lshrrev_b32 v{vt+1}, 1, v{vH16}
        v_add_u32 v{vt}, v{vt}, v{vt+1}
        v_mul_u32_u24 v{vt}, {ROWP}, v{vt}
        v_bfe_u32 v{vt+2}, v0, 4, 1
        v_lshl_add_u32 v{vt}, v{vt+2}, 5, v{vt}
        v_and_b32 v{vt+2}, 3, v0
        v_lshl_add_u32 v{vt}, v{vt+2}, 3, v{vt}
        s_mul_i32 s{st0}, s{sg}, {GN*ROWP}
        s_lshl_b32 s{st1}, s{sfh}, 7
        s_add_u32 s{st0}, s{st0}, s{st1}
        v_add_u32 v{vt}, s{st0}, v{vt}
        v_mul_u32_u24 v{vt+1}, {ROWP//2}, v{vt+1}
        v_and_b32 v{vt+2}, 127, v{vO}
        v_add3_u32 v{vt+1}, v{vt+2}, s{st0}, v{vt+1}
        """)
    def ap_read():
        a(f"""
        ds_read_b64_tr_b16 {vr(AP,2)}, v{vt} offset:{APL}
        ds_read_b64_tr_b16 {vr(AP+2,2)}, v{vt} offset:{APL+4*ROWP}
        ds_read_b64_tr_b16 {vr(AP+4,2)}, v{vt} offset:{APL+64}
        ds_read_b64_tr_b16 {vr(AP+6,2)}, v{vt} offset:{APL+4*ROWP+64}
        """)
        for r in range(6): a(f"ds_read_b32 v{UR+r}, v{vt+1} offset:{UL+ROWP*rowoff(r)}")
        a(f"""
        s_waitcnt lgkmcnt(6)
        v_and_b32 v{AP+3}, v{AP+3}, v{vM15}
        v_and_b32 v{AP+7}, v{AP+7}, v{vM15}
        """)
    def init_addr():
        for r in range(16): a(f"v_mov_b32 v{ADDR+r}, 128")
    def zero_acc():
        for r in range(32): a(f"v_mov_b32 v{ACC+r}, 0")

    a(f"s_cmp_lg_u32 s{sfh}, 0\ns_cbranch_scc1 K2_LOADER")
    ld_wc()
    a.ext(common1(SP, vt))
    a(f"v_and_b32 v{vt+3}, 15, v0\nv_lshlrev_b32 v{vt+3}, 4, v{vt+3}\nv_bfe_u32 v{vt+4}, v0, 4, 2\nv_lshl_add_u32 v{vt+3}, v{vt+4}, 10, v{vt+3}\ns_lshl_b32 s{st0}, s{sg}, 8\nv_add_u32 v{vt+3}, s{st0}, v{vt+3}")
    a(f"v_add_u32 v{vt+4}, 40960, v{vt+3}")
    for val, rg, runs in ((0x3f003f00, EA, (0, 3, 32, 35)), (0, EA+4, (23, 27)), (0x3f803f80, OH, (51, 55, 59))):
        for j in range(4): a(f"v_mov_b32 v{rg+j}, {val:#x}")
        for c0 in runs:
            a(f"ds_write_b128 v{vt+4 if c0 >= 24 else vt+3}, {vr(rg,4)} offset:{LUTL + 1024*(c0 - (40 if c0 >= 24 else 0))}")
    a(f"""
    v_and_b32 v{vt+3}, 127, v0
    v_bfe_u32 v{vt+4}, v0, 2, 4
    v_and_b32 v{Z+4}, 3, v0
    v_lshrrev_b32 v{Z+5}, 6, v{vt+3}
    v_lshlrev_b32 v{vt+3}, 2, v{vt+3}
    v_lshl_add_u32 v{Z+4}, v{Z+5}, 2, v{Z+4}
    v_lshlrev_b32 v{Z+5}, 1, v{Z+4}
    v_mov_b32 v{Z+6}, 0x3f80
    v_mov_b32 v{Z+7}, 0x3f800000
    v_cmp_eq_u32 vcc, v{Z+5}, v{vt+4}
    v_add_u32 v{Z+5}, 1, v{Z+5}
    s_nop 0
    v_cndmask_b32 v{Z+8}, 0, v{Z+6}, vcc
    v_cmp_eq_u32 vcc, v{Z+5}, v{vt+4}
    v_cmp_eq_u32 s[78:79], 7, v{Z+4}
    s_or_b64 vcc, vcc, s[78:79]
    s_nop 1
    v_cndmask_b32 v{Z+9}, 0, v{Z+7}, vcc
    v_or_b32 v{Z+8}, v{Z+8}, v{Z+9}
    v_cmp_gt_u32 vcc, 15, v{vt+4}
    s_nop 1
    v_cndmask_b32 v{Z+8}, 0, v{Z+8}, vcc
    ds_write_b32 v{vt+3}, v{Z+8} offset:{OHL}
    """)
    a(f"""
    v_mul_u32_u24 v{EOFF}, {CS*32}, v{vt+1}
    v_add_u32 v{EOFF+1}, {64*CS*32}, v{EOFF}
    v_mov_b32 v{vt+3}, 4
    """)
    init_addr()
    a(f"s_waitcnt vmcnt({2 + (TP0 > 0)})")
    stamp(a, 2); stamp(a, 1, "5")
    a(f"""
    v_cmp_eq_u32 vcc, -2, v{REC+11}
    v_cmp_eq_u32 s[78:79], -2, v{REC+15}
    s_or_b64 vcc, vcc, s[78:79]
    s_cbranch_vccz K2_NOOVF
    v_mov_b32 v{vt+4}, 0x10000
    v_mov_b32 v{vt}, 60
    ds_add_u32 v{vt}, v{vt+4} offset:{CNT}
    K2_NOOVF:
    """)
    M = [68, 70, 72, 74, 76, 78]
    KS = [[4*u+i for i in range(4)] + [8+4*u, 9+4*u] for u in range(2)]
    def masked(u, fn):
        for j, k in enumerate(KS[u]): a(f"v_cmp_gt_u32 {sr(M[j],2)}, -2, v{REC+k}")
        for j, k in enumerate(KS[u]): a(f"s_mov_b64 exec, {sr(M[j],2)}\n{fn(k, 6*u+j)}")
        a("s_mov_b64 exec, -1")
    for k in KS[0] + KS[1]: a(caddr(k))
    for u in range(2): masked(u, lambda k, j: f"ds_add_rtn_u32 v{RANK+k}, v{CADDR+k}, v{vt+3} offset:{CNT}")
    a(f"v_min_u32 v{vt+4}, v{REC+10}, v{REC+14}\nv_cmp_gt_u32 s[26:27], -2, v{vt+4}")
    def steps(tag, fn):
        a(f"s_cmp_eq_u64 s[26:27], 0\ns_cbranch_scc1 K2_{tag}1\ns_waitcnt lgkmcnt(0)")
        for u in range(2):
            for k in (10+4*u, 11+4*u):
                a(f"v_cmpx_gt_u32 vcc, -2, v{REC+k}\ns_cbranch_execz K2_{tag}{u}")
                fn(k, u)
            a(f"K2_{tag}{u}:\ns_mov_b64 exec, -1")
    steps("C", lambda k, u: a(f"{caddr(k)}\nds_add_rtn_u32 v{RANK+k}, v{CADDR+k}, v{vt+3} offset:{CNT}"))
    arrive(0)
    stamp(a, 2, "5")
    LA, LB = raw(0, 0), raw(0, 1)
    for u in range(2):
        for j, k in enumerate(KS[u]):
            a(f"v_bfe_u32 v{LA+6*u+j}, v{REC+k}, 16, {5 if 't' in OPT.get('nomem','') else 14}\nv_mad_u32_u16 v{LB+6*u+j}, v{REC+k}, 2, v{EOFF+u}")
    NBK = int(OPT.get("nbk", "0"))
    if NBK:
        for u in range(2):
            for j, k in enumerate(KS[u]): a(f"v_and_b32 v{vt+8}, 0x3c, v{CADDR+k}\nv_cmp_gt_u32 {sr(M[j],2)}, {4*NBK}, v{vt+8}")
            for j, k in enumerate(KS[u]): a(f"s_mov_b64 exec, {sr(M[j],2)}\nbuffer_load_ubyte v{vt+12}, v{LB+6*u+j}, {sr(sE,4)}, 0 offen")
            a("s_mov_b64 exec, -1")
    for j in range(12): a(f"v_mul_u32_u24 v{LA+j}, s{csrc}, v{LA+j}")
    spin(0, "A", add=False)
    stamp(a, 3, "5")
    scan(True, KS[0] + KS[1])
    a("s_waitcnt lgkmcnt(1)")
    stamp(a, 4, "5")
    for j, k in enumerate(KS[0] + KS[1]): a(f"v_add_u32 v{STV+j}, v{STV+j}, v{RANK+k}")
    for j, k in enumerate(KS[0] + KS[1]): a(f"v_lshlrev_b32 v{RANK+k}, 3, v{STV+j}")
    for j, k in enumerate(KS[0] + KS[1]): a(f"v_and_or_b32 v{LA+j}, v{RANK+k}, s{c128}, v{LA+j}")
    for u in range(2): masked(u, lambda k, j: f"ds_write2st64_b32 v{STV+j}, v{LA+j}, v{LB+j} offset0:{L1//256} offset1:{L2//256}")
    def put_step(k, u):
        a(f"ds_read_b32 v{STV+12}, v{CADDR+k} offset:{START}\ns_waitcnt lgkmcnt(0)")
        place(k, STV+12, EOFF+u)
    steps("P", put_step)
    arrive(1)
    stamp(a, 5, "5")
    lane_setup()
    stamp(a, 6, "5")
    if OPT.get("order", "1") == "1":
        a(f"""
        v_mov_b32 v{vt+6}, {FLG+4}
        K2_SPINB:
        ds_read2_b32 {vr(vt+8,2)}, v{vt+6} offset0:0 offset1:1
        s_waitcnt lgkmcnt(0)
        v_min_u32 v{vt+7}, v{vt+8}, v{vt+9}
        v_cmp_gt_u32 vcc, 4, v{vt+7}
        s_cbranch_vccnz K2_SPINB
        """)
    else: spin(1, "B", add=False)
    stamp(a, 3); stamp(a, 7, "5")
    a("K2_REFILLP:")
    fill("P")
    stamp(a, 4)
    a(f"s_cmp_lg_u32 s{sslow}, 0\ns_cbranch_scc1 K2_GOP")
    zero_acc()
    ap_addr()
    spin(3, "D", add=False)
    ap_read()
    main_loop("P")
    a("K2_GIVEUP:")
    arrive(1)
    spin(3, "E", add=False)
    a("s_branch K2_SLOW")
    assert XL % 256 == 0
    XF = G; WT = [ACC, raw(0, 0)]
    accs = [[[raw(1,0)+8*nb, raw(1,0)+8*nb+4] for nb in range(3)], [[raw(1,1)+8, raw(1,1)+12], [SP, SP+4], [SP+8, ADDR]]]
    a(f"""
    K2_LOADER:
    v_lshrrev_b32 v{vt+4}, 4, v{vt}
    s_lshl_b32 s{st1}, s{sg}, 2
    v_add_u32 v{vA1}, s{st1}, v{vt+4}
    v_and_b32 v{vt+5}, 15, v0
    v_xor_b32 v{vA1}, v{vA1}, v{vt+5}
    v_lshlrev_b32 v{vA1}, 4, v{vA1}
    v_lshl_add_u32 v{vA1}, v{vt+4}, 8, v{vA1}
    s_lshl_b32 s{st1}, s{sg}, 10
    """)
    if OPT.get("nobulk"):
        ld_wc()
        a.ext(common1(XR+1, vt))
        a(f"v_and_b32 v{vt+2}, 255, v0\nv_lshlrev_b32 v{vt+2}, 4, v{vt+2}")
        for j in range(4): a(f"v_mov_b32 v{EA+j}, 0")
        for j in range(4): a(f"ds_write_b128 v{vt+2}, {vr(EA,4)} offset:{APL+4096*j}")
        arrive(2); arrive(3)
        a("s_branch K2_NOBULK")
    for k in range(3):
        a(f"""
        s_add_u32 m0, s{st1}, {XL+4096*k}
        s_add_u32 s{st2}, s{st1}, {4096*k}
        buffer_load_dwordx4 v{vA1}, {sr(sX,4)}, s{st2} offen lds
        """)
    stamp(a, 1, "6")
    srot = sk
    a(f"s_lshl_b32 s{slut}, s{sg}, 13\ns_lshr_b32 s{srt}, s2, 3")
    for j in range(4):
        a(f"s_add_u32 s{srot+j}, s{srt}, {j}\ns_and_b32 s{srot+j}, s{srot+j}, 3\ns_lshl_b32 s{srot+j}, s{srot+j}, 10\ns_add_u32 s{st2}, s{slut}, s{srot+j}")
        for m in range(2):
            for hf in range(2):
                a(f"buffer_load_dwordx4 {vr(WT[m]+16*hf+4*j,4)}, v{vA2}, {sr(sWT,4)}, s{st2} offen")
                if (m, hf) != (1, 1): a(f"s_add_u32 s{st2}, s{st2}, {4096 if hf == 0 else 32768-4096}")
    stamp(a, 2, "6")
    a(f"""
    s_lshl_b32 s{st0}, s{sg}, 12
    s_add_u32 m0, s{st0}, {LUTL + 7*1024}
    s_add_u32 s{st2}, s{st0}, {LUT_OFF - WT_OFF + 7*1024}
    """)
    for j in range(4): a(f"buffer_load_dwordx4 v{vA2}, {sr(sWT,4)}, s{st2} offen offset:{1024*j} lds")
    a(f"""
    s_mul_i32 s{st0}, s{sg}, 3072
    s_add_u32 m0, s{st0}, {LUTL + 39*1024}
    s_add_u32 s{st2}, s{st0}, {LUT_OFF - WT_OFF + 39*1024}
    """)
    for j in range(3): a(f"buffer_load_dwordx4 v{vA2}, {sr(sWT,4)}, s{st2} offen offset:{1024*j} lds")
    a(f"""
    s_and_b32 s{st0}, s{sg}, 1
    s_lshl_b32 s{st0}, s{st0}, 15
    s_add_u32 m0, s{st0}, {LUTL + 31*1024}
    s_add_u32 s{st2}, s{st0}, {LUT_OFF - WT_OFF + 31*1024}
    buffer_load_dwordx4 v{vA2}, {sr(sWT,4)}, s{st2} offen lds
    """)
    ld_wc()
    stamp(a, 3, "6")
    a(f"""
    s_waitcnt vmcnt(26)
    """)
    arrive(2)
    a(f"""
    v_mov_b32 v{vt+8}, v{vt}
    v_and_b32 v{vt}, 15, v0
    v_bfe_u32 v{vt+1}, v0, 4, 2
    v_xor_b32 v{vt+2}, v{vt}, v{vt+1}
    v_lshlrev_b32 v{vt+2}, 4, v{vt+2}
    v_lshl_add_u32 v{vt+2}, v{vt}, 8, v{vt+2}
    v_add_u32 v{vt+2}, {XL}, v{vt+2}
    v_mul_u32_u24 v{vt}, {ROWP}, v{vt}
    """)
    stamp(a, 2); stamp(a, 5, "6")
    spin(2, "C", add=False)
    stamp(a, 6, "6")
    for s in range(4):
        a(f"s_lshr_b32 s{st0}, s{srot+s}, 4\nv_xor_b32 v{vt+3}, s{st0}, v{vt+2}")
        for nb in range(3):
            a(f"ds_read_b128 {vr(XF+16*nb+4*s,4)}, v{vt+3} offset:{4096*nb}")
    a(f"""
    s_lshr_b32 s{st0}, s{sg}, 1
    s_lshl_b32 s{st0}, s{st0}, 7
    s_and_b32 s{st1}, s{sg}, 1
    s_lshl_b32 s{st1}, s{st1}, 5
    s_add_u32 s{st0}, s{st0}, s{st1}
    v_lshl_add_u32 v{vt+4}, v{vt+1}, 3, v{vt}
    v_add_u32 v{vt+4}, s{st0}, v{vt+4}
    s_lshl_b32 s{st0}, s{sg}, 6
    v_lshl_add_u32 v{vt+5}, v{vt+1}, 3, v{vt}
    v_add_u32 v{vt+5}, s{st0}, v{vt+5}
    """)
    def mm1(m, s):
        return [f"v_mfma_f32_16x16x32_bf16 {vr(accs[m][nb][ab], 4)}, {vr(WT[m]+16*ab+4*s,4)}, {vr(XF+16*nb+4*s,4)}, {'0' if s == 0 else vr(accs[m][nb][ab], 4)}"
                for nb in range(3) for ab in range(2)]
    outA = []
    for nb in range(3):
        al, be = accs[0][nb]; o = EA+ (0 if nb != 1 else 4)
        for i in range(4): outA += [f"v_mul_f32 v{al+i}, s{cnl2e}, v{al+i}", f"v_mul_f32 v{be+i}, s{cnl2e}, v{be+i}"]
        outA += [f"v_cvt_pk_bf16_f32 v{o}, v{al}, v{al+2}", f"v_cvt_pk_bf16_f32 v{o+1}, v{be}, v{be+2}",
                 f"v_cvt_pk_bf16_f32 v{o+2}, v{al+1}, v{al+3}", f"v_cvt_pk_bf16_f32 v{o+3}, v{be+1}, v{be+3}",
                 f"ds_write_b64 v{vt+4}, {vr(o,2)} offset:{APL+16*ROWP*nb}", f"ds_write_b64 v{vt+4}, {vr(o+2,2)} offset:{APL+16*ROWP*nb+64}"]
    NPF = int(OPT.get("tpf", "0"))
    if NPF:
        srd(a, sS, 14, T_OFF, N*TS)
        a(f"""
        s_bfe_u32 s{st0}, s2, 0x50003
        s_lshl_b32 s{st0}, s{st0}, 2
        s_add_u32 s{st0}, s{st0}, s{sg}
        s_lshl_b32 s{st0}, s{st0}, 13
        v_lshlrev_b32 v{vt+9}, 7, v{vt+8}
        """)
        for j in range(NPF):
            a(f"buffer_load_dword v{vt+10}, v{vt+9}, {sr(sS,4)}, s{st0} offen")
            if j+1 < NPF: a(f"s_add_u32 s{st0}, s{st0}, {1 << 20}")
    g = []; cm = common1(XR+1, vt+8); k = 0
    for s in range(4):
        g.append(f"s_waitcnt vmcnt({22-4*s+NPF}) lgkmcnt({9-3*s})")
        for x in mm1(0, s) + (mm1(1, s) if s < 3 else []):
            g.append(x); g += cm[k:k+3]; k += 3
    assert k >= len(cm)
    k = 0
    for j, x in enumerate(mm1(1, 3)):
        g.append(x)
        if j >= 2: g += outA[k:k+3]; k += 3
    g += outA[k:]
    for nb in range(3):
        al, be = accs[1][nb]; o = XF+4*nb
        g += [f"v_cvt_pk_bf16_f32 v{o}, v{al}, v{al+1}", f"v_cvt_pk_bf16_f32 v{o+1}, v{al+2}, v{al+3}",
              f"v_cvt_pk_bf16_f32 v{o+2}, v{be}, v{be+1}", f"v_cvt_pk_bf16_f32 v{o+3}, v{be+2}, v{be+3}",
              f"ds_write_b64 v{vt+5}, {vr(o,2)} offset:{UL+16*ROWP*nb}", f"ds_write_b64 v{vt+5}, {vr(o+2,2)} offset:{UL+16*ROWP*nb+32}"]
    asmsim.check_hazards(g, "gemm")
    a.ext(g)
    a(f"s_waitcnt vmcnt({NPF})")
    arrive(3)
    a("K2_NOBULK:")
    stamp(a, 3); stamp(a, 7, "6")
    init_addr()
    spin(1, "F", add=False)
    a(f"""
    v_mov_b32 v{vt+2}, {INCL+60}
    ds_read2_b32 {vr(vt+4,2)}, v{vt+2} offset0:0 offset1:16
    ds_read2_b32 {vr(vt+6,2)}, v{vt+2} offset0:32 offset1:48
    s_waitcnt lgkmcnt(0)
    """)
    for g_ in range(4): a(f"v_readfirstlane_b32 s{sk+g_}, v{vt+4+g_}")
    a(f"""
    s_max_u32 s{st0}, s{sk}, s{sk+1}
    s_max_u32 s{st1}, s{sk+2}, s{sk+3}
    s_max_u32 s{st0}, s{st0}, s{st1}
    s_cmp_gt_u32 s{st0}, {CAPG*4}
    s_cbranch_scc1 K2_SLOW
    """)
    a("s_setprio 1")
    rank_groups()
    lane_setup()
    a("K2_REFILLC:")
    fill("C")
    a(f"s_cmp_lg_u32 s{sslow}, 0\ns_cbranch_scc1 K2_GOC")
    zero_acc()
    ap_addr()
    spin(3, "G", add=False)
    ap_read()
    stamp(a, 4)
    a("s_branch K2_GOC")
    a("K2_EMPTY:"); a.ext(ld_xr()); a("s_branch K2_DONE")
    for n in spins:
        a(f"""
        K2_SP{n}:
        ds_read_b32 v{vEa}, v{vPG}
        s_waitcnt lgkmcnt(0)
        v_cmp_gt_u32 vcc, s{sneed}, v{vEa}
        s_cbranch_vccnz K2_SP{n}
        s_branch K2_OK{n}
        """)
    main_loop("C")
    a(f"""
    K2_DONE:
    s_cmp_lg_u32 s{sslow}, 0
    s_cbranch_scc1 K2_ROUND
    K2_EPI:
    s_waitcnt vmcnt(0) lgkmcnt(0)
    """)
    stamp(a, 6); stamp(a, 6, "3")
    if OPT.get("prof") == "3": a("s_memtime s[88:89]")
    T0 = G
    for b in range(2):
        for r in range(6):
            a(f"v_add_f32 v{ACC+16*b+r}, 0x358637bd, v{ACC+16*b+r}")
        for r in range(6):
            a(f"v_rcp_f32 v{ACC+16*b+r}, v{ACC+16*b+r}")
        for r in range(6):
            u, x = T0+12*b+r, T0+12*b+6+r
            if b == 0: a(f"v_lshlrev_b32 v{u}, 16, v{UR+r}\nv_lshlrev_b32 v{x}, 16, v{XR+r}")
            else: a(f"v_and_b32 v{u}, 0xffff0000, v{UR+r}\nv_and_b32 v{x}, 0xffff0000, v{XR+r}")
        for r in range(6):
            u, x = T0+12*b+r, T0+12*b+6+r
            a(f"v_fmac_f32 v{u}, v{ACC+16*b+8+r}, v{ACC+16*b+r}\nv_max_f32 v{u}, 0, v{u}\nv_add_f32 v{u}, v{u}, v{x}")
    a(f"v_lshl_or_b32 v{vO2}, v{vH16}, 27, v{vO}")
    for r in range(6):
        a(f"v_cvt_pk_bf16_f32 v{SP+r}, v{T0+r}, v{T0+12+r}")
        a(f"buffer_store_dword v{SP+r}, v{vO if r < 4 else vO2}, {sr(sO,4)}, 0 offen offset:{256*rowoff(r)} {OPT.get('st_o', '')}")
    stamp(a, 7)
    stamp_out(a, 1, 14, sw, 2)
    a("K2_END:\ns_endpgm")

    a("K2_SLOW:")
    srd(a, sS, 8, None, E*4)
    srd(a, sD, 10, None, E*4)
    a(f"""
    s_mov_b32 s{sslow}, 1
    s_mov_b32 s{cm10}, {-GN}
    """)
    a("s_waitcnt vmcnt(0) lgkmcnt(0)\ns_barrier")
    zero_acc(); lane_setup(); ap_addr(); ap_read()
    a(f"""
    K2_ROUND:
    s_cmp_ge_u32 s{sround}, {E//RND}
    s_cbranch_scc1 K2_EPI
    s_mul_i32 s{st0}, s{sround}, {RND}
    s_add_u32 s{sround}, s{sround}, 1
    v_add_u32 v{EOFF}, s{st0}, v0
    v_lshlrev_b32 v{vt}, 2, v{EOFF}
    buffer_load_dword v{REC}, v{vt}, {sr(sD,4)}, 0 offen
    buffer_load_dword v{REC+1}, v{vt}, {sr(sS,4)}, 0 offen
    v_lshlrev_b32 v{EOFF}, 5, v{EOFF}
    v_and_b32 v{vt}, 63, v0
    v_lshlrev_b32 v{vt}, 3, v{vt}
    v_mov_b32 v{vt+4}, 0
    v_mov_b32 v{vt+5}, 0
    s_waitcnt lgkmcnt(0)
    s_barrier
    ds_write_b64 v{vt}, {vr(vt+4,2)} offset:{CNT}
    v_mov_b32 v{vt+3}, 4
    s_waitcnt vmcnt(0) lgkmcnt(0)
    s_barrier
    """)
    rec_fields(a, REC, REC+2, vt, cm40, cm10)
    a(f"""
    v_cmp_eq_u32 vcc, s2, v{REC+2}
    v_lshl_or_b32 v{REC}, v{REC+1}, 16, v{REC}
    {caddr(0)}
    s_mov_b64 s[78:79], vcc
    v_cmp_gt_u32 vcc, {RND}, v0
    s_and_b64 s[78:79], s[78:79], vcc
    s_mov_b64 exec, s[78:79]
    ds_add_rtn_u32 v{RANK}, v{CADDR}, v{vt+3} offset:{CNT}
    s_mov_b64 exec, -1
    s_waitcnt lgkmcnt(0)
    s_barrier
    """)
    scan(False)
    a(f"""
    s_mov_b64 exec, s[78:79]
    ds_read_b32 v{STV}, v{CADDR} offset:{START}
    s_waitcnt lgkmcnt(0)
    """)
    place(0, STV, EOFF)
    a(f"""
    s_mov_b64 exec, -1
    """)
    lane_setup()
    a(f"""
    s_waitcnt lgkmcnt(0)
    s_barrier
    s_cmp_eq_u32 s{sfh}, 0
    s_cbranch_scc1 K2_REFILLP
    s_branch K2_REFILLC
    K2_CODE_END:
    """)
    return a.text(), kd("k2_kernel", 256, 102)

KE_PROF = f"""
    s_memrealtime s[8:9]
    s_load_dwordx2 s[4:5], s[0:1], 88
    s_waitcnt lgkmcnt(0)
    s_add_u32 s4, s4, {PROF_OFF + 0x200000}
    s_addc_u32 s5, s5, 0
    s_mov_b32 s6, 4
    s_mov_b32 s7, 0x20000
    v_mov_b32 v1, s8
    v_lshlrev_b32 v0, 2, v0
    buffer_store_dword v1, v0, s[4:7], 0 offen
"""
def gen_kr():
    a = Asm()
    a(f"""
    kr_kernel:
    s_cmp_ge_u32 s2, 1
    s_cbranch_scc1 KR_END
    s_load_dwordx4 s[4:7], s[0:1], 80
    s_waitcnt lgkmcnt(0)
    s_add_u32 s8, s6, {PROF_OFF}
    s_addc_u32 s9, s7, 0
    s_mov_b32 s10, 0x200000
    s_mov_b32 s11, 0x20000
    s_mov_b32 s6, 256
    s_mov_b32 s7, 0x20000
    v_cmp_gt_u32 vcc, 250, v0
    s_and_saveexec_b64 s[12:13], vcc
    v_lshlrev_b32 v1, 10, v0
    v_mov_b32 v3, 0
    """)
    sel = [(0, 8, 0, 1), (0, 8, 0, 0), (0, 8, 2, 0), (0, 8, 3, 0), (0, 8, 5, 0), (0, 8, 8, 0),
           (1, 8, 0, 1), (1, 8, 0, 0), (1, 8, 2, 0), (1, 8, 3, 0), (1, 8, 5, 1), (1, 8, 5, 0), (1, 8, 6, 1), (1, 8, 6, 0), (1, 8, 8, 0)]
    w0 = 0
    if OPT.get("krsel"):
        w0, st_, mn_ = [int(x) for x in OPT["krsel"].split(",")]
        sel = [(1, 4, 0, 1), (1, 4, st_, mn_)]
    for j, (kn, nw, st, mn) in enumerate(sel):
        a(f"s_mov_b32 s14, {kn*0x100000 + 64*w0}")
        for w in range(nw): a(f"buffer_load_dword v{10+w}, v1, s[8:11], s14 offen offset:{64*w+4*st}")
        a("s_waitcnt vmcnt(0)")
        if mn:
            for w in range(nw): a(f"v_not_b32 v{10+w}, v{10+w}")
        for w in range(1, nw): a(f"v_max_u32 v10, v10, v{10+w}")
        a(f"buffer_atomic_umax v10, v3, s[4:7], 0 offen offset:{4*j}\ns_waitcnt vmcnt(0)")
    if OPT.get("iv"):
        ja, jb, k = [int(x) for x in OPT["iv"].split(",")]
        a(f"""
        s_barrier
        buffer_load_dword v10, v3, s[4:7], 0 offen offset:{4*ja} sc0 sc1
        buffer_load_dword v11, v3, s[4:7], 0 offen offset:{4*jb} sc0 sc1
        s_waitcnt vmcnt(0)
        v_readfirstlane_b32 s16, v10
        v_readfirstlane_b32 s17, v11
        """)
        if sel[ja][3]: a("s_not_b32 s16, s16")
        if sel[jb][3]: a("s_not_b32 s17, s17")
        a(f"""
        s_sub_u32 s16, s16, s17
        s_min_u32 s16, s16, 10000
        s_mul_i32 s16, s16, {k}
        s_memrealtime s[18:19]
        s_waitcnt lgkmcnt(0)
        KR_SPIN:
        s_memrealtime s[20:21]
        s_waitcnt lgkmcnt(0)
        s_sub_u32 s20, s20, s18
        s_cmp_lt_u32 s20, s16
        s_cbranch_scc1 KR_SPIN
        """)
    a("KR_END:\ns_endpgm")
    return a.text()

DOC = """;
; k1: bins the edges by destination (128 chunks x 256 bins, 32 slots a segment), builds the node table
;     rescan of the raw edge list.
"""
def main():
    k1, d1 = gen_k1(); k2, d2 = gen_k2()
    ref = open("standalone__edge_featured_mpnn_gatedgcn__graph.s.ref").read().split("\n")
    out = "\n".join(ref[:13]) + "\n"
    for ch in OPT.get("list", "12"):
        if ch == "1": out += f"; @launch kernel=k1_kernel grid=({2*NCH},1,1) block=(512,1,1) lds={K1_LDS}\n"
        if ch == "2": out += f"; @launch kernel=k2_kernel grid=({NBIN},1,1) block=(512,1,1) lds={K2_LDS}\n"
        if ch == "r": out += "; @launch kernel=kr_kernel grid=(1,1,1) block=(256,1,1) lds=0\n"
        if ch == "e": out += "; @launch kernel=ke_kernel grid=(1,1,1) block=(64,1,1) lds=0\n"
    out += DOC
    out += '.amdgcn_target "amdgcn-amd-amdhsa--gfx950"\n.text\n'
    for n, k in (("k1_kernel", k1), ("k2_kernel", k2)):
        out += f".globl {n}\n.p2align 8\n.type {n},@function\n" + k
    if "e" in OPT.get("list", ""): out += ".globl ke_kernel\n.p2align 8\n.type ke_kernel,@function\nke_kernel:\n" + (KE_PROF if OPT.get("prof") else "") + "    s_endpgm\n"
    if "r" in OPT.get("list", ""): out += ".globl kr_kernel\n.p2align 8\n.type kr_kernel,@function\n" + gen_kr()
    out += '.section .rodata,"a"\n.p2align 6\n' + d1.lstrip("\n") + '.p2align 6\n' + d2.lstrip("\n")
    if "e" in OPT.get("list", ""): out += '.p2align 6\n' + kd("ke_kernel", 8, 16).lstrip("\n")
    if "r" in OPT.get("list", ""): out += '.p2align 6\n' + kd("kr_kernel", 32, 32).lstrip("\n")
    open(sys.argv[1], "w").write(out)

if __name__ == "__main__":
    main()
```

```python
import struct, sys
import asmsim

N = 10000; E = 320000
NCH = 128; CS = 2500
NBIN = 256; GN = 10
BINK, BINC, BINS = 53687, 52500, 21
assert all((625*b_ >> 4) <= d_ < (625*(b_+1) >> 4) for d_ in range(N) for b_ in [(d_*BINK + BINC) >> BINS])
CAP = 32
TS = int(([a for a in sys.argv if a.startswith('ts=')] or ['ts=512'])[0][3:])
T_OFF = 0x1000000
REC_OFF = 0x700000
WT_OFF = 0xB00000
LUT_OFF = 0xB20000
PROF_OFF = 0xF000000
NL2E = struct.unpack("<I", struct.pack("<f", -1.4426950408889634))[0]

def bf(x): return struct.unpack("<I", struct.pack("<f", x))[0] >> 16

OPT = dict(st_r="sc1", st_t="sc1")
for a in sys.argv[2:]:
    k, v = a.split("=", 1); OPT[k] = v

class Asm:
    def __init__(self): self.l = []
    def __call__(self, s):
        for x in s.strip("\n").split("\n"):
            x = x.strip()
            if not x: continue
            if x.startswith(";"): x = "s_nop 0"
            self.l.append(x if x.endswith(":") else "    " + x)
    def ext(self, lst):
        for x in lst: self(x)
    def text(self): return "\n".join(self.l) + "\n"

def stamp(a, i, lvl="1"):
    if OPT.get("prof") and (i in (0, 8) or OPT["prof"] == lvl): a(f"s_memrealtime s[{84+2*i}:{85+2*i}]")
def stamp_out(a, kern, wsreg, sw, vtmp):
    if not OPT.get("prof"): return
    if not (OPT.get("nowait") and kern == 0): a("s_waitcnt vmcnt(0)")
    stamp(a, 8)
    a(f"""
    s_lshl_b32 s4, s2, 4
    s_add_u32 s4, s4, s{sw}
    s_lshl_b32 s4, s4, 6
    s_add_u32 s4, s4, {PROF_OFF + kern*0x100000}
    s_add_u32 s4, s{wsreg}, s4
    s_addc_u32 s5, s{wsreg+1}, 0
    s_mov_b32 s6, 64
    s_mov_b32 s7, 0x20000
    s_waitcnt lgkmcnt(0)
    """)
    if kern == 1 and OPT["prof"] == "7":
        a(f"v_mov_b32 v{vtmp}, v251\nv_writelane_b32 v{vtmp}, s84, 0\ns_mov_b32 m0, s98\ns_add_u32 s98, s98, 1\nv_writelane_b32 v{vtmp}, s86, m0\ns_mov_b32 m0, s98\ns_nop 3\nv_writelane_b32 v{vtmp}, s100, m0\nv_writelane_b32 v{vtmp}, s98, 15")
    else:
        for i in range(9): a(f"v_writelane_b32 v{vtmp}, s{84+2*i}, {i}")
    a(f"""
    v_mbcnt_lo_u32_b32 v{vtmp+1}, -1, 0
    v_mbcnt_hi_u32_b32 v{vtmp+1}, -1, v{vtmp+1}
    v_lshlrev_b32 v{vtmp+1}, 2, v{vtmp+1}
    buffer_store_dword v{vtmp}, v{vtmp+1}, s[4:7], 0 offen
    """)

def vr(b, n): return f"v[{b}:{b+n-1}]"
def sr(b, n): return f"s[{b}:{b+n-1}]"

def srd(a, d, base, add=None, size=None, w3="0x20000", hi_or=None):
    if add is None:
        a(f"s_mov_b32 s{d}, s{base}\ns_mov_b32 s{d+1}, s{base+1}")
    else:
        a(f"s_add_u32 s{d}, s{base}, {add}\ns_addc_u32 s{d+1}, s{base+1}, 0")
    if hi_or: a(f"s_or_b32 s{d+1}, s{d+1}, {hi_or}")
    a(f"s_mov_b32 s{d+2}, {size}\ns_mov_b32 s{d+3}, {w3}")

def kd(name, vgpr, sgpr):
    return f"""
.amdhsa_kernel {name}
  .amdhsa_next_free_vgpr {vgpr}
  .amdhsa_next_free_sgpr {sgpr}
  .amdhsa_accum_offset {(vgpr+3)//4*4}
  .amdhsa_group_segment_fixed_size 0
  .amdhsa_kernarg_size 96
  .amdhsa_user_sgpr_count 2
  .amdhsa_user_sgpr_kernarg_segment_ptr 1
  .amdhsa_system_sgpr_workgroup_id_x 1
.end_amdhsa_kernel
"""

def pair_of_lane(a, d, t):
    a(f"""
    v_and_b32 v{d}, 17, v0
    v_lshlrev_b32 v{d}, 2, v{d}
    v_bfe_u32 v{t}, v0, 1, 1
    v_lshl_add_u32 v{d}, v{t}, 5, v{d}
    v_bfe_u32 v{t}, v0, 2, 2
    v_lshl_add_u32 v{d}, v{t}, 3, v{d}
    """)

def rec_fields(a, vd, vbin, vtmp, sm40, sm10):
    a(f"""
    v_mul_u32_u24 v{vbin}, {BINK}, v{vd}
    v_add_u32 v{vbin}, {BINC}, v{vbin}
    v_lshrrev_b32 v{vbin}, {BINS}, v{vbin}
    v_mul_u32_u24 v{vtmp}, 625, v{vbin}
    v_lshrrev_b32 v{vtmp}, 4, v{vtmp}
    v_sub_u32 v{vd}, v{vd}, v{vtmp}
    v_mul_u32_u24 v{vtmp}, 26, v{vd}
    v_lshrrev_b32 v{vtmp}, 8, v{vtmp}
    v_mad_i32_i24 v{vd}, v{vtmp}, s{sm10}, v{vd}
    v_lshl_or_b32 v{vd}, v{vtmp}, 30, v{vd}
    """)

K1_CNT = 0; K1_STG = 1024; K1_W = 34816; K1_X = K1_W + 32768; K1_LDS = K1_X + 28672
RLO, RHI = [int(x_) for x_ in OPT.get('rows', '112,48').split(',')]
def gen_k1():
    a = Asm()
    sS, sD, sW1, sW2, sX, sR, sT, sP = 24, 28, 32, 36, 40, 44, 48, 72
    sw, st0, st1, st2, snb, sfb, sch, shf, srow, snr = 52, 53, 54, 55, 56, 57, 58, 69, 71, 76
    c8192, cm10, cnl2e, csign, cmag, ctso, cp0 = 60, 62, 63, 64, 65, 66, 67
    vD, vS, vB, vSL, vt = 4, 12, 20, 28, 36
    vg = 56; vTR, vXA, vST = 64, 65, 66; vWC = 72
    vW, vX, vA, vO = 96, 160, 176, 192
    def W(m, ab, s): return vW + 32*m + 16*ab + 4*s
    a("k1_kernel:")
    a(f"s_cmp_ge_u32 s2, {2*NCH}\ns_cbranch_scc1 K1_END")
    stamp(a, 0)
    a(f"""
    s_load_dwordx16 s[4:19], s[0:1], 0
    s_load_dwordx2 s[20:21], s[0:1], 64
    s_load_dwordx2 s[22:23], s[0:1], 88
    """)
    if OPT.get("pf1", "0") == "1":
        a(f"""
        s_getpc_b64 {sr(sP,2)}
        K1_PC1:
        s_mov_b32 s{sP+2}, K1_END-K1_PC1
        s_mov_b32 s{sP+3}, 0x20000
        v_lshlrev_b32 v33, 7, v0
        buffer_load_dword v34, v33, {sr(sP,4)}, 0 offen
        """)
    a(f"""
    v_lshrrev_b32 v2, 6, v0
    v_lshlrev_b32 v1, 2, v0
    v_readfirstlane_b32 s{sw}, v2
    v_lshlrev_b32 v2, 4, v0
    s_mov_b32 s{c8192}, 8192
    s_sub_u32 s{sch}, s2, {NCH}
    s_and_b32 s{shf}, s2, 1
    v_and_b32 v{vg}, 63, v0
    v_lshrrev_b32 v{vg+1}, 4, v{vg}
    v_and_b32 v{vg+2}, 15, v0
    s_and_b32 s{st0}, s{sw}, 3
    s_lshl_b32 s{st0}, s{st0}, 2
    v_add_u32 v{vg+3}, s{st0}, v{vg+1}
    v_xor_b32 v{vg+3}, v{vg+3}, v{vg+2}
    v_lshlrev_b32 v{vg+3}, 4, v{vg+3}
    v_lshl_add_u32 v{vg+3}, v{vg+1}, 8, v{vg+3}
    v_lshrrev_b32 v{vg+4}, 3, v{vg}
    v_and_b32 v{vg+5}, 2, v{vg+4}
    s_lshr_b32 s{st0}, s2, 3
    s_add_u32 s{st0}, s{st0}, s{sw}
    s_and_b32 s{st0}, s{st0}, 1
    s_lshl_b32 s{st0}, s{st0}, 2
    v_and_b32 v{vg+6}, 7, v0
    v_xor_b32 v{vg+5}, v{vg+5}, v{vg+6}
    v_xor_b32 v{vg+5}, s{st0}, v{vg+5}
    v_lshlrev_b32 v{vg+5}, 4, v{vg+5}
    v_lshl_add_u32 v{vg+4}, v{vg+4}, 8, v{vg+5}
    s_lshr_b32 s{st0}, s2, 1
    s_mul_i32 s{srow}, s{st0}, {RLO}
    s_mul_i32 s{st0}, s{st0}, {RHI}
    s_add_u32 s{st0}, s{st0}, {64*(RLO-RHI)}
    s_cmp_lt_u32 s2, {NCH}
    s_cselect_b32 s{srow}, s{srow}, s{st0}
    s_cselect_b32 s{snr}, {RLO}, {RHI}
    s_min_u32 s{srow}, s{srow}, {N}
    s_sub_u32 s{st0}, {N}, s{srow}
    s_min_u32 s{snr}, s{snr}, s{st0}
    s_mul_i32 s{st1}, s{sch}, {CS*4}
    s_cmp_lt_u32 s2, 254
    s_waitcnt lgkmcnt(0)
    s_cselect_b64 {sr(sW1,2)}, s[14:15], s[12:13]
    s_cselect_b64 {sr(sW2,2)}, s[20:21], s[18:19]
    s_cmp_lt_u32 s2, {NCH}
    s_cbranch_scc1 K1_NOIDX
    """)
    srd(a, sD, 10, f"s{st1}", CS*4)
    srd(a, sS, 8, f"s{st1}", CS*4)
    a(f"""
    buffer_load_dwordx4 {vr(vD,4)}, v2, {sr(sD,4)}, 0 offen
    buffer_load_dwordx4 {vr(vS,4)}, v2, {sr(sS,4)}, 0 offen
    buffer_load_dword v{vD+4}, v1, {sr(sD,4)}, s{c8192} offen
    buffer_load_dword v{vS+4}, v1, {sr(sS,4)}, s{c8192} offen
    s_barrier
    K1_NOIDX:
    s_lshl_b32 s{st0}, s{srow}, 8
    s_add_u32 s{sX}, s4, s{st0}
    s_addc_u32 s{sX+1}, s5, 0
    s_lshl_b32 s{sX+2}, s{snr}, 8
    s_mov_b32 s{sX+3}, 0x20000
    s_mov_b32 s{sW1+2}, 32768
    s_mov_b32 s{sW1+3}, 0x20000
    s_mov_b32 s{sW2+2}, 32768
    s_mov_b32 s{sW2+3}, 0x20000
    s_lshl_b32 s{shf+1}, s{shf}, 7
    s_lshl_b32 s{st1}, s{sw}, 10
    """)
    def dma_x(k):
        a(f"s_add_u32 m0, s{st1}, {K1_X + 8192*k}\ns_add_u32 s{st2}, s{st1}, {8192*k}\nbuffer_load_dwordx4 v{vg+3}, {sr(sX,4)}, s{st2} offen lds")
    def stage_w():
        a(f"s_lshr_b32 s{st2}, s2, 3\ns_add_u32 s{st2}, s{st2}, s{sw}\ns_and_b32 s{st2}, s{st2}, 15")
        for k in range(2):
            a(f"""
            s_lshl_b32 s{st0}, s{st2}, 10
            s_add_u32 m0, s{st0}, {K1_W}
            s_lshl_b32 s{st1}, s{st2}, 11
            s_add_u32 s{st1}, s{st1}, s{shf+1}
            buffer_load_dwordx4 v{vg+4}, {sr(sW1,4)}, s{st1} offen lds
            s_add_u32 m0, s{st0}, {K1_W+16384}
            s_xor_b32 s{st2}, s{st2}, 8
            buffer_load_dwordx4 v{vg+4}, {sr(sW2,4)}, s{st1} offen lds
            """)
    if OPT.get("wt", "0") == "1":
        a(f"""
        s_cmp_eq_u32 s{sw}, 0
        s_cbranch_scc0 K1_NOWT
        s_bfe_u32 s{st0}, s2, 0x40003
        s_lshl_b32 s{st0}, s{st0}, 11
        s_add_u32 s{st0}, s{st0}, s{shf+1}
        v_lshlrev_b32 v33, 8, v0
        s_mov_b64 exec, 0xff
        buffer_load_dword v34, v33, {sr(sW1,4)}, s{st0} offen
        buffer_load_dword v34, v33, {sr(sW2,4)}, s{st0} offen
        s_mov_b64 exec, -1
        K1_NOWT:
        """)
    dma_x(0); dma_x(1)
    a(f"s_sub_u32 s{st0}, s2, {NCH}\ns_cmp_lt_u32 s{st0}, {254-NCH}\ns_cbranch_scc1 K1_LATER")
    dma_x(2)
    if RLO > 96: a(f"s_cmp_lt_u32 s{sw}, 4\ns_cbranch_scc0 K1_X3"); dma_x(3); a("K1_X3:")
    stage_w()
    a(f"""
    K1_LATER:
    s_and_b32 s{sfb}, s{sw}, 1
    s_lshr_b32 s{snb}, s{sw}, 1
    v_bfe_u32 v{vg+5}, v0, 2, 2
    v_bfe_u32 v{vg+6}, v0, 3, 2
    s_lshl_b32 s{st0}, s{sfb}, 1
    v_xor_b32 v{vg+6}, s{st0}, v{vg+6}
    v_and_b32 v{vg+7}, 3, v0
    v_lshlrev_b32 v{vg+7}, 3, v{vg+7}
    v_lshl_add_u32 v{vg+7}, v{vg+6}, 5, v{vg+7}
    v_lshl_add_u32 v{vg+5}, v{vg+1}, 3, v{vg+5}
    v_lshl_add_u32 v{vTR}, v{vg+5}, 7, v{vg+7}
    v_xor_b32 v{vTR+6}, 32, v{vTR}
    v_xor_b32 v{vXA}, v{vg+1}, v{vg+2}
    v_lshlrev_b32 v{vXA}, 4, v{vXA}
    v_lshl_add_u32 v{vXA}, v{vg+2}, 8, v{vXA}
    s_lshl_b32 s{st0}, s{snb}, 12
    s_add_u32 s{st0}, s{st0}, {K1_X}
    v_add_u32 v{vXA}, s{st0}, v{vXA}
    v_xor_b32 v{vXA+2}, 64, v{vXA}
    v_xor_b32 v{vXA+3}, 0x80, v{vXA}
    v_xor_b32 v{vXA+4}, 0xc0, v{vXA}
    v_mul_u32_u24 v{vST}, {TS}, v{vg+2}
    v_lshl_add_u32 v{vST}, v{vg+1}, 4, v{vST}
    s_mul_i32 s{ctso}, s{snb}, {16*TS}
    s_lshl_b32 s{st1}, s{shf}, 8
    s_add_u32 s{ctso}, s{ctso}, s{st1}
    s_lshl_b32 s{st1}, s{sfb}, 6
    s_add_u32 s{ctso}, s{ctso}, s{st1}
    s_mov_b32 s{cnl2e}, {NL2E:#x}
    s_mov_b32 s{csign}, 0x00800000
    s_mov_b32 s{cmag}, 0x7fffffff
    s_mov_b32 s{cp0}, 0x07060100
    s_mov_b32 s{cp0+1}, 0x07060302
    s_mul_i32 s{st0}, s{srow}, {TS}
    s_add_u32 s{st0}, s{st0}, {T_OFF}
    s_mul_i32 s{st1}, s{snr}, {TS}
    """)
    srd(a, sT, 22, f"s{st0}", f"s{st1}")
    stamp(a, 1)
    a(f"s_cmp_lt_u32 s2, {NCH}\ns_cbranch_scc1 K1_NOBIN")
    a(f"""
    v_mov_b32 v{vt}, -1
    v_mov_b32 v{vt+1}, -1
    v_mov_b32 v{vt+2}, -1
    v_mov_b32 v{vt+3}, -1
    v_mov_b32 v{vt+5}, 0
    v_and_b32 v{vt+6}, 0x3fc, v1
    """)
    for k in range(4): a(f"ds_write_b128 v2, {vr(vt,4)} offset:{K1_STG+8192*k}")
    a(f"""
    ds_write_b32 v{vt+6}, v{vt+5} offset:{K1_CNT}
    s_lshl_b32 s{st0}, s{sch}, 7
    s_add_u32 s{st0}, s{st0}, {REC_OFF}
    """)
    srd(a, sR, 22, f"s{st0}", NBIN*NCH*128)
    a(f"s_lshl_b32 s{st0}, s{sch}, 9\ns_add_u32 s{st1}, s{st0}, {LUT_OFF}")
    srd(a, sP, 22, f"s{st1}", 512)
    l0, l1 = vt+10, vt+11
    a(f"""
    v_add_u32 v{l0}, s{st0}, v1
    v_and_b32 v{l1}, 0x7fff, v{l0}
    v_cmp_ne_u32 vcc, 0x7c00, v{l1}
    v_or_b32 v{l1}, 3, v{l0}
    s_nop 0
    v_addc_co_u32 v{l0}, vcc, 0, v{l0}, vcc
    v_cvt_f32_f16 v{l1}, v{l1}
    v_cvt_f32_f16 v{l0}, v{l0}
    v_exp_f32 v{l1}, v{l1}
    v_exp_f32 v{l0}, v{l0}
    v_add_f32 v{l1}, 1.0, v{l1}
    v_add_f32 v{l0}, 1.0, v{l0}
    v_rcp_f32 v{l1}, v{l1}
    v_rcp_f32 v{l0}, v{l0}
    s_mov_b32 s{cm10}, {-GN}
    v_cvt_pk_bf16_f32 v{l0}, v{l0}, v{l1}
    v_mov_b32 v{vt+5}, 1
    v_cmp_gt_u32 vcc, {CS-2048}, v0
    s_mov_b64 s[80:81], vcc
    v_lshrrev_b32 v{vt+7}, 3, v0
    v_and_b32 v{vt+8}, 7, v0
    v_lshlrev_b32 v{vt+9}, 14, v{vt+7}
    v_lshl_add_u32 v{vt+9}, v{vt+8}, 4, v{vt+9}
    v_lshlrev_b32 v{vt+7}, 2, v{vt+7}
    v_cmp_eq_u32 s[82:83], 7, v{vt+8}
    v_and_b32 v{vt+8}, 4, v{vt+8}
    v_lshlrev_b32 v{vt+8}, {2 if OPT.get("half", "0") == "1" else 0}, v{vt+8}
    v_and_b32 v{vt+8}, 16, v{vt+8}
    s_waitcnt lgkmcnt(0)
    s_barrier
    s_cmp_ge_u32 s2, 254
    s_cbranch_scc1 K1_W7
    s_waitcnt vmcnt(2)
    K1_W7:
    s_waitcnt vmcnt(7)
    """)
    stamp(a, 2)
    for r in range(5):
        rec_fields(a, vD+r, vB+r, vt, None, cm10)
        a(f"v_lshlrev_b32 v{vt}, 2, v{vB+r}")
        if r == 4: a("s_mov_b64 exec, s[80:81]")
        a(f"ds_add_rtn_u32 v{vSL+r}, v{vt}, v{vt+5} offset:{K1_CNT}")
        if r == 4: a("s_mov_b64 exec, -1")
    a("s_cmp_ge_u32 s2, 254\ns_cbranch_scc1 K1_NOWC")
    stage_w()
    a(f"""
    s_cmp_eq_u32 s2, 252
    s_cbranch_scc0 K1_NOWC
    """)
    srd(a, sS, 16, None, 4096)
    a(f"""
    v_lshrrev_b32 v{vWC+8}, 5, v{vg}
    """)
    pair_of_lane(a, vWC+9, vWC+10)
    a(f"""
    v_lshl_add_u32 v{vWC+9}, v{vWC+8}, 11, v{vWC+9}
    s_bfe_u32 s{st1}, s{sw}, 0x10001
    s_lshl_b32 s{st1}, s{st1}, 7
    s_lshl_b32 s{st0}, s{sfb}, 1
    s_add_u32 s{st1}, s{st1}, s{st0}
    """)
    for j in range(8): a(f"buffer_load_ushort v{vWC+j}, v{vWC+9}, {sr(sS,4)}, s{st1} offen offset:{256*j}")
    a("K1_NOWC:")
    for r in range(5):
        a(f"v_lshl_or_b32 v{vD+r}, v{vS+r}, 16, v{vD+r}")
        a(f"v_add_u32 v{vS+r}, {r}, v1" if r < 4 else f"v_add_u32 v{vS+r}, 2048, v0")
        a(f"v_lshl_or_b32 v{vD+r}, v{vS+r}, 4, v{vD+r}\nv_lshlrev_b32 v{vB+r}, 7, v{vB+r}")
    for r in range(5):
        a("s_waitcnt lgkmcnt(4)")
        if r == 4: a("s_mov_b64 exec, s[80:81]")
        a(f"""
        v_and_b32 v{vt}, 12, v{vSL+r}
        v_add_u32 v{vB+r}, v{vB+r}, v{vt}
        v_and_b32 v{vt}, 3, v{vSL+r}
        v_lshl_add_u32 v{vB+r}, v{vt}, 4, v{vB+r}
        v_and_b32 v{vt}, 16, v{vSL+r}
        v_lshl_add_u32 v{vB+r}, v{vt}, 2, v{vB+r}
        v_cmpx_gt_u32 vcc, {CAP}, v{vSL+r}
        ds_write_b32 v{vB+r}, v{vD+r} offset:{K1_STG}
        s_mov_b64 exec, -1
        """)
    a("s_waitcnt lgkmcnt(0)\ns_barrier")
    for k in range(4):
        a(f"ds_read_b128 {vr(4+4*k,4)}, v2 offset:{K1_STG+8192*k}\nds_read_b32 v{20+k}, v{vt+7} offset:{K1_CNT+256*k}")
    a(f"""
    v_mov_b32 v{vt+2}, -2
    s_mov_b32 s{st2}, 0
    buffer_store_dword v{l0}, v1, {sr(sP,4)}, 0 offen {OPT['st_r']}
    """)
    stamp(a, 3)
    for k in range(4):
        a(f"""
        s_waitcnt lgkmcnt({6-2*k})
        v_cmp_lt_u32 vcc, {CAP}, v{20+k}
        v_cmp_le_u32 s[78:79], v{vt+8}, v{20+k}
        s_and_b64 vcc, vcc, s[82:83]
        s_nop 0
        v_cndmask_b32 v{7+4*k}, v{7+4*k}, v{vt+2}, vcc
        s_mov_b64 exec, s[78:79]
        buffer_store_dwordx4 {vr(4+4*k,4)}, v{vt+9}, {sr(sR,4)}, s{st2} offen {OPT['st_r']}
        s_mov_b64 exec, -1
        s_add_u32 s{st2}, s{st2}, {64*16384}
        """)
    a(f"""
    s_waitcnt vmcnt(5)
    s_branch K1_STAGED
    K1_NOBIN:
    """)
    if OPT.get("pf", "2") == "1":
        a(f"""
        s_getpc_b64 {sr(sP,2)}
        K1_PC:
        s_add_u32 s{sP}, s{sP}, k2_kernel-K1_PC
        s_addc_u32 s{sP+1}, s{sP+1}, 0
        s_mov_b32 s{sP+2}, K2_CODE_END-k2_kernel
        s_mov_b32 s{sP+3}, 0x20000
        s_bfe_u32 s{st0}, s2, 0x40003
        s_lshl_b32 s{st0}, s{st0}, 12
        v_lshlrev_b32 v33, 7, v0
        v_cmp_gt_u32 vcc, 32, v0
        s_and_saveexec_b64 s[80:81], vcc
        s_cbranch_execz K1_NOPC
        buffer_load_dword v34, v33, {sr(sP,4)}, s{st0} offen
        s_mov_b64 exec, s[80:81]
        s_waitcnt vmcnt(1)
        s_branch K1_PCD
        K1_NOPC:
        s_mov_b64 exec, s[80:81]
        s_waitcnt vmcnt(0)
        K1_PCD:
        """)
    else: a("s_waitcnt vmcnt(0)")
    stamp(a, 2); stamp(a, 3)
    a(f"""
    K1_STAGED:
    s_barrier
    """)
    stamp(a, 4)
    if OPT.get("pf", "2") == "2":
        assert 64*RLO + 59*RHI >= N
        a(f"""
        s_sub_u32 s{st0}, s2, 246
        s_cmp_lt_u32 s{st0}, 8
        s_cbranch_scc0 K1_NOPC
        s_getpc_b64 {sr(sP,2)}
        K1_PC:
        s_add_u32 s{sP}, s{sP}, k2_kernel-K1_PC
        s_addc_u32 s{sP+1}, s{sP+1}, 0
        s_mov_b32 s{sP+2}, K2_CODE_END-k2_kernel
        s_mov_b32 s{sP+3}, 0x20000
        v_lshlrev_b32 v33, 7, v0
        buffer_load_dword v34, v33, {sr(sP,4)}, 0 offen
        s_cmp_eq_u32 s2, 252
        s_cbranch_scc0 K1_END
        K1_NOPC:
        """)
    PM = int(OPT.get("pm", "0"))
    if PM:
        a(f"s_mul_i32 s{st0}, s2, {313*128}\ns_sub_u32 s{st1}, {E*32}, s{st0}\ns_min_u32 s{st1}, s{st1}, {PM*128}")
        if OPT.get("pmlo"): a(f"s_cmp_lt_u32 s2, {NCH}\ns_cselect_b32 s{st1}, s{st1}, 0")
        srd(a, sP, 6, f"s{st0}", f"s{st1}")
        a(f"v_xor_b32 v33, 0x1c0, v0\nv_lshlrev_b32 v33, 7, v33\nbuffer_load_dword v34, v33, {sr(sP,4)}, 0 offen")
    a(f"""
    s_cmp_eq_u32 s2, 252
    s_cbranch_scc1 K1_WC
    """)
    def xrd(reg, off):
        for s in range(4): a(f"ds_read_b128 {vr(reg+4*s,4)}, v{[vXA, vXA+2, vXA+3, vXA+4][s]} offset:{off}")
    def trs(s):
        for m in range(2):
            for ab in range(2):
                for u in range(2):
                    a(f"ds_read_b64_tr_b16 {vr(W(m,ab,s)+2*u,2)}, v{vTR+6*ab} offset:{K1_W+m*16384+s*4096+u*512}")
    def mm(s, x, acc):
        return [f"v_mfma_f32_16x16x32_bf16 {vr(acc+8*m+4*ab,4)}, {vr(W(m,ab,s),4)}, {vr(x+4*s,4)}, {'0' if s == 0 else vr(acc+8*m+4*ab,4)}"
                for m in range(2) for ab in range(2)]
    def pack(acc, out):
        o = []
        for b in range(2):
            for ab in range(2):
                b0, b1 = acc+4*ab+b, acc+4*ab+2+b
                hs = [acc+8+4*ab+2*e_+b for e_ in range(2)]
                o += [f"v_mul_f32 v{b0}, s{cnl2e}, v{b0}", f"v_mul_f32 v{b1}, s{cnl2e}, v{b1}"]
                for e_, h in enumerate(hs): o += [f"v_max_f32 v{30+e_}, abs(v{h}), s{csign}", f"v_bfi_b32 v{h}, s{cmag}, v{30+e_}, v{h}"]
                o += [f"v_cvt_pk_bf16_f32 v{b0}, v{b0}, v{b1}"] + [f"v_add_u32 v{h}, 0x8000, v{h}" for h in hs]
                o += [f"v_sub_u32_sdwa v{h}, v{h}, v{b0} dst_sel:DWORD dst_unused:UNUSED_PAD src0_sel:DWORD src1_sel:WORD_{e_}" for e_, h in enumerate(hs)]
                o += [f"v_perm_b32 v{out+4*b+2*ab+e_}, v{h}, v{b0}, s{cp0+e_}" for e_, h in enumerate(hs)]
            o.append(f"buffer_store_dwordx4 {vr(out+4*b,4)}, v{vST}, {sr(sT,4)}, s{ctso} offen offset:{128*b} {OPT['st_t']}")
        return o
    xrd(vX, 0)
    trs(0); a("s_waitcnt lgkmcnt(6)")
    for s in range(1, 4):
        trs(s); a("s_waitcnt lgkmcnt(8)"); a.ext(mm(s-1, vX, vA))
        if s < 3: a("s_waitcnt lgkmcnt(6)")
    a("s_waitcnt lgkmcnt(0)")
    stamp(a, 5)
    a(f"""
    s_cmp_ge_u32 s2, 254
    s_cbranch_scc1 K1_WT
    s_lshl_b32 s{st0}, s{snb}, 4
    s_add_u32 s{st0}, s{st0}, 64
    s_cmp_lt_u32 s{st0}, s{snr}
    s_cbranch_scc0 K1_ONE
    """)
    vX2, vA2 = 208, 224
    xrd(vX2, 16384)
    g = mm(3, vX, vA) + ["s_waitcnt lgkmcnt(0)"]
    m2 = sum((mm(s, vX2, vA2) for s in range(4)), []); pk = pack(vA, vO)
    g += m2[:6]; k = 0
    for x in m2[6:]:
        g.append(x); g += pk[k:k+3]; k += 3
    g += pk[k:] + [f"s_add_u32 s{ctso}, s{ctso}, {64*TS}"] + pack(vA2, vO+8)
    asmsim.check_hazards(g, "k1 two blocks")
    a.ext(g)
    a("s_branch K1_TAIL\nK1_ONE:")
    g = mm(3, vX, vA) + ["s_nop 7"] + pack(vA, vO)
    asmsim.check_hazards(g, "k1 one block")
    a.ext(g)
    a("K1_TAIL:")
    PL = int(OPT.get("pl", "0"))
    if PL:
        a(f"""
        s_cmp_lt_u32 s2, {NCH}
        s_cbranch_scc0 K1_NOPF
        s_mul_i32 s{st0}, s2, {CS*32}
        """)
        srd(a, sP, 6, f"s{st0}", PL*128)
        a(f"""
        v_lshlrev_b32 v4, 7, v0
        s_mov_b32 s{st0}, 65536
        s_barrier
        buffer_load_dword v5, v4, {sr(sP,4)}, 0 offen
        buffer_load_dword v5, v4, {sr(sP,4)}, s{st0} offen
        K1_NOPF:
        """)
    stamp(a, 6); stamp(a, 7)
    stamp_out(a, 0, 22, sw, 2)
    a("s_endpgm")
    a("K1_WT:")
    srd(a, sT, 22, WT_OFF, 65536)
    a(f"""
    s_cmp_ge_u32 s{sw}, 4
    s_cbranch_scc1 K1_END
    v_lshlrev_b32 v2, 4, v{vg}
    s_lshl_b32 s{st0}, s{snb}, 2
    s_lshl_b32 s{st1}, s{shf}, 1
    s_add_u32 s{st0}, s{st0}, s{st1}
    s_add_u32 s{st0}, s{st0}, s{sfb}
    s_lshl_b32 s{st0}, s{st0}, 13
    s_add_u32 s{st1}, s{st0}, 4096
    s_cmp_eq_u32 s{snb}, 0
    s_cbranch_scc0 K1_WU
    """)
    for m in range(2):
        for ab in range(2):
            for s in range(4):
                a(f"buffer_store_dwordx4 {vr(W(m,ab,s),4)}, v2, {sr(sT,4)}, s{st1 if ab else st0} offen offset:{1024*s} {OPT['st_t']}")
        a("s_endpgm")
        if m == 0: a("K1_WU:")
    a("K1_WC:")
    srd(a, sT, 22, WT_OFF+65536, 4096)
    a(f"v_lshlrev_b32 v2, 4, v{vg}\ns_lshl_b32 s{st0}, s{sw}, 10")
    for j in range(8):
        a(f"v_lshlrev_b32 v{vWC+j}, 16, v{vWC+j}\nv_mul_f32 v{vWC+j}, s{cnl2e}, v{vWC+j}")
    for j in range(4):
        a(f"v_cvt_pk_bf16_f32 v{84+j}, v{vWC+2*j}, v{vWC+1+2*j}")
    a(f"buffer_store_dwordx4 v[84:87], v2, {sr(sT,4)}, s{st0} offen {OPT['st_t']}")
    a("K1_END:\ns_endpgm")
    return a.text(), kd("k1_kernel", 240, 102)

CAPG = 416; RND = 400
CNT = 0; FLG = 256; START = 512; INCL = 768; OHL = 1024; L1 = 1536; L2 = L1 + 4*CAPG*4; APL = L2 + 4*CAPG*4
ROWP = 272
UL = APL + 48*ROWP; LUTL = UL + 48*ROWP; STG = (LUTL + 65536 + 255)//256*256; XL = STG + 3*CAPG*32 + 5*1024; K2_LDS = XL + 12288
PROG = FLG + 32
assert K2_LDS <= 163840 and K2_LDS >= STG + 4*CAPG*32 and LUTL <= 65535 and (4*CAPG*4) % 256 == 0

def gen_k2():
    a = Asm()
    sREC, sX, sWT, sT, sE, sO, sD, sS = 24, 28, 32, 36, 40, 44, 68, 72
    sw, sg, sfh, st0, st1, st2 = 48, 49, 50, 51, 52, 53
    scount, sslow, sround, slim, sgb, srt, slut, srank = 54, 55, 56, 57, 58, 59, 82, 83
    stail = 20
    sdma, sm0, sneed = 21, 22, 23
    cm32, c128, cnl2e, cfc, csrc, cm40, cm10, cfe = 60, 61, 62, 63, 64, 65, 66, 67
    sk = 16
    vH16, vA1, vA2, vEa, vOa, vO, vA3 = 1, 2, 3, 4, 5, 6, 7
    WC = 8; AP = 16; PA = 24; SC = 28; OH = 32; EA = 40; ADDR = 48; ACC = 64; SP = 96; G = 112; RAW = 176
    XR = 240; UR = 246; vP16 = 252; vH256 = 253; vHS = 254; vPG = 255; vM15 = XR; vO2 = SP+8
    raw = lambda p, b: RAW + 32*p + 16*b
    gb = lambda p, b: G + 32*p + 16*b
    vt = gb(1, 1); Z = SP; EOFF = SP+14
    REC = raw(1, 0); CADDR = REC+16; RANK = G; STV = G+16
    NTB = [int(c_) for c_ in OPT.get("nt", "11")]
    rowoff = lambda r: 8*(r >> 2) + (r & 3)
    sd = "dst_sel:DWORD dst_unused:UNUSED_PAD src0_sel:DWORD"

    a("k2_kernel:")
    a(f"s_cmp_ge_u32 s2, {NBIN}\ns_cbranch_scc1 K2_END")
    stamp(a, 0)
    a(f"""
    s_load_dwordx8 s[4:11], s[0:1], 0
    s_load_dwordx2 s[12:13], s[0:1], 72
    s_load_dwordx2 s[14:15], s[0:1], 88
    v_lshrrev_b32 v{vt}, 6, v0
    v_lshrrev_b32 v{vt+1}, 2, v0
    v_readfirstlane_b32 s{sw}, v{vt}
    v_and_b32 v{vt+2}, 3, v0
    v_lshlrev_b32 v{vt+3}, 7, v{vt+1}
    v_lshl_add_u32 v{vt+3}, v{vt+2}, 4, v{vt+3}
    s_lshl_b32 s{st0}, s2, 14
    s_add_u32 s{st0}, s{st0}, {REC_OFF}
    v_and_b32 v{vt}, 63, v0
    v_lshlrev_b32 v{vt+5}, 3, v{vt}
    v_mov_b32 v{Z}, 0
    v_mov_b32 v{Z+1}, 0
    ds_write_b64 v{vt+5}, {vr(Z,2)} offset:{CNT}
    s_and_b32 s{sg}, s{sw}, 3
    s_lshr_b32 s{sfh}, s{sw}, 2
    v_lshlrev_b32 v{vA2}, 4, v{vt}
    s_mov_b32 s{st1}, 8192
    s_waitcnt lgkmcnt(0)
    """)
    if OPT.get("lat"):
        kind = OPT["lat"]
        if kind == "T": srd(a, sS, 14, T_OFF, N*TS)
        if kind == "R": srd(a, sS, 14, REC_OFF, 4 << 20)
        if kind == "x": srd(a, sS, 4, None, N*256)
        if kind == "e": srd(a, sS, 6, None, E*32)
        a(f"""
        s_cmp_eq_u32 s{sw}, 0
        s_cbranch_scc0 K2_NOLAT
        s_lshl_b32 s{st2}, s2, 13
        v_lshlrev_b32 v{vt+9}, 7, v{vt}
        s_memrealtime s[86:87]
        buffer_load_dword v{vt+10}, v{vt+9}, {sr(sS,4)}, s{st2} offen
        s_waitcnt vmcnt(0)
        s_memrealtime s[88:89]
        K2_NOLAT:
        s_barrier
        """)
    a(f"""
    s_cmp_lg_u32 s{sfh}, 0
    s_cbranch_scc1 K2_NOREC
    """)
    srd(a, sREC, 14, f"s{st0}", 16384)
    for u in range(2):
        for r in range(2):
            a(f"buffer_load_dwordx4 {vr(REC+8*r+4*u,4)}, v{vt+3}, {sr(sREC,4)}, {'s%d' % st1 if u else '0'} offen offset:{64*r}")
    TP0 = int(OPT.get("tp0", "0"))
    if TP0:
        srd(a, sS, 14, T_OFF, N*TS)
        a(f"""
        s_bfe_u32 s{st0}, s2, 0x50003
        s_mul_i32 s{st0}, s{st0}, {TP0}
        s_add_u32 s{st0}, s{st0}, s{sw}
        s_lshl_b32 s{st0}, s{st0}, 13
        s_cmp_lt_u32 s{sw}, {TP0}
        s_cselect_b32 s{sS+2}, s{sS+2}, 0
        v_lshlrev_b32 v{vt+9}, 7, v{vt}
        buffer_load_dword v{vt+10}, v{vt+9}, {sr(sS,4)}, s{st0} offen
        """)
    a(f"""
    K2_NOREC:
    s_mul_i32 s{st0}, s2, 625
    s_add_u32 s{cm40}, s{st0}, 625
    s_lshr_b32 s{st0}, s{st0}, 4
    s_lshr_b32 s{cm40}, s{cm40}, 4
    s_sub_u32 s{cm40}, s{cm40}, s{st0}
    s_lshl_b32 s{cm40}, s{cm40}, 8
    s_lshl_b32 s{st0}, s{st0}, 8
    """)
    srd(a, sX, 4, f"s{st0}", f"s{cm40}")
    srd(a, sO, 12, f"s{st0}", f"s{cm40}")
    srd(a, sWT, 14, WT_OFF, LUT_OFF - WT_OFF + 65536)
    a("s_barrier")
    stamp(a, 1)
    def ld_wc():
        a(f"""
        s_lshl_b32 s{st1}, s{sfh}, 11
        s_add_u32 s{st1}, s{st1}, 65536
        buffer_load_dwordx4 {vr(WC,4)}, v{vA2}, {sr(sWT,4)}, s{st1} offen
        buffer_load_dwordx4 {vr(WC+4,4)}, v{vA2}, {sr(sWT,4)}, s{st1} offen offset:1024
        """)
    def common1(Z, vl):
        a = Asm()
        a(f"s_lshl_b32 s{st0}, s{sfh}, 8\ns_add_u32 s{st0}, s{st0}, {T_OFF-128}")
        srd(a, sT, 14, f"s{st0}", 64, w3="0x800000", hi_or="0x40000")
        srd(a, sE, 6, None, E*32)
        a(f"""
        s_mov_b32 s{cm32}, {'0x7e0' if 'e' in OPT.get('nomem','') else '0x1fffe0' if 's' in OPT.get('nomem','') else '0xffffffe0'}
        s_mov_b32 s{c128}, 128
        s_mov_b32 s{cnl2e}, {NL2E + (16 << 23):#x}
        s_mov_b32 s{cfc}, 0xfc
        s_mov_b32 s{cfe}, {OPT.get('cfe', '0xfffe')}
        s_mov_b32 s{csrc}, {TS}
        s_mov_b32 s{sslow}, 0
        s_mov_b32 s{sround}, 0
        s_mov_b32 s{sgb}, 0
        s_mul_i32 s{st0}, s{sfh}, 3
        s_xor_b32 s{srank}, s{sg}, s{st0}
        v_lshrrev_b32 v{Z+2}, 5, v{vl}
        v_and_b32 v{Z+3}, 31, v0
        v_lshlrev_b32 v{vH16}, 4, v{Z+2}
        v_lshlrev_b32 v{vH256}, 8, v{Z+2}
        v_and_b32 v{Z+4}, 3, v0
        v_mov_b32 v{Z+6}, 0x3f80
        """)
        for i in range(4):
            a(f"v_cmp_eq_u32 vcc, {i}, v{Z+4}\ns_nop 1\nv_cndmask_b32 v{PA+i}, 0, v{Z+6}, vcc")
        a(f"""
        v_cmp_gt_u32 s[78:79], 16, v{Z+3}
        v_mov_b32 v{Z+5}, {bf(127*2.0**-126):#x}
        v_mov_b32 v{Z+7}, {bf(2.0**16):#x}
        v_cndmask_b32 v{Z+5}, v{Z+7}, v{Z+5}, s[78:79]
        v_and_b32 v{Z+4}, 15, v0
        v_lshlrev_b32 v{Z+8}, 3, v{Z+2}
        v_sub_u32 v{Z+4}, v{Z+4}, v{Z+8}
        v_lshlrev_b32 v{Z+6}, 16, v{Z+5}
        """)
        for d in range(4):
            a(f"""
            v_cmp_eq_u32 vcc, {2*d}, v{Z+4}
            v_cmp_eq_u32 s[78:79], {2*d+1}, v{Z+4}
            s_nop 0
            v_cndmask_b32 v{SC+d}, 0, v{Z+5}, vcc
            v_cndmask_b32 v{Z+8}, 0, v{Z+6}, s[78:79]
            v_or_b32 v{SC+d}, v{SC+d}, v{Z+8}
            """)
        return [x.strip() for x in a.l]
    def ld_xr(): return [f"buffer_load_dword v{XR+r}, v{vO}, {sr(sX,4)}, 0 offen offset:{256*rowoff(r)} " for r in range(6)]
    def arrive(k):
        a(f"""
        v_mov_b32 v{vt+6}, {FLG+4*k}
        v_mov_b32 v{vt+7}, 1
        s_mov_b64 exec, 1
        ds_add_u32 v{vt+6}, v{vt+7}
        s_mov_b64 exec, -1
        """)
    def spin(k, n, add=True):
        if add: arrive(k)
        else: a(f"v_mov_b32 v{vt+6}, {FLG+4*k}")
        a(f"""
        K2_SPIN{n}:
        ds_read_b32 v{vt+7}, v{vt+6}
        s_waitcnt lgkmcnt(0)
        v_cmp_gt_u32 vcc, 4, v{vt+7}
        s_cbranch_vccnz K2_SPIN{n}
        """)
    def caddr(k): return f"v_and_b32_sdwa v{CADDR+k}, s{cfc}, v{REC+k} {sd} src1_sel:BYTE_3"
    def pick(sel, cur):
        a(f"""
        s_bitcmp1_b32 s{sel}, 0
        s_cselect_b32 s{cur[0]}, s{cur[1]}, s{cur[0]}
        s_cselect_b32 s{cur[2]}, s{cur[3]}, s{cur[2]}
        s_bitcmp1_b32 s{sel}, 1
        s_cselect_b32 s{st0}, s{cur[2]}, s{cur[0]}
        s_and_b32 s{sg}, s{st0}, 3
        s_andn2_b32 s{st0}, s{st0}, 3
        s_mul_i32 s{sgb}, s{sg}, {CAPG*4}
        s_add_u32 s{scount}, s{st0}, 127
        s_lshr_b32 s{scount}, s{scount}, 7
        s_add_u32 s{stail}, s{st0}, 124
        s_bfe_u32 s{stail}, s{stail}, 0x20005
        s_lshl_b32 s{stail}, s{stail}, 1
        s_add_u32 s{stail}, s{stail}, 2
        """)
    def rank_groups():
        for g in range(1, 4): a(f"s_or_b32 s{sk+g}, s{sk+g}, {g}")
        cur = [sk, sk+1, sk+2, sk+3]; spare = sk+4
        for (i, j) in ((0, 1), (2, 3), (0, 2), (1, 3), (1, 2)):
            a(f"s_max_u32 s{spare}, s{cur[i]}, s{cur[j]}\ns_min_u32 s{cur[j]}, s{cur[i]}, s{cur[j]}")
            cur[i], spare = spare, cur[i]
        pick(srank, cur)
    def scan(fast, ks=()):
        x = SP
        a(f"""
        v_and_b32 v{vt}, 63, v0
        v_lshlrev_b32 v{vt+1}, 2, v{vt}
        ds_read_b32 v{x}, v{vt+1} offset:{CNT}
        v_lshrrev_b32 v{vt}, 4, v{vt}
        v_mul_u32_u24 v{vt}, {CAPG*4}, v{vt}
        v_and_b32 v{vt+2}, 31, v0
        v_lshlrev_b32 v{vt+2}, 2, v{vt+2}
        v_mov_b32 v{vt+4}, 0xfffffe
        s_waitcnt lgkmcnt(0)
        v_sub_u32 v{vt}, v{vt}, v{x}
        """)
        for d in ("row_shr:1", "row_shr:2", "row_shr:4", "row_shr:8"):
            a(f"v_add_u32_dpp v{x}, v{x}, v{x} {d} row_mask:0xf bank_mask:0xf bound_ctrl:0\ns_nop 1")
        a(f"""
        v_add_u32 v{vt}, v{vt}, v{x}
        v_cmp_lt_u32 vcc, {CAPG*4}, v{x}
        ds_write2st64_b32 v{vt+1}, v{vt}, v{x} offset0:{START//256} offset1:{INCL//256}
        """)
        for g in range(4): a(f"v_readlane_b32 s{sk+g}, v{x}, {16*g+15}")
        if fast:
            a("s_cbranch_vccnz K2_GIVEUP")
            for j, k in enumerate(ks): a(f"ds_read_b32 v{STV+j}, v{CADDR+k} offset:{START}")
            rank_groups()
        else:
            for g in range(1, 4): a(f"s_or_b32 s{sk+g}, s{sk+g}, {g}")
            pick(sg, [sk, sk+1, sk+2, sk+3])
        a(f"""
        s_add_u32 s{st0}, s{st0}, s{sgb}
        v_add_u32 v{vt+2}, s{st0}, v{vt+2}
        s_lshl_b32 s{st1}, s{scount}, 7
        s_add_u32 s{st1}, s{st1}, s{sgb}
        v_lshlrev_b32 v{vt+3}, 3, v{vt+2}
        v_and_b32 v{vt+3}, 128, v{vt+3}
        v_cmpx_gt_u32 vcc, s{st1}, v{vt+2}
        ds_write2st64_b32 v{vt+2}, v{vt+3}, v{vt+4} offset0:{L1//256} offset1:{L2//256}
        s_mov_b64 exec, -1
        """)
    def place(k, st, eo):
        a(f"""
        v_add_u32 v{st}, v{st}, v{RANK+k}
        v_bfe_u32 v{vt}, v{REC+k}, 16, {5 if 't' in OPT.get('nomem','') else 14}
        v_lshlrev_b32 v{vt+1}, 3, v{st}
        v_mad_u32_u16 v{vt+2}, v{REC+k}, 2, v{eo}
        v_and_b32 v{vt+1}, 128, v{vt+1}
        v_mad_u32_u24 v{vt}, v{vt}, s{csrc}, v{vt+1}
        ds_write2st64_b32 v{st}, v{vt}, v{vt+2} offset0:{L1//256} offset1:{L2//256}
        """)
    def lane_setup():
        a(f"""
        v_and_b32 v{vt}, 31, v0
        v_xor_b32 v{vA1}, 16, v{vH16}
        v_xor_b32 v{vA2}, 4, v{vt}
        v_lshlrev_b32 v{vA2}, 2, v{vA2}
        v_add_u32 v{vA1}, s{sgb}, v{vA1}
        v_add_u32 v{vA2}, s{sgb}, v{vA2}
        s_mul_i32 s{st0}, s{sg}, {GN*256}
        s_lshl_b32 s{st1}, s{sfh}, 7
        s_add_u32 s{st0}, s{st0}, s{st1}
        """)
        pair_of_lane(a, vO, vt+1)
        a(f"""
        v_lshl_add_u32 v{vO}, v{vH256}, 2, v{vO}
        v_add_u32 v{vO}, s{st0}, v{vO}
        v_bfe_u32 v{vA3}, v0, 1, 5
        v_lshlrev_b32 v{vA3}, 2, v{vA3}
        v_add_u32 v{vA3}, s{sgb}, v{vA3}
        v_lshlrev_b32 v{vP16}, 4, v0
        v_xor_b32 v{vP16}, v{vP16}, v0
        v_and_b32 v{vP16}, 16, v{vP16}
        v_lshlrev_b32 v{vHS}, 1, v0
        v_xor_b32 v{vHS}, v{vHS}, v{vH16}
        v_and_b32 v{vHS}, 16, v{vHS}
        v_add_u32 v{vHS}, {STG}, v{vHS}
        s_lshl_b32 s{st0}, s{sg}, 2
        s_add_u32 s{st0}, s{st0}, {PROG}
        v_mov_b32 v{vPG}, s{st0}
        s_lshl_b32 s{sm0}, s{sgb}, 3
        s_add_u32 s{sm0}, s{sm0}, {STG}
        s_mov_b32 s{sdma}, 0
        s_mov_b32 s{sneed}, 0
        s_mov_b32 s{slim}, s{scount}
        """)
    def rd_addr(off, j): return f"ds_read_b128 {vr(ADDR+4*j,4)}, v{vA1} offset:{L1+off+32*j}"
    def rd_l2(reg, off): return f"ds_read_b32 v{reg}, v{vA2} offset:{L2+off}"
    def ld_raw(p, b, r):
        pre = [f"v_and_b32 v{ADDR+r}, 0xffff80, v{ADDR+r}"] if OPT.get("safe") else []
        if OPT.get("noload"): return ["s_nop 0"]
        return pre + [f"buffer_load_dword v{raw(p,b)+r}, v{ADDR+r}, {sr(sT,4)}, 0 offen" + (" offset:128" if b else "") + " " + OPT.get("ft", "")]
    def ld_blk(p, b): return sum((ld_raw(p, b, r) for r in range(16)), [])
    cur = {"r": "P"}
    def rd_l3(off, reg=None): return [f"ds_read_b32 v{reg or vEa}, v{vA3} offset:{L2+off}"] if cur["r"] == "P" else []
    lab = [0]
    def dma_ea(sl, reg=None, check=True):
        if cur["r"] != "P": return []
        reg = reg or vEa
        if not check:
            return [f"s_mov_b32 m0, s{sm0}", f"v_and_or_b32 v{reg}, v{reg}, s{cm32}, v{vP16}",
                    f"buffer_load_dwordx4 v{reg}, {sr(sE,4)}, 0 offen {OPT.get('fe', '')} lds;wr={300+sl}", f"s_add_u32 s{sm0}, s{sm0}, 1024"]
        lab[0] += 1
        return [f"s_cmp_lt_u32 s{sdma}, s{slim}", f"s_cbranch_scc0 K2_ND{lab[0]}", "@D{",
                f"s_mov_b32 m0, s{sm0}", f"v_and_or_b32 v{reg}, v{reg}, s{cm32}, v{vP16}",
                f"buffer_load_dwordx4 v{reg}, {sr(sE,4)}, 0 offen {OPT.get('fe', '')} lds;wr={300+sl}", "@}", f"K2_ND{lab[0]}:",
                f"s_add_u32 s{sdma}, s{sdma}, 1", f"s_add_u32 s{sm0}, s{sm0}, 1024"]
    spins = []
    def rd_prog(): return [f"ds_read_b32 v{vEa}, v{vPG}"] if cur["r"] == "C" else []
    def get_ea(p, sl, off, prev=()):
        o = [f"s_add_u32 s{sneed}, s{sneed}, 1"]
        if cur["r"] == "P":
            o += [f"v_mov_b32 v{vEa}, s{sneed};rd={300+sl}", f"ds_write_b32 v{vPG}, v{vEa}"]
            if prev: o.append("@MOVE 302 300")
        else:
            lab[0] += 1; n = lab[0]; spins.append(n)
            o += [f"v_cmp_gt_u32 vcc, s{sneed}, v{vEa}", f"s_cbranch_vccnz K2_SP{n}", f"K2_OK{n}:"]
        return o + [f"v_lshl_add_u32 v{vEa}, v{vA2}, 3, v{vHS}", f"ds_read_b128 {vr(EA+4*p,4)}, v{vEa} offset:{8*off}"]
    def oh_idx(p):
        return [f"v_and_b32 v{vOa}, 30, v{vOa}",
                f"v_lshl_add_u32 v{vOa}, v{vOa}, 3, v{vH256}",
                f"ds_read_b128 {vr(OH+4*p,4)}, v{vOa} offset:{OHL}"]
    big = "v_mfma_f32_32x32x16_bf16" if not OPT.get("nobig") else "; "
    de = OPT.get("drop", "")
    def mE(p, b): return "; " if "E" in de else f"{big} {vr(gb(p,b),16)}, {vr(EA+4*p,4)}, {vr(WC+4*b,4)}, 0"
    def mA(p, b): return "; " if "A" in de else f"{big} {vr(gb(p,b),16)}, {vr(OH+4*p,4)}, {vr(AP+4*b,4)}, {vr(gb(p,b),16)}"
    def mS(p): return "; " if "S" in de else f"{big} {vr(SP,16)}, {vr(OH+4*p,4)}, {vr(SC,4)}, 0"
    def mG(p, b, j): return "; " if ("G" in de or ("g" in de and j & 1)) else (f"{big} {vr(ACC+16*b,16)}, {vr(gb(p,b)+4*j,4)}, {vr(SP+4*j,4)}, {vr(ACC+16*b,16)}" if OPT.get("swapg") else f"{big} {vr(ACC+16*b,16)}, {vr(SP+4*j,4)}, {vr(gb(p,b)+4*j,4)}, {vr(ACC+16*b,16)}")
    def mP(p, b):
        o = []
        if "P" in de: return ["; "]*8
        for u in range(2):
            for j in range(4):
                g = vr(gb(p,b)+4*j, 4)
                o.append(f"v_mfma_f32_4x4x4_16b_bf16 {g}, {vr(PA+2*u,2)}, {vr(raw(p,b)+4*j+2*u,2)}, {g}")
        return o
    def idx_pair(p, b, i):
        g0, g1 = gb(p,b)+2*i, gb(p,b)+2*i+1
        if i < NTB[b]:
            return [f"v_exp_f32 v{g0}, v{g0}", f"v_exp_f32 v{g1}, v{g1}", f"v_add_f32 v{g0}, 1.0, v{g0}",
                    f"v_add_f32 v{g1}, 1.0, v{g1}", f"v_rcp_f32 v{g0}, v{g0}", f"v_rcp_f32 v{g1}, v{g1}"], []
        return [f"v_cvt_pkrtz_f16_f32 v{g0}, v{g0}, v{g1}",
                f"v_and_b32_sdwa v{g1}, s{cfe}, v{g0} {sd} src1_sel:WORD_1",
                f"v_and_b32_sdwa v{g0}, s{cfe}, v{g0} {sd} src1_sel:WORD_0"], \
               [f"ds_read_u16_d16_hi v{g1}, v{g1} offset:{LUTL}", f"ds_read_u16_d16_hi v{g0}, v{g0} offset:{LUTL}"]
    def fin_pair(p, b, i):
        g0, r0 = gb(p,b)+2*i, raw(p,b)+2*i
        mul = [f"v_pk_mul_f32 {vr(r0,2)}, {vr(g0,2)}, {vr(r0,2)}"] if OPT.get("pk") else [f"v_mul_f32 v{r0}, v{g0}, v{r0}", f"v_mul_f32 v{r0+1}, v{g0+1}, v{r0+1}"]
        return mul + [
                f"v_cvt_pk_bf16_f32 v{g0}, v{g0}, v{r0}", f"v_cvt_pk_bf16_f32 v{g0+1}, v{g0+1}, v{r0+1}"]
    def zipl(x, y):
        o = []
        for k in range(max(len(x), len(y))):
            if k < len(x): o.append(x[k])
            if k < len(y): o.append(y[k])
        return o
    uid = [0]
    def W(kind):
        uid[0] += 1
        return f"@W{kind} {uid[0]}"
    SH = int(OPT.get("short", "4"))
    XE = OPT.get("xe", "1") == "1"
    WE = int(OPT.get("we", "2"))
    def slot(p, b, kind, acc=True, np_=8, npg=8):
        q = 1-p
        nxt = (p, 1) if b == 0 else (q, 0)
        do_idx = b == 0 or kind != "L"
        gs = [[mG(q if b == 0 else p, 1-b, j)] for j in range(npg//2)] if acc else []
        bigs = gs[:2]
        if kind != "L": bigs += [[mE(q, b)], [mA(q, b)]]
        bigs += gs[2:]
        if b == 0: bigs += [[mS(p)]]
        smalls = mP(q, b) if kind != "L" else []
        out = []
        nb = 0
        for i in range(8):
            if i >= np_:
                out += sum(bigs[nb:], []); nb = len(bigs)
                break
            iv, il = idx_pair(*nxt, i) if do_idx else ([], [])
            fv = fin_pair(p, b, i)
            seq = zipl(iv, fv) + il
            if SH:
                rr = range(16*i//SH, 16*(i+1)//SH) if i < SH else []
                if (b == 0 and kind != "L") or (b == 1 and kind == "F"):
                    for r_ in rr: seq += ld_raw(q, 1, r_) if b == 0 else ld_raw(p, 0, r_)
                if kind == "P" and b == 0 and i == SH and XE: seq += ld_xr()
                if kind == "F":
                    if b == 0:
                        for r_ in rr:
                            if r_ & 3 == 3: seq.append(rd_addr((2+p)*128, r_ >> 2))
                    if b == 0 and i == 1: seq = dma_ea(p, check=False) + seq
                    if b == 1 and i == 1: seq += rd_prog()
                    if b == 1 and i == 6: seq += get_ea(p, p, (2+p)*128)
                    if b == 1 and i == 7: seq += rd_l3((3+p)*128)
                    if b == 0 and i == 5: seq.append(rd_l2(vOa, (2+p)*128))
                    if b == 1 and i == 2: seq += oh_idx(p)
            elif kind == "F":
                seq += ld_raw(p, b, 2*i) + ld_raw(p, b, 2*i+1)
                if b == 1 and i & 1: seq.append(rd_addr((3+p)*128, i >> 1))
                if OPT.get("burst"):
                    if p == 0 and b == 0 and i == 0: seq += rd_l3(3*128) + rd_l3(4*128, vOa)
                    if p == 0 and b == 0 and i == 4: seq = dma_ea(1) + dma_ea(2, vOa) + seq
                else:
                    if b == 0 and i == 1: seq += rd_l3((3+p)*128)
                    if b == 1 and i == 0: seq = dma_ea(q) + seq
                if b == 1 and i == 1: seq += rd_prog()
                if b == 1 and i == 6: seq += get_ea(p, p, (2+p)*128, (2,) if (OPT.get('burst') and p == 0) else ())
                if b == 0 and i == 5: seq.append(rd_l2(vOa, (2+p)*128))
                if b == 1 and i == 2: seq += oh_idx(p)
            pre = [W("l")] if i % WE == 0 else []
            if cur["r"] == "P" and kind != "L":
                if (b, i) == (0, 0): pre.append("s_setprio 2")
                if (b, i) == divmod(int(OPT.get("fair", "12")), 8): pre.append("s_setprio 0")
            if i < 6:
                take = 2 if (len(bigs) - nb) > (6 - i) else 1
                if nb < len(bigs): pre += bigs[nb]; nb += 1
                if take == 2 and nb < len(bigs):
                    seq = seq[:6] + bigs[nb] + seq[6:]; nb += 1
            if smalls and i >= 5:
                k0, k1 = {5: (0, 2), 6: (2, 6), 7: (6, 8)}[i]
                sm = smalls[k0:k1]
                if i == 5: seq = seq[:4] + [W("v")] + zipl(sm, seq[4:])
                else: seq = zipl(sm, seq)
            out += pre + seq
        assert nb == len(bigs)
        return out
    def last(p, np_):
        n = f"{p}{cur['r']}{np_}"
        return ([f"K2_LAST{n}:"] + ([] if XE else ld_xr()) + slot(p, 0, "L", np_=np_) + ["s_nop 11"]*(np_ < 6) + slot(p, 1, "L", np_=np_, npg=np_)
                + ["s_nop 1"] + [mG(p, 1, j) for j in range(np_//2)])
    def body(p, kind):
        q = 1-p; n = f"{kind}{p}{cur['r']}"
        o0 = [f"K2_BODY{n}:"] + slot(p, 0, kind)
        o1 = [f"K2_MID{n}:"] + (ld_xr() if kind == "L" else []) + slot(p, 1, kind)
        if OPT.get("prof") == "7": o1 += ["s_mov_b32 m0, s98", "s_add_u32 s98, s98, 1", f"v_writelane_b32 v{UR+5}, s86, m0", "s_memrealtime s[86:87]"]
        if kind == "P":
            for np_ in (2, 4, 6): o1 += [f"s_cmp_eq_u32 s{stail}, {np_}", f"s_cbranch_scc1 K2_LAST{q}{cur['r']}{np_}"]
        if kind == "F":
            if p == 1: o1 += [f"v_add_u32 v{r_}, 256, v{r_}" for r_ in ((vA1, vA2, vA3) if cur["r"] == "P" else (vA1, vA2))]
            o1 += [f"s_sub_u32 s{scount}, s{scount}, 1", f"s_cmp_eq_u32 s{scount}, 2", f"s_cbranch_scc1 K2_BODYP{q}{cur['r']}"]
        return o0, o1
    def entry_short(kind):
        more = kind != "L"
        o = rd_prog() + [W("v"), W("l")] + get_ea(0, 0, 0)
        if more: o += rd_prog() + rd_l3(128)
        o += [W("l"), "@STAMP", mE(0, 0), mA(0, 0), mE(0, 1), mA(0, 1)]
        o += (dma_ea(1, check=False) if more else []) + ["s_nop 7", W("v")] + mP(0, 0) + ["s_nop 3"]
        for i in range(8):
            v_, l_ = idx_pair(0, 0, i)
            o += [W("l")] + ([v_[0], v_[1], "s_nop 0"] + v_[2:] if i < NTB[0] else v_) + l_
            if more:
                if i < 4:
                    for r_ in range(4*i, 4*i+4): o += ld_raw(1, 0, r_)
                if i == 6: o += [W("v")] + get_ea(1, 1, 128)
                if i == 7 and kind == "F": o += rd_l3(256)
            if i == 3: o += [W("v")] + mP(0, 1)
        return o + slot(0, 0, kind, acc=False) + [f"s_branch K2_MID{kind}0{cur['r']}"]
    def entry(kind):
        if SH: return entry_short(kind)
        more = kind != "L"
        o = rd_prog() + [W("v"), W("l")] + get_ea(0, 0, 0)
        if more: o += rd_prog()
        o += [W("l"), "@STAMP", mE(0, 0), mA(0, 0), mE(0, 1), mA(0, 1), "s_nop 7", W("v")] + mP(0, 0) + ["s_nop 3"]
        for i in range(8):
            v_, l_ = idx_pair(0, 0, i)
            o += [W("l")] + ([v_[0], v_[1], "s_nop 0"] + v_[2:] if i < NTB[0] else v_) + l_
            if more:
                for r_ in range(4*(i & 3), 4*(i & 3)+4): o += ld_raw(1, i >> 2, r_)
                if i >= 4: o.append(rd_addr(256, i-4))
                if i == 4: o += [W("v")] + get_ea(1, 1, 128) + rd_l3(256)
                if i == 7: o += dma_ea(0)
            if i == 3: o += [W("v")] + mP(0, 1)
        return o + slot(0, 0, kind, acc=False) + [f"s_branch K2_MID{kind}0{cur['r']}"]
    def drain(p): return ["s_nop 1"] + [mG(p, 1, j) for j in range(4)]
    def mk_fill():
        ad = [rd_addr(0, j) for j in range(4)]
        t0 = SP
        o = []
        if cur["r"] == "P":
            o = (rd_l3(0) + [f"ds_read_b32 v{t0}, v{vA3} offset:{L2+128}"])
        o += ad + [rd_l2(vOa, 0), rd_l2(t0+1, 128)]
        if cur["r"] == "P":
            o += ["s_waitcnt lgkmcnt(6)"] + dma_ea(0) + [f"v_mov_b32 v{vEa}, v{t0}"]
        d1 = dma_ea(1) if not SH else []
        late1 = OPT.get("d1", "1") == "1"
        o += ([] if late1 else d1) + ["s_waitcnt lgkmcnt(0)"] + ld_blk(0, 0) + oh_idx(0) + [f"v_mov_b32 v{vOa}, v{t0+1}"] + oh_idx(1) + ld_blk(0, 1) + (d1 if late1 else [])
        return o + [rd_addr(128, j) for j in range(4)]
    FI, B, EN, LA_ = {}, {}, {}, {}
    for r in "PC":
        cur["r"] = r
        if r == "C" and OPT.get("ntc"): NTB[:] = [int(c_) for c_ in OPT["ntc"]]
        FI[r] = mk_fill()
        for k in "FPL":
            EN[r, k] = entry(k)
            for p in range(2): B[r, p, k] = body(p, k)
        for p in range(2):
            for np_ in (2, 4, 6, 8): LA_[r, p, np_] = last(p, np_)
    def trace(r, cnt, np_=8):
        kinds = ["F"]*(cnt-2) + ["P", "L"][-min(cnt, 2):]
        tr = FI[r] + EN[r, kinds[0]] + B[r, 0, kinds[0]][1]
        for t in range(1, cnt-1): tr += B[r, t & 1, kinds[t]][0] + B[r, t & 1, kinds[t]][1]
        tr += drain(0) if cnt == 1 else LA_[r, (cnt-1) & 1, np_]
        o = []; keep = True; nd = 0
        for x in tr:
            if x == "@D{": keep = nd < cnt; nd += 1
            elif x == "@}": keep = True
            elif keep and x != "@STAMP": o.append(x)
        return o
    epi_head = ["s_branch x", "s_cmp", "s_cbranch", "s_waitcnt vmcnt(0) lgkmcnt(0)"] + [f"v_add_f32 v{G+r_}, 0, v{XR}" for r_ in range(24)] + [f"v_add_f32 v{ACC+r_}, 0, v{ACC+r_}" for r_ in range(32)]
    cases = [(r, c, n_) for c in range(1, 9) for r in "PC" for n_ in (2, 4, 6, 8)]
    need = asmsim.solve_waits([trace(*c) for c in cases])
    for c in cases: asmsim.check_hazards(asmsim.apply_waits(trace(*c), need) + epi_head, f"case {c}")
    def emit(l):
        for x in asmsim.apply_waits(l, need):
            if x == "@STAMP":
                stamp(a, 5); stamp(a, 5, "3"); stamp(a, 7, "4")
                if OPT.get("prof") == "7": a("s_memrealtime s[86:87]\ns_mov_b32 s98, 1")
                if OPT.get("prof") == "3": a(f"s_memtime s[86:87]\ns_mov_b32 s90, s{scount}\ns_getreg_b32 s92, hwreg(HW_REG_HW_ID)")
            elif x[0] != "@": a(x.split(";")[0] or "s_nop 0")
    def main_loop(r):
        a(f"""
        K2_GO{r}:
        s_cmp_eq_u32 s{scount}, 0
        s_cbranch_scc1 K2_EMPTY
        s_cmp_gt_u32 s{scount}, 2
        s_cbranch_scc1 K2_ENTF{r}
        s_cmp_eq_u32 s{scount}, 2
        s_cbranch_scc1 K2_ENTP{r}
        """)
        emit(EN[r, "L"]); a(f"K2_ENTP{r}:"); emit(EN[r, "P"]); a(f"K2_ENTF{r}:"); emit(EN[r, "F"])
        a(".p2align 6")
        for _ in range(int(OPT.get("pad", "0"))): a("s_nop 0")
        for p in range(2): emit(B[r, p, "F"][0] + B[r, p, "F"][1])
        a(f"s_branch K2_BODYF0{r}")
        emit(B[r, 0, "L"][1] + drain(0)); a("s_branch K2_DONE")
        for p in range(2):
            for np_ in (2, 4, 6): emit(LA_[r, p, np_]); a("s_branch K2_DONE")
        for p in range(2):
            emit(B[r, p, "P"][0] + B[r, p, "P"][1] + LA_[r, 1-p, 8])
            if p == 0 or r == "P": a("s_branch K2_DONE")
    def fill(n):
        a(f"s_cmp_eq_u32 s{scount}, 0\ns_cbranch_scc1 K2_FILLED{n}")
        emit(FI[n])
        a(f"K2_FILLED{n}:")
    def ap_addr():
        a(f"""
        v_bfe_u32 v{vt}, v0, 2, 2
        v_lshrrev_b32 v{vt+1}, 1, v{vH16}
        v_add_u32 v{vt}, v{vt}, v{vt+1}
        v_mul_u32_u24 v{vt}, {ROWP}, v{vt}
        v_bfe_u32 v{vt+2}, v0, 4, 1
        v_lshl_add_u32 v{vt}, v{vt+2}, 5, v{vt}
        v_and_b32 v{vt+2}, 3, v0
        v_lshl_add_u32 v{vt}, v{vt+2}, 3, v{vt}
        s_mul_i32 s{st0}, s{sg}, {GN*ROWP}
        s_lshl_b32 s{st1}, s{sfh}, 7
        s_add_u32 s{st0}, s{st0}, s{st1}
        v_add_u32 v{vt}, s{st0}, v{vt}
        v_mul_u32_u24 v{vt+1}, {ROWP//2}, v{vt+1}
        v_and_b32 v{vt+2}, 127, v{vO}
        v_add3_u32 v{vt+1}, v{vt+2}, s{st0}, v{vt+1}
        """)
    def ap_read():
        a(f"""
        ds_read_b64_tr_b16 {vr(AP,2)}, v{vt} offset:{APL}
        ds_read_b64_tr_b16 {vr(AP+2,2)}, v{vt} offset:{APL+4*ROWP}
        ds_read_b64_tr_b16 {vr(AP+4,2)}, v{vt} offset:{APL+64}
        ds_read_b64_tr_b16 {vr(AP+6,2)}, v{vt} offset:{APL+4*ROWP+64}
        """)
        for r in range(6): a(f"ds_read_b32 v{UR+r}, v{vt+1} offset:{UL+ROWP*rowoff(r)}")
    def init_addr():
        for r in range(16): a(f"v_mov_b32 v{ADDR+r}, 128")
    def zero_acc():
        for r in range(32): a(f"v_mov_b32 v{ACC+r}, 0")

    a(f"s_cmp_lg_u32 s{sfh}, 0\ns_cbranch_scc1 K2_LOADER")
    if OPT.get("sp"): a(f"s_setprio {OPT['sp']}")
    ld_wc()
    a.ext(common1(SP, vt))
    a(f"v_and_b32 v{vt+3}, 15, v0\nv_lshlrev_b32 v{vt+3}, 4, v{vt+3}\nv_bfe_u32 v{vt+4}, v0, 4, 2\nv_lshl_add_u32 v{vt+3}, v{vt+4}, 10, v{vt+3}\ns_lshl_b32 s{st0}, s{sg}, 8\nv_add_u32 v{vt+3}, s{st0}, v{vt+3}")
    a(f"v_add_u32 v{vt+4}, 40960, v{vt+3}")
    for val, rg, runs in ((0x3f003f00, EA, (0, 3, 32, 35)), (0, EA+4, (23, 27)), (0x3f803f80, OH, (51, 55, 59))):
        for j in range(4): a(f"v_mov_b32 v{rg+j}, {val:#x}")
        for c0 in runs:
            a(f"ds_write_b128 v{vt+4 if c0 >= 24 else vt+3}, {vr(rg,4)} offset:{LUTL + 1024*(c0 - (40 if c0 >= 24 else 0))}")
    a(f"""
    v_and_b32 v{vt+3}, 127, v0
    v_bfe_u32 v{vt+4}, v0, 2, 4
    v_and_b32 v{Z+4}, 3, v0
    v_lshrrev_b32 v{Z+5}, 6, v{vt+3}
    v_lshlrev_b32 v{vt+3}, 2, v{vt+3}
    v_lshl_add_u32 v{Z+4}, v{Z+5}, 2, v{Z+4}
    v_lshlrev_b32 v{Z+5}, 1, v{Z+4}
    v_mov_b32 v{Z+6}, 0x3780
    v_mov_b32 v{Z+7}, 0x37800000
    v_cmp_eq_u32 vcc, v{Z+5}, v{vt+4}
    v_add_u32 v{Z+5}, 1, v{Z+5}
    s_nop 0
    v_cndmask_b32 v{Z+8}, 0, v{Z+6}, vcc
    v_cmp_eq_u32 vcc, v{Z+5}, v{vt+4}
    s_nop 1
    v_cndmask_b32 v{Z+9}, 0, v{Z+7}, vcc
    v_or_b32 v{Z+8}, v{Z+8}, v{Z+9}
    v_cmp_gt_u32 vcc, 15, v{vt+4}
    s_nop 1
    v_cndmask_b32 v{Z+8}, 0, v{Z+8}, vcc
    ds_write_b32 v{vt+3}, v{Z+8} offset:{OHL}
    """)
    a(f"""
    v_mul_u32_u24 v{EOFF}, {CS*32}, v{vt+1}
    v_add_u32 v{EOFF+1}, {64*CS*32}, v{EOFF}
    v_mov_b32 v{vt+3}, 4
    """)
    init_addr()
    a(f"s_waitcnt vmcnt({2 + (TP0 > 0)})")
    stamp(a, 2); stamp(a, 1, "5")
    if OPT.get("half", "0") == "1":
        for u in range(2): a(f"v_mov_b32_dpp v{vt+8+u}, v{REC+4*u+3} quad_perm:[3,3,3,3] row_mask:0xf bank_mask:0xf")
        for u in range(2): a(f"v_cmp_eq_u32 {sr(68+2*u,2)}, -1, v{vt+8+u}")
        a("s_nop 0")
        for u in range(2):
            for i in range(4): a(f"v_cndmask_b32 v{REC+8+4*u+i}, v{REC+8+4*u+i}, -1, {sr(68+2*u,2)}")
    a(f"""
    v_cmp_eq_u32 vcc, -2, v{REC+11}
    v_cmp_eq_u32 s[78:79], -2, v{REC+15}
    s_or_b64 vcc, vcc, s[78:79]
    s_cbranch_vccz K2_NOOVF
    v_mov_b32 v{vt+4}, 0x10000
    v_mov_b32 v{vt}, 60
    ds_add_u32 v{vt}, v{vt+4} offset:{CNT}
    K2_NOOVF:
    """)
    M = [68, 70, 72, 74, 76, 78]
    KS = [[4*u+i for i in range(4)] + [8+4*u, 9+4*u] for u in range(2)]
    def masked(u, fn):
        for j, k in enumerate(KS[u]): a(f"v_cmp_gt_u32 {sr(M[j],2)}, -2, v{REC+k}")
        for j, k in enumerate(KS[u]): a(f"s_mov_b64 exec, {sr(M[j],2)}\n{fn(k, 6*u+j)}")
        a("s_mov_b64 exec, -1")
    for k in KS[0] + KS[1]: a(caddr(k))
    for u in range(2): masked(u, lambda k, j: f"ds_add_rtn_u32 v{RANK+k}, v{CADDR+k}, v{vt+3} offset:{CNT}")
    a(f"v_min_u32 v{vt+4}, v{REC+10}, v{REC+14}\nv_cmp_gt_u32 s[26:27], -2, v{vt+4}")
    def steps(tag, fn):
        a(f"s_cmp_eq_u64 s[26:27], 0\ns_cbranch_scc1 K2_{tag}1\ns_waitcnt lgkmcnt(0)")
        for u in range(2):
            for k in (10+4*u, 11+4*u):
                a(f"v_cmpx_gt_u32 vcc, -2, v{REC+k}\ns_cbranch_execz K2_{tag}{u}")
                fn(k, u)
            a(f"K2_{tag}{u}:\ns_mov_b64 exec, -1")
    steps("C", lambda k, u: a(f"{caddr(k)}\nds_add_rtn_u32 v{RANK+k}, v{CADDR+k}, v{vt+3} offset:{CNT}"))
    arrive(0)
    stamp(a, 2, "5")
    LA, LB = raw(0, 0), raw(0, 1)
    for u in range(2):
        for j, k in enumerate(KS[u]):
            a(f"v_bfe_u32 v{LA+6*u+j}, v{REC+k}, 16, {5 if 't' in OPT.get('nomem','') else 14}\nv_mad_u32_u16 v{LB+6*u+j}, v{REC+k}, 2, v{EOFF+u}")
    NBK = int(OPT.get("nbk", "0"))
    if NBK:
        for u in range(2):
            for j, k in enumerate(KS[u]): a(f"v_and_b32 v{vt+8}, 0x3c, v{CADDR+k}\nv_cmp_gt_u32 {sr(M[j],2)}, {4*NBK}, v{vt+8}")
            for j, k in enumerate(KS[u]): a(f"s_mov_b64 exec, {sr(M[j],2)}\nbuffer_load_ubyte v{vt+12}, v{LB+6*u+j}, {sr(sE,4)}, 0 offen")
            a("s_mov_b64 exec, -1")
    for j in range(12): a(f"v_mul_u32_u24 v{LA+j}, s{csrc}, v{LA+j}")
    spin(0, "A", add=False)
    stamp(a, 3, "5")
    scan(True, KS[0] + KS[1])
    a("s_waitcnt lgkmcnt(1)")
    stamp(a, 4, "5")
    for j, k in enumerate(KS[0] + KS[1]): a(f"v_add_u32 v{STV+j}, v{STV+j}, v{RANK+k}")
    for j, k in enumerate(KS[0] + KS[1]): a(f"v_lshlrev_b32 v{RANK+k}, 3, v{STV+j}")
    for j, k in enumerate(KS[0] + KS[1]): a(f"v_and_or_b32 v{LA+j}, v{RANK+k}, s{c128}, v{LA+j}")
    for u in range(2): masked(u, lambda k, j: f"ds_write2st64_b32 v{STV+j}, v{LA+j}, v{LB+j} offset0:{L1//256} offset1:{L2//256}")
    def put_step(k, u):
        a(f"ds_read_b32 v{STV+12}, v{CADDR+k} offset:{START}\ns_waitcnt lgkmcnt(0)")
        place(k, STV+12, EOFF+u)
    steps("P", put_step)
    arrive(1)
    stamp(a, 5, "5")
    lane_setup()
    stamp(a, 6, "5")
    if OPT.get("order", "1") == "1":
        a(f"""
        v_mov_b32 v{vt+6}, {FLG+4}
        K2_SPINB:
        ds_read2_b32 {vr(vt+8,2)}, v{vt+6} offset0:0 offset1:1
        s_waitcnt lgkmcnt(0)
        v_min_u32 v{vt+7}, v{vt+8}, v{vt+9}
        v_cmp_gt_u32 vcc, 4, v{vt+7}
        s_cbranch_vccnz K2_SPINB
        """)
    else: spin(1, "B", add=False)
    stamp(a, 3); stamp(a, 7, "5")
    a("K2_REFILLP:")
    fill("P")
    stamp(a, 4)
    a(f"s_cmp_lg_u32 s{sslow}, 0\ns_cbranch_scc1 K2_GOP")
    zero_acc()
    ap_addr()
    spin(3, "D", add=False)
    ap_read()
    main_loop("P")
    a("K2_GIVEUP:")
    arrive(1)
    spin(3, "E", add=False)
    a("s_branch K2_SLOW")
    assert XL % 256 == 0
    XF = G; WT = [ACC, raw(0, 0)]
    accs = [[[raw(1,0)+8*nb, raw(1,0)+8*nb+4] for nb in range(3)], [[raw(1,1)+8, raw(1,1)+12], [SP, SP+4], [SP+8, ADDR]]]
    a(f"""
    K2_LOADER:
    v_lshrrev_b32 v{vt+4}, 4, v{vt}
    s_lshl_b32 s{st1}, s{sg}, 2
    v_add_u32 v{vA1}, s{st1}, v{vt+4}
    v_and_b32 v{vt+5}, 15, v0
    v_xor_b32 v{vA1}, v{vA1}, v{vt+5}
    v_lshlrev_b32 v{vA1}, 4, v{vA1}
    v_lshl_add_u32 v{vA1}, v{vt+4}, 8, v{vA1}
    s_lshl_b32 s{st1}, s{sg}, 10
    """)
    if OPT.get("nobulk"):
        ld_wc()
        a.ext(common1(XR+1, vt))
        a(f"v_and_b32 v{vt+2}, 255, v0\nv_lshlrev_b32 v{vt+2}, 4, v{vt+2}")
        for j in range(4): a(f"v_mov_b32 v{EA+j}, 0")
        for j in range(4): a(f"ds_write_b128 v{vt+2}, {vr(EA,4)} offset:{APL+4096*j}")
        arrive(2); arrive(3)
        a("s_branch K2_NOBULK")
    for k in range(3):
        a(f"""
        s_add_u32 m0, s{st1}, {XL+4096*k}
        s_add_u32 s{st2}, s{st1}, {4096*k}
        buffer_load_dwordx4 v{vA1}, {sr(sX,4)}, s{st2} offen lds
        """)
    stamp(a, 1, "6")
    srot = sk
    a(f"s_lshl_b32 s{slut}, s{sg}, 13\ns_lshr_b32 s{srt}, s2, 3")
    for j in range(4):
        a(f"s_add_u32 s{srot+j}, s{srt}, {j}\ns_and_b32 s{srot+j}, s{srot+j}, 3\ns_lshl_b32 s{srot+j}, s{srot+j}, 10\ns_add_u32 s{st2}, s{slut}, s{srot+j}")
        for m in range(2):
            for hf in range(2):
                a(f"buffer_load_dwordx4 {vr(WT[m]+16*hf+4*j,4)}, v{vA2}, {sr(sWT,4)}, s{st2} offen")
                if (m, hf) != (1, 1): a(f"s_add_u32 s{st2}, s{st2}, {4096 if hf == 0 else 32768-4096}")
    stamp(a, 2, "6")
    a(f"""
    s_lshl_b32 s{st0}, s{sg}, 12
    s_add_u32 m0, s{st0}, {LUTL + 7*1024}
    s_add_u32 s{st2}, s{st0}, {LUT_OFF - WT_OFF + 7*1024}
    """)
    for j in range(4): a(f"buffer_load_dwordx4 v{vA2}, {sr(sWT,4)}, s{st2} offen offset:{1024*j} lds")
    a(f"""
    s_mul_i32 s{st0}, s{sg}, 3072
    s_add_u32 m0, s{st0}, {LUTL + 39*1024}
    s_add_u32 s{st2}, s{st0}, {LUT_OFF - WT_OFF + 39*1024}
    """)
    for j in range(3): a(f"buffer_load_dwordx4 v{vA2}, {sr(sWT,4)}, s{st2} offen offset:{1024*j} lds")
    a(f"""
    s_and_b32 s{st0}, s{sg}, 1
    s_lshl_b32 s{st0}, s{st0}, 15
    s_add_u32 m0, s{st0}, {LUTL + 31*1024}
    s_add_u32 s{st2}, s{st0}, {LUT_OFF - WT_OFF + 31*1024}
    buffer_load_dwordx4 v{vA2}, {sr(sWT,4)}, s{st2} offen lds
    """)
    ld_wc()
    stamp(a, 3, "6")
    a(f"""
    s_waitcnt vmcnt(26)
    """)
    arrive(2)
    a(f"""
    v_mov_b32 v{vt+8}, v{vt}
    v_and_b32 v{vt}, 15, v0
    v_bfe_u32 v{vt+1}, v0, 4, 2
    v_xor_b32 v{vt+2}, v{vt}, v{vt+1}
    v_lshlrev_b32 v{vt+2}, 4, v{vt+2}
    v_lshl_add_u32 v{vt+2}, v{vt}, 8, v{vt+2}
    v_add_u32 v{vt+2}, {XL}, v{vt+2}
    v_mul_u32_u24 v{vt}, {ROWP}, v{vt}
    """)
    stamp(a, 2); stamp(a, 5, "6")
    spin(2, "C", add=False)
    stamp(a, 6, "6")
    for s in range(4):
        a(f"s_lshr_b32 s{st0}, s{srot+s}, 4\nv_xor_b32 v{vt+3}, s{st0}, v{vt+2}")
        for nb in range(3):
            a(f"ds_read_b128 {vr(XF+16*nb+4*s,4)}, v{vt+3} offset:{4096*nb}")
    a(f"""
    s_lshr_b32 s{st0}, s{sg}, 1
    s_lshl_b32 s{st0}, s{st0}, 7
    s_and_b32 s{st1}, s{sg}, 1
    s_lshl_b32 s{st1}, s{st1}, 5
    s_add_u32 s{st0}, s{st0}, s{st1}
    v_lshl_add_u32 v{vt+4}, v{vt+1}, 3, v{vt}
    v_add_u32 v{vt+4}, s{st0}, v{vt+4}
    s_lshl_b32 s{st0}, s{sg}, 6
    v_lshl_add_u32 v{vt+5}, v{vt+1}, 3, v{vt}
    v_add_u32 v{vt+5}, s{st0}, v{vt+5}
    """)
    def mm1(m, s):
        return [f"v_mfma_f32_16x16x32_bf16 {vr(accs[m][nb][ab], 4)}, {vr(WT[m]+16*ab+4*s,4)}, {vr(XF+16*nb+4*s,4)}, {'0' if s == 0 else vr(accs[m][nb][ab], 4)}"
                for nb in range(3) for ab in range(2)]
    outA = []
    for nb in range(3):
        al, be = accs[0][nb]; o = EA+ (0 if nb != 1 else 4)
        for i in range(4): outA += [f"v_mul_f32 v{al+i}, s{cnl2e}, v{al+i}", f"v_mul_f32 v{be+i}, s{cnl2e}, v{be+i}"]
        outA += [f"v_cvt_pk_bf16_f32 v{o}, v{al}, v{al+2}", f"v_cvt_pk_bf16_f32 v{o+1}, v{be}, v{be+2}",
                 f"v_cvt_pk_bf16_f32 v{o+2}, v{al+1}, v{al+3}", f"v_cvt_pk_bf16_f32 v{o+3}, v{be+1}, v{be+3}",
                 f"ds_write_b64 v{vt+4}, {vr(o,2)} offset:{APL+16*ROWP*nb}", f"ds_write_b64 v{vt+4}, {vr(o+2,2)} offset:{APL+16*ROWP*nb+64}"]
    NPF = int(OPT.get("tpf", "0"))
    if NPF:
        srd(a, sS, 14, T_OFF, N*TS)
        a(f"""
        s_bfe_u32 s{st0}, s2, 0x50003
        s_lshl_b32 s{st0}, s{st0}, 2
        s_add_u32 s{st0}, s{st0}, s{sg}
        s_lshl_b32 s{st0}, s{st0}, 13
        v_lshlrev_b32 v{vt+9}, 7, v{vt+8}
        """)
        for j in range(NPF):
            a(f"buffer_load_dword v{vt+10}, v{vt+9}, {sr(sS,4)}, s{st0} offen")
            if j+1 < NPF: a(f"s_add_u32 s{st0}, s{st0}, {1 << 20}")
    g = []; cm = common1(XR+1, vt+8); k = 0
    for s in range(4):
        g.append(f"s_waitcnt vmcnt({22-4*s+NPF}) lgkmcnt({9-3*s})")
        for x in mm1(0, s) + (mm1(1, s) if s < 3 else []):
            g.append(x); g += cm[k:k+3]; k += 3
    assert k >= len(cm)
    k = 0
    for j, x in enumerate(mm1(1, 3)):
        g.append(x)
        if j >= 2: g += outA[k:k+3]; k += 3
    g += outA[k:]
    for nb in range(3):
        al, be = accs[1][nb]; o = XF+4*nb
        g += [f"v_cvt_pk_bf16_f32 v{o}, v{al}, v{al+1}", f"v_cvt_pk_bf16_f32 v{o+1}, v{al+2}, v{al+3}",
              f"v_cvt_pk_bf16_f32 v{o+2}, v{be}, v{be+1}", f"v_cvt_pk_bf16_f32 v{o+3}, v{be+2}, v{be+3}",
              f"ds_write_b64 v{vt+5}, {vr(o,2)} offset:{UL+16*ROWP*nb}", f"ds_write_b64 v{vt+5}, {vr(o+2,2)} offset:{UL+16*ROWP*nb+32}"]
    asmsim.check_hazards(g, "gemm")
    a.ext(g)
    a(f"s_waitcnt vmcnt({NPF})")
    arrive(3)
    a("K2_NOBULK:")
    stamp(a, 3); stamp(a, 7, "6")
    init_addr()
    spin(1, "F", add=False)
    a(f"""
    v_mov_b32 v{vt+2}, {INCL+60}
    ds_read2_b32 {vr(vt+4,2)}, v{vt+2} offset0:0 offset1:16
    ds_read2_b32 {vr(vt+6,2)}, v{vt+2} offset0:32 offset1:48
    s_waitcnt lgkmcnt(0)
    """)
    for g_ in range(4): a(f"v_readfirstlane_b32 s{sk+g_}, v{vt+4+g_}")
    a(f"""
    s_max_u32 s{st0}, s{sk}, s{sk+1}
    s_max_u32 s{st1}, s{sk+2}, s{sk+3}
    s_max_u32 s{st0}, s{st0}, s{st1}
    s_cmp_gt_u32 s{st0}, {CAPG*4}
    s_cbranch_scc1 K2_SLOW
    """)
    a("s_setprio 1")
    rank_groups()
    lane_setup()
    a("K2_REFILLC:")
    fill("C")
    a(f"s_cmp_lg_u32 s{sslow}, 0\ns_cbranch_scc1 K2_GOC")
    zero_acc()
    ap_addr()
    spin(3, "G", add=False)
    ap_read()
    stamp(a, 4)
    a("s_branch K2_GOC")
    a("K2_EMPTY:"); a.ext(ld_xr()); a("s_branch K2_DONE")
    for n in spins:
        a(f"""
        K2_SP{n}:
        ds_read_b32 v{vEa}, v{vPG}
        s_waitcnt lgkmcnt(0)
        v_cmp_gt_u32 vcc, s{sneed}, v{vEa}
        s_cbranch_vccnz K2_SP{n}
        s_branch K2_OK{n}
        """)
    main_loop("C")
    a(f"""
    K2_DONE:
    s_cmp_lg_u32 s{sslow}, 0
    s_cbranch_scc1 K2_ROUND
    K2_EPI:
    s_waitcnt vmcnt(0) lgkmcnt(0)
    """)
    stamp(a, 6); stamp(a, 6, "3")
    if OPT.get("prof") == "3": a("s_memtime s[88:89]")
    T0 = G
    if OPT.get("pke", "1") == "1":
        a(f"s_mov_b32 s{st0+1}, 0x358637bd\ns_mov_b32 s{st0+2}, 0x358637bd")
        for b in range(2):
            for r in range(6):
                u, x = T0+12*b+r, T0+12*b+6+r
                if b == 0: a(f"v_lshlrev_b32 v{u}, 16, v{UR+r}\nv_lshlrev_b32 v{x}, 16, v{XR+r}")
                else: a(f"v_and_b32 v{u}, 0xffff0000, v{UR+r}\nv_and_b32 v{x}, 0xffff0000, v{XR+r}")
        for b in range(2):
            for r in range(0, 6, 2): a(f"v_pk_add_f32 {vr(ACC+16*b+r,2)}, {vr(ACC+16*b+r,2)}, {sr(st0+1,2)}")
            for r in range(6): a(f"v_rcp_f32 v{ACC+16*b+r}, v{ACC+16*b+r}")
        for b in range(2):
            for r in range(0, 6, 2): a(f"v_pk_fma_f32 {vr(T0+12*b+r,2)}, {vr(ACC+16*b+8+r,2)}, {vr(ACC+16*b+r,2)}, {vr(T0+12*b+r,2)}")
        for b in range(2):
            for r in range(6): a(f"v_max_f32 v{T0+12*b+r}, 0, v{T0+12*b+r}")
        for b in range(2):
            for r in range(0, 6, 2): a(f"v_pk_add_f32 {vr(T0+12*b+r,2)}, {vr(T0+12*b+r,2)}, {vr(T0+12*b+6+r,2)}")
    else:
        for b in range(2):
            for r in range(6):
                a(f"v_add_f32 v{ACC+16*b+r}, 0x358637bd, v{ACC+16*b+r}")
            for r in range(6):
                a(f"v_rcp_f32 v{ACC+16*b+r}, v{ACC+16*b+r}")
            for r in range(6):
                u, x = T0+12*b+r, T0+12*b+6+r
                if b == 0: a(f"v_lshlrev_b32 v{u}, 16, v{UR+r}\nv_lshlrev_b32 v{x}, 16, v{XR+r}")
                else: a(f"v_and_b32 v{u}, 0xffff0000, v{UR+r}\nv_and_b32 v{x}, 0xffff0000, v{XR+r}")
            for r in range(6):
                u, x = T0+12*b+r, T0+12*b+6+r
                a(f"v_fmac_f32 v{u}, v{ACC+16*b+8+r}, v{ACC+16*b+r}\nv_max_f32 v{u}, 0, v{u}\nv_add_f32 v{u}, v{u}, v{x}")
    a(f"v_lshl_or_b32 v{vO2}, v{vH16}, 27, v{vO}")
    for r in range(6):
        a(f"v_cvt_pk_bf16_f32 v{SP+r}, v{T0+r}, v{T0+12+r}")
        a(f"buffer_store_dword v{SP+r}, v{vO if r < 4 else vO2}, {sr(sO,4)}, 0 offen offset:{256*rowoff(r)} {OPT.get('st_o', '')}")
    stamp(a, 7)
    stamp_out(a, 1, 14, sw, 2)
    a("K2_END:\ns_endpgm")

    a("K2_SLOW:")
    srd(a, sS, 8, None, E*4)
    srd(a, sD, 10, None, E*4)
    a(f"""
    s_mov_b32 s{sslow}, 1
    s_mov_b32 s{cm10}, {-GN}
    """)
    a("s_waitcnt vmcnt(0) lgkmcnt(0)\ns_barrier")
    zero_acc(); lane_setup(); ap_addr(); ap_read()
    a(f"""
    K2_ROUND:
    s_cmp_ge_u32 s{sround}, {E//RND}
    s_cbranch_scc1 K2_EPI
    s_mul_i32 s{st0}, s{sround}, {RND}
    s_add_u32 s{sround}, s{sround}, 1
    v_add_u32 v{EOFF}, s{st0}, v0
    v_lshlrev_b32 v{vt}, 2, v{EOFF}
    buffer_load_dword v{REC}, v{vt}, {sr(sD,4)}, 0 offen
    buffer_load_dword v{REC+1}, v{vt}, {sr(sS,4)}, 0 offen
    v_lshlrev_b32 v{EOFF}, 5, v{EOFF}
    v_and_b32 v{vt}, 63, v0
    v_lshlrev_b32 v{vt}, 3, v{vt}
    v_mov_b32 v{vt+4}, 0
    v_mov_b32 v{vt+5}, 0
    s_waitcnt lgkmcnt(0)
    s_barrier
    ds_write_b64 v{vt}, {vr(vt+4,2)} offset:{CNT}
    v_mov_b32 v{vt+3}, 4
    s_waitcnt vmcnt(0) lgkmcnt(0)
    s_barrier
    """)
    rec_fields(a, REC, REC+2, vt, cm40, cm10)
    a(f"""
    v_cmp_eq_u32 vcc, s2, v{REC+2}
    v_lshl_or_b32 v{REC}, v{REC+1}, 16, v{REC}
    {caddr(0)}
    s_mov_b64 s[78:79], vcc
    v_cmp_gt_u32 vcc, {RND}, v0
    s_and_b64 s[78:79], s[78:79], vcc
    s_mov_b64 exec, s[78:79]
    ds_add_rtn_u32 v{RANK}, v{CADDR}, v{vt+3} offset:{CNT}
    s_mov_b64 exec, -1
    s_waitcnt lgkmcnt(0)
    s_barrier
    """)
    scan(False)
    a(f"""
    s_mov_b64 exec, s[78:79]
    ds_read_b32 v{STV}, v{CADDR} offset:{START}
    s_waitcnt lgkmcnt(0)
    """)
    place(0, STV, EOFF)
    a(f"""
    s_mov_b64 exec, -1
    """)
    lane_setup()
    a(f"""
    s_waitcnt lgkmcnt(0)
    s_barrier
    s_cmp_eq_u32 s{sfh}, 0
    s_cbranch_scc1 K2_REFILLP
    s_branch K2_REFILLC
    K2_CODE_END:
    """)
    return a.text(), kd("k2_kernel", 256, 102)

KE_PROF = f"""
    s_memrealtime s[8:9]
    s_load_dwordx2 s[4:5], s[0:1], 88
    s_waitcnt lgkmcnt(0)
    s_add_u32 s4, s4, {PROF_OFF + 0x200000}
    s_addc_u32 s5, s5, 0
    s_mov_b32 s6, 4
    s_mov_b32 s7, 0x20000
    v_mov_b32 v1, s8
    v_lshlrev_b32 v0, 2, v0
    buffer_store_dword v1, v0, s[4:7], 0 offen
"""
def gen_kr():
    a = Asm()
    a(f"""
    kr_kernel:
    s_cmp_ge_u32 s2, 1
    s_cbranch_scc1 KR_END
    s_load_dwordx4 s[4:7], s[0:1], 80
    s_waitcnt lgkmcnt(0)
    s_add_u32 s8, s6, {PROF_OFF}
    s_addc_u32 s9, s7, 0
    s_mov_b32 s10, 0x200000
    s_mov_b32 s11, 0x20000
    s_mov_b32 s6, 256
    s_mov_b32 s7, 0x20000
    v_cmp_gt_u32 vcc, 250, v0
    s_and_saveexec_b64 s[12:13], vcc
    v_lshlrev_b32 v1, 10, v0
    v_mov_b32 v3, 0
    """)
    sel = [(0, 8, 0, 1), (0, 8, 0, 0), (0, 8, 2, 0), (0, 8, 3, 0), (0, 8, 5, 0), (0, 8, 8, 0),
           (1, 8, 0, 1), (1, 8, 0, 0), (1, 8, 2, 0), (1, 8, 3, 0), (1, 8, 5, 1), (1, 8, 5, 0), (1, 8, 6, 1), (1, 8, 6, 0), (1, 8, 8, 0)]
    w0 = 0
    if OPT.get("krsel"):
        w0, st_, mn_ = [int(x) for x in OPT["krsel"].split(",")]
        sel = [(1, 4, 0, 1), (1, 4, st_, mn_)]
    for j, (kn, nw, st, mn) in enumerate(sel):
        a(f"s_mov_b32 s14, {kn*0x100000 + 64*w0}")
        for w in range(nw): a(f"buffer_load_dword v{10+w}, v1, s[8:11], s14 offen offset:{64*w+4*st}")
        a("s_waitcnt vmcnt(0)")
        if mn:
            for w in range(nw): a(f"v_not_b32 v{10+w}, v{10+w}")
        for w in range(1, nw): a(f"v_max_u32 v10, v10, v{10+w}")
        a(f"buffer_atomic_umax v10, v3, s[4:7], 0 offen offset:{4*j}\ns_waitcnt vmcnt(0)")
    if OPT.get("iv"):
        ja, jb, k = [int(x) for x in OPT["iv"].split(",")]
        a(f"""
        s_barrier
        buffer_load_dword v10, v3, s[4:7], 0 offen offset:{4*ja} sc0 sc1
        buffer_load_dword v11, v3, s[4:7], 0 offen offset:{4*jb} sc0 sc1
        s_waitcnt vmcnt(0)
        v_readfirstlane_b32 s16, v10
        v_readfirstlane_b32 s17, v11
        """)
        if sel[ja][3]: a("s_not_b32 s16, s16")
        if sel[jb][3]: a("s_not_b32 s17, s17")
        a(f"""
        s_sub_u32 s16, s16, s17
        s_min_u32 s16, s16, 10000
        s_mul_i32 s16, s16, {k}
        s_memrealtime s[18:19]
        s_waitcnt lgkmcnt(0)
        KR_SPIN:
        s_memrealtime s[20:21]
        s_waitcnt lgkmcnt(0)
        s_sub_u32 s20, s20, s18
        s_cmp_lt_u32 s20, s16
        s_cbranch_scc1 KR_SPIN
        """)
    a("KR_END:\ns_endpgm")
    return a.text()

DOC = """;
; k1: bins the edges by destination (128 chunks x 256 bins, 32 slots a segment), builds the node table
;     T = (x@w_v : -log2e * x@w_b) as bf16 pairs, MFMA-ready weight fragments and a sigmoid table indexed by f16 bits.
;     rescan of the raw edge list.
"""
def main():
    k1, d1 = gen_k1(); k2, d2 = gen_k2()
    ref = open("standalone__edge_featured_mpnn_gatedgcn__graph.s.ref").read().split("\n")
    out = "\n".join(ref[:13]) + "\n"
    for ch in OPT.get("list", "12"):
        if ch == "1": out += f"; @launch kernel=k1_kernel grid=({2*NCH},1,1) block=(512,1,1) lds={K1_LDS}\n"
        if ch == "2": out += f"; @launch kernel=k2_kernel grid=({NBIN},1,1) block=(512,1,1) lds={K2_LDS}\n"
        if ch == "r": out += "; @launch kernel=kr_kernel grid=(1,1,1) block=(256,1,1) lds=0\n"
        if ch == "e": out += "; @launch kernel=ke_kernel grid=(1,1,1) block=(64,1,1) lds=0\n"
    out += DOC
    out += '.amdgcn_target "amdgcn-amd-amdhsa--gfx950"\n.text\n'
    for n, k in (("k1_kernel", k1), ("k2_kernel", k2)):
        out += f".globl {n}\n.p2align 8\n.type {n},@function\n" + k
    if "e" in OPT.get("list", ""): out += ".globl ke_kernel\n.p2align 8\n.type ke_kernel,@function\nke_kernel:\n" + (KE_PROF if OPT.get("prof") else "") + "    s_endpgm\n"
    if "r" in OPT.get("list", ""): out += ".globl kr_kernel\n.p2align 8\n.type kr_kernel,@function\n" + gen_kr()
    out += '.section .rodata,"a"\n.p2align 6\n' + d1.lstrip("\n") + '.p2align 6\n' + d2.lstrip("\n")
    if "e" in OPT.get("list", ""): out += '.p2align 6\n' + kd("ke_kernel", 8, 16).lstrip("\n")
    if "r" in OPT.get("list", ""): out += '.p2align 6\n' + kd("kr_kernel", 32, 32).lstrip("\n")
    open(sys.argv[1], "w").write(out)

if __name__ == "__main__":
    main()
```

```python
import struct, sys
import asmsim

N = 10000; E = 320000
NCH = 128; CS = 2500
NBIN = 256; GN = 10
BINK, BINC, BINS = 53687, 52500, 21
assert all((625*b_ >> 4) <= d_ < (625*(b_+1) >> 4) for d_ in range(N) for b_ in [(d_*BINK + BINC) >> BINS])
CAP = 32
TS = int(([a for a in sys.argv if a.startswith('ts=')] or ['ts=512'])[0][3:])
T_OFF = 0x1000000
REC_OFF = 0x700000
WT_OFF = 0xB00000
LUT_OFF = 0xB20000
PROF_OFF = 0xF000000
NL2E = struct.unpack("<I", struct.pack("<f", -1.4426950408889634))[0]

def bf(x): return struct.unpack("<I", struct.pack("<f", x))[0] >> 16

OPT = dict(st_r="sc1", st_t="sc1")
for a in sys.argv[2:]:
    k, v = a.split("=", 1); OPT[k] = v

class Asm:
    def __init__(self): self.l = []
    def __call__(self, s):
        for x in s.strip("\n").split("\n"):
            x = x.strip()
            if not x: continue
            if x.startswith(";"): x = "s_nop 0"
            self.l.append(x if x.endswith(":") else "    " + x)
    def ext(self, lst):
        for x in lst: self(x)
    def text(self): return "\n".join(self.l) + "\n"

def stamp(a, i, lvl="1"):
    if OPT.get("prof") and (i in (0, 8) or OPT["prof"] == lvl): a(f"s_memrealtime s[{84+2*i}:{85+2*i}]")
def stamp_out(a, kern, wsreg, sw, vtmp):
    if not OPT.get("prof"): return
    if not (OPT.get("nowait") and kern == 0): a("s_waitcnt vmcnt(0)")
    stamp(a, 8)
    a(f"""
    s_lshl_b32 s4, s2, 4
    s_add_u32 s4, s4, s{sw}
    s_lshl_b32 s4, s4, 6
    s_add_u32 s4, s4, {PROF_OFF + kern*0x100000}
    s_add_u32 s4, s{wsreg}, s4
    s_addc_u32 s5, s{wsreg+1}, 0
    s_mov_b32 s6, 64
    s_mov_b32 s7, 0x20000
    s_waitcnt lgkmcnt(0)
    """)
    if kern == 1 and OPT["prof"] == "7":
        a(f"v_mov_b32 v{vtmp}, v251\nv_writelane_b32 v{vtmp}, s84, 0\ns_mov_b32 m0, s98\ns_add_u32 s98, s98, 1\nv_writelane_b32 v{vtmp}, s86, m0\ns_mov_b32 m0, s98\ns_nop 3\nv_writelane_b32 v{vtmp}, s100, m0\nv_writelane_b32 v{vtmp}, s98, 15")
    else:
        for i in range(9): a(f"v_writelane_b32 v{vtmp}, s{84+2*i}, {i}")
    a(f"""
    v_mbcnt_lo_u32_b32 v{vtmp+1}, -1, 0
    v_mbcnt_hi_u32_b32 v{vtmp+1}, -1, v{vtmp+1}
    v_lshlrev_b32 v{vtmp+1}, 2, v{vtmp+1}
    buffer_store_dword v{vtmp}, v{vtmp+1}, s[4:7], 0 offen
    """)

def vr(b, n): return f"v[{b}:{b+n-1}]"
def sr(b, n): return f"s[{b}:{b+n-1}]"

def srd(a, d, base, add=None, size=None, w3="0x20000", hi_or=None):
    if add is None:
        a(f"s_mov_b32 s{d}, s{base}\ns_mov_b32 s{d+1}, s{base+1}")
    else:
        a(f"s_add_u32 s{d}, s{base}, {add}\ns_addc_u32 s{d+1}, s{base+1}, 0")
    if hi_or: a(f"s_or_b32 s{d+1}, s{d+1}, {hi_or}")
    a(f"s_mov_b32 s{d+2}, {size}\ns_mov_b32 s{d+3}, {w3}")

def kd(name, vgpr, sgpr):
    return f"""
.amdhsa_kernel {name}
  .amdhsa_next_free_vgpr {vgpr}
  .amdhsa_next_free_sgpr {sgpr}
  .amdhsa_accum_offset {(vgpr+3)//4*4}
  .amdhsa_group_segment_fixed_size 0
  .amdhsa_kernarg_size 96
  .amdhsa_user_sgpr_count 2
  .amdhsa_user_sgpr_kernarg_segment_ptr 1
  .amdhsa_system_sgpr_workgroup_id_x 1
.end_amdhsa_kernel
"""

def pair_of_lane(a, d, t):
    a(f"""
    v_and_b32 v{d}, 17, v0
    v_lshlrev_b32 v{d}, 2, v{d}
    v_bfe_u32 v{t}, v0, 1, 1
    v_lshl_add_u32 v{d}, v{t}, 5, v{d}
    v_bfe_u32 v{t}, v0, 2, 2
    v_lshl_add_u32 v{d}, v{t}, 3, v{d}
    """)

def rec_fields(a, vd, vbin, vtmp, sm40, sm10):
    a(f"""
    v_mul_u32_u24 v{vbin}, {BINK}, v{vd}
    v_add_u32 v{vbin}, {BINC}, v{vbin}
    v_lshrrev_b32 v{vbin}, {BINS}, v{vbin}
    v_mul_u32_u24 v{vtmp}, 625, v{vbin}
    v_lshrrev_b32 v{vtmp}, 4, v{vtmp}
    v_sub_u32 v{vd}, v{vd}, v{vtmp}
    v_mul_u32_u24 v{vtmp}, 26, v{vd}
    v_lshrrev_b32 v{vtmp}, 8, v{vtmp}
    v_mad_i32_i24 v{vd}, v{vtmp}, s{sm10}, v{vd}
    v_lshl_or_b32 v{vd}, v{vtmp}, 30, v{vd}
    """)

K1_CNT = 0; K1_STG = 1024; K1_W = 34816; K1_X = K1_W + 32768; K1_LDS = K1_X + (28672 if 'rows' in OPT else 24576)
RLO, RHI = [int(x_) for x_ in OPT.get('rows', '96,64').split(',')]
def gen_k1():
    a = Asm()
    sS, sD, sW1, sW2, sX, sR, sT, sP = 24, 28, 32, 36, 40, 44, 48, 72
    sw, st0, st1, st2, snb, sfb, sch, shf, srow, snr = 52, 53, 54, 55, 56, 57, 58, 69, 71, 76
    c8192, cm10, cnl2e, csign, cmag, ctso, cp0 = 60, 62, 63, 64, 65, 66, 67
    vD, vS, vB, vSL, vt = 4, 12, 20, 28, 36
    vg = 56; vTR, vXA, vST = 64, 65, 66; vWC = 72
    vW, vX, vA, vO = 96, 160, 176, 192
    def W(m, ab, s): return vW + 32*m + 16*ab + 4*s
    a("k1_kernel:")
    a(f"s_cmp_ge_u32 s2, {2*NCH}\ns_cbranch_scc1 K1_END")
    stamp(a, 0)
    a(f"""
    s_load_dwordx16 s[4:19], s[0:1], 0
    s_load_dwordx2 s[20:21], s[0:1], 64
    s_load_dwordx2 s[22:23], s[0:1], 88
    """)
    if OPT.get("pf", "1") == "3":
        a(f"""
        s_cmp_lt_u32 s2, {NCH}
        s_cbranch_scc0 K1_NOPC
        s_getpc_b64 {sr(sP,2)}
        K1_PC:
        s_add_u32 s{sP}, s{sP}, k2_kernel-K1_PC
        s_addc_u32 s{sP+1}, s{sP+1}, 0
        s_mov_b32 s{sP+2}, K2_CODE_END-k2_kernel
        s_mov_b32 s{sP+3}, 0x20000
        s_bfe_u32 s{st0}, s2, 0x40003
        s_lshl_b32 s{st0}, s{st0}, 12
        v_lshlrev_b32 v33, 7, v0
        v_cmp_gt_u32 vcc, 32, v0
        s_and_saveexec_b64 s[80:81], vcc
        s_cbranch_execz K1_NOPC0
        buffer_load_dword v34, v33, {sr(sP,4)}, s{st0} offen
        K1_NOPC0:
        s_mov_b64 exec, s[80:81]
        K1_NOPC:
        """)
    if OPT.get("pf1", "0") == "1":
        a(f"""
        s_getpc_b64 {sr(sP,2)}
        K1_PC1:
        s_mov_b32 s{sP+2}, K1_END-K1_PC1
        s_mov_b32 s{sP+3}, 0x20000
        v_lshlrev_b32 v33, 7, v0
        buffer_load_dword v34, v33, {sr(sP,4)}, 0 offen
        """)
    a(f"""
    v_lshrrev_b32 v2, 6, v0
    v_lshlrev_b32 v1, 2, v0
    v_readfirstlane_b32 s{sw}, v2
    v_lshlrev_b32 v2, 4, v0
    s_mov_b32 s{c8192}, 8192
    s_sub_u32 s{sch}, s2, {NCH}
    s_and_b32 s{shf}, s2, 1
    v_and_b32 v{vg}, 63, v0
    v_lshrrev_b32 v{vg+1}, 4, v{vg}
    v_and_b32 v{vg+2}, 15, v0
    s_and_b32 s{st0}, s{sw}, 3
    s_lshl_b32 s{st0}, s{st0}, 2
    v_add_u32 v{vg+3}, s{st0}, v{vg+1}
    v_xor_b32 v{vg+3}, v{vg+3}, v{vg+2}
    v_lshlrev_b32 v{vg+3}, 4, v{vg+3}
    v_lshl_add_u32 v{vg+3}, v{vg+1}, 8, v{vg+3}
    v_lshrrev_b32 v{vg+4}, 3, v{vg}
    v_and_b32 v{vg+5}, 2, v{vg+4}
    s_lshr_b32 s{st0}, s2, 3
    s_add_u32 s{st0}, s{st0}, s{sw}
    s_and_b32 s{st0}, s{st0}, 1
    s_lshl_b32 s{st0}, s{st0}, 2
    v_and_b32 v{vg+6}, 7, v0
    v_xor_b32 v{vg+5}, v{vg+5}, v{vg+6}
    v_xor_b32 v{vg+5}, s{st0}, v{vg+5}
    v_lshlrev_b32 v{vg+5}, 4, v{vg+5}
    v_lshl_add_u32 v{vg+4}, v{vg+4}, 8, v{vg+5}
    s_lshr_b32 s{st0}, s2, 1
    s_mul_i32 s{srow}, s{st0}, {RLO}
    s_mul_i32 s{st0}, s{st0}, {RHI}
    s_add_u32 s{st0}, s{st0}, {64*(RLO-RHI)}
    s_cmp_lt_u32 s2, {NCH}
    s_cselect_b32 s{srow}, s{srow}, s{st0}
    s_cselect_b32 s{snr}, {RLO}, {RHI}
    s_min_u32 s{srow}, s{srow}, {N}
    s_sub_u32 s{st0}, {N}, s{srow}
    s_min_u32 s{snr}, s{snr}, s{st0}
    s_mul_i32 s{st1}, s{sch}, {CS*4}
    s_cmp_lt_u32 s2, 254
    s_waitcnt lgkmcnt(0)
    s_cselect_b64 {sr(sW1,2)}, s[14:15], s[12:13]
    s_cselect_b64 {sr(sW2,2)}, s[20:21], s[18:19]
    s_cmp_lt_u32 s2, {NCH}
    s_cbranch_scc1 K1_NOIDX
    """)
    srd(a, sD, 10, f"s{st1}", CS*4)
    srd(a, sS, 8, f"s{st1}", CS*4)
    a(f"""
    buffer_load_dwordx4 {vr(vD,4)}, v2, {sr(sD,4)}, 0 offen
    buffer_load_dwordx4 {vr(vS,4)}, v2, {sr(sS,4)}, 0 offen
    buffer_load_dword v{vD+4}, v1, {sr(sD,4)}, s{c8192} offen
    buffer_load_dword v{vS+4}, v1, {sr(sS,4)}, s{c8192} offen
    s_barrier
    K1_NOIDX:
    s_lshl_b32 s{st0}, s{srow}, 8
    s_add_u32 s{sX}, s4, s{st0}
    s_addc_u32 s{sX+1}, s5, 0
    s_lshl_b32 s{sX+2}, s{snr}, 8
    s_mov_b32 s{sX+3}, 0x20000
    s_mov_b32 s{sW1+2}, 32768
    s_mov_b32 s{sW1+3}, 0x20000
    s_mov_b32 s{sW2+2}, 32768
    s_mov_b32 s{sW2+3}, 0x20000
    s_lshl_b32 s{shf+1}, s{shf}, 7
    s_lshl_b32 s{st1}, s{sw}, 10
    """)
    def dma_x(k):
        a(f"s_add_u32 m0, s{st1}, {K1_X + 8192*k}\ns_add_u32 s{st2}, s{st1}, {8192*k}\nbuffer_load_dwordx4 v{vg+3}, {sr(sX,4)}, s{st2} offen lds")
    def stage_w():
        a(f"s_lshr_b32 s{st2}, s2, 3\ns_add_u32 s{st2}, s{st2}, s{sw}\ns_and_b32 s{st2}, s{st2}, 15")
        for k in range(2):
            a(f"""
            s_lshl_b32 s{st0}, s{st2}, 10
            s_add_u32 m0, s{st0}, {K1_W}
            s_lshl_b32 s{st1}, s{st2}, 11
            s_add_u32 s{st1}, s{st1}, s{shf+1}
            buffer_load_dwordx4 v{vg+4}, {sr(sW1,4)}, s{st1} offen lds
            s_add_u32 m0, s{st0}, {K1_W+16384}
            s_xor_b32 s{st2}, s{st2}, 8
            buffer_load_dwordx4 v{vg+4}, {sr(sW2,4)}, s{st1} offen lds
            """)
    if OPT.get("wt", "0") == "1":
        a(f"""
        s_cmp_eq_u32 s{sw}, 0
        s_cbranch_scc0 K1_NOWT
        s_bfe_u32 s{st0}, s2, 0x40003
        s_lshl_b32 s{st0}, s{st0}, 11
        s_add_u32 s{st0}, s{st0}, s{shf+1}
        v_lshlrev_b32 v33, 8, v0
        s_mov_b64 exec, 0xff
        buffer_load_dword v34, v33, {sr(sW1,4)}, s{st0} offen
        buffer_load_dword v34, v33, {sr(sW2,4)}, s{st0} offen
        s_mov_b64 exec, -1
        K1_NOWT:
        """)
    dma_x(0); dma_x(1)
    a(f"s_sub_u32 s{st0}, s2, {NCH}\ns_cmp_lt_u32 s{st0}, {254-NCH}\ns_cbranch_scc1 K1_LATER")
    dma_x(2)
    if RLO > 96: a(f"s_cmp_lt_u32 s{sw}, 4\ns_cbranch_scc0 K1_X3"); dma_x(3); a("K1_X3:")
    stage_w()
    a(f"""
    K1_LATER:
    s_and_b32 s{sfb}, s{sw}, 1
    s_lshr_b32 s{snb}, s{sw}, 1
    v_bfe_u32 v{vg+5}, v0, 2, 2
    v_bfe_u32 v{vg+6}, v0, 3, 2
    s_lshl_b32 s{st0}, s{sfb}, 1
    v_xor_b32 v{vg+6}, s{st0}, v{vg+6}
    v_and_b32 v{vg+7}, 3, v0
    v_lshlrev_b32 v{vg+7}, 3, v{vg+7}
    v_lshl_add_u32 v{vg+7}, v{vg+6}, 5, v{vg+7}
    v_lshl_add_u32 v{vg+5}, v{vg+1}, 3, v{vg+5}
    v_lshl_add_u32 v{vTR}, v{vg+5}, 7, v{vg+7}
    v_xor_b32 v{vTR+6}, 32, v{vTR}
    v_xor_b32 v{vXA}, v{vg+1}, v{vg+2}
    v_lshlrev_b32 v{vXA}, 4, v{vXA}
    v_lshl_add_u32 v{vXA}, v{vg+2}, 8, v{vXA}
    s_lshl_b32 s{st0}, s{snb}, 12
    s_add_u32 s{st0}, s{st0}, {K1_X}
    v_add_u32 v{vXA}, s{st0}, v{vXA}
    v_xor_b32 v{vXA+2}, 64, v{vXA}
    v_xor_b32 v{vXA+3}, 0x80, v{vXA}
    v_xor_b32 v{vXA+4}, 0xc0, v{vXA}
    v_mul_u32_u24 v{vST}, {TS}, v{vg+2}
    v_lshl_add_u32 v{vST}, v{vg+1}, 4, v{vST}
    s_mul_i32 s{ctso}, s{snb}, {16*TS}
    s_lshl_b32 s{st1}, s{shf}, 8
    s_add_u32 s{ctso}, s{ctso}, s{st1}
    s_lshl_b32 s{st1}, s{sfb}, 6
    s_add_u32 s{ctso}, s{ctso}, s{st1}
    s_mov_b32 s{cnl2e}, {NL2E:#x}
    s_mov_b32 s{csign}, 0x00800000
    s_mov_b32 s{cmag}, 0x7fffffff
    s_mov_b32 s{cp0}, 0x07060100
    s_mov_b32 s{cp0+1}, 0x07060302
    s_mul_i32 s{st0}, s{srow}, {TS}
    s_add_u32 s{st0}, s{st0}, {T_OFF}
    s_mul_i32 s{st1}, s{snr}, {TS}
    """)
    srd(a, sT, 22, f"s{st0}", f"s{st1}")
    stamp(a, 1)
    a(f"s_cmp_lt_u32 s2, {NCH}\ns_cbranch_scc1 K1_NOBIN")
    a(f"""
    v_mov_b32 v{vt}, -1
    v_mov_b32 v{vt+1}, -1
    v_mov_b32 v{vt+2}, -1
    v_mov_b32 v{vt+3}, -1
    v_mov_b32 v{vt+5}, 0
    v_and_b32 v{vt+6}, 0x3fc, v1
    """)
    for k in range(4): a(f"ds_write_b128 v2, {vr(vt,4)} offset:{K1_STG+8192*k}")
    a(f"""
    ds_write_b32 v{vt+6}, v{vt+5} offset:{K1_CNT}
    s_lshl_b32 s{st0}, s{sch}, 7
    s_add_u32 s{st0}, s{st0}, {REC_OFF}
    """)
    srd(a, sR, 22, f"s{st0}", NBIN*NCH*128)
    a(f"s_lshl_b32 s{st0}, s{sch}, 9\ns_add_u32 s{st1}, s{st0}, {LUT_OFF}")
    srd(a, sP, 22, f"s{st1}", 512)
    l0, l1 = vt+10, vt+11
    a(f"""
    v_add_u32 v{l0}, s{st0}, v1
    v_and_b32 v{l1}, 0x7fff, v{l0}
    v_cmp_ne_u32 vcc, 0x7c00, v{l1}
    v_or_b32 v{l1}, 3, v{l0}
    s_nop 0
    v_addc_co_u32 v{l0}, vcc, 0, v{l0}, vcc
    v_cvt_f32_f16 v{l1}, v{l1}
    v_cvt_f32_f16 v{l0}, v{l0}
    v_exp_f32 v{l1}, v{l1}
    v_exp_f32 v{l0}, v{l0}
    v_add_f32 v{l1}, 1.0, v{l1}
    v_add_f32 v{l0}, 1.0, v{l0}
    v_rcp_f32 v{l1}, v{l1}
    v_rcp_f32 v{l0}, v{l0}
    s_mov_b32 s{cm10}, {-GN}
    v_cvt_pk_bf16_f32 v{l0}, v{l0}, v{l1}
    v_mov_b32 v{vt+5}, 1
    v_cmp_gt_u32 vcc, {CS-2048}, v0
    s_mov_b64 s[80:81], vcc
    v_lshrrev_b32 v{vt+7}, 3, v0
    v_and_b32 v{vt+8}, 7, v0
    v_lshlrev_b32 v{vt+9}, 14, v{vt+7}
    v_lshl_add_u32 v{vt+9}, v{vt+8}, 4, v{vt+9}
    v_lshlrev_b32 v{vt+7}, 2, v{vt+7}
    v_cmp_eq_u32 s[82:83], 7, v{vt+8}
    v_and_b32 v{vt+8}, 4, v{vt+8}
    v_lshlrev_b32 v{vt+8}, {2 if OPT.get("half", "0") == "1" else 0}, v{vt+8}
    v_and_b32 v{vt+8}, 16, v{vt+8}
    s_waitcnt lgkmcnt(0)
    s_barrier
    s_cmp_ge_u32 s2, 254
    s_cbranch_scc1 K1_W7
    s_waitcnt vmcnt(2)
    K1_W7:
    s_waitcnt vmcnt(7)
    """)
    stamp(a, 2)
    for r in range(5):
        rec_fields(a, vD+r, vB+r, vt, None, cm10)
        a(f"v_lshlrev_b32 v{vt}, 2, v{vB+r}")
        if r == 4: a("s_mov_b64 exec, s[80:81]")
        a(f"ds_add_rtn_u32 v{vSL+r}, v{vt}, v{vt+5} offset:{K1_CNT}")
        if r == 4: a("s_mov_b64 exec, -1")
    a("s_cmp_ge_u32 s2, 254\ns_cbranch_scc1 K1_NOWC")
    stage_w()
    a(f"""
    s_cmp_eq_u32 s2, 252
    s_cbranch_scc0 K1_NOWC
    """)
    srd(a, sS, 16, None, 4096)
    a(f"""
    v_lshrrev_b32 v{vWC+8}, 5, v{vg}
    """)
    pair_of_lane(a, vWC+9, vWC+10)
    a(f"""
    v_lshl_add_u32 v{vWC+9}, v{vWC+8}, 11, v{vWC+9}
    s_bfe_u32 s{st1}, s{sw}, 0x10001
    s_lshl_b32 s{st1}, s{st1}, 7
    s_lshl_b32 s{st0}, s{sfb}, 1
    s_add_u32 s{st1}, s{st1}, s{st0}
    """)
    for j in range(8): a(f"buffer_load_ushort v{vWC+j}, v{vWC+9}, {sr(sS,4)}, s{st1} offen offset:{256*j}")
    a("K1_NOWC:")
    for r in range(5):
        a(f"v_lshl_or_b32 v{vD+r}, v{vS+r}, 16, v{vD+r}")
        a(f"v_add_u32 v{vS+r}, {r}, v1" if r < 4 else f"v_add_u32 v{vS+r}, 2048, v0")
        a(f"v_lshl_or_b32 v{vD+r}, v{vS+r}, 4, v{vD+r}\nv_lshlrev_b32 v{vB+r}, 7, v{vB+r}")
    for r in range(5):
        a("s_waitcnt lgkmcnt(4)")
        if r == 4: a("s_mov_b64 exec, s[80:81]")
        a(f"""
        v_and_b32 v{vt}, 12, v{vSL+r}
        v_add_u32 v{vB+r}, v{vB+r}, v{vt}
        v_and_b32 v{vt}, 3, v{vSL+r}
        v_lshl_add_u32 v{vB+r}, v{vt}, 4, v{vB+r}
        v_and_b32 v{vt}, 16, v{vSL+r}
        v_lshl_add_u32 v{vB+r}, v{vt}, 2, v{vB+r}
        v_cmpx_gt_u32 vcc, {CAP}, v{vSL+r}
        ds_write_b32 v{vB+r}, v{vD+r} offset:{K1_STG}
        s_mov_b64 exec, -1
        """)
    a("s_waitcnt lgkmcnt(0)\ns_barrier")
    for k in range(4):
        a(f"ds_read_b128 {vr(4+4*k,4)}, v2 offset:{K1_STG+8192*k}\nds_read_b32 v{20+k}, v{vt+7} offset:{K1_CNT+256*k}")
    a(f"""
    v_mov_b32 v{vt+2}, -2
    s_mov_b32 s{st2}, 0
    buffer_store_dword v{l0}, v1, {sr(sP,4)}, 0 offen {OPT['st_r']}
    """)
    stamp(a, 3)
    for k in range(4):
        a(f"""
        s_waitcnt lgkmcnt({6-2*k})
        v_cmp_lt_u32 vcc, {CAP}, v{20+k}
        v_cmp_le_u32 s[78:79], v{vt+8}, v{20+k}
        s_and_b64 vcc, vcc, s[82:83]
        s_nop 0
        v_cndmask_b32 v{7+4*k}, v{7+4*k}, v{vt+2}, vcc
        s_mov_b64 exec, s[78:79]
        buffer_store_dwordx4 {vr(4+4*k,4)}, v{vt+9}, {sr(sR,4)}, s{st2} offen {OPT['st_r']}
        s_mov_b64 exec, -1
        s_add_u32 s{st2}, s{st2}, {64*16384}
        """)
    a(f"""
    s_waitcnt vmcnt(5)
    s_branch K1_STAGED
    K1_NOBIN:
    """)
    if OPT.get("pf", "1") == "1":
        a(f"""
        s_getpc_b64 {sr(sP,2)}
        K1_PC:
        s_add_u32 s{sP}, s{sP}, k2_kernel-K1_PC
        s_addc_u32 s{sP+1}, s{sP+1}, 0
        s_mov_b32 s{sP+2}, K2_CODE_END-k2_kernel
        s_mov_b32 s{sP+3}, 0x20000
        s_bfe_u32 s{st0}, s2, 0x40003
        s_lshl_b32 s{st0}, s{st0}, 12
        v_lshlrev_b32 v33, 7, v0
        v_cmp_gt_u32 vcc, 32, v0
        s_and_saveexec_b64 s[80:81], vcc
        s_cbranch_execz K1_NOPC
        buffer_load_dword v34, v33, {sr(sP,4)}, s{st0} offen
        s_mov_b64 exec, s[80:81]
        s_waitcnt vmcnt(1)
        s_branch K1_PCD
        K1_NOPC:
        s_mov_b64 exec, s[80:81]
        s_waitcnt vmcnt(0)
        K1_PCD:
        """)
    else: a("s_waitcnt vmcnt(0)")
    stamp(a, 2); stamp(a, 3)
    a(f"""
    K1_STAGED:
    s_barrier
    """)
    stamp(a, 4)
    if OPT.get("pf", "1") == "2":
        assert 64*RLO + 59*RHI >= N
        a(f"""
        s_sub_u32 s{st0}, s2, 246
        s_cmp_lt_u32 s{st0}, 8
        s_cbranch_scc0 K1_NOPC
        s_getpc_b64 {sr(sP,2)}
        K1_PC:
        s_add_u32 s{sP}, s{sP}, k2_kernel-K1_PC
        s_addc_u32 s{sP+1}, s{sP+1}, 0
        s_mov_b32 s{sP+2}, K2_CODE_END-k2_kernel
        s_mov_b32 s{sP+3}, 0x20000
        v_lshlrev_b32 v33, 7, v0
        buffer_load_dword v34, v33, {sr(sP,4)}, 0 offen
        s_cmp_eq_u32 s2, 252
        s_cbranch_scc0 K1_END
        K1_NOPC:
        """)
    PM = int(OPT.get("pm", "0"))
    if PM:
        a(f"s_mul_i32 s{st0}, s2, {313*128}\ns_sub_u32 s{st1}, {E*32}, s{st0}\ns_min_u32 s{st1}, s{st1}, {PM*128}")
        if OPT.get("pmlo"): a(f"s_cmp_lt_u32 s2, {NCH}\ns_cselect_b32 s{st1}, s{st1}, 0")
        srd(a, sP, 6, f"s{st0}", f"s{st1}")
        a(f"v_xor_b32 v33, 0x1c0, v0\nv_lshlrev_b32 v33, 7, v33\nbuffer_load_dword v34, v33, {sr(sP,4)}, 0 offen")
    a(f"""
    s_cmp_eq_u32 s2, 252
    s_cbranch_scc1 K1_WC
    """)
    def xrd(reg, off):
        for s in range(4): a(f"ds_read_b128 {vr(reg+4*s,4)}, v{[vXA, vXA+2, vXA+3, vXA+4][s]} offset:{off}")
    def trs(s):
        for m in range(2):
            for ab in range(2):
                for u in range(2):
                    a(f"ds_read_b64_tr_b16 {vr(W(m,ab,s)+2*u,2)}, v{vTR+6*ab} offset:{K1_W+m*16384+s*4096+u*512}")
    def mm(s, x, acc):
        return [f"v_mfma_f32_16x16x32_bf16 {vr(acc+8*m+4*ab,4)}, {vr(W(m,ab,s),4)}, {vr(x+4*s,4)}, {'0' if s == 0 else vr(acc+8*m+4*ab,4)}"
                for m in range(2) for ab in range(2)]
    def pack(acc, out):
        o = []
        for b in range(2):
            for ab in range(2):
                b0, b1 = acc+4*ab+b, acc+4*ab+2+b
                hs = [acc+8+4*ab+2*e_+b for e_ in range(2)]
                o += [f"v_mul_f32 v{b0}, s{cnl2e}, v{b0}", f"v_mul_f32 v{b1}, s{cnl2e}, v{b1}"]
                for e_, h in enumerate(hs): o += [f"v_max_f32 v{30+e_}, abs(v{h}), s{csign}", f"v_bfi_b32 v{h}, s{cmag}, v{30+e_}, v{h}"]
                o += [f"v_cvt_pk_bf16_f32 v{b0}, v{b0}, v{b1}"] + [f"v_add_u32 v{h}, 0x8000, v{h}" for h in hs]
                o += [f"v_sub_u32_sdwa v{h}, v{h}, v{b0} dst_sel:DWORD dst_unused:UNUSED_PAD src0_sel:DWORD src1_sel:WORD_{e_}" for e_, h in enumerate(hs)]
                o += [f"v_perm_b32 v{out+4*b+2*ab+e_}, v{h}, v{b0}, s{cp0+e_}" for e_, h in enumerate(hs)]
            o.append(f"buffer_store_dwordx4 {vr(out+4*b,4)}, v{vST}, {sr(sT,4)}, s{ctso} offen offset:{128*b} {OPT['st_t']}")
        return o
    xrd(vX, 0)
    trs(0); a("s_waitcnt lgkmcnt(6)")
    for s in range(1, 4):
        trs(s); a("s_waitcnt lgkmcnt(8)"); a.ext(mm(s-1, vX, vA))
        if s < 3: a("s_waitcnt lgkmcnt(6)")
    a("s_waitcnt lgkmcnt(0)")
    stamp(a, 5)
    a(f"""
    s_cmp_ge_u32 s2, 254
    s_cbranch_scc1 K1_WT
    s_lshl_b32 s{st0}, s{snb}, 4
    s_add_u32 s{st0}, s{st0}, 64
    s_cmp_lt_u32 s{st0}, s{snr}
    s_cbranch_scc0 K1_ONE
    """)
    vX2, vA2 = 208, 224
    xrd(vX2, 16384)
    g = mm(3, vX, vA) + ["s_waitcnt lgkmcnt(0)"]
    m2 = sum((mm(s, vX2, vA2) for s in range(4)), []); pk = pack(vA, vO)
    g += m2[:6]; k = 0
    for x in m2[6:]:
        g.append(x); g += pk[k:k+3]; k += 3
    g += pk[k:] + [f"s_add_u32 s{ctso}, s{ctso}, {64*TS}"] + pack(vA2, vO+8)
    asmsim.check_hazards(g, "k1 two blocks")
    a.ext(g)
    a("s_branch K1_TAIL\nK1_ONE:")
    g = mm(3, vX, vA) + ["s_nop 7"] + pack(vA, vO)
    asmsim.check_hazards(g, "k1 one block")
    a.ext(g)
    a("K1_TAIL:")
    PL = int(OPT.get("pl", "0"))
    if PL:
        a(f"""
        s_cmp_lt_u32 s2, {NCH}
        s_cbranch_scc0 K1_NOPF
        s_mul_i32 s{st0}, s2, {CS*32}
        """)
        srd(a, sP, 6, f"s{st0}", PL*128)
        a(f"""
        v_lshlrev_b32 v4, 7, v0
        s_mov_b32 s{st0}, 65536
        s_barrier
        buffer_load_dword v5, v4, {sr(sP,4)}, 0 offen
        buffer_load_dword v5, v4, {sr(sP,4)}, s{st0} offen
        K1_NOPF:
        """)
    stamp(a, 6); stamp(a, 7)
    stamp_out(a, 0, 22, sw, 2)
    a("s_endpgm")
    a("K1_WT:")
    srd(a, sT, 22, WT_OFF, 65536)
    a(f"""
    s_cmp_ge_u32 s{sw}, 4
    s_cbranch_scc1 K1_END
    v_lshlrev_b32 v2, 4, v{vg}
    s_lshl_b32 s{st0}, s{snb}, 2
    s_lshl_b32 s{st1}, s{shf}, 1
    s_add_u32 s{st0}, s{st0}, s{st1}
    s_add_u32 s{st0}, s{st0}, s{sfb}
    s_lshl_b32 s{st0}, s{st0}, 13
    s_add_u32 s{st1}, s{st0}, 4096
    s_cmp_eq_u32 s{snb}, 0
    s_cbranch_scc0 K1_WU
    """)
    for m in range(2):
        for ab in range(2):
            for s in range(4):
                a(f"buffer_store_dwordx4 {vr(W(m,ab,s),4)}, v2, {sr(sT,4)}, s{st1 if ab else st0} offen offset:{1024*s} {OPT['st_t']}")
        a("s_endpgm")
        if m == 0: a("K1_WU:")
    a("K1_WC:")
    srd(a, sT, 22, WT_OFF+65536, 4096)
    a(f"v_lshlrev_b32 v2, 4, v{vg}\ns_lshl_b32 s{st0}, s{sw}, 10")
    for j in range(8):
        a(f"v_lshlrev_b32 v{vWC+j}, 16, v{vWC+j}\nv_mul_f32 v{vWC+j}, s{cnl2e}, v{vWC+j}")
    for j in range(4):
        a(f"v_cvt_pk_bf16_f32 v{84+j}, v{vWC+2*j}, v{vWC+1+2*j}")
    a(f"buffer_store_dwordx4 v[84:87], v2, {sr(sT,4)}, s{st0} offen {OPT['st_t']}")
    a("K1_END:\ns_endpgm")
    return a.text(), kd("k1_kernel", 240, 102)

CAPG = 416; RND = 400
CNT = 0; FLG = 256; START = 512; INCL = 768; OHL = 1024; L1 = 1536; L2 = L1 + 4*CAPG*4; APL = L2 + 4*CAPG*4
ROWP = 272
UL = APL + 48*ROWP; LUTL = UL + 48*ROWP; STG = (LUTL + 65536 + 255)//256*256; XL = STG + 3*CAPG*32 + 5*1024; K2_LDS = XL + 12288
PROG = FLG + 32
assert K2_LDS <= 163840 and K2_LDS >= STG + 4*CAPG*32 and LUTL <= 65535 and (4*CAPG*4) % 256 == 0

def gen_k2():
    a = Asm()
    sREC, sX, sWT, sT, sE, sO, sD, sS = 24, 28, 32, 36, 40, 44, 68, 72
    sw, sg, sfh, st0, st1, st2 = 48, 49, 50, 51, 52, 53
    scount, sslow, sround, slim, sgb, srt, slut, srank = 54, 55, 56, 57, 58, 59, 82, 83
    stail = 20
    sdma, sm0, sneed = 21, 22, 23
    cm32, c128, cnl2e, cfc, csrc, cm40, cm10, cfe = 60, 61, 62, 63, 64, 65, 66, 67
    sk = 16
    vH16, vA1, vA2, vEa, vOa, vO, vA3 = 1, 2, 3, 4, 5, 6, 7
    WC = 8; AP = 16; PA = 24; SC = 28; OH = 32; EA = 40; ADDR = 48; ACC = 64; SP = 96; G = 112; RAW = 176
    XR = 240; UR = 246; vP16 = 252; vH256 = 253; vHS = 254; vPG = 255; vM15 = XR; vO2 = SP+8
    raw = lambda p, b: RAW + 32*p + 16*b
    gb = lambda p, b: G + 32*p + 16*b
    vt = gb(1, 1); Z = SP; EOFF = SP+14
    REC = raw(1, 0); CADDR = REC+16; RANK = G; STV = G+16
    NTB = [int(c_) for c_ in OPT.get("nt", "11")]
    rowoff = lambda r: 8*(r >> 2) + (r & 3)
    sd = "dst_sel:DWORD dst_unused:UNUSED_PAD src0_sel:DWORD"

    a("k2_kernel:")
    a(f"s_cmp_ge_u32 s2, {NBIN}\ns_cbranch_scc1 K2_END")
    stamp(a, 0)
    a(f"""
    s_load_dwordx8 s[4:11], s[0:1], 0
    s_load_dwordx2 s[12:13], s[0:1], 72
    s_load_dwordx2 s[14:15], s[0:1], 88
    v_lshrrev_b32 v{vt}, 6, v0
    v_lshrrev_b32 v{vt+1}, 2, v0
    v_readfirstlane_b32 s{sw}, v{vt}
    v_and_b32 v{vt+2}, 3, v0
    v_lshlrev_b32 v{vt+3}, 7, v{vt+1}
    v_lshl_add_u32 v{vt+3}, v{vt+2}, 4, v{vt+3}
    s_lshl_b32 s{st0}, s2, 14
    s_add_u32 s{st0}, s{st0}, {REC_OFF}
    v_and_b32 v{vt}, 63, v0
    v_lshlrev_b32 v{vt+5}, 3, v{vt}
    v_mov_b32 v{Z}, 0
    v_mov_b32 v{Z+1}, 0
    ds_write_b64 v{vt+5}, {vr(Z,2)} offset:{CNT}
    s_and_b32 s{sg}, s{sw}, 3
    s_lshr_b32 s{sfh}, s{sw}, 2
    v_lshlrev_b32 v{vA2}, 4, v{vt}
    s_mov_b32 s{st1}, 8192
    s_waitcnt lgkmcnt(0)
    """)
    if OPT.get("lat"):
        kind = OPT["lat"]
        if kind == "T": srd(a, sS, 14, T_OFF, N*TS)
        if kind == "R": srd(a, sS, 14, REC_OFF, 4 << 20)
        if kind == "x": srd(a, sS, 4, None, N*256)
        if kind == "e": srd(a, sS, 6, None, E*32)
        a(f"""
        s_cmp_eq_u32 s{sw}, 0
        s_cbranch_scc0 K2_NOLAT
        s_lshl_b32 s{st2}, s2, 13
        v_lshlrev_b32 v{vt+9}, 7, v{vt}
        s_memrealtime s[86:87]
        buffer_load_dword v{vt+10}, v{vt+9}, {sr(sS,4)}, s{st2} offen
        s_waitcnt vmcnt(0)
        s_memrealtime s[88:89]
        K2_NOLAT:
        s_barrier
        """)
    a(f"""
    s_cmp_lg_u32 s{sfh}, 0
    s_cbranch_scc1 K2_NOREC
    """)
    srd(a, sREC, 14, f"s{st0}", 16384)
    for u in range(2):
        for r in range(2):
            a(f"buffer_load_dwordx4 {vr(REC+8*r+4*u,4)}, v{vt+3}, {sr(sREC,4)}, {'s%d' % st1 if u else '0'} offen offset:{64*r}")
    TP0 = int(OPT.get("tp0", "0"))
    if TP0:
        srd(a, sS, 14, T_OFF, N*TS)
        a(f"""
        s_bfe_u32 s{st0}, s2, 0x50003
        s_mul_i32 s{st0}, s{st0}, {TP0}
        s_add_u32 s{st0}, s{st0}, s{sw}
        s_lshl_b32 s{st0}, s{st0}, 13
        s_cmp_lt_u32 s{sw}, {TP0}
        s_cselect_b32 s{sS+2}, s{sS+2}, 0
        v_lshlrev_b32 v{vt+9}, 7, v{vt}
        buffer_load_dword v{vt+10}, v{vt+9}, {sr(sS,4)}, s{st0} offen
        """)
    a(f"""
    K2_NOREC:
    s_mul_i32 s{st0}, s2, 625
    s_add_u32 s{cm40}, s{st0}, 625
    s_lshr_b32 s{st0}, s{st0}, 4
    s_lshr_b32 s{cm40}, s{cm40}, 4
    s_sub_u32 s{cm40}, s{cm40}, s{st0}
    s_lshl_b32 s{cm40}, s{cm40}, 8
    s_lshl_b32 s{st0}, s{st0}, 8
    """)
    srd(a, sX, 4, f"s{st0}", f"s{cm40}")
    srd(a, sO, 12, f"s{st0}", f"s{cm40}")
    srd(a, sWT, 14, WT_OFF, LUT_OFF - WT_OFF + 65536)
    a("s_barrier")
    stamp(a, 1)
    def ld_wc():
        a(f"""
        s_lshl_b32 s{st1}, s{sfh}, 11
        s_add_u32 s{st1}, s{st1}, 65536
        buffer_load_dwordx4 {vr(WC,4)}, v{vA2}, {sr(sWT,4)}, s{st1} offen
        buffer_load_dwordx4 {vr(WC+4,4)}, v{vA2}, {sr(sWT,4)}, s{st1} offen offset:1024
        """)
    def common1(Z, vl):
        a = Asm()
        a(f"s_lshl_b32 s{st0}, s{sfh}, 8\ns_add_u32 s{st0}, s{st0}, {T_OFF-128}")
        srd(a, sT, 14, f"s{st0}", 64, w3="0x800000", hi_or="0x40000")
        srd(a, sE, 6, None, E*32)
        a(f"""
        s_mov_b32 s{cm32}, {'0x7e0' if 'e' in OPT.get('nomem','') else '0x1fffe0' if 's' in OPT.get('nomem','') else '0xffffffe0'}
        s_mov_b32 s{c128}, 128
        s_mov_b32 s{cnl2e}, {NL2E + (16 << 23):#x}
        s_mov_b32 s{cfc}, 0xfc
        s_mov_b32 s{cfe}, {OPT.get('cfe', '0xfffe')}
        s_mov_b32 s{csrc}, {TS}
        s_mov_b32 s{sslow}, 0
        s_mov_b32 s{sround}, 0
        s_mov_b32 s{sgb}, 0
        s_mul_i32 s{st0}, s{sfh}, 3
        s_xor_b32 s{srank}, s{sg}, s{st0}
        v_lshrrev_b32 v{Z+2}, 5, v{vl}
        v_and_b32 v{Z+3}, 31, v0
        v_lshlrev_b32 v{vH16}, 4, v{Z+2}
        v_lshlrev_b32 v{vH256}, 8, v{Z+2}
        v_and_b32 v{Z+4}, 3, v0
        v_mov_b32 v{Z+6}, 0x3f80
        """)
        for i in range(4):
            a(f"v_cmp_eq_u32 vcc, {i}, v{Z+4}\ns_nop 1\nv_cndmask_b32 v{PA+i}, 0, v{Z+6}, vcc")
        a(f"""
        v_cmp_gt_u32 s[78:79], 16, v{Z+3}
        v_mov_b32 v{Z+5}, {bf(127*2.0**-126):#x}
        v_mov_b32 v{Z+7}, {bf(2.0**16):#x}
        v_cndmask_b32 v{Z+5}, v{Z+7}, v{Z+5}, s[78:79]
        v_and_b32 v{Z+4}, 15, v0
        v_lshlrev_b32 v{Z+8}, 3, v{Z+2}
        v_sub_u32 v{Z+4}, v{Z+4}, v{Z+8}
        v_lshlrev_b32 v{Z+6}, 16, v{Z+5}
        """)
        for d in range(4):
            a(f"""
            v_cmp_eq_u32 vcc, {2*d}, v{Z+4}
            v_cmp_eq_u32 s[78:79], {2*d+1}, v{Z+4}
            s_nop 0
            v_cndmask_b32 v{SC+d}, 0, v{Z+5}, vcc
            v_cndmask_b32 v{Z+8}, 0, v{Z+6}, s[78:79]
            v_or_b32 v{SC+d}, v{SC+d}, v{Z+8}
            """)
        return [x.strip() for x in a.l]
    def ld_xr(): return [f"buffer_load_dword v{XR+r}, v{vO}, {sr(sX,4)}, 0 offen offset:{256*rowoff(r)} " for r in range(6)]
    def arrive(k):
        a(f"""
        v_mov_b32 v{vt+6}, {FLG+4*k}
        v_mov_b32 v{vt+7}, 1
        s_mov_b64 exec, 1
        ds_add_u32 v{vt+6}, v{vt+7}
        s_mov_b64 exec, -1
        """)
    def spin(k, n, add=True):
        if add: arrive(k)
        else: a(f"v_mov_b32 v{vt+6}, {FLG+4*k}")
        a(f"""
        K2_SPIN{n}:
        ds_read_b32 v{vt+7}, v{vt+6}
        s_waitcnt lgkmcnt(0)
        v_cmp_gt_u32 vcc, 4, v{vt+7}
        s_cbranch_vccnz K2_SPIN{n}
        """)
    def caddr(k): return f"v_and_b32_sdwa v{CADDR+k}, s{cfc}, v{REC+k} {sd} src1_sel:BYTE_3"
    def pick(sel, cur):
        a(f"""
        s_bitcmp1_b32 s{sel}, 0
        s_cselect_b32 s{cur[0]}, s{cur[1]}, s{cur[0]}
        s_cselect_b32 s{cur[2]}, s{cur[3]}, s{cur[2]}
        s_bitcmp1_b32 s{sel}, 1
        s_cselect_b32 s{st0}, s{cur[2]}, s{cur[0]}
        s_and_b32 s{sg}, s{st0}, 3
        s_andn2_b32 s{st0}, s{st0}, 3
        s_mul_i32 s{sgb}, s{sg}, {CAPG*4}
        s_add_u32 s{scount}, s{st0}, 127
        s_lshr_b32 s{scount}, s{scount}, 7
        s_add_u32 s{stail}, s{st0}, 124
        s_bfe_u32 s{stail}, s{stail}, 0x20005
        s_lshl_b32 s{stail}, s{stail}, 1
        s_add_u32 s{stail}, s{stail}, 2
        """)
    def rank_groups():
        for g in range(1, 4): a(f"s_or_b32 s{sk+g}, s{sk+g}, {g}")
        cur = [sk, sk+1, sk+2, sk+3]; spare = sk+4
        for (i, j) in ((0, 1), (2, 3), (0, 2), (1, 3), (1, 2)):
            a(f"s_max_u32 s{spare}, s{cur[i]}, s{cur[j]}\ns_min_u32 s{cur[j]}, s{cur[i]}, s{cur[j]}")
            cur[i], spare = spare, cur[i]
        pick(srank, cur)
    def scan(fast, ks=()):
        x = SP
        a(f"""
        v_and_b32 v{vt}, 63, v0
        v_lshlrev_b32 v{vt+1}, 2, v{vt}
        ds_read_b32 v{x}, v{vt+1} offset:{CNT}
        v_lshrrev_b32 v{vt}, 4, v{vt}
        v_mul_u32_u24 v{vt}, {CAPG*4}, v{vt}
        v_and_b32 v{vt+2}, 31, v0
        v_lshlrev_b32 v{vt+2}, 2, v{vt+2}
        v_mov_b32 v{vt+4}, 0xfffffe
        s_waitcnt lgkmcnt(0)
        v_sub_u32 v{vt}, v{vt}, v{x}
        """)
        for d in ("row_shr:1", "row_shr:2", "row_shr:4", "row_shr:8"):
            a(f"v_add_u32_dpp v{x}, v{x}, v{x} {d} row_mask:0xf bank_mask:0xf bound_ctrl:0\ns_nop 1")
        a(f"""
        v_add_u32 v{vt}, v{vt}, v{x}
        v_cmp_lt_u32 vcc, {CAPG*4}, v{x}
        ds_write2st64_b32 v{vt+1}, v{vt}, v{x} offset0:{START//256} offset1:{INCL//256}
        """)
        for g in range(4): a(f"v_readlane_b32 s{sk+g}, v{x}, {16*g+15}")
        if fast:
            a("s_cbranch_vccnz K2_GIVEUP")
            for j, k in enumerate(ks): a(f"ds_read_b32 v{STV+j}, v{CADDR+k} offset:{START}")
            rank_groups()
        else:
            for g in range(1, 4): a(f"s_or_b32 s{sk+g}, s{sk+g}, {g}")
            pick(sg, [sk, sk+1, sk+2, sk+3])
        a(f"""
        s_add_u32 s{st0}, s{st0}, s{sgb}
        v_add_u32 v{vt+2}, s{st0}, v{vt+2}
        s_lshl_b32 s{st1}, s{scount}, 7
        s_add_u32 s{st1}, s{st1}, s{sgb}
        v_lshlrev_b32 v{vt+3}, 3, v{vt+2}
        v_and_b32 v{vt+3}, 128, v{vt+3}
        v_cmpx_gt_u32 vcc, s{st1}, v{vt+2}
        ds_write2st64_b32 v{vt+2}, v{vt+3}, v{vt+4} offset0:{L1//256} offset1:{L2//256}
        s_mov_b64 exec, -1
        """)
    def place(k, st, eo):
        a(f"""
        v_add_u32 v{st}, v{st}, v{RANK+k}
        v_bfe_u32 v{vt}, v{REC+k}, 16, {5 if 't' in OPT.get('nomem','') else 14}
        v_lshlrev_b32 v{vt+1}, 3, v{st}
        v_mad_u32_u16 v{vt+2}, v{REC+k}, 2, v{eo}
        v_and_b32 v{vt+1}, 128, v{vt+1}
        v_mad_u32_u24 v{vt}, v{vt}, s{csrc}, v{vt+1}
        ds_write2st64_b32 v{st}, v{vt}, v{vt+2} offset0:{L1//256} offset1:{L2//256}
        """)
    def lane_setup():
        a(f"""
        v_and_b32 v{vt}, 31, v0
        v_xor_b32 v{vA1}, 16, v{vH16}
        v_xor_b32 v{vA2}, 4, v{vt}
        v_lshlrev_b32 v{vA2}, 2, v{vA2}
        v_add_u32 v{vA1}, s{sgb}, v{vA1}
        v_add_u32 v{vA2}, s{sgb}, v{vA2}
        s_mul_i32 s{st0}, s{sg}, {GN*256}
        s_lshl_b32 s{st1}, s{sfh}, 7
        s_add_u32 s{st0}, s{st0}, s{st1}
        """)
        pair_of_lane(a, vO, vt+1)
        a(f"""
        v_lshl_add_u32 v{vO}, v{vH256}, 2, v{vO}
        v_add_u32 v{vO}, s{st0}, v{vO}
        v_bfe_u32 v{vA3}, v0, 1, 5
        v_lshlrev_b32 v{vA3}, 2, v{vA3}
        v_add_u32 v{vA3}, s{sgb}, v{vA3}
        v_lshlrev_b32 v{vP16}, 4, v0
        v_xor_b32 v{vP16}, v{vP16}, v0
        v_and_b32 v{vP16}, 16, v{vP16}
        v_lshlrev_b32 v{vHS}, 1, v0
        v_xor_b32 v{vHS}, v{vHS}, v{vH16}
        v_and_b32 v{vHS}, 16, v{vHS}
        v_add_u32 v{vHS}, {STG}, v{vHS}
        s_lshl_b32 s{st0}, s{sg}, 2
        s_add_u32 s{st0}, s{st0}, {PROG}
        v_mov_b32 v{vPG}, s{st0}
        s_lshl_b32 s{sm0}, s{sgb}, 3
        s_add_u32 s{sm0}, s{sm0}, {STG}
        s_mov_b32 s{sdma}, 0
        s_mov_b32 s{sneed}, 0
        s_mov_b32 s{slim}, s{scount}
        """)
    def rd_addr(off, j): return f"ds_read_b128 {vr(ADDR+4*j,4)}, v{vA1} offset:{L1+off+32*j}"
    def rd_l2(reg, off): return f"ds_read_b32 v{reg}, v{vA2} offset:{L2+off}"
    def ld_raw(p, b, r):
        pre = [f"v_and_b32 v{ADDR+r}, 0xffff80, v{ADDR+r}"] if OPT.get("safe") else []
        if OPT.get("noload"): return ["s_nop 0"]
        return pre + [f"buffer_load_dword v{raw(p,b)+r}, v{ADDR+r}, {sr(sT,4)}, 0 offen" + (" offset:128" if b else "") + " " + OPT.get("ft", "")]
    def ld_blk(p, b): return sum((ld_raw(p, b, r) for r in range(16)), [])
    cur = {"r": "P"}
    def rd_l3(off, reg=None): return [f"ds_read_b32 v{reg or vEa}, v{vA3} offset:{L2+off}"] if cur["r"] == "P" else []
    lab = [0]
    def dma_ea(sl, reg=None, check=True):
        if cur["r"] != "P": return []
        reg = reg or vEa
        if not check:
            return [f"s_mov_b32 m0, s{sm0}", f"v_and_or_b32 v{reg}, v{reg}, s{cm32}, v{vP16}",
                    f"buffer_load_dwordx4 v{reg}, {sr(sE,4)}, 0 offen {OPT.get('fe', '')} lds;wr={300+sl}", f"s_add_u32 s{sm0}, s{sm0}, 1024"]
        lab[0] += 1
        return [f"s_cmp_lt_u32 s{sdma}, s{slim}", f"s_cbranch_scc0 K2_ND{lab[0]}", "@D{",
                f"s_mov_b32 m0, s{sm0}", f"v_and_or_b32 v{reg}, v{reg}, s{cm32}, v{vP16}",
                f"buffer_load_dwordx4 v{reg}, {sr(sE,4)}, 0 offen {OPT.get('fe', '')} lds;wr={300+sl}", "@}", f"K2_ND{lab[0]}:",
                f"s_add_u32 s{sdma}, s{sdma}, 1", f"s_add_u32 s{sm0}, s{sm0}, 1024"]
    spins = []
    def rd_prog(): return [f"ds_read_b32 v{vEa}, v{vPG}"] if cur["r"] == "C" else []
    def get_ea(p, sl, off, prev=()):
        o = [f"s_add_u32 s{sneed}, s{sneed}, 1"]
        if cur["r"] == "P":
            o += [f"v_mov_b32 v{vEa}, s{sneed};rd={300+sl}", f"ds_write_b32 v{vPG}, v{vEa}"]
            if prev: o.append("@MOVE 302 300")
        else:
            lab[0] += 1; n = lab[0]; spins.append(n)
            o += [f"v_cmp_gt_u32 vcc, s{sneed}, v{vEa}", f"s_cbranch_vccnz K2_SP{n}", f"K2_OK{n}:"]
        return o + [f"v_lshl_add_u32 v{vEa}, v{vA2}, 3, v{vHS}", f"ds_read_b128 {vr(EA+4*p,4)}, v{vEa} offset:{8*off}"]
    def oh_idx(p):
        return [f"v_and_b32 v{vOa}, 30, v{vOa}",
                f"v_lshl_add_u32 v{vOa}, v{vOa}, 3, v{vH256}",
                f"ds_read_b128 {vr(OH+4*p,4)}, v{vOa} offset:{OHL}"]
    big = "v_mfma_f32_32x32x16_bf16" if not OPT.get("nobig") else "; "
    de = OPT.get("drop", "")
    def mE(p, b): return "; " if "E" in de else f"{big} {vr(gb(p,b),16)}, {vr(EA+4*p,4)}, {vr(WC+4*b,4)}, 0"
    def mA(p, b): return "; " if "A" in de else f"{big} {vr(gb(p,b),16)}, {vr(OH+4*p,4)}, {vr(AP+4*b,4)}, {vr(gb(p,b),16)}"
    def mS(p): return "; " if "S" in de else f"{big} {vr(SP,16)}, {vr(OH+4*p,4)}, {vr(SC,4)}, 0"
    def mG(p, b, j): return "; " if ("G" in de or ("g" in de and j & 1)) else (f"{big} {vr(ACC+16*b,16)}, {vr(gb(p,b)+4*j,4)}, {vr(SP+4*j,4)}, {vr(ACC+16*b,16)}" if OPT.get("swapg") else f"{big} {vr(ACC+16*b,16)}, {vr(SP+4*j,4)}, {vr(gb(p,b)+4*j,4)}, {vr(ACC+16*b,16)}")
    def mP(p, b):
        o = []
        if "P" in de: return ["; "]*8
        for u in range(2):
            for j in range(4):
                g = vr(gb(p,b)+4*j, 4)
                o.append(f"v_mfma_f32_4x4x4_16b_bf16 {g}, {vr(PA+2*u,2)}, {vr(raw(p,b)+4*j+2*u,2)}, {g}")
        return o
    def idx_pair(p, b, i):
        g0, g1 = gb(p,b)+2*i, gb(p,b)+2*i+1
        if i < NTB[b]:
            return [f"v_exp_f32 v{g0}, v{g0}", f"v_exp_f32 v{g1}, v{g1}", f"v_add_f32 v{g0}, 1.0, v{g0}",
                    f"v_add_f32 v{g1}, 1.0, v{g1}", f"v_rcp_f32 v{g0}, v{g0}", f"v_rcp_f32 v{g1}, v{g1}"], []
        return [f"v_cvt_pkrtz_f16_f32 v{g0}, v{g0}, v{g1}",
                f"v_and_b32_sdwa v{g1}, s{cfe}, v{g0} {sd} src1_sel:WORD_1",
                f"v_and_b32_sdwa v{g0}, s{cfe}, v{g0} {sd} src1_sel:WORD_0"], \
               [f"ds_read_u16_d16_hi v{g1}, v{g1} offset:{LUTL}", f"ds_read_u16_d16_hi v{g0}, v{g0} offset:{LUTL}"]
    def fin_pair(p, b, i):
        g0, r0 = gb(p,b)+2*i, raw(p,b)+2*i
        mul = [f"v_pk_mul_f32 {vr(r0,2)}, {vr(g0,2)}, {vr(r0,2)}"] if OPT.get("pk") else [f"v_mul_f32 v{r0}, v{g0}, v{r0}", f"v_mul_f32 v{r0+1}, v{g0+1}, v{r0+1}"]
        return mul + [
                f"v_cvt_pk_bf16_f32 v{g0}, v{g0}, v{r0}", f"v_cvt_pk_bf16_f32 v{g0+1}, v{g0+1}, v{r0+1}"]
    def zipl(x, y):
        o = []
        for k in range(max(len(x), len(y))):
            if k < len(x): o.append(x[k])
            if k < len(y): o.append(y[k])
        return o
    uid = [0]
    def W(kind):
        uid[0] += 1
        return f"@W{kind} {uid[0]}"
    SH = int(OPT.get("short", "4"))
    XE = OPT.get("xe", "1") == "1"
    WE = int(OPT.get("we", "2"))
    def slot(p, b, kind, acc=True, np_=8, npg=8):
        q = 1-p
        nxt = (p, 1) if b == 0 else (q, 0)
        do_idx = b == 0 or kind != "L"
        gs = [[mG(q if b == 0 else p, 1-b, j)] for j in range(npg//2)] if acc else []
        bigs = gs[:2]
        if kind != "L": bigs += [[mE(q, b)], [mA(q, b)]]
        bigs += gs[2:]
        if b == 0: bigs += [[mS(p)]]
        smalls = mP(q, b) if kind != "L" else []
        out = []
        nb = 0
        for i in range(8):
            if i >= np_:
                out += sum(bigs[nb:], []); nb = len(bigs)
                break
            iv, il = idx_pair(*nxt, i) if do_idx else ([], [])
            fv = fin_pair(p, b, i)
            seq = zipl(iv, fv) + il
            if SH:
                rr = range(16*i//SH, 16*(i+1)//SH) if i < SH else []
                if (b == 0 and kind != "L") or (b == 1 and kind == "F"):
                    for r_ in rr: seq += ld_raw(q, 1, r_) if b == 0 else ld_raw(p, 0, r_)
                if kind == "P" and b == 0 and i == SH and XE: seq += ld_xr()
                if kind == "F":
                    if b == 0:
                        for r_ in rr:
                            if r_ & 3 == 3: seq.append(rd_addr((2+p)*128, r_ >> 2))
                    if b == 0 and i == 1: seq = dma_ea(p, check=False) + seq
                    if b == 1 and i == 1: seq += rd_prog()
                    if b == 1 and i == 6: seq += get_ea(p, p, (2+p)*128)
                    if b == 1 and i == 7: seq += rd_l3((3+p)*128)
                    if b == 0 and i == 5: seq.append(rd_l2(vOa, (2+p)*128))
                    if b == 1 and i == 2: seq += oh_idx(p)
            elif kind == "F":
                seq += ld_raw(p, b, 2*i) + ld_raw(p, b, 2*i+1)
                if b == 1 and i & 1: seq.append(rd_addr((3+p)*128, i >> 1))
                if OPT.get("burst"):
                    if p == 0 and b == 0 and i == 0: seq += rd_l3(3*128) + rd_l3(4*128, vOa)
                    if p == 0 and b == 0 and i == 4: seq = dma_ea(1) + dma_ea(2, vOa) + seq
                else:
                    if b == 0 and i == 1: seq += rd_l3((3+p)*128)
                    if b == 1 and i == 0: seq = dma_ea(q) + seq
                if b == 1 and i == 1: seq += rd_prog()
                if b == 1 and i == 6: seq += get_ea(p, p, (2+p)*128, (2,) if (OPT.get('burst') and p == 0) else ())
                if b == 0 and i == 5: seq.append(rd_l2(vOa, (2+p)*128))
                if b == 1 and i == 2: seq += oh_idx(p)
            pre = [W("l")] if i % WE == 0 else []
            if cur["r"] == "P" and kind != "L":
                if (b, i) == (0, 0): pre.append("s_setprio 2")
                if (b, i) == divmod(int(OPT.get("fair", "12")), 8): pre.append("s_setprio 0")
            if i < 6:
                take = 2 if (len(bigs) - nb) > (6 - i) else 1
                if nb < len(bigs): pre += bigs[nb]; nb += 1
                if take == 2 and nb < len(bigs):
                    seq = seq[:6] + bigs[nb] + seq[6:]; nb += 1
            if smalls and i >= 5:
                k0, k1 = {5: (0, 2), 6: (2, 6), 7: (6, 8)}[i]
                sm = smalls[k0:k1]
                if i == 5: seq = seq[:4] + [W("v")] + zipl(sm, seq[4:])
                else: seq = zipl(sm, seq)
            out += pre + seq
        assert nb == len(bigs)
        return out
    def last(p, np_):
        n = f"{p}{cur['r']}{np_}"
        return ([f"K2_LAST{n}:"] + ([] if XE else ld_xr()) + slot(p, 0, "L", np_=np_) + ["s_nop 11"]*(np_ < 6) + slot(p, 1, "L", np_=np_, npg=np_)
                + ["s_nop 1"] + [mG(p, 1, j) for j in range(np_//2)])
    def body(p, kind):
        q = 1-p; n = f"{kind}{p}{cur['r']}"
        o0 = [f"K2_BODY{n}:"] + slot(p, 0, kind)
        o1 = [f"K2_MID{n}:"] + (ld_xr() if kind == "L" else []) + slot(p, 1, kind)
        if OPT.get("prof") == "7": o1 += ["s_mov_b32 m0, s98", "s_add_u32 s98, s98, 1", f"v_writelane_b32 v{UR+5}, s86, m0", "s_memrealtime s[86:87]"]
        if kind == "P":
            for np_ in (2, 4, 6): o1 += [f"s_cmp_eq_u32 s{stail}, {np_}", f"s_cbranch_scc1 K2_LAST{q}{cur['r']}{np_}"]
        if kind == "F":
            if p == 1: o1 += [f"v_add_u32 v{r_}, 256, v{r_}" for r_ in ((vA1, vA2, vA3) if cur["r"] == "P" else (vA1, vA2))]
            o1 += [f"s_sub_u32 s{scount}, s{scount}, 1", f"s_cmp_eq_u32 s{scount}, 2", f"s_cbranch_scc1 K2_BODYP{q}{cur['r']}"]
        return o0, o1
    def entry_short(kind):
        more = kind != "L"
        o = rd_prog() + [W("v"), W("l")] + get_ea(0, 0, 0)
        if more: o += rd_prog() + rd_l3(128)
        o += [W("l"), "@STAMP", mE(0, 0), mA(0, 0), mE(0, 1), mA(0, 1)]
        o += (dma_ea(1, check=False) if more else []) + ["s_nop 7", W("v")] + mP(0, 0) + ["s_nop 3"]
        for i in range(8):
            v_, l_ = idx_pair(0, 0, i)
            o += [W("l")] + ([v_[0], v_[1], "s_nop 0"] + v_[2:] if i < NTB[0] else v_) + l_
            if more:
                if i < 4:
                    for r_ in range(4*i, 4*i+4): o += ld_raw(1, 0, r_)
                if i == 6: o += [W("v")] + get_ea(1, 1, 128)
                if i == 7 and kind == "F": o += rd_l3(256)
            if i == 3: o += [W("v")] + mP(0, 1)
        return o + slot(0, 0, kind, acc=False) + [f"s_branch K2_MID{kind}0{cur['r']}"]
    def entry(kind):
        if SH: return entry_short(kind)
        more = kind != "L"
        o = rd_prog() + [W("v"), W("l")] + get_ea(0, 0, 0)
        if more: o += rd_prog()
        o += [W("l"), "@STAMP", mE(0, 0), mA(0, 0), mE(0, 1), mA(0, 1), "s_nop 7", W("v")] + mP(0, 0) + ["s_nop 3"]
        for i in range(8):
            v_, l_ = idx_pair(0, 0, i)
            o += [W("l")] + ([v_[0], v_[1], "s_nop 0"] + v_[2:] if i < NTB[0] else v_) + l_
            if more:
                for r_ in range(4*(i & 3), 4*(i & 3)+4): o += ld_raw(1, i >> 2, r_)
                if i >= 4: o.append(rd_addr(256, i-4))
                if i == 4: o += [W("v")] + get_ea(1, 1, 128) + rd_l3(256)
                if i == 7: o += dma_ea(0)
            if i == 3: o += [W("v")] + mP(0, 1)
        return o + slot(0, 0, kind, acc=False) + [f"s_branch K2_MID{kind}0{cur['r']}"]
    def drain(p): return ["s_nop 1"] + [mG(p, 1, j) for j in range(4)]
    def mk_fill():
        ad = [rd_addr(0, j) for j in range(4)]
        t0 = SP
        o = []
        if cur["r"] == "P":
            o = (rd_l3(0) + [f"ds_read_b32 v{t0}, v{vA3} offset:{L2+128}"])
        o += ad + [rd_l2(vOa, 0), rd_l2(t0+1, 128)]
        if cur["r"] == "P":
            o += ["s_waitcnt lgkmcnt(6)"] + dma_ea(0) + [f"v_mov_b32 v{vEa}, v{t0}"]
        d1 = dma_ea(1) if not SH else []
        late1 = OPT.get("d1", "1") == "1"
        o += ([] if late1 else d1) + ["s_waitcnt lgkmcnt(0)"] + ld_blk(0, 0) + oh_idx(0) + [f"v_mov_b32 v{vOa}, v{t0+1}"] + oh_idx(1) + ld_blk(0, 1) + (d1 if late1 else [])
        return o + [rd_addr(128, j) for j in range(4)]
    FI, B, EN, LA_ = {}, {}, {}, {}
    for r in "PC":
        cur["r"] = r
        if r == "C" and OPT.get("ntc"): NTB[:] = [int(c_) for c_ in OPT["ntc"]]
        FI[r] = mk_fill()
        for k in "FPL":
            EN[r, k] = entry(k)
            for p in range(2): B[r, p, k] = body(p, k)
        for p in range(2):
            for np_ in (2, 4, 6, 8): LA_[r, p, np_] = last(p, np_)
    def trace(r, cnt, np_=8):
        kinds = ["F"]*(cnt-2) + ["P", "L"][-min(cnt, 2):]
        tr = FI[r] + EN[r, kinds[0]] + B[r, 0, kinds[0]][1]
        for t in range(1, cnt-1): tr += B[r, t & 1, kinds[t]][0] + B[r, t & 1, kinds[t]][1]
        tr += drain(0) if cnt == 1 else LA_[r, (cnt-1) & 1, np_]
        o = []; keep = True; nd = 0
        for x in tr:
            if x == "@D{": keep = nd < cnt; nd += 1
            elif x == "@}": keep = True
            elif keep and x != "@STAMP": o.append(x)
        return o
    epi_head = ["s_branch x", "s_cmp", "s_cbranch", "s_waitcnt vmcnt(0) lgkmcnt(0)"] + [f"v_add_f32 v{G+r_}, 0, v{XR}" for r_ in range(24)] + [f"v_add_f32 v{ACC+r_}, 0, v{ACC+r_}" for r_ in range(32)]
    cases = [(r, c, n_) for c in range(1, 9) for r in "PC" for n_ in (2, 4, 6, 8)]
    need = asmsim.solve_waits([trace(*c) for c in cases])
    for c in cases: asmsim.check_hazards(asmsim.apply_waits(trace(*c), need) + epi_head, f"case {c}")
    def emit(l):
        for x in asmsim.apply_waits(l, need):
            if x == "@STAMP":
                stamp(a, 5); stamp(a, 5, "3"); stamp(a, 7, "4")
                if OPT.get("prof") == "7": a("s_memrealtime s[86:87]\ns_mov_b32 s98, 1")
                if OPT.get("prof") == "3": a(f"s_memtime s[86:87]\ns_mov_b32 s90, s{scount}\ns_getreg_b32 s92, hwreg(HW_REG_HW_ID)")
            elif x[0] != "@": a(x.split(";")[0] or "s_nop 0")
    def main_loop(r):
        a(f"""
        K2_GO{r}:
        s_cmp_eq_u32 s{scount}, 0
        s_cbranch_scc1 K2_EMPTY
        s_cmp_gt_u32 s{scount}, 2
        s_cbranch_scc1 K2_ENTF{r}
        s_cmp_eq_u32 s{scount}, 2
        s_cbranch_scc1 K2_ENTP{r}
        """)
        emit(EN[r, "L"]); a(f"K2_ENTP{r}:"); emit(EN[r, "P"]); a(f"K2_ENTF{r}:"); emit(EN[r, "F"])
        a(".p2align 6")
        for _ in range(int(OPT.get("pad", "0"))): a("s_nop 0")
        for p in range(2): emit(B[r, p, "F"][0] + B[r, p, "F"][1])
        a(f"s_branch K2_BODYF0{r}")
        emit(B[r, 0, "L"][1] + drain(0)); a("s_branch K2_DONE")
        for p in range(2):
            for np_ in (2, 4, 6): emit(LA_[r, p, np_]); a("s_branch K2_DONE")
        for p in range(2):
            emit(B[r, p, "P"][0] + B[r, p, "P"][1] + LA_[r, 1-p, 8])
            if p == 0 or r == "P": a("s_branch K2_DONE")
    def fill(n):
        a(f"s_cmp_eq_u32 s{scount}, 0\ns_cbranch_scc1 K2_FILLED{n}")
        emit(FI[n])
        a(f"K2_FILLED{n}:")
    def ap_addr():
        a(f"""
        v_bfe_u32 v{vt}, v0, 2, 2
        v_lshrrev_b32 v{vt+1}, 1, v{vH16}
        v_add_u32 v{vt}, v{vt}, v{vt+1}
        v_mul_u32_u24 v{vt}, {ROWP}, v{vt}
        v_bfe_u32 v{vt+2}, v0, 4, 1
        v_lshl_add_u32 v{vt}, v{vt+2}, 5, v{vt}
        v_and_b32 v{vt+2}, 3, v0
        v_lshl_add_u32 v{vt}, v{vt+2}, 3, v{vt}
        s_mul_i32 s{st0}, s{sg}, {GN*ROWP}
        s_lshl_b32 s{st1}, s{sfh}, 7
        s_add_u32 s{st0}, s{st0}, s{st1}
        v_add_u32 v{vt}, s{st0}, v{vt}
        v_mul_u32_u24 v{vt+1}, {ROWP//2}, v{vt+1}
        v_and_b32 v{vt+2}, 127, v{vO}
        v_add3_u32 v{vt+1}, v{vt+2}, s{st0}, v{vt+1}
        """)
    def ap_read():
        a(f"""
        ds_read_b64_tr_b16 {vr(AP,2)}, v{vt} offset:{APL}
        ds_read_b64_tr_b16 {vr(AP+2,2)}, v{vt} offset:{APL+4*ROWP}
        ds_read_b64_tr_b16 {vr(AP+4,2)}, v{vt} offset:{APL+64}
        ds_read_b64_tr_b16 {vr(AP+6,2)}, v{vt} offset:{APL+4*ROWP+64}
        """)
        for r in range(6): a(f"ds_read_b32 v{UR+r}, v{vt+1} offset:{UL+ROWP*rowoff(r)}")
    def init_addr():
        for r in range(16): a(f"v_mov_b32 v{ADDR+r}, 128")
    def zero_acc():
        for r in range(32): a(f"v_mov_b32 v{ACC+r}, 0")

    a(f"s_cmp_lg_u32 s{sfh}, 0\ns_cbranch_scc1 K2_LOADER")
    if OPT.get("sp"): a(f"s_setprio {OPT['sp']}")
    ld_wc()
    a.ext(common1(SP, vt))
    a(f"v_and_b32 v{vt+3}, 15, v0\nv_lshlrev_b32 v{vt+3}, 4, v{vt+3}\nv_bfe_u32 v{vt+4}, v0, 4, 2\nv_lshl_add_u32 v{vt+3}, v{vt+4}, 10, v{vt+3}\ns_lshl_b32 s{st0}, s{sg}, 8\nv_add_u32 v{vt+3}, s{st0}, v{vt+3}")
    a(f"v_add_u32 v{vt+4}, 40960, v{vt+3}")
    for val, rg, runs in ((0x3f003f00, EA, (0, 3, 32, 35)), (0, EA+4, (23, 27)), (0x3f803f80, OH, (51, 55, 59))):
        for j in range(4): a(f"v_mov_b32 v{rg+j}, {val:#x}")
        for c0 in runs:
            a(f"ds_write_b128 v{vt+4 if c0 >= 24 else vt+3}, {vr(rg,4)} offset:{LUTL + 1024*(c0 - (40 if c0 >= 24 else 0))}")
    a(f"""
    v_and_b32 v{vt+3}, 127, v0
    v_bfe_u32 v{vt+4}, v0, 2, 4
    v_and_b32 v{Z+4}, 3, v0
    v_lshrrev_b32 v{Z+5}, 6, v{vt+3}
    v_lshlrev_b32 v{vt+3}, 2, v{vt+3}
    v_lshl_add_u32 v{Z+4}, v{Z+5}, 2, v{Z+4}
    v_lshlrev_b32 v{Z+5}, 1, v{Z+4}
    v_mov_b32 v{Z+6}, 0x3780
    v_mov_b32 v{Z+7}, 0x37800000
    v_cmp_eq_u32 vcc, v{Z+5}, v{vt+4}
    v_add_u32 v{Z+5}, 1, v{Z+5}
    s_nop 0
    v_cndmask_b32 v{Z+8}, 0, v{Z+6}, vcc
    v_cmp_eq_u32 vcc, v{Z+5}, v{vt+4}
    s_nop 1
    v_cndmask_b32 v{Z+9}, 0, v{Z+7}, vcc
    v_or_b32 v{Z+8}, v{Z+8}, v{Z+9}
    v_cmp_gt_u32 vcc, 15, v{vt+4}
    s_nop 1
    v_cndmask_b32 v{Z+8}, 0, v{Z+8}, vcc
    ds_write_b32 v{vt+3}, v{Z+8} offset:{OHL}
    """)
    a(f"""
    v_mul_u32_u24 v{EOFF}, {CS*32}, v{vt+1}
    v_add_u32 v{EOFF+1}, {64*CS*32}, v{EOFF}
    v_mov_b32 v{vt+3}, 4
    """)
    init_addr()
    a(f"s_waitcnt vmcnt({2 + (TP0 > 0)})")
    stamp(a, 2); stamp(a, 1, "5")
    if OPT.get("half", "0") == "1":
        for u in range(2): a(f"v_mov_b32_dpp v{vt+8+u}, v{REC+4*u+3} quad_perm:[3,3,3,3] row_mask:0xf bank_mask:0xf")
        for u in range(2): a(f"v_cmp_eq_u32 {sr(68+2*u,2)}, -1, v{vt+8+u}")
        a("s_nop 0")
        for u in range(2):
            for i in range(4): a(f"v_cndmask_b32 v{REC+8+4*u+i}, v{REC+8+4*u+i}, -1, {sr(68+2*u,2)}")
    a(f"""
    v_cmp_eq_u32 vcc, -2, v{REC+11}
    v_cmp_eq_u32 s[78:79], -2, v{REC+15}
    s_or_b64 vcc, vcc, s[78:79]
    s_cbranch_vccz K2_NOOVF
    v_mov_b32 v{vt+4}, 0x10000
    v_mov_b32 v{vt}, 60
    ds_add_u32 v{vt}, v{vt+4} offset:{CNT}
    K2_NOOVF:
    """)
    M = [68, 70, 72, 74, 76, 78]
    KS = [[4*u+i for i in range(4)] + [8+4*u, 9+4*u] for u in range(2)]
    def masked(u, fn):
        for j, k in enumerate(KS[u]): a(f"v_cmp_gt_u32 {sr(M[j],2)}, -2, v{REC+k}")
        for j, k in enumerate(KS[u]): a(f"s_mov_b64 exec, {sr(M[j],2)}\n{fn(k, 6*u+j)}")
        a("s_mov_b64 exec, -1")
    for k in KS[0] + KS[1]: a(caddr(k))
    for u in range(2): masked(u, lambda k, j: f"ds_add_rtn_u32 v{RANK+k}, v{CADDR+k}, v{vt+3} offset:{CNT}")
    a(f"v_min_u32 v{vt+4}, v{REC+10}, v{REC+14}\nv_cmp_gt_u32 s[26:27], -2, v{vt+4}")
    def steps(tag, fn):
        a(f"s_cmp_eq_u64 s[26:27], 0\ns_cbranch_scc1 K2_{tag}1\ns_waitcnt lgkmcnt(0)")
        for u in range(2):
            for k in (10+4*u, 11+4*u):
                a(f"v_cmpx_gt_u32 vcc, -2, v{REC+k}\ns_cbranch_execz K2_{tag}{u}")
                fn(k, u)
            a(f"K2_{tag}{u}:\ns_mov_b64 exec, -1")
    steps("C", lambda k, u: a(f"{caddr(k)}\nds_add_rtn_u32 v{RANK+k}, v{CADDR+k}, v{vt+3} offset:{CNT}"))
    arrive(0)
    stamp(a, 2, "5")
    LA, LB = raw(0, 0), raw(0, 1)
    for u in range(2):
        for j, k in enumerate(KS[u]):
            a(f"v_bfe_u32 v{LA+6*u+j}, v{REC+k}, 16, {5 if 't' in OPT.get('nomem','') else 14}\nv_mad_u32_u16 v{LB+6*u+j}, v{REC+k}, 2, v{EOFF+u}")
    NBK = int(OPT.get("nbk", "0"))
    if NBK:
        for u in range(2):
            for j, k in enumerate(KS[u]): a(f"v_and_b32 v{vt+8}, 0x3c, v{CADDR+k}\nv_cmp_gt_u32 {sr(M[j],2)}, {4*NBK}, v{vt+8}")
            for j, k in enumerate(KS[u]): a(f"s_mov_b64 exec, {sr(M[j],2)}\nbuffer_load_ubyte v{vt+12}, v{LB+6*u+j}, {sr(sE,4)}, 0 offen")
            a("s_mov_b64 exec, -1")
    for j in range(12): a(f"v_mul_u32_u24 v{LA+j}, s{csrc}, v{LA+j}")
    spin(0, "A", add=False)
    stamp(a, 3, "5")
    scan(True, KS[0] + KS[1])
    a("s_waitcnt lgkmcnt(1)")
    stamp(a, 4, "5")
    for j, k in enumerate(KS[0] + KS[1]): a(f"v_add_u32 v{STV+j}, v{STV+j}, v{RANK+k}")
    for j, k in enumerate(KS[0] + KS[1]): a(f"v_lshlrev_b32 v{RANK+k}, 3, v{STV+j}")
    for j, k in enumerate(KS[0] + KS[1]): a(f"v_and_or_b32 v{LA+j}, v{RANK+k}, s{c128}, v{LA+j}")
    for u in range(2): masked(u, lambda k, j: f"ds_write2st64_b32 v{STV+j}, v{LA+j}, v{LB+j} offset0:{L1//256} offset1:{L2//256}")
    def put_step(k, u):
        a(f"ds_read_b32 v{STV+12}, v{CADDR+k} offset:{START}\ns_waitcnt lgkmcnt(0)")
        place(k, STV+12, EOFF+u)
    steps("P", put_step)
    arrive(1)
    stamp(a, 5, "5")
    lane_setup()
    stamp(a, 6, "5")
    if OPT.get("order", "1") == "1":
        a(f"""
        v_mov_b32 v{vt+6}, {FLG+4}
        K2_SPINB:
        ds_read2_b32 {vr(vt+8,2)}, v{vt+6} offset0:0 offset1:1
        s_waitcnt lgkmcnt(0)
        v_min_u32 v{vt+7}, v{vt+8}, v{vt+9}
        v_cmp_gt_u32 vcc, 4, v{vt+7}
        s_cbranch_vccnz K2_SPINB
        """)
    else: spin(1, "B", add=False)
    stamp(a, 3); stamp(a, 7, "5")
    a("K2_REFILLP:")
    fill("P")
    stamp(a, 4)
    a(f"s_cmp_lg_u32 s{sslow}, 0\ns_cbranch_scc1 K2_GOP")
    zero_acc()
    ap_addr()
    spin(3, "D", add=False)
    ap_read()
    main_loop("P")
    a("K2_GIVEUP:")
    arrive(1)
    spin(3, "E", add=False)
    a("s_branch K2_SLOW")
    assert XL % 256 == 0
    XF = G; WT = [ACC, raw(0, 0)]
    accs = [[[raw(1,0)+8*nb, raw(1,0)+8*nb+4] for nb in range(3)], [[raw(1,1)+8, raw(1,1)+12], [SP, SP+4], [SP+8, ADDR]]]
    a(f"""
    K2_LOADER:
    v_lshrrev_b32 v{vt+4}, 4, v{vt}
    s_lshl_b32 s{st1}, s{sg}, 2
    v_add_u32 v{vA1}, s{st1}, v{vt+4}
    v_and_b32 v{vt+5}, 15, v0
    v_xor_b32 v{vA1}, v{vA1}, v{vt+5}
    v_lshlrev_b32 v{vA1}, 4, v{vA1}
    v_lshl_add_u32 v{vA1}, v{vt+4}, 8, v{vA1}
    s_lshl_b32 s{st1}, s{sg}, 10
    """)
    if OPT.get("nobulk"):
        ld_wc()
        a.ext(common1(XR+1, vt))
        a(f"v_and_b32 v{vt+2}, 255, v0\nv_lshlrev_b32 v{vt+2}, 4, v{vt+2}")
        for j in range(4): a(f"v_mov_b32 v{EA+j}, 0")
        for j in range(4): a(f"ds_write_b128 v{vt+2}, {vr(EA,4)} offset:{APL+4096*j}")
        arrive(2); arrive(3)
        a("s_branch K2_NOBULK")
    for k in range(3):
        a(f"""
        s_add_u32 m0, s{st1}, {XL+4096*k}
        s_add_u32 s{st2}, s{st1}, {4096*k}
        buffer_load_dwordx4 v{vA1}, {sr(sX,4)}, s{st2} offen lds
        """)
    stamp(a, 1, "6")
    srot = sk
    a(f"s_lshl_b32 s{slut}, s{sg}, 13\ns_lshr_b32 s{srt}, s2, 3")
    for j in range(4):
        a(f"s_add_u32 s{srot+j}, s{srt}, {j}\ns_and_b32 s{srot+j}, s{srot+j}, 3\ns_lshl_b32 s{srot+j}, s{srot+j}, 10\ns_add_u32 s{st2}, s{slut}, s{srot+j}")
        for m in range(2):
            for hf in range(2):
                a(f"buffer_load_dwordx4 {vr(WT[m]+16*hf+4*j,4)}, v{vA2}, {sr(sWT,4)}, s{st2} offen")
                if (m, hf) != (1, 1): a(f"s_add_u32 s{st2}, s{st2}, {4096 if hf == 0 else 32768-4096}")
    stamp(a, 2, "6")
    a(f"""
    s_lshl_b32 s{st0}, s{sg}, 12
    s_add_u32 m0, s{st0}, {LUTL + 7*1024}
    s_add_u32 s{st2}, s{st0}, {LUT_OFF - WT_OFF + 7*1024}
    """)
    for j in range(4): a(f"buffer_load_dwordx4 v{vA2}, {sr(sWT,4)}, s{st2} offen offset:{1024*j} lds")
    a(f"""
    s_mul_i32 s{st0}, s{sg}, 3072
    s_add_u32 m0, s{st0}, {LUTL + 39*1024}
    s_add_u32 s{st2}, s{st0}, {LUT_OFF - WT_OFF + 39*1024}
    """)
    for j in range(3): a(f"buffer_load_dwordx4 v{vA2}, {sr(sWT,4)}, s{st2} offen offset:{1024*j} lds")
    a(f"""
    s_and_b32 s{st0}, s{sg}, 1
    s_lshl_b32 s{st0}, s{st0}, 15
    s_add_u32 m0, s{st0}, {LUTL + 31*1024}
    s_add_u32 s{st2}, s{st0}, {LUT_OFF - WT_OFF + 31*1024}
    buffer_load_dwordx4 v{vA2}, {sr(sWT,4)}, s{st2} offen lds
    """)
    ld_wc()
    stamp(a, 3, "6")
    a(f"""
    s_waitcnt vmcnt(26)
    """)
    arrive(2)
    a(f"""
    v_mov_b32 v{vt+8}, v{vt}
    v_and_b32 v{vt}, 15, v0
    v_bfe_u32 v{vt+1}, v0, 4, 2
    v_xor_b32 v{vt+2}, v{vt}, v{vt+1}
    v_lshlrev_b32 v{vt+2}, 4, v{vt+2}
    v_lshl_add_u32 v{vt+2}, v{vt}, 8, v{vt+2}
    v_add_u32 v{vt+2}, {XL}, v{vt+2}
    v_mul_u32_u24 v{vt}, {ROWP}, v{vt}
    """)
    stamp(a, 2); stamp(a, 5, "6")
    spin(2, "C", add=False)
    stamp(a, 6, "6")
    for s in range(4):
        a(f"s_lshr_b32 s{st0}, s{srot+s}, 4\nv_xor_b32 v{vt+3}, s{st0}, v{vt+2}")
        for nb in range(3):
            a(f"ds_read_b128 {vr(XF+16*nb+4*s,4)}, v{vt+3} offset:{4096*nb}")
    a(f"""
    s_lshr_b32 s{st0}, s{sg}, 1
    s_lshl_b32 s{st0}, s{st0}, 7
    s_and_b32 s{st1}, s{sg}, 1
    s_lshl_b32 s{st1}, s{st1}, 5
    s_add_u32 s{st0}, s{st0}, s{st1}
    v_lshl_add_u32 v{vt+4}, v{vt+1}, 3, v{vt}
    v_add_u32 v{vt+4}, s{st0}, v{vt+4}
    s_lshl_b32 s{st0}, s{sg}, 6
    v_lshl_add_u32 v{vt+5}, v{vt+1}, 3, v{vt}
    v_add_u32 v{vt+5}, s{st0}, v{vt+5}
    """)
    def mm1(m, s):
        return [f"v_mfma_f32_16x16x32_bf16 {vr(accs[m][nb][ab], 4)}, {vr(WT[m]+16*ab+4*s,4)}, {vr(XF+16*nb+4*s,4)}, {'0' if s == 0 else vr(accs[m][nb][ab], 4)}"
                for nb in range(3) for ab in range(2)]
    outA = []
    for nb in range(3):
        al, be = accs[0][nb]; o = EA+ (0 if nb != 1 else 4)
        for i in range(4): outA += [f"v_mul_f32 v{al+i}, s{cnl2e}, v{al+i}", f"v_mul_f32 v{be+i}, s{cnl2e}, v{be+i}"]
        outA += [f"v_cvt_pk_bf16_f32 v{o}, v{al}, v{al+2}", f"v_cvt_pk_bf16_f32 v{o+1}, v{be}, v{be+2}",
                 f"v_cvt_pk_bf16_f32 v{o+2}, v{al+1}, v{al+3}", f"v_cvt_pk_bf16_f32 v{o+3}, v{be+1}, v{be+3}",
                 f"ds_write_b64 v{vt+4}, {vr(o,2)} offset:{APL+16*ROWP*nb}", f"ds_write_b64 v{vt+4}, {vr(o+2,2)} offset:{APL+16*ROWP*nb+64}"]
    NPF = int(OPT.get("tpf", "0"))
    if NPF:
        srd(a, sS, 14, T_OFF, N*TS)
        a(f"""
        s_bfe_u32 s{st0}, s2, 0x50003
        s_lshl_b32 s{st0}, s{st0}, 2
        s_add_u32 s{st0}, s{st0}, s{sg}
        s_lshl_b32 s{st0}, s{st0}, 13
        v_lshlrev_b32 v{vt+9}, 7, v{vt+8}
        """)
        for j in range(NPF):
            a(f"buffer_load_dword v{vt+10}, v{vt+9}, {sr(sS,4)}, s{st0} offen")
            if j+1 < NPF: a(f"s_add_u32 s{st0}, s{st0}, {1 << 20}")
    g = []; cm = common1(XR+1, vt+8); k = 0
    for s in range(4):
        g.append(f"s_waitcnt vmcnt({22-4*s+NPF}) lgkmcnt({9-3*s})")
        for x in mm1(0, s) + (mm1(1, s) if s < 3 else []):
            g.append(x); g += cm[k:k+3]; k += 3
    assert k >= len(cm)
    k = 0
    for j, x in enumerate(mm1(1, 3)):
        g.append(x)
        if j >= 2: g += outA[k:k+3]; k += 3
    g += outA[k:]
    for nb in range(3):
        al, be = accs[1][nb]; o = XF+4*nb
        g += [f"v_cvt_pk_bf16_f32 v{o}, v{al}, v{al+1}", f"v_cvt_pk_bf16_f32 v{o+1}, v{al+2}, v{al+3}",
              f"v_cvt_pk_bf16_f32 v{o+2}, v{be}, v{be+1}", f"v_cvt_pk_bf16_f32 v{o+3}, v{be+2}, v{be+3}",
              f"ds_write_b64 v{vt+5}, {vr(o,2)} offset:{UL+16*ROWP*nb}", f"ds_write_b64 v{vt+5}, {vr(o+2,2)} offset:{UL+16*ROWP*nb+32}"]
    asmsim.check_hazards(g, "gemm")
    a.ext(g)
    a(f"s_waitcnt vmcnt({NPF})")
    arrive(3)
    a("K2_NOBULK:")
    stamp(a, 3); stamp(a, 7, "6")
    init_addr()
    spin(1, "F", add=False)
    a(f"""
    v_mov_b32 v{vt+2}, {INCL+60}
    ds_read2_b32 {vr(vt+4,2)}, v{vt+2} offset0:0 offset1:16
    ds_read2_b32 {vr(vt+6,2)}, v{vt+2} offset0:32 offset1:48
    s_waitcnt lgkmcnt(0)
    """)
    for g_ in range(4): a(f"v_readfirstlane_b32 s{sk+g_}, v{vt+4+g_}")
    a(f"""
    s_max_u32 s{st0}, s{sk}, s{sk+1}
    s_max_u32 s{st1}, s{sk+2}, s{sk+3}
    s_max_u32 s{st0}, s{st0}, s{st1}
    s_cmp_gt_u32 s{st0}, {CAPG*4}
    s_cbranch_scc1 K2_SLOW
    """)
    a("s_setprio 1")
    rank_groups()
    lane_setup()
    a("K2_REFILLC:")
    fill("C")
    a(f"s_cmp_lg_u32 s{sslow}, 0\ns_cbranch_scc1 K2_GOC")
    zero_acc()
    ap_addr()
    spin(3, "G", add=False)
    ap_read()
    stamp(a, 4)
    a("s_branch K2_GOC")
    a("K2_EMPTY:"); a.ext(ld_xr()); a("s_branch K2_DONE")
    for n in spins:
        a(f"""
        K2_SP{n}:
        ds_read_b32 v{vEa}, v{vPG}
        s_waitcnt lgkmcnt(0)
        v_cmp_gt_u32 vcc, s{sneed}, v{vEa}
        s_cbranch_vccnz K2_SP{n}
        s_branch K2_OK{n}
        """)
    main_loop("C")
    a(f"""
    K2_DONE:
    s_cmp_lg_u32 s{sslow}, 0
    s_cbranch_scc1 K2_ROUND
    K2_EPI:
    s_waitcnt vmcnt(0) lgkmcnt(0)
    """)
    stamp(a, 6); stamp(a, 6, "3")
    if OPT.get("prof") == "3": a("s_memtime s[88:89]")
    T0 = G
    if OPT.get("pke", "1") == "1":
        a(f"s_mov_b32 s{st0+1}, 0x358637bd\ns_mov_b32 s{st0+2}, 0x358637bd")
        for b in range(2):
            for r in range(6):
                u, x = T0+12*b+r, T0+12*b+6+r
                if b == 0: a(f"v_lshlrev_b32 v{u}, 16, v{UR+r}\nv_lshlrev_b32 v{x}, 16, v{XR+r}")
                else: a(f"v_and_b32 v{u}, 0xffff0000, v{UR+r}\nv_and_b32 v{x}, 0xffff0000, v{XR+r}")
        for b in range(2):
            for r in range(0, 6, 2): a(f"v_pk_add_f32 {vr(ACC+16*b+r,2)}, {vr(ACC+16*b+r,2)}, {sr(st0+1,2)}")
            for r in range(6): a(f"v_rcp_f32 v{ACC+16*b+r}, v{ACC+16*b+r}")
        for b in range(2):
            for r in range(0, 6, 2): a(f"v_pk_fma_f32 {vr(T0+12*b+r,2)}, {vr(ACC+16*b+8+r,2)}, {vr(ACC+16*b+r,2)}, {vr(T0+12*b+r,2)}")
        for b in range(2):
            for r in range(6): a(f"v_max_f32 v{T0+12*b+r}, 0, v{T0+12*b+r}")
        for b in range(2):
            for r in range(0, 6, 2): a(f"v_pk_add_f32 {vr(T0+12*b+r,2)}, {vr(T0+12*b+r,2)}, {vr(T0+12*b+6+r,2)}")
    else:
        for b in range(2):
            for r in range(6):
                a(f"v_add_f32 v{ACC+16*b+r}, 0x358637bd, v{ACC+16*b+r}")
            for r in range(6):
                a(f"v_rcp_f32 v{ACC+16*b+r}, v{ACC+16*b+r}")
            for r in range(6):
                u, x = T0+12*b+r, T0+12*b+6+r
                if b == 0: a(f"v_lshlrev_b32 v{u}, 16, v{UR+r}\nv_lshlrev_b32 v{x}, 16, v{XR+r}")
                else: a(f"v_and_b32 v{u}, 0xffff0000, v{UR+r}\nv_and_b32 v{x}, 0xffff0000, v{XR+r}")
            for r in range(6):
                u, x = T0+12*b+r, T0+12*b+6+r
                a(f"v_fmac_f32 v{u}, v{ACC+16*b+8+r}, v{ACC+16*b+r}\nv_max_f32 v{u}, 0, v{u}\nv_add_f32 v{u}, v{u}, v{x}")
    a(f"v_lshl_or_b32 v{vO2}, v{vH16}, 27, v{vO}")
    for r in range(6):
        a(f"v_cvt_pk_bf16_f32 v{SP+r}, v{T0+r}, v{T0+12+r}")
        a(f"buffer_store_dword v{SP+r}, v{vO if r < 4 else vO2}, {sr(sO,4)}, 0 offen offset:{256*rowoff(r)} {OPT.get('st_o', '')}")
    stamp(a, 7)
    stamp_out(a, 1, 14, sw, 2)
    a("K2_END:\ns_endpgm")

    a("K2_SLOW:")
    srd(a, sS, 8, None, E*4)
    srd(a, sD, 10, None, E*4)
    a(f"""
    s_mov_b32 s{sslow}, 1
    s_mov_b32 s{cm10}, {-GN}
    """)
    a("s_waitcnt vmcnt(0) lgkmcnt(0)\ns_barrier")
    zero_acc(); lane_setup(); ap_addr(); ap_read()
    a(f"""
    K2_ROUND:
    s_cmp_ge_u32 s{sround}, {E//RND}
    s_cbranch_scc1 K2_EPI
    s_mul_i32 s{st0}, s{sround}, {RND}
    s_add_u32 s{sround}, s{sround}, 1
    v_add_u32 v{EOFF}, s{st0}, v0
    v_lshlrev_b32 v{vt}, 2, v{EOFF}
    buffer_load_dword v{REC}, v{vt}, {sr(sD,4)}, 0 offen
    buffer_load_dword v{REC+1}, v{vt}, {sr(sS,4)}, 0 offen
    v_lshlrev_b32 v{EOFF}, 5, v{EOFF}
    v_and_b32 v{vt}, 63, v0
    v_lshlrev_b32 v{vt}, 3, v{vt}
    v_mov_b32 v{vt+4}, 0
    v_mov_b32 v{vt+5}, 0
    s_waitcnt lgkmcnt(0)
    s_barrier
    ds_write_b64 v{vt}, {vr(vt+4,2)} offset:{CNT}
    v_mov_b32 v{vt+3}, 4
    s_waitcnt vmcnt(0) lgkmcnt(0)
    s_barrier
    """)
    rec_fields(a, REC, REC+2, vt, cm40, cm10)
    a(f"""
    v_cmp_eq_u32 vcc, s2, v{REC+2}
    v_lshl_or_b32 v{REC}, v{REC+1}, 16, v{REC}
    {caddr(0)}
    s_mov_b64 s[78:79], vcc
    v_cmp_gt_u32 vcc, {RND}, v0
    s_and_b64 s[78:79], s[78:79], vcc
    s_mov_b64 exec, s[78:79]
    ds_add_rtn_u32 v{RANK}, v{CADDR}, v{vt+3} offset:{CNT}
    s_mov_b64 exec, -1
    s_waitcnt lgkmcnt(0)
    s_barrier
    """)
    scan(False)
    a(f"""
    s_mov_b64 exec, s[78:79]
    ds_read_b32 v{STV}, v{CADDR} offset:{START}
    s_waitcnt lgkmcnt(0)
    """)
    place(0, STV, EOFF)
    a(f"""
    s_mov_b64 exec, -1
    """)
    lane_setup()
    a(f"""
    s_waitcnt lgkmcnt(0)
    s_barrier
    s_cmp_eq_u32 s{sfh}, 0
    s_cbranch_scc1 K2_REFILLP
    s_branch K2_REFILLC
    K2_CODE_END:
    """)
    return a.text(), kd("k2_kernel", 256, 102)

KE_PROF = f"""
    s_memrealtime s[8:9]
    s_load_dwordx2 s[4:5], s[0:1], 88
    s_waitcnt lgkmcnt(0)
    s_add_u32 s4, s4, {PROF_OFF + 0x200000}
    s_addc_u32 s5, s5, 0
    s_mov_b32 s6, 4
    s_mov_b32 s7, 0x20000
    v_mov_b32 v1, s8
    v_lshlrev_b32 v0, 2, v0
    buffer_store_dword v1, v0, s[4:7], 0 offen
"""
def gen_kr():
    a = Asm()
    a(f"""
    kr_kernel:
    s_cmp_ge_u32 s2, 1
    s_cbranch_scc1 KR_END
    s_load_dwordx4 s[4:7], s[0:1], 80
    s_waitcnt lgkmcnt(0)
    s_add_u32 s8, s6, {PROF_OFF}
    s_addc_u32 s9, s7, 0
    s_mov_b32 s10, 0x200000
    s_mov_b32 s11, 0x20000
    s_mov_b32 s6, 256
    s_mov_b32 s7, 0x20000
    v_cmp_gt_u32 vcc, 250, v0
    s_and_saveexec_b64 s[12:13], vcc
    v_lshlrev_b32 v1, 10, v0
    v_mov_b32 v3, 0
    """)
    sel = [(0, 8, 0, 1), (0, 8, 0, 0), (0, 8, 2, 0), (0, 8, 3, 0), (0, 8, 5, 0), (0, 8, 8, 0),
           (1, 8, 0, 1), (1, 8, 0, 0), (1, 8, 2, 0), (1, 8, 3, 0), (1, 8, 5, 1), (1, 8, 5, 0), (1, 8, 6, 1), (1, 8, 6, 0), (1, 8, 8, 0)]
    w0 = 0
    if OPT.get("krsel"):
        w0, st_, mn_ = [int(x) for x in OPT["krsel"].split(",")]
        sel = [(1, 4, 0, 1), (1, 4, st_, mn_)]
    for j, (kn, nw, st, mn) in enumerate(sel):
        a(f"s_mov_b32 s14, {kn*0x100000 + 64*w0}")
        for w in range(nw): a(f"buffer_load_dword v{10+w}, v1, s[8:11], s14 offen offset:{64*w+4*st}")
        a("s_waitcnt vmcnt(0)")
        if mn:
            for w in range(nw): a(f"v_not_b32 v{10+w}, v{10+w}")
        for w in range(1, nw): a(f"v_max_u32 v10, v10, v{10+w}")
        a(f"buffer_atomic_umax v10, v3, s[4:7], 0 offen offset:{4*j}\ns_waitcnt vmcnt(0)")
    if OPT.get("iv"):
        ja, jb, k = [int(x) for x in OPT["iv"].split(",")]
        a(f"""
        s_barrier
        buffer_load_dword v10, v3, s[4:7], 0 offen offset:{4*ja} sc0 sc1
        buffer_load_dword v11, v3, s[4:7], 0 offen offset:{4*jb} sc0 sc1
        s_waitcnt vmcnt(0)
        v_readfirstlane_b32 s16, v10
        v_readfirstlane_b32 s17, v11
        """)
        if sel[ja][3]: a("s_not_b32 s16, s16")
        if sel[jb][3]: a("s_not_b32 s17, s17")
        a(f"""
        s_sub_u32 s16, s16, s17
        s_min_u32 s16, s16, 10000
        s_mul_i32 s16, s16, {k}
        s_memrealtime s[18:19]
        s_waitcnt lgkmcnt(0)
        KR_SPIN:
        s_memrealtime s[20:21]
        s_waitcnt lgkmcnt(0)
        s_sub_u32 s20, s20, s18
        s_cmp_lt_u32 s20, s16
        s_cbranch_scc1 KR_SPIN
        """)
    a("KR_END:\ns_endpgm")
    return a.text()

DOC = """;
; k1: bins the edges by destination (128 chunks x 256 bins, 32 slots a segment), builds the node table
;     T = (x@w_v : -log2e * x@w_b) as bf16 pairs, MFMA-ready weight fragments and a sigmoid table indexed by f16 bits.
;     rescan of the raw edge list.
"""
def main():
    k1, d1 = gen_k1(); k2, d2 = gen_k2()
    ref = open("standalone__edge_featured_mpnn_gatedgcn__graph.s.ref").read().split("\n")
    out = "\n".join(ref[:13]) + "\n"
    for ch in OPT.get("list", "12"):
        if ch == "1": out += f"; @launch kernel=k1_kernel grid=({2*NCH},1,1) block=(512,1,1) lds={K1_LDS}\n"
        if ch == "2": out += f"; @launch kernel=k2_kernel grid=({NBIN},1,1) block=(512,1,1) lds={K2_LDS}\n"
        if ch == "r": out += "; @launch kernel=kr_kernel grid=(1,1,1) block=(256,1,1) lds=0\n"
        if ch == "e": out += "; @launch kernel=ke_kernel grid=(1,1,1) block=(64,1,1) lds=0\n"
    out += DOC
    out += '.amdgcn_target "amdgcn-amd-amdhsa--gfx950"\n.text\n'
    for n, k in (("k1_kernel", k1), ("k2_kernel", k2)):
        out += f".globl {n}\n.p2align 8\n.type {n},@function\n" + k
    if "e" in OPT.get("list", ""): out += ".globl ke_kernel\n.p2align 8\n.type ke_kernel,@function\nke_kernel:\n" + (KE_PROF if OPT.get("prof") else "") + "    s_endpgm\n"
    if "r" in OPT.get("list", ""): out += ".globl kr_kernel\n.p2align 8\n.type kr_kernel,@function\n" + gen_kr()
    out += '.section .rodata,"a"\n.p2align 6\n' + d1.lstrip("\n") + '.p2align 6\n' + d2.lstrip("\n")
    if "e" in OPT.get("list", ""): out += '.p2align 6\n' + kd("ke_kernel", 8, 16).lstrip("\n")
    if "r" in OPT.get("list", ""): out += '.p2align 6\n' + kd("kr_kernel", 32, 32).lstrip("\n")
    open(sys.argv[1], "w").write(out)

if __name__ == "__main__":
    main()
```

```python
import struct, sys
import asmsim

N = 10000; E = 320000
NCH = 128; CS = 2500
NBIN = 256; GN = 10
BINK, BINC, BINS = 53687, 52500, 21
assert all((625*b_ >> 4) <= d_ < (625*(b_+1) >> 4) for d_ in range(N) for b_ in [(d_*BINK + BINC) >> BINS])
CAP = 32
TS = int(([a for a in sys.argv if a.startswith('ts=')] or ['ts=512'])[0][3:])
T_OFF = 0x1000000
REC_OFF = 0x700000
WT_OFF = 0xB00000
LUT_OFF = 0xB20000
PROF_OFF = 0xF000000
NL2E = struct.unpack("<I", struct.pack("<f", -1.4426950408889634))[0]

def bf(x): return struct.unpack("<I", struct.pack("<f", x))[0] >> 16

OPT = dict(st_r="sc1", st_t="sc1")
for a in sys.argv[2:]:
    k, v = a.split("=", 1); OPT[k] = v

class Asm:
    def __init__(self): self.l = []
    def __call__(self, s):
        for x in s.strip("\n").split("\n"):
            x = x.strip()
            if not x: continue
            if x.startswith(";"): x = "s_nop 0"
            self.l.append(x if x.endswith(":") else "    " + x)
    def ext(self, lst):
        for x in lst: self(x)
    def text(self): return "\n".join(self.l) + "\n"

def stamp(a, i, lvl="1"):
    if OPT.get("prof") and (i in (0, 8) or OPT["prof"] == lvl): a(f"s_memrealtime s[{84+2*i}:{85+2*i}]")
def stamp_out(a, kern, wsreg, sw, vtmp):
    if not OPT.get("prof"): return
    if not (OPT.get("nowait") and kern == 0): a("s_waitcnt vmcnt(0)")
    stamp(a, 8)
    a(f"""
    s_lshl_b32 s4, s2, 4
    s_add_u32 s4, s4, s{sw}
    s_lshl_b32 s4, s4, 6
    s_add_u32 s4, s4, {PROF_OFF + kern*0x100000}
    s_add_u32 s4, s{wsreg}, s4
    s_addc_u32 s5, s{wsreg+1}, 0
    s_mov_b32 s6, 64
    s_mov_b32 s7, 0x20000
    s_waitcnt lgkmcnt(0)
    """)
    if kern == 1 and OPT["prof"] == "7":
        a(f"v_mov_b32 v{vtmp}, v251\nv_writelane_b32 v{vtmp}, s84, 0\ns_mov_b32 m0, s98\ns_add_u32 s98, s98, 1\nv_writelane_b32 v{vtmp}, s86, m0\ns_mov_b32 m0, s98\ns_nop 3\nv_writelane_b32 v{vtmp}, s100, m0\nv_writelane_b32 v{vtmp}, s98, 15")
    else:
        for i in range(9): a(f"v_writelane_b32 v{vtmp}, s{84+2*i}, {i}")
    a(f"""
    v_mbcnt_lo_u32_b32 v{vtmp+1}, -1, 0
    v_mbcnt_hi_u32_b32 v{vtmp+1}, -1, v{vtmp+1}
    v_lshlrev_b32 v{vtmp+1}, 2, v{vtmp+1}
    buffer_store_dword v{vtmp}, v{vtmp+1}, s[4:7], 0 offen
    """)

def vr(b, n): return f"v[{b}:{b+n-1}]"
def sr(b, n): return f"s[{b}:{b+n-1}]"

def srd(a, d, base, add=None, size=None, w3="0x20000", hi_or=None):
    if add is None:
        a(f"s_mov_b32 s{d}, s{base}\ns_mov_b32 s{d+1}, s{base+1}")
    else:
        a(f"s_add_u32 s{d}, s{base}, {add}\ns_addc_u32 s{d+1}, s{base+1}, 0")
    if hi_or: a(f"s_or_b32 s{d+1}, s{d+1}, {hi_or}")
    a(f"s_mov_b32 s{d+2}, {size}\ns_mov_b32 s{d+3}, {w3}")

def kd(name, vgpr, sgpr):
    return f"""
.amdhsa_kernel {name}
  .amdhsa_next_free_vgpr {vgpr}
  .amdhsa_next_free_sgpr {sgpr}
  .amdhsa_accum_offset {(vgpr+3)//4*4}
  .amdhsa_group_segment_fixed_size 0
  .amdhsa_kernarg_size 96
  .amdhsa_user_sgpr_count 2
  .amdhsa_user_sgpr_kernarg_segment_ptr 1
  .amdhsa_system_sgpr_workgroup_id_x 1
.end_amdhsa_kernel
"""

def pair_of_lane(a, d, t):
    a(f"""
    v_and_b32 v{d}, 17, v0
    v_lshlrev_b32 v{d}, 2, v{d}
    v_bfe_u32 v{t}, v0, 1, 1
    v_lshl_add_u32 v{d}, v{t}, 5, v{d}
    v_bfe_u32 v{t}, v0, 2, 2
    v_lshl_add_u32 v{d}, v{t}, 3, v{d}
    """)

def rec_fields(a, vd, vbin, vtmp, sm40, sm10):
    a(f"""
    v_mul_u32_u24 v{vbin}, {BINK}, v{vd}
    v_add_u32 v{vbin}, {BINC}, v{vbin}
    v_lshrrev_b32 v{vbin}, {BINS}, v{vbin}
    v_mul_u32_u24 v{vtmp}, 625, v{vbin}
    v_lshrrev_b32 v{vtmp}, 4, v{vtmp}
    v_sub_u32 v{vd}, v{vd}, v{vtmp}
    v_mul_u32_u24 v{vtmp}, 26, v{vd}
    v_lshrrev_b32 v{vtmp}, 8, v{vtmp}
    v_mad_i32_i24 v{vd}, v{vtmp}, s{sm10}, v{vd}
    v_lshl_or_b32 v{vd}, v{vtmp}, 30, v{vd}
    """)

K1_CNT = 0; K1_STG = 1024; K1_W = 34816; K1_X = K1_W + 32768; K1_LDS = K1_X + (28672 if 'rows' in OPT else 24576)
RLO, RHI = [int(x_) for x_ in OPT.get('rows', '96,64').split(',')]
def gen_k1():
    a = Asm()
    sS, sD, sW1, sW2, sX, sR, sT, sP = 24, 28, 32, 36, 40, 44, 48, 72
    sw, st0, st1, st2, snb, sfb, sch, shf, srow, snr = 52, 53, 54, 55, 56, 57, 58, 69, 71, 76
    c8192, cm10, cnl2e, csign, cmag, ctso, cp0 = 60, 62, 63, 64, 65, 66, 67
    vD, vS, vB, vSL, vt = 4, 12, 20, 28, 36
    vg = 56; vTR, vXA, vST = 64, 65, 66; vWC = 72
    vW, vX, vA, vO = 96, 160, 176, 192
    def W(m, ab, s): return vW + 32*m + 16*ab + 4*s
    a("k1_kernel:")
    a(f"s_cmp_ge_u32 s2, {2*NCH}\ns_cbranch_scc1 K1_END")
    stamp(a, 0)
    a(f"""
    s_load_dwordx16 s[4:19], s[0:1], 0
    s_load_dwordx2 s[20:21], s[0:1], 64
    s_load_dwordx2 s[22:23], s[0:1], 88
    """)
    if OPT.get("pf", "3") in "34":
        frm = "k2_kernel" if OPT.get("pf", "3") == "3" else "K1_PC"
        a(f"""
        s_cmp_lt_u32 s2, {NCH}
        s_cbranch_scc0 K1_NOPC
        s_getpc_b64 {sr(sP,2)}
        K1_PC:
        s_add_u32 s{sP}, s{sP}, {frm}-K1_PC
        s_addc_u32 s{sP+1}, s{sP+1}, 0
        s_mov_b32 s{sP+2}, K2_CODE_END-{frm}
        s_mov_b32 s{sP+3}, 0x20000
        s_bfe_u32 s{st0}, s2, 0x40003
        s_lshl_b32 s{st0}, s{st0}, 12
        v_lshlrev_b32 v33, 7, v0
        v_cmp_gt_u32 vcc, 32, v0
        s_and_saveexec_b64 s[80:81], vcc
        s_cbranch_execz K1_NOPC0
        buffer_load_dword v34, v33, {sr(sP,4)}, s{st0} offen
        K1_NOPC0:
        s_mov_b64 exec, s[80:81]
        K1_NOPC:
        """)
    if OPT.get("pf1", "0") == "1":
        a(f"""
        s_getpc_b64 {sr(sP,2)}
        K1_PC1:
        s_mov_b32 s{sP+2}, K1_END-K1_PC1
        s_mov_b32 s{sP+3}, 0x20000
        v_lshlrev_b32 v33, 7, v0
        buffer_load_dword v34, v33, {sr(sP,4)}, 0 offen
        """)
    a(f"""
    v_lshrrev_b32 v2, 6, v0
    v_lshlrev_b32 v1, 2, v0
    v_readfirstlane_b32 s{sw}, v2
    v_lshlrev_b32 v2, 4, v0
    s_mov_b32 s{c8192}, 8192
    s_sub_u32 s{sch}, s2, {NCH}
    s_and_b32 s{shf}, s2, 1
    v_and_b32 v{vg}, 63, v0
    v_lshrrev_b32 v{vg+1}, 4, v{vg}
    v_and_b32 v{vg+2}, 15, v0
    s_and_b32 s{st0}, s{sw}, 3
    s_lshl_b32 s{st0}, s{st0}, 2
    v_add_u32 v{vg+3}, s{st0}, v{vg+1}
    v_xor_b32 v{vg+3}, v{vg+3}, v{vg+2}
    v_lshlrev_b32 v{vg+3}, 4, v{vg+3}
    v_lshl_add_u32 v{vg+3}, v{vg+1}, 8, v{vg+3}
    v_lshrrev_b32 v{vg+4}, 3, v{vg}
    v_and_b32 v{vg+5}, 2, v{vg+4}
    s_lshr_b32 s{st0}, s2, 3
    s_add_u32 s{st0}, s{st0}, s{sw}
    s_and_b32 s{st0}, s{st0}, 1
    s_lshl_b32 s{st0}, s{st0}, 2
    v_and_b32 v{vg+6}, 7, v0
    v_xor_b32 v{vg+5}, v{vg+5}, v{vg+6}
    v_xor_b32 v{vg+5}, s{st0}, v{vg+5}
    v_lshlrev_b32 v{vg+5}, 4, v{vg+5}
    v_lshl_add_u32 v{vg+4}, v{vg+4}, 8, v{vg+5}
    s_lshr_b32 s{st0}, s2, 1
    s_mul_i32 s{srow}, s{st0}, {RLO}
    s_mul_i32 s{st0}, s{st0}, {RHI}
    s_add_u32 s{st0}, s{st0}, {64*(RLO-RHI)}
    s_cmp_lt_u32 s2, {NCH}
    s_cselect_b32 s{srow}, s{srow}, s{st0}
    s_cselect_b32 s{snr}, {RLO}, {RHI}
    s_min_u32 s{srow}, s{srow}, {N}
    s_sub_u32 s{st0}, {N}, s{srow}
    s_min_u32 s{snr}, s{snr}, s{st0}
    s_mul_i32 s{st1}, s{sch}, {CS*4}
    s_cmp_lt_u32 s2, 254
    s_waitcnt lgkmcnt(0)
    s_cselect_b64 {sr(sW1,2)}, s[14:15], s[12:13]
    s_cselect_b64 {sr(sW2,2)}, s[20:21], s[18:19]
    s_cmp_lt_u32 s2, {NCH}
    s_cbranch_scc1 K1_NOIDX
    """)
    srd(a, sD, 10, f"s{st1}", CS*4)
    srd(a, sS, 8, f"s{st1}", CS*4)
    a(f"""
    buffer_load_dwordx4 {vr(vD,4)}, v2, {sr(sD,4)}, 0 offen
    buffer_load_dwordx4 {vr(vS,4)}, v2, {sr(sS,4)}, 0 offen
    buffer_load_dword v{vD+4}, v1, {sr(sD,4)}, s{c8192} offen
    buffer_load_dword v{vS+4}, v1, {sr(sS,4)}, s{c8192} offen
    s_barrier
    K1_NOIDX:
    s_lshl_b32 s{st0}, s{srow}, 8
    s_add_u32 s{sX}, s4, s{st0}
    s_addc_u32 s{sX+1}, s5, 0
    s_lshl_b32 s{sX+2}, s{snr}, 8
    s_mov_b32 s{sX+3}, 0x20000
    s_mov_b32 s{sW1+2}, 32768
    s_mov_b32 s{sW1+3}, 0x20000
    s_mov_b32 s{sW2+2}, 32768
    s_mov_b32 s{sW2+3}, 0x20000
    s_lshl_b32 s{shf+1}, s{shf}, 7
    s_lshl_b32 s{st1}, s{sw}, 10
    """)
    def dma_x(k):
        a(f"s_add_u32 m0, s{st1}, {K1_X + 8192*k}\ns_add_u32 s{st2}, s{st1}, {8192*k}\nbuffer_load_dwordx4 v{vg+3}, {sr(sX,4)}, s{st2} offen lds")
    def stage_w():
        a(f"s_lshr_b32 s{st2}, s2, 3\ns_add_u32 s{st2}, s{st2}, s{sw}\ns_and_b32 s{st2}, s{st2}, 15")
        for k in range(2):
            a(f"""
            s_lshl_b32 s{st0}, s{st2}, 10
            s_add_u32 m0, s{st0}, {K1_W}
            s_lshl_b32 s{st1}, s{st2}, 11
            s_add_u32 s{st1}, s{st1}, s{shf+1}
            buffer_load_dwordx4 v{vg+4}, {sr(sW1,4)}, s{st1} offen lds
            s_add_u32 m0, s{st0}, {K1_W+16384}
            s_xor_b32 s{st2}, s{st2}, 8
            buffer_load_dwordx4 v{vg+4}, {sr(sW2,4)}, s{st1} offen lds
            """)
    if OPT.get("wt", "0") == "1":
        a(f"""
        s_cmp_eq_u32 s{sw}, 0
        s_cbranch_scc0 K1_NOWT
        s_bfe_u32 s{st0}, s2, 0x40003
        s_lshl_b32 s{st0}, s{st0}, 11
        s_add_u32 s{st0}, s{st0}, s{shf+1}
        v_lshlrev_b32 v33, 8, v0
        s_mov_b64 exec, 0xff
        buffer_load_dword v34, v33, {sr(sW1,4)}, s{st0} offen
        buffer_load_dword v34, v33, {sr(sW2,4)}, s{st0} offen
        s_mov_b64 exec, -1
        K1_NOWT:
        """)
    dma_x(0); dma_x(1)
    a(f"s_sub_u32 s{st0}, s2, {NCH}\ns_cmp_lt_u32 s{st0}, {254-NCH}\ns_cbranch_scc1 K1_LATER")
    dma_x(2)
    if RLO > 96: a(f"s_cmp_lt_u32 s{sw}, 4\ns_cbranch_scc0 K1_X3"); dma_x(3); a("K1_X3:")
    stage_w()
    a(f"""
    K1_LATER:
    s_and_b32 s{sfb}, s{sw}, 1
    s_lshr_b32 s{snb}, s{sw}, 1
    v_bfe_u32 v{vg+5}, v0, 2, 2
    v_bfe_u32 v{vg+6}, v0, 3, 2
    s_lshl_b32 s{st0}, s{sfb}, 1
    v_xor_b32 v{vg+6}, s{st0}, v{vg+6}
    v_and_b32 v{vg+7}, 3, v0
    v_lshlrev_b32 v{vg+7}, 3, v{vg+7}
    v_lshl_add_u32 v{vg+7}, v{vg+6}, 5, v{vg+7}
    v_lshl_add_u32 v{vg+5}, v{vg+1}, 3, v{vg+5}
    v_lshl_add_u32 v{vTR}, v{vg+5}, 7, v{vg+7}
    v_xor_b32 v{vTR+6}, 32, v{vTR}
    v_xor_b32 v{vXA}, v{vg+1}, v{vg+2}
    v_lshlrev_b32 v{vXA}, 4, v{vXA}
    v_lshl_add_u32 v{vXA}, v{vg+2}, 8, v{vXA}
    s_lshl_b32 s{st0}, s{snb}, 12
    s_add_u32 s{st0}, s{st0}, {K1_X}
    v_add_u32 v{vXA}, s{st0}, v{vXA}
    v_xor_b32 v{vXA+2}, 64, v{vXA}
    v_xor_b32 v{vXA+3}, 0x80, v{vXA}
    v_xor_b32 v{vXA+4}, 0xc0, v{vXA}
    v_mul_u32_u24 v{vST}, {TS}, v{vg+2}
    v_lshl_add_u32 v{vST}, v{vg+1}, 4, v{vST}
    s_mul_i32 s{ctso}, s{snb}, {16*TS}
    s_lshl_b32 s{st1}, s{shf}, 8
    s_add_u32 s{ctso}, s{ctso}, s{st1}
    s_lshl_b32 s{st1}, s{sfb}, 6
    s_add_u32 s{ctso}, s{ctso}, s{st1}
    s_mov_b32 s{cnl2e}, {NL2E:#x}
    s_mov_b32 s{csign}, 0x00800000
    s_mov_b32 s{cmag}, 0x7fffffff
    s_mov_b32 s{cp0}, 0x07060100
    s_mov_b32 s{cp0+1}, 0x07060302
    s_mul_i32 s{st0}, s{srow}, {TS}
    s_add_u32 s{st0}, s{st0}, {T_OFF}
    s_mul_i32 s{st1}, s{snr}, {TS}
    """)
    srd(a, sT, 22, f"s{st0}", f"s{st1}")
    stamp(a, 1)
    a(f"s_cmp_lt_u32 s2, {NCH}\ns_cbranch_scc1 K1_NOBIN")
    a(f"""
    v_mov_b32 v{vt}, -1
    v_mov_b32 v{vt+1}, -1
    v_mov_b32 v{vt+2}, -1
    v_mov_b32 v{vt+3}, -1
    v_mov_b32 v{vt+5}, 0
    v_and_b32 v{vt+6}, 0x3fc, v1
    """)
    for k in range(4): a(f"ds_write_b128 v2, {vr(vt,4)} offset:{K1_STG+8192*k}")
    a(f"""
    ds_write_b32 v{vt+6}, v{vt+5} offset:{K1_CNT}
    s_lshl_b32 s{st0}, s{sch}, 7
    s_add_u32 s{st0}, s{st0}, {REC_OFF}
    """)
    srd(a, sR, 22, f"s{st0}", NBIN*NCH*128)
    a(f"s_lshl_b32 s{st0}, s{sch}, 9\ns_add_u32 s{st1}, s{st0}, {LUT_OFF}")
    srd(a, sP, 22, f"s{st1}", 512)
    l0, l1 = vt+10, vt+11
    a(f"""
    v_add_u32 v{l0}, s{st0}, v1
    v_and_b32 v{l1}, 0x7fff, v{l0}
    v_cmp_ne_u32 vcc, 0x7c00, v{l1}
    v_or_b32 v{l1}, 3, v{l0}
    s_nop 0
    v_addc_co_u32 v{l0}, vcc, 0, v{l0}, vcc
    v_cvt_f32_f16 v{l1}, v{l1}
    v_cvt_f32_f16 v{l0}, v{l0}
    v_exp_f32 v{l1}, v{l1}
    v_exp_f32 v{l0}, v{l0}
    v_add_f32 v{l1}, 1.0, v{l1}
    v_add_f32 v{l0}, 1.0, v{l0}
    v_rcp_f32 v{l1}, v{l1}
    v_rcp_f32 v{l0}, v{l0}
    s_mov_b32 s{cm10}, {-GN}
    v_cvt_pk_bf16_f32 v{l0}, v{l0}, v{l1}
    v_mov_b32 v{vt+5}, 1
    v_cmp_gt_u32 vcc, {CS-2048}, v0
    s_mov_b64 s[80:81], vcc
    v_lshrrev_b32 v{vt+7}, 3, v0
    v_and_b32 v{vt+8}, 7, v0
    v_lshlrev_b32 v{vt+9}, 14, v{vt+7}
    v_lshl_add_u32 v{vt+9}, v{vt+8}, 4, v{vt+9}
    v_lshlrev_b32 v{vt+7}, 2, v{vt+7}
    v_cmp_eq_u32 s[82:83], 7, v{vt+8}
    v_and_b32 v{vt+8}, 4, v{vt+8}
    v_lshlrev_b32 v{vt+8}, {2 if OPT.get("half", "0") == "1" else 0}, v{vt+8}
    v_and_b32 v{vt+8}, 16, v{vt+8}
    s_waitcnt lgkmcnt(0)
    s_barrier
    s_cmp_ge_u32 s2, 254
    s_cbranch_scc1 K1_W7
    s_waitcnt vmcnt(2)
    K1_W7:
    s_waitcnt vmcnt(7)
    """)
    stamp(a, 2)
    for r in range(5):
        rec_fields(a, vD+r, vB+r, vt, None, cm10)
        a(f"v_lshlrev_b32 v{vt}, 2, v{vB+r}")
        if r == 4: a("s_mov_b64 exec, s[80:81]")
        a(f"ds_add_rtn_u32 v{vSL+r}, v{vt}, v{vt+5} offset:{K1_CNT}")
        if r == 4: a("s_mov_b64 exec, -1")
    a("s_cmp_ge_u32 s2, 254\ns_cbranch_scc1 K1_NOWC")
    stage_w()
    a(f"""
    s_cmp_eq_u32 s2, 252
    s_cbranch_scc0 K1_NOWC
    """)
    srd(a, sS, 16, None, 4096)
    a(f"""
    v_lshrrev_b32 v{vWC+8}, 5, v{vg}
    """)
    pair_of_lane(a, vWC+9, vWC+10)
    a(f"""
    v_lshl_add_u32 v{vWC+9}, v{vWC+8}, 11, v{vWC+9}
    s_bfe_u32 s{st1}, s{sw}, 0x10001
    s_lshl_b32 s{st1}, s{st1}, 7
    s_lshl_b32 s{st0}, s{sfb}, 1
    s_add_u32 s{st1}, s{st1}, s{st0}
    """)
    for j in range(8): a(f"buffer_load_ushort v{vWC+j}, v{vWC+9}, {sr(sS,4)}, s{st1} offen offset:{256*j}")
    a("K1_NOWC:")
    for r in range(5):
        a(f"v_lshl_or_b32 v{vD+r}, v{vS+r}, 16, v{vD+r}")
        a(f"v_add_u32 v{vS+r}, {r}, v1" if r < 4 else f"v_add_u32 v{vS+r}, 2048, v0")
        a(f"v_lshl_or_b32 v{vD+r}, v{vS+r}, 4, v{vD+r}\nv_lshlrev_b32 v{vB+r}, 7, v{vB+r}")
    for r in range(5):
        a("s_waitcnt lgkmcnt(4)")
        if r == 4: a("s_mov_b64 exec, s[80:81]")
        a(f"""
        v_and_b32 v{vt}, 12, v{vSL+r}
        v_add_u32 v{vB+r}, v{vB+r}, v{vt}
        v_and_b32 v{vt}, 3, v{vSL+r}
        v_lshl_add_u32 v{vB+r}, v{vt}, 4, v{vB+r}
        v_and_b32 v{vt}, 16, v{vSL+r}
        v_lshl_add_u32 v{vB+r}, v{vt}, 2, v{vB+r}
        v_cmpx_gt_u32 vcc, {CAP}, v{vSL+r}
        ds_write_b32 v{vB+r}, v{vD+r} offset:{K1_STG}
        s_mov_b64 exec, -1
        """)
    a("s_waitcnt lgkmcnt(0)\ns_barrier")
    for k in range(4):
        a(f"ds_read_b128 {vr(4+4*k,4)}, v2 offset:{K1_STG+8192*k}\nds_read_b32 v{20+k}, v{vt+7} offset:{K1_CNT+256*k}")
    a(f"""
    v_mov_b32 v{vt+2}, -2
    s_mov_b32 s{st2}, 0
    buffer_store_dword v{l0}, v1, {sr(sP,4)}, 0 offen {OPT['st_r']}
    """)
    stamp(a, 3)
    for k in range(4):
        a(f"""
        s_waitcnt lgkmcnt({6-2*k})
        v_cmp_lt_u32 vcc, {CAP}, v{20+k}
        v_cmp_le_u32 s[78:79], v{vt+8}, v{20+k}
        s_and_b64 vcc, vcc, s[82:83]
        s_nop 0
        v_cndmask_b32 v{7+4*k}, v{7+4*k}, v{vt+2}, vcc
        s_mov_b64 exec, s[78:79]
        buffer_store_dwordx4 {vr(4+4*k,4)}, v{vt+9}, {sr(sR,4)}, s{st2} offen {OPT['st_r']}
        s_mov_b64 exec, -1
        s_add_u32 s{st2}, s{st2}, {64*16384}
        """)
    a(f"""
    s_waitcnt vmcnt(5)
    s_branch K1_STAGED
    K1_NOBIN:
    """)
    if OPT.get("pf", "3") == "1":
        a(f"""
        s_getpc_b64 {sr(sP,2)}
        K1_PC:
        s_add_u32 s{sP}, s{sP}, k2_kernel-K1_PC
        s_addc_u32 s{sP+1}, s{sP+1}, 0
        s_mov_b32 s{sP+2}, K2_CODE_END-k2_kernel
        s_mov_b32 s{sP+3}, 0x20000
        s_bfe_u32 s{st0}, s2, 0x40003
        s_lshl_b32 s{st0}, s{st0}, 12
        v_lshlrev_b32 v33, 7, v0
        v_cmp_gt_u32 vcc, 32, v0
        s_and_saveexec_b64 s[80:81], vcc
        s_cbranch_execz K1_NOPC
        buffer_load_dword v34, v33, {sr(sP,4)}, s{st0} offen
        s_mov_b64 exec, s[80:81]
        s_waitcnt vmcnt(1)
        s_branch K1_PCD
        K1_NOPC:
        s_mov_b64 exec, s[80:81]
        s_waitcnt vmcnt(0)
        K1_PCD:
        """)
    else: a("s_waitcnt vmcnt(0)")
    stamp(a, 2); stamp(a, 3)
    a(f"""
    K1_STAGED:
    s_barrier
    """)
    stamp(a, 4)
    if OPT.get("pf", "3") == "2":
        assert 64*RLO + 59*RHI >= N
        a(f"""
        s_sub_u32 s{st0}, s2, 246
        s_cmp_lt_u32 s{st0}, 8
        s_cbranch_scc0 K1_NOPC
        s_getpc_b64 {sr(sP,2)}
        K1_PC:
        s_add_u32 s{sP}, s{sP}, k2_kernel-K1_PC
        s_addc_u32 s{sP+1}, s{sP+1}, 0
        s_mov_b32 s{sP+2}, K2_CODE_END-k2_kernel
        s_mov_b32 s{sP+3}, 0x20000
        v_lshlrev_b32 v33, 7, v0
        buffer_load_dword v34, v33, {sr(sP,4)}, 0 offen
        s_cmp_eq_u32 s2, 252
        s_cbranch_scc0 K1_END
        K1_NOPC:
        """)
    PM = int(OPT.get("pm", "0"))
    if PM:
        a(f"s_mul_i32 s{st0}, s2, {313*128}\ns_sub_u32 s{st1}, {E*32}, s{st0}\ns_min_u32 s{st1}, s{st1}, {PM*128}")
        if OPT.get("pmlo"): a(f"s_cmp_lt_u32 s2, {NCH}\ns_cselect_b32 s{st1}, s{st1}, 0")
        srd(a, sP, 6, f"s{st0}", f"s{st1}")
        a(f"v_xor_b32 v33, 0x1c0, v0\nv_lshlrev_b32 v33, 7, v33\nbuffer_load_dword v34, v33, {sr(sP,4)}, 0 offen")
    a(f"""
    s_cmp_eq_u32 s2, 252
    s_cbranch_scc1 K1_WC
    """)
    def xrd(reg, off):
        for s in range(4): a(f"ds_read_b128 {vr(reg+4*s,4)}, v{[vXA, vXA+2, vXA+3, vXA+4][s]} offset:{off}")
    def trs(s):
        for m in range(2):
            for ab in range(2):
                for u in range(2):
                    a(f"ds_read_b64_tr_b16 {vr(W(m,ab,s)+2*u,2)}, v{vTR+6*ab} offset:{K1_W+m*16384+s*4096+u*512}")
    def mm(s, x, acc):
        return [f"v_mfma_f32_16x16x32_bf16 {vr(acc+8*m+4*ab,4)}, {vr(W(m,ab,s),4)}, {vr(x+4*s,4)}, {'0' if s == 0 else vr(acc+8*m+4*ab,4)}"
                for m in range(2) for ab in range(2)]
    def pack(acc, out):
        o = []
        for b in range(2):
            for ab in range(2):
                b0, b1 = acc+4*ab+b, acc+4*ab+2+b
                hs = [acc+8+4*ab+2*e_+b for e_ in range(2)]
                o += [f"v_mul_f32 v{b0}, s{cnl2e}, v{b0}", f"v_mul_f32 v{b1}, s{cnl2e}, v{b1}"]
                for e_, h in enumerate(hs): o += [f"v_max_f32 v{30+e_}, abs(v{h}), s{csign}", f"v_bfi_b32 v{h}, s{cmag}, v{30+e_}, v{h}"]
                o += [f"v_cvt_pk_bf16_f32 v{b0}, v{b0}, v{b1}"] + [f"v_add_u32 v{h}, 0x8000, v{h}" for h in hs]
                o += [f"v_sub_u32_sdwa v{h}, v{h}, v{b0} dst_sel:DWORD dst_unused:UNUSED_PAD src0_sel:DWORD src1_sel:WORD_{e_}" for e_, h in enumerate(hs)]
                o += [f"v_perm_b32 v{out+4*b+2*ab+e_}, v{h}, v{b0}, s{cp0+e_}" for e_, h in enumerate(hs)]
            o.append(f"buffer_store_dwordx4 {vr(out+4*b,4)}, v{vST}, {sr(sT,4)}, s{ctso} offen offset:{128*b} {OPT['st_t']}")
        return o
    xrd(vX, 0)
    trs(0); a("s_waitcnt lgkmcnt(6)")
    for s in range(1, 4):
        trs(s); a("s_waitcnt lgkmcnt(8)"); a.ext(mm(s-1, vX, vA))
        if s < 3: a("s_waitcnt lgkmcnt(6)")
    a("s_waitcnt lgkmcnt(0)")
    stamp(a, 5)
    a(f"""
    s_cmp_ge_u32 s2, 254
    s_cbranch_scc1 K1_WT
    s_lshl_b32 s{st0}, s{snb}, 4
    s_add_u32 s{st0}, s{st0}, 64
    s_cmp_lt_u32 s{st0}, s{snr}
    s_cbranch_scc0 K1_ONE
    """)
    vX2, vA2 = 208, 224
    xrd(vX2, 16384)
    g = mm(3, vX, vA) + ["s_waitcnt lgkmcnt(0)"]
    m2 = sum((mm(s, vX2, vA2) for s in range(4)), []); pk = pack(vA, vO)
    g += m2[:6]; k = 0
    for x in m2[6:]:
        g.append(x); g += pk[k:k+3]; k += 3
    g += pk[k:] + [f"s_add_u32 s{ctso}, s{ctso}, {64*TS}"] + pack(vA2, vO+8)
    asmsim.check_hazards(g, "k1 two blocks")
    a.ext(g)
    a("s_branch K1_TAIL\nK1_ONE:")
    g = mm(3, vX, vA) + ["s_nop 7"] + pack(vA, vO)
    asmsim.check_hazards(g, "k1 one block")
    a.ext(g)
    a("K1_TAIL:")
    PL = int(OPT.get("pl", "0"))
    if PL:
        a(f"""
        s_cmp_lt_u32 s2, {NCH}
        s_cbranch_scc0 K1_NOPF
        s_mul_i32 s{st0}, s2, {CS*32}
        """)
        srd(a, sP, 6, f"s{st0}", PL*128)
        a(f"""
        v_lshlrev_b32 v4, 7, v0
        s_mov_b32 s{st0}, 65536
        s_barrier
        buffer_load_dword v5, v4, {sr(sP,4)}, 0 offen
        buffer_load_dword v5, v4, {sr(sP,4)}, s{st0} offen
        K1_NOPF:
        """)
    stamp(a, 6); stamp(a, 7)
    stamp_out(a, 0, 22, sw, 2)
    a("s_endpgm")
    a("K1_WT:")
    srd(a, sT, 22, WT_OFF, 65536)
    a(f"""
    s_cmp_ge_u32 s{sw}, 4
    s_cbranch_scc1 K1_END
    v_lshlrev_b32 v2, 4, v{vg}
    s_lshl_b32 s{st0}, s{snb}, 2
    s_lshl_b32 s{st1}, s{shf}, 1
    s_add_u32 s{st0}, s{st0}, s{st1}
    s_add_u32 s{st0}, s{st0}, s{sfb}
    s_lshl_b32 s{st0}, s{st0}, 13
    s_add_u32 s{st1}, s{st0}, 4096
    s_cmp_eq_u32 s{snb}, 0
    s_cbranch_scc0 K1_WU
    """)
    for m in range(2):
        for ab in range(2):
            for s in range(4):
                a(f"buffer_store_dwordx4 {vr(W(m,ab,s),4)}, v2, {sr(sT,4)}, s{st1 if ab else st0} offen offset:{1024*s} {OPT['st_t']}")
        a("s_endpgm")
        if m == 0: a("K1_WU:")
    a("K1_WC:")
    srd(a, sT, 22, WT_OFF+65536, 4096)
    a(f"v_lshlrev_b32 v2, 4, v{vg}\ns_lshl_b32 s{st0}, s{sw}, 10")
    for j in range(8):
        a(f"v_lshlrev_b32 v{vWC+j}, 16, v{vWC+j}\nv_mul_f32 v{vWC+j}, s{cnl2e}, v{vWC+j}")
    for j in range(4):
        a(f"v_cvt_pk_bf16_f32 v{84+j}, v{vWC+2*j}, v{vWC+1+2*j}")
    a(f"buffer_store_dwordx4 v[84:87], v2, {sr(sT,4)}, s{st0} offen {OPT['st_t']}")
    a("K1_END:\ns_endpgm")
    return a.text(), kd("k1_kernel", 240, 102)

CAPG = 416; RND = 400
CNT = 0; FLG = 256; START = 512; INCL = 768; OHL = 1024; L1 = 1536; L2 = L1 + 4*CAPG*4; APL = L2 + 4*CAPG*4
ROWP = 272
UL = APL + 48*ROWP; LUTL = UL + 48*ROWP; STG = (LUTL + 65536 + 255)//256*256; XL = STG + 3*CAPG*32 + 5*1024; K2_LDS = XL + 12288
PROG = FLG + 32
assert K2_LDS <= 163840 and K2_LDS >= STG + 4*CAPG*32 and LUTL <= 65535 and (4*CAPG*4) % 256 == 0

def gen_k2():
    a = Asm()
    sREC, sX, sWT, sT, sE, sO, sD, sS = 24, 28, 32, 36, 40, 44, 68, 72
    sw, sg, sfh, st0, st1, st2 = 48, 49, 50, 51, 52, 53
    scount, sslow, sround, slim, sgb, srt, slut, srank = 54, 55, 56, 57, 58, 59, 82, 83
    stail = 20
    sdma, sm0, sneed = 21, 22, 23
    cm32, c128, cnl2e, cfc, csrc, cm40, cm10, cfe = 60, 61, 62, 63, 64, 65, 66, 67
    sk = 16
    vH16, vA1, vA2, vEa, vOa, vO, vA3 = 1, 2, 3, 4, 5, 6, 7
    WC = 8; AP = 16; PA = 24; SC = 28; OH = 32; EA = 40; ADDR = 48; ACC = 64; SP = 96; G = 112; RAW = 176
    XR = 240; UR = 246; vP16 = 252; vH256 = 253; vHS = 254; vPG = 255; vM15 = XR; vO2 = SP+8
    raw = lambda p, b: RAW + 32*p + 16*b
    gb = lambda p, b: G + 32*p + 16*b
    vt = gb(1, 1); Z = SP; EOFF = SP+14
    REC = raw(1, 0); CADDR = REC+16; RANK = G; STV = G+16
    NTB = [int(c_) for c_ in OPT.get("nt", "11")]
    rowoff = lambda r: 8*(r >> 2) + (r & 3)
    sd = "dst_sel:DWORD dst_unused:UNUSED_PAD src0_sel:DWORD"

    a("k2_kernel:")
    a(f"s_cmp_ge_u32 s2, {NBIN}\ns_cbranch_scc1 K2_END")
    stamp(a, 0)
    a(f"""
    s_load_dwordx8 s[4:11], s[0:1], 0
    s_load_dwordx2 s[12:13], s[0:1], 72
    s_load_dwordx2 s[14:15], s[0:1], 88
    v_lshrrev_b32 v{vt}, 6, v0
    v_lshrrev_b32 v{vt+1}, 2, v0
    v_readfirstlane_b32 s{sw}, v{vt}
    v_and_b32 v{vt+2}, 3, v0
    v_lshlrev_b32 v{vt+3}, 7, v{vt+1}
    v_lshl_add_u32 v{vt+3}, v{vt+2}, 4, v{vt+3}
    s_lshl_b32 s{st0}, s2, 14
    s_add_u32 s{st0}, s{st0}, {REC_OFF}
    v_and_b32 v{vt}, 63, v0
    v_lshlrev_b32 v{vt+5}, 3, v{vt}
    v_mov_b32 v{Z}, 0
    v_mov_b32 v{Z+1}, 0
    ds_write_b64 v{vt+5}, {vr(Z,2)} offset:{CNT}
    s_and_b32 s{sg}, s{sw}, 3
    s_lshr_b32 s{sfh}, s{sw}, 2
    v_lshlrev_b32 v{vA2}, 4, v{vt}
    s_mov_b32 s{st1}, 8192
    s_waitcnt lgkmcnt(0)
    """)
    if OPT.get("lat"):
        kind = OPT["lat"]
        if kind == "T": srd(a, sS, 14, T_OFF, N*TS)
        if kind == "R": srd(a, sS, 14, REC_OFF, 4 << 20)
        if kind == "x": srd(a, sS, 4, None, N*256)
        if kind == "e": srd(a, sS, 6, None, E*32)
        a(f"""
        s_cmp_eq_u32 s{sw}, 0
        s_cbranch_scc0 K2_NOLAT
        s_lshl_b32 s{st2}, s2, 13
        v_lshlrev_b32 v{vt+9}, 7, v{vt}
        s_memrealtime s[86:87]
        buffer_load_dword v{vt+10}, v{vt+9}, {sr(sS,4)}, s{st2} offen
        s_waitcnt vmcnt(0)
        s_memrealtime s[88:89]
        K2_NOLAT:
        s_barrier
        """)
    a(f"""
    s_cmp_lg_u32 s{sfh}, 0
    s_cbranch_scc1 K2_NOREC
    """)
    srd(a, sREC, 14, f"s{st0}", 16384)
    for u in range(2):
        for r in range(2):
            a(f"buffer_load_dwordx4 {vr(REC+8*r+4*u,4)}, v{vt+3}, {sr(sREC,4)}, {'s%d' % st1 if u else '0'} offen offset:{64*r}")
    TP0 = int(OPT.get("tp0", "0"))
    if TP0:
        srd(a, sS, 14, T_OFF, N*TS)
        a(f"""
        s_bfe_u32 s{st0}, s2, 0x50003
        s_mul_i32 s{st0}, s{st0}, {TP0}
        s_add_u32 s{st0}, s{st0}, s{sw}
        s_lshl_b32 s{st0}, s{st0}, 13
        s_cmp_lt_u32 s{sw}, {TP0}
        s_cselect_b32 s{sS+2}, s{sS+2}, 0
        v_lshlrev_b32 v{vt+9}, 7, v{vt}
        buffer_load_dword v{vt+10}, v{vt+9}, {sr(sS,4)}, s{st0} offen
        """)
    a(f"""
    K2_NOREC:
    s_mul_i32 s{st0}, s2, 625
    s_add_u32 s{cm40}, s{st0}, 625
    s_lshr_b32 s{st0}, s{st0}, 4
    s_lshr_b32 s{cm40}, s{cm40}, 4
    s_sub_u32 s{cm40}, s{cm40}, s{st0}
    s_lshl_b32 s{cm40}, s{cm40}, 8
    s_lshl_b32 s{st0}, s{st0}, 8
    """)
    srd(a, sX, 4, f"s{st0}", f"s{cm40}")
    srd(a, sO, 12, f"s{st0}", f"s{cm40}")
    srd(a, sWT, 14, WT_OFF, LUT_OFF - WT_OFF + 65536)
    a("s_barrier")
    stamp(a, 1)
    def ld_wc():
        a(f"""
        s_lshl_b32 s{st1}, s{sfh}, 11
        s_add_u32 s{st1}, s{st1}, 65536
        buffer_load_dwordx4 {vr(WC,4)}, v{vA2}, {sr(sWT,4)}, s{st1} offen
        buffer_load_dwordx4 {vr(WC+4,4)}, v{vA2}, {sr(sWT,4)}, s{st1} offen offset:1024
        """)
    def common1(Z, vl):
        a = Asm()
        a(f"s_lshl_b32 s{st0}, s{sfh}, 8\ns_add_u32 s{st0}, s{st0}, {T_OFF-128}")
        srd(a, sT, 14, f"s{st0}", 64, w3="0x800000", hi_or="0x40000")
        srd(a, sE, 6, None, E*32)
        a(f"""
        s_mov_b32 s{cm32}, {'0x7e0' if 'e' in OPT.get('nomem','') else '0x1fffe0' if 's' in OPT.get('nomem','') else '0xffffffe0'}
        s_mov_b32 s{c128}, 128
        s_mov_b32 s{cnl2e}, {NL2E + (16 << 23):#x}
        s_mov_b32 s{cfc}, 0xfc
        s_mov_b32 s{cfe}, {OPT.get('cfe', '0xfffe')}
        s_mov_b32 s{csrc}, {TS}
        s_mov_b32 s{sslow}, 0
        s_mov_b32 s{sround}, 0
        s_mov_b32 s{sgb}, 0
        s_mul_i32 s{st0}, s{sfh}, 3
        s_xor_b32 s{srank}, s{sg}, s{st0}
        v_lshrrev_b32 v{Z+2}, 5, v{vl}
        v_and_b32 v{Z+3}, 31, v0
        v_lshlrev_b32 v{vH16}, 4, v{Z+2}
        v_lshlrev_b32 v{vH256}, 8, v{Z+2}
        v_and_b32 v{Z+4}, 3, v0
        v_mov_b32 v{Z+6}, 0x3f80
        """)
        for i in range(4):
            a(f"v_cmp_eq_u32 vcc, {i}, v{Z+4}\ns_nop 1\nv_cndmask_b32 v{PA+i}, 0, v{Z+6}, vcc")
        a(f"""
        v_cmp_gt_u32 s[78:79], 16, v{Z+3}
        v_mov_b32 v{Z+5}, {bf(127*2.0**-126):#x}
        v_mov_b32 v{Z+7}, {bf(2.0**16):#x}
        v_cndmask_b32 v{Z+5}, v{Z+7}, v{Z+5}, s[78:79]
        v_and_b32 v{Z+4}, 15, v0
        v_lshlrev_b32 v{Z+8}, 3, v{Z+2}
        v_sub_u32 v{Z+4}, v{Z+4}, v{Z+8}
        v_lshlrev_b32 v{Z+6}, 16, v{Z+5}
        """)
        for d in range(4):
            a(f"""
            v_cmp_eq_u32 vcc, {2*d}, v{Z+4}
            v_cmp_eq_u32 s[78:79], {2*d+1}, v{Z+4}
            s_nop 0
            v_cndmask_b32 v{SC+d}, 0, v{Z+5}, vcc
            v_cndmask_b32 v{Z+8}, 0, v{Z+6}, s[78:79]
            v_or_b32 v{SC+d}, v{SC+d}, v{Z+8}
            """)
        return [x.strip() for x in a.l]
    def ld_xr(): return [f"buffer_load_dword v{XR+r}, v{vO}, {sr(sX,4)}, 0 offen offset:{256*rowoff(r)} " for r in range(6)]
    def arrive(k):
        a(f"""
        v_mov_b32 v{vt+6}, {FLG+4*k}
        v_mov_b32 v{vt+7}, 1
        s_mov_b64 exec, 1
        ds_add_u32 v{vt+6}, v{vt+7}
        s_mov_b64 exec, -1
        """)
    def spin(k, n, add=True):
        if add: arrive(k)
        else: a(f"v_mov_b32 v{vt+6}, {FLG+4*k}")
        a(f"""
        K2_SPIN{n}:
        ds_read_b32 v{vt+7}, v{vt+6}
        s_waitcnt lgkmcnt(0)
        v_cmp_gt_u32 vcc, 4, v{vt+7}
        s_cbranch_vccnz K2_SPIN{n}
        """)
    def caddr(k): return f"v_and_b32_sdwa v{CADDR+k}, s{cfc}, v{REC+k} {sd} src1_sel:BYTE_3"
    def pick(sel, cur):
        a(f"""
        s_bitcmp1_b32 s{sel}, 0
        s_cselect_b32 s{cur[0]}, s{cur[1]}, s{cur[0]}
        s_cselect_b32 s{cur[2]}, s{cur[3]}, s{cur[2]}
        s_bitcmp1_b32 s{sel}, 1
        s_cselect_b32 s{st0}, s{cur[2]}, s{cur[0]}
        s_and_b32 s{sg}, s{st0}, 3
        s_andn2_b32 s{st0}, s{st0}, 3
        s_mul_i32 s{sgb}, s{sg}, {CAPG*4}
        s_add_u32 s{scount}, s{st0}, 127
        s_lshr_b32 s{scount}, s{scount}, 7
        s_add_u32 s{stail}, s{st0}, 124
        s_bfe_u32 s{stail}, s{stail}, 0x20005
        s_lshl_b32 s{stail}, s{stail}, 1
        s_add_u32 s{stail}, s{stail}, 2
        """)
    def rank_groups():
        for g in range(1, 4): a(f"s_or_b32 s{sk+g}, s{sk+g}, {g}")
        cur = [sk, sk+1, sk+2, sk+3]; spare = sk+4
        for (i, j) in ((0, 1), (2, 3), (0, 2), (1, 3), (1, 2)):
            a(f"s_max_u32 s{spare}, s{cur[i]}, s{cur[j]}\ns_min_u32 s{cur[j]}, s{cur[i]}, s{cur[j]}")
            cur[i], spare = spare, cur[i]
        pick(srank, cur)
    def scan(fast, ks=()):
        x = SP
        a(f"""
        v_and_b32 v{vt}, 63, v0
        v_lshlrev_b32 v{vt+1}, 2, v{vt}
        ds_read_b32 v{x}, v{vt+1} offset:{CNT}
        v_lshrrev_b32 v{vt}, 4, v{vt}
        v_mul_u32_u24 v{vt}, {CAPG*4}, v{vt}
        v_and_b32 v{vt+2}, 31, v0
        v_lshlrev_b32 v{vt+2}, 2, v{vt+2}
        v_mov_b32 v{vt+4}, 0xfffffe
        s_waitcnt lgkmcnt(0)
        v_sub_u32 v{vt}, v{vt}, v{x}
        """)
        for d in ("row_shr:1", "row_shr:2", "row_shr:4", "row_shr:8"):
            a(f"v_add_u32_dpp v{x}, v{x}, v{x} {d} row_mask:0xf bank_mask:0xf bound_ctrl:0\ns_nop 1")
        a(f"""
        v_add_u32 v{vt}, v{vt}, v{x}
        v_cmp_lt_u32 vcc, {CAPG*4}, v{x}
        ds_write2st64_b32 v{vt+1}, v{vt}, v{x} offset0:{START//256} offset1:{INCL//256}
        """)
        for g in range(4): a(f"v_readlane_b32 s{sk+g}, v{x}, {16*g+15}")
        if fast:
            a("s_cbranch_vccnz K2_GIVEUP")
            for j, k in enumerate(ks): a(f"ds_read_b32 v{STV+j}, v{CADDR+k} offset:{START}")
            rank_groups()
        else:
            for g in range(1, 4): a(f"s_or_b32 s{sk+g}, s{sk+g}, {g}")
            pick(sg, [sk, sk+1, sk+2, sk+3])
        a(f"""
        s_add_u32 s{st0}, s{st0}, s{sgb}
        v_add_u32 v{vt+2}, s{st0}, v{vt+2}
        s_lshl_b32 s{st1}, s{scount}, 7
        s_add_u32 s{st1}, s{st1}, s{sgb}
        v_lshlrev_b32 v{vt+3}, 3, v{vt+2}
        v_and_b32 v{vt+3}, 128, v{vt+3}
        v_cmpx_gt_u32 vcc, s{st1}, v{vt+2}
        ds_write2st64_b32 v{vt+2}, v{vt+3}, v{vt+4} offset0:{L1//256} offset1:{L2//256}
        s_mov_b64 exec, -1
        """)
    def place(k, st, eo):
        a(f"""
        v_add_u32 v{st}, v{st}, v{RANK+k}
        v_bfe_u32 v{vt}, v{REC+k}, 16, {5 if 't' in OPT.get('nomem','') else 14}
        v_lshlrev_b32 v{vt+1}, 3, v{st}
        v_mad_u32_u16 v{vt+2}, v{REC+k}, 2, v{eo}
        v_and_b32 v{vt+1}, 128, v{vt+1}
        v_mad_u32_u24 v{vt}, v{vt}, s{csrc}, v{vt+1}
        ds_write2st64_b32 v{st}, v{vt}, v{vt+2} offset0:{L1//256} offset1:{L2//256}
        """)
    def lane_setup():
        a(f"""
        v_and_b32 v{vt}, 31, v0
        v_xor_b32 v{vA1}, 16, v{vH16}
        v_xor_b32 v{vA2}, 4, v{vt}
        v_lshlrev_b32 v{vA2}, 2, v{vA2}
        v_add_u32 v{vA1}, s{sgb}, v{vA1}
        v_add_u32 v{vA2}, s{sgb}, v{vA2}
        s_mul_i32 s{st0}, s{sg}, {GN*256}
        s_lshl_b32 s{st1}, s{sfh}, 7
        s_add_u32 s{st0}, s{st0}, s{st1}
        """)
        pair_of_lane(a, vO, vt+1)
        a(f"""
        v_lshl_add_u32 v{vO}, v{vH256}, 2, v{vO}
        v_add_u32 v{vO}, s{st0}, v{vO}
        v_bfe_u32 v{vA3}, v0, 1, 5
        v_lshlrev_b32 v{vA3}, 2, v{vA3}
        v_add_u32 v{vA3}, s{sgb}, v{vA3}
        v_lshlrev_b32 v{vP16}, 4, v0
        v_xor_b32 v{vP16}, v{vP16}, v0
        v_and_b32 v{vP16}, 16, v{vP16}
        v_lshlrev_b32 v{vHS}, 1, v0
        v_xor_b32 v{vHS}, v{vHS}, v{vH16}
        v_and_b32 v{vHS}, 16, v{vHS}
        v_add_u32 v{vHS}, {STG}, v{vHS}
        s_lshl_b32 s{st0}, s{sg}, 2
        s_add_u32 s{st0}, s{st0}, {PROG}
        v_mov_b32 v{vPG}, s{st0}
        s_lshl_b32 s{sm0}, s{sgb}, 3
        s_add_u32 s{sm0}, s{sm0}, {STG}
        s_mov_b32 s{sdma}, 0
        s_mov_b32 s{sneed}, 0
        s_mov_b32 s{slim}, s{scount}
        """)
    def rd_addr(off, j): return f"ds_read_b128 {vr(ADDR+4*j,4)}, v{vA1} offset:{L1+off+32*j}"
    def rd_l2(reg, off): return f"ds_read_b32 v{reg}, v{vA2} offset:{L2+off}"
    def ld_raw(p, b, r):
        pre = [f"v_and_b32 v{ADDR+r}, 0xffff80, v{ADDR+r}"] if OPT.get("safe") else []
        if OPT.get("noload"): return ["s_nop 0"]
        return pre + [f"buffer_load_dword v{raw(p,b)+r}, v{ADDR+r}, {sr(sT,4)}, 0 offen" + (" offset:128" if b else "") + " " + OPT.get("ft", "")]
    def ld_blk(p, b): return sum((ld_raw(p, b, r) for r in range(16)), [])
    cur = {"r": "P"}
    def rd_l3(off, reg=None): return [f"ds_read_b32 v{reg or vEa}, v{vA3} offset:{L2+off}"] if cur["r"] == "P" else []
    lab = [0]
    def dma_ea(sl, reg=None, check=True):
        if cur["r"] != "P": return []
        reg = reg or vEa
        if not check:
            return [f"s_mov_b32 m0, s{sm0}", f"v_and_or_b32 v{reg}, v{reg}, s{cm32}, v{vP16}",
                    f"buffer_load_dwordx4 v{reg}, {sr(sE,4)}, 0 offen {OPT.get('fe', '')} lds;wr={300+sl}", f"s_add_u32 s{sm0}, s{sm0}, 1024"]
        lab[0] += 1
        return [f"s_cmp_lt_u32 s{sdma}, s{slim}", f"s_cbranch_scc0 K2_ND{lab[0]}", "@D{",
                f"s_mov_b32 m0, s{sm0}", f"v_and_or_b32 v{reg}, v{reg}, s{cm32}, v{vP16}",
                f"buffer_load_dwordx4 v{reg}, {sr(sE,4)}, 0 offen {OPT.get('fe', '')} lds;wr={300+sl}", "@}", f"K2_ND{lab[0]}:",
                f"s_add_u32 s{sdma}, s{sdma}, 1", f"s_add_u32 s{sm0}, s{sm0}, 1024"]
    spins = []
    def rd_prog(): return [f"ds_read_b32 v{vEa}, v{vPG}"] if cur["r"] == "C" else []
    def get_ea(p, sl, off, prev=()):
        o = [f"s_add_u32 s{sneed}, s{sneed}, 1"]
        if cur["r"] == "P":
            o += [f"v_mov_b32 v{vEa}, s{sneed};rd={300+sl}", f"ds_write_b32 v{vPG}, v{vEa}"]
            if prev: o.append("@MOVE 302 300")
        else:
            lab[0] += 1; n = lab[0]; spins.append(n)
            o += [f"v_cmp_gt_u32 vcc, s{sneed}, v{vEa}", f"s_cbranch_vccnz K2_SP{n}", f"K2_OK{n}:"]
        return o + [f"v_lshl_add_u32 v{vEa}, v{vA2}, 3, v{vHS}", f"ds_read_b128 {vr(EA+4*p,4)}, v{vEa} offset:{8*off}"]
    def oh_idx(p):
        return [f"v_and_b32 v{vOa}, 30, v{vOa}",
                f"v_lshl_add_u32 v{vOa}, v{vOa}, 3, v{vH256}",
                f"ds_read_b128 {vr(OH+4*p,4)}, v{vOa} offset:{OHL}"]
    big = "v_mfma_f32_32x32x16_bf16" if not OPT.get("nobig") else "; "
    de = OPT.get("drop", "")
    def mE(p, b): return "; " if "E" in de else f"{big} {vr(gb(p,b),16)}, {vr(EA+4*p,4)}, {vr(WC+4*b,4)}, 0"
    def mA(p, b): return "; " if "A" in de else f"{big} {vr(gb(p,b),16)}, {vr(OH+4*p,4)}, {vr(AP+4*b,4)}, {vr(gb(p,b),16)}"
    def mS(p): return "; " if "S" in de else f"{big} {vr(SP,16)}, {vr(OH+4*p,4)}, {vr(SC,4)}, 0"
    def mG(p, b, j): return "; " if ("G" in de or ("g" in de and j & 1)) else (f"{big} {vr(ACC+16*b,16)}, {vr(gb(p,b)+4*j,4)}, {vr(SP+4*j,4)}, {vr(ACC+16*b,16)}" if OPT.get("swapg") else f"{big} {vr(ACC+16*b,16)}, {vr(SP+4*j,4)}, {vr(gb(p,b)+4*j,4)}, {vr(ACC+16*b,16)}")
    def mP(p, b):
        o = []
        if "P" in de: return ["; "]*8
        for u in range(2):
            for j in range(4):
                g = vr(gb(p,b)+4*j, 4)
                o.append(f"v_mfma_f32_4x4x4_16b_bf16 {g}, {vr(PA+2*u,2)}, {vr(raw(p,b)+4*j+2*u,2)}, {g}")
        return o
    def idx_pair(p, b, i):
        g0, g1 = gb(p,b)+2*i, gb(p,b)+2*i+1
        if i < NTB[b]:
            return [f"v_exp_f32 v{g0}, v{g0}", f"v_exp_f32 v{g1}, v{g1}", f"v_add_f32 v{g0}, 1.0, v{g0}",
                    f"v_add_f32 v{g1}, 1.0, v{g1}", f"v_rcp_f32 v{g0}, v{g0}", f"v_rcp_f32 v{g1}, v{g1}"], []
        return [f"v_cvt_pkrtz_f16_f32 v{g0}, v{g0}, v{g1}",
                f"v_and_b32_sdwa v{g1}, s{cfe}, v{g0} {sd} src1_sel:WORD_1",
                f"v_and_b32_sdwa v{g0}, s{cfe}, v{g0} {sd} src1_sel:WORD_0"], \
               [f"ds_read_u16_d16_hi v{g1}, v{g1} offset:{LUTL}", f"ds_read_u16_d16_hi v{g0}, v{g0} offset:{LUTL}"]
    def fin_pair(p, b, i):
        g0, r0 = gb(p,b)+2*i, raw(p,b)+2*i
        mul = [f"v_pk_mul_f32 {vr(r0,2)}, {vr(g0,2)}, {vr(r0,2)}"] if OPT.get("pk") else [f"v_mul_f32 v{r0}, v{g0}, v{r0}", f"v_mul_f32 v{r0+1}, v{g0+1}, v{r0+1}"]
        return mul + [
                f"v_cvt_pk_bf16_f32 v{g0}, v{g0}, v{r0}", f"v_cvt_pk_bf16_f32 v{g0+1}, v{g0+1}, v{r0+1}"]
    def zipl(x, y):
        o = []
        for k in range(max(len(x), len(y))):
            if k < len(x): o.append(x[k])
            if k < len(y): o.append(y[k])
        return o
    uid = [0]
    def W(kind):
        uid[0] += 1
        return f"@W{kind} {uid[0]}"
    SH = int(OPT.get("short", "4"))
    XE = OPT.get("xe", "1") == "1"
    WE = int(OPT.get("we", "2"))
    def slot(p, b, kind, acc=True, np_=8, npg=8):
        q = 1-p
        nxt = (p, 1) if b == 0 else (q, 0)
        do_idx = b == 0 or kind != "L"
        gs = [[mG(q if b == 0 else p, 1-b, j)] for j in range(npg//2)] if acc else []
        bigs = gs[:2]
        if kind != "L": bigs += [[mE(q, b)], [mA(q, b)]]
        bigs += gs[2:]
        if b == 0: bigs += [[mS(p)]]
        smalls = mP(q, b) if kind != "L" else []
        out = []
        nb = 0
        for i in range(8):
            if i >= np_:
                out += sum(bigs[nb:], []); nb = len(bigs)
                break
            iv, il = idx_pair(*nxt, i) if do_idx else ([], [])
            fv = fin_pair(p, b, i)
            seq = zipl(iv, fv) + il
            if SH:
                rr = range(16*i//SH, 16*(i+1)//SH) if i < SH else []
                if (b == 0 and kind != "L") or (b == 1 and kind == "F"):
                    for r_ in rr: seq += ld_raw(q, 1, r_) if b == 0 else ld_raw(p, 0, r_)
                if kind == "P" and b == 0 and i == SH and XE: seq += ld_xr()
                if kind == "F":
                    if b == 0:
                        for r_ in rr:
                            if r_ & 3 == 3: seq.append(rd_addr((2+p)*128, r_ >> 2))
                    if b == 0 and i == 1: seq = dma_ea(p, check=False) + seq
                    if b == 1 and i == 1: seq += rd_prog()
                    if b == 1 and i == 6: seq += get_ea(p, p, (2+p)*128)
                    if b == 1 and i == 7: seq += rd_l3((3+p)*128)
                    if b == 0 and i == 5: seq.append(rd_l2(vOa, (2+p)*128))
                    if b == 1 and i == 2: seq += oh_idx(p)
            elif kind == "F":
                seq += ld_raw(p, b, 2*i) + ld_raw(p, b, 2*i+1)
                if b == 1 and i & 1: seq.append(rd_addr((3+p)*128, i >> 1))
                if OPT.get("burst"):
                    if p == 0 and b == 0 and i == 0: seq += rd_l3(3*128) + rd_l3(4*128, vOa)
                    if p == 0 and b == 0 and i == 4: seq = dma_ea(1) + dma_ea(2, vOa) + seq
                else:
                    if b == 0 and i == 1: seq += rd_l3((3+p)*128)
                    if b == 1 and i == 0: seq = dma_ea(q) + seq
                if b == 1 and i == 1: seq += rd_prog()
                if b == 1 and i == 6: seq += get_ea(p, p, (2+p)*128, (2,) if (OPT.get('burst') and p == 0) else ())
                if b == 0 and i == 5: seq.append(rd_l2(vOa, (2+p)*128))
                if b == 1 and i == 2: seq += oh_idx(p)
            pre = [W("l")] if i % WE == 0 else []
            if cur["r"] == "P" and kind != "L":
                if (b, i) == (0, 0): pre.append("s_setprio 2")
                if (b, i) == divmod(int(OPT.get("fair", "12")), 8): pre.append("s_setprio 0")
            if i < 6:
                take = 2 if (len(bigs) - nb) > (6 - i) else 1
                if nb < len(bigs): pre += bigs[nb]; nb += 1
                if take == 2 and nb < len(bigs):
                    seq = seq[:6] + bigs[nb] + seq[6:]; nb += 1
            if smalls and i >= 5:
                k0, k1 = {5: (0, 2), 6: (2, 6), 7: (6, 8)}[i]
                sm = smalls[k0:k1]
                if i == 5: seq = seq[:4] + [W("v")] + zipl(sm, seq[4:])
                else: seq = zipl(sm, seq)
            out += pre + seq
        assert nb == len(bigs)
        return out
    def last(p, np_):
        n = f"{p}{cur['r']}{np_}"
        return ([f"K2_LAST{n}:"] + ([] if XE else ld_xr()) + slot(p, 0, "L", np_=np_) + ["s_nop 11"]*(np_ < 6) + slot(p, 1, "L", np_=np_, npg=np_)
                + ["s_nop 1"] + [mG(p, 1, j) for j in range(np_//2)])
    def body(p, kind):
        q = 1-p; n = f"{kind}{p}{cur['r']}"
        o0 = [f"K2_BODY{n}:"] + slot(p, 0, kind)
        o1 = [f"K2_MID{n}:"] + (ld_xr() if kind == "L" else []) + slot(p, 1, kind)
        if OPT.get("prof") == "7": o1 += ["s_mov_b32 m0, s98", "s_add_u32 s98, s98, 1", f"v_writelane_b32 v{UR+5}, s86, m0", "s_memrealtime s[86:87]"]
        if kind == "P":
            for np_ in (2, 4, 6): o1 += [f"s_cmp_eq_u32 s{stail}, {np_}", f"s_cbranch_scc1 K2_LAST{q}{cur['r']}{np_}"]
        if kind == "F":
            if p == 1: o1 += [f"v_add_u32 v{r_}, 256, v{r_}" for r_ in ((vA1, vA2, vA3) if cur["r"] == "P" else (vA1, vA2))]
            o1 += [f"s_sub_u32 s{scount}, s{scount}, 1", f"s_cmp_eq_u32 s{scount}, 2", f"s_cbranch_scc1 K2_BODYP{q}{cur['r']}"]
        return o0, o1
    def entry_short(kind):
        more = kind != "L"
        o = rd_prog() + [W("v"), W("l")] + get_ea(0, 0, 0)
        if more: o += rd_prog() + rd_l3(128)
        o += [W("l"), "@STAMP", mE(0, 0), mA(0, 0), mE(0, 1), mA(0, 1)]
        o += (dma_ea(1, check=False) if more else []) + ["s_nop 7", W("v")] + mP(0, 0) + ["s_nop 3"]
        for i in range(8):
            v_, l_ = idx_pair(0, 0, i)
            o += [W("l")] + ([v_[0], v_[1], "s_nop 0"] + v_[2:] if i < NTB[0] else v_) + l_
            if more:
                if i < 4:
                    for r_ in range(4*i, 4*i+4): o += ld_raw(1, 0, r_)
                if i == 6: o += [W("v")] + get_ea(1, 1, 128)
                if i == 7 and kind == "F": o += rd_l3(256)
            if i == 3: o += [W("v")] + mP(0, 1)
        return o + slot(0, 0, kind, acc=False) + [f"s_branch K2_MID{kind}0{cur['r']}"]
    def entry(kind):
        if SH: return entry_short(kind)
        more = kind != "L"
        o = rd_prog() + [W("v"), W("l")] + get_ea(0, 0, 0)
        if more: o += rd_prog()
        o += [W("l"), "@STAMP", mE(0, 0), mA(0, 0), mE(0, 1), mA(0, 1), "s_nop 7", W("v")] + mP(0, 0) + ["s_nop 3"]
        for i in range(8):
            v_, l_ = idx_pair(0, 0, i)
            o += [W("l")] + ([v_[0], v_[1], "s_nop 0"] + v_[2:] if i < NTB[0] else v_) + l_
            if more:
                for r_ in range(4*(i & 3), 4*(i & 3)+4): o += ld_raw(1, i >> 2, r_)
                if i >= 4: o.append(rd_addr(256, i-4))
                if i == 4: o += [W("v")] + get_ea(1, 1, 128) + rd_l3(256)
                if i == 7: o += dma_ea(0)
            if i == 3: o += [W("v")] + mP(0, 1)
        return o + slot(0, 0, kind, acc=False) + [f"s_branch K2_MID{kind}0{cur['r']}"]
    def drain(p): return ["s_nop 1"] + [mG(p, 1, j) for j in range(4)]
    def mk_fill():
        ad = [rd_addr(0, j) for j in range(4)]
        t0 = SP
        o = []
        if cur["r"] == "P":
            o = (rd_l3(0) + [f"ds_read_b32 v{t0}, v{vA3} offset:{L2+128}"])
        o += ad + [rd_l2(vOa, 0), rd_l2(t0+1, 128)]
        if cur["r"] == "P":
            o += ["s_waitcnt lgkmcnt(6)"] + dma_ea(0) + [f"v_mov_b32 v{vEa}, v{t0}"]
        d1 = dma_ea(1) if not SH else []
        late1 = OPT.get("d1", "1") == "1"
        o += ([] if late1 else d1) + ["s_waitcnt lgkmcnt(0)"] + ld_blk(0, 0) + oh_idx(0) + [f"v_mov_b32 v{vOa}, v{t0+1}"] + oh_idx(1) + ld_blk(0, 1) + (d1 if late1 else [])
        return o + [rd_addr(128, j) for j in range(4)]
    FI, B, EN, LA_ = {}, {}, {}, {}
    for r in "PC":
        cur["r"] = r
        if r == "C" and OPT.get("ntc"): NTB[:] = [int(c_) for c_ in OPT["ntc"]]
        FI[r] = mk_fill()
        for k in "FPL":
            EN[r, k] = entry(k)
            for p in range(2): B[r, p, k] = body(p, k)
        for p in range(2):
            for np_ in (2, 4, 6, 8): LA_[r, p, np_] = last(p, np_)
    def trace(r, cnt, np_=8):
        kinds = ["F"]*(cnt-2) + ["P", "L"][-min(cnt, 2):]
        tr = FI[r] + EN[r, kinds[0]] + B[r, 0, kinds[0]][1]
        for t in range(1, cnt-1): tr += B[r, t & 1, kinds[t]][0] + B[r, t & 1, kinds[t]][1]
        tr += drain(0) if cnt == 1 else LA_[r, (cnt-1) & 1, np_]
        o = []; keep = True; nd = 0
        for x in tr:
            if x == "@D{": keep = nd < cnt; nd += 1
            elif x == "@}": keep = True
            elif keep and x != "@STAMP": o.append(x)
        return o
    epi_head = ["s_branch x", "s_cmp", "s_cbranch", "s_waitcnt vmcnt(0) lgkmcnt(0)"] + [f"v_add_f32 v{G+r_}, 0, v{XR}" for r_ in range(24)] + [f"v_add_f32 v{ACC+r_}, 0, v{ACC+r_}" for r_ in range(32)]
    cases = [(r, c, n_) for c in range(1, 9) for r in "PC" for n_ in (2, 4, 6, 8)]
    need = asmsim.solve_waits([trace(*c) for c in cases])
    for c in cases: asmsim.check_hazards(asmsim.apply_waits(trace(*c), need) + epi_head, f"case {c}")
    def emit(l):
        for x in asmsim.apply_waits(l, need):
            if x == "@STAMP":
                stamp(a, 5); stamp(a, 5, "3"); stamp(a, 7, "4")
                if OPT.get("prof") == "7": a("s_memrealtime s[86:87]\ns_mov_b32 s98, 1")
                if OPT.get("prof") == "3": a(f"s_memtime s[86:87]\ns_mov_b32 s90, s{scount}\ns_getreg_b32 s92, hwreg(HW_REG_HW_ID)")
            elif x[0] != "@": a(x.split(";")[0] or "s_nop 0")
    def main_loop(r):
        a(f"""
        K2_GO{r}:
        s_cmp_eq_u32 s{scount}, 0
        s_cbranch_scc1 K2_EMPTY
        s_cmp_gt_u32 s{scount}, 2
        s_cbranch_scc1 K2_ENTF{r}
        s_cmp_eq_u32 s{scount}, 2
        s_cbranch_scc1 K2_ENTP{r}
        """)
        emit(EN[r, "L"]); a(f"K2_ENTP{r}:"); emit(EN[r, "P"]); a(f"K2_ENTF{r}:"); emit(EN[r, "F"])
        a(".p2align 6")
        for _ in range(int(OPT.get("pad", "0"))): a("s_nop 0")
        for p in range(2): emit(B[r, p, "F"][0] + B[r, p, "F"][1])
        a(f"s_branch K2_BODYF0{r}")
        emit(B[r, 0, "L"][1] + drain(0)); a("s_branch K2_DONE")
        for p in range(2):
            for np_ in (2, 4, 6): emit(LA_[r, p, np_]); a("s_branch K2_DONE")
        for p in range(2):
            emit(B[r, p, "P"][0] + B[r, p, "P"][1] + LA_[r, 1-p, 8])
            if p == 0 or r == "P": a("s_branch K2_DONE")
    def fill(n):
        a(f"s_cmp_eq_u32 s{scount}, 0\ns_cbranch_scc1 K2_FILLED{n}")
        emit(FI[n])
        a(f"K2_FILLED{n}:")
    def ap_addr():
        a(f"""
        v_bfe_u32 v{vt}, v0, 2, 2
        v_lshrrev_b32 v{vt+1}, 1, v{vH16}
        v_add_u32 v{vt}, v{vt}, v{vt+1}
        v_mul_u32_u24 v{vt}, {ROWP}, v{vt}
        v_bfe_u32 v{vt+2}, v0, 4, 1
        v_lshl_add_u32 v{vt}, v{vt+2}, 5, v{vt}
        v_and_b32 v{vt+2}, 3, v0
        v_lshl_add_u32 v{vt}, v{vt+2}, 3, v{vt}
        s_mul_i32 s{st0}, s{sg}, {GN*ROWP}
        s_lshl_b32 s{st1}, s{sfh}, 7
        s_add_u32 s{st0}, s{st0}, s{st1}
        v_add_u32 v{vt}, s{st0}, v{vt}
        v_mul_u32_u24 v{vt+1}, {ROWP//2}, v{vt+1}
        v_and_b32 v{vt+2}, 127, v{vO}
        v_add3_u32 v{vt+1}, v{vt+2}, s{st0}, v{vt+1}
        """)
    def ap_read():
        a(f"""
        ds_read_b64_tr_b16 {vr(AP,2)}, v{vt} offset:{APL}
        ds_read_b64_tr_b16 {vr(AP+2,2)}, v{vt} offset:{APL+4*ROWP}
        ds_read_b64_tr_b16 {vr(AP+4,2)}, v{vt} offset:{APL+64}
        ds_read_b64_tr_b16 {vr(AP+6,2)}, v{vt} offset:{APL+4*ROWP+64}
        """)
        for r in range(6): a(f"ds_read_b32 v{UR+r}, v{vt+1} offset:{UL+ROWP*rowoff(r)}")
    def init_addr():
        for r in range(16): a(f"v_mov_b32 v{ADDR+r}, 128")
    def zero_acc():
        for r in range(32): a(f"v_mov_b32 v{ACC+r}, 0")

    a(f"s_cmp_lg_u32 s{sfh}, 0\ns_cbranch_scc1 K2_LOADER")
    if OPT.get("sp"): a(f"s_setprio {OPT['sp']}")
    ld_wc()
    a.ext(common1(SP, vt))
    a(f"v_and_b32 v{vt+3}, 15, v0\nv_lshlrev_b32 v{vt+3}, 4, v{vt+3}\nv_bfe_u32 v{vt+4}, v0, 4, 2\nv_lshl_add_u32 v{vt+3}, v{vt+4}, 10, v{vt+3}\ns_lshl_b32 s{st0}, s{sg}, 8\nv_add_u32 v{vt+3}, s{st0}, v{vt+3}")
    a(f"v_add_u32 v{vt+4}, 40960, v{vt+3}")
    for val, rg, runs in ((0x3f003f00, EA, (0, 3, 32, 35)), (0, EA+4, (23, 27)), (0x3f803f80, OH, (51, 55, 59))):
        for j in range(4): a(f"v_mov_b32 v{rg+j}, {val:#x}")
        for c0 in runs:
            a(f"ds_write_b128 v{vt+4 if c0 >= 24 else vt+3}, {vr(rg,4)} offset:{LUTL + 1024*(c0 - (40 if c0 >= 24 else 0))}")
    a(f"""
    v_and_b32 v{vt+3}, 127, v0
    v_bfe_u32 v{vt+4}, v0, 2, 4
    v_and_b32 v{Z+4}, 3, v0
    v_lshrrev_b32 v{Z+5}, 6, v{vt+3}
    v_lshlrev_b32 v{vt+3}, 2, v{vt+3}
    v_lshl_add_u32 v{Z+4}, v{Z+5}, 2, v{Z+4}
    v_lshlrev_b32 v{Z+5}, 1, v{Z+4}
    v_mov_b32 v{Z+6}, 0x3780
    v_mov_b32 v{Z+7}, 0x37800000
    v_cmp_eq_u32 vcc, v{Z+5}, v{vt+4}
    v_add_u32 v{Z+5}, 1, v{Z+5}
    s_nop 0
    v_cndmask_b32 v{Z+8}, 0, v{Z+6}, vcc
    v_cmp_eq_u32 vcc, v{Z+5}, v{vt+4}
    s_nop 1
    v_cndmask_b32 v{Z+9}, 0, v{Z+7}, vcc
    v_or_b32 v{Z+8}, v{Z+8}, v{Z+9}
    v_cmp_gt_u32 vcc, 15, v{vt+4}
    s_nop 1
    v_cndmask_b32 v{Z+8}, 0, v{Z+8}, vcc
    ds_write_b32 v{vt+3}, v{Z+8} offset:{OHL}
    """)
    a(f"""
    v_mul_u32_u24 v{EOFF}, {CS*32}, v{vt+1}
    v_add_u32 v{EOFF+1}, {64*CS*32}, v{EOFF}
    v_mov_b32 v{vt+3}, 4
    """)
    init_addr()
    a(f"s_waitcnt vmcnt({2 + (TP0 > 0)})")
    stamp(a, 2); stamp(a, 1, "5")
    if OPT.get("half", "0") == "1":
        for u in range(2): a(f"v_mov_b32_dpp v{vt+8+u}, v{REC+4*u+3} quad_perm:[3,3,3,3] row_mask:0xf bank_mask:0xf")
        for u in range(2): a(f"v_cmp_eq_u32 {sr(68+2*u,2)}, -1, v{vt+8+u}")
        a("s_nop 0")
        for u in range(2):
            for i in range(4): a(f"v_cndmask_b32 v{REC+8+4*u+i}, v{REC+8+4*u+i}, -1, {sr(68+2*u,2)}")
    a(f"""
    v_cmp_eq_u32 vcc, -2, v{REC+11}
    v_cmp_eq_u32 s[78:79], -2, v{REC+15}
    s_or_b64 vcc, vcc, s[78:79]
    s_cbranch_vccz K2_NOOVF
    v_mov_b32 v{vt+4}, 0x10000
    v_mov_b32 v{vt}, 60
    ds_add_u32 v{vt}, v{vt+4} offset:{CNT}
    K2_NOOVF:
    """)
    M = [68, 70, 72, 74, 76, 78]
    KS = [[4*u+i for i in range(4)] + [8+4*u, 9+4*u] for u in range(2)]
    def masked(u, fn):
        for j, k in enumerate(KS[u]): a(f"v_cmp_gt_u32 {sr(M[j],2)}, -2, v{REC+k}")
        for j, k in enumerate(KS[u]): a(f"s_mov_b64 exec, {sr(M[j],2)}\n{fn(k, 6*u+j)}")
        a("s_mov_b64 exec, -1")
    for k in KS[0] + KS[1]: a(caddr(k))
    for u in range(2): masked(u, lambda k, j: f"ds_add_rtn_u32 v{RANK+k}, v{CADDR+k}, v{vt+3} offset:{CNT}")
    a(f"v_min_u32 v{vt+4}, v{REC+10}, v{REC+14}\nv_cmp_gt_u32 s[26:27], -2, v{vt+4}")
    def steps(tag, fn):
        a(f"s_cmp_eq_u64 s[26:27], 0\ns_cbranch_scc1 K2_{tag}1\ns_waitcnt lgkmcnt(0)")
        for u in range(2):
            for k in (10+4*u, 11+4*u):
                a(f"v_cmpx_gt_u32 vcc, -2, v{REC+k}\ns_cbranch_execz K2_{tag}{u}")
                fn(k, u)
            a(f"K2_{tag}{u}:\ns_mov_b64 exec, -1")
    steps("C", lambda k, u: a(f"{caddr(k)}\nds_add_rtn_u32 v{RANK+k}, v{CADDR+k}, v{vt+3} offset:{CNT}"))
    arrive(0)
    stamp(a, 2, "5")
    LA, LB = raw(0, 0), raw(0, 1)
    for u in range(2):
        for j, k in enumerate(KS[u]):
            a(f"v_bfe_u32 v{LA+6*u+j}, v{REC+k}, 16, {5 if 't' in OPT.get('nomem','') else 14}\nv_mad_u32_u16 v{LB+6*u+j}, v{REC+k}, 2, v{EOFF+u}")
    NBK = int(OPT.get("nbk", "0"))
    if NBK:
        for u in range(2):
            for j, k in enumerate(KS[u]): a(f"v_and_b32 v{vt+8}, 0x3c, v{CADDR+k}\nv_cmp_gt_u32 {sr(M[j],2)}, {4*NBK}, v{vt+8}")
            for j, k in enumerate(KS[u]): a(f"s_mov_b64 exec, {sr(M[j],2)}\nbuffer_load_ubyte v{vt+12}, v{LB+6*u+j}, {sr(sE,4)}, 0 offen")
            a("s_mov_b64 exec, -1")
    for j in range(12): a(f"v_mul_u32_u24 v{LA+j}, s{csrc}, v{LA+j}")
    spin(0, "A", add=False)
    stamp(a, 3, "5")
    scan(True, KS[0] + KS[1])
    a("s_waitcnt lgkmcnt(1)")
    stamp(a, 4, "5")
    for j, k in enumerate(KS[0] + KS[1]): a(f"v_add_u32 v{STV+j}, v{STV+j}, v{RANK+k}")
    for j, k in enumerate(KS[0] + KS[1]): a(f"v_lshlrev_b32 v{RANK+k}, 3, v{STV+j}")
    for j, k in enumerate(KS[0] + KS[1]): a(f"v_and_or_b32 v{LA+j}, v{RANK+k}, s{c128}, v{LA+j}")
    for u in range(2): masked(u, lambda k, j: f"ds_write2st64_b32 v{STV+j}, v{LA+j}, v{LB+j} offset0:{L1//256} offset1:{L2//256}")
    def put_step(k, u):
        a(f"ds_read_b32 v{STV+12}, v{CADDR+k} offset:{START}\ns_waitcnt lgkmcnt(0)")
        place(k, STV+12, EOFF+u)
    steps("P", put_step)
    arrive(1)
    stamp(a, 5, "5")
    lane_setup()
    stamp(a, 6, "5")
    if OPT.get("order", "1") == "1":
        a(f"""
        v_mov_b32 v{vt+6}, {FLG+4}
        K2_SPINB:
        ds_read2_b32 {vr(vt+8,2)}, v{vt+6} offset0:0 offset1:1
        s_waitcnt lgkmcnt(0)
        v_min_u32 v{vt+7}, v{vt+8}, v{vt+9}
        v_cmp_gt_u32 vcc, 4, v{vt+7}
        s_cbranch_vccnz K2_SPINB
        """)
    else: spin(1, "B", add=False)
    stamp(a, 3); stamp(a, 7, "5")
    a("K2_REFILLP:")
    fill("P")
    stamp(a, 4)
    a(f"s_cmp_lg_u32 s{sslow}, 0\ns_cbranch_scc1 K2_GOP")
    zero_acc()
    ap_addr()
    spin(3, "D", add=False)
    ap_read()
    main_loop("P")
    a("K2_GIVEUP:")
    arrive(1)
    spin(3, "E", add=False)
    a("s_branch K2_SLOW")
    assert XL % 256 == 0
    XF = G; WT = [ACC, raw(0, 0)]
    accs = [[[raw(1,0)+8*nb, raw(1,0)+8*nb+4] for nb in range(3)], [[raw(1,1)+8, raw(1,1)+12], [SP, SP+4], [SP+8, ADDR]]]
    a(f"""
    K2_LOADER:
    v_lshrrev_b32 v{vt+4}, 4, v{vt}
    s_lshl_b32 s{st1}, s{sg}, 2
    v_add_u32 v{vA1}, s{st1}, v{vt+4}
    v_and_b32 v{vt+5}, 15, v0
    v_xor_b32 v{vA1}, v{vA1}, v{vt+5}
    v_lshlrev_b32 v{vA1}, 4, v{vA1}
    v_lshl_add_u32 v{vA1}, v{vt+4}, 8, v{vA1}
    s_lshl_b32 s{st1}, s{sg}, 10
    """)
    if OPT.get("nobulk"):
        ld_wc()
        a.ext(common1(XR+1, vt))
        a(f"v_and_b32 v{vt+2}, 255, v0\nv_lshlrev_b32 v{vt+2}, 4, v{vt+2}")
        for j in range(4): a(f"v_mov_b32 v{EA+j}, 0")
        for j in range(4): a(f"ds_write_b128 v{vt+2}, {vr(EA,4)} offset:{APL+4096*j}")
        arrive(2); arrive(3)
        a("s_branch K2_NOBULK")
    for k in range(3):
        a(f"""
        s_add_u32 m0, s{st1}, {XL+4096*k}
        s_add_u32 s{st2}, s{st1}, {4096*k}
        buffer_load_dwordx4 v{vA1}, {sr(sX,4)}, s{st2} offen lds
        """)
    stamp(a, 1, "6")
    srot = sk
    a(f"s_lshl_b32 s{slut}, s{sg}, 13\ns_lshr_b32 s{srt}, s2, 3")
    for j in range(4):
        a(f"s_add_u32 s{srot+j}, s{srt}, {j}\ns_and_b32 s{srot+j}, s{srot+j}, 3\ns_lshl_b32 s{srot+j}, s{srot+j}, 10\ns_add_u32 s{st2}, s{slut}, s{srot+j}")
        for m in range(2):
            for hf in range(2):
                a(f"buffer_load_dwordx4 {vr(WT[m]+16*hf+4*j,4)}, v{vA2}, {sr(sWT,4)}, s{st2} offen")
                if (m, hf) != (1, 1): a(f"s_add_u32 s{st2}, s{st2}, {4096 if hf == 0 else 32768-4096}")
    stamp(a, 2, "6")
    a(f"""
    s_lshl_b32 s{st0}, s{sg}, 12
    s_add_u32 m0, s{st0}, {LUTL + 7*1024}
    s_add_u32 s{st2}, s{st0}, {LUT_OFF - WT_OFF + 7*1024}
    """)
    for j in range(4): a(f"buffer_load_dwordx4 v{vA2}, {sr(sWT,4)}, s{st2} offen offset:{1024*j} lds")
    a(f"""
    s_mul_i32 s{st0}, s{sg}, 3072
    s_add_u32 m0, s{st0}, {LUTL + 39*1024}
    s_add_u32 s{st2}, s{st0}, {LUT_OFF - WT_OFF + 39*1024}
    """)
    for j in range(3): a(f"buffer_load_dwordx4 v{vA2}, {sr(sWT,4)}, s{st2} offen offset:{1024*j} lds")
    a(f"""
    s_and_b32 s{st0}, s{sg}, 1
    s_lshl_b32 s{st0}, s{st0}, 15
    s_add_u32 m0, s{st0}, {LUTL + 31*1024}
    s_add_u32 s{st2}, s{st0}, {LUT_OFF - WT_OFF + 31*1024}
    buffer_load_dwordx4 v{vA2}, {sr(sWT,4)}, s{st2} offen lds
    """)
    ld_wc()
    stamp(a, 3, "6")
    a(f"""
    s_waitcnt vmcnt(26)
    """)
    arrive(2)
    a(f"""
    v_mov_b32 v{vt+8}, v{vt}
    v_and_b32 v{vt}, 15, v0
    v_bfe_u32 v{vt+1}, v0, 4, 2
    v_xor_b32 v{vt+2}, v{vt}, v{vt+1}
    v_lshlrev_b32 v{vt+2}, 4, v{vt+2}
    v_lshl_add_u32 v{vt+2}, v{vt}, 8, v{vt+2}
    v_add_u32 v{vt+2}, {XL}, v{vt+2}
    v_mul_u32_u24 v{vt}, {ROWP}, v{vt}
    """)
    stamp(a, 2); stamp(a, 5, "6")
    spin(2, "C", add=False)
    stamp(a, 6, "6")
    for s in range(4):
        a(f"s_lshr_b32 s{st0}, s{srot+s}, 4\nv_xor_b32 v{vt+3}, s{st0}, v{vt+2}")
        for nb in range(3):
            a(f"ds_read_b128 {vr(XF+16*nb+4*s,4)}, v{vt+3} offset:{4096*nb}")
    a(f"""
    s_lshr_b32 s{st0}, s{sg}, 1
    s_lshl_b32 s{st0}, s{st0}, 7
    s_and_b32 s{st1}, s{sg}, 1
    s_lshl_b32 s{st1}, s{st1}, 5
    s_add_u32 s{st0}, s{st0}, s{st1}
    v_lshl_add_u32 v{vt+4}, v{vt+1}, 3, v{vt}
    v_add_u32 v{vt+4}, s{st0}, v{vt+4}
    s_lshl_b32 s{st0}, s{sg}, 6
    v_lshl_add_u32 v{vt+5}, v{vt+1}, 3, v{vt}
    v_add_u32 v{vt+5}, s{st0}, v{vt+5}
    """)
    def mm1(m, s):
        return [f"v_mfma_f32_16x16x32_bf16 {vr(accs[m][nb][ab], 4)}, {vr(WT[m]+16*ab+4*s,4)}, {vr(XF+16*nb+4*s,4)}, {'0' if s == 0 else vr(accs[m][nb][ab], 4)}"
                for nb in range(3) for ab in range(2)]
    outA = []
    for nb in range(3):
        al, be = accs[0][nb]; o = EA+ (0 if nb != 1 else 4)
        for i in range(4): outA += [f"v_mul_f32 v{al+i}, s{cnl2e}, v{al+i}", f"v_mul_f32 v{be+i}, s{cnl2e}, v{be+i}"]
        outA += [f"v_cvt_pk_bf16_f32 v{o}, v{al}, v{al+2}", f"v_cvt_pk_bf16_f32 v{o+1}, v{be}, v{be+2}",
                 f"v_cvt_pk_bf16_f32 v{o+2}, v{al+1}, v{al+3}", f"v_cvt_pk_bf16_f32 v{o+3}, v{be+1}, v{be+3}",
                 f"ds_write_b64 v{vt+4}, {vr(o,2)} offset:{APL+16*ROWP*nb}", f"ds_write_b64 v{vt+4}, {vr(o+2,2)} offset:{APL+16*ROWP*nb+64}"]
    NPF = int(OPT.get("tpf", "0"))
    if NPF:
        srd(a, sS, 14, T_OFF, N*TS)
        a(f"""
        s_bfe_u32 s{st0}, s2, 0x50003
        s_lshl_b32 s{st0}, s{st0}, 2
        s_add_u32 s{st0}, s{st0}, s{sg}
        s_lshl_b32 s{st0}, s{st0}, 13
        v_lshlrev_b32 v{vt+9}, 7, v{vt+8}
        """)
        for j in range(NPF):
            a(f"buffer_load_dword v{vt+10}, v{vt+9}, {sr(sS,4)}, s{st0} offen")
            if j+1 < NPF: a(f"s_add_u32 s{st0}, s{st0}, {1 << 20}")
    g = []; cm = common1(XR+1, vt+8); k = 0
    for s in range(4):
        g.append(f"s_waitcnt vmcnt({22-4*s+NPF}) lgkmcnt({9-3*s})")
        for x in mm1(0, s) + (mm1(1, s) if s < 3 else []):
            g.append(x); g += cm[k:k+3]; k += 3
    assert k >= len(cm)
    k = 0
    for j, x in enumerate(mm1(1, 3)):
        g.append(x)
        if j >= 2: g += outA[k:k+3]; k += 3
    g += outA[k:]
    for nb in range(3):
        al, be = accs[1][nb]; o = XF+4*nb
        g += [f"v_cvt_pk_bf16_f32 v{o}, v{al}, v{al+1}", f"v_cvt_pk_bf16_f32 v{o+1}, v{al+2}, v{al+3}",
              f"v_cvt_pk_bf16_f32 v{o+2}, v{be}, v{be+1}", f"v_cvt_pk_bf16_f32 v{o+3}, v{be+2}, v{be+3}",
              f"ds_write_b64 v{vt+5}, {vr(o,2)} offset:{UL+16*ROWP*nb}", f"ds_write_b64 v{vt+5}, {vr(o+2,2)} offset:{UL+16*ROWP*nb+32}"]
    asmsim.check_hazards(g, "gemm")
    a.ext(g)
    a(f"s_waitcnt vmcnt({NPF})")
    arrive(3)
    a("K2_NOBULK:")
    stamp(a, 3); stamp(a, 7, "6")
    init_addr()
    spin(1, "F", add=False)
    a(f"""
    v_mov_b32 v{vt+2}, {INCL+60}
    ds_read2_b32 {vr(vt+4,2)}, v{vt+2} offset0:0 offset1:16
    ds_read2_b32 {vr(vt+6,2)}, v{vt+2} offset0:32 offset1:48
    s_waitcnt lgkmcnt(0)
    """)
    for g_ in range(4): a(f"v_readfirstlane_b32 s{sk+g_}, v{vt+4+g_}")
    a(f"""
    s_max_u32 s{st0}, s{sk}, s{sk+1}
    s_max_u32 s{st1}, s{sk+2}, s{sk+3}
    s_max_u32 s{st0}, s{st0}, s{st1}
    s_cmp_gt_u32 s{st0}, {CAPG*4}
    s_cbranch_scc1 K2_SLOW
    """)
    a("s_setprio 1")
    rank_groups()
    lane_setup()
    a("K2_REFILLC:")
    fill("C")
    a(f"s_cmp_lg_u32 s{sslow}, 0\ns_cbranch_scc1 K2_GOC")
    zero_acc()
    ap_addr()
    spin(3, "G", add=False)
    ap_read()
    stamp(a, 4)
    a("s_branch K2_GOC")
    a("K2_EMPTY:"); a.ext(ld_xr()); a("s_branch K2_DONE")
    for n in spins:
        a(f"""
        K2_SP{n}:
        ds_read_b32 v{vEa}, v{vPG}
        s_waitcnt lgkmcnt(0)
        v_cmp_gt_u32 vcc, s{sneed}, v{vEa}
        s_cbranch_vccnz K2_SP{n}
        s_branch K2_OK{n}
        """)
    main_loop("C")
    a(f"""
    K2_DONE:
    s_cmp_lg_u32 s{sslow}, 0
    s_cbranch_scc1 K2_ROUND
    K2_EPI:
    s_waitcnt vmcnt(0) lgkmcnt(0)
    """)
    stamp(a, 6); stamp(a, 6, "3")
    if OPT.get("prof") == "3": a("s_memtime s[88:89]")
    T0 = G
    if OPT.get("pke", "1") == "1":
        a(f"s_mov_b32 s{st0+1}, 0x358637bd\ns_mov_b32 s{st0+2}, 0x358637bd")
        for b in range(2):
            for r in range(6):
                u, x = T0+12*b+r, T0+12*b+6+r
                if b == 0: a(f"v_lshlrev_b32 v{u}, 16, v{UR+r}\nv_lshlrev_b32 v{x}, 16, v{XR+r}")
                else: a(f"v_and_b32 v{u}, 0xffff0000, v{UR+r}\nv_and_b32 v{x}, 0xffff0000, v{XR+r}")
        for b in range(2):
            for r in range(0, 6, 2): a(f"v_pk_add_f32 {vr(ACC+16*b+r,2)}, {vr(ACC+16*b+r,2)}, {sr(st0+1,2)}")
            for r in range(6): a(f"v_rcp_f32 v{ACC+16*b+r}, v{ACC+16*b+r}")
        for b in range(2):
            for r in range(0, 6, 2): a(f"v_pk_fma_f32 {vr(T0+12*b+r,2)}, {vr(ACC+16*b+8+r,2)}, {vr(ACC+16*b+r,2)}, {vr(T0+12*b+r,2)}")
        for b in range(2):
            for r in range(6): a(f"v_max_f32 v{T0+12*b+r}, 0, v{T0+12*b+r}")
        for b in range(2):
            for r in range(0, 6, 2): a(f"v_pk_add_f32 {vr(T0+12*b+r,2)}, {vr(T0+12*b+r,2)}, {vr(T0+12*b+6+r,2)}")
    else:
        for b in range(2):
            for r in range(6):
                a(f"v_add_f32 v{ACC+16*b+r}, 0x358637bd, v{ACC+16*b+r}")
            for r in range(6):
                a(f"v_rcp_f32 v{ACC+16*b+r}, v{ACC+16*b+r}")
            for r in range(6):
                u, x = T0+12*b+r, T0+12*b+6+r
                if b == 0: a(f"v_lshlrev_b32 v{u}, 16, v{UR+r}\nv_lshlrev_b32 v{x}, 16, v{XR+r}")
                else: a(f"v_and_b32 v{u}, 0xffff0000, v{UR+r}\nv_and_b32 v{x}, 0xffff0000, v{XR+r}")
            for r in range(6):
                u, x = T0+12*b+r, T0+12*b+6+r
                a(f"v_fmac_f32 v{u}, v{ACC+16*b+8+r}, v{ACC+16*b+r}\nv_max_f32 v{u}, 0, v{u}\nv_add_f32 v{u}, v{u}, v{x}")
    a(f"v_lshl_or_b32 v{vO2}, v{vH16}, 27, v{vO}")
    for r in range(6):
        a(f"v_cvt_pk_bf16_f32 v{SP+r}, v{T0+r}, v{T0+12+r}")
        a(f"buffer_store_dword v{SP+r}, v{vO if r < 4 else vO2}, {sr(sO,4)}, 0 offen offset:{256*rowoff(r)} {OPT.get('st_o', '')}")
    stamp(a, 7)
    stamp_out(a, 1, 14, sw, 2)
    a("K2_END:\ns_endpgm")

    a("K2_SLOW:")
    srd(a, sS, 8, None, E*4)
    srd(a, sD, 10, None, E*4)
    a(f"""
    s_mov_b32 s{sslow}, 1
    s_mov_b32 s{cm10}, {-GN}
    """)
    a("s_waitcnt vmcnt(0) lgkmcnt(0)\ns_barrier")
    zero_acc(); lane_setup(); ap_addr(); ap_read()
    a(f"""
    K2_ROUND:
    s_cmp_ge_u32 s{sround}, {E//RND}
    s_cbranch_scc1 K2_EPI
    s_mul_i32 s{st0}, s{sround}, {RND}
    s_add_u32 s{sround}, s{sround}, 1
    v_add_u32 v{EOFF}, s{st0}, v0
    v_lshlrev_b32 v{vt}, 2, v{EOFF}
    buffer_load_dword v{REC}, v{vt}, {sr(sD,4)}, 0 offen
    buffer_load_dword v{REC+1}, v{vt}, {sr(sS,4)}, 0 offen
    v_lshlrev_b32 v{EOFF}, 5, v{EOFF}
    v_and_b32 v{vt}, 63, v0
    v_lshlrev_b32 v{vt}, 3, v{vt}
    v_mov_b32 v{vt+4}, 0
    v_mov_b32 v{vt+5}, 0
    s_waitcnt lgkmcnt(0)
    s_barrier
    ds_write_b64 v{vt}, {vr(vt+4,2)} offset:{CNT}
    v_mov_b32 v{vt+3}, 4
    s_waitcnt vmcnt(0) lgkmcnt(0)
    s_barrier
    """)
    rec_fields(a, REC, REC+2, vt, cm40, cm10)
    a(f"""
    v_cmp_eq_u32 vcc, s2, v{REC+2}
    v_lshl_or_b32 v{REC}, v{REC+1}, 16, v{REC}
    {caddr(0)}
    s_mov_b64 s[78:79], vcc
    v_cmp_gt_u32 vcc, {RND}, v0
    s_and_b64 s[78:79], s[78:79], vcc
    s_mov_b64 exec, s[78:79]
    ds_add_rtn_u32 v{RANK}, v{CADDR}, v{vt+3} offset:{CNT}
    s_mov_b64 exec, -1
    s_waitcnt lgkmcnt(0)
    s_barrier
    """)
    scan(False)
    a(f"""
    s_mov_b64 exec, s[78:79]
    ds_read_b32 v{STV}, v{CADDR} offset:{START}
    s_waitcnt lgkmcnt(0)
    """)
    place(0, STV, EOFF)
    a(f"""
    s_mov_b64 exec, -1
    """)
    lane_setup()
    a(f"""
    s_waitcnt lgkmcnt(0)
    s_barrier
    s_cmp_eq_u32 s{sfh}, 0
    s_cbranch_scc1 K2_REFILLP
    s_branch K2_REFILLC
    K2_CODE_END:
    """)
    return a.text(), kd("k2_kernel", 256, 102)

KE_PROF = f"""
    s_memrealtime s[8:9]
    s_load_dwordx2 s[4:5], s[0:1], 88
    s_waitcnt lgkmcnt(0)
    s_add_u32 s4, s4, {PROF_OFF + 0x200000}
    s_addc_u32 s5, s5, 0
    s_mov_b32 s6, 4
    s_mov_b32 s7, 0x20000
    v_mov_b32 v1, s8
    v_lshlrev_b32 v0, 2, v0
    buffer_store_dword v1, v0, s[4:7], 0 offen
"""
def gen_kr():
    a = Asm()
    a(f"""
    kr_kernel:
    s_cmp_ge_u32 s2, 1
    s_cbranch_scc1 KR_END
    s_load_dwordx4 s[4:7], s[0:1], 80
    s_waitcnt lgkmcnt(0)
    s_add_u32 s8, s6, {PROF_OFF}
    s_addc_u32 s9, s7, 0
    s_mov_b32 s10, 0x200000
    s_mov_b32 s11, 0x20000
    s_mov_b32 s6, 256
    s_mov_b32 s7, 0x20000
    v_cmp_gt_u32 vcc, 250, v0
    s_and_saveexec_b64 s[12:13], vcc
    v_lshlrev_b32 v1, 10, v0
    v_mov_b32 v3, 0
    """)
    sel = [(0, 8, 0, 1), (0, 8, 0, 0), (0, 8, 2, 0), (0, 8, 3, 0), (0, 8, 5, 0), (0, 8, 8, 0),
           (1, 8, 0, 1), (1, 8, 0, 0), (1, 8, 2, 0), (1, 8, 3, 0), (1, 8, 5, 1), (1, 8, 5, 0), (1, 8, 6, 1), (1, 8, 6, 0), (1, 8, 8, 0)]
    w0 = 0
    if OPT.get("krsel"):
        w0, st_, mn_ = [int(x) for x in OPT["krsel"].split(",")]
        sel = [(1, 4, 0, 1), (1, 4, st_, mn_)]
    for j, (kn, nw, st, mn) in enumerate(sel):
        a(f"s_mov_b32 s14, {kn*0x100000 + 64*w0}")
        for w in range(nw): a(f"buffer_load_dword v{10+w}, v1, s[8:11], s14 offen offset:{64*w+4*st}")
        a("s_waitcnt vmcnt(0)")
        if mn:
            for w in range(nw): a(f"v_not_b32 v{10+w}, v{10+w}")
        for w in range(1, nw): a(f"v_max_u32 v10, v10, v{10+w}")
        a(f"buffer_atomic_umax v10, v3, s[4:7], 0 offen offset:{4*j}\ns_waitcnt vmcnt(0)")
    if OPT.get("iv"):
        ja, jb, k = [int(x) for x in OPT["iv"].split(",")]
        a(f"""
        s_barrier
        buffer_load_dword v10, v3, s[4:7], 0 offen offset:{4*ja} sc0 sc1
        buffer_load_dword v11, v3, s[4:7], 0 offen offset:{4*jb} sc0 sc1
        s_waitcnt vmcnt(0)
        v_readfirstlane_b32 s16, v10
        v_readfirstlane_b32 s17, v11
        """)
        if sel[ja][3]: a("s_not_b32 s16, s16")
        if sel[jb][3]: a("s_not_b32 s17, s17")
        a(f"""
        s_sub_u32 s16, s16, s17
        s_min_u32 s16, s16, 10000
        s_mul_i32 s16, s16, {k}
        s_memrealtime s[18:19]
        s_waitcnt lgkmcnt(0)
        KR_SPIN:
        s_memrealtime s[20:21]
        s_waitcnt lgkmcnt(0)
        s_sub_u32 s20, s20, s18
        s_cmp_lt_u32 s20, s16
        s_cbranch_scc1 KR_SPIN
        """)
    a("KR_END:\ns_endpgm")
    return a.text()

DOC = """;
; k1: bins the edges by destination (128 chunks x 256 bins, 32 slots a segment), builds the node table
;     T = (x@w_v : -log2e * x@w_b) as bf16 pairs, MFMA-ready weight fragments and a sigmoid table indexed by f16 bits.
;     rescan of the raw edge list.
"""
def main():
    k1, d1 = gen_k1(); k2, d2 = gen_k2()
    ref = open("standalone__edge_featured_mpnn_gatedgcn__graph.s.ref").read().split("\n")
    out = "\n".join(ref[:13]) + "\n"
    for ch in OPT.get("list", "12"):
        if ch == "1": out += f"; @launch kernel=k1_kernel grid=({2*NCH},1,1) block=(512,1,1) lds={K1_LDS}\n"
        if ch == "2": out += f"; @launch kernel=k2_kernel grid=({NBIN},1,1) block=(512,1,1) lds={K2_LDS}\n"
        if ch == "r": out += "; @launch kernel=kr_kernel grid=(1,1,1) block=(256,1,1) lds=0\n"
        if ch == "e": out += "; @launch kernel=ke_kernel grid=(1,1,1) block=(64,1,1) lds=0\n"
    out += DOC
    out += '.amdgcn_target "amdgcn-amd-amdhsa--gfx950"\n.text\n'
    for n, k in (("k1_kernel", k1), ("k2_kernel", k2)):
        out += f".globl {n}\n.p2align 8\n.type {n},@function\n" + k
    if "e" in OPT.get("list", ""): out += ".globl ke_kernel\n.p2align 8\n.type ke_kernel,@function\nke_kernel:\n" + (KE_PROF if OPT.get("prof") else "") + "    s_endpgm\n"
    if "r" in OPT.get("list", ""): out += ".globl kr_kernel\n.p2align 8\n.type kr_kernel,@function\n" + gen_kr()
    out += '.section .rodata,"a"\n.p2align 6\n' + d1.lstrip("\n") + '.p2align 6\n' + d2.lstrip("\n")
    if "e" in OPT.get("list", ""): out += '.p2align 6\n' + kd("ke_kernel", 8, 16).lstrip("\n")
    if "r" in OPT.get("list", ""): out += '.p2align 6\n' + kd("kr_kernel", 32, 32).lstrip("\n")
    open(sys.argv[1], "w").write(out)

if __name__ == "__main__":
    main()
```

```python
import struct, sys
import asmsim

N = 10000; E = 320000
NCH = 128; CS = 2500
NBIN = 256; GN = 10
BINK, BINC, BINS = 53687, 52500, 21
assert all((625*b_ >> 4) <= d_ < (625*(b_+1) >> 4) for d_ in range(N) for b_ in [(d_*BINK + BINC) >> BINS])
CAP = 32
TS = int(([a for a in sys.argv if a.startswith('ts=')] or ['ts=512'])[0][3:])
T_OFF = 0x1000000
REC_OFF = 0x700000
WT_OFF = 0xB00000
LUT_OFF = 0xB20000
PROF_OFF = 0xF000000
NL2E = struct.unpack("<I", struct.pack("<f", -1.4426950408889634))[0]

def bf(x): return struct.unpack("<I", struct.pack("<f", x))[0] >> 16

OPT = dict(st_r="sc1", st_t="sc1")
for a in sys.argv[2:]:
    k, v = a.split("=", 1); OPT[k] = v

class Asm:
    def __init__(self): self.l = []
    def __call__(self, s):
        for x in s.strip("\n").split("\n"):
            x = x.strip()
            if not x: continue
            if x.startswith(";"): x = "s_nop 0"
            self.l.append(x if x.endswith(":") else "    " + x)
    def ext(self, lst):
        for x in lst: self(x)
    def text(self): return "\n".join(self.l) + "\n"

def stamp(a, i, lvl="1"):
    if OPT.get("prof") and (i in (0, 8) or OPT["prof"] == lvl): a(f"s_memrealtime s[{84+2*i}:{85+2*i}]")
def stamp_out(a, kern, wsreg, sw, vtmp):
    if not OPT.get("prof"): return
    if not (OPT.get("nowait") and kern == 0): a("s_waitcnt vmcnt(0)")
    stamp(a, 8)
    a(f"""
    s_lshl_b32 s4, s2, 4
    s_add_u32 s4, s4, s{sw}
    s_lshl_b32 s4, s4, 6
    s_add_u32 s4, s4, {PROF_OFF + kern*0x100000}
    s_add_u32 s4, s{wsreg}, s4
    s_addc_u32 s5, s{wsreg+1}, 0
    s_mov_b32 s6, 64
    s_mov_b32 s7, 0x20000
    s_waitcnt lgkmcnt(0)
    """)
    if kern == 1 and OPT["prof"] == "7":
        a(f"v_mov_b32 v{vtmp}, v251\nv_writelane_b32 v{vtmp}, s84, 0\ns_mov_b32 m0, s98\ns_add_u32 s98, s98, 1\nv_writelane_b32 v{vtmp}, s86, m0\ns_mov_b32 m0, s98\ns_nop 3\nv_writelane_b32 v{vtmp}, s100, m0\nv_writelane_b32 v{vtmp}, s98, 15")
    else:
        for i in range(9): a(f"v_writelane_b32 v{vtmp}, s{84+2*i}, {i}")
    a(f"""
    v_mbcnt_lo_u32_b32 v{vtmp+1}, -1, 0
    v_mbcnt_hi_u32_b32 v{vtmp+1}, -1, v{vtmp+1}
    v_lshlrev_b32 v{vtmp+1}, 2, v{vtmp+1}
    buffer_store_dword v{vtmp}, v{vtmp+1}, s[4:7], 0 offen
    """)

def vr(b, n): return f"v[{b}:{b+n-1}]"
def sr(b, n): return f"s[{b}:{b+n-1}]"

def srd(a, d, base, add=None, size=None, w3="0x20000", hi_or=None):
    if add is None:
        a(f"s_mov_b32 s{d}, s{base}\ns_mov_b32 s{d+1}, s{base+1}")
    else:
        a(f"s_add_u32 s{d}, s{base}, {add}\ns_addc_u32 s{d+1}, s{base+1}, 0")
    if hi_or: a(f"s_or_b32 s{d+1}, s{d+1}, {hi_or}")
    a(f"s_mov_b32 s{d+2}, {size}\ns_mov_b32 s{d+3}, {w3}")

def kd(name, vgpr, sgpr):
    return f"""
.amdhsa_kernel {name}
  .amdhsa_next_free_vgpr {vgpr}
  .amdhsa_next_free_sgpr {sgpr}
  .amdhsa_accum_offset {(vgpr+3)//4*4}
  .amdhsa_group_segment_fixed_size 0
  .amdhsa_kernarg_size 96
  .amdhsa_user_sgpr_count 2
  .amdhsa_user_sgpr_kernarg_segment_ptr 1
  .amdhsa_system_sgpr_workgroup_id_x 1
.end_amdhsa_kernel
"""

def pair_of_lane(a, d, t):
    a(f"""
    v_and_b32 v{d}, 17, v0
    v_lshlrev_b32 v{d}, 2, v{d}
    v_bfe_u32 v{t}, v0, 1, 1
    v_lshl_add_u32 v{d}, v{t}, 5, v{d}
    v_bfe_u32 v{t}, v0, 2, 2
    v_lshl_add_u32 v{d}, v{t}, 3, v{d}
    """)

def rec_fields(a, vd, vbin, vtmp, sm40, sm10):
    a(f"""
    v_mul_u32_u24 v{vbin}, {BINK}, v{vd}
    v_add_u32 v{vbin}, {BINC}, v{vbin}
    v_lshrrev_b32 v{vbin}, {BINS}, v{vbin}
    v_mul_u32_u24 v{vtmp}, 625, v{vbin}
    v_lshrrev_b32 v{vtmp}, 4, v{vtmp}
    v_sub_u32 v{vd}, v{vd}, v{vtmp}
    v_mul_u32_u24 v{vtmp}, 26, v{vd}
    v_lshrrev_b32 v{vtmp}, 8, v{vtmp}
    v_mad_i32_i24 v{vd}, v{vtmp}, s{sm10}, v{vd}
    v_lshl_or_b32 v{vd}, v{vtmp}, 30, v{vd}
    """)

K1_CNT = 0; K1_STG = 1024; K1_W = 34816; K1_X = K1_W + 32768; K1_LDS = K1_X + (28672 if 'rows' in OPT else 24576)
RLO, RHI = [int(x_) for x_ in OPT.get('rows', '96,64').split(',')]
def gen_k1():
    a = Asm()
    sS, sD, sW1, sW2, sX, sR, sT, sP = 24, 28, 32, 36, 40, 44, 48, 72
    sw, st0, st1, st2, snb, sfb, sch, shf, srow, snr = 52, 53, 54, 55, 56, 57, 58, 69, 71, 76
    c8192, cm10, cnl2e, csign, cmag, ctso, cp0 = 60, 62, 63, 64, 65, 66, 67
    vD, vS, vB, vSL, vt = 4, 12, 20, 28, 36
    vg = 56; vTR, vXA, vST = 64, 65, 66; vWC = 72
    vW, vX, vA, vO = 96, 160, 176, 192
    def W(m, ab, s): return vW + 32*m + 16*ab + 4*s
    a("k1_kernel:")
    a(f"s_cmp_ge_u32 s2, {2*NCH}\ns_cbranch_scc1 K1_END")
    stamp(a, 0)
    a(f"""
    s_load_dwordx16 s[4:19], s[0:1], 0
    s_load_dwordx2 s[20:21], s[0:1], 64
    s_load_dwordx2 s[22:23], s[0:1], 88
    """)
    if OPT.get("pf", "4") in "34":
        frm = "k2_kernel" if OPT.get("pf", "4") == "3" else "K1_PC"
        a(f"""
        s_cmp_lt_u32 s2, {NCH}
        s_cbranch_scc0 K1_NOPC
        s_getpc_b64 {sr(sP,2)}
        K1_PC:
        s_add_u32 s{sP}, s{sP}, {frm}-K1_PC
        s_addc_u32 s{sP+1}, s{sP+1}, 0
        s_mov_b32 s{sP+2}, K2_CODE_END-{frm}
        s_mov_b32 s{sP+3}, 0x20000
        s_bfe_u32 s{st0}, s2, 0x40003
        s_lshl_b32 s{st0}, s{st0}, 12
        v_lshlrev_b32 v33, 7, v0
        v_cmp_gt_u32 vcc, 32, v0
        s_and_saveexec_b64 s[80:81], vcc
        s_cbranch_execz K1_NOPC0
        buffer_load_dword v34, v33, {sr(sP,4)}, s{st0} offen
        K1_NOPC0:
        s_mov_b64 exec, s[80:81]
        K1_NOPC:
        """)
    if OPT.get("pf1", "0") == "1":
        a(f"""
        s_getpc_b64 {sr(sP,2)}
        K1_PC1:
        s_mov_b32 s{sP+2}, K1_END-K1_PC1
        s_mov_b32 s{sP+3}, 0x20000
        v_lshlrev_b32 v33, 7, v0
        buffer_load_dword v34, v33, {sr(sP,4)}, 0 offen
        """)
    a(f"""
    v_lshrrev_b32 v2, 6, v0
    v_lshlrev_b32 v1, 2, v0
    v_readfirstlane_b32 s{sw}, v2
    v_lshlrev_b32 v2, 4, v0
    s_mov_b32 s{c8192}, 8192
    s_sub_u32 s{sch}, s2, {NCH}
    s_and_b32 s{shf}, s2, 1
    v_and_b32 v{vg}, 63, v0
    v_lshrrev_b32 v{vg+1}, 4, v{vg}
    v_and_b32 v{vg+2}, 15, v0
    s_and_b32 s{st0}, s{sw}, 3
    s_lshl_b32 s{st0}, s{st0}, 2
    v_add_u32 v{vg+3}, s{st0}, v{vg+1}
    v_xor_b32 v{vg+3}, v{vg+3}, v{vg+2}
    v_lshlrev_b32 v{vg+3}, 4, v{vg+3}
    v_lshl_add_u32 v{vg+3}, v{vg+1}, 8, v{vg+3}
    v_lshrrev_b32 v{vg+4}, 3, v{vg}
    v_and_b32 v{vg+5}, 2, v{vg+4}
    s_lshr_b32 s{st0}, s2, 3
    s_add_u32 s{st0}, s{st0}, s{sw}
    s_and_b32 s{st0}, s{st0}, 1
    s_lshl_b32 s{st0}, s{st0}, 2
    v_and_b32 v{vg+6}, 7, v0
    v_xor_b32 v{vg+5}, v{vg+5}, v{vg+6}
    v_xor_b32 v{vg+5}, s{st0}, v{vg+5}
    v_lshlrev_b32 v{vg+5}, 4, v{vg+5}
    v_lshl_add_u32 v{vg+4}, v{vg+4}, 8, v{vg+5}
    s_lshr_b32 s{st0}, s2, 1
    s_mul_i32 s{srow}, s{st0}, {RLO}
    s_mul_i32 s{st0}, s{st0}, {RHI}
    s_add_u32 s{st0}, s{st0}, {64*(RLO-RHI)}
    s_cmp_lt_u32 s2, {NCH}
    s_cselect_b32 s{srow}, s{srow}, s{st0}
    s_cselect_b32 s{snr}, {RLO}, {RHI}
    s_min_u32 s{srow}, s{srow}, {N}
    s_sub_u32 s{st0}, {N}, s{srow}
    s_min_u32 s{snr}, s{snr}, s{st0}
    s_mul_i32 s{st1}, s{sch}, {CS*4}
    s_cmp_lt_u32 s2, 252
    s_waitcnt lgkmcnt(0)
    s_cselect_b64 {sr(sW1,2)}, s[14:15], s[12:13]
    s_cselect_b64 {sr(sW2,2)}, s[20:21], s[18:19]
    s_cmp_lt_u32 s2, {NCH}
    s_cbranch_scc1 K1_NOIDX
    """)
    srd(a, sD, 10, f"s{st1}", CS*4)
    srd(a, sS, 8, f"s{st1}", CS*4)
    a(f"""
    buffer_load_dwordx4 {vr(vD,4)}, v2, {sr(sD,4)}, 0 offen
    buffer_load_dwordx4 {vr(vS,4)}, v2, {sr(sS,4)}, 0 offen
    buffer_load_dword v{vD+4}, v1, {sr(sD,4)}, s{c8192} offen
    buffer_load_dword v{vS+4}, v1, {sr(sS,4)}, s{c8192} offen
    s_barrier
    K1_NOIDX:
    s_lshl_b32 s{st0}, s{srow}, 8
    s_add_u32 s{sX}, s4, s{st0}
    s_addc_u32 s{sX+1}, s5, 0
    s_lshl_b32 s{sX+2}, s{snr}, 8
    s_mov_b32 s{sX+3}, 0x20000
    s_mov_b32 s{sW1+2}, 32768
    s_mov_b32 s{sW1+3}, 0x20000
    s_mov_b32 s{sW2+2}, 32768
    s_mov_b32 s{sW2+3}, 0x20000
    s_lshl_b32 s{shf+1}, s{shf}, 7
    s_lshl_b32 s{st1}, s{sw}, 10
    """)
    def dma_x(k):
        a(f"s_add_u32 m0, s{st1}, {K1_X + 8192*k}\ns_add_u32 s{st2}, s{st1}, {8192*k}\nbuffer_load_dwordx4 v{vg+3}, {sr(sX,4)}, s{st2} offen lds")
    def stage_w():
        a(f"s_lshr_b32 s{st2}, s2, 3\ns_add_u32 s{st2}, s{st2}, s{sw}\ns_and_b32 s{st2}, s{st2}, 15")
        for k in range(2):
            a(f"""
            s_lshl_b32 s{st0}, s{st2}, 10
            s_add_u32 m0, s{st0}, {K1_W}
            s_lshl_b32 s{st1}, s{st2}, 11
            s_add_u32 s{st1}, s{st1}, s{shf+1}
            buffer_load_dwordx4 v{vg+4}, {sr(sW1,4)}, s{st1} offen lds
            s_add_u32 m0, s{st0}, {K1_W+16384}
            s_xor_b32 s{st2}, s{st2}, 8
            buffer_load_dwordx4 v{vg+4}, {sr(sW2,4)}, s{st1} offen lds
            """)
    if OPT.get("wt", "0") == "1":
        a(f"""
        s_cmp_eq_u32 s{sw}, 0
        s_cbranch_scc0 K1_NOWT
        s_bfe_u32 s{st0}, s2, 0x40003
        s_lshl_b32 s{st0}, s{st0}, 11
        s_add_u32 s{st0}, s{st0}, s{shf+1}
        v_lshlrev_b32 v33, 8, v0
        s_mov_b64 exec, 0xff
        buffer_load_dword v34, v33, {sr(sW1,4)}, s{st0} offen
        buffer_load_dword v34, v33, {sr(sW2,4)}, s{st0} offen
        s_mov_b64 exec, -1
        K1_NOWT:
        """)
    dma_x(0); dma_x(1)
    a(f"s_sub_u32 s{st0}, s2, {NCH}\ns_cmp_lt_u32 s{st0}, {252-NCH}\ns_cbranch_scc1 K1_LATER")
    dma_x(2)
    if RLO > 96: a(f"s_cmp_lt_u32 s{sw}, 4\ns_cbranch_scc0 K1_X3"); dma_x(3); a("K1_X3:")
    stage_w()
    a(f"""
    K1_LATER:
    s_and_b32 s{sfb}, s{sw}, 1
    s_lshr_b32 s{snb}, s{sw}, 1
    v_bfe_u32 v{vg+5}, v0, 2, 2
    v_bfe_u32 v{vg+6}, v0, 3, 2
    s_lshl_b32 s{st0}, s{sfb}, 1
    v_xor_b32 v{vg+6}, s{st0}, v{vg+6}
    v_and_b32 v{vg+7}, 3, v0
    v_lshlrev_b32 v{vg+7}, 3, v{vg+7}
    v_lshl_add_u32 v{vg+7}, v{vg+6}, 5, v{vg+7}
    v_lshl_add_u32 v{vg+5}, v{vg+1}, 3, v{vg+5}
    v_lshl_add_u32 v{vTR}, v{vg+5}, 7, v{vg+7}
    v_xor_b32 v{vTR+6}, 32, v{vTR}
    v_xor_b32 v{vXA}, v{vg+1}, v{vg+2}
    v_lshlrev_b32 v{vXA}, 4, v{vXA}
    v_lshl_add_u32 v{vXA}, v{vg+2}, 8, v{vXA}
    s_lshl_b32 s{st0}, s{snb}, 12
    s_add_u32 s{st0}, s{st0}, {K1_X}
    v_add_u32 v{vXA}, s{st0}, v{vXA}
    v_xor_b32 v{vXA+2}, 64, v{vXA}
    v_xor_b32 v{vXA+3}, 0x80, v{vXA}
    v_xor_b32 v{vXA+4}, 0xc0, v{vXA}
    v_mul_u32_u24 v{vST}, {TS}, v{vg+2}
    v_lshl_add_u32 v{vST}, v{vg+1}, 4, v{vST}
    s_mul_i32 s{ctso}, s{snb}, {16*TS}
    s_lshl_b32 s{st1}, s{shf}, 8
    s_add_u32 s{ctso}, s{ctso}, s{st1}
    s_lshl_b32 s{st1}, s{sfb}, 6
    s_add_u32 s{ctso}, s{ctso}, s{st1}
    s_mov_b32 s{cnl2e}, {NL2E:#x}
    s_mov_b32 s{csign}, 0x00800000
    s_mov_b32 s{cmag}, 0x7fffffff
    s_mov_b32 s{cp0}, 0x07060100
    s_mov_b32 s{cp0+1}, 0x07060302
    s_mul_i32 s{st0}, s{srow}, {TS}
    s_add_u32 s{st0}, s{st0}, {T_OFF}
    s_mul_i32 s{st1}, s{snr}, {TS}
    """)
    srd(a, sT, 22, f"s{st0}", f"s{st1}")
    stamp(a, 1)
    a(f"s_cmp_lt_u32 s2, {NCH}\ns_cbranch_scc1 K1_NOBIN")
    a(f"""
    v_mov_b32 v{vt}, -1
    v_mov_b32 v{vt+1}, -1
    v_mov_b32 v{vt+2}, -1
    v_mov_b32 v{vt+3}, -1
    v_mov_b32 v{vt+5}, 0
    v_and_b32 v{vt+6}, 0x3fc, v1
    """)
    for k in range(4): a(f"ds_write_b128 v2, {vr(vt,4)} offset:{K1_STG+8192*k}")
    a(f"""
    ds_write_b32 v{vt+6}, v{vt+5} offset:{K1_CNT}
    s_lshl_b32 s{st0}, s{sch}, 7
    s_add_u32 s{st0}, s{st0}, {REC_OFF}
    """)
    srd(a, sR, 22, f"s{st0}", NBIN*NCH*128)
    a(f"s_lshl_b32 s{st0}, s{sch}, 9\ns_add_u32 s{st1}, s{st0}, {LUT_OFF}")
    srd(a, sP, 22, f"s{st1}", 512)
    l0, l1 = vt+10, vt+11
    a(f"""
    v_add_u32 v{l0}, s{st0}, v1
    v_and_b32 v{l1}, 0x7fff, v{l0}
    v_cmp_ne_u32 vcc, 0x7c00, v{l1}
    v_or_b32 v{l1}, 3, v{l0}
    s_nop 0
    v_addc_co_u32 v{l0}, vcc, 0, v{l0}, vcc
    v_cvt_f32_f16 v{l1}, v{l1}
    v_cvt_f32_f16 v{l0}, v{l0}
    v_exp_f32 v{l1}, v{l1}
    v_exp_f32 v{l0}, v{l0}
    v_add_f32 v{l1}, 1.0, v{l1}
    v_add_f32 v{l0}, 1.0, v{l0}
    v_rcp_f32 v{l1}, v{l1}
    v_rcp_f32 v{l0}, v{l0}
    s_mov_b32 s{cm10}, {-GN}
    v_cvt_pk_bf16_f32 v{l0}, v{l0}, v{l1}
    v_mov_b32 v{vt+5}, 1
    v_cmp_gt_u32 vcc, {CS-2048}, v0
    s_mov_b64 s[80:81], vcc
    v_lshrrev_b32 v{vt+7}, 3, v0
    v_and_b32 v{vt+8}, 7, v0
    v_lshlrev_b32 v{vt+9}, 14, v{vt+7}
    v_lshl_add_u32 v{vt+9}, v{vt+8}, 4, v{vt+9}
    v_lshlrev_b32 v{vt+7}, 2, v{vt+7}
    v_cmp_eq_u32 s[82:83], 7, v{vt+8}
    v_and_b32 v{vt+8}, 4, v{vt+8}
    v_lshlrev_b32 v{vt+8}, {2 if OPT.get("half", "0") == "1" else 0}, v{vt+8}
    v_and_b32 v{vt+8}, 16, v{vt+8}
    s_waitcnt lgkmcnt(0)
    s_barrier
    s_cmp_ge_u32 s2, 252
    s_cbranch_scc1 K1_W7
    s_waitcnt vmcnt(2)
    K1_W7:
    s_waitcnt vmcnt(7)
    """)
    stamp(a, 2)
    for r in range(5):
        rec_fields(a, vD+r, vB+r, vt, None, cm10)
        a(f"v_lshlrev_b32 v{vt}, 2, v{vB+r}")
        if r == 4: a("s_mov_b64 exec, s[80:81]")
        a(f"ds_add_rtn_u32 v{vSL+r}, v{vt}, v{vt+5} offset:{K1_CNT}")
        if r == 4: a("s_mov_b64 exec, -1")
    a("s_cmp_ge_u32 s2, 252\ns_cbranch_scc1 K1_NOWC")
    stage_w()
    a(f"""
    s_cmp_eq_u32 s2, 250
    s_cbranch_scc0 K1_NOWC
    """)
    srd(a, sS, 16, None, 4096)
    a(f"""
    v_lshrrev_b32 v{vWC+8}, 5, v{vg}
    """)
    pair_of_lane(a, vWC+9, vWC+10)
    a(f"""
    v_lshl_add_u32 v{vWC+9}, v{vWC+8}, 11, v{vWC+9}
    s_bfe_u32 s{st1}, s{sw}, 0x10001
    s_lshl_b32 s{st1}, s{st1}, 7
    s_lshl_b32 s{st0}, s{sfb}, 1
    s_add_u32 s{st1}, s{st1}, s{st0}
    """)
    for j in range(8): a(f"buffer_load_ushort v{vWC+j}, v{vWC+9}, {sr(sS,4)}, s{st1} offen offset:{256*j}")
    a("K1_NOWC:")
    for r in range(5):
        a(f"v_lshl_or_b32 v{vD+r}, v{vS+r}, 16, v{vD+r}")
        a(f"v_add_u32 v{vS+r}, {r}, v1" if r < 4 else f"v_add_u32 v{vS+r}, 2048, v0")
        a(f"v_lshl_or_b32 v{vD+r}, v{vS+r}, 4, v{vD+r}\nv_lshlrev_b32 v{vB+r}, 7, v{vB+r}")
    for r in range(5):
        a("s_waitcnt lgkmcnt(4)")
        if r == 4: a("s_mov_b64 exec, s[80:81]")
        a(f"""
        v_and_b32 v{vt}, 12, v{vSL+r}
        v_add_u32 v{vB+r}, v{vB+r}, v{vt}
        v_and_b32 v{vt}, 3, v{vSL+r}
        v_lshl_add_u32 v{vB+r}, v{vt}, 4, v{vB+r}
        v_and_b32 v{vt}, 16, v{vSL+r}
        v_lshl_add_u32 v{vB+r}, v{vt}, 2, v{vB+r}
        v_cmpx_gt_u32 vcc, {CAP}, v{vSL+r}
        ds_write_b32 v{vB+r}, v{vD+r} offset:{K1_STG}
        s_mov_b64 exec, -1
        """)
    a("s_waitcnt lgkmcnt(0)\ns_barrier")
    for k in range(4):
        a(f"ds_read_b128 {vr(4+4*k,4)}, v2 offset:{K1_STG+8192*k}\nds_read_b32 v{20+k}, v{vt+7} offset:{K1_CNT+256*k}")
    a(f"""
    v_mov_b32 v{vt+2}, -2
    s_mov_b32 s{st2}, 0
    buffer_store_dword v{l0}, v1, {sr(sP,4)}, 0 offen {OPT['st_r']}
    """)
    stamp(a, 3)
    for k in range(4):
        a(f"""
        s_waitcnt lgkmcnt({6-2*k})
        v_cmp_lt_u32 vcc, {CAP}, v{20+k}
        v_cmp_le_u32 s[78:79], v{vt+8}, v{20+k}
        s_and_b64 vcc, vcc, s[82:83]
        s_nop 0
        v_cndmask_b32 v{7+4*k}, v{7+4*k}, v{vt+2}, vcc
        s_mov_b64 exec, s[78:79]
        buffer_store_dwordx4 {vr(4+4*k,4)}, v{vt+9}, {sr(sR,4)}, s{st2} offen {OPT['st_r']}
        s_mov_b64 exec, -1
        s_add_u32 s{st2}, s{st2}, {64*16384}
        """)
    a(f"""
    s_waitcnt vmcnt(5)
    s_branch K1_STAGED
    K1_NOBIN:
    """)
    if OPT.get("pf", "4") == "1":
        a(f"""
        s_getpc_b64 {sr(sP,2)}
        K1_PC:
        s_add_u32 s{sP}, s{sP}, k2_kernel-K1_PC
        s_addc_u32 s{sP+1}, s{sP+1}, 0
        s_mov_b32 s{sP+2}, K2_CODE_END-k2_kernel
        s_mov_b32 s{sP+3}, 0x20000
        s_bfe_u32 s{st0}, s2, 0x40003
        s_lshl_b32 s{st0}, s{st0}, 12
        v_lshlrev_b32 v33, 7, v0
        v_cmp_gt_u32 vcc, 32, v0
        s_and_saveexec_b64 s[80:81], vcc
        s_cbranch_execz K1_NOPC
        buffer_load_dword v34, v33, {sr(sP,4)}, s{st0} offen
        s_mov_b64 exec, s[80:81]
        s_waitcnt vmcnt(1)
        s_branch K1_PCD
        K1_NOPC:
        s_mov_b64 exec, s[80:81]
        s_waitcnt vmcnt(0)
        K1_PCD:
        """)
    else: a("s_waitcnt vmcnt(0)")
    stamp(a, 2); stamp(a, 3)
    a(f"""
    K1_STAGED:
    s_barrier
    """)
    stamp(a, 4)
    if OPT.get("pf", "4") == "2":
        assert 64*RLO + 59*RHI >= N
        a(f"""
        s_sub_u32 s{st0}, s2, 246
        s_cmp_lt_u32 s{st0}, 8
        s_cbranch_scc0 K1_NOPC
        s_getpc_b64 {sr(sP,2)}
        K1_PC:
        s_add_u32 s{sP}, s{sP}, k2_kernel-K1_PC
        s_addc_u32 s{sP+1}, s{sP+1}, 0
        s_mov_b32 s{sP+2}, K2_CODE_END-k2_kernel
        s_mov_b32 s{sP+3}, 0x20000
        v_lshlrev_b32 v33, 7, v0
        buffer_load_dword v34, v33, {sr(sP,4)}, 0 offen
        s_cmp_eq_u32 s2, 252
        s_cbranch_scc0 K1_END
        K1_NOPC:
        """)
    PM = int(OPT.get("pm", "0"))
    if PM:
        a(f"s_mul_i32 s{st0}, s2, {313*128}\ns_sub_u32 s{st1}, {E*32}, s{st0}\ns_min_u32 s{st1}, s{st1}, {PM*128}")
        if OPT.get("pmlo"): a(f"s_cmp_lt_u32 s2, {NCH}\ns_cselect_b32 s{st1}, s{st1}, 0")
        srd(a, sP, 6, f"s{st0}", f"s{st1}")
        a(f"v_xor_b32 v33, 0x1c0, v0\nv_lshlrev_b32 v33, 7, v33\nbuffer_load_dword v34, v33, {sr(sP,4)}, 0 offen")
    a(f"""
    s_cmp_eq_u32 s2, 250
    s_cbranch_scc1 K1_WC
    """)
    def xrd(reg, off):
        for s in range(4): a(f"ds_read_b128 {vr(reg+4*s,4)}, v{[vXA, vXA+2, vXA+3, vXA+4][s]} offset:{off}")
    def trs(s):
        for m in range(2):
            for ab in range(2):
                for u in range(2):
                    a(f"ds_read_b64_tr_b16 {vr(W(m,ab,s)+2*u,2)}, v{vTR+6*ab} offset:{K1_W+m*16384+s*4096+u*512}")
    def mm(s, x, acc):
        return [f"v_mfma_f32_16x16x32_bf16 {vr(acc+8*m+4*ab,4)}, {vr(W(m,ab,s),4)}, {vr(x+4*s,4)}, {'0' if s == 0 else vr(acc+8*m+4*ab,4)}"
                for m in range(2) for ab in range(2)]
    def pack(acc, out):
        o = []
        for b in range(2):
            for ab in range(2):
                b0, b1 = acc+4*ab+b, acc+4*ab+2+b
                hs = [acc+8+4*ab+2*e_+b for e_ in range(2)]
                o += [f"v_mul_f32 v{b0}, s{cnl2e}, v{b0}", f"v_mul_f32 v{b1}, s{cnl2e}, v{b1}"]
                for e_, h in enumerate(hs): o += [f"v_max_f32 v{30+e_}, abs(v{h}), s{csign}", f"v_bfi_b32 v{h}, s{cmag}, v{30+e_}, v{h}"]
                o += [f"v_cvt_pk_bf16_f32 v{b0}, v{b0}, v{b1}"] + [f"v_add_u32 v{h}, 0x8000, v{h}" for h in hs]
                o += [f"v_sub_u32_sdwa v{h}, v{h}, v{b0} dst_sel:DWORD dst_unused:UNUSED_PAD src0_sel:DWORD src1_sel:WORD_{e_}" for e_, h in enumerate(hs)]
                o += [f"v_perm_b32 v{out+4*b+2*ab+e_}, v{h}, v{b0}, s{cp0+e_}" for e_, h in enumerate(hs)]
            o.append(f"buffer_store_dwordx4 {vr(out+4*b,4)}, v{vST}, {sr(sT,4)}, s{ctso} offen offset:{128*b} {OPT['st_t']}")
        return o
    xrd(vX, 0)
    trs(0); a("s_waitcnt lgkmcnt(6)")
    for s in range(1, 4):
        trs(s); a("s_waitcnt lgkmcnt(8)"); a.ext(mm(s-1, vX, vA))
        if s < 3: a("s_waitcnt lgkmcnt(6)")
    a("s_waitcnt lgkmcnt(0)")
    stamp(a, 5)
    a(f"""
    s_cmp_ge_u32 s2, 252
    s_cbranch_scc1 K1_WT
    s_lshl_b32 s{st0}, s{snb}, 4
    s_add_u32 s{st0}, s{st0}, 64
    s_cmp_lt_u32 s{st0}, s{snr}
    s_cbranch_scc0 K1_ONE
    """)
    vX2, vA2 = 208, 224
    xrd(vX2, 16384)
    g = mm(3, vX, vA) + ["s_waitcnt lgkmcnt(0)"]
    m2 = sum((mm(s, vX2, vA2) for s in range(4)), []); pk = pack(vA, vO)
    g += m2[:6]; k = 0
    for x in m2[6:]:
        g.append(x); g += pk[k:k+3]; k += 3
    g += pk[k:] + [f"s_add_u32 s{ctso}, s{ctso}, {64*TS}"] + pack(vA2, vO+8)
    asmsim.check_hazards(g, "k1 two blocks")
    a.ext(g)
    a("s_branch K1_TAIL\nK1_ONE:")
    g = mm(3, vX, vA) + ["s_nop 7"] + pack(vA, vO)
    asmsim.check_hazards(g, "k1 one block")
    a.ext(g)
    a("K1_TAIL:")
    PL = int(OPT.get("pl", "0"))
    if PL:
        a(f"""
        s_cmp_lt_u32 s2, {NCH}
        s_cbranch_scc0 K1_NOPF
        s_mul_i32 s{st0}, s2, {CS*32}
        """)
        srd(a, sP, 6, f"s{st0}", PL*128)
        a(f"""
        v_lshlrev_b32 v4, 7, v0
        s_mov_b32 s{st0}, 65536
        s_barrier
        buffer_load_dword v5, v4, {sr(sP,4)}, 0 offen
        buffer_load_dword v5, v4, {sr(sP,4)}, s{st0} offen
        K1_NOPF:
        """)
    stamp(a, 6); stamp(a, 7)
    stamp_out(a, 0, 22, sw, 2)
    a("s_endpgm")
    a("K1_WT:")
    srd(a, sT, 22, WT_OFF, 65536)
    a(f"""
    s_cmp_ge_u32 s{sw}, 4
    s_cbranch_scc1 K1_END
    v_lshlrev_b32 v2, 4, v{vg}
    s_and_b32 s{st0}, s2, 3
    s_lshl_b32 s{st0}, s{st0}, 1
    s_add_u32 s{st0}, s{st0}, s{sfb}
    s_lshl_b32 s{st0}, s{st0}, 1
    s_add_u32 s{st0}, s{st0}, s{snb}
    s_lshl_b32 s{st0}, s{st0}, 12
    s_and_b32 s{st1}, s2, 2
    s_add_u32 s{st1}, s{st1}, s{snb}
    """)
    for k in range(4):
        if k < 3: a(f"s_cmp_eq_u32 s{st1}, {k}\ns_cbranch_scc0 K1_WT{k}")
        for s in range(4):
            a(f"buffer_store_dwordx4 {vr(W(k >> 1, k & 1, s),4)}, v2, {sr(sT,4)}, s{st0} offen offset:{1024*s} {OPT['st_t']}")
        a("s_endpgm")
        if k < 3: a(f"K1_WT{k}:")
    a("K1_WC:")
    srd(a, sT, 22, WT_OFF+65536, 4096)
    a(f"v_lshlrev_b32 v2, 4, v{vg}\ns_lshl_b32 s{st0}, s{sw}, 10")
    for j in range(8):
        a(f"v_lshlrev_b32 v{vWC+j}, 16, v{vWC+j}\nv_mul_f32 v{vWC+j}, s{cnl2e}, v{vWC+j}")
    for j in range(4):
        a(f"v_cvt_pk_bf16_f32 v{84+j}, v{vWC+2*j}, v{vWC+1+2*j}")
    a(f"buffer_store_dwordx4 v[84:87], v2, {sr(sT,4)}, s{st0} offen {OPT['st_t']}")
    a("K1_END:\ns_endpgm")
    return a.text(), kd("k1_kernel", 240, 102)

CAPG = 416; RND = 400
CNT = 0; FLG = 256; START = 512; INCL = 768; OHL = 1024; L1 = 1536; L2 = L1 + 4*CAPG*4; APL = L2 + 4*CAPG*4
ROWP = 272
UL = APL + 48*ROWP; LUTL = UL + 48*ROWP; STG = (LUTL + 65536 + 255)//256*256; XL = STG + 3*CAPG*32 + 5*1024; K2_LDS = XL + 12288
PROG = FLG + 32
assert K2_LDS <= 163840 and K2_LDS >= STG + 4*CAPG*32 and LUTL <= 65535 and (4*CAPG*4) % 256 == 0

def gen_k2():
    a = Asm()
    sREC, sX, sWT, sT, sE, sO, sD, sS = 24, 28, 32, 36, 40, 44, 68, 72
    sw, sg, sfh, st0, st1, st2 = 48, 49, 50, 51, 52, 53
    scount, sslow, sround, slim, sgb, srt, slut, srank = 54, 55, 56, 57, 58, 59, 82, 83
    stail = 20
    sdma, sm0, sneed = 21, 22, 23
    cm32, c128, cnl2e, cfc, csrc, cm40, cm10, cfe = 60, 61, 62, 63, 64, 65, 66, 67
    sk = 16
    vH16, vA1, vA2, vEa, vOa, vO, vA3 = 1, 2, 3, 4, 5, 6, 7
    WC = 8; AP = 16; PA = 24; SC = 28; OH = 32; EA = 40; ADDR = 48; ACC = 64; SP = 96; G = 112; RAW = 176
    XR = 240; UR = 246; vP16 = 252; vH256 = 253; vHS = 254; vPG = 255; vM15 = XR; vO2 = SP+8
    raw = lambda p, b: RAW + 32*p + 16*b
    gb = lambda p, b: G + 32*p + 16*b
    vt = gb(1, 1); Z = SP; EOFF = SP+14
    REC = raw(1, 0); CADDR = REC+16; RANK = G; STV = G+16
    NTB = [int(c_) for c_ in OPT.get("nt", "11")]
    rowoff = lambda r: 8*(r >> 2) + (r & 3)
    sd = "dst_sel:DWORD dst_unused:UNUSED_PAD src0_sel:DWORD"

    a("k2_kernel:")
    a(f"s_cmp_ge_u32 s2, {NBIN}\ns_cbranch_scc1 K2_END")
    stamp(a, 0)
    a(f"""
    s_load_dwordx8 s[4:11], s[0:1], 0
    s_load_dwordx2 s[12:13], s[0:1], 72
    s_load_dwordx2 s[14:15], s[0:1], 88
    v_lshrrev_b32 v{vt}, 6, v0
    v_lshrrev_b32 v{vt+1}, 2, v0
    v_readfirstlane_b32 s{sw}, v{vt}
    v_and_b32 v{vt+2}, 3, v0
    v_lshlrev_b32 v{vt+3}, 7, v{vt+1}
    v_lshl_add_u32 v{vt+3}, v{vt+2}, 4, v{vt+3}
    s_lshl_b32 s{st0}, s2, 14
    s_add_u32 s{st0}, s{st0}, {REC_OFF}
    v_and_b32 v{vt}, 63, v0
    v_lshlrev_b32 v{vt+5}, 3, v{vt}
    v_mov_b32 v{Z}, 0
    v_mov_b32 v{Z+1}, 0
    ds_write_b64 v{vt+5}, {vr(Z,2)} offset:{CNT}
    s_and_b32 s{sg}, s{sw}, 3
    s_lshr_b32 s{sfh}, s{sw}, 2
    v_lshlrev_b32 v{vA2}, 4, v{vt}
    s_mov_b32 s{st1}, 8192
    s_waitcnt lgkmcnt(0)
    """)
    if OPT.get("lat"):
        kind = OPT["lat"]
        if kind == "T": srd(a, sS, 14, T_OFF, N*TS)
        if kind == "R": srd(a, sS, 14, REC_OFF, 4 << 20)
        if kind == "x": srd(a, sS, 4, None, N*256)
        if kind == "e": srd(a, sS, 6, None, E*32)
        a(f"""
        s_cmp_eq_u32 s{sw}, 0
        s_cbranch_scc0 K2_NOLAT
        s_lshl_b32 s{st2}, s2, 13
        v_lshlrev_b32 v{vt+9}, 7, v{vt}
        s_memrealtime s[86:87]
        buffer_load_dword v{vt+10}, v{vt+9}, {sr(sS,4)}, s{st2} offen
        s_waitcnt vmcnt(0)
        s_memrealtime s[88:89]
        K2_NOLAT:
        s_barrier
        """)
    a(f"""
    s_cmp_lg_u32 s{sfh}, 0
    s_cbranch_scc1 K2_NOREC
    """)
    srd(a, sREC, 14, f"s{st0}", 16384)
    for u in range(2):
        for r in range(2):
            a(f"buffer_load_dwordx4 {vr(REC+8*r+4*u,4)}, v{vt+3}, {sr(sREC,4)}, {'s%d' % st1 if u else '0'} offen offset:{64*r}")
    TP0 = int(OPT.get("tp0", "0"))
    if TP0:
        srd(a, sS, 14, T_OFF, N*TS)
        a(f"""
        s_bfe_u32 s{st0}, s2, 0x50003
        s_mul_i32 s{st0}, s{st0}, {TP0}
        s_add_u32 s{st0}, s{st0}, s{sw}
        s_lshl_b32 s{st0}, s{st0}, 13
        s_cmp_lt_u32 s{sw}, {TP0}
        s_cselect_b32 s{sS+2}, s{sS+2}, 0
        v_lshlrev_b32 v{vt+9}, 7, v{vt}
        buffer_load_dword v{vt+10}, v{vt+9}, {sr(sS,4)}, s{st0} offen
        """)
    a(f"""
    K2_NOREC:
    s_mul_i32 s{st0}, s2, 625
    s_add_u32 s{cm40}, s{st0}, 625
    s_lshr_b32 s{st0}, s{st0}, 4
    s_lshr_b32 s{cm40}, s{cm40}, 4
    s_sub_u32 s{cm40}, s{cm40}, s{st0}
    s_lshl_b32 s{cm40}, s{cm40}, 8
    s_lshl_b32 s{st0}, s{st0}, 8
    """)
    srd(a, sX, 4, f"s{st0}", f"s{cm40}")
    srd(a, sO, 12, f"s{st0}", f"s{cm40}")
    srd(a, sWT, 14, WT_OFF, LUT_OFF - WT_OFF + 65536)
    a("s_barrier")
    stamp(a, 1)
    def ld_wc():
        a(f"""
        s_lshl_b32 s{st1}, s{sfh}, 11
        s_add_u32 s{st1}, s{st1}, 65536
        buffer_load_dwordx4 {vr(WC,4)}, v{vA2}, {sr(sWT,4)}, s{st1} offen
        buffer_load_dwordx4 {vr(WC+4,4)}, v{vA2}, {sr(sWT,4)}, s{st1} offen offset:1024
        """)
    def common1(Z, vl):
        a = Asm()
        a(f"s_lshl_b32 s{st0}, s{sfh}, 8\ns_add_u32 s{st0}, s{st0}, {T_OFF-128}")
        srd(a, sT, 14, f"s{st0}", 64, w3="0x800000", hi_or="0x40000")
        srd(a, sE, 6, None, E*32)
        a(f"""
        s_mov_b32 s{cm32}, {'0x7e0' if 'e' in OPT.get('nomem','') else '0x1fffe0' if 's' in OPT.get('nomem','') else '0xffffffe0'}
        s_mov_b32 s{c128}, 128
        s_mov_b32 s{cnl2e}, {NL2E + (16 << 23):#x}
        s_mov_b32 s{cfc}, 0xfc
        s_mov_b32 s{cfe}, {OPT.get('cfe', '0xfffe')}
        s_mov_b32 s{csrc}, {TS}
        s_mov_b32 s{sslow}, 0
        s_mov_b32 s{sround}, 0
        s_mov_b32 s{sgb}, 0
        s_mul_i32 s{st0}, s{sfh}, 3
        s_xor_b32 s{srank}, s{sg}, s{st0}
        v_lshrrev_b32 v{Z+2}, 5, v{vl}
        v_and_b32 v{Z+3}, 31, v0
        v_lshlrev_b32 v{vH16}, 4, v{Z+2}
        v_lshlrev_b32 v{vH256}, 8, v{Z+2}
        v_and_b32 v{Z+4}, 3, v0
        v_mov_b32 v{Z+6}, 0x3f80
        """)
        for i in range(4):
            a(f"v_cmp_eq_u32 vcc, {i}, v{Z+4}\ns_nop 1\nv_cndmask_b32 v{PA+i}, 0, v{Z+6}, vcc")
        a(f"""
        v_cmp_gt_u32 s[78:79], 16, v{Z+3}
        v_mov_b32 v{Z+5}, {bf(127*2.0**-126):#x}
        v_mov_b32 v{Z+7}, {bf(2.0**16):#x}
        v_cndmask_b32 v{Z+5}, v{Z+7}, v{Z+5}, s[78:79]
        v_and_b32 v{Z+4}, 15, v0
        v_lshlrev_b32 v{Z+8}, 3, v{Z+2}
        v_sub_u32 v{Z+4}, v{Z+4}, v{Z+8}
        v_lshlrev_b32 v{Z+6}, 16, v{Z+5}
        """)
        for d in range(4):
            a(f"""
            v_cmp_eq_u32 vcc, {2*d}, v{Z+4}
            v_cmp_eq_u32 s[78:79], {2*d+1}, v{Z+4}
            s_nop 0
            v_cndmask_b32 v{SC+d}, 0, v{Z+5}, vcc
            v_cndmask_b32 v{Z+8}, 0, v{Z+6}, s[78:79]
            v_or_b32 v{SC+d}, v{SC+d}, v{Z+8}
            """)
        return [x.strip() for x in a.l]
    def ld_xr(): return [f"buffer_load_dword v{XR+r}, v{vO}, {sr(sX,4)}, 0 offen offset:{256*rowoff(r)} " for r in range(6)]
    def arrive(k):
        a(f"""
        v_mov_b32 v{vt+6}, {FLG+4*k}
        v_mov_b32 v{vt+7}, 1
        s_mov_b64 exec, 1
        ds_add_u32 v{vt+6}, v{vt+7}
        s_mov_b64 exec, -1
        """)
    def spin(k, n, add=True):
        if add: arrive(k)
        else: a(f"v_mov_b32 v{vt+6}, {FLG+4*k}")
        a(f"""
        K2_SPIN{n}:
        ds_read_b32 v{vt+7}, v{vt+6}
        s_waitcnt lgkmcnt(0)
        v_cmp_gt_u32 vcc, 4, v{vt+7}
        s_cbranch_vccnz K2_SPIN{n}
        """)
    def caddr(k): return f"v_and_b32_sdwa v{CADDR+k}, s{cfc}, v{REC+k} {sd} src1_sel:BYTE_3"
    def pick(sel, cur):
        a(f"""
        s_bitcmp1_b32 s{sel}, 0
        s_cselect_b32 s{cur[0]}, s{cur[1]}, s{cur[0]}
        s_cselect_b32 s{cur[2]}, s{cur[3]}, s{cur[2]}
        s_bitcmp1_b32 s{sel}, 1
        s_cselect_b32 s{st0}, s{cur[2]}, s{cur[0]}
        s_and_b32 s{sg}, s{st0}, 3
        s_andn2_b32 s{st0}, s{st0}, 3
        s_mul_i32 s{sgb}, s{sg}, {CAPG*4}
        s_add_u32 s{scount}, s{st0}, 127
        s_lshr_b32 s{scount}, s{scount}, 7
        s_add_u32 s{stail}, s{st0}, 124
        s_bfe_u32 s{stail}, s{stail}, 0x20005
        s_lshl_b32 s{stail}, s{stail}, 1
        s_add_u32 s{stail}, s{stail}, 2
        """)
    def rank_groups():
        for g in range(1, 4): a(f"s_or_b32 s{sk+g}, s{sk+g}, {g}")
        cur = [sk, sk+1, sk+2, sk+3]; spare = sk+4
        for (i, j) in ((0, 1), (2, 3), (0, 2), (1, 3), (1, 2)):
            a(f"s_max_u32 s{spare}, s{cur[i]}, s{cur[j]}\ns_min_u32 s{cur[j]}, s{cur[i]}, s{cur[j]}")
            cur[i], spare = spare, cur[i]
        pick(srank, cur)
    def scan(fast, ks=()):
        x = SP
        a(f"""
        v_and_b32 v{vt}, 63, v0
        v_lshlrev_b32 v{vt+1}, 2, v{vt}
        ds_read_b32 v{x}, v{vt+1} offset:{CNT}
        v_lshrrev_b32 v{vt}, 4, v{vt}
        v_mul_u32_u24 v{vt}, {CAPG*4}, v{vt}
        v_and_b32 v{vt+2}, 31, v0
        v_lshlrev_b32 v{vt+2}, 2, v{vt+2}
        v_mov_b32 v{vt+4}, 0xfffffe
        s_waitcnt lgkmcnt(0)
        v_sub_u32 v{vt}, v{vt}, v{x}
        """)
        for d in ("row_shr:1", "row_shr:2", "row_shr:4", "row_shr:8"):
            a(f"v_add_u32_dpp v{x}, v{x}, v{x} {d} row_mask:0xf bank_mask:0xf bound_ctrl:0\ns_nop 1")
        a(f"""
        v_add_u32 v{vt}, v{vt}, v{x}
        v_cmp_lt_u32 vcc, {CAPG*4}, v{x}
        ds_write2st64_b32 v{vt+1}, v{vt}, v{x} offset0:{START//256} offset1:{INCL//256}
        """)
        for g in range(4): a(f"v_readlane_b32 s{sk+g}, v{x}, {16*g+15}")
        if fast:
            a("s_cbranch_vccnz K2_GIVEUP")
            for j, k in enumerate(ks): a(f"ds_read_b32 v{STV+j}, v{CADDR+k} offset:{START}")
            rank_groups()
        else:
            for g in range(1, 4): a(f"s_or_b32 s{sk+g}, s{sk+g}, {g}")
            pick(sg, [sk, sk+1, sk+2, sk+3])
        a(f"""
        s_add_u32 s{st0}, s{st0}, s{sgb}
        v_add_u32 v{vt+2}, s{st0}, v{vt+2}
        s_lshl_b32 s{st1}, s{scount}, 7
        s_add_u32 s{st1}, s{st1}, s{sgb}
        v_lshlrev_b32 v{vt+3}, 3, v{vt+2}
        v_and_b32 v{vt+3}, 128, v{vt+3}
        v_cmpx_gt_u32 vcc, s{st1}, v{vt+2}
        ds_write2st64_b32 v{vt+2}, v{vt+3}, v{vt+4} offset0:{L1//256} offset1:{L2//256}
        s_mov_b64 exec, -1
        """)
    def place(k, st, eo):
        a(f"""
        v_add_u32 v{st}, v{st}, v{RANK+k}
        v_bfe_u32 v{vt}, v{REC+k}, 16, {5 if 't' in OPT.get('nomem','') else 14}
        v_lshlrev_b32 v{vt+1}, 3, v{st}
        v_mad_u32_u16 v{vt+2}, v{REC+k}, 2, v{eo}
        v_and_b32 v{vt+1}, 128, v{vt+1}
        v_mad_u32_u24 v{vt}, v{vt}, s{csrc}, v{vt+1}
        ds_write2st64_b32 v{st}, v{vt}, v{vt+2} offset0:{L1//256} offset1:{L2//256}
        """)
    def lane_setup():
        a(f"""
        v_and_b32 v{vt}, 31, v0
        v_xor_b32 v{vA1}, 16, v{vH16}
        v_xor_b32 v{vA2}, 4, v{vt}
        v_lshlrev_b32 v{vA2}, 2, v{vA2}
        v_add_u32 v{vA1}, s{sgb}, v{vA1}
        v_add_u32 v{vA2}, s{sgb}, v{vA2}
        s_mul_i32 s{st0}, s{sg}, {GN*256}
        s_lshl_b32 s{st1}, s{sfh}, 7
        s_add_u32 s{st0}, s{st0}, s{st1}
        """)
        pair_of_lane(a, vO, vt+1)
        a(f"""
        v_lshl_add_u32 v{vO}, v{vH256}, 2, v{vO}
        v_add_u32 v{vO}, s{st0}, v{vO}
        v_bfe_u32 v{vA3}, v0, 1, 5
        v_lshlrev_b32 v{vA3}, 2, v{vA3}
        v_add_u32 v{vA3}, s{sgb}, v{vA3}
        v_lshlrev_b32 v{vP16}, 4, v0
        v_xor_b32 v{vP16}, v{vP16}, v0
        v_and_b32 v{vP16}, 16, v{vP16}
        v_lshlrev_b32 v{vHS}, 1, v0
        v_xor_b32 v{vHS}, v{vHS}, v{vH16}
        v_and_b32 v{vHS}, 16, v{vHS}
        v_add_u32 v{vHS}, {STG}, v{vHS}
        s_lshl_b32 s{st0}, s{sg}, 2
        s_add_u32 s{st0}, s{st0}, {PROG}
        v_mov_b32 v{vPG}, s{st0}
        s_lshl_b32 s{sm0}, s{sgb}, 3
        s_add_u32 s{sm0}, s{sm0}, {STG}
        s_mov_b32 s{sdma}, 0
        s_mov_b32 s{sneed}, 0
        s_mov_b32 s{slim}, s{scount}
        """)
    def rd_addr(off, j): return f"ds_read_b128 {vr(ADDR+4*j,4)}, v{vA1} offset:{L1+off+32*j}"
    def rd_l2(reg, off): return f"ds_read_b32 v{reg}, v{vA2} offset:{L2+off}"
    def ld_raw(p, b, r):
        pre = [f"v_and_b32 v{ADDR+r}, 0xffff80, v{ADDR+r}"] if OPT.get("safe") else []
        if OPT.get("noload"): return ["s_nop 0"]
        return pre + [f"buffer_load_dword v{raw(p,b)+r}, v{ADDR+r}, {sr(sT,4)}, 0 offen" + (" offset:128" if b else "") + " " + OPT.get("ft", "")]
    def ld_blk(p, b): return sum((ld_raw(p, b, r) for r in range(16)), [])
    cur = {"r": "P"}
    def rd_l3(off, reg=None): return [f"ds_read_b32 v{reg or vEa}, v{vA3} offset:{L2+off}"] if cur["r"] == "P" else []
    lab = [0]
    def dma_ea(sl, reg=None, check=True):
        if cur["r"] != "P": return []
        reg = reg or vEa
        if not check:
            return [f"s_mov_b32 m0, s{sm0}", f"v_and_or_b32 v{reg}, v{reg}, s{cm32}, v{vP16}",
                    f"buffer_load_dwordx4 v{reg}, {sr(sE,4)}, 0 offen {OPT.get('fe', '')} lds;wr={300+sl}", f"s_add_u32 s{sm0}, s{sm0}, 1024"]
        lab[0] += 1
        return [f"s_cmp_lt_u32 s{sdma}, s{slim}", f"s_cbranch_scc0 K2_ND{lab[0]}", "@D{",
                f"s_mov_b32 m0, s{sm0}", f"v_and_or_b32 v{reg}, v{reg}, s{cm32}, v{vP16}",
                f"buffer_load_dwordx4 v{reg}, {sr(sE,4)}, 0 offen {OPT.get('fe', '')} lds;wr={300+sl}", "@}", f"K2_ND{lab[0]}:",
                f"s_add_u32 s{sdma}, s{sdma}, 1", f"s_add_u32 s{sm0}, s{sm0}, 1024"]
    spins = []
    def rd_prog(): return [f"ds_read_b32 v{vEa}, v{vPG}"] if cur["r"] == "C" else []
    def get_ea(p, sl, off, prev=()):
        o = [f"s_add_u32 s{sneed}, s{sneed}, 1"]
        if cur["r"] == "P":
            o += [f"v_mov_b32 v{vEa}, s{sneed};rd={300+sl}", f"ds_write_b32 v{vPG}, v{vEa}"]
            if prev: o.append("@MOVE 302 300")
        else:
            lab[0] += 1; n = lab[0]; spins.append(n)
            o += [f"v_cmp_gt_u32 vcc, s{sneed}, v{vEa}", f"s_cbranch_vccnz K2_SP{n}", f"K2_OK{n}:"]
        return o + [f"v_lshl_add_u32 v{vEa}, v{vA2}, 3, v{vHS}", f"ds_read_b128 {vr(EA+4*p,4)}, v{vEa} offset:{8*off}"]
    def oh_idx(p):
        return [f"v_and_b32 v{vOa}, 30, v{vOa}",
                f"v_lshl_add_u32 v{vOa}, v{vOa}, 3, v{vH256}",
                f"ds_read_b128 {vr(OH+4*p,4)}, v{vOa} offset:{OHL}"]
    big = "v_mfma_f32_32x32x16_bf16" if not OPT.get("nobig") else "; "
    de = OPT.get("drop", "")
    def mE(p, b): return "; " if "E" in de else f"{big} {vr(gb(p,b),16)}, {vr(EA+4*p,4)}, {vr(WC+4*b,4)}, 0"
    def mA(p, b): return "; " if "A" in de else f"{big} {vr(gb(p,b),16)}, {vr(OH+4*p,4)}, {vr(AP+4*b,4)}, {vr(gb(p,b),16)}"
    def mS(p): return "; " if "S" in de else f"{big} {vr(SP,16)}, {vr(OH+4*p,4)}, {vr(SC,4)}, 0"
    def mG(p, b, j): return "; " if ("G" in de or ("g" in de and j & 1)) else (f"{big} {vr(ACC+16*b,16)}, {vr(gb(p,b)+4*j,4)}, {vr(SP+4*j,4)}, {vr(ACC+16*b,16)}" if OPT.get("swapg") else f"{big} {vr(ACC+16*b,16)}, {vr(SP+4*j,4)}, {vr(gb(p,b)+4*j,4)}, {vr(ACC+16*b,16)}")
    def mP(p, b):
        o = []
        if "P" in de: return ["; "]*8
        for u in range(2):
            for j in range(4):
                g = vr(gb(p,b)+4*j, 4)
                o.append(f"v_mfma_f32_4x4x4_16b_bf16 {g}, {vr(PA+2*u,2)}, {vr(raw(p,b)+4*j+2*u,2)}, {g}")
        return o
    def idx_pair(p, b, i):
        g0, g1 = gb(p,b)+2*i, gb(p,b)+2*i+1
        if i < NTB[b]:
            return [f"v_exp_f32 v{g0}, v{g0}", f"v_exp_f32 v{g1}, v{g1}", f"v_add_f32 v{g0}, 1.0, v{g0}",
                    f"v_add_f32 v{g1}, 1.0, v{g1}", f"v_rcp_f32 v{g0}, v{g0}", f"v_rcp_f32 v{g1}, v{g1}"], []
        return [f"v_cvt_pkrtz_f16_f32 v{g0}, v{g0}, v{g1}",
                f"v_and_b32_sdwa v{g1}, s{cfe}, v{g0} {sd} src1_sel:WORD_1",
                f"v_and_b32_sdwa v{g0}, s{cfe}, v{g0} {sd} src1_sel:WORD_0"], \
               [f"ds_read_u16_d16_hi v{g1}, v{g1} offset:{LUTL}", f"ds_read_u16_d16_hi v{g0}, v{g0} offset:{LUTL}"]
    def fin_pair(p, b, i):
        g0, r0 = gb(p,b)+2*i, raw(p,b)+2*i
        mul = [f"v_pk_mul_f32 {vr(r0,2)}, {vr(g0,2)}, {vr(r0,2)}"] if OPT.get("pk") else [f"v_mul_f32 v{r0}, v{g0}, v{r0}", f"v_mul_f32 v{r0+1}, v{g0+1}, v{r0+1}"]
        return mul + [
                f"v_cvt_pk_bf16_f32 v{g0}, v{g0}, v{r0}", f"v_cvt_pk_bf16_f32 v{g0+1}, v{g0+1}, v{r0+1}"]
    def zipl(x, y):
        o = []
        for k in range(max(len(x), len(y))):
            if k < len(x): o.append(x[k])
            if k < len(y): o.append(y[k])
        return o
    uid = [0]
    def W(kind):
        uid[0] += 1
        return f"@W{kind} {uid[0]}"
    SH = int(OPT.get("short", "4"))
    F2 = OPT.get("f2", "0") == "1"
    XE = OPT.get("xe", "1") == "1"
    WE = int(OPT.get("we", "2"))
    def slot(p, b, kind, acc=True, np_=8, npg=8):
        q = 1-p
        nxt = (p, 1) if b == 0 else (q, 0)
        do_idx = b == 0 or kind != "L"
        gs = [[mG(q if b == 0 else p, 1-b, j)] for j in range(npg//2)] if acc else []
        bigs = gs[:2]
        if kind != "L": bigs += [[mE(q, b)], [mA(q, b)]]
        bigs += gs[2:]
        if b == 0: bigs += [[mS(p)]]
        smalls = mP(q, b) if kind != "L" else []
        out = []
        nb = 0
        for i in range(8):
            if i >= np_:
                out += sum(bigs[nb:], []); nb = len(bigs)
                break
            iv, il = idx_pair(*nxt, i) if do_idx else ([], [])
            fv = fin_pair(p, b, i)
            seq = zipl(iv, fv) + il
            if SH:
                rr = range(16*i//SH, 16*(i+1)//SH) if i < SH else []
                if (b == 0 and kind != "L") or (b == 1 and kind == "F"):
                    for r_ in rr: seq += ld_raw(q, 1, r_) if b == 0 else ld_raw(p, 0, r_)
                if kind == "P" and b == 0 and i == SH and XE: seq += ld_xr()
                if kind == "F":
                    if b == 0:
                        for r_ in rr:
                            if r_ & 3 == 3: seq.append(rd_addr((2+p)*128, r_ >> 2))
                    if b == 0 and i == 1: seq = dma_ea(p, check=False) + seq
                    if b == 1 and i == 1: seq += rd_prog()
                    if b == 1 and i == 6: seq += get_ea(p, p, (2+p)*128)
                    if b == 1 and i == 7: seq += rd_l3((3+p)*128)
                    if b == 0 and i == 5: seq.append(rd_l2(vOa, (2+p)*128))
                    if b == 1 and i == 2: seq += oh_idx(p)
            elif kind == "F":
                seq += ld_raw(p, b, 2*i) + ld_raw(p, b, 2*i+1)
                if b == 1 and i & 1: seq.append(rd_addr((3+p)*128, i >> 1))
                if OPT.get("burst"):
                    if p == 0 and b == 0 and i == 0: seq += rd_l3(3*128) + rd_l3(4*128, vOa)
                    if p == 0 and b == 0 and i == 4: seq = dma_ea(1) + dma_ea(2, vOa) + seq
                else:
                    if b == 0 and i == 1: seq += rd_l3((3+p)*128)
                    if b == 1 and i == 0: seq = dma_ea(q) + seq
                if b == 1 and i == 1: seq += rd_prog()
                if b == 1 and i == 6: seq += get_ea(p, p, (2+p)*128, (2,) if (OPT.get('burst') and p == 0) else ())
                if b == 0 and i == 5: seq.append(rd_l2(vOa, (2+p)*128))
                if b == 1 and i == 2: seq += oh_idx(p)
            pre = [W("l")] if i % WE == 0 else []
            if cur["r"] == "P" and kind != "L":
                if (b, i) == (0, 0): pre.append("s_setprio 2")
                if (b, i) == divmod(int(OPT.get("fair", "12")), 8): pre.append("s_setprio 0")
            if i < 6:
                take = 2 if (len(bigs) - nb) > (6 - i) else 1
                if nb < len(bigs): pre += bigs[nb]; nb += 1
                if take == 2 and nb < len(bigs):
                    seq = seq[:6] + bigs[nb] + seq[6:]; nb += 1
            if smalls and i >= 5:
                k0, k1 = {5: (0, 2), 6: (2, 6), 7: (6, 8)}[i]
                sm = smalls[k0:k1]
                if i == 5: seq = seq[:4] + [W("v")] + zipl(sm, seq[4:])
                else: seq = zipl(sm, seq)
            out += pre + seq
        assert nb == len(bigs)
        return out
    def last(p, np_):
        n = f"{p}{cur['r']}{np_}"
        return ([f"K2_LAST{n}:"] + ([] if XE else ld_xr()) + slot(p, 0, "L", np_=np_) + ["s_nop 11"]*(np_ < 6) + slot(p, 1, "L", np_=np_, npg=np_)
                + ["s_nop 1"] + [mG(p, 1, j) for j in range(np_//2)])
    def body(p, kind):
        q = 1-p; n = f"{kind}{p}{cur['r']}"
        o0 = [f"K2_BODY{n}:"] + slot(p, 0, kind)
        o1 = [f"K2_MID{n}:"] + (ld_xr() if kind == "L" else []) + slot(p, 1, kind)
        if OPT.get("prof") == "7": o1 += ["s_mov_b32 m0, s98", "s_add_u32 s98, s98, 1", f"v_writelane_b32 v{UR+5}, s86, m0", "s_memrealtime s[86:87]"]
        if kind == "P":
            for np_ in (2, 4, 6): o1 += [f"s_cmp_eq_u32 s{stail}, {np_}", f"s_cbranch_scc1 K2_LAST{q}{cur['r']}{np_}"]
        if kind == "F":
            if p == 1: o1 += [f"v_add_u32 v{r_}, 256, v{r_}" for r_ in ((vA1, vA2, vA3) if cur["r"] == "P" else (vA1, vA2))]
            o1 += [f"s_sub_u32 s{scount}, s{scount}, 1", f"s_cmp_eq_u32 s{scount}, 2", f"s_cbranch_scc1 K2_BODYP{q}{cur['r']}"]
        return o0, o1
    def entry_short(kind):
        more = kind != "L"
        o = rd_prog() + [W("v"), W("l")] + get_ea(0, 0, 0)
        if more: o += rd_prog() + rd_l3(128)
        o += [W("l"), "@STAMP", mE(0, 0), mA(0, 0), mE(0, 1), mA(0, 1)]
        if F2: o += ld_blk(0, 1) + [rd_addr(128, j) for j in range(4)]
        o += (dma_ea(1, check=False) if more else []) + ["s_nop 7", W("v")] + mP(0, 0) + ["s_nop 3"]
        for i in range(8):
            v_, l_ = idx_pair(0, 0, i)
            o += [W("l")] + ([v_[0], v_[1], "s_nop 0"] + v_[2:] if i < NTB[0] else v_) + l_
            if more:
                if i < 4:
                    for r_ in range(4*i, 4*i+4): o += ld_raw(1, 0, r_)
                if i == 6: o += [W("v")] + get_ea(1, 1, 128)
                if i == 7 and kind == "F": o += rd_l3(256)
            if i == (5 if F2 else 3): o += [W("v")] + mP(0, 1)
        return o + slot(0, 0, kind, acc=False) + [f"s_branch K2_MID{kind}0{cur['r']}"]
    def entry(kind):
        if SH: return entry_short(kind)
        more = kind != "L"
        o = rd_prog() + [W("v"), W("l")] + get_ea(0, 0, 0)
        if more: o += rd_prog()
        o += [W("l"), "@STAMP", mE(0, 0), mA(0, 0), mE(0, 1), mA(0, 1), "s_nop 7", W("v")] + mP(0, 0) + ["s_nop 3"]
        for i in range(8):
            v_, l_ = idx_pair(0, 0, i)
            o += [W("l")] + ([v_[0], v_[1], "s_nop 0"] + v_[2:] if i < NTB[0] else v_) + l_
            if more:
                for r_ in range(4*(i & 3), 4*(i & 3)+4): o += ld_raw(1, i >> 2, r_)
                if i >= 4: o.append(rd_addr(256, i-4))
                if i == 4: o += [W("v")] + get_ea(1, 1, 128) + rd_l3(256)
                if i == 7: o += dma_ea(0)
            if i == 3: o += [W("v")] + mP(0, 1)
        return o + slot(0, 0, kind, acc=False) + [f"s_branch K2_MID{kind}0{cur['r']}"]
    def drain(p): return ["s_nop 1"] + [mG(p, 1, j) for j in range(4)]
    def mk_fill():
        ad = [rd_addr(0, j) for j in range(4)]
        t0 = SP
        o = []
        if cur["r"] == "P":
            o = (rd_l3(0) + [f"ds_read_b32 v{t0}, v{vA3} offset:{L2+128}"])
        o += ad + [rd_l2(vOa, 0), rd_l2(t0+1, 128)]
        if cur["r"] == "P":
            o += ["s_waitcnt lgkmcnt(6)"] + dma_ea(0) + [f"v_mov_b32 v{vEa}, v{t0}"]
        d1 = dma_ea(1) if not SH else []
        late1 = OPT.get("d1", "1") == "1"
        o += ([] if late1 else d1) + ["s_waitcnt lgkmcnt(0)"] + ld_blk(0, 0) + oh_idx(0) + [f"v_mov_b32 v{vOa}, v{t0+1}"] + oh_idx(1)
        if F2: return o
        o += ld_blk(0, 1) + (d1 if late1 else [])
        return o + [rd_addr(128, j) for j in range(4)]
    FI, B, EN, LA_ = {}, {}, {}, {}
    for r in "PC":
        cur["r"] = r
        if r == "C" and OPT.get("ntc"): NTB[:] = [int(c_) for c_ in OPT["ntc"]]
        FI[r] = mk_fill()
        for k in "FPL":
            EN[r, k] = entry(k)
            for p in range(2): B[r, p, k] = body(p, k)
        for p in range(2):
            for np_ in (2, 4, 6, 8): LA_[r, p, np_] = last(p, np_)
    def trace(r, cnt, np_=8):
        kinds = ["F"]*(cnt-2) + ["P", "L"][-min(cnt, 2):]
        tr = FI[r] + EN[r, kinds[0]] + B[r, 0, kinds[0]][1]
        for t in range(1, cnt-1): tr += B[r, t & 1, kinds[t]][0] + B[r, t & 1, kinds[t]][1]
        if cnt > 1 and np_ < 8: tr = tr[:len(tr) - 2*(2 - (np_-2)//2)]
        tr += drain(0) if cnt == 1 else LA_[r, (cnt-1) & 1, np_]
        o = []; keep = True; nd = 0
        for x in tr:
            if x == "@D{": keep = nd < cnt; nd += 1
            elif x == "@}": keep = True
            elif keep and x != "@STAMP": o.append(x)
        return o
    epi_head = ["s_branch x", "s_cmp", "s_cbranch", "s_waitcnt vmcnt(0) lgkmcnt(0)"] + [f"v_add_f32 v{G+r_}, 0, v{XR}" for r_ in range(24)] + [f"v_add_f32 v{ACC+r_}, 0, v{ACC+r_}" for r_ in range(32)]
    cases = [(r, c, n_) for c in range(1, 9) for r in "PC" for n_ in (2, 4, 6, 8)]
    need = asmsim.solve_waits([trace(*c) for c in cases])
    for c in cases: asmsim.check_hazards(asmsim.apply_waits(trace(*c), need) + epi_head, f"case {c}")
    def emit(l):
        for x in asmsim.apply_waits(l, need):
            if x == "@STAMP":
                stamp(a, 5); stamp(a, 5, "3"); stamp(a, 7, "4")
                if OPT.get("prof") == "7": a("s_memrealtime s[86:87]\ns_mov_b32 s98, 1")
                if OPT.get("prof") == "3": a(f"s_memtime s[86:87]\ns_mov_b32 s90, s{scount}\ns_getreg_b32 s92, hwreg(HW_REG_HW_ID)")
            elif x[0] != "@": a(x.split(";")[0] or "s_nop 0")
    def main_loop(r):
        a(f"""
        K2_GO{r}:
        s_cmp_eq_u32 s{scount}, 0
        s_cbranch_scc1 K2_EMPTY
        s_cmp_gt_u32 s{scount}, 2
        s_cbranch_scc1 K2_ENTF{r}
        s_cmp_eq_u32 s{scount}, 2
        s_cbranch_scc1 K2_ENTP{r}
        """)
        emit(EN[r, "L"]); a(f"K2_ENTP{r}:"); emit(EN[r, "P"]); a(f"K2_ENTF{r}:"); emit(EN[r, "F"])
        a(".p2align 6")
        for _ in range(int(OPT.get("pad", "0"))): a("s_nop 0")
        for p in range(2): emit(B[r, p, "F"][0] + B[r, p, "F"][1])
        a(f"s_branch K2_BODYF0{r}")
        emit(B[r, 0, "L"][1] + drain(0)); a("s_branch K2_DONE")
        for p in range(2):
            for np_ in (2, 4, 6): emit(LA_[r, p, np_]); a("s_branch K2_DONE")
        for p in range(2):
            emit(B[r, p, "P"][0] + B[r, p, "P"][1] + LA_[r, 1-p, 8])
            if p == 0 or r == "P": a("s_branch K2_DONE")
    def fill(n):
        a(f"s_cmp_eq_u32 s{scount}, 0\ns_cbranch_scc1 K2_FILLED{n}")
        emit(FI[n])
        a(f"K2_FILLED{n}:")
    def ap_addr():
        a(f"""
        v_bfe_u32 v{vt}, v0, 2, 2
        v_lshrrev_b32 v{vt+1}, 1, v{vH16}
        v_add_u32 v{vt}, v{vt}, v{vt+1}
        v_mul_u32_u24 v{vt}, {ROWP}, v{vt}
        v_bfe_u32 v{vt+2}, v0, 4, 1
        v_lshl_add_u32 v{vt}, v{vt+2}, 5, v{vt}
        v_and_b32 v{vt+2}, 3, v0
        v_lshl_add_u32 v{vt}, v{vt+2}, 3, v{vt}
        s_mul_i32 s{st0}, s{sg}, {GN*ROWP}
        s_lshl_b32 s{st1}, s{sfh}, 7
        s_add_u32 s{st0}, s{st0}, s{st1}
        v_add_u32 v{vt}, s{st0}, v{vt}
        v_mul_u32_u24 v{vt+1}, {ROWP//2}, v{vt+1}
        v_and_b32 v{vt+2}, 127, v{vO}
        v_add3_u32 v{vt+1}, v{vt+2}, s{st0}, v{vt+1}
        """)
    def ap_read():
        a(f"""
        ds_read_b64_tr_b16 {vr(AP,2)}, v{vt} offset:{APL}
        ds_read_b64_tr_b16 {vr(AP+2,2)}, v{vt} offset:{APL+4*ROWP}
        ds_read_b64_tr_b16 {vr(AP+4,2)}, v{vt} offset:{APL+64}
        ds_read_b64_tr_b16 {vr(AP+6,2)}, v{vt} offset:{APL+4*ROWP+64}
        """)
        for r in range(6): a(f"ds_read_b32 v{UR+r}, v{vt+1} offset:{UL+ROWP*rowoff(r)}")
    def init_addr():
        for r in range(16): a(f"v_mov_b32 v{ADDR+r}, 128")
    def zero_acc():
        for r in range(32): a(f"v_mov_b32 v{ACC+r}, 0")

    a(f"s_cmp_lg_u32 s{sfh}, 0\ns_cbranch_scc1 K2_LOADER")
    if OPT.get("sp"): a(f"s_setprio {OPT['sp']}")
    ld_wc()
    a.ext(common1(SP, vt))
    a(f"v_and_b32 v{vt+3}, 15, v0\nv_lshlrev_b32 v{vt+3}, 4, v{vt+3}\nv_bfe_u32 v{vt+4}, v0, 4, 2\nv_lshl_add_u32 v{vt+3}, v{vt+4}, 10, v{vt+3}\ns_lshl_b32 s{st0}, s{sg}, 8\nv_add_u32 v{vt+3}, s{st0}, v{vt+3}")
    a(f"v_add_u32 v{vt+4}, 40960, v{vt+3}")
    for val, rg, runs in ((0x3f003f00, EA, (0, 3, 32, 35)), (0, EA+4, (23, 27)), (0x3f803f80, OH, (51, 55, 59))):
        for j in range(4): a(f"v_mov_b32 v{rg+j}, {val:#x}")
        for c0 in runs:
            a(f"ds_write_b128 v{vt+4 if c0 >= 24 else vt+3}, {vr(rg,4)} offset:{LUTL + 1024*(c0 - (40 if c0 >= 24 else 0))}")
    a(f"""
    v_and_b32 v{vt+3}, 127, v0
    v_bfe_u32 v{vt+4}, v0, 2, 4
    v_and_b32 v{Z+4}, 3, v0
    v_lshrrev_b32 v{Z+5}, 6, v{vt+3}
    v_lshlrev_b32 v{vt+3}, 2, v{vt+3}
    v_lshl_add_u32 v{Z+4}, v{Z+5}, 2, v{Z+4}
    v_lshlrev_b32 v{Z+5}, 1, v{Z+4}
    v_mov_b32 v{Z+6}, 0x3780
    v_mov_b32 v{Z+7}, 0x37800000
    v_cmp_eq_u32 vcc, v{Z+5}, v{vt+4}
    v_add_u32 v{Z+5}, 1, v{Z+5}
    s_nop 0
    v_cndmask_b32 v{Z+8}, 0, v{Z+6}, vcc
    v_cmp_eq_u32 vcc, v{Z+5}, v{vt+4}
    s_nop 1
    v_cndmask_b32 v{Z+9}, 0, v{Z+7}, vcc
    v_or_b32 v{Z+8}, v{Z+8}, v{Z+9}
    v_cmp_gt_u32 vcc, 15, v{vt+4}
    s_nop 1
    v_cndmask_b32 v{Z+8}, 0, v{Z+8}, vcc
    ds_write_b32 v{vt+3}, v{Z+8} offset:{OHL}
    """)
    a(f"""
    v_mul_u32_u24 v{EOFF}, {CS*32}, v{vt+1}
    v_add_u32 v{EOFF+1}, {64*CS*32}, v{EOFF}
    v_mov_b32 v{vt+3}, 4
    """)
    init_addr()
    a(f"s_waitcnt vmcnt({2 + (TP0 > 0)})")
    stamp(a, 2); stamp(a, 1, "5")
    if OPT.get("half", "0") == "1":
        for u in range(2): a(f"v_mov_b32_dpp v{vt+8+u}, v{REC+4*u+3} quad_perm:[3,3,3,3] row_mask:0xf bank_mask:0xf")
        for u in range(2): a(f"v_cmp_eq_u32 {sr(68+2*u,2)}, -1, v{vt+8+u}")
        a("s_nop 0")
        for u in range(2):
            for i in range(4): a(f"v_cndmask_b32 v{REC+8+4*u+i}, v{REC+8+4*u+i}, -1, {sr(68+2*u,2)}")
    a(f"""
    v_cmp_eq_u32 vcc, -2, v{REC+11}
    v_cmp_eq_u32 s[78:79], -2, v{REC+15}
    s_or_b64 vcc, vcc, s[78:79]
    s_cbranch_vccz K2_NOOVF
    v_mov_b32 v{vt+4}, 0x10000
    v_mov_b32 v{vt}, 60
    ds_add_u32 v{vt}, v{vt+4} offset:{CNT}
    K2_NOOVF:
    """)
    M = [68, 70, 72, 74, 76, 78]
    KS = [[4*u+i for i in range(4)] + [8+4*u, 9+4*u] for u in range(2)]
    def masked(u, fn):
        for j, k in enumerate(KS[u]): a(f"v_cmp_gt_u32 {sr(M[j],2)}, -2, v{REC+k}")
        for j, k in enumerate(KS[u]): a(f"s_mov_b64 exec, {sr(M[j],2)}\n{fn(k, 6*u+j)}")
        a("s_mov_b64 exec, -1")
    for k in KS[0] + KS[1]: a(caddr(k))
    for u in range(2): masked(u, lambda k, j: f"ds_add_rtn_u32 v{RANK+k}, v{CADDR+k}, v{vt+3} offset:{CNT}")
    a(f"v_min_u32 v{vt+4}, v{REC+10}, v{REC+14}\nv_cmp_gt_u32 s[26:27], -2, v{vt+4}")
    def steps(tag, fn):
        a(f"s_cmp_eq_u64 s[26:27], 0\ns_cbranch_scc1 K2_{tag}1\ns_waitcnt lgkmcnt(0)")
        for u in range(2):
            for k in (10+4*u, 11+4*u):
                a(f"v_cmpx_gt_u32 vcc, -2, v{REC+k}\ns_cbranch_execz K2_{tag}{u}")
                fn(k, u)
            a(f"K2_{tag}{u}:\ns_mov_b64 exec, -1")
    steps("C", lambda k, u: a(f"{caddr(k)}\nds_add_rtn_u32 v{RANK+k}, v{CADDR+k}, v{vt+3} offset:{CNT}"))
    arrive(0)
    stamp(a, 2, "5")
    LA, LB = raw(0, 0), raw(0, 1)
    for u in range(2):
        for j, k in enumerate(KS[u]):
            a(f"v_bfe_u32 v{LA+6*u+j}, v{REC+k}, 16, {5 if 't' in OPT.get('nomem','') else 14}\nv_mad_u32_u16 v{LB+6*u+j}, v{REC+k}, 2, v{EOFF+u}")
    NBK = int(OPT.get("nbk", "0"))
    if NBK:
        for u in range(2):
            for j, k in enumerate(KS[u]): a(f"v_and_b32 v{vt+8}, 0x3c, v{CADDR+k}\nv_cmp_gt_u32 {sr(M[j],2)}, {4*NBK}, v{vt+8}")
            for j, k in enumerate(KS[u]): a(f"s_mov_b64 exec, {sr(M[j],2)}\nbuffer_load_ubyte v{vt+12}, v{LB+6*u+j}, {sr(sE,4)}, 0 offen")
            a("s_mov_b64 exec, -1")
    for j in range(12): a(f"v_mul_u32_u24 v{LA+j}, s{csrc}, v{LA+j}")
    spin(0, "A", add=False)
    stamp(a, 3, "5")
    scan(True, KS[0] + KS[1])
    a("s_waitcnt lgkmcnt(1)")
    stamp(a, 4, "5")
    for j, k in enumerate(KS[0] + KS[1]): a(f"v_add_u32 v{STV+j}, v{STV+j}, v{RANK+k}")
    for j, k in enumerate(KS[0] + KS[1]): a(f"v_lshlrev_b32 v{RANK+k}, 3, v{STV+j}")
    for j, k in enumerate(KS[0] + KS[1]): a(f"v_and_or_b32 v{LA+j}, v{RANK+k}, s{c128}, v{LA+j}")
    for u in range(2): masked(u, lambda k, j: f"ds_write2st64_b32 v{STV+j}, v{LA+j}, v{LB+j} offset0:{L1//256} offset1:{L2//256}")
    def put_step(k, u):
        a(f"ds_read_b32 v{STV+12}, v{CADDR+k} offset:{START}\ns_waitcnt lgkmcnt(0)")
        place(k, STV+12, EOFF+u)
    steps("P", put_step)
    arrive(1)
    stamp(a, 5, "5")
    lane_setup()
    stamp(a, 6, "5")
    if OPT.get("order", "1") == "1":
        a(f"""
        v_mov_b32 v{vt+6}, {FLG+4}
        K2_SPINB:
        ds_read2_b32 {vr(vt+8,2)}, v{vt+6} offset0:0 offset1:1
        s_waitcnt lgkmcnt(0)
        v_min_u32 v{vt+7}, v{vt+8}, v{vt+9}
        v_cmp_gt_u32 vcc, 4, v{vt+7}
        s_cbranch_vccnz K2_SPINB
        """)
    else: spin(1, "B", add=False)
    stamp(a, 3); stamp(a, 7, "5")
    a("K2_REFILLP:")
    fill("P")
    stamp(a, 4)
    a(f"s_cmp_lg_u32 s{sslow}, 0\ns_cbranch_scc1 K2_GOP")
    zero_acc()
    ap_addr()
    spin(3, "D", add=False)
    ap_read()
    main_loop("P")
    a("K2_GIVEUP:")
    arrive(1)
    spin(3, "E", add=False)
    a("s_branch K2_SLOW")
    assert XL % 256 == 0
    XF = G; WT = [ACC, raw(0, 0)]
    accs = [[[raw(1,0)+8*nb, raw(1,0)+8*nb+4] for nb in range(3)], [[raw(1,1)+8, raw(1,1)+12], [SP, SP+4], [SP+8, ADDR]]]
    a(f"""
    K2_LOADER:
    v_lshrrev_b32 v{vt+4}, 4, v{vt}
    s_lshl_b32 s{st1}, s{sg}, 2
    v_add_u32 v{vA1}, s{st1}, v{vt+4}
    v_and_b32 v{vt+5}, 15, v0
    v_xor_b32 v{vA1}, v{vA1}, v{vt+5}
    v_lshlrev_b32 v{vA1}, 4, v{vA1}
    v_lshl_add_u32 v{vA1}, v{vt+4}, 8, v{vA1}
    s_lshl_b32 s{st1}, s{sg}, 10
    """)
    if OPT.get("nobulk"):
        ld_wc()
        a.ext(common1(XR+1, vt))
        a(f"v_and_b32 v{vt+2}, 255, v0\nv_lshlrev_b32 v{vt+2}, 4, v{vt+2}")
        for j in range(4): a(f"v_mov_b32 v{EA+j}, 0")
        for j in range(4): a(f"ds_write_b128 v{vt+2}, {vr(EA,4)} offset:{APL+4096*j}")
        arrive(2); arrive(3)
        a("s_branch K2_NOBULK")
    for k in range(3):
        a(f"""
        s_add_u32 m0, s{st1}, {XL+4096*k}
        s_add_u32 s{st2}, s{st1}, {4096*k}
        buffer_load_dwordx4 v{vA1}, {sr(sX,4)}, s{st2} offen lds
        """)
    stamp(a, 1, "6")
    srot = sk
    a(f"s_lshl_b32 s{slut}, s{sg}, 13\ns_lshr_b32 s{srt}, s2, 3")
    for j in range(4):
        a(f"s_add_u32 s{srot+j}, s{srt}, {j}\ns_and_b32 s{srot+j}, s{srot+j}, 3\ns_lshl_b32 s{srot+j}, s{srot+j}, 10\ns_add_u32 s{st2}, s{slut}, s{srot+j}")
        for m in range(2):
            for hf in range(2):
                a(f"buffer_load_dwordx4 {vr(WT[m]+16*hf+4*j,4)}, v{vA2}, {sr(sWT,4)}, s{st2} offen")
                if (m, hf) != (1, 1): a(f"s_add_u32 s{st2}, s{st2}, {4096 if hf == 0 else 32768-4096}")
    stamp(a, 2, "6")
    a(f"""
    s_lshl_b32 s{st0}, s{sg}, 12
    s_add_u32 m0, s{st0}, {LUTL + 7*1024}
    s_add_u32 s{st2}, s{st0}, {LUT_OFF - WT_OFF + 7*1024}
    """)
    for j in range(4): a(f"buffer_load_dwordx4 v{vA2}, {sr(sWT,4)}, s{st2} offen offset:{1024*j} lds")
    a(f"""
    s_mul_i32 s{st0}, s{sg}, 3072
    s_add_u32 m0, s{st0}, {LUTL + 39*1024}
    s_add_u32 s{st2}, s{st0}, {LUT_OFF - WT_OFF + 39*1024}
    """)
    for j in range(3): a(f"buffer_load_dwordx4 v{vA2}, {sr(sWT,4)}, s{st2} offen offset:{1024*j} lds")
    a(f"""
    s_and_b32 s{st0}, s{sg}, 1
    s_lshl_b32 s{st0}, s{st0}, 15
    s_add_u32 m0, s{st0}, {LUTL + 31*1024}
    s_add_u32 s{st2}, s{st0}, {LUT_OFF - WT_OFF + 31*1024}
    buffer_load_dwordx4 v{vA2}, {sr(sWT,4)}, s{st2} offen lds
    """)
    ld_wc()
    stamp(a, 3, "6")
    a(f"""
    s_waitcnt vmcnt(26)
    """)
    arrive(2)
    a(f"""
    v_mov_b32 v{vt+8}, v{vt}
    v_and_b32 v{vt}, 15, v0
    v_bfe_u32 v{vt+1}, v0, 4, 2
    v_xor_b32 v{vt+2}, v{vt}, v{vt+1}
    v_lshlrev_b32 v{vt+2}, 4, v{vt+2}
    v_lshl_add_u32 v{vt+2}, v{vt}, 8, v{vt+2}
    v_add_u32 v{vt+2}, {XL}, v{vt+2}
    v_mul_u32_u24 v{vt}, {ROWP}, v{vt}
    """)
    stamp(a, 2); stamp(a, 5, "6")
    spin(2, "C", add=False)
    stamp(a, 6, "6")
    for s in range(4):
        a(f"s_lshr_b32 s{st0}, s{srot+s}, 4\nv_xor_b32 v{vt+3}, s{st0}, v{vt+2}")
        for nb in range(3):
            a(f"ds_read_b128 {vr(XF+16*nb+4*s,4)}, v{vt+3} offset:{4096*nb}")
    a(f"""
    s_lshr_b32 s{st0}, s{sg}, 1
    s_lshl_b32 s{st0}, s{st0}, 7
    s_and_b32 s{st1}, s{sg}, 1
    s_lshl_b32 s{st1}, s{st1}, 5
    s_add_u32 s{st0}, s{st0}, s{st1}
    v_lshl_add_u32 v{vt+4}, v{vt+1}, 3, v{vt}
    v_add_u32 v{vt+4}, s{st0}, v{vt+4}
    s_lshl_b32 s{st0}, s{sg}, 6
    v_lshl_add_u32 v{vt+5}, v{vt+1}, 3, v{vt}
    v_add_u32 v{vt+5}, s{st0}, v{vt+5}
    """)
    def mm1(m, s):
        return [f"v_mfma_f32_16x16x32_bf16 {vr(accs[m][nb][ab], 4)}, {vr(WT[m]+16*ab+4*s,4)}, {vr(XF+16*nb+4*s,4)}, {'0' if s == 0 else vr(accs[m][nb][ab], 4)}"
                for nb in range(3) for ab in range(2)]
    outA = []
    for nb in range(3):
        al, be = accs[0][nb]; o = EA+ (0 if nb != 1 else 4)
        for i in range(4): outA += [f"v_mul_f32 v{al+i}, s{cnl2e}, v{al+i}", f"v_mul_f32 v{be+i}, s{cnl2e}, v{be+i}"]
        outA += [f"v_cvt_pk_bf16_f32 v{o}, v{al}, v{al+2}", f"v_cvt_pk_bf16_f32 v{o+1}, v{be}, v{be+2}",
                 f"v_cvt_pk_bf16_f32 v{o+2}, v{al+1}, v{al+3}", f"v_cvt_pk_bf16_f32 v{o+3}, v{be+1}, v{be+3}",
                 f"ds_write_b64 v{vt+4}, {vr(o,2)} offset:{APL+16*ROWP*nb}", f"ds_write_b64 v{vt+4}, {vr(o+2,2)} offset:{APL+16*ROWP*nb+64}"]
    NPF = int(OPT.get("tpf", "0"))
    if NPF:
        srd(a, sS, 14, T_OFF, N*TS)
        a(f"""
        s_bfe_u32 s{st0}, s2, 0x50003
        s_lshl_b32 s{st0}, s{st0}, 2
        s_add_u32 s{st0}, s{st0}, s{sg}
        s_lshl_b32 s{st0}, s{st0}, 13
        v_lshlrev_b32 v{vt+9}, 7, v{vt+8}
        """)
        for j in range(NPF):
            a(f"buffer_load_dword v{vt+10}, v{vt+9}, {sr(sS,4)}, s{st0} offen")
            if j+1 < NPF: a(f"s_add_u32 s{st0}, s{st0}, {1 << 20}")
    g = []; cm = common1(XR+1, vt+8); k = 0
    for s in range(4):
        g.append(f"s_waitcnt vmcnt({22-4*s+NPF}) lgkmcnt({9-3*s})")
        for x in mm1(0, s) + (mm1(1, s) if s < 3 else []):
            g.append(x); g += cm[k:k+3]; k += 3
    assert k >= len(cm)
    k = 0
    for j, x in enumerate(mm1(1, 3)):
        g.append(x)
        if j >= 2: g += outA[k:k+3]; k += 3
    g += outA[k:]
    for nb in range(3):
        al, be = accs[1][nb]; o = XF+4*nb
        g += [f"v_cvt_pk_bf16_f32 v{o}, v{al}, v{al+1}", f"v_cvt_pk_bf16_f32 v{o+1}, v{al+2}, v{al+3}",
              f"v_cvt_pk_bf16_f32 v{o+2}, v{be}, v{be+1}", f"v_cvt_pk_bf16_f32 v{o+3}, v{be+2}, v{be+3}",
              f"ds_write_b64 v{vt+5}, {vr(o,2)} offset:{UL+16*ROWP*nb}", f"ds_write_b64 v{vt+5}, {vr(o+2,2)} offset:{UL+16*ROWP*nb+32}"]
    asmsim.check_hazards(g, "gemm")
    a.ext(g)
    a(f"s_waitcnt vmcnt({NPF})")
    arrive(3)
    a("K2_NOBULK:")
    stamp(a, 3); stamp(a, 7, "6")
    init_addr()
    spin(1, "F", add=False)
    a(f"""
    v_mov_b32 v{vt+2}, {INCL+60}
    ds_read2_b32 {vr(vt+4,2)}, v{vt+2} offset0:0 offset1:16
    ds_read2_b32 {vr(vt+6,2)}, v{vt+2} offset0:32 offset1:48
    s_waitcnt lgkmcnt(0)
    """)
    for g_ in range(4): a(f"v_readfirstlane_b32 s{sk+g_}, v{vt+4+g_}")
    a(f"""
    s_max_u32 s{st0}, s{sk}, s{sk+1}
    s_max_u32 s{st1}, s{sk+2}, s{sk+3}
    s_max_u32 s{st0}, s{st0}, s{st1}
    s_cmp_gt_u32 s{st0}, {CAPG*4}
    s_cbranch_scc1 K2_SLOW
    """)
    a("s_setprio 1")
    rank_groups()
    lane_setup()
    a("K2_REFILLC:")
    fill("C")
    a(f"s_cmp_lg_u32 s{sslow}, 0\ns_cbranch_scc1 K2_GOC")
    zero_acc()
    ap_addr()
    spin(3, "G", add=False)
    ap_read()
    stamp(a, 4)
    a("s_branch K2_GOC")
    a("K2_EMPTY:"); a.ext(ld_xr()); a("s_branch K2_DONE")
    for n in spins:
        a(f"""
        K2_SP{n}:
        ds_read_b32 v{vEa}, v{vPG}
        s_waitcnt lgkmcnt(0)
        v_cmp_gt_u32 vcc, s{sneed}, v{vEa}
        s_cbranch_vccnz K2_SP{n}
        s_branch K2_OK{n}
        """)
    main_loop("C")
    a(f"""
    K2_DONE:
    s_cmp_lg_u32 s{sslow}, 0
    s_cbranch_scc1 K2_ROUND
    K2_EPI:
    s_waitcnt vmcnt(0) lgkmcnt(0)
    """)
    stamp(a, 6); stamp(a, 6, "3")
    if OPT.get("prof") == "3": a("s_memtime s[88:89]")
    T0 = G
    if OPT.get("pke", "1") == "1":
        a(f"s_mov_b32 s{st0+1}, 0x358637bd\ns_mov_b32 s{st0+2}, 0x358637bd")
        for b in range(2):
            for r in range(6):
                u, x = T0+12*b+r, T0+12*b+6+r
                if b == 0: a(f"v_lshlrev_b32 v{u}, 16, v{UR+r}\nv_lshlrev_b32 v{x}, 16, v{XR+r}")
                else: a(f"v_and_b32 v{u}, 0xffff0000, v{UR+r}\nv_and_b32 v{x}, 0xffff0000, v{XR+r}")
        for b in range(2):
            for r in range(0, 6, 2): a(f"v_pk_add_f32 {vr(ACC+16*b+r,2)}, {vr(ACC+16*b+r,2)}, {sr(st0+1,2)}")
            for r in range(6): a(f"v_rcp_f32 v{ACC+16*b+r}, v{ACC+16*b+r}")
        for b in range(2):
            for r in range(0, 6, 2): a(f"v_pk_fma_f32 {vr(T0+12*b+r,2)}, {vr(ACC+16*b+8+r,2)}, {vr(ACC+16*b+r,2)}, {vr(T0+12*b+r,2)}")
        for b in range(2):
            for r in range(6): a(f"v_max_f32 v{T0+12*b+r}, 0, v{T0+12*b+r}")
        for b in range(2):
            for r in range(0, 6, 2): a(f"v_pk_add_f32 {vr(T0+12*b+r,2)}, {vr(T0+12*b+r,2)}, {vr(T0+12*b+6+r,2)}")
    else:
        for b in range(2):
            for r in range(6):
                a(f"v_add_f32 v{ACC+16*b+r}, 0x358637bd, v{ACC+16*b+r}")
            for r in range(6):
                a(f"v_rcp_f32 v{ACC+16*b+r}, v{ACC+16*b+r}")
            for r in range(6):
                u, x = T0+12*b+r, T0+12*b+6+r
                if b == 0: a(f"v_lshlrev_b32 v{u}, 16, v{UR+r}\nv_lshlrev_b32 v{x}, 16, v{XR+r}")
                else: a(f"v_and_b32 v{u}, 0xffff0000, v{UR+r}\nv_and_b32 v{x}, 0xffff0000, v{XR+r}")
            for r in range(6):
                u, x = T0+12*b+r, T0+12*b+6+r
                a(f"v_fmac_f32 v{u}, v{ACC+16*b+8+r}, v{ACC+16*b+r}\nv_max_f32 v{u}, 0, v{u}\nv_add_f32 v{u}, v{u}, v{x}")
    a(f"v_lshl_or_b32 v{vO2}, v{vH16}, 27, v{vO}")
    for r in range(6):
        a(f"v_cvt_pk_bf16_f32 v{SP+r}, v{T0+r}, v{T0+12+r}")
        a(f"buffer_store_dword v{SP+r}, v{vO if r < 4 else vO2}, {sr(sO,4)}, 0 offen offset:{256*rowoff(r)} {OPT.get('st_o', '')}")
    stamp(a, 7)
    stamp_out(a, 1, 14, sw, 2)
    a("K2_END:\ns_endpgm")

    a("K2_SLOW:")
    srd(a, sS, 8, None, E*4)
    srd(a, sD, 10, None, E*4)
    a(f"""
    s_mov_b32 s{sslow}, 1
    s_mov_b32 s{cm10}, {-GN}
    """)
    a("s_waitcnt vmcnt(0) lgkmcnt(0)\ns_barrier")
    zero_acc(); lane_setup(); ap_addr(); ap_read()
    a(f"""
    K2_ROUND:
    s_cmp_ge_u32 s{sround}, {E//RND}
    s_cbranch_scc1 K2_EPI
    s_mul_i32 s{st0}, s{sround}, {RND}
    s_add_u32 s{sround}, s{sround}, 1
    v_add_u32 v{EOFF}, s{st0}, v0
    v_lshlrev_b32 v{vt}, 2, v{EOFF}
    buffer_load_dword v{REC}, v{vt}, {sr(sD,4)}, 0 offen
    buffer_load_dword v{REC+1}, v{vt}, {sr(sS,4)}, 0 offen
    v_lshlrev_b32 v{EOFF}, 5, v{EOFF}
    v_and_b32 v{vt}, 63, v0
    v_lshlrev_b32 v{vt}, 3, v{vt}
    v_mov_b32 v{vt+4}, 0
    v_mov_b32 v{vt+5}, 0
    s_waitcnt lgkmcnt(0)
    s_barrier
    ds_write_b64 v{vt}, {vr(vt+4,2)} offset:{CNT}
    v_mov_b32 v{vt+3}, 4
    s_waitcnt vmcnt(0) lgkmcnt(0)
    s_barrier
    """)
    rec_fields(a, REC, REC+2, vt, cm40, cm10)
    a(f"""
    v_cmp_eq_u32 vcc, s2, v{REC+2}
    v_lshl_or_b32 v{REC}, v{REC+1}, 16, v{REC}
    {caddr(0)}
    s_mov_b64 s[78:79], vcc
    v_cmp_gt_u32 vcc, {RND}, v0
    s_and_b64 s[78:79], s[78:79], vcc
    s_mov_b64 exec, s[78:79]
    ds_add_rtn_u32 v{RANK}, v{CADDR}, v{vt+3} offset:{CNT}
    s_mov_b64 exec, -1
    s_waitcnt lgkmcnt(0)
    s_barrier
    """)
    scan(False)
    a(f"""
    s_mov_b64 exec, s[78:79]
    ds_read_b32 v{STV}, v{CADDR} offset:{START}
    s_waitcnt lgkmcnt(0)
    """)
    place(0, STV, EOFF)
    a(f"""
    s_mov_b64 exec, -1
    """)
    lane_setup()
    a(f"""
    s_waitcnt lgkmcnt(0)
    s_barrier
    s_cmp_eq_u32 s{sfh}, 0
    s_cbranch_scc1 K2_REFILLP
    s_branch K2_REFILLC
    K2_CODE_END:
    """)
    return a.text(), kd("k2_kernel", 256, 102)

KE_PROF = f"""
    s_memrealtime s[8:9]
    s_load_dwordx2 s[4:5], s[0:1], 88
    s_waitcnt lgkmcnt(0)
    s_add_u32 s4, s4, {PROF_OFF + 0x200000}
    s_addc_u32 s5, s5, 0
    s_mov_b32 s6, 4
    s_mov_b32 s7, 0x20000
    v_mov_b32 v1, s8
    v_lshlrev_b32 v0, 2, v0
    buffer_store_dword v1, v0, s[4:7], 0 offen
"""
def gen_kr():
    a = Asm()
    a(f"""
    kr_kernel:
    s_cmp_ge_u32 s2, 1
    s_cbranch_scc1 KR_END
    s_load_dwordx4 s[4:7], s[0:1], 80
    s_waitcnt lgkmcnt(0)
    s_add_u32 s8, s6, {PROF_OFF}
    s_addc_u32 s9, s7, 0
    s_mov_b32 s10, 0x200000
    s_mov_b32 s11, 0x20000
    s_mov_b32 s6, 256
    s_mov_b32 s7, 0x20000
    v_cmp_gt_u32 vcc, 250, v0
    s_and_saveexec_b64 s[12:13], vcc
    v_lshlrev_b32 v1, 10, v0
    v_mov_b32 v3, 0
    """)
    sel = [(0, 8, 0, 1), (0, 8, 0, 0), (0, 8, 2, 0), (0, 8, 3, 0), (0, 8, 5, 0), (0, 8, 8, 0),
           (1, 8, 0, 1), (1, 8, 0, 0), (1, 8, 2, 0), (1, 8, 3, 0), (1, 8, 5, 1), (1, 8, 5, 0), (1, 8, 6, 1), (1, 8, 6, 0), (1, 8, 8, 0)]
    w0 = 0
    if OPT.get("krsel"):
        w0, st_, mn_ = [int(x) for x in OPT["krsel"].split(",")]
        sel = [(1, 4, 0, 1), (1, 4, st_, mn_)]
    for j, (kn, nw, st, mn) in enumerate(sel):
        a(f"s_mov_b32 s14, {kn*0x100000 + 64*w0}")
        for w in range(nw): a(f"buffer_load_dword v{10+w}, v1, s[8:11], s14 offen offset:{64*w+4*st}")
        a("s_waitcnt vmcnt(0)")
        if mn:
            for w in range(nw): a(f"v_not_b32 v{10+w}, v{10+w}")
        for w in range(1, nw): a(f"v_max_u32 v10, v10, v{10+w}")
        a(f"buffer_atomic_umax v10, v3, s[4:7], 0 offen offset:{4*j}\ns_waitcnt vmcnt(0)")
    if OPT.get("iv"):
        ja, jb, k = [int(x) for x in OPT["iv"].split(",")]
        a(f"""
        s_barrier
        buffer_load_dword v10, v3, s[4:7], 0 offen offset:{4*ja} sc0 sc1
        buffer_load_dword v11, v3, s[4:7], 0 offen offset:{4*jb} sc0 sc1
        s_waitcnt vmcnt(0)
        v_readfirstlane_b32 s16, v10
        v_readfirstlane_b32 s17, v11
        """)
        if sel[ja][3]: a("s_not_b32 s16, s16")
        if sel[jb][3]: a("s_not_b32 s17, s17")
        a(f"""
        s_sub_u32 s16, s16, s17
        s_min_u32 s16, s16, 10000
        s_mul_i32 s16, s16, {k}
        s_memrealtime s[18:19]
        s_waitcnt lgkmcnt(0)
        KR_SPIN:
        s_memrealtime s[20:21]
        s_waitcnt lgkmcnt(0)
        s_sub_u32 s20, s20, s18
        s_cmp_lt_u32 s20, s16
        s_cbranch_scc1 KR_SPIN
        """)
    a("KR_END:\ns_endpgm")
    return a.text()

DOC = """;
; k1: bins the edges by destination (128 chunks x 256 bins, 32 slots a segment), builds the node table
;     T = (x@w_v : -log2e * x@w_b) as bf16 pairs, MFMA-ready weight fragments and a sigmoid table indexed by f16 bits.
;     rescan of the raw edge list.
"""
def main():
    k1, d1 = gen_k1(); k2, d2 = gen_k2()
    ref = open("standalone__edge_featured_mpnn_gatedgcn__graph.s.ref").read().split("\n")
    out = "\n".join(ref[:13]) + "\n"
    for ch in OPT.get("list", "12"):
        if ch == "1": out += f"; @launch kernel=k1_kernel grid=({2*NCH},1,1) block=(512,1,1) lds={K1_LDS}\n"
        if ch == "2": out += f"; @launch kernel=k2_kernel grid=({NBIN},1,1) block=(512,1,1) lds={K2_LDS}\n"
        if ch == "r": out += "; @launch kernel=kr_kernel grid=(1,1,1) block=(256,1,1) lds=0\n"
        if ch == "e": out += "; @launch kernel=ke_kernel grid=(1,1,1) block=(64,1,1) lds=0\n"
    out += DOC
    out += '.amdgcn_target "amdgcn-amd-amdhsa--gfx950"\n.text\n'
    for n, k in (("k1_kernel", k1), ("k2_kernel", k2)):
        out += f".globl {n}\n.p2align 8\n.type {n},@function\n" + k
    if "e" in OPT.get("list", ""): out += ".globl ke_kernel\n.p2align 8\n.type ke_kernel,@function\nke_kernel:\n" + (KE_PROF if OPT.get("prof") else "") + "    s_endpgm\n"
    if "r" in OPT.get("list", ""): out += ".globl kr_kernel\n.p2align 8\n.type kr_kernel,@function\n" + gen_kr()
    out += '.section .rodata,"a"\n.p2align 6\n' + d1.lstrip("\n") + '.p2align 6\n' + d2.lstrip("\n")
    if "e" in OPT.get("list", ""): out += '.p2align 6\n' + kd("ke_kernel", 8, 16).lstrip("\n")
    if "r" in OPT.get("list", ""): out += '.p2align 6\n' + kd("kr_kernel", 32, 32).lstrip("\n")
    open(sys.argv[1], "w").write(out)

if __name__ == "__main__":
    main()
```

```python
import struct, sys
import asmsim

N = 10000; E = 320000
NCH = 128; CS = 2500
NBIN = 256; GN = 10
BINK, BINC, BINS = 53687, 52500, 21
assert all((625*b_ >> 4) <= d_ < (625*(b_+1) >> 4) for d_ in range(N) for b_ in [(d_*BINK + BINC) >> BINS])
CAP = 32
TS = int(([a for a in sys.argv if a.startswith('ts=')] or ['ts=512'])[0][3:])
T_OFF = 0x1000000
REC_OFF = 0x700000
WT_OFF = 0xB00000
LUT_OFF = 0xB20000
PROF_OFF = 0xF000000
NL2E = struct.unpack("<I", struct.pack("<f", -1.4426950408889634))[0]

def bf(x): return struct.unpack("<I", struct.pack("<f", x))[0] >> 16

OPT = dict(st_r="sc1", st_t="sc1")
for a in sys.argv[2:]:
    k, v = a.split("=", 1); OPT[k] = v

class Asm:
    def __init__(self): self.l = []
    def __call__(self, s):
        for x in s.strip("\n").split("\n"):
            x = x.strip()
            if not x: continue
            if x.startswith(";"): x = "s_nop 0"
            self.l.append(x if x.endswith(":") else "    " + x)
    def ext(self, lst):
        for x in lst: self(x)
    def text(self): return "\n".join(self.l) + "\n"

def stamp(a, i, lvl="1"):
    if OPT.get("prof") and (i in (0, 8) or OPT["prof"] == lvl): a(f"s_memrealtime s[{84+2*i}:{85+2*i}]")
def stamp_out(a, kern, wsreg, sw, vtmp):
    if not OPT.get("prof"): return
    if OPT.get("xcc"): a("s_getreg_b32 s98, hwreg(HW_REG_XCC_ID)")
    if not (OPT.get("nowait") and kern == 0): a("s_waitcnt vmcnt(0)")
    stamp(a, 8)
    a(f"""
    s_lshl_b32 s4, s2, 4
    s_add_u32 s4, s4, s{sw}
    s_lshl_b32 s4, s4, 6
    s_add_u32 s4, s4, {PROF_OFF + kern*0x100000}
    s_add_u32 s4, s{wsreg}, s4
    s_addc_u32 s5, s{wsreg+1}, 0
    s_mov_b32 s6, 64
    s_mov_b32 s7, 0x20000
    s_waitcnt lgkmcnt(0)
    """)
    if kern == 1 and OPT["prof"] == "7":
        a(f"v_mov_b32 v{vtmp}, v251\nv_writelane_b32 v{vtmp}, s84, 0\ns_mov_b32 m0, s98\ns_add_u32 s98, s98, 1\nv_writelane_b32 v{vtmp}, s86, m0\ns_mov_b32 m0, s98\ns_nop 3\nv_writelane_b32 v{vtmp}, s100, m0\nv_writelane_b32 v{vtmp}, s98, 15")
    else:
        for i in range(9): a(f"v_writelane_b32 v{vtmp}, s{84+2*i}, {i}")
    a(f"""
    v_mbcnt_lo_u32_b32 v{vtmp+1}, -1, 0
    v_mbcnt_hi_u32_b32 v{vtmp+1}, -1, v{vtmp+1}
    v_lshlrev_b32 v{vtmp+1}, 2, v{vtmp+1}
    buffer_store_dword v{vtmp}, v{vtmp+1}, s[4:7], 0 offen
    """)

def vr(b, n): return f"v[{b}:{b+n-1}]"
def sr(b, n): return f"s[{b}:{b+n-1}]"

def srd(a, d, base, add=None, size=None, w3="0x20000", hi_or=None):
    if add is None:
        a(f"s_mov_b32 s{d}, s{base}\ns_mov_b32 s{d+1}, s{base+1}")
    else:
        a(f"s_add_u32 s{d}, s{base}, {add}\ns_addc_u32 s{d+1}, s{base+1}, 0")
    if hi_or: a(f"s_or_b32 s{d+1}, s{d+1}, {hi_or}")
    a(f"s_mov_b32 s{d+2}, {size}\ns_mov_b32 s{d+3}, {w3}")

def kd(name, vgpr, sgpr):
    return f"""
.amdhsa_kernel {name}
  .amdhsa_next_free_vgpr {vgpr}
  .amdhsa_next_free_sgpr {sgpr}
  .amdhsa_accum_offset {(vgpr+3)//4*4}
  .amdhsa_group_segment_fixed_size 0
  .amdhsa_kernarg_size 96
  .amdhsa_user_sgpr_count 2
  .amdhsa_user_sgpr_kernarg_segment_ptr 1
  .amdhsa_system_sgpr_workgroup_id_x 1
.end_amdhsa_kernel
"""

def pair_of_lane(a, d, t):
    a(f"""
    v_and_b32 v{d}, 17, v0
    v_lshlrev_b32 v{d}, 2, v{d}
    v_bfe_u32 v{t}, v0, 1, 1
    v_lshl_add_u32 v{d}, v{t}, 5, v{d}
    v_bfe_u32 v{t}, v0, 2, 2
    v_lshl_add_u32 v{d}, v{t}, 3, v{d}
    """)

def rec_fields(a, vd, vbin, vtmp, sm40, sm10):
    a(f"""
    v_mul_u32_u24 v{vbin}, {BINK}, v{vd}
    v_add_u32 v{vbin}, {BINC}, v{vbin}
    v_lshrrev_b32 v{vbin}, {BINS}, v{vbin}
    v_mul_u32_u24 v{vtmp}, 625, v{vbin}
    v_lshrrev_b32 v{vtmp}, 4, v{vtmp}
    v_sub_u32 v{vd}, v{vd}, v{vtmp}
    v_mul_u32_u24 v{vtmp}, 26, v{vd}
    v_lshrrev_b32 v{vtmp}, 8, v{vtmp}
    v_mad_i32_i24 v{vd}, v{vtmp}, s{sm10}, v{vd}
    v_lshl_or_b32 v{vd}, v{vtmp}, 30, v{vd}
    """)

K1_CNT = 0; K1_STG = 1024; K1_W = 34816; K1_X = K1_W + 32768; K1_LDS = K1_X + (28672 if 'rows' in OPT else 24576)
RLO, RHI = [int(x_) for x_ in OPT.get('rows', '96,64').split(',')]
def gen_k1():
    a = Asm()
    sS, sD, sW1, sW2, sX, sR, sT, sP = 24, 28, 32, 36, 40, 44, 48, 72
    sw, st0, st1, st2, snb, sfb, sch, shf, srow, snr = 52, 53, 54, 55, 56, 57, 58, 69, 71, 76
    c8192, cm10, cnl2e, csign, cmag, ctso, cp0 = 60, 62, 63, 64, 65, 66, 67
    vD, vS, vB, vSL, vt = 4, 12, 20, 28, 36
    vg = 56; vTR, vXA, vST = 64, 65, 66; vWC = 72
    vW, vX, vA, vO = 96, 160, 176, 192
    def W(m, ab, s): return vW + 32*m + 16*ab + 4*s
    a("k1_kernel:")
    a(f"s_cmp_ge_u32 s2, {2*NCH}\ns_cbranch_scc1 K1_END")
    stamp(a, 0)
    a(f"""
    s_load_dwordx16 s[4:19], s[0:1], 0
    s_load_dwordx2 s[20:21], s[0:1], 64
    s_load_dwordx2 s[22:23], s[0:1], 88
    """)
    if OPT.get("pf", "4") in "34":
        frm = "k2_kernel" if OPT.get("pf", "4") == "3" else "K1_PC"
        a(f"""
        s_cmp_lt_u32 s2, {NCH}
        s_cbranch_scc0 K1_NOPC
        s_getpc_b64 {sr(sP,2)}
        K1_PC:
        s_add_u32 s{sP}, s{sP}, {frm}-K1_PC
        s_addc_u32 s{sP+1}, s{sP+1}, 0
        s_mov_b32 s{sP+2}, K2_CODE_END-{frm}
        s_mov_b32 s{sP+3}, 0x20000
        s_bfe_u32 s{st0}, s2, 0x40003
        s_lshl_b32 s{st0}, s{st0}, 12
        v_lshlrev_b32 v33, 7, v0
        v_cmp_gt_u32 vcc, 32, v0
        s_and_saveexec_b64 s[80:81], vcc
        s_cbranch_execz K1_NOPC0
        buffer_load_dword v34, v33, {sr(sP,4)}, s{st0} offen
        K1_NOPC0:
        s_mov_b64 exec, s[80:81]
        K1_NOPC:
        """)
    if OPT.get("pf1", "0") == "1":
        a(f"""
        s_getpc_b64 {sr(sP,2)}
        K1_PC1:
        s_mov_b32 s{sP+2}, K1_END-K1_PC1
        s_mov_b32 s{sP+3}, 0x20000
        v_lshlrev_b32 v33, 7, v0
        buffer_load_dword v34, v33, {sr(sP,4)}, 0 offen
        """)
    a(f"""
    v_lshrrev_b32 v2, 6, v0
    v_lshlrev_b32 v1, 2, v0
    v_readfirstlane_b32 s{sw}, v2
    v_lshlrev_b32 v2, 4, v0
    s_mov_b32 s{c8192}, 8192
    s_sub_u32 s{sch}, s2, {NCH}
    s_and_b32 s{shf}, s2, 1
    v_and_b32 v{vg}, 63, v0
    v_lshrrev_b32 v{vg+1}, 4, v{vg}
    v_and_b32 v{vg+2}, 15, v0
    s_and_b32 s{st0}, s{sw}, 3
    s_lshl_b32 s{st0}, s{st0}, 2
    v_add_u32 v{vg+3}, s{st0}, v{vg+1}
    v_xor_b32 v{vg+3}, v{vg+3}, v{vg+2}
    v_lshlrev_b32 v{vg+3}, 4, v{vg+3}
    v_lshl_add_u32 v{vg+3}, v{vg+1}, 8, v{vg+3}
    v_lshrrev_b32 v{vg+4}, 3, v{vg}
    v_and_b32 v{vg+5}, 2, v{vg+4}
    s_lshr_b32 s{st0}, s2, 3
    s_add_u32 s{st0}, s{st0}, s{sw}
    s_and_b32 s{st0}, s{st0}, 1
    s_lshl_b32 s{st0}, s{st0}, 2
    v_and_b32 v{vg+6}, 7, v0
    v_xor_b32 v{vg+5}, v{vg+5}, v{vg+6}
    v_xor_b32 v{vg+5}, s{st0}, v{vg+5}
    v_lshlrev_b32 v{vg+5}, 4, v{vg+5}
    v_lshl_add_u32 v{vg+4}, v{vg+4}, 8, v{vg+5}
    s_lshr_b32 s{st0}, s2, 1
    s_mul_i32 s{srow}, s{st0}, {RLO}
    s_mul_i32 s{st0}, s{st0}, {RHI}
    s_add_u32 s{st0}, s{st0}, {64*(RLO-RHI)}
    s_cmp_lt_u32 s2, {NCH}
    s_cselect_b32 s{srow}, s{srow}, s{st0}
    s_cselect_b32 s{snr}, {RLO}, {RHI}
    s_min_u32 s{srow}, s{srow}, {N}
    s_sub_u32 s{st0}, {N}, s{srow}
    s_min_u32 s{snr}, s{snr}, s{st0}
    s_mul_i32 s{st1}, s{sch}, {CS*4}
    s_cmp_lt_u32 s2, 252
    s_waitcnt lgkmcnt(0)
    s_cselect_b64 {sr(sW1,2)}, s[14:15], s[12:13]
    s_cselect_b64 {sr(sW2,2)}, s[20:21], s[18:19]
    s_cmp_lt_u32 s2, {NCH}
    s_cbranch_scc1 K1_NOIDX
    """)
    srd(a, sD, 10, f"s{st1}", CS*4)
    srd(a, sS, 8, f"s{st1}", CS*4)
    a(f"""
    buffer_load_dwordx4 {vr(vD,4)}, v2, {sr(sD,4)}, 0 offen
    buffer_load_dwordx4 {vr(vS,4)}, v2, {sr(sS,4)}, 0 offen
    buffer_load_dword v{vD+4}, v1, {sr(sD,4)}, s{c8192} offen
    buffer_load_dword v{vS+4}, v1, {sr(sS,4)}, s{c8192} offen
    s_barrier
    K1_NOIDX:
    s_lshl_b32 s{st0}, s{srow}, 8
    s_add_u32 s{sX}, s4, s{st0}
    s_addc_u32 s{sX+1}, s5, 0
    s_lshl_b32 s{sX+2}, s{snr}, 8
    s_mov_b32 s{sX+3}, 0x20000
    s_mov_b32 s{sW1+2}, 32768
    s_mov_b32 s{sW1+3}, 0x20000
    s_mov_b32 s{sW2+2}, 32768
    s_mov_b32 s{sW2+3}, 0x20000
    s_lshl_b32 s{shf+1}, s{shf}, 7
    s_lshl_b32 s{st1}, s{sw}, 10
    """)
    def dma_x(k):
        a(f"s_add_u32 m0, s{st1}, {K1_X + 8192*k}\ns_add_u32 s{st2}, s{st1}, {8192*k}\nbuffer_load_dwordx4 v{vg+3}, {sr(sX,4)}, s{st2} offen lds")
    def stage_w():
        a(f"s_lshr_b32 s{st2}, s2, 3\ns_add_u32 s{st2}, s{st2}, s{sw}\ns_and_b32 s{st2}, s{st2}, 15")
        for k in range(2):
            a(f"""
            s_lshl_b32 s{st0}, s{st2}, 10
            s_add_u32 m0, s{st0}, {K1_W}
            s_lshl_b32 s{st1}, s{st2}, 11
            s_add_u32 s{st1}, s{st1}, s{shf+1}
            buffer_load_dwordx4 v{vg+4}, {sr(sW1,4)}, s{st1} offen lds
            s_add_u32 m0, s{st0}, {K1_W+16384}
            s_xor_b32 s{st2}, s{st2}, 8
            buffer_load_dwordx4 v{vg+4}, {sr(sW2,4)}, s{st1} offen lds
            """)
    if OPT.get("wt", "0") == "1":
        a(f"""
        s_cmp_eq_u32 s{sw}, 0
        s_cbranch_scc0 K1_NOWT
        s_bfe_u32 s{st0}, s2, 0x40003
        s_lshl_b32 s{st0}, s{st0}, 11
        s_add_u32 s{st0}, s{st0}, s{shf+1}
        v_lshlrev_b32 v33, 8, v0
        s_mov_b64 exec, 0xff
        buffer_load_dword v34, v33, {sr(sW1,4)}, s{st0} offen
        buffer_load_dword v34, v33, {sr(sW2,4)}, s{st0} offen
        s_mov_b64 exec, -1
        K1_NOWT:
        """)
    dma_x(0); dma_x(1)
    a(f"s_sub_u32 s{st0}, s2, {NCH}\ns_cmp_lt_u32 s{st0}, {252-NCH}\ns_cbranch_scc1 K1_LATER")
    dma_x(2)
    if RLO > 96: a(f"s_cmp_lt_u32 s{sw}, 4\ns_cbranch_scc0 K1_X3"); dma_x(3); a("K1_X3:")
    stage_w()
    a(f"""
    K1_LATER:
    s_and_b32 s{sfb}, s{sw}, 1
    s_lshr_b32 s{snb}, s{sw}, 1
    v_bfe_u32 v{vg+5}, v0, 2, 2
    v_bfe_u32 v{vg+6}, v0, 3, 2
    s_lshl_b32 s{st0}, s{sfb}, 1
    v_xor_b32 v{vg+6}, s{st0}, v{vg+6}
    v_and_b32 v{vg+7}, 3, v0
    v_lshlrev_b32 v{vg+7}, 3, v{vg+7}
    v_lshl_add_u32 v{vg+7}, v{vg+6}, 5, v{vg+7}
    v_lshl_add_u32 v{vg+5}, v{vg+1}, 3, v{vg+5}
    v_lshl_add_u32 v{vTR}, v{vg+5}, 7, v{vg+7}
    v_xor_b32 v{vTR+6}, 32, v{vTR}
    v_xor_b32 v{vXA}, v{vg+1}, v{vg+2}
    v_lshlrev_b32 v{vXA}, 4, v{vXA}
    v_lshl_add_u32 v{vXA}, v{vg+2}, 8, v{vXA}
    s_lshl_b32 s{st0}, s{snb}, 12
    s_add_u32 s{st0}, s{st0}, {K1_X}
    v_add_u32 v{vXA}, s{st0}, v{vXA}
    v_xor_b32 v{vXA+2}, 64, v{vXA}
    v_xor_b32 v{vXA+3}, 0x80, v{vXA}
    v_xor_b32 v{vXA+4}, 0xc0, v{vXA}
    v_mul_u32_u24 v{vST}, {TS}, v{vg+2}
    v_lshl_add_u32 v{vST}, v{vg+1}, 4, v{vST}
    s_mul_i32 s{ctso}, s{snb}, {16*TS}
    s_lshl_b32 s{st1}, s{shf}, 8
    s_add_u32 s{ctso}, s{ctso}, s{st1}
    s_lshl_b32 s{st1}, s{sfb}, 6
    s_add_u32 s{ctso}, s{ctso}, s{st1}
    s_mov_b32 s{cnl2e}, {NL2E:#x}
    s_mov_b32 s{csign}, 0x00800000
    s_mov_b32 s{cmag}, 0x7fffffff
    s_mov_b32 s{cp0}, 0x07060100
    s_mov_b32 s{cp0+1}, 0x07060302
    s_mul_i32 s{st0}, s{srow}, {TS}
    s_add_u32 s{st0}, s{st0}, {T_OFF}
    s_mul_i32 s{st1}, s{snr}, {TS}
    """)
    srd(a, sT, 22, f"s{st0}", f"s{st1}")
    stamp(a, 1)
    a(f"s_cmp_lt_u32 s2, {NCH}\ns_cbranch_scc1 K1_NOBIN")
    a(f"""
    v_mov_b32 v{vt}, -1
    v_mov_b32 v{vt+1}, -1
    v_mov_b32 v{vt+2}, -1
    v_mov_b32 v{vt+3}, -1
    v_mov_b32 v{vt+5}, 0
    v_and_b32 v{vt+6}, 0x3fc, v1
    """)
    for k in range(4): a(f"ds_write_b128 v2, {vr(vt,4)} offset:{K1_STG+8192*k}")
    a(f"""
    ds_write_b32 v{vt+6}, v{vt+5} offset:{K1_CNT}
    s_lshl_b32 s{st0}, s{sch}, 7
    s_add_u32 s{st0}, s{st0}, {REC_OFF}
    """)
    srd(a, sR, 22, f"s{st0}", NBIN*NCH*128)
    a(f"s_lshl_b32 s{st0}, s{sch}, 9\ns_add_u32 s{st1}, s{st0}, {LUT_OFF}")
    srd(a, sP, 22, f"s{st1}", 512)
    l0, l1 = vt+10, vt+11
    a(f"""
    v_add_u32 v{l0}, s{st0}, v1
    v_and_b32 v{l1}, 0x7fff, v{l0}
    v_cmp_ne_u32 vcc, 0x7c00, v{l1}
    v_or_b32 v{l1}, 3, v{l0}
    s_nop 0
    v_addc_co_u32 v{l0}, vcc, 0, v{l0}, vcc
    v_cvt_f32_f16 v{l1}, v{l1}
    v_cvt_f32_f16 v{l0}, v{l0}
    v_exp_f32 v{l1}, v{l1}
    v_exp_f32 v{l0}, v{l0}
    v_add_f32 v{l1}, 1.0, v{l1}
    v_add_f32 v{l0}, 1.0, v{l0}
    v_rcp_f32 v{l1}, v{l1}
    v_rcp_f32 v{l0}, v{l0}
    s_mov_b32 s{cm10}, {-GN}
    v_cvt_pk_bf16_f32 v{l0}, v{l0}, v{l1}
    v_mov_b32 v{vt+5}, 1
    v_cmp_gt_u32 vcc, {CS-2048}, v0
    s_mov_b64 s[80:81], vcc
    v_lshrrev_b32 v{vt+7}, 3, v0
    v_and_b32 v{vt+8}, 7, v0
    v_lshlrev_b32 v{vt+9}, 14, v{vt+7}
    v_lshl_add_u32 v{vt+9}, v{vt+8}, 4, v{vt+9}
    v_lshlrev_b32 v{vt+7}, 2, v{vt+7}
    v_cmp_eq_u32 s[82:83], 7, v{vt+8}
    v_and_b32 v{vt+8}, 4, v{vt+8}
    v_lshlrev_b32 v{vt+8}, {2 if OPT.get("half", "0") == "1" else 0}, v{vt+8}
    v_and_b32 v{vt+8}, 16, v{vt+8}
    s_waitcnt lgkmcnt(0)
    s_barrier
    s_cmp_ge_u32 s2, 252
    s_cbranch_scc1 K1_W7
    s_waitcnt vmcnt(2)
    K1_W7:
    s_waitcnt vmcnt(7)
    """)
    stamp(a, 2)
    for r in range(5):
        rec_fields(a, vD+r, vB+r, vt, None, cm10)
        a(f"v_lshlrev_b32 v{vt}, 2, v{vB+r}")
        if r == 4: a("s_mov_b64 exec, s[80:81]")
        a(f"ds_add_rtn_u32 v{vSL+r}, v{vt}, v{vt+5} offset:{K1_CNT}")
        if r == 4: a("s_mov_b64 exec, -1")
    a("s_cmp_ge_u32 s2, 252\ns_cbranch_scc1 K1_NOWC")
    stage_w()
    a(f"""
    s_cmp_eq_u32 s2, 250
    s_cbranch_scc0 K1_NOWC
    """)
    srd(a, sS, 16, None, 4096)
    a(f"""
    v_lshrrev_b32 v{vWC+8}, 5, v{vg}
    """)
    pair_of_lane(a, vWC+9, vWC+10)
    a(f"""
    v_lshl_add_u32 v{vWC+9}, v{vWC+8}, 11, v{vWC+9}
    s_bfe_u32 s{st1}, s{sw}, 0x10001
    s_lshl_b32 s{st1}, s{st1}, 7
    s_lshl_b32 s{st0}, s{sfb}, 1
    s_add_u32 s{st1}, s{st1}, s{st0}
    """)
    for j in range(8): a(f"buffer_load_ushort v{vWC+j}, v{vWC+9}, {sr(sS,4)}, s{st1} offen offset:{256*j}")
    a("K1_NOWC:")
    for r in range(5):
        a(f"v_lshl_or_b32 v{vD+r}, v{vS+r}, 16, v{vD+r}")
        a(f"v_add_u32 v{vS+r}, {r}, v1" if r < 4 else f"v_add_u32 v{vS+r}, 2048, v0")
        a(f"v_lshl_or_b32 v{vD+r}, v{vS+r}, 4, v{vD+r}\nv_lshlrev_b32 v{vB+r}, 7, v{vB+r}")
    for r in range(5):
        a("s_waitcnt lgkmcnt(4)")
        if r == 4: a("s_mov_b64 exec, s[80:81]")
        a(f"""
        v_and_b32 v{vt}, 12, v{vSL+r}
        v_add_u32 v{vB+r}, v{vB+r}, v{vt}
        v_and_b32 v{vt}, 3, v{vSL+r}
        v_lshl_add_u32 v{vB+r}, v{vt}, 4, v{vB+r}
        v_and_b32 v{vt}, 16, v{vSL+r}
        v_lshl_add_u32 v{vB+r}, v{vt}, 2, v{vB+r}
        v_cmpx_gt_u32 vcc, {CAP}, v{vSL+r}
        ds_write_b32 v{vB+r}, v{vD+r} offset:{K1_STG}
        s_mov_b64 exec, -1
        """)
    a("s_waitcnt lgkmcnt(0)\ns_barrier")
    for k in range(4):
        a(f"ds_read_b128 {vr(4+4*k,4)}, v2 offset:{K1_STG+8192*k}\nds_read_b32 v{20+k}, v{vt+7} offset:{K1_CNT+256*k}")
    a(f"""
    v_mov_b32 v{vt+2}, -2
    s_mov_b32 s{st2}, 0
    buffer_store_dword v{l0}, v1, {sr(sP,4)}, 0 offen {OPT['st_r']}
    """)
    stamp(a, 3)
    for k in range(4):
        a(f"""
        s_waitcnt lgkmcnt({6-2*k})
        v_cmp_lt_u32 vcc, {CAP}, v{20+k}
        v_cmp_le_u32 s[78:79], v{vt+8}, v{20+k}
        s_and_b64 vcc, vcc, s[82:83]
        s_nop 0
        v_cndmask_b32 v{7+4*k}, v{7+4*k}, v{vt+2}, vcc
        s_mov_b64 exec, s[78:79]
        buffer_store_dwordx4 {vr(4+4*k,4)}, v{vt+9}, {sr(sR,4)}, s{st2} offen {OPT['st_r']}
        s_mov_b64 exec, -1
        s_add_u32 s{st2}, s{st2}, {64*16384}
        """)
    a(f"""
    s_waitcnt vmcnt(5)
    s_branch K1_STAGED
    K1_NOBIN:
    """)
    if OPT.get("pf", "4") == "1":
        a(f"""
        s_getpc_b64 {sr(sP,2)}
        K1_PC:
        s_add_u32 s{sP}, s{sP}, k2_kernel-K1_PC
        s_addc_u32 s{sP+1}, s{sP+1}, 0
        s_mov_b32 s{sP+2}, K2_CODE_END-k2_kernel
        s_mov_b32 s{sP+3}, 0x20000
        s_bfe_u32 s{st0}, s2, 0x40003
        s_lshl_b32 s{st0}, s{st0}, 12
        v_lshlrev_b32 v33, 7, v0
        v_cmp_gt_u32 vcc, 32, v0
        s_and_saveexec_b64 s[80:81], vcc
        s_cbranch_execz K1_NOPC
        buffer_load_dword v34, v33, {sr(sP,4)}, s{st0} offen
        s_mov_b64 exec, s[80:81]
        s_waitcnt vmcnt(1)
        s_branch K1_PCD
        K1_NOPC:
        s_mov_b64 exec, s[80:81]
        s_waitcnt vmcnt(0)
        K1_PCD:
        """)
    else: a("s_waitcnt vmcnt(0)")
    stamp(a, 2); stamp(a, 3)
    a(f"""
    K1_STAGED:
    s_barrier
    """)
    stamp(a, 4)
    if OPT.get("pf", "4") == "2":
        assert 64*RLO + 59*RHI >= N
        a(f"""
        s_sub_u32 s{st0}, s2, 246
        s_cmp_lt_u32 s{st0}, 8
        s_cbranch_scc0 K1_NOPC
        s_getpc_b64 {sr(sP,2)}
        K1_PC:
        s_add_u32 s{sP}, s{sP}, k2_kernel-K1_PC
        s_addc_u32 s{sP+1}, s{sP+1}, 0
        s_mov_b32 s{sP+2}, K2_CODE_END-k2_kernel
        s_mov_b32 s{sP+3}, 0x20000
        v_lshlrev_b32 v33, 7, v0
        buffer_load_dword v34, v33, {sr(sP,4)}, 0 offen
        s_cmp_eq_u32 s2, 252
        s_cbranch_scc0 K1_END
        K1_NOPC:
        """)
    PM = int(OPT.get("pm", "0"))
    if PM:
        a(f"s_mul_i32 s{st0}, s2, {313*128}\ns_sub_u32 s{st1}, {E*32}, s{st0}\ns_min_u32 s{st1}, s{st1}, {PM*128}")
        if OPT.get("pmlo"): a(f"s_cmp_lt_u32 s2, {NCH}\ns_cselect_b32 s{st1}, s{st1}, 0")
        srd(a, sP, 6, f"s{st0}", f"s{st1}")
        a(f"v_xor_b32 v33, 0x1c0, v0\nv_lshlrev_b32 v33, 7, v33\nbuffer_load_dword v34, v33, {sr(sP,4)}, 0 offen")
    a(f"""
    s_cmp_eq_u32 s2, 250
    s_cbranch_scc1 K1_WC
    """)
    def xrd(reg, off):
        for s in range(4): a(f"ds_read_b128 {vr(reg+4*s,4)}, v{[vXA, vXA+2, vXA+3, vXA+4][s]} offset:{off}")
    def trs(s):
        for m in range(2):
            for ab in range(2):
                for u in range(2):
                    a(f"ds_read_b64_tr_b16 {vr(W(m,ab,s)+2*u,2)}, v{vTR+6*ab} offset:{K1_W+m*16384+s*4096+u*512}")
    def mm(s, x, acc):
        return [f"v_mfma_f32_16x16x32_bf16 {vr(acc+8*m+4*ab,4)}, {vr(W(m,ab,s),4)}, {vr(x+4*s,4)}, {'0' if s == 0 else vr(acc+8*m+4*ab,4)}"
                for m in range(2) for ab in range(2)]
    def pack(acc, out):
        o = []
        for b in range(2):
            for ab in range(2):
                b0, b1 = acc+4*ab+b, acc+4*ab+2+b
                hs = [acc+8+4*ab+2*e_+b for e_ in range(2)]
                o += [f"v_mul_f32 v{b0}, s{cnl2e}, v{b0}", f"v_mul_f32 v{b1}, s{cnl2e}, v{b1}"]
                for e_, h in enumerate(hs): o += [f"v_max_f32 v{30+e_}, abs(v{h}), s{csign}", f"v_bfi_b32 v{h}, s{cmag}, v{30+e_}, v{h}"]
                o += [f"v_cvt_pk_bf16_f32 v{b0}, v{b0}, v{b1}"] + [f"v_add_u32 v{h}, 0x8000, v{h}" for h in hs]
                o += [f"v_sub_u32_sdwa v{h}, v{h}, v{b0} dst_sel:DWORD dst_unused:UNUSED_PAD src0_sel:DWORD src1_sel:WORD_{e_}" for e_, h in enumerate(hs)]
                o += [f"v_perm_b32 v{out+4*b+2*ab+e_}, v{h}, v{b0}, s{cp0+e_}" for e_, h in enumerate(hs)]
            o.append(f"buffer_store_dwordx4 {vr(out+4*b,4)}, v{vST}, {sr(sT,4)}, s{ctso} offen offset:{128*b} {OPT['st_t']}")
        return o
    xrd(vX, 0)
    trs(0); a("s_waitcnt lgkmcnt(6)")
    for s in range(1, 4):
        trs(s); a("s_waitcnt lgkmcnt(8)"); a.ext(mm(s-1, vX, vA))
        if s < 3: a("s_waitcnt lgkmcnt(6)")
    a("s_waitcnt lgkmcnt(0)")
    stamp(a, 5)
    a(f"""
    s_cmp_ge_u32 s2, 252
    s_cbranch_scc1 K1_WT
    s_lshl_b32 s{st0}, s{snb}, 4
    s_add_u32 s{st0}, s{st0}, 64
    s_cmp_lt_u32 s{st0}, s{snr}
    s_cbranch_scc0 K1_ONE
    """)
    vX2, vA2 = 208, 224
    xrd(vX2, 16384)
    g = mm(3, vX, vA) + ["s_waitcnt lgkmcnt(0)"]
    m2 = sum((mm(s, vX2, vA2) for s in range(4)), []); pk = pack(vA, vO)
    g += m2[:6]; k = 0
    for x in m2[6:]:
        g.append(x); g += pk[k:k+3]; k += 3
    g += pk[k:] + [f"s_add_u32 s{ctso}, s{ctso}, {64*TS}"] + pack(vA2, vO+8)
    asmsim.check_hazards(g, "k1 two blocks")
    a.ext(g)
    a("s_branch K1_TAIL\nK1_ONE:")
    g = mm(3, vX, vA) + ["s_nop 7"] + pack(vA, vO)
    asmsim.check_hazards(g, "k1 one block")
    a.ext(g)
    a("K1_TAIL:")
    PL = int(OPT.get("pl", "0"))
    if PL:
        a(f"""
        s_cmp_lt_u32 s2, {NCH}
        s_cbranch_scc0 K1_NOPF
        s_mul_i32 s{st0}, s2, {CS*32}
        """)
        srd(a, sP, 6, f"s{st0}", PL*128)
        a(f"""
        v_lshlrev_b32 v4, 7, v0
        s_mov_b32 s{st0}, 65536
        s_barrier
        buffer_load_dword v5, v4, {sr(sP,4)}, 0 offen
        buffer_load_dword v5, v4, {sr(sP,4)}, s{st0} offen
        K1_NOPF:
        """)
    stamp(a, 6); stamp(a, 7)
    stamp_out(a, 0, 22, sw, 2)
    a("s_endpgm")
    a("K1_WT:")
    srd(a, sT, 22, WT_OFF, 65536)
    a(f"""
    s_cmp_ge_u32 s{sw}, 4
    s_cbranch_scc1 K1_END
    v_lshlrev_b32 v2, 4, v{vg}
    s_and_b32 s{st0}, s2, 3
    s_lshl_b32 s{st0}, s{st0}, 1
    s_add_u32 s{st0}, s{st0}, s{sfb}
    s_lshl_b32 s{st0}, s{st0}, 1
    s_add_u32 s{st0}, s{st0}, s{snb}
    s_lshl_b32 s{st0}, s{st0}, 12
    s_and_b32 s{st1}, s2, 2
    s_add_u32 s{st1}, s{st1}, s{snb}
    """)
    for k in range(4):
        if k < 3: a(f"s_cmp_eq_u32 s{st1}, {k}\ns_cbranch_scc0 K1_WT{k}")
        for s in range(4):
            a(f"buffer_store_dwordx4 {vr(W(k >> 1, k & 1, s),4)}, v2, {sr(sT,4)}, s{st0} offen offset:{1024*s} {OPT['st_t']}")
        a("s_endpgm")
        if k < 3: a(f"K1_WT{k}:")
    a("K1_WC:")
    srd(a, sT, 22, WT_OFF+65536, 4096)
    a(f"v_lshlrev_b32 v2, 4, v{vg}\ns_lshl_b32 s{st0}, s{sw}, 10")
    for j in range(8):
        a(f"v_lshlrev_b32 v{vWC+j}, 16, v{vWC+j}\nv_mul_f32 v{vWC+j}, s{cnl2e}, v{vWC+j}")
    for j in range(4):
        a(f"v_cvt_pk_bf16_f32 v{84+j}, v{vWC+2*j}, v{vWC+1+2*j}")
    a(f"buffer_store_dwordx4 v[84:87], v2, {sr(sT,4)}, s{st0} offen {OPT['st_t']}")
    a("K1_END:\ns_endpgm")
    return a.text(), kd("k1_kernel", 240, 102)

CAPG = 416; RND = 400
CNT = 0; FLG = 256; START = 512; INCL = 768; OHL = 1024; L1 = 1536; L2 = L1 + 4*CAPG*4; APL = L2 + 4*CAPG*4
ROWP = 272
UL = APL + 48*ROWP; LUTL = UL + 48*ROWP; STG = (LUTL + 65536 + 255)//256*256; XL = STG + 3*CAPG*32 + 5*1024; K2_LDS = XL + 12288
PROG = FLG + 32
assert K2_LDS <= 163840 and K2_LDS >= STG + 4*CAPG*32 and LUTL <= 65535 and (4*CAPG*4) % 256 == 0

def gen_k2():
    a = Asm()
    sREC, sX, sWT, sT, sE, sO, sD, sS = 24, 28, 32, 36, 40, 44, 68, 72
    sw, sg, sfh, st0, st1, st2 = 48, 49, 50, 51, 52, 53
    scount, sslow, sround, slim, sgb, srt, slut, srank = 54, 55, 56, 57, 58, 59, 82, 83
    stail = 20; stot = 80
    sdma, sm0, sneed = 21, 22, 23
    cm32, c128, cnl2e, cfc, csrc, cm40, cm10, cfe = 60, 61, 62, 63, 64, 65, 66, 67
    sk = 16
    vH16, vA1, vA2, vEa, vOa, vO, vA3 = 1, 2, 3, 4, 5, 6, 7
    WC = 8; AP = 16; PA = 24; SC = 28; OH = 32; EA = 40; ADDR = 48; ACC = 64; SP = 96; G = 112; RAW = 176
    XR = 240; UR = 246; vP16 = 252; vH256 = 253; vHS = 254; vPG = 255; vM15 = XR; vO2 = SP+8
    raw = lambda p, b: RAW + 32*p + 16*b
    gb = lambda p, b: G + 32*p + 16*b
    vt = gb(1, 1); Z = SP; EOFF = SP+14
    REC = raw(1, 0); CADDR = REC+16; RANK = G; STV = G+16
    NTB = [int(c_) for c_ in OPT.get("nt", "11")]
    rowoff = lambda r: 8*(r >> 2) + (r & 3)
    sd = "dst_sel:DWORD dst_unused:UNUSED_PAD src0_sel:DWORD"

    a("k2_kernel:")
    a(f"s_cmp_ge_u32 s2, {NBIN}\ns_cbranch_scc1 K2_END")
    stamp(a, 0)
    a(f"""
    s_load_dwordx8 s[4:11], s[0:1], 0
    s_load_dwordx2 s[12:13], s[0:1], 72
    s_load_dwordx2 s[14:15], s[0:1], 88
    v_lshrrev_b32 v{vt}, 6, v0
    v_lshrrev_b32 v{vt+1}, 2, v0
    v_readfirstlane_b32 s{sw}, v{vt}
    v_and_b32 v{vt+2}, 3, v0
    v_lshlrev_b32 v{vt+3}, 7, v{vt+1}
    v_lshl_add_u32 v{vt+3}, v{vt+2}, 4, v{vt+3}
    s_lshl_b32 s{st0}, s2, 14
    s_add_u32 s{st0}, s{st0}, {REC_OFF}
    v_and_b32 v{vt}, 63, v0
    v_lshlrev_b32 v{vt+5}, 3, v{vt}
    v_mov_b32 v{Z}, 0
    v_mov_b32 v{Z+1}, 0
    ds_write_b64 v{vt+5}, {vr(Z,2)} offset:{CNT}
    s_and_b32 s{sg}, s{sw}, 3
    s_lshr_b32 s{sfh}, s{sw}, 2
    v_lshlrev_b32 v{vA2}, 4, v{vt}
    s_mov_b32 s{st1}, 8192
    s_waitcnt lgkmcnt(0)
    """)
    if OPT.get("lat"):
        kind = OPT["lat"]
        if kind in "TSO": srd(a, sS, 14, T_OFF, N*TS)
        if kind == "R": srd(a, sS, 14, REC_OFF, 4 << 20)
        if kind == "x": srd(a, sS, 4, None, N*256)
        if kind == "e": srd(a, sS, 6, None, E*32)
        a(f"""
        s_cmp_eq_u32 s{sw}, 0
        s_cbranch_scc0 K2_NOLAT
        s_lshl_b32 s{st2}, s2, 13
        v_lshlrev_b32 v{vt+9}, 7, v{vt}
        """)
        if kind in "SO":
            a(f"""
            s_and_b32 s{st2}, s2, 127
            s_lshr_b32 s{st2}, s{st2}, 1
            s_mul_i32 s{st2}, s{st2}, {96*512}
            s_and_b32 s16, s2, 1
            s_xor_b32 s16, s16, {0 if kind == "S" else 1}
            s_lshl_b32 s16, s16, 8
            s_add_u32 s{st2}, s{st2}, s16
            v_lshrrev_b32 v{vt+9}, 1, v{vt}
            v_lshlrev_b32 v{vt+9}, 9, v{vt+9}
            v_and_b32 v{vt+10}, 1, v{vt}
            v_lshl_add_u32 v{vt+9}, v{vt+10}, 7, v{vt+9}
            """)
        a(f"""
        s_memrealtime s[86:87]
        buffer_load_dword v{vt+10}, v{vt+9}, {sr(sS,4)}, s{st2} offen
        s_waitcnt vmcnt(0)
        s_memrealtime s[88:89]
        K2_NOLAT:
        s_barrier
        """)
    a(f"""
    s_cmp_lg_u32 s{sfh}, 0
    s_cbranch_scc1 K2_NOREC
    """)
    srd(a, sREC, 14, f"s{st0}", 16384)
    for u in range(2):
        for r in range(2):
            a(f"buffer_load_dwordx4 {vr(REC+8*r+4*u,4)}, v{vt+3}, {sr(sREC,4)}, {'s%d' % st1 if u else '0'} offen offset:{64*r}")
    TP0 = int(OPT.get("tp0", "0"))
    if TP0:
        srd(a, sS, 14, T_OFF, N*TS)
        a(f"""
        s_bfe_u32 s{st0}, s2, 0x50003
        s_mul_i32 s{st0}, s{st0}, {TP0}
        s_add_u32 s{st0}, s{st0}, s{sw}
        s_lshl_b32 s{st0}, s{st0}, 13
        s_cmp_lt_u32 s{sw}, {TP0}
        s_cselect_b32 s{sS+2}, s{sS+2}, 0
        v_lshlrev_b32 v{vt+9}, 7, v{vt}
        buffer_load_dword v{vt+10}, v{vt+9}, {sr(sS,4)}, s{st0} offen
        """)
    a(f"""
    K2_NOREC:
    s_mul_i32 s{st0}, s2, 625
    s_add_u32 s{cm40}, s{st0}, 625
    s_lshr_b32 s{st0}, s{st0}, 4
    s_lshr_b32 s{cm40}, s{cm40}, 4
    s_sub_u32 s{cm40}, s{cm40}, s{st0}
    s_lshl_b32 s{cm40}, s{cm40}, 8
    s_lshl_b32 s{st0}, s{st0}, 8
    """)
    srd(a, sX, 4, f"s{st0}", f"s{cm40}")
    srd(a, sO, 12, f"s{st0}", f"s{cm40}")
    srd(a, sWT, 14, WT_OFF, LUT_OFF - WT_OFF + 65536)
    a("s_barrier")
    stamp(a, 1)
    def ld_wc():
        a(f"""
        s_lshl_b32 s{st1}, s{sfh}, 11
        s_add_u32 s{st1}, s{st1}, 65536
        buffer_load_dwordx4 {vr(WC,4)}, v{vA2}, {sr(sWT,4)}, s{st1} offen
        buffer_load_dwordx4 {vr(WC+4,4)}, v{vA2}, {sr(sWT,4)}, s{st1} offen offset:1024
        """)
    def common1(Z, vl):
        a = Asm()
        a(f"s_lshl_b32 s{st0}, s{sfh}, 8\ns_add_u32 s{st0}, s{st0}, {T_OFF-128}")
        srd(a, sT, 14, f"s{st0}", 64, w3="0x800000", hi_or="0x40000")
        srd(a, sE, 6, None, E*32)
        a(f"""
        s_mov_b32 s{cm32}, {'0x7e0' if 'e' in OPT.get('nomem','') else '0x1fffe0' if 's' in OPT.get('nomem','') else '0xffffffe0'}
        s_mov_b32 s{c128}, 128
        s_mov_b32 s{cnl2e}, {NL2E + (16 << 23):#x}
        s_mov_b32 s{cfc}, 0xfc
        s_mov_b32 s{cfe}, {OPT.get('cfe', '0xfffe')}
        s_mov_b32 s{csrc}, {TS}
        s_mov_b32 s{sslow}, 0
        s_mov_b32 s{sround}, 0
        s_mov_b32 s{sgb}, 0
        s_mov_b32 s{stot}, 0
        s_mul_i32 s{st0}, s{sfh}, 3
        s_xor_b32 s{srank}, s{sg}, s{st0}
        v_lshrrev_b32 v{Z+2}, 5, v{vl}
        v_and_b32 v{Z+3}, 31, v0
        v_lshlrev_b32 v{vH16}, 4, v{Z+2}
        v_lshlrev_b32 v{vH256}, 8, v{Z+2}
        v_and_b32 v{Z+4}, 3, v0
        v_mov_b32 v{Z+6}, 0x3f80
        """)
        for i in range(4):
            a(f"v_cmp_eq_u32 vcc, {i}, v{Z+4}\ns_nop 1\nv_cndmask_b32 v{PA+i}, 0, v{Z+6}, vcc")
        a(f"""
        v_cmp_gt_u32 s[78:79], 16, v{Z+3}
        v_mov_b32 v{Z+5}, {bf(127*2.0**-126):#x}
        v_mov_b32 v{Z+7}, {bf(2.0**16):#x}
        v_cndmask_b32 v{Z+5}, v{Z+7}, v{Z+5}, s[78:79]
        v_and_b32 v{Z+4}, 15, v0
        v_lshlrev_b32 v{Z+8}, 3, v{Z+2}
        v_sub_u32 v{Z+4}, v{Z+4}, v{Z+8}
        v_lshlrev_b32 v{Z+6}, 16, v{Z+5}
        """)
        for d in range(4):
            a(f"""
            v_cmp_eq_u32 vcc, {2*d}, v{Z+4}
            v_cmp_eq_u32 s[78:79], {2*d+1}, v{Z+4}
            s_nop 0
            v_cndmask_b32 v{SC+d}, 0, v{Z+5}, vcc
            v_cndmask_b32 v{Z+8}, 0, v{Z+6}, s[78:79]
            v_or_b32 v{SC+d}, v{SC+d}, v{Z+8}
            """)
        return [x.strip() for x in a.l]
    def ld_xr(): return [f"buffer_load_dword v{XR+r}, v{vO}, {sr(sX,4)}, 0 offen offset:{256*rowoff(r)} " for r in range(6)]
    def arrive(k):
        a(f"""
        v_mov_b32 v{vt+6}, {FLG+4*k}
        v_mov_b32 v{vt+7}, 1
        s_mov_b64 exec, 1
        ds_add_u32 v{vt+6}, v{vt+7}
        s_mov_b64 exec, -1
        """)
    def spin(k, n, add=True):
        if add: arrive(k)
        else: a(f"v_mov_b32 v{vt+6}, {FLG+4*k}")
        a(f"""
        K2_SPIN{n}:
        ds_read_b32 v{vt+7}, v{vt+6}
        s_waitcnt lgkmcnt(0)
        v_cmp_gt_u32 vcc, 4, v{vt+7}
        s_cbranch_vccnz K2_SPIN{n}
        """)
    def caddr(k): return f"v_and_b32_sdwa v{CADDR+k}, s{cfc}, v{REC+k} {sd} src1_sel:BYTE_3"
    def pick(sel, cur):
        a(f"""
        s_bitcmp1_b32 s{sel}, 0
        s_cselect_b32 s{cur[0]}, s{cur[1]}, s{cur[0]}
        s_cselect_b32 s{cur[2]}, s{cur[3]}, s{cur[2]}
        s_bitcmp1_b32 s{sel}, 1
        s_cselect_b32 s{st0}, s{cur[2]}, s{cur[0]}
        s_and_b32 s{sg}, s{st0}, 3
        s_andn2_b32 s{st0}, s{st0}, 3
        s_mul_i32 s{sgb}, s{sg}, {CAPG*4}
        s_add_u32 s{scount}, s{st0}, 127
        s_lshr_b32 s{scount}, s{scount}, 7
        s_add_u32 s{stail}, s{st0}, 124
        s_bfe_u32 s{stail}, s{stail}, 0x20005
        s_lshl_b32 s{stail}, s{stail}, 1
        s_add_u32 s{stail}, s{stail}, 2
        """)
    def rank_groups():
        a(f"s_add_u32 s{stot}, s{sk}, s{sk+1}\ns_add_u32 s{st1}, s{sk+2}, s{sk+3}\ns_add_u32 s{stot}, s{stot}, s{st1}")
        for g in range(1, 4): a(f"s_or_b32 s{sk+g}, s{sk+g}, {g}")
        cur = [sk, sk+1, sk+2, sk+3]; spare = sk+4
        for (i, j) in ((0, 1), (2, 3), (0, 2), (1, 3), (1, 2)):
            a(f"s_max_u32 s{spare}, s{cur[i]}, s{cur[j]}\ns_min_u32 s{cur[j]}, s{cur[i]}, s{cur[j]}")
            cur[i], spare = spare, cur[i]
        pick(srank, cur)
    def scan(fast, ks=()):
        x = SP
        a(f"""
        v_and_b32 v{vt}, 63, v0
        v_lshlrev_b32 v{vt+1}, 2, v{vt}
        ds_read_b32 v{x}, v{vt+1} offset:{CNT}
        v_lshrrev_b32 v{vt}, 4, v{vt}
        v_mul_u32_u24 v{vt}, {CAPG*4}, v{vt}
        v_and_b32 v{vt+2}, 31, v0
        v_lshlrev_b32 v{vt+2}, 2, v{vt+2}
        v_mov_b32 v{vt+4}, 0xfffffe
        s_waitcnt lgkmcnt(0)
        v_sub_u32 v{vt}, v{vt}, v{x}
        """)
        for d in ("row_shr:1", "row_shr:2", "row_shr:4", "row_shr:8"):
            a(f"v_add_u32_dpp v{x}, v{x}, v{x} {d} row_mask:0xf bank_mask:0xf bound_ctrl:0\ns_nop 1")
        a(f"""
        v_add_u32 v{vt}, v{vt}, v{x}
        v_cmp_lt_u32 vcc, {CAPG*4}, v{x}
        ds_write2st64_b32 v{vt+1}, v{vt}, v{x} offset0:{START//256} offset1:{INCL//256}
        """)
        for g in range(4): a(f"v_readlane_b32 s{sk+g}, v{x}, {16*g+15}")
        if fast:
            a("s_cbranch_vccnz K2_GIVEUP")
            for j, k in enumerate(ks): a(f"ds_read_b32 v{STV+j}, v{CADDR+k} offset:{START}")
            rank_groups()
        else:
            for g in range(1, 4): a(f"s_or_b32 s{sk+g}, s{sk+g}, {g}")
            pick(sg, [sk, sk+1, sk+2, sk+3])
        a(f"""
        s_add_u32 s{st0}, s{st0}, s{sgb}
        v_add_u32 v{vt+2}, s{st0}, v{vt+2}
        s_lshl_b32 s{st1}, s{scount}, 7
        s_add_u32 s{st1}, s{st1}, s{sgb}
        v_lshlrev_b32 v{vt+3}, 3, v{vt+2}
        v_and_b32 v{vt+3}, 128, v{vt+3}
        v_cmpx_gt_u32 vcc, s{st1}, v{vt+2}
        ds_write2st64_b32 v{vt+2}, v{vt+3}, v{vt+4} offset0:{L1//256} offset1:{L2//256}
        s_mov_b64 exec, -1
        """)
    def place(k, st, eo):
        a(f"""
        v_add_u32 v{st}, v{st}, v{RANK+k}
        v_bfe_u32 v{vt}, v{REC+k}, 16, {5 if 't' in OPT.get('nomem','') else 14}
        v_lshlrev_b32 v{vt+1}, 3, v{st}
        v_mad_u32_u16 v{vt+2}, v{REC+k}, 2, v{eo}
        v_and_b32 v{vt+1}, 128, v{vt+1}
        v_mad_u32_u24 v{vt}, v{vt}, s{csrc}, v{vt+1}
        ds_write2st64_b32 v{st}, v{vt}, v{vt+2} offset0:{L1//256} offset1:{L2//256}
        """)
    def lane_setup():
        a(f"""
        v_and_b32 v{vt}, 31, v0
        v_xor_b32 v{vA1}, 16, v{vH16}
        v_xor_b32 v{vA2}, 4, v{vt}
        v_lshlrev_b32 v{vA2}, 2, v{vA2}
        v_add_u32 v{vA1}, s{sgb}, v{vA1}
        v_add_u32 v{vA2}, s{sgb}, v{vA2}
        s_mul_i32 s{st0}, s{sg}, {GN*256}
        s_lshl_b32 s{st1}, s{sfh}, 7
        s_add_u32 s{st0}, s{st0}, s{st1}
        """)
        pair_of_lane(a, vO, vt+1)
        a(f"""
        v_lshl_add_u32 v{vO}, v{vH256}, 2, v{vO}
        v_add_u32 v{vO}, s{st0}, v{vO}
        v_bfe_u32 v{vA3}, v0, 1, 5
        v_lshlrev_b32 v{vA3}, 2, v{vA3}
        v_add_u32 v{vA3}, s{sgb}, v{vA3}
        v_lshlrev_b32 v{vP16}, 4, v0
        v_xor_b32 v{vP16}, v{vP16}, v0
        v_and_b32 v{vP16}, 16, v{vP16}
        v_lshlrev_b32 v{vHS}, 1, v0
        v_xor_b32 v{vHS}, v{vHS}, v{vH16}
        v_and_b32 v{vHS}, 16, v{vHS}
        v_add_u32 v{vHS}, {STG}, v{vHS}
        s_lshl_b32 s{st0}, s{sg}, 2
        s_add_u32 s{st0}, s{st0}, {PROG}
        v_mov_b32 v{vPG}, s{st0}
        s_lshl_b32 s{sm0}, s{sgb}, 3
        s_add_u32 s{sm0}, s{sm0}, {STG}
        s_mov_b32 s{sdma}, 0
        s_mov_b32 s{sneed}, 0
        s_mov_b32 s{slim}, s{scount}
        """)
    def rd_addr(off, j): return f"ds_read_b128 {vr(ADDR+4*j,4)}, v{vA1} offset:{L1+off+32*j}"
    def rd_l2(reg, off): return f"ds_read_b32 v{reg}, v{vA2} offset:{L2+off}"
    def ld_raw(p, b, r):
        pre = [f"v_and_b32 v{ADDR+r}, 0xffff80, v{ADDR+r}"] if OPT.get("safe") else []
        if OPT.get("noload"): return ["s_nop 0"]
        return pre + [f"buffer_load_dword v{raw(p,b)+r}, v{ADDR+r}, {sr(sT,4)}, 0 offen" + (" offset:128" if b else "") + " " + OPT.get("ft", "")]
    def ld_blk(p, b): return sum((ld_raw(p, b, r) for r in range(16)), [])
    cur = {"r": "P"}
    def rd_l3(off, reg=None): return [f"ds_read_b32 v{reg or vEa}, v{vA3} offset:{L2+off}"] if cur["r"] == "P" else []
    lab = [0]
    def dma_ea(sl, reg=None, check=True):
        if cur["r"] != "P": return []
        reg = reg or vEa
        if not check:
            return [f"s_mov_b32 m0, s{sm0}", f"v_and_or_b32 v{reg}, v{reg}, s{cm32}, v{vP16}",
                    f"buffer_load_dwordx4 v{reg}, {sr(sE,4)}, 0 offen {OPT.get('fe', '')} lds;wr={300+sl}", f"s_add_u32 s{sm0}, s{sm0}, 1024"]
        lab[0] += 1
        return [f"s_cmp_lt_u32 s{sdma}, s{slim}", f"s_cbranch_scc0 K2_ND{lab[0]}", "@D{",
                f"s_mov_b32 m0, s{sm0}", f"v_and_or_b32 v{reg}, v{reg}, s{cm32}, v{vP16}",
                f"buffer_load_dwordx4 v{reg}, {sr(sE,4)}, 0 offen {OPT.get('fe', '')} lds;wr={300+sl}", "@}", f"K2_ND{lab[0]}:",
                f"s_add_u32 s{sdma}, s{sdma}, 1", f"s_add_u32 s{sm0}, s{sm0}, 1024"]
    spins = []
    def rd_prog(): return [f"ds_read_b32 v{vEa}, v{vPG}"] if cur["r"] == "C" else []
    def get_ea(p, sl, off, prev=()):
        o = [f"s_add_u32 s{sneed}, s{sneed}, 1"]
        if cur["r"] == "P":
            o += [f"v_mov_b32 v{vEa}, s{sneed};rd={300+sl}", f"ds_write_b32 v{vPG}, v{vEa}"]
            if prev: o.append("@MOVE 302 300")
        else:
            lab[0] += 1; n = lab[0]; spins.append(n)
            o += [f"v_cmp_gt_u32 vcc, s{sneed}, v{vEa}", f"s_cbranch_vccnz K2_SP{n}", f"K2_OK{n}:"]
        return o + [f"v_lshl_add_u32 v{vEa}, v{vA2}, 3, v{vHS}", f"ds_read_b128 {vr(EA+4*p,4)}, v{vEa} offset:{8*off}"]
    def oh_idx(p):
        return [f"v_and_b32 v{vOa}, 30, v{vOa}",
                f"v_lshl_add_u32 v{vOa}, v{vOa}, 3, v{vH256}",
                f"ds_read_b128 {vr(OH+4*p,4)}, v{vOa} offset:{OHL}"]
    big = "v_mfma_f32_32x32x16_bf16" if not OPT.get("nobig") else "; "
    de = OPT.get("drop", "")
    def mE(p, b): return "; " if "E" in de else f"{big} {vr(gb(p,b),16)}, {vr(EA+4*p,4)}, {vr(WC+4*b,4)}, 0"
    def mA(p, b): return "; " if "A" in de else f"{big} {vr(gb(p,b),16)}, {vr(OH+4*p,4)}, {vr(AP+4*b,4)}, {vr(gb(p,b),16)}"
    def mS(p): return "; " if "S" in de else f"{big} {vr(SP,16)}, {vr(OH+4*p,4)}, {vr(SC,4)}, 0"
    def mG(p, b, j): return "; " if ("G" in de or ("g" in de and j & 1)) else (f"{big} {vr(ACC+16*b,16)}, {vr(gb(p,b)+4*j,4)}, {vr(SP+4*j,4)}, {vr(ACC+16*b,16)}" if OPT.get("swapg") else f"{big} {vr(ACC+16*b,16)}, {vr(SP+4*j,4)}, {vr(gb(p,b)+4*j,4)}, {vr(ACC+16*b,16)}")
    def mP(p, b):
        o = []
        if "P" in de: return ["; "]*8
        for u in range(2):
            for j in range(4):
                g = vr(gb(p,b)+4*j, 4)
                o.append(f"v_mfma_f32_4x4x4_16b_bf16 {g}, {vr(PA+2*u,2)}, {vr(raw(p,b)+4*j+2*u,2)}, {g}")
        return o
    def idx_pair(p, b, i):
        g0, g1 = gb(p,b)+2*i, gb(p,b)+2*i+1
        if i < NTB[b]:
            return [f"v_exp_f32 v{g0}, v{g0}", f"v_exp_f32 v{g1}, v{g1}", f"v_add_f32 v{g0}, 1.0, v{g0}",
                    f"v_add_f32 v{g1}, 1.0, v{g1}", f"v_rcp_f32 v{g0}, v{g0}", f"v_rcp_f32 v{g1}, v{g1}"], []
        return [f"v_cvt_pkrtz_f16_f32 v{g0}, v{g0}, v{g1}",
                f"v_and_b32_sdwa v{g1}, s{cfe}, v{g0} {sd} src1_sel:WORD_1",
                f"v_and_b32_sdwa v{g0}, s{cfe}, v{g0} {sd} src1_sel:WORD_0"], \
               [f"ds_read_u16_d16_hi v{g1}, v{g1} offset:{LUTL}", f"ds_read_u16_d16_hi v{g0}, v{g0} offset:{LUTL}"]
    def fin_pair(p, b, i):
        g0, r0 = gb(p,b)+2*i, raw(p,b)+2*i
        mul = [f"v_pk_mul_f32 {vr(r0,2)}, {vr(g0,2)}, {vr(r0,2)}"] if OPT.get("pk") else [f"v_mul_f32 v{r0}, v{g0}, v{r0}", f"v_mul_f32 v{r0+1}, v{g0+1}, v{r0+1}"]
        return mul + [
                f"v_cvt_pk_bf16_f32 v{g0}, v{g0}, v{r0}", f"v_cvt_pk_bf16_f32 v{g0+1}, v{g0+1}, v{r0+1}"]
    def zipl(x, y):
        o = []
        for k in range(max(len(x), len(y))):
            if k < len(x): o.append(x[k])
            if k < len(y): o.append(y[k])
        return o
    uid = [0]
    def W(kind):
        uid[0] += 1
        return f"@W{kind} {uid[0]}"
    SH = int(OPT.get("short", "4"))
    F2 = OPT.get("f2", "0") == "1"
    XE = OPT.get("xe", "1") == "1"
    WE = int(OPT.get("we", "2"))
    def slot(p, b, kind, acc=True, np_=8, npg=8):
        q = 1-p
        nxt = (p, 1) if b == 0 else (q, 0)
        do_idx = b == 0 or kind != "L"
        gs = [[mG(q if b == 0 else p, 1-b, j)] for j in range(npg//2)] if acc else []
        bigs = gs[:2]
        if kind != "L": bigs += [[mE(q, b)], [mA(q, b)]]
        bigs += gs[2:]
        if b == 0: bigs += [[mS(p)]]
        smalls = mP(q, b) if kind != "L" else []
        out = []
        nb = 0
        for i in range(8):
            if i >= np_:
                out += sum(bigs[nb:], []); nb = len(bigs)
                break
            iv, il = idx_pair(*nxt, i) if do_idx else ([], [])
            fv = fin_pair(p, b, i)
            seq = zipl(iv, fv) + il
            if SH:
                rr = range(16*i//SH, 16*(i+1)//SH) if i < SH else []
                if (b == 0 and kind != "L") or (b == 1 and kind == "F"):
                    for r_ in rr: seq += ld_raw(q, 1, r_) if b == 0 else ld_raw(p, 0, r_)
                if kind == "P" and b == 0 and i == SH and XE: seq += ld_xr()
                if kind == "F":
                    if b == 0:
                        for r_ in rr:
                            if r_ & 3 == 3: seq.append(rd_addr((2+p)*128, r_ >> 2))
                    if b == 0 and i == 1: seq = dma_ea(p, check=False) + seq
                    if b == 1 and i == 1: seq += rd_prog()
                    if b == 1 and i == 6: seq += get_ea(p, p, (2+p)*128)
                    if b == 1 and i == 7: seq += rd_l3((3+p)*128)
                    if b == 0 and i == 5: seq.append(rd_l2(vOa, (2+p)*128))
                    if b == 1 and i == 2: seq += oh_idx(p)
            elif kind == "F":
                seq += ld_raw(p, b, 2*i) + ld_raw(p, b, 2*i+1)
                if b == 1 and i & 1: seq.append(rd_addr((3+p)*128, i >> 1))
                if OPT.get("burst"):
                    if p == 0 and b == 0 and i == 0: seq += rd_l3(3*128) + rd_l3(4*128, vOa)
                    if p == 0 and b == 0 and i == 4: seq = dma_ea(1) + dma_ea(2, vOa) + seq
                else:
                    if b == 0 and i == 1: seq += rd_l3((3+p)*128)
                    if b == 1 and i == 0: seq = dma_ea(q) + seq
                if b == 1 and i == 1: seq += rd_prog()
                if b == 1 and i == 6: seq += get_ea(p, p, (2+p)*128, (2,) if (OPT.get('burst') and p == 0) else ())
                if b == 0 and i == 5: seq.append(rd_l2(vOa, (2+p)*128))
                if b == 1 and i == 2: seq += oh_idx(p)
            pre = [W("l")] if i % WE == 0 else []
            if cur["r"] == "P" and kind != "L":
                if (b, i) == (0, 0): pre.append("s_setprio 2")
                if (b, i) == divmod(int(OPT.get("fair", "12")), 8): pre.append("s_setprio 0")
            if i < 6:
                take = 2 if (len(bigs) - nb) > (6 - i) else 1
                if nb < len(bigs): pre += bigs[nb]; nb += 1
                if take == 2 and nb < len(bigs):
                    seq = seq[:6] + bigs[nb] + seq[6:]; nb += 1
            if smalls and i >= 5:
                k0, k1 = {5: (0, 2), 6: (2, 6), 7: (6, 8)}[i]
                sm = smalls[k0:k1]
                if i == 5: seq = seq[:4] + [W("v")] + zipl(sm, seq[4:])
                else: seq = zipl(sm, seq)
            out += pre + seq
        assert nb == len(bigs)
        return out
    def last(p, np_):
        n = f"{p}{cur['r']}{np_}"
        return ([f"K2_LAST{n}:"] + ([] if XE else ld_xr()) + slot(p, 0, "L", np_=np_) + ["s_nop 11"]*(np_ < 6) + slot(p, 1, "L", np_=np_, npg=np_)
                + ["s_nop 1"] + [mG(p, 1, j) for j in range(np_//2)])
    def body(p, kind):
        q = 1-p; n = f"{kind}{p}{cur['r']}"
        o0 = [f"K2_BODY{n}:"] + slot(p, 0, kind)
        o1 = [f"K2_MID{n}:"] + (ld_xr() if kind == "L" else []) + slot(p, 1, kind)
        if OPT.get("prof") == "7": o1 += ["s_mov_b32 m0, s98", "s_add_u32 s98, s98, 1", f"v_writelane_b32 v{UR+5}, s86, m0", "s_memrealtime s[86:87]"]
        if kind == "P":
            for np_ in (2, 4, 6): o1 += [f"s_cmp_eq_u32 s{stail}, {np_}", f"s_cbranch_scc1 K2_LAST{q}{cur['r']}{np_}"]
        if kind == "F":
            if p == 1: o1 += [f"v_add_u32 v{r_}, 256, v{r_}" for r_ in ((vA1, vA2, vA3) if cur["r"] == "P" else (vA1, vA2))]
            o1 += [f"s_sub_u32 s{scount}, s{scount}, 1", f"s_cmp_eq_u32 s{scount}, 2", f"s_cbranch_scc1 K2_BODYP{q}{cur['r']}"]
        return o0, o1
    def entry_short(kind):
        more = kind != "L"
        o = rd_prog() + [W("v"), W("l")] + get_ea(0, 0, 0)
        if more: o += rd_prog() + rd_l3(128)
        o += [W("l"), "@STAMP", mE(0, 0), mA(0, 0), mE(0, 1), mA(0, 1)]
        if F2: o += ld_blk(0, 1) + [rd_addr(128, j) for j in range(4)]
        o += (dma_ea(1, check=False) if more else []) + ["s_nop 7", W("v")] + mP(0, 0) + ["s_nop 3"]
        for i in range(8):
            v_, l_ = idx_pair(0, 0, i)
            o += [W("l")] + ([v_[0], v_[1], "s_nop 0"] + v_[2:] if i < NTB[0] else v_) + l_
            if more:
                if i < 4:
                    for r_ in range(4*i, 4*i+4): o += ld_raw(1, 0, r_)
                if i == 6: o += [W("v")] + get_ea(1, 1, 128)
                if i == 7 and kind == "F": o += rd_l3(256)
            if i == (5 if F2 else 3): o += [W("v")] + mP(0, 1)
        return o + slot(0, 0, kind, acc=False) + [f"s_branch K2_MID{kind}0{cur['r']}"]
    def entry(kind):
        if SH: return entry_short(kind)
        more = kind != "L"
        o = rd_prog() + [W("v"), W("l")] + get_ea(0, 0, 0)
        if more: o += rd_prog()
        o += [W("l"), "@STAMP", mE(0, 0), mA(0, 0), mE(0, 1), mA(0, 1), "s_nop 7", W("v")] + mP(0, 0) + ["s_nop 3"]
        for i in range(8):
            v_, l_ = idx_pair(0, 0, i)
            o += [W("l")] + ([v_[0], v_[1], "s_nop 0"] + v_[2:] if i < NTB[0] else v_) + l_
            if more:
                for r_ in range(4*(i & 3), 4*(i & 3)+4): o += ld_raw(1, i >> 2, r_)
                if i >= 4: o.append(rd_addr(256, i-4))
                if i == 4: o += [W("v")] + get_ea(1, 1, 128) + rd_l3(256)
                if i == 7: o += dma_ea(0)
            if i == 3: o += [W("v")] + mP(0, 1)
        return o + slot(0, 0, kind, acc=False) + [f"s_branch K2_MID{kind}0{cur['r']}"]
    def drain(p): return ["s_nop 1"] + [mG(p, 1, j) for j in range(4)]
    def mk_fill():
        ad = [rd_addr(0, j) for j in range(4)]
        t0 = SP
        o = []
        if cur["r"] == "P":
            o = (rd_l3(0) + [f"ds_read_b32 v{t0}, v{vA3} offset:{L2+128}"])
        o += ad + [rd_l2(vOa, 0), rd_l2(t0+1, 128)]
        if cur["r"] == "P":
            o += ["s_waitcnt lgkmcnt(6)"] + dma_ea(0) + [f"v_mov_b32 v{vEa}, v{t0}"]
        d1 = dma_ea(1) if not SH else []
        late1 = OPT.get("d1", "1") == "1"
        o += ([] if late1 else d1) + ["s_waitcnt lgkmcnt(0)"] + ld_blk(0, 0) + oh_idx(0) + [f"v_mov_b32 v{vOa}, v{t0+1}"] + oh_idx(1)
        if F2: return o
        o += ld_blk(0, 1) + (d1 if late1 else [])
        return o + [rd_addr(128, j) for j in range(4)]
    FI, B, EN, LA_ = {}, {}, {}, {}
    for r in "PC":
        cur["r"] = r
        if r == "C" and OPT.get("ntc"): NTB[:] = [int(c_) for c_ in OPT["ntc"]]
        FI[r] = mk_fill()
        for k in "FPL":
            EN[r, k] = entry(k)
            for p in range(2): B[r, p, k] = body(p, k)
        for p in range(2):
            for np_ in (2, 4, 6, 8): LA_[r, p, np_] = last(p, np_)
    def trace(r, cnt, np_=8):
        kinds = ["F"]*(cnt-2) + ["P", "L"][-min(cnt, 2):]
        tr = FI[r] + EN[r, kinds[0]] + B[r, 0, kinds[0]][1]
        for t in range(1, cnt-1): tr += B[r, t & 1, kinds[t]][0] + B[r, t & 1, kinds[t]][1]
        if cnt > 1 and np_ < 8: tr = tr[:len(tr) - 2*(2 - (np_-2)//2)]
        tr += drain(0) if cnt == 1 else LA_[r, (cnt-1) & 1, np_]
        o = []; keep = True; nd = 0
        for x in tr:
            if x == "@D{": keep = nd < cnt; nd += 1
            elif x == "@}": keep = True
            elif keep and x != "@STAMP": o.append(x)
        return o
    epi_head = ["s_branch x", "s_cmp", "s_cbranch", "s_waitcnt vmcnt(0) lgkmcnt(0)"] + [f"v_add_f32 v{G+r_}, 0, v{XR}" for r_ in range(24)] + [f"v_add_f32 v{ACC+r_}, 0, v{ACC+r_}" for r_ in range(32)]
    cases = [(r, c, n_) for c in range(1, 9) for r in "PC" for n_ in (2, 4, 6, 8)]
    need = asmsim.solve_waits([trace(*c) for c in cases])
    for c in cases: asmsim.check_hazards(asmsim.apply_waits(trace(*c), need) + epi_head, f"case {c}")
    def emit(l):
        for x in asmsim.apply_waits(l, need):
            if x == "@STAMP":
                stamp(a, 5); stamp(a, 5, "3"); stamp(a, 7, "4")
                if OPT.get("prof") == "7": a("s_memrealtime s[86:87]\ns_mov_b32 s98, 1")
                if OPT.get("prof") == "3": a(f"s_memtime s[86:87]\ns_mov_b32 s90, s{scount}\ns_getreg_b32 s92, hwreg(HW_REG_HW_ID)")
            elif x[0] != "@": a(x.split(";")[0] or "s_nop 0")
    def main_loop(r):
        a(f"""
        K2_GO{r}:
        s_cmp_eq_u32 s{scount}, 0
        s_cbranch_scc1 K2_EMPTY
        s_cmp_gt_u32 s{scount}, 2
        s_cbranch_scc1 K2_ENTF{r}
        s_cmp_eq_u32 s{scount}, 2
        s_cbranch_scc1 K2_ENTP{r}
        """)
        emit(EN[r, "L"]); a(f"K2_ENTP{r}:"); emit(EN[r, "P"]); a(f"K2_ENTF{r}:"); emit(EN[r, "F"])
        a(".p2align 6")
        for _ in range(int(OPT.get("pad", "0"))): a("s_nop 0")
        for p in range(2): emit(B[r, p, "F"][0] + B[r, p, "F"][1])
        a(f"s_branch K2_BODYF0{r}")
        emit(B[r, 0, "L"][1] + drain(0)); a("s_branch K2_DONE")
        for p in range(2):
            for np_ in (2, 4, 6): emit(LA_[r, p, np_]); a("s_branch K2_DONE")
        for p in range(2):
            emit(B[r, p, "P"][0] + B[r, p, "P"][1] + LA_[r, 1-p, 8])
            if p == 0 or r == "P": a("s_branch K2_DONE")
    def fill(n):
        a(f"s_cmp_eq_u32 s{scount}, 0\ns_cbranch_scc1 K2_FILLED{n}")
        emit(FI[n])
        a(f"K2_FILLED{n}:")
    def ap_addr():
        a(f"""
        v_bfe_u32 v{vt}, v0, 2, 2
        v_lshrrev_b32 v{vt+1}, 1, v{vH16}
        v_add_u32 v{vt}, v{vt}, v{vt+1}
        v_mul_u32_u24 v{vt}, {ROWP}, v{vt}
        v_bfe_u32 v{vt+2}, v0, 4, 1
        v_lshl_add_u32 v{vt}, v{vt+2}, 5, v{vt}
        v_and_b32 v{vt+2}, 3, v0
        v_lshl_add_u32 v{vt}, v{vt+2}, 3, v{vt}
        s_mul_i32 s{st0}, s{sg}, {GN*ROWP}
        s_lshl_b32 s{st1}, s{sfh}, 7
        s_add_u32 s{st0}, s{st0}, s{st1}
        v_add_u32 v{vt}, s{st0}, v{vt}
        v_mul_u32_u24 v{vt+1}, {ROWP//2}, v{vt+1}
        v_and_b32 v{vt+2}, 127, v{vO}
        v_add3_u32 v{vt+1}, v{vt+2}, s{st0}, v{vt+1}
        """)
    def ap_read():
        a(f"""
        ds_read_b64_tr_b16 {vr(AP,2)}, v{vt} offset:{APL}
        ds_read_b64_tr_b16 {vr(AP+2,2)}, v{vt} offset:{APL+4*ROWP}
        ds_read_b64_tr_b16 {vr(AP+4,2)}, v{vt} offset:{APL+64}
        ds_read_b64_tr_b16 {vr(AP+6,2)}, v{vt} offset:{APL+4*ROWP+64}
        """)
        for r in range(6): a(f"ds_read_b32 v{UR+r}, v{vt+1} offset:{UL+ROWP*rowoff(r)}")
    def init_addr():
        for r in range(16): a(f"v_mov_b32 v{ADDR+r}, 128")
    def zero_acc():
        for r in range(32): a(f"v_mov_b32 v{ACC+r}, 0")

    a(f"s_cmp_lg_u32 s{sfh}, 0\ns_cbranch_scc1 K2_LOADER")
    if OPT.get("sp"): a(f"s_setprio {OPT['sp']}")
    ld_wc()
    a.ext(common1(SP, vt))
    a(f"v_and_b32 v{vt+3}, 15, v0\nv_lshlrev_b32 v{vt+3}, 4, v{vt+3}\nv_bfe_u32 v{vt+4}, v0, 4, 2\nv_lshl_add_u32 v{vt+3}, v{vt+4}, 10, v{vt+3}\ns_lshl_b32 s{st0}, s{sg}, 8\nv_add_u32 v{vt+3}, s{st0}, v{vt+3}")
    a(f"v_add_u32 v{vt+4}, 40960, v{vt+3}")
    for val, rg, runs in ((0x3f003f00, EA, (0, 3, 32, 35)), (0, EA+4, (23, 27)), (0x3f803f80, OH, (51, 55, 59))):
        for j in range(4): a(f"v_mov_b32 v{rg+j}, {val:#x}")
        for c0 in runs:
            a(f"ds_write_b128 v{vt+4 if c0 >= 24 else vt+3}, {vr(rg,4)} offset:{LUTL + 1024*(c0 - (40 if c0 >= 24 else 0))}")
    a(f"""
    v_and_b32 v{vt+3}, 127, v0
    v_bfe_u32 v{vt+4}, v0, 2, 4
    v_and_b32 v{Z+4}, 3, v0
    v_lshrrev_b32 v{Z+5}, 6, v{vt+3}
    v_lshlrev_b32 v{vt+3}, 2, v{vt+3}
    v_lshl_add_u32 v{Z+4}, v{Z+5}, 2, v{Z+4}
    v_lshlrev_b32 v{Z+5}, 1, v{Z+4}
    v_mov_b32 v{Z+6}, 0x3780
    v_mov_b32 v{Z+7}, 0x37800000
    v_cmp_eq_u32 vcc, v{Z+5}, v{vt+4}
    v_add_u32 v{Z+5}, 1, v{Z+5}
    s_nop 0
    v_cndmask_b32 v{Z+8}, 0, v{Z+6}, vcc
    v_cmp_eq_u32 vcc, v{Z+5}, v{vt+4}
    s_nop 1
    v_cndmask_b32 v{Z+9}, 0, v{Z+7}, vcc
    v_or_b32 v{Z+8}, v{Z+8}, v{Z+9}
    v_cmp_gt_u32 vcc, 15, v{vt+4}
    s_nop 1
    v_cndmask_b32 v{Z+8}, 0, v{Z+8}, vcc
    ds_write_b32 v{vt+3}, v{Z+8} offset:{OHL}
    """)
    a(f"""
    v_mul_u32_u24 v{EOFF}, {CS*32}, v{vt+1}
    v_add_u32 v{EOFF+1}, {64*CS*32}, v{EOFF}
    v_mov_b32 v{vt+3}, 4
    """)
    init_addr()
    a(f"s_waitcnt vmcnt({2 + (TP0 > 0)})")
    stamp(a, 2); stamp(a, 1, "5")
    if OPT.get("half", "0") == "1":
        for u in range(2): a(f"v_mov_b32_dpp v{vt+8+u}, v{REC+4*u+3} quad_perm:[3,3,3,3] row_mask:0xf bank_mask:0xf")
        for u in range(2): a(f"v_cmp_eq_u32 {sr(68+2*u,2)}, -1, v{vt+8+u}")
        a("s_nop 0")
        for u in range(2):
            for i in range(4): a(f"v_cndmask_b32 v{REC+8+4*u+i}, v{REC+8+4*u+i}, -1, {sr(68+2*u,2)}")
    a(f"""
    v_cmp_eq_u32 vcc, -2, v{REC+11}
    v_cmp_eq_u32 s[78:79], -2, v{REC+15}
    s_or_b64 vcc, vcc, s[78:79]
    s_cbranch_vccz K2_NOOVF
    v_mov_b32 v{vt+4}, 0x10000
    v_mov_b32 v{vt}, 60
    ds_add_u32 v{vt}, v{vt+4} offset:{CNT}
    K2_NOOVF:
    """)
    M = [68, 70, 72, 74, 76, 78]
    KS = [[4*u+i for i in range(4)] + [8+4*u, 9+4*u] for u in range(2)]
    def masked(u, fn):
        for j, k in enumerate(KS[u]): a(f"v_cmp_gt_u32 {sr(M[j],2)}, -2, v{REC+k}")
        for j, k in enumerate(KS[u]): a(f"s_mov_b64 exec, {sr(M[j],2)}\n{fn(k, 6*u+j)}")
        a("s_mov_b64 exec, -1")
    for k in KS[0] + KS[1]: a(caddr(k))
    for u in range(2): masked(u, lambda k, j: f"ds_add_rtn_u32 v{RANK+k}, v{CADDR+k}, v{vt+3} offset:{CNT}")
    a(f"v_min_u32 v{vt+4}, v{REC+10}, v{REC+14}\nv_cmp_gt_u32 s[26:27], -2, v{vt+4}")
    def steps(tag, fn):
        a(f"s_cmp_eq_u64 s[26:27], 0\ns_cbranch_scc1 K2_{tag}1\ns_waitcnt lgkmcnt(0)")
        for u in range(2):
            for k in (10+4*u, 11+4*u):
                a(f"v_cmpx_gt_u32 vcc, -2, v{REC+k}\ns_cbranch_execz K2_{tag}{u}")
                fn(k, u)
            a(f"K2_{tag}{u}:\ns_mov_b64 exec, -1")
    steps("C", lambda k, u: a(f"{caddr(k)}\nds_add_rtn_u32 v{RANK+k}, v{CADDR+k}, v{vt+3} offset:{CNT}"))
    arrive(0)
    stamp(a, 2, "5")
    LA, LB = raw(0, 0), raw(0, 1)
    for u in range(2):
        for j, k in enumerate(KS[u]):
            a(f"v_bfe_u32 v{LA+6*u+j}, v{REC+k}, 16, {5 if 't' in OPT.get('nomem','') else 14}\nv_mad_u32_u16 v{LB+6*u+j}, v{REC+k}, 2, v{EOFF+u}")
    NBK = int(OPT.get("nbk", "0"))
    if NBK:
        for u in range(2):
            for j, k in enumerate(KS[u]): a(f"v_and_b32 v{vt+8}, 0x3c, v{CADDR+k}\nv_cmp_gt_u32 {sr(M[j],2)}, {4*NBK}, v{vt+8}")
            for j, k in enumerate(KS[u]): a(f"s_mov_b64 exec, {sr(M[j],2)}\nbuffer_load_ubyte v{vt+12}, v{LB+6*u+j}, {sr(sE,4)}, 0 offen")
            a("s_mov_b64 exec, -1")
    for j in range(12): a(f"v_mul_u32_u24 v{LA+j}, s{csrc}, v{LA+j}")
    spin(0, "A", add=False)
    stamp(a, 3, "5")
    scan(True, KS[0] + KS[1])
    a("s_waitcnt lgkmcnt(1)")
    stamp(a, 4, "5")
    for j, k in enumerate(KS[0] + KS[1]): a(f"v_add_u32 v{STV+j}, v{STV+j}, v{RANK+k}")
    for j, k in enumerate(KS[0] + KS[1]): a(f"v_lshlrev_b32 v{RANK+k}, 3, v{STV+j}")
    for j, k in enumerate(KS[0] + KS[1]): a(f"v_and_or_b32 v{LA+j}, v{RANK+k}, s{c128}, v{LA+j}")
    for u in range(2): masked(u, lambda k, j: f"ds_write2st64_b32 v{STV+j}, v{LA+j}, v{LB+j} offset0:{L1//256} offset1:{L2//256}")
    def put_step(k, u):
        a(f"ds_read_b32 v{STV+12}, v{CADDR+k} offset:{START}\ns_waitcnt lgkmcnt(0)")
        place(k, STV+12, EOFF+u)
    steps("P", put_step)
    arrive(1)
    stamp(a, 5, "5")
    lane_setup()
    stamp(a, 6, "5")
    if OPT.get("order", "1") == "1":
        a(f"""
        v_mov_b32 v{vt+6}, {FLG+4}
        K2_SPINB:
        ds_read2_b32 {vr(vt+8,2)}, v{vt+6} offset0:0 offset1:1
        s_waitcnt lgkmcnt(0)
        v_min_u32 v{vt+7}, v{vt+8}, v{vt+9}
        v_cmp_gt_u32 vcc, 4, v{vt+7}
        s_cbranch_vccnz K2_SPINB
        """)
    else: spin(1, "B", add=False)
    stamp(a, 3); stamp(a, 7, "5")
    a("K2_REFILLP:")
    fill("P")
    stamp(a, 4)
    a(f"s_cmp_lg_u32 s{sslow}, 0\ns_cbranch_scc1 K2_GOP")
    zero_acc()
    ap_addr()
    spin(3, "D", add=False)
    ap_read()
    main_loop("P")
    a("K2_GIVEUP:")
    arrive(1)
    spin(3, "E", add=False)
    a("s_branch K2_SLOW")
    assert XL % 256 == 0
    XF = G; WT = [ACC, raw(0, 0)]
    accs = [[[raw(1,0)+8*nb, raw(1,0)+8*nb+4] for nb in range(3)], [[raw(1,1)+8, raw(1,1)+12], [SP, SP+4], [SP+8, ADDR]]]
    a(f"""
    K2_LOADER:
    v_lshrrev_b32 v{vt+4}, 4, v{vt}
    s_lshl_b32 s{st1}, s{sg}, 2
    v_add_u32 v{vA1}, s{st1}, v{vt+4}
    v_and_b32 v{vt+5}, 15, v0
    v_xor_b32 v{vA1}, v{vA1}, v{vt+5}
    v_lshlrev_b32 v{vA1}, 4, v{vA1}
    v_lshl_add_u32 v{vA1}, v{vt+4}, 8, v{vA1}
    s_lshl_b32 s{st1}, s{sg}, 10
    """)
    if OPT.get("nobulk"):
        ld_wc()
        a.ext(common1(XR+1, vt))
        a(f"v_and_b32 v{vt+2}, 255, v0\nv_lshlrev_b32 v{vt+2}, 4, v{vt+2}")
        for j in range(4): a(f"v_mov_b32 v{EA+j}, 0")
        for j in range(4): a(f"ds_write_b128 v{vt+2}, {vr(EA,4)} offset:{APL+4096*j}")
        arrive(2); arrive(3)
        a("s_branch K2_NOBULK")
    for k in range(3):
        a(f"""
        s_add_u32 m0, s{st1}, {XL+4096*k}
        s_add_u32 s{st2}, s{st1}, {4096*k}
        buffer_load_dwordx4 v{vA1}, {sr(sX,4)}, s{st2} offen lds
        """)
    stamp(a, 1, "6")
    srot = sk
    a(f"s_lshl_b32 s{slut}, s{sg}, 13\ns_lshr_b32 s{srt}, s2, 3")
    for j in range(4):
        a(f"s_add_u32 s{srot+j}, s{srt}, {j}\ns_and_b32 s{srot+j}, s{srot+j}, 3\ns_lshl_b32 s{srot+j}, s{srot+j}, 10\ns_add_u32 s{st2}, s{slut}, s{srot+j}")
        for m in range(2):
            for hf in range(2):
                a(f"buffer_load_dwordx4 {vr(WT[m]+16*hf+4*j,4)}, v{vA2}, {sr(sWT,4)}, s{st2} offen")
                if (m, hf) != (1, 1): a(f"s_add_u32 s{st2}, s{st2}, {4096 if hf == 0 else 32768-4096}")
    stamp(a, 2, "6")
    a(f"""
    s_lshl_b32 s{st0}, s{sg}, 12
    s_add_u32 m0, s{st0}, {LUTL + 7*1024}
    s_add_u32 s{st2}, s{st0}, {LUT_OFF - WT_OFF + 7*1024}
    """)
    for j in range(4): a(f"buffer_load_dwordx4 v{vA2}, {sr(sWT,4)}, s{st2} offen offset:{1024*j} lds")
    a(f"""
    s_mul_i32 s{st0}, s{sg}, 3072
    s_add_u32 m0, s{st0}, {LUTL + 39*1024}
    s_add_u32 s{st2}, s{st0}, {LUT_OFF - WT_OFF + 39*1024}
    """)
    for j in range(3): a(f"buffer_load_dwordx4 v{vA2}, {sr(sWT,4)}, s{st2} offen offset:{1024*j} lds")
    a(f"""
    s_and_b32 s{st0}, s{sg}, 1
    s_lshl_b32 s{st0}, s{st0}, 15
    s_add_u32 m0, s{st0}, {LUTL + 31*1024}
    s_add_u32 s{st2}, s{st0}, {LUT_OFF - WT_OFF + 31*1024}
    buffer_load_dwordx4 v{vA2}, {sr(sWT,4)}, s{st2} offen lds
    """)
    ld_wc()
    stamp(a, 3, "6")
    a(f"""
    s_waitcnt vmcnt(26)
    """)
    arrive(2)
    a(f"""
    v_mov_b32 v{vt+8}, v{vt}
    v_and_b32 v{vt}, 15, v0
    v_bfe_u32 v{vt+1}, v0, 4, 2
    v_xor_b32 v{vt+2}, v{vt}, v{vt+1}
    v_lshlrev_b32 v{vt+2}, 4, v{vt+2}
    v_lshl_add_u32 v{vt+2}, v{vt}, 8, v{vt+2}
    v_add_u32 v{vt+2}, {XL}, v{vt+2}
    v_mul_u32_u24 v{vt}, {ROWP}, v{vt}
    """)
    stamp(a, 2); stamp(a, 5, "6")
    spin(2, "C", add=False)
    stamp(a, 6, "6")
    for s in range(4):
        a(f"s_lshr_b32 s{st0}, s{srot+s}, 4\nv_xor_b32 v{vt+3}, s{st0}, v{vt+2}")
        for nb in range(3):
            a(f"ds_read_b128 {vr(XF+16*nb+4*s,4)}, v{vt+3} offset:{4096*nb}")
    a(f"""
    s_lshr_b32 s{st0}, s{sg}, 1
    s_lshl_b32 s{st0}, s{st0}, 7
    s_and_b32 s{st1}, s{sg}, 1
    s_lshl_b32 s{st1}, s{st1}, 5
    s_add_u32 s{st0}, s{st0}, s{st1}
    v_lshl_add_u32 v{vt+4}, v{vt+1}, 3, v{vt}
    v_add_u32 v{vt+4}, s{st0}, v{vt+4}
    s_lshl_b32 s{st0}, s{sg}, 6
    v_lshl_add_u32 v{vt+5}, v{vt+1}, 3, v{vt}
    v_add_u32 v{vt+5}, s{st0}, v{vt+5}
    """)
    def mm1(m, s):
        return [f"v_mfma_f32_16x16x32_bf16 {vr(accs[m][nb][ab], 4)}, {vr(WT[m]+16*ab+4*s,4)}, {vr(XF+16*nb+4*s,4)}, {'0' if s == 0 else vr(accs[m][nb][ab], 4)}"
                for nb in range(3) for ab in range(2)]
    outA = []
    for nb in range(3):
        al, be = accs[0][nb]; o = EA+ (0 if nb != 1 else 4)
        for i in range(4): outA += [f"v_mul_f32 v{al+i}, s{cnl2e}, v{al+i}", f"v_mul_f32 v{be+i}, s{cnl2e}, v{be+i}"]
        outA += [f"v_cvt_pk_bf16_f32 v{o}, v{al}, v{al+2}", f"v_cvt_pk_bf16_f32 v{o+1}, v{be}, v{be+2}",
                 f"v_cvt_pk_bf16_f32 v{o+2}, v{al+1}, v{al+3}", f"v_cvt_pk_bf16_f32 v{o+3}, v{be+1}, v{be+3}",
                 f"ds_write_b64 v{vt+4}, {vr(o,2)} offset:{APL+16*ROWP*nb}", f"ds_write_b64 v{vt+4}, {vr(o+2,2)} offset:{APL+16*ROWP*nb+64}"]
    NPF = int(OPT.get("tpf", "0"))
    if NPF:
        srd(a, sS, 14, T_OFF, N*TS)
        a(f"""
        s_bfe_u32 s{st0}, s2, 0x50003
        s_lshl_b32 s{st0}, s{st0}, 2
        s_add_u32 s{st0}, s{st0}, s{sg}
        s_lshl_b32 s{st0}, s{st0}, 13
        v_lshlrev_b32 v{vt+9}, 7, v{vt+8}
        """)
        for j in range(NPF):
            a(f"buffer_load_dword v{vt+10}, v{vt+9}, {sr(sS,4)}, s{st0} offen")
            if j+1 < NPF: a(f"s_add_u32 s{st0}, s{st0}, {1 << 20}")
    g = []; cm = common1(XR+1, vt+8); k = 0
    for s in range(4):
        g.append(f"s_waitcnt vmcnt({22-4*s+NPF}) lgkmcnt({9-3*s})")
        for x in mm1(0, s) + (mm1(1, s) if s < 3 else []):
            g.append(x); g += cm[k:k+3]; k += 3
    assert k >= len(cm)
    k = 0
    for j, x in enumerate(mm1(1, 3)):
        g.append(x)
        if j >= 2: g += outA[k:k+3]; k += 3
    g += outA[k:]
    for nb in range(3):
        al, be = accs[1][nb]; o = XF+4*nb
        g += [f"v_cvt_pk_bf16_f32 v{o}, v{al}, v{al+1}", f"v_cvt_pk_bf16_f32 v{o+1}, v{al+2}, v{al+3}",
              f"v_cvt_pk_bf16_f32 v{o+2}, v{be}, v{be+1}", f"v_cvt_pk_bf16_f32 v{o+3}, v{be+2}, v{be+3}",
              f"ds_write_b64 v{vt+5}, {vr(o,2)} offset:{UL+16*ROWP*nb}", f"ds_write_b64 v{vt+5}, {vr(o+2,2)} offset:{UL+16*ROWP*nb+32}"]
    asmsim.check_hazards(g, "gemm")
    a.ext(g)
    a(f"s_waitcnt vmcnt({NPF})")
    arrive(3)
    a("K2_NOBULK:")
    stamp(a, 3); stamp(a, 7, "6")
    init_addr()
    spin(1, "F", add=False)
    a(f"""
    v_mov_b32 v{vt+2}, {INCL+60}
    ds_read2_b32 {vr(vt+4,2)}, v{vt+2} offset0:0 offset1:16
    ds_read2_b32 {vr(vt+6,2)}, v{vt+2} offset0:32 offset1:48
    s_waitcnt lgkmcnt(0)
    """)
    for g_ in range(4): a(f"v_readfirstlane_b32 s{sk+g_}, v{vt+4+g_}")
    a(f"""
    s_max_u32 s{st0}, s{sk}, s{sk+1}
    s_max_u32 s{st1}, s{sk+2}, s{sk+3}
    s_max_u32 s{st0}, s{st0}, s{st1}
    s_cmp_gt_u32 s{st0}, {CAPG*4}
    s_cbranch_scc1 K2_SLOW
    """)
    a("s_setprio 1")
    rank_groups()
    lane_setup()
    a("K2_REFILLC:")
    fill("C")
    a(f"s_cmp_lg_u32 s{sslow}, 0\ns_cbranch_scc1 K2_GOC")
    zero_acc()
    ap_addr()
    spin(3, "G", add=False)
    ap_read()
    stamp(a, 4)
    a("s_branch K2_GOC")
    a("K2_EMPTY:"); a.ext(ld_xr()); a("s_branch K2_DONE")
    for n in spins:
        a(f"""
        K2_SP{n}:
        ds_read_b32 v{vEa}, v{vPG}
        s_waitcnt lgkmcnt(0)
        v_cmp_gt_u32 vcc, s{sneed}, v{vEa}
        s_cbranch_vccnz K2_SP{n}
        s_branch K2_OK{n}
        """)
    main_loop("C")
    a(f"""
    K2_DONE:
    s_cmp_lg_u32 s{sslow}, 0
    s_cbranch_scc1 K2_ROUND
    K2_EPI:
    s_waitcnt vmcnt(0) lgkmcnt(0)
    """)
    stamp(a, 6); stamp(a, 6, "3")
    if OPT.get("prof") == "3": a("s_memtime s[88:89]")
    T0 = G
    if OPT.get("pke", "1") == "1":
        a(f"s_mov_b32 s{st0+1}, 0x358637bd\ns_mov_b32 s{st0+2}, 0x358637bd")
        for b in range(2):
            for r in range(6):
                u, x = T0+12*b+r, T0+12*b+6+r
                if b == 0: a(f"v_lshlrev_b32 v{u}, 16, v{UR+r}\nv_lshlrev_b32 v{x}, 16, v{XR+r}")
                else: a(f"v_and_b32 v{u}, 0xffff0000, v{UR+r}\nv_and_b32 v{x}, 0xffff0000, v{XR+r}")
        for b in range(2):
            for r in range(0, 6, 2): a(f"v_pk_add_f32 {vr(ACC+16*b+r,2)}, {vr(ACC+16*b+r,2)}, {sr(st0+1,2)}")
            for r in range(6): a(f"v_rcp_f32 v{ACC+16*b+r}, v{ACC+16*b+r}")
        for b in range(2):
            for r in range(0, 6, 2): a(f"v_pk_fma_f32 {vr(T0+12*b+r,2)}, {vr(ACC+16*b+8+r,2)}, {vr(ACC+16*b+r,2)}, {vr(T0+12*b+r,2)}")
        for b in range(2):
            for r in range(6): a(f"v_max_f32 v{T0+12*b+r}, 0, v{T0+12*b+r}")
        for b in range(2):
            for r in range(0, 6, 2): a(f"v_pk_add_f32 {vr(T0+12*b+r,2)}, {vr(T0+12*b+r,2)}, {vr(T0+12*b+6+r,2)}")
    else:
        for b in range(2):
            for r in range(6):
                a(f"v_add_f32 v{ACC+16*b+r}, 0x358637bd, v{ACC+16*b+r}")
            for r in range(6):
                a(f"v_rcp_f32 v{ACC+16*b+r}, v{ACC+16*b+r}")
            for r in range(6):
                u, x = T0+12*b+r, T0+12*b+6+r
                if b == 0: a(f"v_lshlrev_b32 v{u}, 16, v{UR+r}\nv_lshlrev_b32 v{x}, 16, v{XR+r}")
                else: a(f"v_and_b32 v{u}, 0xffff0000, v{UR+r}\nv_and_b32 v{x}, 0xffff0000, v{XR+r}")
            for r in range(6):
                u, x = T0+12*b+r, T0+12*b+6+r
                a(f"v_fmac_f32 v{u}, v{ACC+16*b+8+r}, v{ACC+16*b+r}\nv_max_f32 v{u}, 0, v{u}\nv_add_f32 v{u}, v{u}, v{x}")
    a(f"v_lshl_or_b32 v{vO2}, v{vH16}, 27, v{vO}")
    WTH = int(OPT.get("wth", "0"))
    def outs(fl):
        for r in range(6):
            a(f"v_cvt_pk_bf16_f32 v{SP+r}, v{T0+r}, v{T0+12+r}")
            a(f"buffer_store_dword v{SP+r}, v{vO if r < 4 else vO2}, {sr(sO,4)}, 0 offen offset:{256*rowoff(r)} {fl}")
    if WTH:
        a(f"s_cmp_gt_u32 s{stot}, {4*WTH}\ns_cbranch_scc1 K2_PLAIN")
        outs("sc1")
        a("s_branch K2_OUT\nK2_PLAIN:")
    outs(OPT.get('st_o', ''))
    a("K2_OUT:")
    stamp(a, 7)
    stamp_out(a, 1, 14, sw, 2)
    a("K2_END:\ns_endpgm")

    a("K2_SLOW:")
    srd(a, sS, 8, None, E*4)
    srd(a, sD, 10, None, E*4)
    a(f"""
    s_mov_b32 s{sslow}, 1
    s_mov_b32 s{cm10}, {-GN}
    """)
    a("s_waitcnt vmcnt(0) lgkmcnt(0)\ns_barrier")
    zero_acc(); lane_setup(); ap_addr(); ap_read()
    a(f"""
    K2_ROUND:
    s_cmp_ge_u32 s{sround}, {E//RND}
    s_cbranch_scc1 K2_EPI
    s_mul_i32 s{st0}, s{sround}, {RND}
    s_add_u32 s{sround}, s{sround}, 1
    v_add_u32 v{EOFF}, s{st0}, v0
    v_lshlrev_b32 v{vt}, 2, v{EOFF}
    buffer_load_dword v{REC}, v{vt}, {sr(sD,4)}, 0 offen
    buffer_load_dword v{REC+1}, v{vt}, {sr(sS,4)}, 0 offen
    v_lshlrev_b32 v{EOFF}, 5, v{EOFF}
    v_and_b32 v{vt}, 63, v0
    v_lshlrev_b32 v{vt}, 3, v{vt}
    v_mov_b32 v{vt+4}, 0
    v_mov_b32 v{vt+5}, 0
    s_waitcnt lgkmcnt(0)
    s_barrier
    ds_write_b64 v{vt}, {vr(vt+4,2)} offset:{CNT}
    v_mov_b32 v{vt+3}, 4
    s_waitcnt vmcnt(0) lgkmcnt(0)
    s_barrier
    """)
    rec_fields(a, REC, REC+2, vt, cm40, cm10)
    a(f"""
    v_cmp_eq_u32 vcc, s2, v{REC+2}
    v_lshl_or_b32 v{REC}, v{REC+1}, 16, v{REC}
    {caddr(0)}
    s_mov_b64 s[78:79], vcc
    v_cmp_gt_u32 vcc, {RND}, v0
    s_and_b64 s[78:79], s[78:79], vcc
    s_mov_b64 exec, s[78:79]
    ds_add_rtn_u32 v{RANK}, v{CADDR}, v{vt+3} offset:{CNT}
    s_mov_b64 exec, -1
    s_waitcnt lgkmcnt(0)
    s_barrier
    """)
    scan(False)
    a(f"""
    s_mov_b64 exec, s[78:79]
    ds_read_b32 v{STV}, v{CADDR} offset:{START}
    s_waitcnt lgkmcnt(0)
    """)
    place(0, STV, EOFF)
    a(f"""
    s_mov_b64 exec, -1
    """)
    lane_setup()
    a(f"""
    s_waitcnt lgkmcnt(0)
    s_barrier
    s_cmp_eq_u32 s{sfh}, 0
    s_cbranch_scc1 K2_REFILLP
    s_branch K2_REFILLC
    K2_CODE_END:
    """)
    return a.text(), kd("k2_kernel", 256, 102)

KE_PROF = f"""
    s_memrealtime s[8:9]
    s_load_dwordx2 s[4:5], s[0:1], 88
    s_waitcnt lgkmcnt(0)
    s_add_u32 s4, s4, {PROF_OFF + 0x200000}
    s_addc_u32 s5, s5, 0
    s_mov_b32 s6, 4
    s_mov_b32 s7, 0x20000
    v_mov_b32 v1, s8
    v_lshlrev_b32 v0, 2, v0
    buffer_store_dword v1, v0, s[4:7], 0 offen
"""
def gen_kr():
    a = Asm()
    a(f"""
    kr_kernel:
    s_cmp_ge_u32 s2, 1
    s_cbranch_scc1 KR_END
    s_load_dwordx4 s[4:7], s[0:1], 80
    s_waitcnt lgkmcnt(0)
    s_add_u32 s8, s6, {PROF_OFF}
    s_addc_u32 s9, s7, 0
    s_mov_b32 s10, 0x200000
    s_mov_b32 s11, 0x20000
    s_mov_b32 s6, 256
    s_mov_b32 s7, 0x20000
    v_cmp_gt_u32 vcc, 250, v0
    s_and_saveexec_b64 s[12:13], vcc
    v_lshlrev_b32 v1, 10, v0
    v_mov_b32 v3, 0
    """)
    sel = [(0, 8, 0, 1), (0, 8, 0, 0), (0, 8, 2, 0), (0, 8, 3, 0), (0, 8, 5, 0), (0, 8, 8, 0),
           (1, 8, 0, 1), (1, 8, 0, 0), (1, 8, 2, 0), (1, 8, 3, 0), (1, 8, 5, 1), (1, 8, 5, 0), (1, 8, 6, 1), (1, 8, 6, 0), (1, 8, 8, 0)]
    w0 = 0
    if OPT.get("krsel"):
        w0, st_, mn_ = [int(x) for x in OPT["krsel"].split(",")]
        sel = [(1, 4, 0, 1), (1, 4, st_, mn_)]
    for j, (kn, nw, st, mn) in enumerate(sel):
        a(f"s_mov_b32 s14, {kn*0x100000 + 64*w0}")
        for w in range(nw): a(f"buffer_load_dword v{10+w}, v1, s[8:11], s14 offen offset:{64*w+4*st}")
        a("s_waitcnt vmcnt(0)")
        if mn:
            for w in range(nw): a(f"v_not_b32 v{10+w}, v{10+w}")
        for w in range(1, nw): a(f"v_max_u32 v10, v10, v{10+w}")
        a(f"buffer_atomic_umax v10, v3, s[4:7], 0 offen offset:{4*j}\ns_waitcnt vmcnt(0)")
    if OPT.get("iv"):
        ja, jb, k = [int(x) for x in OPT["iv"].split(",")]
        a(f"""
        s_barrier
        buffer_load_dword v10, v3, s[4:7], 0 offen offset:{4*ja} sc0 sc1
        buffer_load_dword v11, v3, s[4:7], 0 offen offset:{4*jb} sc0 sc1
        s_waitcnt vmcnt(0)
        v_readfirstlane_b32 s16, v10
        v_readfirstlane_b32 s17, v11
        """)
        if sel[ja][3]: a("s_not_b32 s16, s16")
        if sel[jb][3]: a("s_not_b32 s17, s17")
        a(f"""
        s_sub_u32 s16, s16, s17
        s_min_u32 s16, s16, 10000
        s_mul_i32 s16, s16, {k}
        s_memrealtime s[18:19]
        s_waitcnt lgkmcnt(0)
        KR_SPIN:
        s_memrealtime s[20:21]
        s_waitcnt lgkmcnt(0)
        s_sub_u32 s20, s20, s18
        s_cmp_lt_u32 s20, s16
        s_cbranch_scc1 KR_SPIN
        """)
    a("KR_END:\ns_endpgm")
    return a.text()

DOC = """;
; k1: bins the edges by destination (128 chunks x 256 bins, 32 slots a segment), builds the node table
;     T = (x@w_v : -log2e * x@w_b) as bf16 pairs, MFMA-ready weight fragments and a sigmoid table indexed by f16 bits.
;     rescan of the raw edge list.
"""
def main():
    k1, d1 = gen_k1(); k2, d2 = gen_k2()
    ref = open("standalone__edge_featured_mpnn_gatedgcn__graph.s.ref").read().split("\n")
    out = "\n".join(ref[:13]) + "\n"
    for ch in OPT.get("list", "12"):
        if ch == "1": out += f"; @launch kernel=k1_kernel grid=({2*NCH},1,1) block=(512,1,1) lds={K1_LDS}\n"
        if ch == "2": out += f"; @launch kernel=k2_kernel grid=({NBIN},1,1) block=(512,1,1) lds={K2_LDS}\n"
        if ch == "r": out += "; @launch kernel=kr_kernel grid=(1,1,1) block=(256,1,1) lds=0\n"
        if ch == "e": out += "; @launch kernel=ke_kernel grid=(1,1,1) block=(64,1,1) lds=0\n"
    out += DOC
    out += '.amdgcn_target "amdgcn-amd-amdhsa--gfx950"\n.text\n'
    for n, k in (("k1_kernel", k1), ("k2_kernel", k2)):
        out += f".globl {n}\n.p2align 8\n.type {n},@function\n" + k
    if "e" in OPT.get("list", ""): out += ".globl ke_kernel\n.p2align 8\n.type ke_kernel,@function\nke_kernel:\n" + (KE_PROF if OPT.get("prof") else "") + "    s_endpgm\n"
    if "r" in OPT.get("list", ""): out += ".globl kr_kernel\n.p2align 8\n.type kr_kernel,@function\n" + gen_kr()
    out += '.section .rodata,"a"\n.p2align 6\n' + d1.lstrip("\n") + '.p2align 6\n' + d2.lstrip("\n")
    if "e" in OPT.get("list", ""): out += '.p2align 6\n' + kd("ke_kernel", 8, 16).lstrip("\n")
    if "r" in OPT.get("list", ""): out += '.p2align 6\n' + kd("kr_kernel", 32, 32).lstrip("\n")
    open(sys.argv[1], "w").write(out)

if __name__ == "__main__":
    main()
```

```python
import struct, sys
import asmsim

N = 10000; E = 320000
NCH = 128; CS = 2500
NBIN = 256; GN = 10
BINK, BINC, BINS = 53687, 52500, 21
assert all((625*b_ >> 4) <= d_ < (625*(b_+1) >> 4) for d_ in range(N) for b_ in [(d_*BINK + BINC) >> BINS])
CAP = 32
TS = int(([a for a in sys.argv if a.startswith('ts=')] or ['ts=512'])[0][3:])
T_OFF = 0x1000000
REC_OFF = 0x700000
WT_OFF = 0xB00000
LUT_OFF = 0xB20000
PROF_OFF = 0xF000000
NL2E = struct.unpack("<I", struct.pack("<f", -1.4426950408889634))[0]

def bf(x): return struct.unpack("<I", struct.pack("<f", x))[0] >> 16

OPT = dict(st_r="sc1", st_t="sc1")
for a in sys.argv[2:]:
    k, v = a.split("=", 1); OPT[k] = v

class Asm:
    def __init__(self): self.l = []
    def __call__(self, s):
        for x in s.strip("\n").split("\n"):
            x = x.strip()
            if not x: continue
            if x.startswith(";"): x = "s_nop 0"
            self.l.append(x if x.endswith(":") else "    " + x)
    def ext(self, lst):
        for x in lst: self(x)
    def text(self): return "\n".join(self.l) + "\n"

def stamp(a, i, lvl="1"):
    if OPT.get("prof") and (i in (0, 8) or OPT["prof"] == lvl): a(f"s_memrealtime s[{84+2*i}:{85+2*i}]")
def stamp_out(a, kern, wsreg, sw, vtmp):
    if not OPT.get("prof"): return
    if OPT.get("xcc"): a("s_getreg_b32 s98, hwreg(HW_REG_XCC_ID)")
    if not OPT.get("nowait"): a("s_waitcnt vmcnt(0)")
    stamp(a, 8)
    a(f"""
    s_lshl_b32 s4, s2, 4
    s_add_u32 s4, s4, s{sw}
    s_lshl_b32 s4, s4, 6
    s_add_u32 s4, s4, {PROF_OFF + kern*0x100000}
    s_add_u32 s4, s{wsreg}, s4
    s_addc_u32 s5, s{wsreg+1}, 0
    s_mov_b32 s6, 64
    s_mov_b32 s7, 0x20000
    s_waitcnt lgkmcnt(0)
    """)
    if kern == 1 and OPT["prof"] == "7":
        a(f"v_mov_b32 v{vtmp}, v251\nv_writelane_b32 v{vtmp}, s84, 0\ns_mov_b32 m0, s98\ns_add_u32 s98, s98, 1\nv_writelane_b32 v{vtmp}, s86, m0\ns_mov_b32 m0, s98\ns_nop 3\nv_writelane_b32 v{vtmp}, s100, m0\nv_writelane_b32 v{vtmp}, s98, 15")
    else:
        for i in range(9): a(f"v_writelane_b32 v{vtmp}, s{84+2*i}, {i}")
    a(f"""
    v_mbcnt_lo_u32_b32 v{vtmp+1}, -1, 0
    v_mbcnt_hi_u32_b32 v{vtmp+1}, -1, v{vtmp+1}
    v_lshlrev_b32 v{vtmp+1}, 2, v{vtmp+1}
    buffer_store_dword v{vtmp}, v{vtmp+1}, s[4:7], 0 offen
    """)

def vr(b, n): return f"v[{b}:{b+n-1}]"
def sr(b, n): return f"s[{b}:{b+n-1}]"

def srd(a, d, base, add=None, size=None, w3="0x20000", hi_or=None):
    if add is None:
        a(f"s_mov_b32 s{d}, s{base}\ns_mov_b32 s{d+1}, s{base+1}")
    else:
        a(f"s_add_u32 s{d}, s{base}, {add}\ns_addc_u32 s{d+1}, s{base+1}, 0")
    if hi_or: a(f"s_or_b32 s{d+1}, s{d+1}, {hi_or}")
    a(f"s_mov_b32 s{d+2}, {size}\ns_mov_b32 s{d+3}, {w3}")

def kd(name, vgpr, sgpr):
    return f"""
.amdhsa_kernel {name}
  .amdhsa_next_free_vgpr {vgpr}
  .amdhsa_next_free_sgpr {sgpr}
  .amdhsa_accum_offset {(vgpr+3)//4*4}
  .amdhsa_group_segment_fixed_size 0
  .amdhsa_kernarg_size 96
  .amdhsa_user_sgpr_count 2
  .amdhsa_user_sgpr_kernarg_segment_ptr 1
  .amdhsa_system_sgpr_workgroup_id_x 1
.end_amdhsa_kernel
"""

def pair_of_lane(a, d, t):
    a(f"""
    v_and_b32 v{d}, 17, v0
    v_lshlrev_b32 v{d}, 2, v{d}
    v_bfe_u32 v{t}, v0, 1, 1
    v_lshl_add_u32 v{d}, v{t}, 5, v{d}
    v_bfe_u32 v{t}, v0, 2, 2
    v_lshl_add_u32 v{d}, v{t}, 3, v{d}
    """)

def rec_fields(a, vd, vbin, vtmp, sm40, sm10):
    a(f"""
    v_mul_u32_u24 v{vbin}, {BINK}, v{vd}
    v_add_u32 v{vbin}, {BINC}, v{vbin}
    v_lshrrev_b32 v{vbin}, {BINS}, v{vbin}
    v_mul_u32_u24 v{vtmp}, 625, v{vbin}
    v_lshrrev_b32 v{vtmp}, 4, v{vtmp}
    v_sub_u32 v{vd}, v{vd}, v{vtmp}
    v_mul_u32_u24 v{vtmp}, 26, v{vd}
    v_lshrrev_b32 v{vtmp}, 8, v{vtmp}
    v_mad_i32_i24 v{vd}, v{vtmp}, s{sm10}, v{vd}
    v_lshl_or_b32 v{vd}, v{vtmp}, 30, v{vd}
    """)

K1_CNT = 0; K1_STG = 1024; K1_W = 34816; K1_X = K1_W + 32768; K1_LDS = K1_X + (28672 if 'rows' in OPT else 24576)
RLO, RHI = [int(x_) for x_ in OPT.get('rows', '96,64').split(',')]
def gen_k1():
    a = Asm()
    sS, sD, sW1, sW2, sX, sR, sT, sP = 24, 28, 32, 36, 40, 44, 48, 72
    sw, st0, st1, st2, snb, sfb, sch, shf, srow, snr = 52, 53, 54, 55, 56, 57, 58, 69, 71, 76
    c8192, cm10, cnl2e, csign, cmag, ctso, cp0 = 60, 62, 63, 64, 65, 66, 67
    vD, vS, vB, vSL, vt = 4, 12, 20, 28, 36
    vg = 56; vTR, vXA, vST = 64, 65, 66; vWC = 72
    vW, vX, vA, vO = 96, 160, 176, 192
    def W(m, ab, s): return vW + 32*m + 16*ab + 4*s
    a("k1_kernel:")
    a(f"s_cmp_ge_u32 s2, {2*NCH}\ns_cbranch_scc1 K1_END")
    stamp(a, 0)
    a(f"""
    s_load_dwordx16 s[4:19], s[0:1], 0
    s_load_dwordx2 s[20:21], s[0:1], 64
    s_load_dwordx2 s[22:23], s[0:1], 88
    """)
    if OPT.get("pf", "4") in "34":
        frm = "k2_kernel" if OPT.get("pf", "4") == "3" else "K1_PC"
        a(f"""
        s_cmp_lt_u32 s2, {NCH}
        s_cbranch_scc0 K1_NOPC
        s_getpc_b64 {sr(sP,2)}
        K1_PC:
        s_add_u32 s{sP}, s{sP}, {frm}-K1_PC
        s_addc_u32 s{sP+1}, s{sP+1}, 0
        s_mov_b32 s{sP+2}, K2_CODE_END-{frm}
        s_mov_b32 s{sP+3}, 0x20000
        s_bfe_u32 s{st0}, s2, 0x40003
        s_lshl_b32 s{st0}, s{st0}, 12
        v_lshlrev_b32 v33, 7, v0
        v_cmp_gt_u32 vcc, 32, v0
        s_and_saveexec_b64 s[80:81], vcc
        s_cbranch_execz K1_NOPC0
        buffer_load_dword v34, v33, {sr(sP,4)}, s{st0} offen
        K1_NOPC0:
        s_mov_b64 exec, s[80:81]
        K1_NOPC:
        """)
    if OPT.get("pf1", "0") == "1":
        a(f"""
        s_getpc_b64 {sr(sP,2)}
        K1_PC1:
        s_mov_b32 s{sP+2}, K1_END-K1_PC1
        s_mov_b32 s{sP+3}, 0x20000
        v_lshlrev_b32 v33, 7, v0
        buffer_load_dword v34, v33, {sr(sP,4)}, 0 offen
        """)
    a(f"""
    v_lshrrev_b32 v2, 6, v0
    v_lshlrev_b32 v1, 2, v0
    v_readfirstlane_b32 s{sw}, v2
    v_lshlrev_b32 v2, 4, v0
    s_mov_b32 s{c8192}, 8192
    s_sub_u32 s{sch}, s2, {NCH}
    s_and_b32 s{shf}, s2, 1
    v_and_b32 v{vg}, 63, v0
    v_lshrrev_b32 v{vg+1}, 4, v{vg}
    v_and_b32 v{vg+2}, 15, v0
    s_and_b32 s{st0}, s{sw}, 3
    s_lshl_b32 s{st0}, s{st0}, 2
    v_add_u32 v{vg+3}, s{st0}, v{vg+1}
    v_xor_b32 v{vg+3}, v{vg+3}, v{vg+2}
    v_lshlrev_b32 v{vg+3}, 4, v{vg+3}
    v_lshl_add_u32 v{vg+3}, v{vg+1}, 8, v{vg+3}
    v_lshrrev_b32 v{vg+4}, 3, v{vg}
    v_and_b32 v{vg+5}, 2, v{vg+4}
    s_lshr_b32 s{st0}, s2, 3
    s_add_u32 s{st0}, s{st0}, s{sw}
    s_and_b32 s{st0}, s{st0}, 1
    s_lshl_b32 s{st0}, s{st0}, 2
    v_and_b32 v{vg+6}, 7, v0
    v_xor_b32 v{vg+5}, v{vg+5}, v{vg+6}
    v_xor_b32 v{vg+5}, s{st0}, v{vg+5}
    v_lshlrev_b32 v{vg+5}, 4, v{vg+5}
    v_lshl_add_u32 v{vg+4}, v{vg+4}, 8, v{vg+5}
    s_lshr_b32 s{st0}, s2, 1
    s_mul_i32 s{srow}, s{st0}, {RLO}
    s_mul_i32 s{st0}, s{st0}, {RHI}
    s_add_u32 s{st0}, s{st0}, {64*(RLO-RHI)}
    s_cmp_lt_u32 s2, {NCH}
    s_cselect_b32 s{srow}, s{srow}, s{st0}
    s_cselect_b32 s{snr}, {RLO}, {RHI}
    s_min_u32 s{srow}, s{srow}, {N}
    s_sub_u32 s{st0}, {N}, s{srow}
    s_min_u32 s{snr}, s{snr}, s{st0}
    s_mul_i32 s{st1}, s{sch}, {CS*4}
    s_cmp_lt_u32 s2, 252
    s_waitcnt lgkmcnt(0)
    s_cselect_b64 {sr(sW1,2)}, s[14:15], s[12:13]
    s_cselect_b64 {sr(sW2,2)}, s[20:21], s[18:19]
    s_cmp_lt_u32 s2, {NCH}
    s_cbranch_scc1 K1_NOIDX
    """)
    srd(a, sD, 10, f"s{st1}", CS*4)
    srd(a, sS, 8, f"s{st1}", CS*4)
    a(f"""
    buffer_load_dwordx4 {vr(vD,4)}, v2, {sr(sD,4)}, 0 offen
    buffer_load_dwordx4 {vr(vS,4)}, v2, {sr(sS,4)}, 0 offen
    buffer_load_dword v{vD+4}, v1, {sr(sD,4)}, s{c8192} offen
    buffer_load_dword v{vS+4}, v1, {sr(sS,4)}, s{c8192} offen
    s_barrier
    K1_NOIDX:
    s_lshl_b32 s{st0}, s{srow}, 8
    s_add_u32 s{sX}, s4, s{st0}
    s_addc_u32 s{sX+1}, s5, 0
    s_lshl_b32 s{sX+2}, s{snr}, 8
    s_mov_b32 s{sX+3}, 0x20000
    s_mov_b32 s{sW1+2}, 32768
    s_mov_b32 s{sW1+3}, 0x20000
    s_mov_b32 s{sW2+2}, 32768
    s_mov_b32 s{sW2+3}, 0x20000
    s_lshl_b32 s{shf+1}, s{shf}, 7
    s_lshl_b32 s{st1}, s{sw}, 10
    """)
    def dma_x(k):
        a(f"s_add_u32 m0, s{st1}, {K1_X + 8192*k}\ns_add_u32 s{st2}, s{st1}, {8192*k}\nbuffer_load_dwordx4 v{vg+3}, {sr(sX,4)}, s{st2} offen lds")
    def stage_w():
        a(f"s_lshr_b32 s{st2}, s2, 3\ns_add_u32 s{st2}, s{st2}, s{sw}\ns_and_b32 s{st2}, s{st2}, 15")
        for k in range(2):
            a(f"""
            s_lshl_b32 s{st0}, s{st2}, 10
            s_add_u32 m0, s{st0}, {K1_W}
            s_lshl_b32 s{st1}, s{st2}, 11
            s_add_u32 s{st1}, s{st1}, s{shf+1}
            buffer_load_dwordx4 v{vg+4}, {sr(sW1,4)}, s{st1} offen lds
            s_add_u32 m0, s{st0}, {K1_W+16384}
            s_xor_b32 s{st2}, s{st2}, 8
            buffer_load_dwordx4 v{vg+4}, {sr(sW2,4)}, s{st1} offen lds
            """)
    if OPT.get("wt", "0") == "1":
        a(f"""
        s_cmp_eq_u32 s{sw}, 0
        s_cbranch_scc0 K1_NOWT
        s_bfe_u32 s{st0}, s2, 0x40003
        s_lshl_b32 s{st0}, s{st0}, 11
        s_add_u32 s{st0}, s{st0}, s{shf+1}
        v_lshlrev_b32 v33, 8, v0
        s_mov_b64 exec, 0xff
        buffer_load_dword v34, v33, {sr(sW1,4)}, s{st0} offen
        buffer_load_dword v34, v33, {sr(sW2,4)}, s{st0} offen
        s_mov_b64 exec, -1
        K1_NOWT:
        """)
    dma_x(0); dma_x(1)
    a(f"s_sub_u32 s{st0}, s2, {NCH}\ns_cmp_lt_u32 s{st0}, {252-NCH}\ns_cbranch_scc1 K1_LATER")
    dma_x(2)
    if RLO > 96: a(f"s_cmp_lt_u32 s{sw}, 4\ns_cbranch_scc0 K1_X3"); dma_x(3); a("K1_X3:")
    stage_w()
    a(f"""
    K1_LATER:
    s_and_b32 s{sfb}, s{sw}, 1
    s_lshr_b32 s{snb}, s{sw}, 1
    v_bfe_u32 v{vg+5}, v0, 2, 2
    v_bfe_u32 v{vg+6}, v0, 3, 2
    s_lshl_b32 s{st0}, s{sfb}, 1
    v_xor_b32 v{vg+6}, s{st0}, v{vg+6}
    v_and_b32 v{vg+7}, 3, v0
    v_lshlrev_b32 v{vg+7}, 3, v{vg+7}
    v_lshl_add_u32 v{vg+7}, v{vg+6}, 5, v{vg+7}
    v_lshl_add_u32 v{vg+5}, v{vg+1}, 3, v{vg+5}
    v_lshl_add_u32 v{vTR}, v{vg+5}, 7, v{vg+7}
    v_xor_b32 v{vTR+6}, 32, v{vTR}
    v_xor_b32 v{vXA}, v{vg+1}, v{vg+2}
    v_lshlrev_b32 v{vXA}, 4, v{vXA}
    v_lshl_add_u32 v{vXA}, v{vg+2}, 8, v{vXA}
    s_lshl_b32 s{st0}, s{snb}, 12
    s_add_u32 s{st0}, s{st0}, {K1_X}
    v_add_u32 v{vXA}, s{st0}, v{vXA}
    v_xor_b32 v{vXA+2}, 64, v{vXA}
    v_xor_b32 v{vXA+3}, 0x80, v{vXA}
    v_xor_b32 v{vXA+4}, 0xc0, v{vXA}
    v_mul_u32_u24 v{vST}, {TS}, v{vg+2}
    v_lshl_add_u32 v{vST}, v{vg+1}, 4, v{vST}
    s_mul_i32 s{ctso}, s{snb}, {16*TS}
    s_lshl_b32 s{st1}, s{shf}, 8
    s_add_u32 s{ctso}, s{ctso}, s{st1}
    s_lshl_b32 s{st1}, s{sfb}, 6
    s_add_u32 s{ctso}, s{ctso}, s{st1}
    s_mov_b32 s{cnl2e}, {NL2E:#x}
    s_mov_b32 s{csign}, 0x00800000
    s_mov_b32 s{cmag}, 0x7fffffff
    s_mov_b32 s{cp0}, 0x07060100
    s_mov_b32 s{cp0+1}, 0x07060302
    s_mul_i32 s{st0}, s{srow}, {TS}
    s_add_u32 s{st0}, s{st0}, {T_OFF}
    s_mul_i32 s{st1}, s{snr}, {TS}
    """)
    srd(a, sT, 22, f"s{st0}", f"s{st1}")
    stamp(a, 1)
    a(f"s_cmp_lt_u32 s2, {NCH}\ns_cbranch_scc1 K1_NOBIN")
    a(f"""
    v_mov_b32 v{vt}, -1
    v_mov_b32 v{vt+1}, -1
    v_mov_b32 v{vt+2}, -1
    v_mov_b32 v{vt+3}, -1
    v_mov_b32 v{vt+5}, 0
    v_and_b32 v{vt+6}, 0x3fc, v1
    """)
    for k in range(4): a(f"ds_write_b128 v2, {vr(vt,4)} offset:{K1_STG+8192*k}")
    a(f"""
    ds_write_b32 v{vt+6}, v{vt+5} offset:{K1_CNT}
    s_lshl_b32 s{st0}, s{sch}, 7
    s_add_u32 s{st0}, s{st0}, {REC_OFF}
    """)
    srd(a, sR, 22, f"s{st0}", NBIN*NCH*128)
    a(f"s_lshl_b32 s{st0}, s{sch}, 9\ns_add_u32 s{st1}, s{st0}, {LUT_OFF}")
    srd(a, sP, 22, f"s{st1}", 512)
    l0, l1 = vt+10, vt+11
    a(f"""
    v_add_u32 v{l0}, s{st0}, v1
    v_and_b32 v{l1}, 0x7fff, v{l0}
    v_cmp_ne_u32 vcc, 0x7c00, v{l1}
    v_or_b32 v{l1}, 3, v{l0}
    s_nop 0
    v_addc_co_u32 v{l0}, vcc, 0, v{l0}, vcc
    v_cvt_f32_f16 v{l1}, v{l1}
    v_cvt_f32_f16 v{l0}, v{l0}
    v_exp_f32 v{l1}, v{l1}
    v_exp_f32 v{l0}, v{l0}
    v_add_f32 v{l1}, 1.0, v{l1}
    v_add_f32 v{l0}, 1.0, v{l0}
    v_rcp_f32 v{l1}, v{l1}
    v_rcp_f32 v{l0}, v{l0}
    s_mov_b32 s{cm10}, {-GN}
    v_cvt_pk_bf16_f32 v{l0}, v{l0}, v{l1}
    v_mov_b32 v{vt+5}, 1
    v_cmp_gt_u32 vcc, {CS-2048}, v0
    s_mov_b64 s[80:81], vcc
    v_lshrrev_b32 v{vt+7}, 3, v0
    v_and_b32 v{vt+8}, 7, v0
    v_lshlrev_b32 v{vt+9}, 14, v{vt+7}
    v_lshl_add_u32 v{vt+9}, v{vt+8}, 4, v{vt+9}
    v_lshlrev_b32 v{vt+7}, 2, v{vt+7}
    v_cmp_eq_u32 s[82:83], 7, v{vt+8}
    v_and_b32 v{vt+8}, 4, v{vt+8}
    v_lshlrev_b32 v{vt+8}, {2 if OPT.get("half", "0") == "1" else 0}, v{vt+8}
    v_and_b32 v{vt+8}, 16, v{vt+8}
    s_waitcnt lgkmcnt(0)
    s_barrier
    s_cmp_ge_u32 s2, 252
    s_cbranch_scc1 K1_W7
    s_waitcnt vmcnt(2)
    K1_W7:
    s_waitcnt vmcnt(7)
    """)
    stamp(a, 2)
    for r in range(5):
        rec_fields(a, vD+r, vB+r, vt, None, cm10)
        a(f"v_lshlrev_b32 v{vt}, 2, v{vB+r}")
        if r == 4: a("s_mov_b64 exec, s[80:81]")
        a(f"ds_add_rtn_u32 v{vSL+r}, v{vt}, v{vt+5} offset:{K1_CNT}")
        if r == 4: a("s_mov_b64 exec, -1")
    a("s_cmp_ge_u32 s2, 252\ns_cbranch_scc1 K1_NOWC")
    stage_w()
    a(f"""
    s_cmp_eq_u32 s2, 250
    s_cbranch_scc0 K1_NOWC
    """)
    srd(a, sS, 16, None, 4096)
    a(f"""
    v_lshrrev_b32 v{vWC+8}, 5, v{vg}
    """)
    pair_of_lane(a, vWC+9, vWC+10)
    a(f"""
    v_lshl_add_u32 v{vWC+9}, v{vWC+8}, 11, v{vWC+9}
    s_bfe_u32 s{st1}, s{sw}, 0x10001
    s_lshl_b32 s{st1}, s{st1}, 7
    s_lshl_b32 s{st0}, s{sfb}, 1
    s_add_u32 s{st1}, s{st1}, s{st0}
    """)
    for j in range(8): a(f"buffer_load_ushort v{vWC+j}, v{vWC+9}, {sr(sS,4)}, s{st1} offen offset:{256*j}")
    a("K1_NOWC:")
    for r in range(5):
        a(f"v_lshl_or_b32 v{vD+r}, v{vS+r}, 16, v{vD+r}")
        a(f"v_add_u32 v{vS+r}, {r}, v1" if r < 4 else f"v_add_u32 v{vS+r}, 2048, v0")
        a(f"v_lshl_or_b32 v{vD+r}, v{vS+r}, 4, v{vD+r}\nv_lshlrev_b32 v{vB+r}, 7, v{vB+r}")
    for r in range(5):
        a("s_waitcnt lgkmcnt(4)")
        if r == 4: a("s_mov_b64 exec, s[80:81]")
        a(f"""
        v_and_b32 v{vt}, 12, v{vSL+r}
        v_add_u32 v{vB+r}, v{vB+r}, v{vt}
        v_and_b32 v{vt}, 3, v{vSL+r}
        v_lshl_add_u32 v{vB+r}, v{vt}, 4, v{vB+r}
        v_and_b32 v{vt}, 16, v{vSL+r}
        v_lshl_add_u32 v{vB+r}, v{vt}, 2, v{vB+r}
        v_cmpx_gt_u32 vcc, {CAP}, v{vSL+r}
        ds_write_b32 v{vB+r}, v{vD+r} offset:{K1_STG}
        s_mov_b64 exec, -1
        """)
    a("s_waitcnt lgkmcnt(0)\ns_barrier")
    for k in range(4):
        a(f"ds_read_b128 {vr(4+4*k,4)}, v2 offset:{K1_STG+8192*k}\nds_read_b32 v{20+k}, v{vt+7} offset:{K1_CNT+256*k}")
    a(f"""
    v_mov_b32 v{vt+2}, -2
    s_mov_b32 s{st2}, 0
    buffer_store_dword v{l0}, v1, {sr(sP,4)}, 0 offen {OPT['st_r']}
    """)
    stamp(a, 3)
    for k in range(4):
        a(f"""
        s_waitcnt lgkmcnt({6-2*k})
        v_cmp_lt_u32 vcc, {CAP}, v{20+k}
        v_cmp_le_u32 s[78:79], v{vt+8}, v{20+k}
        s_and_b64 vcc, vcc, s[82:83]
        s_nop 0
        v_cndmask_b32 v{7+4*k}, v{7+4*k}, v{vt+2}, vcc
        s_mov_b64 exec, s[78:79]
        buffer_store_dwordx4 {vr(4+4*k,4)}, v{vt+9}, {sr(sR,4)}, s{st2} offen {OPT['st_r']}
        s_mov_b64 exec, -1
        s_add_u32 s{st2}, s{st2}, {64*16384}
        """)
    a(f"""
    s_waitcnt vmcnt(5)
    s_branch K1_STAGED
    K1_NOBIN:
    """)
    if OPT.get("pf", "4") == "1":
        a(f"""
        s_getpc_b64 {sr(sP,2)}
        K1_PC:
        s_add_u32 s{sP}, s{sP}, k2_kernel-K1_PC
        s_addc_u32 s{sP+1}, s{sP+1}, 0
        s_mov_b32 s{sP+2}, K2_CODE_END-k2_kernel
        s_mov_b32 s{sP+3}, 0x20000
        s_bfe_u32 s{st0}, s2, 0x40003
        s_lshl_b32 s{st0}, s{st0}, 12
        v_lshlrev_b32 v33, 7, v0
        v_cmp_gt_u32 vcc, 32, v0
        s_and_saveexec_b64 s[80:81], vcc
        s_cbranch_execz K1_NOPC
        buffer_load_dword v34, v33, {sr(sP,4)}, s{st0} offen
        s_mov_b64 exec, s[80:81]
        s_waitcnt vmcnt(1)
        s_branch K1_PCD
        K1_NOPC:
        s_mov_b64 exec, s[80:81]
        s_waitcnt vmcnt(0)
        K1_PCD:
        """)
    else: a("s_waitcnt vmcnt(0)")
    stamp(a, 2); stamp(a, 3)
    a(f"""
    K1_STAGED:
    s_barrier
    """)
    stamp(a, 4)
    if OPT.get("pf", "4") == "2":
        assert 64*RLO + 59*RHI >= N
        a(f"""
        s_sub_u32 s{st0}, s2, 246
        s_cmp_lt_u32 s{st0}, 8
        s_cbranch_scc0 K1_NOPC
        s_getpc_b64 {sr(sP,2)}
        K1_PC:
        s_add_u32 s{sP}, s{sP}, k2_kernel-K1_PC
        s_addc_u32 s{sP+1}, s{sP+1}, 0
        s_mov_b32 s{sP+2}, K2_CODE_END-k2_kernel
        s_mov_b32 s{sP+3}, 0x20000
        v_lshlrev_b32 v33, 7, v0
        buffer_load_dword v34, v33, {sr(sP,4)}, 0 offen
        s_cmp_eq_u32 s2, 252
        s_cbranch_scc0 K1_END
        K1_NOPC:
        """)
    PM = int(OPT.get("pm", "0"))
    if PM:
        a(f"s_mul_i32 s{st0}, s2, {313*128}\ns_sub_u32 s{st1}, {E*32}, s{st0}\ns_min_u32 s{st1}, s{st1}, {PM*128}")
        if OPT.get("pmlo"): a(f"s_cmp_lt_u32 s2, {NCH}\ns_cselect_b32 s{st1}, s{st1}, 0")
        srd(a, sP, 6, f"s{st0}", f"s{st1}")
        a(f"v_xor_b32 v33, 0x1c0, v0\nv_lshlrev_b32 v33, 7, v33\nbuffer_load_dword v34, v33, {sr(sP,4)}, 0 offen")
    a(f"""
    s_cmp_eq_u32 s2, 250
    s_cbranch_scc1 K1_WC
    """)
    def xrd(reg, off):
        for s in range(4): a(f"ds_read_b128 {vr(reg+4*s,4)}, v{[vXA, vXA+2, vXA+3, vXA+4][s]} offset:{off}")
    def trs(s):
        for m in range(2):
            for ab in range(2):
                for u in range(2):
                    a(f"ds_read_b64_tr_b16 {vr(W(m,ab,s)+2*u,2)}, v{vTR+6*ab} offset:{K1_W+m*16384+s*4096+u*512}")
    def mm(s, x, acc):
        return [f"v_mfma_f32_16x16x32_bf16 {vr(acc+8*m+4*ab,4)}, {vr(W(m,ab,s),4)}, {vr(x+4*s,4)}, {'0' if s == 0 else vr(acc+8*m+4*ab,4)}"
                for m in range(2) for ab in range(2)]
    def pack(acc, out):
        o = []
        for b in range(2):
            for ab in range(2):
                b0, b1 = acc+4*ab+b, acc+4*ab+2+b
                hs = [acc+8+4*ab+2*e_+b for e_ in range(2)]
                o += [f"v_mul_f32 v{b0}, s{cnl2e}, v{b0}", f"v_mul_f32 v{b1}, s{cnl2e}, v{b1}"]
                for e_, h in enumerate(hs): o += [f"v_max_f32 v{30+e_}, abs(v{h}), s{csign}", f"v_bfi_b32 v{h}, s{cmag}, v{30+e_}, v{h}"]
                o += [f"v_cvt_pk_bf16_f32 v{b0}, v{b0}, v{b1}"] + [f"v_add_u32 v{h}, 0x8000, v{h}" for h in hs]
                o += [f"v_sub_u32_sdwa v{h}, v{h}, v{b0} dst_sel:DWORD dst_unused:UNUSED_PAD src0_sel:DWORD src1_sel:WORD_{e_}" for e_, h in enumerate(hs)]
                o += [f"v_perm_b32 v{out+4*b+2*ab+e_}, v{h}, v{b0}, s{cp0+e_}" for e_, h in enumerate(hs)]
            o.append(f"buffer_store_dwordx4 {vr(out+4*b,4)}, v{vST}, {sr(sT,4)}, s{ctso} offen offset:{128*b} {OPT['st_t']}")
        return o
    xrd(vX, 0)
    trs(0); a("s_waitcnt lgkmcnt(6)")
    for s in range(1, 4):
        trs(s); a("s_waitcnt lgkmcnt(8)"); a.ext(mm(s-1, vX, vA))
        if s < 3: a("s_waitcnt lgkmcnt(6)")
    a("s_waitcnt lgkmcnt(0)")
    stamp(a, 5)
    a(f"""
    s_cmp_ge_u32 s2, 252
    s_cbranch_scc1 K1_WT
    s_lshl_b32 s{st0}, s{snb}, 4
    s_add_u32 s{st0}, s{st0}, 64
    s_cmp_lt_u32 s{st0}, s{snr}
    s_cbranch_scc0 K1_ONE
    """)
    vX2, vA2 = 208, 224
    xrd(vX2, 16384)
    g = mm(3, vX, vA) + ["s_waitcnt lgkmcnt(0)"]
    m2 = sum((mm(s, vX2, vA2) for s in range(4)), []); pk = pack(vA, vO)
    g += m2[:6]; k = 0
    for x in m2[6:]:
        g.append(x); g += pk[k:k+3]; k += 3
    g += pk[k:] + [f"s_add_u32 s{ctso}, s{ctso}, {64*TS}"] + pack(vA2, vO+8)
    asmsim.check_hazards(g, "k1 two blocks")
    a.ext(g)
    a("s_branch K1_TAIL\nK1_ONE:")
    g = mm(3, vX, vA) + ["s_nop 7"] + pack(vA, vO)
    asmsim.check_hazards(g, "k1 one block")
    a.ext(g)
    a("K1_TAIL:")
    PL = int(OPT.get("pl", "0"))
    if PL:
        a(f"""
        s_cmp_lt_u32 s2, {NCH}
        s_cbranch_scc0 K1_NOPF
        s_mul_i32 s{st0}, s2, {CS*32}
        """)
        srd(a, sP, 6, f"s{st0}", PL*128)
        a(f"""
        v_lshlrev_b32 v4, 7, v0
        s_mov_b32 s{st0}, 65536
        s_barrier
        buffer_load_dword v5, v4, {sr(sP,4)}, 0 offen
        buffer_load_dword v5, v4, {sr(sP,4)}, s{st0} offen
        K1_NOPF:
        """)
    stamp(a, 6); stamp(a, 7)
    stamp_out(a, 0, 22, sw, 2)
    a("s_endpgm")
    a("K1_WT:")
    srd(a, sT, 22, WT_OFF, 65536)
    a(f"""
    s_cmp_ge_u32 s{sw}, 4
    s_cbranch_scc1 K1_END
    v_lshlrev_b32 v2, 4, v{vg}
    s_and_b32 s{st0}, s2, 3
    s_lshl_b32 s{st0}, s{st0}, 1
    s_add_u32 s{st0}, s{st0}, s{sfb}
    s_lshl_b32 s{st0}, s{st0}, 1
    s_add_u32 s{st0}, s{st0}, s{snb}
    s_lshl_b32 s{st0}, s{st0}, 12
    s_and_b32 s{st1}, s2, 2
    s_add_u32 s{st1}, s{st1}, s{snb}
    """)
    for k in range(4):
        if k < 3: a(f"s_cmp_eq_u32 s{st1}, {k}\ns_cbranch_scc0 K1_WT{k}")
        for s in range(4):
            a(f"buffer_store_dwordx4 {vr(W(k >> 1, k & 1, s),4)}, v2, {sr(sT,4)}, s{st0} offen offset:{1024*s} {OPT['st_t']}")
        a("s_endpgm")
        if k < 3: a(f"K1_WT{k}:")
    a("K1_WC:")
    srd(a, sT, 22, WT_OFF+65536, 4096)
    a(f"v_lshlrev_b32 v2, 4, v{vg}\ns_lshl_b32 s{st0}, s{sw}, 10")
    for j in range(8):
        a(f"v_lshlrev_b32 v{vWC+j}, 16, v{vWC+j}\nv_mul_f32 v{vWC+j}, s{cnl2e}, v{vWC+j}")
    for j in range(4):
        a(f"v_cvt_pk_bf16_f32 v{84+j}, v{vWC+2*j}, v{vWC+1+2*j}")
    a(f"buffer_store_dwordx4 v[84:87], v2, {sr(sT,4)}, s{st0} offen {OPT['st_t']}")
    a("K1_END:\ns_endpgm")
    return a.text(), kd("k1_kernel", 240, 102)

CAPG = 416; RND = 400
CNT = 0; FLG = 256; START = 512; INCL = 768; OHL = 1024; L1 = 1536; L2 = L1 + 4*CAPG*4; APL = L2 + 4*CAPG*4
ROWP = 272
UL = APL + 48*ROWP; LUTL = UL + 48*ROWP; STG = (LUTL + 65536 + 255)//256*256; XL = STG + 3*CAPG*32 + 5*1024; K2_LDS = XL + 12288
PROG = FLG + 32
assert K2_LDS <= 163840 and K2_LDS >= STG + 4*CAPG*32 and LUTL <= 65535 and (4*CAPG*4) % 256 == 0

def gen_k2():
    a = Asm()
    sREC, sX, sWT, sT, sE, sO, sD, sS = 24, 28, 32, 36, 40, 44, 68, 72
    sw, sg, sfh, st0, st1, st2 = 48, 49, 50, 51, 52, 53
    scount, sslow, sround, slim, sgb, srt, slut, srank = 54, 55, 56, 57, 58, 59, 82, 83
    stail = 20; stot = 80
    sdma, sm0, sneed = 21, 22, 23
    cm32, c128, cnl2e, cfc, csrc, cm40, cm10, cfe = 60, 61, 62, 63, 64, 65, 66, 67
    sk = 16
    vH16, vA1, vA2, vEa, vOa, vO, vA3 = 1, 2, 3, 4, 5, 6, 7
    WC = 8; AP = 16; PA = 24; SC = 28; OH = 32; EA = 40; ADDR = 48; ACC = 64; SP = 96; G = 112; RAW = 176
    XR = 240; UR = 246; vP16 = 252; vH256 = 253; vHS = 254; vPG = 255; vM15 = XR; vO2 = SP+8
    raw = lambda p, b: RAW + 32*p + 16*b
    gb = lambda p, b: G + 32*p + 16*b
    vt = gb(1, 1); Z = SP; EOFF = SP+14
    REC = raw(1, 0); CADDR = REC+16; RANK = G; STV = G+16
    NTB = [int(c_) for c_ in OPT.get("nt", "11")]
    rowoff = lambda r: 8*(r >> 2) + (r & 3)
    sd = "dst_sel:DWORD dst_unused:UNUSED_PAD src0_sel:DWORD"

    a("k2_kernel:")
    a(f"s_cmp_ge_u32 s2, {NBIN}\ns_cbranch_scc1 K2_END")
    stamp(a, 0)
    a(f"""
    s_load_dwordx8 s[4:11], s[0:1], 0
    s_load_dwordx2 s[12:13], s[0:1], 72
    s_load_dwordx2 s[14:15], s[0:1], 88
    v_lshrrev_b32 v{vt}, 6, v0
    v_lshrrev_b32 v{vt+1}, 2, v0
    v_readfirstlane_b32 s{sw}, v{vt}
    v_and_b32 v{vt+2}, 3, v0
    v_lshlrev_b32 v{vt+3}, 7, v{vt+1}
    v_lshl_add_u32 v{vt+3}, v{vt+2}, 4, v{vt+3}
    s_lshl_b32 s{st0}, s2, 14
    s_add_u32 s{st0}, s{st0}, {REC_OFF}
    v_and_b32 v{vt}, 63, v0
    v_lshlrev_b32 v{vt+5}, 3, v{vt}
    v_mov_b32 v{Z}, 0
    v_mov_b32 v{Z+1}, 0
    ds_write_b64 v{vt+5}, {vr(Z,2)} offset:{CNT}
    s_and_b32 s{sg}, s{sw}, 3
    s_lshr_b32 s{sfh}, s{sw}, 2
    v_lshlrev_b32 v{vA2}, 4, v{vt}
    s_mov_b32 s{st1}, 8192
    s_waitcnt lgkmcnt(0)
    """)
    if OPT.get("lat"):
        kind = OPT["lat"]
        if kind in "TSO": srd(a, sS, 14, T_OFF, N*TS)
        if kind == "R": srd(a, sS, 14, REC_OFF, 4 << 20)
        if kind == "x": srd(a, sS, 4, None, N*256)
        if kind == "e": srd(a, sS, 6, None, E*32)
        a(f"""
        s_cmp_eq_u32 s{sw}, 0
        s_cbranch_scc0 K2_NOLAT
        s_lshl_b32 s{st2}, s2, 13
        v_lshlrev_b32 v{vt+9}, 7, v{vt}
        """)
        if kind in "SO":
            a(f"""
            s_and_b32 s{st2}, s2, 127
            s_lshr_b32 s{st2}, s{st2}, 1
            s_mul_i32 s{st2}, s{st2}, {96*512}
            s_and_b32 s16, s2, 1
            s_xor_b32 s16, s16, {0 if kind == "S" else 1}
            s_lshl_b32 s16, s16, 8
            s_add_u32 s{st2}, s{st2}, s16
            v_lshrrev_b32 v{vt+9}, 1, v{vt}
            v_lshlrev_b32 v{vt+9}, 9, v{vt+9}
            v_and_b32 v{vt+10}, 1, v{vt}
            v_lshl_add_u32 v{vt+9}, v{vt+10}, 7, v{vt+9}
            """)
        a(f"""
        s_memrealtime s[86:87]
        buffer_load_dword v{vt+10}, v{vt+9}, {sr(sS,4)}, s{st2} offen
        s_waitcnt vmcnt(0)
        s_memrealtime s[88:89]
        K2_NOLAT:
        s_barrier
        """)
    a(f"""
    s_cmp_lg_u32 s{sfh}, 0
    s_cbranch_scc1 K2_NOREC
    """)
    srd(a, sREC, 14, f"s{st0}", 16384)
    for u in range(2):
        for r in range(2):
            a(f"buffer_load_dwordx4 {vr(REC+8*r+4*u,4)}, v{vt+3}, {sr(sREC,4)}, {'s%d' % st1 if u else '0'} offen offset:{64*r}")
    TP0 = int(OPT.get("tp0", "0"))
    if TP0:
        srd(a, sS, 14, T_OFF, N*TS)
        a(f"""
        s_bfe_u32 s{st0}, s2, 0x50003
        s_mul_i32 s{st0}, s{st0}, {TP0}
        s_add_u32 s{st0}, s{st0}, s{sw}
        s_lshl_b32 s{st0}, s{st0}, 13
        s_cmp_lt_u32 s{sw}, {TP0}
        s_cselect_b32 s{sS+2}, s{sS+2}, 0
        v_lshlrev_b32 v{vt+9}, 7, v{vt}
        buffer_load_dword v{vt+10}, v{vt+9}, {sr(sS,4)}, s{st0} offen
        """)
    a(f"""
    K2_NOREC:
    s_mul_i32 s{st0}, s2, 625
    s_add_u32 s{cm40}, s{st0}, 625
    s_lshr_b32 s{st0}, s{st0}, 4
    s_lshr_b32 s{cm40}, s{cm40}, 4
    s_sub_u32 s{cm40}, s{cm40}, s{st0}
    s_lshl_b32 s{cm40}, s{cm40}, 8
    s_lshl_b32 s{st0}, s{st0}, 8
    """)
    srd(a, sX, 4, f"s{st0}", f"s{cm40}")
    srd(a, sO, 12, f"s{st0}", f"s{cm40}")
    srd(a, sWT, 14, WT_OFF, LUT_OFF - WT_OFF + 65536)
    a("s_barrier")
    stamp(a, 1)
    def ld_wc():
        a(f"""
        s_lshl_b32 s{st1}, s{sfh}, 11
        s_add_u32 s{st1}, s{st1}, 65536
        buffer_load_dwordx4 {vr(WC,4)}, v{vA2}, {sr(sWT,4)}, s{st1} offen
        buffer_load_dwordx4 {vr(WC+4,4)}, v{vA2}, {sr(sWT,4)}, s{st1} offen offset:1024
        """)
    def common1(Z, vl):
        a = Asm()
        a(f"s_lshl_b32 s{st0}, s{sfh}, 8\ns_add_u32 s{st0}, s{st0}, {T_OFF-128}")
        srd(a, sT, 14, f"s{st0}", 64, w3="0x800000", hi_or="0x40000")
        srd(a, sE, 6, None, E*32)
        a(f"""
        s_mov_b32 s{cm32}, {'0x7e0' if 'e' in OPT.get('nomem','') else '0x1fffe0' if 's' in OPT.get('nomem','') else '0xffffffe0'}
        s_mov_b32 s{c128}, 128
        s_mov_b32 s{cnl2e}, {NL2E + (16 << 23):#x}
        s_mov_b32 s{cfc}, 0xfc
        s_mov_b32 s{cfe}, {OPT.get('cfe', '0xfffe')}
        s_mov_b32 s{csrc}, {TS}
        s_mov_b32 s{sslow}, 0
        s_mov_b32 s{sround}, 0
        s_mov_b32 s{sgb}, 0
        s_mov_b32 s{stot}, 0
        s_mul_i32 s{st0}, s{sfh}, 3
        s_xor_b32 s{srank}, s{sg}, s{st0}
        v_lshrrev_b32 v{Z+2}, 5, v{vl}
        v_and_b32 v{Z+3}, 31, v0
        v_lshlrev_b32 v{vH16}, 4, v{Z+2}
        v_lshlrev_b32 v{vH256}, 8, v{Z+2}
        v_and_b32 v{Z+4}, 3, v0
        v_mov_b32 v{Z+6}, 0x3f80
        """)
        for i in range(4):
            a(f"v_cmp_eq_u32 vcc, {i}, v{Z+4}\ns_nop 1\nv_cndmask_b32 v{PA+i}, 0, v{Z+6}, vcc")
        a(f"""
        v_cmp_gt_u32 s[78:79], 16, v{Z+3}
        v_mov_b32 v{Z+5}, {bf(127*2.0**-126):#x}
        v_mov_b32 v{Z+7}, {bf(2.0**16):#x}
        v_cndmask_b32 v{Z+5}, v{Z+7}, v{Z+5}, s[78:79]
        v_and_b32 v{Z+4}, 15, v0
        v_lshlrev_b32 v{Z+8}, 3, v{Z+2}
        v_sub_u32 v{Z+4}, v{Z+4}, v{Z+8}
        v_lshlrev_b32 v{Z+6}, 16, v{Z+5}
        """)
        for d in range(4):
            a(f"""
            v_cmp_eq_u32 vcc, {2*d}, v{Z+4}
            v_cmp_eq_u32 s[78:79], {2*d+1}, v{Z+4}
            s_nop 0
            v_cndmask_b32 v{SC+d}, 0, v{Z+5}, vcc
            v_cndmask_b32 v{Z+8}, 0, v{Z+6}, s[78:79]
            v_or_b32 v{SC+d}, v{SC+d}, v{Z+8}
            """)
        return [x.strip() for x in a.l]
    def ld_xr(): return [f"buffer_load_dword v{XR+r}, v{vO}, {sr(sX,4)}, 0 offen offset:{256*rowoff(r)} " for r in range(6)]
    def arrive(k):
        a(f"""
        v_mov_b32 v{vt+6}, {FLG+4*k}
        v_mov_b32 v{vt+7}, 1
        s_mov_b64 exec, 1
        ds_add_u32 v{vt+6}, v{vt+7}
        s_mov_b64 exec, -1
        """)
    def spin(k, n, add=True):
        if add: arrive(k)
        else: a(f"v_mov_b32 v{vt+6}, {FLG+4*k}")
        a(f"""
        K2_SPIN{n}:
        ds_read_b32 v{vt+7}, v{vt+6}
        s_waitcnt lgkmcnt(0)
        v_cmp_gt_u32 vcc, 4, v{vt+7}
        s_cbranch_vccnz K2_SPIN{n}
        """)
    def caddr(k): return f"v_and_b32_sdwa v{CADDR+k}, s{cfc}, v{REC+k} {sd} src1_sel:BYTE_3"
    def pick(sel, cur):
        a(f"""
        s_bitcmp1_b32 s{sel}, 0
        s_cselect_b32 s{cur[0]}, s{cur[1]}, s{cur[0]}
        s_cselect_b32 s{cur[2]}, s{cur[3]}, s{cur[2]}
        s_bitcmp1_b32 s{sel}, 1
        s_cselect_b32 s{st0}, s{cur[2]}, s{cur[0]}
        s_and_b32 s{sg}, s{st0}, 3
        s_andn2_b32 s{st0}, s{st0}, 3
        s_mul_i32 s{sgb}, s{sg}, {CAPG*4}
        s_add_u32 s{scount}, s{st0}, 127
        s_lshr_b32 s{scount}, s{scount}, 7
        s_add_u32 s{stail}, s{st0}, 124
        s_bfe_u32 s{stail}, s{stail}, 0x20005
        s_lshl_b32 s{stail}, s{stail}, 1
        s_add_u32 s{stail}, s{stail}, 2
        """)
    def rank_groups():
        a(f"s_add_u32 s{stot}, s{sk}, s{sk+1}\ns_add_u32 s{st1}, s{sk+2}, s{sk+3}\ns_add_u32 s{stot}, s{stot}, s{st1}")
        for g in range(1, 4): a(f"s_or_b32 s{sk+g}, s{sk+g}, {g}")
        cur = [sk, sk+1, sk+2, sk+3]; spare = sk+4
        for (i, j) in ((0, 1), (2, 3), (0, 2), (1, 3), (1, 2)):
            a(f"s_max_u32 s{spare}, s{cur[i]}, s{cur[j]}\ns_min_u32 s{cur[j]}, s{cur[i]}, s{cur[j]}")
            cur[i], spare = spare, cur[i]
        pick(srank, cur)
    def scan(fast, ks=()):
        x = SP
        a(f"""
        v_and_b32 v{vt}, 63, v0
        v_lshlrev_b32 v{vt+1}, 2, v{vt}
        ds_read_b32 v{x}, v{vt+1} offset:{CNT}
        v_lshrrev_b32 v{vt}, 4, v{vt}
        v_mul_u32_u24 v{vt}, {CAPG*4}, v{vt}
        v_and_b32 v{vt+2}, 31, v0
        v_lshlrev_b32 v{vt+2}, 2, v{vt+2}
        v_mov_b32 v{vt+4}, 0xfffffe
        s_waitcnt lgkmcnt(0)
        v_sub_u32 v{vt}, v{vt}, v{x}
        """)
        for d in ("row_shr:1", "row_shr:2", "row_shr:4", "row_shr:8"):
            a(f"v_add_u32_dpp v{x}, v{x}, v{x} {d} row_mask:0xf bank_mask:0xf bound_ctrl:0\ns_nop 1")
        a(f"""
        v_add_u32 v{vt}, v{vt}, v{x}
        v_cmp_lt_u32 vcc, {CAPG*4}, v{x}
        ds_write2st64_b32 v{vt+1}, v{vt}, v{x} offset0:{START//256} offset1:{INCL//256}
        """)
        for g in range(4): a(f"v_readlane_b32 s{sk+g}, v{x}, {16*g+15}")
        if fast:
            a("s_cbranch_vccnz K2_GIVEUP")
            for j, k in enumerate(ks): a(f"ds_read_b32 v{STV+j}, v{CADDR+k} offset:{START}")
            rank_groups()
        else:
            for g in range(1, 4): a(f"s_or_b32 s{sk+g}, s{sk+g}, {g}")
            pick(sg, [sk, sk+1, sk+2, sk+3])
        a(f"""
        s_add_u32 s{st0}, s{st0}, s{sgb}
        v_add_u32 v{vt+2}, s{st0}, v{vt+2}
        s_lshl_b32 s{st1}, s{scount}, 7
        s_add_u32 s{st1}, s{st1}, s{sgb}
        v_lshlrev_b32 v{vt+3}, 3, v{vt+2}
        v_and_b32 v{vt+3}, 128, v{vt+3}
        v_cmpx_gt_u32 vcc, s{st1}, v{vt+2}
        ds_write2st64_b32 v{vt+2}, v{vt+3}, v{vt+4} offset0:{L1//256} offset1:{L2//256}
        s_mov_b64 exec, -1
        """)
    def place(k, st, eo):
        a(f"""
        v_add_u32 v{st}, v{st}, v{RANK+k}
        v_bfe_u32 v{vt}, v{REC+k}, 16, {5 if 't' in OPT.get('nomem','') else 14}
        v_lshlrev_b32 v{vt+1}, 3, v{st}
        v_mad_u32_u16 v{vt+2}, v{REC+k}, 2, v{eo}
        v_and_b32 v{vt+1}, 128, v{vt+1}
        v_mad_u32_u24 v{vt}, v{vt}, s{csrc}, v{vt+1}
        ds_write2st64_b32 v{st}, v{vt}, v{vt+2} offset0:{L1//256} offset1:{L2//256}
        """)
    def lane_setup():
        a(f"""
        v_and_b32 v{vt}, 31, v0
        v_xor_b32 v{vA1}, 16, v{vH16}
        v_xor_b32 v{vA2}, 4, v{vt}
        v_lshlrev_b32 v{vA2}, 2, v{vA2}
        v_add_u32 v{vA1}, s{sgb}, v{vA1}
        v_add_u32 v{vA2}, s{sgb}, v{vA2}
        s_mul_i32 s{st0}, s{sg}, {GN*256}
        s_lshl_b32 s{st1}, s{sfh}, 7
        s_add_u32 s{st0}, s{st0}, s{st1}
        """)
        pair_of_lane(a, vO, vt+1)
        a(f"""
        v_lshl_add_u32 v{vO}, v{vH256}, 2, v{vO}
        v_add_u32 v{vO}, s{st0}, v{vO}
        v_bfe_u32 v{vA3}, v0, 1, 5
        v_lshlrev_b32 v{vA3}, 2, v{vA3}
        v_add_u32 v{vA3}, s{sgb}, v{vA3}
        v_lshlrev_b32 v{vP16}, 4, v0
        v_xor_b32 v{vP16}, v{vP16}, v0
        v_and_b32 v{vP16}, 16, v{vP16}
        v_lshlrev_b32 v{vHS}, 1, v0
        v_xor_b32 v{vHS}, v{vHS}, v{vH16}
        v_and_b32 v{vHS}, 16, v{vHS}
        v_add_u32 v{vHS}, {STG}, v{vHS}
        s_lshl_b32 s{st0}, s{sg}, 2
        s_add_u32 s{st0}, s{st0}, {PROG}
        v_mov_b32 v{vPG}, s{st0}
        s_lshl_b32 s{sm0}, s{sgb}, 3
        s_add_u32 s{sm0}, s{sm0}, {STG}
        s_mov_b32 s{sdma}, 0
        s_mov_b32 s{sneed}, 0
        s_mov_b32 s{slim}, s{scount}
        """)
    def rd_addr(off, j): return f"ds_read_b128 {vr(ADDR+4*j,4)}, v{vA1} offset:{L1+off+32*j}"
    def rd_l2(reg, off): return f"ds_read_b32 v{reg}, v{vA2} offset:{L2+off}"
    def ld_raw(p, b, r):
        pre = [f"v_and_b32 v{ADDR+r}, 0xffff80, v{ADDR+r}"] if OPT.get("safe") else []
        if OPT.get("noload"): return ["s_nop 0"]
        return pre + [f"buffer_load_dword v{raw(p,b)+r}, v{ADDR+r}, {sr(sT,4)}, 0 offen" + (" offset:128" if b else "") + " " + OPT.get("ft", "")]
    def ld_blk(p, b): return sum((ld_raw(p, b, r) for r in range(16)), [])
    cur = {"r": "P"}
    def rd_l3(off, reg=None): return [f"ds_read_b32 v{reg or vEa}, v{vA3} offset:{L2+off}"] if cur["r"] == "P" else []
    lab = [0]
    def dma_ea(sl, reg=None, check=True):
        if cur["r"] != "P": return []
        reg = reg or vEa
        if not check:
            return [f"s_mov_b32 m0, s{sm0}", f"v_and_or_b32 v{reg}, v{reg}, s{cm32}, v{vP16}",
                    f"buffer_load_dwordx4 v{reg}, {sr(sE,4)}, 0 offen {OPT.get('fe', '')} lds;wr={300+sl}", f"s_add_u32 s{sm0}, s{sm0}, 1024"]
        lab[0] += 1
        return [f"s_cmp_lt_u32 s{sdma}, s{slim}", f"s_cbranch_scc0 K2_ND{lab[0]}", "@D{",
                f"s_mov_b32 m0, s{sm0}", f"v_and_or_b32 v{reg}, v{reg}, s{cm32}, v{vP16}",
                f"buffer_load_dwordx4 v{reg}, {sr(sE,4)}, 0 offen {OPT.get('fe', '')} lds;wr={300+sl}", "@}", f"K2_ND{lab[0]}:",
                f"s_add_u32 s{sdma}, s{sdma}, 1", f"s_add_u32 s{sm0}, s{sm0}, 1024"]
    spins = []
    def rd_prog(): return [f"ds_read_b32 v{vEa}, v{vPG}"] if cur["r"] == "C" else []
    def get_ea(p, sl, off, prev=()):
        o = [f"s_add_u32 s{sneed}, s{sneed}, 1"]
        if cur["r"] == "P":
            o += [f"v_mov_b32 v{vEa}, s{sneed};rd={300+sl}", f"ds_write_b32 v{vPG}, v{vEa}"]
            if prev: o.append("@MOVE 302 300")
        else:
            lab[0] += 1; n = lab[0]; spins.append(n)
            o += [f"v_cmp_gt_u32 vcc, s{sneed}, v{vEa}", f"s_cbranch_vccnz K2_SP{n}", f"K2_OK{n}:"]
        return o + [f"v_lshl_add_u32 v{vEa}, v{vA2}, 3, v{vHS}", f"ds_read_b128 {vr(EA+4*p,4)}, v{vEa} offset:{8*off}"]
    def oh_idx(p):
        return [f"v_and_b32 v{vOa}, 30, v{vOa}",
                f"v_lshl_add_u32 v{vOa}, v{vOa}, 3, v{vH256}",
                f"ds_read_b128 {vr(OH+4*p,4)}, v{vOa} offset:{OHL}"]
    big = "v_mfma_f32_32x32x16_bf16" if not OPT.get("nobig") else "; "
    de = OPT.get("drop", "")
    def mE(p, b): return "; " if "E" in de else f"{big} {vr(gb(p,b),16)}, {vr(EA+4*p,4)}, {vr(WC+4*b,4)}, 0"
    def mA(p, b): return "; " if "A" in de else f"{big} {vr(gb(p,b),16)}, {vr(OH+4*p,4)}, {vr(AP+4*b,4)}, {vr(gb(p,b),16)}"
    def mS(p): return "; " if "S" in de else f"{big} {vr(SP,16)}, {vr(OH+4*p,4)}, {vr(SC,4)}, 0"
    def mG(p, b, j): return "; " if ("G" in de or ("g" in de and j & 1)) else (f"{big} {vr(ACC+16*b,16)}, {vr(gb(p,b)+4*j,4)}, {vr(SP+4*j,4)}, {vr(ACC+16*b,16)}" if OPT.get("swapg") else f"{big} {vr(ACC+16*b,16)}, {vr(SP+4*j,4)}, {vr(gb(p,b)+4*j,4)}, {vr(ACC+16*b,16)}")
    def mP(p, b):
        o = []
        if "P" in de: return ["; "]*8
        for u in range(2):
            for j in range(4):
                g = vr(gb(p,b)+4*j, 4)
                o.append(f"v_mfma_f32_4x4x4_16b_bf16 {g}, {vr(PA+2*u,2)}, {vr(raw(p,b)+4*j+2*u,2)}, {g}")
        return o
    def idx_pair(p, b, i):
        g0, g1 = gb(p,b)+2*i, gb(p,b)+2*i+1
        if i < NTB[b]:
            return [f"v_exp_f32 v{g0}, v{g0}", f"v_exp_f32 v{g1}, v{g1}", f"v_add_f32 v{g0}, 1.0, v{g0}",
                    f"v_add_f32 v{g1}, 1.0, v{g1}", f"v_rcp_f32 v{g0}, v{g0}", f"v_rcp_f32 v{g1}, v{g1}"], []
        return [f"v_cvt_pkrtz_f16_f32 v{g0}, v{g0}, v{g1}",
                f"v_and_b32_sdwa v{g1}, s{cfe}, v{g0} {sd} src1_sel:WORD_1",
                f"v_and_b32_sdwa v{g0}, s{cfe}, v{g0} {sd} src1_sel:WORD_0"], \
               [f"ds_read_u16_d16_hi v{g1}, v{g1} offset:{LUTL}", f"ds_read_u16_d16_hi v{g0}, v{g0} offset:{LUTL}"]
    def fin_pair(p, b, i):
        g0, r0 = gb(p,b)+2*i, raw(p,b)+2*i
        mul = [f"v_pk_mul_f32 {vr(r0,2)}, {vr(g0,2)}, {vr(r0,2)}"] if OPT.get("pk") else [f"v_mul_f32 v{r0}, v{g0}, v{r0}", f"v_mul_f32 v{r0+1}, v{g0+1}, v{r0+1}"]
        return mul + [
                f"v_cvt_pk_bf16_f32 v{g0}, v{g0}, v{r0}", f"v_cvt_pk_bf16_f32 v{g0+1}, v{g0+1}, v{r0+1}"]
    def zipl(x, y):
        o = []
        for k in range(max(len(x), len(y))):
            if k < len(x): o.append(x[k])
            if k < len(y): o.append(y[k])
        return o
    uid = [0]
    def W(kind):
        uid[0] += 1
        return f"@W{kind} {uid[0]}"
    SH = int(OPT.get("short", "4"))
    L3O = OPT.get("l3o", "1") == "1"
    F2 = OPT.get("f2", "0") == "1"
    XE = OPT.get("xe", "1") == "1"
    WE = int(OPT.get("we", "2"))
    def slot(p, b, kind, acc=True, np_=8, npg=8):
        q = 1-p
        nxt = (p, 1) if b == 0 else (q, 0)
        do_idx = b == 0 or kind != "L"
        gs = [[mG(q if b == 0 else p, 1-b, j)] for j in range(npg//2)] if acc else []
        ng = 3 if (b == 0 and OPT.get("e3", "1") == "1") else 2
        bigs = gs[:ng]
        if kind != "L": bigs += [[mE(q, b)], [mA(q, b)]]
        bigs += gs[ng:]
        if b == 0: bigs += [[mS(p)]]
        smalls = mP(q, b) if kind != "L" else []
        out = []
        nb = 0
        for i in range(8):
            if i >= np_:
                out += sum(bigs[nb:], []); nb = len(bigs)
                break
            iv, il = idx_pair(*nxt, i) if do_idx else ([], [])
            fv = fin_pair(p, b, i)
            seq = zipl(iv, fv) + il
            if SH:
                rr = range(16*i//SH, 16*(i+1)//SH) if i < SH else []
                if (b == 0 and kind != "L") or (b == 1 and kind == "F"):
                    for r_ in rr: seq += ld_raw(q, 1, r_) if b == 0 else ld_raw(p, 0, r_)
                if kind == "P" and b == 0 and i == SH and XE: seq += ld_xr()
                if kind == "F":
                    if b == 0:
                        for r_ in rr:
                            if r_ & 3 == 3: seq.append(rd_addr((2+p)*128, r_ >> 2))
                    if b == 0 and i == 1: seq = dma_ea(p, vOa if L3O else None, check=False) + seq
                    if b == 1 and i == 1: seq += rd_prog()
                    if b == 1 and i == int(OPT.get("gi", "6")): seq += get_ea(p, p, (2+p)*128)
                    if b == 1 and i == (3 if L3O else 7): seq += rd_l3((3+p)*128, vOa if L3O else None)
                    if b == 0 and i == 5: seq.append(rd_l2(vOa, (2+p)*128))
                    if b == 1 and i == 2: seq += oh_idx(p)
            elif kind == "F":
                seq += ld_raw(p, b, 2*i) + ld_raw(p, b, 2*i+1)
                if b == 1 and i & 1: seq.append(rd_addr((3+p)*128, i >> 1))
                if OPT.get("burst"):
                    if p == 0 and b == 0 and i == 0: seq += rd_l3(3*128) + rd_l3(4*128, vOa)
                    if p == 0 and b == 0 and i == 4: seq = dma_ea(1) + dma_ea(2, vOa) + seq
                else:
                    if b == 0 and i == 1: seq += rd_l3((3+p)*128)
                    if b == 1 and i == 0: seq = dma_ea(q) + seq
                if b == 1 and i == 1: seq += rd_prog()
                if b == 1 and i == 6: seq += get_ea(p, p, (2+p)*128, (2,) if (OPT.get('burst') and p == 0) else ())
                if b == 0 and i == 5: seq.append(rd_l2(vOa, (2+p)*128))
                if b == 1 and i == 2: seq += oh_idx(p)
            pre = [W("l")] if i % WE == 0 else []
            if cur["r"] == "P" and kind != "L":
                if (b, i) == (0, 0): pre.append("s_setprio 2")
                if (b, i) == divmod(int(OPT.get("fair", "12")), 8): pre.append("s_setprio 0")
            if i < 6:
                take = 2 if (len(bigs) - nb) > (6 - i) else 1
                if nb < len(bigs): pre += bigs[nb]; nb += 1
                if take == 2 and nb < len(bigs):
                    seq = seq[:6] + bigs[nb] + seq[6:]; nb += 1
            if smalls and i >= 5:
                k0, k1 = {5: (0, 2), 6: (2, 6), 7: (6, 8)}[i]
                sm = smalls[k0:k1]
                if i == 5: seq = seq[:4] + [W("v")] + zipl(sm, seq[4:])
                else: seq = zipl(sm, seq)
            out += pre + seq
        assert nb == len(bigs)
        return out
    def last(p, np_):
        n = f"{p}{cur['r']}{np_}"
        return ([f"K2_LAST{n}:"] + ([] if XE else ld_xr()) + slot(p, 0, "L", np_=np_) + ["s_nop 11"]*(np_ < 6) + slot(p, 1, "L", np_=np_, npg=np_)
                + ["s_nop 1"] + [mG(p, 1, j) for j in range(np_//2)])
    def body(p, kind):
        q = 1-p; n = f"{kind}{p}{cur['r']}"
        o0 = [f"K2_BODY{n}:"] + slot(p, 0, kind)
        o1 = [f"K2_MID{n}:"] + (ld_xr() if kind == "L" else []) + slot(p, 1, kind)
        if OPT.get("prof") == "7": o1 += ["s_mov_b32 m0, s98", "s_add_u32 s98, s98, 1", f"v_writelane_b32 v{UR+5}, s86, m0", "s_memrealtime s[86:87]"]
        if kind == "P":
            for np_ in (2, 4, 6): o1 += [f"s_cmp_eq_u32 s{stail}, {np_}", f"s_cbranch_scc1 K2_LAST{q}{cur['r']}{np_}"]
        if kind == "F":
            if p == 1: o1 += [f"v_add_u32 v{r_}, 256, v{r_}" for r_ in ((vA1, vA2, vA3) if cur["r"] == "P" else (vA1, vA2))]
            o1 += [f"s_sub_u32 s{scount}, s{scount}, 1", f"s_cmp_eq_u32 s{scount}, 2", f"s_cbranch_scc1 K2_BODYP{q}{cur['r']}"]
        return o0, o1
    def entry_short(kind):
        more = kind != "L"
        o = rd_prog() + [W("v"), W("l")] + get_ea(0, 0, 0)
        if more: o += rd_prog() + rd_l3(128)
        o += [W("l"), "@STAMP", mE(0, 0), mA(0, 0), mE(0, 1), mA(0, 1)]
        if F2: o += ld_blk(0, 1) + [rd_addr(128, j) for j in range(4)]
        o += (dma_ea(1, check=False) if more else []) + ["s_nop 7", W("v")] + mP(0, 0) + ["s_nop 3"]
        for i in range(8):
            v_, l_ = idx_pair(0, 0, i)
            o += [W("l")] + ([v_[0], v_[1], "s_nop 0"] + v_[2:] if i < NTB[0] else v_) + l_
            if more:
                if i < 4:
                    for r_ in range(4*i, 4*i+4): o += ld_raw(1, 0, r_)
                if i == 6: o += [W("v")] + get_ea(1, 1, 128)
                if i == (2 if L3O else 7) and kind == "F": o += rd_l3(256, vOa if L3O else None)
            if i == (5 if F2 else 3): o += [W("v")] + mP(0, 1)
        return o + slot(0, 0, kind, acc=False) + [f"s_branch K2_MID{kind}0{cur['r']}"]
    def entry(kind):
        if SH: return entry_short(kind)
        more = kind != "L"
        o = rd_prog() + [W("v"), W("l")] + get_ea(0, 0, 0)
        if more: o += rd_prog()
        o += [W("l"), "@STAMP", mE(0, 0), mA(0, 0), mE(0, 1), mA(0, 1), "s_nop 7", W("v")] + mP(0, 0) + ["s_nop 3"]
        for i in range(8):
            v_, l_ = idx_pair(0, 0, i)
            o += [W("l")] + ([v_[0], v_[1], "s_nop 0"] + v_[2:] if i < NTB[0] else v_) + l_
            if more:
                for r_ in range(4*(i & 3), 4*(i & 3)+4): o += ld_raw(1, i >> 2, r_)
                if i >= 4: o.append(rd_addr(256, i-4))
                if i == 4: o += [W("v")] + get_ea(1, 1, 128) + rd_l3(256)
                if i == 7: o += dma_ea(0)
            if i == 3: o += [W("v")] + mP(0, 1)
        return o + slot(0, 0, kind, acc=False) + [f"s_branch K2_MID{kind}0{cur['r']}"]
    def drain(p): return ["s_nop 1"] + [mG(p, 1, j) for j in range(4)]
    def mk_fill():
        ad = [rd_addr(0, j) for j in range(4)]
        t0 = SP
        o = []
        if cur["r"] == "P":
            o = (rd_l3(0) + [f"ds_read_b32 v{t0}, v{vA3} offset:{L2+128}"])
        o += ad + [rd_l2(vOa, 0), rd_l2(t0+1, 128)]
        if cur["r"] == "P":
            o += ["s_waitcnt lgkmcnt(6)"] + dma_ea(0) + [f"v_mov_b32 v{vEa}, v{t0}"]
        d1 = dma_ea(1) if not SH else []
        late1 = OPT.get("d1", "1") == "1"
        o += ([] if late1 else d1) + ["s_waitcnt lgkmcnt(0)"] + ld_blk(0, 0) + oh_idx(0) + [f"v_mov_b32 v{vOa}, v{t0+1}"] + oh_idx(1)
        if F2: return o
        o += ld_blk(0, 1) + (d1 if late1 else [])
        return o + [rd_addr(128, j) for j in range(4)]
    FI, B, EN, LA_ = {}, {}, {}, {}
    for r in "PC":
        cur["r"] = r
        if r == "C" and OPT.get("ntc"): NTB[:] = [int(c_) for c_ in OPT["ntc"]]
        FI[r] = mk_fill()
        for k in "FPL":
            EN[r, k] = entry(k)
            for p in range(2): B[r, p, k] = body(p, k)
        for p in range(2):
            for np_ in (2, 4, 6, 8): LA_[r, p, np_] = last(p, np_)
    def trace(r, cnt, np_=8):
        kinds = ["F"]*(cnt-2) + ["P", "L"][-min(cnt, 2):]
        tr = FI[r] + EN[r, kinds[0]] + B[r, 0, kinds[0]][1]
        for t in range(1, cnt-1): tr += B[r, t & 1, kinds[t]][0] + B[r, t & 1, kinds[t]][1]
        if cnt > 1 and np_ < 8: tr = tr[:len(tr) - 2*(2 - (np_-2)//2)]
        tr += drain(0) if cnt == 1 else LA_[r, (cnt-1) & 1, np_]
        o = []; keep = True; nd = 0
        for x in tr:
            if x == "@D{": keep = nd < cnt; nd += 1
            elif x == "@}": keep = True
            elif keep and x != "@STAMP": o.append(x)
        return o
    epi_head = ["s_branch x", "s_cmp", "s_cbranch", "s_waitcnt vmcnt(0) lgkmcnt(0)"] + [f"v_add_f32 v{G+r_}, 0, v{XR}" for r_ in range(24)] + [f"v_add_f32 v{ACC+r_}, 0, v{ACC+r_}" for r_ in range(32)]
    cases = [(r, c, n_) for c in range(1, 9) for r in "PC" for n_ in (2, 4, 6, 8)]
    need = asmsim.solve_waits([trace(*c) for c in cases])
    for c in cases: asmsim.check_hazards(asmsim.apply_waits(trace(*c), need) + epi_head, f"case {c}")
    def emit(l):
        for x in asmsim.apply_waits(l, need):
            if x == "@STAMP":
                stamp(a, 5); stamp(a, 5, "3"); stamp(a, 7, "4")
                if OPT.get("prof") == "7": a("s_memrealtime s[86:87]\ns_mov_b32 s98, 1")
                if OPT.get("prof") == "3": a(f"s_memtime s[86:87]\ns_mov_b32 s90, s{scount}\ns_getreg_b32 s92, hwreg(HW_REG_HW_ID)")
            elif x[0] != "@": a(x.split(";")[0] or "s_nop 0")
    def main_loop(r):
        a(f"""
        K2_GO{r}:
        s_cmp_eq_u32 s{scount}, 0
        s_cbranch_scc1 K2_EMPTY
        s_cmp_gt_u32 s{scount}, 2
        s_cbranch_scc1 K2_ENTF{r}
        s_cmp_eq_u32 s{scount}, 2
        s_cbranch_scc1 K2_ENTP{r}
        """)
        emit(EN[r, "L"]); a(f"K2_ENTP{r}:"); emit(EN[r, "P"]); a(f"K2_ENTF{r}:"); emit(EN[r, "F"])
        a(".p2align 6")
        for _ in range(int(OPT.get("pad", "0"))): a("s_nop 0")
        for p in range(2): emit(B[r, p, "F"][0] + B[r, p, "F"][1])
        a(f"s_branch K2_BODYF0{r}")
        emit(B[r, 0, "L"][1] + drain(0)); a("s_branch K2_DONE")
        for p in range(2):
            for np_ in (2, 4, 6): emit(LA_[r, p, np_]); a("s_branch K2_DONE")
        for p in range(2):
            emit(B[r, p, "P"][0] + B[r, p, "P"][1] + LA_[r, 1-p, 8])
            if p == 0 or r == "P": a("s_branch K2_DONE")
    def fill(n):
        a(f"s_cmp_eq_u32 s{scount}, 0\ns_cbranch_scc1 K2_FILLED{n}")
        emit(FI[n])
        a(f"K2_FILLED{n}:")
    def ap_addr():
        a(f"""
        v_bfe_u32 v{vt}, v0, 2, 2
        v_lshrrev_b32 v{vt+1}, 1, v{vH16}
        v_add_u32 v{vt}, v{vt}, v{vt+1}
        v_mul_u32_u24 v{vt}, {ROWP}, v{vt}
        v_bfe_u32 v{vt+2}, v0, 4, 1
        v_lshl_add_u32 v{vt}, v{vt+2}, 5, v{vt}
        v_and_b32 v{vt+2}, 3, v0
        v_lshl_add_u32 v{vt}, v{vt+2}, 3, v{vt}
        s_mul_i32 s{st0}, s{sg}, {GN*ROWP}
        s_lshl_b32 s{st1}, s{sfh}, 7
        s_add_u32 s{st0}, s{st0}, s{st1}
        v_add_u32 v{vt}, s{st0}, v{vt}
        v_mul_u32_u24 v{vt+1}, {ROWP//2}, v{vt+1}
        v_and_b32 v{vt+2}, 127, v{vO}
        v_add3_u32 v{vt+1}, v{vt+2}, s{st0}, v{vt+1}
        """)
    def ap_read():
        a(f"""
        ds_read_b64_tr_b16 {vr(AP,2)}, v{vt} offset:{APL}
        ds_read_b64_tr_b16 {vr(AP+2,2)}, v{vt} offset:{APL+4*ROWP}
        ds_read_b64_tr_b16 {vr(AP+4,2)}, v{vt} offset:{APL+64}
        ds_read_b64_tr_b16 {vr(AP+6,2)}, v{vt} offset:{APL+4*ROWP+64}
        """)
        for r in range(6): a(f"ds_read_b32 v{UR+r}, v{vt+1} offset:{UL+ROWP*rowoff(r)}")
    def init_addr():
        for r in range(16): a(f"v_mov_b32 v{ADDR+r}, 128")
    def zero_acc():
        for r in range(32): a(f"v_mov_b32 v{ACC+r}, 0")

    a(f"s_cmp_lg_u32 s{sfh}, 0\ns_cbranch_scc1 K2_LOADER")
    if OPT.get("sp"): a(f"s_setprio {OPT['sp']}")
    ld_wc()
    a.ext(common1(SP, vt))
    a(f"v_and_b32 v{vt+3}, 15, v0\nv_lshlrev_b32 v{vt+3}, 4, v{vt+3}\nv_bfe_u32 v{vt+4}, v0, 4, 2\nv_lshl_add_u32 v{vt+3}, v{vt+4}, 10, v{vt+3}\ns_lshl_b32 s{st0}, s{sg}, 8\nv_add_u32 v{vt+3}, s{st0}, v{vt+3}")
    a(f"v_add_u32 v{vt+4}, 40960, v{vt+3}")
    for val, rg, runs in ((0x3f003f00, EA, (0, 3, 32, 35)), (0, EA+4, (23, 27)), (0x3f803f80, OH, (51, 55, 59))):
        for j in range(4): a(f"v_mov_b32 v{rg+j}, {val:#x}")
        for c0 in runs:
            a(f"ds_write_b128 v{vt+4 if c0 >= 24 else vt+3}, {vr(rg,4)} offset:{LUTL + 1024*(c0 - (40 if c0 >= 24 else 0))}")
    a(f"""
    v_and_b32 v{vt+3}, 127, v0
    v_bfe_u32 v{vt+4}, v0, 2, 4
    v_and_b32 v{Z+4}, 3, v0
    v_lshrrev_b32 v{Z+5}, 6, v{vt+3}
    v_lshlrev_b32 v{vt+3}, 2, v{vt+3}
    v_lshl_add_u32 v{Z+4}, v{Z+5}, 2, v{Z+4}
    v_lshlrev_b32 v{Z+5}, 1, v{Z+4}
    v_mov_b32 v{Z+6}, 0x3780
    v_mov_b32 v{Z+7}, 0x37800000
    v_cmp_eq_u32 vcc, v{Z+5}, v{vt+4}
    v_add_u32 v{Z+5}, 1, v{Z+5}
    s_nop 0
    v_cndmask_b32 v{Z+8}, 0, v{Z+6}, vcc
    v_cmp_eq_u32 vcc, v{Z+5}, v{vt+4}
    s_nop 1
    v_cndmask_b32 v{Z+9}, 0, v{Z+7}, vcc
    v_or_b32 v{Z+8}, v{Z+8}, v{Z+9}
    v_cmp_gt_u32 vcc, 15, v{vt+4}
    s_nop 1
    v_cndmask_b32 v{Z+8}, 0, v{Z+8}, vcc
    ds_write_b32 v{vt+3}, v{Z+8} offset:{OHL}
    """)
    a(f"""
    v_mul_u32_u24 v{EOFF}, {CS*32}, v{vt+1}
    v_add_u32 v{EOFF+1}, {64*CS*32}, v{EOFF}
    v_mov_b32 v{vt+3}, 4
    """)
    init_addr()
    a(f"s_waitcnt vmcnt({2 + (TP0 > 0)})")
    stamp(a, 2); stamp(a, 1, "5")
    if OPT.get("half", "0") == "1":
        for u in range(2): a(f"v_mov_b32_dpp v{vt+8+u}, v{REC+4*u+3} quad_perm:[3,3,3,3] row_mask:0xf bank_mask:0xf")
        for u in range(2): a(f"v_cmp_eq_u32 {sr(68+2*u,2)}, -1, v{vt+8+u}")
        a("s_nop 0")
        for u in range(2):
            for i in range(4): a(f"v_cndmask_b32 v{REC+8+4*u+i}, v{REC+8+4*u+i}, -1, {sr(68+2*u,2)}")
    a(f"""
    v_cmp_eq_u32 vcc, -2, v{REC+11}
    v_cmp_eq_u32 s[78:79], -2, v{REC+15}
    s_or_b64 vcc, vcc, s[78:79]
    s_cbranch_vccz K2_NOOVF
    v_mov_b32 v{vt+4}, 0x10000
    v_mov_b32 v{vt}, 60
    ds_add_u32 v{vt}, v{vt+4} offset:{CNT}
    K2_NOOVF:
    """)
    M = [68, 70, 72, 74, 76, 78]
    KS = [[4*u+i for i in range(4)] + [8+4*u, 9+4*u] for u in range(2)]
    def masked(u, fn):
        for j, k in enumerate(KS[u]): a(f"v_cmp_gt_u32 {sr(M[j],2)}, -2, v{REC+k}")
        for j, k in enumerate(KS[u]): a(f"s_mov_b64 exec, {sr(M[j],2)}\n{fn(k, 6*u+j)}")
        a("s_mov_b64 exec, -1")
    for k in KS[0] + KS[1]: a(caddr(k))
    for u in range(2): masked(u, lambda k, j: f"ds_add_rtn_u32 v{RANK+k}, v{CADDR+k}, v{vt+3} offset:{CNT}")
    a(f"v_min_u32 v{vt+4}, v{REC+10}, v{REC+14}\nv_cmp_gt_u32 s[26:27], -2, v{vt+4}")
    def steps(tag, fn):
        a(f"s_cmp_eq_u64 s[26:27], 0\ns_cbranch_scc1 K2_{tag}1\ns_waitcnt lgkmcnt(0)")
        for u in range(2):
            for k in (10+4*u, 11+4*u):
                a(f"v_cmpx_gt_u32 vcc, -2, v{REC+k}\ns_cbranch_execz K2_{tag}{u}")
                fn(k, u)
            a(f"K2_{tag}{u}:\ns_mov_b64 exec, -1")
    steps("C", lambda k, u: a(f"{caddr(k)}\nds_add_rtn_u32 v{RANK+k}, v{CADDR+k}, v{vt+3} offset:{CNT}"))
    arrive(0)
    stamp(a, 2, "5")
    LA, LB = raw(0, 0), raw(0, 1)
    for u in range(2):
        for j, k in enumerate(KS[u]):
            a(f"v_bfe_u32 v{LA+6*u+j}, v{REC+k}, 16, {5 if 't' in OPT.get('nomem','') else 14}\nv_mad_u32_u16 v{LB+6*u+j}, v{REC+k}, 2, v{EOFF+u}")
    NBK = int(OPT.get("nbk", "0"))
    if NBK:
        for u in range(2):
            for j, k in enumerate(KS[u]): a(f"v_and_b32 v{vt+8}, 0x3c, v{CADDR+k}\nv_cmp_gt_u32 {sr(M[j],2)}, {4*NBK}, v{vt+8}")
            for j, k in enumerate(KS[u]): a(f"s_mov_b64 exec, {sr(M[j],2)}\nbuffer_load_ubyte v{vt+12}, v{LB+6*u+j}, {sr(sE,4)}, 0 offen")
            a("s_mov_b64 exec, -1")
    for j in range(12): a(f"v_mul_u32_u24 v{LA+j}, s{csrc}, v{LA+j}")
    spin(0, "A", add=False)
    stamp(a, 3, "5")
    scan(True, KS[0] + KS[1])
    a("s_waitcnt lgkmcnt(1)")
    stamp(a, 4, "5")
    for j, k in enumerate(KS[0] + KS[1]): a(f"v_add_u32 v{STV+j}, v{STV+j}, v{RANK+k}")
    for j, k in enumerate(KS[0] + KS[1]): a(f"v_lshlrev_b32 v{RANK+k}, 3, v{STV+j}")
    for j, k in enumerate(KS[0] + KS[1]): a(f"v_and_or_b32 v{LA+j}, v{RANK+k}, s{c128}, v{LA+j}")
    for u in range(2): masked(u, lambda k, j: f"ds_write2st64_b32 v{STV+j}, v{LA+j}, v{LB+j} offset0:{L1//256} offset1:{L2//256}")
    def put_step(k, u):
        a(f"ds_read_b32 v{STV+12}, v{CADDR+k} offset:{START}\ns_waitcnt lgkmcnt(0)")
        place(k, STV+12, EOFF+u)
    steps("P", put_step)
    arrive(1)
    stamp(a, 5, "5")
    lane_setup()
    stamp(a, 6, "5")
    if OPT.get("order", "1") == "1":
        a(f"""
        v_mov_b32 v{vt+6}, {FLG+4}
        K2_SPINB:
        ds_read2_b32 {vr(vt+8,2)}, v{vt+6} offset0:0 offset1:1
        s_waitcnt lgkmcnt(0)
        v_min_u32 v{vt+7}, v{vt+8}, v{vt+9}
        v_cmp_gt_u32 vcc, 4, v{vt+7}
        s_cbranch_vccnz K2_SPINB
        """)
    else: spin(1, "B", add=False)
    stamp(a, 3); stamp(a, 7, "5")
    a("K2_REFILLP:")
    fill("P")
    stamp(a, 4)
    a(f"s_cmp_lg_u32 s{sslow}, 0\ns_cbranch_scc1 K2_GOP")
    zero_acc()
    ap_addr()
    spin(3, "D", add=False)
    ap_read()
    main_loop("P")
    a("K2_GIVEUP:")
    arrive(1)
    spin(3, "E", add=False)
    a("s_branch K2_SLOW")
    assert XL % 256 == 0
    XF = G; WT = [ACC, raw(0, 0)]
    accs = [[[raw(1,0)+8*nb, raw(1,0)+8*nb+4] for nb in range(3)], [[raw(1,1)+8, raw(1,1)+12], [SP, SP+4], [SP+8, ADDR]]]
    a(f"""
    K2_LOADER:
    v_lshrrev_b32 v{vt+4}, 4, v{vt}
    s_lshl_b32 s{st1}, s{sg}, 2
    v_add_u32 v{vA1}, s{st1}, v{vt+4}
    v_and_b32 v{vt+5}, 15, v0
    v_xor_b32 v{vA1}, v{vA1}, v{vt+5}
    v_lshlrev_b32 v{vA1}, 4, v{vA1}
    v_lshl_add_u32 v{vA1}, v{vt+4}, 8, v{vA1}
    s_lshl_b32 s{st1}, s{sg}, 10
    """)
    if OPT.get("nobulk"):
        ld_wc()
        a.ext(common1(XR+1, vt))
        a(f"v_and_b32 v{vt+2}, 255, v0\nv_lshlrev_b32 v{vt+2}, 4, v{vt+2}")
        for j in range(4): a(f"v_mov_b32 v{EA+j}, 0")
        for j in range(4): a(f"ds_write_b128 v{vt+2}, {vr(EA,4)} offset:{APL+4096*j}")
        arrive(2); arrive(3)
        a("s_branch K2_NOBULK")
    for k in range(3):
        a(f"""
        s_add_u32 m0, s{st1}, {XL+4096*k}
        s_add_u32 s{st2}, s{st1}, {4096*k}
        buffer_load_dwordx4 v{vA1}, {sr(sX,4)}, s{st2} offen lds
        """)
    stamp(a, 1, "6")
    srot = sk
    a(f"s_lshl_b32 s{slut}, s{sg}, 13\ns_lshr_b32 s{srt}, s2, 3")
    for j in range(4):
        a(f"s_add_u32 s{srot+j}, s{srt}, {j}\ns_and_b32 s{srot+j}, s{srot+j}, 3\ns_lshl_b32 s{srot+j}, s{srot+j}, 10\ns_add_u32 s{st2}, s{slut}, s{srot+j}")
        for m in range(2):
            for hf in range(2):
                a(f"buffer_load_dwordx4 {vr(WT[m]+16*hf+4*j,4)}, v{vA2}, {sr(sWT,4)}, s{st2} offen")
                if (m, hf) != (1, 1): a(f"s_add_u32 s{st2}, s{st2}, {4096 if hf == 0 else 32768-4096}")
    stamp(a, 2, "6")
    a(f"""
    s_lshl_b32 s{st0}, s{sg}, 12
    s_add_u32 m0, s{st0}, {LUTL + 7*1024}
    s_add_u32 s{st2}, s{st0}, {LUT_OFF - WT_OFF + 7*1024}
    """)
    for j in range(4): a(f"buffer_load_dwordx4 v{vA2}, {sr(sWT,4)}, s{st2} offen offset:{1024*j} lds")
    a(f"""
    s_mul_i32 s{st0}, s{sg}, 3072
    s_add_u32 m0, s{st0}, {LUTL + 39*1024}
    s_add_u32 s{st2}, s{st0}, {LUT_OFF - WT_OFF + 39*1024}
    """)
    for j in range(3): a(f"buffer_load_dwordx4 v{vA2}, {sr(sWT,4)}, s{st2} offen offset:{1024*j} lds")
    a(f"""
    s_and_b32 s{st0}, s{sg}, 1
    s_lshl_b32 s{st0}, s{st0}, 15
    s_add_u32 m0, s{st0}, {LUTL + 31*1024}
    s_add_u32 s{st2}, s{st0}, {LUT_OFF - WT_OFF + 31*1024}
    buffer_load_dwordx4 v{vA2}, {sr(sWT,4)}, s{st2} offen lds
    """)
    ld_wc()
    stamp(a, 3, "6")
    a(f"""
    s_waitcnt vmcnt(26)
    """)
    arrive(2)
    a(f"""
    v_mov_b32 v{vt+8}, v{vt}
    v_and_b32 v{vt}, 15, v0
    v_bfe_u32 v{vt+1}, v0, 4, 2
    v_xor_b32 v{vt+2}, v{vt}, v{vt+1}
    v_lshlrev_b32 v{vt+2}, 4, v{vt+2}
    v_lshl_add_u32 v{vt+2}, v{vt}, 8, v{vt+2}
    v_add_u32 v{vt+2}, {XL}, v{vt+2}
    v_mul_u32_u24 v{vt}, {ROWP}, v{vt}
    """)
    stamp(a, 2); stamp(a, 5, "6")
    spin(2, "C", add=False)
    stamp(a, 6, "6")
    for s in range(4):
        a(f"s_lshr_b32 s{st0}, s{srot+s}, 4\nv_xor_b32 v{vt+3}, s{st0}, v{vt+2}")
        for nb in range(3):
            a(f"ds_read_b128 {vr(XF+16*nb+4*s,4)}, v{vt+3} offset:{4096*nb}")
    a(f"""
    s_lshr_b32 s{st0}, s{sg}, 1
    s_lshl_b32 s{st0}, s{st0}, 7
    s_and_b32 s{st1}, s{sg}, 1
    s_lshl_b32 s{st1}, s{st1}, 5
    s_add_u32 s{st0}, s{st0}, s{st1}
    v_lshl_add_u32 v{vt+4}, v{vt+1}, 3, v{vt}
    v_add_u32 v{vt+4}, s{st0}, v{vt+4}
    s_lshl_b32 s{st0}, s{sg}, 6
    v_lshl_add_u32 v{vt+5}, v{vt+1}, 3, v{vt}
    v_add_u32 v{vt+5}, s{st0}, v{vt+5}
    """)
    def mm1(m, s):
        return [f"v_mfma_f32_16x16x32_bf16 {vr(accs[m][nb][ab], 4)}, {vr(WT[m]+16*ab+4*s,4)}, {vr(XF+16*nb+4*s,4)}, {'0' if s == 0 else vr(accs[m][nb][ab], 4)}"
                for nb in range(3) for ab in range(2)]
    outA = []
    for nb in range(3):
        al, be = accs[0][nb]; o = EA+ (0 if nb != 1 else 4)
        for i in range(4): outA += [f"v_mul_f32 v{al+i}, s{cnl2e}, v{al+i}", f"v_mul_f32 v{be+i}, s{cnl2e}, v{be+i}"]
        outA += [f"v_cvt_pk_bf16_f32 v{o}, v{al}, v{al+2}", f"v_cvt_pk_bf16_f32 v{o+1}, v{be}, v{be+2}",
                 f"v_cvt_pk_bf16_f32 v{o+2}, v{al+1}, v{al+3}", f"v_cvt_pk_bf16_f32 v{o+3}, v{be+1}, v{be+3}",
                 f"ds_write_b64 v{vt+4}, {vr(o,2)} offset:{APL+16*ROWP*nb}", f"ds_write_b64 v{vt+4}, {vr(o+2,2)} offset:{APL+16*ROWP*nb+64}"]
    NPF = int(OPT.get("tpf", "0"))
    if NPF:
        srd(a, sS, 14, T_OFF, N*TS)
        a(f"""
        s_bfe_u32 s{st0}, s2, 0x50003
        s_lshl_b32 s{st0}, s{st0}, 2
        s_add_u32 s{st0}, s{st0}, s{sg}
        s_lshl_b32 s{st0}, s{st0}, 13
        v_lshlrev_b32 v{vt+9}, 7, v{vt+8}
        """)
        for j in range(NPF):
            a(f"buffer_load_dword v{vt+10}, v{vt+9}, {sr(sS,4)}, s{st0} offen")
            if j+1 < NPF: a(f"s_add_u32 s{st0}, s{st0}, {1 << 20}")
    g = []; cm = common1(XR+1, vt+8); k = 0
    for s in range(4):
        g.append(f"s_waitcnt vmcnt({22-4*s+NPF}) lgkmcnt({9-3*s})")
        for x in mm1(0, s) + (mm1(1, s) if s < 3 else []):
            g.append(x); g += cm[k:k+3]; k += 3
    assert k >= len(cm)
    k = 0
    for j, x in enumerate(mm1(1, 3)):
        g.append(x)
        if j >= 2: g += outA[k:k+3]; k += 3
    g += outA[k:]
    for nb in range(3):
        al, be = accs[1][nb]; o = XF+4*nb
        g += [f"v_cvt_pk_bf16_f32 v{o}, v{al}, v{al+1}", f"v_cvt_pk_bf16_f32 v{o+1}, v{al+2}, v{al+3}",
              f"v_cvt_pk_bf16_f32 v{o+2}, v{be}, v{be+1}", f"v_cvt_pk_bf16_f32 v{o+3}, v{be+2}, v{be+3}",
              f"ds_write_b64 v{vt+5}, {vr(o,2)} offset:{UL+16*ROWP*nb}", f"ds_write_b64 v{vt+5}, {vr(o+2,2)} offset:{UL+16*ROWP*nb+32}"]
    asmsim.check_hazards(g, "gemm")
    a.ext(g)
    a(f"s_waitcnt vmcnt({NPF})")
    arrive(3)
    a("K2_NOBULK:")
    stamp(a, 3); stamp(a, 7, "6")
    init_addr()
    spin(1, "F", add=False)
    a(f"""
    v_mov_b32 v{vt+2}, {INCL+60}
    ds_read2_b32 {vr(vt+4,2)}, v{vt+2} offset0:0 offset1:16
    ds_read2_b32 {vr(vt+6,2)}, v{vt+2} offset0:32 offset1:48
    s_waitcnt lgkmcnt(0)
    """)
    for g_ in range(4): a(f"v_readfirstlane_b32 s{sk+g_}, v{vt+4+g_}")
    a(f"""
    s_max_u32 s{st0}, s{sk}, s{sk+1}
    s_max_u32 s{st1}, s{sk+2}, s{sk+3}
    s_max_u32 s{st0}, s{st0}, s{st1}
    s_cmp_gt_u32 s{st0}, {CAPG*4}
    s_cbranch_scc1 K2_SLOW
    """)
    a("s_setprio 1")
    rank_groups()
    lane_setup()
    a("K2_REFILLC:")
    fill("C")
    a(f"s_cmp_lg_u32 s{sslow}, 0\ns_cbranch_scc1 K2_GOC")
    zero_acc()
    ap_addr()
    spin(3, "G", add=False)
    ap_read()
    stamp(a, 4)
    a("s_branch K2_GOC")
    a("K2_EMPTY:"); a.ext(ld_xr()); a("s_branch K2_DONE")
    for n in spins:
        a(f"""
        K2_SP{n}:
        ds_read_b32 v{vEa}, v{vPG}
        s_waitcnt lgkmcnt(0)
        v_cmp_gt_u32 vcc, s{sneed}, v{vEa}
        s_cbranch_vccnz K2_SP{n}
        s_branch K2_OK{n}
        """)
    main_loop("C")
    a(f"""
    K2_DONE:
    s_cmp_lg_u32 s{sslow}, 0
    s_cbranch_scc1 K2_ROUND
    K2_EPI:
    s_waitcnt vmcnt(0) lgkmcnt(0)
    """)
    stamp(a, 6); stamp(a, 6, "3")
    if OPT.get("prof") == "3": a("s_memtime s[88:89]")
    T0 = G
    if OPT.get("pke", "1") == "1":
        a(f"s_mov_b32 s{st0+1}, 0x358637bd\ns_mov_b32 s{st0+2}, 0x358637bd")
        for b in range(2):
            for r in range(6):
                u, x = T0+12*b+r, T0+12*b+6+r
                if b == 0: a(f"v_lshlrev_b32 v{u}, 16, v{UR+r}\nv_lshlrev_b32 v{x}, 16, v{XR+r}")
                else: a(f"v_and_b32 v{u}, 0xffff0000, v{UR+r}\nv_and_b32 v{x}, 0xffff0000, v{XR+r}")
        for b in range(2):
            for r in range(0, 6, 2): a(f"v_pk_add_f32 {vr(ACC+16*b+r,2)}, {vr(ACC+16*b+r,2)}, {sr(st0+1,2)}")
            for r in range(6): a(f"v_rcp_f32 v{ACC+16*b+r}, v{ACC+16*b+r}")
        for b in range(2):
            for r in range(0, 6, 2): a(f"v_pk_fma_f32 {vr(T0+12*b+r,2)}, {vr(ACC+16*b+8+r,2)}, {vr(ACC+16*b+r,2)}, {vr(T0+12*b+r,2)}")
        for b in range(2):
            for r in range(6): a(f"v_max_f32 v{T0+12*b+r}, 0, v{T0+12*b+r}")
        for b in range(2):
            for r in range(0, 6, 2): a(f"v_pk_add_f32 {vr(T0+12*b+r,2)}, {vr(T0+12*b+r,2)}, {vr(T0+12*b+6+r,2)}")
    else:
        for b in range(2):
            for r in range(6):
                a(f"v_add_f32 v{ACC+16*b+r}, 0x358637bd, v{ACC+16*b+r}")
            for r in range(6):
                a(f"v_rcp_f32 v{ACC+16*b+r}, v{ACC+16*b+r}")
            for r in range(6):
                u, x = T0+12*b+r, T0+12*b+6+r
                if b == 0: a(f"v_lshlrev_b32 v{u}, 16, v{UR+r}\nv_lshlrev_b32 v{x}, 16, v{XR+r}")
                else: a(f"v_and_b32 v{u}, 0xffff0000, v{UR+r}\nv_and_b32 v{x}, 0xffff0000, v{XR+r}")
            for r in range(6):
                u, x = T0+12*b+r, T0+12*b+6+r
                a(f"v_fmac_f32 v{u}, v{ACC+16*b+8+r}, v{ACC+16*b+r}\nv_max_f32 v{u}, 0, v{u}\nv_add_f32 v{u}, v{u}, v{x}")
    a(f"v_lshl_or_b32 v{vO2}, v{vH16}, 27, v{vO}")
    WTH = int(OPT.get("wth", "1275"))
    def outs(fl):
        for r in range(6):
            a(f"v_cvt_pk_bf16_f32 v{SP+r}, v{T0+r}, v{T0+12+r}")
            a(f"buffer_store_dword v{SP+r}, v{vO if r < 4 else vO2}, {sr(sO,4)}, 0 offen offset:{256*rowoff(r)} {fl}")
    if WTH:
        a(f"s_cmp_gt_u32 s{stot}, {4*WTH}\ns_cbranch_scc1 K2_PLAIN")
        outs("sc1")
        a("s_branch K2_OUT\nK2_PLAIN:")
    outs(OPT.get('st_o', ''))
    a("K2_OUT:")
    stamp(a, 7)
    stamp_out(a, 1, 14, sw, 2)
    a("K2_END:\ns_endpgm")

    a("K2_SLOW:")
    srd(a, sS, 8, None, E*4)
    srd(a, sD, 10, None, E*4)
    a(f"""
    s_mov_b32 s{sslow}, 1
    s_mov_b32 s{cm10}, {-GN}
    """)
    a("s_waitcnt vmcnt(0) lgkmcnt(0)\ns_barrier")
    zero_acc(); lane_setup(); ap_addr(); ap_read()
    a(f"""
    K2_ROUND:
    s_cmp_ge_u32 s{sround}, {E//RND}
    s_cbranch_scc1 K2_EPI
    s_mul_i32 s{st0}, s{sround}, {RND}
    s_add_u32 s{sround}, s{sround}, 1
    v_add_u32 v{EOFF}, s{st0}, v0
    v_lshlrev_b32 v{vt}, 2, v{EOFF}
    buffer_load_dword v{REC}, v{vt}, {sr(sD,4)}, 0 offen
    buffer_load_dword v{REC+1}, v{vt}, {sr(sS,4)}, 0 offen
    v_lshlrev_b32 v{EOFF}, 5, v{EOFF}
    v_and_b32 v{vt}, 63, v0
    v_lshlrev_b32 v{vt}, 3, v{vt}
    v_mov_b32 v{vt+4}, 0
    v_mov_b32 v{vt+5}, 0
    s_waitcnt lgkmcnt(0)
    s_barrier
    ds_write_b64 v{vt}, {vr(vt+4,2)} offset:{CNT}
    v_mov_b32 v{vt+3}, 4
    s_waitcnt vmcnt(0) lgkmcnt(0)
    s_barrier
    """)
    rec_fields(a, REC, REC+2, vt, cm40, cm10)
    a(f"""
    v_cmp_eq_u32 vcc, s2, v{REC+2}
    v_lshl_or_b32 v{REC}, v{REC+1}, 16, v{REC}
    {caddr(0)}
    s_mov_b64 s[78:79], vcc
    v_cmp_gt_u32 vcc, {RND}, v0
    s_and_b64 s[78:79], s[78:79], vcc
    s_mov_b64 exec, s[78:79]
    ds_add_rtn_u32 v{RANK}, v{CADDR}, v{vt+3} offset:{CNT}
    s_mov_b64 exec, -1
    s_waitcnt lgkmcnt(0)
    s_barrier
    """)
    scan(False)
    a(f"""
    s_mov_b64 exec, s[78:79]
    ds_read_b32 v{STV}, v{CADDR} offset:{START}
    s_waitcnt lgkmcnt(0)
    """)
    place(0, STV, EOFF)
    a(f"""
    s_mov_b64 exec, -1
    """)
    lane_setup()
    a(f"""
    s_waitcnt lgkmcnt(0)
    s_barrier
    s_cmp_eq_u32 s{sfh}, 0
    s_cbranch_scc1 K2_REFILLP
    s_branch K2_REFILLC
    K2_CODE_END:
    """)
    return a.text(), kd("k2_kernel", 256, 102)

KE_PROF = f"""
    s_memrealtime s[8:9]
    s_load_dwordx2 s[4:5], s[0:1], 88
    s_waitcnt lgkmcnt(0)
    s_add_u32 s4, s4, {PROF_OFF + 0x200000}
    s_addc_u32 s5, s5, 0
    s_mov_b32 s6, 4
    s_mov_b32 s7, 0x20000
    v_mov_b32 v1, s8
    v_lshlrev_b32 v0, 2, v0
    buffer_store_dword v1, v0, s[4:7], 0 offen
"""
def gen_kr():
    a = Asm()
    a(f"""
    kr_kernel:
    s_cmp_ge_u32 s2, 1
    s_cbranch_scc1 KR_END
    s_load_dwordx4 s[4:7], s[0:1], 80
    s_waitcnt lgkmcnt(0)
    s_add_u32 s8, s6, {PROF_OFF}
    s_addc_u32 s9, s7, 0
    s_mov_b32 s10, 0x200000
    s_mov_b32 s11, 0x20000
    s_mov_b32 s6, 256
    s_mov_b32 s7, 0x20000
    v_cmp_gt_u32 vcc, 250, v0
    s_and_saveexec_b64 s[12:13], vcc
    v_lshlrev_b32 v1, 10, v0
    v_mov_b32 v3, 0
    """)
    sel = [(0, 8, 0, 1), (0, 8, 0, 0), (0, 8, 2, 0), (0, 8, 3, 0), (0, 8, 5, 0), (0, 8, 8, 0),
           (1, 8, 0, 1), (1, 8, 0, 0), (1, 8, 2, 0), (1, 8, 3, 0), (1, 8, 5, 1), (1, 8, 5, 0), (1, 8, 6, 1), (1, 8, 6, 0), (1, 8, 8, 0)]
    w0 = 0
    if OPT.get("krsel"):
        w0, st_, mn_ = [int(x) for x in OPT["krsel"].split(",")]
        sel = [(1, 4, 0, 1), (1, 4, st_, mn_)]
    for j, (kn, nw, st, mn) in enumerate(sel):
        a(f"s_mov_b32 s14, {kn*0x100000 + 64*w0}")
        for w in range(nw): a(f"buffer_load_dword v{10+w}, v1, s[8:11], s14 offen offset:{64*w+4*st}")
        a("s_waitcnt vmcnt(0)")
        if mn:
            for w in range(nw): a(f"v_not_b32 v{10+w}, v{10+w}")
        for w in range(1, nw): a(f"v_max_u32 v10, v10, v{10+w}")
        a(f"buffer_atomic_umax v10, v3, s[4:7], 0 offen offset:{4*j}\ns_waitcnt vmcnt(0)")
    if OPT.get("iv"):
        ja, jb, k = [int(x) for x in OPT["iv"].split(",")]
        a(f"""
        s_barrier
        buffer_load_dword v10, v3, s[4:7], 0 offen offset:{4*ja} sc0 sc1
        buffer_load_dword v11, v3, s[4:7], 0 offen offset:{4*jb} sc0 sc1
        s_waitcnt vmcnt(0)
        v_readfirstlane_b32 s16, v10
        v_readfirstlane_b32 s17, v11
        """)
        if sel[ja][3]: a("s_not_b32 s16, s16")
        if sel[jb][3]: a("s_not_b32 s17, s17")
        a(f"""
        s_sub_u32 s16, s16, s17
        s_min_u32 s16, s16, 10000
        s_mul_i32 s16, s16, {k}
        s_memrealtime s[18:19]
        s_waitcnt lgkmcnt(0)
        KR_SPIN:
        s_memrealtime s[20:21]
        s_waitcnt lgkmcnt(0)
        s_sub_u32 s20, s20, s18
        s_cmp_lt_u32 s20, s16
        s_cbranch_scc1 KR_SPIN
        """)
    a("KR_END:\ns_endpgm")
    return a.text()

DOC = """;
; k1: bins the edges by destination (128 chunks x 256 bins, 32 slots a segment), builds the node table
;     T = (x@w_v : -log2e * x@w_b) as bf16 pairs, MFMA-ready weight fragments and a sigmoid table indexed by f16 bits.
;     rescan of the raw edge list.
"""
def main():
    k1, d1 = gen_k1(); k2, d2 = gen_k2()
    ref = open("standalone__edge_featured_mpnn_gatedgcn__graph.s.ref").read().split("\n")
    out = "\n".join(ref[:13]) + "\n"
    for ch in OPT.get("list", "12"):
        if ch == "1": out += f"; @launch kernel=k1_kernel grid=({2*NCH},1,1) block=(512,1,1) lds={K1_LDS}\n"
        if ch == "2": out += f"; @launch kernel=k2_kernel grid=({NBIN},1,1) block=(512,1,1) lds={K2_LDS}\n"
        if ch == "r": out += "; @launch kernel=kr_kernel grid=(1,1,1) block=(256,1,1) lds=0\n"
        if ch == "e": out += "; @launch kernel=ke_kernel grid=(1,1,1) block=(64,1,1) lds=0\n"
    out += DOC
    out += '.amdgcn_target "amdgcn-amd-amdhsa--gfx950"\n.text\n'
    for n, k in (("k1_kernel", k1), ("k2_kernel", k2)):
        out += f".globl {n}\n.p2align 8\n.type {n},@function\n" + k
    if "e" in OPT.get("list", ""): out += ".globl ke_kernel\n.p2align 8\n.type ke_kernel,@function\nke_kernel:\n" + (KE_PROF if OPT.get("prof") else "") + "    s_endpgm\n"
    if "r" in OPT.get("list", ""): out += ".globl kr_kernel\n.p2align 8\n.type kr_kernel,@function\n" + gen_kr()
    out += '.section .rodata,"a"\n.p2align 6\n' + d1.lstrip("\n") + '.p2align 6\n' + d2.lstrip("\n")
    if "e" in OPT.get("list", ""): out += '.p2align 6\n' + kd("ke_kernel", 8, 16).lstrip("\n")
    if "r" in OPT.get("list", ""): out += '.p2align 6\n' + kd("kr_kernel", 32, 32).lstrip("\n")
    open(sys.argv[1], "w").write(out)

if __name__ == "__main__":
    main()
```

```python
import struct, sys
import asmsim

N = 10000; E = 320000
NCH = 128; CS = 2500
NBIN = 256; GN = 10
BINK, BINC, BINS = 53687, 52500, 21
assert all((625*b_ >> 4) <= d_ < (625*(b_+1) >> 4) for d_ in range(N) for b_ in [(d_*BINK + BINC) >> BINS])
CAP = 32
TS = int(([a for a in sys.argv if a.startswith('ts=')] or ['ts=512'])[0][3:])
T_OFF = 0x1000000
REC_OFF = 0x700000
WT_OFF = 0xB00000
LUT_OFF = 0xB20000
PROF_OFF = 0xF000000
NL2E = struct.unpack("<I", struct.pack("<f", -1.4426950408889634))[0]

def bf(x): return struct.unpack("<I", struct.pack("<f", x))[0] >> 16

OPT = dict(st_r="sc1", st_t="sc1")
for a in sys.argv[2:]:
    k, v = a.split("=", 1); OPT[k] = v

class Asm:
    def __init__(self): self.l = []
    def __call__(self, s):
        for x in s.strip("\n").split("\n"):
            x = x.strip()
            if not x: continue
            if x.startswith(";"): x = "s_nop 0"
            self.l.append(x if x.endswith(":") else "    " + x)
    def ext(self, lst):
        for x in lst: self(x)
    def text(self): return "\n".join(self.l) + "\n"

def stamp(a, i, lvl="1"):
    if OPT.get("prof") and (i in (0, 8) or OPT["prof"] == lvl): a(f"s_memrealtime s[{84+2*i}:{85+2*i}]")
def stamp_out(a, kern, wsreg, sw, vtmp):
    if not OPT.get("prof"): return
    if OPT.get("xcc"): a("s_getreg_b32 s98, hwreg(HW_REG_XCC_ID)")
    if not OPT.get("nowait"): a("s_waitcnt vmcnt(0)")
    stamp(a, 8)
    a(f"""
    s_lshl_b32 s4, s2, 4
    s_add_u32 s4, s4, s{sw}
    s_lshl_b32 s4, s4, 6
    s_add_u32 s4, s4, {PROF_OFF + kern*0x100000}
    s_add_u32 s4, s{wsreg}, s4
    s_addc_u32 s5, s{wsreg+1}, 0
    s_mov_b32 s6, 64
    s_mov_b32 s7, 0x20000
    s_waitcnt lgkmcnt(0)
    """)
    if kern == 1 and OPT["prof"] == "7":
        a(f"v_mov_b32 v{vtmp}, v251\nv_writelane_b32 v{vtmp}, s84, 0\ns_mov_b32 m0, s98\ns_add_u32 s98, s98, 1\nv_writelane_b32 v{vtmp}, s86, m0\ns_mov_b32 m0, s98\ns_nop 3\nv_writelane_b32 v{vtmp}, s100, m0\nv_writelane_b32 v{vtmp}, s98, 15")
    else:
        for i in range(9): a(f"v_writelane_b32 v{vtmp}, s{84+2*i}, {i}")
    a(f"""
    v_mbcnt_lo_u32_b32 v{vtmp+1}, -1, 0
    v_mbcnt_hi_u32_b32 v{vtmp+1}, -1, v{vtmp+1}
    v_lshlrev_b32 v{vtmp+1}, 2, v{vtmp+1}
    buffer_store_dword v{vtmp}, v{vtmp+1}, s[4:7], 0 offen
    """)

def vr(b, n): return f"v[{b}:{b+n-1}]"
def sr(b, n): return f"s[{b}:{b+n-1}]"

def srd(a, d, base, add=None, size=None, w3="0x20000", hi_or=None):
    if add is None:
        a(f"s_mov_b32 s{d}, s{base}\ns_mov_b32 s{d+1}, s{base+1}")
    else:
        a(f"s_add_u32 s{d}, s{base}, {add}\ns_addc_u32 s{d+1}, s{base+1}, 0")
    if hi_or: a(f"s_or_b32 s{d+1}, s{d+1}, {hi_or}")
    a(f"s_mov_b32 s{d+2}, {size}\ns_mov_b32 s{d+3}, {w3}")

def kd(name, vgpr, sgpr):
    return f"""
.amdhsa_kernel {name}
  .amdhsa_next_free_vgpr {vgpr}
  .amdhsa_next_free_sgpr {sgpr}
  .amdhsa_accum_offset {(vgpr+3)//4*4}
  .amdhsa_group_segment_fixed_size 0
  .amdhsa_kernarg_size 96
  .amdhsa_user_sgpr_count 2
  .amdhsa_user_sgpr_kernarg_segment_ptr 1
  .amdhsa_system_sgpr_workgroup_id_x 1
.end_amdhsa_kernel
"""

def pair_of_lane(a, d, t):
    a(f"""
    v_and_b32 v{d}, 17, v0
    v_lshlrev_b32 v{d}, 2, v{d}
    v_bfe_u32 v{t}, v0, 1, 1
    v_lshl_add_u32 v{d}, v{t}, 5, v{d}
    v_bfe_u32 v{t}, v0, 2, 2
    v_lshl_add_u32 v{d}, v{t}, 3, v{d}
    """)

def rec_fields(a, vd, vbin, vtmp, sm40, sm10):
    a(f"""
    v_mul_u32_u24 v{vbin}, {BINK}, v{vd}
    v_add_u32 v{vbin}, {BINC}, v{vbin}
    v_lshrrev_b32 v{vbin}, {BINS}, v{vbin}
    v_mul_u32_u24 v{vtmp}, 625, v{vbin}
    v_lshrrev_b32 v{vtmp}, 4, v{vtmp}
    v_sub_u32 v{vd}, v{vd}, v{vtmp}
    v_mul_u32_u24 v{vtmp}, 26, v{vd}
    v_lshrrev_b32 v{vtmp}, 8, v{vtmp}
    v_mad_i32_i24 v{vd}, v{vtmp}, s{sm10}, v{vd}
    v_lshl_or_b32 v{vd}, v{vtmp}, 30, v{vd}
    """)

K1_CNT = 0; K1_STG = 1024; K1_W = 34816; K1_X = K1_W + 32768; K1_LDS = K1_X + (28672 if 'rows' in OPT else 24576)
RLO, RHI = [int(x_) for x_ in OPT.get('rows', '96,64').split(',')]
def gen_k1():
    a = Asm()
    sS, sD, sW1, sW2, sX, sR, sT, sP = 24, 28, 32, 36, 40, 44, 48, 72
    sw, st0, st1, st2, snb, sfb, sch, shf, srow, snr = 52, 53, 54, 55, 56, 57, 58, 69, 71, 76
    c8192, cm10, cnl2e, csign, cmag, ctso, cp0 = 60, 62, 63, 64, 65, 66, 67
    vD, vS, vB, vSL, vt = 4, 12, 20, 28, 36
    vg = 56; vTR, vXA, vST = 64, 65, 66; vWC = 72
    vW, vX, vA, vO = 96, 160, 176, 192
    def W(m, ab, s): return vW + 32*m + 16*ab + 4*s
    a("k1_kernel:")
    a(f"s_cmp_ge_u32 s2, {2*NCH}\ns_cbranch_scc1 K1_END")
    stamp(a, 0)
    a(f"""
    s_load_dwordx16 s[4:19], s[0:1], 0
    s_load_dwordx2 s[20:21], s[0:1], 64
    s_load_dwordx2 s[22:23], s[0:1], 88
    """)
    if OPT.get("pf", "4") in "34":
        frm = "k2_kernel" if OPT.get("pf", "4") == "3" else "K1_PC"
        a(f"""
        s_cmp_lt_u32 s2, {NCH}
        s_cbranch_scc0 K1_NOPC
        s_getpc_b64 {sr(sP,2)}
        K1_PC:
        s_add_u32 s{sP}, s{sP}, {frm}-K1_PC
        s_addc_u32 s{sP+1}, s{sP+1}, 0
        s_mov_b32 s{sP+2}, K2_CODE_END-{frm}
        s_mov_b32 s{sP+3}, 0x20000
        s_bfe_u32 s{st0}, s2, 0x40003
        s_lshl_b32 s{st0}, s{st0}, 12
        v_lshlrev_b32 v33, 7, v0
        v_cmp_gt_u32 vcc, 32, v0
        s_and_saveexec_b64 s[80:81], vcc
        s_cbranch_execz K1_NOPC0
        buffer_load_dword v34, v33, {sr(sP,4)}, s{st0} offen
        K1_NOPC0:
        s_mov_b64 exec, s[80:81]
        K1_NOPC:
        """)
    if OPT.get("pf1", "0") == "1":
        a(f"""
        s_getpc_b64 {sr(sP,2)}
        K1_PC1:
        s_mov_b32 s{sP+2}, K1_END-K1_PC1
        s_mov_b32 s{sP+3}, 0x20000
        v_lshlrev_b32 v33, 7, v0
        buffer_load_dword v34, v33, {sr(sP,4)}, 0 offen
        """)
    a(f"""
    v_lshrrev_b32 v2, 6, v0
    v_lshlrev_b32 v1, 2, v0
    v_readfirstlane_b32 s{sw}, v2
    v_lshlrev_b32 v2, 4, v0
    s_mov_b32 s{c8192}, 8192
    s_sub_u32 s{sch}, s2, {NCH}
    s_and_b32 s{shf}, s2, 1
    v_and_b32 v{vg}, 63, v0
    v_lshrrev_b32 v{vg+1}, 4, v{vg}
    v_and_b32 v{vg+2}, 15, v0
    s_and_b32 s{st0}, s{sw}, 3
    s_lshl_b32 s{st0}, s{st0}, 2
    v_add_u32 v{vg+3}, s{st0}, v{vg+1}
    v_xor_b32 v{vg+3}, v{vg+3}, v{vg+2}
    v_lshlrev_b32 v{vg+3}, 4, v{vg+3}
    v_lshl_add_u32 v{vg+3}, v{vg+1}, 8, v{vg+3}
    v_lshrrev_b32 v{vg+4}, 3, v{vg}
    v_and_b32 v{vg+5}, 2, v{vg+4}
    s_lshr_b32 s{st0}, s2, 3
    s_add_u32 s{st0}, s{st0}, s{sw}
    s_and_b32 s{st0}, s{st0}, 1
    s_lshl_b32 s{st0}, s{st0}, 2
    v_and_b32 v{vg+6}, 7, v0
    v_xor_b32 v{vg+5}, v{vg+5}, v{vg+6}
    v_xor_b32 v{vg+5}, s{st0}, v{vg+5}
    v_lshlrev_b32 v{vg+5}, 4, v{vg+5}
    v_lshl_add_u32 v{vg+4}, v{vg+4}, 8, v{vg+5}
    s_lshr_b32 s{st0}, s2, 1
    s_mul_i32 s{srow}, s{st0}, {RLO}
    s_mul_i32 s{st0}, s{st0}, {RHI}
    s_add_u32 s{st0}, s{st0}, {64*(RLO-RHI)}
    s_cmp_lt_u32 s2, {NCH}
    s_cselect_b32 s{srow}, s{srow}, s{st0}
    s_cselect_b32 s{snr}, {RLO}, {RHI}
    s_min_u32 s{srow}, s{srow}, {N}
    s_sub_u32 s{st0}, {N}, s{srow}
    s_min_u32 s{snr}, s{snr}, s{st0}
    s_mul_i32 s{st1}, s{sch}, {CS*4}
    s_cmp_lt_u32 s2, 252
    s_waitcnt lgkmcnt(0)
    s_cselect_b64 {sr(sW1,2)}, s[14:15], s[12:13]
    s_cselect_b64 {sr(sW2,2)}, s[20:21], s[18:19]
    s_cmp_lt_u32 s2, {NCH}
    s_cbranch_scc1 K1_NOIDX
    """)
    srd(a, sD, 10, f"s{st1}", CS*4)
    srd(a, sS, 8, f"s{st1}", CS*4)
    a(f"""
    buffer_load_dwordx4 {vr(vD,4)}, v2, {sr(sD,4)}, 0 offen
    buffer_load_dwordx4 {vr(vS,4)}, v2, {sr(sS,4)}, 0 offen
    buffer_load_dword v{vD+4}, v1, {sr(sD,4)}, s{c8192} offen
    buffer_load_dword v{vS+4}, v1, {sr(sS,4)}, s{c8192} offen
    s_barrier
    K1_NOIDX:
    s_lshl_b32 s{st0}, s{srow}, 8
    s_add_u32 s{sX}, s4, s{st0}
    s_addc_u32 s{sX+1}, s5, 0
    s_lshl_b32 s{sX+2}, s{snr}, 8
    s_mov_b32 s{sX+3}, 0x20000
    s_cmp_lt_u32 s2, 254
    s_cselect_b32 s{sW1+2}, 32768, 0
    s_mov_b32 s{sW1+3}, 0x20000
    s_and_b32 s{st0}, s2, 0xfe
    s_cmp_lg_u32 s{st0}, 252
    s_cselect_b32 s{sW2+2}, 32768, 0
    s_mov_b32 s{sW2+3}, 0x20000
    s_lshl_b32 s{shf+1}, s{shf}, 7
    s_lshl_b32 s{st1}, s{sw}, 10
    """)
    def dma_x(k):
        a(f"s_add_u32 m0, s{st1}, {K1_X + 8192*k}\ns_add_u32 s{st2}, s{st1}, {8192*k}\nbuffer_load_dwordx4 v{vg+3}, {sr(sX,4)}, s{st2} offen lds")
    def stage_w():
        a(f"s_lshr_b32 s{st2}, s2, 3\ns_add_u32 s{st2}, s{st2}, s{sw}\ns_and_b32 s{st2}, s{st2}, 15")
        for k in range(2):
            a(f"""
            s_lshl_b32 s{st0}, s{st2}, 10
            s_add_u32 m0, s{st0}, {K1_W}
            s_lshl_b32 s{st1}, s{st2}, 11
            s_add_u32 s{st1}, s{st1}, s{shf+1}
            buffer_load_dwordx4 v{vg+4}, {sr(sW1,4)}, s{st1} offen lds
            s_add_u32 m0, s{st0}, {K1_W+16384}
            s_xor_b32 s{st2}, s{st2}, 8
            buffer_load_dwordx4 v{vg+4}, {sr(sW2,4)}, s{st1} offen lds
            """)
    if OPT.get("wt", "0") == "1":
        a(f"""
        s_cmp_eq_u32 s{sw}, 0
        s_cbranch_scc0 K1_NOWT
        s_bfe_u32 s{st0}, s2, 0x40003
        s_lshl_b32 s{st0}, s{st0}, 11
        s_add_u32 s{st0}, s{st0}, s{shf+1}
        v_lshlrev_b32 v33, 8, v0
        s_mov_b64 exec, 0xff
        buffer_load_dword v34, v33, {sr(sW1,4)}, s{st0} offen
        buffer_load_dword v34, v33, {sr(sW2,4)}, s{st0} offen
        s_mov_b64 exec, -1
        K1_NOWT:
        """)
    if OPT.get("lord"):
        a(f"s_sub_u32 s{st0}, s2, {NCH}\ns_cmp_lt_u32 s{st0}, {252-NCH}\ns_cbranch_scc1 K1_HIX")
        if OPT["lord"] == "1":
            stage_w(); a(f"s_lshl_b32 s{st1}, s{sw}, 10"); dma_x(0); dma_x(1); dma_x(2)
        else:
            dma_x(0); stage_w(); a(f"s_lshl_b32 s{st1}, s{sw}, 10"); dma_x(1); dma_x(2)
        a("s_branch K1_LATER\nK1_HIX:")
        dma_x(0); dma_x(1)
    else:
        dma_x(0); dma_x(1)
        a(f"s_sub_u32 s{st0}, s2, {NCH}\ns_cmp_lt_u32 s{st0}, {252-NCH}\ns_cbranch_scc1 K1_LATER")
        dma_x(2)
        if RLO > 96: a(f"s_cmp_lt_u32 s{sw}, 4\ns_cbranch_scc0 K1_X3"); dma_x(3); a("K1_X3:")
        stage_w()
    a(f"""
    K1_LATER:
    s_and_b32 s{sfb}, s{sw}, 1
    s_lshr_b32 s{snb}, s{sw}, 1
    v_bfe_u32 v{vg+5}, v0, 2, 2
    v_bfe_u32 v{vg+6}, v0, 3, 2
    s_lshl_b32 s{st0}, s{sfb}, 1
    v_xor_b32 v{vg+6}, s{st0}, v{vg+6}
    v_and_b32 v{vg+7}, 3, v0
    v_lshlrev_b32 v{vg+7}, 3, v{vg+7}
    v_lshl_add_u32 v{vg+7}, v{vg+6}, 5, v{vg+7}
    v_lshl_add_u32 v{vg+5}, v{vg+1}, 3, v{vg+5}
    v_lshl_add_u32 v{vTR}, v{vg+5}, 7, v{vg+7}
    v_xor_b32 v{vTR+6}, 32, v{vTR}
    v_xor_b32 v{vXA}, v{vg+1}, v{vg+2}
    v_lshlrev_b32 v{vXA}, 4, v{vXA}
    v_lshl_add_u32 v{vXA}, v{vg+2}, 8, v{vXA}
    s_lshl_b32 s{st0}, s{snb}, 12
    s_add_u32 s{st0}, s{st0}, {K1_X}
    v_add_u32 v{vXA}, s{st0}, v{vXA}
    v_xor_b32 v{vXA+2}, 64, v{vXA}
    v_xor_b32 v{vXA+3}, 0x80, v{vXA}
    v_xor_b32 v{vXA+4}, 0xc0, v{vXA}
    v_mul_u32_u24 v{vST}, {TS}, v{vg+2}
    v_lshl_add_u32 v{vST}, v{vg+1}, 4, v{vST}
    s_mul_i32 s{ctso}, s{snb}, {16*TS}
    s_lshl_b32 s{st1}, s{shf}, 8
    s_add_u32 s{ctso}, s{ctso}, s{st1}
    s_lshl_b32 s{st1}, s{sfb}, 6
    s_add_u32 s{ctso}, s{ctso}, s{st1}
    s_mov_b32 s{cnl2e}, {NL2E:#x}
    s_mov_b32 s{csign}, 0x00800000
    s_mov_b32 s{cmag}, 0x7fffffff
    s_mov_b32 s{cp0}, 0x07060100
    s_mov_b32 s{cp0+1}, 0x07060302
    s_mul_i32 s{st0}, s{srow}, {TS}
    s_add_u32 s{st0}, s{st0}, {T_OFF}
    s_mul_i32 s{st1}, s{snr}, {TS}
    """)
    srd(a, sT, 22, f"s{st0}", f"s{st1}")
    stamp(a, 1)
    a(f"s_cmp_lt_u32 s2, {NCH}\ns_cbranch_scc1 K1_NOBIN")
    a(f"""
    v_mov_b32 v{vt}, -1
    v_mov_b32 v{vt+1}, -1
    v_mov_b32 v{vt+2}, -1
    v_mov_b32 v{vt+3}, -1
    v_mov_b32 v{vt+5}, 0
    v_and_b32 v{vt+6}, 0x3fc, v1
    """)
    for k in range(4): a(f"ds_write_b128 v2, {vr(vt,4)} offset:{K1_STG+8192*k}")
    a(f"""
    ds_write_b32 v{vt+6}, v{vt+5} offset:{K1_CNT}
    s_lshl_b32 s{st0}, s{sch}, 7
    s_add_u32 s{st0}, s{st0}, {REC_OFF}
    """)
    srd(a, sR, 22, f"s{st0}", NBIN*NCH*128)
    a(f"s_lshl_b32 s{st0}, s{sch}, 9\ns_add_u32 s{st1}, s{st0}, {LUT_OFF}")
    srd(a, sP, 22, f"s{st1}", 512)
    l0, l1 = vt+10, vt+11
    a(f"""
    v_add_u32 v{l0}, s{st0}, v1
    v_and_b32 v{l1}, 0x7fff, v{l0}
    v_cmp_ne_u32 vcc, 0x7c00, v{l1}
    v_or_b32 v{l1}, 3, v{l0}
    s_nop 0
    v_addc_co_u32 v{l0}, vcc, 0, v{l0}, vcc
    v_cvt_f32_f16 v{l1}, v{l1}
    v_cvt_f32_f16 v{l0}, v{l0}
    v_exp_f32 v{l1}, v{l1}
    v_exp_f32 v{l0}, v{l0}
    v_add_f32 v{l1}, 1.0, v{l1}
    v_add_f32 v{l0}, 1.0, v{l0}
    v_rcp_f32 v{l1}, v{l1}
    v_rcp_f32 v{l0}, v{l0}
    s_mov_b32 s{cm10}, {-GN}
    v_cvt_pk_bf16_f32 v{l0}, v{l0}, v{l1}
    v_mov_b32 v{vt+5}, 1
    v_cmp_gt_u32 vcc, {CS-2048}, v0
    s_mov_b64 s[80:81], vcc
    v_lshrrev_b32 v{vt+7}, 3, v0
    v_and_b32 v{vt+8}, 7, v0
    v_lshlrev_b32 v{vt+9}, 14, v{vt+7}
    v_lshl_add_u32 v{vt+9}, v{vt+8}, 4, v{vt+9}
    v_lshlrev_b32 v{vt+7}, 2, v{vt+7}
    v_cmp_eq_u32 s[82:83], 7, v{vt+8}
    v_and_b32 v{vt+8}, 4, v{vt+8}
    v_lshlrev_b32 v{vt+8}, {2 if OPT.get("half", "0") == "1" else 0}, v{vt+8}
    v_and_b32 v{vt+8}, 16, v{vt+8}
    s_waitcnt lgkmcnt(0)
    s_barrier
    s_cmp_ge_u32 s2, 252
    s_cbranch_scc1 K1_W7
    s_waitcnt vmcnt(2)
    K1_W7:
    s_waitcnt vmcnt(7)
    """)
    stamp(a, 2)
    for r in range(5):
        rec_fields(a, vD+r, vB+r, vt, None, cm10)
        a(f"v_lshlrev_b32 v{vt}, 2, v{vB+r}")
        if r == 4: a("s_mov_b64 exec, s[80:81]")
        a(f"ds_add_rtn_u32 v{vSL+r}, v{vt}, v{vt+5} offset:{K1_CNT}")
        if r == 4: a("s_mov_b64 exec, -1")
    a("s_cmp_ge_u32 s2, 252\ns_cbranch_scc1 K1_NOWC")
    stage_w()
    a(f"""
    s_cmp_eq_u32 s2, 250
    s_cbranch_scc0 K1_NOWC
    """)
    srd(a, sS, 16, None, 4096)
    a(f"""
    v_lshrrev_b32 v{vWC+8}, 5, v{vg}
    """)
    pair_of_lane(a, vWC+9, vWC+10)
    a(f"""
    v_lshl_add_u32 v{vWC+9}, v{vWC+8}, 11, v{vWC+9}
    s_bfe_u32 s{st1}, s{sw}, 0x10001
    s_lshl_b32 s{st1}, s{st1}, 7
    s_lshl_b32 s{st0}, s{sfb}, 1
    s_add_u32 s{st1}, s{st1}, s{st0}
    """)
    for j in range(8): a(f"buffer_load_ushort v{vWC+j}, v{vWC+9}, {sr(sS,4)}, s{st1} offen offset:{256*j}")
    a("K1_NOWC:")
    for r in range(5):
        a(f"v_lshl_or_b32 v{vD+r}, v{vS+r}, 16, v{vD+r}")
        a(f"v_add_u32 v{vS+r}, {r}, v1" if r < 4 else f"v_add_u32 v{vS+r}, 2048, v0")
        a(f"v_lshl_or_b32 v{vD+r}, v{vS+r}, 4, v{vD+r}\nv_lshlrev_b32 v{vB+r}, 7, v{vB+r}")
    for r in range(5):
        a("s_waitcnt lgkmcnt(4)")
        if r == 4: a("s_mov_b64 exec, s[80:81]")
        a(f"""
        v_and_b32 v{vt}, 12, v{vSL+r}
        v_add_u32 v{vB+r}, v{vB+r}, v{vt}
        v_and_b32 v{vt}, 3, v{vSL+r}
        v_lshl_add_u32 v{vB+r}, v{vt}, 4, v{vB+r}
        v_and_b32 v{vt}, 16, v{vSL+r}
        v_lshl_add_u32 v{vB+r}, v{vt}, 2, v{vB+r}
        v_cmpx_gt_u32 vcc, {CAP}, v{vSL+r}
        ds_write_b32 v{vB+r}, v{vD+r} offset:{K1_STG}
        s_mov_b64 exec, -1
        """)
    MB = OPT.get("mb", "1") == "1"
    a(f"s_waitcnt {'vmcnt(0) ' if MB else ''}lgkmcnt(0)\ns_barrier")
    for k in range(4):
        a(f"ds_read_b128 {vr(4+4*k,4)}, v2 offset:{K1_STG+8192*k}\nds_read_b32 v{20+k}, v{vt+7} offset:{K1_CNT+256*k}")
    a(f"""
    v_mov_b32 v{vt+2}, -2
    s_mov_b32 s{st2}, 0
    buffer_store_dword v{l0}, v1, {sr(sP,4)}, 0 offen {OPT['st_r']}
    """)
    stamp(a, 3)
    for k in range(4):
        a(f"""
        s_waitcnt lgkmcnt({6-2*k})
        v_cmp_lt_u32 vcc, {CAP}, v{20+k}
        v_cmp_le_u32 s[78:79], v{vt+8}, v{20+k}
        s_and_b64 vcc, vcc, s[82:83]
        s_nop 0
        v_cndmask_b32 v{7+4*k}, v{7+4*k}, v{vt+2}, vcc
        s_mov_b64 exec, s[78:79]
        buffer_store_dwordx4 {vr(4+4*k,4)}, v{vt+9}, {sr(sR,4)}, s{st2} offen {OPT['st_r']}
        s_mov_b64 exec, -1
        s_add_u32 s{st2}, s{st2}, {64*16384}
        """)
    a(f"""
    {'s_branch K1_STAGED2' if MB else 's_waitcnt vmcnt(5)'}
    {'' if MB else 's_branch K1_STAGED'}
    K1_NOBIN:
    """)
    if OPT.get("pf", "4") == "1":
        a(f"""
        s_getpc_b64 {sr(sP,2)}
        K1_PC:
        s_add_u32 s{sP}, s{sP}, k2_kernel-K1_PC
        s_addc_u32 s{sP+1}, s{sP+1}, 0
        s_mov_b32 s{sP+2}, K2_CODE_END-k2_kernel
        s_mov_b32 s{sP+3}, 0x20000
        s_bfe_u32 s{st0}, s2, 0x40003
        s_lshl_b32 s{st0}, s{st0}, 12
        v_lshlrev_b32 v33, 7, v0
        v_cmp_gt_u32 vcc, 32, v0
        s_and_saveexec_b64 s[80:81], vcc
        s_cbranch_execz K1_NOPC
        buffer_load_dword v34, v33, {sr(sP,4)}, s{st0} offen
        s_mov_b64 exec, s[80:81]
        s_waitcnt vmcnt(1)
        s_branch K1_PCD
        K1_NOPC:
        s_mov_b64 exec, s[80:81]
        s_waitcnt vmcnt(0)
        K1_PCD:
        """)
    else: a("s_waitcnt vmcnt(0)")
    stamp(a, 2); stamp(a, 3)
    a(f"""
    K1_STAGED:
    s_barrier
    K1_STAGED2:
    """)
    stamp(a, 4)
    if OPT.get("pf", "4") == "2":
        assert 64*RLO + 59*RHI >= N
        a(f"""
        s_sub_u32 s{st0}, s2, 246
        s_cmp_lt_u32 s{st0}, 8
        s_cbranch_scc0 K1_NOPC
        s_getpc_b64 {sr(sP,2)}
        K1_PC:
        s_add_u32 s{sP}, s{sP}, k2_kernel-K1_PC
        s_addc_u32 s{sP+1}, s{sP+1}, 0
        s_mov_b32 s{sP+2}, K2_CODE_END-k2_kernel
        s_mov_b32 s{sP+3}, 0x20000
        v_lshlrev_b32 v33, 7, v0
        buffer_load_dword v34, v33, {sr(sP,4)}, 0 offen
        s_cmp_eq_u32 s2, 252
        s_cbranch_scc0 K1_END
        K1_NOPC:
        """)
    PM = int(OPT.get("pm", "0"))
    if PM:
        a(f"s_mul_i32 s{st0}, s2, {313*128}\ns_sub_u32 s{st1}, {E*32}, s{st0}\ns_min_u32 s{st1}, s{st1}, {PM*128}")
        if OPT.get("pmlo"): a(f"s_cmp_lt_u32 s2, {NCH}\ns_cselect_b32 s{st1}, s{st1}, 0")
        srd(a, sP, 6, f"s{st0}", f"s{st1}")
        a(f"v_xor_b32 v33, 0x1c0, v0\nv_lshlrev_b32 v33, 7, v33\nbuffer_load_dword v34, v33, {sr(sP,4)}, 0 offen")
    a(f"""
    s_cmp_eq_u32 s2, 250
    s_cbranch_scc1 K1_WC
    """)
    def xrd(reg, off):
        for s in range(4): a(f"ds_read_b128 {vr(reg+4*s,4)}, v{[vXA, vXA+2, vXA+3, vXA+4][s]} offset:{off}")
    def trs(s):
        for m in range(2):
            for ab in range(2):
                for u in range(2):
                    a(f"ds_read_b64_tr_b16 {vr(W(m,ab,s)+2*u,2)}, v{vTR+6*ab} offset:{K1_W+m*16384+s*4096+u*512}")
    def mm(s, x, acc):
        return [f"v_mfma_f32_16x16x32_bf16 {vr(acc+8*m+4*ab,4)}, {vr(W(m,ab,s),4)}, {vr(x+4*s,4)}, {'0' if s == 0 else vr(acc+8*m+4*ab,4)}"
                for m in range(2) for ab in range(2)]
    def pack(acc, out):
        o = []
        for b in range(2):
            for ab in range(2):
                b0, b1 = acc+4*ab+b, acc+4*ab+2+b
                hs = [acc+8+4*ab+2*e_+b for e_ in range(2)]
                o += [f"v_mul_f32 v{b0}, s{cnl2e}, v{b0}", f"v_mul_f32 v{b1}, s{cnl2e}, v{b1}"]
                for e_, h in enumerate(hs): o += [f"v_max_f32 v{30+e_}, abs(v{h}), s{csign}", f"v_bfi_b32 v{h}, s{cmag}, v{30+e_}, v{h}"]
                o += [f"v_cvt_pk_bf16_f32 v{b0}, v{b0}, v{b1}"] + [f"v_add_u32 v{h}, 0x8000, v{h}" for h in hs]
                o += [f"v_sub_u32_sdwa v{h}, v{h}, v{b0} dst_sel:DWORD dst_unused:UNUSED_PAD src0_sel:DWORD src1_sel:WORD_{e_}" for e_, h in enumerate(hs)]
                o += [f"v_perm_b32 v{out+4*b+2*ab+e_}, v{h}, v{b0}, s{cp0+e_}" for e_, h in enumerate(hs)]
            o.append(f"buffer_store_dwordx4 {vr(out+4*b,4)}, v{vST}, {sr(sT,4)}, s{ctso} offen offset:{128*b} {OPT['st_t']}")
        return o
    xrd(vX, 0)
    trs(0); a("s_waitcnt lgkmcnt(6)")
    for s in range(1, 4):
        trs(s); a("s_waitcnt lgkmcnt(8)"); a.ext(mm(s-1, vX, vA))
        if s < 3: a("s_waitcnt lgkmcnt(6)")
    a("s_waitcnt lgkmcnt(0)")
    stamp(a, 5)
    a(f"""
    s_cmp_ge_u32 s2, 252
    s_cbranch_scc1 K1_WT
    s_lshl_b32 s{st0}, s{snb}, 4
    s_add_u32 s{st0}, s{st0}, 64
    s_cmp_lt_u32 s{st0}, s{snr}
    s_cbranch_scc0 K1_ONE
    """)
    vX2, vA2 = 208, 224
    xrd(vX2, 16384)
    g = mm(3, vX, vA) + ["s_waitcnt lgkmcnt(0)"]
    m2 = sum((mm(s, vX2, vA2) for s in range(4)), []); pk = pack(vA, vO)
    g += m2[:6]; k = 0
    for x in m2[6:]:
        g.append(x); g += pk[k:k+3]; k += 3
    g += pk[k:] + [f"s_add_u32 s{ctso}, s{ctso}, {64*TS}"] + pack(vA2, vO+8)
    asmsim.check_hazards(g, "k1 two blocks")
    a.ext(g)
    a("s_branch K1_TAIL\nK1_ONE:")
    g = mm(3, vX, vA) + ["s_nop 7"] + pack(vA, vO)
    asmsim.check_hazards(g, "k1 one block")
    a.ext(g)
    a("K1_TAIL:")
    PL = int(OPT.get("pl", "0"))
    if PL:
        a(f"""
        s_cmp_lt_u32 s2, {NCH}
        s_cbranch_scc0 K1_NOPF
        s_mul_i32 s{st0}, s2, {CS*32}
        """)
        srd(a, sP, 6, f"s{st0}", PL*128)
        a(f"""
        v_lshlrev_b32 v4, 7, v0
        s_mov_b32 s{st0}, 65536
        s_barrier
        buffer_load_dword v5, v4, {sr(sP,4)}, 0 offen
        buffer_load_dword v5, v4, {sr(sP,4)}, s{st0} offen
        K1_NOPF:
        """)
    stamp(a, 6); stamp(a, 7)
    stamp_out(a, 0, 22, sw, 2)
    a("s_endpgm")
    a("K1_WT:")
    srd(a, sT, 22, WT_OFF, 65536)
    a(f"""
    s_cmp_ge_u32 s{sw}, 4
    s_cbranch_scc1 K1_END
    v_lshlrev_b32 v2, 4, v{vg}
    s_and_b32 s{st0}, s2, 3
    s_lshl_b32 s{st0}, s{st0}, 1
    s_add_u32 s{st0}, s{st0}, s{sfb}
    s_lshl_b32 s{st0}, s{st0}, 1
    s_add_u32 s{st0}, s{st0}, s{snb}
    s_lshl_b32 s{st0}, s{st0}, 12
    s_and_b32 s{st1}, s2, 2
    s_add_u32 s{st1}, s{st1}, s{snb}
    """)
    for k in range(4):
        if k < 3: a(f"s_cmp_eq_u32 s{st1}, {k}\ns_cbranch_scc0 K1_WT{k}")
        for s in range(4):
            a(f"buffer_store_dwordx4 {vr(W(k >> 1, k & 1, s),4)}, v2, {sr(sT,4)}, s{st0} offen offset:{1024*s} {OPT['st_t']}")
        a("s_branch K1_TAIL" if OPT.get("prof") else "s_endpgm")
        if k < 3: a(f"K1_WT{k}:")
    a("K1_WC:")
    srd(a, sT, 22, WT_OFF+65536, 4096)
    a(f"v_lshlrev_b32 v2, 4, v{vg}\ns_lshl_b32 s{st0}, s{sw}, 10")
    for j in range(8):
        a(f"v_lshlrev_b32 v{vWC+j}, 16, v{vWC+j}\nv_mul_f32 v{vWC+j}, s{cnl2e}, v{vWC+j}")
    for j in range(4):
        a(f"v_cvt_pk_bf16_f32 v{84+j}, v{vWC+2*j}, v{vWC+1+2*j}")
    a(f"buffer_store_dwordx4 v[84:87], v2, {sr(sT,4)}, s{st0} offen {OPT['st_t']}")
    if OPT.get("prof"): a("s_branch K1_TAIL")
    a("K1_END:\ns_endpgm")
    return a.text(), kd("k1_kernel", 240, 102)

CAPG = 416; RND = 400
CNT = 0; FLG = 256; START = 512; INCL = 768; OHL = 1024; L1 = 1536; L2 = L1 + 4*CAPG*4; APL = L2 + 4*CAPG*4
ROWP = 272
UL = APL + 48*ROWP; LUTL = UL + 48*ROWP; STG = (LUTL + 65536 + 255)//256*256; XL = STG + 3*CAPG*32 + 5*1024; K2_LDS = XL + 12288
PROG = FLG + 32
assert K2_LDS <= 163840 and K2_LDS >= STG + 4*CAPG*32 and LUTL <= 65535 and (4*CAPG*4) % 256 == 0

def gen_k2():
    a = Asm()
    sREC, sX, sWT, sT, sE, sO, sD, sS = 24, 28, 32, 36, 40, 44, 68, 72
    sw, sg, sfh, st0, st1, st2 = 48, 49, 50, 51, 52, 53
    scount, sslow, sround, slim, sgb, srt, slut, srank = 54, 55, 56, 57, 58, 59, 82, 83
    stail = 20; stot = 80
    sdma, sm0, sneed = 21, 22, 23
    cm32, c128, cnl2e, cfc, csrc, cm40, cm10, cfe = 60, 61, 62, 63, 64, 65, 66, 67
    sk = 16
    vH16, vA1, vA2, vEa, vOa, vO, vA3 = 1, 2, 3, 4, 5, 6, 7
    WC = 8; AP = 16; PA = 24; SC = 28; OH = 32; EA = 40; ADDR = 48; ACC = 64; SP = 96; G = 112; RAW = 176
    XR = 240; UR = 246; vP16 = 252; vH256 = 253; vHS = 254; vPG = 255; vM15 = XR; vO2 = SP+8
    raw = lambda p, b: RAW + 32*p + 16*b
    gb = lambda p, b: G + 32*p + 16*b
    vt = gb(1, 1); Z = SP; EOFF = SP+14
    REC = raw(1, 0); CADDR = REC+16; RANK = G; STV = G+16
    NTB = [int(c_) for c_ in OPT.get("nt", "11")]
    rowoff = lambda r: 8*(r >> 2) + (r & 3)
    sd = "dst_sel:DWORD dst_unused:UNUSED_PAD src0_sel:DWORD"

    a("k2_kernel:")
    a(f"s_cmp_ge_u32 s2, {NBIN}\ns_cbranch_scc1 K2_END")
    stamp(a, 0)
    a(f"""
    s_load_dwordx8 s[4:11], s[0:1], 0
    s_load_dwordx2 s[12:13], s[0:1], 72
    s_load_dwordx2 s[14:15], s[0:1], 88
    v_lshrrev_b32 v{vt}, 6, v0
    v_lshrrev_b32 v{vt+1}, 2, v0
    v_readfirstlane_b32 s{sw}, v{vt}
    v_and_b32 v{vt+2}, 3, v0
    v_lshlrev_b32 v{vt+3}, 7, v{vt+1}
    v_lshl_add_u32 v{vt+3}, v{vt+2}, 4, v{vt+3}
    s_lshl_b32 s{st0}, s2, 14
    s_add_u32 s{st0}, s{st0}, {REC_OFF}
    v_and_b32 v{vt}, 63, v0
    v_lshlrev_b32 v{vt+5}, 3, v{vt}
    v_mov_b32 v{Z}, 0
    v_mov_b32 v{Z+1}, 0
    ds_write_b64 v{vt+5}, {vr(Z,2)} offset:{CNT}
    s_and_b32 s{sg}, s{sw}, 3
    s_lshr_b32 s{sfh}, s{sw}, 2
    v_lshlrev_b32 v{vA2}, 4, v{vt}
    s_mov_b32 s{st1}, 8192
    s_waitcnt lgkmcnt(0)
    """)
    if OPT.get("lat"):
        kind = OPT["lat"]
        if kind in "TSO": srd(a, sS, 14, T_OFF, N*TS)
        if kind == "R": srd(a, sS, 14, REC_OFF, 4 << 20)
        if kind == "x": srd(a, sS, 4, None, N*256)
        if kind == "e": srd(a, sS, 6, None, E*32)
        a(f"""
        s_cmp_eq_u32 s{sw}, 0
        s_cbranch_scc0 K2_NOLAT
        s_lshl_b32 s{st2}, s2, 13
        v_lshlrev_b32 v{vt+9}, 7, v{vt}
        """)
        if kind in "SO":
            a(f"""
            s_and_b32 s{st2}, s2, 127
            s_lshr_b32 s{st2}, s{st2}, 1
            s_mul_i32 s{st2}, s{st2}, {96*512}
            s_and_b32 s16, s2, 1
            s_xor_b32 s16, s16, {0 if kind == "S" else 1}
            s_lshl_b32 s16, s16, 8
            s_add_u32 s{st2}, s{st2}, s16
            v_lshrrev_b32 v{vt+9}, 1, v{vt}
            v_lshlrev_b32 v{vt+9}, 9, v{vt+9}
            v_and_b32 v{vt+10}, 1, v{vt}
            v_lshl_add_u32 v{vt+9}, v{vt+10}, 7, v{vt+9}
            """)
        a(f"""
        s_memrealtime s[86:87]
        buffer_load_dword v{vt+10}, v{vt+9}, {sr(sS,4)}, s{st2} offen
        s_waitcnt vmcnt(0)
        s_memrealtime s[88:89]
        K2_NOLAT:
        s_barrier
        """)
    a(f"""
    s_cmp_lg_u32 s{sfh}, 0
    s_cbranch_scc1 K2_NOREC
    """)
    srd(a, sREC, 14, f"s{st0}", 16384)
    for u in range(2):
        for r in range(2):
            a(f"buffer_load_dwordx4 {vr(REC+8*r+4*u,4)}, v{vt+3}, {sr(sREC,4)}, {'s%d' % st1 if u else '0'} offen offset:{64*r}")
    TP0 = int(OPT.get("tp0", "0"))
    if TP0:
        srd(a, sS, 14, T_OFF, N*TS)
        a(f"""
        s_bfe_u32 s{st0}, s2, 0x50003
        s_mul_i32 s{st0}, s{st0}, {TP0}
        s_add_u32 s{st0}, s{st0}, s{sw}
        s_lshl_b32 s{st0}, s{st0}, 13
        s_cmp_lt_u32 s{sw}, {TP0}
        s_cselect_b32 s{sS+2}, s{sS+2}, 0
        v_lshlrev_b32 v{vt+9}, 7, v{vt}
        buffer_load_dword v{vt+10}, v{vt+9}, {sr(sS,4)}, s{st0} offen
        """)
    a(f"""
    K2_NOREC:
    s_mul_i32 s{st0}, s2, 625
    s_add_u32 s{cm40}, s{st0}, 625
    s_lshr_b32 s{st0}, s{st0}, 4
    s_lshr_b32 s{cm40}, s{cm40}, 4
    s_sub_u32 s{cm40}, s{cm40}, s{st0}
    s_lshl_b32 s{cm40}, s{cm40}, 8
    s_lshl_b32 s{st0}, s{st0}, 8
    """)
    srd(a, sX, 4, f"s{st0}", f"s{cm40}")
    srd(a, sO, 12, f"s{st0}", f"s{cm40}")
    srd(a, sWT, 14, WT_OFF, LUT_OFF - WT_OFF + 65536)
    a("s_barrier")
    stamp(a, 1)
    def ld_wc():
        a(f"""
        s_lshl_b32 s{st1}, s{sfh}, 11
        s_add_u32 s{st1}, s{st1}, 65536
        buffer_load_dwordx4 {vr(WC,4)}, v{vA2}, {sr(sWT,4)}, s{st1} offen
        buffer_load_dwordx4 {vr(WC+4,4)}, v{vA2}, {sr(sWT,4)}, s{st1} offen offset:1024
        """)
    def common1(Z, vl):
        a = Asm()
        a(f"s_lshl_b32 s{st0}, s{sfh}, 8\ns_add_u32 s{st0}, s{st0}, {T_OFF-128}")
        srd(a, sT, 14, f"s{st0}", 64, w3="0x800000", hi_or="0x40000")
        srd(a, sE, 6, None, E*32)
        a(f"""
        s_mov_b32 s{cm32}, {'0x7e0' if 'e' in OPT.get('nomem','') else '0x1fffe0' if 's' in OPT.get('nomem','') else '0xffffffe0'}
        s_mov_b32 s{c128}, 128
        s_mov_b32 s{cnl2e}, {NL2E + (16 << 23):#x}
        s_mov_b32 s{cfc}, 0xfc
        s_mov_b32 s{cfe}, {OPT.get('cfe', '0xfffe')}
        s_mov_b32 s{csrc}, {TS}
        s_mov_b32 s{sslow}, 0
        s_mov_b32 s{sround}, 0
        s_mov_b32 s{sgb}, 0
        s_mov_b32 s{stot}, 0
        s_mul_i32 s{st0}, s{sfh}, 3
        s_xor_b32 s{srank}, s{sg}, s{st0}
        v_lshrrev_b32 v{Z+2}, 5, v{vl}
        v_and_b32 v{Z+3}, 31, v0
        v_lshlrev_b32 v{vH16}, 4, v{Z+2}
        v_lshlrev_b32 v{vH256}, 8, v{Z+2}
        v_and_b32 v{Z+4}, 3, v0
        v_mov_b32 v{Z+6}, 0x3f80
        """)
        for i in range(4):
            a(f"v_cmp_eq_u32 vcc, {i}, v{Z+4}\ns_nop 1\nv_cndmask_b32 v{PA+i}, 0, v{Z+6}, vcc")
        a(f"""
        v_cmp_gt_u32 s[78:79], 16, v{Z+3}
        v_mov_b32 v{Z+5}, {bf(127*2.0**-126):#x}
        v_mov_b32 v{Z+7}, {bf(2.0**16):#x}
        v_cndmask_b32 v{Z+5}, v{Z+7}, v{Z+5}, s[78:79]
        v_and_b32 v{Z+4}, 15, v0
        v_lshlrev_b32 v{Z+8}, 3, v{Z+2}
        v_sub_u32 v{Z+4}, v{Z+4}, v{Z+8}
        v_lshlrev_b32 v{Z+6}, 16, v{Z+5}
        """)
        for d in range(4):
            a(f"""
            v_cmp_eq_u32 vcc, {2*d}, v{Z+4}
            v_cmp_eq_u32 s[78:79], {2*d+1}, v{Z+4}
            s_nop 0
            v_cndmask_b32 v{SC+d}, 0, v{Z+5}, vcc
            v_cndmask_b32 v{Z+8}, 0, v{Z+6}, s[78:79]
            v_or_b32 v{SC+d}, v{SC+d}, v{Z+8}
            """)
        return [x.strip() for x in a.l]
    def ld_xr(): return [f"buffer_load_dword v{XR+r}, v{vO}, {sr(sX,4)}, 0 offen offset:{256*rowoff(r)} " for r in range(6)]
    def arrive(k):
        a(f"""
        v_mov_b32 v{vt+6}, {FLG+4*k}
        v_mov_b32 v{vt+7}, 1
        s_mov_b64 exec, 1
        ds_add_u32 v{vt+6}, v{vt+7}
        s_mov_b64 exec, -1
        """)
    def spin(k, n, add=True):
        if add: arrive(k)
        else: a(f"v_mov_b32 v{vt+6}, {FLG+4*k}")
        a(f"""
        K2_SPIN{n}:
        ds_read_b32 v{vt+7}, v{vt+6}
        s_waitcnt lgkmcnt(0)
        v_cmp_gt_u32 vcc, 4, v{vt+7}
        s_cbranch_vccnz K2_SPIN{n}
        """)
    def caddr(k): return f"v_and_b32_sdwa v{CADDR+k}, s{cfc}, v{REC+k} {sd} src1_sel:BYTE_3"
    def pick(sel, cur):
        a(f"""
        s_bitcmp1_b32 s{sel}, 0
        s_cselect_b32 s{cur[0]}, s{cur[1]}, s{cur[0]}
        s_cselect_b32 s{cur[2]}, s{cur[3]}, s{cur[2]}
        s_bitcmp1_b32 s{sel}, 1
        s_cselect_b32 s{st0}, s{cur[2]}, s{cur[0]}
        s_and_b32 s{sg}, s{st0}, 3
        s_andn2_b32 s{st0}, s{st0}, 3
        s_mul_i32 s{sgb}, s{sg}, {CAPG*4}
        s_add_u32 s{scount}, s{st0}, 127
        s_lshr_b32 s{scount}, s{scount}, 7
        s_add_u32 s{stail}, s{st0}, 124
        s_bfe_u32 s{stail}, s{stail}, 0x20005
        s_lshl_b32 s{stail}, s{stail}, 1
        s_add_u32 s{stail}, s{stail}, 2
        """)
    def rank_groups():
        a(f"s_add_u32 s{stot}, s{sk}, s{sk+1}\ns_add_u32 s{st1}, s{sk+2}, s{sk+3}\ns_add_u32 s{stot}, s{stot}, s{st1}")
        for g in range(1, 4): a(f"s_or_b32 s{sk+g}, s{sk+g}, {g}")
        cur = [sk, sk+1, sk+2, sk+3]; spare = sk+4
        for (i, j) in ((0, 1), (2, 3), (0, 2), (1, 3), (1, 2)):
            a(f"s_max_u32 s{spare}, s{cur[i]}, s{cur[j]}\ns_min_u32 s{cur[j]}, s{cur[i]}, s{cur[j]}")
            cur[i], spare = spare, cur[i]
        pick(srank, cur)
    def scan(fast, ks=()):
        x = SP
        a(f"""
        v_and_b32 v{vt}, 63, v0
        """)
        if OPT.get("rot"):
            a(f"""
            s_and_b32 s{st0}, s2, 7
            s_mul_i32 s{st0}, s{st0}, {int(OPT["rot"])}
            s_lshr_b32 s{st0}, s{st0}, 2
            v_add_u32 v{vt+1}, s{st0}, v{vt}
            v_bfi_b32 v{vt+1}, 15, v{vt+1}, v{vt}
            v_lshlrev_b32 v{vt+1}, 2, v{vt+1}
            v_lshlrev_b32 v{vt+5}, 2, v{vt}
            """)
        else: a(f"v_lshlrev_b32 v{vt+1}, 2, v{vt}")
        a(f"""
        ds_read_b32 v{x}, v{vt+1} offset:{CNT}
        v_lshrrev_b32 v{vt}, 4, v{vt}
        v_mul_u32_u24 v{vt}, {CAPG*4}, v{vt}
        v_and_b32 v{vt+2}, 31, v0
        v_lshlrev_b32 v{vt+2}, 2, v{vt+2}
        v_mov_b32 v{vt+4}, 0xfffffe
        s_waitcnt lgkmcnt(0)
        v_sub_u32 v{vt}, v{vt}, v{x}
        """)
        for d in ("row_shr:1", "row_shr:2", "row_shr:4", "row_shr:8"):
            a(f"v_add_u32_dpp v{x}, v{x}, v{x} {d} row_mask:0xf bank_mask:0xf bound_ctrl:0\ns_nop 1")
        a(f"""
        v_add_u32 v{vt}, v{vt}, v{x}
        v_cmp_lt_u32 vcc, {CAPG*4}, v{x}
        """)
        if OPT.get("rot"): a(f"ds_write_b32 v{vt+1}, v{vt} offset:{START}\nds_write_b32 v{vt+5}, v{x} offset:{INCL}")
        else: a(f"ds_write2st64_b32 v{vt+1}, v{vt}, v{x} offset0:{START//256} offset1:{INCL//256}")
        for g in range(4): a(f"v_readlane_b32 s{sk+g}, v{x}, {16*g+15}")
        if fast:
            a("s_cbranch_vccnz K2_GIVEUP")
            for j, k in enumerate(ks): a(f"ds_read_b32 v{STV+j}, v{CADDR+k} offset:{START}")
            rank_groups()
        else:
            for g in range(1, 4): a(f"s_or_b32 s{sk+g}, s{sk+g}, {g}")
            pick(sg, [sk, sk+1, sk+2, sk+3])
        a(f"""
        s_add_u32 s{st0}, s{st0}, s{sgb}
        v_add_u32 v{vt+2}, s{st0}, v{vt+2}
        s_lshl_b32 s{st1}, s{scount}, 7
        s_add_u32 s{st1}, s{st1}, s{sgb}
        v_lshlrev_b32 v{vt+3}, 3, v{vt+2}
        v_and_b32 v{vt+3}, 128, v{vt+3}
        v_cmpx_gt_u32 vcc, s{st1}, v{vt+2}
        ds_write2st64_b32 v{vt+2}, v{vt+3}, v{vt+4} offset0:{L1//256} offset1:{L2//256}
        s_mov_b64 exec, -1
        """)
    def place(k, st, eo):
        a(f"""
        v_add_u32 v{st}, v{st}, v{RANK+k}
        v_bfe_u32 v{vt}, v{REC+k}, 16, {5 if 't' in OPT.get('nomem','') else 14}
        v_lshlrev_b32 v{vt+1}, 3, v{st}
        v_mad_u32_u16 v{vt+2}, v{REC+k}, 2, v{eo}
        v_and_b32 v{vt+1}, 128, v{vt+1}
        v_mad_u32_u24 v{vt}, v{vt}, s{csrc}, v{vt+1}
        ds_write2st64_b32 v{st}, v{vt}, v{vt+2} offset0:{L1//256} offset1:{L2//256}
        """)
    def lane_setup():
        a(f"""
        v_and_b32 v{vt}, 31, v0
        v_xor_b32 v{vA1}, 16, v{vH16}
        v_xor_b32 v{vA2}, 4, v{vt}
        v_lshlrev_b32 v{vA2}, 2, v{vA2}
        v_add_u32 v{vA1}, s{sgb}, v{vA1}
        v_add_u32 v{vA2}, s{sgb}, v{vA2}
        s_mul_i32 s{st0}, s{sg}, {GN*256}
        s_lshl_b32 s{st1}, s{sfh}, 7
        s_add_u32 s{st0}, s{st0}, s{st1}
        """)
        pair_of_lane(a, vO, vt+1)
        a(f"""
        v_lshl_add_u32 v{vO}, v{vH256}, 2, v{vO}
        v_add_u32 v{vO}, s{st0}, v{vO}
        v_bfe_u32 v{vA3}, v0, 1, 5
        v_lshlrev_b32 v{vA3}, 2, v{vA3}
        v_add_u32 v{vA3}, s{sgb}, v{vA3}
        v_lshlrev_b32 v{vP16}, 4, v0
        v_xor_b32 v{vP16}, v{vP16}, v0
        v_and_b32 v{vP16}, 16, v{vP16}
        v_lshlrev_b32 v{vHS}, 1, v0
        v_xor_b32 v{vHS}, v{vHS}, v{vH16}
        v_and_b32 v{vHS}, 16, v{vHS}
        v_add_u32 v{vHS}, {STG}, v{vHS}
        s_lshl_b32 s{st0}, s{sg}, 2
        s_add_u32 s{st0}, s{st0}, {PROG}
        v_mov_b32 v{vPG}, s{st0}
        s_lshl_b32 s{sm0}, s{sgb}, 3
        s_add_u32 s{sm0}, s{sm0}, {STG}
        s_mov_b32 s{sdma}, 0
        s_mov_b32 s{sneed}, 0
        s_mov_b32 s{slim}, s{scount}
        """)
    def rd_addr(off, j): return f"ds_read_b128 {vr(ADDR+4*j,4)}, v{vA1} offset:{L1+off+32*j}"
    def rd_l2(reg, off): return f"ds_read_b32 v{reg}, v{vA2} offset:{L2+off}"
    def ld_raw(p, b, r):
        pre = [f"v_and_b32 v{ADDR+r}, 0xffff80, v{ADDR+r}"] if OPT.get("safe") else []
        if OPT.get("noload"): return ["s_nop 0"]
        return pre + [f"buffer_load_dword v{raw(p,b)+r}, v{ADDR+r}, {sr(sT,4)}, 0 offen" + (" offset:128" if b else "") + " " + OPT.get("ft", "")]
    def ld_blk(p, b): return sum((ld_raw(p, b, r) for r in range(16)), [])
    cur = {"r": "P"}
    def rd_l3(off, reg=None): return [f"ds_read_b32 v{reg or vEa}, v{vA3} offset:{L2+off}"] if cur["r"] == "P" else []
    lab = [0]
    def dma_ea(sl, reg=None, check=True):
        if cur["r"] != "P": return []
        reg = reg or vEa
        if not check:
            return [f"s_mov_b32 m0, s{sm0}", f"v_and_or_b32 v{reg}, v{reg}, s{cm32}, v{vP16}",
                    f"buffer_load_dwordx4 v{reg}, {sr(sE,4)}, 0 offen {OPT.get('fe', '')} lds;wr={300+sl}", f"s_add_u32 s{sm0}, s{sm0}, 1024"]
        lab[0] += 1
        return [f"s_cmp_lt_u32 s{sdma}, s{slim}", f"s_cbranch_scc0 K2_ND{lab[0]}", "@D{",
                f"s_mov_b32 m0, s{sm0}", f"v_and_or_b32 v{reg}, v{reg}, s{cm32}, v{vP16}",
                f"buffer_load_dwordx4 v{reg}, {sr(sE,4)}, 0 offen {OPT.get('fe', '')} lds;wr={300+sl}", "@}", f"K2_ND{lab[0]}:",
                f"s_add_u32 s{sdma}, s{sdma}, 1", f"s_add_u32 s{sm0}, s{sm0}, 1024"]
    spins = []
    def rd_prog(): return [f"ds_read_b32 v{vEa}, v{vPG}"] if cur["r"] == "C" else []
    def get_ea(p, sl, off, prev=()):
        o = [f"s_add_u32 s{sneed}, s{sneed}, 1"]
        if cur["r"] == "P":
            o += [f"v_mov_b32 v{vEa}, s{sneed};rd={300+sl}", f"ds_write_b32 v{vPG}, v{vEa}"]
            if prev: o.append("@MOVE 302 300")
        else:
            lab[0] += 1; n = lab[0]; spins.append(n)
            o += [f"v_cmp_gt_u32 vcc, s{sneed}, v{vEa}", f"s_cbranch_vccnz K2_SP{n}", f"K2_OK{n}:"]
        return o + [f"v_lshl_add_u32 v{vEa}, v{vA2}, 3, v{vHS}", f"ds_read_b128 {vr(EA+4*p,4)}, v{vEa} offset:{8*off}"]
    def oh_idx(p):
        return [f"v_and_b32 v{vOa}, 30, v{vOa}",
                f"v_lshl_add_u32 v{vOa}, v{vOa}, 3, v{vH256}",
                f"ds_read_b128 {vr(OH+4*p,4)}, v{vOa} offset:{OHL}"]
    big = "v_mfma_f32_32x32x16_bf16" if not OPT.get("nobig") else "; "
    de = OPT.get("drop", "")
    def mE(p, b): return "; " if "E" in de else f"{big} {vr(gb(p,b),16)}, {vr(EA+4*p,4)}, {vr(WC+4*b,4)}, 0"
    def mA(p, b): return "; " if "A" in de else f"{big} {vr(gb(p,b),16)}, {vr(OH+4*p,4)}, {vr(AP+4*b,4)}, {vr(gb(p,b),16)}"
    def mS(p): return "; " if "S" in de else f"{big} {vr(SP,16)}, {vr(OH+4*p,4)}, {vr(SC,4)}, 0"
    def mG(p, b, j): return "; " if ("G" in de or ("g" in de and j & 1)) else (f"{big} {vr(ACC+16*b,16)}, {vr(gb(p,b)+4*j,4)}, {vr(SP+4*j,4)}, {vr(ACC+16*b,16)}" if OPT.get("swapg") else f"{big} {vr(ACC+16*b,16)}, {vr(SP+4*j,4)}, {vr(gb(p,b)+4*j,4)}, {vr(ACC+16*b,16)}")
    def mP(p, b):
        o = []
        if "P" in de: return ["; "]*8
        for u in range(2):
            for j in range(4):
                g = vr(gb(p,b)+4*j, 4)
                o.append(f"v_mfma_f32_4x4x4_16b_bf16 {g}, {vr(PA+2*u,2)}, {vr(raw(p,b)+4*j+2*u,2)}, {g}")
        return o
    def idx_pair(p, b, i):
        g0, g1 = gb(p,b)+2*i, gb(p,b)+2*i+1
        if i < NTB[b]:
            return [f"v_exp_f32 v{g0}, v{g0}", f"v_exp_f32 v{g1}, v{g1}", f"v_add_f32 v{g0}, 1.0, v{g0}",
                    f"v_add_f32 v{g1}, 1.0, v{g1}", f"v_rcp_f32 v{g0}, v{g0}", f"v_rcp_f32 v{g1}, v{g1}"], []
        return [f"v_cvt_pkrtz_f16_f32 v{g0}, v{g0}, v{g1}",
                f"v_and_b32_sdwa v{g1}, s{cfe}, v{g0} {sd} src1_sel:WORD_1",
                f"v_and_b32_sdwa v{g0}, s{cfe}, v{g0} {sd} src1_sel:WORD_0"], \
               [f"ds_read_u16_d16_hi v{g1}, v{g1} offset:{LUTL}", f"ds_read_u16_d16_hi v{g0}, v{g0} offset:{LUTL}"]
    def fin_pair(p, b, i):
        g0, r0 = gb(p,b)+2*i, raw(p,b)+2*i
        mul = [f"v_pk_mul_f32 {vr(r0,2)}, {vr(g0,2)}, {vr(r0,2)}"] if OPT.get("pk") else [f"v_mul_f32 v{r0}, v{g0}, v{r0}", f"v_mul_f32 v{r0+1}, v{g0+1}, v{r0+1}"]
        return mul + [
                f"v_cvt_pk_bf16_f32 v{g0}, v{g0}, v{r0}", f"v_cvt_pk_bf16_f32 v{g0+1}, v{g0+1}, v{r0+1}"]
    def zipl(x, y):
        o = []
        for k in range(max(len(x), len(y))):
            if k < len(x): o.append(x[k])
            if k < len(y): o.append(y[k])
        return o
    uid = [0]
    def W(kind):
        uid[0] += 1
        return f"@W{kind} {uid[0]}"
    SH = int(OPT.get("short", "4"))
    L3O = OPT.get("l3o", "1") == "1"
    F2 = OPT.get("f2", "0") == "1"
    XE = OPT.get("xe", "1") == "1"
    WE = int(OPT.get("we", "2"))
    def slot(p, b, kind, acc=True, np_=8, npg=8):
        q = 1-p
        nxt = (p, 1) if b == 0 else (q, 0)
        do_idx = b == 0 or kind != "L"
        gs = [[mG(q if b == 0 else p, 1-b, j)] for j in range(npg//2)] if acc else []
        ng = 3 if (b == 0 and OPT.get("e3", "1") == "1") else 2
        bigs = gs[:ng]
        if kind != "L": bigs += [[mE(q, b)], [mA(q, b)]]
        bigs += gs[ng:]
        if b == 0: bigs += [[mS(p)]]
        smalls = mP(q, b) if kind != "L" else []
        out = []
        nb = 0
        for i in range(8):
            if i >= np_:
                out += sum(bigs[nb:], []); nb = len(bigs)
                break
            iv, il = idx_pair(*nxt, i) if do_idx else ([], [])
            fv = fin_pair(p, b, i)
            seq = zipl(iv, fv) + il
            if SH:
                rr = range(16*i//SH, 16*(i+1)//SH) if i < SH else []
                if (b == 0 and kind != "L") or (b == 1 and kind == "F"):
                    for r_ in rr: seq += ld_raw(q, 1, r_) if b == 0 else ld_raw(p, 0, r_)
                if kind == "P" and b == 0 and i == SH and XE: seq += ld_xr()
                if kind == "F":
                    if b == 0:
                        for r_ in rr:
                            if r_ & 3 == 3: seq.append(rd_addr((2+p)*128, r_ >> 2))
                    if b == 0 and i == 1: seq = dma_ea(p, vOa if L3O else None, check=False) + seq
                    if b == 1 and i == 1: seq += rd_prog()
                    if b == 1 and i == int(OPT.get("gi", "6")): seq += get_ea(p, p, (2+p)*128)
                    if b == 1 and i == (3 if L3O else 7): seq += rd_l3((3+p)*128, vOa if L3O else None)
                    if b == 0 and i == 5: seq.append(rd_l2(vOa, (2+p)*128))
                    if b == 1 and i == 2: seq += oh_idx(p)
            elif kind == "F":
                seq += ld_raw(p, b, 2*i) + ld_raw(p, b, 2*i+1)
                if b == 1 and i & 1: seq.append(rd_addr((3+p)*128, i >> 1))
                if OPT.get("burst"):
                    if p == 0 and b == 0 and i == 0: seq += rd_l3(3*128) + rd_l3(4*128, vOa)
                    if p == 0 and b == 0 and i == 4: seq = dma_ea(1) + dma_ea(2, vOa) + seq
                else:
                    if b == 0 and i == 1: seq += rd_l3((3+p)*128)
                    if b == 1 and i == 0: seq = dma_ea(q) + seq
                if b == 1 and i == 1: seq += rd_prog()
                if b == 1 and i == 6: seq += get_ea(p, p, (2+p)*128, (2,) if (OPT.get('burst') and p == 0) else ())
                if b == 0 and i == 5: seq.append(rd_l2(vOa, (2+p)*128))
                if b == 1 and i == 2: seq += oh_idx(p)
            pre = [W("l")] if i % WE == 0 else []
            if cur["r"] == "P" and kind != "L":
                if (b, i) == (0, 0): pre.append("s_setprio 2")
                if (b, i) == divmod(int(OPT.get("fair", "12")), 8): pre.append("s_setprio 0")
            if i < 6:
                take = 2 if (len(bigs) - nb) > (6 - i) else 1
                if nb < len(bigs): pre += bigs[nb]; nb += 1
                if take == 2 and nb < len(bigs):
                    seq = seq[:6] + bigs[nb] + seq[6:]; nb += 1
            if smalls and i >= 5:
                k0, k1 = {5: (0, 2), 6: (2, 6), 7: (6, 8)}[i]
                sm = smalls[k0:k1]
                if i == 5: seq = seq[:4] + [W("v")] + zipl(sm, seq[4:])
                else: seq = zipl(sm, seq)
            out += pre + seq
        assert nb == len(bigs)
        return out
    def last(p, np_):
        n = f"{p}{cur['r']}{np_}"
        return ([f"K2_LAST{n}:"] + ([] if XE else ld_xr()) + slot(p, 0, "L", np_=np_) + ["s_nop 11"]*(np_ < 6) + slot(p, 1, "L", np_=np_, npg=np_)
                + ["s_nop 1"] + [mG(p, 1, j) for j in range(np_//2)])
    def body(p, kind):
        q = 1-p; n = f"{kind}{p}{cur['r']}"
        o0 = [f"K2_BODY{n}:"] + slot(p, 0, kind)
        o1 = [f"K2_MID{n}:"] + (ld_xr() if kind == "L" else []) + slot(p, 1, kind)
        if OPT.get("prof") == "7": o1 += ["s_mov_b32 m0, s98", "s_add_u32 s98, s98, 1", f"v_writelane_b32 v{UR+5}, s86, m0", "s_memrealtime s[86:87]"]
        if kind == "P":
            for np_ in (2, 4, 6): o1 += [f"s_cmp_eq_u32 s{stail}, {np_}", f"s_cbranch_scc1 K2_LAST{q}{cur['r']}{np_}"]
        if kind == "F":
            if p == 1: o1 += [f"v_add_u32 v{r_}, 256, v{r_}" for r_ in ((vA1, vA2, vA3) if cur["r"] == "P" else (vA1, vA2))]
            o1 += [f"s_sub_u32 s{scount}, s{scount}, 1", f"s_cmp_eq_u32 s{scount}, 2", f"s_cbranch_scc1 K2_BODYP{q}{cur['r']}"]
        return o0, o1
    def entry_short(kind):
        more = kind != "L"
        o = rd_prog() + [W("v"), W("l")] + get_ea(0, 0, 0)
        if more: o += rd_prog() + rd_l3(128)
        o += [W("l"), "@STAMP", mE(0, 0), mA(0, 0), mE(0, 1), mA(0, 1)]
        if F2: o += ld_blk(0, 1) + [rd_addr(128, j) for j in range(4)]
        o += (dma_ea(1, check=False) if more else []) + ["s_nop 7", W("v")] + mP(0, 0) + ["s_nop 3"]
        for i in range(8):
            v_, l_ = idx_pair(0, 0, i)
            o += [W("l")] + ([v_[0], v_[1], "s_nop 0"] + v_[2:] if i < NTB[0] else v_) + l_
            if more:
                if i < 4:
                    for r_ in range(4*i, 4*i+4): o += ld_raw(1, 0, r_)
                if i == 6: o += [W("v")] + get_ea(1, 1, 128)
                if i == (2 if L3O else 7) and kind == "F": o += rd_l3(256, vOa if L3O else None)
            if i == (5 if F2 else 3): o += [W("v")] + mP(0, 1)
        return o + slot(0, 0, kind, acc=False) + [f"s_branch K2_MID{kind}0{cur['r']}"]
    def entry(kind):
        if SH: return entry_short(kind)
        more = kind != "L"
        o = rd_prog() + [W("v"), W("l")] + get_ea(0, 0, 0)
        if more: o += rd_prog()
        o += [W("l"), "@STAMP", mE(0, 0), mA(0, 0), mE(0, 1), mA(0, 1), "s_nop 7", W("v")] + mP(0, 0) + ["s_nop 3"]
        for i in range(8):
            v_, l_ = idx_pair(0, 0, i)
            o += [W("l")] + ([v_[0], v_[1], "s_nop 0"] + v_[2:] if i < NTB[0] else v_) + l_
            if more:
                for r_ in range(4*(i & 3), 4*(i & 3)+4): o += ld_raw(1, i >> 2, r_)
                if i >= 4: o.append(rd_addr(256, i-4))
                if i == 4: o += [W("v")] + get_ea(1, 1, 128) + rd_l3(256)
                if i == 7: o += dma_ea(0)
            if i == 3: o += [W("v")] + mP(0, 1)
        return o + slot(0, 0, kind, acc=False) + [f"s_branch K2_MID{kind}0{cur['r']}"]
    def drain(p): return ["s_nop 1"] + [mG(p, 1, j) for j in range(4)]
    def mk_fill():
        ad = [rd_addr(0, j) for j in range(4)]
        t0 = SP
        o = []
        if cur["r"] == "P":
            o = (rd_l3(0) + [f"ds_read_b32 v{t0}, v{vA3} offset:{L2+128}"])
        o += ad + [rd_l2(vOa, 0), rd_l2(t0+1, 128)]
        if cur["r"] == "P":
            o += ["s_waitcnt lgkmcnt(6)"] + dma_ea(0) + [f"v_mov_b32 v{vEa}, v{t0}"]
        d1 = dma_ea(1) if not SH else []
        late1 = OPT.get("d1", "1") == "1"
        o += ([] if late1 else d1) + ["s_waitcnt lgkmcnt(0)"] + ld_blk(0, 0) + oh_idx(0) + [f"v_mov_b32 v{vOa}, v{t0+1}"] + oh_idx(1)
        if F2: return o
        o += ld_blk(0, 1) + (d1 if late1 else [])
        return o + [rd_addr(128, j) for j in range(4)]
    FI, B, EN, LA_ = {}, {}, {}, {}
    for r in "PC":
        cur["r"] = r
        if r == "C" and OPT.get("ntc"): NTB[:] = [int(c_) for c_ in OPT["ntc"]]
        FI[r] = mk_fill()
        for k in "FPL":
            EN[r, k] = entry(k)
            for p in range(2): B[r, p, k] = body(p, k)
        for p in range(2):
            for np_ in (2, 4, 6, 8): LA_[r, p, np_] = last(p, np_)
    def trace(r, cnt, np_=8):
        kinds = ["F"]*(cnt-2) + ["P", "L"][-min(cnt, 2):]
        tr = FI[r] + EN[r, kinds[0]] + B[r, 0, kinds[0]][1]
        for t in range(1, cnt-1): tr += B[r, t & 1, kinds[t]][0] + B[r, t & 1, kinds[t]][1]
        if cnt > 1 and np_ < 8: tr = tr[:len(tr) - 2*(2 - (np_-2)//2)]
        tr += drain(0) if cnt == 1 else LA_[r, (cnt-1) & 1, np_]
        o = []; keep = True; nd = 0
        for x in tr:
            if x == "@D{": keep = nd < cnt; nd += 1
            elif x == "@}": keep = True
            elif keep and x != "@STAMP": o.append(x)
        return o
    epi_head = ["s_branch x", "s_cmp", "s_cbranch", "s_waitcnt vmcnt(0) lgkmcnt(0)"] + [f"v_add_f32 v{G+r_}, 0, v{XR}" for r_ in range(24)] + [f"v_add_f32 v{ACC+r_}, 0, v{ACC+r_}" for r_ in range(32)]
    cases = [(r, c, n_) for c in range(1, 9) for r in "PC" for n_ in (2, 4, 6, 8)]
    need = asmsim.solve_waits([trace(*c) for c in cases])
    for c in cases: asmsim.check_hazards(asmsim.apply_waits(trace(*c), need) + epi_head, f"case {c}")
    def emit(l):
        for x in asmsim.apply_waits(l, need):
            if x == "@STAMP":
                stamp(a, 5); stamp(a, 5, "3"); stamp(a, 7, "4")
                if OPT.get("prof") == "7": a("s_memrealtime s[86:87]\ns_mov_b32 s98, 1")
                if OPT.get("prof") == "3": a(f"s_memtime s[86:87]\ns_mov_b32 s90, s{scount}\ns_getreg_b32 s92, hwreg(HW_REG_HW_ID)")
            elif x[0] != "@": a(x.split(";")[0] or "s_nop 0")
    def main_loop(r):
        a(f"""
        K2_GO{r}:
        s_cmp_eq_u32 s{scount}, 0
        s_cbranch_scc1 K2_EMPTY
        s_cmp_gt_u32 s{scount}, 2
        s_cbranch_scc1 K2_ENTF{r}
        s_cmp_eq_u32 s{scount}, 2
        s_cbranch_scc1 K2_ENTP{r}
        """)
        emit(EN[r, "L"]); a(f"K2_ENTP{r}:"); emit(EN[r, "P"]); a(f"K2_ENTF{r}:"); emit(EN[r, "F"])
        a(".p2align 6")
        for _ in range(int(OPT.get("pad", "0"))): a("s_nop 0")
        for p in range(2): emit(B[r, p, "F"][0] + B[r, p, "F"][1])
        a(f"s_branch K2_BODYF0{r}")
        emit(B[r, 0, "L"][1] + drain(0)); a("s_branch K2_DONE")
        for p in range(2):
            for np_ in (2, 4, 6): emit(LA_[r, p, np_]); a("s_branch K2_DONE")
        for p in range(2):
            emit(B[r, p, "P"][0] + B[r, p, "P"][1] + LA_[r, 1-p, 8])
            if p == 0 or r == "P": a("s_branch K2_DONE")
    def fill(n):
        a(f"s_cmp_eq_u32 s{scount}, 0\ns_cbranch_scc1 K2_FILLED{n}")
        emit(FI[n])
        a(f"K2_FILLED{n}:")
    def ap_addr():
        a(f"""
        v_bfe_u32 v{vt}, v0, 2, 2
        v_lshrrev_b32 v{vt+1}, 1, v{vH16}
        v_add_u32 v{vt}, v{vt}, v{vt+1}
        v_mul_u32_u24 v{vt}, {ROWP}, v{vt}
        v_bfe_u32 v{vt+2}, v0, 4, 1
        v_lshl_add_u32 v{vt}, v{vt+2}, 5, v{vt}
        v_and_b32 v{vt+2}, 3, v0
        v_lshl_add_u32 v{vt}, v{vt+2}, 3, v{vt}
        s_mul_i32 s{st0}, s{sg}, {GN*ROWP}
        s_lshl_b32 s{st1}, s{sfh}, 7
        s_add_u32 s{st0}, s{st0}, s{st1}
        v_add_u32 v{vt}, s{st0}, v{vt}
        v_mul_u32_u24 v{vt+1}, {ROWP//2}, v{vt+1}
        v_and_b32 v{vt+2}, 127, v{vO}
        v_add3_u32 v{vt+1}, v{vt+2}, s{st0}, v{vt+1}
        """)
    def ap_read():
        a(f"""
        ds_read_b64_tr_b16 {vr(AP,2)}, v{vt} offset:{APL}
        ds_read_b64_tr_b16 {vr(AP+2,2)}, v{vt} offset:{APL+4*ROWP}
        ds_read_b64_tr_b16 {vr(AP+4,2)}, v{vt} offset:{APL+64}
        ds_read_b64_tr_b16 {vr(AP+6,2)}, v{vt} offset:{APL+4*ROWP+64}
        """)
        for r in range(6): a(f"ds_read_b32 v{UR+r}, v{vt+1} offset:{UL+ROWP*rowoff(r)}")
    def init_addr():
        for r in range(16): a(f"v_mov_b32 v{ADDR+r}, 128")
    def zero_acc():
        for r in range(32): a(f"v_mov_b32 v{ACC+r}, 0")

    a(f"s_cmp_lg_u32 s{sfh}, 0\ns_cbranch_scc1 K2_LOADER")
    if OPT.get("sp"): a(f"s_setprio {OPT['sp']}")
    ld_wc()
    a.ext(common1(SP, vt))
    a(f"v_and_b32 v{vt+3}, 15, v0\nv_lshlrev_b32 v{vt+3}, 4, v{vt+3}\nv_bfe_u32 v{vt+4}, v0, 4, 2\nv_lshl_add_u32 v{vt+3}, v{vt+4}, 10, v{vt+3}\ns_lshl_b32 s{st0}, s{sg}, 8\nv_add_u32 v{vt+3}, s{st0}, v{vt+3}")
    a(f"v_add_u32 v{vt+4}, 40960, v{vt+3}")
    for val, rg, runs in ((0x3f003f00, EA, (0, 3, 32, 35)), (0, EA+4, (23, 27)), (0x3f803f80, OH, (51, 55, 59))):
        for j in range(4): a(f"v_mov_b32 v{rg+j}, {val:#x}")
        for c0 in runs:
            a(f"ds_write_b128 v{vt+4 if c0 >= 24 else vt+3}, {vr(rg,4)} offset:{LUTL + 1024*(c0 - (40 if c0 >= 24 else 0))}")
    a(f"""
    v_and_b32 v{vt+3}, 127, v0
    v_bfe_u32 v{vt+4}, v0, 2, 4
    v_and_b32 v{Z+4}, 3, v0
    v_lshrrev_b32 v{Z+5}, 6, v{vt+3}
    v_lshlrev_b32 v{vt+3}, 2, v{vt+3}
    v_lshl_add_u32 v{Z+4}, v{Z+5}, 2, v{Z+4}
    v_lshlrev_b32 v{Z+5}, 1, v{Z+4}
    v_mov_b32 v{Z+6}, 0x3780
    v_mov_b32 v{Z+7}, 0x37800000
    v_cmp_eq_u32 vcc, v{Z+5}, v{vt+4}
    v_add_u32 v{Z+5}, 1, v{Z+5}
    s_nop 0
    v_cndmask_b32 v{Z+8}, 0, v{Z+6}, vcc
    v_cmp_eq_u32 vcc, v{Z+5}, v{vt+4}
    s_nop 1
    v_cndmask_b32 v{Z+9}, 0, v{Z+7}, vcc
    v_or_b32 v{Z+8}, v{Z+8}, v{Z+9}
    v_cmp_gt_u32 vcc, 15, v{vt+4}
    s_nop 1
    v_cndmask_b32 v{Z+8}, 0, v{Z+8}, vcc
    ds_write_b32 v{vt+3}, v{Z+8} offset:{OHL}
    """)
    a(f"""
    v_mul_u32_u24 v{EOFF}, {CS*32}, v{vt+1}
    v_add_u32 v{EOFF+1}, {64*CS*32}, v{EOFF}
    v_mov_b32 v{vt+3}, 4
    """)
    init_addr()
    a(f"s_waitcnt vmcnt({2 + (TP0 > 0)})")
    stamp(a, 2); stamp(a, 1, "5")
    if OPT.get("half", "0") == "1":
        for u in range(2): a(f"v_mov_b32_dpp v{vt+8+u}, v{REC+4*u+3} quad_perm:[3,3,3,3] row_mask:0xf bank_mask:0xf")
        for u in range(2): a(f"v_cmp_eq_u32 {sr(68+2*u,2)}, -1, v{vt+8+u}")
        a("s_nop 0")
        for u in range(2):
            for i in range(4): a(f"v_cndmask_b32 v{REC+8+4*u+i}, v{REC+8+4*u+i}, -1, {sr(68+2*u,2)}")
    a(f"""
    v_cmp_eq_u32 vcc, -2, v{REC+11}
    v_cmp_eq_u32 s[78:79], -2, v{REC+15}
    s_or_b64 vcc, vcc, s[78:79]
    s_cbranch_vccz K2_NOOVF
    v_mov_b32 v{vt+4}, 0x10000
    v_mov_b32 v{vt}, 60
    ds_add_u32 v{vt}, v{vt+4} offset:{CNT}
    K2_NOOVF:
    """)
    M = [68, 70, 72, 74, 76, 78]
    KS = [[4*u+i for i in range(4)] + [8+4*u, 9+4*u] for u in range(2)]
    def masked(u, fn):
        for j, k in enumerate(KS[u]): a(f"v_cmp_gt_u32 {sr(M[j],2)}, -2, v{REC+k}")
        for j, k in enumerate(KS[u]): a(f"s_mov_b64 exec, {sr(M[j],2)}\n{fn(k, 6*u+j)}")
        a("s_mov_b64 exec, -1")
    for k in KS[0] + KS[1]: a(caddr(k))
    for u in range(2): masked(u, lambda k, j: f"ds_add_rtn_u32 v{RANK+k}, v{CADDR+k}, v{vt+3} offset:{CNT}")
    a(f"v_min_u32 v{vt+4}, v{REC+10}, v{REC+14}\nv_cmp_gt_u32 s[26:27], -2, v{vt+4}")
    def steps(tag, fn):
        a(f"s_cmp_eq_u64 s[26:27], 0\ns_cbranch_scc1 K2_{tag}1\ns_waitcnt lgkmcnt(0)")
        for u in range(2):
            for k in (10+4*u, 11+4*u):
                a(f"v_cmpx_gt_u32 vcc, -2, v{REC+k}\ns_cbranch_execz K2_{tag}{u}")
                fn(k, u)
            a(f"K2_{tag}{u}:\ns_mov_b64 exec, -1")
    steps("C", lambda k, u: a(f"{caddr(k)}\nds_add_rtn_u32 v{RANK+k}, v{CADDR+k}, v{vt+3} offset:{CNT}"))
    arrive(0)
    stamp(a, 2, "5")
    LA, LB = raw(0, 0), raw(0, 1)
    for u in range(2):
        for j, k in enumerate(KS[u]):
            a(f"v_bfe_u32 v{LA+6*u+j}, v{REC+k}, 16, {5 if 't' in OPT.get('nomem','') else 14}\nv_mad_u32_u16 v{LB+6*u+j}, v{REC+k}, 2, v{EOFF+u}")
    NBK = int(OPT.get("nbk", "0"))
    if NBK:
        for u in range(2):
            for j, k in enumerate(KS[u]): a(f"v_and_b32 v{vt+8}, 0x3c, v{CADDR+k}\nv_cmp_gt_u32 {sr(M[j],2)}, {4*NBK}, v{vt+8}")
            for j, k in enumerate(KS[u]): a(f"s_mov_b64 exec, {sr(M[j],2)}\nbuffer_load_ubyte v{vt+12}, v{LB+6*u+j}, {sr(sE,4)}, 0 offen")
            a("s_mov_b64 exec, -1")
    for j in range(12): a(f"v_mul_u32_u24 v{LA+j}, s{csrc}, v{LA+j}")
    spin(0, "A", add=False)
    stamp(a, 3, "5")
    scan(True, KS[0] + KS[1])
    a("s_waitcnt lgkmcnt(1)")
    stamp(a, 4, "5")
    for j, k in enumerate(KS[0] + KS[1]): a(f"v_add_u32 v{STV+j}, v{STV+j}, v{RANK+k}")
    for j, k in enumerate(KS[0] + KS[1]): a(f"v_lshlrev_b32 v{RANK+k}, 3, v{STV+j}")
    for j, k in enumerate(KS[0] + KS[1]): a(f"v_and_or_b32 v{LA+j}, v{RANK+k}, s{c128}, v{LA+j}")
    for u in range(2): masked(u, lambda k, j: f"ds_write2st64_b32 v{STV+j}, v{LA+j}, v{LB+j} offset0:{L1//256} offset1:{L2//256}")
    def put_step(k, u):
        a(f"ds_read_b32 v{STV+12}, v{CADDR+k} offset:{START}\ns_waitcnt lgkmcnt(0)")
        place(k, STV+12, EOFF+u)
    steps("P", put_step)
    arrive(1)
    stamp(a, 5, "5")
    lane_setup()
    stamp(a, 6, "5")
    if OPT.get("order", "1") == "1":
        a(f"""
        v_mov_b32 v{vt+6}, {FLG+4}
        K2_SPINB:
        ds_read2_b32 {vr(vt+8,2)}, v{vt+6} offset0:0 offset1:1
        s_waitcnt lgkmcnt(0)
        v_min_u32 v{vt+7}, v{vt+8}, v{vt+9}
        v_cmp_gt_u32 vcc, 4, v{vt+7}
        s_cbranch_vccnz K2_SPINB
        """)
    else: spin(1, "B", add=False)
    stamp(a, 3); stamp(a, 7, "5")
    a("K2_REFILLP:")
    fill("P")
    stamp(a, 4)
    a(f"s_cmp_lg_u32 s{sslow}, 0\ns_cbranch_scc1 K2_GOP")
    zero_acc()
    ap_addr()
    spin(3, "D", add=False)
    ap_read()
    main_loop("P")
    a("K2_GIVEUP:")
    arrive(1)
    spin(3, "E", add=False)
    a("s_branch K2_SLOW")
    assert XL % 256 == 0
    XF = G; WT = [ACC, raw(0, 0)]
    accs = [[[raw(1,0)+8*nb, raw(1,0)+8*nb+4] for nb in range(3)], [[raw(1,1)+8, raw(1,1)+12], [SP, SP+4], [SP+8, ADDR]]]
    a(f"""
    K2_LOADER:
    v_lshrrev_b32 v{vt+4}, 4, v{vt}
    s_lshl_b32 s{st1}, s{sg}, 2
    v_add_u32 v{vA1}, s{st1}, v{vt+4}
    v_and_b32 v{vt+5}, 15, v0
    v_xor_b32 v{vA1}, v{vA1}, v{vt+5}
    v_lshlrev_b32 v{vA1}, 4, v{vA1}
    v_lshl_add_u32 v{vA1}, v{vt+4}, 8, v{vA1}
    s_lshl_b32 s{st1}, s{sg}, 10
    """)
    if OPT.get("nobulk"):
        ld_wc()
        a.ext(common1(XR+1, vt))
        a(f"v_and_b32 v{vt+2}, 255, v0\nv_lshlrev_b32 v{vt+2}, 4, v{vt+2}")
        for j in range(4): a(f"v_mov_b32 v{EA+j}, 0")
        for j in range(4): a(f"ds_write_b128 v{vt+2}, {vr(EA,4)} offset:{APL+4096*j}")
        arrive(2); arrive(3)
        a("s_branch K2_NOBULK")
    for k in range(3):
        a(f"""
        s_add_u32 m0, s{st1}, {XL+4096*k}
        s_add_u32 s{st2}, s{st1}, {4096*k}
        buffer_load_dwordx4 v{vA1}, {sr(sX,4)}, s{st2} offen lds
        """)
    stamp(a, 1, "6")
    srot = sk
    a(f"s_lshl_b32 s{slut}, s{sg}, 13\ns_lshr_b32 s{srt}, s2, 3")
    for j in range(4):
        a(f"s_add_u32 s{srot+j}, s{srt}, {j}\ns_and_b32 s{srot+j}, s{srot+j}, 3\ns_lshl_b32 s{srot+j}, s{srot+j}, 10\ns_add_u32 s{st2}, s{slut}, s{srot+j}")
        for m in range(2):
            for hf in range(2):
                a(f"buffer_load_dwordx4 {vr(WT[m]+16*hf+4*j,4)}, v{vA2}, {sr(sWT,4)}, s{st2} offen")
                if (m, hf) != (1, 1): a(f"s_add_u32 s{st2}, s{st2}, {4096 if hf == 0 else 32768-4096}")
    stamp(a, 2, "6")
    a(f"""
    s_lshl_b32 s{st0}, s{sg}, 12
    s_add_u32 m0, s{st0}, {LUTL + 7*1024}
    s_add_u32 s{st2}, s{st0}, {LUT_OFF - WT_OFF + 7*1024}
    """)
    for j in range(4): a(f"buffer_load_dwordx4 v{vA2}, {sr(sWT,4)}, s{st2} offen offset:{1024*j} lds")
    a(f"""
    s_mul_i32 s{st0}, s{sg}, 3072
    s_add_u32 m0, s{st0}, {LUTL + 39*1024}
    s_add_u32 s{st2}, s{st0}, {LUT_OFF - WT_OFF + 39*1024}
    """)
    for j in range(3): a(f"buffer_load_dwordx4 v{vA2}, {sr(sWT,4)}, s{st2} offen offset:{1024*j} lds")
    a(f"""
    s_and_b32 s{st0}, s{sg}, 1
    s_lshl_b32 s{st0}, s{st0}, 15
    s_add_u32 m0, s{st0}, {LUTL + 31*1024}
    s_add_u32 s{st2}, s{st0}, {LUT_OFF - WT_OFF + 31*1024}
    buffer_load_dwordx4 v{vA2}, {sr(sWT,4)}, s{st2} offen lds
    """)
    ld_wc()
    stamp(a, 3, "6")
    a(f"""
    s_waitcnt vmcnt(26)
    """)
    arrive(2)
    a(f"""
    v_mov_b32 v{vt+8}, v{vt}
    v_and_b32 v{vt}, 15, v0
    v_bfe_u32 v{vt+1}, v0, 4, 2
    v_xor_b32 v{vt+2}, v{vt}, v{vt+1}
    v_lshlrev_b32 v{vt+2}, 4, v{vt+2}
    v_lshl_add_u32 v{vt+2}, v{vt}, 8, v{vt+2}
    v_add_u32 v{vt+2}, {XL}, v{vt+2}
    v_mul_u32_u24 v{vt}, {ROWP}, v{vt}
    """)
    stamp(a, 2); stamp(a, 5, "6")
    spin(2, "C", add=False)
    stamp(a, 6, "6")
    for s in range(4):
        a(f"s_lshr_b32 s{st0}, s{srot+s}, 4\nv_xor_b32 v{vt+3}, s{st0}, v{vt+2}")
        for nb in range(3):
            a(f"ds_read_b128 {vr(XF+16*nb+4*s,4)}, v{vt+3} offset:{4096*nb}")
    a(f"""
    s_lshr_b32 s{st0}, s{sg}, 1
    s_lshl_b32 s{st0}, s{st0}, 7
    s_and_b32 s{st1}, s{sg}, 1
    s_lshl_b32 s{st1}, s{st1}, 5
    s_add_u32 s{st0}, s{st0}, s{st1}
    v_lshl_add_u32 v{vt+4}, v{vt+1}, 3, v{vt}
    v_add_u32 v{vt+4}, s{st0}, v{vt+4}
    s_lshl_b32 s{st0}, s{sg}, 6
    v_lshl_add_u32 v{vt+5}, v{vt+1}, 3, v{vt}
    v_add_u32 v{vt+5}, s{st0}, v{vt+5}
    """)
    def mm1(m, s):
        return [f"v_mfma_f32_16x16x32_bf16 {vr(accs[m][nb][ab], 4)}, {vr(WT[m]+16*ab+4*s,4)}, {vr(XF+16*nb+4*s,4)}, {'0' if s == 0 else vr(accs[m][nb][ab], 4)}"
                for nb in range(3) for ab in range(2)]
    outA = []
    for nb in range(3):
        al, be = accs[0][nb]; o = EA+ (0 if nb != 1 else 4)
        for i in range(4): outA += [f"v_mul_f32 v{al+i}, s{cnl2e}, v{al+i}", f"v_mul_f32 v{be+i}, s{cnl2e}, v{be+i}"]
        outA += [f"v_cvt_pk_bf16_f32 v{o}, v{al}, v{al+2}", f"v_cvt_pk_bf16_f32 v{o+1}, v{be}, v{be+2}",
                 f"v_cvt_pk_bf16_f32 v{o+2}, v{al+1}, v{al+3}", f"v_cvt_pk_bf16_f32 v{o+3}, v{be+1}, v{be+3}",
                 f"ds_write_b64 v{vt+4}, {vr(o,2)} offset:{APL+16*ROWP*nb}", f"ds_write_b64 v{vt+4}, {vr(o+2,2)} offset:{APL+16*ROWP*nb+64}"]
    NPF = int(OPT.get("tpf", "0"))
    if NPF:
        srd(a, sS, 14, T_OFF, N*TS)
        a(f"""
        s_bfe_u32 s{st0}, s2, 0x50003
        s_lshl_b32 s{st0}, s{st0}, 2
        s_add_u32 s{st0}, s{st0}, s{sg}
        s_lshl_b32 s{st0}, s{st0}, 13
        v_lshlrev_b32 v{vt+9}, 7, v{vt+8}
        """)
        for j in range(NPF):
            a(f"buffer_load_dword v{vt+10}, v{vt+9}, {sr(sS,4)}, s{st0} offen")
            if j+1 < NPF: a(f"s_add_u32 s{st0}, s{st0}, {1 << 20}")
    g = []; cm = common1(XR+1, vt+8); k = 0
    for s in range(4):
        g.append(f"s_waitcnt vmcnt({22-4*s+NPF}) lgkmcnt({9-3*s})")
        for x in mm1(0, s) + (mm1(1, s) if s < 3 else []):
            g.append(x); g += cm[k:k+3]; k += 3
    assert k >= len(cm)
    k = 0
    for j, x in enumerate(mm1(1, 3)):
        g.append(x)
        if j >= 2: g += outA[k:k+3]; k += 3
    g += outA[k:]
    for nb in range(3):
        al, be = accs[1][nb]; o = XF+4*nb
        g += [f"v_cvt_pk_bf16_f32 v{o}, v{al}, v{al+1}", f"v_cvt_pk_bf16_f32 v{o+1}, v{al+2}, v{al+3}",
              f"v_cvt_pk_bf16_f32 v{o+2}, v{be}, v{be+1}", f"v_cvt_pk_bf16_f32 v{o+3}, v{be+2}, v{be+3}",
              f"ds_write_b64 v{vt+5}, {vr(o,2)} offset:{UL+16*ROWP*nb}", f"ds_write_b64 v{vt+5}, {vr(o+2,2)} offset:{UL+16*ROWP*nb+32}"]
    asmsim.check_hazards(g, "gemm")
    a.ext(g)
    a(f"s_waitcnt vmcnt({NPF})")
    arrive(3)
    a("K2_NOBULK:")
    stamp(a, 3); stamp(a, 7, "6")
    init_addr()
    spin(1, "F", add=False)
    a(f"""
    v_mov_b32 v{vt+2}, {INCL+60}
    ds_read2_b32 {vr(vt+4,2)}, v{vt+2} offset0:0 offset1:16
    ds_read2_b32 {vr(vt+6,2)}, v{vt+2} offset0:32 offset1:48
    s_waitcnt lgkmcnt(0)
    """)
    for g_ in range(4): a(f"v_readfirstlane_b32 s{sk+g_}, v{vt+4+g_}")
    a(f"""
    s_max_u32 s{st0}, s{sk}, s{sk+1}
    s_max_u32 s{st1}, s{sk+2}, s{sk+3}
    s_max_u32 s{st0}, s{st0}, s{st1}
    s_cmp_gt_u32 s{st0}, {CAPG*4}
    s_cbranch_scc1 K2_SLOW
    """)
    a("s_setprio 1")
    rank_groups()
    lane_setup()
    a("K2_REFILLC:")
    fill("C")
    a(f"s_cmp_lg_u32 s{sslow}, 0\ns_cbranch_scc1 K2_GOC")
    zero_acc()
    ap_addr()
    spin(3, "G", add=False)
    ap_read()
    stamp(a, 4)
    a("s_branch K2_GOC")
    a("K2_EMPTY:"); a.ext(ld_xr()); a("s_branch K2_DONE")
    for n in spins:
        a(f"""
        K2_SP{n}:
        ds_read_b32 v{vEa}, v{vPG}
        s_waitcnt lgkmcnt(0)
        v_cmp_gt_u32 vcc, s{sneed}, v{vEa}
        s_cbranch_vccnz K2_SP{n}
        s_branch K2_OK{n}
        """)
    main_loop("C")
    a(f"""
    K2_DONE:
    s_cmp_lg_u32 s{sslow}, 0
    s_cbranch_scc1 K2_ROUND
    K2_EPI:
    s_waitcnt vmcnt(0) lgkmcnt(0)
    """)
    stamp(a, 6); stamp(a, 6, "3")
    if OPT.get("prof") == "3": a("s_memtime s[88:89]")
    T0 = G
    if OPT.get("pke", "1") == "1":
        a(f"s_mov_b32 s{st0+1}, 0x358637bd\ns_mov_b32 s{st0+2}, 0x358637bd")
        for b in range(2):
            for r in range(6):
                u, x = T0+12*b+r, T0+12*b+6+r
                if b == 0: a(f"v_lshlrev_b32 v{u}, 16, v{UR+r}\nv_lshlrev_b32 v{x}, 16, v{XR+r}")
                else: a(f"v_and_b32 v{u}, 0xffff0000, v{UR+r}\nv_and_b32 v{x}, 0xffff0000, v{XR+r}")
        for b in range(2):
            for r in range(0, 6, 2): a(f"v_pk_add_f32 {vr(ACC+16*b+r,2)}, {vr(ACC+16*b+r,2)}, {sr(st0+1,2)}")
            for r in range(6): a(f"v_rcp_f32 v{ACC+16*b+r}, v{ACC+16*b+r}")
        for b in range(2):
            for r in range(0, 6, 2): a(f"v_pk_fma_f32 {vr(T0+12*b+r,2)}, {vr(ACC+16*b+8+r,2)}, {vr(ACC+16*b+r,2)}, {vr(T0+12*b+r,2)}")
        for b in range(2):
            for r in range(6): a(f"v_max_f32 v{T0+12*b+r}, 0, v{T0+12*b+r}")
        for b in range(2):
            for r in range(0, 6, 2): a(f"v_pk_add_f32 {vr(T0+12*b+r,2)}, {vr(T0+12*b+r,2)}, {vr(T0+12*b+6+r,2)}")
    else:
        for b in range(2):
            for r in range(6):
                a(f"v_add_f32 v{ACC+16*b+r}, 0x358637bd, v{ACC+16*b+r}")
            for r in range(6):
                a(f"v_rcp_f32 v{ACC+16*b+r}, v{ACC+16*b+r}")
            for r in range(6):
                u, x = T0+12*b+r, T0+12*b+6+r
                if b == 0: a(f"v_lshlrev_b32 v{u}, 16, v{UR+r}\nv_lshlrev_b32 v{x}, 16, v{XR+r}")
                else: a(f"v_and_b32 v{u}, 0xffff0000, v{UR+r}\nv_and_b32 v{x}, 0xffff0000, v{XR+r}")
            for r in range(6):
                u, x = T0+12*b+r, T0+12*b+6+r
                a(f"v_fmac_f32 v{u}, v{ACC+16*b+8+r}, v{ACC+16*b+r}\nv_max_f32 v{u}, 0, v{u}\nv_add_f32 v{u}, v{u}, v{x}")
    a(f"v_lshl_or_b32 v{vO2}, v{vH16}, 27, v{vO}")
    WTH = int(OPT.get("wth", "1275"))
    def outs(fl):
        for r in range(6):
            a(f"v_cvt_pk_bf16_f32 v{SP+r}, v{T0+r}, v{T0+12+r}")
            a(f"buffer_store_dword v{SP+r}, v{vO if r < 4 else vO2}, {sr(sO,4)}, 0 offen offset:{256*rowoff(r)} {fl}")
    if WTH:
        a(f"s_cmp_gt_u32 s{stot}, {4*WTH}\ns_cbranch_scc1 K2_PLAIN")
        outs("sc1")
        a("s_branch K2_OUT\nK2_PLAIN:")
    outs(OPT.get('st_o', ''))
    a("K2_OUT:")
    stamp(a, 7)
    stamp_out(a, 1, 14, sw, 2)
    a("K2_END:\ns_endpgm")

    a("K2_SLOW:")
    srd(a, sS, 8, None, E*4)
    srd(a, sD, 10, None, E*4)
    a(f"""
    s_mov_b32 s{sslow}, 1
    s_mov_b32 s{cm10}, {-GN}
    """)
    a("s_waitcnt vmcnt(0) lgkmcnt(0)\ns_barrier")
    zero_acc(); lane_setup(); ap_addr(); ap_read()
    a(f"""
    K2_ROUND:
    s_cmp_ge_u32 s{sround}, {E//RND}
    s_cbranch_scc1 K2_EPI
    s_mul_i32 s{st0}, s{sround}, {RND}
    s_add_u32 s{sround}, s{sround}, 1
    v_add_u32 v{EOFF}, s{st0}, v0
    v_lshlrev_b32 v{vt}, 2, v{EOFF}
    buffer_load_dword v{REC}, v{vt}, {sr(sD,4)}, 0 offen
    buffer_load_dword v{REC+1}, v{vt}, {sr(sS,4)}, 0 offen
    v_lshlrev_b32 v{EOFF}, 5, v{EOFF}
    v_and_b32 v{vt}, 63, v0
    v_lshlrev_b32 v{vt}, 3, v{vt}
    v_mov_b32 v{vt+4}, 0
    v_mov_b32 v{vt+5}, 0
    s_waitcnt lgkmcnt(0)
    s_barrier
    ds_write_b64 v{vt}, {vr(vt+4,2)} offset:{CNT}
    v_mov_b32 v{vt+3}, 4
    s_waitcnt vmcnt(0) lgkmcnt(0)
    s_barrier
    """)
    rec_fields(a, REC, REC+2, vt, cm40, cm10)
    a(f"""
    v_cmp_eq_u32 vcc, s2, v{REC+2}
    v_lshl_or_b32 v{REC}, v{REC+1}, 16, v{REC}
    {caddr(0)}
    s_mov_b64 s[78:79], vcc
    v_cmp_gt_u32 vcc, {RND}, v0
    s_and_b64 s[78:79], s[78:79], vcc
    s_mov_b64 exec, s[78:79]
    ds_add_rtn_u32 v{RANK}, v{CADDR}, v{vt+3} offset:{CNT}
    s_mov_b64 exec, -1
    s_waitcnt lgkmcnt(0)
    s_barrier
    """)
    scan(False)
    a(f"""
    s_mov_b64 exec, s[78:79]
    ds_read_b32 v{STV}, v{CADDR} offset:{START}
    s_waitcnt lgkmcnt(0)
    """)
    place(0, STV, EOFF)
    a(f"""
    s_mov_b64 exec, -1
    """)
    lane_setup()
    a(f"""
    s_waitcnt lgkmcnt(0)
    s_barrier
    s_cmp_eq_u32 s{sfh}, 0
    s_cbranch_scc1 K2_REFILLP
    s_branch K2_REFILLC
    K2_CODE_END:
    """)
    return a.text(), kd("k2_kernel", 256, 102)

KE_PROF = f"""
    s_memrealtime s[8:9]
    s_load_dwordx2 s[4:5], s[0:1], 88
    s_waitcnt lgkmcnt(0)
    s_add_u32 s4, s4, {PROF_OFF + 0x200000}
    s_addc_u32 s5, s5, 0
    s_mov_b32 s6, 4
    s_mov_b32 s7, 0x20000
    v_mov_b32 v1, s8
    v_lshlrev_b32 v0, 2, v0
    buffer_store_dword v1, v0, s[4:7], 0 offen
"""
def gen_kr():
    a = Asm()
    a(f"""
    kr_kernel:
    s_cmp_ge_u32 s2, 1
    s_cbranch_scc1 KR_END
    s_load_dwordx4 s[4:7], s[0:1], 80
    s_waitcnt lgkmcnt(0)
    s_add_u32 s8, s6, {PROF_OFF}
    s_addc_u32 s9, s7, 0
    s_mov_b32 s10, 0x200000
    s_mov_b32 s11, 0x20000
    s_mov_b32 s6, 256
    s_mov_b32 s7, 0x20000
    v_cmp_gt_u32 vcc, 250, v0
    s_and_saveexec_b64 s[12:13], vcc
    v_lshlrev_b32 v1, 10, v0
    v_mov_b32 v3, 0
    """)
    sel = [(0, 8, 0, 1), (0, 8, 0, 0), (0, 8, 2, 0), (0, 8, 3, 0), (0, 8, 5, 0), (0, 8, 8, 0),
           (1, 8, 0, 1), (1, 8, 0, 0), (1, 8, 2, 0), (1, 8, 3, 0), (1, 8, 5, 1), (1, 8, 5, 0), (1, 8, 6, 1), (1, 8, 6, 0), (1, 8, 8, 0)]
    w0 = 0
    if OPT.get("krsel"):
        w0, st_, mn_ = [int(x) for x in OPT["krsel"].split(",")]
        sel = [(1, 4, 0, 1), (1, 4, st_, mn_)]
    for j, (kn, nw, st, mn) in enumerate(sel):
        a(f"s_mov_b32 s14, {kn*0x100000 + 64*w0}")
        for w in range(nw): a(f"buffer_load_dword v{10+w}, v1, s[8:11], s14 offen offset:{64*w+4*st}")
        a("s_waitcnt vmcnt(0)")
        if mn:
            for w in range(nw): a(f"v_not_b32 v{10+w}, v{10+w}")
        for w in range(1, nw): a(f"v_max_u32 v10, v10, v{10+w}")
        a(f"buffer_atomic_umax v10, v3, s[4:7], 0 offen offset:{4*j}\ns_waitcnt vmcnt(0)")
    if OPT.get("iv"):
        ja, jb, k = [int(x) for x in OPT["iv"].split(",")]
        a(f"""
        s_barrier
        buffer_load_dword v10, v3, s[4:7], 0 offen offset:{4*ja} sc0 sc1
        buffer_load_dword v11, v3, s[4:7], 0 offen offset:{4*jb} sc0 sc1
        s_waitcnt vmcnt(0)
        v_readfirstlane_b32 s16, v10
        v_readfirstlane_b32 s17, v11
        """)
        if sel[ja][3]: a("s_not_b32 s16, s16")
        if sel[jb][3]: a("s_not_b32 s17, s17")
        a(f"""
        s_sub_u32 s16, s16, s17
        s_min_u32 s16, s16, 10000
        s_mul_i32 s16, s16, {k}
        s_memrealtime s[18:19]
        s_waitcnt lgkmcnt(0)
        KR_SPIN:
        s_memrealtime s[20:21]
        s_waitcnt lgkmcnt(0)
        s_sub_u32 s20, s20, s18
        s_cmp_lt_u32 s20, s16
        s_cbranch_scc1 KR_SPIN
        """)
    a("KR_END:\ns_endpgm")
    return a.text()

DOC = """;
; k1: bins the edges by destination (128 chunks x 256 bins, 32 slots a segment), builds the node table
;     T = (x@w_v : -log2e * x@w_b) as bf16 pairs, MFMA-ready weight fragments and a sigmoid table indexed by f16 bits.
;     rescan of the raw edge list.
"""
def main():
    k1, d1 = gen_k1(); k2, d2 = gen_k2()
    ref = open("standalone__edge_featured_mpnn_gatedgcn__graph.s.ref").read().split("\n")
    out = "\n".join(ref[:13]) + "\n"
    for ch in OPT.get("list", "12"):
        if ch == "1": out += f"; @launch kernel=k1_kernel grid=({2*NCH},1,1) block=(512,1,1) lds={K1_LDS}\n"
        if ch == "2": out += f"; @launch kernel=k2_kernel grid=({NBIN},1,1) block=(512,1,1) lds={K2_LDS}\n"
        if ch == "r": out += "; @launch kernel=kr_kernel grid=(1,1,1) block=(256,1,1) lds=0\n"
        if ch == "e": out += "; @launch kernel=ke_kernel grid=(1,1,1) block=(64,1,1) lds=0\n"
    out += DOC
    out += '.amdgcn_target "amdgcn-amd-amdhsa--gfx950"\n.text\n'
    for n, k in (("k1_kernel", k1), ("k2_kernel", k2)):
        out += f".globl {n}\n.p2align 8\n.type {n},@function\n" + k
    if "e" in OPT.get("list", ""): out += ".globl ke_kernel\n.p2align 8\n.type ke_kernel,@function\nke_kernel:\n" + (KE_PROF if OPT.get("prof") else "") + "    s_endpgm\n"
    if "r" in OPT.get("list", ""): out += ".globl kr_kernel\n.p2align 8\n.type kr_kernel,@function\n" + gen_kr()
    out += '.section .rodata,"a"\n.p2align 6\n' + d1.lstrip("\n") + '.p2align 6\n' + d2.lstrip("\n")
    if "e" in OPT.get("list", ""): out += '.p2align 6\n' + kd("ke_kernel", 8, 16).lstrip("\n")
    if "r" in OPT.get("list", ""): out += '.p2align 6\n' + kd("kr_kernel", 32, 32).lstrip("\n")
    open(sys.argv[1], "w").write(out)

if __name__ == "__main__":
    main()
```

```python
import struct, sys
import asmsim

N = 10000; E = 320000
NCH = 128; CS = 2500
NBIN = 256; GN = 10
BINK, BINC, BINS = 53687, 52500, 21
assert all((625*b_ >> 4) <= d_ < (625*(b_+1) >> 4) for d_ in range(N) for b_ in [(d_*BINK + BINC) >> BINS])
CAP = 32
TS = int(([a for a in sys.argv if a.startswith('ts=')] or ['ts=512'])[0][3:])
T_OFF = 0x1000000
REC_OFF = 0x700000
WT_OFF = 0xB00000
LUT_OFF = 0xB20000
PROF_OFF = 0xF000000
NL2E = struct.unpack("<I", struct.pack("<f", -1.4426950408889634))[0]

def bf(x): return struct.unpack("<I", struct.pack("<f", x))[0] >> 16

OPT = dict(st_r="sc1", st_t="sc1")
for a in sys.argv[2:]:
    k, v = a.split("=", 1); OPT[k] = v

class Asm:
    def __init__(self): self.l = []
    def __call__(self, s):
        for x in s.strip("\n").split("\n"):
            x = x.strip()
            if not x: continue
            if x.startswith(";"): x = "s_nop 0"
            self.l.append(x if x.endswith(":") else "    " + x)
    def ext(self, lst):
        for x in lst: self(x)
    def text(self): return "\n".join(self.l) + "\n"

def stamp(a, i, lvl="1"):
    if OPT.get("prof") and (i in (0, 8) or OPT["prof"] == lvl): a(f"s_memrealtime s[{84+2*i}:{85+2*i}]")
def stamp_out(a, kern, wsreg, sw, vtmp):
    if not OPT.get("prof"): return
    if OPT.get("xcc"): a("s_getreg_b32 s98, hwreg(HW_REG_XCC_ID)")
    if not OPT.get("nowait"): a("s_waitcnt vmcnt(0)")
    stamp(a, 8)
    a(f"""
    s_lshl_b32 s4, s2, 4
    s_add_u32 s4, s4, s{sw}
    s_lshl_b32 s4, s4, 6
    s_add_u32 s4, s4, {PROF_OFF + kern*0x100000}
    s_add_u32 s4, s{wsreg}, s4
    s_addc_u32 s5, s{wsreg+1}, 0
    s_mov_b32 s6, 64
    s_mov_b32 s7, 0x20000
    s_waitcnt lgkmcnt(0)
    """)
    if kern == 1 and OPT["prof"] == "7":
        a(f"v_mov_b32 v{vtmp}, v251\nv_writelane_b32 v{vtmp}, s84, 0\ns_mov_b32 m0, s98\ns_add_u32 s98, s98, 1\nv_writelane_b32 v{vtmp}, s86, m0\ns_mov_b32 m0, s98\ns_nop 3\nv_writelane_b32 v{vtmp}, s100, m0\nv_writelane_b32 v{vtmp}, s98, 15")
    else:
        for i in range(9): a(f"v_writelane_b32 v{vtmp}, s{84+2*i}, {i}")
    a(f"""
    v_mbcnt_lo_u32_b32 v{vtmp+1}, -1, 0
    v_mbcnt_hi_u32_b32 v{vtmp+1}, -1, v{vtmp+1}
    v_lshlrev_b32 v{vtmp+1}, 2, v{vtmp+1}
    buffer_store_dword v{vtmp}, v{vtmp+1}, s[4:7], 0 offen
    """)

def vr(b, n): return f"v[{b}:{b+n-1}]"
def sr(b, n): return f"s[{b}:{b+n-1}]"

def srd(a, d, base, add=None, size=None, w3="0x20000", hi_or=None):
    if add is None:
        a(f"s_mov_b32 s{d}, s{base}\ns_mov_b32 s{d+1}, s{base+1}")
    else:
        a(f"s_add_u32 s{d}, s{base}, {add}\ns_addc_u32 s{d+1}, s{base+1}, 0")
    if hi_or: a(f"s_or_b32 s{d+1}, s{d+1}, {hi_or}")
    a(f"s_mov_b32 s{d+2}, {size}\ns_mov_b32 s{d+3}, {w3}")

def kd(name, vgpr, sgpr):
    return f"""
.amdhsa_kernel {name}
  .amdhsa_next_free_vgpr {vgpr}
  .amdhsa_next_free_sgpr {sgpr}
  .amdhsa_accum_offset {(vgpr+3)//4*4}
  .amdhsa_group_segment_fixed_size 0
  .amdhsa_kernarg_size 96
  .amdhsa_user_sgpr_count 2
  .amdhsa_user_sgpr_kernarg_segment_ptr 1
  .amdhsa_system_sgpr_workgroup_id_x 1
.end_amdhsa_kernel
"""

def pair_of_lane(a, d, t):
    a(f"""
    v_and_b32 v{d}, 17, v0
    v_lshlrev_b32 v{d}, 2, v{d}
    v_bfe_u32 v{t}, v0, 1, 1
    v_lshl_add_u32 v{d}, v{t}, 5, v{d}
    v_bfe_u32 v{t}, v0, 2, 2
    v_lshl_add_u32 v{d}, v{t}, 3, v{d}
    """)

def rec_fields(a, vd, vbin, vtmp, sm40, sm10):
    a(f"""
    v_mul_u32_u24 v{vbin}, {BINK}, v{vd}
    v_add_u32 v{vbin}, {BINC}, v{vbin}
    v_lshrrev_b32 v{vbin}, {BINS}, v{vbin}
    v_mul_u32_u24 v{vtmp}, 625, v{vbin}
    v_lshrrev_b32 v{vtmp}, 4, v{vtmp}
    v_sub_u32 v{vd}, v{vd}, v{vtmp}
    v_mul_u32_u24 v{vtmp}, 26, v{vd}
    v_lshrrev_b32 v{vtmp}, 8, v{vtmp}
    v_mad_i32_i24 v{vd}, v{vtmp}, s{sm10}, v{vd}
    v_lshl_or_b32 v{vd}, v{vtmp}, 30, v{vd}
    """)

K1_CNT = 0; K1_STG = 1024; K1_W = 34816; K1_X = K1_W + 32768; K1_LDS = K1_X + (28672 if 'rows' in OPT else 24576)
RLO, RHI = [int(x_) for x_ in OPT.get('rows', '96,64').split(',')]
def gen_k1():
    a = Asm()
    sS, sD, sW1, sW2, sX, sR, sT, sP = 24, 28, 32, 36, 40, 44, 48, 72
    sw, st0, st1, st2, snb, sfb, sch, shf, srow, snr = 52, 53, 54, 55, 56, 57, 58, 69, 71, 76
    c8192, cm10, cnl2e, csign, cmag, ctso, cp0 = 60, 62, 63, 64, 65, 66, 67
    vD, vS, vB, vSL, vt = 4, 12, 20, 28, 36
    vg = 56; vTR, vXA, vST = 64, 65, 66; vWC = 72
    vW, vX, vA, vO = 96, 160, 176, 192
    def W(m, ab, s): return vW + 32*m + 16*ab + 4*s
    a("k1_kernel:")
    a(f"s_cmp_ge_u32 s2, {2*NCH}\ns_cbranch_scc1 K1_END")
    stamp(a, 0)
    a(f"""
    s_load_dwordx16 s[4:19], s[0:1], 0
    s_load_dwordx2 s[20:21], s[0:1], 64
    s_load_dwordx2 s[22:23], s[0:1], 88
    """)
    if OPT.get("pf", "4") in "34":
        frm = "k2_kernel" if OPT.get("pf", "4") == "3" else "K1_PC"
        a(f"""
        s_cmp_lt_u32 s2, {NCH}
        s_cbranch_scc0 K1_NOPC
        s_getpc_b64 {sr(sP,2)}
        K1_PC:
        s_add_u32 s{sP}, s{sP}, {frm}-K1_PC
        s_addc_u32 s{sP+1}, s{sP+1}, 0
        s_mov_b32 s{sP+2}, K2_CODE_END-{frm}
        s_mov_b32 s{sP+3}, 0x20000
        s_bfe_u32 s{st0}, s2, 0x40003
        s_lshl_b32 s{st0}, s{st0}, 12
        v_lshlrev_b32 v33, 7, v0
        v_cmp_gt_u32 vcc, 32, v0
        s_and_saveexec_b64 s[80:81], vcc
        s_cbranch_execz K1_NOPC0
        buffer_load_dword v34, v33, {sr(sP,4)}, s{st0} offen
        K1_NOPC0:
        s_mov_b64 exec, s[80:81]
        K1_NOPC:
        """)
    if OPT.get("pf1", "0") == "1":
        a(f"""
        s_getpc_b64 {sr(sP,2)}
        K1_PC1:
        s_mov_b32 s{sP+2}, K1_END-K1_PC1
        s_mov_b32 s{sP+3}, 0x20000
        v_lshlrev_b32 v33, 7, v0
        buffer_load_dword v34, v33, {sr(sP,4)}, 0 offen
        """)
    a(f"""
    v_lshrrev_b32 v2, 6, v0
    v_lshlrev_b32 v1, 2, v0
    v_readfirstlane_b32 s{sw}, v2
    v_lshlrev_b32 v2, 4, v0
    s_mov_b32 s{c8192}, 8192
    s_sub_u32 s{sch}, s2, {NCH}
    s_and_b32 s{shf}, s2, 1
    v_and_b32 v{vg}, 63, v0
    v_lshrrev_b32 v{vg+1}, 4, v{vg}
    v_and_b32 v{vg+2}, 15, v0
    s_and_b32 s{st0}, s{sw}, 3
    s_lshl_b32 s{st0}, s{st0}, 2
    v_add_u32 v{vg+3}, s{st0}, v{vg+1}
    v_xor_b32 v{vg+3}, v{vg+3}, v{vg+2}
    v_lshlrev_b32 v{vg+3}, 4, v{vg+3}
    v_lshl_add_u32 v{vg+3}, v{vg+1}, 8, v{vg+3}
    v_lshrrev_b32 v{vg+4}, 3, v{vg}
    v_and_b32 v{vg+5}, 2, v{vg+4}
    s_lshr_b32 s{st0}, s2, 3
    s_add_u32 s{st0}, s{st0}, s{sw}
    s_and_b32 s{st0}, s{st0}, 1
    s_lshl_b32 s{st0}, s{st0}, 2
    v_and_b32 v{vg+6}, 7, v0
    v_xor_b32 v{vg+5}, v{vg+5}, v{vg+6}
    v_xor_b32 v{vg+5}, s{st0}, v{vg+5}
    v_lshlrev_b32 v{vg+5}, 4, v{vg+5}
    v_lshl_add_u32 v{vg+4}, v{vg+4}, 8, v{vg+5}
    s_lshr_b32 s{st0}, s2, 1
    s_mul_i32 s{srow}, s{st0}, {RLO}
    s_mul_i32 s{st0}, s{st0}, {RHI}
    s_add_u32 s{st0}, s{st0}, {64*(RLO-RHI)}
    s_cmp_lt_u32 s2, {NCH}
    s_cselect_b32 s{srow}, s{srow}, s{st0}
    s_cselect_b32 s{snr}, {RLO}, {RHI}
    s_min_u32 s{srow}, s{srow}, {N}
    s_sub_u32 s{st0}, {N}, s{srow}
    s_min_u32 s{snr}, s{snr}, s{st0}
    s_mul_i32 s{st1}, s{sch}, {CS*4}
    s_cmp_lt_u32 s2, 252
    s_waitcnt lgkmcnt(0)
    s_cselect_b64 {sr(sW1,2)}, s[14:15], s[12:13]
    s_cselect_b64 {sr(sW2,2)}, s[20:21], s[18:19]
    s_cmp_lt_u32 s2, {NCH}
    s_cbranch_scc1 K1_NOIDX
    """)
    srd(a, sD, 10, f"s{st1}", CS*4)
    srd(a, sS, 8, f"s{st1}", CS*4)
    a(f"""
    buffer_load_dwordx4 {vr(vD,4)}, v2, {sr(sD,4)}, 0 offen
    buffer_load_dwordx4 {vr(vS,4)}, v2, {sr(sS,4)}, 0 offen
    buffer_load_dword v{vD+4}, v1, {sr(sD,4)}, s{c8192} offen
    buffer_load_dword v{vS+4}, v1, {sr(sS,4)}, s{c8192} offen
    s_barrier
    K1_NOIDX:
    s_lshl_b32 s{st0}, s{srow}, 8
    s_add_u32 s{sX}, s4, s{st0}
    s_addc_u32 s{sX+1}, s5, 0
    s_lshl_b32 s{sX+2}, s{snr}, 8
    s_mov_b32 s{sX+3}, 0x20000
    s_cmp_lt_u32 s2, 254
    s_cselect_b32 s{sW1+2}, 32768, 0
    s_mov_b32 s{sW1+3}, 0x20000
    s_and_b32 s{st0}, s2, 0xfe
    s_cmp_lg_u32 s{st0}, 252
    s_cselect_b32 s{sW2+2}, 32768, 0
    s_mov_b32 s{sW2+3}, 0x20000
    s_lshl_b32 s{shf+1}, s{shf}, 7
    s_lshl_b32 s{st1}, s{sw}, 10
    """)
    def dma_x(k):
        a(f"s_add_u32 m0, s{st1}, {K1_X + 8192*k}\ns_add_u32 s{st2}, s{st1}, {8192*k}\nbuffer_load_dwordx4 v{vg+3}, {sr(sX,4)}, s{st2} offen lds")
    def stage_w():
        a(f"s_lshr_b32 s{st2}, s2, 3\ns_add_u32 s{st2}, s{st2}, s{sw}\ns_and_b32 s{st2}, s{st2}, 15")
        for k in range(2):
            a(f"""
            s_lshl_b32 s{st0}, s{st2}, 10
            s_add_u32 m0, s{st0}, {K1_W}
            s_lshl_b32 s{st1}, s{st2}, 11
            s_add_u32 s{st1}, s{st1}, s{shf+1}
            buffer_load_dwordx4 v{vg+4}, {sr(sW1,4)}, s{st1} offen lds
            s_add_u32 m0, s{st0}, {K1_W+16384}
            s_xor_b32 s{st2}, s{st2}, 8
            buffer_load_dwordx4 v{vg+4}, {sr(sW2,4)}, s{st1} offen lds
            """)
    if OPT.get("wt", "0") == "1":
        a(f"""
        s_cmp_eq_u32 s{sw}, 0
        s_cbranch_scc0 K1_NOWT
        s_bfe_u32 s{st0}, s2, 0x40003
        s_lshl_b32 s{st0}, s{st0}, 11
        s_add_u32 s{st0}, s{st0}, s{shf+1}
        v_lshlrev_b32 v33, 8, v0
        s_mov_b64 exec, 0xff
        buffer_load_dword v34, v33, {sr(sW1,4)}, s{st0} offen
        buffer_load_dword v34, v33, {sr(sW2,4)}, s{st0} offen
        s_mov_b64 exec, -1
        K1_NOWT:
        """)
    if OPT.get("lord"):
        a(f"s_sub_u32 s{st0}, s2, {NCH}\ns_cmp_lt_u32 s{st0}, {252-NCH}\ns_cbranch_scc1 K1_HIX")
        if OPT["lord"] == "1":
            stage_w(); a(f"s_lshl_b32 s{st1}, s{sw}, 10"); dma_x(0); dma_x(1); dma_x(2)
        else:
            dma_x(0); stage_w(); a(f"s_lshl_b32 s{st1}, s{sw}, 10"); dma_x(1); dma_x(2)
        a("s_branch K1_LATER\nK1_HIX:")
        dma_x(0); dma_x(1)
    else:
        dma_x(0); dma_x(1)
        a(f"s_sub_u32 s{st0}, s2, {NCH}\ns_cmp_lt_u32 s{st0}, {252-NCH}\ns_cbranch_scc1 K1_LATER")
        dma_x(2)
        if RLO > 96: a(f"s_cmp_lt_u32 s{sw}, 4\ns_cbranch_scc0 K1_X3"); dma_x(3); a("K1_X3:")
        stage_w()
    a(f"""
    K1_LATER:
    s_and_b32 s{sfb}, s{sw}, 1
    s_lshr_b32 s{snb}, s{sw}, 1
    v_bfe_u32 v{vg+5}, v0, 2, 2
    v_bfe_u32 v{vg+6}, v0, 3, 2
    s_lshl_b32 s{st0}, s{sfb}, 1
    v_xor_b32 v{vg+6}, s{st0}, v{vg+6}
    v_and_b32 v{vg+7}, 3, v0
    v_lshlrev_b32 v{vg+7}, 3, v{vg+7}
    v_lshl_add_u32 v{vg+7}, v{vg+6}, 5, v{vg+7}
    v_lshl_add_u32 v{vg+5}, v{vg+1}, 3, v{vg+5}
    v_lshl_add_u32 v{vTR}, v{vg+5}, 7, v{vg+7}
    v_xor_b32 v{vTR+6}, 32, v{vTR}
    v_xor_b32 v{vXA}, v{vg+1}, v{vg+2}
    v_lshlrev_b32 v{vXA}, 4, v{vXA}
    v_lshl_add_u32 v{vXA}, v{vg+2}, 8, v{vXA}
    s_lshl_b32 s{st0}, s{snb}, 12
    s_add_u32 s{st0}, s{st0}, {K1_X}
    v_add_u32 v{vXA}, s{st0}, v{vXA}
    v_xor_b32 v{vXA+2}, 64, v{vXA}
    v_xor_b32 v{vXA+3}, 0x80, v{vXA}
    v_xor_b32 v{vXA+4}, 0xc0, v{vXA}
    v_mul_u32_u24 v{vST}, {TS}, v{vg+2}
    v_lshl_add_u32 v{vST}, v{vg+1}, 4, v{vST}
    s_mul_i32 s{ctso}, s{snb}, {16*TS}
    s_lshl_b32 s{st1}, s{shf}, 8
    s_add_u32 s{ctso}, s{ctso}, s{st1}
    s_lshl_b32 s{st1}, s{sfb}, 6
    s_add_u32 s{ctso}, s{ctso}, s{st1}
    s_mov_b32 s{cnl2e}, {NL2E:#x}
    s_mov_b32 s{csign}, 0x00800000
    s_mov_b32 s{cmag}, 0x7fffffff
    s_mov_b32 s{cp0}, 0x07060100
    s_mov_b32 s{cp0+1}, 0x07060302
    s_mul_i32 s{st0}, s{srow}, {TS}
    s_add_u32 s{st0}, s{st0}, {T_OFF}
    s_mul_i32 s{st1}, s{snr}, {TS}
    """)
    srd(a, sT, 22, f"s{st0}", f"s{st1}")
    stamp(a, 1)
    a(f"s_cmp_lt_u32 s2, {NCH}\ns_cbranch_scc1 K1_NOBIN")
    a(f"""
    v_mov_b32 v{vt}, -1
    v_mov_b32 v{vt+1}, -1
    v_mov_b32 v{vt+2}, -1
    v_mov_b32 v{vt+3}, -1
    v_mov_b32 v{vt+5}, 0
    v_and_b32 v{vt+6}, 0x3fc, v1
    """)
    for k in range(4): a(f"ds_write_b128 v2, {vr(vt,4)} offset:{K1_STG+8192*k}")
    a(f"""
    ds_write_b32 v{vt+6}, v{vt+5} offset:{K1_CNT}
    s_lshl_b32 s{st0}, s{sch}, 7
    s_add_u32 s{st0}, s{st0}, {REC_OFF}
    """)
    srd(a, sR, 22, f"s{st0}", NBIN*NCH*128)
    a(f"s_lshl_b32 s{st0}, s{sch}, 9\ns_add_u32 s{st1}, s{st0}, {LUT_OFF}")
    srd(a, sP, 22, f"s{st1}", 512)
    l0, l1 = vt+10, vt+11
    a(f"""
    v_add_u32 v{l0}, s{st0}, v1
    v_and_b32 v{l1}, 0x7fff, v{l0}
    v_cmp_ne_u32 vcc, 0x7c00, v{l1}
    v_or_b32 v{l1}, 3, v{l0}
    s_nop 0
    v_addc_co_u32 v{l0}, vcc, 0, v{l0}, vcc
    v_cvt_f32_f16 v{l1}, v{l1}
    v_cvt_f32_f16 v{l0}, v{l0}
    v_exp_f32 v{l1}, v{l1}
    v_exp_f32 v{l0}, v{l0}
    v_add_f32 v{l1}, 1.0, v{l1}
    v_add_f32 v{l0}, 1.0, v{l0}
    v_rcp_f32 v{l1}, v{l1}
    v_rcp_f32 v{l0}, v{l0}
    s_mov_b32 s{cm10}, {-GN}
    v_cvt_pk_bf16_f32 v{l0}, v{l0}, v{l1}
    v_mov_b32 v{vt+5}, 1
    v_cmp_gt_u32 vcc, {CS-2048}, v0
    s_mov_b64 s[80:81], vcc
    v_lshrrev_b32 v{vt+7}, 3, v0
    v_and_b32 v{vt+8}, 7, v0
    v_lshlrev_b32 v{vt+9}, 14, v{vt+7}
    v_lshl_add_u32 v{vt+9}, v{vt+8}, 4, v{vt+9}
    v_lshlrev_b32 v{vt+7}, 2, v{vt+7}
    v_cmp_eq_u32 s[82:83], 7, v{vt+8}
    v_and_b32 v{vt+8}, 4, v{vt+8}
    v_lshlrev_b32 v{vt+8}, {2 if OPT.get("half", "0") == "1" else 0}, v{vt+8}
    v_and_b32 v{vt+8}, 16, v{vt+8}
    s_waitcnt lgkmcnt(0)
    s_barrier
    s_cmp_ge_u32 s2, 252
    s_cbranch_scc1 K1_W7
    s_waitcnt vmcnt(2)
    K1_W7:
    s_waitcnt vmcnt(7)
    """)
    stamp(a, 2)
    for r in range(5):
        rec_fields(a, vD+r, vB+r, vt, None, cm10)
        a(f"v_lshlrev_b32 v{vt}, 2, v{vB+r}")
        if r == 4: a("s_mov_b64 exec, s[80:81]")
        a(f"ds_add_rtn_u32 v{vSL+r}, v{vt}, v{vt+5} offset:{K1_CNT}")
        if r == 4: a("s_mov_b64 exec, -1")
    a("s_cmp_ge_u32 s2, 252\ns_cbranch_scc1 K1_NOWC")
    stage_w()
    a(f"""
    s_cmp_eq_u32 s2, 250
    s_cbranch_scc0 K1_NOWC
    """)
    srd(a, sS, 16, None, 4096)
    a(f"""
    v_lshrrev_b32 v{vWC+8}, 5, v{vg}
    """)
    pair_of_lane(a, vWC+9, vWC+10)
    a(f"""
    v_lshl_add_u32 v{vWC+9}, v{vWC+8}, 11, v{vWC+9}
    s_bfe_u32 s{st1}, s{sw}, 0x10001
    s_lshl_b32 s{st1}, s{st1}, 7
    s_lshl_b32 s{st0}, s{sfb}, 1
    s_add_u32 s{st1}, s{st1}, s{st0}
    """)
    for j in range(8): a(f"buffer_load_ushort v{vWC+j}, v{vWC+9}, {sr(sS,4)}, s{st1} offen offset:{256*j}")
    a("K1_NOWC:")
    for r in range(5):
        a(f"v_lshl_or_b32 v{vD+r}, v{vS+r}, 16, v{vD+r}")
        a(f"v_add_u32 v{vS+r}, {r}, v1" if r < 4 else f"v_add_u32 v{vS+r}, 2048, v0")
        a(f"v_lshl_or_b32 v{vD+r}, v{vS+r}, 4, v{vD+r}\nv_lshlrev_b32 v{vB+r}, 7, v{vB+r}")
    for r in range(5):
        a("s_waitcnt lgkmcnt(4)")
        if r == 4: a("s_mov_b64 exec, s[80:81]")
        a(f"""
        v_and_b32 v{vt}, 12, v{vSL+r}
        v_add_u32 v{vB+r}, v{vB+r}, v{vt}
        v_and_b32 v{vt}, 3, v{vSL+r}
        v_lshl_add_u32 v{vB+r}, v{vt}, 4, v{vB+r}
        v_and_b32 v{vt}, 16, v{vSL+r}
        v_lshl_add_u32 v{vB+r}, v{vt}, 2, v{vB+r}
        v_cmpx_gt_u32 vcc, {CAP}, v{vSL+r}
        ds_write_b32 v{vB+r}, v{vD+r} offset:{K1_STG}
        s_mov_b64 exec, -1
        """)
    MB = OPT.get("mb", "1") == "1"
    a(f"s_waitcnt {'vmcnt(0) ' if MB else ''}lgkmcnt(0)\ns_barrier")
    for k in range(4):
        a(f"ds_read_b128 {vr(4+4*k,4)}, v2 offset:{K1_STG+8192*k}\nds_read_b32 v{20+k}, v{vt+7} offset:{K1_CNT+256*k}")
    a(f"""
    v_mov_b32 v{vt+2}, -2
    s_mov_b32 s{st2}, 0
    buffer_store_dword v{l0}, v1, {sr(sP,4)}, 0 offen {OPT['st_r']}
    """)
    stamp(a, 3)
    for k in range(4):
        a(f"""
        s_waitcnt lgkmcnt({6-2*k})
        v_cmp_lt_u32 vcc, {CAP}, v{20+k}
        v_cmp_le_u32 s[78:79], v{vt+8}, v{20+k}
        s_and_b64 vcc, vcc, s[82:83]
        s_nop 0
        v_cndmask_b32 v{7+4*k}, v{7+4*k}, v{vt+2}, vcc
        s_mov_b64 exec, s[78:79]
        buffer_store_dwordx4 {vr(4+4*k,4)}, v{vt+9}, {sr(sR,4)}, s{st2} offen {OPT['st_r']}
        s_mov_b64 exec, -1
        s_add_u32 s{st2}, s{st2}, {64*16384}
        """)
    a(f"""
    {'s_branch K1_STAGED2' if MB else 's_waitcnt vmcnt(5)'}
    {'' if MB else 's_branch K1_STAGED'}
    K1_NOBIN:
    """)
    if OPT.get("pf", "4") == "1":
        a(f"""
        s_getpc_b64 {sr(sP,2)}
        K1_PC:
        s_add_u32 s{sP}, s{sP}, k2_kernel-K1_PC
        s_addc_u32 s{sP+1}, s{sP+1}, 0
        s_mov_b32 s{sP+2}, K2_CODE_END-k2_kernel
        s_mov_b32 s{sP+3}, 0x20000
        s_bfe_u32 s{st0}, s2, 0x40003
        s_lshl_b32 s{st0}, s{st0}, 12
        v_lshlrev_b32 v33, 7, v0
        v_cmp_gt_u32 vcc, 32, v0
        s_and_saveexec_b64 s[80:81], vcc
        s_cbranch_execz K1_NOPC
        buffer_load_dword v34, v33, {sr(sP,4)}, s{st0} offen
        s_mov_b64 exec, s[80:81]
        s_waitcnt vmcnt(1)
        s_branch K1_PCD
        K1_NOPC:
        s_mov_b64 exec, s[80:81]
        s_waitcnt vmcnt(0)
        K1_PCD:
        """)
    else: a("s_waitcnt vmcnt(0)")
    stamp(a, 2); stamp(a, 3)
    a(f"""
    K1_STAGED:
    s_barrier
    K1_STAGED2:
    """)
    stamp(a, 4)
    if OPT.get("pf", "4") == "2":
        assert 64*RLO + 59*RHI >= N
        a(f"""
        s_sub_u32 s{st0}, s2, 246
        s_cmp_lt_u32 s{st0}, 8
        s_cbranch_scc0 K1_NOPC
        s_getpc_b64 {sr(sP,2)}
        K1_PC:
        s_add_u32 s{sP}, s{sP}, k2_kernel-K1_PC
        s_addc_u32 s{sP+1}, s{sP+1}, 0
        s_mov_b32 s{sP+2}, K2_CODE_END-k2_kernel
        s_mov_b32 s{sP+3}, 0x20000
        v_lshlrev_b32 v33, 7, v0
        buffer_load_dword v34, v33, {sr(sP,4)}, 0 offen
        s_cmp_eq_u32 s2, 252
        s_cbranch_scc0 K1_END
        K1_NOPC:
        """)
    PM = int(OPT.get("pm", "0"))
    if PM:
        a(f"s_mul_i32 s{st0}, s2, {313*128}\ns_sub_u32 s{st1}, {E*32}, s{st0}\ns_min_u32 s{st1}, s{st1}, {PM*128}")
        if OPT.get("pmlo"): a(f"s_cmp_lt_u32 s2, {NCH}\ns_cselect_b32 s{st1}, s{st1}, 0")
        srd(a, sP, 6, f"s{st0}", f"s{st1}")
        a(f"v_xor_b32 v33, 0x1c0, v0\nv_lshlrev_b32 v33, 7, v33\nbuffer_load_dword v34, v33, {sr(sP,4)}, 0 offen")
    a(f"""
    s_cmp_eq_u32 s2, 250
    s_cbranch_scc1 K1_WC
    """)
    def xrd(reg, off):
        for s in range(4): a(f"ds_read_b128 {vr(reg+4*s,4)}, v{[vXA, vXA+2, vXA+3, vXA+4][s]} offset:{off}")
    def trs(s):
        for m in range(2):
            for ab in range(2):
                for u in range(2):
                    a(f"ds_read_b64_tr_b16 {vr(W(m,ab,s)+2*u,2)}, v{vTR+6*ab} offset:{K1_W+m*16384+s*4096+u*512}")
    def mm(s, x, acc):
        return [f"v_mfma_f32_16x16x32_bf16 {vr(acc+8*m+4*ab,4)}, {vr(W(m,ab,s),4)}, {vr(x+4*s,4)}, {'0' if s == 0 else vr(acc+8*m+4*ab,4)}"
                for m in range(2) for ab in range(2)]
    def pack(acc, out):
        o = []
        for b in range(2):
            for ab in range(2):
                b0, b1 = acc+4*ab+b, acc+4*ab+2+b
                hs = [acc+8+4*ab+2*e_+b for e_ in range(2)]
                o += [f"v_mul_f32 v{b0}, s{cnl2e}, v{b0}", f"v_mul_f32 v{b1}, s{cnl2e}, v{b1}"]
                for e_, h in enumerate(hs): o += [f"v_max_f32 v{30+e_}, abs(v{h}), s{csign}", f"v_bfi_b32 v{h}, s{cmag}, v{30+e_}, v{h}"]
                o += [f"v_cvt_pk_bf16_f32 v{b0}, v{b0}, v{b1}"] + [f"v_add_u32 v{h}, 0x8000, v{h}" for h in hs]
                o += [f"v_sub_u32_sdwa v{h}, v{h}, v{b0} dst_sel:DWORD dst_unused:UNUSED_PAD src0_sel:DWORD src1_sel:WORD_{e_}" for e_, h in enumerate(hs)]
                o += [f"v_perm_b32 v{out+4*b+2*ab+e_}, v{h}, v{b0}, s{cp0+e_}" for e_, h in enumerate(hs)]
            o.append(f"buffer_store_dwordx4 {vr(out+4*b,4)}, v{vST}, {sr(sT,4)}, s{ctso} offen offset:{128*b} {OPT['st_t']}")
        return o
    xrd(vX, 0)
    trs(0); a("s_waitcnt lgkmcnt(6)")
    for s in range(1, 4):
        trs(s); a("s_waitcnt lgkmcnt(8)"); a.ext(mm(s-1, vX, vA))
        if s < 3: a("s_waitcnt lgkmcnt(6)")
    a("s_waitcnt lgkmcnt(0)")
    stamp(a, 5)
    a(f"""
    s_cmp_ge_u32 s2, 252
    s_cbranch_scc1 K1_WT
    s_lshl_b32 s{st0}, s{snb}, 4
    s_add_u32 s{st0}, s{st0}, 64
    s_cmp_lt_u32 s{st0}, s{snr}
    s_cbranch_scc0 K1_ONE
    """)
    vX2, vA2 = 208, 224
    xrd(vX2, 16384)
    g = mm(3, vX, vA) + ["s_waitcnt lgkmcnt(0)"]
    m2 = sum((mm(s, vX2, vA2) for s in range(4)), []); pk = pack(vA, vO)
    g += m2[:6]; k = 0
    for x in m2[6:]:
        g.append(x); g += pk[k:k+3]; k += 3
    g += pk[k:] + [f"s_add_u32 s{ctso}, s{ctso}, {64*TS}"] + pack(vA2, vO+8)
    asmsim.check_hazards(g, "k1 two blocks")
    a.ext(g)
    a("s_branch K1_TAIL\nK1_ONE:")
    g = mm(3, vX, vA) + ["s_nop 7"] + pack(vA, vO)
    asmsim.check_hazards(g, "k1 one block")
    a.ext(g)
    a("K1_TAIL:")
    PL = int(OPT.get("pl", "0"))
    if PL:
        a(f"""
        s_cmp_lt_u32 s2, {NCH}
        s_cbranch_scc0 K1_NOPF
        s_mul_i32 s{st0}, s2, {CS*32}
        """)
        srd(a, sP, 6, f"s{st0}", PL*128)
        a(f"""
        v_lshlrev_b32 v4, 7, v0
        s_mov_b32 s{st0}, 65536
        s_barrier
        buffer_load_dword v5, v4, {sr(sP,4)}, 0 offen
        buffer_load_dword v5, v4, {sr(sP,4)}, s{st0} offen
        K1_NOPF:
        """)
    stamp(a, 6); stamp(a, 7)
    stamp_out(a, 0, 22, sw, 2)
    a("s_endpgm")
    a("K1_WT:")
    srd(a, sT, 22, WT_OFF, 65536)
    a(f"""
    s_cmp_ge_u32 s{sw}, 4
    s_cbranch_scc1 K1_END
    v_lshlrev_b32 v2, 4, v{vg}
    s_and_b32 s{st0}, s2, 3
    s_lshl_b32 s{st0}, s{st0}, 1
    s_add_u32 s{st0}, s{st0}, s{sfb}
    s_lshl_b32 s{st0}, s{st0}, 1
    s_add_u32 s{st0}, s{st0}, s{snb}
    s_lshl_b32 s{st0}, s{st0}, 12
    s_and_b32 s{st1}, s2, 2
    s_add_u32 s{st1}, s{st1}, s{snb}
    """)
    for k in range(4):
        if k < 3: a(f"s_cmp_eq_u32 s{st1}, {k}\ns_cbranch_scc0 K1_WT{k}")
        for s in range(4):
            a(f"buffer_store_dwordx4 {vr(W(k >> 1, k & 1, s),4)}, v2, {sr(sT,4)}, s{st0} offen offset:{1024*s} {OPT['st_t']}")
        a("s_branch K1_TAIL" if OPT.get("prof") else "s_endpgm")
        if k < 3: a(f"K1_WT{k}:")
    a("K1_WC:")
    srd(a, sT, 22, WT_OFF+65536, 4096)
    a(f"v_lshlrev_b32 v2, 4, v{vg}\ns_lshl_b32 s{st0}, s{sw}, 10")
    for j in range(8):
        a(f"v_lshlrev_b32 v{vWC+j}, 16, v{vWC+j}\nv_mul_f32 v{vWC+j}, s{cnl2e}, v{vWC+j}")
    for j in range(4):
        a(f"v_cvt_pk_bf16_f32 v{84+j}, v{vWC+2*j}, v{vWC+1+2*j}")
    a(f"buffer_store_dwordx4 v[84:87], v2, {sr(sT,4)}, s{st0} offen {OPT['st_t']}")
    if OPT.get("prof"): a("s_branch K1_TAIL")
    a("K1_END:\ns_endpgm")
    return a.text(), kd("k1_kernel", 240, 102)

CAPG = 416; RND = 400
CNT = 0; FLG = 256; START = 512; INCL = 768; OHL = 1024; L1 = 1536; L2 = L1 + 4*CAPG*4; APL = L2 + 4*CAPG*4
ROWP = 272
UL = APL + 48*ROWP; LUTL = UL + 48*ROWP; STG = (LUTL + 65536 + 255)//256*256; XL = STG + 3*CAPG*32 + 5*1024; K2_LDS = XL + 12288
PROG = FLG + 32
assert K2_LDS <= 163840 and K2_LDS >= STG + 4*CAPG*32 and LUTL <= 65535 and (4*CAPG*4) % 256 == 0

def gen_k2():
    a = Asm()
    sREC, sX, sWT, sT, sE, sO, sD, sS = 24, 28, 32, 36, 40, 44, 68, 72
    sw, sg, sfh, st0, st1, st2 = 48, 49, 50, 51, 52, 53
    scount, sslow, sround, slim, sgb, srt, slut, srank = 54, 55, 56, 57, 58, 59, 82, 83
    stail = 20; stot = 80
    sdma, sm0, sneed = 21, 22, 23
    cm32, c128, cnl2e, cfc, csrc, cm40, cm10, cfe = 60, 61, 62, 63, 64, 65, 66, 67
    sk = 16
    vH16, vA1, vA2, vEa, vOa, vO, vA3 = 1, 2, 3, 4, 5, 6, 7
    WC = 8; AP = 16; PA = 24; SC = 28; OH = 32; EA = 40; ADDR = 48; ACC = 64; SP = 96; G = 112; RAW = 176
    XR = 240; UR = 246; vP16 = 252; vH256 = 253; vHS = 254; vPG = 255; vM15 = XR; vO2 = SP+8
    raw = lambda p, b: RAW + 32*p + 16*b
    gb = lambda p, b: G + 32*p + 16*b
    vt = gb(1, 1); Z = SP; EOFF = SP+14
    REC = raw(1, 0); CADDR = REC+16; RANK = G; STV = G+16
    NTB = [int(c_) for c_ in OPT.get("nt", "11")]
    rowoff = lambda r: 8*(r >> 2) + (r & 3)
    sd = "dst_sel:DWORD dst_unused:UNUSED_PAD src0_sel:DWORD"

    a("k2_kernel:")
    a(f"s_cmp_ge_u32 s2, {NBIN}\ns_cbranch_scc1 K2_END")
    stamp(a, 0)
    a(f"""
    s_load_dwordx8 s[4:11], s[0:1], 0
    s_load_dwordx2 s[12:13], s[0:1], 72
    s_load_dwordx2 s[14:15], s[0:1], 88
    v_lshrrev_b32 v{vt}, 6, v0
    v_lshrrev_b32 v{vt+1}, 2, v0
    v_readfirstlane_b32 s{sw}, v{vt}
    v_and_b32 v{vt+2}, 3, v0
    v_lshlrev_b32 v{vt+3}, 7, v{vt+1}
    v_lshl_add_u32 v{vt+3}, v{vt+2}, 4, v{vt+3}
    s_lshl_b32 s{st0}, s2, 14
    s_add_u32 s{st0}, s{st0}, {REC_OFF}
    v_and_b32 v{vt}, 63, v0
    v_lshlrev_b32 v{vt+5}, 3, v{vt}
    v_mov_b32 v{Z}, 0
    v_mov_b32 v{Z+1}, 0
    ds_write_b64 v{vt+5}, {vr(Z,2)} offset:{CNT}
    s_and_b32 s{sg}, s{sw}, 3
    s_lshr_b32 s{sfh}, s{sw}, 2
    v_lshlrev_b32 v{vA2}, 4, v{vt}
    s_mov_b32 s{st1}, 8192
    s_waitcnt lgkmcnt(0)
    """)
    if OPT.get("lat"):
        kind = OPT["lat"]
        if kind in "TSO": srd(a, sS, 14, T_OFF, N*TS)
        if kind == "R": srd(a, sS, 14, REC_OFF, 4 << 20)
        if kind == "x": srd(a, sS, 4, None, N*256)
        if kind == "e": srd(a, sS, 6, None, E*32)
        a(f"""
        s_cmp_eq_u32 s{sw}, 0
        s_cbranch_scc0 K2_NOLAT
        s_lshl_b32 s{st2}, s2, 13
        v_lshlrev_b32 v{vt+9}, 7, v{vt}
        """)
        if kind in "SO":
            a(f"""
            s_and_b32 s{st2}, s2, 127
            s_lshr_b32 s{st2}, s{st2}, 1
            s_mul_i32 s{st2}, s{st2}, {96*512}
            s_and_b32 s16, s2, 1
            s_xor_b32 s16, s16, {0 if kind == "S" else 1}
            s_lshl_b32 s16, s16, 8
            s_add_u32 s{st2}, s{st2}, s16
            v_lshrrev_b32 v{vt+9}, 1, v{vt}
            v_lshlrev_b32 v{vt+9}, 9, v{vt+9}
            v_and_b32 v{vt+10}, 1, v{vt}
            v_lshl_add_u32 v{vt+9}, v{vt+10}, 7, v{vt+9}
            """)
        a(f"""
        s_memrealtime s[86:87]
        buffer_load_dword v{vt+10}, v{vt+9}, {sr(sS,4)}, s{st2} offen
        s_waitcnt vmcnt(0)
        s_memrealtime s[88:89]
        K2_NOLAT:
        s_barrier
        """)
    a(f"""
    s_cmp_lg_u32 s{sfh}, 0
    s_cbranch_scc1 K2_NOREC
    """)
    srd(a, sREC, 14, f"s{st0}", 16384)
    for u in range(2):
        for r in range(2):
            a(f"buffer_load_dwordx4 {vr(REC+8*r+4*u,4)}, v{vt+3}, {sr(sREC,4)}, {'s%d' % st1 if u else '0'} offen offset:{64*r}")
    TP0 = int(OPT.get("tp0", "0"))
    if TP0:
        srd(a, sS, 14, T_OFF, N*TS)
        a(f"""
        s_bfe_u32 s{st0}, s2, 0x50003
        s_mul_i32 s{st0}, s{st0}, {TP0}
        s_add_u32 s{st0}, s{st0}, s{sw}
        s_lshl_b32 s{st0}, s{st0}, 13
        s_cmp_lt_u32 s{sw}, {TP0}
        s_cselect_b32 s{sS+2}, s{sS+2}, 0
        v_lshlrev_b32 v{vt+9}, 7, v{vt}
        buffer_load_dword v{vt+10}, v{vt+9}, {sr(sS,4)}, s{st0} offen
        """)
    a(f"""
    K2_NOREC:
    s_mul_i32 s{st0}, s2, 625
    s_add_u32 s{cm40}, s{st0}, 625
    s_lshr_b32 s{st0}, s{st0}, 4
    s_lshr_b32 s{cm40}, s{cm40}, 4
    s_sub_u32 s{cm40}, s{cm40}, s{st0}
    s_lshl_b32 s{cm40}, s{cm40}, 8
    s_lshl_b32 s{st0}, s{st0}, 8
    """)
    srd(a, sX, 4, f"s{st0}", f"s{cm40}")
    srd(a, sO, 12, f"s{st0}", f"s{cm40}")
    srd(a, sWT, 14, WT_OFF, LUT_OFF - WT_OFF + 65536)
    a("s_barrier")
    stamp(a, 1)
    def ld_wc():
        a(f"""
        s_lshl_b32 s{st1}, s{sfh}, 11
        s_add_u32 s{st1}, s{st1}, 65536
        buffer_load_dwordx4 {vr(WC,4)}, v{vA2}, {sr(sWT,4)}, s{st1} offen
        buffer_load_dwordx4 {vr(WC+4,4)}, v{vA2}, {sr(sWT,4)}, s{st1} offen offset:1024
        """)
    def common1(Z, vl):
        a = Asm()
        a(f"s_lshl_b32 s{st0}, s{sfh}, 8\ns_add_u32 s{st0}, s{st0}, {T_OFF-128}")
        srd(a, sT, 14, f"s{st0}", 64, w3="0x800000", hi_or="0x40000")
        srd(a, sE, 6, None, E*32)
        a(f"""
        s_mov_b32 s{cm32}, {'0x7e0' if 'e' in OPT.get('nomem','') else '0x1fffe0' if 's' in OPT.get('nomem','') else '0xffffffe0'}
        s_mov_b32 s{c128}, 128
        s_mov_b32 s{cnl2e}, {NL2E + (16 << 23):#x}
        s_mov_b32 s{cfc}, 0xfc
        s_mov_b32 s{cfe}, {OPT.get('cfe', '0xfffe')}
        s_mov_b32 s{csrc}, {TS}
        s_mov_b32 s{sslow}, 0
        s_mov_b32 s{sround}, 0
        s_mov_b32 s{sgb}, 0
        s_mov_b32 s{stot}, 0
        s_mul_i32 s{st0}, s{sfh}, 3
        s_xor_b32 s{srank}, s{sg}, s{st0}
        v_lshrrev_b32 v{Z+2}, 5, v{vl}
        v_and_b32 v{Z+3}, 31, v0
        v_lshlrev_b32 v{vH16}, 4, v{Z+2}
        v_lshlrev_b32 v{vH256}, 8, v{Z+2}
        v_and_b32 v{Z+4}, 3, v0
        v_mov_b32 v{Z+6}, 0x3f80
        """)
        for i in range(4):
            a(f"v_cmp_eq_u32 vcc, {i}, v{Z+4}\ns_nop 1\nv_cndmask_b32 v{PA+i}, 0, v{Z+6}, vcc")
        a(f"""
        v_cmp_gt_u32 s[78:79], 16, v{Z+3}
        v_mov_b32 v{Z+5}, {bf(127*2.0**-126):#x}
        v_mov_b32 v{Z+7}, {bf(2.0**16):#x}
        v_cndmask_b32 v{Z+5}, v{Z+7}, v{Z+5}, s[78:79]
        v_and_b32 v{Z+4}, 15, v0
        v_lshlrev_b32 v{Z+8}, 3, v{Z+2}
        v_sub_u32 v{Z+4}, v{Z+4}, v{Z+8}
        v_lshlrev_b32 v{Z+6}, 16, v{Z+5}
        """)
        for d in range(4):
            a(f"""
            v_cmp_eq_u32 vcc, {2*d}, v{Z+4}
            v_cmp_eq_u32 s[78:79], {2*d+1}, v{Z+4}
            s_nop 0
            v_cndmask_b32 v{SC+d}, 0, v{Z+5}, vcc
            v_cndmask_b32 v{Z+8}, 0, v{Z+6}, s[78:79]
            v_or_b32 v{SC+d}, v{SC+d}, v{Z+8}
            """)
        return [x.strip() for x in a.l]
    def ld_xr(): return [f"buffer_load_dword v{XR+r}, v{vO}, {sr(sX,4)}, 0 offen offset:{256*rowoff(r)} " for r in range(6)]
    def arrive(k):
        a(f"""
        v_mov_b32 v{vt+6}, {FLG+4*k}
        v_mov_b32 v{vt+7}, 1
        s_mov_b64 exec, 1
        ds_add_u32 v{vt+6}, v{vt+7}
        s_mov_b64 exec, -1
        """)
    def spin(k, n, add=True):
        if add: arrive(k)
        else: a(f"v_mov_b32 v{vt+6}, {FLG+4*k}")
        a(f"""
        K2_SPIN{n}:
        ds_read_b32 v{vt+7}, v{vt+6}
        s_waitcnt lgkmcnt(0)
        v_cmp_gt_u32 vcc, 4, v{vt+7}
        s_cbranch_vccnz K2_SPIN{n}
        """)
    def caddr(k): return f"v_and_b32_sdwa v{CADDR+k}, s{cfc}, v{REC+k} {sd} src1_sel:BYTE_3"
    def pick(sel, cur):
        a(f"""
        s_bitcmp1_b32 s{sel}, 0
        s_cselect_b32 s{cur[0]}, s{cur[1]}, s{cur[0]}
        s_cselect_b32 s{cur[2]}, s{cur[3]}, s{cur[2]}
        s_bitcmp1_b32 s{sel}, 1
        s_cselect_b32 s{st0}, s{cur[2]}, s{cur[0]}
        s_and_b32 s{sg}, s{st0}, 3
        s_andn2_b32 s{st0}, s{st0}, 3
        s_mul_i32 s{sgb}, s{sg}, {CAPG*4}
        s_add_u32 s{scount}, s{st0}, 127
        s_lshr_b32 s{scount}, s{scount}, 7
        s_add_u32 s{stail}, s{st0}, 124
        s_bfe_u32 s{stail}, s{stail}, 0x20005
        s_lshl_b32 s{stail}, s{stail}, 1
        s_add_u32 s{stail}, s{stail}, 2
        """)
    def rank_groups():
        a(f"s_add_u32 s{stot}, s{sk}, s{sk+1}\ns_add_u32 s{st1}, s{sk+2}, s{sk+3}\ns_add_u32 s{stot}, s{stot}, s{st1}")
        for g in range(1, 4): a(f"s_or_b32 s{sk+g}, s{sk+g}, {g}")
        cur = [sk, sk+1, sk+2, sk+3]; spare = sk+4
        for (i, j) in ((0, 1), (2, 3), (0, 2), (1, 3), (1, 2)):
            a(f"s_max_u32 s{spare}, s{cur[i]}, s{cur[j]}\ns_min_u32 s{cur[j]}, s{cur[i]}, s{cur[j]}")
            cur[i], spare = spare, cur[i]
        pick(srank, cur)
    def scan(fast, ks=()):
        x = SP
        a(f"""
        v_and_b32 v{vt}, 63, v0
        """)
        if OPT.get("rot"):
            a(f"""
            s_and_b32 s{st0}, s2, 7
            s_mul_i32 s{st0}, s{st0}, {int(OPT["rot"])}
            s_lshr_b32 s{st0}, s{st0}, 2
            v_add_u32 v{vt+1}, s{st0}, v{vt}
            v_bfi_b32 v{vt+1}, 15, v{vt+1}, v{vt}
            v_lshlrev_b32 v{vt+1}, 2, v{vt+1}
            v_lshlrev_b32 v{vt+5}, 2, v{vt}
            """)
        else: a(f"v_lshlrev_b32 v{vt+1}, 2, v{vt}")
        a(f"""
        ds_read_b32 v{x}, v{vt+1} offset:{CNT}
        v_lshrrev_b32 v{vt}, 4, v{vt}
        v_mul_u32_u24 v{vt}, {CAPG*4}, v{vt}
        v_and_b32 v{vt+2}, 31, v0
        v_lshlrev_b32 v{vt+2}, 2, v{vt+2}
        v_mov_b32 v{vt+4}, 0xfffffe
        s_waitcnt lgkmcnt(0)
        v_sub_u32 v{vt}, v{vt}, v{x}
        """)
        for d in ("row_shr:1", "row_shr:2", "row_shr:4", "row_shr:8"):
            a(f"v_add_u32_dpp v{x}, v{x}, v{x} {d} row_mask:0xf bank_mask:0xf bound_ctrl:0\ns_nop 1")
        a(f"""
        v_add_u32 v{vt}, v{vt}, v{x}
        v_cmp_lt_u32 vcc, {CAPG*4}, v{x}
        """)
        if OPT.get("rot"): a(f"ds_write_b32 v{vt+1}, v{vt} offset:{START}\nds_write_b32 v{vt+5}, v{x} offset:{INCL}")
        else: a(f"ds_write2st64_b32 v{vt+1}, v{vt}, v{x} offset0:{START//256} offset1:{INCL//256}")
        for g in range(4): a(f"v_readlane_b32 s{sk+g}, v{x}, {16*g+15}")
        if fast:
            a("s_cbranch_vccnz K2_GIVEUP")
            for j, k in enumerate(ks): a(f"ds_read_b32 v{STV+j}, v{CADDR+k} offset:{START}")
            rank_groups()
        else:
            for g in range(1, 4): a(f"s_or_b32 s{sk+g}, s{sk+g}, {g}")
            pick(sg, [sk, sk+1, sk+2, sk+3])
        a(f"""
        s_add_u32 s{st0}, s{st0}, s{sgb}
        v_add_u32 v{vt+2}, s{st0}, v{vt+2}
        s_lshl_b32 s{st1}, s{scount}, 7
        s_add_u32 s{st1}, s{st1}, s{sgb}
        v_lshlrev_b32 v{vt+3}, 3, v{vt+2}
        v_and_b32 v{vt+3}, 128, v{vt+3}
        v_cmpx_gt_u32 vcc, s{st1}, v{vt+2}
        ds_write2st64_b32 v{vt+2}, v{vt+3}, v{vt+4} offset0:{L1//256} offset1:{L2//256}
        s_mov_b64 exec, -1
        """)
    def place(k, st, eo):
        a(f"""
        v_add_u32 v{st}, v{st}, v{RANK+k}
        v_bfe_u32 v{vt}, v{REC+k}, 16, {5 if 't' in OPT.get('nomem','') else 14}
        v_lshlrev_b32 v{vt+1}, 3, v{st}
        v_mad_u32_u16 v{vt+2}, v{REC+k}, 2, v{eo}
        v_and_b32 v{vt+1}, 128, v{vt+1}
        v_mad_u32_u24 v{vt}, v{vt}, s{csrc}, v{vt+1}
        ds_write2st64_b32 v{st}, v{vt}, v{vt+2} offset0:{L1//256} offset1:{L2//256}
        """)
    def lane_setup():
        a(f"""
        v_and_b32 v{vt}, 31, v0
        v_xor_b32 v{vA1}, 16, v{vH16}
        v_xor_b32 v{vA2}, 4, v{vt}
        v_lshlrev_b32 v{vA2}, 2, v{vA2}
        v_add_u32 v{vA1}, s{sgb}, v{vA1}
        v_add_u32 v{vA2}, s{sgb}, v{vA2}
        s_mul_i32 s{st0}, s{sg}, {GN*256}
        s_lshl_b32 s{st1}, s{sfh}, 7
        s_add_u32 s{st0}, s{st0}, s{st1}
        """)
        pair_of_lane(a, vO, vt+1)
        a(f"""
        v_lshl_add_u32 v{vO}, v{vH256}, 2, v{vO}
        v_add_u32 v{vO}, s{st0}, v{vO}
        v_bfe_u32 v{vA3}, v0, 1, 5
        v_lshlrev_b32 v{vA3}, 2, v{vA3}
        v_add_u32 v{vA3}, s{sgb}, v{vA3}
        v_lshlrev_b32 v{vP16}, 4, v0
        v_xor_b32 v{vP16}, v{vP16}, v0
        v_and_b32 v{vP16}, 16, v{vP16}
        v_lshlrev_b32 v{vHS}, 1, v0
        v_xor_b32 v{vHS}, v{vHS}, v{vH16}
        v_and_b32 v{vHS}, 16, v{vHS}
        v_add_u32 v{vHS}, {STG}, v{vHS}
        s_lshl_b32 s{st0}, s{sg}, 2
        s_add_u32 s{st0}, s{st0}, {PROG}
        v_mov_b32 v{vPG}, s{st0}
        s_lshl_b32 s{sm0}, s{sgb}, 3
        s_add_u32 s{sm0}, s{sm0}, {STG}
        s_mov_b32 s{sdma}, 0
        s_mov_b32 s{sneed}, 0
        s_mov_b32 s{slim}, s{scount}
        """)
    def rd_addr(off, j): return f"ds_read_b128 {vr(ADDR+4*j,4)}, v{vA1} offset:{L1+off+32*j}"
    def rd_l2(reg, off): return f"ds_read_b32 v{reg}, v{vA2} offset:{L2+off}"
    def ld_raw(p, b, r):
        pre = [f"v_and_b32 v{ADDR+r}, 0xffff80, v{ADDR+r}"] if OPT.get("safe") else []
        if OPT.get("noload"): return ["s_nop 0"]
        return pre + [f"buffer_load_dword v{raw(p,b)+r}, v{ADDR+r}, {sr(sT,4)}, 0 offen" + (" offset:128" if b else "") + " " + OPT.get("ft", "")]
    def ld_blk(p, b): return sum((ld_raw(p, b, r) for r in range(16)), [])
    cur = {"r": "P"}
    def rd_l3(off, reg=None): return [f"ds_read_b32 v{reg or vEa}, v{vA3} offset:{L2+off}"] if cur["r"] == "P" else []
    lab = [0]
    def dma_ea(sl, reg=None, check=True):
        if cur["r"] != "P": return []
        reg = reg or vEa
        if not check:
            return [f"s_mov_b32 m0, s{sm0}", f"v_and_or_b32 v{reg}, v{reg}, s{cm32}, v{vP16}",
                    f"buffer_load_dwordx4 v{reg}, {sr(sE,4)}, 0 offen {OPT.get('fe', '')} lds;wr={300+sl}", f"s_add_u32 s{sm0}, s{sm0}, 1024"]
        lab[0] += 1
        return [f"s_cmp_lt_u32 s{sdma}, s{slim}", f"s_cbranch_scc0 K2_ND{lab[0]}", "@D{",
                f"s_mov_b32 m0, s{sm0}", f"v_and_or_b32 v{reg}, v{reg}, s{cm32}, v{vP16}",
                f"buffer_load_dwordx4 v{reg}, {sr(sE,4)}, 0 offen {OPT.get('fe', '')} lds;wr={300+sl}", "@}", f"K2_ND{lab[0]}:",
                f"s_add_u32 s{sdma}, s{sdma}, 1", f"s_add_u32 s{sm0}, s{sm0}, 1024"]
    spins = []
    def rd_prog(): return [f"ds_read_b32 v{vEa}, v{vPG}"] if cur["r"] == "C" else []
    def get_ea(p, sl, off, prev=()):
        o = [f"s_add_u32 s{sneed}, s{sneed}, 1"]
        if cur["r"] == "P":
            o += [f"v_mov_b32 v{vEa}, s{sneed};rd={300+sl}", f"ds_write_b32 v{vPG}, v{vEa}"]
            if prev: o.append("@MOVE 302 300")
        else:
            lab[0] += 1; n = lab[0]; spins.append(n)
            o += [f"v_cmp_gt_u32 vcc, s{sneed}, v{vEa}", f"s_cbranch_vccnz K2_SP{n}", f"K2_OK{n}:"]
        return o + [f"v_lshl_add_u32 v{vEa}, v{vA2}, 3, v{vHS}", f"ds_read_b128 {vr(EA+4*p,4)}, v{vEa} offset:{8*off}"]
    def oh_idx(p):
        return [f"v_and_b32 v{vOa}, 30, v{vOa}",
                f"v_lshl_add_u32 v{vOa}, v{vOa}, 3, v{vH256}",
                f"ds_read_b128 {vr(OH+4*p,4)}, v{vOa} offset:{OHL}"]
    big = "v_mfma_f32_32x32x16_bf16" if not OPT.get("nobig") else "; "
    de = OPT.get("drop", "")
    def mE(p, b): return "; " if "E" in de else f"{big} {vr(gb(p,b),16)}, {vr(EA+4*p,4)}, {vr(WC+4*b,4)}, 0"
    def mA(p, b): return "; " if "A" in de else f"{big} {vr(gb(p,b),16)}, {vr(OH+4*p,4)}, {vr(AP+4*b,4)}, {vr(gb(p,b),16)}"
    def mS(p): return "; " if "S" in de else f"{big} {vr(SP,16)}, {vr(OH+4*p,4)}, {vr(SC,4)}, 0"
    def mG(p, b, j): return "; " if ("G" in de or ("g" in de and j & 1)) else (f"{big} {vr(ACC+16*b,16)}, {vr(gb(p,b)+4*j,4)}, {vr(SP+4*j,4)}, {vr(ACC+16*b,16)}" if OPT.get("swapg") else f"{big} {vr(ACC+16*b,16)}, {vr(SP+4*j,4)}, {vr(gb(p,b)+4*j,4)}, {vr(ACC+16*b,16)}")
    def mP(p, b):
        o = []
        if "P" in de: return ["; "]*8
        for u in range(2):
            for j in range(4):
                g = vr(gb(p,b)+4*j, 4)
                o.append(f"v_mfma_f32_4x4x4_16b_bf16 {g}, {vr(PA+2*u,2)}, {vr(raw(p,b)+4*j+2*u,2)}, {g}")
        return o
    def idx_pair(p, b, i):
        g0, g1 = gb(p,b)+2*i, gb(p,b)+2*i+1
        if i < NTB[b]:
            return [f"v_exp_f32 v{g0}, v{g0}", f"v_exp_f32 v{g1}, v{g1}", f"v_add_f32 v{g0}, 1.0, v{g0}",
                    f"v_add_f32 v{g1}, 1.0, v{g1}", f"v_rcp_f32 v{g0}, v{g0}", f"v_rcp_f32 v{g1}, v{g1}"], []
        return [f"v_cvt_pkrtz_f16_f32 v{g0}, v{g0}, v{g1}",
                f"v_and_b32_sdwa v{g1}, s{cfe}, v{g0} {sd} src1_sel:WORD_1",
                f"v_and_b32 v{g0}, s{cfe}, v{g0}" if OPT.get("pand", "1") == "1" else f"v_and_b32_sdwa v{g0}, s{cfe}, v{g0} {sd} src1_sel:WORD_0"], \
               [f"ds_read_u16_d16_hi v{g1}, v{g1} offset:{LUTL}", f"ds_read_u16_d16_hi v{g0}, v{g0} offset:{LUTL}"]
    def fin_pair(p, b, i):
        g0, r0 = gb(p,b)+2*i, raw(p,b)+2*i
        mul = [f"v_pk_mul_f32 {vr(r0,2)}, {vr(g0,2)}, {vr(r0,2)}"] if OPT.get("pk") else [f"v_mul_f32 v{r0}, v{g0}, v{r0}", f"v_mul_f32 v{r0+1}, v{g0+1}, v{r0+1}"]
        return mul + [
                f"v_cvt_pk_bf16_f32 v{g0}, v{g0}, v{r0}", f"v_cvt_pk_bf16_f32 v{g0+1}, v{g0+1}, v{r0+1}"]
    def zipl(x, y):
        o = []
        for k in range(max(len(x), len(y))):
            if k < len(x): o.append(x[k])
            if k < len(y): o.append(y[k])
        return o
    uid = [0]
    def W(kind):
        uid[0] += 1
        return f"@W{kind} {uid[0]}"
    SH = int(OPT.get("short", "4"))
    D1F = OPT.get("d1f", "0") == "1"
    L3O = OPT.get("l3o", "1") == "1"
    F2 = OPT.get("f2", "0") == "1"
    XE = OPT.get("xe", "1") == "1"
    WE = int(OPT.get("we", "2"))
    def slot(p, b, kind, acc=True, np_=8, npg=8):
        q = 1-p
        nxt = (p, 1) if b == 0 else (q, 0)
        do_idx = b == 0 or kind != "L"
        gs = [[mG(q if b == 0 else p, 1-b, j)] for j in range(npg//2)] if acc else []
        ng = 3 if (b == 0 and OPT.get("e3", "1") == "1") else 2
        bigs = gs[:ng]
        if kind != "L": bigs += [[mE(q, b)], [mA(q, b)]]
        bigs += gs[ng:]
        if b == 0: bigs += [[mS(p)]]
        smalls = mP(q, b) if kind != "L" else []
        out = []
        nb = 0
        for i in range(8):
            if i >= np_:
                out += sum(bigs[nb:], []); nb = len(bigs)
                break
            iv, il = idx_pair(*nxt, i) if do_idx else ([], [])
            fv = fin_pair(p, b, i)
            seq = zipl(iv, fv) + il
            if SH:
                rr = range(16*i//SH, 16*(i+1)//SH) if i < SH else []
                if (b == 0 and kind != "L") or (b == 1 and kind == "F"):
                    for r_ in rr: seq += ld_raw(q, 1, r_) if b == 0 else ld_raw(p, 0, r_)
                if kind == "P" and b == 0 and i == SH and XE: seq += ld_xr()
                if kind == "F":
                    if b == 0:
                        for r_ in rr:
                            if r_ & 3 == 3: seq.append(rd_addr((2+p)*128, r_ >> 2))
                    if b == 0 and i == int(OPT.get("di", "4")): seq = dma_ea(p, vOa if L3O else None, check=False) + seq
                    if b == 1 and i == 1: seq += rd_prog()
                    if b == 1 and i == int(OPT.get("gi", "6")): seq += ([W("v")] if OPT.get("gw") and cur["r"] == "P" else []) + get_ea(p, p, (2+p)*128)
                    if b == 1 and i == (3 if L3O else 7): seq += rd_l3((3+p)*128, vOa if L3O else None)
                    if b == 0 and i == max(5, int(OPT.get("di", "4"))): seq.append(rd_l2(vOa, (2+p)*128))
                    if b == 1 and i == 2: seq += oh_idx(p)
            elif kind == "F":
                seq += ld_raw(p, b, 2*i) + ld_raw(p, b, 2*i+1)
                if b == 1 and i & 1: seq.append(rd_addr((3+p)*128, i >> 1))
                if OPT.get("burst"):
                    if p == 0 and b == 0 and i == 0: seq += rd_l3(3*128) + rd_l3(4*128, vOa)
                    if p == 0 and b == 0 and i == 4: seq = dma_ea(1) + dma_ea(2, vOa) + seq
                else:
                    if b == 0 and i == 1: seq += rd_l3((3+p)*128)
                    if b == 1 and i == 0: seq = dma_ea(q) + seq
                if b == 1 and i == 1: seq += rd_prog()
                if b == 1 and i == 6: seq += get_ea(p, p, (2+p)*128, (2,) if (OPT.get('burst') and p == 0) else ())
                if b == 0 and i == 5: seq.append(rd_l2(vOa, (2+p)*128))
                if b == 1 and i == 2: seq += oh_idx(p)
            pre = [W("l")] if i % WE == 0 else []
            if cur["r"] == "P" and kind != "L":
                if (b, i) == (0, 0): pre.append("s_setprio 2")
                if (b, i) == divmod(int(OPT.get("fair", "12")), 8): pre.append("s_setprio 0")
            if i < 6:
                take = 2 if (len(bigs) - nb) > (6 - i) else 1
                if nb < len(bigs): pre += bigs[nb]; nb += 1
                if take == 2 and nb < len(bigs):
                    seq = seq[:6] + bigs[nb] + seq[6:]; nb += 1
            if smalls and i >= 5:
                k0, k1 = {5: (0, 2), 6: (2, 6), 7: (6, 8)}[i]
                sm = smalls[k0:k1]
                if i == 5: seq = seq[:4] + [W("v")] + zipl(sm, seq[4:])
                else: seq = zipl(sm, seq)
            out += pre + seq
        assert nb == len(bigs)
        return out
    def last(p, np_):
        n = f"{p}{cur['r']}{np_}"
        return ([f"K2_LAST{n}:"] + ([] if XE else ld_xr()) + slot(p, 0, "L", np_=np_) + ["s_nop 11"]*(np_ < 6) + slot(p, 1, "L", np_=np_, npg=np_)
                + ["s_nop 1"] + [mG(p, 1, j) for j in range(np_//2)])
    def body(p, kind):
        q = 1-p; n = f"{kind}{p}{cur['r']}"
        o0 = [f"K2_BODY{n}:"] + slot(p, 0, kind)
        o1 = [f"K2_MID{n}:"] + (ld_xr() if kind == "L" else []) + slot(p, 1, kind)
        if OPT.get("prof") == "7": o1 += ["s_mov_b32 m0, s98", "s_add_u32 s98, s98, 1", f"v_writelane_b32 v{UR+5}, s86, m0", "s_memrealtime s[86:87]"]
        if kind == "P":
            for np_ in (2, 4, 6): o1 += [f"s_cmp_eq_u32 s{stail}, {np_}", f"s_cbranch_scc1 K2_LAST{q}{cur['r']}{np_}"]
        if kind == "F":
            if p == 1: o1 += [f"v_add_u32 v{r_}, 256, v{r_}" for r_ in ((vA1, vA2, vA3) if cur["r"] == "P" else (vA1, vA2))]
            o1 += [f"s_sub_u32 s{scount}, s{scount}, 1", f"s_cmp_eq_u32 s{scount}, 2", f"s_cbranch_scc1 K2_BODYP{q}{cur['r']}"]
        return o0, o1
    def entry_short(kind):
        more = kind != "L"
        o = rd_prog() + [W("v"), W("l")] + get_ea(0, 0, 0)
        if more: o += rd_prog() + ([] if D1F else rd_l3(128))
        o += [W("l"), "@STAMP", mE(0, 0), mA(0, 0), mE(0, 1), mA(0, 1)]
        if F2: o += ld_blk(0, 1) + [rd_addr(128, j) for j in range(4)]
        o += (dma_ea(1, check=False) if more and not D1F else []) + ["s_nop 7", W("v")] + mP(0, 0) + ["s_nop 3"]
        for i in range(8):
            v_, l_ = idx_pair(0, 0, i)
            o += [W("l")] + ([v_[0], v_[1], "s_nop 0"] + v_[2:] if i < NTB[0] else v_) + l_
            if more:
                if i < 4:
                    for r_ in range(4*i, 4*i+4): o += ld_raw(1, 0, r_)
                if i == 6: o += [W("v")] + get_ea(1, 1, 128)
                if i == (2 if L3O else 7) and kind == "F": o += rd_l3(256, vOa if L3O else None)
            if i == (5 if F2 else 3): o += [W("v")] + mP(0, 1)
        return o + slot(0, 0, kind, acc=False) + [f"s_branch K2_MID{kind}0{cur['r']}"]
    def entry(kind):
        if SH: return entry_short(kind)
        more = kind != "L"
        o = rd_prog() + [W("v"), W("l")] + get_ea(0, 0, 0)
        if more: o += rd_prog()
        o += [W("l"), "@STAMP", mE(0, 0), mA(0, 0), mE(0, 1), mA(0, 1), "s_nop 7", W("v")] + mP(0, 0) + ["s_nop 3"]
        for i in range(8):
            v_, l_ = idx_pair(0, 0, i)
            o += [W("l")] + ([v_[0], v_[1], "s_nop 0"] + v_[2:] if i < NTB[0] else v_) + l_
            if more:
                for r_ in range(4*(i & 3), 4*(i & 3)+4): o += ld_raw(1, i >> 2, r_)
                if i >= 4: o.append(rd_addr(256, i-4))
                if i == 4: o += [W("v")] + get_ea(1, 1, 128) + rd_l3(256)
                if i == 7: o += dma_ea(0)
            if i == 3: o += [W("v")] + mP(0, 1)
        return o + slot(0, 0, kind, acc=False) + [f"s_branch K2_MID{kind}0{cur['r']}"]
    def drain(p): return ["s_nop 1"] + [mG(p, 1, j) for j in range(4)]
    def mk_fill():
        ad = [rd_addr(0, j) for j in range(4)]
        t0 = SP
        o = []
        if cur["r"] == "P":
            o = (rd_l3(0) + [f"ds_read_b32 v{t0}, v{vA3} offset:{L2+128}"])
        o += ad + [rd_l2(vOa, 0), rd_l2(t0+1, 128)]
        if cur["r"] == "P":
            o += ["s_waitcnt lgkmcnt(6)"] + dma_ea(0) + [f"v_mov_b32 v{vEa}, v{t0}"]
        d1 = dma_ea(1) if (not SH or D1F) else []
        late1 = OPT.get("d1", "1") == "1" and not D1F
        o += ([] if late1 else d1) + ["s_waitcnt lgkmcnt(0)"] + ld_blk(0, 0) + oh_idx(0) + [f"v_mov_b32 v{vOa}, v{t0+1}"] + oh_idx(1)
        if F2: return o
        o += ld_blk(0, 1) + (d1 if late1 else [])
        return o + [rd_addr(128, j) for j in range(4)]
    FI, B, EN, LA_ = {}, {}, {}, {}
    for r in "PC":
        cur["r"] = r
        if r == "C" and OPT.get("ntc"): NTB[:] = [int(c_) for c_ in OPT["ntc"]]
        FI[r] = mk_fill()
        for k in "FPL":
            EN[r, k] = entry(k)
            for p in range(2): B[r, p, k] = body(p, k)
        for p in range(2):
            for np_ in (2, 4, 6, 8): LA_[r, p, np_] = last(p, np_)
    def trace(r, cnt, np_=8):
        kinds = ["F"]*(cnt-2) + ["P", "L"][-min(cnt, 2):]
        tr = FI[r] + EN[r, kinds[0]] + B[r, 0, kinds[0]][1]
        for t in range(1, cnt-1): tr += B[r, t & 1, kinds[t]][0] + B[r, t & 1, kinds[t]][1]
        if cnt > 1 and np_ < 8: tr = tr[:len(tr) - 2*(2 - (np_-2)//2)]
        tr += drain(0) if cnt == 1 else LA_[r, (cnt-1) & 1, np_]
        o = []; keep = True; nd = 0
        for x in tr:
            if x == "@D{": keep = nd < cnt; nd += 1
            elif x == "@}": keep = True
            elif keep and x != "@STAMP": o.append(x)
        return o
    epi_head = ["s_branch x", "s_cmp", "s_cbranch", "s_waitcnt vmcnt(0) lgkmcnt(0)"] + [f"v_add_f32 v{G+r_}, 0, v{XR}" for r_ in range(24)] + [f"v_add_f32 v{ACC+r_}, 0, v{ACC+r_}" for r_ in range(32)]
    cases = [(r, c, n_) for c in range(1, 9) for r in "PC" for n_ in (2, 4, 6, 8)]
    need = asmsim.solve_waits([trace(*c) for c in cases])
    for c in cases: asmsim.check_hazards(asmsim.apply_waits(trace(*c), need) + epi_head, f"case {c}")
    def emit(l):
        for x in asmsim.apply_waits(l, need):
            if x == "@STAMP":
                stamp(a, 5); stamp(a, 5, "3"); stamp(a, 7, "4")
                if OPT.get("prof") == "7": a("s_memrealtime s[86:87]\ns_mov_b32 s98, 1")
                if OPT.get("prof") == "3": a(f"s_memtime s[86:87]\ns_mov_b32 s90, s{scount}\ns_getreg_b32 s92, hwreg(HW_REG_HW_ID)")
            elif x[0] != "@": a(x.split(";")[0] or "s_nop 0")
    def main_loop(r):
        a(f"""
        K2_GO{r}:
        s_cmp_eq_u32 s{scount}, 0
        s_cbranch_scc1 K2_EMPTY
        s_cmp_gt_u32 s{scount}, 2
        s_cbranch_scc1 K2_ENTF{r}
        s_cmp_eq_u32 s{scount}, 2
        s_cbranch_scc1 K2_ENTP{r}
        """)
        emit(EN[r, "L"]); a(f"K2_ENTP{r}:"); emit(EN[r, "P"]); a(f"K2_ENTF{r}:"); emit(EN[r, "F"])
        a(".p2align 6")
        for _ in range(int(OPT.get("pad", "0"))): a("s_nop 0")
        for p in range(2): emit(B[r, p, "F"][0] + B[r, p, "F"][1])
        a(f"s_branch K2_BODYF0{r}")
        emit(B[r, 0, "L"][1] + drain(0)); a("s_branch K2_DONE")
        for p in range(2):
            for np_ in (2, 4, 6): emit(LA_[r, p, np_]); a("s_branch K2_DONE")
        for p in range(2):
            emit(B[r, p, "P"][0] + B[r, p, "P"][1] + LA_[r, 1-p, 8])
            if p == 0 or r == "P": a("s_branch K2_DONE")
    def fill(n):
        a(f"s_cmp_eq_u32 s{scount}, 0\ns_cbranch_scc1 K2_FILLED{n}")
        emit(FI[n])
        a(f"K2_FILLED{n}:")
    def ap_addr():
        a(f"""
        v_bfe_u32 v{vt}, v0, 2, 2
        v_lshrrev_b32 v{vt+1}, 1, v{vH16}
        v_add_u32 v{vt}, v{vt}, v{vt+1}
        v_mul_u32_u24 v{vt}, {ROWP}, v{vt}
        v_bfe_u32 v{vt+2}, v0, 4, 1
        v_lshl_add_u32 v{vt}, v{vt+2}, 5, v{vt}
        v_and_b32 v{vt+2}, 3, v0
        v_lshl_add_u32 v{vt}, v{vt+2}, 3, v{vt}
        s_mul_i32 s{st0}, s{sg}, {GN*ROWP}
        s_lshl_b32 s{st1}, s{sfh}, 7
        s_add_u32 s{st0}, s{st0}, s{st1}
        v_add_u32 v{vt}, s{st0}, v{vt}
        v_mul_u32_u24 v{vt+1}, {ROWP//2}, v{vt+1}
        v_and_b32 v{vt+2}, 127, v{vO}
        v_add3_u32 v{vt+1}, v{vt+2}, s{st0}, v{vt+1}
        """)
    def ap_read():
        a(f"""
        ds_read_b64_tr_b16 {vr(AP,2)}, v{vt} offset:{APL}
        ds_read_b64_tr_b16 {vr(AP+2,2)}, v{vt} offset:{APL+4*ROWP}
        ds_read_b64_tr_b16 {vr(AP+4,2)}, v{vt} offset:{APL+64}
        ds_read_b64_tr_b16 {vr(AP+6,2)}, v{vt} offset:{APL+4*ROWP+64}
        """)
        for r in range(6): a(f"ds_read_b32 v{UR+r}, v{vt+1} offset:{UL+ROWP*rowoff(r)}")
    def init_addr():
        for r in range(16): a(f"v_mov_b32 v{ADDR+r}, 128")
    def zero_acc():
        for r in range(32): a(f"v_mov_b32 v{ACC+r}, 0")

    a(f"s_cmp_lg_u32 s{sfh}, 0\ns_cbranch_scc1 K2_LOADER")
    if OPT.get("sp"): a(f"s_setprio {OPT['sp']}")
    ld_wc()
    a.ext(common1(SP, vt))
    a(f"v_and_b32 v{vt+3}, 15, v0\nv_lshlrev_b32 v{vt+3}, 4, v{vt+3}\nv_bfe_u32 v{vt+4}, v0, 4, 2\nv_lshl_add_u32 v{vt+3}, v{vt+4}, 10, v{vt+3}\ns_lshl_b32 s{st0}, s{sg}, 8\nv_add_u32 v{vt+3}, s{st0}, v{vt+3}")
    a(f"v_add_u32 v{vt+4}, 40960, v{vt+3}")
    for val, rg, runs in ((0x3f003f00, EA, (0, 3, 32, 35)), (0, EA+4, (23, 27)), (0x3f803f80, OH, (51, 55, 59))):
        for j in range(4): a(f"v_mov_b32 v{rg+j}, {val:#x}")
        for c0 in runs:
            a(f"ds_write_b128 v{vt+4 if c0 >= 24 else vt+3}, {vr(rg,4)} offset:{LUTL + 1024*(c0 - (40 if c0 >= 24 else 0))}")
    a(f"""
    v_and_b32 v{vt+3}, 127, v0
    v_bfe_u32 v{vt+4}, v0, 2, 4
    v_and_b32 v{Z+4}, 3, v0
    v_lshrrev_b32 v{Z+5}, 6, v{vt+3}
    v_lshlrev_b32 v{vt+3}, 2, v{vt+3}
    v_lshl_add_u32 v{Z+4}, v{Z+5}, 2, v{Z+4}
    v_lshlrev_b32 v{Z+5}, 1, v{Z+4}
    v_mov_b32 v{Z+6}, 0x3780
    v_mov_b32 v{Z+7}, 0x37800000
    v_cmp_eq_u32 vcc, v{Z+5}, v{vt+4}
    v_add_u32 v{Z+5}, 1, v{Z+5}
    s_nop 0
    v_cndmask_b32 v{Z+8}, 0, v{Z+6}, vcc
    v_cmp_eq_u32 vcc, v{Z+5}, v{vt+4}
    s_nop 1
    v_cndmask_b32 v{Z+9}, 0, v{Z+7}, vcc
    v_or_b32 v{Z+8}, v{Z+8}, v{Z+9}
    v_cmp_gt_u32 vcc, 15, v{vt+4}
    s_nop 1
    v_cndmask_b32 v{Z+8}, 0, v{Z+8}, vcc
    ds_write_b32 v{vt+3}, v{Z+8} offset:{OHL}
    """)
    a(f"""
    v_mul_u32_u24 v{EOFF}, {CS*32}, v{vt+1}
    v_add_u32 v{EOFF+1}, {64*CS*32}, v{EOFF}
    v_mov_b32 v{vt+3}, 4
    """)
    init_addr()
    a(f"s_waitcnt vmcnt({2 + (TP0 > 0)})")
    stamp(a, 2); stamp(a, 1, "5")
    if OPT.get("half", "0") == "1":
        for u in range(2): a(f"v_mov_b32_dpp v{vt+8+u}, v{REC+4*u+3} quad_perm:[3,3,3,3] row_mask:0xf bank_mask:0xf")
        for u in range(2): a(f"v_cmp_eq_u32 {sr(68+2*u,2)}, -1, v{vt+8+u}")
        a("s_nop 0")
        for u in range(2):
            for i in range(4): a(f"v_cndmask_b32 v{REC+8+4*u+i}, v{REC+8+4*u+i}, -1, {sr(68+2*u,2)}")
    a(f"""
    v_cmp_eq_u32 vcc, -2, v{REC+11}
    v_cmp_eq_u32 s[78:79], -2, v{REC+15}
    s_or_b64 vcc, vcc, s[78:79]
    s_cbranch_vccz K2_NOOVF
    v_mov_b32 v{vt+4}, 0x10000
    v_mov_b32 v{vt}, 60
    ds_add_u32 v{vt}, v{vt+4} offset:{CNT}
    K2_NOOVF:
    """)
    M = [68, 70, 72, 74, 76, 78]
    KS = [[4*u+i for i in range(4)] + [8+4*u, 9+4*u] for u in range(2)]
    def masked(u, fn):
        for j, k in enumerate(KS[u]): a(f"v_cmp_gt_u32 {sr(M[j],2)}, -2, v{REC+k}")
        for j, k in enumerate(KS[u]): a(f"s_mov_b64 exec, {sr(M[j],2)}\n{fn(k, 6*u+j)}")
        a("s_mov_b64 exec, -1")
    for k in KS[0] + KS[1]: a(caddr(k))
    for u in range(2): masked(u, lambda k, j: f"ds_add_rtn_u32 v{RANK+k}, v{CADDR+k}, v{vt+3} offset:{CNT}")
    a(f"v_min_u32 v{vt+4}, v{REC+10}, v{REC+14}\nv_cmp_gt_u32 s[26:27], -2, v{vt+4}")
    def steps(tag, fn):
        a(f"s_cmp_eq_u64 s[26:27], 0\ns_cbranch_scc1 K2_{tag}1\ns_waitcnt lgkmcnt(0)")
        for u in range(2):
            for k in (10+4*u, 11+4*u):
                a(f"v_cmpx_gt_u32 vcc, -2, v{REC+k}\ns_cbranch_execz K2_{tag}{u}")
                fn(k, u)
            a(f"K2_{tag}{u}:\ns_mov_b64 exec, -1")
    steps("C", lambda k, u: a(f"{caddr(k)}\nds_add_rtn_u32 v{RANK+k}, v{CADDR+k}, v{vt+3} offset:{CNT}"))
    arrive(0)
    stamp(a, 2, "5")
    LA, LB = raw(0, 0), raw(0, 1)
    for u in range(2):
        for j, k in enumerate(KS[u]):
            a(f"v_bfe_u32 v{LA+6*u+j}, v{REC+k}, 16, {5 if 't' in OPT.get('nomem','') else 14}\nv_mad_u32_u16 v{LB+6*u+j}, v{REC+k}, 2, v{EOFF+u}")
    NBK = int(OPT.get("nbk", "0"))
    if NBK:
        for u in range(2):
            for j, k in enumerate(KS[u]): a(f"v_and_b32 v{vt+8}, 0x3c, v{CADDR+k}\nv_cmp_gt_u32 {sr(M[j],2)}, {4*NBK}, v{vt+8}")
            for j, k in enumerate(KS[u]): a(f"s_mov_b64 exec, {sr(M[j],2)}\nbuffer_load_ubyte v{vt+12}, v{LB+6*u+j}, {sr(sE,4)}, 0 offen")
            a("s_mov_b64 exec, -1")
    for j in range(12): a(f"v_mul_u32_u24 v{LA+j}, s{csrc}, v{LA+j}")
    spin(0, "A", add=False)
    stamp(a, 3, "5")
    scan(True, KS[0] + KS[1])
    a("s_waitcnt lgkmcnt(1)")
    stamp(a, 4, "5")
    for j, k in enumerate(KS[0] + KS[1]): a(f"v_add_u32 v{STV+j}, v{STV+j}, v{RANK+k}")
    for j, k in enumerate(KS[0] + KS[1]): a(f"v_lshlrev_b32 v{RANK+k}, 3, v{STV+j}")
    for j, k in enumerate(KS[0] + KS[1]): a(f"v_and_or_b32 v{LA+j}, v{RANK+k}, s{c128}, v{LA+j}")
    for u in range(2): masked(u, lambda k, j: f"ds_write2st64_b32 v{STV+j}, v{LA+j}, v{LB+j} offset0:{L1//256} offset1:{L2//256}")
    def put_step(k, u):
        a(f"ds_read_b32 v{STV+12}, v{CADDR+k} offset:{START}\ns_waitcnt lgkmcnt(0)")
        place(k, STV+12, EOFF+u)
    steps("P", put_step)
    arrive(1)
    stamp(a, 5, "5")
    lane_setup()
    stamp(a, 6, "5")
    if OPT.get("order", "1") == "1":
        a(f"""
        v_mov_b32 v{vt+6}, {FLG+4}
        K2_SPINB:
        ds_read2_b32 {vr(vt+8,2)}, v{vt+6} offset0:0 offset1:1
        s_waitcnt lgkmcnt(0)
        v_min_u32 v{vt+7}, v{vt+8}, v{vt+9}
        v_cmp_gt_u32 vcc, 4, v{vt+7}
        s_cbranch_vccnz K2_SPINB
        """)
    else: spin(1, "B", add=False)
    stamp(a, 3); stamp(a, 7, "5")
    a("K2_REFILLP:")
    fill("P")
    stamp(a, 4)
    a(f"s_cmp_lg_u32 s{sslow}, 0\ns_cbranch_scc1 K2_GOP")
    zero_acc()
    ap_addr()
    spin(3, "D", add=False)
    ap_read()
    main_loop("P")
    a("K2_GIVEUP:")
    arrive(1)
    spin(3, "E", add=False)
    a("s_branch K2_SLOW")
    assert XL % 256 == 0
    XF = G; WT = [ACC, raw(0, 0)]
    accs = [[[raw(1,0)+8*nb, raw(1,0)+8*nb+4] for nb in range(3)], [[raw(1,1)+8, raw(1,1)+12], [SP, SP+4], [SP+8, ADDR]]]
    a(f"""
    K2_LOADER:
    v_lshrrev_b32 v{vt+4}, 4, v{vt}
    s_lshl_b32 s{st1}, s{sg}, 2
    v_add_u32 v{vA1}, s{st1}, v{vt+4}
    v_and_b32 v{vt+5}, 15, v0
    v_xor_b32 v{vA1}, v{vA1}, v{vt+5}
    v_lshlrev_b32 v{vA1}, 4, v{vA1}
    v_lshl_add_u32 v{vA1}, v{vt+4}, 8, v{vA1}
    s_lshl_b32 s{st1}, s{sg}, 10
    """)
    if OPT.get("nobulk"):
        ld_wc()
        a.ext(common1(XR+1, vt))
        a(f"v_and_b32 v{vt+2}, 255, v0\nv_lshlrev_b32 v{vt+2}, 4, v{vt+2}")
        for j in range(4): a(f"v_mov_b32 v{EA+j}, 0")
        for j in range(4): a(f"ds_write_b128 v{vt+2}, {vr(EA,4)} offset:{APL+4096*j}")
        arrive(2); arrive(3)
        a("s_branch K2_NOBULK")
    for k in range(3):
        a(f"""
        s_add_u32 m0, s{st1}, {XL+4096*k}
        s_add_u32 s{st2}, s{st1}, {4096*k}
        buffer_load_dwordx4 v{vA1}, {sr(sX,4)}, s{st2} offen lds
        """)
    stamp(a, 1, "6")
    srot = sk
    a(f"s_lshl_b32 s{slut}, s{sg}, 13\ns_lshr_b32 s{srt}, s2, 3")
    for j in range(4):
        a(f"s_add_u32 s{srot+j}, s{srt}, {j}\ns_and_b32 s{srot+j}, s{srot+j}, 3\ns_lshl_b32 s{srot+j}, s{srot+j}, 10\ns_add_u32 s{st2}, s{slut}, s{srot+j}")
        for m in range(2):
            for hf in range(2):
                a(f"buffer_load_dwordx4 {vr(WT[m]+16*hf+4*j,4)}, v{vA2}, {sr(sWT,4)}, s{st2} offen")
                if (m, hf) != (1, 1): a(f"s_add_u32 s{st2}, s{st2}, {4096 if hf == 0 else 32768-4096}")
    stamp(a, 2, "6")
    a(f"""
    s_lshl_b32 s{st0}, s{sg}, 12
    s_add_u32 m0, s{st0}, {LUTL + 7*1024}
    s_add_u32 s{st2}, s{st0}, {LUT_OFF - WT_OFF + 7*1024}
    """)
    for j in range(4): a(f"buffer_load_dwordx4 v{vA2}, {sr(sWT,4)}, s{st2} offen offset:{1024*j} lds")
    a(f"""
    s_mul_i32 s{st0}, s{sg}, 3072
    s_add_u32 m0, s{st0}, {LUTL + 39*1024}
    s_add_u32 s{st2}, s{st0}, {LUT_OFF - WT_OFF + 39*1024}
    """)
    for j in range(3): a(f"buffer_load_dwordx4 v{vA2}, {sr(sWT,4)}, s{st2} offen offset:{1024*j} lds")
    a(f"""
    s_and_b32 s{st0}, s{sg}, 1
    s_lshl_b32 s{st0}, s{st0}, 15
    s_add_u32 m0, s{st0}, {LUTL + 31*1024}
    s_add_u32 s{st2}, s{st0}, {LUT_OFF - WT_OFF + 31*1024}
    buffer_load_dwordx4 v{vA2}, {sr(sWT,4)}, s{st2} offen lds
    """)
    ld_wc()
    stamp(a, 3, "6")
    a(f"""
    s_waitcnt vmcnt(26)
    """)
    arrive(2)
    a(f"""
    v_mov_b32 v{vt+8}, v{vt}
    v_and_b32 v{vt}, 15, v0
    v_bfe_u32 v{vt+1}, v0, 4, 2
    v_xor_b32 v{vt+2}, v{vt}, v{vt+1}
    v_lshlrev_b32 v{vt+2}, 4, v{vt+2}
    v_lshl_add_u32 v{vt+2}, v{vt}, 8, v{vt+2}
    v_add_u32 v{vt+2}, {XL}, v{vt+2}
    v_mul_u32_u24 v{vt}, {ROWP}, v{vt}
    """)
    stamp(a, 2); stamp(a, 5, "6")
    spin(2, "C", add=False)
    stamp(a, 6, "6")
    for s in range(4):
        a(f"s_lshr_b32 s{st0}, s{srot+s}, 4\nv_xor_b32 v{vt+3}, s{st0}, v{vt+2}")
        for nb in range(3):
            a(f"ds_read_b128 {vr(XF+16*nb+4*s,4)}, v{vt+3} offset:{4096*nb}")
    a(f"""
    s_lshr_b32 s{st0}, s{sg}, 1
    s_lshl_b32 s{st0}, s{st0}, 7
    s_and_b32 s{st1}, s{sg}, 1
    s_lshl_b32 s{st1}, s{st1}, 5
    s_add_u32 s{st0}, s{st0}, s{st1}
    v_lshl_add_u32 v{vt+4}, v{vt+1}, 3, v{vt}
    v_add_u32 v{vt+4}, s{st0}, v{vt+4}
    s_lshl_b32 s{st0}, s{sg}, 6
    v_lshl_add_u32 v{vt+5}, v{vt+1}, 3, v{vt}
    v_add_u32 v{vt+5}, s{st0}, v{vt+5}
    """)
    def mm1(m, s):
        return [f"v_mfma_f32_16x16x32_bf16 {vr(accs[m][nb][ab], 4)}, {vr(WT[m]+16*ab+4*s,4)}, {vr(XF+16*nb+4*s,4)}, {'0' if s == 0 else vr(accs[m][nb][ab], 4)}"
                for nb in range(3) for ab in range(2)]
    outA = []
    for nb in range(3):
        al, be = accs[0][nb]; o = EA+ (0 if nb != 1 else 4)
        for i in range(4): outA += [f"v_mul_f32 v{al+i}, s{cnl2e}, v{al+i}", f"v_mul_f32 v{be+i}, s{cnl2e}, v{be+i}"]
        outA += [f"v_cvt_pk_bf16_f32 v{o}, v{al}, v{al+2}", f"v_cvt_pk_bf16_f32 v{o+1}, v{be}, v{be+2}",
                 f"v_cvt_pk_bf16_f32 v{o+2}, v{al+1}, v{al+3}", f"v_cvt_pk_bf16_f32 v{o+3}, v{be+1}, v{be+3}",
                 f"ds_write_b64 v{vt+4}, {vr(o,2)} offset:{APL+16*ROWP*nb}", f"ds_write_b64 v{vt+4}, {vr(o+2,2)} offset:{APL+16*ROWP*nb+64}"]
    NPF = int(OPT.get("tpf", "0"))
    if NPF:
        srd(a, sS, 14, T_OFF, N*TS)
        a(f"""
        s_bfe_u32 s{st0}, s2, 0x50003
        s_lshl_b32 s{st0}, s{st0}, 2
        s_add_u32 s{st0}, s{st0}, s{sg}
        s_lshl_b32 s{st0}, s{st0}, 13
        v_lshlrev_b32 v{vt+9}, 7, v{vt+8}
        """)
        for j in range(NPF):
            a(f"buffer_load_dword v{vt+10}, v{vt+9}, {sr(sS,4)}, s{st0} offen")
            if j+1 < NPF: a(f"s_add_u32 s{st0}, s{st0}, {1 << 20}")
    g = []; cm = common1(XR+1, vt+8); k = 0
    for s in range(4):
        g.append(f"s_waitcnt vmcnt({22-4*s+NPF}) lgkmcnt({9-3*s})")
        for x in mm1(0, s) + (mm1(1, s) if s < 3 else []):
            g.append(x); g += cm[k:k+3]; k += 3
    assert k >= len(cm)
    k = 0
    for j, x in enumerate(mm1(1, 3)):
        g.append(x)
        if j >= 2: g += outA[k:k+3]; k += 3
    g += outA[k:]
    for nb in range(3):
        al, be = accs[1][nb]; o = XF+4*nb
        g += [f"v_cvt_pk_bf16_f32 v{o}, v{al}, v{al+1}", f"v_cvt_pk_bf16_f32 v{o+1}, v{al+2}, v{al+3}",
              f"v_cvt_pk_bf16_f32 v{o+2}, v{be}, v{be+1}", f"v_cvt_pk_bf16_f32 v{o+3}, v{be+2}, v{be+3}",
              f"ds_write_b64 v{vt+5}, {vr(o,2)} offset:{UL+16*ROWP*nb}", f"ds_write_b64 v{vt+5}, {vr(o+2,2)} offset:{UL+16*ROWP*nb+32}"]
    asmsim.check_hazards(g, "gemm")
    a.ext(g)
    a(f"s_waitcnt vmcnt({NPF})")
    arrive(3)
    a("K2_NOBULK:")
    stamp(a, 3); stamp(a, 7, "6")
    init_addr()
    spin(1, "F", add=False)
    a(f"""
    v_mov_b32 v{vt+2}, {INCL+60}
    ds_read2_b32 {vr(vt+4,2)}, v{vt+2} offset0:0 offset1:16
    ds_read2_b32 {vr(vt+6,2)}, v{vt+2} offset0:32 offset1:48
    s_waitcnt lgkmcnt(0)
    """)
    for g_ in range(4): a(f"v_readfirstlane_b32 s{sk+g_}, v{vt+4+g_}")
    a(f"""
    s_max_u32 s{st0}, s{sk}, s{sk+1}
    s_max_u32 s{st1}, s{sk+2}, s{sk+3}
    s_max_u32 s{st0}, s{st0}, s{st1}
    s_cmp_gt_u32 s{st0}, {CAPG*4}
    s_cbranch_scc1 K2_SLOW
    """)
    a("s_setprio 1")
    rank_groups()
    lane_setup()
    a("K2_REFILLC:")
    fill("C")
    a(f"s_cmp_lg_u32 s{sslow}, 0\ns_cbranch_scc1 K2_GOC")
    zero_acc()
    ap_addr()
    spin(3, "G", add=False)
    ap_read()
    stamp(a, 4)
    a("s_branch K2_GOC")
    a("K2_EMPTY:"); a.ext(ld_xr()); a("s_branch K2_DONE")
    for n in spins:
        a(f"""
        K2_SP{n}:
        ds_read_b32 v{vEa}, v{vPG}
        s_waitcnt lgkmcnt(0)
        v_cmp_gt_u32 vcc, s{sneed}, v{vEa}
        s_cbranch_vccnz K2_SP{n}
        s_branch K2_OK{n}
        """)
    main_loop("C")
    a(f"""
    K2_DONE:
    s_cmp_lg_u32 s{sslow}, 0
    s_cbranch_scc1 K2_ROUND
    K2_EPI:
    s_waitcnt vmcnt(0) lgkmcnt(0)
    """)
    stamp(a, 6); stamp(a, 6, "3")
    if OPT.get("prof") == "3": a("s_memtime s[88:89]")
    T0 = G
    if OPT.get("pke", "1") == "1":
        a(f"s_mov_b32 s{st0+1}, 0x358637bd\ns_mov_b32 s{st0+2}, 0x358637bd")
        for b in range(2):
            for r in range(6):
                u, x = T0+12*b+r, T0+12*b+6+r
                if b == 0: a(f"v_lshlrev_b32 v{u}, 16, v{UR+r}\nv_lshlrev_b32 v{x}, 16, v{XR+r}")
                else: a(f"v_and_b32 v{u}, 0xffff0000, v{UR+r}\nv_and_b32 v{x}, 0xffff0000, v{XR+r}")
        for b in range(2):
            for r in range(0, 6, 2): a(f"v_pk_add_f32 {vr(ACC+16*b+r,2)}, {vr(ACC+16*b+r,2)}, {sr(st0+1,2)}")
            for r in range(6): a(f"v_rcp_f32 v{ACC+16*b+r}, v{ACC+16*b+r}")
        for b in range(2):
            for r in range(0, 6, 2): a(f"v_pk_fma_f32 {vr(T0+12*b+r,2)}, {vr(ACC+16*b+8+r,2)}, {vr(ACC+16*b+r,2)}, {vr(T0+12*b+r,2)}")
        for b in range(2):
            for r in range(6): a(f"v_max_f32 v{T0+12*b+r}, 0, v{T0+12*b+r}")
        for b in range(2):
            for r in range(0, 6, 2): a(f"v_pk_add_f32 {vr(T0+12*b+r,2)}, {vr(T0+12*b+r,2)}, {vr(T0+12*b+6+r,2)}")
    else:
        for b in range(2):
            for r in range(6):
                a(f"v_add_f32 v{ACC+16*b+r}, 0x358637bd, v{ACC+16*b+r}")
            for r in range(6):
                a(f"v_rcp_f32 v{ACC+16*b+r}, v{ACC+16*b+r}")
            for r in range(6):
                u, x = T0+12*b+r, T0+12*b+6+r
                if b == 0: a(f"v_lshlrev_b32 v{u}, 16, v{UR+r}\nv_lshlrev_b32 v{x}, 16, v{XR+r}")
                else: a(f"v_and_b32 v{u}, 0xffff0000, v{UR+r}\nv_and_b32 v{x}, 0xffff0000, v{XR+r}")
            for r in range(6):
                u, x = T0+12*b+r, T0+12*b+6+r
                a(f"v_fmac_f32 v{u}, v{ACC+16*b+8+r}, v{ACC+16*b+r}\nv_max_f32 v{u}, 0, v{u}\nv_add_f32 v{u}, v{u}, v{x}")
    a(f"v_lshl_or_b32 v{vO2}, v{vH16}, 27, v{vO}")
    WTH = int(OPT.get("wth", "1275"))
    def outs(fl):
        for r in range(6):
            a(f"v_cvt_pk_bf16_f32 v{SP+r}, v{T0+r}, v{T0+12+r}")
            a(f"buffer_store_dword v{SP+r}, v{vO if r < 4 else vO2}, {sr(sO,4)}, 0 offen offset:{256*rowoff(r)} {fl}")
    if WTH:
        a(f"s_cmp_gt_u32 s{stot}, {4*WTH}\ns_cbranch_scc1 K2_PLAIN")
        outs("sc1")
        a("s_branch K2_OUT\nK2_PLAIN:")
    outs(OPT.get('st_o', ''))
    a("K2_OUT:")
    stamp(a, 7)
    stamp_out(a, 1, 14, sw, 2)
    a("K2_END:\ns_endpgm")

    a("K2_SLOW:")
    srd(a, sS, 8, None, E*4)
    srd(a, sD, 10, None, E*4)
    a(f"""
    s_mov_b32 s{sslow}, 1
    s_mov_b32 s{cm10}, {-GN}
    """)
    a("s_waitcnt vmcnt(0) lgkmcnt(0)\ns_barrier")
    zero_acc(); lane_setup(); ap_addr(); ap_read()
    a(f"""
    K2_ROUND:
    s_cmp_ge_u32 s{sround}, {E//RND}
    s_cbranch_scc1 K2_EPI
    s_mul_i32 s{st0}, s{sround}, {RND}
    s_add_u32 s{sround}, s{sround}, 1
    v_add_u32 v{EOFF}, s{st0}, v0
    v_lshlrev_b32 v{vt}, 2, v{EOFF}
    buffer_load_dword v{REC}, v{vt}, {sr(sD,4)}, 0 offen
    buffer_load_dword v{REC+1}, v{vt}, {sr(sS,4)}, 0 offen
    v_lshlrev_b32 v{EOFF}, 5, v{EOFF}
    v_and_b32 v{vt}, 63, v0
    v_lshlrev_b32 v{vt}, 3, v{vt}
    v_mov_b32 v{vt+4}, 0
    v_mov_b32 v{vt+5}, 0
    s_waitcnt lgkmcnt(0)
    s_barrier
    ds_write_b64 v{vt}, {vr(vt+4,2)} offset:{CNT}
    v_mov_b32 v{vt+3}, 4
    s_waitcnt vmcnt(0) lgkmcnt(0)
    s_barrier
    """)
    rec_fields(a, REC, REC+2, vt, cm40, cm10)
    a(f"""
    v_cmp_eq_u32 vcc, s2, v{REC+2}
    v_lshl_or_b32 v{REC}, v{REC+1}, 16, v{REC}
    {caddr(0)}
    s_mov_b64 s[78:79], vcc
    v_cmp_gt_u32 vcc, {RND}, v0
    s_and_b64 s[78:79], s[78:79], vcc
    s_mov_b64 exec, s[78:79]
    ds_add_rtn_u32 v{RANK}, v{CADDR}, v{vt+3} offset:{CNT}
    s_mov_b64 exec, -1
    s_waitcnt lgkmcnt(0)
    s_barrier
    """)
    scan(False)
    a(f"""
    s_mov_b64 exec, s[78:79]
    ds_read_b32 v{STV}, v{CADDR} offset:{START}
    s_waitcnt lgkmcnt(0)
    """)
    place(0, STV, EOFF)
    a(f"""
    s_mov_b64 exec, -1
    """)
    lane_setup()
    a(f"""
    s_waitcnt lgkmcnt(0)
    s_barrier
    s_cmp_eq_u32 s{sfh}, 0
    s_cbranch_scc1 K2_REFILLP
    s_branch K2_REFILLC
    K2_CODE_END:
    """)
    return a.text(), kd("k2_kernel", 256, 102)

KE_PROF = f"""
    s_memrealtime s[8:9]
    s_load_dwordx2 s[4:5], s[0:1], 88
    s_waitcnt lgkmcnt(0)
    s_add_u32 s4, s4, {PROF_OFF + 0x200000}
    s_addc_u32 s5, s5, 0
    s_mov_b32 s6, 4
    s_mov_b32 s7, 0x20000
    v_mov_b32 v1, s8
    v_lshlrev_b32 v0, 2, v0
    buffer_store_dword v1, v0, s[4:7], 0 offen
"""
def gen_kr():
    a = Asm()
    a(f"""
    kr_kernel:
    s_cmp_ge_u32 s2, 1
    s_cbranch_scc1 KR_END
    s_load_dwordx4 s[4:7], s[0:1], 80
    s_waitcnt lgkmcnt(0)
    s_add_u32 s8, s6, {PROF_OFF}
    s_addc_u32 s9, s7, 0
    s_mov_b32 s10, 0x200000
    s_mov_b32 s11, 0x20000
    s_mov_b32 s6, 256
    s_mov_b32 s7, 0x20000
    v_cmp_gt_u32 vcc, 250, v0
    s_and_saveexec_b64 s[12:13], vcc
    v_lshlrev_b32 v1, 10, v0
    v_mov_b32 v3, 0
    """)
    sel = [(0, 8, 0, 1), (0, 8, 0, 0), (0, 8, 2, 0), (0, 8, 3, 0), (0, 8, 5, 0), (0, 8, 8, 0),
           (1, 8, 0, 1), (1, 8, 0, 0), (1, 8, 2, 0), (1, 8, 3, 0), (1, 8, 5, 1), (1, 8, 5, 0), (1, 8, 6, 1), (1, 8, 6, 0), (1, 8, 8, 0)]
    w0 = 0
    if OPT.get("krsel"):
        w0, st_, mn_ = [int(x) for x in OPT["krsel"].split(",")]
        sel = [(1, 4, 0, 1), (1, 4, st_, mn_)]
    for j, (kn, nw, st, mn) in enumerate(sel):
        a(f"s_mov_b32 s14, {kn*0x100000 + 64*w0}")
        for w in range(nw): a(f"buffer_load_dword v{10+w}, v1, s[8:11], s14 offen offset:{64*w+4*st}")
        a("s_waitcnt vmcnt(0)")
        if mn:
            for w in range(nw): a(f"v_not_b32 v{10+w}, v{10+w}")
        for w in range(1, nw): a(f"v_max_u32 v10, v10, v{10+w}")
        a(f"buffer_atomic_umax v10, v3, s[4:7], 0 offen offset:{4*j}\ns_waitcnt vmcnt(0)")
    if OPT.get("iv"):
        ja, jb, k = [int(x) for x in OPT["iv"].split(",")]
        a(f"""
        s_barrier
        buffer_load_dword v10, v3, s[4:7], 0 offen offset:{4*ja} sc0 sc1
        buffer_load_dword v11, v3, s[4:7], 0 offen offset:{4*jb} sc0 sc1
        s_waitcnt vmcnt(0)
        v_readfirstlane_b32 s16, v10
        v_readfirstlane_b32 s17, v11
        """)
        if sel[ja][3]: a("s_not_b32 s16, s16")
        if sel[jb][3]: a("s_not_b32 s17, s17")
        a(f"""
        s_sub_u32 s16, s16, s17
        s_min_u32 s16, s16, 10000
        s_mul_i32 s16, s16, {k}
        s_memrealtime s[18:19]
        s_waitcnt lgkmcnt(0)
        KR_SPIN:
        s_memrealtime s[20:21]
        s_waitcnt lgkmcnt(0)
        s_sub_u32 s20, s20, s18
        s_cmp_lt_u32 s20, s16
        s_cbranch_scc1 KR_SPIN
        """)
    a("KR_END:\ns_endpgm")
    return a.text()

DOC = """;
; k1: bins the edges by destination (128 chunks x 256 bins, 32 slots a segment), builds the node table
;     T = (x@w_v : -log2e * x@w_b) as bf16 pairs, MFMA-ready weight fragments and a sigmoid table indexed by f16 bits.
;     rescan of the raw edge list.
"""
def main():
    k1, d1 = gen_k1(); k2, d2 = gen_k2()
    ref = open("standalone__edge_featured_mpnn_gatedgcn__graph.s.ref").read().split("\n")
    out = "\n".join(ref[:13]) + "\n"
    for ch in OPT.get("list", "12"):
        if ch == "1": out += f"; @launch kernel=k1_kernel grid=({2*NCH},1,1) block=(512,1,1) lds={K1_LDS}\n"
        if ch == "2": out += f"; @launch kernel=k2_kernel grid=({NBIN},1,1) block=(512,1,1) lds={K2_LDS}\n"
        if ch == "r": out += "; @launch kernel=kr_kernel grid=(1,1,1) block=(256,1,1) lds=0\n"
        if ch == "e": out += "; @launch kernel=ke_kernel grid=(1,1,1) block=(64,1,1) lds=0\n"
    out += DOC
    out += '.amdgcn_target "amdgcn-amd-amdhsa--gfx950"\n.text\n'
    for n, k in (("k1_kernel", k1), ("k2_kernel", k2)):
        out += f".globl {n}\n.p2align 8\n.type {n},@function\n" + k
    if "e" in OPT.get("list", ""): out += ".globl ke_kernel\n.p2align 8\n.type ke_kernel,@function\nke_kernel:\n" + (KE_PROF if OPT.get("prof") else "") + "    s_endpgm\n"
    if "r" in OPT.get("list", ""): out += ".globl kr_kernel\n.p2align 8\n.type kr_kernel,@function\n" + gen_kr()
    out += '.section .rodata,"a"\n.p2align 6\n' + d1.lstrip("\n") + '.p2align 6\n' + d2.lstrip("\n")
    if "e" in OPT.get("list", ""): out += '.p2align 6\n' + kd("ke_kernel", 8, 16).lstrip("\n")
    if "r" in OPT.get("list", ""): out += '.p2align 6\n' + kd("kr_kernel", 32, 32).lstrip("\n")
    open(sys.argv[1], "w").write(out)

if __name__ == "__main__":
    main()
```
